```python
import torch

def _softmax(x, axis=-1):
    return torch.softmax(x, dim=axis)
def _gelu(x):
    return torch.nn.functional.gelu(x, approximate="tanh")
def _silu(x):
    return torch.nn.functional.silu(x)
def _sigmoid(x):
    return torch.sigmoid(x)
def _layernorm(x, axis=-1, eps=1e-5):
    m = x.mean(dim=axis, keepdim=True)
    v = x.var(dim=axis, keepdim=True, unbiased=False)
    return (x - m) / torch.sqrt(v + eps)
def _scatter_add(tgt, idx, src, axis=0):
    return tgt.clone().index_add_(axis, idx, src)
def _segment_sum(src, seg, n):
    out = torch.zeros((n,) + src.shape[1:], dtype=src.dtype)
    return out.index_add_(0, seg, src)
def _pad(x, pw):
    flat = tuple(v for pair in reversed(pw) for v in pair)
    return torch.nn.functional.pad(x, flat)

kernel_name = 'gated_mix__compressed_kv_cla__mixer_token_mlp__prompt'

def setup_inputs():

    _w = (lambda a: (lambda t: t.to(torch.bfloat16) if t.is_floating_point() else t)(torch.as_tensor(a)))
    def _A_setup():
        B, H, Sq, Sk, D, M = 1, 32, 2048, 2048, 128, 512
        Dc = 4 * D
        return {
            "x": _w((lambda *s: torch.randn(*s, dtype=torch.bfloat16) * 0.05)(B, Sq, M)),
            "c_kv": _w((lambda *s: torch.randn(*s, dtype=torch.bfloat16) * 0.8)(B, Sk, Dc)),
            "w_q": _w((lambda *s: torch.randn(*s, dtype=torch.bfloat16) * 6.4)(M, H, D) * (M ** -0.5)),
            "w_uk": _w((lambda *s: torch.randn(*s, dtype=torch.bfloat16) * 6.4)(Dc, H, D) * (Dc ** -0.5)),
            "w_uv": _w((lambda *s: torch.randn(*s, dtype=torch.bfloat16) * 0.8)(Dc, H, D) * (Dc ** -0.5)),
            "w_o": _w((lambda *s: torch.randn(*s, dtype=torch.bfloat16) * 0.8)(H, D, M) * ((H * D) ** -0.5)),
        }
    _A_in = _A_setup()

    def _B_setup():
        B, S, D, F = 1, 2048, 512, 1792
        return {
            "x": _w((lambda *s: torch.randn(*s, dtype=torch.bfloat16) * 0.05)(B, S, D)),
            "w1": _w((lambda *s: torch.randn(*s, dtype=torch.bfloat16) * 3.2)(S, F) * (S ** -0.5)),
            "b1": _w((lambda *s: torch.randn(*s, dtype=torch.bfloat16) * 3.2)(F) * 0.02),
            "w2": _w((lambda *s: torch.randn(*s, dtype=torch.bfloat16) * 0.1)(F, S) * (F ** -0.5)),
            "b2": _w((lambda *s: torch.randn(*s, dtype=torch.bfloat16) * 0.1)(S) * 0.02),
        }
    _B_in = _B_setup()

    return {
        "A_x": _A_in["x"],
        "A_c_kv": _A_in["c_kv"],
        "A_w_q": _A_in["w_q"],
        "A_w_uk": _A_in["w_uk"],
        "A_w_uv": _A_in["w_uv"],
        "A_w_o": _A_in["w_o"],
        "B_x": _B_in["x"],
        "B_w1": _B_in["w1"],
        "B_b1": _B_in["b1"],
        "B_w2": _B_in["w2"],
        "B_b2": _B_in["b2"],
        "gate_w": _w((lambda *s: torch.randn(*s, dtype=torch.bfloat16) * 0.05)(512) * 16.0),
    }

def reference(A_x, A_c_kv, A_w_q, A_w_uk, A_w_uv, A_w_o, B_x, B_w1, B_b1, B_w2, B_b2, gate_w):
    def _A_ref(x, c_kv, w_q, w_uk, w_uv, w_o):
        B, Sq, M = x.shape[0], x.shape[1], x.shape[2]
        Sk = c_kv.shape[1]
        H, D = w_q.shape[1], w_q.shape[2]
        q = torch.einsum("bqm,mhd->bhqd", x, w_q)
        k = torch.einsum("bkc,chd->bhkd", c_kv, w_uk)
        v = torch.einsum("bkc,chd->bhkd", c_kv, w_uv)
        scores = torch.einsum("bhqd,bhkd->bhqk", q, k) * (D ** -0.5)
        off = Sk - Sq
        qi = torch.arange(Sq)[:, None]
        kj = torch.arange(Sk)[None, :]
        cmask = kj <= (qi + off)
        scores = torch.where(cmask[None, None], scores, -1e9)
        p = _softmax(scores, axis=-1)
        ctx = torch.einsum("bhqk,bhkd->bhqd", p, v)
        return torch.einsum("bhqd,hdm->bqm", ctx, w_o)

    def _B_ref(x, w1, b1, w2, b2):
        B, S, D = x.shape
        h = _layernorm(x, axis=-1)
        u = torch.einsum("bsd,sf->bdf", h, w1) + b1
        u = _gelu(u)
        y = torch.einsum("bdf,fs->bds", u, w2) + b2
        return (lambda x, *d: x.permute(*d))(y, 0, 2, 1)

    x = A_x
    g = _sigmoid((x * gate_w).sum(-1, keepdims=True))
    a = _A_ref(x, A_c_kv, A_w_q, A_w_uk, A_w_uv, A_w_o)
    b = _B_ref(x, B_w1, B_b1, B_w2, B_b2)
    return g * a + (1 - g) * b
```

```python
class Asm:
    def __init__(self):
        self.lines = []
    def __call__(self, s=''):
        for l in s.split('\n'):
            self.lines.append(l)
    def label(self, name):
        self.lines.append(name + ':')
    def text(self):
        return '\n'.join(self.lines) + '\n'

def kernel_header(a, name):
    a('.text')
    a(f'.globl {name}')
    a('.p2align 8')
    a(f'.type {name},@function')
    a.label(name)

def kernel_desc(a, name, vgpr=256, sgpr=102, accum=256, kernarg=120, wg_y=False):
    a('.section .rodata,"a"')
    a('.p2align 6')
    a(f'.amdhsa_kernel {name}')
    a(f'  .amdhsa_next_free_vgpr {vgpr}')
    a(f'  .amdhsa_next_free_sgpr {sgpr}')
    a(f'  .amdhsa_accum_offset {accum}')
    a('  .amdhsa_group_segment_fixed_size 0')
    a(f'  .amdhsa_kernarg_size {kernarg}')
    a('  .amdhsa_user_sgpr_count 2')
    a('  .amdhsa_user_sgpr_kernarg_segment_ptr 1')
    a('  .amdhsa_system_sgpr_workgroup_id_x 1')
    if wg_y:
        a('  .amdhsa_system_sgpr_workgroup_id_y 1')
    a('  .amdhsa_float_denorm_mode_32 3')
    a('.end_amdhsa_kernel')
    a('.text')

def srd(a, s, base, nbytes):
    a(f's_mov_b32 s{s}, s{base}')
    a(f's_and_b32 s{s+1}, s{base+1}, 0xffff')
    a(f's_mov_b32 s{s+2}, {nbytes}')
    a(f's_mov_b32 s{s+3}, 0x20000')
```

```python
from asmlib import *
from layout import *

OA, OB = 0, 64
QA, QB = 128, 160
FR = 192
NFR = 16
S = [[64, 80], [96, 112]]
P = [[128, 136], [144, 152]]
CA, CB = 160, 176
PT = 192
PS = [200, 201]
LA, LB = 202, 203
V_L16 = 204; V_KA = 205; V_VA = 206
V_RELA = 207; V_RELB = 208; V_NEG = 209
V_T = 210
V_DA, V_DB = 226, 227
V_AA, V_AB = 228, 229
V_MASK = 230; V_VBASE = 231; V_REL = [232, 233]
V_ST = 236
S_K, S_V, S_Q, S_C = 4, 8, 12, 16
s_w, s_h, s_i, s_g1, s_cnt, s_ks, s_vs, s_t0, s_thr = 20, 21, 22, 23, 24, 25, 26, 27, 28
s_t1, s_step = 29, 32
S_RET = 30
S_M = 40
D = 8
THR = 0x4e800000

def v(b, n=1): return f'v{b}' if n == 1 else f'v[{b}:{b+n-1}]'
def ar(b, n=1): return f'a{b}' if n == 1 else f'a[{b}:{b+n-1}]'
MF = 'v_mfma_f32_32x32x16_bf16'

class Iter:
    def __init__(self, qk, sm, pv, next_qk, par, czero=False):
        self.qk, self.sm, self.pv, self.next_qk, self.par, self.czero = qk, sm, pv, next_qk, par, czero

def nfr(mode): return {None: 0, 1: 8, 2: 16}[mode]

class Attn:
    def __init__(self, a, name, diag=False, **opt):
        self.a = a; self.name = name; self.diag = diag; self.nst = 0; self.opt = opt
        self.phase = 0
        self.slow = []
        self.uid = 0
        self.vm = {}

    def simulate(self):
        res = {}
        for i in range(8):
            G1 = 4*(i+1)
            def mode(g): return None if (g < 0 or g > 33) else (1 if g < G1 else 2)
            def first(g):
                return g if g <= G1 else G1 + 2*(g-G1)
            def r(g): return 1 if g < G1 else 2
            issued = []
            def issue(kind, b0, nb):
                for b in range(b0, b0+nb):
                    issued.extend([(kind, b)]*2)
            kd = 0; vd = 0
            issue('K', 0, 1); issued.extend([('Q', 0)]*16); issue('K', 1, 5); issue('V', 0, 4)
            kd, vd = 6, 4
            kfree = 0; vfree = 0
            def need(n):
                req = []
                if mode(n+3): req += [('K', b) for b in range(first(n+3), first(n+3)+r(n+3))]
                if mode(n+1): req += [('V', b) for b in range(first(n+1), first(n+1)+r(n+1))]
                if n == -3: req.append(('Q', 0))
                last = -1
                for k, x in enumerate(issued):
                    if x in req: last = k
                for x in req: assert x in issued, (i, n, x)
                return len(issued) - 1 - last if last >= 0 else None
            def pos(n):
                if n <= -1: return ('pro', n)
                if n <= G1-5:
                    if n >= G1-6 : return ('p1peel', n & 1)
                    return ('p1loop', n & 1)
                if n <= G1-1: return ('trans', n-G1)
                if n <= 31:
                    if n >= 30: return ('p2peel', n & 1)
                    return ('p2loop', n & 1)
                return ('epi', n)
            for n in range(-3, 34):
                if n >= -2:
                    if mode(n) and n <= 31:
                        b0 = vd; nb = r(n)
                        assert b0 + nb - 8 <= (first(n-1) if n-1 >= 0 else 0), (i, n, b0, nb)
                        issue('V', b0, nb); vd += nb
                N = need(n)
                p = pos(n)
                if N is not None:
                    res[p] = min(res.get(p, 99), N)
                if mode(n+3) or (n <= 31 and n >= -3):
                    nb = r(n+3)
                    if n <= 30 or True:
                        assert kd + nb - 8 <= first(n+3), (i, n, kd, nb)
                        issue('K', kd, nb); kd += nb
        self.vm = res
        return res

    def dma_group(self, kind, nb):
        srd_, so = (S_K, s_ks) if kind == 'K' else (S_V, s_vs)
        g = []
        if kind == 'K':
            pre = [f's_and_b32 m0, s{so}, 0xffff']
        else:
            pre = [f's_and_b32 s{s_t0}, s{so}, 0xffff', f's_or_b32 m0, s{s_t0}, 0x10000']
        n = 2*nb
        for k in range(n):
            l = []
            if k == 0: l += pre + ['s_nop 0'] if kind == 'K' else pre + ['s_nop 0']
            off = f' offset:{k*1024}' if k else ''
            l.append(f'buffer_load_dwordx4 v{V_L16}, s[{srd_}:{srd_+3}], s{so} offen{off} lds')
            if k == n-1: l.append(f's_add_u32 s{so}, s{so}, {nb*8192}')
            g.append(l)
        return g

    def sm_ops(self, it):
        sm = it.sm; pr = it.par ^ 1
        ops = []
        masked = sm.endswith('m')
        mode = sm[0]
        for b in range(2):
            Sb = S[pr][b]; Pb = P[pr][b]
            domask = masked and (mode == '2' or b == 0)
            blk = []
            if domask:
                def cmp(e): return (4, f'v_cmp_ge_i32 s[{S_M+2*(e%8)}:{S_M+2*(e%8)+1}], v{V_REL[b]}, {8*(e>>2)+(e&3)}')
                def cnd(e): return (4, f'v_cndmask_b32 v{Sb+e}, v{V_NEG}, v{Sb+e}, s[{S_M+2*(e%8)}:{S_M+2*(e%8)+1}]')
                blk += [cmp(0), cmp(1), cmp(2), cmp(3), cnd(0)]
            for e in range(16):
                if domask:
                    if e+4 < 16: blk.append(cmp(e+4))
                    if e+1 < 16: blk.append(cnd(e+1))
                blk.append((8, f'v_exp_f32 v{PT+(e%8)}, v{Sb+e}'))
                if e >= 2 or True:
                    k = e-1
                    if k == 1: blk.append((4, f'v_add_f32 v{PS[b]}, v{PT+0}, v{PT+1}'))
                    elif k > 1: blk.append((4, f'v_add_f32 v{PS[b]}, v{PS[b]}, v{PT+(k%8)}'))
                    if k >= 1 and k % 2 == 1:
                        blk.append((4, f'v_cvt_pk_bf16_f32 v{Pb+(k>>1)}, v{PT+((k-1)%8)}, v{PT+(k%8)}'))
            blk.append((4, f'v_add_f32 v{PS[b]}, v{PS[b]}, v{PT+(15%8)}'))
            blk.append((4, f'v_cvt_pk_bf16_f32 v{Pb+7}, v{PT+(14%8)}, v{PT+(15%8)}'))
            ops += blk
        return ops

    def rel_setup(self, it):
        return []

    def emit_iter(self, it, pos, extra_pre=None, name=''):
        a = self.a
        par = it.par
        ph = self.phase
        mf = []
        reads = []
        fidx = 0
        def fr(k): return FR + 4*((ph + k) % NFR)
        Sw = S[par]; Pr = P[par]
        if it.qk == 1:
            for j in range(8):
                A = ar(fr(fidx+j), 4)
                for b, Q, C in ((0, QA, CA), (1, QB, CB)):
                    c = ('0' if it.czero else v(C, 16)) if j == 0 else v(Sw[b], 16)
                    mf.append((f'{MF} {v(Sw[b],16)}, {A}, {ar(Q+4*j,4)}, {c}', fidx+j))
                reads.append((2*j, f'ds_read_b128 {A}, v{V_KA} offset:{j*1024}', fidx+j))
            fidx += 8
        elif it.qk == 2:
            for f in range(16):
                b, j = f >> 3, f & 7
                A = ar(fr(fidx+f), 4)
                c = ('0' if it.czero else v(CB, 16)) if j == 0 else v(Sw[b], 16)
                mf.append((f'{MF} {v(Sw[b],16)}, {A}, {ar(QB+4*j,4)}, {c}', fidx+f))
                reads.append((f, f'ds_read_b128 {A}, v{V_KA} offset:{f*1024}', fidx+f))
            fidx += 16
        s0 = len(mf)
        if it.pv == 1:
            for f in range(8):
                t, db = f >> 2, f & 3
                A = ar(fr(fidx+f), 4)
                for b, O in ((0, OA), (1, OB)):
                    mf.append((f'{MF} {ar(O+16*db,16)}, {A}, {v(Pr[b]+4*t,4)}, {ar(O+16*db,16)}', fidx+f))
                reads.append((s0+2*f, f'ds_read_b128 {A}, v{V_VA} offset:{f*1024}', fidx+f))
            fidx += 8
        elif it.pv == 2:
            for f in range(16):
                b, t, db = f >> 3, (f >> 2) & 1, f & 3
                A = ar(fr(fidx+f), 4)
                mf.append((f'{MF} {ar(OB+16*db,16)}, {A}, {v(Pr[b]+4*t,4)}, {ar(OB+16*db,16)}', fidx+f))
                reads.append((s0+f, f'ds_read_b128 {A}, v{V_VA} offset:{f*1024}', fidx+f))
            fidx += 16
        ns = len(mf)
        nown = fidx
        lead_in = [r for r in reads if it.qk and r[0] < D and r[2] < nfr(it.qk)]
        own = [r for r in reads if r not in lead_in]
        lead_out = []
        if it.next_qk:
            n = nfr(it.next_qk)
            for j in range(n):
                fu = 2*j if it.next_qk == 1 else j
                if fu < D:
                    A = ar(FR + 4*((ph + nown + j) % NFR), 4)
                    lead_out.append((ns + fu, f'ds_read_b128 {A}, v{V_KA} offset:{j*1024}', nown+j))
        bslot = max(ns - D, 0)
        slots = [[] for _ in range(ns+1)]
        pre = []
        order = [r[2] for r in lead_in]
        def place_read(slot, r):
            (pre if slot < 0 else slots[slot]).append(('ds', r[1], r[2]))
        for r in own:
            place_read(r[0]-D if r[0]-D >= 0 else -1, r)
        win = []
        has_bar = pos is not None and pos in self.vm
        if has_bar:
            if not self.opt.get('novm'): win.append(('x', f's_waitcnt vmcnt({self.vm[pos]})'))
            if not self.opt.get('nobar'): win.append(('x', 's_barrier'))
        if it.qk:
            win.append(('x', f'v_add_u32 v{V_KA}, {8192*(1 if it.qk==1 else 2)}, v{V_KA}'))
            win.append(('x', f'v_and_b32 v{V_KA}, 0xffff, v{V_KA}'))
        if it.pv:
            win.append(('x', f'v_add_u32 v{V_VA}, {8192*(1 if it.pv==1 else 2)}, v{V_VA}'))
            win.append(('x', f'v_and_or_b32 v{V_VA}, v{V_VA}, v{V_MASK}, v{V_VBASE}'))
        for r in own:
            assert r[0]-D < bslot or ns <= D, (r, bslot)
        vg = self.dma_group('V', 1 if it.pv == 1 else 2) if (it.pv and not getattr(it, 'nov', False)) else []
        kg = self.dma_group('K', 1 if it.next_qk == 1 else 2) if (it.next_qk or getattr(it, 'forcek', False)) else []
        if self.opt.get('nodma') and pos and pos[0] != 'pro': vg = []; kg = []
        sm = self.sm_ops(it) if (it.sm and it.sm != 'init') else []
        if self.opt.get('nosm'): sm = []
        if self.opt.get('noexp'): sm = [(c, t) for c, t in sm if 'exp' not in t]
        if self.opt.get('noadd'): sm = [(c, t) for c, t in sm if 'v_add_f32' not in t]
        tot = sum(c for c, _ in sm)
        fixed = [0.0]*ns
        for k in range(ns):
            fixed[k] += 4*len(slots[k])
        for k, grp in enumerate(vg):
            sl = min(ns-1, 1 + k*(1 if len(vg) > 2 else 2))
            slots[sl].append(('dma', grp)); fixed[sl] += 4*len(grp)
        slots[bslot] = win + slots[bslot]; fixed[bslot] += 4*len(win)
        for r in lead_out:
            sl = min(ns-1, r[0]-D); slots[sl].append(('ds', r[1], r[2])); fixed[sl] += 4
        for k, grp in enumerate(kg):
            sl = min(ns-1, bslot + 1 + k*(1 if len(kg) > 2 else 2))
            slots[sl].append(('dma', grp)); fixed[sl] += 4*len(grp)
        total = tot + sum(fixed)
        smslots = [[] for _ in range(ns)]
        if sm:
            k = 0; cum = 0.0; target_end = ns - 0.5
            acc = 0.0
            for sl in range(ns):
                acc += fixed[sl]
                lim = total * (sl+1) / target_end
                while k < len(sm) and (acc + sm[k][0]*0.5 <= lim or sl == ns-1):
                    smslots[sl].append(sm[k]); acc += sm[k][0]; k += 1
        if extra_pre:
            for l in extra_pre: a(l)
        q = list(order)
        def emit_fill(x):
            if x[0] == 'ds':
                a(x[1]); q.append(x[2])
            elif x[0] == 'dma':
                for l in x[1]: a(l)
            else:
                a(x[1])
        for x in pre: emit_fill(x)
        waited = -1
        for k, (txt, f) in enumerate(mf):
            if f in q:
                idx = q.index(f)
                if idx+1 < len(q) and (k % 2 == 0): idx2 = idx+1
                else: idx2 = idx
                nleft = len(q) - 1 - idx2
                a(f's_waitcnt lgkmcnt({nleft})')
                q = q[idx2+1:]
            a(txt)
            fl = slots[k]
            for x in fl:
                if x[0] in ('x', 'ds'): emit_fill(x)
            for c, t in smslots[k]: a(t)
            for x in fl:
                if x[0] == 'dma': emit_fill(x)
        self.phase = (ph + nown) % NFR
        if it.sm and it.sm != 'init' and not self.opt.get('nocheck'):
            self.uid += 1
            u = self.uid
            a(f'v_max_f32 v{V_T}, v{PS[0]}, v{PS[1]}')
            a(f'v_cmp_lt_f32 vcc, s{s_thr}, v{V_T}')
            a(f's_cbranch_vccnz {self.name}_slow{u}')
            a.label(f'{self.name}_join{u}')
            self.l_update(it.sm)
            self.slow.append((u, it))

    def l_update(self, sm):
        a = self.a
        if sm[0] == '1' or sm == 'init':
            a(f'v_add_f32 v{LA}, v{LA}, v{PS[0]}')
            a(f'v_add_f32 v{LB}, v{LB}, v{PS[1]}')
        else:
            a(f'v_add_f32 v{LB}, v{LB}, v{PS[0]}')
            a(f'v_add_f32 v{LB}, v{LB}, v{PS[1]}')

    def rowmax(self, dst, blocks):
        a = self.a
        regs = [b+e for b in blocks for e in range(16)]
        a(f'v_max3_f32 v{dst}, v{regs[0]}, v{regs[1]}, v{regs[2]}')
        k = 3
        while k+1 < len(regs):
            a(f'v_max3_f32 v{dst}, v{dst}, v{regs[k]}, v{regs[k+1]}'); k += 2
        if k < len(regs): a(f'v_max_f32 v{dst}, v{dst}, v{regs[k]}')
        a(f'v_mov_b32 v{V_T+1}, v{dst}')
        a('s_nop 1')
        a(f'v_permlane32_swap_b32 v{V_T+1}, v{dst}')
        a('s_nop 1')
        a(f'v_max_f32 v{dst}, v{dst}, v{V_T+1}')

    def plain_sm(self, pr):
        a = self.a
        for b in range(2):
            for e in range(0, 16, 2):
                a(f'v_exp_f32 v{PT}, v{S[pr][b]+e}')
                a(f'v_exp_f32 v{PT+1}, v{S[pr][b]+e+1}')
                a('s_nop 0')
                a(f'v_cvt_pk_bf16_f32 v{P[pr][b]+(e>>1)}, v{PT}, v{PT+1}')
                if e == 0:
                    a(f'v_add_f32 v{PS[b]}, v{PT}, v{PT+1}')
                else:
                    a(f'v_add_f32 v{PS[b]}, v{PS[b]}, v{PT}')
                    a(f'v_add_f32 v{PS[b]}, v{PS[b]}, v{PT+1}')

    def sub_delta(self, pr, mode):
        a = self.a
        for b in range(2):
            dl = V_DA if (mode == 1 and b == 0) else V_DB
            for e in range(16):
                a(f'v_sub_f32 v{S[pr][b]+e}, v{S[pr][b]+e}, v{dl}')

    def emit_slow(self, u, it):
        a = self.a
        pr = it.par ^ 1
        mode = 1 if it.sm[0] == '1' else 2
        a.label(f'{self.name}_slow{u}')
        a('s_nop 15')
        a('s_nop 7')
        if mode == 1:
            self.rowmax(V_DA, [S[pr][0]])
            self.rowmax(V_DB, [S[pr][1]])
            a(f'v_max_f32 v{V_DA}, 0, v{V_DA}')
        else:
            self.rowmax(V_DB, [S[pr][0], S[pr][1]])
            a(f'v_mov_b32 v{V_DA}, 0')
        a(f'v_max_f32 v{V_DB}, 0, v{V_DB}')
        a(f's_call_b64 s[{S_RET}:{S_RET+1}], {self.name}_rescale')
        self.sub_delta(pr, mode)
        if it.qk: self.sub_delta(it.par, it.qk)
        self.plain_sm(pr)
        a(f's_branch {self.name}_join{u}')

    def emit_rescale(self):
        a = self.a
        a.label(f'{self.name}_rescale')
        a(f'v_exp_f32 v{V_AA}, -v{V_DA}')
        a(f'v_exp_f32 v{V_AB}, -v{V_DB}')
        a('s_nop 0')
        for O, al in ((OA, V_AA), (OB, V_AB)):
            for e in range(0, 64, 4):
                for k in range(4): a(f'v_accvgpr_read_b32 v{V_T+k}, a{O+e+k}')
                for k in range(4): a(f'v_mul_f32 v{V_T+k}, v{V_T+k}, v{al}')
                for k in range(4): a(f'v_accvgpr_write_b32 a{O+e+k}, v{V_T+k}')
        a(f'v_mul_f32 v{LA}, v{LA}, v{V_AA}')
        a(f'v_mul_f32 v{LB}, v{LB}, v{V_AB}')
        for e in range(16):
            a(f'v_sub_f32 v{CA+e}, v{CA+e}, v{V_DA}')
            a(f'v_sub_f32 v{CB+e}, v{CB+e}, v{V_DB}')
        a('s_nop 1')
        a(f's_setpc_b64 s[{S_RET}:{S_RET+1}]')

    def mask_inplace(self, pr, b):
        a = self.a
        for e0 in range(0, 16, 8):
            for e in range(e0, e0+8):
                a(f'v_cmp_ge_i32 s[{S_M+2*(e%8)}:{S_M+2*(e%8)+1}], v{V_REL[b]}, {8*(e>>2)+(e&3)}')
            a('s_nop 1')
            for e in range(e0, e0+8):
                a(f'v_cndmask_b32 v{S[pr][b]+e}, v{V_NEG}, v{S[pr][b]+e}, s[{S_M+2*(e%8)}:{S_M+2*(e%8)+1}]')

    def emit_init(self):
        a = self.a
        a('s_nop 15')
        a(f'v_mov_b32 v{V_REL[0]}, v{V_RELA}')
        self.mask_inplace(0, 0)
        self.rowmax(V_DA, [S[0][0]])
        self.rowmax(V_DB, [S[0][1]])
        for e in range(16):
            a(f'v_sub_f32 v{CA+e}, 0, v{V_DA}')
            a(f'v_sub_f32 v{CB+e}, 0, v{V_DB}')
        self.sub_delta(0, 1)
        self.sub_delta(1, 1)
        self.plain_sm(0)
        a(f'v_mov_b32 v{LA}, v{PS[0]}')
        a(f'v_mov_b32 v{LB}, v{PS[1]}')

    def epilogue_tile(self, O, L, qt_sgpr):
        a = self.a
        a(f'v_mov_b32 v{V_T+1}, v{L}')
        a('s_nop 1')
        a(f'v_permlane32_swap_b32 v{V_T+1}, v{L}')
        a('s_nop 1')
        a(f'v_add_f32 v{L}, v{L}, v{V_T+1}')
        a(f'v_rcp_f32 v{V_T+2}, v{L}')
        a('s_nop 0')
        a(f'v_mov_b32 v{V_T+3}, v{V_T+2}')
        inv = V_T+2
        k = 0
        for db in range(4):
            for t in range(2):
                st = V_ST + 4*(k % 4)
                tmp = V_T+4
                for e in range(8): a(f'v_accvgpr_read_b32 v{tmp+e}, a{O+16*db+8*t+e}')
                for e in range(0, 8, 2): a(f'v_pk_mul_f32 v[{tmp+e}:{tmp+e+1}], v[{tmp+e}:{tmp+e+1}], v[{inv}:{inv+1}]')
                for e in range(0, 8, 2): a(f'v_cvt_pk_bf16_f32 v{st+(e>>1)}, v{tmp+e}, v{tmp+e+1}')
                j = 2*db+t
                off = j*1024
                if off < 4096:
                    a(f'buffer_store_dwordx4 v[{st}:{st+3}], v{V_L16}, s[{S_C}:{S_C+3}], s{qt_sgpr} offen offset:{off}')
                else:
                    a(f'buffer_store_dwordx4 v[{st}:{st+3}], v{V_L16}, s[{S_C}:{S_C+3}], s{qt_sgpr+1} offen offset:{off-4096}')
                if k % 4 == 3 and k < 7: a('s_waitcnt vmcnt(0)')
                k += 1

    def stamp(self):
        if not self.diag: return
        k = self.nst; self.nst += 1
        self.a(f's_memtime s[{64+2*k}:{65+2*k}]')
        self.a('s_waitcnt lgkmcnt(0)')
    def dump_stamps(self):
        if not self.diag: return
        a = self.a
        a(f's_load_dwordx2 s[34:35], s[0:1], {KA_OUT}')
        a('s_memrealtime s[96:97]')
        a('s_waitcnt lgkmcnt(0)')
        a('s_mov_b32 s36, s34'); a('s_and_b32 s37, s35, 0xffff'); a('s_mov_b32 s38, 0x200000'); a('s_mov_b32 s39, 0x20000')
        a(f's_lshl_b32 s60, s2, 2'); a(f's_add_u32 s60, s60, s{s_w}'); a('s_lshl_b32 s60, s60, 6')
        a('v_mov_b32 v1, s60')
        for k in range(self.nst):
            a(f'v_mov_b32 v2, s{64+2*k}')
            a(f'buffer_store_dword v2, v1, s[36:39], 0 offen offset:{4*k}')
            a('s_nop 1')
        a('v_mov_b32 v2, s96')
        a(f'buffer_store_dword v2, v1, s[36:39], 0 offen offset:60')
        a('s_waitcnt vmcnt(0)')

    def emit(self):
        a = self.a; N = self.name
        self.simulate()
        vm = self.vm
        a(f's_cmp_ge_u32 s2, 256')
        a(f's_cbranch_scc1 {N}_end')
        self.stamp()
        a(f's_load_dwordx2 s[34:35], s[0:1], {KA_WS}')
        a(f'v_lshrrev_b32 v1, 6, v0')
        a(f'v_and_b32 v2, 63, v0')
        a(f'v_lshlrev_b32 v{V_L16}, 4, v2')
        a(f'v_readfirstlane_b32 s{s_w}, v1')
        a(f's_and_b32 s{s_t0}, s2, 7')
        a(f's_lshr_b32 s{s_t1}, s2, 3')
        a(f's_lshl_b32 s{s_h}, s{s_t0}, 2')
        a(f's_and_b32 s{s_t0}, s{s_t1}, 3')
        a(f's_add_u32 s{s_h}, s{s_h}, s{s_t0}')
        a(f's_lshr_b32 s{s_i}, s{s_t1}, 2')
        a(f's_add_u32 s{s_g1}, s{s_i}, 1')
        a(f's_lshl_b32 s{s_g1}, s{s_g1}, 2')
        a('s_waitcnt lgkmcnt(0)')
        a(f's_lshl_b32 s{s_t0}, s{s_h}, 19')
        a(f's_lshl_b32 s{s_t1}, s{s_i}, 15')
        a(f's_sub_u32 s{s_t1}, 0x80000, s{s_t1}')
        for S_, base in ((S_K, WS_K), (S_V, WS_V), (S_Q, WS_Q)):
            a(f's_add_u32 s{S_}, s34, {base}')
            a(f's_addc_u32 s{S_+1}, s35, 0')
            a(f's_add_u32 s{S_}, s{S_}, s{s_t0}')
            a(f's_addc_u32 s{S_+1}, s{S_+1}, 0')
            a(f's_and_b32 s{S_+1}, s{S_+1}, 0xffff')
            if S_ == S_Q: a(f's_mov_b32 s{S_+2}, 0x80000')
            else: a(f's_mov_b32 s{S_+2}, s{s_t1}')
            a(f's_mov_b32 s{S_+3}, 0x20000')
        a(f's_add_u32 s{S_C}, s34, {WS_CTX}')
        a(f's_addc_u32 s{S_C+1}, s35, 0')
        a(f's_and_b32 s{S_C+1}, s{S_C+1}, 0xffff')
        a(f's_mov_b32 s{S_C+2}, {16*MB}')
        a(f's_mov_b32 s{S_C+3}, 0x20000')
        a(f's_lshl_b32 s36, s{s_i}, 2')
        a(f's_add_u32 s36, s36, s{s_w}')
        a(f's_lshl_b32 s37, s{s_i}, 2')
        a(f's_sub_u32 s37, 60, s37')
        a(f's_add_u32 s37, s37, s{s_w}')
        a(f's_lshl_b32 s{s_ks}, s{s_w}, 11')
        a(f's_mov_b32 s{s_vs}, s{s_ks}')
        for grp in self.dma_group('K', 1):
            for l in grp: a(l)
        a(f's_lshl_b32 s38, s36, 13')
        a(f's_lshl_b32 s39, s37, 13')
        for Qr, sg in ((QA, 38), (QB, 39)):
            for j in range(8):
                if j == 4: a(f's_add_u32 s{sg}, s{sg}, 4096')
                a(f'buffer_load_dwordx4 {ar(Qr+4*j,4)}, v{V_L16}, s[{S_Q}:{S_Q+3}], s{sg} offen offset:{(j%4)*1024}')
        for b in range(1, 6):
            for grp in self.dma_group('K', 1):
                for l in grp: a(l)
        for b in range(4):
            for grp in self.dma_group('V', 1):
                for l in grp: a(l)
        a(f's_mov_b32 s{s_thr}, {THR}')
        a(f'v_mov_b32 v{V_NEG}, 0xf149f2ca')
        a(f'v_mov_b32 v{V_MASK}, 0xffff')
        a(f'v_mov_b32 v{V_VBASE}, 0x10000')
        a(f'v_mov_b32 v{V_KA}, v{V_L16}')
        a(f'v_add_u32 v{V_VA}, 0x10000, v{V_L16}')
        a(f'v_and_b32 v3, 31, v2')
        a(f'v_lshrrev_b32 v4, 5, v2')
        a(f'v_lshlrev_b32 v4, 2, v4')
        a(f'v_sub_u32 v3, v3, v4')
        a(f's_lshl_b32 s{s_t0}, s36, 5')
        a(f'v_add_u32 v{V_RELA}, s{s_t0}, v3')
        a(f's_lshl_b32 s{s_t0}, s37, 5')
        a(f'v_add_u32 v{V_RELB}, s{s_t0}, v3')
        for e in range(128): a(f'v_accvgpr_write_b32 a{e}, 0')
        for qt, d in ((36, 56), (37, 58)):
            a(f's_lshl_b32 s{s_t0}, s{qt}, 5')
            a(f's_add_u32 s{s_t0}, s{s_t0}, s{s_h}')
            a(f's_lshl_b32 s{d}, s{s_t0}, 13')
            a(f's_add_u32 s{d+1}, s{d}, 4096')
        a(f's_waitcnt vmcnt({vm[("pro",-3)]})')
        a('s_barrier')
        self.stamp()
        for grp in self.dma_group('K', 1):
            for l in grp: a(l)
        for j in range(D//2):
            a(f'ds_read_b128 {ar(FR+4*j,4)}, v{V_KA} offset:{j*1024}')
        self.emit_iter(Iter(1, None, None, 1, 0, czero=True), ('pro', -2))
        self.emit_iter(Iter(1, 'init', None, 1, 1, czero=True), ('pro', -1))
        self.stamp()
        self.emit_init()
        self.stamp()
        def setrelA(off_sgpr_expr): pass
        a(f's_cmp_eq_u32 s{s_i}, 0')
        a(f's_cbranch_scc1 {N}_trans')
        a(f's_sub_u32 s{s_cnt}, s{s_g1}, 6')
        a(f's_lshr_b32 s{s_cnt}, s{s_cnt}, 1')
        a('.p2align 6')
        a.label(f'{N}_p1loop')
        self.emit_iter(Iter(1, '1', 1, 1, 0), ('p1loop', 0))
        self.emit_iter(Iter(1, '1', 1, 1, 1), ('p1loop', 1))
        a(f's_sub_u32 s{s_cnt}, s{s_cnt}, 1')
        a(f's_cmp_lg_u32 s{s_cnt}, 0')
        a(f's_cbranch_scc1 {N}_p1loop')
        self.emit_iter(Iter(1, '1', 1, 1, 0), ('p1peel', 0))
        def relA(k):
            return [f's_sub_u32 s{s_t1}, s{s_g1}, {k}', f's_lshl_b32 s{s_t1}, s{s_t1}, 5', f'v_subrev_u32 v{V_REL[0]}, s{s_t1}, v{V_RELA}']
        self.emit_iter(Iter(1, '1m', 1, 1, 1), ('p1peel', 1), extra_pre=relA(4))
        a.label(f'{N}_trans')
        self.stamp()
        self.emit_iter(Iter(1, '1m', 1, 1, 0), ('trans', -4), extra_pre=relA(3))
        sw = [f's_lshl_b32 s{s_t0}, s{s_w}, 11']
        it = Iter(1, '1m', 1, 2, 1)
        self.emit_iter(it, ('trans', -3), extra_pre=relA(2) + sw + [f's_add_u32 s{s_ks}, s{s_ks}, s{s_t0}'])
        self.emit_iter(Iter(2, '1m', 1, 2, 0), ('trans', -2), extra_pre=relA(1))
        def relB(expr_lines):
            return expr_lines + [f'v_subrev_u32 v{V_REL[0]}, s{s_t1}, v{V_RELB}', f'v_subrev_u32 v{V_REL[1]}, 32, v{V_REL[0]}']
        self.emit_iter(Iter(2, '2m', 1, 2, 1), ('trans', -1), extra_pre=relB([f's_lshl_b32 s{s_t1}, s{s_g1}, 5']))
        self.stamp()
        a(f's_lshl_b32 s{s_t0}, s{s_w}, 11')
        a(f's_add_u32 s{s_vs}, s{s_vs}, s{s_t0}')
        a(f's_cmp_eq_u32 s{s_i}, 7')
        a(f's_cbranch_scc1 {N}_epi')
        a(f's_sub_u32 s{s_cnt}, 30, s{s_g1}')
        a(f's_lshr_b32 s{s_cnt}, s{s_cnt}, 1')
        a('.p2align 6')
        a.label(f'{N}_p2loop')
        self.emit_iter(Iter(2, '2', 2, 2, 0), ('p2loop', 0))
        self.emit_iter(Iter(2, '2', 2, 2, 1), ('p2loop', 1))
        a(f's_sub_u32 s{s_cnt}, s{s_cnt}, 1')
        a(f's_cmp_lg_u32 s{s_cnt}, 0')
        a(f's_cbranch_scc1 {N}_p2loop')
        self.emit_iter(Iter(2, '2', 2, 2, 0), ('p2peel', 0))
        relB32 = [f's_sub_u32 s{s_t1}, 64, s{s_g1}', f's_lshl_b32 s{s_t1}, s{s_t1}, 5']
        self.emit_iter(Iter(2, '2m', 2, 2, 1), ('p2peel', 1), extra_pre=relB(relB32))
        a.label(f'{N}_epi')
        self.stamp()
        relB33 = [f's_sub_u32 s{s_t1}, 66, s{s_g1}', f's_lshl_b32 s{s_t1}, s{s_t1}, 5']
        it = Iter(None, '2m', 2, None, 0); it.nov = True
        self.phase = (self.phase + 16) % NFR
        a('s_waitcnt lgkmcnt(0)')
        self.emit_iter(it, ('epi', 32), extra_pre=relB(relB33))
        it = Iter(None, None, 2, None, 1); it.nov = True
        a('s_nop 1')
        self.emit_iter(it, None)
        a('s_nop 15')
        self.stamp()
        self.epilogue_tile(OA, LA, 56)
        a('s_waitcnt vmcnt(0)')
        self.epilogue_tile(OB, LB, 58)
        a('s_waitcnt vmcnt(0)')
        self.stamp()
        self.dump_stamps()
        a.label(f'{N}_end')
        a('s_endpgm')
        for u, it in self.slow: self.emit_slow(u, it)
        self.emit_rescale()

if __name__ == '__main__':
    a = Asm()
    g = Attn(a, 'attn')
    print(g.simulate())
```

```python
from asmlib import *
from layout import *

MF = 'v_mfma_f32_32x32x16_bf16'
def v(b, n=1): return f'v{b}' if n == 1 else f'v[{b}:{b+n-1}]'

class ProjRegs:
    ACC = 64
    FB = [192, 216]
    V_AR = 8
    V_WR = 12
    V_AB = 16
    V_WB = 20
    V_AD = 24
    V_WD = 28
    V_L16 = 32
    V_T = 33
R = ProjRegs

W_LDS = lambda s: s*16384
A_LDS = lambda s: 49152 + s*32768

class Proj:
    def __init__(self, a, name, s_w=20):
        self.a = a; self.name = name
        self.s_w = s_w
        self.s_a0, self.s_a1, self.s_wo = 40, 41, 42
        self.s_dam, self.s_dwm = 43, 44
        self.s_ra, self.s_rw = 45, 46
        self.s_cnt = 47; self.s_t = 48; self.s_t1 = 49
        self.uid = 0

    def setup_addrs(self):
        a = self.a
        T = R.V_T
        a(f'v_and_b32 v{T}, 63, v0')
        a(f'v_lshlrev_b32 v{R.V_L16}, 4, v{T}')
        a(f'v_and_b32 v{T+1}, 31, v{T}')
        a(f'v_lshrrev_b32 v{T+2}, 5, v{T}')
        a(f'v_bfe_u32 v{T+3}, v{T+1}, 1, 3')
        a(f'v_xor_b32 v{T+3}, v{T+3}, v{T+2}')
        a(f'v_lshlrev_b32 v{T+3}, 4, v{T+3}')
        a(f'v_lshl_add_u32 v{R.V_AB}, v{T+1}, 7, v{T+3}')
        for ks in range(1, 4):
            a(f'v_xor_b32 v{R.V_AB+ks}, {ks << 5}, v{R.V_AB}')
        a(f'v_bfe_u32 v{T+3}, v{T}, 2, 2')
        a(f'v_lshl_add_u32 v{T+4}, v{T+2}, 3, v{T+3}')
        a(f'v_lshlrev_b32 v{T+4}, 8, v{T+4}')
        a(f'v_bfe_u32 v{T+5}, v{T}, 4, 1')
        a(f'v_lshl_add_u32 v{T+4}, v{T+5}, 5, v{T+4}')
        a(f'v_and_b32 v{T+5}, 3, v{T}')
        a(f'v_lshl_add_u32 v{T+4}, v{T+5}, 3, v{T+4}')
        for dt in range(4):
            a(f'v_xor_b32 v{T+5}, {dt}, v{T+3}')
            a(f'v_lshl_add_u32 v{R.V_WB+dt}, v{T+5}, 6, v{T+4}')
        a(f'v_lshrrev_b32 v{T+3}, 3, v{T}')
        a(f'v_and_b32 v{T+4}, 7, v{T}')
        a(f'v_lshrrev_b32 v{T+5}, 1, v{T+3}')
        for j in range(4):
            a(f'v_xor_b32 v{T+6}, v{T+4}, v{T+5}')
            if j & 1: a(f'v_xor_b32 v{T+6}, 4, v{T+6}')
            a(f'v_lshlrev_b32 v{T+6}, 4, v{T+6}')
            a(f'v_lshl_add_u32 v{T+6}, v{T+3}, 10, v{T+6}')
            a(f'v_add_u32 v{R.V_AD+j}, {j*(8192-1024)}, v{T+6}')
        a(f'v_lshrrev_b32 v{T+3}, 4, v{T}')
        a(f'v_bfe_u32 v{T+4}, v{T}, 2, 2')
        a(f'v_xor_b32 v{T+4}, v{T+4}, v{T+3}')
        a(f'v_lshlrev_b32 v{T+4}, 6, v{T+4}')
        a(f'v_and_b32 v{T+5}, 3, v{T}')
        a(f'v_lshl_add_u32 v{T+4}, v{T+5}, 4, v{T+4}')
        a(f'v_lshl_add_u32 v{T+4}, v{T+3}, 13, v{T+4}')
        for j in range(4):
            a(f'v_add_u32 v{R.V_WD+j}, {j*(32768-1024)}, v{T+4}')

    def dma_stage(self, srdA, srdW):
        g = []
        def ld(vo, srd_, so, off): return f'buffer_load_dwordx4 v{vo}, s[{srd_}:{srd_+3}], s{so} offen' + (f' offset:{off}' if off else '') + ' lds'
        for j in range(4):
            l = []
            if j == 0: l += [f's_mov_b32 m0, s{self.s_dwm}', 's_nop 0']
            l.append(ld(R.V_WD+j, srdW, self.s_wo, j*1024))
            if j == 3: l.append(f's_add_u32 s{self.s_wo}, s{self.s_wo}, {64*8192}')
            g.append(l)
        for t, so in ((0, self.s_a0), (1, self.s_a1)):
            for j in range(4):
                l = []
                if j == 0:
                    l += [f's_add_u32 m0, s{self.s_dam}, {t*4096}', 's_nop 0'] if t else [f's_mov_b32 m0, s{self.s_dam}', 's_nop 0']
                l.append(ld(R.V_AD+j, srdA, so, j*1024))
                if j == 3: l.append(f's_add_u32 s{so}, s{so}, 128')
                g.append(l)
        g[-1] += self.adv_slot(self.s_dam, self.s_dwm)
        return g

    def adv_slot(self, sa, sw):
        t = self.s_t
        return [f's_add_u32 s{sw}, s{sw}, 16384', f's_cmp_ge_u32 s{sw}, 49152', f's_cselect_b32 s{t}, 49152, 0', f's_sub_u32 s{sw}, s{sw}, s{t}',
                f's_add_u32 s{sa}, s{sa}, 32768', f's_lshl_b32 s{t}, s{t}, 1', f's_sub_u32 s{sa}, s{sa}, s{t}']

    def init_stream(self):
        a = self.a; w = self.s_w
        a(f's_lshl_b32 s{self.s_dwm}, s{w}, 12')
        a(f's_lshl_b32 s{self.s_dam}, s{w}, 13')
        a(f's_add_u32 s{self.s_dam}, s{self.s_dam}, 49152')
        a(f's_mov_b32 s{self.s_rw}, 0')
        a(f's_mov_b32 s{self.s_ra}, s{self.s_dam}')

    def read_addr_update(self):
        l = []
        for k in range(4):
            l.append(f'v_add_u32 v{R.V_AR+k}, s{self.s_ra}, v{R.V_AB+k}')
            l.append(f'v_add_u32 v{R.V_WR+k}, s{self.s_rw}, v{R.V_WB+k}')
        t = self.s_t1
        l += [f's_add_u32 s{self.s_rw}, s{self.s_rw}, 16384', f's_cmp_ge_u32 s{self.s_rw}, 49152', f's_cselect_b32 s{t}, 49152, 0', f's_sub_u32 s{self.s_rw}, s{self.s_rw}, s{t}',
              f's_add_u32 s{self.s_ra}, s{self.s_ra}, 32768', f's_lshl_b32 s{t}, s{t}, 1', f's_sub_u32 s{self.s_ra}, s{self.s_ra}, s{t}']
        return l

    def kstep_reads(self, ks, buf):
        F = R.FB[buf]
        l = []
        def act(t): return [f'ds_read_b128 {v(F+16+4*t,4)}, v{R.V_AR+ks} offset:{t*4096}']
        def wf(dt): return [f'ds_read_b64_tr_b16 {v(F+4*dt,2)}, v{R.V_WR+dt} offset:{ks*4096}',
                            f'ds_read_b64_tr_b16 {v(F+4*dt+2,2)}, v{R.V_WR+dt} offset:{ks*4096+1024}']
        return act(0) + wf(0) + wf(1) + act(1) + wf(2) + wf(3)

    def kstep_mfmas(self, buf, swap, first):
        F = R.FB[buf]
        l = []
        for dt in range(4):
            for st in range(2):
                acc = v(R.ACC + 16*(4*st+dt), 16)
                W = v(F+4*dt, 4); A = v(F+16+4*st, 4)
                c = '0' if first else acc
                l.append(f'{MF} {acc}, {A}, {W}, {c}' if swap else f'{MF} {acc}, {W}, {A}, {c}')
        return l

    def stage(self, swap, first, carry, fresh, last=False, vm=12, pre_fresh=None):
        a = self.a
        carry = list(carry or []); fresh = list(fresh or [])
        cslot = {}
        for k in range(len(carry)):
            cslot.setdefault(int(2 + k*(22.0/max(1, len(carry)))), []).append(carry[k])
        for ks in range(4):
            buf = ks & 1
            a('s_waitcnt lgkmcnt(0)')
            pre = []
            if ks == 3 and not last:
                a(f's_waitcnt vmcnt({vm})')
                a('s_barrier')
                pre = self.read_addr_update()
            mf = self.kstep_mfmas(buf, swap, first and ks == 0)
            if ks < 3: rd = self.kstep_reads(ks+1, buf ^ 1)
            elif not last: rd = self.kstep_reads(0, buf ^ 1)
            else: rd = []
            for k, m in enumerate(mf):
                a(m)
                if k == 0:
                    for l in pre[:8]: a(l)
                    for l in rd[0:2]: a(l)
                elif k < 5:
                    for l in rd[2*k:2*k+2]: a(l)
                    if k == 1:
                        for l in pre[8:]: a(l)
                if ks < 3:
                    for grp in cslot.get(8*ks+k, []):
                        for l in grp: a(l)
                elif k >= 5 and fresh:
                    if k == 5 and pre_fresh:
                        for l in pre_fresh: a(l)
                    for l in fresh.pop(0): a(l)
        assert not fresh

    def lead(self):
        a = self.a
        for l in self.read_addr_update(): a(l)
        for l in self.kstep_reads(0, 0): a(l)

    def epilogue_store(self, kind, srd, s_off, v_scale=None):
        a = self.a
        a('s_nop 7')
        for k in range(4):
            a(f's_add_u32 s{50+k}, s{s_off}, {k*4096}')
        a('s_nop 3')
        for st in range(2):
            for dt in range(4):
                A = R.ACC + 16*(4*st+dt)
                for t in range(2):
                    b = A + 8*t
                    if v_scale is not None:
                        for e in range(0, 8, 2):
                            a(f'v_pk_mul_f32 v[{b+e}:{b+e+1}], v[{b+e}:{b+e+1}], v[{v_scale}:{v_scale+1}]')
                    for k in range(4):
                        a(f'v_cvt_pk_bf16_f32 v{b+k}, v{b+2*k}, v{b+2*k+1}')
                    f = (4*t+dt) if kind == 'V' else (2*dt+t)
                    so = 50 + 2*st + (f >> 2)
                    a(f'buffer_store_dwordx4 v[{b}:{b+3}], v{R.V_L16}, s[{srd}:{srd+3}], s{so} offen offset:{(f & 3)*1024}')

    def run_passes(self, passes, init_stream_fns, extra_after_prologue=None, n_extra_vm=0):
        a = self.a
        np_ = len(passes)
        def groups(p): return self.dma_stage(passes[p]['srdA'], passes[p]['srdW'])
        self.init_stream()
        for l in init_stream_fns[0]: a(l)
        if passes[0].get('pre'): passes[0]['pre']()
        for t in range(2):
            for g in groups(0):
                for l in g: a(l)
        g2 = groups(0)
        for g in g2[:3]:
            for l in g: a(l)
        if extra_after_prologue: extra_after_prologue()
        a(f's_waitcnt vmcnt({15 + n_extra_vm})')
        a('s_barrier')
        self.lead()
        for p, ps in enumerate(passes):
            nxt = p+1 if p+1 < np_ else None
            G = groups(p)
            own_c, own_f = G[3:], G[:3]
            if nxt is not None:
                GN = groups(nxt); nc, nf = GN[3:], GN[:3]
            sw = ps['swap']
            self.stage(sw, True, own_c, own_f, vm=(12 if p == 0 else 28))
            a(f's_mov_b32 s{self.s_cnt}, 4')
            self.uid += 1
            lab = f'{self.name}_loop{self.uid}'
            a('.p2align 6')
            a.label(lab)
            self.stage(sw, False, own_c, own_f)
            a(f's_sub_u32 s{self.s_cnt}, s{self.s_cnt}, 1')
            a(f's_cmp_lg_u32 s{self.s_cnt}, 0')
            a(f's_cbranch_scc1 {lab}')
            if nxt is not None:
                self.stage(sw, False, own_c, nf, pre_fresh=init_stream_fns[nxt])
                self.stage(sw, False, nc, nf)
                self.stage(sw, False, nc, nf)
            else:
                self.stage(sw, False, own_c, None)
                self.stage(sw, False, None, None, vm=0)
                self.stage(sw, False, None, None, last=True)
            ps['epi']()

def allreduce(a, regs, tmp):
    for ctl in ('quad_perm:[1,0,3,2]', 'quad_perm:[2,3,0,1]', 'row_half_mirror', 'row_mirror'):
        a('s_nop 1')
        for r in regs:
            a(f'v_add_f32_dpp v{r}, v{r}, v{r} {ctl} row_mask:0xf bank_mask:0xf')
    for op in ('v_permlane16_swap_b32', 'v_permlane32_swap_b32'):
        for k, r in enumerate(regs): a(f'v_mov_b32 v{tmp+k}, v{r}')
        a('s_nop 1')
        for k, r in enumerate(regs): a(f'{op} v{tmp+k}, v{r}')
        a('s_nop 1')
        for k, r in enumerate(regs): a(f'v_add_f32 v{r}, v{r}, v{tmp+k}')

def emit_ln_loads(a, S_BX, S_AX, S_GW, s_row, base):
    a(f'buffer_load_dwordx4 {v(base,4)}, v{R.V_L16}, s[{S_AX}:{S_AX+3}], s{s_row} offen')
    a(f'buffer_load_dwordx4 {v(base+4,4)}, v{R.V_L16}, s[{S_AX}:{S_AX+3}], s{s_row} offen offset:1024')
    a(f'buffer_load_dwordx4 {v(base+16,4)}, v{R.V_L16}, s[{S_GW}:{S_GW+3}], 0 offen')

def unpack8(a, src, dst):
    for k in range(4):
        a(f'v_lshlrev_b32 v{dst+2*k}, 16, v{src+k}')
        a(f'v_and_b32 v{dst+2*k+1}, 0xffff0000, v{src+k}')

def emit_ln_compute(a, base, S_H, S_G, s_row, s_rowg, X):
    xb = [X, X+8]; xa = [X+16, X+24]; gw = X+32; sm = X+40
    unpack8(a, base, xb[0]); unpack8(a, base+4, xb[1]); unpack8(a, base+16, gw)
    xa = xb
    for r in range(2):
        a(f'v_add_f32 v{sm+r}, v{xb[r]}, v{xb[r]+1}')
        for e in range(2, 8): a(f'v_add_f32 v{sm+r}, v{sm+r}, v{xb[r]+e}')
        a(f'v_mul_f32 v{sm+2+r}, v{xa[r]}, v{gw}')
        for e in range(1, 8): a(f'v_fmac_f32 v{sm+2+r}, v{xa[r]+e}, v{gw+e}')
    allreduce(a, [sm, sm+1, sm+2, sm+3], X+44)
    for r in range(2):
        a(f'v_mul_f32 v{sm+r}, {hex(0x3b000000)}, v{sm+r}')
        for e in range(8): a(f'v_sub_f32 v{xb[r]+e}, v{xb[r]+e}, v{sm+r}')
    for r in range(2):
        a(f'v_mul_f32 v{sm+2+r}, 0xbfb8aa3b, v{sm+2+r}')
    for r in range(2): a(f'v_exp_f32 v{sm+2+r}, v{sm+2+r}')
    a('s_nop 0')
    for r in range(2): a(f'v_add_f32 v{sm+2+r}, 1.0, v{sm+2+r}')
    for r in range(2): a(f'v_rcp_f32 v{sm+2+r}, v{sm+2+r}')
    for r in range(2):
        a(f'v_mul_f32 v{sm+r}, v{xb[r]}, v{xb[r]}')
        for e in range(1, 8): a(f'v_fmac_f32 v{sm+r}, v{xb[r]+e}, v{xb[r]+e}')
    allreduce(a, [sm, sm+1], X+44)
    for r in range(2):
        a(f'v_mov_b32 v{X+46}, 0x3727c5ac')
        a(f'v_fmac_f32 v{X+46}, {hex(0x3b000000)}, v{sm+r}')
        a(f'v_rsq_f32 v{sm+r}, v{X+46}')
        a('s_nop 0')
        for e in range(8): a(f'v_mul_f32 v{xb[r]+e}, v{xb[r]+e}, v{sm+r}')
        for k in range(4): a(f'v_cvt_pk_bf16_f32 v{xb[r]+k}, v{xb[r]+2*k}, v{xb[r]+2*k+1}')
        a(f'buffer_store_dwordx4 {v(xb[r],4)}, v{R.V_L16}, s[{S_H}:{S_H+3}], s{s_row} offen' + (' offset:1024' if r else ''))
    a(f'v_and_b32 v{X+46}, 63, v0')
    a(f'v_cmp_eq_u32 vcc, 1, v{X+46}')
    a(f'v_lshlrev_b32 v{X+47}, 2, v{X+46}')
    a('s_nop 0')
    a(f'v_cndmask_b32 v{sm+2}, v{sm+2}, v{sm+3}, vcc')
    a(f'v_cmp_gt_u32 vcc, 2, v{X+46}')
    a('s_and_saveexec_b64 s[54:55], vcc')
    a(f'buffer_store_dword v{sm+2}, v{X+47}, s[{S_G}:{S_G+3}], s{s_rowg} offen')
    a('s_mov_b64 exec, s[54:55]')

def make_srd(a, s, ptr, off, nbytes):
    if off:
        a(f's_add_u32 s{s}, s{ptr}, {off}')
        a(f's_addc_u32 s{s+1}, s{ptr+1}, 0')
        a(f's_and_b32 s{s+1}, s{s+1}, 0xffff')
    else:
        a(f's_mov_b32 s{s}, s{ptr}')
        a(f's_and_b32 s{s+1}, s{ptr+1}, 0xffff')
    a(f's_mov_b32 s{s+2}, {nbytes}')
    a(f's_mov_b32 s{s+3}, 0x20000')

def emit_l1(a, N='l1', passes=('Q', 'K', 'V')):
    S_X, S_C, S_WQ, S_WK, S_WV, S_O, S_H, S_G, S_BX, S_GW = 4, 8, 12, 16, 24, 28, 32, 36, 56, 60
    s_w, s_h, s_r = 20, 21, 22
    a('s_cmp_ge_u32 s2, 256')
    a(f's_cbranch_scc1 {N}_end')
    a(f's_load_dwordx4 s[64:67], s[0:1], {KA_AX}')
    a(f's_load_dwordx4 s[68:71], s[0:1], {KA_WQ}')
    a(f's_load_dwordx2 s[72:73], s[0:1], {KA_WUV}')
    a(f's_load_dwordx2 s[76:77], s[0:1], {KA_GW}')
    a(f's_load_dwordx2 s[78:79], s[0:1], {KA_WS}')
    a('v_lshrrev_b32 v1, 6, v0')
    a('s_and_b32 s23, s2, 7')
    a(f'v_readfirstlane_b32 s{s_w}, v1')
    a('s_lshr_b32 s48, s2, 3')
    a(f's_lshl_b32 s{s_h}, s23, 2')
    a('s_and_b32 s23, s48, 3')
    a(f's_add_u32 s{s_h}, s{s_h}, s23')
    a(f's_lshr_b32 s{s_r}, s48, 2')
    P = Proj(a, N, s_w)
    P.setup_addrs()
    a('s_waitcnt lgkmcnt(0)')
    make_srd(a, S_X, 64, 0, 2*MB); make_srd(a, S_C, 66, 0, 2*MB)
    make_srd(a, S_WQ, 68, 0, 4*MB); make_srd(a, S_WK, 70, 0, 4*MB); make_srd(a, S_WV, 72, 0, 4*MB)
    make_srd(a, S_O, 78, 0, 48*MB)
    make_srd(a, S_H, 78, WS_H, 2*MB); make_srd(a, S_G, 78, WS_G, 8192)
    make_srd(a, S_GW, 76, 0, 1024)
    a(f's_lshl_b32 s80, s2, 3'); a(f's_lshl_b32 s81, s{s_w}, 1'); a('s_add_u32 s80, s80, s81')
    a('s_lshl_b32 s81, s80, 2')
    a('s_lshl_b32 s80, s80, 10')
    emit_ln_loads(a, S_BX, S_X, S_GW, 80, 192)
    c = 0x3e0293ee
    a(f'v_mov_b32 v2, {hex(c)}'); a(f'v_mov_b32 v3, {hex(c)}')
    def init(p):
        return [f's_lshl_b32 s{P.s_a0}, s{s_r}, 18', f's_lshl_b32 s{P.s_t}, s{s_w}, 16', f's_add_u32 s{P.s_a0}, s{P.s_a0}, s{P.s_t}',
                f's_add_u32 s{P.s_a1}, s{P.s_a0}, 32768',
                f's_lshl_b32 s{P.s_wo}, s{s_w}, 17', f's_lshl_b32 s{P.s_t}, s{s_h}, 8', f's_add_u32 s{P.s_wo}, s{P.s_wo}, s{P.s_t}']
    a(f's_lshl_b32 s82, s{s_h}, 6'); a(f's_lshl_b32 s83, s{s_r}, 3'); a('s_add_u32 s82, s82, s83')
    a(f's_lshl_b32 s83, s{s_w}, 1'); a('s_add_u32 s82, s82, s83'); a('s_lshl_b32 s82, s82, 13')
    a(f's_add_u32 s83, s82, {WS_K}'); a(f's_add_u32 s84, s82, {WS_V}')
    cfg = {'Q': dict(swap=False, srdA=S_X, srdW=S_WQ, epi=lambda: P.epilogue_store('Q', S_O, 82)),
           'K': dict(swap=False, srdA=S_C, srdW=S_WK, epi=lambda: P.epilogue_store('K', S_O, 83, v_scale=2)),
           'V': dict(swap=True, srdA=S_C, srdW=S_WV, epi=lambda: P.epilogue_store('V', S_O, 84))}
    ps = [cfg[p] for p in passes]
    def ln():
        a('s_waitcnt vmcnt(27)')
        emit_ln_compute(a, 192, S_H, S_G, 80, 81, 64)
    P.run_passes(ps, [init(p) for p in range(len(ps))], extra_after_prologue=ln, n_extra_vm=3)
    a('s_waitcnt vmcnt(0)')
    a.label(f'{N}_end')
    a('s_endpgm')
```

```python
from asmlib import *
from layout import *
from gen_proj import make_srd, v

MF = 'v_mfma_f32_32x32x16_bf16'

class VmQueue:
    def __init__(self): self.q = []
    def push(self, tag): self.q.append(tag)
    def wait_for(self, a, tag):
        idx = [i for i, t in enumerate(self.q) if t == tag]
        if not idx: return
        n = len(self.q) - 1 - idx[-1]
        a(f's_waitcnt vmcnt({n})')
        self.q = self.q[idx[-1]+1:]

def lane_setup(a, vl, T):
    a(f'v_and_b32 v{vl}, 63, v0')
    a(f'v_lshrrev_b32 v{T}, 5, v{vl}')
    a(f'v_bfe_u32 v{T+1}, v{vl}, 2, 2')
    a(f'v_bfe_u32 v{T+2}, v{vl}, 4, 1')
    a(f'v_and_b32 v{T+3}, 3, v{vl}')
    a(f'v_bfe_u32 v{T+4}, v{vl}, 3, 1')

def tr_addr(a, dst, T, tile, hfmul, s_base):
    X = T+5
    a(f'v_mul_u32_u24 v{X}, {hfmul}, v{T}')
    a(f'v_add_u32 v{X}, v{X}, v{T+1}')
    a(f'v_lshlrev_b32 v{X}, 7, v{X}')
    a(f'v_xor_b32 v{dst}, {tile}, v{T+4}')
    a(f'v_lshl_add_u32 v{X}, v{dst}, 6, v{X}')
    a(f'v_lshl_add_u32 v{X}, v{T+2}, 5, v{X}')
    a(f'v_lshl_add_u32 v{X}, v{T+3}, 3, v{X}')
    a(f'v_add_u32 v{dst}, s{s_base}, v{X}')

def dma_voffs(a, dst, vl, T, stride, s_tmp):
    a(f'v_lshrrev_b32 v{T}, 3, v{vl}')
    a(f'v_bfe_u32 v{T+1}, v{vl}, 2, 1')
    a(f'v_bfe_u32 v{T+2}, v{vl}, 4, 1')
    a(f'v_xor_b32 v{T+1}, v{T+1}, v{T+2}')
    a(f'v_lshlrev_b32 v{T+1}, 6, v{T+1}')
    a(f'v_and_b32 v{T+2}, 3, v{vl}')
    a(f'v_lshl_add_u32 v{T+1}, v{T+2}, 4, v{T+1}')
    a(f's_mov_b32 s{s_tmp}, {stride}')
    a(f'v_mul_lo_u32 v{T}, v{T}, s{s_tmp}')
    a(f'v_add_u32 v{T}, v{T}, v{T+1}')
    for j in range(4):
        a(f'v_add_u32 v{dst+j}, {j*(8*stride-1024)}, v{T}')

def reduce_tiles(a, ACC, V_W, V_R, dst):
    for t in range(4):
        for q in range(4):
            a(f'ds_write_b128 v{V_W}, {v(ACC+16*t+4*q,4)} offset:{t*4096+q*1024}')
    a('s_waitcnt lgkmcnt(0)')
    a('s_barrier')
    a(f'v_add_u32 v{V_W}, 0x10000, v{V_R}')
    for ww in range(4):
        for q in range(4):
            adr = V_R if ww < 2 else V_W
            a(f'ds_read_b128 {v(dst+16*ww+4*q,4)}, v{adr} offset:{(ww&1)*32768+q*1024}')
    a('s_waitcnt lgkmcnt(0)')
    for e in range(16):
        a(f'v_add_f32 v{dst+e}, v{dst+e}, v{dst+16+e}')
        a(f'v_add_f32 v{dst+32+e}, v{dst+32+e}, v{dst+48+e}')
    for e in range(16):
        a(f'v_add_f32 v{dst+e}, v{dst+e}, v{dst+32+e}')

def emit_mlp1(a, N='mlp1', standalone=True):
    S_W1, S_H, S_U, S_B1 = 4, 8, 12, 16
    s_w, s_fb, s_db, s_t, s_a, s_b, s_base = 20, 21, 22, 23, 24, 25, 26
    ACC = 64; FB = [128, 144]; V_RA = [8, 9]; V_AO = 12; V_BO = 16; VL = 4; V_L16 = 5; T = 20; V_BI = 40; V_W = 6; V_R = 7
    a('s_lshr_b32 s27, s2, 3')
    a('s_cmp_ge_u32 s2, 256')
    a(f's_cbranch_scc1 {N}_end')
    a('s_cmp_ge_u32 s27, 28')
    a(f's_cbranch_scc1 {N}_end')
    a(f's_load_dwordx4 s[64:67], s[0:1], {KA_W1}')
    a(f's_load_dwordx2 s[68:69], s[0:1], {KA_WS}')
    a('v_lshrrev_b32 v1, 6, v0')
    a('s_and_b32 s28, s2, 7')
    a(f'v_readfirstlane_b32 s{s_w}, v1')
    a('s_lshr_b32 s29, s28, 1'); a('s_mul_i32 s29, s29, 7'); a('s_lshr_b32 s30, s27, 2'); a(f's_add_u32 s{s_fb}, s29, s30')
    a('s_and_b32 s29, s28, 1'); a('s_lshl_b32 s29, s29, 2'); a('s_and_b32 s30, s27, 3'); a(f's_add_u32 s{s_db}, s29, s30')
    a(f's_lshl_b32 s{s_base}, s{s_w}, 15')
    lane_setup(a, VL, T)
    a(f'v_lshlrev_b32 v{V_L16}, 4, v{VL}')
    for t in range(2): tr_addr(a, V_RA[t], T, t, 8, s_base)
    a(f's_lshr_b32 s29, s{s_w}, 1'); a('s_lshl_b32 s29, s29, 5'); a(f's_lshl_b32 s30, s{s_fb}, 6'); a('s_add_u32 s29, s29, s30'); a('s_lshl_b32 s31, s29, 1')
    a(f'v_lshlrev_b32 v{V_BI+8}, 3, v{T}')
    dma_voffs(a, V_AO, VL, T, 3584, 29)
    dma_voffs(a, V_BO, VL, T, 1024, 29)
    a(f'v_add_u32 v{V_W}, s{s_base}, v{V_L16}')
    a(f's_lshl_b32 s29, s{s_w}, 12')
    a(f'v_add_u32 v{V_R}, s29, v{V_L16}')
    a('s_waitcnt lgkmcnt(0)')
    make_srd(a, S_W1, 64, 0, 2048*3584); make_srd(a, S_B1, 66, 0, 3584)
    make_srd(a, S_H, 68, WS_H, 2*MB); make_srd(a, S_U, 68, WS_U, 16*112*1024)
    vq = VmQueue()
    for jj in range(4):
        a(f'buffer_load_dwordx2 {v(V_BI+2*jj,2)}, v{V_BI+8}, s[{S_B1}:{S_B1+3}], s31 offen offset:{16*jj}'); vq.push('bias')
    a(f's_mul_i32 s{s_a}, s{s_w}, {512*3584}'); a(f's_lshl_b32 s29, s{s_fb}, 7'); a(f's_add_u32 s{s_a}, s{s_a}, s29')
    a(f's_lshl_b32 s{s_b}, s{s_w}, 19'); a(f's_lshl_b32 s29, s{s_db}, 7'); a(f's_add_u32 s{s_b}, s{s_b}, s29')
    NS, PD = 16, 4
    def dma(t):
        slot = (t % PD)*8192
        g = []
        for j in range(4):
            l = []
            if j == 0: l += [f's_add_u32 m0, s{s_base}, {slot}', 's_nop 0']
            l.append(f'buffer_load_dwordx4 v{V_AO+j}, s[{S_W1}:{S_W1+3}], s{s_a} offen' + (f' offset:{j*1024}' if j else '') + ' lds')
            if j == 3: l.append(f's_add_u32 s{s_a}, s{s_a}, {32*3584}')
            g.append(l)
        for j in range(4):
            l = []
            if j == 0: l += [f's_add_u32 m0, s{s_base}, {slot+4096}', 's_nop 0']
            l.append(f'buffer_load_dwordx4 v{V_BO+j}, s[{S_H}:{S_H+3}], s{s_b} offen' + (f' offset:{j*1024}' if j else '') + ' lds')
            if j == 3: l.append(f's_add_u32 s{s_b}, s{s_b}, {32*1024}')
            g.append(l)
        return g
    def reads(t, ks, buf):
        slot = (t % PD)*8192 + ks*2048
        F = FB[buf]; l = []
        for op, base in ((0, 0), (1, 4096)):
            for tl in range(2):
                r = F + 8*op + 4*tl
                l.append(f'ds_read_b64_tr_b16 {v(r,2)}, v{V_RA[tl]} offset:{slot+base}')
                l.append(f'ds_read_b64_tr_b16 {v(r+2,2)}, v{V_RA[tl]} offset:{slot+base+512}')
        return l
    def mfmas(buf, first):
        F = FB[buf]; l = []
        for ft in range(2):
            for dt in range(2):
                acc = v(ACC+16*(2*ft+dt), 16)
                l.append(f'{MF} {acc}, {v(F+4*ft,4)}, {v(F+8+4*dt,4)}, ' + ('0' if first else acc))
        return l
    for t in range(PD):
        for g in dma(t):
            for l in g: a(l)
            vq.push(t)
    vq.wait_for(a, 0)
    for l in reads(0, 0, 0): a(l)
    for t in range(NS):
        a('s_waitcnt lgkmcnt(0)')
        rd = reads(t, 1, 1)
        for k, m in enumerate(mfmas(0, t == 0)):
            a(m)
            for l in rd[2*k:2*k+2]: a(l)
        a('s_waitcnt lgkmcnt(0)')
        rd = []
        if t+1 < NS:
            vq.wait_for(a, t+1)
            rd = reads(t+1, 0, 0)
        gs = dma(t+PD) if t+PD < NS else []
        for k, m in enumerate(mfmas(1, False)):
            a(m)
            for l in rd[2*k:2*k+2]: a(l)
            for g in gs[2*k:2*k+2]:
                for l in g: a(l)
                vq.push(t+PD)
    a('s_nop 15')
    DST = 160
    reduce_tiles(a, ACC, V_W, V_R, DST)
    for jj in range(4):
        b = V_BI+2*jj
        a(f'v_lshlrev_b32 v{T}, 16, v{b}'); a(f'v_and_b32 v{T+1}, 0xffff0000, v{b}')
        a(f'v_lshlrev_b32 v{T+2}, 16, v{b+1}'); a(f'v_and_b32 v{T+3}, 0xffff0000, v{b+1}')
        for r in range(4): a(f'v_add_f32 v{DST+4*jj+r}, v{DST+4*jj+r}, v{T+r}')
    K1, K2 = 0xc0135761, 0xbdd2d3e8
    a(f's_mov_b32 s29, {hex(K2)}')
    X = DST+16
    for e in range(16):
        a(f'v_mul_f32 v{X+e}, v{DST+e}, v{DST+e}')
    for e in range(16):
        a(f'v_mov_b32 v{X+16+e}, {hex(K1)}')
    for e in range(16):
        a(f'v_fmac_f32 v{X+16+e}, s29, v{X+e}')
    for e in range(16):
        a(f'v_mul_f32 v{X+e}, v{X+16+e}, v{DST+e}')
    for e in range(16):
        a(f'v_exp_f32 v{X+e}, v{X+e}')
    for e in range(16):
        a(f'v_add_f32 v{X+e}, 1.0, v{X+e}')
    for e in range(16):
        a(f'v_rcp_f32 v{X+e}, v{X+e}')
    for e in range(16):
        a(f'v_mul_f32 v{DST+e}, v{DST+e}, v{X+e}')
    a(f's_and_b32 s29, s{s_w}, 1'); a(f's_lshl_b32 s30, s{s_db}, 1'); a('s_add_u32 s29, s29, s30'); a('s_mul_i32 s29, s29, 112')
    a(f's_lshr_b32 s30, s{s_w}, 1'); a('s_lshl_b32 s30, s30, 1'); a('s_add_u32 s29, s29, s30')
    a(f's_lshl_b32 s30, s{s_fb}, 2'); a('s_add_u32 s29, s29, s30'); a('s_lshl_b32 s29, s29, 10')
    for t in range(2):
        b = DST+8*t
        for k in range(4): a(f'v_cvt_pk_bf16_f32 v{b+k}, v{b+2*k}, v{b+2*k+1}')
        a(f'buffer_store_dwordx4 {v(b,4)}, v{V_L16}, s[{S_U}:{S_U+3}], s29 offen offset:{t*1024}')
    a('s_waitcnt vmcnt(0)')
    a.label(f'{N}_end')
    if standalone: a('s_endpgm')

def emit_l3(a, N='l3'):
    S_WO, S_W2, S_CTX, S_U, S_G, S_B2, S_OUT = 4, 8, 12, 16, 24, 28, 32
    s_w, s_sb, s_mb, s_base = 20, 21, 22, 23
    s_d, s_x0, s_x1 = 36, 37, 38
    ACCY, ACCO = 64, 128; FB = [192, 200]; DR = 0
    VL = 208; V_L16 = 209; V_RA = [210, 211]; V_WO = 212; V_W2 = 216; T = 220; V_G = 228; V_B2 = 230; V_W = 232; V_R = 233; V_OA = 234
    a('s_cmp_ge_u32 s2, 256')
    a(f's_cbranch_scc1 {N}_end')
    a(f's_load_dwordx2 s[64:65], s[0:1], {KA_WO}')
    a(f's_load_dwordx4 s[68:71], s[0:1], {KA_W2}')
    a(f's_load_dwordx2 s[72:73], s[0:1], {KA_OUT}')
    a(f's_load_dwordx2 s[74:75], s[0:1], {KA_WS}')
    a('v_lshrrev_b32 v1, 6, v0')
    a('s_and_b32 s41, s2, 7')
    a(f'v_readfirstlane_b32 s{s_w}, v1')
    a('s_lshr_b32 s40, s2, 3')
    a('s_lshl_b32 s41, s41, 2'); a('s_and_b32 s42, s40, 3'); a(f's_add_u32 s{s_sb}, s41, s42')
    a(f's_lshr_b32 s{s_mb}, s40, 2')
    a(f's_lshl_b32 s{s_base}, s{s_w}, 15')
    lane_setup(a, VL, T)
    a(f'v_lshlrev_b32 v{V_L16}, 4, v{VL}')
    for t in range(2): tr_addr(a, V_RA[t], T, t, 4, s_base)
    a(f'v_and_b32 v{V_OA}, 31, v{VL}')
    a(f'v_lshlrev_b32 v{V_G}, 2, v{V_OA}')
    a(f'v_lshlrev_b32 v{V_B2}, 1, v{V_OA}')
    a(f'v_lshlrev_b32 v{V_OA}, 10, v{V_OA}')
    a(f'v_lshl_add_u32 v{V_OA}, v{T}, 4, v{V_OA}')
    dma_voffs(a, V_WO, VL, T, 1024, 42)
    dma_voffs(a, V_W2, VL, T, 4096, 42)
    a(f'v_add_u32 v{V_W}, s{s_base}, v{V_L16}')
    a(f's_lshl_b32 s42, s{s_w}, 12')
    a(f'v_add_u32 v{V_R}, s42, v{V_L16}')
    a('s_waitcnt lgkmcnt(0)')
    make_srd(a, S_WO, 64, 0, 4*MB); make_srd(a, S_W2, 68, 0, 1792*4096); make_srd(a, S_B2, 70, 0, 4096)
    make_srd(a, S_OUT, 72, 0, 2*MB)
    make_srd(a, S_CTX, 74, WS_CTX, 16*MB); make_srd(a, S_U, 74, WS_U, 16*112*1024); make_srd(a, S_G, 74, WS_G, 8192)
    vq = VmQueue()
    a(f's_lshl_b32 s43, s{s_sb}, 8')
    a(f's_lshl_b32 s44, s{s_sb}, 7')
    a(f'v_mov_b32 v{T+6}, v{V_G}'); a(f'v_mov_b32 v{T+7}, v{V_B2}')
    a(f'buffer_load_dword v{V_G}, v{T+6}, s[{S_G}:{S_G+3}], s43 offen'); vq.push('g')
    a(f'buffer_load_dword v{V_G+1}, v{T+6}, s[{S_G}:{S_G+3}], s43 offen offset:128'); vq.push('g')
    a(f'buffer_load_ushort v{V_B2}, v{T+7}, s[{S_B2}:{S_B2+3}], s44 offen'); vq.push('g')
    a(f'buffer_load_ushort v{V_B2+1}, v{T+7}, s[{S_B2}:{S_B2+3}], s44 offen offset:64'); vq.push('g')
    NY, NO, PD, NSLOT = 14, 32, 4, 8
    NS = NY + NO
    def part(t): return ('Y', t) if t < NY else ('O', t-NY)
    def switch(t):
        if t == 0:
            return [f's_mul_i32 s{s_d}, s{s_w}, {448*4096}', f's_lshl_b32 s42, s{s_sb}, 7', f's_add_u32 s{s_d}, s{s_d}, s42',
                    f's_lshl_b32 s42, s{s_mb}, 1', f's_mul_i32 s{s_x0}, s42, {112*1024}', f's_mul_i32 s42, s{s_w}, {28*1024}',
                    f's_add_u32 s{s_x0}, s{s_x0}, s42', f's_add_u32 s{s_x1}, s{s_x0}, {112*1024}']
        if t == NY:
            return [f's_lshl_b32 s{s_d}, s{s_w}, 20', f's_lshl_b32 s42, s{s_mb}, 7', f's_add_u32 s{s_d}, s{s_d}, s42',
                    f's_lshl_b32 s{s_x0}, s{s_sb}, 19', f's_lshl_b32 s42, s{s_w}, 16', f's_add_u32 s{s_x0}, s{s_x0}, s42',
                    f's_add_u32 s{s_x1}, s{s_x0}, {256*1024}']
        return []
    def loads(t):
        p, _ = part(t)
        srdD, vo, step = (S_W2, V_W2, 32*4096) if p == 'Y' else (S_WO, V_WO, 32*1024)
        srdX = S_U if p == 'Y' else S_CTX
        slot = (t % NSLOT)*4096
        g = []
        for j in range(4):
            l = []
            if j == 0: l += switch(t) + [f's_add_u32 m0, s{s_base}, {slot}', 's_nop 0']
            l.append(f'buffer_load_dwordx4 v{vo+j}, s[{srdD}:{srdD+3}], s{s_d} offen' + (f' offset:{j*1024}' if j else '') + ' lds')
            if j == 3: l.append(f's_add_u32 s{s_d}, s{s_d}, {step}')
            g.append(l)
        r0 = DR + 16*(t % PD)
        for ks in range(2):
            for tl, so in ((0, s_x0), (1, s_x1)):
                l = [f'buffer_load_dwordx4 {v(r0+8*ks+4*tl,4)}, v{V_L16}, s[{srdX}:{srdX+3}], s{so} offen' + (f' offset:{ks*1024}' if ks else '')]
                if ks == 1: l.append(f's_add_u32 s{so}, s{so}, 2048')
                g.append(l)
        return g
    def reads(t, ks, buf):
        slot = (t % NSLOT)*4096 + ks*2048
        F = FB[buf]; l = []
        for tl in range(2):
            l.append(f'ds_read_b64_tr_b16 {v(F+4*tl,2)}, v{V_RA[tl]} offset:{slot}')
            l.append(f'ds_read_b64_tr_b16 {v(F+4*tl+2,2)}, v{V_RA[tl]} offset:{slot+1024}')
        return l
    def mfmas(t, ks, buf):
        p, tt = part(t)
        F = FB[buf]; X = DR + 16*(t % PD) + 8*ks; l = []
        first = tt == 0 and ks == 0
        for mt in range(2):
            for st in range(2):
                if p == 'Y':
                    acc = v(ACCY+16*(2*mt+st), 16); A = v(X+4*mt, 4); B = v(F+4*st, 4)
                else:
                    acc = v(ACCO+16*(2*mt+st), 16); A = v(F+4*mt, 4); B = v(X+4*st, 4)
                l.append(f'{MF} {acc}, {A}, {B}, ' + ('0' if first else acc))
        return l
    for t in range(PD):
        for g in loads(t):
            for l in g: a(l)
            vq.push(t)
    vq.wait_for(a, 0)
    for l in reads(0, 0, 0): a(l)
    for t in range(NS):
        a('s_waitcnt lgkmcnt(0)')
        rd = reads(t, 1, 1)
        for k, m in enumerate(mfmas(t, 0, 0)):
            a(m)
            for l in rd[k:k+1]: a(l)
        a('s_waitcnt lgkmcnt(0)')
        rd = []
        if t+1 < NS:
            vq.wait_for(a, t+1)
            rd = reads(t+1, 0, 0)
        ml = mfmas(t, 1, 1)
        for k, m in enumerate(ml):
            a(m)
            for l in rd[k:k+1]: a(l)
        if t+PD < NS:
            for g in loads(t+PD):
                for l in g: a(l)
                vq.push(t+PD)
    a('s_nop 15')
    for st in range(2):
        a(f'v_sub_f32 v{T+st}, 1.0, v{V_G+st}')
    for mt in range(2):
        for st in range(2):
            o = ACCO+16*(2*mt+st); y = ACCY+16*(2*mt+st)
            for e in range(16):
                a(f'v_mul_f32 v{o+e}, v{o+e}, v{V_G+st}')
            for e in range(16):
                a(f'v_fmac_f32 v{o+e}, v{y+e}, v{T+st}')
    DST = 0
    reduce_tiles(a, ACCO, V_W, V_R, DST)
    a(f's_and_b32 s42, s{s_w}, 1')
    a('s_cmp_eq_u32 s42, 1')
    a('s_cselect_b64 vcc, -1, 0')
    a(f'v_cndmask_b32 v{T}, v{T}, v{T+1}, vcc')
    a(f'v_cndmask_b32 v{V_B2}, v{V_B2}, v{V_B2+1}, vcc')
    a(f'v_lshlrev_b32 v{V_B2}, 16, v{V_B2}')
    a(f'v_mul_f32 v{T}, v{T}, v{V_B2}')
    for e in range(16): a(f'v_add_f32 v{DST+e}, v{DST+e}, v{T}')
    for jj in range(4):
        a(f'v_cvt_pk_bf16_f32 v{DST+16+2*jj}, v{DST+4*jj}, v{DST+4*jj+1}')
        a(f'v_cvt_pk_bf16_f32 v{DST+16+2*jj+1}, v{DST+4*jj+2}, v{DST+4*jj+3}')
    a('s_nop 1')
    a(f's_lshl_b32 s43, s{s_sb}, 16'); a('s_lshl_b32 s42, s42, 15'); a('s_add_u32 s43, s43, s42')
    a(f's_lshl_b32 s42, s{s_mb}, 7'); a('s_add_u32 s43, s43, s42')
    a(f's_lshr_b32 s42, s{s_w}, 1'); a('s_lshl_b32 s42, s42, 6'); a('s_add_u32 s43, s43, s42')
    for pr in range(2):
        b = DST+16+4*pr
        a(f'v_permlane32_swap_b32 v{b}, v{b+2}')
        a(f'v_permlane32_swap_b32 v{b+1}, v{b+3}')
        a('s_nop 1')
        a(f'buffer_store_dwordx4 {v(b,4)}, v{V_OA}, s[{S_OUT}:{S_OUT+3}], s43 offen offset:{32*pr}')
    a('s_waitcnt vmcnt(0)')
    a.label(f'{N}_end')
    a('s_endpgm')
```

```python
MB = 1 << 20
WS_Q   = 0
WS_K   = 16 * MB
WS_V   = 32 * MB
WS_CTX = 48 * MB
WS_H   = 64 * MB
WS_U   = 66 * MB
WS_G   = 68 * MB
WS_SIZE = 268435456
KA_AX, KA_CKV, KA_WQ, KA_WUK, KA_WUV, KA_WO, KA_BX, KA_W1, KA_B1, KA_W2, KA_B2, KA_GW, KA_OUT, KA_DBG, KA_WS = [8*i for i in range(15)]
```

```python
import sys, os
from asmlib import *
from layout import *
import gen_proj, gen_attn, gen_t2

NAME = 'gated_mix__compressed_kv_cla__mixer_token_mlp__prompt'
def build(path, **opt):
    ref = open(f'cdna_kernels/{NAME}.s.ref').read().split('\n')
    a = Asm()
    for l in ref:
        if l.startswith('; Override launch') : break
        a(l)
    a('; @launch kernel=proj_kernel grid=(256,1,1) block=(256,1,1) lds=147456')
    a('; @launch kernel=attn_kernel grid=(256,1,1) block=(256,1,1) lds=131072')
    a('; @launch kernel=mlp1_kernel grid=(256,1,1) block=(256,1,1) lds=131072')
    a('; @launch kernel=final_kernel grid=(256,1,1) block=(256,1,1) lds=131072')
    a('.amdgcn_target "amdgcn-amd-amdhsa--gfx950"')
    kernel_header(a, 'proj_kernel'); gen_proj.emit_l1(a, 'l1')
    kernel_header(a, 'attn_kernel'); g = gen_attn.Attn(a, 'attn'); g.emit()
    kernel_header(a, 'mlp1_kernel'); gen_t2.emit_mlp1(a, 'mlp1')
    kernel_header(a, 'final_kernel'); gen_t2.emit_l3(a, 'l3')
    kernel_desc(a, 'proj_kernel', vgpr=256, accum=256)
    kernel_desc(a, 'attn_kernel', vgpr=512, accum=256)
    kernel_desc(a, 'mlp1_kernel', vgpr=256, accum=256)
    kernel_desc(a, 'final_kernel', vgpr=256, accum=256)
    open(path, 'w').write(a.text())
if __name__ == '__main__':
    build(sys.argv[1] if len(sys.argv) > 1 else f'cdna_kernels/{NAME}.s')
```

```python
class Asm:
    def __init__(self):
        self.lines = []
    def __call__(self, s=''):
        for l in s.split('\n'):
            self.lines.append(l)
    def label(self, name):
        self.lines.append(name + ':')
    def text(self):
        return '\n'.join(self.lines) + '\n'

def kernel_header(a, name):
    a('.text')
    a(f'.globl {name}')
    a('.p2align 8')
    a(f'.type {name},@function')
    a.label(name)

def kernel_desc(a, name, vgpr=256, sgpr=102, accum=256, kernarg=120, wg_y=False):
    a('.section .rodata,"a"')
    a('.p2align 6')
    a(f'.amdhsa_kernel {name}')
    a(f'  .amdhsa_next_free_vgpr {vgpr}')
    a(f'  .amdhsa_next_free_sgpr {sgpr}')
    a(f'  .amdhsa_accum_offset {accum}')
    a('  .amdhsa_group_segment_fixed_size 0')
    a(f'  .amdhsa_kernarg_size {kernarg}')
    a('  .amdhsa_user_sgpr_count 2')
    a('  .amdhsa_user_sgpr_kernarg_segment_ptr 1')
    a('  .amdhsa_system_sgpr_workgroup_id_x 1')
    if wg_y:
        a('  .amdhsa_system_sgpr_workgroup_id_y 1')
    a('  .amdhsa_float_denorm_mode_32 3')
    a('.end_amdhsa_kernel')
    a('.text')

def srd(a, s, base, nbytes):
    a(f's_mov_b32 s{s}, s{base}')
    a(f's_and_b32 s{s+1}, s{base+1}, 0xffff')
    a(f's_mov_b32 s{s+2}, {nbytes}')
    a(f's_mov_b32 s{s+3}, 0x20000')


class Stamps:
    def __init__(self, a, on, vreg=255, sreg=98):
        self.a, self.on, self.v, self.s, self.n = a, on, vreg, sreg, 0
        self.names = []
    def __call__(self, name=''):
        if not self.on: return
        a = self.a
        if self.n == 0: a(f'v_mov_b32 v{self.v}, 0')
        a(f's_memtime s[{self.s}:{self.s+1}]')
        a('s_waitcnt lgkmcnt(0)')
        a(f'v_writelane_b32 v{self.v}, s{self.s}, {self.n}')
        self.names.append(name); self.n += 1
    def dump(self, ws_off, s_w, vtmp, kernarg_ws=112):
        if not self.on: return
        a = self.a; s = self.s - 6
        a(f's_load_dwordx2 s[{s}:{s+1}], s[0:1], {kernarg_ws}')
        a('s_waitcnt lgkmcnt(0)')
        a(f's_add_u32 s{s}, s{s}, {ws_off}'); a(f's_addc_u32 s{s+1}, s{s+1}, 0'); a(f's_and_b32 s{s+1}, s{s+1}, 0xffff')
        a(f's_mov_b32 s{s+2}, 0x100000'); a(f's_mov_b32 s{s+3}, 0x20000')
        a(f's_lshl_b32 s{s+4}, s2, 2'); a(f's_add_u32 s{s+4}, s{s+4}, s{s_w}'); a(f's_lshl_b32 s{s+4}, s{s+4}, 8')
        a(f'v_mbcnt_lo_u32_b32 v{vtmp}, -1, 0'); a(f'v_mbcnt_hi_u32_b32 v{vtmp}, -1, v{vtmp}'); a(f'v_lshlrev_b32 v{vtmp}, 2, v{vtmp}')
        a(f'buffer_store_dword v{self.v}, v{vtmp}, s[{s}:{s+3}], s{s+4} offen')
        a('s_waitcnt vmcnt(0)')
```

```python
from asmlib import *
from layout import *
from gen_proj2 import Proj, VmQueue
from gen_proj import make_srd
import gen_t2

OA, OB = 0, 64
QA, QB = 0, 32
PFB = (128, 152)
FR = 192
NFR = 16
S = [[64, 80], [96, 112]]
P = [[128, 136], [144, 152]]
CA, CB = 160, 176
PT = 192
PS = [200, 201]
LA, LB = 202, 203
V_L16 = 204; V_KA = 205; V_VA = 206
V_RELA = 207; V_RELB = 208; V_NEG = 209
V_T = 210
V_DA, V_DB = 226, 227
V_AA, V_AB = 228, 229
V_MASK = 230; V_VBASE = 231; V_REL = [232, 233]
V_ST = 236
S_K, S_V, S_Q, S_C = 4, 8, 12, 16
s_w, s_h, s_i, s_g1, s_cnt, s_ks, s_vs, s_t0, s_thr = 20, 21, 22, 23, 24, 25, 26, 27, 28
s_t1, s_step = 29, 32
S_RET = 30
S_M = 40
D = 8
THR = 0x4e800000

def v(b, n=1): return f'v{b}' if n == 1 else f'v[{b}:{b+n-1}]'
def ar(b, n=1): return f'a{b}' if n == 1 else f'a[{b}:{b+n-1}]'
MF = 'v_mfma_f32_32x32x16_bf16'

class Iter:
    def __init__(self, qk, sm, pv, next_qk, par, czero=False):
        self.qk, self.sm, self.pv, self.next_qk, self.par, self.czero = qk, sm, pv, next_qk, par, czero

def nfr(mode): return {None: 0, 1: 8, 2: 16}[mode]

class Attn:
    def __init__(self, a, name, diag=False, **opt):
        self.a = a; self.name = name; self.diag = diag; self.opt = opt; self.st = Stamps(a, diag, vreg=254)
        self.phase = 0
        self.slow = []
        self.uid = 0
        self.vm = {}

    def simulate(self):
        res = {}
        for i in range(8):
            G1 = 4*(i+1)
            def mode(g): return None if (g < 0 or g > 33) else (1 if g < G1 else 2)
            def first(g):
                return g if g <= G1 else G1 + 2*(g-G1)
            def r(g): return 1 if g < G1 else 2
            issued = []
            def issue(kind, b0, nb):
                for b in range(b0, b0+nb):
                    issued.extend([(kind, b)]*2)
            kd = 0; vd = 0
            issue('K', 0, 6); issue('V', 0, 4)
            kd, vd = 6, 4
            kfree = 0; vfree = 0
            def need(n):
                req = []
                if mode(n+3): req += [('K', b) for b in range(first(n+3), first(n+3)+r(n+3))]
                if mode(n+1): req += [('V', b) for b in range(first(n+1), first(n+1)+r(n+1))]
                last = -1
                for k, x in enumerate(issued):
                    if x in req: last = k
                for x in req: assert x in issued, (i, n, x)
                return len(issued) - 1 - last if last >= 0 else None
            def pos(n):
                if n <= -1: return ('pro', n)
                if n <= G1-5:
                    if n >= G1-6 : return ('p1peel', n & 1)
                    return ('p1loop', n & 1)
                if n <= G1-1: return ('trans', n-G1)
                if n <= 31:
                    if n >= 30: return ('p2peel', n & 1)
                    return ('p2loop', n & 1)
                return ('epi', n)
            for n in range(-3, 34):
                if n >= -2:
                    if mode(n) and n <= 31:
                        b0 = vd; nb = r(n)
                        assert b0 + nb - 8 <= (first(n-1) if n-1 >= 0 else 0), (i, n, b0, nb)
                        issue('V', b0, nb); vd += nb
                N = need(n)
                p = pos(n)
                if N is not None:
                    res[p] = min(res.get(p, 99), N)
                if mode(n+3) or (n <= 31 and n >= -3):
                    nb = r(n+3)
                    if n <= 30 or True:
                        assert kd + nb - 8 <= first(n+3), (i, n, kd, nb)
                        issue('K', kd, nb); kd += nb
                if n == G1-1: issued.extend([('S', 0)]*8)
        self.vm = res
        return res

    def dma_group(self, kind, nb, split=False):
        srd_, so = (S_K, s_ks) if kind == 'K' else (S_V, s_vs)
        g = []
        if kind == 'K':
            pre = [f's_and_b32 m0, s{so}, 0xffff']
        else:
            pre = [f's_and_b32 s{s_t0}, s{so}, 0xffff', f's_or_b32 m0, s{s_t0}, 0x10000']
        n = 2*nb
        if split: g.append(pre)
        for k in range(n):
            l = []
            if k == 0 and not split: l += pre + ['s_nop 0']
            off = f' offset:{k*1024}' if k else ''
            l.append(f'buffer_load_dwordx4 v{V_L16}, s[{srd_}:{srd_+3}], s{so} offen{off} lds')
            if k == n-1: l.append(f's_add_u32 s{so}, s{so}, {nb*8192}')
            g.append(l)
        return g

    def sm_ops(self, it):
        sm = it.sm; pr = it.par ^ 1
        ops = []
        masked = sm.endswith('m')
        init = sm == 'init'
        mode = '1' if init else sm[0]
        for b in range(2):
            Sb = S[pr][b]; Pb = P[pr][b]
            domask = masked and (mode == '2' or b == 0)
            blk = []
            if domask:
                def cmp(e): return (4, f'v_cmp_ge_i32 s[{S_M+2*(e%8)}:{S_M+2*(e%8)+1}], v{V_REL[b]}, {8*(e>>2)+(e&3)}')
                def cnd(e): return (4, f'v_cndmask_b32 v{Sb+e}, v{V_NEG}, v{Sb+e}, s[{S_M+2*(e%8)}:{S_M+2*(e%8)+1}]')
                blk += [cmp(0), cmp(1), cmp(2), cmp(3), cnd(0)]
            for e in range(16):
                if domask:
                    if e+4 < 16: blk.append(cmp(e+4))
                    if e+1 < 16: blk.append(cnd(e+1))
                if init:
                    if e == 0: blk.append((4, f'v_sub_f32 v{Sb}, v{Sb}, v{V_DA if b == 0 else V_DB}'))
                    if e+1 < 16: blk.append((4, f'v_sub_f32 v{Sb+e+1}, v{Sb+e+1}, v{V_DA if b == 0 else V_DB}'))
                blk.append((8, f'v_exp_f32 v{PT+(e%8)}, v{Sb+e}'))
                if e >= 2 or True:
                    k = e-1
                    if k == 1: blk.append((4, f'v_add_f32 v{PS[b]}, v{PT+0}, v{PT+1}'))
                    elif k > 1: blk.append((4, f'v_add_f32 v{PS[b]}, v{PS[b]}, v{PT+(k%8)}'))
                    if k >= 1 and k % 2 == 1:
                        blk.append((4, f'v_cvt_pk_bf16_f32 v{Pb+(k>>1)}, v{PT+((k-1)%8)}, v{PT+(k%8)}'))
            blk.append((4, f'v_add_f32 v{PS[b]}, v{PS[b]}, v{PT+(15%8)}'))
            blk.append((4, f'v_cvt_pk_bf16_f32 v{Pb+7}, v{PT+(14%8)}, v{PT+(15%8)}'))
            ops += blk
        if not init and not self.opt.get('nocheck'):
            ops.append((4, f'v_max_f32 v{V_T}, v{PS[0]}, v{PS[1]}'))
            ops.append((4, f'v_cmp_lt_f32 vcc, s{s_thr}, v{V_T}'))
        return ops

    def rel_setup(self, it):
        return []

    def emit_iter(self, it, pos, extra_pre=None, name=''):
        a = self.a
        par = it.par
        ph = self.phase
        mf = []
        reads = []
        fidx = 0
        def fr(k): return FR + 4*((ph + k) % NFR)
        Sw = S[par]; Pr = P[par]
        if it.qk == 1:
            for j in range(8):
                A = ar(fr(fidx+j), 4)
                for b, Q, C in ((0, QA, CA), (1, QB, CB)):
                    c = ('0' if it.czero else v(C, 16)) if j == 0 else v(Sw[b], 16)
                    mf.append((f'{MF} {v(Sw[b],16)}, {A}, {v(Q+4*j,4)}, {c}', fidx+j))
                reads.append((2*j, f'ds_read_b128 {A}, v{V_KA} offset:{j*1024}', fidx+j))
            fidx += 8
        elif it.qk == 2:
            for f in range(16):
                b, j = f >> 3, f & 7
                A = ar(fr(fidx+f), 4)
                c = ('0' if it.czero else v(CB, 16)) if j == 0 else v(Sw[b], 16)
                mf.append((f'{MF} {v(Sw[b],16)}, {A}, {v(QB+4*j,4)}, {c}', fidx+f))
                reads.append((f, f'ds_read_b128 {A}, v{V_KA} offset:{f*1024}', fidx+f))
            fidx += 16
        s0 = len(mf)
        if it.pv == 1:
            for f in range(8):
                t, db = f >> 2, f & 3
                A = ar(fr(fidx+f), 4)
                for b, O in ((0, OA), (1, OB)):
                    mf.append((f'{MF} {ar(O+16*db,16)}, {A}, {v(Pr[b]+4*t,4)}, {ar(O+16*db,16)}', fidx+f))
                reads.append((s0+2*f, f'ds_read_b128 {A}, v{V_VA} offset:{f*1024}', fidx+f))
            fidx += 8
        elif it.pv == 2:
            for f in range(16):
                b, t, db = f >> 3, (f >> 2) & 1, f & 3
                A = ar(fr(fidx+f), 4)
                mf.append((f'{MF} {ar(OB+16*db,16)}, {A}, {v(Pr[b]+4*t,4)}, {ar(OB+16*db,16)}', fidx+f))
                reads.append((s0+f, f'ds_read_b128 {A}, v{V_VA} offset:{f*1024}', fidx+f))
            fidx += 16
        ns = len(mf)
        nown = fidx
        lead_in = [r for r in reads if it.qk and r[0] < D and r[2] < nfr(it.qk)]
        own = [r for r in reads if r not in lead_in]
        lead_out = []
        if it.next_qk:
            n = nfr(it.next_qk)
            for j in range(n):
                fu = 2*j if it.next_qk == 1 else j
                if fu < D:
                    A = ar(FR + 4*((ph + nown + j) % NFR), 4)
                    lead_out.append((ns + fu, f'ds_read_b128 {A}, v{V_KA} offset:{j*1024}', nown+j))
        bslot = max(ns - D, 0)
        slots = [[] for _ in range(ns+1)]
        pre = []
        order = [r[2] for r in lead_in]
        def place_read(slot, r):
            (pre if slot < 0 else slots[slot]).append(('ds', r[1], r[2]))
        for r in own:
            place_read(r[0]-D if r[0]-D >= 0 else -1, r)
        win = []
        has_bar = pos is not None and pos in self.vm
        if has_bar:
            if not self.opt.get('novm'): win.append(('x', f's_waitcnt vmcnt({self.vm[pos]})'))
            if not self.opt.get('nobar'): win.append(('x', 's_barrier'))
        if it.qk:
            win.append(('x', f'v_add_u32 v{V_KA}, {8192*(1 if it.qk==1 else 2)}, v{V_KA}'))
            win.append(('x', f'v_and_b32 v{V_KA}, 0xffff, v{V_KA}'))
        if it.pv:
            win.append(('x', f'v_add_u32 v{V_VA}, {8192*(1 if it.pv==1 else 2)}, v{V_VA}'))
            win.append(('x', f'v_and_or_b32 v{V_VA}, v{V_VA}, v{V_MASK}, v{V_VBASE}'))
        for r in own:
            assert r[0]-D < bslot or ns <= D, (r, bslot)
        vg = self.dma_group('V', 1 if it.pv == 1 else 2, split=True) if (it.pv and not getattr(it, 'nov', False)) else []
        kg = self.dma_group('K', 1 if it.next_qk == 1 else 2, split=True) if (it.next_qk or getattr(it, 'forcek', False)) else []
        if self.opt.get('nodma') and pos and pos[0] != 'pro': vg = []; kg = []
        sm = self.sm_ops(it) if it.sm else []
        if self.opt.get('nosm'): sm = []
        if self.opt.get('noexp'): sm = [(c, t) for c, t in sm if 'exp' not in t]
        if self.opt.get('noadd'): sm = [(c, t) for c, t in sm if 'v_add_f32' not in t]
        tot = sum(c for c, _ in sm)
        fixed = [0.0]*ns
        for k in range(ns):
            fixed[k] += 4*len(slots[k])
        for k, grp in enumerate(vg):
            sl = min(ns-1, k*(1 if len(vg) > 3 else 2))
            slots[sl].append(('dma', grp)); fixed[sl] += 4*len(grp)
        slots[bslot] = win + slots[bslot]; fixed[bslot] += 4*len(win)
        for r in lead_out:
            sl = min(ns-1, r[0]-D); slots[sl].append(('ds', r[1], r[2])); fixed[sl] += 4
        for k, grp in enumerate(kg):
            sl = min(ns-1, bslot + k*(1 if len(kg) > 3 else 2) + (1 if k else 0))
            slots[sl].append(('dma', grp)); fixed[sl] += 4*len(grp)
        total = tot + sum(fixed)
        smslots = [[] for _ in range(ns)]
        if sm:
            k = 0; cum = 0.0; target_end = ns - self.opt.get('tail', 1.6)
            acc = 0.0
            for sl in range(ns):
                acc += fixed[sl]
                lim = total * (sl+1) / target_end
                while k < len(sm) and (acc + sm[k][0]*0.5 <= lim or sl == ns-1):
                    smslots[sl].append(sm[k]); acc += sm[k][0]; k += 1
        if extra_pre:
            for l in extra_pre: a(l)
        q = list(order)
        def emit_fill(x):
            if x[0] == 'ds':
                a(x[1]); q.append(x[2])
            elif x[0] == 'dma':
                for l in x[1]: a(l)
            else:
                a(x[1])
        for x in pre: emit_fill(x)
        waited = -1
        for k, (txt, f) in enumerate(mf):
            if f in q:
                idx = q.index(f)
                if idx+1 < len(q) and (k % 2 == 0): idx2 = idx+1
                else: idx2 = idx
                nleft = len(q) - 1 - idx2
                a(f's_waitcnt lgkmcnt({nleft})')
                q = q[idx2+1:]
            a(txt)
            fl = slots[k]
            for x in fl:
                if x[0] in ('x', 'ds'): emit_fill(x)
            for c, t in smslots[k]: a(t)
            for x in fl:
                if x[0] == 'dma': emit_fill(x)
        self.phase = (ph + nown) % NFR
        if it.sm and it.sm != 'init' and not self.opt.get('nocheck'):
            self.uid += 1
            u = self.uid
            a(f's_cbranch_vccnz {self.name}_slow{u}')
            a.label(f'{self.name}_join{u}')
            self.l_update(it.sm)
            self.slow.append((u, it))
        elif it.sm == 'init':
            a(f'v_mov_b32 v{LA}, v{PS[0]}')
            a(f'v_mov_b32 v{LB}, v{PS[1]}')

    def l_update(self, sm):
        a = self.a
        if sm[0] == '1' or sm == 'init':
            a(f'v_add_f32 v{LA}, v{LA}, v{PS[0]}')
            a(f'v_add_f32 v{LB}, v{LB}, v{PS[1]}')
        else:
            a(f'v_add_f32 v{LB}, v{LB}, v{PS[0]}')
            a(f'v_add_f32 v{LB}, v{LB}, v{PS[1]}')

    def rowmax(self, dst, blocks):
        a = self.a
        regs = [b+e for b in blocks for e in range(16)]
        a(f'v_max3_f32 v{dst}, v{regs[0]}, v{regs[1]}, v{regs[2]}')
        k = 3
        while k+1 < len(regs):
            a(f'v_max3_f32 v{dst}, v{dst}, v{regs[k]}, v{regs[k+1]}'); k += 2
        if k < len(regs): a(f'v_max_f32 v{dst}, v{dst}, v{regs[k]}')
        a(f'v_mov_b32 v{V_T+1}, v{dst}')
        a('s_nop 1')
        a(f'v_permlane32_swap_b32 v{V_T+1}, v{dst}')
        a('s_nop 1')
        a(f'v_max_f32 v{dst}, v{dst}, v{V_T+1}')

    def plain_sm(self, pr):
        a = self.a
        for b in range(2):
            for e in range(0, 16, 2):
                a(f'v_exp_f32 v{PT}, v{S[pr][b]+e}')
                a(f'v_exp_f32 v{PT+1}, v{S[pr][b]+e+1}')
                a('s_nop 0')
                a(f'v_cvt_pk_bf16_f32 v{P[pr][b]+(e>>1)}, v{PT}, v{PT+1}')
                if e == 0:
                    a(f'v_add_f32 v{PS[b]}, v{PT}, v{PT+1}')
                else:
                    a(f'v_add_f32 v{PS[b]}, v{PS[b]}, v{PT}')
                    a(f'v_add_f32 v{PS[b]}, v{PS[b]}, v{PT+1}')

    def sub_delta(self, pr, mode):
        a = self.a
        for b in range(2):
            dl = V_DA if (mode == 1 and b == 0) else V_DB
            for e in range(16):
                a(f'v_sub_f32 v{S[pr][b]+e}, v{S[pr][b]+e}, v{dl}')

    def emit_slow(self, u, it):
        a = self.a
        pr = it.par ^ 1
        mode = 1 if it.sm[0] == '1' else 2
        a.label(f'{self.name}_slow{u}')
        a('s_nop 15')
        a('s_nop 7')
        if mode == 1:
            self.rowmax(V_DA, [S[pr][0]])
            self.rowmax(V_DB, [S[pr][1]])
            a(f'v_max_f32 v{V_DA}, 0, v{V_DA}')
        else:
            self.rowmax(V_DB, [S[pr][0], S[pr][1]])
            a(f'v_mov_b32 v{V_DA}, 0')
        a(f'v_max_f32 v{V_DB}, 0, v{V_DB}')
        a(f's_call_b64 s[{S_RET}:{S_RET+1}], {self.name}_rescale')
        self.sub_delta(pr, mode)
        if it.qk: self.sub_delta(it.par, it.qk)
        self.plain_sm(pr)
        a(f's_branch {self.name}_join{u}')

    def emit_rescale(self):
        a = self.a
        a.label(f'{self.name}_rescale')
        a(f'v_exp_f32 v{V_AA}, -v{V_DA}')
        a(f'v_exp_f32 v{V_AB}, -v{V_DB}')
        a('s_nop 0')
        for O, al in ((OA, V_AA), (OB, V_AB)):
            for e in range(0, 64, 4):
                for k in range(4): a(f'v_accvgpr_read_b32 v{V_T+k}, a{O+e+k}')
                for k in range(4): a(f'v_mul_f32 v{V_T+k}, v{V_T+k}, v{al}')
                for k in range(4): a(f'v_accvgpr_write_b32 a{O+e+k}, v{V_T+k}')
        a(f'v_mul_f32 v{LA}, v{LA}, v{V_AA}')
        a(f'v_mul_f32 v{LB}, v{LB}, v{V_AB}')
        for e in range(16):
            a(f'v_sub_f32 v{CA+e}, v{CA+e}, v{V_DA}')
            a(f'v_sub_f32 v{CB+e}, v{CB+e}, v{V_DB}')
        a('s_nop 1')
        a(f's_setpc_b64 s[{S_RET}:{S_RET+1}]')

    def mask_inplace(self, pr, b):
        a = self.a
        for e0 in range(0, 16, 8):
            for e in range(e0, e0+8):
                a(f'v_cmp_ge_i32 s[{S_M+2*(e%8)}:{S_M+2*(e%8)+1}], v{V_REL[b]}, {8*(e>>2)+(e&3)}')
            a('s_nop 1')
            for e in range(e0, e0+8):
                a(f'v_cndmask_b32 v{S[pr][b]+e}, v{V_NEG}, v{S[pr][b]+e}, s[{S_M+2*(e%8)}:{S_M+2*(e%8)+1}]')

    def emit_init(self):
        a = self.a
        a(f'v_mov_b32 v{V_REL[0]}, v{V_RELA}')
        a('s_nop 12')
        self.mask_inplace(0, 0)
        self.rowmax(V_DA, [S[0][0]])
        self.rowmax(V_DB, [S[0][1]])
        for e in range(16):
            a(f'v_sub_f32 v{CA+e}, 0, v{V_DA}')
            a(f'v_sub_f32 v{CB+e}, 0, v{V_DB}')
        a('s_nop 1')

    def epilogue_tile(self, O, L, qt_sgpr, vq=None):
        a = self.a
        a(f'v_mov_b32 v{V_T+1}, v{L}')
        a('s_nop 1')
        a(f'v_permlane32_swap_b32 v{V_T+1}, v{L}')
        a('s_nop 1')
        a(f'v_add_f32 v{L}, v{L}, v{V_T+1}')
        a(f'v_rcp_f32 v{V_T+2}, v{L}')
        a('s_nop 0')
        a(f'v_mov_b32 v{V_T+3}, v{V_T+2}')
        inv = V_T+2
        k = 0
        for db in range(4):
            for t in range(2):
                tmp = V_ST + 8*(k % 2)
                for e in range(8): a(f'v_accvgpr_read_b32 v{tmp+e}, a{O+16*db+8*t+e}')
                for e in range(0, 8, 2): a(f'v_pk_mul_f32 v[{tmp+e}:{tmp+e+1}], v[{tmp+e}:{tmp+e+1}], v[{inv}:{inv+1}]')
                for e in range(0, 8, 2): a(f'v_cvt_pk_bf16_f32 v{tmp+(e>>1)}, v{tmp+e}, v{tmp+e+1}')
                j = 2*db+t
                off = j*1024
                so = qt_sgpr if off < 4096 else qt_sgpr+1
                a(f'buffer_store_dwordx4 v[{tmp}:{tmp+3}], v{V_L16}, s[{S_C}:{S_C+3}], s{so} offen offset:{off % 4096}')
                if vq: vq.push('ctx')
                k += 1

    def stamp(self, same=False):
        self.st()
    def dump_stamps(self):
        self.st.dump(100*MB, s_w, 253)

    def emit(self):
        a = self.a; N = self.name; opt = self.opt
        self.simulate()
        vm = self.vm
        S_X, S_WQ = 12, 60
        a(f's_cmp_ge_u32 s2, 256')
        a(f's_cbranch_scc1 {N}_end')
        self.stamp()
        a(f's_load_dwordx2 s[34:35], s[0:1], {KA_WS}')
        a(f's_load_dwordx2 s[64:65], s[0:1], {KA_AX}')
        a(f's_load_dwordx2 s[66:67], s[0:1], {KA_WQ}')
        a(f'v_lshrrev_b32 v1, 6, v0')
        a(f'v_and_b32 v2, 63, v0')
        a(f'v_lshlrev_b32 v{V_L16}, 4, v2')
        a(f'v_readfirstlane_b32 s{s_w}, v1')
        a(f's_and_b32 s{s_t0}, s2, 7')
        a(f's_lshr_b32 s{s_t1}, s2, 3')
        a(f's_lshl_b32 s{s_h}, s{s_t0}, 2')
        a(f's_and_b32 s{s_t0}, s{s_t1}, 3')
        a(f's_add_u32 s{s_h}, s{s_h}, s{s_t0}')
        a(f's_lshr_b32 s{s_i}, s{s_t1}, 2')
        a(f's_add_u32 s{s_g1}, s{s_i}, 1')
        a(f's_lshl_b32 s{s_g1}, s{s_g1}, 2')
        a(f's_lshl_b32 s36, s{s_i}, 2')
        a(f's_add_u32 s36, s36, s{s_w}')
        a(f's_lshl_b32 s37, s{s_i}, 2')
        a(f's_sub_u32 s37, 60, s37')
        a(f's_add_u32 s37, s37, s{s_w}')
        vq = VmQueue()
        P = Proj(a, vq, s_w, 16384, 65536, ACC=64, FB=PFB, fbk='a', VA=8, V_L16=V_L16, VT=33, SG=40, wflags=(' nt' if opt.get('nt', True) else ''))
        P.setup_addrs(set_l16=False)
        a('s_waitcnt lgkmcnt(0)')
        make_srd(a, S_X, 64, 0, 2*MB); make_srd(a, S_WQ, 66, 0, 4*MB)
        init = [f's_lshl_b32 s{P.s_a0}, s36, 15', f's_lshl_b32 s{P.s_a1}, s37, 15',
                f's_lshl_b32 s{P.s_wo}, s{s_w}, 17', f's_lshl_b32 s{s_t0}, s{s_h}, 8', f's_add_u32 s{P.s_wo}, s{P.s_wo}, s{s_t0}']
        qpass = [dict(swap=False, srdA=S_X, srdW=S_WQ, init=init, epi=lambda: None, acck='v')]
        P.prologue(qpass[0])
        a(f's_lshl_b32 s{s_t0}, s{s_h}, 19')
        a(f's_lshl_b32 s{s_t1}, s{s_i}, 15')
        a(f's_sub_u32 s{s_t1}, 0x80000, s{s_t1}')
        for S_, base in ((S_K, WS_K), (S_V, WS_V)):
            a(f's_add_u32 s{S_}, s34, {base}')
            a(f's_addc_u32 s{S_+1}, s35, 0')
            a(f's_add_u32 s{S_}, s{S_}, s{s_t0}')
            a(f's_addc_u32 s{S_+1}, s{S_+1}, 0')
            a(f's_and_b32 s{S_+1}, s{S_+1}, 0xffff')
            a(f's_mov_b32 s{S_+2}, s{s_t1}')
            a(f's_mov_b32 s{S_+3}, 0x20000')
        make_srd(a, S_C, 34, WS_CTX, 16*MB)
        a(f's_lshl_b32 s{s_ks}, s{s_w}, 11')
        a(f's_mov_b32 s{s_vs}, s{s_ks}')
        a(f's_mov_b32 s{s_thr}, {THR}')
        a(f'v_mov_b32 v{V_NEG}, 0xf149f2ca')
        a(f'v_mov_b32 v{V_MASK}, 0xffff')
        a(f'v_mov_b32 v{V_VBASE}, 0x10000')
        a(f'v_mov_b32 v{V_KA}, v{V_L16}')
        a(f'v_add_u32 v{V_VA}, 0x10000, v{V_L16}')
        a(f'v_and_b32 v3, 31, v2')
        a(f'v_lshrrev_b32 v4, 5, v2')
        a(f'v_lshlrev_b32 v4, 2, v4')
        a(f'v_sub_u32 v3, v3, v4')
        a(f's_lshl_b32 s{s_t0}, s36, 5')
        a(f'v_add_u32 v{V_RELA}, s{s_t0}, v3')
        a(f's_lshl_b32 s{s_t0}, s37, 5')
        a(f'v_add_u32 v{V_RELB}, s{s_t0}, v3')
        for e in range(128): a(f'v_accvgpr_write_b32 a{e}, 0')
        for qt, d in ((36, 56), (37, 58)):
            a(f's_lshl_b32 s{s_t0}, s{qt}, 5')
            a(f's_add_u32 s{s_t0}, s{s_t0}, s{s_h}')
            a(f's_lshl_b32 s{d}, s{s_t0}, 13')
            a(f's_add_u32 s{d+1}, s{d}, 4096')
        P.start_compute()
        self.stamp()
        def kv_groups(kind, nb):
            G = []
            for b in range(nb):
                for grp in self.dma_group(kind, 1): G.append((grp, 'kv'))
            return G
        KG = kv_groups('K', 6); VG = kv_groups('V', 4)
        def xl(p, t): return KG[:6] if t == 5 else (VG[:2] if t == 6 else [])
        def xe(p, t): return KG[6:] if t == 6 else (VG[2:] if t == 7 else [])
        P.run(qpass, extra_early=xe, extra_late=xl)
        self.stamp()
        a('s_nop 7')
        for st, Q in ((0, QA), (1, QB)):
            for dt in range(4):
                A = 64 + 16*(4*st+dt)
                for t in range(2):
                    for k in range(4):
                        a(f'v_cvt_pk_bf16_f32 v{Q+4*(2*dt+t)+k}, v{A+8*t+2*k}, v{A+8*t+2*k+1}')
        a(f's_waitcnt vmcnt({vm[("pro",-3)]})')
        a('s_barrier')
        for grp in self.dma_group('K', 1):
            for l in grp: a(l)
        for j in range(D//2):
            a(f'ds_read_b128 {ar(FR+4*j,4)}, v{V_KA} offset:{j*1024}')
        self.emit_iter(Iter(1, None, None, 1, 0, czero=True), ('pro', -2))
        self.emit_init()
        self.stamp()
        self.emit_iter(Iter(1, 'init', None, 1, 1), ('pro', -1))
        self.stamp()
        a(f's_cmp_eq_u32 s{s_i}, 0')
        a(f's_cbranch_scc1 {N}_trans')
        a(f's_sub_u32 s{s_cnt}, s{s_g1}, 6')
        a(f's_lshr_b32 s{s_cnt}, s{s_cnt}, 1')
        a('.p2align 6')
        a.label(f'{N}_p1loop')
        self.emit_iter(Iter(1, '1', 1, 1, 0), ('p1loop', 0))
        self.emit_iter(Iter(1, '1', 1, 1, 1), ('p1loop', 1))
        a(f's_sub_u32 s{s_cnt}, s{s_cnt}, 1')
        a(f's_cmp_lg_u32 s{s_cnt}, 0')
        a(f's_cbranch_scc1 {N}_p1loop')
        self.emit_iter(Iter(1, '1', 1, 1, 0), ('p1peel', 0))
        def relA(k):
            return [f's_sub_u32 s{s_t1}, s{s_g1}, {k}', f's_lshl_b32 s{s_t1}, s{s_t1}, 5', f'v_subrev_u32 v{V_REL[0]}, s{s_t1}, v{V_RELA}']
        self.emit_iter(Iter(1, '1m', 1, 1, 1), ('p1peel', 1), extra_pre=relA(4))
        a.label(f'{N}_trans')
        self.stamp()
        self.emit_iter(Iter(1, '1m', 1, 1, 0), ('trans', -4), extra_pre=relA(3))
        sw = [f's_lshl_b32 s{s_t0}, s{s_w}, 11']
        self.emit_iter(Iter(1, '1m', 1, 2, 1), ('trans', -3), extra_pre=relA(2) + sw + [f's_add_u32 s{s_ks}, s{s_ks}, s{s_t0}'])
        self.emit_iter(Iter(2, '1m', 1, 2, 0), ('trans', -2), extra_pre=relA(1))
        def relB(expr_lines):
            return expr_lines + [f'v_subrev_u32 v{V_REL[0]}, s{s_t1}, v{V_RELB}', f'v_subrev_u32 v{V_REL[1]}, 32, v{V_REL[0]}']
        self.emit_iter(Iter(2, '2m', 1, 2, 1), ('trans', -1), extra_pre=relB([f's_lshl_b32 s{s_t1}, s{s_g1}, 5']))
        self.stamp()
        a('s_nop 12')
        self.epilogue_tile(OA, LA, 56)
        a(f's_lshl_b32 s{s_t0}, s{s_w}, 11')
        a(f's_add_u32 s{s_vs}, s{s_vs}, s{s_t0}')
        a(f's_cmp_eq_u32 s{s_i}, 7')
        a(f's_cbranch_scc1 {N}_epi')
        a(f's_sub_u32 s{s_cnt}, 30, s{s_g1}')
        a(f's_lshr_b32 s{s_cnt}, s{s_cnt}, 1')
        a('.p2align 6')
        a.label(f'{N}_p2loop')
        self.emit_iter(Iter(2, '2', 2, 2, 0), ('p2loop', 0))
        self.emit_iter(Iter(2, '2', 2, 2, 1), ('p2loop', 1))
        a(f's_sub_u32 s{s_cnt}, s{s_cnt}, 1')
        a(f's_cmp_lg_u32 s{s_cnt}, 0')
        a(f's_cbranch_scc1 {N}_p2loop')
        self.emit_iter(Iter(2, '2', 2, 2, 0), ('p2peel', 0))
        relB32 = [f's_sub_u32 s{s_t1}, 64, s{s_g1}', f's_lshl_b32 s{s_t1}, s{s_t1}, 5']
        self.emit_iter(Iter(2, '2m', 2, 2, 1), ('p2peel', 1), extra_pre=relB(relB32))
        a.label(f'{N}_epi')
        self.stamp()
        relB33 = [f's_sub_u32 s{s_t1}, 66, s{s_g1}', f's_lshl_b32 s{s_t1}, s{s_t1}, 5']
        it = Iter(None, '2m', 2, None, 0); it.nov = True
        a('s_waitcnt lgkmcnt(0)')
        self.emit_iter(it, ('epi', 32), extra_pre=relB(relB33))
        it = Iter(None, None, 2, None, 1); it.nov = True
        a('s_nop 1')
        self.emit_iter(it, None)
        self.stamp()
        if opt.get('mlp', True):
            a('s_waitcnt vmcnt(0) lgkmcnt(0)')
            a('s_barrier')
            a(f's_lshr_b32 s{s_t0}, s2, 3')
            a(f's_cmp_ge_u32 s{s_t0}, 28')
            a(f's_cbranch_scc1 {N}_nomlp')
            def epiB(vq2):
                a('s_nop 7')
                self.epilogue_tile(OB, LB, 58, vq2)
                self.stamp()
            gen_t2.emit_mlp1_body(a, N + '_m', mid=epiB)
            self.stamp()
            self.dump_stamps()
            a('s_endpgm')
            a.label(f'{N}_nomlp')
        a('s_nop 15')
        self.epilogue_tile(OB, LB, 58)
        a('s_waitcnt vmcnt(0)')
        self.stamp()
        self.dump_stamps()
        a.label(f'{N}_end')
        a('s_endpgm')
        for u, it in self.slow: self.emit_slow(u, it)
        self.emit_rescale()
```

```python
from asmlib import *
from layout import *

MF = 'v_mfma_f32_32x32x16_bf16'
def v(b, n=1): return f'v{b}' if n == 1 else f'v[{b}:{b+n-1}]'

class ProjRegs:
    ACC = 64
    FB = [192, 216]
    V_AR = 8
    V_WR = 12
    V_AB = 16
    V_WB = 20
    V_AD = 24
    V_WD = 28
    V_L16 = 32
    V_T = 33
R = ProjRegs

W_LDS = lambda s: s*16384
A_LDS = lambda s: 49152 + s*32768

class Proj:
    def __init__(self, a, name, s_w=20, stamps=None):
        self.a = a; self.name = name; self.st = stamps or (lambda n='': None)
        self.s_w = s_w
        self.s_a0, self.s_a1, self.s_wo = 40, 41, 42
        self.s_dam, self.s_dwm = 43, 44
        self.s_ra, self.s_rw = 45, 46
        self.s_cnt = 47; self.s_t = 48; self.s_t1 = 49
        self.uid = 0

    def setup_addrs(self):
        a = self.a
        T = R.V_T
        a(f'v_and_b32 v{T}, 63, v0')
        a(f'v_lshlrev_b32 v{R.V_L16}, 4, v{T}')
        a(f'v_and_b32 v{T+1}, 31, v{T}')
        a(f'v_lshrrev_b32 v{T+2}, 5, v{T}')
        a(f'v_bfe_u32 v{T+3}, v{T+1}, 1, 3')
        a(f'v_xor_b32 v{T+3}, v{T+3}, v{T+2}')
        a(f'v_lshlrev_b32 v{T+3}, 4, v{T+3}')
        a(f'v_lshl_add_u32 v{R.V_AB}, v{T+1}, 7, v{T+3}')
        for ks in range(1, 4):
            a(f'v_xor_b32 v{R.V_AB+ks}, {ks << 5}, v{R.V_AB}')
        a(f'v_bfe_u32 v{T+3}, v{T}, 2, 2')
        a(f'v_lshl_add_u32 v{T+4}, v{T+2}, 3, v{T+3}')
        a(f'v_lshlrev_b32 v{T+4}, 8, v{T+4}')
        a(f'v_bfe_u32 v{T+5}, v{T}, 4, 1')
        a(f'v_lshl_add_u32 v{T+4}, v{T+5}, 5, v{T+4}')
        a(f'v_and_b32 v{T+5}, 3, v{T}')
        a(f'v_lshl_add_u32 v{T+4}, v{T+5}, 3, v{T+4}')
        for dt in range(4):
            a(f'v_xor_b32 v{T+5}, {dt}, v{T+3}')
            a(f'v_lshl_add_u32 v{R.V_WB+dt}, v{T+5}, 6, v{T+4}')
        a(f'v_lshrrev_b32 v{T+3}, 3, v{T}')
        a(f'v_and_b32 v{T+4}, 7, v{T}')
        a(f'v_lshrrev_b32 v{T+5}, 1, v{T+3}')
        for j in range(4):
            a(f'v_xor_b32 v{T+6}, v{T+4}, v{T+5}')
            if j & 1: a(f'v_xor_b32 v{T+6}, 4, v{T+6}')
            a(f'v_lshlrev_b32 v{T+6}, 4, v{T+6}')
            a(f'v_lshl_add_u32 v{T+6}, v{T+3}, 10, v{T+6}')
            a(f'v_add_u32 v{R.V_AD+j}, {j*(8192-1024)}, v{T+6}')
        a(f'v_lshrrev_b32 v{T+3}, 4, v{T}')
        a(f'v_bfe_u32 v{T+4}, v{T}, 2, 2')
        a(f'v_xor_b32 v{T+4}, v{T+4}, v{T+3}')
        a(f'v_lshlrev_b32 v{T+4}, 6, v{T+4}')
        a(f'v_and_b32 v{T+5}, 3, v{T}')
        a(f'v_lshl_add_u32 v{T+4}, v{T+5}, 4, v{T+4}')
        a(f'v_lshl_add_u32 v{T+4}, v{T+3}, 13, v{T+4}')
        for j in range(4):
            a(f'v_add_u32 v{R.V_WD+j}, {j*(32768-1024)}, v{T+4}')

    def dma_stage(self, srdA, srdW):
        g = []
        def ld(vo, srd_, so, off): return f'buffer_load_dwordx4 v{vo}, s[{srd_}:{srd_+3}], s{so} offen' + (f' offset:{off}' if off else '') + ' lds'
        for j in range(4):
            l = []
            if j == 0: l += [f's_mov_b32 m0, s{self.s_dwm}', 's_nop 0']
            l.append(ld(R.V_WD+j, srdW, self.s_wo, j*1024))
            if j == 3: l.append(f's_add_u32 s{self.s_wo}, s{self.s_wo}, {64*8192}')
            g.append(l)
        for t, so in ((0, self.s_a0), (1, self.s_a1)):
            for j in range(4):
                l = []
                if j == 0:
                    l += [f's_add_u32 m0, s{self.s_dam}, {t*4096}', 's_nop 0'] if t else [f's_mov_b32 m0, s{self.s_dam}', 's_nop 0']
                l.append(ld(R.V_AD+j, srdA, so, j*1024))
                if j == 3: l.append(f's_add_u32 s{so}, s{so}, 128')
                g.append(l)
        g[-1] += self.adv_slot(self.s_dam, self.s_dwm)
        return g

    def adv_slot(self, sa, sw):
        t = self.s_t
        return [f's_add_u32 s{sw}, s{sw}, 16384', f's_cmp_ge_u32 s{sw}, 49152', f's_cselect_b32 s{t}, 49152, 0', f's_sub_u32 s{sw}, s{sw}, s{t}',
                f's_add_u32 s{sa}, s{sa}, 32768', f's_lshl_b32 s{t}, s{t}, 1', f's_sub_u32 s{sa}, s{sa}, s{t}']

    def init_stream(self):
        a = self.a; w = self.s_w
        a(f's_lshl_b32 s{self.s_dwm}, s{w}, 12')
        a(f's_lshl_b32 s{self.s_dam}, s{w}, 13')
        a(f's_add_u32 s{self.s_dam}, s{self.s_dam}, 49152')
        a(f's_mov_b32 s{self.s_rw}, 0')
        a(f's_mov_b32 s{self.s_ra}, s{self.s_dam}')

    def read_addr_update(self):
        l = []
        for k in range(4):
            l.append(f'v_add_u32 v{R.V_AR+k}, s{self.s_ra}, v{R.V_AB+k}')
            l.append(f'v_add_u32 v{R.V_WR+k}, s{self.s_rw}, v{R.V_WB+k}')
        t = self.s_t1
        l += [f's_add_u32 s{self.s_rw}, s{self.s_rw}, 16384', f's_cmp_ge_u32 s{self.s_rw}, 49152', f's_cselect_b32 s{t}, 49152, 0', f's_sub_u32 s{self.s_rw}, s{self.s_rw}, s{t}',
              f's_add_u32 s{self.s_ra}, s{self.s_ra}, 32768', f's_lshl_b32 s{t}, s{t}, 1', f's_sub_u32 s{self.s_ra}, s{self.s_ra}, s{t}']
        return l

    def kstep_reads(self, ks, buf):
        F = R.FB[buf]
        l = []
        def act(t): return [f'ds_read_b128 {v(F+16+4*t,4)}, v{R.V_AR+ks} offset:{t*4096}']
        def wf(dt): return [f'ds_read_b64_tr_b16 {v(F+4*dt,2)}, v{R.V_WR+dt} offset:{ks*4096}',
                            f'ds_read_b64_tr_b16 {v(F+4*dt+2,2)}, v{R.V_WR+dt} offset:{ks*4096+1024}']
        return act(0) + wf(0) + wf(1) + act(1) + wf(2) + wf(3)

    def kstep_mfmas(self, buf, swap, first):
        F = R.FB[buf]
        l = []
        for dt in range(4):
            for st in range(2):
                acc = v(R.ACC + 16*(4*st+dt), 16)
                W = v(F+4*dt, 4); A = v(F+16+4*st, 4)
                c = '0' if first else acc
                l.append(f'{MF} {acc}, {A}, {W}, {c}' if swap else f'{MF} {acc}, {W}, {A}, {c}')
        return l

    def stage(self, swap, first, carry, fresh, last=False, vm=12, pre_fresh=None):
        a = self.a
        self.st('stage')
        carry = list(carry or []); fresh = list(fresh or [])
        cslot = {}
        for k in range(len(carry)):
            cslot.setdefault(int(2 + k*(22.0/max(1, len(carry)))), []).append(carry[k])
        for ks in range(4):
            buf = ks & 1
            a('s_waitcnt lgkmcnt(0)')
            pre = []
            if ks == 3 and not last:
                a(f's_waitcnt vmcnt({vm})')
                a('s_barrier')
                pre = self.read_addr_update()
            mf = self.kstep_mfmas(buf, swap, first and ks == 0)
            if ks < 3: rd = self.kstep_reads(ks+1, buf ^ 1)
            elif not last: rd = self.kstep_reads(0, buf ^ 1)
            else: rd = []
            for k, m in enumerate(mf):
                a(m)
                if k == 0:
                    for l in pre[:8]: a(l)
                    for l in rd[0:2]: a(l)
                elif k < 5:
                    for l in rd[2*k:2*k+2]: a(l)
                    if k == 1:
                        for l in pre[8:]: a(l)
                if ks < 3:
                    for grp in cslot.get(8*ks+k, []):
                        for l in grp: a(l)
                elif k >= 5 and fresh:
                    if k == 5 and pre_fresh:
                        for l in pre_fresh: a(l)
                    for l in fresh.pop(0): a(l)
        assert not fresh

    def lead(self):
        a = self.a
        for l in self.read_addr_update(): a(l)
        for l in self.kstep_reads(0, 0): a(l)

    def epilogue_store(self, kind, srd, s_off, v_scale=None):
        a = self.a
        a('s_nop 7')
        for k in range(4):
            a(f's_add_u32 s{50+k}, s{s_off}, {k*4096}')
        a('s_nop 3')
        for st in range(2):
            for dt in range(4):
                A = R.ACC + 16*(4*st+dt)
                for t in range(2):
                    b = A + 8*t
                    if v_scale is not None:
                        for e in range(0, 8, 2):
                            a(f'v_pk_mul_f32 v[{b+e}:{b+e+1}], v[{b+e}:{b+e+1}], v[{v_scale}:{v_scale+1}]')
                    for k in range(4):
                        a(f'v_cvt_pk_bf16_f32 v{b+k}, v{b+2*k}, v{b+2*k+1}')
                    f = (4*t+dt) if kind == 'V' else (2*dt+t)
                    so = 50 + 2*st + (f >> 2)
                    a(f'buffer_store_dwordx4 v[{b}:{b+3}], v{R.V_L16}, s[{srd}:{srd+3}], s{so} offen offset:{(f & 3)*1024}')

    def run_passes(self, passes, init_stream_fns, extra_after_prologue=None, n_extra_vm=0):
        a = self.a
        np_ = len(passes)
        def groups(p): return self.dma_stage(passes[p]['srdA'], passes[p]['srdW'])
        self.init_stream()
        for l in init_stream_fns[0]: a(l)
        if passes[0].get('pre'): passes[0]['pre']()
        for t in range(2):
            for g in groups(0):
                for l in g: a(l)
        g2 = groups(0)
        for g in g2[:3]:
            for l in g: a(l)
        if extra_after_prologue: extra_after_prologue()
        a(f's_waitcnt vmcnt({15 + n_extra_vm})')
        a('s_barrier')
        self.lead()
        for p, ps in enumerate(passes):
            nxt = p+1 if p+1 < np_ else None
            G = groups(p)
            own_c, own_f = G[3:], G[:3]
            if nxt is not None:
                GN = groups(nxt); nc, nf = GN[3:], GN[:3]
            sw = ps['swap']
            self.stage(sw, True, own_c, own_f, vm=(12 if p == 0 else 28))
            if getattr(self.st, 'on', False):
                for _ in range(4): self.stage(sw, False, own_c, own_f)
            else:
                a(f's_mov_b32 s{self.s_cnt}, 4')
                self.uid += 1
                lab = f'{self.name}_loop{self.uid}'
                a('.p2align 6')
                a.label(lab)
                self.stage(sw, False, own_c, own_f)
                a(f's_sub_u32 s{self.s_cnt}, s{self.s_cnt}, 1')
                a(f's_cmp_lg_u32 s{self.s_cnt}, 0')
                a(f's_cbranch_scc1 {lab}')
            if nxt is not None:
                self.stage(sw, False, own_c, nf, pre_fresh=init_stream_fns[nxt])
                self.stage(sw, False, nc, nf)
                self.stage(sw, False, nc, nf)
            else:
                self.stage(sw, False, own_c, None)
                self.stage(sw, False, None, None, vm=0)
                self.stage(sw, False, None, None, last=True)
            self.st('epi')
            ps['epi']()

def allreduce(a, regs, tmp):
    for ctl in ('quad_perm:[1,0,3,2]', 'quad_perm:[2,3,0,1]', 'row_half_mirror', 'row_mirror'):
        a('s_nop 1')
        for r in regs:
            a(f'v_add_f32_dpp v{r}, v{r}, v{r} {ctl} row_mask:0xf bank_mask:0xf')
    for op in ('v_permlane16_swap_b32', 'v_permlane32_swap_b32'):
        for k, r in enumerate(regs): a(f'v_mov_b32 v{tmp+k}, v{r}')
        a('s_nop 1')
        for k, r in enumerate(regs): a(f'{op} v{tmp+k}, v{r}')
        a('s_nop 1')
        for k, r in enumerate(regs): a(f'v_add_f32 v{r}, v{r}, v{tmp+k}')

def emit_ln_loads(a, S_BX, S_AX, S_GW, s_row, base):
    a(f'buffer_load_dwordx4 {v(base,4)}, v{R.V_L16}, s[{S_AX}:{S_AX+3}], s{s_row} offen')
    a(f'buffer_load_dwordx4 {v(base+4,4)}, v{R.V_L16}, s[{S_AX}:{S_AX+3}], s{s_row} offen offset:1024')
    a(f'buffer_load_dwordx4 {v(base+16,4)}, v{R.V_L16}, s[{S_GW}:{S_GW+3}], 0 offen')

def unpack8(a, src, dst):
    for k in range(4):
        a(f'v_lshlrev_b32 v{dst+2*k}, 16, v{src+k}')
        a(f'v_and_b32 v{dst+2*k+1}, 0xffff0000, v{src+k}')

def emit_ln_compute(a, base, S_H, S_G, s_row, s_rowg, X):
    xb = [X, X+8]; xa = [X+16, X+24]; gw = X+32; sm = X+40
    unpack8(a, base, xb[0]); unpack8(a, base+4, xb[1]); unpack8(a, base+16, gw)
    xa = xb
    for r in range(2):
        a(f'v_add_f32 v{sm+r}, v{xb[r]}, v{xb[r]+1}')
        for e in range(2, 8): a(f'v_add_f32 v{sm+r}, v{sm+r}, v{xb[r]+e}')
        a(f'v_mul_f32 v{sm+2+r}, v{xa[r]}, v{gw}')
        for e in range(1, 8): a(f'v_fmac_f32 v{sm+2+r}, v{xa[r]+e}, v{gw+e}')
    allreduce(a, [sm, sm+1, sm+2, sm+3], X+44)
    for r in range(2):
        a(f'v_mul_f32 v{sm+r}, {hex(0x3b000000)}, v{sm+r}')
        for e in range(8): a(f'v_sub_f32 v{xb[r]+e}, v{xb[r]+e}, v{sm+r}')
    for r in range(2):
        a(f'v_mul_f32 v{sm+2+r}, 0xbfb8aa3b, v{sm+2+r}')
    for r in range(2): a(f'v_exp_f32 v{sm+2+r}, v{sm+2+r}')
    a('s_nop 0')
    for r in range(2): a(f'v_add_f32 v{sm+2+r}, 1.0, v{sm+2+r}')
    for r in range(2): a(f'v_rcp_f32 v{sm+2+r}, v{sm+2+r}')
    for r in range(2):
        a(f'v_mul_f32 v{sm+r}, v{xb[r]}, v{xb[r]}')
        for e in range(1, 8): a(f'v_fmac_f32 v{sm+r}, v{xb[r]+e}, v{xb[r]+e}')
    allreduce(a, [sm, sm+1], X+44)
    for r in range(2):
        a(f'v_mov_b32 v{X+46}, 0x3727c5ac')
        a(f'v_fmac_f32 v{X+46}, {hex(0x3b000000)}, v{sm+r}')
        a(f'v_rsq_f32 v{sm+r}, v{X+46}')
        a('s_nop 0')
        for e in range(8): a(f'v_mul_f32 v{xb[r]+e}, v{xb[r]+e}, v{sm+r}')
        for k in range(4): a(f'v_cvt_pk_bf16_f32 v{xb[r]+k}, v{xb[r]+2*k}, v{xb[r]+2*k+1}')
        a(f'buffer_store_dwordx4 {v(xb[r],4)}, v{R.V_L16}, s[{S_H}:{S_H+3}], s{s_row} offen' + (' offset:1024' if r else '') + STF.st)
    a(f'v_and_b32 v{X+46}, 63, v0')
    a(f'v_cmp_eq_u32 vcc, 1, v{X+46}')
    a(f'v_lshlrev_b32 v{X+47}, 2, v{X+46}')
    a('s_nop 0')
    a(f'v_cndmask_b32 v{sm+2}, v{sm+2}, v{sm+3}, vcc')
    a(f'v_cmp_gt_u32 vcc, 2, v{X+46}')
    a('s_and_saveexec_b64 s[54:55], vcc')
    a(f'buffer_store_dword v{sm+2}, v{X+47}, s[{S_G}:{S_G+3}], s{s_rowg} offen' + STF.st)
    a('s_mov_b64 exec, s[54:55]')

def make_srd(a, s, ptr, off, nbytes):
    if off:
        a(f's_add_u32 s{s}, s{ptr}, {off}')
        a(f's_addc_u32 s{s+1}, s{ptr+1}, 0')
        a(f's_and_b32 s{s+1}, s{s+1}, 0xffff')
    else:
        a(f's_mov_b32 s{s}, s{ptr}')
        a(f's_and_b32 s{s+1}, s{ptr+1}, 0xffff')
    a(f's_mov_b32 s{s+2}, {nbytes}')
    a(f's_mov_b32 s{s+3}, 0x20000')

def emit_l1(a, N='l1', passes=('Q', 'K', 'V'), **opt):
    S_X, S_C, S_WQ, S_WK, S_WV, S_O, S_H, S_G, S_BX, S_GW = 4, 8, 12, 16, 24, 28, 32, 36, 56, 60
    s_w, s_h, s_r = 20, 21, 22
    a('s_cmp_ge_u32 s2, 256')
    a(f's_cbranch_scc1 {N}_end')
    a(f's_load_dwordx4 s[64:67], s[0:1], {KA_AX}')
    a(f's_load_dwordx4 s[68:71], s[0:1], {KA_WQ}')
    a(f's_load_dwordx2 s[72:73], s[0:1], {KA_WUV}')
    a(f's_load_dwordx2 s[76:77], s[0:1], {KA_GW}')
    a(f's_load_dwordx2 s[78:79], s[0:1], {KA_WS}')
    a('v_lshrrev_b32 v1, 6, v0')
    a('s_and_b32 s23, s2, 7')
    a(f'v_readfirstlane_b32 s{s_w}, v1')
    a('s_lshr_b32 s48, s2, 3')
    a(f's_lshl_b32 s{s_h}, s23, 2')
    a('s_and_b32 s23, s48, 3')
    a(f's_add_u32 s{s_h}, s{s_h}, s23')
    a(f's_lshr_b32 s{s_r}, s48, 2')
    st_ = Stamps(a, opt.get('diag'))
    st_('start')
    P = Proj(a, N, s_w, st_)
    P.setup_addrs()
    a('s_waitcnt lgkmcnt(0)')
    make_srd(a, S_X, 64, 0, 2*MB); make_srd(a, S_C, 66, 0, 2*MB)
    make_srd(a, S_WQ, 68, 0, 4*MB); make_srd(a, S_WK, 70, 0, 4*MB); make_srd(a, S_WV, 72, 0, 4*MB)
    make_srd(a, S_O, 78, 0, 48*MB)
    make_srd(a, S_H, 78, WS_H, 2*MB); make_srd(a, S_G, 78, WS_G, 8192)
    make_srd(a, S_GW, 76, 0, 1024)
    a(f's_lshl_b32 s80, s2, 3'); a(f's_lshl_b32 s81, s{s_w}, 1'); a('s_add_u32 s80, s80, s81')
    a('s_lshl_b32 s81, s80, 2')
    a('s_lshl_b32 s80, s80, 10')
    emit_ln_loads(a, S_BX, S_X, S_GW, 80, 192)
    c = 0x3e0293ee
    a(f'v_mov_b32 v2, {hex(c)}'); a(f'v_mov_b32 v3, {hex(c)}')
    def init(p):
        return [f's_lshl_b32 s{P.s_a0}, s{s_r}, 18', f's_lshl_b32 s{P.s_t}, s{s_w}, 16', f's_add_u32 s{P.s_a0}, s{P.s_a0}, s{P.s_t}',
                f's_add_u32 s{P.s_a1}, s{P.s_a0}, 32768',
                f's_lshl_b32 s{P.s_wo}, s{s_w}, 17', f's_lshl_b32 s{P.s_t}, s{s_h}, 8', f's_add_u32 s{P.s_wo}, s{P.s_wo}, s{P.s_t}']
    a(f's_lshl_b32 s82, s{s_h}, 6'); a(f's_lshl_b32 s83, s{s_r}, 3'); a('s_add_u32 s82, s82, s83')
    a(f's_lshl_b32 s83, s{s_w}, 1'); a('s_add_u32 s82, s82, s83'); a('s_lshl_b32 s82, s82, 13')
    a(f's_add_u32 s83, s82, {WS_K}'); a(f's_add_u32 s84, s82, {WS_V}')
    cfg = {'Q': dict(swap=False, srdA=S_X, srdW=S_WQ, epi=lambda: P.epilogue_store('Q', S_O, 82)),
           'K': dict(swap=False, srdA=S_C, srdW=S_WK, epi=lambda: P.epilogue_store('K', S_O, 83, v_scale=2)),
           'V': dict(swap=True, srdA=S_C, srdW=S_WV, epi=lambda: P.epilogue_store('V', S_O, 84))}
    ps = [cfg[p] for p in passes]
    def ln():
        a('s_waitcnt vmcnt(27)')
        emit_ln_compute(a, 192, S_H, S_G, 80, 81, 64)
    P.run_passes(ps, [init(p) for p in range(len(ps))], extra_after_prologue=ln, n_extra_vm=3)
    st_('stores')
    a('s_waitcnt vmcnt(0)')
    st_('end')
    st_.dump(100*MB, s_w, 250)
    a.label(f'{N}_end')
    a('s_endpgm')
```

```python
from asmlib import *
from layout import *

MF = 'v_mfma_f32_32x32x16_bf16'
def v(b, n=1): return f'v{b}' if n == 1 else f'v[{b}:{b+n-1}]'
def ar(b, n=1): return f'a{b}' if n == 1 else f'a[{b}:{b+n-1}]'
SLOT = 49152

class VmQueue:
    def __init__(self): self.q = []
    def push(self, tag): self.q.append(tag)
    def count_for(self, tag):
        idx = [i for i, t in enumerate(self.q) if t == tag]
        if not idx: return None
        return len(self.q) - 1 - idx[-1]
    def wait_for(self, a, tag):
        n = self.count_for(tag)
        if n is None: return
        assert n <= 63
        a(f's_waitcnt vmcnt({n})')
        self.q = self.q[len(self.q)-n:] if n else []

class Proj:
    def __init__(self, a, vq, s_w, ring_lo, ring_start, ACC=64, FB=(0, 24), fbk='a', VA=8, V_L16=32, VT=33, SG=40, stamps=None, wflags=''):
        self.a, self.vq, self.s_w = a, vq, s_w
        self.lo, self.start, self.hi = ring_lo, ring_start, ring_lo + 3*SLOT
        self.ACC, self.FB = ACC, FB
        self.fr = ar if fbk == 'a' else v
        self.V_AR, self.V_WR, self.V_AB, self.V_WB, self.V_AD, self.V_WD = VA, VA+4, VA+8, VA+12, VA+16, VA+20
        self.V_L16, self.VT = V_L16, VT
        (self.s_a0, self.s_a1, self.s_wo, self.s_fill, self.s_rd, self.s_wW, self.s_wA, self.s_t) = range(SG, SG+8)
        self.st = stamps or (lambda n='': None)
        self.wflags = wflags

    def setup_addrs(self, set_l16=True):
        a = self.a; T = self.VT; w = self.s_w
        a(f'v_and_b32 v{T}, 63, v0')
        if set_l16: a(f'v_lshlrev_b32 v{self.V_L16}, 4, v{T}')
        a(f's_lshl_b32 s{self.s_wW}, s{w}, 12')
        a(f's_lshl_b32 s{self.s_wA}, s{w}, 13')
        a(f's_add_u32 s{self.s_wA}, s{self.s_wA}, 16384')
        a(f's_mov_b32 s{self.s_fill}, {self.start}')
        a(f's_mov_b32 s{self.s_rd}, {self.start}')
        a(f'v_and_b32 v{T+1}, 31, v{T}')
        a(f'v_lshrrev_b32 v{T+2}, 5, v{T}')
        a(f'v_bfe_u32 v{T+3}, v{T+1}, 1, 3')
        a(f'v_xor_b32 v{T+3}, v{T+3}, v{T+2}')
        a(f'v_lshlrev_b32 v{T+3}, 4, v{T+3}')
        a(f'v_lshl_add_u32 v{T+3}, v{T+1}, 7, v{T+3}')
        a(f'v_add_u32 v{self.V_AB}, s{self.s_wA}, v{T+3}')
        for ks in range(1, 4):
            a(f'v_xor_b32 v{self.V_AB+ks}, {ks << 5}, v{self.V_AB}')
        a(f'v_bfe_u32 v{T+3}, v{T}, 2, 2')
        a(f'v_lshl_add_u32 v{T+4}, v{T+2}, 3, v{T+3}')
        a(f'v_lshlrev_b32 v{T+4}, 8, v{T+4}')
        a(f'v_bfe_u32 v{T+5}, v{T}, 4, 1')
        a(f'v_lshl_add_u32 v{T+4}, v{T+5}, 5, v{T+4}')
        a(f'v_and_b32 v{T+5}, 3, v{T}')
        a(f'v_lshl_add_u32 v{T+4}, v{T+5}, 3, v{T+4}')
        for dt in range(4):
            a(f'v_xor_b32 v{T+5}, {dt}, v{T+3}')
            a(f'v_lshl_add_u32 v{self.V_WB+dt}, v{T+5}, 6, v{T+4}')
        a(f'v_lshrrev_b32 v{T+3}, 3, v{T}')
        a(f'v_and_b32 v{T+4}, 7, v{T}')
        a(f'v_lshrrev_b32 v{T+5}, 1, v{T+3}')
        for j in range(4):
            a(f'v_xor_b32 v{T+6}, v{T+4}, v{T+5}')
            if j & 1: a(f'v_xor_b32 v{T+6}, 4, v{T+6}')
            a(f'v_lshlrev_b32 v{T+6}, 4, v{T+6}')
            a(f'v_lshl_add_u32 v{T+6}, v{T+3}, 10, v{T+6}')
            a(f'v_add_u32 v{self.V_AD+j}, {j*(8192-1024)}, v{T+6}')
        a(f'v_lshrrev_b32 v{T+3}, 4, v{T}')
        a(f'v_bfe_u32 v{T+4}, v{T}, 2, 2')
        a(f'v_xor_b32 v{T+4}, v{T+4}, v{T+3}')
        a(f'v_lshlrev_b32 v{T+4}, 6, v{T+4}')
        a(f'v_and_b32 v{T+5}, 3, v{T}')
        a(f'v_lshl_add_u32 v{T+4}, v{T+5}, 4, v{T+4}')
        a(f'v_lshl_add_u32 v{T+4}, v{T+3}, 13, v{T+4}')
        for j in range(4):
            a(f'v_add_u32 v{self.V_WD+j}, {j*(32768-1024)}, v{T+4}')

    def adv(self, s):
        return [f's_add_u32 s{s}, s{s}, {SLOT}', f's_cmp_ge_u32 s{s}, {self.hi}', f's_cselect_b32 s{s}, {self.lo}, s{s}']

    def dma_stage(self, srdA, srdW, tag, pre=None):
        g = []
        def ld(vo, srd_, so, off, fl=''): return f'buffer_load_dwordx4 v{vo}, s[{srd_}:{srd_+3}], s{so} offen' + (f' offset:{off}' if off else '') + fl + ' lds'
        for j in range(4):
            l = []
            if j == 0: l += list(pre or []) + [f's_add_u32 m0, s{self.s_fill}, s{self.s_wW}', 's_nop 0']
            l.append(ld(self.V_WD+j, srdW, self.s_wo, j*1024, self.wflags))
            if j == 3: l.append(f's_add_u32 s{self.s_wo}, s{self.s_wo}, {64*8192}')
            g.append((l, tag))
        for t, so in ((0, self.s_a0), (1, self.s_a1)):
            for j in range(4):
                l = []
                if j == 0:
                    if t == 0: l += [f's_add_u32 s{self.s_t}, s{self.s_fill}, s{self.s_wA}', f's_mov_b32 m0, s{self.s_t}', 's_nop 0']
                    else: l += [f's_add_u32 m0, s{self.s_t}, 4096', 's_nop 0']
                l.append(ld(self.V_AD+j, srdA, so, j*1024))
                if j == 3: l.append(f's_add_u32 s{so}, s{so}, 128')
                g.append((l, tag))
        g[-1][0].extend(self.adv(self.s_fill))
        return g

    def emit_group(self, g):
        lines, tag = g
        for l in lines: self.a(l)
        if any(l.startswith('buffer_') for l in lines): self.vq.push(tag)

    def read_addr_update(self):
        l = []
        for k in range(4):
            l.append(f'v_add_u32 v{self.V_AR+k}, s{self.s_rd}, v{self.V_AB+k}')
            l.append(f'v_add_u32 v{self.V_WR+k}, s{self.s_rd}, v{self.V_WB+k}')
        return l + self.adv(self.s_rd)

    def kstep_reads(self, ks, buf):
        F = self.FB[buf]; fr = self.fr
        def act(t): return [f'ds_read_b128 {fr(F+16+4*t,4)}, v{self.V_AR+ks} offset:{t*4096}']
        def wf(dt): return [f'ds_read_b64_tr_b16 {fr(F+4*dt,2)}, v{self.V_WR+dt} offset:{ks*4096}',
                            f'ds_read_b64_tr_b16 {fr(F+4*dt+2,2)}, v{self.V_WR+dt} offset:{ks*4096+1024}']
        return act(0) + wf(0) + wf(1) + act(1) + wf(2) + wf(3)

    def kstep_mfmas(self, buf, swap, first, acck='v'):
        F = self.FB[buf]; fr = self.fr
        l = []
        for dt in range(4):
            for st in range(2):
                acc = (v if acck == 'v' else ar)(self.ACC + 16*(4*st+dt), 16)
                W = fr(F+4*dt, 4); A = fr(F+16+4*st, 4)
                c = '0' if first else acc
                l.append(f'{MF} {acc}, {A}, {W}, {c}' if swap else f'{MF} {acc}, {W}, {A}, {c}')
        return l

    def stage(self, swap, first, need_tag, early, late, last=False, acck='v'):
        a = self.a
        self.st('stage')
        early = list(early or []); late = list(late or [])
        eslot = {}
        for k in range(len(early)):
            eslot.setdefault(int(1 + k*(23.0/len(early))), []).append(early[k])
        lslot = {}
        for k in range(len(late)):
            lslot.setdefault(min(7, 2 + int(k*(6.0/len(late)))), []).append(late[k])
        for ks in range(4):
            buf = ks & 1
            a('s_waitcnt lgkmcnt(0)')
            pre = []
            if ks == 3 and not last:
                self.vq.wait_for(a, need_tag)
                a('s_barrier')
                pre = self.read_addr_update()
            mf = self.kstep_mfmas(buf, swap, first and ks == 0, acck)
            if ks < 3: rd = self.kstep_reads(ks+1, buf ^ 1)
            elif not last: rd = self.kstep_reads(0, buf ^ 1)
            else: rd = []
            for k, m in enumerate(mf):
                a(m)
                if k == 0:
                    for l in pre[:8]: a(l)
                    for l in rd[0:2]: a(l)
                elif k < 5:
                    for l in rd[2*k:2*k+2]: a(l)
                    if k == 1:
                        for l in pre[8:]: a(l)
                for g in (eslot.get(8*ks+k, []) if ks < 3 else lslot.get(k, [])): self.emit_group(g)

    def prologue(self, p0):
        for t in range(2):
            for g in self.dma_stage(p0['srdA'], p0['srdW'], (0, t), pre=(p0['init'] if t == 0 else None)): self.emit_group(g)
        self.g_pending = self.dma_stage(p0['srdA'], p0['srdW'], (0, 2))
        for g in self.g_pending[:3]: self.emit_group(g)
        self.g_pending = self.g_pending[3:]

    def start_compute(self):
        a = self.a
        self.vq.wait_for(a, (0, 0))
        a('s_barrier')
        for l in self.read_addr_update(): a(l)
        for l in self.kstep_reads(0, 0): a(l)

    def run(self, passes, extra_early=None, extra_late=None):
        n = len(passes); total = 8*n
        xe = extra_early or (lambda p, t: []); xl = extra_late or (lambda p, t: [])
        for T in range(total):
            p, t = divmod(T, 8); ps = passes[p]
            early = self.g_pending; self.g_pending = []
            late = []
            T3 = T+3
            if T3 < total:
                p3, t3 = divmod(T3, 8)
                G = self.dma_stage(passes[p3]['srdA'], passes[p3]['srdW'], (p3, t3), pre=(passes[p3]['init'] if t3 == 0 else None))
                late = G[:3]; self.g_pending = G[3:]
            ex = list(xe(p, t)); merged = []
            e0 = list(early)
            tot = len(e0) + len(ex)
            ie = ix = 0
            for k in range(tot):
                if ix < len(ex) and (ie >= len(e0) or ix*len(e0) <= ie*len(ex) - 0.5*len(ex) or not e0): merged.append(ex[ix]); ix += 1
                else: merged.append(e0[ie]); ie += 1
            nxt = divmod(T+1, 8) if T+1 < total else None
            xlate = list(xl(p, t))
            for g in ex + xlate:
                if any('m0' in l for l in g[0]): assert T3 >= total and not (g in ex and e0), 'm0 clobber'
            self.stage(ps['swap'], t == 0, nxt, merged, late + xlate, last=(nxt is None), acck=ps.get('acck', 'v'))
            if t == 7:
                self.st('epi')
                ps['epi']()


from gen_proj import allreduce, unpack8, make_srd
import gen_proj

def emit_ln(a, base, X, V_L16, S_AX, S_GW, S_H, S_G, s_row, s_rowg, vq, part):
    if part == 'load':
        a(f'buffer_load_dwordx4 {v(base,4)}, v{V_L16}, s[{S_AX}:{S_AX+3}], s{s_row} offen'); vq.push('ln')
        a(f'buffer_load_dwordx4 {v(base+4,4)}, v{V_L16}, s[{S_AX}:{S_AX+3}], s{s_row} offen offset:1024'); vq.push('ln')
        a(f'buffer_load_dwordx4 {v(base+16,4)}, v{V_L16}, s[{S_GW}:{S_GW+3}], 0 offen'); vq.push('ln')
    else:
        vq.wait_for(a, 'ln')
        gen_proj.R.V_L16 = V_L16
        gen_proj.emit_ln_compute(a, base, S_H, S_G, s_row, s_rowg, X)
        for _ in range(3): vq.push('lnst')

def frag_store_groups(P, kind, acck, srd, s_offs, tmp, v_scale=None, tag='st'):
    G = []
    k = 0
    for dt in range(4):
        for st in range(2):
            A = P.ACC + 16*(4*st+dt)
            for t in range(2):
                b = A + 8*t
                f = (4*t+dt) if kind == 'V' else (2*dt+t)
                so = s_offs + 2*st + (f >> 2)
                if acck == 'a':
                    T = tmp + 8*(k & 1)
                    G.append(([f'v_accvgpr_read_b32 v{T+e}, a{b+e}' for e in range(4)], None))
                    G.append(([f'v_accvgpr_read_b32 v{T+e}, a{b+e}' for e in range(4, 8)], None))
                else:
                    T = b
                if v_scale is not None:
                    G.append(([f'v_pk_mul_f32 v[{T+e}:{T+e+1}], v[{T+e}:{T+e+1}], v[{v_scale}:{v_scale+1}]' for e in range(0, 8, 2)], None))
                l = [f'v_cvt_pk_bf16_f32 v{T+q}, v{T+2*q}, v{T+2*q+1}' for q in range(4)]
                l.append(f'buffer_store_dwordx4 v[{T}:{T+3}], v{P.V_L16}, s[{srd}:{srd+3}], s{so} offen offset:{(f & 3)*1024}')
                G.append((l, tag))
                k += 1
    return G

def emit_l1(a, N='l1', **opt):
    S_X, S_C, S_WK, S_WV, S_O, S_H, S_G, S_GW = 4, 8, 16, 24, 28, 32, 36, 60
    s_w, s_h, s_r = 20, 21, 22
    st_ = Stamps(a, opt.get('diag'))
    a('s_cmp_ge_u32 s2, 256')
    a(f's_cbranch_scc1 {N}_end')
    a(f's_load_dwordx4 s[64:67], s[0:1], {KA_AX}')
    a(f's_load_dwordx4 s[68:71], s[0:1], {KA_WUK}')
    a(f's_load_dwordx2 s[76:77], s[0:1], {KA_GW}')
    a(f's_load_dwordx2 s[78:79], s[0:1], {KA_WS}')
    a('v_lshrrev_b32 v1, 6, v0')
    a('s_and_b32 s23, s2, 7')
    a(f'v_readfirstlane_b32 s{s_w}, v1')
    a('s_lshr_b32 s48, s2, 3')
    a(f's_lshl_b32 s{s_h}, s23, 2')
    a('s_and_b32 s23, s48, 3')
    a(f's_add_u32 s{s_h}, s{s_h}, s23')
    a(f's_lshr_b32 s{s_r}, s48, 2')
    st_('start')
    vq = VmQueue()
    P = Proj(a, vq, s_w, 0, 0, stamps=st_, wflags=(' nt' if opt.get('nt', True) else ''))
    P.setup_addrs()
    a('s_waitcnt lgkmcnt(0)')
    make_srd(a, S_X, 64, 0, 2*MB); make_srd(a, S_C, 66, 0, 2*MB)
    make_srd(a, S_WK, 68, 0, 4*MB); make_srd(a, S_WV, 70, 0, 4*MB)
    make_srd(a, S_O, 78, WS_K, 32*MB)
    make_srd(a, S_H, 78, WS_H, 2*MB); make_srd(a, S_G, 78, WS_G, 8192)
    make_srd(a, S_GW, 76, 0, 1024)
    a(f's_lshl_b32 s80, s2, 3'); a(f's_lshl_b32 s81, s{s_w}, 1'); a('s_add_u32 s80, s80, s81')
    a('s_lshl_b32 s81, s80, 2')
    a('s_lshl_b32 s80, s80, 10')
    emit_ln(a, 192, 64, P.V_L16, S_X, S_GW, S_H, S_G, 80, 81, vq, 'load')
    c = 0x3e0293ee
    a(f'v_mov_b32 v2, {hex(c)}'); a(f'v_mov_b32 v3, {hex(c)}')
    init = [f's_lshl_b32 s{P.s_a0}, s{s_r}, 18', f's_lshl_b32 s49, s{s_w}, 16', f's_add_u32 s{P.s_a0}, s{P.s_a0}, s49',
            f's_add_u32 s{P.s_a1}, s{P.s_a0}, 32768',
            f's_lshl_b32 s{P.s_wo}, s{s_w}, 17', f's_lshl_b32 s49, s{s_h}, 8', f's_add_u32 s{P.s_wo}, s{P.s_wo}, s49']
    a(f's_lshl_b32 s82, s{s_h}, 6'); a(f's_lshl_b32 s83, s{s_r}, 3'); a('s_add_u32 s82, s82, s83')
    a(f's_lshl_b32 s83, s{s_w}, 1'); a('s_add_u32 s82, s82, s83'); a('s_lshl_b32 s82, s82, 13')
    for k in range(4):
        a(f's_add_u32 s{50+k}, s82, {k*4096}')
        a(f's_add_u32 s{84+k}, s82, {16*MB + k*4096}')
    KG = frag_store_groups(P, 'K', 'a', S_O, 50, 192, v_scale=2)
    per = len(KG)//8
    def vepi():
        a('s_nop 7'); a('s_nop 7')
        for g in frag_store_groups(P, 'V', 'v', S_O, 84, None): P.emit_group(g)
    ps = [dict(swap=False, srdA=S_C, srdW=S_WK, init=init, epi=lambda: None, acck='a'),
          dict(swap=True, srdA=S_C, srdW=S_WV, init=init, epi=vepi, acck='v')]
    P.prologue(ps[0])
    emit_ln(a, 192, 64, P.V_L16, S_X, S_GW, S_H, S_G, 80, 81, vq, 'compute')
    P.start_compute()
    P.run(ps, extra_early=lambda p, t: (KG[t*per:(t+1)*per] if p == 1 else []))
    st_('stores')
    a('s_waitcnt vmcnt(0)')
    st_('end')
    st_.dump(100*MB, s_w, 250)
    a.label(f'{N}_end')
    a('s_endpgm')
```

```python
from asmlib import *
from layout import *
from gen_proj import make_srd, v

MF = 'v_mfma_f32_32x32x16_bf16'
def ar(b, n=1): return f'a{b}' if n == 1 else f'a[{b}:{b+n-1}]'

class VmQueue:
    def __init__(self): self.q = []
    def push(self, tag): self.q.append(tag)
    def wait_for(self, a, tag):
        idx = [i for i, t in enumerate(self.q) if t == tag]
        if not idx: return
        n = len(self.q) - 1 - idx[-1]
        a(f's_waitcnt vmcnt({n})')
        self.q = self.q[idx[-1]+1:]

def lane_setup(a, vl, T):
    a(f'v_and_b32 v{vl}, 63, v0')
    a(f'v_lshrrev_b32 v{T}, 5, v{vl}')
    a(f'v_bfe_u32 v{T+1}, v{vl}, 2, 2')
    a(f'v_bfe_u32 v{T+2}, v{vl}, 4, 1')
    a(f'v_and_b32 v{T+3}, 3, v{vl}')
    a(f'v_bfe_u32 v{T+4}, v{vl}, 3, 1')

def tr_addr(a, dst, T, tile, hfmul, s_base):
    X = T+5
    a(f'v_mul_u32_u24 v{X}, {hfmul}, v{T}')
    a(f'v_add_u32 v{X}, v{X}, v{T+1}')
    a(f'v_lshlrev_b32 v{X}, 7, v{X}')
    a(f'v_xor_b32 v{dst}, {tile}, v{T+4}')
    a(f'v_lshl_add_u32 v{X}, v{dst}, 6, v{X}')
    a(f'v_lshl_add_u32 v{X}, v{T+2}, 5, v{X}')
    a(f'v_lshl_add_u32 v{X}, v{T+3}, 3, v{X}')
    a(f'v_add_u32 v{dst}, s{s_base}, v{X}')

def dma_voffs(a, dst, vl, T, stride, s_tmp):
    a(f'v_lshrrev_b32 v{T}, 3, v{vl}')
    a(f'v_bfe_u32 v{T+1}, v{vl}, 2, 1')
    a(f'v_bfe_u32 v{T+2}, v{vl}, 4, 1')
    a(f'v_xor_b32 v{T+1}, v{T+1}, v{T+2}')
    a(f'v_lshlrev_b32 v{T+1}, 6, v{T+1}')
    a(f'v_and_b32 v{T+2}, 3, v{vl}')
    a(f'v_lshl_add_u32 v{T+1}, v{T+2}, 4, v{T+1}')
    a(f's_mov_b32 s{s_tmp}, {stride}')
    a(f'v_mul_lo_u32 v{T}, v{T}, s{s_tmp}')
    a(f'v_add_u32 v{T}, v{T}, v{T+1}')
    for j in range(4):
        a(f'v_add_u32 v{dst+j}, {j*(8*stride-1024)}, v{T}')

def reduce_tiles(a, ACC, V_W, V_R, dst):
    for t in range(4):
        for q in range(4):
            a(f'ds_write_b128 v{V_W}, {v(ACC+16*t+4*q,4)} offset:{t*4096+q*1024}')
    a('s_waitcnt lgkmcnt(0)')
    a('s_barrier')
    a(f'v_add_u32 v{V_W}, 0x10000, v{V_R}')
    for ww in range(4):
        for q in range(4):
            adr = V_R if ww < 2 else V_W
            a(f'ds_read_b128 {v(dst+16*ww+4*q,4)}, v{adr} offset:{(ww&1)*32768+q*1024}')
    a('s_waitcnt lgkmcnt(0)')
    for e in range(16):
        a(f'v_add_f32 v{dst+e}, v{dst+e}, v{dst+16+e}')
        a(f'v_add_f32 v{dst+32+e}, v{dst+32+e}, v{dst+48+e}')
    for e in range(16):
        a(f'v_add_f32 v{dst+e}, v{dst+e}, v{dst+32+e}')

def emit_mlp1_body(a, N, mid=None):
    emit_mlp1(a, N, inline=True, mid=mid)

def emit_mlp1(a, N='mlp1', standalone=True, inline=False, mid=None):
    S_W1, S_H, S_U, S_B1 = 4, 8, 12, (60 if inline else 16)
    s_w, s_fb, s_db, s_t, s_a, s_b, s_base = 20, 21, 22, 23, 24, 25, 26
    ACC = 64; FB = [128, 144]; V_RA = [8, 9]; V_AO = 12; V_BO = 16; VL = 4; V_L16 = 5; T = 20; V_BI = 40; V_W = 6; V_R = 7
    a('s_lshr_b32 s27, s2, 3')
    if not inline:
        a('s_cmp_ge_u32 s2, 256')
        a(f's_cbranch_scc1 {N}_end')
        a('s_cmp_ge_u32 s27, 28')
        a(f's_cbranch_scc1 {N}_end')
    a(f's_load_dwordx4 s[64:67], s[0:1], {KA_W1}')
    a(f's_load_dwordx2 s[68:69], s[0:1], {KA_WS}')
    a('s_and_b32 s28, s2, 7')
    if inline:
        a('v_mbcnt_lo_u32_b32 v0, -1, 0'); a('v_mbcnt_hi_u32_b32 v0, -1, v0')
    else:
        a('v_lshrrev_b32 v1, 6, v0')
        a('s_nop 0')
        a(f'v_readfirstlane_b32 s{s_w}, v1')
    a('s_lshr_b32 s29, s28, 1'); a('s_mul_i32 s29, s29, 7'); a('s_lshr_b32 s30, s27, 2'); a(f's_add_u32 s{s_fb}, s29, s30')
    a('s_and_b32 s29, s28, 1'); a('s_lshl_b32 s29, s29, 2'); a('s_and_b32 s30, s27, 3'); a(f's_add_u32 s{s_db}, s29, s30')
    a(f's_lshl_b32 s{s_base}, s{s_w}, 15')
    lane_setup(a, VL, T)
    a(f'v_lshlrev_b32 v{V_L16}, 4, v{VL}')
    for t in range(2): tr_addr(a, V_RA[t], T, t, 8, s_base)
    a(f's_lshr_b32 s29, s{s_w}, 1'); a('s_lshl_b32 s29, s29, 5'); a(f's_lshl_b32 s30, s{s_fb}, 6'); a('s_add_u32 s29, s29, s30'); a('s_lshl_b32 s31, s29, 1')
    a(f'v_lshlrev_b32 v{V_BI+8}, 3, v{T}')
    dma_voffs(a, V_AO, VL, T, 3584, 29)
    dma_voffs(a, V_BO, VL, T, 1024, 29)
    a(f'v_add_u32 v{V_W}, s{s_base}, v{V_L16}')
    a(f's_lshl_b32 s29, s{s_w}, 12')
    a(f'v_add_u32 v{V_R}, s29, v{V_L16}')
    a('s_waitcnt lgkmcnt(0)')
    make_srd(a, S_W1, 64, 0, 2048*3584); make_srd(a, S_B1, 66, 0, 3584)
    make_srd(a, S_H, 68, WS_H, 2*MB); make_srd(a, S_U, 68, WS_U, 16*112*1024)
    vq = VmQueue()
    for jj in range(4):
        a(f'buffer_load_dwordx2 {v(V_BI+2*jj,2)}, v{V_BI+8}, s[{S_B1}:{S_B1+3}], s31 offen offset:{16*jj}'); vq.push('bias')
    a(f's_mul_i32 s{s_a}, s{s_w}, {512*3584}'); a(f's_lshl_b32 s29, s{s_fb}, 7'); a(f's_add_u32 s{s_a}, s{s_a}, s29')
    a(f's_lshl_b32 s{s_b}, s{s_w}, 19'); a(f's_lshl_b32 s29, s{s_db}, 7'); a(f's_add_u32 s{s_b}, s{s_b}, s29')
    NS, PD = 16, 4
    def dma(t):
        slot = (t % PD)*8192
        g = []
        for j in range(4):
            l = []
            if j == 0: l += [f's_add_u32 m0, s{s_base}, {slot}', 's_nop 0']
            l.append(f'buffer_load_dwordx4 v{V_AO+j}, s[{S_W1}:{S_W1+3}], s{s_a} offen' + (f' offset:{j*1024}' if j else '') + ' lds')
            if j == 3: l.append(f's_add_u32 s{s_a}, s{s_a}, {32*3584}')
            g.append(l)
        for j in range(4):
            l = []
            if j == 0: l += [f's_add_u32 m0, s{s_base}, {slot+4096}', 's_nop 0']
            l.append(f'buffer_load_dwordx4 v{V_BO+j}, s[{S_H}:{S_H+3}], s{s_b} offen' + (f' offset:{j*1024}' if j else '') + ' lds')
            if j == 3: l.append(f's_add_u32 s{s_b}, s{s_b}, {32*1024}')
            g.append(l)
        return g
    def reads(t, ks, buf):
        slot = (t % PD)*8192 + ks*2048
        F = FB[buf]; l = []
        for op, base in ((0, 0), (1, 4096)):
            for tl in range(2):
                r = F + 8*op + 4*tl
                l.append(f'ds_read_b64_tr_b16 {v(r,2)}, v{V_RA[tl]} offset:{slot+base}')
                l.append(f'ds_read_b64_tr_b16 {v(r+2,2)}, v{V_RA[tl]} offset:{slot+base+512}')
        return l
    def mfmas(buf, first):
        F = FB[buf]; l = []
        for ft in range(2):
            for dt in range(2):
                acc = v(ACC+16*(2*ft+dt), 16)
                l.append(f'{MF} {acc}, {v(F+4*ft,4)}, {v(F+8+4*dt,4)}, ' + ('0' if first else acc))
        return l
    for t in range(PD):
        for g in dma(t):
            for l in g: a(l)
            vq.push(t)
    if mid: mid(vq)
    vq.wait_for(a, 0)
    for l in reads(0, 0, 0): a(l)
    for t in range(NS):
        a('s_waitcnt lgkmcnt(0)')
        rd = reads(t, 1, 1)
        for k, m in enumerate(mfmas(0, t == 0)):
            a(m)
            for l in rd[2*k:2*k+2]: a(l)
        a('s_waitcnt lgkmcnt(0)')
        rd = []
        if t+1 < NS:
            vq.wait_for(a, t+1)
            rd = reads(t+1, 0, 0)
        gs = dma(t+PD) if t+PD < NS else []
        for k, m in enumerate(mfmas(1, False)):
            a(m)
            for l in rd[2*k:2*k+2]: a(l)
            for g in gs[2*k:2*k+2]:
                for l in g: a(l)
                vq.push(t+PD)
    a('s_nop 15')
    DST = 160
    reduce_tiles(a, ACC, V_W, V_R, DST)
    for jj in range(4):
        b = V_BI+2*jj
        a(f'v_lshlrev_b32 v{T}, 16, v{b}'); a(f'v_and_b32 v{T+1}, 0xffff0000, v{b}')
        a(f'v_lshlrev_b32 v{T+2}, 16, v{b+1}'); a(f'v_and_b32 v{T+3}, 0xffff0000, v{b+1}')
        for r in range(4): a(f'v_add_f32 v{DST+4*jj+r}, v{DST+4*jj+r}, v{T+r}')
    K1, K2 = 0xc0135761, 0xbdd2d3e8
    a(f's_mov_b32 s29, {hex(K2)}')
    X = DST+16
    for e in range(16):
        a(f'v_mul_f32 v{X+e}, v{DST+e}, v{DST+e}')
    for e in range(16):
        a(f'v_mov_b32 v{X+16+e}, {hex(K1)}')
    for e in range(16):
        a(f'v_fmac_f32 v{X+16+e}, s29, v{X+e}')
    for e in range(16):
        a(f'v_mul_f32 v{X+e}, v{X+16+e}, v{DST+e}')
    for e in range(16):
        a(f'v_exp_f32 v{X+e}, v{X+e}')
    for e in range(16):
        a(f'v_add_f32 v{X+e}, 1.0, v{X+e}')
    for e in range(16):
        a(f'v_rcp_f32 v{X+e}, v{X+e}')
    for e in range(16):
        a(f'v_mul_f32 v{DST+e}, v{DST+e}, v{X+e}')
    a(f's_and_b32 s29, s{s_w}, 1'); a(f's_lshl_b32 s30, s{s_db}, 1'); a('s_add_u32 s29, s29, s30'); a('s_mul_i32 s29, s29, 112')
    a(f's_lshr_b32 s30, s{s_w}, 1'); a('s_lshl_b32 s30, s30, 1'); a('s_add_u32 s29, s29, s30')
    a(f's_lshl_b32 s30, s{s_fb}, 2'); a('s_add_u32 s29, s29, s30'); a('s_lshl_b32 s29, s29, 10')
    for t in range(2):
        b = DST+8*t
        for k in range(4): a(f'v_cvt_pk_bf16_f32 v{b+k}, v{b+2*k}, v{b+2*k+1}')
        a(f'buffer_store_dwordx4 {v(b,4)}, v{V_L16}, s[{S_U}:{S_U+3}], s29 offen offset:{t*1024}{STF.st}')
    a('s_waitcnt vmcnt(0)')
    if not inline:
        a.label(f'{N}_end')
        a('s_endpgm')

def emit_l3(a, N='l3', PD=7, agpr=True, **opt):
    S_WO, S_W2, S_CTX, S_U, S_G, S_B2, S_OUT = 4, 8, 12, 16, 24, 28, 32
    s_w, s_sb, s_mb, s_base = 20, 21, 22, 23
    s_d, s_x0, s_x1 = 36, 37, 38
    ACCY, ACCO = 64, 128; FB = [192, 200]; DR = 0
    VL = 208; V_L16 = 209; V_RA = [210, 211]; V_WO = 212; V_W2 = 216; T = 220; V_G = 228; V_B2 = 230; V_W = 232; V_R = 233; V_OA = 234
    a('s_cmp_ge_u32 s2, 256')
    a(f's_cbranch_scc1 {N}_end')
    a(f's_load_dwordx2 s[64:65], s[0:1], {KA_WO}')
    a(f's_load_dwordx4 s[68:71], s[0:1], {KA_W2}')
    a(f's_load_dwordx2 s[72:73], s[0:1], {KA_OUT}')
    a(f's_load_dwordx2 s[74:75], s[0:1], {KA_WS}')
    a('v_lshrrev_b32 v1, 6, v0')
    a('s_and_b32 s41, s2, 7')
    a(f'v_readfirstlane_b32 s{s_w}, v1')
    a('s_lshr_b32 s40, s2, 3')
    a('s_lshl_b32 s41, s41, 2'); a('s_and_b32 s42, s40, 3'); a(f's_add_u32 s{s_sb}, s41, s42')
    a(f's_lshr_b32 s{s_mb}, s40, 2')
    if opt.get('sb0'): a(f's_mov_b32 s{s_sb}, 0')
    if opt.get('mb0'): a(f's_mov_b32 s{s_mb}, 0')
    if opt.get('sbx'): a(f's_and_b32 s{s_sb}, s{s_sb}, 0xfc')
    a(f's_lshl_b32 s{s_base}, s{s_w}, 15')
    lane_setup(a, VL, T)
    a(f'v_lshlrev_b32 v{V_L16}, 4, v{VL}')
    for t in range(2): tr_addr(a, V_RA[t], T, t, 4, s_base)
    a(f'v_and_b32 v{V_OA}, 31, v{VL}')
    a(f'v_lshlrev_b32 v{V_G}, 2, v{V_OA}')
    a(f'v_lshlrev_b32 v{V_B2}, 1, v{V_OA}')
    a(f'v_lshlrev_b32 v{V_OA}, 10, v{V_OA}')
    a(f'v_lshl_add_u32 v{V_OA}, v{T}, 4, v{V_OA}')
    dma_voffs(a, V_WO, VL, T, 1024, 42)
    dma_voffs(a, V_W2, VL, T, 4096, 42)
    a(f'v_add_u32 v{V_W}, s{s_base}, v{V_L16}')
    a(f's_lshl_b32 s42, s{s_w}, 12')
    a(f'v_add_u32 v{V_R}, s42, v{V_L16}')
    a('s_waitcnt lgkmcnt(0)')
    make_srd(a, S_WO, 64, 0, 4*MB); make_srd(a, S_W2, 68, 0, 1792*4096); make_srd(a, S_B2, 70, 0, 4096)
    make_srd(a, S_OUT, 72, 0, 2*MB)
    make_srd(a, S_CTX, 74, WS_CTX, 16*MB); make_srd(a, S_U, 74, WS_U, 16*112*1024); make_srd(a, S_G, 74, WS_G, 8192)
    vq = VmQueue()
    a(f's_lshl_b32 s43, s{s_sb}, 8')
    a(f's_lshl_b32 s44, s{s_sb}, 7')
    a(f'v_mov_b32 v{T+6}, v{V_G}'); a(f'v_mov_b32 v{T+7}, v{V_B2}')
    a(f'buffer_load_dword v{V_G}, v{T+6}, s[{S_G}:{S_G+3}], s43 offen'); vq.push('g')
    a(f'buffer_load_dword v{V_G+1}, v{T+6}, s[{S_G}:{S_G+3}], s43 offen offset:128'); vq.push('g')
    a(f'buffer_load_ushort v{V_B2}, v{T+7}, s[{S_B2}:{S_B2+3}], s44 offen'); vq.push('g')
    a(f'buffer_load_ushort v{V_B2+1}, v{T+7}, s[{S_B2}:{S_B2+3}], s44 offen offset:64'); vq.push('g')
    xr = ar if agpr else v
    st_ = Stamps(a, opt.get('diag'))
    st_('start')
    NY, NO, NSLOT = 14, 32, 8
    NS = NY + NO
    def part(t): return ('Y', t) if t < NY else ('O', t-NY)
    def switch(t):
        if t == 0:
            return [f's_mul_i32 s{s_d}, s{s_w}, {448*4096}', f's_lshl_b32 s42, s{s_sb}, 7', f's_add_u32 s{s_d}, s{s_d}, s42',
                    f's_lshl_b32 s42, s{s_mb}, 1', f's_mul_i32 s{s_x0}, s42, {112*1024}', f's_mul_i32 s42, s{s_w}, {28*1024}',
                    f's_add_u32 s{s_x0}, s{s_x0}, s42', f's_add_u32 s{s_x1}, s{s_x0}, {112*1024}']
        if t == NY:
            return [f's_lshl_b32 s{s_d}, s{s_w}, 20', f's_lshl_b32 s42, s{s_mb}, 7', f's_add_u32 s{s_d}, s{s_d}, s42',
                    f's_lshl_b32 s{s_x0}, s{s_sb}, 19', f's_lshl_b32 s42, s{s_w}, 16', f's_add_u32 s{s_x0}, s{s_x0}, s42',
                    f's_add_u32 s{s_x1}, s{s_x0}, {256*1024}']
        return []
    def loads(t):
        p, _ = part(t)
        srdD, vo, step = (S_W2, V_W2, 32*4096) if p == 'Y' else (S_WO, V_WO, 32*1024)
        srdX = S_U if p == 'Y' else S_CTX
        slot = (t % NSLOT)*4096
        g = []
        for j in range(4):
            l = []
            if j == 0: l += switch(t) + [f's_add_u32 m0, s{s_base}, {slot}', 's_nop 0']
            if not opt.get('nodma'):
                l.append(f'buffer_load_dwordx4 v{vo+j}, s[{srdD}:{srdD+3}], s{s_d} offen' + (f' offset:{j*1024}' if j else '') + ' lds')
            else: l.append('s_nop 0')
            if j == 3: l.append(f's_add_u32 s{s_d}, s{s_d}, {step}')
            g.append(l)
        if opt.get('nodirect'): return g
        r0 = DR + 16*(t % PD)
        for ks in range(2):
            for tl, so in ((0, s_x0), (1, s_x1)):
                l = [f'buffer_load_dwordx4 {xr(r0+8*ks+4*tl,4)}, v{V_L16}, s[{srdX}:{srdX+3}], s{so} offen' + (f' offset:{ks*1024}' if ks else '')]
                if ks == 1: l.append(f's_add_u32 s{so}, s{so}, 2048')
                g.append(l)
        return g
    def reads(t, ks, buf):
        slot = (t % NSLOT)*4096 + ks*2048
        F = FB[buf]; l = []
        for tl in range(2):
            l.append(f'ds_read_b64_tr_b16 {v(F+4*tl,2)}, v{V_RA[tl]} offset:{slot}')
            l.append(f'ds_read_b64_tr_b16 {v(F+4*tl+2,2)}, v{V_RA[tl]} offset:{slot+1024}')
        return l
    def mfmas(t, ks, buf):
        p, tt = part(t)
        F = FB[buf]; X = DR + 16*(t % PD) + 8*ks; l = []
        if opt.get('nomfma'): return ['s_nop 0']*4
        first = tt == 0 and ks == 0
        for mt in range(2):
            for st in range(2):
                if p == 'Y':
                    acc = v(ACCY+16*(2*mt+st), 16); A = xr(X+4*mt, 4); B = v(F+4*st, 4)
                else:
                    acc = v(ACCO+16*(2*mt+st), 16); A = v(F+4*mt, 4); B = xr(X+4*st, 4)
                l.append(f'{MF} {acc}, {A}, {B}, ' + ('0' if first else acc))
        return l
    def isvm(g): return any(l.startswith('buffer_') for l in g)
    for t in range(PD):
        for g in loads(t):
            for l in g: a(l)
            if isvm(g): vq.push(t)
    vq.wait_for(a, 0)
    for l in reads(0, 0, 0): a(l)
    for t in range(NS):
        st_(f's{t}')
        a('s_waitcnt lgkmcnt(0)')
        rd = reads(t, 1, 1)
        for k, m in enumerate(mfmas(t, 0, 0)):
            a(m)
            for l in rd[k:k+1]: a(l)
        a('s_waitcnt lgkmcnt(0)')
        rd = []
        if t+1 < NS:
            vq.wait_for(a, t+1)
            rd = reads(t+1, 0, 0)
        ml = mfmas(t, 1, 1)
        for k, m in enumerate(ml):
            a(m)
            for l in rd[k:k+1]: a(l)
        if t+PD < NS:
            for g in loads(t+PD):
                for l in g: a(l)
                if isvm(g): vq.push(t+PD)
    st_('loopend')
    a('s_nop 15')
    for st in range(2):
        a(f'v_sub_f32 v{T+st}, 1.0, v{V_G+st}')
    for mt in range(2):
        for st in range(2):
            o = ACCO+16*(2*mt+st); y = ACCY+16*(2*mt+st)
            for e in range(16):
                a(f'v_mul_f32 v{o+e}, v{o+e}, v{V_G+st}')
            for e in range(16):
                a(f'v_fmac_f32 v{o+e}, v{y+e}, v{T+st}')
    DST = 0
    reduce_tiles(a, ACCO, V_W, V_R, DST)
    a(f's_and_b32 s42, s{s_w}, 1')
    a('s_cmp_eq_u32 s42, 1')
    a('s_cselect_b64 vcc, -1, 0')
    a(f'v_cndmask_b32 v{T}, v{T}, v{T+1}, vcc')
    a(f'v_cndmask_b32 v{V_B2}, v{V_B2}, v{V_B2+1}, vcc')
    a(f'v_lshlrev_b32 v{V_B2}, 16, v{V_B2}')
    a(f'v_mul_f32 v{T}, v{T}, v{V_B2}')
    for e in range(16): a(f'v_add_f32 v{DST+e}, v{DST+e}, v{T}')
    for jj in range(4):
        a(f'v_cvt_pk_bf16_f32 v{DST+16+2*jj}, v{DST+4*jj}, v{DST+4*jj+1}')
        a(f'v_cvt_pk_bf16_f32 v{DST+16+2*jj+1}, v{DST+4*jj+2}, v{DST+4*jj+3}')
    a('s_nop 1')
    a(f's_lshl_b32 s43, s{s_sb}, 16'); a('s_lshl_b32 s42, s42, 15'); a('s_add_u32 s43, s43, s42')
    a(f's_lshl_b32 s42, s{s_mb}, 7'); a('s_add_u32 s43, s43, s42')
    a(f's_lshr_b32 s42, s{s_w}, 1'); a('s_lshl_b32 s42, s42, 6'); a('s_add_u32 s43, s43, s42')
    for pr in range(2):
        b = DST+16+4*pr
        a(f'v_permlane32_swap_b32 v{b}, v{b+2}')
        a(f'v_permlane32_swap_b32 v{b+1}, v{b+3}')
        a('s_nop 1')
        a(f'buffer_store_dwordx4 {v(b,4)}, v{V_OA}, s[{S_OUT}:{S_OUT+3}], s43 offen offset:{32*pr}')
    a('s_waitcnt vmcnt(0)')
    st_('end')
    st_.dump(100*MB, s_w, 240)
    a.label(f'{N}_end')
    a('s_endpgm')
```

```python
import sys, os
from asmlib import *
from layout import *
import gen_proj, gen_proj2, gen_attn, gen_attn2, gen_t2

NAME = 'gated_mix__compressed_kv_cla__mixer_token_mlp__prompt'
def build(path, **opt):
    if opt.get('v', 2) == 2: return build2(path, **opt)
    ref = open(f'cdna_kernels/{NAME}.s.ref').read().split('\n')
    a = Asm()
    for l in ref:
        if l.startswith('; Override launch') : break
        a(l)
    a('; @launch kernel=proj_kernel grid=(256,1,1) block=(256,1,1) lds=147456')
    a('; @launch kernel=attn_kernel grid=(256,1,1) block=(256,1,1) lds=131072')
    a('; @launch kernel=mlp1_kernel grid=(256,1,1) block=(256,1,1) lds=131072')
    a('; @launch kernel=final_kernel grid=(256,1,1) block=(256,1,1) lds=131072')
    a('.amdgcn_target "amdgcn-amd-amdhsa--gfx950"')
    kernel_header(a, 'proj_kernel'); gen_proj.emit_l1(a, 'l1', **opt.get('l1', {}))
    kernel_header(a, 'attn_kernel'); g = gen_attn.Attn(a, 'attn'); g.emit()
    kernel_header(a, 'mlp1_kernel'); gen_t2.emit_mlp1(a, 'mlp1')
    kernel_header(a, 'final_kernel'); gen_t2.emit_l3(a, 'l3', PD=opt.get('l3pd', 7), **opt.get('l3', {}))
    kernel_desc(a, 'proj_kernel', vgpr=256, accum=256)
    kernel_desc(a, 'attn_kernel', vgpr=512, accum=256)
    kernel_desc(a, 'mlp1_kernel', vgpr=256, accum=256)
    kernel_desc(a, 'final_kernel', vgpr=(384 if opt.get('l3', {}).get('agpr', True) else 256), accum=256)
    open(path, 'w').write(a.text())
def build2(path, **opt):
    ref = open(f'cdna_kernels/{NAME}.s.ref').read().split('\n')
    a = Asm()
    for l in ref:
        if l.startswith('; Override launch') : break
        a(l)
    a('; @launch kernel=proj_kernel grid=(256,1,1) block=(256,1,1) lds=147456')
    a('; @launch kernel=attn_kernel grid=(256,1,1) block=(256,1,1) lds=163840')
    a('; @launch kernel=final_kernel grid=(256,1,1) block=(256,1,1) lds=131072')
    a('.amdgcn_target "amdgcn-amd-amdhsa--gfx950"')
    kernel_header(a, 'proj_kernel'); gen_proj2.emit_l1(a, 'l1', **opt.get('l1', {}))
    kernel_header(a, 'attn_kernel'); g = gen_attn2.Attn(a, 'attn', **opt.get('attn', {})); g.emit()
    kernel_header(a, 'final_kernel'); gen_t2.emit_l3(a, 'l3', PD=opt.get('l3pd', 4), **opt.get('l3', {'agpr': False}))
    kernel_desc(a, 'proj_kernel', vgpr=448, accum=256)
    kernel_desc(a, 'attn_kernel', vgpr=512, accum=256)
    kernel_desc(a, 'final_kernel', vgpr=(384 if opt.get('l3', {'agpr': False}).get('agpr', True) else 256), accum=256)
    open(path, 'w').write(a.text())
if __name__ == '__main__':
    opt = eval(sys.argv[2]) if len(sys.argv) > 2 else {}
    build(sys.argv[1] if len(sys.argv) > 1 else f'cdna_kernels/{NAME}.s', **opt)
```

```python
class Asm:
    def __init__(self):
        self.lines = []
    def __call__(self, s=''):
        for l in s.split('\n'):
            self.lines.append(l)
    def label(self, name):
        self.lines.append(name + ':')
    def text(self):
        return '\n'.join(self.lines) + '\n'

def kernel_header(a, name):
    a('.text')
    a(f'.globl {name}')
    a('.p2align 8')
    a(f'.type {name},@function')
    a.label(name)

def kernel_desc(a, name, vgpr=256, sgpr=102, accum=256, kernarg=120, wg_y=False):
    a('.section .rodata,"a"')
    a('.p2align 6')
    a(f'.amdhsa_kernel {name}')
    a(f'  .amdhsa_next_free_vgpr {vgpr}')
    a(f'  .amdhsa_next_free_sgpr {sgpr}')
    a(f'  .amdhsa_accum_offset {accum}')
    a('  .amdhsa_group_segment_fixed_size 0')
    a(f'  .amdhsa_kernarg_size {kernarg}')
    a('  .amdhsa_user_sgpr_count 2')
    a('  .amdhsa_user_sgpr_kernarg_segment_ptr 1')
    a('  .amdhsa_system_sgpr_workgroup_id_x 1')
    if wg_y:
        a('  .amdhsa_system_sgpr_workgroup_id_y 1')
    a('  .amdhsa_float_denorm_mode_32 3')
    a('.end_amdhsa_kernel')
    a('.text')

def srd(a, s, base, nbytes):
    a(f's_mov_b32 s{s}, s{base}')
    a(f's_and_b32 s{s+1}, s{base+1}, 0xffff')
    a(f's_mov_b32 s{s+2}, {nbytes}')
    a(f's_mov_b32 s{s+3}, 0x20000')


class Stamps:
    def __init__(self, a, on, vreg=255, sreg=98):
        self.a, self.on, self.v, self.s, self.n = a, on, vreg, sreg, 0
        self.names = []
    def __call__(self, name=''):
        if not self.on: return
        a = self.a
        if self.n == 0:
            a(f'v_mov_b32 v{self.v}, 0')
            a(f's_memrealtime s[{self.s}:{self.s+1}]')
            a('s_waitcnt lgkmcnt(0)')
            a(f'v_writelane_b32 v{self.v}, s{self.s}, 62')
        a(f's_memtime s[{self.s}:{self.s+1}]')
        a('s_waitcnt lgkmcnt(0)')
        a(f'v_writelane_b32 v{self.v}, s{self.s}, {self.n}')
        self.names.append(name); self.n += 1
    def dump(self, ws_off, s_w, vtmp, kernarg_ws=112):
        if not self.on: return
        a = self.a; s = self.s - 6
        a(f's_memrealtime s[{self.s}:{self.s+1}]')
        a('s_waitcnt lgkmcnt(0)')
        a(f'v_writelane_b32 v{self.v}, s{self.s}, 63')
        a(f's_load_dwordx2 s[{s}:{s+1}], s[0:1], {kernarg_ws}')
        a('s_waitcnt lgkmcnt(0)')
        a(f's_add_u32 s{s}, s{s}, {ws_off}'); a(f's_addc_u32 s{s+1}, s{s+1}, 0'); a(f's_and_b32 s{s+1}, s{s+1}, 0xffff')
        a(f's_mov_b32 s{s+2}, 0x100000'); a(f's_mov_b32 s{s+3}, 0x20000')
        a(f's_lshl_b32 s{s+4}, s2, 2'); a(f's_add_u32 s{s+4}, s{s+4}, s{s_w}'); a(f's_lshl_b32 s{s+4}, s{s+4}, 8')
        a(f'v_mbcnt_lo_u32_b32 v{vtmp}, -1, 0'); a(f'v_mbcnt_hi_u32_b32 v{vtmp}, -1, v{vtmp}'); a(f'v_lshlrev_b32 v{vtmp}, 2, v{vtmp}')
        a(f'buffer_store_dword v{self.v}, v{vtmp}, s[{s}:{s+3}], s{s+4} offen')
        a('s_waitcnt vmcnt(0)')
```

```python
from asmlib import *
from layout import *
from gen_proj2 import Proj, VmQueue
from gen_proj import make_srd
import gen_t2

OA, OB = 0, 64
QA, QB = 0, 32
PFB = (128, 152)
FR = 192
NFR = 16
S = [[64, 80], [96, 112]]
P = [[128, 136], [144, 152]]
CA, CB = 160, 176
PT = 192
PS = [200, 201]
LA, LB = 202, 203
V_L16 = 204; V_KA = 205; V_VA = 206
V_RELA = 207; V_RELB = 208; V_NEG = 209
V_T = 210
V_DA, V_DB = 226, 227
V_AA, V_AB = 228, 229
V_MASK = 230; V_VBASE = 231; V_REL = [232, 233]
V_ST = 236
S_K, S_V, S_Q, S_C = 4, 8, 12, 16
s_w, s_h, s_i, s_g1, s_cnt, s_ks, s_vs, s_t0, s_thr = 20, 21, 22, 23, 24, 25, 26, 27, 28
s_t1, s_step = 29, 32
S_RET = 30
S_M = 40
D = 8
THR = 0x4e800000

def v(b, n=1): return f'v{b}' if n == 1 else f'v[{b}:{b+n-1}]'
def ar(b, n=1): return f'a{b}' if n == 1 else f'a[{b}:{b+n-1}]'
MF = 'v_mfma_f32_32x32x16_bf16'

class Iter:
    def __init__(self, qk, sm, pv, next_qk, par, czero=False):
        self.qk, self.sm, self.pv, self.next_qk, self.par, self.czero = qk, sm, pv, next_qk, par, czero

def nfr(mode): return {None: 0, 1: 8, 2: 16}[mode]

class Attn:
    def __init__(self, a, name, diag=False, **opt):
        self.a = a; self.name = name; self.diag = diag; self.opt = opt; self.st = Stamps(a, diag, vreg=254)
        self.phase = 0
        self.slow = []
        self.uid = 0
        self.vm = {}

    def simulate(self):
        res = {}
        for i in range(8):
            G1 = 4*(i+1)
            def mode(g): return None if (g < 0 or g > 33) else (1 if g < G1 else 2)
            def first(g):
                return g if g <= G1 else G1 + 2*(g-G1)
            def r(g): return 1 if g < G1 else 2
            issued = []
            def issue(kind, b0, nb):
                for b in range(b0, b0+nb):
                    issued.extend([(kind, b)]*2)
            kd = 0; vd = 0
            issue('K', 0, 6); issue('V', 0, 4)
            kd, vd = 6, 4
            kfree = 0; vfree = 0
            def need(n):
                req = []
                if mode(n+3): req += [('K', b) for b in range(first(n+3), first(n+3)+r(n+3))]
                if mode(n+1): req += [('V', b) for b in range(first(n+1), first(n+1)+r(n+1))]
                last = -1
                for k, x in enumerate(issued):
                    if x in req: last = k
                for x in req: assert x in issued, (i, n, x)
                return len(issued) - 1 - last if last >= 0 else None
            def pos(n):
                if n <= -1: return ('pro', n)
                if n <= G1-5:
                    if n >= G1-6 : return ('p1peel', n & 1)
                    return ('p1loop', n & 1)
                if n <= G1-1: return ('trans', n-G1)
                if n <= 31:
                    if n >= 30: return ('p2peel', n & 1)
                    return ('p2loop', n & 1)
                return ('epi', n)
            for n in range(-3, 34):
                if n >= -2:
                    if mode(n) and n <= 31:
                        b0 = vd; nb = r(n)
                        assert b0 + nb - 8 <= (first(n-1) if n-1 >= 0 else 0), (i, n, b0, nb)
                        issue('V', b0, nb); vd += nb
                N = need(n)
                p = pos(n)
                if N is not None:
                    res[p] = min(res.get(p, 99), N)
                if mode(n+3) or (n <= 31 and n >= -3):
                    nb = r(n+3)
                    if n <= 30 or True:
                        assert kd + nb - 8 <= first(n+3), (i, n, kd, nb)
                        issue('K', kd, nb); kd += nb
                if n == G1-1: issued.extend([('S', 0)]*8)
        self.vm = res
        return res

    def dma_group(self, kind, nb, split=False):
        srd_, so = (S_K, s_ks) if kind == 'K' else (S_V, s_vs)
        g = []
        if kind == 'K':
            pre = [f's_and_b32 m0, s{so}, 0xffff']
        else:
            pre = [f's_and_b32 s{s_t0}, s{so}, 0xffff', f's_or_b32 m0, s{s_t0}, 0x10000']
        n = 2*nb
        if split: g.append(pre)
        for k in range(n):
            l = []
            if k == 0 and not split: l += pre + ['s_nop 0']
            off = f' offset:{k*1024}' if k else ''
            l.append(f'buffer_load_dwordx4 v{V_L16}, s[{srd_}:{srd_+3}], s{so} offen{off} lds')
            if k == n-1: l.append(f's_add_u32 s{so}, s{so}, {nb*8192}')
            g.append(l)
        return g

    def sm_ops(self, it):
        sm = it.sm; pr = it.par ^ 1
        ops = []
        masked = sm.endswith('m')
        init = sm == 'init'
        mode = '1' if init else sm[0]
        for b in range(2):
            Sb = S[pr][b]; Pb = P[pr][b]
            domask = masked and (mode == '2' or b == 0)
            blk = []
            if domask:
                def cmp(e): return (4, f'v_cmp_ge_i32 s[{S_M+2*(e%8)}:{S_M+2*(e%8)+1}], v{V_REL[b]}, {8*(e>>2)+(e&3)}')
                def cnd(e): return (4, f'v_cndmask_b32 v{Sb+e}, v{V_NEG}, v{Sb+e}, s[{S_M+2*(e%8)}:{S_M+2*(e%8)+1}]')
                blk += [cmp(0), cmp(1), cmp(2), cmp(3), cnd(0)]
            for e in range(16):
                if domask:
                    if e+4 < 16: blk.append(cmp(e+4))
                    if e+1 < 16: blk.append(cnd(e+1))
                if init:
                    if e == 0: blk.append((4, f'v_sub_f32 v{Sb}, v{Sb}, v{V_DA if b == 0 else V_DB}'))
                    if e+1 < 16: blk.append((4, f'v_sub_f32 v{Sb+e+1}, v{Sb+e+1}, v{V_DA if b == 0 else V_DB}'))
                blk.append((8, f'v_exp_f32 v{PT+(e%8)}, v{Sb+e}'))
                if e >= 2 or True:
                    k = e-1
                    if k == 1: blk.append((4, f'v_add_f32 v{PS[b]}, v{PT+0}, v{PT+1}'))
                    elif k > 1: blk.append((4, f'v_add_f32 v{PS[b]}, v{PS[b]}, v{PT+(k%8)}'))
                    if k >= 1 and k % 2 == 1:
                        blk.append((4, f'v_cvt_pk_bf16_f32 v{Pb+(k>>1)}, v{PT+((k-1)%8)}, v{PT+(k%8)}'))
            blk.append((4, f'v_add_f32 v{PS[b]}, v{PS[b]}, v{PT+(15%8)}'))
            blk.append((4, f'v_cvt_pk_bf16_f32 v{Pb+7}, v{PT+(14%8)}, v{PT+(15%8)}'))
            ops += blk
        if not init and not self.opt.get('nocheck'):
            ops.append((4, f'v_max_f32 v{V_T}, v{PS[0]}, v{PS[1]}'))
            ops.append((4, f'v_cmp_lt_f32 vcc, s{s_thr}, v{V_T}'))
        return ops

    def rel_setup(self, it):
        return []

    def emit_iter(self, it, pos, extra_pre=None, name='', extra_post=None):
        a = self.a
        par = it.par
        ph = self.phase
        mf = []
        reads = []
        fidx = 0
        def fr(k): return FR + 4*((ph + k) % NFR)
        Sw = S[par]; Pr = P[par]
        if it.qk == 1:
            for j in range(8):
                A = ar(fr(fidx+j), 4)
                for b, Q, C in ((0, QA, CA), (1, QB, CB)):
                    c = ('0' if it.czero else v(C, 16)) if j == 0 else v(Sw[b], 16)
                    mf.append((f'{MF} {v(Sw[b],16)}, {A}, {v(Q+4*j,4)}, {c}', fidx+j))
                reads.append((2*j, f'ds_read_b128 {A}, v{V_KA} offset:{j*1024}', fidx+j))
            fidx += 8
        elif it.qk == 2:
            for f in range(16):
                b, j = f >> 3, f & 7
                A = ar(fr(fidx+f), 4)
                c = ('0' if it.czero else v(CB, 16)) if j == 0 else v(Sw[b], 16)
                mf.append((f'{MF} {v(Sw[b],16)}, {A}, {v(QB+4*j,4)}, {c}', fidx+f))
                reads.append((f, f'ds_read_b128 {A}, v{V_KA} offset:{f*1024}', fidx+f))
            fidx += 16
        s0 = len(mf)
        if it.pv == 1:
            for f in range(8):
                t, db = f >> 2, f & 3
                A = ar(fr(fidx+f), 4)
                for b, O in ((0, OA), (1, OB)):
                    mf.append((f'{MF} {ar(O+16*db,16)}, {A}, {v(Pr[b]+4*t,4)}, {ar(O+16*db,16)}', fidx+f))
                reads.append((s0+2*f, f'ds_read_b128 {A}, v{V_VA} offset:{f*1024}', fidx+f))
            fidx += 8
        elif it.pv == 2:
            for f in range(16):
                b, t, db = f >> 3, (f >> 2) & 1, f & 3
                A = ar(fr(fidx+f), 4)
                mf.append((f'{MF} {ar(OB+16*db,16)}, {A}, {v(Pr[b]+4*t,4)}, {ar(OB+16*db,16)}', fidx+f))
                reads.append((s0+f, f'ds_read_b128 {A}, v{V_VA} offset:{f*1024}', fidx+f))
            fidx += 16
        ns = len(mf)
        nown = fidx
        lead_in = [r for r in reads if it.qk and r[0] < D and r[2] < nfr(it.qk)]
        own = [r for r in reads if r not in lead_in]
        lead_out = []
        if it.next_qk:
            n = nfr(it.next_qk)
            for j in range(n):
                fu = 2*j if it.next_qk == 1 else j
                if fu < D:
                    A = ar(FR + 4*((ph + nown + j) % NFR), 4)
                    lead_out.append((ns + fu, f'ds_read_b128 {A}, v{V_KA} offset:{j*1024}', nown+j))
        bslot = max(ns - D, 0)
        slots = [[] for _ in range(ns+1)]
        pre = []
        order = [r[2] for r in lead_in]
        def place_read(slot, r):
            (pre if slot < 0 else slots[slot]).append(('ds', r[1], r[2]))
        for r in own:
            place_read(r[0]-D if r[0]-D >= 0 else -1, r)
        win = []
        has_bar = pos is not None and pos in self.vm
        if has_bar:
            if not self.opt.get('novm'): win.append(('x', f's_waitcnt vmcnt({self.vm[pos]})'))
            if not self.opt.get('nobar'): win.append(('x', 's_barrier'))
        if it.qk:
            win.append(('x', f'v_add_u32 v{V_KA}, {8192*(1 if it.qk==1 else 2)}, v{V_KA}'))
            win.append(('x', f'v_and_b32 v{V_KA}, 0xffff, v{V_KA}'))
        if it.pv:
            win.append(('x', f'v_add_u32 v{V_VA}, {8192*(1 if it.pv==1 else 2)}, v{V_VA}'))
            win.append(('x', f'v_and_or_b32 v{V_VA}, v{V_VA}, v{V_MASK}, v{V_VBASE}'))
        for r in own:
            assert r[0]-D < bslot or ns <= D, (r, bslot)
        vg = self.dma_group('V', 1 if it.pv == 1 else 2, split=True) if (it.pv and not getattr(it, 'nov', False)) else []
        kg = self.dma_group('K', 1 if it.next_qk == 1 else 2, split=True) if (it.next_qk or getattr(it, 'forcek', False)) else []
        if self.opt.get('nodma') and pos and pos[0] != 'pro': vg = []; kg = []
        sm = self.sm_ops(it) if it.sm else []
        if self.opt.get('nosm'): sm = []
        if self.opt.get('noexp'): sm = [(c, t) for c, t in sm if 'exp' not in t]
        if self.opt.get('noadd'): sm = [(c, t) for c, t in sm if 'v_add_f32' not in t]
        tot = sum(c for c, _ in sm)
        fixed = [0.0]*ns
        for k in range(ns):
            fixed[k] += 4*len(slots[k])
        for k, grp in enumerate(vg):
            sl = min(ns-1, k*(1 if len(vg) > 3 else 2))
            slots[sl].append(('dma', grp)); fixed[sl] += 4*len(grp)
        slots[bslot] = win + slots[bslot]; fixed[bslot] += 4*len(win)
        for r in lead_out:
            sl = min(ns-1, r[0]-D); slots[sl].append(('ds', r[1], r[2])); fixed[sl] += 4
        for k, grp in enumerate(kg):
            sl = min(ns-1, bslot + k*(1 if len(kg) > 3 else 2) + (1 if k else 0))
            slots[sl].append(('dma', grp)); fixed[sl] += 4*len(grp)
        total = tot + sum(fixed)
        smslots = [[] for _ in range(ns)]
        if sm:
            k = 0; cum = 0.0; target_end = ns - self.opt.get('tail', 1.6)
            acc = 0.0
            for sl in range(ns):
                acc += fixed[sl]
                lim = total * (sl+1) / target_end
                while k < len(sm) and (acc + sm[k][0]*0.5 <= lim or sl == ns-1):
                    smslots[sl].append(sm[k]); acc += sm[k][0]; k += 1
        if extra_pre:
            for l in extra_pre: a(l)
        q = list(order)
        def emit_fill(x):
            if x[0] == 'ds':
                a(x[1]); q.append(x[2])
            elif x[0] == 'dma':
                for l in x[1]: a(l)
            else:
                a(x[1])
        for x in pre: emit_fill(x)
        waited = -1
        for k, (txt, f) in enumerate(mf):
            if f in q:
                idx = q.index(f)
                if idx+1 < len(q) and (k % 2 == 0): idx2 = idx+1
                else: idx2 = idx
                nleft = len(q) - 1 - idx2
                a(f's_waitcnt lgkmcnt({nleft})')
                q = q[idx2+1:]
            a(txt)
            fl = slots[k]
            for x in fl:
                if x[0] in ('x', 'ds'): emit_fill(x)
            for c, t in smslots[k]: a(t)
            for x in fl:
                if x[0] == 'dma': emit_fill(x)
        self.phase = (ph + nown) % NFR
        for l in (extra_post or []): a(l)
        if it.sm and it.sm != 'init' and not self.opt.get('nocheck'):
            self.uid += 1
            u = self.uid
            a(f's_cbranch_vccnz {self.name}_slow{u}')
            a.label(f'{self.name}_join{u}')
            self.l_update(it.sm)
            self.slow.append((u, it))
        elif it.sm == 'init':
            a(f'v_mov_b32 v{LA}, v{PS[0]}')
            a(f'v_mov_b32 v{LB}, v{PS[1]}')

    def l_update(self, sm):
        a = self.a
        if sm[0] == '1' or sm == 'init':
            a(f'v_add_f32 v{LA}, v{LA}, v{PS[0]}')
            a(f'v_add_f32 v{LB}, v{LB}, v{PS[1]}')
        else:
            a(f'v_add_f32 v{LB}, v{LB}, v{PS[0]}')
            a(f'v_add_f32 v{LB}, v{LB}, v{PS[1]}')

    def rowmax(self, dst, blocks):
        a = self.a
        regs = [b+e for b in blocks for e in range(16)]
        a(f'v_max3_f32 v{dst}, v{regs[0]}, v{regs[1]}, v{regs[2]}')
        k = 3
        while k+1 < len(regs):
            a(f'v_max3_f32 v{dst}, v{dst}, v{regs[k]}, v{regs[k+1]}'); k += 2
        if k < len(regs): a(f'v_max_f32 v{dst}, v{dst}, v{regs[k]}')
        a(f'v_mov_b32 v{V_T+1}, v{dst}')
        a('s_nop 1')
        a(f'v_permlane32_swap_b32 v{V_T+1}, v{dst}')
        a('s_nop 1')
        a(f'v_max_f32 v{dst}, v{dst}, v{V_T+1}')

    def plain_sm(self, pr):
        a = self.a
        for b in range(2):
            for e in range(0, 16, 2):
                a(f'v_exp_f32 v{PT}, v{S[pr][b]+e}')
                a(f'v_exp_f32 v{PT+1}, v{S[pr][b]+e+1}')
                a('s_nop 0')
                a(f'v_cvt_pk_bf16_f32 v{P[pr][b]+(e>>1)}, v{PT}, v{PT+1}')
                if e == 0:
                    a(f'v_add_f32 v{PS[b]}, v{PT}, v{PT+1}')
                else:
                    a(f'v_add_f32 v{PS[b]}, v{PS[b]}, v{PT}')
                    a(f'v_add_f32 v{PS[b]}, v{PS[b]}, v{PT+1}')

    def sub_delta(self, pr, mode):
        a = self.a
        for b in range(2):
            dl = V_DA if (mode == 1 and b == 0) else V_DB
            for e in range(16):
                a(f'v_sub_f32 v{S[pr][b]+e}, v{S[pr][b]+e}, v{dl}')

    def emit_slow(self, u, it):
        a = self.a
        pr = it.par ^ 1
        mode = 1 if it.sm[0] == '1' else 2
        a.label(f'{self.name}_slow{u}')
        a('s_nop 15')
        a('s_nop 7')
        if mode == 1:
            self.rowmax(V_DA, [S[pr][0]])
            self.rowmax(V_DB, [S[pr][1]])
            a(f'v_max_f32 v{V_DA}, 0, v{V_DA}')
        else:
            self.rowmax(V_DB, [S[pr][0], S[pr][1]])
            a(f'v_mov_b32 v{V_DA}, 0')
        a(f'v_max_f32 v{V_DB}, 0, v{V_DB}')
        a(f's_call_b64 s[{S_RET}:{S_RET+1}], {self.name}_rescale')
        self.sub_delta(pr, mode)
        if it.qk: self.sub_delta(it.par, it.qk)
        self.plain_sm(pr)
        a(f's_branch {self.name}_join{u}')

    def emit_rescale(self):
        a = self.a
        a.label(f'{self.name}_rescale')
        a(f'v_exp_f32 v{V_AA}, -v{V_DA}')
        a(f'v_exp_f32 v{V_AB}, -v{V_DB}')
        a('s_nop 0')
        for O, al in ((OA, V_AA), (OB, V_AB)):
            for e in range(0, 64, 4):
                for k in range(4): a(f'v_accvgpr_read_b32 v{V_T+k}, a{O+e+k}')
                for k in range(4): a(f'v_mul_f32 v{V_T+k}, v{V_T+k}, v{al}')
                for k in range(4): a(f'v_accvgpr_write_b32 a{O+e+k}, v{V_T+k}')
        a(f'v_mul_f32 v{LA}, v{LA}, v{V_AA}')
        a(f'v_mul_f32 v{LB}, v{LB}, v{V_AB}')
        for e in range(16):
            a(f'v_sub_f32 v{CA+e}, v{CA+e}, v{V_DA}')
            a(f'v_sub_f32 v{CB+e}, v{CB+e}, v{V_DB}')
        a('s_nop 1')
        a(f's_setpc_b64 s[{S_RET}:{S_RET+1}]')

    def mask_inplace(self, pr, b):
        a = self.a
        for e0 in range(0, 16, 8):
            for e in range(e0, e0+8):
                a(f'v_cmp_ge_i32 s[{S_M+2*(e%8)}:{S_M+2*(e%8)+1}], v{V_REL[b]}, {8*(e>>2)+(e&3)}')
            a('s_nop 1')
            for e in range(e0, e0+8):
                a(f'v_cndmask_b32 v{S[pr][b]+e}, v{V_NEG}, v{S[pr][b]+e}, s[{S_M+2*(e%8)}:{S_M+2*(e%8)+1}]')

    def emit_init(self):
        a = self.a
        a(f'v_mov_b32 v{V_REL[0]}, v{V_RELA}')
        a('s_nop 12')
        self.mask_inplace(0, 0)
        self.rowmax(V_DA, [S[0][0]])
        self.rowmax(V_DB, [S[0][1]])
        for e in range(16):
            a(f'v_sub_f32 v{CA+e}, 0, v{V_DA}')
            a(f'v_sub_f32 v{CB+e}, 0, v{V_DB}')
        a('s_nop 1')

    def epilogue_tile(self, O, L, qt_sgpr, vq=None):
        a = self.a
        a(f'v_mov_b32 v{V_T+1}, v{L}')
        a('s_nop 1')
        a(f'v_permlane32_swap_b32 v{V_T+1}, v{L}')
        a('s_nop 1')
        a(f'v_add_f32 v{L}, v{L}, v{V_T+1}')
        a(f'v_rcp_f32 v{V_T+2}, v{L}')
        a('s_nop 0')
        a(f'v_mov_b32 v{V_T+3}, v{V_T+2}')
        inv = V_T+2
        k = 0
        for db in range(4):
            for t in range(2):
                tmp = V_ST + 8*(k % 2)
                for e in range(8): a(f'v_accvgpr_read_b32 v{tmp+e}, a{O+16*db+8*t+e}')
                for e in range(0, 8, 2): a(f'v_pk_mul_f32 v[{tmp+e}:{tmp+e+1}], v[{tmp+e}:{tmp+e+1}], v[{inv}:{inv+1}]')
                for e in range(0, 8, 2): a(f'v_cvt_pk_bf16_f32 v{tmp+(e>>1)}, v{tmp+e}, v{tmp+e+1}')
                j = 2*db+t
                off = j*1024
                so = qt_sgpr if off < 4096 else qt_sgpr+1
                a(f'buffer_store_dwordx4 v[{tmp}:{tmp+3}], v{V_L16}, s[{S_C}:{S_C+3}], s{so} offen offset:{off % 4096}{STF.st}')
                if vq: vq.push('ctx')
                k += 1

    def stamp(self, same=False):
        self.st()
    def dump_stamps(self):
        self.st.dump(100*MB, s_w, 253)

    def emit(self):
        a = self.a; N = self.name; opt = self.opt
        self.simulate()
        vm = self.vm
        S_X, S_WQ = 12, 60
        a(f's_cmp_ge_u32 s2, 256')
        a(f's_cbranch_scc1 {N}_end')
        self.stamp()
        a(f's_load_dwordx2 s[34:35], s[0:1], {KA_WS}')
        a(f's_load_dwordx2 s[64:65], s[0:1], {KA_AX}')
        a(f's_load_dwordx2 s[66:67], s[0:1], {KA_WQ}')
        a(f'v_lshrrev_b32 v1, 6, v0')
        a(f'v_and_b32 v2, 63, v0')
        a(f'v_lshlrev_b32 v{V_L16}, 4, v2')
        a(f'v_readfirstlane_b32 s{s_w}, v1')
        a(f's_and_b32 s{s_t0}, s2, 7')
        a(f's_lshr_b32 s{s_t1}, s2, 3')
        a(f's_lshl_b32 s{s_h}, s{s_t0}, 2')
        a(f's_and_b32 s{s_t0}, s{s_t1}, 3')
        a(f's_add_u32 s{s_h}, s{s_h}, s{s_t0}')
        a(f's_lshr_b32 s{s_i}, s{s_t1}, 2')
        a(f's_add_u32 s{s_g1}, s{s_i}, 1')
        a(f's_lshl_b32 s{s_g1}, s{s_g1}, 2')
        a(f's_lshl_b32 s36, s{s_i}, 2')
        a(f's_add_u32 s36, s36, s{s_w}')
        a(f's_lshl_b32 s37, s{s_i}, 2')
        a(f's_sub_u32 s37, 60, s37')
        a(f's_add_u32 s37, s37, s{s_w}')
        vq = VmQueue()
        P = Proj(a, vq, s_w, 16384, 65536, ACC=64, FB=PFB, fbk='a', VA=8, V_L16=V_L16, VT=33, SG=40, wflags=(' nt' if opt.get('nt', True) else ''))
        P.setup_addrs(set_l16=False)
        a('s_waitcnt lgkmcnt(0)')
        make_srd(a, S_X, 64, 0, 2*MB); make_srd(a, S_WQ, 66, 0, 4*MB)
        init = [f's_lshl_b32 s{P.s_a0}, s36, 15', f's_lshl_b32 s{P.s_a1}, s37, 15',
                f's_lshl_b32 s{P.s_wo}, s{s_w}, 17', f's_lshl_b32 s{s_t0}, s{s_h}, 8', f's_add_u32 s{P.s_wo}, s{P.s_wo}, s{s_t0}']
        qpass = [dict(swap=False, srdA=S_X, srdW=S_WQ, init=init, epi=lambda: None, acck='v')]
        P.prologue(qpass[0])
        a(f's_lshl_b32 s{s_t0}, s{s_h}, 19')
        a(f's_lshl_b32 s{s_t1}, s{s_i}, 15')
        a(f's_sub_u32 s{s_t1}, 0x80000, s{s_t1}')
        for S_, base in ((S_K, WS_K), (S_V, WS_V)):
            a(f's_add_u32 s{S_}, s34, {base}')
            a(f's_addc_u32 s{S_+1}, s35, 0')
            a(f's_add_u32 s{S_}, s{S_}, s{s_t0}')
            a(f's_addc_u32 s{S_+1}, s{S_+1}, 0')
            a(f's_and_b32 s{S_+1}, s{S_+1}, 0xffff')
            a(f's_mov_b32 s{S_+2}, s{s_t1}')
            a(f's_mov_b32 s{S_+3}, 0x20000')
        make_srd(a, S_C, 34, WS_CTX, 16*MB)
        a(f's_lshl_b32 s{s_ks}, s{s_w}, 11')
        a(f's_mov_b32 s{s_vs}, s{s_ks}')
        a(f's_mov_b32 s{s_thr}, {THR}')
        a(f'v_mov_b32 v{V_NEG}, 0xf149f2ca')
        a(f'v_mov_b32 v{V_MASK}, 0xffff')
        a(f'v_mov_b32 v{V_VBASE}, 0x10000')
        a(f'v_mov_b32 v{V_KA}, v{V_L16}')
        a(f'v_add_u32 v{V_VA}, 0x10000, v{V_L16}')
        a(f'v_and_b32 v3, 31, v2')
        a(f'v_lshrrev_b32 v4, 5, v2')
        a(f'v_lshlrev_b32 v4, 2, v4')
        a(f'v_sub_u32 v3, v3, v4')
        a(f's_lshl_b32 s{s_t0}, s36, 5')
        a(f'v_add_u32 v{V_RELA}, s{s_t0}, v3')
        a(f's_lshl_b32 s{s_t0}, s37, 5')
        a(f'v_add_u32 v{V_RELB}, s{s_t0}, v3')
        for e in range(128): a(f'v_accvgpr_write_b32 a{e}, 0')
        for qt, d in ((36, 56), (37, 58)):
            a(f's_lshl_b32 s{s_t0}, s{qt}, 5')
            a(f's_add_u32 s{s_t0}, s{s_t0}, s{s_h}')
            a(f's_lshl_b32 s{d}, s{s_t0}, 13')
            a(f's_add_u32 s{d+1}, s{d}, 4096')
        P.start_compute()
        self.stamp()
        def kv_groups(kind, nb):
            G = []
            for b in range(nb):
                for grp in self.dma_group(kind, 1): G.append((grp, 'kv'))
            return G
        KG = kv_groups('K', 6); VG = kv_groups('V', 4)
        def xl(p, t): return KG[:6] if t == 5 else (VG[:2] if t == 6 else [])
        def xe(p, t): return KG[6:] if t == 6 else (VG[2:] if t == 7 else [])
        P.run(qpass, extra_early=xe, extra_late=xl)
        self.stamp()
        a('s_nop 7')
        for st, Q in ((0, QA), (1, QB)):
            for dt in range(4):
                A = 64 + 16*(4*st+dt)
                for t in range(2):
                    for k in range(4):
                        a(f'v_cvt_pk_bf16_f32 v{Q+4*(2*dt+t)+k}, v{A+8*t+2*k}, v{A+8*t+2*k+1}')
        a(f's_waitcnt vmcnt({vm[("pro",-3)]})')
        a('s_barrier')
        for grp in self.dma_group('K', 1):
            for l in grp: a(l)
        for j in range(D//2):
            a(f'ds_read_b128 {ar(FR+4*j,4)}, v{V_KA} offset:{j*1024}')
        self.emit_iter(Iter(1, None, None, 1, 0, czero=True), ('pro', -2))
        self.emit_init()
        self.stamp()
        if opt.get('pf', True):
            a(f's_load_dwordx2 s[68:69], s[0:1], {KA_W1}')
            a(f's_load_dwordx2 s[70:71], s[0:1], {KA_WO}')
            a(f's_load_dwordx2 s[72:73], s[0:1], {KA_W2}')
            a(f'v_lshlrev_b32 v252, 3, v{V_L16}')
            a(f's_sub_u32 s{s_t0}, s2, 32'); a(f's_lshl_b32 s{s_t0}, s{s_t0}, 2'); a(f's_add_u32 s{s_t0}, s{s_t0}, s{s_w}')
            a(f's_lshl_b32 s74, s{s_t0}, 13')
            a(f's_mul_i32 s75, s{s_t0}, 4736')
            a('s_waitcnt lgkmcnt(0)')
        fill = Asm()
        make_srd(fill, 76, 34, WS_PART, 8*MB)
        fill(f's_lshl_b32 s{s_t0}, s2, 2'); fill(f's_add_u32 s{s_t0}, s{s_t0}, s{s_w}'); fill(f's_lshl_b32 s{s_t0}, s{s_t0}, 13')
        fill(f's_add_u32 s{s_t1}, s{s_t0}, 4096')
        for e in range(4): fill(f'v_mov_b32 v{V_ST+e}, -1')
        for k in range(8):
            fill(f'buffer_store_dwordx4 v[{V_ST}:{V_ST+3}], v{V_L16}, s[76:79], s{s_t0 if k < 4 else s_t1} offen offset:{(k % 4)*1024}')
        self.emit_iter(Iter(1, 'init', None, 1, 1), ('pro', -1), extra_post=fill.lines)
        self.stamp()
        a(f's_cmp_eq_u32 s{s_i}, 0')
        a(f's_cbranch_scc1 {N}_trans')
        a(f's_sub_u32 s{s_cnt}, s{s_g1}, 6')
        a(f's_lshr_b32 s{s_cnt}, s{s_cnt}, 1')
        a('.p2align 6')
        a.label(f'{N}_p1loop')
        self.emit_iter(Iter(1, '1', 1, 1, 0), ('p1loop', 0))
        self.emit_iter(Iter(1, '1', 1, 1, 1), ('p1loop', 1))
        a(f's_sub_u32 s{s_cnt}, s{s_cnt}, 1')
        a(f's_cmp_lg_u32 s{s_cnt}, 0')
        a(f's_cbranch_scc1 {N}_p1loop')
        def pf(ptr, nb, so):
            if not opt.get('pf', True): return []
            l = Asm(); make_srd(l, 76, ptr, 0, nb); l(f'buffer_load_dword v253, v252, s[76:79], s{so} offen')
            return l.lines
        self.emit_iter(Iter(1, '1', 1, 1, 0), ('p1peel', 0), extra_post=pf(68, 2048*3584, 74))
        def relA(k):
            return [f's_sub_u32 s{s_t1}, s{s_g1}, {k}', f's_lshl_b32 s{s_t1}, s{s_t1}, 5', f'v_subrev_u32 v{V_REL[0]}, s{s_t1}, v{V_RELA}']
        self.emit_iter(Iter(1, '1m', 1, 1, 1), ('p1peel', 1), extra_pre=relA(4), extra_post=pf(72, 1792*4096, 74))
        for l in pf(70, 4*MB, 75): a(l)
        a.label(f'{N}_trans')
        self.stamp()
        self.emit_iter(Iter(1, '1m', 1, 1, 0), ('trans', -4), extra_pre=relA(3))
        sw = [f's_lshl_b32 s{s_t0}, s{s_w}, 11']
        self.emit_iter(Iter(1, '1m', 1, 2, 1), ('trans', -3), extra_pre=relA(2) + sw + [f's_add_u32 s{s_ks}, s{s_ks}, s{s_t0}'])
        self.emit_iter(Iter(2, '1m', 1, 2, 0), ('trans', -2), extra_pre=relA(1))
        def relB(expr_lines):
            return expr_lines + [f'v_subrev_u32 v{V_REL[0]}, s{s_t1}, v{V_RELB}', f'v_subrev_u32 v{V_REL[1]}, 32, v{V_REL[0]}']
        self.emit_iter(Iter(2, '2m', 1, 2, 1), ('trans', -1), extra_pre=relB([f's_lshl_b32 s{s_t1}, s{s_g1}, 5']))
        self.stamp()
        a('s_nop 12')
        self.epilogue_tile(OA, LA, 56)
        a(f's_lshl_b32 s{s_t0}, s{s_w}, 11')
        a(f's_add_u32 s{s_vs}, s{s_vs}, s{s_t0}')
        a(f's_cmp_eq_u32 s{s_i}, 7')
        a(f's_cbranch_scc1 {N}_epi')
        a(f's_sub_u32 s{s_cnt}, 30, s{s_g1}')
        a(f's_lshr_b32 s{s_cnt}, s{s_cnt}, 1')
        a('.p2align 6')
        a.label(f'{N}_p2loop')
        self.emit_iter(Iter(2, '2', 2, 2, 0), ('p2loop', 0))
        self.emit_iter(Iter(2, '2', 2, 2, 1), ('p2loop', 1))
        a(f's_sub_u32 s{s_cnt}, s{s_cnt}, 1')
        a(f's_cmp_lg_u32 s{s_cnt}, 0')
        a(f's_cbranch_scc1 {N}_p2loop')
        self.emit_iter(Iter(2, '2', 2, 2, 0), ('p2peel', 0))
        relB32 = [f's_sub_u32 s{s_t1}, 64, s{s_g1}', f's_lshl_b32 s{s_t1}, s{s_t1}, 5']
        self.emit_iter(Iter(2, '2m', 2, 2, 1), ('p2peel', 1), extra_pre=relB(relB32))
        a.label(f'{N}_epi')
        self.stamp()
        relB33 = [f's_sub_u32 s{s_t1}, 66, s{s_g1}', f's_lshl_b32 s{s_t1}, s{s_t1}, 5']
        it = Iter(None, '2m', 2, None, 0); it.nov = True
        a('s_waitcnt lgkmcnt(0)')
        self.emit_iter(it, ('epi', 32), extra_pre=relB(relB33))
        it = Iter(None, None, 2, None, 1); it.nov = True
        a('s_nop 1')
        self.emit_iter(it, None)
        self.stamp()
        if opt.get('mlp', True):
            a('s_waitcnt vmcnt(0) lgkmcnt(0)')
            a('s_barrier')
            a(f's_lshr_b32 s{s_t0}, s2, 3')
            a(f's_cmp_ge_u32 s{s_t0}, 28')
            a(f's_cbranch_scc1 {N}_nomlp')
            def epiB(vq2):
                a('s_nop 7')
                self.epilogue_tile(OB, LB, 58, vq2)
                self.stamp()
            gen_t2.emit_mlp1_body(a, N + '_m', mid=epiB)
            self.stamp()
            self.dump_stamps()
            a('s_endpgm')
            a.label(f'{N}_nomlp')
        a('s_nop 15')
        self.epilogue_tile(OB, LB, 58)
        a('s_waitcnt vmcnt(0)')
        self.stamp()
        self.dump_stamps()
        a.label(f'{N}_end')
        a('s_endpgm')
        for u, it in self.slow: self.emit_slow(u, it)
        self.emit_rescale()
```

```python
from asmlib import *
from layout import *
from gen_proj2 import VmQueue, v, ar
from gen_proj import make_srd

MF = 'v_mfma_f32_32x32x16_bf16'
NY, NO = 7, 16
NS = NY + NO
SLOT = 32768

def emit_final(a, N='fin', NSL=4, **opt):
    S_WO, S_W2, S_CTX, S_U, S_G, S_B2, S_OUT, S_P, S_D = 4, 8, 12, 16, 24, 28, 32, 36, 56
    s_w, s_sb, s_mb, s_p = 20, 21, 22, 23
    s_sl, s_fr = 40, 41
    s_fill, s_rd, s_w4k, s_t, s_t1, s_t2, s_tile = 42, 43, 44, 45, 46, 47, 48
    ACCY, ACCO = 64, 128; FB = [192, 212]
    VL = 1; V_L16 = 2; T = 32
    V_TB = 8
    V_TA = 16
    V_LA = 21
    V_WO = 24; V_W2 = 28
    V_G = 40; V_B2 = 41; V_OA = 42; V_1G = 43
    st_ = Stamps(a, opt.get('diag'))
    a('s_cmp_ge_u32 s2, 256')
    a(f's_cbranch_scc1 {N}_end')
    a(f's_load_dwordx2 s[64:65], s[0:1], {KA_WO}')
    a(f's_load_dwordx4 s[68:71], s[0:1], {KA_W2}')
    a(f's_load_dwordx4 s[72:75], s[0:1], {KA_OUT}')
    a(f's_load_dwordx2 s[76:77], s[0:1], {KA_WS}')
    a('v_lshrrev_b32 v3, 6, v0')
    a(f'v_and_b32 v{VL}, 63, v0')
    a(f's_and_b32 s{s_t}, s2, 7')
    a(f'v_readfirstlane_b32 s{s_w}, v3')
    a(f's_lshr_b32 s{s_t1}, s2, 3')
    a(f's_lshr_b32 s{s_p}, s{s_t}, 1')
    a(f's_and_b32 s{s_t}, s{s_t}, 1'); a(f's_lshl_b32 s{s_t}, s{s_t}, 3'); a(f's_lshr_b32 s{s_t2}, s{s_t1}, 2'); a(f's_add_u32 s{s_sb}, s{s_t}, s{s_t2}')
    a(f's_and_b32 s{s_mb}, s{s_t1}, 3')
    a(f's_lshl_b32 s{s_tile}, s{s_sb}, 2'); a(f's_add_u32 s{s_tile}, s{s_tile}, s{s_mb}')
    st_('start')
    a(f'v_lshlrev_b32 v{V_L16}, 4, v{VL}')
    a(f's_lshl_b32 s{s_w4k}, s{s_w}, 12')
    a(f's_mov_b32 s{s_fill}, 0'); a(f's_mov_b32 s{s_rd}, 0')
    a(f'v_lshrrev_b32 v{T}, 4, v{VL}')
    a(f'v_bfe_u32 v{T+1}, v{VL}, 2, 2')
    a(f'v_xor_b32 v{T+1}, v{T+1}, v{T}')
    a(f'v_lshlrev_b32 v{T+1}, 6, v{T+1}')
    a(f'v_and_b32 v{T+2}, 3, v{VL}')
    a(f'v_lshl_add_u32 v{T+1}, v{T+2}, 4, v{T+1}')
    a(f'v_lshl_add_u32 v{T+3}, v{T}, 12, v{T+1}')
    a(f'v_lshl_add_u32 v{T+4}, v{T}, 10, v{T+1}')
    for j in range(4):
        a(f'v_add_u32 v{V_W2+j}, {j*(4*4096-1024)}, v{T+3}')
        a(f'v_add_u32 v{V_WO+j}, {j*(4*1024-1024)}, v{T+4}')
    a(f'v_lshrrev_b32 v{T}, 5, v{VL}')
    a(f'v_bfe_u32 v{T+1}, v{VL}, 2, 2')
    a(f'v_lshl_add_u32 v{T+2}, v{T}, 2, v{T+1}')
    a(f'v_lshlrev_b32 v{T+2}, 8, v{T+2}')
    a(f'v_bfe_u32 v{T+3}, v{VL}, 4, 1')
    a(f'v_lshl_add_u32 v{T+2}, v{T+3}, 5, v{T+2}')
    a(f'v_and_b32 v{T+3}, 3, v{VL}')
    a(f'v_lshl_add_u32 v{T+2}, v{T+3}, 3, v{T+2}')
    for tl in range(4):
        a(f'v_xor_b32 v{T+3}, {tl}, v{T+1}')
        a(f'v_lshl_add_u32 v{V_TB+tl}, v{T+3}, 6, v{T+2}')
    a(f'v_xor_b32 v{T+3}, s{s_w}, v{T+1}')
    a(f'v_lshl_add_u32 v{V_TB+4}, v{T+3}, 6, v{T+2}')
    a(f'v_and_b32 v{T+4}, 31, v{VL}')
    a(f'v_lshlrev_b32 v{T+5}, 2, v{T+4}')
    a(f'v_lshlrev_b32 v{T+6}, 1, v{T+4}')
    a(f'v_lshlrev_b32 v{V_OA}, 10, v{T+4}')
    a(f'v_lshl_add_u32 v{V_OA}, v{T}, 4, v{V_OA}')
    a('s_waitcnt lgkmcnt(0)')
    make_srd(a, S_WO, 64, 0, 4*MB); make_srd(a, S_W2, 68, 0, 1792*4096); make_srd(a, S_B2, 70, 0, 4096)
    make_srd(a, S_OUT, 72, 0, 2*MB)
    make_srd(a, S_CTX, 76, WS_CTX, 16*MB); make_srd(a, S_U, 76, WS_U, 16*112*1024); make_srd(a, S_G, 76, WS_G, 8192)
    make_srd(a, S_P, 76, WS_PART, 16*MB)
    vq = VmQueue()
    a(f's_lshl_b32 s{s_t}, s{s_sb}, 2'); a(f's_add_u32 s{s_t}, s{s_t}, s{s_w}')
    a(f's_lshl_b32 s{s_t1}, s{s_t}, 7'); a(f's_lshl_b32 s{s_t2}, s{s_t}, 6')
    a(f'buffer_load_dword v{V_G}, v{T+5}, s[{S_G}:{S_G+3}], s{s_t1} offen'); vq.push('g')
    a(f'buffer_load_ushort v{V_B2}, v{T+6}, s[{S_B2}:{S_B2+3}], s{s_t2} offen'); vq.push('g')

    if opt.get('tlb', True):
        a(f'v_mov_b32 v3, 0')
        a(f's_lshl_b32 s{s_t}, s{s_tile}, 17'); a(f's_mul_i32 s{s_t1}, s{s_p}, {32768+8192}'); a(f's_add_u32 s{s_t}, s{s_t}, s{s_t1}')
        a(f'buffer_load_dword v6, v3, s[{S_P}:{S_P+3}], s{s_t} offen sc1'); vq.push('g')
        a(f's_lshl_b32 s{s_t}, s{s_sb}, 17')
        a(f'buffer_load_dword v6, v3, s[{S_OUT}:{S_OUT+3}], s{s_t} offen sc1'); vq.push('g')

    def part(t): return ('Y', t) if t < NY else ('O', t-NY)
    def switch(t):
        if t == 0:
            return [f's_mul_i32 s{s_sl}, s{s_p}, {448*4096}', f's_lshl_b32 s{s_t}, s{s_w}, 16', f's_add_u32 s{s_sl}, s{s_sl}, s{s_t}',
                    f's_lshl_b32 s{s_t}, s{s_sb}, 8', f's_add_u32 s{s_sl}, s{s_sl}, s{s_t}',
                    f's_lshl_b32 s{s_t}, s{s_mb}, 2', f's_add_u32 s{s_t}, s{s_t}, s{s_w}', f's_mul_i32 s{s_fr}, s{s_t}, {112*1024}',
                    f's_mul_i32 s{s_t}, s{s_p}, {28*1024}', f's_add_u32 s{s_fr}, s{s_fr}, s{s_t}']
        if t == NY:
            return [f's_lshl_b32 s{s_sl}, s{s_p}, 20', f's_lshl_b32 s{s_t}, s{s_w}, 14', f's_add_u32 s{s_sl}, s{s_sl}, s{s_t}',
                    f's_lshl_b32 s{s_t}, s{s_mb}, 8', f's_add_u32 s{s_sl}, s{s_sl}, s{s_t}',
                    f's_lshl_b32 s{s_t}, s{s_sb}, 2', f's_add_u32 s{s_t}, s{s_t}, s{s_w}', f's_lshl_b32 s{s_fr}, s{s_t}, 18',
                    f's_lshl_b32 s{s_t}, s{s_p}, 16', f's_add_u32 s{s_fr}, s{s_fr}, s{s_t}']
        return []
    def adv(s): return [f's_add_u32 s{s}, s{s}, {SLOT}', f's_cmp_ge_u32 s{s}, {NSL*SLOT}', f's_cselect_b32 s{s}, 0, s{s}']
    def loads(t):
        p, _ = part(t)
        srdS, vo, step = (S_W2, V_W2, 64*4096) if p == 'Y' else (S_WO, V_WO, 64*1024)
        srdF = S_U if p == 'Y' else S_CTX
        g = []
        for j in range(4):
            l = []
            if j == 0: l += switch(t) + [f's_add_u32 s{s_t2}, s{s_fill}, s{s_w4k}', f's_mov_b32 m0, s{s_t2}', 's_nop 0']
            l.append(f'buffer_load_dwordx4 v{vo+j}, s[{srdS}:{srdS+3}], s{s_sl} offen' + (f' offset:{j*1024}' if j else '') + ' lds')
            if j == 3: l.append(f's_add_u32 s{s_sl}, s{s_sl}, {step}')
            g.append((l, t))
        for j in range(4):
            l = []
            if j == 0: l += [f's_add_u32 m0, s{s_t2}, 16384', 's_nop 0']
            l.append(f'buffer_load_dwordx4 v{V_L16}, s[{srdF}:{srdF+3}], s{s_fr} offen' + (f' offset:{j*1024}' if j else '') + ' lds')
            if j == 3: l += [f's_add_u32 s{s_fr}, s{s_fr}, 4096'] + adv(s_fill)
            g.append((l, t))
        return g
    def emit_g(g):
        for l in g[0]: a(l)
        vq.push(g[1])
    def addr_update():
        l = [f'v_add_u32 v{V_TA+k}, s{s_rd}, v{V_TB+k}' for k in range(5)]
        l.append(f'v_add_u32 v{V_LA}, s{s_rd}, v{V_L16}')
        return l + adv(s_rd)
    def reads(t, ks, buf):
        p, _ = part(t); F = FB[buf]; l = []
        if p == 'O':
            l.append(f's_nop 0' if False else f'ds_read_b128 {v(F+16,4)}, v{V_LA+1} offset:{ks*1024}')
            for mt in range(4):
                l.append(f'ds_read_b64_tr_b16 {v(F+4*mt,2)}, v{V_TA+mt} offset:{ks*4096}')
                l.append(f'ds_read_b64_tr_b16 {v(F+4*mt+2,2)}, v{V_TA+mt} offset:{ks*4096+2048}')
        else:
            l.append(f'ds_read_b64_tr_b16 {v(F+16,2)}, v{V_TA+4} offset:{ks*4096}')
            l.append(f'ds_read_b64_tr_b16 {v(F+18,2)}, v{V_TA+4} offset:{ks*4096+2048}')
            for mt in range(4):
                l.append(f'ds_read_b128 {v(F+4*mt,4)}, v{V_LA} offset:{16384+mt*4096+ks*1024}')
        return l
    def addr_update2():
        return [f's_add_u32 s{s_t1}, s{s_w4k}, 16384', f's_add_u32 s{s_t1}, s{s_t1}, s{s_rd}', f'v_add_u32 v{V_LA+1}, s{s_t1}, v{V_L16}']
    def mfmas(t, ks, buf):
        p, tt = part(t); F = FB[buf]; first = tt == 0 and ks == 0
        A0 = ACCY if p == 'Y' else ACCO
        return [f'{MF} {v(A0+16*mt,16)}, {v(F+4*mt,4)}, {v(F+16,4)}, ' + ('0' if first else v(A0+16*mt,16)) for mt in range(4)]

    for t in range(NSL-1):
        for g in loads(t): emit_g(g)
    pend = loads(NSL-1) if False else []
    vq.wait_for(a, 0)
    a('s_barrier')
    for l in addr_update2() + addr_update() + reads(0, 0, 0): a(l)
    st_('go')
    for t in range(NS):
        tn = t + NSL - 1
        gs = loads(tn) if tn < NS else []
        st_(f's{t}')
        for ks in range(4):
            buf = ks & 1
            a('s_waitcnt lgkmcnt(0)')
            pre = []
            if ks == 3 and t+1 < NS:
                vq.wait_for(a, t+1)
                a('s_barrier')
                pre = addr_update2() + addr_update()
            mf = mfmas(t, ks, buf)
            if ks < 3: rd = reads(t, ks+1, buf ^ 1)
            elif t+1 < NS: rd = reads(t+1, 0, buf ^ 1)
            else: rd = []
            n = len(rd); per = -(-n // 3)
            for k, m in enumerate(mf):
                a(m)
                if k == 0:
                    for l in pre: a(l)
                for l in rd[per*k:per*(k+1)]: a(l)
                if ks < 3 and gs and ((ks*4+k) % 3 != 2):
                    emit_g(gs.pop(0))
        assert not gs
    st_('loopend')
    a(f'v_sub_f32 v{V_1G}, 1.0, v{V_G}')
    a(f's_lshl_b32 s{s_t}, s{s_tile}, 17')
    a(f's_lshl_b32 s{s_t1}, s{s_p}, 13'); a(f's_lshl_b32 s{s_t2}, s{s_w}, 11'); a(f's_add_u32 s{s_t1}, s{s_t1}, s{s_t2}'); a(f's_add_u32 s{s_t1}, s{s_t1}, s{s_t}')
    a('s_nop 4')
    OWN = 192
    for mt in range(4):
        o = ACCO+16*mt; y = ACCY+16*mt
        for e in range(16): a(f'v_mul_f32 v{o+e}, v{o+e}, v{V_G}')
        for e in range(16): a(f'v_fmac_f32 v{o+e}, v{y+e}, v{V_1G}')
        a(f's_cmp_eq_u32 s{s_p}, {mt}')
        a(f's_cbranch_scc1 {N}_own{mt}')
        a(f's_add_u32 s{s_t2}, s{s_t1}, {mt*32768}')
        for k in range(8): a(f'v_cvt_pk_bf16_f32 v{o+k}, v{o+2*k}, v{o+2*k+1}')
        for q in range(2):
            a(f'buffer_store_dwordx4 {v(o+4*q,4)}, v{V_L16}, s[{S_P}:{S_P+3}], s{s_t2} offen offset:{q*1024} sc1')
        a(f's_branch {N}_next{mt}')
        a.label(f'{N}_own{mt}')
        for e in range(16): a(f'v_mov_b32 v{OWN+e}, v{o+e}')
        a.label(f'{N}_next{mt}')
    st_('published')
    a(f's_lshl_b32 s{s_t}, s{s_tile}, 17'); a(f's_lshl_b32 s{s_t1}, s{s_p}, 15'); a(f's_add_u32 s{s_t}, s{s_t}, s{s_t1}')
    a(f's_lshl_b32 s{s_t1}, s{s_w}, 11'); a(f's_add_u32 s{s_t}, s{s_t}, s{s_t1}')
    for k in range(1, 4):
        a(f's_add_u32 s{s_t1}, s{s_p}, {k}'); a(f's_and_b32 s{s_t1}, s{s_t1}, 3'); a(f's_lshl_b32 s{s_t1}, s{s_t1}, 13'); a(f's_add_u32 s{50+k}, s{s_t1}, s{s_t}')
    a('s_mov_b32 s54, 0')
    a.label(f'{N}_poll')
    for k in range(1, 4):
        for q in range(2):
            a(f'buffer_load_dwordx4 {v(ACCY+8*k+4*q,4)}, v{V_L16}, s[{S_P}:{S_P+3}], s{50+k} offen offset:{q*1024} sc1')
    a('s_add_u32 s54, s54, 1')
    a('s_waitcnt vmcnt(0)')
    R0 = ACCY+8
    a(f'v_max3_u32 v{T}, v{R0}, v{R0+1}, v{R0+2}')
    for k in range(3, 23, 2): a(f'v_max3_u32 v{T}, v{T}, v{R0+k}, v{R0+k+1}')
    a(f'v_max_u32 v{T}, v{T}, v{R0+23}')
    a(f'v_cmp_eq_u32 vcc, -1, v{T}')
    a('s_cmp_ge_u32 s54, 0x20000')
    a(f's_cbranch_scc1 {N}_poll_end')
    a(f's_cbranch_vccnz {N}_poll')
    a.label(f'{N}_poll_end')
    st_('gathered')
    a(f'v_lshlrev_b32 v{V_B2}, 16, v{V_B2}')
    a(f'v_mul_f32 v{V_B2}, v{V_B2}, v{V_1G}')
    D = OWN
    for e in range(16): a(f'v_add_f32 v{D+e}, v{D+e}, v{V_B2}')
    for k in range(1, 4):
        for q in range(8):
            r = ACCY+8*k+q
            a(f'v_lshlrev_b32 v{T}, 16, v{r}'); a(f'v_and_b32 v{T+1}, 0xffff0000, v{r}')
            a(f'v_add_f32 v{D+2*q}, v{D+2*q}, v{T}'); a(f'v_add_f32 v{D+2*q+1}, v{D+2*q+1}, v{T+1}')
    X = ACCO
    for jj in range(4):
        a(f'v_cvt_pk_bf16_f32 v{X+2*jj}, v{D+4*jj}, v{D+4*jj+1}')
        a(f'v_cvt_pk_bf16_f32 v{X+2*jj+1}, v{D+4*jj+2}, v{D+4*jj+3}')
    a(f's_lshl_b32 s{s_t}, s{s_sb}, 17'); a(f's_lshl_b32 s{s_t1}, s{s_w}, 15'); a(f's_add_u32 s{s_t}, s{s_t}, s{s_t1}')
    a(f's_lshl_b32 s{s_t1}, s{s_mb}, 8'); a(f's_add_u32 s{s_t}, s{s_t}, s{s_t1}')
    a(f's_lshl_b32 s{s_t1}, s{s_p}, 6'); a(f's_add_u32 s{s_t}, s{s_t}, s{s_t1}')
    for pr in range(2):
        b = X+4*pr
        a(f'v_permlane32_swap_b32 v{b}, v{b+2}')
        a(f'v_permlane32_swap_b32 v{b+1}, v{b+3}')
        a('s_nop 1')
        a(f'buffer_store_dwordx4 {v(b,4)}, v{V_OA}, s[{S_OUT}:{S_OUT+3}], s{s_t} offen offset:{32*pr}')
    a('s_waitcnt vmcnt(0)')
    st_('end')
    st_.dump(100*MB, s_w, 240)
    a.label(f'{N}_end')
    a('s_endpgm')
```

```python
from asmlib import *
from layout import *

MF = 'v_mfma_f32_32x32x16_bf16'
def v(b, n=1): return f'v{b}' if n == 1 else f'v[{b}:{b+n-1}]'
def ar(b, n=1): return f'a{b}' if n == 1 else f'a[{b}:{b+n-1}]'
SLOT = 49152

class VmQueue:
    def __init__(self): self.q = []
    def push(self, tag): self.q.append(tag)
    def count_for(self, tag):
        idx = [i for i, t in enumerate(self.q) if t == tag]
        if not idx: return None
        return len(self.q) - 1 - idx[-1]
    def wait_for(self, a, tag):
        n = self.count_for(tag)
        if n is None: return
        assert n <= 63
        a(f's_waitcnt vmcnt({n})')
        self.q = self.q[len(self.q)-n:] if n else []

class Proj:
    def __init__(self, a, vq, s_w, ring_lo, ring_start, ACC=64, FB=(0, 24), fbk='a', VA=8, V_L16=32, VT=33, SG=40, stamps=None, wflags='', opt=None):
        self.a, self.vq, self.s_w = a, vq, s_w
        self.lo, self.start, self.hi = ring_lo, ring_start, ring_lo + 3*SLOT
        self.ACC, self.FB = ACC, FB
        self.fr = ar if fbk == 'a' else v
        self.V_AR, self.V_WR, self.V_AB, self.V_WB, self.V_AD, self.V_WD = VA, VA+4, VA+8, VA+12, VA+16, VA+20
        self.V_L16, self.VT = V_L16, VT
        (self.s_a0, self.s_a1, self.s_wo, self.s_fill, self.s_rd, self.s_wW, self.s_wA, self.s_t) = range(SG, SG+8)
        self.st = stamps or (lambda n='': None)
        self.wflags = wflags
        self.opt = opt or {}
        self.lq = []

    def setup_addrs(self, set_l16=True):
        a = self.a; T = self.VT; w = self.s_w
        a(f'v_and_b32 v{T}, 63, v0')
        if set_l16: a(f'v_lshlrev_b32 v{self.V_L16}, 4, v{T}')
        a(f's_lshl_b32 s{self.s_wW}, s{w}, 12')
        a(f's_lshl_b32 s{self.s_wA}, s{w}, 13')
        a(f's_add_u32 s{self.s_wA}, s{self.s_wA}, 16384')
        a(f's_mov_b32 s{self.s_fill}, {self.start}')
        a(f's_mov_b32 s{self.s_rd}, {self.start}')
        a(f'v_and_b32 v{T+1}, 31, v{T}')
        a(f'v_lshrrev_b32 v{T+2}, 5, v{T}')
        a(f'v_bfe_u32 v{T+3}, v{T+1}, 1, 3')
        a(f'v_xor_b32 v{T+3}, v{T+3}, v{T+2}')
        a(f'v_lshlrev_b32 v{T+3}, 4, v{T+3}')
        a(f'v_lshl_add_u32 v{T+3}, v{T+1}, 7, v{T+3}')
        a(f'v_add_u32 v{self.V_AB}, s{self.s_wA}, v{T+3}')
        for ks in range(1, 4):
            a(f'v_xor_b32 v{self.V_AB+ks}, {ks << 5}, v{self.V_AB}')
        a(f'v_bfe_u32 v{T+3}, v{T}, 2, 2')
        a(f'v_lshl_add_u32 v{T+4}, v{T+2}, 3, v{T+3}')
        a(f'v_lshlrev_b32 v{T+4}, 8, v{T+4}')
        a(f'v_bfe_u32 v{T+5}, v{T}, 4, 1')
        a(f'v_lshl_add_u32 v{T+4}, v{T+5}, 5, v{T+4}')
        a(f'v_and_b32 v{T+5}, 3, v{T}')
        a(f'v_lshl_add_u32 v{T+4}, v{T+5}, 3, v{T+4}')
        for dt in range(4):
            a(f'v_xor_b32 v{T+5}, {dt}, v{T+3}')
            a(f'v_lshl_add_u32 v{self.V_WB+dt}, v{T+5}, 6, v{T+4}')
        a(f'v_lshrrev_b32 v{T+3}, 3, v{T}')
        a(f'v_and_b32 v{T+4}, 7, v{T}')
        a(f'v_lshrrev_b32 v{T+5}, 1, v{T+3}')
        for j in range(4):
            a(f'v_xor_b32 v{T+6}, v{T+4}, v{T+5}')
            if j & 1: a(f'v_xor_b32 v{T+6}, 4, v{T+6}')
            a(f'v_lshlrev_b32 v{T+6}, 4, v{T+6}')
            a(f'v_lshl_add_u32 v{T+6}, v{T+3}, 10, v{T+6}')
            a(f'v_add_u32 v{self.V_AD+j}, {j*(8192-1024)}, v{T+6}')
        a(f'v_lshrrev_b32 v{T+3}, 4, v{T}')
        a(f'v_bfe_u32 v{T+4}, v{T}, 2, 2')
        a(f'v_xor_b32 v{T+4}, v{T+4}, v{T+3}')
        a(f'v_lshlrev_b32 v{T+4}, 6, v{T+4}')
        a(f'v_and_b32 v{T+5}, 3, v{T}')
        a(f'v_lshl_add_u32 v{T+4}, v{T+5}, 4, v{T+4}')
        a(f'v_lshl_add_u32 v{T+4}, v{T+3}, 13, v{T+4}')
        for j in range(4):
            a(f'v_add_u32 v{self.V_WD+j}, {j*(32768-1024)}, v{T+4}')

    def adv(self, s):
        return [f's_add_u32 s{s}, s{s}, {SLOT}', f's_cmp_ge_u32 s{s}, {self.hi}', f's_cselect_b32 s{s}, {self.lo}, s{s}']

    def dma_stage(self, srdA, srdW, tag, pre=None):
        g = []
        def ld(vo, srd_, so, off, fl=''): return f'buffer_load_dwordx4 v{vo}, s[{srd_}:{srd_+3}], s{so} offen' + (f' offset:{off}' if off else '') + fl + ' lds'
        for j in range(4):
            l = []
            if j == 0: l += list(pre or []) + [f's_add_u32 m0, s{self.s_fill}, s{self.s_wW}', 's_nop 0']
            l.append(ld(self.V_WD+j, srdW, self.s_wo, j*1024, self.wflags))
            if j == 3: l.append(f's_add_u32 s{self.s_wo}, s{self.s_wo}, {64*8192}')
            g.append((l, tag))
        for t, so in ((0, self.s_a0), (1, self.s_a1)):
            for j in range(4):
                l = []
                if j == 0:
                    if t == 0: l += [f's_add_u32 s{self.s_t}, s{self.s_fill}, s{self.s_wA}', f's_mov_b32 m0, s{self.s_t}', 's_nop 0']
                    else: l += [f's_add_u32 m0, s{self.s_t}, 4096', 's_nop 0']
                l.append(ld(self.V_AD+j, srdA, so, j*1024))
                if j == 3: l.append(f's_add_u32 s{so}, s{so}, 128')
                g.append((l, tag))
        g[-1][0].extend(self.adv(self.s_fill))
        return g

    def emit_group(self, g):
        lines, tag = g
        for l in lines: self.a(l)
        if any(l.startswith('buffer_') for l in lines): self.vq.push(tag)

    def read_addr_update(self):
        l = []
        for k in range(4):
            l.append(f'v_add_u32 v{self.V_AR+k}, s{self.s_rd}, v{self.V_AB+k}')
            l.append(f'v_add_u32 v{self.V_WR+k}, s{self.s_rd}, v{self.V_WB+k}')
        return l + self.adv(self.s_rd)

    def kstep_reads(self, ks, buf):
        F = self.FB[buf]; fr = self.fr
        def act(t): return [f'ds_read_b128 {fr(F+16+4*t,4)}, v{self.V_AR+ks} offset:{t*4096}']
        def wf(dt): return [f'ds_read_b64_tr_b16 {fr(F+4*dt,2)}, v{self.V_WR+dt} offset:{ks*4096}',
                            f'ds_read_b64_tr_b16 {fr(F+4*dt+2,2)}, v{self.V_WR+dt} offset:{ks*4096+1024}']
        if self.opt.get('cnt', True):
            return [(l, ('a', buf, 0)) for l in act(0)] + [(l, ('w', buf, 0)) for l in wf(0)] + [(l, ('a', buf, 1)) for l in act(1)] + \
                   [(l, ('w', buf, dt)) for dt in (1, 2, 3) for l in wf(dt)]
        return [(l, None) for l in act(0) + wf(0) + wf(1) + act(1) + wf(2) + wf(3)]

    def kstep_mfmas(self, buf, swap, first, acck='v'):
        F = self.FB[buf]; fr = self.fr
        l = []
        for dt in range(4):
            for st in range(2):
                acc = (v if acck == 'v' else ar)(self.ACC + 16*(4*st+dt), 16)
                W = fr(F+4*dt, 4); A = fr(F+16+4*st, 4)
                c = '0' if first else acc
                l.append(f'{MF} {acc}, {A}, {W}, {c}' if swap else f'{MF} {acc}, {W}, {A}, {c}')
        return l

    def stage(self, swap, first, need_tag, early, late, last=False, acck='v'):
        a = self.a
        self.st('stage')
        early = list(early or []); late = list(late or [])
        eslot = {}
        for k in range(len(early)):
            eslot.setdefault(int(1 + k*(23.0/len(early))), []).append(early[k])
        lslot = {}
        for k in range(len(late)):
            lslot.setdefault(min(7, 2 + int(k*(6.0/len(late)))), []).append(late[k])
        cnt = self.opt.get('cnt', True)
        def emit_rd(x):
            a(x[0]); self.lq.append(x[1])
        def need(tags):
            idx = max([k for k, t in enumerate(self.lq) if t in tags], default=-1)
            if idx < 0: return
            n = len(self.lq) - 1 - idx
            a(f's_waitcnt lgkmcnt({n})')
            self.lq = self.lq[idx+1:]
        per = self.opt.get('rdper', 2)
        for ks in range(4):
            buf = ks & 1
            pre = []
            if not cnt or (ks == 3 and not last):
                a('s_waitcnt lgkmcnt(0)'); self.lq = []
            if ks == 3 and not last:
                if not self.opt.get('novm'): self.vq.wait_for(a, need_tag)
                if not self.opt.get('nobar'): a('s_barrier')
                pre = self.read_addr_update()
            mf = self.kstep_mfmas(buf, swap, first and ks == 0, acck)
            if ks < 3: rd = self.kstep_reads(ks+1, buf ^ 1)
            elif not last: rd = self.kstep_reads(0, buf ^ 1)
            else: rd = []
            for k, m in enumerate(mf):
                if cnt: need([('w', buf, k >> 1), ('a', buf, k & 1)])
                a(m)
                if k == 0:
                    for l in pre[:8]: a(l)
                for x in rd[per*k:per*(k+1)]: emit_rd(x)
                if k == 1:
                    for l in pre[8:]: a(l)
                for g in (eslot.get(8*ks+k, []) if ks < 3 else lslot.get(k, [])): self.emit_group(g)

    def prologue(self, p0):
        for t in range(2):
            for g in self.dma_stage(p0['srdA'], p0['srdW'], (0, t), pre=(p0['init'] if t == 0 else None)): self.emit_group(g)
        self.g_pending = self.dma_stage(p0['srdA'], p0['srdW'], (0, 2))
        for g in self.g_pending[:3]: self.emit_group(g)
        self.g_pending = self.g_pending[3:]

    def start_compute(self):
        a = self.a
        self.vq.wait_for(a, (0, 0))
        a('s_barrier')
        for l in self.read_addr_update(): a(l)
        self.lq = []
        for x in self.kstep_reads(0, 0):
            a(x[0]); self.lq.append(x[1])

    def run(self, passes, extra_early=None, extra_late=None):
        n = len(passes); total = 8*n
        xe = extra_early or (lambda p, t: []); xl = extra_late or (lambda p, t: [])
        for T in range(total):
            p, t = divmod(T, 8); ps = passes[p]
            early = self.g_pending; self.g_pending = []
            late = []
            T3 = T+3
            if T3 < total:
                p3, t3 = divmod(T3, 8)
                G = self.dma_stage(passes[p3]['srdA'], passes[p3]['srdW'], (p3, t3), pre=(passes[p3]['init'] if t3 == 0 else None))
                late = G[:3]; self.g_pending = G[3:]
            ex = list(xe(p, t)); merged = []
            e0 = list(early)
            tot = len(e0) + len(ex)
            ie = ix = 0
            for k in range(tot):
                if ix < len(ex) and (ie >= len(e0) or ix*len(e0) <= ie*len(ex) - 0.5*len(ex) or not e0): merged.append(ex[ix]); ix += 1
                else: merged.append(e0[ie]); ie += 1
            nxt = divmod(T+1, 8) if T+1 < total else None
            xlate = list(xl(p, t))
            for g in ex + xlate:
                if any('m0' in l for l in g[0]): assert T3 >= total and not (g in ex and e0), 'm0 clobber'
            self.stage(ps['swap'], t == 0, nxt, merged, late + xlate, last=(nxt is None), acck=ps.get('acck', 'v'))
            if t == 7:
                self.st('epi')
                ps['epi']()


from gen_proj import allreduce, unpack8, make_srd
import gen_proj

def emit_ln(a, base, X, V_L16, S_AX, S_GW, S_H, S_G, s_row, s_rowg, vq, part):
    if part == 'load':
        a(f'buffer_load_dwordx4 {v(base,4)}, v{V_L16}, s[{S_AX}:{S_AX+3}], s{s_row} offen'); vq.push('ln')
        a(f'buffer_load_dwordx4 {v(base+4,4)}, v{V_L16}, s[{S_AX}:{S_AX+3}], s{s_row} offen offset:1024'); vq.push('ln')
        a(f'buffer_load_dwordx4 {v(base+16,4)}, v{V_L16}, s[{S_GW}:{S_GW+3}], 0 offen'); vq.push('ln')
    else:
        vq.wait_for(a, 'ln')
        gen_proj.R.V_L16 = V_L16
        gen_proj.emit_ln_compute(a, base, S_H, S_G, s_row, s_rowg, X)
        for _ in range(3): vq.push('lnst')

def frag_store_groups(P, kind, acck, srd, s_offs, tmp, v_scale=None, tag='st'):
    G = []
    k = 0
    for dt in range(4):
        for st in range(2):
            A = P.ACC + 16*(4*st+dt)
            for t in range(2):
                b = A + 8*t
                f = (4*t+dt) if kind == 'V' else (2*dt+t)
                so = s_offs + 2*st + (f >> 2)
                if acck == 'a':
                    T = tmp + 8*(k & 1)
                    G.append(([f'v_accvgpr_read_b32 v{T+e}, a{b+e}' for e in range(4)], None))
                    G.append(([f'v_accvgpr_read_b32 v{T+e}, a{b+e}' for e in range(4, 8)], None))
                else:
                    T = b
                if v_scale is not None:
                    G.append(([f'v_pk_mul_f32 v[{T+e}:{T+e+1}], v[{T+e}:{T+e+1}], v[{v_scale}:{v_scale+1}]' for e in range(0, 8, 2)], None))
                l = [f'v_cvt_pk_bf16_f32 v{T+q}, v{T+2*q}, v{T+2*q+1}' for q in range(4)]
                l.append(f'buffer_store_dwordx4 v[{T}:{T+3}], v{P.V_L16}, s[{srd}:{srd+3}], s{so} offen offset:{(f & 3)*1024}{STF.st}')
                G.append((l, tag))
                k += 1
    return G

def emit_l1(a, N='l1', **opt):
    S_X, S_C, S_WK, S_WV, S_O, S_H, S_G, S_GW = 4, 8, 16, 24, 28, 32, 36, 60
    s_w, s_h, s_r = 20, 21, 22
    st_ = Stamps(a, opt.get('diag'))
    a('s_cmp_ge_u32 s2, 256')
    a(f's_cbranch_scc1 {N}_end')
    a(f's_load_dwordx4 s[64:67], s[0:1], {KA_AX}')
    a(f's_load_dwordx4 s[68:71], s[0:1], {KA_WUK}')
    a(f's_load_dwordx2 s[76:77], s[0:1], {KA_GW}')
    a(f's_load_dwordx2 s[78:79], s[0:1], {KA_WS}')
    a('v_lshrrev_b32 v1, 6, v0')
    a('s_and_b32 s23, s2, 7')
    a(f'v_readfirstlane_b32 s{s_w}, v1')
    a('s_lshr_b32 s48, s2, 3')
    a(f's_lshl_b32 s{s_h}, s23, 2')
    a('s_and_b32 s23, s48, 3')
    a(f's_add_u32 s{s_h}, s{s_h}, s23')
    a(f's_lshr_b32 s{s_r}, s48, 2')
    st_('start')
    vq = VmQueue()
    P = Proj(a, vq, s_w, 0, 0, stamps=st_, wflags=(' nt' if opt.get('nt', True) else ''), opt=opt)
    P.setup_addrs()
    a('s_waitcnt lgkmcnt(0)')
    make_srd(a, S_X, 64, 0, 2*MB); make_srd(a, S_C, 66, 0, 2*MB)
    make_srd(a, S_WK, 68, 0, 4*MB); make_srd(a, S_WV, 70, 0, 4*MB)
    make_srd(a, S_O, 78, WS_K, 32*MB)
    make_srd(a, S_H, 78, WS_H, 2*MB); make_srd(a, S_G, 78, WS_G, 8192)
    make_srd(a, S_GW, 76, 0, 1024)
    a(f's_lshl_b32 s80, s2, 3'); a(f's_lshl_b32 s81, s{s_w}, 1'); a('s_add_u32 s80, s80, s81')
    a('s_lshl_b32 s81, s80, 2')
    a('s_lshl_b32 s80, s80, 10')
    lnend = opt.get('lnend', False)
    if not lnend: emit_ln(a, 192, 64, P.V_L16, S_X, S_GW, S_H, S_G, 80, 81, vq, 'load')
    c = 0x3e0293ee
    a(f'v_mov_b32 v2, {hex(c)}'); a(f'v_mov_b32 v3, {hex(c)}')
    init = [f's_lshl_b32 s{P.s_a0}, s{s_r}, 18', f's_lshl_b32 s49, s{s_w}, 16', f's_add_u32 s{P.s_a0}, s{P.s_a0}, s49',
            f's_add_u32 s{P.s_a1}, s{P.s_a0}, 32768',
            f's_lshl_b32 s{P.s_wo}, s{s_w}, 17', f's_lshl_b32 s49, s{s_h}, 8', f's_add_u32 s{P.s_wo}, s{P.s_wo}, s49']
    a(f's_lshl_b32 s82, s{s_h}, 6'); a(f's_lshl_b32 s83, s{s_r}, 3'); a('s_add_u32 s82, s82, s83')
    a(f's_lshl_b32 s83, s{s_w}, 1'); a('s_add_u32 s82, s82, s83'); a('s_lshl_b32 s82, s82, 13')
    for k in range(4):
        a(f's_add_u32 s{50+k}, s82, {k*4096}')
        a(f's_add_u32 s{84+k}, s82, {16*MB + k*4096}')
    KG = frag_store_groups(P, 'K', 'a', S_O, 50, 192, v_scale=2)
    per = len(KG)//8
    def vepi():
        a('s_nop 7'); a('s_nop 7')
        for g in frag_store_groups(P, 'V', 'v', S_O, 84, None): P.emit_group(g)
    ps = [dict(swap=False, srdA=S_C, srdW=S_WK, init=init, epi=lambda: None, acck='a'),
          dict(swap=True, srdA=S_C, srdW=S_WV, init=init, epi=vepi, acck='v')]
    P.prologue(ps[0])
    if not lnend: emit_ln(a, 192, 64, P.V_L16, S_X, S_GW, S_H, S_G, 80, 81, vq, 'compute')
    P.start_compute()
    def lnload():
        l = Asm(); q = VmQueue(); emit_ln(l, 216, 64, P.V_L16, S_X, S_GW, S_H, S_G, 80, 81, q, 'load')
        return [([x], 'ln') for x in l.lines]
    def xe(p, t):
        g = list(KG[t*per:(t+1)*per]) if p == 1 else []
        return g
    def xl(p, t):
        return lnload() if (lnend and p == 1 and t == 5) else []
    P.run(ps, extra_early=xe, extra_late=xl)
    if lnend: emit_ln(a, 216, 64, P.V_L16, S_X, S_GW, S_H, S_G, 80, 81, vq, 'compute')
    st_('stores')
    a('s_waitcnt vmcnt(0)')
    st_('end')
    st_.dump(100*MB, s_w, 250)
    a.label(f'{N}_end')
    a('s_endpgm')
```

```python
MB = 1 << 20
WS_Q   = 0
WS_K   = 16 * MB
WS_V   = 32 * MB
WS_CTX = 48 * MB
WS_H   = 64 * MB
WS_U   = 66 * MB
WS_G   = 68 * MB
WS_SIZE = 268435456
KA_AX, KA_CKV, KA_WQ, KA_WUK, KA_WUV, KA_WO, KA_BX, KA_W1, KA_B1, KA_W2, KA_B2, KA_GW, KA_OUT, KA_DBG, KA_WS = [8*i for i in range(15)]

class _F:
    st = ''
STF = _F()
WS_PART = 72 * MB
```

```python
import sys, os
from asmlib import *
from layout import *
import gen_proj, gen_proj2, gen_attn, gen_attn2, gen_t2, gen_final

NAME = 'gated_mix__compressed_kv_cla__mixer_token_mlp__prompt'
def build(path, **opt):
    if opt.get('v', 2) == 2: return build2(path, **opt)
    ref = open(f'cdna_kernels/{NAME}.s.ref').read().split('\n')
    a = Asm()
    for l in ref:
        if l.startswith('; Override launch') : break
        a(l)
    a('; @launch kernel=proj_kernel grid=(256,1,1) block=(256,1,1) lds=147456')
    a('; @launch kernel=attn_kernel grid=(256,1,1) block=(256,1,1) lds=131072')
    a('; @launch kernel=mlp1_kernel grid=(256,1,1) block=(256,1,1) lds=131072')
    a('; @launch kernel=final_kernel grid=(256,1,1) block=(256,1,1) lds=131072')
    a('.amdgcn_target "amdgcn-amd-amdhsa--gfx950"')
    kernel_header(a, 'proj_kernel'); gen_proj.emit_l1(a, 'l1', **opt.get('l1', {}))
    kernel_header(a, 'attn_kernel'); g = gen_attn.Attn(a, 'attn'); g.emit()
    kernel_header(a, 'mlp1_kernel'); gen_t2.emit_mlp1(a, 'mlp1')
    kernel_header(a, 'final_kernel'); gen_t2.emit_l3(a, 'l3', PD=opt.get('l3pd', 7), **opt.get('l3', {}))
    kernel_desc(a, 'proj_kernel', vgpr=256, accum=256)
    kernel_desc(a, 'attn_kernel', vgpr=512, accum=256)
    kernel_desc(a, 'mlp1_kernel', vgpr=256, accum=256)
    kernel_desc(a, 'final_kernel', vgpr=(384 if opt.get('l3', {}).get('agpr', True) else 256), accum=256)
    open(path, 'w').write(a.text())
def build2(path, **opt):
    STF.st = opt.get('stf', '')
    ref = open(f'cdna_kernels/{NAME}.s.ref').read().split('\n')
    a = Asm()
    for l in ref:
        if l.startswith('; Override launch') : break
        a(l)
    a('; @launch kernel=proj_kernel grid=(256,1,1) block=(256,1,1) lds=147456')
    a('; @launch kernel=attn_kernel grid=(256,1,1) block=(256,1,1) lds=163840')
    a('; @launch kernel=final_kernel grid=(256,1,1) block=(256,1,1) lds=131072')
    a('.amdgcn_target "amdgcn-amd-amdhsa--gfx950"')
    kernel_header(a, 'proj_kernel'); gen_proj2.emit_l1(a, 'l1', **opt.get('l1', {}))
    kernel_header(a, 'attn_kernel'); g = gen_attn2.Attn(a, 'attn', **opt.get('attn', {})); g.emit()
    kernel_header(a, 'final_kernel')
    if opt.get('fin', 2) == 2: gen_final.emit_final(a, 'fin', **opt.get('l3', {}))
    else: gen_t2.emit_l3(a, 'l3', PD=opt.get('l3pd', 4), **opt.get('l3', {'agpr': False}))
    kernel_desc(a, 'proj_kernel', vgpr=448, accum=256)
    kernel_desc(a, 'attn_kernel', vgpr=512, accum=256)
    kernel_desc(a, 'final_kernel', vgpr=256, accum=256)
    open(path, 'w').write(a.text())
if __name__ == '__main__':
    opt = eval(sys.argv[2]) if len(sys.argv) > 2 else {}
    build(sys.argv[1] if len(sys.argv) > 1 else f'cdna_kernels/{NAME}.s', **opt)
```

```python
from asmlib import *
from layout import *
from gen_proj2 import Proj, VmQueue
from gen_proj import make_srd
import gen_t2
from gen_mlp import Mlp1

OA, OB = 0, 64
QA, QB = 0, 32
PFB = (128, 152)
FR = 192
NFR = 16
S = [[64, 80], [96, 112]]
P = [[128, 136], [144, 152]]
CA, CB = 160, 176
PT = 192
PS = [200, 201]
LA, LB = 202, 203
V_L16 = 204; V_KA = 205; V_VA = 206
V_RELA = 207; V_RELB = 208; V_NEG = 209
V_T = 210
V_DA, V_DB = 226, 227
V_AA, V_AB = 228, 229
V_MASK = 230; V_VBASE = 231; V_REL = [232, 233]
V_ST = 236
V_MA, V_MB, V_MR = 214, 216, 218
MACC = 128
S_MW, S_MH = 12, 60
s_ma, s_mb, s_ml = 85, 88, 89
S_K, S_V, S_Q, S_C = 4, 8, 12, 16
s_w, s_h, s_i, s_g1, s_cnt, s_ks, s_vs, s_t0, s_thr = 20, 21, 22, 23, 24, 25, 26, 27, 28
s_t1, s_step = 29, 32
S_RET = 30
S_M = 40
D = 8
THR = 0x4e800000

def v(b, n=1): return f'v{b}' if n == 1 else f'v[{b}:{b+n-1}]'
def ar(b, n=1): return f'a{b}' if n == 1 else f'a[{b}:{b+n-1}]'
MF = 'v_mfma_f32_32x32x16_bf16'

class Iter:
    def __init__(self, qk, sm, pv, next_qk, par, czero=False):
        self.qk, self.sm, self.pv, self.next_qk, self.par, self.czero = qk, sm, pv, next_qk, par, czero

def nfr(mode): return {None: 0, 1: 8, 2: 16}[mode]

class Attn:
    def __init__(self, a, name, diag=False, **opt):
        self.a = a; self.name = name; self.diag = diag; self.opt = opt; self.st = Stamps(a, diag, vreg=254); self.mlp = opt.get('mlp', True)
        self.phase = 0
        self.slow = []
        self.uid = 0
        self.vm = {}

    def simulate(self):
        res = {}
        self.vmm = {}
        for i in range(8):
            G1 = 4*(i+1)
            def mode(g): return None if (g < 0 or g > 33) else (1 if g < G1 else 2)
            def first(g):
                return g if g <= G1 else G1 + 2*(g-G1)
            def r(g): return 1 if g < G1 else 2
            issued = []
            def issue(kind, b0, nb):
                for b in range(b0, b0+nb):
                    issued.extend([(kind, b)]*2)
            kd = 0; vd = 0
            issue('K', 0, 6); issue('V', 0, 4)
            kd, vd = 6, 4
            kfree = 0; vfree = 0
            def need(n):
                req = []
                if mode(n+3): req += [('K', b) for b in range(first(n+3), first(n+3)+r(n+3))]
                if mode(n+1): req += [('V', b) for b in range(first(n+1), first(n+1)+r(n+1))]
                last = -1
                for k, x in enumerate(issued):
                    if x in req: last = k
                for x in req: assert x in issued, (i, n, x)
                return len(issued) - 1 - last if last >= 0 else None
            def pos(n):
                if n <= -1: return ('pro', n)
                if n <= G1-5:
                    if n >= G1-6 : return ('p1peel', n & 1)
                    return ('p1loop', n & 1)
                if n <= G1-1: return ('trans', n-G1)
                if n <= 31:
                    if n >= 30: return ('p2peel', n & 1)
                    return ('p2loop', n & 1)
                return ('epi', n)
            for n in range(-3, 34):
                if n == -1 and self.mlp: issued.extend([('M', 0)]*4 + [('M', 1)]*4)
                if n >= -2:
                    if mode(n) and n <= 31:
                        b0 = vd; nb = r(n)
                        assert b0 + nb - 8 <= (first(n-1) if n-1 >= 0 else 0), (i, n, b0, nb)
                        issue('V', b0, nb); vd += nb
                p = pos(n)
                if self.mlp and 0 <= n <= 31:
                    idx = [k for k, x in enumerate(issued) if x == ('M', n)]
                    if idx:
                        Nm = len(issued) - 1 - idx[-1]
                        self.vmm[p] = min(self.vmm.get(p, 99), Nm)
                    else: assert n >= 32 or i == 7 or True
                    if p[0] != 'p2peel': issued.extend([('M', n+2)]*4)
                N = need(n)
                if N is not None:
                    res[p] = min(res.get(p, 99), N)
                if mode(n+3) or (n <= 31 and n >= -3):
                    nb = r(n+3)
                    if n <= 30 or True:
                        assert kd + nb - 8 <= first(n+3), (i, n, kd, nb)
                        issue('K', kd, nb); kd += nb
                if n == G1-1: issued.extend([('S', 0)]*8)
        self.vm = res
        return res

    def dma_group(self, kind, nb, split=False):
        srd_, so = (S_K, s_ks) if kind == 'K' else (S_V, s_vs)
        g = []
        if kind == 'K':
            pre = [f's_and_b32 m0, s{so}, 0xffff']
        else:
            pre = [f's_and_b32 s{s_t0}, s{so}, 0xffff', f's_or_b32 m0, s{s_t0}, 0x10000']
        n = 2*nb
        if split: g.append(pre)
        for k in range(n):
            l = []
            if k == 0 and not split: l += pre + ['s_nop 0']
            off = f' offset:{k*1024}' if k else ''
            l.append(f'buffer_load_dwordx4 v{V_L16}, s[{srd_}:{srd_+3}], s{so} offen{off} lds')
            if k == n-1: l.append(f's_add_u32 s{so}, s{so}, {nb*8192}')
            g.append(l)
        return g

    def mlp_dma_groups(self, par):
        g = []
        for vo, srd_, so, step, off in ((V_MA, S_MW, s_ma, 16*3584, 0), (V_MB, S_MH, s_mb, 16*1024, 2048)):
            g.append([f's_add_u32 m0, s{s_ml}, {par*4096+off}'])
            g.append([f'buffer_load_dwordx4 v{vo}, s[{srd_}:{srd_+3}], s{so} offen lds'])
            g.append([f'buffer_load_dwordx4 v{vo+1}, s[{srd_}:{srd_+3}], s{so} offen offset:1024 lds', f's_add_u32 s{so}, s{so}, {step}'])
        return g

    def sm_ops(self, it):
        sm = it.sm; pr = it.par ^ 1
        ops = []
        masked = sm.endswith('m')
        init = sm == 'init'
        mode = '1' if init else sm[0]
        for b in range(2):
            Sb = S[pr][b]; Pb = P[pr][b]
            domask = masked and (mode == '2' or b == 0)
            blk = []
            if domask:
                def cmp(e): return (4, f'v_cmp_ge_i32 s[{S_M+2*(e%8)}:{S_M+2*(e%8)+1}], v{V_REL[b]}, {8*(e>>2)+(e&3)}')
                def cnd(e): return (4, f'v_cndmask_b32 v{Sb+e}, v{V_NEG}, v{Sb+e}, s[{S_M+2*(e%8)}:{S_M+2*(e%8)+1}]')
                blk += [cmp(0), cmp(1), cmp(2), cmp(3), cnd(0)]
            for e in range(16):
                if domask:
                    if e+4 < 16: blk.append(cmp(e+4))
                    if e+1 < 16: blk.append(cnd(e+1))
                if init:
                    if e == 0: blk.append((4, f'v_sub_f32 v{Sb}, v{Sb}, v{V_DA if b == 0 else V_DB}'))
                    if e+1 < 16: blk.append((4, f'v_sub_f32 v{Sb+e+1}, v{Sb+e+1}, v{V_DA if b == 0 else V_DB}'))
                blk.append((8, f'v_exp_f32 v{PT+(e%8)}, v{Sb+e}'))
                if e >= 2 or True:
                    k = e-1
                    if k == 1: blk.append((4, f'v_add_f32 v{PS[b]}, v{PT+0}, v{PT+1}'))
                    elif k > 1: blk.append((4, f'v_add_f32 v{PS[b]}, v{PS[b]}, v{PT+(k%8)}'))
                    if k >= 1 and k % 2 == 1:
                        blk.append((4, f'v_cvt_pk_bf16_f32 v{Pb+(k>>1)}, v{PT+((k-1)%8)}, v{PT+(k%8)}'))
            blk.append((4, f'v_add_f32 v{PS[b]}, v{PS[b]}, v{PT+(15%8)}'))
            blk.append((4, f'v_cvt_pk_bf16_f32 v{Pb+7}, v{PT+(14%8)}, v{PT+(15%8)}'))
            ops += blk
        if not init and not self.opt.get('nocheck'):
            ops.append((4, f'v_max_f32 v{V_T}, v{PS[0]}, v{PS[1]}'))
            ops.append((4, f'v_cmp_lt_f32 vcc, s{s_thr}, v{V_T}'))
        return ops

    def rel_setup(self, it):
        return []

    def emit_iter(self, it, pos, extra_pre=None, name='', extra_post=None):
        a = self.a
        par = it.par
        ph = self.phase
        mf = []
        reads = []
        fidx = 0
        def fr(k): return FR + 4*((ph + k) % NFR)
        Sw = S[par]; Pr = P[par]
        if it.qk == 1:
            for j in range(8):
                A = ar(fr(fidx+j), 4)
                for b, Q, C in ((0, QA, CA), (1, QB, CB)):
                    c = ('0' if it.czero else v(C, 16)) if j == 0 else v(Sw[b], 16)
                    mf.append((f'{MF} {v(Sw[b],16)}, {A}, {v(Q+4*j,4)}, {c}', fidx+j))
                reads.append((2*j, f'ds_read_b128 {A}, v{V_KA} offset:{j*1024}', fidx+j))
            fidx += 8
        elif it.qk == 2:
            for f in range(16):
                b, j = f >> 3, f & 7
                A = ar(fr(fidx+f), 4)
                c = ('0' if it.czero else v(CB, 16)) if j == 0 else v(Sw[b], 16)
                mf.append((f'{MF} {v(Sw[b],16)}, {A}, {v(QB+4*j,4)}, {c}', fidx+f))
                reads.append((f, f'ds_read_b128 {A}, v{V_KA} offset:{f*1024}', fidx+f))
            fidx += 16
        mlp = self.mlp and getattr(it, 'mlp', False)
        m0 = len(mf)
        if mlp:
            for ft in range(2):
                for dt in range(2):
                    acc = ar(MACC+16*(2*ft+dt), 16)
                    mf.append((f'{MF} {acc}, {v(V_ST+4*ft,4)}, {v(V_ST+8+4*dt,4)}, {acc}', 'm7' if (ft, dt) == (0, 0) else None))
        s0 = len(mf)
        if it.pv == 1:
            for f in range(8):
                t, db = f >> 2, f & 3
                A = ar(fr(fidx+f), 4)
                for b, O in ((0, OA), (1, OB)):
                    mf.append((f'{MF} {ar(O+16*db,16)}, {A}, {v(Pr[b]+4*t,4)}, {ar(O+16*db,16)}', fidx+f))
                reads.append((s0+2*f, f'ds_read_b128 {A}, v{V_VA} offset:{f*1024}', fidx+f))
            fidx += 8
        elif it.pv == 2:
            for f in range(16):
                b, t, db = f >> 3, (f >> 2) & 1, f & 3
                A = ar(fr(fidx+f), 4)
                mf.append((f'{MF} {ar(OB+16*db,16)}, {A}, {v(Pr[b]+4*t,4)}, {ar(OB+16*db,16)}', fidx+f))
                reads.append((s0+f, f'ds_read_b128 {A}, v{V_VA} offset:{f*1024}', fidx+f))
            fidx += 16
        ns = len(mf)
        nown = fidx
        lead_in = [r for r in reads if it.qk and r[0] < D and r[2] < nfr(it.qk)]
        own = [r for r in reads if r not in lead_in]
        lead_out = []
        if it.next_qk:
            n = nfr(it.next_qk)
            for j in range(n):
                fu = 2*j if it.next_qk == 1 else j
                if fu < D:
                    A = ar(FR + 4*((ph + nown + j) % NFR), 4)
                    lead_out.append((ns + fu, f'ds_read_b128 {A}, v{V_KA} offset:{j*1024}', nown+j))
        bslot = max(ns - D, 0)
        slots = [[] for _ in range(ns+1)]
        pre = []
        order = [r[2] for r in lead_in]
        def place_read(slot, r):
            (pre if slot < 0 else slots[slot]).append(('ds', r[1], r[2]))
        for r in own:
            place_read(r[0]-D if r[0]-D >= 0 else -1, r)
        if mlp:
            base = par*4096
            rd = []
            for op in range(2):
                for tl in range(2):
                    r = V_ST + 8*op + 4*tl
                    rd.append(f'ds_read_b64_tr_b16 {v(r,2)}, v{V_MR+tl} offset:{base+op*2048}')
                    rd.append(f'ds_read_b64_tr_b16 {v(r+2,2)}, v{V_MR+tl} offset:{base+op*2048+512}')
            slots[m0-8].append(('x', f's_waitcnt vmcnt({self.vmm[pos]})'))
            for k, t_ in enumerate(rd): slots[m0-8+k//2].append(('ds', t_, f'm{k}'))
        win = []
        has_bar = pos is not None and pos in self.vm
        if has_bar:
            if not self.opt.get('novm'): win.append(('x', f's_waitcnt vmcnt({0 if pos == ("epi", 32) else self.vm[pos]})'))
            if not self.opt.get('nobar'): win.append(('x', 's_barrier'))
        if it.qk:
            win.append(('x', f'v_add_u32 v{V_KA}, {8192*(1 if it.qk==1 else 2)}, v{V_KA}'))
            win.append(('x', f'v_and_b32 v{V_KA}, 0xffff, v{V_KA}'))
        if it.pv:
            win.append(('x', f'v_add_u32 v{V_VA}, {8192*(1 if it.pv==1 else 2)}, v{V_VA}'))
            win.append(('x', f'v_and_or_b32 v{V_VA}, v{V_VA}, v{V_MASK}, v{V_VBASE}'))
        for r in own:
            assert r[0]-D < bslot or ns <= D, (r, bslot)
        vg = self.dma_group('V', 1 if it.pv == 1 else 2, split=True) if (it.pv and not getattr(it, 'nov', False)) else []
        kg = self.dma_group('K', 1 if it.next_qk == 1 else 2, split=True) if (it.next_qk or getattr(it, 'forcek', False)) else []
        if self.opt.get('nodma') and pos and pos[0] != 'pro': vg = []; kg = []
        mg = []
        if mlp and getattr(it, 'mlp_dma', True): mg = [(m0+1+k, g) for k, g in enumerate(self.mlp_dma_groups(par))]
        if getattr(it, 'mlp_first', False):
            gs = self.mlp_dma_groups(0) + self.mlp_dma_groups(1)
            gs = [g + ['s_nop 0'] if 'm0' in g[0] else g for g in gs]
            mg = [(k*7//len(gs), g) for k, g in enumerate(gs)]
        sm = self.sm_ops(it) if it.sm else []
        if self.opt.get('nosm'): sm = []
        if self.opt.get('noexp'): sm = [(c, t) for c, t in sm if 'exp' not in t]
        if self.opt.get('noadd'): sm = [(c, t) for c, t in sm if 'v_add_f32' not in t]
        tot = sum(c for c, _ in sm)
        fixed = [0.0]*ns
        for k in range(ns):
            fixed[k] += 4*len(slots[k])
        for k, grp in enumerate(vg):
            sl = min(ns-1, k*(1 if len(vg) > 3 else 2))
            slots[sl].append(('dma', grp)); fixed[sl] += 4*len(grp)
        for sl, grp in mg:
            slots[sl].append(('dma', grp)); fixed[sl] += 4*len(grp)
        slots[bslot] = win + slots[bslot]; fixed[bslot] += 4*len(win)
        for r in lead_out:
            sl = min(ns-1, r[0]-D); slots[sl].append(('ds', r[1], r[2])); fixed[sl] += 4
        for k, grp in enumerate(kg):
            sl = min(ns-1, bslot + k*(1 if len(kg) > 3 else 2) + (1 if k else 0))
            slots[sl].append(('dma', grp)); fixed[sl] += 4*len(grp)
        xf = list(getattr(it, 'fill', [])); xg = list(getattr(it, 'fill_groups', []))
        if xf or xg:
            nsl = ns
            half = max(1, int(nsl*0.55))
            for k, x in enumerate(xf): slots[min(half-1, k*half//len(xf))].append(x)
            for k, g in enumerate(xg): slots[min(nsl-1, half + k*(nsl-half)//len(xg))].append(('dmag', g))
        total = tot + sum(fixed)
        smslots = [[] for _ in range(ns)]
        if sm:
            k = 0; cum = 0.0; target_end = ns - self.opt.get('tail', 1.6)
            acc = 0.0
            for sl in range(ns):
                acc += fixed[sl]
                lim = total * (sl+1) / target_end
                while k < len(sm) and (acc + sm[k][0]*0.5 <= lim or sl == ns-1):
                    smslots[sl].append(sm[k]); acc += sm[k][0]; k += 1
        if extra_pre:
            for l in extra_pre: a(l)
        q = list(order)
        def emit_fill(x):
            if x[0] == 'ds':
                a(x[1]); q.append(x[2])
            elif x[0] == 'dma':
                for l in x[1]: a(l)
            elif x[0] == 'dmag':
                for l in x[1][0]: a(l)
                it.vq.push(x[1][1])
            else:
                a(x[1])
        for x in pre: emit_fill(x)
        waited = -1
        for k, (txt, f) in enumerate(mf):
            if f is not None and f in q:
                idx = q.index(f)
                if idx+1 < len(q) and (k % 2 == 0): idx2 = idx+1
                else: idx2 = idx
                nleft = len(q) - 1 - idx2
                a(f's_waitcnt lgkmcnt({nleft})')
                q = q[idx2+1:]
            a(txt)
            fl = slots[k]
            for x in fl:
                if x[0] in ('x', 'ds'): emit_fill(x)
            for c, t in smslots[k]: a(t)
            for x in fl:
                if x[0] in ('dma', 'dmag'): emit_fill(x)
        self.phase = (ph + nown) % NFR
        for l in (extra_post or []): a(l)
        if it.sm and it.sm != 'init' and not self.opt.get('nocheck'):
            self.uid += 1
            u = self.uid
            a(f's_cbranch_vccnz {self.name}_slow{u}')
            a.label(f'{self.name}_join{u}')
            self.l_update(it.sm)
            self.slow.append((u, it))
        elif it.sm == 'init':
            a(f'v_mov_b32 v{LA}, v{PS[0]}')
            a(f'v_mov_b32 v{LB}, v{PS[1]}')

    def l_update(self, sm):
        a = self.a
        if sm[0] == '1' or sm == 'init':
            a(f'v_add_f32 v{LA}, v{LA}, v{PS[0]}')
            a(f'v_add_f32 v{LB}, v{LB}, v{PS[1]}')
        else:
            a(f'v_add_f32 v{LB}, v{LB}, v{PS[0]}')
            a(f'v_add_f32 v{LB}, v{LB}, v{PS[1]}')

    def rowmax(self, dst, blocks):
        a = self.a
        regs = [b+e for b in blocks for e in range(16)]
        a(f'v_max3_f32 v{dst}, v{regs[0]}, v{regs[1]}, v{regs[2]}')
        k = 3
        while k+1 < len(regs):
            a(f'v_max3_f32 v{dst}, v{dst}, v{regs[k]}, v{regs[k+1]}'); k += 2
        if k < len(regs): a(f'v_max_f32 v{dst}, v{dst}, v{regs[k]}')
        a(f'v_mov_b32 v{V_T+1}, v{dst}')
        a('s_nop 1')
        a(f'v_permlane32_swap_b32 v{V_T+1}, v{dst}')
        a('s_nop 1')
        a(f'v_max_f32 v{dst}, v{dst}, v{V_T+1}')

    def plain_sm(self, pr):
        a = self.a
        for b in range(2):
            for e in range(0, 16, 2):
                a(f'v_exp_f32 v{PT}, v{S[pr][b]+e}')
                a(f'v_exp_f32 v{PT+1}, v{S[pr][b]+e+1}')
                a('s_nop 0')
                a(f'v_cvt_pk_bf16_f32 v{P[pr][b]+(e>>1)}, v{PT}, v{PT+1}')
                if e == 0:
                    a(f'v_add_f32 v{PS[b]}, v{PT}, v{PT+1}')
                else:
                    a(f'v_add_f32 v{PS[b]}, v{PS[b]}, v{PT}')
                    a(f'v_add_f32 v{PS[b]}, v{PS[b]}, v{PT+1}')

    def sub_delta(self, pr, mode):
        a = self.a
        for b in range(2):
            dl = V_DA if (mode == 1 and b == 0) else V_DB
            for e in range(16):
                a(f'v_sub_f32 v{S[pr][b]+e}, v{S[pr][b]+e}, v{dl}')

    def emit_slow(self, u, it):
        a = self.a
        pr = it.par ^ 1
        mode = 1 if it.sm[0] == '1' else 2
        a.label(f'{self.name}_slow{u}')
        a('s_nop 15')
        a('s_nop 7')
        if mode == 1:
            self.rowmax(V_DA, [S[pr][0]])
            self.rowmax(V_DB, [S[pr][1]])
            a(f'v_max_f32 v{V_DA}, 0, v{V_DA}')
        else:
            self.rowmax(V_DB, [S[pr][0], S[pr][1]])
            a(f'v_mov_b32 v{V_DA}, 0')
        a(f'v_max_f32 v{V_DB}, 0, v{V_DB}')
        a(f's_call_b64 s[{S_RET}:{S_RET+1}], {self.name}_rescale')
        self.sub_delta(pr, mode)
        if it.qk: self.sub_delta(it.par, it.qk)
        self.plain_sm(pr)
        a(f's_branch {self.name}_join{u}')

    def emit_rescale(self):
        a = self.a
        a.label(f'{self.name}_rescale')
        a(f'v_exp_f32 v{V_AA}, -v{V_DA}')
        a(f'v_exp_f32 v{V_AB}, -v{V_DB}')
        a('s_nop 0')
        for O, al in ((OA, V_AA), (OB, V_AB)):
            for e in range(0, 64, 4):
                for k in range(4): a(f'v_accvgpr_read_b32 v{V_T+k}, a{O+e+k}')
                for k in range(4): a(f'v_mul_f32 v{V_T+k}, v{V_T+k}, v{al}')
                for k in range(4): a(f'v_accvgpr_write_b32 a{O+e+k}, v{V_T+k}')
        a(f'v_mul_f32 v{LA}, v{LA}, v{V_AA}')
        a(f'v_mul_f32 v{LB}, v{LB}, v{V_AB}')
        for e in range(16):
            a(f'v_sub_f32 v{CA+e}, v{CA+e}, v{V_DA}')
            a(f'v_sub_f32 v{CB+e}, v{CB+e}, v{V_DB}')
        a('s_nop 1')
        a(f's_setpc_b64 s[{S_RET}:{S_RET+1}]')

    def mask_inplace(self, pr, b):
        a = self.a
        for e0 in range(0, 16, 8):
            for e in range(e0, e0+8):
                a(f'v_cmp_ge_i32 s[{S_M+2*(e%8)}:{S_M+2*(e%8)+1}], v{V_REL[b]}, {8*(e>>2)+(e&3)}')
            a('s_nop 1')
            for e in range(e0, e0+8):
                a(f'v_cndmask_b32 v{S[pr][b]+e}, v{V_NEG}, v{S[pr][b]+e}, s[{S_M+2*(e%8)}:{S_M+2*(e%8)+1}]')

    def emit_init(self):
        a = self.a
        a(f'v_mov_b32 v{V_REL[0]}, v{V_RELA}')
        a('s_nop 12')
        self.mask_inplace(0, 0)
        self.rowmax(V_DA, [S[0][0]])
        self.rowmax(V_DB, [S[0][1]])
        for e in range(16):
            a(f'v_sub_f32 v{CA+e}, 0, v{V_DA}')
            a(f'v_sub_f32 v{CB+e}, 0, v{V_DB}')
        a('s_nop 1')

    def epilogue_tile(self, O, L, qt_sgpr, vq=None):
        a = self.a
        a(f'v_mov_b32 v{V_T+1}, v{L}')
        a('s_nop 1')
        a(f'v_permlane32_swap_b32 v{V_T+1}, v{L}')
        a('s_nop 1')
        a(f'v_add_f32 v{L}, v{L}, v{V_T+1}')
        a(f'v_rcp_f32 v{V_T+2}, v{L}')
        a('s_nop 0')
        a(f'v_mov_b32 v{V_T+3}, v{V_T+2}')
        inv = V_T+2
        k = 0
        for db in range(4):
            for t in range(2):
                tmp = V_ST + 8*(k % 2)
                for e in range(8): a(f'v_accvgpr_read_b32 v{tmp+e}, a{O+16*db+8*t+e}')
                for e in range(0, 8, 2): a(f'v_pk_mul_f32 v[{tmp+e}:{tmp+e+1}], v[{tmp+e}:{tmp+e+1}], v[{inv}:{inv+1}]')
                for e in range(0, 8, 2): a(f'v_cvt_pk_bf16_f32 v{tmp+(e>>1)}, v{tmp+e}, v{tmp+e+1}')
                j = 2*db+t
                off = j*1024
                so = qt_sgpr if off < 4096 else qt_sgpr+1
                a(f'buffer_store_dwordx4 v[{tmp}:{tmp+3}], v{V_L16}, s[{S_C}:{S_C+3}], s{so} offen offset:{off % 4096}{STF.st}')
                if vq: vq.push('ctx')
                k += 1

    def stamp(self, same=False):
        self.st()
    def dump_stamps(self):
        self.st.dump(100*MB, s_w, 253)

    def emit(self):
        a = self.a; N = self.name; opt = self.opt
        self.simulate()
        vm = self.vm
        S_X, S_WQ = 12, 60
        a(f's_cmp_ge_u32 s2, 256')
        a(f's_cbranch_scc1 {N}_end')
        self.stamp()
        a(f's_load_dwordx2 s[34:35], s[0:1], {KA_WS}')
        a(f's_load_dwordx2 s[64:65], s[0:1], {KA_AX}')
        a(f's_load_dwordx2 s[66:67], s[0:1], {KA_WQ}')
        a(f's_load_dwordx2 s[68:69], s[0:1], {KA_W1}')
        a(f's_load_dwordx2 s[86:87], s[0:1], {KA_B1}')
        a(f's_load_dwordx2 s[70:71], s[0:1], {KA_WO}')
        a(f's_load_dwordx2 s[72:73], s[0:1], {KA_W2}')
        a(f'v_lshrrev_b32 v1, 6, v0')
        a(f'v_and_b32 v2, 63, v0')
        a(f'v_lshlrev_b32 v{V_L16}, 4, v2')
        a(f'v_readfirstlane_b32 s{s_w}, v1')
        a(f's_and_b32 s{s_t0}, s2, 7')
        a(f's_lshr_b32 s{s_t1}, s2, 3')
        a(f's_lshl_b32 s{s_h}, s{s_t0}, 2')
        a(f's_and_b32 s{s_t0}, s{s_t1}, 3')
        a(f's_add_u32 s{s_h}, s{s_h}, s{s_t0}')
        a(f's_lshr_b32 s{s_i}, s{s_t1}, 2')
        a(f's_add_u32 s{s_g1}, s{s_i}, 1')
        a(f's_lshl_b32 s{s_g1}, s{s_g1}, 2')
        a(f's_lshl_b32 s36, s{s_i}, 2')
        a(f's_add_u32 s36, s36, s{s_w}')
        a(f's_lshl_b32 s37, s{s_i}, 2')
        a(f's_sub_u32 s37, 60, s37')
        a(f's_add_u32 s37, s37, s{s_w}')
        vq = VmQueue()
        P = Proj(a, vq, s_w, 16384, 65536, ACC=64, FB=PFB, fbk='a', VA=8, V_L16=V_L16, VT=33, SG=40, wflags=(' nt' if opt.get('nt', True) else ''))
        P.setup_addrs(set_l16=False)
        a('s_waitcnt lgkmcnt(0)')
        make_srd(a, S_X, 64, 0, 2*MB); make_srd(a, S_WQ, 66, 0, 4*MB)
        init = [f's_lshl_b32 s{P.s_a0}, s36, 15', f's_lshl_b32 s{P.s_a1}, s37, 15',
                f's_lshl_b32 s{P.s_wo}, s{s_w}, 17', f's_lshl_b32 s{s_t0}, s{s_h}, 8', f's_add_u32 s{P.s_wo}, s{P.s_wo}, s{s_t0}']
        qpass = [dict(swap=False, srdA=S_X, srdW=S_WQ, init=init, epi=lambda: None, acck='v')]
        P.prologue(qpass[0])
        a(f's_lshl_b32 s{s_t0}, s{s_h}, 19')
        a(f's_lshl_b32 s{s_t1}, s{s_i}, 15')
        a(f's_sub_u32 s{s_t1}, 0x80000, s{s_t1}')
        for S_, base in ((S_K, WS_K), (S_V, WS_V)):
            a(f's_add_u32 s{S_}, s34, {base}')
            a(f's_addc_u32 s{S_+1}, s35, 0')
            a(f's_add_u32 s{S_}, s{S_}, s{s_t0}')
            a(f's_addc_u32 s{S_+1}, s{S_+1}, 0')
            a(f's_and_b32 s{S_+1}, s{S_+1}, 0xffff')
            a(f's_mov_b32 s{S_+2}, s{s_t1}')
            a(f's_mov_b32 s{S_+3}, 0x20000')
        make_srd(a, S_C, 34, WS_CTX, 16*MB)
        a(f's_lshl_b32 s{s_ks}, s{s_w}, 11')
        a(f's_mov_b32 s{s_vs}, s{s_ks}')
        a(f's_mov_b32 s{s_thr}, {THR}')
        a(f'v_mov_b32 v{V_NEG}, 0xf149f2ca')
        a(f'v_mov_b32 v{V_MASK}, 0xffff')
        a(f'v_mov_b32 v{V_VBASE}, 0x10000')
        a(f'v_mov_b32 v{V_KA}, v{V_L16}')
        a(f'v_add_u32 v{V_VA}, 0x10000, v{V_L16}')
        a(f'v_and_b32 v3, 31, v2')
        a(f'v_lshrrev_b32 v4, 5, v2')
        a(f'v_lshlrev_b32 v4, 2, v4')
        a(f'v_sub_u32 v3, v3, v4')
        a(f's_lshl_b32 s{s_t0}, s36, 5')
        a(f'v_add_u32 v{V_RELA}, s{s_t0}, v3')
        a(f's_lshl_b32 s{s_t0}, s37, 5')
        a(f'v_add_u32 v{V_RELB}, s{s_t0}, v3')
        M = Mlp1(a); M.ids()
        if self.mlp:
            T = 33
            a(f's_lshl_b32 s{s_ml}, s{s_w}, 13'); a(f's_add_u32 s{s_ml}, s{s_ml}, 131072')
            gen_t2.lane_setup(a, 5, T)
            for t in range(2):
                X = T+5; dst = V_MR+t
                a(f'v_mul_u32_u24 v{X}, 8, v{T}'); a(f'v_add_u32 v{X}, v{X}, v{T+1}'); a(f'v_lshlrev_b32 v{X}, 7, v{X}')
                a(f'v_xor_b32 v{dst}, {t}, v{T+4}'); a(f'v_lshl_add_u32 v{X}, v{dst}, 6, v{X}')
                a(f'v_lshl_add_u32 v{X}, v{T+2}, 5, v{X}'); a(f'v_lshl_add_u32 v{X}, v{T+3}, 3, v{X}')
                a(f'v_add_u32 v{dst}, s{s_ml}, v{X}')
            for dst, stride in ((V_MA, 3584), (V_MB, 1024)):
                gen_t2.dma_voffs(a, 48, 5, T, stride, s_t1)
                a(f'v_mov_b32 v{dst}, v48'); a(f'v_mov_b32 v{dst+1}, v49')
            a(f's_mul_i32 s{s_ma}, s{s_w}, {512*3584}'); a(f's_lshl_b32 s{s_t1}, s{M.s_fb}, 7'); a(f's_add_u32 s{s_ma}, s{s_ma}, s{s_t1}')
            a(f's_lshl_b32 s{s_mb}, s{s_w}, 19'); a(f's_lshl_b32 s{s_t1}, s{M.s_db}, 7'); a(f's_add_u32 s{s_mb}, s{s_mb}, s{s_t1}')
        a(f'v_lshlrev_b32 v252, 3, v{V_L16}')
        a(f's_sub_u32 s{s_t0}, s2, 32'); a(f's_lshl_b32 s{s_t0}, s{s_t0}, 2'); a(f's_add_u32 s{s_t0}, s{s_t0}, s{s_w}')
        a(f's_lshl_b32 s74, s{s_t0}, 13')
        a(f's_mul_i32 s75, s{s_t0}, 4736')
        for e in range(128): a(f'v_accvgpr_write_b32 a{e}, 0')
        for qt, d in ((36, 56), (37, 58)):
            a(f's_lshl_b32 s{s_t0}, s{qt}, 5')
            a(f's_add_u32 s{s_t0}, s{s_t0}, s{s_h}')
            a(f's_lshl_b32 s{d}, s{s_t0}, 13')
            a(f's_add_u32 s{d+1}, s{d}, 4096')
        P.start_compute()
        self.stamp()
        def kv_groups(kind, nb):
            G = []
            for b in range(nb):
                for grp in self.dma_group(kind, 1): G.append((grp, 'kv'))
            return G
        KG = kv_groups('K', 6); VG = kv_groups('V', 4)
        def xl(p, t): return KG[:6] if t == 5 else (VG[:2] if t == 6 else [])
        def xe(p, t): return KG[6:] if t == 6 else (VG[2:] if t == 7 else [])
        P.run(qpass, extra_early=xe, extra_late=xl)
        self.stamp()
        a('s_nop 7')
        for st, Q in ((0, QA), (1, QB)):
            for dt in range(4):
                A = 64 + 16*(4*st+dt)
                for t in range(2):
                    for k in range(4):
                        a(f'v_cvt_pk_bf16_f32 v{Q+4*(2*dt+t)+k}, v{A+8*t+2*k}, v{A+8*t+2*k+1}')
        if self.mlp:
            make_srd(a, S_MW, 68, 0, 2048*3584); make_srd(a, S_MH, 34, WS_H, 2*MB)
            a(f's_cmp_eq_u32 s{s_i}, 7')
            a(f's_cselect_b32 s{S_MW+2}, 0, s{S_MW+2}')
            a(f's_cselect_b32 s{S_MH+2}, 0, s{S_MH+2}')
        a(f's_waitcnt vmcnt({vm[("pro",-3)]})')
        a('s_barrier')
        for grp in self.dma_group('K', 1):
            for l in grp: a(l)
        for j in range(D//2):
            a(f'ds_read_b128 {ar(FR+4*j,4)}, v{V_KA} offset:{j*1024}')
        it = Iter(1, None, None, 1, 0, czero=True)
        if self.mlp: it.fill = [('x', f'v_accvgpr_write_b32 a{MACC+e}, 0') for e in range(64)]
        self.emit_iter(it, ('pro', -2))
        self.emit_init()
        self.stamp()
        it = Iter(1, 'init', None, 1, 1); it.mlp_first = self.mlp
        self.emit_iter(it, ('pro', -1))
        self.stamp()
        def MI(*args, dma=True):
            it = Iter(*args); it.mlp = True; it.mlp_dma = dma
            return it
        a(f's_cmp_eq_u32 s{s_i}, 0')
        a(f's_cbranch_scc1 {N}_trans')
        a(f's_sub_u32 s{s_cnt}, s{s_g1}, 6')
        a(f's_lshr_b32 s{s_cnt}, s{s_cnt}, 1')
        a('.p2align 6')
        a.label(f'{N}_p1loop')
        self.emit_iter(MI(1, '1', 1, 1, 0), ('p1loop', 0))
        self.emit_iter(MI(1, '1', 1, 1, 1), ('p1loop', 1))
        a(f's_sub_u32 s{s_cnt}, s{s_cnt}, 1')
        a(f's_cmp_lg_u32 s{s_cnt}, 0')
        a(f's_cbranch_scc1 {N}_p1loop')
        def pf(ptr, nb, so):
            if not opt.get('pf', True): return []
            l = Asm(); make_srd(l, 76, ptr, 0, nb); l(f'buffer_load_dword v253, v252, s[76:79], s{so} offen')
            return l.lines
        self.emit_iter(MI(1, '1', 1, 1, 0), ('p1peel', 0))
        def relA(k):
            return [f's_sub_u32 s{s_t1}, s{s_g1}, {k}', f's_lshl_b32 s{s_t1}, s{s_t1}, 5', f'v_subrev_u32 v{V_REL[0]}, s{s_t1}, v{V_RELA}']
        self.emit_iter(MI(1, '1m', 1, 1, 1), ('p1peel', 1), extra_pre=relA(4), extra_post=pf(72, 1792*4096, 74))
        for l in pf(70, 4*MB, 75): a(l)
        a.label(f'{N}_trans')
        self.stamp()
        self.emit_iter(MI(1, '1m', 1, 1, 0), ('trans', -4), extra_pre=relA(3))
        sw = [f's_lshl_b32 s{s_t0}, s{s_w}, 11']
        self.emit_iter(MI(1, '1m', 1, 2, 1), ('trans', -3), extra_pre=relA(2) + sw + [f's_add_u32 s{s_ks}, s{s_ks}, s{s_t0}'])
        self.emit_iter(MI(2, '1m', 1, 2, 0), ('trans', -2), extra_pre=relA(1))
        def relB(expr_lines):
            return expr_lines + [f'v_subrev_u32 v{V_REL[0]}, s{s_t1}, v{V_RELB}', f'v_subrev_u32 v{V_REL[1]}, 32, v{V_REL[0]}']
        self.emit_iter(MI(2, '2m', 1, 2, 1), ('trans', -1), extra_pre=relB([f's_lshl_b32 s{s_t1}, s{s_g1}, 5']))
        self.stamp()
        a('s_nop 12')
        self.epilogue_tile(OA, LA, 56)
        a(f's_lshl_b32 s{s_t0}, s{s_w}, 11')
        a(f's_add_u32 s{s_vs}, s{s_vs}, s{s_t0}')
        a(f's_cmp_eq_u32 s{s_i}, 7')
        a(f's_cbranch_scc1 {N}_epi')
        a(f's_sub_u32 s{s_cnt}, 30, s{s_g1}')
        a(f's_lshr_b32 s{s_cnt}, s{s_cnt}, 1')
        a('.p2align 6')
        a.label(f'{N}_p2loop')
        self.emit_iter(MI(2, '2', 2, 2, 0), ('p2loop', 0))
        self.emit_iter(MI(2, '2', 2, 2, 1), ('p2loop', 1))
        a(f's_sub_u32 s{s_cnt}, s{s_cnt}, 1')
        a(f's_cmp_lg_u32 s{s_cnt}, 0')
        a(f's_cbranch_scc1 {N}_p2loop')
        self.emit_iter(MI(2, '2', 2, 2, 0, dma=False), ('p2peel', 0), extra_post=(M.l2_prefetch(234) if opt.get('pf2', False) else None))
        relB32 = [f's_sub_u32 s{s_t1}, 64, s{s_g1}', f's_lshl_b32 s{s_t1}, s{s_t1}, 5']
        self.emit_iter(MI(2, '2m', 2, 2, 1, dma=False), ('p2peel', 1), extra_pre=relB(relB32))
        a.label(f'{N}_epi')
        self.stamp()
        relB33 = [f's_sub_u32 s{s_t1}, 66, s{s_g1}', f's_lshl_b32 s{s_t1}, s{s_t1}, 5']
        it = Iter(None, '2m', 2, None, 0); it.nov = True
        a('s_waitcnt lgkmcnt(0)')
        self.emit_iter(it, ('epi', 32), extra_pre=relB(relB33))
        it = Iter(None, None, 2, None, 1); it.nov = True
        a('s_nop 1')
        self.emit_iter(it, None)
        self.stamp()
        a(f's_cmp_eq_u32 s{s_i}, 7')
        a(f's_cbranch_scc1 {N}_nomlp')
        vq2 = VmQueue()
        M.finish(vq2, lambda: self.epilogue_tile(OB, LB, 58, vq2), self.stamp)
        self.stamp()
        self.dump_stamps()
        a('s_endpgm')
        a.label(f'{N}_nomlp')
        a('s_nop 15')
        self.epilogue_tile(OB, LB, 58)
        make_srd(a, 76, 34, WS_PART, 8*MB)
        a(f's_sub_u32 s{s_t0}, s2, 224'); a(f's_lshl_b32 s{s_t0}, s{s_t0}, 2'); a(f's_add_u32 s{s_t0}, s{s_t0}, s{s_w}'); a(f's_lshl_b32 s{s_t0}, s{s_t0}, 16')
        for e in range(4): a(f'v_mov_b32 v{V_T+4+e}, -1')
        a(f's_mov_b32 s{s_cnt}, 16')
        a.label(f'{N}_fill')
        for q in range(4):
            a(f'buffer_store_dwordx4 v[{V_T+4}:{V_T+7}], v{V_L16}, s[76:79], s{s_t0} offen offset:{q*1024}')
        a('s_waitcnt vmcnt(40)')
        a(f's_add_u32 s{s_t0}, s{s_t0}, 4096')
        a(f's_sub_u32 s{s_cnt}, s{s_cnt}, 1')
        a(f's_cmp_lg_u32 s{s_cnt}, 0')
        a(f's_cbranch_scc1 {N}_fill')
        a('s_waitcnt vmcnt(0)')
        self.stamp()
        self.dump_stamps()
        a.label(f'{N}_end')
        a('s_endpgm')
        for u, it in self.slow: self.emit_slow(u, it)
        self.emit_rescale()
```

```python
from asmlib import *
from layout import *
from gen_proj2 import VmQueue, v
from gen_proj import make_srd
from gen_t2 import lane_setup, dma_voffs, MF

class Mlp1:
    S_W1, S_H, S_U, S_B1 = 4, 8, 8, 4
    s_w, s_fb, s_db, s_a, s_b, s_w8k = 20, 80, 81, 82, 83, 84
    P_W1, P_B1, P_WS = 68, 86, 34
    ACC = 64; FB = [128, 144]; V_RB = [8, 9]; V_RA = [10, 11]; V_AO = 12; V_BO = 16; VL = 4; V_L16 = 5; T = 20; V_BI = 40; V_W = 6; V_R = 7
    SLOTS = [131072, 0, 32768, 65536, 98304]
    NS, PD = 16, 5
    def __init__(self, a, tshift=0): self.a = a; self.tshift = tshift

    def ids(self):
        a = self.a
        a('s_lshr_b32 s27, s2, 3'); a('s_and_b32 s29, s2, 7')
        if self.tshift: a(f's_sub_u32 s27, s27, {self.tshift}'); a('s_max_i32 s27, s27, 0')
        a('s_lshr_b32 s30, s29, 1'); a('s_mul_i32 s30, s30, 7'); a('s_lshr_b32 s31, s27, 2'); a(f's_add_u32 s{self.s_fb}, s30, s31')
        a('s_and_b32 s30, s29, 1'); a('s_lshl_b32 s30, s30, 2'); a('s_and_b32 s31, s27, 3'); a(f's_add_u32 s{self.s_db}, s30, s31')
        a(f's_lshl_b32 s{self.s_w8k}, s{self.s_w}, 13')

    def l2_prefetch(self, vtmp):
        l = Asm()
        make_srd(l, 76, self.P_W1, 0, 2048*3584)
        l(f'v_mul_u32_u24 v{vtmp}, 224, v204')
        l(f's_and_b32 s27, s{self.s_db}, 3'); l('s_lshl_b32 s27, s27, 2'); l(f's_add_u32 s27, s27, s{self.s_w}'); l(f's_mul_i32 s27, s27, {128*3584}')
        l(f's_lshl_b32 s29, s{self.s_fb}, 7'); l('s_add_u32 s27, s27, s29'); l(f's_add_u32 s29, s27, {64*3584}')
        l(f'buffer_load_dword v253, v{vtmp}, s[76:79], s27 offen')
        l(f'buffer_load_dword v253, v{vtmp}, s[76:79], s29 offen')
        make_srd(l, 76, self.P_WS, WS_H, 2*MB)
        l(f'v_lshlrev_b32 v{vtmp+1}, 6, v204')
        l(f's_lshr_b32 s27, s2, 5'); l('s_mul_i32 s27, s27, 292'); l(f's_mul_i32 s29, s{self.s_w}, 73'); l('s_add_u32 s27, s27, s29'); l('s_lshl_b32 s27, s27, 10')
        l(f's_lshl_b32 s29, s{self.s_db}, 7'); l('s_add_u32 s27, s27, s29')
        l(f'buffer_load_dword v253, v{vtmp+1}, s[76:79], s27 offen')
        return l.lines

    def setup_lines(self):
        a = Asm(); T = self.T; VL = self.VL; w = self.s_w
        a('v_mbcnt_lo_u32_b32 v0, -1, 0'); a('v_mbcnt_hi_u32_b32 v0, -1, v0')
        lane_setup(a, VL, T)
        a(f'v_lshlrev_b32 v{self.V_L16}, 4, v{VL}')
        for t in range(2):
            X = T+5; dst = self.V_RB[t]
            a(f'v_mul_u32_u24 v{X}, 8, v{T}'); a(f'v_add_u32 v{X}, v{X}, v{T+1}'); a(f'v_lshlrev_b32 v{X}, 7, v{X}')
            a(f'v_xor_b32 v{dst}, {t}, v{T+4}'); a(f'v_lshl_add_u32 v{X}, v{dst}, 6, v{X}')
            a(f'v_lshl_add_u32 v{X}, v{T+2}, 5, v{X}'); a(f'v_lshl_add_u32 v{X}, v{T+3}, 3, v{X}')
            a(f'v_add_u32 v{dst}, s{self.s_w8k}, v{X}')
        a(f's_lshr_b32 s29, s{w}, 1'); a('s_lshl_b32 s29, s29, 5'); a(f's_lshl_b32 s30, s{self.s_fb}, 6'); a('s_add_u32 s29, s29, s30'); a('s_lshl_b32 s31, s29, 1')
        a(f'v_lshlrev_b32 v{self.V_BI+8}, 3, v{T}')
        dma_voffs(a, self.V_AO, VL, T, 3584, 29)
        dma_voffs(a, self.V_BO, VL, T, 1024, 29)
        a(f's_lshl_b32 s29, s{w}, 14'); a(f'v_add_u32 v{self.V_W}, s29, v{self.V_L16}')
        a(f's_lshl_b32 s29, s{w}, 12'); a(f'v_add_u32 v{self.V_R}, s29, v{self.V_L16}')
        make_srd(a, self.S_W1, self.P_W1, 0, 2048*3584); make_srd(a, self.S_B1, self.P_B1, 0, 3584)
        make_srd(a, self.S_H, self.P_WS, WS_H, 2*MB); make_srd(a, self.S_U, self.P_WS, WS_U, 16*112*1024)
        a(f's_mul_i32 s{self.s_a}, s{w}, {512*3584}'); a(f's_lshl_b32 s29, s{self.s_fb}, 7'); a(f's_add_u32 s{self.s_a}, s{self.s_a}, s29')
        a(f's_lshl_b32 s{self.s_b}, s{w}, 19'); a(f's_lshl_b32 s29, s{self.s_db}, 7'); a(f's_add_u32 s{self.s_b}, s{self.s_b}, s29')
        return a.lines

    def bias_loads(self):
        return [([f'buffer_load_dwordx2 {v(self.V_BI+2*jj,2)}, v{self.V_BI+8}, s[{self.S_B1}:{self.S_B1+3}], s31 offen offset:{16*jj}'], 'bias') for jj in range(4)]

    def dma(self, t):
        slot = self.SLOTS[t % self.PD]; g = []
        for (vo, srd_, so, step, off) in ((self.V_AO, self.S_W1, self.s_a, 32*3584, 0), (self.V_BO, self.S_H, self.s_b, 32*1024, 4096)):
            for j in range(4):
                l = []
                if j == 0: l += [f's_add_u32 m0, s{self.s_w8k}, {slot+off}', 's_nop 0']
                l.append(f'buffer_load_dwordx4 v{vo+j}, s[{srd_}:{srd_+3}], s{so} offen' + (f' offset:{j*1024}' if j else '') + ' lds')
                if j == 3: l.append(f's_add_u32 s{so}, s{so}, {step}')
                g.append((l, t))
        return g

    def addr(self, t):
        return [f'v_add_u32 v{self.V_RA[k]}, {self.SLOTS[t % self.PD]}, v{self.V_RB[k]}' for k in range(2)]
    def reads(self, ks, buf):
        F = self.FB[buf]; l = []
        for op, base in ((0, 0), (1, 4096)):
            for tl in range(2):
                r = F + 8*op + 4*tl
                l.append(f'ds_read_b64_tr_b16 {v(r,2)}, v{self.V_RA[tl]} offset:{ks*2048+base}')
                l.append(f'ds_read_b64_tr_b16 {v(r+2,2)}, v{self.V_RA[tl]} offset:{ks*2048+base+512}')
        return l
    def mfmas(self, buf, first):
        F = self.FB[buf]; l = []
        for ft in range(2):
            for dt in range(2):
                acc = v(self.ACC+16*(2*ft+dt), 16)
                l.append(f'{MF} {acc}, {v(F+4*ft,4)}, {v(F+8+4*dt,4)}, ' + ('0' if first else acc))
        return l

    def finish(self, vq, epiB, stamp):
        a = self.a; T = self.T; w = self.s_w; L16 = 204
        V_W, V_R, DST = self.V_W, self.V_R, 64
        make_srd(a, self.S_B1, self.P_B1, 0, 3584); make_srd(a, self.S_U, self.P_WS, WS_U, 16*112*1024)
        a(f's_lshr_b32 s29, s{w}, 1'); a('s_lshl_b32 s29, s29, 5'); a(f's_lshl_b32 s30, s{self.s_fb}, 6'); a('s_add_u32 s29, s29, s30'); a('s_lshl_b32 s31, s29, 1')
        a(f'v_lshrrev_b32 v{T}, 9, v{L16}'); a(f'v_lshlrev_b32 v{self.V_BI+8}, 3, v{T}')
        for g in self.bias_loads():
            for l in g[0]: a(l)
            vq.push(g[1])
        a(f's_lshl_b32 s29, s{w}, 14'); a(f'v_add_u32 v{V_W}, s29, v{L16}')
        a(f's_lshl_b32 s29, s{w}, 12'); a(f'v_add_u32 v{V_R}, s29, v{L16}')
        for t in range(4):
            for q in range(4):
                r = 128+16*t+4*q
                a(f'ds_write_b128 v{V_W}, a[{r}:{r+3}] offset:{t*4096+q*1024}')
        epiB()
        stamp()
        a('s_waitcnt lgkmcnt(0)')
        a('s_barrier')
        for ww in range(4):
            for q in range(4):
                a(f'ds_read_b128 {v(DST+16*ww+4*q,4)}, v{V_R} offset:{ww*16384+q*1024}')
        vq.wait_for(a, 'bias')
        a('s_waitcnt lgkmcnt(0)')
        self.post(DST, L16)

    def post(self, DST, L16):
        a = self.a; T = self.T
        for e in range(16):
            a(f'v_add_f32 v{DST+e}, v{DST+e}, v{DST+16+e}')
            a(f'v_add_f32 v{DST+32+e}, v{DST+32+e}, v{DST+48+e}')
        for e in range(16): a(f'v_add_f32 v{DST+e}, v{DST+e}, v{DST+32+e}')
        for jj in range(4):
            b = self.V_BI+2*jj
            a(f'v_lshlrev_b32 v{T}, 16, v{b}'); a(f'v_and_b32 v{T+1}, 0xffff0000, v{b}')
            a(f'v_lshlrev_b32 v{T+2}, 16, v{b+1}'); a(f'v_and_b32 v{T+3}, 0xffff0000, v{b+1}')
            for r in range(4): a(f'v_add_f32 v{DST+4*jj+r}, v{DST+4*jj+r}, v{T+r}')
        K1, K2 = 0xc0135761, 0xbdd2d3e8
        a(f's_mov_b32 s29, {hex(K2)}')
        X = DST+16
        for e in range(16): a(f'v_mul_f32 v{X+e}, v{DST+e}, v{DST+e}')
        for e in range(16): a(f'v_mov_b32 v{X+16+e}, {hex(K1)}')
        for e in range(16): a(f'v_fmac_f32 v{X+16+e}, s29, v{X+e}')
        for e in range(16): a(f'v_mul_f32 v{X+e}, v{X+16+e}, v{DST+e}')
        for e in range(16): a(f'v_exp_f32 v{X+e}, v{X+e}')
        for e in range(16): a(f'v_add_f32 v{X+e}, 1.0, v{X+e}')
        for e in range(16): a(f'v_rcp_f32 v{X+e}, v{X+e}')
        for e in range(16): a(f'v_mul_f32 v{DST+e}, v{DST+e}, v{X+e}')
        w = self.s_w
        a(f's_and_b32 s29, s{w}, 1'); a(f's_lshl_b32 s30, s{self.s_db}, 1'); a('s_add_u32 s29, s29, s30'); a('s_mul_i32 s29, s29, 112')
        a(f's_lshr_b32 s30, s{w}, 1'); a('s_lshl_b32 s30, s30, 1'); a('s_add_u32 s29, s29, s30')
        a(f's_lshl_b32 s30, s{self.s_fb}, 2'); a('s_add_u32 s29, s29, s30'); a('s_lshl_b32 s29, s29, 10')
        for t in range(2):
            b = DST+8*t
            for k in range(4): a(f'v_cvt_pk_bf16_f32 v{b+k}, v{b+2*k}, v{b+2*k+1}')
            a(f'buffer_store_dwordx4 {v(b,4)}, v{L16}, s[{self.S_U}:{self.S_U+3}], s29 offen offset:{t*1024}{STF.st}')
        a('s_waitcnt vmcnt(0)')

    def main(self, vq):
        a = self.a; NS, PD, T = self.NS, self.PD, self.T
        def emit_g(g):
            for l in g[0]: a(l)
            vq.push(g[1])
        vq.wait_for(a, 0)
        for l in self.addr(0) + self.reads(0, 0): a(l)
        for t in range(NS):
            a('s_waitcnt lgkmcnt(0)')
            rd = self.reads(1, 1)
            for k, m in enumerate(self.mfmas(0, t == 0)):
                a(m)
                for l in rd[2*k:2*k+2]: a(l)
            a('s_waitcnt lgkmcnt(0)')
            rd = []
            if t+1 < NS:
                vq.wait_for(a, t+1)
                rd = self.addr(t+1) + self.reads(0, 0)
            gs = self.dma(t+PD) if t+PD < NS else []
            ml = self.mfmas(1, False)
            for k, m in enumerate(ml):
                a(m)
                for l in (rd[0:4] if k == 0 else rd[2+2*k:4+2*k]): a(l)
                for g in gs[2*k:2*k+2]: emit_g(g)
        a('s_barrier')
        a('s_nop 12')
        ACC, V_W, V_R, DST = self.ACC, self.V_W, self.V_R, 160
        for t in range(4):
            for q in range(4):
                a(f'ds_write_b128 v{V_W}, {v(ACC+16*t+4*q,4)} offset:{t*4096+q*1024}')
        a('s_waitcnt lgkmcnt(0)')
        a('s_barrier')
        for ww in range(4):
            for q in range(4):
                a(f'ds_read_b128 {v(DST+16*ww+4*q,4)}, v{V_R} offset:{ww*16384+q*1024}')
        a('s_waitcnt lgkmcnt(0)')
        for e in range(16):
            a(f'v_add_f32 v{DST+e}, v{DST+e}, v{DST+16+e}')
            a(f'v_add_f32 v{DST+32+e}, v{DST+32+e}, v{DST+48+e}')
        for e in range(16): a(f'v_add_f32 v{DST+e}, v{DST+e}, v{DST+32+e}')
        for jj in range(4):
            b = self.V_BI+2*jj
            a(f'v_lshlrev_b32 v{T}, 16, v{b}'); a(f'v_and_b32 v{T+1}, 0xffff0000, v{b}')
            a(f'v_lshlrev_b32 v{T+2}, 16, v{b+1}'); a(f'v_and_b32 v{T+3}, 0xffff0000, v{b+1}')
            for r in range(4): a(f'v_add_f32 v{DST+4*jj+r}, v{DST+4*jj+r}, v{T+r}')
        K1, K2 = 0xc0135761, 0xbdd2d3e8
        a(f's_mov_b32 s29, {hex(K2)}')
        X = DST+16
        for e in range(16): a(f'v_mul_f32 v{X+e}, v{DST+e}, v{DST+e}')
        for e in range(16): a(f'v_mov_b32 v{X+16+e}, {hex(K1)}')
        for e in range(16): a(f'v_fmac_f32 v{X+16+e}, s29, v{X+e}')
        for e in range(16): a(f'v_mul_f32 v{X+e}, v{X+16+e}, v{DST+e}')
        for e in range(16): a(f'v_exp_f32 v{X+e}, v{X+e}')
        for e in range(16): a(f'v_add_f32 v{X+e}, 1.0, v{X+e}')
        for e in range(16): a(f'v_rcp_f32 v{X+e}, v{X+e}')
        for e in range(16): a(f'v_mul_f32 v{DST+e}, v{DST+e}, v{X+e}')
        w = self.s_w
        a(f's_and_b32 s29, s{w}, 1'); a(f's_lshl_b32 s30, s{self.s_db}, 1'); a('s_add_u32 s29, s29, s30'); a('s_mul_i32 s29, s29, 112')
        a(f's_lshr_b32 s30, s{w}, 1'); a('s_lshl_b32 s30, s30, 1'); a('s_add_u32 s29, s29, s30')
        a(f's_lshl_b32 s30, s{self.s_fb}, 2'); a('s_add_u32 s29, s29, s30'); a('s_lshl_b32 s29, s29, 10')
        for t in range(2):
            b = DST+8*t
            for k in range(4): a(f'v_cvt_pk_bf16_f32 v{b+k}, v{b+2*k}, v{b+2*k+1}')
            a(f'buffer_store_dwordx4 {v(b,4)}, v{self.V_L16}, s[{self.S_U}:{self.S_U+3}], s29 offen offset:{t*1024}{STF.st}')
        a('s_waitcnt vmcnt(0)')
```

```python
from asmlib import *
from layout import *

MF = 'v_mfma_f32_32x32x16_bf16'
def v(b, n=1): return f'v{b}' if n == 1 else f'v[{b}:{b+n-1}]'
def ar(b, n=1): return f'a{b}' if n == 1 else f'a[{b}:{b+n-1}]'
SLOT = 49152

class VmQueue:
    def __init__(self): self.q = []
    def push(self, tag): self.q.append(tag)
    def count_for(self, tag):
        idx = [i for i, t in enumerate(self.q) if t == tag]
        if not idx: return None
        return len(self.q) - 1 - idx[-1]
    def wait_for(self, a, tag):
        n = self.count_for(tag)
        if n is None: return
        assert n <= 63
        a(f's_waitcnt vmcnt({n})')
        self.q = self.q[len(self.q)-n:] if n else []

class Proj:
    def __init__(self, a, vq, s_w, ring_lo, ring_start, ACC=64, FB=(0, 24), fbk='a', VA=8, V_L16=32, VT=33, SG=40, stamps=None, wflags='', opt=None):
        self.a, self.vq, self.s_w = a, vq, s_w
        self.lo, self.start, self.hi = ring_lo, ring_start, ring_lo + 3*SLOT
        self.ACC, self.FB = ACC, FB
        self.fr = ar if fbk == 'a' else v
        self.V_AR, self.V_WR, self.V_AB, self.V_WB, self.V_AD, self.V_WD = VA, VA+4, VA+8, VA+12, VA+16, VA+20
        self.V_L16, self.VT = V_L16, VT
        (self.s_a0, self.s_a1, self.s_wo, self.s_fill, self.s_rd, self.s_wW, self.s_wA, self.s_t) = range(SG, SG+8)
        self.st = stamps or (lambda n='': None)
        self.wflags = wflags
        self.opt = opt or {}
        self.lq = []

    def setup_addrs(self, set_l16=True):
        a = self.a; T = self.VT; w = self.s_w
        a(f'v_and_b32 v{T}, 63, v0')
        if set_l16: a(f'v_lshlrev_b32 v{self.V_L16}, 4, v{T}')
        a(f's_lshl_b32 s{self.s_wW}, s{w}, 12')
        a(f's_lshl_b32 s{self.s_wA}, s{w}, 13')
        a(f's_add_u32 s{self.s_wA}, s{self.s_wA}, 16384')
        a(f's_mov_b32 s{self.s_fill}, {self.start}')
        a(f's_mov_b32 s{self.s_rd}, {self.start}')
        a(f'v_and_b32 v{T+1}, 31, v{T}')
        a(f'v_lshrrev_b32 v{T+2}, 5, v{T}')
        a(f'v_bfe_u32 v{T+3}, v{T+1}, 1, 3')
        a(f'v_xor_b32 v{T+3}, v{T+3}, v{T+2}')
        a(f'v_lshlrev_b32 v{T+3}, 4, v{T+3}')
        a(f'v_lshl_add_u32 v{T+3}, v{T+1}, 7, v{T+3}')
        a(f'v_add_u32 v{self.V_AB}, s{self.s_wA}, v{T+3}')
        for ks in range(1, 4):
            a(f'v_xor_b32 v{self.V_AB+ks}, {ks << 5}, v{self.V_AB}')
        a(f'v_bfe_u32 v{T+3}, v{T}, 2, 2')
        a(f'v_lshl_add_u32 v{T+4}, v{T+2}, 3, v{T+3}')
        a(f'v_lshlrev_b32 v{T+4}, 8, v{T+4}')
        a(f'v_bfe_u32 v{T+5}, v{T}, 4, 1')
        a(f'v_lshl_add_u32 v{T+4}, v{T+5}, 5, v{T+4}')
        a(f'v_and_b32 v{T+5}, 3, v{T}')
        a(f'v_lshl_add_u32 v{T+4}, v{T+5}, 3, v{T+4}')
        for dt in range(4):
            a(f'v_xor_b32 v{T+5}, {dt}, v{T+3}')
            a(f'v_lshl_add_u32 v{self.V_WB+dt}, v{T+5}, 6, v{T+4}')
        a(f'v_lshrrev_b32 v{T+3}, 3, v{T}')
        a(f'v_and_b32 v{T+4}, 7, v{T}')
        a(f'v_lshrrev_b32 v{T+5}, 1, v{T+3}')
        for j in range(4):
            a(f'v_xor_b32 v{T+6}, v{T+4}, v{T+5}')
            if j & 1: a(f'v_xor_b32 v{T+6}, 4, v{T+6}')
            a(f'v_lshlrev_b32 v{T+6}, 4, v{T+6}')
            a(f'v_lshl_add_u32 v{T+6}, v{T+3}, 10, v{T+6}')
            a(f'v_add_u32 v{self.V_AD+j}, {j*(8192-1024)}, v{T+6}')
        a(f'v_lshrrev_b32 v{T+3}, 4, v{T}')
        a(f'v_bfe_u32 v{T+4}, v{T}, 2, 2')
        a(f'v_xor_b32 v{T+4}, v{T+4}, v{T+3}')
        a(f'v_lshlrev_b32 v{T+4}, 6, v{T+4}')
        a(f'v_and_b32 v{T+5}, 3, v{T}')
        a(f'v_lshl_add_u32 v{T+4}, v{T+5}, 4, v{T+4}')
        a(f'v_lshl_add_u32 v{T+4}, v{T+3}, 13, v{T+4}')
        for j in range(4):
            a(f'v_add_u32 v{self.V_WD+j}, {j*(32768-1024)}, v{T+4}')

    def adv(self, s):
        return [f's_add_u32 s{s}, s{s}, {SLOT}', f's_cmp_ge_u32 s{s}, {self.hi}', f's_cselect_b32 s{s}, {self.lo}, s{s}']

    def dma_stage(self, srdA, srdW, tag, pre=None):
        g = []
        def ld(vo, srd_, so, off, fl=''): return f'buffer_load_dwordx4 v{vo}, s[{srd_}:{srd_+3}], s{so} offen' + (f' offset:{off}' if off else '') + fl + ' lds'
        for j in range(4):
            l = []
            if j == 0: l += list(pre or []) + [f's_add_u32 m0, s{self.s_fill}, s{self.s_wW}', 's_nop 0']
            l.append(ld(self.V_WD+j, srdW, self.s_wo, j*1024, self.wflags))
            if j == 3: l.append(f's_add_u32 s{self.s_wo}, s{self.s_wo}, {64*8192}')
            g.append((l, tag))
        for t, so in ((0, self.s_a0), (1, self.s_a1)):
            for j in range(4):
                l = []
                if j == 0:
                    if t == 0: l += [f's_add_u32 s{self.s_t}, s{self.s_fill}, s{self.s_wA}', f's_mov_b32 m0, s{self.s_t}', 's_nop 0']
                    else: l += [f's_add_u32 m0, s{self.s_t}, 4096', 's_nop 0']
                l.append(ld(self.V_AD+j, srdA, so, j*1024))
                if j == 3: l.append(f's_add_u32 s{so}, s{so}, 128')
                g.append((l, tag))
        g[-1][0].extend(self.adv(self.s_fill))
        return g

    def emit_group(self, g):
        lines, tag = g
        for l in lines: self.a(l)
        if any(l.startswith('buffer_') for l in lines): self.vq.push(tag)

    def read_addr_update(self):
        l = []
        for k in range(4):
            l.append(f'v_add_u32 v{self.V_AR+k}, s{self.s_rd}, v{self.V_AB+k}')
            l.append(f'v_add_u32 v{self.V_WR+k}, s{self.s_rd}, v{self.V_WB+k}')
        return l + self.adv(self.s_rd)

    def kstep_reads(self, ks, buf):
        F = self.FB[buf]; fr = self.fr
        def act(t): return [f'ds_read_b128 {fr(F+16+4*t,4)}, v{self.V_AR+ks} offset:{t*4096}']
        def wf(dt): return [f'ds_read_b64_tr_b16 {fr(F+4*dt,2)}, v{self.V_WR+dt} offset:{ks*4096}',
                            f'ds_read_b64_tr_b16 {fr(F+4*dt+2,2)}, v{self.V_WR+dt} offset:{ks*4096+1024}']
        if self.opt.get('cnt', True):
            return [(l, ('a', buf, 0)) for l in act(0)] + [(l, ('w', buf, 0)) for l in wf(0)] + [(l, ('a', buf, 1)) for l in act(1)] + \
                   [(l, ('w', buf, dt)) for dt in (1, 2, 3) for l in wf(dt)]
        return [(l, None) for l in act(0) + wf(0) + wf(1) + act(1) + wf(2) + wf(3)]

    def kstep_mfmas(self, buf, swap, first, acck='v'):
        F = self.FB[buf]; fr = self.fr
        l = []
        for dt in range(4):
            for st in range(2):
                acc = (v if acck == 'v' else ar)(self.ACC + 16*(4*st+dt), 16)
                W = fr(F+4*dt, 4); A = fr(F+16+4*st, 4)
                c = '0' if first else acc
                l.append(f'{MF} {acc}, {A}, {W}, {c}' if swap else f'{MF} {acc}, {W}, {A}, {c}')
        return l

    def stage(self, swap, first, need_tag, early, late, last=False, acck='v'):
        a = self.a
        self.st('stage')
        early = list(early or []); late = list(late or [])
        eslot = {}
        for k in range(len(early)):
            eslot.setdefault(int(1 + k*(23.0/len(early))), []).append(early[k])
        lslot = {}
        for k in range(len(late)):
            lslot.setdefault(min(7, 2 + int(k*(6.0/len(late)))), []).append(late[k])
        cnt = self.opt.get('cnt', True)
        def emit_rd(x):
            a(x[0]); self.lq.append(x[1])
        def need(tags):
            idx = max([k for k, t in enumerate(self.lq) if t in tags], default=-1)
            if idx < 0: return
            n = len(self.lq) - 1 - idx
            a(f's_waitcnt lgkmcnt({n})')
            self.lq = self.lq[idx+1:]
        per = self.opt.get('rdper', 2)
        for ks in range(4):
            buf = ks & 1
            pre = []
            if not cnt or (ks == 3 and not last):
                a('s_waitcnt lgkmcnt(0)'); self.lq = []
            if ks == 3 and not last:
                if not self.opt.get('novm'): self.vq.wait_for(a, need_tag)
                if not self.opt.get('nobar'): a('s_barrier')
                pre = self.read_addr_update()
            mf = self.kstep_mfmas(buf, swap, first and ks == 0, acck)
            if ks < 3: rd = self.kstep_reads(ks+1, buf ^ 1)
            elif not last: rd = self.kstep_reads(0, buf ^ 1)
            else: rd = []
            for k, m in enumerate(mf):
                if cnt: need([('w', buf, k >> 1), ('a', buf, k & 1)])
                a(m)
                if k == 0:
                    for l in pre[:8]: a(l)
                for x in rd[per*k:per*(k+1)]: emit_rd(x)
                if k == 1:
                    for l in pre[8:]: a(l)
                for g in (eslot.get(8*ks+k, []) if ks < 3 else lslot.get(k, [])): self.emit_group(g)

    def prologue(self, p0):
        for t in range(2):
            for g in self.dma_stage(p0['srdA'], p0['srdW'], (0, t), pre=(p0['init'] if t == 0 else None)): self.emit_group(g)
        self.g_pending = self.dma_stage(p0['srdA'], p0['srdW'], (0, 2))
        for g in self.g_pending[:3]: self.emit_group(g)
        self.g_pending = self.g_pending[3:]

    def start_compute(self):
        a = self.a
        self.vq.wait_for(a, (0, 0))
        a('s_barrier')
        for l in self.read_addr_update(): a(l)
        self.lq = []
        for x in self.kstep_reads(0, 0):
            a(x[0]); self.lq.append(x[1])

    def run(self, passes, extra_early=None, extra_late=None):
        n = len(passes); total = 8*n
        xe = extra_early or (lambda p, t: []); xl = extra_late or (lambda p, t: [])
        for T in range(total):
            p, t = divmod(T, 8); ps = passes[p]
            early = self.g_pending; self.g_pending = []
            late = []
            T3 = T+3
            if T3 < total:
                p3, t3 = divmod(T3, 8)
                G = self.dma_stage(passes[p3]['srdA'], passes[p3]['srdW'], (p3, t3), pre=(passes[p3]['init'] if t3 == 0 else None))
                late = G[:3]; self.g_pending = G[3:]
            ex = list(xe(p, t)); merged = []
            e0 = list(early)
            tot = len(e0) + len(ex)
            ie = ix = 0
            for k in range(tot):
                if ix < len(ex) and (ie >= len(e0) or ix*len(e0) <= ie*len(ex) - 0.5*len(ex) or not e0): merged.append(ex[ix]); ix += 1
                else: merged.append(e0[ie]); ie += 1
            nxt = divmod(T+1, 8) if T+1 < total else None
            xlate = list(xl(p, t))
            for g in ex + xlate:
                if any('m0' in l for l in g[0]): assert T3 >= total and not (g in ex and e0), 'm0 clobber'
            self.stage(ps['swap'], t == 0, nxt, merged, late + xlate, last=(nxt is None), acck=ps.get('acck', 'v'))
            if t == 7:
                self.st('epi')
                ps['epi']()


from gen_proj import allreduce, unpack8, make_srd
import gen_proj

def emit_ln(a, base, X, V_L16, S_AX, S_GW, S_H, S_G, s_row, s_rowg, vq, part):
    if part == 'load':
        a(f'buffer_load_dwordx4 {v(base,4)}, v{V_L16}, s[{S_AX}:{S_AX+3}], s{s_row} offen'); vq.push('ln')
        a(f'buffer_load_dwordx4 {v(base+4,4)}, v{V_L16}, s[{S_AX}:{S_AX+3}], s{s_row} offen offset:1024'); vq.push('ln')
        a(f'buffer_load_dwordx4 {v(base+16,4)}, v{V_L16}, s[{S_GW}:{S_GW+3}], 0 offen'); vq.push('ln')
    else:
        vq.wait_for(a, 'ln')
        gen_proj.R.V_L16 = V_L16
        gen_proj.emit_ln_compute(a, base, S_H, S_G, s_row, s_rowg, X)
        for _ in range(3): vq.push('lnst')

def frag_store_groups(P, kind, acck, srd, s_offs, tmp, v_scale=None, tag='st'):
    G = []
    k = 0
    for dt in range(4):
        for st in range(2):
            A = P.ACC + 16*(4*st+dt)
            for t in range(2):
                b = A + 8*t
                f = (4*t+dt) if kind == 'V' else (2*dt+t)
                so = s_offs + 2*st + (f >> 2)
                if acck == 'a':
                    T = tmp + 8*(k & 1)
                    G.append(([f'v_accvgpr_read_b32 v{T+e}, a{b+e}' for e in range(4)], None))
                    G.append(([f'v_accvgpr_read_b32 v{T+e}, a{b+e}' for e in range(4, 8)], None))
                else:
                    T = b
                if v_scale is not None:
                    G.append(([f'v_pk_mul_f32 v[{T+e}:{T+e+1}], v[{T+e}:{T+e+1}], v[{v_scale}:{v_scale+1}]' for e in range(0, 8, 2)], None))
                l = [f'v_cvt_pk_bf16_f32 v{T+q}, v{T+2*q}, v{T+2*q+1}' for q in range(4)]
                l.append(f'buffer_store_dwordx4 v[{T}:{T+3}], v{P.V_L16}, s[{srd}:{srd+3}], s{so} offen offset:{(f & 3)*1024}{STF.st}')
                G.append((l, tag))
                k += 1
    return G

def emit_l1(a, N='l1', **opt):
    S_X, S_C, S_WK, S_WV, S_O, S_H, S_G, S_GW = 4, 8, 16, 24, 28, 32, 36, 60
    s_w, s_h, s_r = 20, 21, 22
    st_ = Stamps(a, opt.get('diag'))
    a('s_cmp_ge_u32 s2, 256')
    a(f's_cbranch_scc1 {N}_end')
    a(f's_load_dwordx4 s[64:67], s[0:1], {KA_AX}')
    a(f's_load_dwordx4 s[68:71], s[0:1], {KA_WUK}')
    a(f's_load_dwordx2 s[76:77], s[0:1], {KA_GW}')
    a(f's_load_dwordx2 s[78:79], s[0:1], {KA_WS}')
    a(f's_load_dwordx2 s[88:89], s[0:1], {KA_WQ}')
    a('v_lshrrev_b32 v1, 6, v0')
    a('s_and_b32 s23, s2, 7')
    a(f'v_readfirstlane_b32 s{s_w}, v1')
    a('s_lshr_b32 s48, s2, 3')
    a(f's_lshl_b32 s{s_h}, s23, 2')
    a('s_and_b32 s23, s48, 3')
    a(f's_add_u32 s{s_h}, s{s_h}, s23')
    a(f's_lshr_b32 s{s_r}, s48, 2')
    st_('start')
    vq = VmQueue()
    P = Proj(a, vq, s_w, 0, 0, stamps=st_, wflags=(' nt' if opt.get('nt', True) else ''), opt=opt)
    P.setup_addrs()
    a('s_waitcnt lgkmcnt(0)')
    make_srd(a, S_X, 64, 0, 2*MB); make_srd(a, S_C, 66, 0, 2*MB)
    make_srd(a, S_WK, 68, 0, 4*MB); make_srd(a, S_WV, 70, 0, 4*MB)
    make_srd(a, S_O, 78, WS_K, 32*MB)
    make_srd(a, S_H, 78, WS_H, 2*MB); make_srd(a, S_G, 78, WS_G, 8192)
    make_srd(a, S_GW, 76, 0, 1024)
    a(f's_lshl_b32 s80, s2, 3'); a(f's_lshl_b32 s81, s{s_w}, 1'); a('s_add_u32 s80, s80, s81')
    a('s_lshl_b32 s81, s80, 2')
    a('s_lshl_b32 s80, s80, 10')
    lnend = opt.get('lnend', False)
    if not lnend: emit_ln(a, 192, 64, P.V_L16, S_X, S_GW, S_H, S_G, 80, 81, vq, 'load')
    c = 0x3e0293ee
    a(f'v_mov_b32 v2, {hex(c)}'); a(f'v_mov_b32 v3, {hex(c)}')
    init = [f's_lshl_b32 s{P.s_a0}, s{s_r}, 18', f's_lshl_b32 s49, s{s_w}, 16', f's_add_u32 s{P.s_a0}, s{P.s_a0}, s49',
            f's_add_u32 s{P.s_a1}, s{P.s_a0}, 32768',
            f's_lshl_b32 s{P.s_wo}, s{s_w}, 17', f's_lshl_b32 s49, s{s_h}, 8', f's_add_u32 s{P.s_wo}, s{P.s_wo}, s49']
    a(f's_lshl_b32 s82, s{s_h}, 6'); a(f's_lshl_b32 s83, s{s_r}, 3'); a('s_add_u32 s82, s82, s83')
    a(f's_lshl_b32 s83, s{s_w}, 1'); a('s_add_u32 s82, s82, s83'); a('s_lshl_b32 s82, s82, 13')
    for k in range(4):
        a(f's_add_u32 s{50+k}, s82, {k*4096}')
        a(f's_add_u32 s{84+k}, s82, {16*MB + k*4096}')
    KG = frag_store_groups(P, 'K', 'a', S_O, 50, 192, v_scale=2)
    per = len(KG)//8
    def vepi():
        a('s_nop 7'); a('s_nop 7')
        for g in frag_store_groups(P, 'V', 'v', S_O, 84, None): P.emit_group(g)
    ps = [dict(swap=False, srdA=S_C, srdW=S_WK, init=init, epi=lambda: None, acck='a'),
          dict(swap=True, srdA=S_C, srdW=S_WV, init=init, epi=vepi, acck='v')]
    P.prologue(ps[0])
    if not lnend: emit_ln(a, 192, 64, P.V_L16, S_X, S_GW, S_H, S_G, 80, 81, vq, 'compute')
    P.start_compute()
    def lnload():
        l = Asm(); q = VmQueue(); emit_ln(l, 216, 64, P.V_L16, S_X, S_GW, S_H, S_G, 80, 81, q, 'load')
        return [([x], 'ln') for x in l.lines]
    def xe(p, t):
        g = list(KG[t*per:(t+1)*per]) if p == 1 else []
        if opt.get('pfq', True) and (p, t) == tuple(opt.get('pfq_at', (1, 2))):
            l = Asm(); make_srd(l, 56, 88, 0, 4*MB)
            l(f'v_lshlrev_b32 v4, 3, v{P.V_L16}')
            l(f's_lshl_b32 s49, s2, 2'); l(f's_add_u32 s49, s49, s{s_w}'); l('s_lshl_b32 s49, s49, 12')
            l('buffer_load_dword v5, v4, s[56:59], s49 offen')
            g.append((l.lines, 'pf'))
        return g
    def xl(p, t):
        return lnload() if (lnend and p == 1 and t == 5) else []
    P.run(ps, extra_early=xe, extra_late=xl)
    if lnend: emit_ln(a, 216, 64, P.V_L16, S_X, S_GW, S_H, S_G, 80, 81, vq, 'compute')
    st_('stores')
    a('s_waitcnt vmcnt(0)')
    st_('end')
    st_.dump(100*MB, s_w, 250)
    a.label(f'{N}_end')
    a('s_endpgm')
```

```python
from asmlib import *
from layout import *
from gen_proj2 import Proj, VmQueue
from gen_proj import make_srd
import gen_t2
from gen_mlp import Mlp1

OA, OB = 0, 64
QA, QB = 0, 32
PFB = (128, 152)
FR = 192
NFR = 16
S = [[64, 80], [96, 112]]
P = [[128, 136], [144, 152]]
CA, CB = 160, 176
PT = 192
PS = [200, 201]
LA, LB = 202, 203
V_L16 = 204; V_KA = 205; V_VA = 206
V_RELA = 207; V_RELB = 208; V_NEG = 209
V_T = 210
V_DA, V_DB = 226, 227
V_AA, V_AB = 228, 229
V_MASK = 230; V_VBASE = 231; V_REL = [232, 233]
V_ST = 236
V_MA, V_MB, V_MR = 214, 216, 218
MACC = 128
S_MW, S_MH = 12, 60
s_ma, s_mb, s_ml = 85, 88, 89
S_K, S_V, S_Q, S_C = 4, 8, 12, 16
s_w, s_h, s_i, s_g1, s_cnt, s_ks, s_vs, s_t0, s_thr = 20, 21, 22, 23, 24, 25, 26, 27, 28
s_t1, s_step = 29, 32
S_RET = 30
S_M = 40
D = 8
THR = 0x4e800000

def v(b, n=1): return f'v{b}' if n == 1 else f'v[{b}:{b+n-1}]'
def ar(b, n=1): return f'a{b}' if n == 1 else f'a[{b}:{b+n-1}]'
MF = 'v_mfma_f32_32x32x16_bf16'

class Iter:
    def __init__(self, qk, sm, pv, next_qk, par, czero=False):
        self.qk, self.sm, self.pv, self.next_qk, self.par, self.czero = qk, sm, pv, next_qk, par, czero

def nfr(mode): return {None: 0, 1: 8, 2: 16}[mode]

class Attn:
    def __init__(self, a, name, diag=False, **opt):
        self.a = a; self.name = name; self.diag = diag; self.opt = opt; self.st = (RTStamps if opt.get('rt') else Stamps)(a, diag, vreg=254, sreg=30); self.mlp = opt.get('mlp', True)
        self.phase = 0
        self.slow = []
        self.uid = 0
        self.vm = {}

    def simulate(self):
        res = {}
        self.vmm = {}
        for i in range(8):
            G1 = 4*(i+1)
            def mode(g): return None if (g < 0 or g > 33) else (1 if g < G1 else 2)
            def first(g):
                return g if g <= G1 else G1 + 2*(g-G1)
            def r(g): return 1 if g < G1 else 2
            issued = []
            def issue(kind, b0, nb):
                for b in range(b0, b0+nb):
                    issued.extend([(kind, b)]*2)
            kd = 0; vd = 0
            issue('K', 0, 6); issue('V', 0, 4)
            kd, vd = 6, 4
            kfree = 0; vfree = 0
            def need(n):
                req = []
                if mode(n+3): req += [('K', b) for b in range(first(n+3), first(n+3)+r(n+3))]
                if mode(n+1): req += [('V', b) for b in range(first(n+1), first(n+1)+r(n+1))]
                last = -1
                for k, x in enumerate(issued):
                    if x in req: last = k
                for x in req: assert x in issued, (i, n, x)
                return len(issued) - 1 - last if last >= 0 else None
            def pos(n):
                if n <= -1: return ('pro', n)
                if n <= G1-5:
                    if n >= G1-6 : return ('p1peel', n & 1)
                    return ('p1loop', n & 1)
                if n <= G1-1: return ('trans', n-G1)
                if n <= 31:
                    if n >= 30: return ('p2peel', n & 1)
                    return ('p2loop', n & 1)
                return ('epi', n)
            for n in range(-3, 34):
                if n == -1 and self.mlp: issued.extend([('M', 0)]*4 + [('M', 1)]*4)
                if n >= -2:
                    if mode(n) and n <= 31:
                        b0 = vd; nb = r(n)
                        assert b0 + nb - 8 <= (first(n-1) if n-1 >= 0 else 0), (i, n, b0, nb)
                        issue('V', b0, nb); vd += nb
                p = pos(n)
                if self.mlp and 0 <= n <= 31:
                    idx = [k for k, x in enumerate(issued) if x == ('M', n)]
                    if idx:
                        Nm = len(issued) - 1 - idx[-1]
                        self.vmm[p] = min(self.vmm.get(p, 99), Nm)
                    else: assert n >= 32 or i == 7 or True
                    if p[0] != 'p2peel': issued.extend([('M', n+2)]*4)
                N = need(n)
                if N is not None:
                    res[p] = min(res.get(p, 99), N)
                if mode(n+3) or (n <= 31 and n >= -3):
                    nb = r(n+3)
                    if n <= 30 or True:
                        assert kd + nb - 8 <= first(n+3), (i, n, kd, nb)
                        issue('K', kd, nb); kd += nb
                if n == G1-1: issued.extend([('S', 0)]*8)
        self.vm = res
        return res

    def dma_group(self, kind, nb, split=False):
        srd_, so = (S_K, s_ks) if kind == 'K' else (S_V, s_vs)
        g = []
        if kind == 'K':
            pre = [f's_and_b32 m0, s{so}, 0xffff']
        else:
            pre = [f's_and_b32 s{s_t0}, s{so}, 0xffff', f's_or_b32 m0, s{s_t0}, 0x10000']
        n = 2*nb
        if split: g.append(pre)
        for k in range(n):
            l = []
            if k == 0 and not split: l += pre + ['s_nop 0']
            off = f' offset:{k*1024}' if k else ''
            l.append(f'buffer_load_dwordx4 v{V_L16}, s[{srd_}:{srd_+3}], s{so} offen{off} lds')
            if k == n-1: l.append(f's_add_u32 s{so}, s{so}, {nb*8192}')
            g.append(l)
        return g

    def mlp_dma_groups(self, par):
        g = []
        for vo, srd_, so, step, off in ((V_MA, S_MW, s_ma, 16*3584, 0), (V_MB, S_MH, s_mb, 16*1024, 2048)):
            g.append([f's_add_u32 m0, s{s_ml}, {par*4096+off}'])
            g.append([f'buffer_load_dwordx4 v{vo}, s[{srd_}:{srd_+3}], s{so} offen lds'])
            g.append([f'buffer_load_dwordx4 v{vo+1}, s[{srd_}:{srd_+3}], s{so} offen offset:1024 lds', f's_add_u32 s{so}, s{so}, {step}'])
        return g

    def sm_ops(self, it):
        sm = it.sm; pr = it.par ^ 1
        ops = []
        masked = sm.endswith('m')
        init = sm == 'init'
        mode = '1' if init else sm[0]
        for b in range(2):
            Sb = S[pr][b]; Pb = P[pr][b]
            domask = masked and (mode == '2' or b == 0)
            blk = []
            if domask:
                def cmp(e): return (4, f'v_cmp_ge_i32 s[{S_M+2*(e%8)}:{S_M+2*(e%8)+1}], v{V_REL[b]}, {8*(e>>2)+(e&3)}')
                def cnd(e): return (4, f'v_cndmask_b32 v{Sb+e}, v{V_NEG}, v{Sb+e}, s[{S_M+2*(e%8)}:{S_M+2*(e%8)+1}]')
                blk += [cmp(0), cmp(1), cmp(2), cmp(3), cnd(0)]
            for e in range(16):
                if domask:
                    if e+4 < 16: blk.append(cmp(e+4))
                    if e+1 < 16: blk.append(cnd(e+1))
                if init:
                    if e == 0: blk.append((4, f'v_sub_f32 v{Sb}, v{Sb}, v{V_DA if b == 0 else V_DB}'))
                    if e+1 < 16: blk.append((4, f'v_sub_f32 v{Sb+e+1}, v{Sb+e+1}, v{V_DA if b == 0 else V_DB}'))
                blk.append((8, f'v_exp_f32 v{PT+(e%8)}, v{Sb+e}'))
                if e >= 2 or True:
                    k = e-1
                    if k == 1: blk.append((4, f'v_add_f32 v{PS[b]}, v{PT+0}, v{PT+1}'))
                    elif k > 1: blk.append((4, f'v_add_f32 v{PS[b]}, v{PS[b]}, v{PT+(k%8)}'))
                    if k >= 1 and k % 2 == 1:
                        blk.append((4, f'v_cvt_pk_bf16_f32 v{Pb+(k>>1)}, v{PT+((k-1)%8)}, v{PT+(k%8)}'))
            blk.append((4, f'v_add_f32 v{PS[b]}, v{PS[b]}, v{PT+(15%8)}'))
            blk.append((4, f'v_cvt_pk_bf16_f32 v{Pb+7}, v{PT+(14%8)}, v{PT+(15%8)}'))
            ops += blk
        if not init and not self.opt.get('nocheck'):
            ops.append((4, f'v_max_f32 v{V_T}, v{PS[0]}, v{PS[1]}'))
            ops.append((4, f'v_cmp_lt_f32 vcc, s{s_thr}, v{V_T}'))
        return ops

    def rel_setup(self, it):
        return []

    def emit_iter(self, it, pos, extra_pre=None, name='', extra_post=None):
        a = self.a
        par = it.par
        ph = self.phase
        mf = []
        reads = []
        fidx = 0
        def fr(k): return FR + 4*((ph + k) % NFR)
        Sw = S[par]; Pr = P[par]
        if it.qk == 1:
            for j in range(8):
                A = ar(fr(fidx+j), 4)
                for b, Q, C in ((0, QA, CA), (1, QB, CB)):
                    c = ('0' if it.czero else v(C, 16)) if j == 0 else v(Sw[b], 16)
                    mf.append((f'{MF} {v(Sw[b],16)}, {A}, {v(Q+4*j,4)}, {c}', fidx+j))
                reads.append((2*j, f'ds_read_b128 {A}, v{V_KA} offset:{j*1024}', fidx+j))
            fidx += 8
        elif it.qk == 2:
            for f in range(16):
                b, j = f >> 3, f & 7
                A = ar(fr(fidx+f), 4)
                c = ('0' if it.czero else v(CB, 16)) if j == 0 else v(Sw[b], 16)
                mf.append((f'{MF} {v(Sw[b],16)}, {A}, {v(QB+4*j,4)}, {c}', fidx+f))
                reads.append((f, f'ds_read_b128 {A}, v{V_KA} offset:{f*1024}', fidx+f))
            fidx += 16
        mlp = self.mlp and getattr(it, 'mlp', False)
        m0 = len(mf)
        if mlp:
            for ft in range(2):
                for dt in range(2):
                    acc = ar(MACC+16*(2*ft+dt), 16)
                    mf.append((f'{MF} {acc}, {v(V_ST+4*ft,4)}, {v(V_ST+8+4*dt,4)}, {acc}', 'm7' if (ft, dt) == (0, 0) else None))
        s0 = len(mf)
        if it.pv == 1:
            for f in range(8):
                t, db = f >> 2, f & 3
                A = ar(fr(fidx+f), 4)
                for b, O in ((0, OA), (1, OB)):
                    mf.append((f'{MF} {ar(O+16*db,16)}, {A}, {v(Pr[b]+4*t,4)}, {ar(O+16*db,16)}', fidx+f))
                reads.append((s0+2*f, f'ds_read_b128 {A}, v{V_VA} offset:{f*1024}', fidx+f))
            fidx += 8
        elif it.pv == 2:
            for f in range(16):
                b, t, db = f >> 3, (f >> 2) & 1, f & 3
                A = ar(fr(fidx+f), 4)
                mf.append((f'{MF} {ar(OB+16*db,16)}, {A}, {v(Pr[b]+4*t,4)}, {ar(OB+16*db,16)}', fidx+f))
                reads.append((s0+f, f'ds_read_b128 {A}, v{V_VA} offset:{f*1024}', fidx+f))
            fidx += 16
        ns = len(mf)
        nown = fidx
        lead_in = [r for r in reads if it.qk and r[0] < D and r[2] < nfr(it.qk)]
        own = [r for r in reads if r not in lead_in]
        lead_out = []
        if it.next_qk:
            n = nfr(it.next_qk)
            for j in range(n):
                fu = 2*j if it.next_qk == 1 else j
                if fu < D:
                    A = ar(FR + 4*((ph + nown + j) % NFR), 4)
                    lead_out.append((ns + fu, f'ds_read_b128 {A}, v{V_KA} offset:{j*1024}', nown+j))
        bslot = max(ns - D, 0)
        slots = [[] for _ in range(ns+1)]
        pre = []
        order = [r[2] for r in lead_in]
        def place_read(slot, r):
            (pre if slot < 0 else slots[slot]).append(('ds', r[1], r[2]))
        for r in own:
            place_read(r[0]-D if r[0]-D >= 0 else -1, r)
        if mlp:
            base = par*4096
            rd = []
            for op in range(2):
                for tl in range(2):
                    r = V_ST + 8*op + 4*tl
                    rd.append(f'ds_read_b64_tr_b16 {v(r,2)}, v{V_MR+tl} offset:{base+op*2048}')
                    rd.append(f'ds_read_b64_tr_b16 {v(r+2,2)}, v{V_MR+tl} offset:{base+op*2048+512}')
            slots[m0-8].append(('x', f's_waitcnt vmcnt({self.vmm[pos]})'))
            for k, t_ in enumerate(rd): slots[m0-8+k//2].append(('ds', t_, f'm{k}'))
        win = []
        has_bar = pos is not None and pos in self.vm
        if has_bar:
            if not self.opt.get('novm'): win.append(('x', f's_waitcnt vmcnt({0 if pos == ("epi", 32) else self.vm[pos]})'))
            if not self.opt.get('nobar'): win.append(('x', 's_barrier'))
        if it.qk:
            win.append(('x', f'v_add_u32 v{V_KA}, {8192*(1 if it.qk==1 else 2)}, v{V_KA}'))
            win.append(('x', f'v_and_b32 v{V_KA}, 0xffff, v{V_KA}'))
        if it.pv:
            win.append(('x', f'v_add_u32 v{V_VA}, {8192*(1 if it.pv==1 else 2)}, v{V_VA}'))
            win.append(('x', f'v_and_or_b32 v{V_VA}, v{V_VA}, v{V_MASK}, v{V_VBASE}'))
        for r in own:
            assert r[0]-D < bslot or ns <= D, (r, bslot)
        vg = self.dma_group('V', 1 if it.pv == 1 else 2, split=True) if (it.pv and not getattr(it, 'nov', False)) else []
        kg = self.dma_group('K', 1 if it.next_qk == 1 else 2, split=True) if (it.next_qk or getattr(it, 'forcek', False)) else []
        if self.opt.get('nodma') and pos and pos[0] != 'pro': vg = []; kg = []
        mg = []
        if mlp and getattr(it, 'mlp_dma', True): mg = [(m0+1+k, g) for k, g in enumerate(self.mlp_dma_groups(par))]
        if getattr(it, 'mlp_first', False):
            gs = self.mlp_dma_groups(0) + self.mlp_dma_groups(1)
            gs = [g + ['s_nop 0'] if 'm0' in g[0] else g for g in gs]
            mg = [(k*7//len(gs), g) for k, g in enumerate(gs)]
        sm = self.sm_ops(it) if it.sm else []
        if self.opt.get('nosm'): sm = []
        if self.opt.get('noexp'): sm = [(c, t) for c, t in sm if 'exp' not in t]
        if self.opt.get('noadd'): sm = [(c, t) for c, t in sm if 'v_add_f32' not in t]
        tot = sum(c for c, _ in sm)
        fixed = [0.0]*ns
        for k in range(ns):
            fixed[k] += 4*len(slots[k])
        for k, grp in enumerate(vg):
            sl = min(ns-1, k*(1 if len(vg) > 3 else 2))
            slots[sl].append(('dma', grp)); fixed[sl] += 4*len(grp)
        for sl, grp in mg:
            slots[sl].append(('dma', grp)); fixed[sl] += 4*len(grp)
        slots[bslot] = win + slots[bslot]; fixed[bslot] += 4*len(win)
        for r in lead_out:
            sl = min(ns-1, r[0]-D); slots[sl].append(('ds', r[1], r[2])); fixed[sl] += 4
        for k, grp in enumerate(kg):
            sl = min(ns-1, bslot + k*(1 if len(kg) > 3 else 2) + (1 if k else 0))
            slots[sl].append(('dma', grp)); fixed[sl] += 4*len(grp)
        xf = list(getattr(it, 'fill', [])); xg = list(getattr(it, 'fill_groups', []))
        if xf or xg:
            nsl = ns
            half = max(1, int(nsl*0.55))
            for k, x in enumerate(xf): slots[min(half-1, k*half//len(xf))].append(x)
            for k, g in enumerate(xg): slots[min(nsl-1, half + k*(nsl-half)//len(xg))].append(('dmag', g))
        total = tot + sum(fixed)
        smslots = [[] for _ in range(ns)]
        if sm:
            k = 0; cum = 0.0; target_end = ns - self.opt.get('tail', 1.6)
            acc = 0.0
            for sl in range(ns):
                acc += fixed[sl]
                lim = total * (sl+1) / target_end
                while k < len(sm) and (acc + sm[k][0]*0.5 <= lim or sl == ns-1):
                    smslots[sl].append(sm[k]); acc += sm[k][0]; k += 1
        if extra_pre:
            for l in extra_pre: a(l)
        q = list(order)
        def emit_fill(x):
            if x[0] == 'ds':
                a(x[1]); q.append(x[2])
            elif x[0] == 'dma':
                for l in x[1]: a(l)
            elif x[0] == 'dmag':
                for l in x[1][0]: a(l)
                it.vq.push(x[1][1])
            else:
                a(x[1])
        for x in pre: emit_fill(x)
        waited = -1
        for k, (txt, f) in enumerate(mf):
            if f is not None and f in q:
                idx = q.index(f)
                if idx+1 < len(q) and (k % 2 == 0): idx2 = idx+1
                else: idx2 = idx
                nleft = len(q) - 1 - idx2
                a(f's_waitcnt lgkmcnt({nleft})')
                q = q[idx2+1:]
            a(txt)
            fl = slots[k]
            for x in fl:
                if x[0] in ('x', 'ds'): emit_fill(x)
            for c, t in smslots[k]: a(t)
            for x in fl:
                if x[0] in ('dma', 'dmag'): emit_fill(x)
        self.phase = (ph + nown) % NFR
        for l in (extra_post or []): a(l)
        if it.sm and it.sm != 'init' and not self.opt.get('nocheck'):
            self.uid += 1
            u = self.uid
            a(f's_cbranch_vccnz {self.name}_slow{u}')
            a.label(f'{self.name}_join{u}')
            self.l_update(it.sm)
            self.slow.append((u, it))
        elif it.sm == 'init':
            a(f'v_mov_b32 v{LA}, v{PS[0]}')
            a(f'v_mov_b32 v{LB}, v{PS[1]}')

    def l_update(self, sm):
        a = self.a
        if sm[0] == '1' or sm == 'init':
            a(f'v_add_f32 v{LA}, v{LA}, v{PS[0]}')
            a(f'v_add_f32 v{LB}, v{LB}, v{PS[1]}')
        else:
            a(f'v_add_f32 v{LB}, v{LB}, v{PS[0]}')
            a(f'v_add_f32 v{LB}, v{LB}, v{PS[1]}')

    def rowmax(self, dst, blocks):
        a = self.a
        regs = [b+e for b in blocks for e in range(16)]
        a(f'v_max3_f32 v{dst}, v{regs[0]}, v{regs[1]}, v{regs[2]}')
        k = 3
        while k+1 < len(regs):
            a(f'v_max3_f32 v{dst}, v{dst}, v{regs[k]}, v{regs[k+1]}'); k += 2
        if k < len(regs): a(f'v_max_f32 v{dst}, v{dst}, v{regs[k]}')
        a(f'v_mov_b32 v{V_T+1}, v{dst}')
        a('s_nop 1')
        a(f'v_permlane32_swap_b32 v{V_T+1}, v{dst}')
        a('s_nop 1')
        a(f'v_max_f32 v{dst}, v{dst}, v{V_T+1}')

    def plain_sm(self, pr):
        a = self.a
        for b in range(2):
            for e in range(0, 16, 2):
                a(f'v_exp_f32 v{PT}, v{S[pr][b]+e}')
                a(f'v_exp_f32 v{PT+1}, v{S[pr][b]+e+1}')
                a('s_nop 0')
                a(f'v_cvt_pk_bf16_f32 v{P[pr][b]+(e>>1)}, v{PT}, v{PT+1}')
                if e == 0:
                    a(f'v_add_f32 v{PS[b]}, v{PT}, v{PT+1}')
                else:
                    a(f'v_add_f32 v{PS[b]}, v{PS[b]}, v{PT}')
                    a(f'v_add_f32 v{PS[b]}, v{PS[b]}, v{PT+1}')

    def sub_delta(self, pr, mode):
        a = self.a
        for b in range(2):
            dl = V_DA if (mode == 1 and b == 0) else V_DB
            for e in range(16):
                a(f'v_sub_f32 v{S[pr][b]+e}, v{S[pr][b]+e}, v{dl}')

    def emit_slow(self, u, it):
        a = self.a
        pr = it.par ^ 1
        mode = 1 if it.sm[0] == '1' else 2
        a.label(f'{self.name}_slow{u}')
        a('s_nop 15')
        a('s_nop 7')
        if mode == 1:
            self.rowmax(V_DA, [S[pr][0]])
            self.rowmax(V_DB, [S[pr][1]])
            a(f'v_max_f32 v{V_DA}, 0, v{V_DA}')
        else:
            self.rowmax(V_DB, [S[pr][0], S[pr][1]])
            a(f'v_mov_b32 v{V_DA}, 0')
        a(f'v_max_f32 v{V_DB}, 0, v{V_DB}')
        a(f's_call_b64 s[{S_RET}:{S_RET+1}], {self.name}_rescale')
        self.sub_delta(pr, mode)
        if it.qk: self.sub_delta(it.par, it.qk)
        self.plain_sm(pr)
        a(f's_branch {self.name}_join{u}')

    def emit_rescale(self):
        a = self.a
        a.label(f'{self.name}_rescale')
        a(f'v_exp_f32 v{V_AA}, -v{V_DA}')
        a(f'v_exp_f32 v{V_AB}, -v{V_DB}')
        a('s_nop 0')
        for O, al in ((OA, V_AA), (OB, V_AB)):
            for e in range(0, 64, 4):
                for k in range(4): a(f'v_accvgpr_read_b32 v{V_T+k}, a{O+e+k}')
                for k in range(4): a(f'v_mul_f32 v{V_T+k}, v{V_T+k}, v{al}')
                for k in range(4): a(f'v_accvgpr_write_b32 a{O+e+k}, v{V_T+k}')
        a(f'v_mul_f32 v{LA}, v{LA}, v{V_AA}')
        a(f'v_mul_f32 v{LB}, v{LB}, v{V_AB}')
        for e in range(16):
            a(f'v_sub_f32 v{CA+e}, v{CA+e}, v{V_DA}')
            a(f'v_sub_f32 v{CB+e}, v{CB+e}, v{V_DB}')
        a('s_nop 1')
        a(f's_setpc_b64 s[{S_RET}:{S_RET+1}]')

    def mask_inplace(self, pr, b):
        a = self.a
        for e0 in range(0, 16, 8):
            for e in range(e0, e0+8):
                a(f'v_cmp_ge_i32 s[{S_M+2*(e%8)}:{S_M+2*(e%8)+1}], v{V_REL[b]}, {8*(e>>2)+(e&3)}')
            a('s_nop 1')
            for e in range(e0, e0+8):
                a(f'v_cndmask_b32 v{S[pr][b]+e}, v{V_NEG}, v{S[pr][b]+e}, s[{S_M+2*(e%8)}:{S_M+2*(e%8)+1}]')

    def emit_init(self):
        a = self.a
        a(f'v_mov_b32 v{V_REL[0]}, v{V_RELA}')
        a('s_nop 12')
        self.mask_inplace(0, 0)
        self.rowmax(V_DA, [S[0][0]])
        self.rowmax(V_DB, [S[0][1]])
        for e in range(16):
            a(f'v_sub_f32 v{CA+e}, 0, v{V_DA}')
            a(f'v_sub_f32 v{CB+e}, 0, v{V_DB}')
        a('s_nop 1')

    def epilogue_tile(self, O, L, qt_sgpr, vq=None):
        a = self.a
        a(f'v_mov_b32 v{V_T+1}, v{L}')
        a('s_nop 1')
        a(f'v_permlane32_swap_b32 v{V_T+1}, v{L}')
        a('s_nop 1')
        a(f'v_add_f32 v{L}, v{L}, v{V_T+1}')
        a(f'v_rcp_f32 v{V_T+2}, v{L}')
        a('s_nop 0')
        a(f'v_mov_b32 v{V_T+3}, v{V_T+2}')
        inv = V_T+2
        k = 0
        for db in range(4):
            for t in range(2):
                tmp = V_ST + 8*(k % 2)
                for e in range(8): a(f'v_accvgpr_read_b32 v{tmp+e}, a{O+16*db+8*t+e}')
                for e in range(0, 8, 2): a(f'v_pk_mul_f32 v[{tmp+e}:{tmp+e+1}], v[{tmp+e}:{tmp+e+1}], v[{inv}:{inv+1}]')
                for e in range(0, 8, 2): a(f'v_cvt_pk_bf16_f32 v{tmp+(e>>1)}, v{tmp+e}, v{tmp+e+1}')
                j = 2*db+t
                off = j*1024
                so = qt_sgpr if off < 4096 else qt_sgpr+1
                a(f'buffer_store_dwordx4 v[{tmp}:{tmp+3}], v{V_L16}, s[{S_C}:{S_C+3}], s{so} offen offset:{off % 4096}{STF.st}')
                if vq: vq.push('ctx')
                k += 1

    def stamp(self, same=False):
        self.st()
    def dump_stamps(self):
        self.st.dump(100*MB, s_w, 253)

    def emit(self):
        self.simulate()
        M = self.emit_head()
        self.emit_body(M)

    def kv_srd_lines(self):
        a = Asm()
        a(f's_lshl_b32 s{s_t0}, s{s_h}, 19')
        a(f's_lshl_b32 s{s_t1}, s{s_i}, 15')
        a(f's_sub_u32 s{s_t1}, 0x80000, s{s_t1}')
        for S_, base in ((S_K, WS_K), (S_V, WS_V)):
            a(f's_add_u32 s{S_}, s34, {base}')
            a(f's_addc_u32 s{S_+1}, s35, 0')
            a(f's_add_u32 s{S_}, s{S_}, s{s_t0}')
            a(f's_addc_u32 s{S_+1}, s{S_+1}, 0')
            a(f's_and_b32 s{S_+1}, s{S_+1}, 0xffff')
            a(f's_mov_b32 s{S_+2}, s{s_t1}')
            a(f's_mov_b32 s{S_+3}, 0x20000')
        make_srd(a, S_C, 34, WS_CTX, 16*MB)
        for qt, d in ((36, 56), (37, 58)):
            a(f's_lshl_b32 s{s_t0}, s{qt}, 5')
            a(f's_add_u32 s{s_t0}, s{s_t0}, s{s_h}')
            a(f's_lshl_b32 s{d}, s{s_t0}, 13')
            a(f's_add_u32 s{d+1}, s{d}, 4096')
        return a.lines

    def kv_groups(self, kind, nb):
        G = []
        for b in range(nb):
            for grp in self.dma_group(kind, 1): G.append((grp, 'kv'))
        return G

    def q_to_frags(self):
        a = self.a
        a('s_nop 7')
        for st, Q in ((0, QA), (1, QB)):
            for dt in range(4):
                A = 64 + 16*(4*st+dt)
                for t in range(2):
                    for k in range(4):
                        a(f'v_cvt_pk_bf16_f32 v{Q+4*(2*dt+t)+k}, v{A+8*t+2*k}, v{A+8*t+2*k+1}')
        if self.mlp:
            make_srd(a, S_MW, 68, 0, 2048*3584); make_srd(a, S_MH, 34, WS_H, 2*MB)
            a(f's_cmp_eq_u32 s{s_i}, 7')
            a(f's_cselect_b32 s{S_MW+2}, 0, s{S_MW+2}')
            a(f's_cselect_b32 s{S_MH+2}, 0, s{S_MH+2}')

    def setup_attn_regs(self):
        a = self.a; opt = self.opt
        a(f's_lshl_b32 s{s_ks}, s{s_w}, 11')
        a(f's_mov_b32 s{s_vs}, s{s_ks}')
        a(f's_mov_b32 s{s_thr}, {THR}')
        a(f'v_mov_b32 v{V_NEG}, 0xf149f2ca')
        a(f'v_mov_b32 v{V_MASK}, 0xffff')
        a(f'v_mov_b32 v{V_VBASE}, 0x10000')
        a(f'v_mov_b32 v{V_KA}, v{V_L16}')
        a(f'v_add_u32 v{V_VA}, 0x10000, v{V_L16}')
        a(f'v_and_b32 v3, 31, v2')
        a(f'v_lshrrev_b32 v4, 5, v2')
        a(f'v_lshlrev_b32 v4, 2, v4')
        a(f'v_sub_u32 v3, v3, v4')
        a(f's_lshl_b32 s{s_t0}, s36, 5')
        a(f'v_add_u32 v{V_RELA}, s{s_t0}, v3')
        a(f's_lshl_b32 s{s_t0}, s37, 5')
        a(f'v_add_u32 v{V_RELB}, s{s_t0}, v3')
        M = Mlp1(a); M.ids()
        if self.mlp:
            T = 33
            a(f's_lshl_b32 s{s_ml}, s{s_w}, 13'); a(f's_add_u32 s{s_ml}, s{s_ml}, 131072')
            gen_t2.lane_setup(a, 5, T)
            for t in range(2):
                X = T+5; dst = V_MR+t
                a(f'v_mul_u32_u24 v{X}, 8, v{T}'); a(f'v_add_u32 v{X}, v{X}, v{T+1}'); a(f'v_lshlrev_b32 v{X}, 7, v{X}')
                a(f'v_xor_b32 v{dst}, {t}, v{T+4}'); a(f'v_lshl_add_u32 v{X}, v{dst}, 6, v{X}')
                a(f'v_lshl_add_u32 v{X}, v{T+2}, 5, v{X}'); a(f'v_lshl_add_u32 v{X}, v{T+3}, 3, v{X}')
                a(f'v_add_u32 v{dst}, s{s_ml}, v{X}')
            for dst, stride in ((V_MA, 3584), (V_MB, 1024)):
                mt = getattr(self, 'mtmp', 48)
                gen_t2.dma_voffs(a, mt, 5, T, stride, s_t1)
                a(f'v_mov_b32 v{dst}, v{mt}'); a(f'v_mov_b32 v{dst+1}, v{mt+1}')
            a(f's_mul_i32 s{s_ma}, s{s_w}, {512*3584}'); a(f's_lshl_b32 s{s_t1}, s{M.s_fb}, 7'); a(f's_add_u32 s{s_ma}, s{s_ma}, s{s_t1}')
            a(f's_lshl_b32 s{s_mb}, s{s_w}, 19'); a(f's_lshl_b32 s{s_t1}, s{M.s_db}, 7'); a(f's_add_u32 s{s_mb}, s{s_mb}, s{s_t1}')
        a(f'v_lshlrev_b32 v252, 3, v{V_L16}')
        a(f's_sub_u32 s{s_t0}, s2, 32'); a(f's_lshl_b32 s{s_t0}, s{s_t0}, 2'); a(f's_add_u32 s{s_t0}, s{s_t0}, s{s_w}')
        a(f's_lshl_b32 s74, s{s_t0}, 13')
        a(f's_mul_i32 s75, s{s_t0}, 4736')
        return M

    def emit_head(self):
        a = self.a; N = self.name; opt = self.opt
        vm = self.vm
        S_X, S_WQ = 12, 60
        a(f's_cmp_ge_u32 s2, 256')
        a(f's_cbranch_scc1 {N}_end')
        self.stamp()
        a(f's_load_dwordx2 s[34:35], s[0:1], {KA_WS}')
        a(f's_load_dwordx2 s[64:65], s[0:1], {KA_AX}')
        a(f's_load_dwordx2 s[66:67], s[0:1], {KA_WQ}')
        a(f's_load_dwordx2 s[68:69], s[0:1], {KA_W1}')
        a(f's_load_dwordx2 s[86:87], s[0:1], {KA_B1}')
        a(f's_load_dwordx2 s[70:71], s[0:1], {KA_WO}')
        a(f's_load_dwordx2 s[72:73], s[0:1], {KA_W2}')
        a(f'v_lshrrev_b32 v1, 6, v0')
        a(f'v_and_b32 v2, 63, v0')
        a(f'v_lshlrev_b32 v{V_L16}, 4, v2')
        a(f'v_readfirstlane_b32 s{s_w}, v1')
        a(f's_and_b32 s{s_t0}, s2, 7')
        a(f's_lshr_b32 s{s_t1}, s2, 3')
        a(f's_lshl_b32 s{s_h}, s{s_t0}, 2')
        a(f's_and_b32 s{s_t0}, s{s_t1}, 3')
        a(f's_add_u32 s{s_h}, s{s_h}, s{s_t0}')
        a(f's_lshr_b32 s{s_i}, s{s_t1}, 2')
        a(f's_add_u32 s{s_g1}, s{s_i}, 1')
        a(f's_lshl_b32 s{s_g1}, s{s_g1}, 2')
        a(f's_lshl_b32 s36, s{s_i}, 2')
        a(f's_add_u32 s36, s36, s{s_w}')
        a(f's_lshl_b32 s37, s{s_i}, 2')
        a(f's_sub_u32 s37, 60, s37')
        a(f's_add_u32 s37, s37, s{s_w}')
        vq = VmQueue()
        P = Proj(a, vq, s_w, 16384, 65536, ACC=64, FB=PFB, fbk='a', VA=8, V_L16=V_L16, VT=33, SG=40, wflags=(' nt' if opt.get('nt', True) else ''))
        P.setup_addrs(set_l16=False)
        a('s_waitcnt lgkmcnt(0)')
        make_srd(a, S_X, 64, 0, 2*MB); make_srd(a, S_WQ, 66, 0, 4*MB)
        init = [f's_lshl_b32 s{P.s_a0}, s36, 15', f's_lshl_b32 s{P.s_a1}, s37, 15',
                f's_lshl_b32 s{P.s_wo}, s{s_w}, 17', f's_lshl_b32 s{s_t0}, s{s_h}, 8', f's_add_u32 s{P.s_wo}, s{P.s_wo}, s{s_t0}']
        qpass = [dict(swap=False, srdA=S_X, srdW=S_WQ, init=init, epi=lambda: None, acck='v')]
        P.prologue(qpass[0])
        for l in self.kv_srd_lines(): a(l)
        M = self.setup_attn_regs()
        for e in range(128): a(f'v_accvgpr_write_b32 a{e}, 0')
        P.start_compute()
        self.stamp()
        KG = self.kv_groups('K', 6); VG = self.kv_groups('V', 4)
        def xl(p, t): return KG[:6] if t == 5 else (VG[:2] if t == 6 else [])
        def xe(p, t): return KG[6:] if t == 6 else (VG[2:] if t == 7 else [])
        P.run(qpass, extra_early=xe, extra_late=xl)
        self.stamp()
        self.q_to_frags()
        return M

    def emit_body(self, M):
        a = self.a; N = self.name; opt = self.opt
        vm = self.vm
        a(f's_waitcnt vmcnt({vm[("pro",-3)]})')
        a('s_barrier')
        for grp in self.dma_group('K', 1):
            for l in grp: a(l)
        for j in range(D//2):
            a(f'ds_read_b128 {ar(FR+4*j,4)}, v{V_KA} offset:{j*1024}')
        it = Iter(1, None, None, 1, 0, czero=True)
        if self.mlp: it.fill = [('x', f'v_accvgpr_write_b32 a{MACC+e}, 0') for e in range(64)]
        self.emit_iter(it, ('pro', -2))
        self.emit_init()
        self.stamp()
        it = Iter(1, 'init', None, 1, 1); it.mlp_first = self.mlp
        self.emit_iter(it, ('pro', -1))
        self.stamp()
        def MI(*args, dma=True):
            it = Iter(*args); it.mlp = True; it.mlp_dma = dma
            return it
        a(f's_cmp_eq_u32 s{s_i}, 0')
        a(f's_cbranch_scc1 {N}_trans')
        a(f's_sub_u32 s{s_cnt}, s{s_g1}, 6')
        a(f's_lshr_b32 s{s_cnt}, s{s_cnt}, 1')
        a('.p2align 6')
        a.label(f'{N}_p1loop')
        self.emit_iter(MI(1, '1', 1, 1, 0), ('p1loop', 0))
        self.emit_iter(MI(1, '1', 1, 1, 1), ('p1loop', 1))
        a(f's_sub_u32 s{s_cnt}, s{s_cnt}, 1')
        a(f's_cmp_lg_u32 s{s_cnt}, 0')
        a(f's_cbranch_scc1 {N}_p1loop')
        def pf(ptr, nb, so):
            if not opt.get('pf', True): return []
            l = Asm(); make_srd(l, 76, ptr, 0, nb); l(f'buffer_load_dword v253, v252, s[76:79], s{so} offen')
            return l.lines
        self.emit_iter(MI(1, '1', 1, 1, 0), ('p1peel', 0))
        def relA(k):
            return [f's_sub_u32 s{s_t1}, s{s_g1}, {k}', f's_lshl_b32 s{s_t1}, s{s_t1}, 5', f'v_subrev_u32 v{V_REL[0]}, s{s_t1}, v{V_RELA}']
        self.emit_iter(MI(1, '1m', 1, 1, 1), ('p1peel', 1), extra_pre=relA(4), extra_post=pf(72, 1792*4096, 74))
        for l in pf(70, 4*MB, 75): a(l)
        a.label(f'{N}_trans')
        self.stamp()
        self.emit_iter(MI(1, '1m', 1, 1, 0), ('trans', -4), extra_pre=relA(3))
        sw = [f's_lshl_b32 s{s_t0}, s{s_w}, 11']
        self.emit_iter(MI(1, '1m', 1, 2, 1), ('trans', -3), extra_pre=relA(2) + sw + [f's_add_u32 s{s_ks}, s{s_ks}, s{s_t0}'])
        self.emit_iter(MI(2, '1m', 1, 2, 0), ('trans', -2), extra_pre=relA(1))
        def relB(expr_lines):
            return expr_lines + [f'v_subrev_u32 v{V_REL[0]}, s{s_t1}, v{V_RELB}', f'v_subrev_u32 v{V_REL[1]}, 32, v{V_REL[0]}']
        self.emit_iter(MI(2, '2m', 1, 2, 1), ('trans', -1), extra_pre=relB([f's_lshl_b32 s{s_t1}, s{s_g1}, 5']))
        self.stamp()
        a('s_nop 12')
        self.epilogue_tile(OA, LA, 56)
        a(f's_lshl_b32 s{s_t0}, s{s_w}, 11')
        a(f's_add_u32 s{s_vs}, s{s_vs}, s{s_t0}')
        a(f's_cmp_eq_u32 s{s_i}, 7')
        a(f's_cbranch_scc1 {N}_epi')
        a(f's_sub_u32 s{s_cnt}, 30, s{s_g1}')
        a(f's_lshr_b32 s{s_cnt}, s{s_cnt}, 1')
        a('.p2align 6')
        a.label(f'{N}_p2loop')
        self.emit_iter(MI(2, '2', 2, 2, 0), ('p2loop', 0))
        self.emit_iter(MI(2, '2', 2, 2, 1), ('p2loop', 1))
        a(f's_sub_u32 s{s_cnt}, s{s_cnt}, 1')
        a(f's_cmp_lg_u32 s{s_cnt}, 0')
        a(f's_cbranch_scc1 {N}_p2loop')
        self.emit_iter(MI(2, '2', 2, 2, 0, dma=False), ('p2peel', 0), extra_post=(M.l2_prefetch(234) if opt.get('pf2', False) else None))
        relB32 = [f's_sub_u32 s{s_t1}, 64, s{s_g1}', f's_lshl_b32 s{s_t1}, s{s_t1}, 5']
        self.emit_iter(MI(2, '2m', 2, 2, 1, dma=False), ('p2peel', 1), extra_pre=relB(relB32))
        a.label(f'{N}_epi')
        self.stamp()
        relB33 = [f's_sub_u32 s{s_t1}, 66, s{s_g1}', f's_lshl_b32 s{s_t1}, s{s_t1}, 5']
        it = Iter(None, '2m', 2, None, 0); it.nov = True
        a('s_waitcnt lgkmcnt(0)')
        self.emit_iter(it, ('epi', 32), extra_pre=relB(relB33))
        it = Iter(None, None, 2, None, 1); it.nov = True
        a('s_nop 1')
        self.emit_iter(it, None)
        self.stamp()
        a(f's_cmp_eq_u32 s{s_i}, 7')
        a(f's_cbranch_scc1 {N}_nomlp')
        vq2 = VmQueue()
        M.finish(vq2, lambda: self.epilogue_tile(OB, LB, 58, vq2), self.stamp)
        self.stamp()
        self.dump_stamps()
        a('s_endpgm')
        a.label(f'{N}_nomlp')
        a('s_nop 15')
        self.epilogue_tile(OB, LB, 58)
        make_srd(a, 76, 34, WS_PART, 8*MB)
        a(f's_sub_u32 s{s_t0}, s2, 224'); a(f's_lshl_b32 s{s_t0}, s{s_t0}, 2'); a(f's_add_u32 s{s_t0}, s{s_t0}, s{s_w}'); a(f's_lshl_b32 s{s_t0}, s{s_t0}, 16')
        for e in range(4): a(f'v_mov_b32 v{V_T+4+e}, -1')
        a(f's_mov_b32 s{s_cnt}, 16')
        a.label(f'{N}_fill')
        for q in range(4):
            a(f'buffer_store_dwordx4 v[{V_T+4}:{V_T+7}], v{V_L16}, s[76:79], s{s_t0} offen offset:{q*1024}')
        a('s_waitcnt vmcnt(40)')
        a(f's_add_u32 s{s_t0}, s{s_t0}, 4096')
        a(f's_sub_u32 s{s_cnt}, s{s_cnt}, 1')
        a(f's_cmp_lg_u32 s{s_cnt}, 0')
        a(f's_cbranch_scc1 {N}_fill')
        a('s_waitcnt vmcnt(0)')
        self.stamp()
        self.dump_stamps()
        a.label(f'{N}_end')
        a('s_endpgm')
        for u, it in self.slow: self.emit_slow(u, it)
        self.emit_rescale()
```

```python
from asmlib import *
from layout import *
import gen_attn2 as A
from gen_attn2 import *
from gen_proj2 import Proj, VmQueue, frag_store_groups
from gen_proj import make_srd
import gen_proj

class Main(Attn):
    def emit_head(self):
        a = self.a; N = self.name; opt = self.opt
        S_CK, S_WK, S_X, S_O, S_WV, S_WQ = 4, 8, 12, 16, 92, 60
        S_H, S_G, S_GW = 76, 48, 52
        a(f's_cmp_ge_u32 s2, 256')
        a(f's_cbranch_scc1 {N}_end')
        self.stamp()
        a(f's_load_dwordx2 s[34:35], s[0:1], {KA_WS}')
        a(f's_load_dwordx2 s[64:65], s[0:1], {KA_AX}')
        a(f's_load_dwordx2 s[90:91], s[0:1], {KA_CKV}')
        a(f's_load_dwordx4 s[96:99], s[0:1], {KA_WUK}')
        a(f's_load_dwordx2 s[38:39], s[0:1], {KA_GW}')
        a(f's_load_dwordx2 s[66:67], s[0:1], {KA_WQ}')
        a(f's_load_dwordx2 s[68:69], s[0:1], {KA_W1}')
        a(f's_load_dwordx2 s[86:87], s[0:1], {KA_B1}')
        a(f's_load_dwordx2 s[70:71], s[0:1], {KA_WO}')
        a(f's_load_dwordx2 s[72:73], s[0:1], {KA_W2}')
        a(f's_load_dwordx2 s[100:101], s[0:1], {KA_DBG}')
        a(f'v_lshrrev_b32 v1, 6, v0')
        a(f'v_and_b32 v2, 63, v0')
        a(f'v_lshlrev_b32 v{V_L16}, 4, v2')
        a(f'v_readfirstlane_b32 s{s_w}, v1')
        a(f's_and_b32 s{s_t0}, s2, 7')
        a(f's_lshr_b32 s{s_t1}, s2, 3')
        a(f's_lshl_b32 s{s_h}, s{s_t0}, 2')
        a(f's_and_b32 s{s_t0}, s{s_t1}, 3')
        a(f's_add_u32 s{s_h}, s{s_h}, s{s_t0}')
        a(f's_lshr_b32 s{s_i}, s{s_t1}, 2')
        a(f's_add_u32 s{s_g1}, s{s_i}, 1')
        a(f's_lshl_b32 s{s_g1}, s{s_g1}, 2')
        a(f's_lshl_b32 s36, s{s_i}, 2'); a(f's_add_u32 s36, s36, s{s_w}')
        a(f's_lshl_b32 s37, s{s_i}, 2'); a(f's_sub_u32 s37, 60, s37'); a(f's_add_u32 s37, s37, s{s_w}')
        vq = VmQueue()
        P = Proj(a, vq, s_w, 16384, 16384, ACC=64, FB=(192, 216), fbk='a', VA=8, V_L16=V_L16, VT=33, SG=40,
                 wflags=(' nt' if opt.get('nt', True) else ''), stamps=self.st, opt=opt)
        P.setup_addrs(set_l16=False)
        a('s_waitcnt lgkmcnt(0)')
        make_srd(a, S_X, 64, 0, 2*MB); make_srd(a, S_GW, 38, 0, 1024)
        a(f's_lshl_b32 s82, s2, 3'); a(f's_lshl_b32 s83, s{s_w}, 1'); a('s_add_u32 s82, s82, s83')
        a('s_lshl_b32 s83, s82, 2'); a('s_lshl_b32 s82, s82, 10')
        LB_ = 40
        a(f'buffer_load_dwordx4 v[{LB_}:{LB_+3}], v{V_L16}, s[{S_X}:{S_X+3}], s82 offen'); vq.push('ln')
        a(f'buffer_load_dwordx4 v[{LB_+4}:{LB_+7}], v{V_L16}, s[{S_X}:{S_X+3}], s82 offen offset:1024'); vq.push('ln')
        a(f'buffer_load_dwordx4 v[{LB_+16}:{LB_+19}], v{V_L16}, s[{S_GW}:{S_GW+3}], 0 offen'); vq.push('ln')
        make_srd(a, S_CK, 90, 0, 2*MB); make_srd(a, S_WK, 96, 0, 4*MB); make_srd(a, S_WV, 98, 0, 4*MB)
        initKV = [f's_lshl_b32 s{P.s_a0}, s{s_i}, 18', f's_lshl_b32 s49, s{s_w}, 16', f's_add_u32 s{P.s_a0}, s{P.s_a0}, s49',
                  f's_add_u32 s{P.s_a1}, s{P.s_a0}, 32768',
                  f's_lshl_b32 s{P.s_wo}, s{s_w}, 17', f's_lshl_b32 s49, s{s_h}, 8', f's_add_u32 s{P.s_wo}, s{P.s_wo}, s49']
        initQ = [f's_lshl_b32 s{P.s_a0}, s36, 15', f's_lshl_b32 s{P.s_a1}, s37, 15',
                 f's_lshl_b32 s{P.s_wo}, s{s_w}, 17', f's_lshl_b32 s49, s{s_h}, 8', f's_add_u32 s{P.s_wo}, s{P.s_wo}, s49']
        ps = [dict(swap=False, srdA=S_CK, srdW=S_WK, init=initKV, epi=lambda: None, acck='v'),
              dict(swap=True, srdA=S_CK, srdW=S_WV, init=initKV, epi=lambda: None, acck='a'),
              dict(swap=False, srdA=S_X, srdW=S_WQ, init=initQ, epi=lambda: None, acck='v')]
        P.prologue(ps[0])
        make_srd(a, S_WQ, 66, 0, 4*MB)
        make_srd(a, S_O, 34, WS_K, 32*MB)
        make_srd(a, S_H, 34, WS_H, 2*MB); make_srd(a, S_G, 34, WS_G, 8192)
        real_a = self.a; tmp_a = Asm(); self.a = tmp_a
        M = self.setup_attn_regs()
        self.a = real_a; M.a = real_a
        c = 0x3e0293ee
        setup = tmp_a.lines + [f'v_mov_b32 v2, {hex(c)}', f'v_mov_b32 v3, {hex(c)}'] + [f'v_accvgpr_write_b32 a{e}, 0' for e in range(64)]
        setupG = [(setup[k:k+4], None) for k in range(0, len(setup), 4)]
        perS = -(-len(setupG)//5)
        vq.wait_for(a, 'ln')
        gen_proj.R.V_L16 = V_L16
        st_save = STF.st; STF.st = ' sc1'
        gen_proj.emit_ln_compute(a, LB_, S_H, S_G, 82, 83, 64)
        for _ in range(3): vq.push('lnst')
        a('s_getreg_b32 s33, hwreg(HW_REG_XCC_ID, 0, 4)')
        a('s_or_b32 s33, s33, 0x10')
        make_srd(a, 76, 100, 0, 256)
        a(f's_cmp_eq_u32 s{s_w}, 0')
        a(f's_cbranch_scc0 {N}_noann')
        a('v_mov_b32 v41, 0'); a('v_mov_b32 v42, s33')
        a('s_mov_b64 exec, 1')
        a('buffer_store_byte v42, v41, s[76:79], s2 offen sc1')
        a('s_mov_b64 exec, -1')
        a.label(f'{N}_noann')
        a(f's_lshl_b32 s{s_t0}, s{s_h}, 6'); a(f's_lshl_b32 s{s_t1}, s{s_i}, 3'); a(f's_add_u32 s{s_t0}, s{s_t0}, s{s_t1}')
        a(f's_lshl_b32 s{s_t1}, s{s_w}, 1'); a(f's_add_u32 s{s_t0}, s{s_t0}, s{s_t1}'); a(f's_lshl_b32 s{s_t0}, s{s_t0}, 13')
        for k in range(4):
            a(f's_add_u32 s{50+k}, s{s_t0}, {k*4096}')
            a(f's_add_u32 s{96+k}, s{s_t0}, {16*MB + k*4096}')
        STF.st = opt.get('kvst', '')
        KG = frag_store_groups(P, 'K', 'v', S_O, 50, None, v_scale=2, tag='kst')
        VGs = frag_store_groups(P, 'V', 'a', S_O, 96, 40, tag='vst')
        STF.st = st_save
        nv = opt.get('vstages', 4); sigt = opt.get('sigt', nv+1-(0))
        perK = len(KG)//8; perV = len(VGs)//nv
        KV0 = self.kv_groups('K', 6); VV0 = self.kv_groups('V', 4)
        zero = [([f'v_accvgpr_write_b32 a{64+4*k+e}, 0' for e in range(4)], None) for k in range(16)]
        srds = self.kv_srd_lines()
        dbg = Asm(); make_srd(dbg, 76, 100, 0, 256)
        idld = dbg.lines + [f's_cmp_eq_u32 s{s_w}, 0', f's_cbranch_scc0 {N}_noid',
               f'v_lshlrev_b32 v57, 1, v{V_L16}', f's_lshr_b32 s{s_t1}, s{s_h}, 2', f's_and_b32 s32, s{s_h}, 3', 's_lshl_b32 s32, s32, 3', f's_add_u32 s32, s32, s{s_t1}',
               'buffer_load_ubyte v56, v57, s[76:79], s32 offen sc1', f'{N}_noid:']
        sig = [f's_cmp_eq_u32 s{s_w}, 0', f's_cbranch_scc0 {N}_nosig',
               's_waitcnt vmcnt(0)' if False else 's_nop 0',
               'v_and_b32 v56, 0x1f, v56', 'v_cmp_ne_u32 vcc, s33, v56', 's_nop 3', 's_and_b32 s32, vcc_lo, 0xff', 's_cmp_eq_u32 s32, 0',
               f's_cbranch_scc1 {N}_samexcd'] + (['s_nop 0'] if opt.get('nowb') else ['buffer_wbl2 sc1', 's_waitcnt vmcnt(0)']) + [f'{N}_samexcd:',
               's_or_b32 s32, s33, 0x80', 'v_mov_b32 v41, 0', 'v_mov_b32 v42, s32', 's_mov_b64 exec, 1',
               f'buffer_store_byte v42, v41, s[76:79], s2 offen sc1', 's_mov_b64 exec, -1', f'{N}_nosig:']
        pollpre = [f's_cmp_eq_u32 s{s_w}, 0', f's_cbranch_scc0 {N}_nopoll0', f'v_lshrrev_b32 v42, 2, v{V_L16}', 'v_mov_b32 v43, 0x80808080',
                   f'buffer_load_dword v41, v42, s[76:79], 0 offen sc1', f'{N}_nopoll0:']
        def xe(p, t):
            if p == 0: return setupG[(t-1)*perS:t*perS] if 1 <= t <= 5 else []
            if p == 1: return KG[t*perK:(t+1)*perK]
            if p == 2:
                g = []
                if t < nv: g += VGs[t*perV:(t+1)*perV] + ([(idld, None)] if t == 0 else [])
                if t == nv: g += zero
                if t == 6: g += [(srds, None)]
                if t == 7: g += [(pollpre, None)]
                return g
            return []
        def xl(p, t):
            if p == 2 and t == sigt: return [(sig, None)]
            return []
        assert sigt >= nv + 1 and sigt <= 6 and 48 % nv == 0
        P.start_compute()
        self.stamp()
        P.run(ps, extra_early=xe, extra_late=xl)
        self.stamp()
        chk = ['s_waitcnt vmcnt(0)', 'v_and_b32 v41, v43, v41', 'v_cmp_ne_u32 vcc, v43, v41', 's_nop 3', 's_cmp_eq_u64 vcc, 0']
        for l in [f's_cmp_eq_u32 s{s_w}, 0', f's_cbranch_scc0 {N}_polled', f's_mov_b32 s{s_cnt}, 0', f'{N}_poll:'] + chk + \
                 [f's_cbranch_scc1 {N}_polled', f's_add_u32 s{s_cnt}, s{s_cnt}, 1', f's_cmp_ge_u32 s{s_cnt}, 0x20000', f's_cbranch_scc1 {N}_polled',
                  f's_sleep {opt.get("sleep", 8)}', f'buffer_load_dword v41, v42, s[76:79], 0 offen sc1', f's_branch {N}_poll', f'{N}_polled:']: a(l)
        a('s_barrier')
        for g in KV0 + VV0:
            for l in g[0]: a(l)
        self.stamp()
        self.q_to_frags()
        return M
```

```python
from asmlib import *
from layout import *

MF = 'v_mfma_f32_32x32x16_bf16'
def v(b, n=1): return f'v{b}' if n == 1 else f'v[{b}:{b+n-1}]'
def ar(b, n=1): return f'a{b}' if n == 1 else f'a[{b}:{b+n-1}]'
SLOT = 49152

class VmQueue:
    def __init__(self): self.q = []
    def push(self, tag): self.q.append(tag)
    def count_for(self, tag):
        idx = [i for i, t in enumerate(self.q) if t == tag]
        if not idx: return None
        return len(self.q) - 1 - idx[-1]
    def wait_for(self, a, tag):
        n = self.count_for(tag)
        if n is None: return
        assert n <= 63
        a(f's_waitcnt vmcnt({n})')
        self.q = self.q[len(self.q)-n:] if n else []

class Proj:
    def __init__(self, a, vq, s_w, ring_lo, ring_start, ACC=64, FB=(0, 24), fbk='a', VA=8, V_L16=32, VT=33, SG=40, stamps=None, wflags='', opt=None):
        self.a, self.vq, self.s_w = a, vq, s_w
        self.lo, self.start, self.hi = ring_lo, ring_start, ring_lo + 3*SLOT
        self.ACC, self.FB = ACC, FB
        self.fr = ar if fbk == 'a' else v
        self.V_AR, self.V_WR, self.V_AB, self.V_WB, self.V_AD, self.V_WD = VA, VA+4, VA+8, VA+12, VA+16, VA+20
        self.V_L16, self.VT = V_L16, VT
        (self.s_a0, self.s_a1, self.s_wo, self.s_fill, self.s_rd, self.s_wW, self.s_wA, self.s_t) = range(SG, SG+8)
        self.st = stamps or (lambda n='': None)
        self.wflags = wflags
        self.opt = opt or {}
        self.lq = []

    def setup_addrs(self, set_l16=True):
        a = self.a; T = self.VT; w = self.s_w
        a(f'v_and_b32 v{T}, 63, v0')
        if set_l16: a(f'v_lshlrev_b32 v{self.V_L16}, 4, v{T}')
        a(f's_lshl_b32 s{self.s_wW}, s{w}, 12')
        a(f's_lshl_b32 s{self.s_wA}, s{w}, 13')
        a(f's_add_u32 s{self.s_wA}, s{self.s_wA}, 16384')
        a(f's_mov_b32 s{self.s_fill}, {self.start}')
        a(f's_mov_b32 s{self.s_rd}, {self.start}')
        a(f'v_and_b32 v{T+1}, 31, v{T}')
        a(f'v_lshrrev_b32 v{T+2}, 5, v{T}')
        a(f'v_bfe_u32 v{T+3}, v{T+1}, 1, 3')
        a(f'v_xor_b32 v{T+3}, v{T+3}, v{T+2}')
        a(f'v_lshlrev_b32 v{T+3}, 4, v{T+3}')
        a(f'v_lshl_add_u32 v{T+3}, v{T+1}, 7, v{T+3}')
        a(f'v_add_u32 v{self.V_AB}, s{self.s_wA}, v{T+3}')
        for ks in range(1, 4):
            a(f'v_xor_b32 v{self.V_AB+ks}, {ks << 5}, v{self.V_AB}')
        a(f'v_bfe_u32 v{T+3}, v{T}, 2, 2')
        a(f'v_lshl_add_u32 v{T+4}, v{T+2}, 3, v{T+3}')
        a(f'v_lshlrev_b32 v{T+4}, 8, v{T+4}')
        a(f'v_bfe_u32 v{T+5}, v{T}, 4, 1')
        a(f'v_lshl_add_u32 v{T+4}, v{T+5}, 5, v{T+4}')
        a(f'v_and_b32 v{T+5}, 3, v{T}')
        a(f'v_lshl_add_u32 v{T+4}, v{T+5}, 3, v{T+4}')
        for dt in range(4):
            a(f'v_xor_b32 v{T+5}, {dt}, v{T+3}')
            a(f'v_lshl_add_u32 v{self.V_WB+dt}, v{T+5}, 6, v{T+4}')
        a(f'v_lshrrev_b32 v{T+3}, 3, v{T}')
        a(f'v_and_b32 v{T+4}, 7, v{T}')
        a(f'v_lshrrev_b32 v{T+5}, 1, v{T+3}')
        for j in range(4):
            a(f'v_xor_b32 v{T+6}, v{T+4}, v{T+5}')
            if j & 1: a(f'v_xor_b32 v{T+6}, 4, v{T+6}')
            a(f'v_lshlrev_b32 v{T+6}, 4, v{T+6}')
            a(f'v_lshl_add_u32 v{T+6}, v{T+3}, 10, v{T+6}')
            a(f'v_add_u32 v{self.V_AD+j}, {j*(8192-1024)}, v{T+6}')
        a(f'v_lshrrev_b32 v{T+3}, 4, v{T}')
        a(f'v_bfe_u32 v{T+4}, v{T}, 2, 2')
        a(f'v_xor_b32 v{T+4}, v{T+4}, v{T+3}')
        a(f'v_lshlrev_b32 v{T+4}, 6, v{T+4}')
        a(f'v_and_b32 v{T+5}, 3, v{T}')
        a(f'v_lshl_add_u32 v{T+4}, v{T+5}, 4, v{T+4}')
        a(f'v_lshl_add_u32 v{T+4}, v{T+3}, 13, v{T+4}')
        for j in range(4):
            a(f'v_add_u32 v{self.V_WD+j}, {j*(32768-1024)}, v{T+4}')

    def adv(self, s):
        return [f's_add_u32 s{s}, s{s}, {SLOT}', f's_cmp_ge_u32 s{s}, {self.hi}', f's_cselect_b32 s{s}, {self.lo}, s{s}']

    def dma_stage(self, srdA, srdW, tag, pre=None):
        g = []
        def ld(vo, srd_, so, off, fl=''): return f'buffer_load_dwordx4 v{vo}, s[{srd_}:{srd_+3}], s{so} offen' + (f' offset:{off}' if off else '') + fl + ' lds'
        for j in range(4):
            l = []
            if j == 0: l += list(pre or []) + [f's_add_u32 m0, s{self.s_fill}, s{self.s_wW}', 's_nop 0']
            l.append(ld(self.V_WD+j, srdW, self.s_wo, j*1024, self.wflags))
            if j == 3: l.append(f's_add_u32 s{self.s_wo}, s{self.s_wo}, {64*8192}')
            g.append((l, tag))
        for t, so in ((0, self.s_a0), (1, self.s_a1)):
            for j in range(4):
                l = []
                if j == 0:
                    if t == 0: l += [f's_add_u32 s{self.s_t}, s{self.s_fill}, s{self.s_wA}', f's_mov_b32 m0, s{self.s_t}', 's_nop 0']
                    else: l += [f's_add_u32 m0, s{self.s_t}, 4096', 's_nop 0']
                l.append(ld(self.V_AD+j, srdA, so, j*1024))
                if j == 3: l.append(f's_add_u32 s{so}, s{so}, 128')
                g.append((l, tag))
        g[-1][0].extend(self.adv(self.s_fill))
        return g

    def emit_group(self, g):
        lines, tag = g
        for l in lines: self.a(l)
        if tag is not None and any(l.startswith('buffer_') for l in lines): self.vq.push(tag)

    def read_addr_update(self):
        l = []
        for k in range(4):
            l.append(f'v_add_u32 v{self.V_AR+k}, s{self.s_rd}, v{self.V_AB+k}')
            l.append(f'v_add_u32 v{self.V_WR+k}, s{self.s_rd}, v{self.V_WB+k}')
        return l + self.adv(self.s_rd)

    def kstep_reads(self, ks, buf):
        F = self.FB[buf]; fr = self.fr
        def act(t): return [f'ds_read_b128 {fr(F+16+4*t,4)}, v{self.V_AR+ks} offset:{t*4096}']
        def wf(dt): return [f'ds_read_b64_tr_b16 {fr(F+4*dt,2)}, v{self.V_WR+dt} offset:{ks*4096}',
                            f'ds_read_b64_tr_b16 {fr(F+4*dt+2,2)}, v{self.V_WR+dt} offset:{ks*4096+1024}']
        if self.opt.get('cnt', True):
            return [(l, ('a', buf, 0)) for l in act(0)] + [(l, ('w', buf, 0)) for l in wf(0)] + [(l, ('a', buf, 1)) for l in act(1)] + \
                   [(l, ('w', buf, dt)) for dt in (1, 2, 3) for l in wf(dt)]
        return [(l, None) for l in act(0) + wf(0) + wf(1) + act(1) + wf(2) + wf(3)]

    def kstep_mfmas(self, buf, swap, first, acck='v'):
        F = self.FB[buf]; fr = self.fr
        l = []
        for dt in range(4):
            for st in range(2):
                acc = (v if acck == 'v' else ar)(self.ACC + 16*(4*st+dt), 16)
                W = fr(F+4*dt, 4); A = fr(F+16+4*st, 4)
                c = '0' if first else acc
                l.append(f'{MF} {acc}, {A}, {W}, {c}' if swap else f'{MF} {acc}, {W}, {A}, {c}')
        return l

    def stage(self, swap, first, need_tag, early, late, last=False, acck='v'):
        a = self.a
        if self.opt.get('stagestamps', True): self.st('stage')
        early = list(early or []); late = list(late or [])
        eslot = {}
        for k in range(len(early)):
            eslot.setdefault(int(1 + k*(23.0/len(early))), []).append(early[k])
        lslot = {}
        for k in range(len(late)):
            lslot.setdefault(min(7, 2 + int(k*(6.0/len(late)))), []).append(late[k])
        cnt = self.opt.get('cnt', True)
        def emit_rd(x):
            a(x[0]); self.lq.append(x[1])
        def need(tags):
            idx = max([k for k, t in enumerate(self.lq) if t in tags], default=-1)
            if idx < 0: return
            n = len(self.lq) - 1 - idx
            a(f's_waitcnt lgkmcnt({n})')
            self.lq = self.lq[idx+1:]
        per = self.opt.get('rdper', 2)
        for ks in range(4):
            buf = ks & 1
            pre = []
            if not cnt or (ks == 3 and not last):
                a('s_waitcnt lgkmcnt(0)'); self.lq = []
            if ks == 3 and not last:
                if not self.opt.get('novm'): self.vq.wait_for(a, need_tag)
                for l in (self.prebar(*self.cur) if getattr(self, 'prebar', None) else []): a(l)
                if not self.opt.get('nobar'): a('s_barrier')
                pre = self.read_addr_update()
            mf = self.kstep_mfmas(buf, swap, first and ks == 0, acck)
            if ks < 3: rd = self.kstep_reads(ks+1, buf ^ 1)
            elif not last: rd = self.kstep_reads(0, buf ^ 1)
            else: rd = []
            for k, m in enumerate(mf):
                if cnt: need([('w', buf, k >> 1), ('a', buf, k & 1)])
                a(m)
                if k == 0:
                    for l in pre[:8]: a(l)
                for x in rd[per*k:per*(k+1)]: emit_rd(x)
                if k == 1:
                    for l in pre[8:]: a(l)
                for g in (eslot.get(8*ks+k, []) if ks < 3 else lslot.get(k, [])): self.emit_group(g)

    def prologue(self, p0):
        for t in range(2):
            for g in self.dma_stage(p0['srdA'], p0['srdW'], (0, t), pre=(p0['init'] if t == 0 else None)): self.emit_group(g)
        self.g_pending = self.dma_stage(p0['srdA'], p0['srdW'], (0, 2))
        for g in self.g_pending[:3]: self.emit_group(g)
        self.g_pending = self.g_pending[3:]

    def start_compute(self):
        a = self.a
        self.vq.wait_for(a, (0, 0))
        a('s_barrier')
        for l in self.read_addr_update(): a(l)
        self.lq = []
        for x in self.kstep_reads(0, 0):
            a(x[0]); self.lq.append(x[1])

    def run(self, passes, extra_early=None, extra_late=None):
        n = len(passes); total = 8*n
        xe = extra_early or (lambda p, t: []); xl = extra_late or (lambda p, t: [])
        for T in range(total):
            p, t = divmod(T, 8); ps = passes[p]
            early = self.g_pending; self.g_pending = []
            late = []
            T3 = T+3
            if T3 < total:
                p3, t3 = divmod(T3, 8)
                G = self.dma_stage(passes[p3]['srdA'], passes[p3]['srdW'], (p3, t3), pre=(passes[p3]['init'] if t3 == 0 else None))
                late = G[:3]; self.g_pending = G[3:]
            ex = list(xe(p, t)); merged = []
            e0 = list(early)
            tot = len(e0) + len(ex)
            ie = ix = 0
            for k in range(tot):
                if ix < len(ex) and (ie >= len(e0) or ix*len(e0) <= ie*len(ex) - 0.5*len(ex) or not e0): merged.append(ex[ix]); ix += 1
                else: merged.append(e0[ie]); ie += 1
            nxt = divmod(T+1, 8) if T+1 < total else None
            self.cur = (p, t)
            xlate = list(xl(p, t))
            for g in ex + xlate:
                if any('m0' in l for l in g[0]): assert T3 >= total and not (g in ex and e0), 'm0 clobber'
            self.stage(ps['swap'], t == 0, nxt, merged, late + xlate, last=(nxt is None), acck=ps.get('acck', 'v'))
            if t == 7:
                if self.opt.get('stagestamps', True) or p+1 < n: self.st('epi')
                ps['epi']()


from gen_proj import allreduce, unpack8, make_srd
import gen_proj

def emit_ln(a, base, X, V_L16, S_AX, S_GW, S_H, S_G, s_row, s_rowg, vq, part):
    if part == 'load':
        a(f'buffer_load_dwordx4 {v(base,4)}, v{V_L16}, s[{S_AX}:{S_AX+3}], s{s_row} offen'); vq.push('ln')
        a(f'buffer_load_dwordx4 {v(base+4,4)}, v{V_L16}, s[{S_AX}:{S_AX+3}], s{s_row} offen offset:1024'); vq.push('ln')
        a(f'buffer_load_dwordx4 {v(base+16,4)}, v{V_L16}, s[{S_GW}:{S_GW+3}], 0 offen'); vq.push('ln')
    else:
        vq.wait_for(a, 'ln')
        gen_proj.R.V_L16 = V_L16
        gen_proj.emit_ln_compute(a, base, S_H, S_G, s_row, s_rowg, X)
        for _ in range(3): vq.push('lnst')

def frag_store_groups(P, kind, acck, srd, s_offs, tmp, v_scale=None, tag='st'):
    G = []
    k = 0
    for dt in range(4):
        for st in range(2):
            A = P.ACC + 16*(4*st+dt)
            for t in range(2):
                b = A + 8*t
                f = (4*t+dt) if kind == 'V' else (2*dt+t)
                so = s_offs + 2*st + (f >> 2)
                if acck == 'a':
                    T = tmp + 8*(k & 1)
                    G.append(([f'v_accvgpr_read_b32 v{T+e}, a{b+e}' for e in range(4)], None))
                    G.append(([f'v_accvgpr_read_b32 v{T+e}, a{b+e}' for e in range(4, 8)], None))
                else:
                    T = b
                if v_scale is not None:
                    G.append(([f'v_pk_mul_f32 v[{T+e}:{T+e+1}], v[{T+e}:{T+e+1}], v[{v_scale}:{v_scale+1}]' for e in range(0, 8, 2)], None))
                l = [f'v_cvt_pk_bf16_f32 v{T+q}, v{T+2*q}, v{T+2*q+1}' for q in range(4)]
                l.append(f'buffer_store_dwordx4 v[{T}:{T+3}], v{P.V_L16}, s[{srd}:{srd+3}], s{so} offen offset:{(f & 3)*1024}{STF.st}')
                G.append((l, tag))
                k += 1
    return G

def emit_l1(a, N='l1', **opt):
    S_X, S_C, S_WK, S_WV, S_O, S_H, S_G, S_GW = 4, 8, 16, 24, 28, 32, 36, 60
    s_w, s_h, s_r = 20, 21, 22
    st_ = Stamps(a, opt.get('diag'))
    a('s_cmp_ge_u32 s2, 256')
    a(f's_cbranch_scc1 {N}_end')
    a(f's_load_dwordx4 s[64:67], s[0:1], {KA_AX}')
    a(f's_load_dwordx4 s[68:71], s[0:1], {KA_WUK}')
    a(f's_load_dwordx2 s[76:77], s[0:1], {KA_GW}')
    a(f's_load_dwordx2 s[78:79], s[0:1], {KA_WS}')
    a(f's_load_dwordx2 s[88:89], s[0:1], {KA_WQ}')
    a('v_lshrrev_b32 v1, 6, v0')
    a('s_and_b32 s23, s2, 7')
    a(f'v_readfirstlane_b32 s{s_w}, v1')
    a('s_lshr_b32 s48, s2, 3')
    a(f's_lshl_b32 s{s_h}, s23, 2')
    a('s_and_b32 s23, s48, 3')
    a(f's_add_u32 s{s_h}, s{s_h}, s23')
    a(f's_lshr_b32 s{s_r}, s48, 2')
    st_('start')
    vq = VmQueue()
    P = Proj(a, vq, s_w, 0, 0, stamps=st_, wflags=(' nt' if opt.get('nt', True) else ''), opt=opt)
    P.setup_addrs()
    a('s_waitcnt lgkmcnt(0)')
    make_srd(a, S_X, 64, 0, 2*MB); make_srd(a, S_C, 66, 0, 2*MB)
    make_srd(a, S_WK, 68, 0, 4*MB); make_srd(a, S_WV, 70, 0, 4*MB)
    make_srd(a, S_O, 78, WS_K, 32*MB)
    make_srd(a, S_H, 78, WS_H, 2*MB); make_srd(a, S_G, 78, WS_G, 8192)
    make_srd(a, S_GW, 76, 0, 1024)
    a(f's_lshl_b32 s80, s2, 3'); a(f's_lshl_b32 s81, s{s_w}, 1'); a('s_add_u32 s80, s80, s81')
    a('s_lshl_b32 s81, s80, 2')
    a('s_lshl_b32 s80, s80, 10')
    lnend = opt.get('lnend', False)
    if not lnend: emit_ln(a, 192, 64, P.V_L16, S_X, S_GW, S_H, S_G, 80, 81, vq, 'load')
    c = 0x3e0293ee
    a(f'v_mov_b32 v2, {hex(c)}'); a(f'v_mov_b32 v3, {hex(c)}')
    init = [f's_lshl_b32 s{P.s_a0}, s{s_r}, 18', f's_lshl_b32 s49, s{s_w}, 16', f's_add_u32 s{P.s_a0}, s{P.s_a0}, s49',
            f's_add_u32 s{P.s_a1}, s{P.s_a0}, 32768',
            f's_lshl_b32 s{P.s_wo}, s{s_w}, 17', f's_lshl_b32 s49, s{s_h}, 8', f's_add_u32 s{P.s_wo}, s{P.s_wo}, s49']
    a(f's_lshl_b32 s82, s{s_h}, 6'); a(f's_lshl_b32 s83, s{s_r}, 3'); a('s_add_u32 s82, s82, s83')
    a(f's_lshl_b32 s83, s{s_w}, 1'); a('s_add_u32 s82, s82, s83'); a('s_lshl_b32 s82, s82, 13')
    for k in range(4):
        a(f's_add_u32 s{50+k}, s82, {k*4096}')
        a(f's_add_u32 s{84+k}, s82, {16*MB + k*4096}')
    KG = frag_store_groups(P, 'K', 'a', S_O, 50, 192, v_scale=2)
    per = len(KG)//8
    def vepi():
        a('s_nop 7'); a('s_nop 7')
        for g in frag_store_groups(P, 'V', 'v', S_O, 84, None): P.emit_group(g)
    ps = [dict(swap=False, srdA=S_C, srdW=S_WK, init=init, epi=lambda: None, acck='a'),
          dict(swap=True, srdA=S_C, srdW=S_WV, init=init, epi=vepi, acck='v')]
    P.prologue(ps[0])
    if not lnend: emit_ln(a, 192, 64, P.V_L16, S_X, S_GW, S_H, S_G, 80, 81, vq, 'compute')
    P.start_compute()
    def lnload():
        l = Asm(); q = VmQueue(); emit_ln(l, 216, 64, P.V_L16, S_X, S_GW, S_H, S_G, 80, 81, q, 'load')
        return [([x], 'ln') for x in l.lines]
    def xe(p, t):
        g = list(KG[t*per:(t+1)*per]) if p == 1 else []
        if opt.get('pfq', True) and (p, t) == tuple(opt.get('pfq_at', (1, 2))):
            l = Asm(); make_srd(l, 56, 88, 0, 4*MB)
            l(f'v_lshlrev_b32 v4, 3, v{P.V_L16}')
            l(f's_lshl_b32 s49, s2, 2'); l(f's_add_u32 s49, s49, s{s_w}'); l('s_lshl_b32 s49, s49, 12')
            l('buffer_load_dword v5, v4, s[56:59], s49 offen')
            g.append((l.lines, 'pf'))
        return g
    def xl(p, t):
        return lnload() if (lnend and p == 1 and t == 5) else []
    P.run(ps, extra_early=xe, extra_late=xl)
    if lnend: emit_ln(a, 216, 64, P.V_L16, S_X, S_GW, S_H, S_G, 80, 81, vq, 'compute')
    st_('stores')
    a('s_waitcnt vmcnt(0)')
    st_('end')
    st_.dump(100*MB, s_w, 250)
    a.label(f'{N}_end')
    a('s_endpgm')
```

```python
MB = 1 << 20
import os
WS_BASE = int(os.environ.get('WS_BASE_MB', '0')) * MB
WS_Q   = WS_BASE + 0
WS_K   = WS_BASE + 16 * MB
WS_V   = WS_BASE + 32 * MB
WS_CTX = WS_BASE + 48 * MB
WS_H   = WS_BASE + 64 * MB
WS_U   = WS_BASE + 66 * MB
WS_G   = WS_BASE + 68 * MB
WS_SIZE = 268435456
KA_AX, KA_CKV, KA_WQ, KA_WUK, KA_WUV, KA_WO, KA_BX, KA_W1, KA_B1, KA_W2, KA_B2, KA_GW, KA_OUT, KA_DBG, KA_WS = [8*i for i in range(15)]

class _F:
    st = ''
STF = _F()
WS_PART = WS_BASE + 72 * MB
WS_HF = WS_G + 65536
WS_FL = WS_G + 131072
```

```python
import sys, os
from asmlib import *
from layout import *
import gen_proj, gen_proj2, gen_attn, gen_attn2, gen_t2, gen_final, gen_main

NAME = 'gated_mix__compressed_kv_cla__mixer_token_mlp__prompt'
def build(path, **opt):
    if opt.get('v', 3) == 3: return build3(path, **opt)
    if opt.get('v', 3) == 2: return build2(path, **opt)
    ref = open(f'cdna_kernels/{NAME}.s.ref').read().split('\n')
    a = Asm()
    for l in ref:
        if l.startswith('; Override launch') : break
        a(l)
    a('; @launch kernel=proj_kernel grid=(256,1,1) block=(256,1,1) lds=147456')
    a('; @launch kernel=attn_kernel grid=(256,1,1) block=(256,1,1) lds=131072')
    a('; @launch kernel=mlp1_kernel grid=(256,1,1) block=(256,1,1) lds=131072')
    a('; @launch kernel=final_kernel grid=(256,1,1) block=(256,1,1) lds=131072')
    a('.amdgcn_target "amdgcn-amd-amdhsa--gfx950"')
    kernel_header(a, 'proj_kernel'); gen_proj.emit_l1(a, 'l1', **opt.get('l1', {}))
    kernel_header(a, 'attn_kernel'); g = gen_attn.Attn(a, 'attn'); g.emit()
    kernel_header(a, 'mlp1_kernel'); gen_t2.emit_mlp1(a, 'mlp1')
    kernel_header(a, 'final_kernel'); gen_t2.emit_l3(a, 'l3', PD=opt.get('l3pd', 7), **opt.get('l3', {}))
    kernel_desc(a, 'proj_kernel', vgpr=256, accum=256)
    kernel_desc(a, 'attn_kernel', vgpr=512, accum=256)
    kernel_desc(a, 'mlp1_kernel', vgpr=256, accum=256)
    kernel_desc(a, 'final_kernel', vgpr=(384 if opt.get('l3', {}).get('agpr', True) else 256), accum=256)
    open(path, 'w').write(a.text())
def build2(path, **opt):
    STF.st = opt.get('stf', '')
    ref = open(f'cdna_kernels/{NAME}.s.ref').read().split('\n')
    a = Asm()
    for l in ref:
        if l.startswith('; Override launch') : break
        a(l)
    a('; @launch kernel=proj_kernel grid=(256,1,1) block=(256,1,1) lds=147456')
    a('; @launch kernel=attn_kernel grid=(256,1,1) block=(256,1,1) lds=163840')
    a('; @launch kernel=final_kernel grid=(256,1,1) block=(256,1,1) lds=131072')
    a('.amdgcn_target "amdgcn-amd-amdhsa--gfx950"')
    kernel_header(a, 'proj_kernel'); gen_proj2.emit_l1(a, 'l1', **opt.get('l1', {}))
    kernel_header(a, 'attn_kernel'); g = gen_attn2.Attn(a, 'attn', **opt.get('attn', {})); g.emit()
    kernel_header(a, 'final_kernel')
    if opt.get('fin', 2) == 2: gen_final.emit_final(a, 'fin', **opt.get('l3', {}))
    else: gen_t2.emit_l3(a, 'l3', PD=opt.get('l3pd', 4), **opt.get('l3', {'agpr': False}))
    kernel_desc(a, 'proj_kernel', vgpr=448, accum=256)
    kernel_desc(a, 'attn_kernel', vgpr=512, accum=256)
    kernel_desc(a, 'final_kernel', vgpr=256, accum=256)
    open(path, 'w').write(a.text())
def build3(path, **opt):
    STF.st = opt.get('stf', ' sc1')
    ref = open(f'cdna_kernels/{NAME}.s.ref').read().split('\n')
    a = Asm()
    for l in ref:
        if l.startswith('; Override launch') : break
        a(l)
    a('; @launch kernel=main_kernel grid=(256,1,1) block=(256,1,1) lds=163840')
    a('; @launch kernel=final_kernel grid=(256,1,1) block=(256,1,1) lds=131072')
    a('.amdgcn_target "amdgcn-amd-amdhsa--gfx950"')
    ao = dict(opt.get('attn', {})); ao.setdefault('stagestamps', False); ao.setdefault('nt', False); ao.setdefault('vstages', 2)
    kernel_header(a, 'main_kernel'); g = (gen_main.Main2 if opt.get('kv1', False) else gen_main.Main)(a, 'attn', **ao); g.emit()
    kernel_header(a, 'final_kernel'); gen_final.emit_final(a, 'fin', **opt.get('l3', {}))
    kernel_desc(a, 'main_kernel', vgpr=512, accum=256)
    kernel_desc(a, 'final_kernel', vgpr=256, accum=256)
    open(path, 'w').write(a.text())
if __name__ == '__main__':
    opt = eval(sys.argv[2]) if len(sys.argv) > 2 else {}
    build(sys.argv[1] if len(sys.argv) > 1 else f'cdna_kernels/{NAME}.s', **opt)
```

```python
from asmlib import *
from layout import *
import gen_attn2 as A
from gen_attn2 import *
from gen_proj2 import Proj, VmQueue, frag_store_groups
from gen_proj import make_srd
import gen_proj

class Main(Attn):
    def emit_head(self):
        a = self.a; N = self.name; opt = self.opt
        S_CK, S_WK, S_X, S_O, S_WV, S_WQ = 4, 8, 12, 16, 92, 60
        S_H, S_G, S_GW = 76, 48, 52
        a(f's_cmp_ge_u32 s2, 256')
        a(f's_cbranch_scc1 {N}_end')
        self.stamp()
        a(f's_load_dwordx2 s[34:35], s[0:1], {KA_WS}')
        a(f's_load_dwordx2 s[64:65], s[0:1], {KA_AX}')
        a(f's_load_dwordx2 s[90:91], s[0:1], {KA_CKV}')
        a(f's_load_dwordx4 s[96:99], s[0:1], {KA_WUK}')
        a(f's_load_dwordx2 s[38:39], s[0:1], {KA_GW}')
        a(f's_load_dwordx2 s[66:67], s[0:1], {KA_WQ}')
        a(f's_load_dwordx2 s[68:69], s[0:1], {KA_W1}')
        a(f's_load_dwordx2 s[86:87], s[0:1], {KA_B1}')
        a(f's_load_dwordx2 s[70:71], s[0:1], {KA_WO}')
        a(f's_load_dwordx2 s[72:73], s[0:1], {KA_W2}')
        a(f's_load_dwordx2 s[100:101], s[0:1], {KA_DBG}')
        a(f'v_lshrrev_b32 v1, 6, v0')
        a(f'v_and_b32 v2, 63, v0')
        a(f'v_lshlrev_b32 v{V_L16}, 4, v2')
        a(f'v_readfirstlane_b32 s{s_w}, v1')
        a(f's_and_b32 s{s_t0}, s2, 7')
        a(f's_lshr_b32 s{s_t1}, s2, 3')
        a(f's_lshl_b32 s{s_h}, s{s_t0}, 2')
        a(f's_and_b32 s{s_t0}, s{s_t1}, 3')
        a(f's_add_u32 s{s_h}, s{s_h}, s{s_t0}')
        a(f's_lshr_b32 s{s_i}, s{s_t1}, 2')
        a(f's_add_u32 s{s_g1}, s{s_i}, 1')
        a(f's_lshl_b32 s{s_g1}, s{s_g1}, 2')
        a(f's_lshl_b32 s36, s{s_i}, 2'); a(f's_add_u32 s36, s36, s{s_w}')
        a(f's_lshl_b32 s37, s{s_i}, 2'); a(f's_sub_u32 s37, 60, s37'); a(f's_add_u32 s37, s37, s{s_w}')
        vq = VmQueue()
        P = Proj(a, vq, s_w, 16384, 16384, ACC=64, FB=(192, 216), fbk='a', VA=8, V_L16=V_L16, VT=33, SG=40,
                 wflags=(' nt' if opt.get('nt', True) else ''), stamps=self.st, opt=opt)
        P.setup_addrs(set_l16=False)
        a('s_waitcnt lgkmcnt(0)')
        make_srd(a, S_X, 64, 0, 2*MB); make_srd(a, S_GW, 38, 0, 1024)
        a(f's_lshl_b32 s82, s2, 3'); a(f's_lshl_b32 s83, s{s_w}, 1'); a('s_add_u32 s82, s82, s83')
        a('s_lshl_b32 s83, s82, 2'); a('s_lshl_b32 s82, s82, 10')
        LB_ = 40
        a(f'buffer_load_dwordx4 v[{LB_}:{LB_+3}], v{V_L16}, s[{S_X}:{S_X+3}], s82 offen'); vq.push('ln')
        a(f'buffer_load_dwordx4 v[{LB_+4}:{LB_+7}], v{V_L16}, s[{S_X}:{S_X+3}], s82 offen offset:1024'); vq.push('ln')
        a(f'buffer_load_dwordx4 v[{LB_+16}:{LB_+19}], v{V_L16}, s[{S_GW}:{S_GW+3}], 0 offen'); vq.push('ln')
        make_srd(a, S_CK, 90, 0, 2*MB); make_srd(a, S_WK, 96, 0, 4*MB); make_srd(a, S_WV, 98, 0, 4*MB)
        initKV = [f's_lshl_b32 s{P.s_a0}, s{s_i}, 18', f's_lshl_b32 s49, s{s_w}, 16', f's_add_u32 s{P.s_a0}, s{P.s_a0}, s49',
                  f's_add_u32 s{P.s_a1}, s{P.s_a0}, 32768',
                  f's_lshl_b32 s{P.s_wo}, s{s_w}, 17', f's_lshl_b32 s49, s{s_h}, 8', f's_add_u32 s{P.s_wo}, s{P.s_wo}, s49']
        initQ = [f's_lshl_b32 s{P.s_a0}, s36, 15', f's_lshl_b32 s{P.s_a1}, s37, 15',
                 f's_lshl_b32 s{P.s_wo}, s{s_w}, 17', f's_lshl_b32 s49, s{s_h}, 8', f's_add_u32 s{P.s_wo}, s{P.s_wo}, s49']
        ps = [dict(swap=False, srdA=S_CK, srdW=S_WK, init=initKV, epi=lambda: None, acck='v'),
              dict(swap=True, srdA=S_CK, srdW=S_WV, init=initKV, epi=lambda: None, acck='a'),
              dict(swap=False, srdA=S_X, srdW=S_WQ, init=initQ, epi=lambda: None, acck='v')]
        P.prologue(ps[0])
        make_srd(a, S_WQ, 66, 0, 4*MB)
        make_srd(a, S_O, 34, WS_K, 32*MB)
        make_srd(a, S_H, 34, WS_H, 2*MB); make_srd(a, S_G, 34, WS_G, 8192)
        real_a = self.a; tmp_a = Asm(); self.a = tmp_a
        M = self.setup_attn_regs()
        self.a = real_a; M.a = real_a
        c = 0x3e0293ee
        setup = tmp_a.lines + [f'v_mov_b32 v2, {hex(c)}', f'v_mov_b32 v3, {hex(c)}'] + [f'v_accvgpr_write_b32 a{e}, 0' for e in range(64)]
        setupG = [(setup[k:k+4], None) for k in range(0, len(setup), 4)]
        perS = -(-len(setupG)//5)
        vq.wait_for(a, 'ln')
        gen_proj.R.V_L16 = V_L16
        st_save = STF.st; STF.st = ' sc1'
        gen_proj.emit_ln_compute(a, LB_, S_H, S_G, 82, 83, 64)
        for _ in range(3): vq.push('lnst')
        a('s_getreg_b32 s33, hwreg(HW_REG_XCC_ID, 0, 4)')
        a('s_or_b32 s33, s33, 0x10')
        make_srd(a, 76, 100, 0, 256)
        a(f's_cmp_eq_u32 s{s_w}, 0')
        a(f's_cbranch_scc0 {N}_noann')
        a('v_mov_b32 v41, 0'); a('v_mov_b32 v42, s33')
        a('s_mov_b64 exec, 1')
        a('buffer_store_byte v42, v41, s[76:79], s2 offen sc1')
        a('s_mov_b64 exec, -1')
        a.label(f'{N}_noann')
        a(f's_lshl_b32 s{s_t0}, s{s_h}, 6'); a(f's_lshl_b32 s{s_t1}, s{s_i}, 3'); a(f's_add_u32 s{s_t0}, s{s_t0}, s{s_t1}')
        a(f's_lshl_b32 s{s_t1}, s{s_w}, 1'); a(f's_add_u32 s{s_t0}, s{s_t0}, s{s_t1}'); a(f's_lshl_b32 s{s_t0}, s{s_t0}, 13')
        for k in range(4):
            a(f's_add_u32 s{50+k}, s{s_t0}, {k*4096}')
            a(f's_add_u32 s{96+k}, s{s_t0}, {16*MB + k*4096}')
        STF.st = opt.get('kvst', '')
        KG = frag_store_groups(P, 'K', 'v', S_O, 50, None, v_scale=2, tag='kst')
        VGs = frag_store_groups(P, 'V', 'a', S_O, 96, 40, tag='vst')
        STF.st = st_save
        nv = opt.get('vstages', 3); sigt = opt.get('sigt', nv+1)
        perK = len(KG)//8; perV = len(VGs)//nv
        KV0 = self.kv_groups('K', 6); VV0 = self.kv_groups('V', 4)
        zero = [([f'v_accvgpr_write_b32 a{64+4*k+e}, 0' for e in range(4)], None) for k in range(16)]
        srds = self.kv_srd_lines()
        dbg = Asm(); make_srd(dbg, 76, 100, 0, 256)
        idld = dbg.lines + [f's_cmp_eq_u32 s{s_w}, 0', f's_cbranch_scc0 {N}_noid',
               f'v_lshlrev_b32 v57, 1, v{V_L16}', f's_lshr_b32 s{s_t1}, s{s_h}, 2', f's_and_b32 s32, s{s_h}, 3', 's_lshl_b32 s32, s32, 3', f's_add_u32 s32, s32, s{s_t1}',
               'buffer_load_ubyte v56, v57, s[76:79], s32 offen sc1', f'{N}_noid:']
        lnsig = dbg.lines + [f's_cmp_eq_u32 s{s_w}, 0', f's_cbranch_scc0 {N}_nolnsig', 's_or_b32 s32, s33, 0x40', 'v_mov_b32 v41, 0', 'v_mov_b32 v42, s32', 's_mov_b64 exec, 1',
               f'buffer_store_byte v42, v41, s[76:79], s2 offen sc1', 's_mov_b64 exec, -1', f'{N}_nolnsig:']
        sig = [f's_cmp_eq_u32 s{s_w}, 0', f's_cbranch_scc0 {N}_nosig',
               's_waitcnt vmcnt(0)' if False else 's_nop 0',
               'v_and_b32 v56, 0x1f, v56', 'v_cmp_ne_u32 vcc, s33, v56', 's_nop 3', 's_and_b32 s32, vcc_lo, 0xff', 's_cmp_eq_u32 s32, 0',
               f's_cbranch_scc1 {N}_samexcd'] + (['s_nop 0'] if opt.get('nowb') else ['buffer_wbl2 sc1', 's_waitcnt vmcnt(0)']) + [f'{N}_samexcd:',
               's_or_b32 s32, s33, 0xc0', 'v_mov_b32 v41, 0', 'v_mov_b32 v42, s32', 's_mov_b64 exec, 1',
               f'buffer_store_byte v42, v41, s[76:79], s2 offen sc1', 's_mov_b64 exec, -1', f'{N}_nosig:']
        pollpre = [f's_cmp_eq_u32 s{s_w}, 0', f's_cbranch_scc0 {N}_nopoll0',
                   f's_lshr_b32 s{s_t1}, s{s_h}, 4', f's_and_b32 s32, s{s_h}, 3', 's_lshl_b32 s32, s32, 1', f's_add_u32 s{s_t1}, s{s_t1}, s32',
                   f's_lshr_b32 s32, s{s_h}, 2', 's_and_b32 s32, s32, 3', 's_lshl_b32 s32, s32, 3', 's_lshl_b32 s32, 0x80, s32', 's_or_b32 s32, s32, 0x40404040',
                   f'v_lshrrev_b32 v42, 2, v{V_L16}', f'v_bfe_u32 v44, v{V_L16}, 4, 3', f'v_cmp_eq_u32 vcc, s{s_t1}, v44', 'v_mov_b32 v43, 0x40404040', 'v_mov_b32 v45, s32',
                   'v_cndmask_b32 v43, v43, v45, vcc',
                   f'buffer_load_dword v41, v42, s[76:79], 0 offen sc1', f'{N}_nopoll0:']
        def xe(p, t):
            if p == 0: return setupG[(t-1)*perS:t*perS] if 1 <= t <= 5 else []
            if p == 1: return KG[t*perK:(t+1)*perK]
            if p == 2:
                g = []
                if t < nv: g += VGs[t*perV:(t+1)*perV] + ([(idld, None)] if t == 0 else [])
                if t == nv: g += zero
                if t == 6: g += [(srds, None)]
                if t == 7: g += [(pollpre, None)]
                return g
            return []
        def xl(p, t):
            if p == 0 and t == 2: return [(lnsig, None)]
            if p == 2 and t == sigt: return [(sig, None)]
            return []
        assert sigt >= nv + 1 and sigt <= 6 and 48 % nv == 0
        P.start_compute()
        self.stamp()
        P.run(ps, extra_early=xe, extra_late=xl)
        self.stamp()
        chk = ['s_waitcnt vmcnt(0)', 'v_and_b32 v41, v43, v41', 'v_cmp_ne_u32 vcc, v43, v41', 's_nop 3', 's_cmp_eq_u64 vcc, 0']
        for l in [f's_cmp_eq_u32 s{s_w}, 0', f's_cbranch_scc0 {N}_polled', f's_mov_b32 s{s_cnt}, 0', f'{N}_poll:'] + chk + \
                 [f's_cbranch_scc1 {N}_polled', f's_add_u32 s{s_cnt}, s{s_cnt}, 1', f's_cmp_ge_u32 s{s_cnt}, 0x20000', f's_cbranch_scc1 {N}_polled',
                  f's_sleep {opt.get("sleep", 8)}', f'buffer_load_dword v41, v42, s[76:79], 0 offen sc1', f's_branch {N}_poll', f'{N}_polled:']: a(l)
        a('s_barrier')
        for g in KV0 + VV0:
            for l in g[0]: a(l)
        self.stamp()
        self.q_to_frags()
        return M
```

```python
from asmlib import *
from layout import *
from gen_proj2 import MF, v, ar

class ProjKV:
    NS, NSL, SLOT = 16, 5, 32768
    ACT = 16384
    def __init__(self, a, vq, s_w, srdA, srdK, srdV, ACCK=64, ACCV=64, VR=40, VT=33, SG=(40, 42, 43, 44, 45, 46, 47), stamps=None, opt=None):
        self.a, self.vq, self.s_w = a, vq, s_w
        self.srdA, self.srdK, self.srdV = srdA, srdK, srdV
        self.ACCK, self.ACCV = ACCK, ACCV
        self.V_AR, self.V_AB, self.V_WR, self.V_WB, self.V_AD, self.V_WD = VR, VR+2, VR+4, VR+8, VR+12, VR+16
        self.VT = VT
        (self.s_a, self.s_wo, self.s_fill, self.s_rd, self.s_wW, self.s_wA, self.s_t) = SG
        self.FB = [[192+4*k for k in range(10)], [232+4*k for k in range(6)] + [0, 4, 8, 12]]
        self.st = stamps or (lambda n='': None)
        self.opt = opt or {}
        self.lq = []

    def setup(self, s_r, s_h):
        a = self.a; T = self.VT; w = self.s_w
        a(f'v_and_b32 v{T}, 63, v0')
        a(f's_lshl_b32 s{self.s_wW}, s{w}, 11')
        a(f's_lshl_b32 s{self.s_wA}, s{w}, 12'); a(f's_add_u32 s{self.s_wA}, s{self.s_wA}, {self.ACT}')
        a(f's_mov_b32 s{self.s_fill}, 0'); a(f's_mov_b32 s{self.s_rd}, 0')
        a(f'v_and_b32 v{T+1}, 31, v{T}'); a(f'v_lshrrev_b32 v{T+2}, 5, v{T}')
        a(f'v_bfe_u32 v{T+3}, v{T+1}, 2, 2'); a(f'v_xor_b32 v{T+3}, v{T+3}, v{T+2}'); a(f'v_lshlrev_b32 v{T+3}, 4, v{T+3}')
        a(f'v_lshl_add_u32 v{T+3}, v{T+1}, 6, v{T+3}')
        a(f'v_add_u32 v{self.V_AB}, s{self.s_wA}, v{T+3}')
        a(f'v_xor_b32 v{self.V_AB+1}, 32, v{self.V_AB}')
        a(f'v_bfe_u32 v{T+3}, v{T}, 2, 2')
        a(f'v_lshl_add_u32 v{T+4}, v{T+2}, 3, v{T+3}'); a(f'v_lshlrev_b32 v{T+4}, 8, v{T+4}')
        a(f'v_bfe_u32 v{T+5}, v{T}, 4, 1'); a(f'v_lshl_add_u32 v{T+4}, v{T+5}, 5, v{T+4}')
        a(f'v_and_b32 v{T+5}, 3, v{T}'); a(f'v_lshl_add_u32 v{T+4}, v{T+5}, 3, v{T+4}')
        for dt in range(4):
            a(f'v_xor_b32 v{T+5}, {dt}, v{T+3}'); a(f'v_lshl_add_u32 v{self.V_WB+dt}, v{T+5}, 6, v{T+4}')
        a(f'v_lshrrev_b32 v{T+3}, 2, v{T}'); a(f'v_lshrrev_b32 v{T+4}, 4, v{T}'); a(f'v_and_b32 v{T+5}, 3, v{T}')
        a(f'v_xor_b32 v{T+4}, v{T+4}, v{T+5}'); a(f'v_lshlrev_b32 v{T+4}, 4, v{T+4}'); a(f'v_lshl_add_u32 v{T+4}, v{T+3}, 10, v{T+4}')
        for j in range(4): a(f'v_add_u32 v{self.V_AD+j}, {j*(16384-1024)}, v{T+4}')
        a(f'v_lshrrev_b32 v{T+3}, 4, v{T}'); a(f'v_bfe_u32 v{T+4}, v{T}, 2, 2'); a(f'v_xor_b32 v{T+4}, v{T+4}, v{T+3}'); a(f'v_lshlrev_b32 v{T+4}, 6, v{T+4}')
        a(f'v_and_b32 v{T+5}, 3, v{T}'); a(f'v_lshl_add_u32 v{T+4}, v{T+5}, 4, v{T+4}'); a(f'v_lshl_add_u32 v{T+4}, v{T+3}, 13, v{T+4}')
        for j in range(2): a(f'v_add_u32 v{self.V_WD+j}, {j*(32768-1024)}, v{T+4}')
        a(f's_lshl_b32 s{self.s_a}, s{s_r}, 18'); a(f's_lshl_b32 s{self.s_t}, s{w}, 16'); a(f's_add_u32 s{self.s_a}, s{self.s_a}, s{self.s_t}')
        a(f's_lshl_b32 s{self.s_wo}, s{w}, 16'); a(f's_lshl_b32 s{self.s_t}, s{s_h}, 8'); a(f's_add_u32 s{self.s_wo}, s{self.s_wo}, s{self.s_t}')

    def adv(self, s):
        return [f's_add_u32 s{s}, s{s}, {self.SLOT}', f's_cmp_ge_u32 s{s}, {self.NSL*self.SLOT}', f's_cselect_b32 s{s}, 0, s{s}']

    def dma(self, t):
        g = []
        def ld(vo, srd_, so, off): return f'buffer_load_dwordx4 v{vo}, s[{srd_}:{srd_+3}], s{so} offen' + (f' offset:{off}' if off else '') + ' lds'
        tag = ('kv', t)
        g.append(([f's_add_u32 s{self.s_t}, s{self.s_fill}, s{self.s_wW}', f's_mov_b32 m0, s{self.s_t}', 's_nop 0', ld(self.V_WD, self.srdK, self.s_wo, 0)], tag))
        g.append(([ld(self.V_WD+1, self.srdK, self.s_wo, 1024)], tag))
        g.append(([f's_add_u32 m0, s{self.s_t}, 8192', 's_nop 0', ld(self.V_WD, self.srdV, self.s_wo, 0)], tag))
        g.append(([ld(self.V_WD+1, self.srdV, self.s_wo, 1024), f's_add_u32 s{self.s_wo}, s{self.s_wo}, {32*8192}'], tag))
        g.append(([f's_add_u32 m0, s{self.s_fill}, s{self.s_wA}', 's_nop 0', ld(self.V_AD, self.srdA, self.s_a, 0)], tag))
        for j in range(1, 4):
            l = [ld(self.V_AD+j, self.srdA, self.s_a, j*1024)]
            if j == 3: l += [f's_add_u32 s{self.s_a}, s{self.s_a}, 64'] + self.adv(self.s_fill)
            g.append((l, tag))
        return g

    def emit_group(self, g):
        for l in g[0]: self.a(l)
        if g[1] is not None and any(l.startswith('buffer_') for l in g[0]): self.vq.push(g[1])

    def addr_update(self):
        l = [f'v_add_u32 v{self.V_AR+k}, s{self.s_rd}, v{self.V_AB+k}' for k in range(2)]
        l += [f'v_add_u32 v{self.V_WR+k}, s{self.s_rd}, v{self.V_WB+k}' for k in range(4)]
        return l + self.adv(self.s_rd)

    def reads(self, ks, buf):
        F = self.FB[buf]
        r = []
        def act(t): r.append((f'ds_read_b128 {ar(F[t],4)}, v{self.V_AR+ks} offset:{t*2048}', ('a', buf, t)))
        def w(m, dt):
            b = F[2+4*m+dt]; off = m*8192 + ks*4096
            r.append((f'ds_read_b64_tr_b16 {ar(b,2)}, v{self.V_WR+dt} offset:{off}', ('w', buf, m, dt)))
            r.append((f'ds_read_b64_tr_b16 {ar(b+2,2)}, v{self.V_WR+dt} offset:{off+1024}', ('w', buf, m, dt)))
        act(0); w(0, 0); act(1); w(1, 0)
        for dt in range(1, 4): w(0, dt); w(1, dt)
        return r

    def mfmas(self, buf, first):
        F = self.FB[buf]; l = []
        for dt in range(4):
            for st in range(2):
                acc = v(self.ACCK + 16*(4*st+dt), 16)
                l.append((f'{MF} {acc}, {ar(F[2+dt],4)}, {ar(F[st],4)}, ' + ('0' if first else acc), [('w', buf, 0, dt), ('a', buf, st)]))
            for st in range(2):
                acc = ar(self.ACCV + 16*(4*st+dt), 16)
                l.append((f'{MF} {acc}, {ar(F[st],4)}, {ar(F[6+dt],4)}, ' + ('0' if first else acc), [('w', buf, 1, dt), ('a', buf, st)]))
        return l

    def prologue(self, n=2):
        rest = []
        for t in range(self.NSL):
            for g in self.dma(t):
                if t < n: self.emit_group(g)
                else: rest.append(g)
        return rest

    def start(self):
        a = self.a
        self.vq.wait_for(a, ('kv', 0))
        a('s_barrier')
        for l in self.addr_update(): a(l)
        self.lq = []
        for x in self.reads(0, 0):
            a(x[0]); self.lq.append(x[1])

    def run(self, extra, handover):
        a = self.a
        def emit_rd(x):
            a(x[0]); self.lq.append(x[1])
        def need(tags):
            idx = max([k for k, t in enumerate(self.lq) if t in tags], default=-1)
            if idx < 0: return
            n = min(15, len(self.lq) - 1 - idx)
            a(f's_waitcnt lgkmcnt({n})')
            self.lq = self.lq[len(self.lq)-n:] if n else []
        pending = list(getattr(self, 'initial', []))
        for t in range(self.NS):
            if self.opt.get('stagestamps'): self.st('kv')
            last = t == self.NS-1
            xe, xl = extra(t)
            early = pending + list(xe); pending = []
            late = []
            if t + self.NSL < self.NS:
                G = self.dma(t + self.NSL); late = G[:4]; pending = G[4:]
            late = late + list(xl)
            for ks in range(2):
                buf = ks
                pre = []
                if ks == 1:
                    a('s_waitcnt lgkmcnt(0)'); self.lq = []
                    if not last:
                        self.vq.wait_for(a, ('kv', t+1)); pre = self.addr_update(); nrd = self.reads(0, 0)
                    else:
                        tag, pre, nrd = handover(); self.vq.wait_for(a, tag)
                    a('s_barrier')
                mf = self.mfmas(buf, t == 0 and ks == 0)
                rd = self.reads(1, 1) if ks == 0 else nrd
                gs = early if ks == 0 else late
                slot = {}
                lo = 1 if ks == 0 else 3
                for k, g in enumerate(gs): slot.setdefault(min(15, lo + k*(16-lo)//len(gs)), []).append(g)
                for k, (m, tags) in enumerate(mf):
                    need(tags)
                    a(m)
                    if k == 0:
                        for l in pre:
                            if l.startswith('v_'): a(l)
                    for x in rd[2*k:2*k+2]: emit_rd(x)
                    if k == 1:
                        for l in pre:
                            if not l.startswith('v_'): a(l)
                    for g in slot.get(k, []): self.emit_group(g)
```

```python
from asmlib import *
from layout import *
import gen_attn2 as A
from gen_attn2 import *
from gen_proj2 import Proj, VmQueue, frag_store_groups
from gen_proj import make_srd
import gen_proj
from gen_kv import ProjKV

class Main(Attn):
    def emit_head(self):
        a = self.a; N = self.name; opt = self.opt
        S_CK, S_WK, S_X, S_O, S_WV, S_WQ = 4, 8, 12, 16, 92, 60
        S_H, S_G, S_GW = 76, 48, 52
        a(f's_cmp_ge_u32 s2, 256')
        a(f's_cbranch_scc1 {N}_end')
        self.stamp()
        a(f's_load_dwordx2 s[34:35], s[0:1], {KA_WS}')
        a(f's_load_dwordx2 s[64:65], s[0:1], {KA_AX}')
        a(f's_load_dwordx2 s[90:91], s[0:1], {KA_CKV}')
        a(f's_load_dwordx4 s[96:99], s[0:1], {KA_WUK}')
        a(f's_load_dwordx2 s[38:39], s[0:1], {KA_GW}')
        a(f's_load_dwordx2 s[66:67], s[0:1], {KA_WQ}')
        a(f's_load_dwordx2 s[68:69], s[0:1], {KA_W1}')
        a(f's_load_dwordx2 s[86:87], s[0:1], {KA_B1}')
        a(f's_load_dwordx2 s[70:71], s[0:1], {KA_WO}')
        a(f's_load_dwordx2 s[72:73], s[0:1], {KA_W2}')
        a(f's_load_dwordx2 s[100:101], s[0:1], {KA_DBG}')
        a(f'v_lshrrev_b32 v1, 6, v0')
        a(f'v_and_b32 v2, 63, v0')
        a(f'v_lshlrev_b32 v{V_L16}, 4, v2')
        a(f'v_readfirstlane_b32 s{s_w}, v1')
        a(f's_and_b32 s{s_t0}, s2, 7')
        a(f's_lshr_b32 s{s_t1}, s2, 3')
        a(f's_lshl_b32 s{s_h}, s{s_t0}, 2')
        a(f's_and_b32 s{s_t0}, s{s_t1}, 3')
        a(f's_add_u32 s{s_h}, s{s_h}, s{s_t0}')
        a(f's_lshr_b32 s{s_i}, s{s_t1}, 2')
        a(f's_add_u32 s{s_g1}, s{s_i}, 1')
        a(f's_lshl_b32 s{s_g1}, s{s_g1}, 2')
        a(f's_lshl_b32 s36, s{s_i}, 2'); a(f's_add_u32 s36, s36, s{s_w}')
        a(f's_lshl_b32 s37, s{s_i}, 2'); a(f's_sub_u32 s37, 60, s37'); a(f's_add_u32 s37, s37, s{s_w}')
        vq = VmQueue()
        P = Proj(a, vq, s_w, 16384, 16384, ACC=64, FB=(192, 216), fbk='a', VA=8, V_L16=V_L16, VT=33, SG=40,
                 wflags=(' nt' if opt.get('nt', True) else ''), stamps=self.st, opt=opt)
        P.setup_addrs(set_l16=False)
        a('s_waitcnt lgkmcnt(0)')
        make_srd(a, S_X, 64, 0, 2*MB); make_srd(a, S_GW, 38, 0, 1024)
        a(f's_lshl_b32 s82, s2, 3'); a(f's_lshl_b32 s83, s{s_w}, 1'); a('s_add_u32 s82, s82, s83')
        a('s_lshl_b32 s83, s82, 2'); a('s_lshl_b32 s82, s82, 10')
        LB_ = 40
        a(f'buffer_load_dwordx4 v[{LB_}:{LB_+3}], v{V_L16}, s[{S_X}:{S_X+3}], s82 offen'); vq.push('ln')
        a(f'buffer_load_dwordx4 v[{LB_+4}:{LB_+7}], v{V_L16}, s[{S_X}:{S_X+3}], s82 offen offset:1024'); vq.push('ln')
        a(f'buffer_load_dwordx4 v[{LB_+16}:{LB_+19}], v{V_L16}, s[{S_GW}:{S_GW+3}], 0 offen'); vq.push('ln')
        make_srd(a, S_CK, 90, 0, 2*MB); make_srd(a, S_WK, 96, 0, 4*MB); make_srd(a, S_WV, 98, 0, 4*MB)
        initKV = [f's_lshl_b32 s{P.s_a0}, s{s_i}, 18', f's_lshl_b32 s49, s{s_w}, 16', f's_add_u32 s{P.s_a0}, s{P.s_a0}, s49',
                  f's_add_u32 s{P.s_a1}, s{P.s_a0}, 32768',
                  f's_lshl_b32 s{P.s_wo}, s{s_w}, 17', f's_lshl_b32 s49, s{s_h}, 8', f's_add_u32 s{P.s_wo}, s{P.s_wo}, s49']
        initQ = [f's_lshl_b32 s{P.s_a0}, s36, 15', f's_lshl_b32 s{P.s_a1}, s37, 15',
                 f's_lshl_b32 s{P.s_wo}, s{s_w}, 17', f's_lshl_b32 s49, s{s_h}, 8', f's_add_u32 s{P.s_wo}, s{P.s_wo}, s49']
        ps = [dict(swap=False, srdA=S_CK, srdW=S_WK, init=initKV, epi=lambda: None, acck='v'),
              dict(swap=True, srdA=S_CK, srdW=S_WV, init=initKV, epi=lambda: None, acck='a'),
              dict(swap=False, srdA=S_X, srdW=S_WQ, init=initQ, epi=lambda: None, acck='v')]
        P.prologue(ps[0])
        make_srd(a, S_WQ, 66, 0, 4*MB)
        make_srd(a, S_O, 34, WS_K, 32*MB)
        make_srd(a, S_H, 34, WS_H, 2*MB); make_srd(a, S_G, 34, WS_G, 8192)
        real_a = self.a; tmp_a = Asm(); self.a = tmp_a
        M = self.setup_attn_regs()
        self.a = real_a; M.a = real_a
        c = 0x3e0293ee
        setup = tmp_a.lines + [f'v_mov_b32 v2, {hex(c)}', f'v_mov_b32 v3, {hex(c)}'] + [f'v_accvgpr_write_b32 a{e}, 0' for e in range(64)]
        setupG = [(setup[k:k+4], None) for k in range(0, len(setup), 4)]
        perS = -(-len(setupG)//5)
        vq.wait_for(a, 'ln')
        gen_proj.R.V_L16 = V_L16
        st_save = STF.st; STF.st = ' sc1'
        gen_proj.emit_ln_compute(a, LB_, S_H, S_G, 82, 83, 64)
        for _ in range(3): vq.push('lnst')
        a('s_getreg_b32 s33, hwreg(HW_REG_XCC_ID, 0, 4)')
        a('s_or_b32 s33, s33, 0x10')
        make_srd(a, 76, 100, 0, 256)
        a(f's_cmp_eq_u32 s{s_w}, 0')
        a(f's_cbranch_scc0 {N}_noann')
        a('v_mov_b32 v41, 0'); a('v_mov_b32 v42, s33')
        a('s_mov_b64 exec, 1')
        a('buffer_store_byte v42, v41, s[76:79], s2 offen sc1')
        a('s_mov_b64 exec, -1')
        a.label(f'{N}_noann')
        a(f's_lshl_b32 s{s_t0}, s{s_h}, 6'); a(f's_lshl_b32 s{s_t1}, s{s_i}, 3'); a(f's_add_u32 s{s_t0}, s{s_t0}, s{s_t1}')
        a(f's_lshl_b32 s{s_t1}, s{s_w}, 1'); a(f's_add_u32 s{s_t0}, s{s_t0}, s{s_t1}'); a(f's_lshl_b32 s{s_t0}, s{s_t0}, 13')
        for k in range(4):
            a(f's_add_u32 s{50+k}, s{s_t0}, {k*4096}')
            a(f's_add_u32 s{96+k}, s{s_t0}, {16*MB + k*4096}')
        STF.st = opt.get('kvst', '')
        KG = frag_store_groups(P, 'K', 'v', S_O, 50, None, v_scale=2, tag='kst')
        VGs = frag_store_groups(P, 'V', 'a', S_O, 96, 40, tag='vst')
        STF.st = st_save
        nv = opt.get('vstages', 3); sigt = opt.get('sigt', nv+1)
        perK = len(KG)//8; perV = len(VGs)//nv
        KV0 = self.kv_groups('K', 6); VV0 = self.kv_groups('V', 4)
        zero = [([f'v_accvgpr_write_b32 a{64+4*k+e}, 0' for e in range(4)], None) for k in range(16)]
        srds = self.kv_srd_lines()
        dbg = Asm(); make_srd(dbg, 76, 100, 0, 256)
        idld = dbg.lines + [f's_cmp_eq_u32 s{s_w}, 0', f's_cbranch_scc0 {N}_noid',
               f'v_lshlrev_b32 v57, 1, v{V_L16}', f's_lshr_b32 s{s_t1}, s{s_h}, 2', f's_and_b32 s32, s{s_h}, 3', 's_lshl_b32 s32, s32, 3', f's_add_u32 s32, s32, s{s_t1}',
               'buffer_load_ubyte v56, v57, s[76:79], s32 offen sc1', f'{N}_noid:']
        lnsig = dbg.lines + [f's_cmp_eq_u32 s{s_w}, 0', f's_cbranch_scc0 {N}_nolnsig', 's_or_b32 s32, s33, 0x40', 'v_mov_b32 v41, 0', 'v_mov_b32 v42, s32', 's_mov_b64 exec, 1',
               f'buffer_store_byte v42, v41, s[76:79], s2 offen sc1', 's_mov_b64 exec, -1', f'{N}_nolnsig:']
        sig = [f's_cmp_eq_u32 s{s_w}, 0', f's_cbranch_scc0 {N}_nosig',
               's_waitcnt vmcnt(0)' if False else 's_nop 0',
               'v_and_b32 v56, 0x1f, v56', 'v_cmp_ne_u32 vcc, s33, v56', 's_nop 3', 's_and_b32 s32, vcc_lo, 0xff', 's_cmp_eq_u32 s32, 0',
               f's_cbranch_scc1 {N}_samexcd'] + (['s_nop 0'] if opt.get('nowb') else ['buffer_wbl2 sc1', 's_waitcnt vmcnt(0)']) + [f'{N}_samexcd:',
               's_or_b32 s32, s33, 0xc0', 'v_mov_b32 v41, 0', 'v_mov_b32 v42, s32', 's_mov_b64 exec, 1',
               f'buffer_store_byte v42, v41, s[76:79], s2 offen sc1', 's_mov_b64 exec, -1', f'{N}_nosig:']
        pollpre = [f's_cmp_eq_u32 s{s_w}, 0', f's_cbranch_scc0 {N}_nopoll0',
                   f's_lshr_b32 s{s_t1}, s{s_h}, 4', f's_and_b32 s32, s{s_h}, 3', 's_lshl_b32 s32, s32, 1', f's_add_u32 s{s_t1}, s{s_t1}, s32',
                   f's_lshr_b32 s32, s{s_h}, 2', 's_and_b32 s32, s32, 3', 's_lshl_b32 s32, s32, 3', 's_lshl_b32 s32, 0x80, s32', 's_or_b32 s32, s32, 0x40404040',
                   f'v_lshrrev_b32 v42, 2, v{V_L16}', f'v_bfe_u32 v44, v{V_L16}, 4, 3', f'v_cmp_eq_u32 vcc, s{s_t1}, v44', 'v_mov_b32 v43, 0x40404040', 'v_mov_b32 v45, s32',
                   'v_cndmask_b32 v43, v43, v45, vcc',
                   f'buffer_load_dword v41, v42, s[76:79], 0 offen sc1', f'{N}_nopoll0:']
        def xe(p, t):
            if p == 0: return setupG[(t-1)*perS:t*perS] if 1 <= t <= 5 else []
            if p == 1: return KG[t*perK:(t+1)*perK]
            if p == 2:
                g = []
                if t < nv: g += VGs[t*perV:(t+1)*perV] + ([(idld, None)] if t == 0 else [])
                if t == nv: g += zero
                if t == 6: g += [(srds, None)]
                if t == 7: g += [(pollpre, None)]
                return g
            return []
        def xl(p, t):
            if p == 0 and t == 2: return [(lnsig, None)]
            if p == 2 and t == sigt: return [(sig, None)]
            return []
        assert sigt >= nv + 1 and sigt <= 6 and 48 % nv == 0
        P.start_compute()
        self.stamp()
        P.run(ps, extra_early=xe, extra_late=xl)
        self.stamp()
        chk = ['s_waitcnt vmcnt(0)', 'v_and_b32 v41, v43, v41', 'v_cmp_ne_u32 vcc, v43, v41', 's_nop 3', 's_cmp_eq_u64 vcc, 0']
        for l in [f's_cmp_eq_u32 s{s_w}, 0', f's_cbranch_scc0 {N}_polled', f's_mov_b32 s{s_cnt}, 0', f'{N}_poll:'] + chk + \
                 [f's_cbranch_scc1 {N}_polled', f's_add_u32 s{s_cnt}, s{s_cnt}, 1', f's_cmp_ge_u32 s{s_cnt}, 0x20000', f's_cbranch_scc1 {N}_polled',
                  f's_sleep {opt.get("sleep", 8)}', f'buffer_load_dword v41, v42, s[76:79], 0 offen sc1', f's_branch {N}_poll', f'{N}_polled:']: a(l)
        a('s_barrier')
        for g in KV0 + VV0:
            for l in g[0]: a(l)
        self.stamp()
        self.q_to_frags()
        return M


class Main2(Main):
    def emit_head(self):
        a = self.a; N = self.name; opt = self.opt
        S_CK, S_WK, S_X, S_O, S_WV, S_WQ = 4, 8, 12, 16, 92, 60
        S_H, S_G, S_GW = 76, 48, 52
        a(f's_cmp_ge_u32 s2, 256')
        a(f's_cbranch_scc1 {N}_end')
        self.stamp()
        a(f's_load_dwordx2 s[90:91], s[0:1], {KA_CKV}')
        a(f's_load_dwordx4 s[96:99], s[0:1], {KA_WUK}')
        a(f's_load_dwordx2 s[34:35], s[0:1], {KA_WS}')
        a(f's_load_dwordx2 s[64:65], s[0:1], {KA_AX}')
        a(f's_load_dwordx2 s[38:39], s[0:1], {KA_GW}')
        a(f's_load_dwordx2 s[66:67], s[0:1], {KA_WQ}')
        a(f's_load_dwordx2 s[68:69], s[0:1], {KA_W1}')
        a(f's_load_dwordx2 s[86:87], s[0:1], {KA_B1}')
        a(f's_load_dwordx2 s[70:71], s[0:1], {KA_WO}')
        a(f's_load_dwordx2 s[72:73], s[0:1], {KA_W2}')
        a(f's_load_dwordx2 s[100:101], s[0:1], {KA_DBG}')
        a(f'v_lshrrev_b32 v1, 6, v0')
        a(f'v_and_b32 v2, 63, v0')
        a(f'v_lshlrev_b32 v{V_L16}, 4, v2')
        a(f'v_readfirstlane_b32 s{s_w}, v1')
        a(f's_and_b32 s{s_t0}, s2, 7')
        a(f's_lshr_b32 s{s_t1}, s2, 3')
        a(f's_lshl_b32 s{s_h}, s{s_t0}, 2')
        a(f's_and_b32 s{s_t0}, s{s_t1}, 3')
        a(f's_add_u32 s{s_h}, s{s_h}, s{s_t0}')
        a(f's_lshr_b32 s{s_i}, s{s_t1}, 2')
        a(f's_add_u32 s{s_g1}, s{s_i}, 1')
        a(f's_lshl_b32 s{s_g1}, s{s_g1}, 2')
        a(f's_lshl_b32 s36, s{s_i}, 2'); a(f's_add_u32 s36, s36, s{s_w}')
        a(f's_lshl_b32 s37, s{s_i}, 2'); a(f's_sub_u32 s37, 60, s37'); a(f's_add_u32 s37, s37, s{s_w}')
        vq = VmQueue()
        a('s_waitcnt lgkmcnt(0)')
        make_srd(a, S_CK, 90, 0, 2*MB); make_srd(a, S_WK, 96, 0, 4*MB); make_srd(a, S_WV, 98, 0, 4*MB)
        make_srd(a, S_X, 64, 0, 2*MB); make_srd(a, S_GW, 38, 0, 1024); make_srd(a, S_WQ, 66, 0, 4*MB)
        KV = ProjKV(a, vq, s_w, S_CK, S_WK, S_WV, ACCK=64, ACCV=64, VR=40, VT=33, SG=(38, 39, 64, 65, 66, 67, 90), stamps=self.st, opt=opt)
        KV.setup(s_i, s_h)
        LB_ = 232
        a(f's_lshl_b32 s82, s2, 3'); a(f's_lshl_b32 s83, s{s_w}, 1'); a('s_add_u32 s82, s82, s83')
        a('s_lshl_b32 s83, s82, 2'); a('s_lshl_b32 s82, s82, 10')
        a(f'buffer_load_dwordx4 v[{LB_}:{LB_+3}], v{V_L16}, s[{S_X}:{S_X+3}], s82 offen'); vq.push('ln')
        a(f'buffer_load_dwordx4 v[{LB_+4}:{LB_+7}], v{V_L16}, s[{S_X}:{S_X+3}], s82 offen offset:1024'); vq.push('ln')
        a(f'buffer_load_dwordx4 v[{LB_+16}:{LB_+19}], v{V_L16}, s[{S_GW}:{S_GW+3}], 0 offen'); vq.push('ln')
        rest0 = KV.prologue(opt.get('kvpro', 2))
        P = Proj(a, vq, s_w, 16384, 65536, ACC=64, FB=(192, 216), fbk='a', VA=8, V_L16=V_L16, VT=33, SG=40,
                 wflags=(' nt' if opt.get('nt', False) else ''), stamps=self.st, opt=opt)
        P.setup_addrs(set_l16=False)
        make_srd(a, S_O, 34, WS_K, 32*MB)
        make_srd(a, S_H, 34, WS_H, 2*MB); make_srd(a, S_G, 34, WS_G, 8192)
        real_a = self.a; tmp_a = Asm(); self.a = tmp_a; self.mtmp = 232
        M = self.setup_attn_regs()
        self.a = real_a; M.a = real_a
        c = 0x3e0293ee
        setup = tmp_a.lines + [f'v_mov_b32 v2, {hex(c)}', f'v_mov_b32 v3, {hex(c)}']
        setupG = [(setup[k:k+4], None) for k in range(0, len(setup), 4)]
        perS = -(-len(setupG)//6)
        vq.wait_for(a, 'ln')
        gen_proj.R.V_L16 = V_L16
        st_save = STF.st; STF.st = ' sc1'
        gen_proj.emit_ln_compute(a, LB_, S_H, S_G, 82, 83, 64)
        for _ in range(3): vq.push('lnst')
        a('s_getreg_b32 s33, hwreg(HW_REG_XCC_ID, 0, 4)')
        a('s_or_b32 s33, s33, 0x10')
        make_srd(a, 76, 100, 0, 256)
        a('v_mov_b32 v33, 0'); a('v_mov_b32 v34, s33')
        a(f's_cmp_eq_u32 s{s_w}, 0'); a('s_cselect_b64 exec, 1, 0')
        a('buffer_store_byte v34, v33, s[76:79], s2 offen sc1'); vq.push('flag')
        a('s_mov_b64 exec, -1')
        npre = 8*opt.get('kvpre2', 1)
        for g in rest0[:npre]: KV.emit_group(g)
        KV.initial = rest0[npre:]
        a(f's_lshl_b32 s{s_t0}, s{s_h}, 6'); a(f's_lshl_b32 s{s_t1}, s{s_i}, 3'); a(f's_add_u32 s{s_t0}, s{s_t0}, s{s_t1}')
        a(f's_lshl_b32 s{s_t1}, s{s_w}, 1'); a(f's_add_u32 s{s_t0}, s{s_t0}, s{s_t1}'); a(f's_lshl_b32 s{s_t0}, s{s_t0}, 13')
        for k in range(4):
            a(f's_add_u32 s{50+k}, s{s_t0}, {k*4096}')
            a(f's_add_u32 s{96+k}, s{s_t0}, {16*MB + k*4096}')
        STF.st = opt.get('kvst', '')
        KG = frag_store_groups(P, 'K', 'v', S_O, 50, None, v_scale=2, tag='kst')
        VGs = frag_store_groups(P, 'V', 'a', S_O, 96, 40, tag='vst')
        STF.st = st_save
        nv = opt.get('vstages', 3); sigt = opt.get('sigt', nv+1)
        perV = len(VGs)//nv
        KV0 = self.kv_groups('K', 6); VV0 = self.kv_groups('V', 4)
        zero = [([f'v_accvgpr_write_b32 a{4*k+e}, 0' for e in range(4)], None) for k in range(32)]
        srds = self.kv_srd_lines()
        dbg = Asm(); make_srd(dbg, 76, 100, 0, 256)
        one = lambda val, lab: [f's_cmp_eq_u32 s{s_w}, 0', f's_cbranch_scc0 {N}_{lab}']
        idld = dbg.lines + [f's_cmp_eq_u32 s{s_w}, 0', f's_cbranch_scc0 {N}_noid',
               f'v_lshlrev_b32 v57, 1, v{V_L16}', f's_lshr_b32 s{s_t1}, s{s_h}, 2', f's_and_b32 s32, s{s_h}, 3', 's_lshl_b32 s32, s32, 3', f's_add_u32 s32, s32, s{s_t1}',
               'buffer_load_ubyte v56, v57, s[76:79], s32 offen sc1', f'{N}_noid:']
        lnsig = dbg.lines + ['s_or_b32 s32, s33, 0x40', 'v_mov_b32 v58, 0', 'v_mov_b32 v59, s32', f's_cmp_eq_u32 s{s_w}, 0', 's_cselect_b64 exec, 1, 0',
               f'buffer_store_byte v59, v58, s[76:79], s2 offen sc1', 's_mov_b64 exec, -1']
        sig = [f's_cmp_eq_u32 s{s_w}, 0', f's_cbranch_scc0 {N}_nosig',
               'v_and_b32 v56, 0x1f, v56', 'v_cmp_ne_u32 vcc, s33, v56', 's_nop 3', 's_and_b32 s32, vcc_lo, 0xff', 's_cmp_eq_u32 s32, 0',
               f's_cbranch_scc1 {N}_samexcd', 'buffer_wbl2 sc1', 's_waitcnt vmcnt(0)', f'{N}_samexcd:',
               's_or_b32 s32, s33, 0xc0', 'v_mov_b32 v41, 0', 'v_mov_b32 v42, s32', 's_mov_b64 exec, 1',
               f'buffer_store_byte v42, v41, s[76:79], s2 offen sc1', 's_mov_b64 exec, -1', f'{N}_nosig:']
        pollpre = [f's_cmp_eq_u32 s{s_w}, 0', f's_cbranch_scc0 {N}_nopoll0',
                   f's_lshr_b32 s{s_t1}, s{s_h}, 4', f's_and_b32 s32, s{s_h}, 3', 's_lshl_b32 s32, s32, 1', f's_add_u32 s{s_t1}, s{s_t1}, s32',
                   f's_lshr_b32 s32, s{s_h}, 2', 's_and_b32 s32, s32, 3', 's_lshl_b32 s32, s32, 3', 's_lshl_b32 s32, 0x80, s32', 's_or_b32 s32, s32, 0x40404040',
                   f'v_lshrrev_b32 v42, 2, v{V_L16}', f'v_bfe_u32 v44, v{V_L16}, 4, 3', f'v_cmp_eq_u32 vcc, s{s_t1}, v44', 'v_mov_b32 v43, 0x40404040', 'v_mov_b32 v45, s32',
                   'v_cndmask_b32 v43, v43, v45, vcc',
                   f'buffer_load_dword v41, v42, s[76:79], 0 offen sc1', f'{N}_nopoll0:']
        initQ = [f's_lshl_b32 s{P.s_a0}, s36, 15', f's_lshl_b32 s{P.s_a1}, s37, 15',
                 f's_lshl_b32 s{P.s_wo}, s{s_w}, 17', f's_lshl_b32 s49, s{s_h}, 8', f's_add_u32 s{P.s_wo}, s{P.s_wo}, s49']
        qpass = [dict(swap=False, srdA=S_X, srdW=S_WQ, init=initQ, epi=lambda: None, acck='v')]
        Q0 = P.dma_stage(S_X, S_WQ, (0, 0), pre=initQ); Q1 = P.dma_stage(S_X, S_WQ, (0, 1)); Q2 = P.dma_stage(S_X, S_WQ, (0, 2))
        def touch(lines): return (lines, 'pf')
        pfw = [f'v_lshrrev_b32 v58, 5, v{V_L16}', 'v_lshlrev_b32 v58, 13, v58', f'v_bfe_u32 v59, v{V_L16}, 4, 1', 'v_lshl_add_u32 v58, v59, 7, v58',
               f's_and_b32 s32, s{s_w}, 1', 's_lshl_b32 s32, s32, 5', f's_lshl_b32 s49, s{s_i}, 6', 's_add_u32 s32, s32, s49', 's_lshl_b32 s32, s32, 13',
               f's_lshl_b32 s49, s{s_h}, 8', 's_add_u32 s32, s32, s49', f'buffer_load_dword v253, v58, s[{S_WQ}:{S_WQ+3}], s32 offen']
        def pfx(qt): return [f'v_lshrrev_b32 v58, 7, v{V_L16}', 'v_lshlrev_b32 v58, 10, v58', f'v_bfe_u32 v59, v{V_L16}, 4, 3', 'v_lshl_add_u32 v58, v59, 7, v58',
               f's_lshl_b32 s32, s{qt}, 5', f's_and_b32 s49, s{s_h}, 3', 's_lshl_b32 s49, s49, 3', 's_add_u32 s32, s32, s49', 's_lshl_b32 s32, s32, 10',
               f'buffer_load_dword v253, v58, s[{S_X}:{S_X+3}], s32 offen']
        def kvx(t):
            early, late = [], []
            if opt.get('pfq', True):
                if t == 7: early += [touch(pfw)]
                if t == 8: early += [touch(pfx(36))]
                if t == 9: early += [touch(pfx(37))]
            if 1 <= t <= 6: early += setupG[(t-1)*perS:t*perS]
            if t == opt.get('lnsig_t', 4): late += [(lnsig, 'flag')]
            if t == 13: late += Q0[:4]
            if t == 14: early += Q0[4:]; late += Q1[:4]
            if t == 15: early += Q1[4:]; late += Q2[:3]
            return early, late
        def handover():
            return (0, 0), P.read_addr_update(), P.kstep_reads(0, 0)
        KV.start()
        self.stamp()
        KV.run(kvx, handover)
        P.lq = list(KV.lq); P.g_pending = Q2[3:]
        self.stamp()
        a('s_nop 7')
        for g in KG: P.emit_group(g)
        self.stamp()
        def xe(p, t):
            g = []
            if t < nv: g += VGs[t*perV:(t+1)*perV] + ([(idld, None)] if t == 0 else [])
            if t == nv: g += zero[:16]
            if t == nv+1: g += zero[16:]
            if t == 6: g += [(srds, None)]
            if t == 7: g += [(pollpre, None)]
            return g
        def xl(p, t):
            return [(sig, None)] if t == sigt else []
        assert sigt >= nv + 1 and sigt <= 6 and 48 % nv == 0
        P.run(qpass, extra_early=xe, extra_late=xl)
        self.stamp()
        chk = ['s_waitcnt vmcnt(0)', 'v_and_b32 v41, v43, v41', 'v_cmp_ne_u32 vcc, v43, v41', 's_nop 3', 's_cmp_eq_u64 vcc, 0']
        for l in [f's_cmp_eq_u32 s{s_w}, 0', f's_cbranch_scc0 {N}_polled', f's_mov_b32 s{s_cnt}, 0', f'{N}_poll:'] + chk + \
                 [f's_cbranch_scc1 {N}_polled', f's_add_u32 s{s_cnt}, s{s_cnt}, 1', f's_cmp_ge_u32 s{s_cnt}, 0x20000', f's_cbranch_scc1 {N}_polled',
                  f's_sleep {opt.get("sleep", 8)}', f'buffer_load_dword v41, v42, s[76:79], 0 offen sc1', f's_branch {N}_poll', f'{N}_polled:']: a(l)
        a('s_barrier')
        for g in KV0 + VV0:
            for l in g[0]: a(l)
        self.stamp()
        self.q_to_frags()
        return M
```

```python
class Asm:
    def __init__(self):
        self.lines = []
    def __call__(self, s=''):
        for l in s.split('\n'):
            self.lines.append(l)
    def label(self, name):
        self.lines.append(name + ':')
    def text(self):
        return '\n'.join(self.lines) + '\n'

def kernel_header(a, name):
    a('.text')
    a(f'.globl {name}')
    a('.p2align 8')
    a(f'.type {name},@function')
    a.label(name)

def kernel_desc(a, name, vgpr=256, sgpr=102, accum=256, kernarg=120, wg_y=False):
    a('.section .rodata,"a"')
    a('.p2align 6')
    a(f'.amdhsa_kernel {name}')
    a(f'  .amdhsa_next_free_vgpr {vgpr}')
    a(f'  .amdhsa_next_free_sgpr {sgpr}')
    a(f'  .amdhsa_accum_offset {accum}')
    a('  .amdhsa_group_segment_fixed_size 0')
    a(f'  .amdhsa_kernarg_size {kernarg}')
    a('  .amdhsa_user_sgpr_count 2')
    a('  .amdhsa_user_sgpr_kernarg_segment_ptr 1')
    a('  .amdhsa_system_sgpr_workgroup_id_x 1')
    if wg_y:
        a('  .amdhsa_system_sgpr_workgroup_id_y 1')
    a('  .amdhsa_float_denorm_mode_32 3')
    a('.end_amdhsa_kernel')
    a('.text')

def srd(a, s, base, nbytes):
    a(f's_mov_b32 s{s}, s{base}')
    a(f's_and_b32 s{s+1}, s{base+1}, 0xffff')
    a(f's_mov_b32 s{s+2}, {nbytes}')
    a(f's_mov_b32 s{s+3}, 0x20000')


class Stamps:
    def __init__(self, a, on, vreg=255, sreg=98):
        self.a, self.on, self.v, self.s, self.n = a, on, vreg, sreg, 0
        self.names = []
    def __call__(self, name=''):
        if not self.on: return
        a = self.a
        if self.n == 0:
            a(f'v_mov_b32 v{self.v}, 0')
            a(f's_memrealtime s[{self.s}:{self.s+1}]')
            a('s_waitcnt lgkmcnt(0)')
            a(f'v_writelane_b32 v{self.v}, s{self.s}, 62')
        a(f's_memtime s[{self.s}:{self.s+1}]')
        a('s_waitcnt lgkmcnt(0)')
        a(f'v_writelane_b32 v{self.v}, s{self.s}, {self.n}')
        self.names.append(name); self.n += 1
    def dump(self, ws_off, s_w, vtmp, kernarg_ws=112):
        if not self.on: return
        a = self.a; s = self.s - 6
        a(f's_memrealtime s[{self.s}:{self.s+1}]')
        a('s_waitcnt lgkmcnt(0)')
        a(f'v_writelane_b32 v{self.v}, s{self.s}, 63')
        a(f's_load_dwordx2 s[{s}:{s+1}], s[0:1], {kernarg_ws}')
        a('s_waitcnt lgkmcnt(0)')
        a(f's_add_u32 s{s}, s{s}, {ws_off}'); a(f's_addc_u32 s{s+1}, s{s+1}, 0'); a(f's_and_b32 s{s+1}, s{s+1}, 0xffff')
        a(f's_mov_b32 s{s+2}, 0x100000'); a(f's_mov_b32 s{s+3}, 0x20000')
        a(f's_lshl_b32 s{s+4}, s2, 2'); a(f's_add_u32 s{s+4}, s{s+4}, s{s_w}'); a(f's_lshl_b32 s{s+4}, s{s+4}, 8')
        a(f'v_mbcnt_lo_u32_b32 v{vtmp}, -1, 0'); a(f'v_mbcnt_hi_u32_b32 v{vtmp}, -1, v{vtmp}'); a(f'v_lshlrev_b32 v{vtmp}, 2, v{vtmp}')
        a(f'buffer_store_dword v{self.v}, v{vtmp}, s[{s}:{s+3}], s{s+4} offen')
        a('s_waitcnt vmcnt(0)')


class RTStamps(Stamps):
    def __call__(self, name=''):
        if not self.on: return
        a = self.a
        if self.n == 0: a(f'v_mov_b32 v{self.v}, 0')
        a(f's_memrealtime s[{self.s}:{self.s+1}]')
        a('s_waitcnt lgkmcnt(0)')
        a(f'v_writelane_b32 v{self.v}, s{self.s}, {self.n}')
        self.names.append(name); self.n += 1
```

```python
from asmlib import *
from layout import *
from gen_proj2 import VmQueue, v, ar
from gen_proj import make_srd

MF = 'v_mfma_f32_32x32x16_bf16'
NY, NO = 7, 16
NS = NY + NO
SLOT = 32768

def emit_final(a, N='fin', NSL=4, **opt):
    S_WO, S_W2, S_CTX, S_U, S_G, S_B2, S_OUT, S_P, S_D = 4, 8, 12, 16, 24, 28, 32, 36, 56
    s_w, s_sb, s_mb, s_p = 20, 21, 22, 23
    s_sl, s_fr = 40, 41
    s_fill, s_rd, s_w4k, s_t, s_t1, s_t2, s_tile = 42, 43, 44, 45, 46, 47, 48
    ACCY, ACCO = 64, 128; FB = [192, 212]
    VL = 1; V_L16 = 2; T = 32
    V_TB = 8
    V_TA = 16
    V_LA = 21
    V_WO = 24; V_W2 = 28
    V_G = 40; V_B2 = 41; V_OA = 42; V_1G = 43
    st_ = (RTStamps if opt.get('rt') else Stamps)(a, opt.get('diag'))
    a('s_cmp_ge_u32 s2, 256')
    a(f's_cbranch_scc1 {N}_end')
    a(f's_load_dwordx2 s[64:65], s[0:1], {KA_WO}')
    a(f's_load_dwordx4 s[68:71], s[0:1], {KA_W2}')
    a(f's_load_dwordx4 s[72:75], s[0:1], {KA_OUT}')
    a(f's_load_dwordx2 s[76:77], s[0:1], {KA_WS}')
    a('v_lshrrev_b32 v3, 6, v0')
    a(f'v_and_b32 v{VL}, 63, v0')
    a(f's_and_b32 s{s_t}, s2, 7')
    a(f'v_readfirstlane_b32 s{s_w}, v3')
    a(f's_lshr_b32 s{s_t1}, s2, 3')
    a(f's_lshr_b32 s{s_p}, s{s_t}, 1')
    a(f's_and_b32 s{s_t}, s{s_t}, 1'); a(f's_lshl_b32 s{s_t}, s{s_t}, 3'); a(f's_lshr_b32 s{s_t2}, s{s_t1}, 2'); a(f's_add_u32 s{s_sb}, s{s_t}, s{s_t2}')
    a(f's_and_b32 s{s_mb}, s{s_t1}, 3')
    a(f's_lshl_b32 s{s_tile}, s{s_sb}, 2'); a(f's_add_u32 s{s_tile}, s{s_tile}, s{s_mb}')
    st_('start')
    a(f'v_lshlrev_b32 v{V_L16}, 4, v{VL}')
    a(f's_lshl_b32 s{s_w4k}, s{s_w}, 12')
    a(f's_mov_b32 s{s_fill}, 0'); a(f's_mov_b32 s{s_rd}, 0')
    a(f'v_lshrrev_b32 v{T}, 4, v{VL}')
    a(f'v_bfe_u32 v{T+1}, v{VL}, 2, 2')
    a(f'v_xor_b32 v{T+1}, v{T+1}, v{T}')
    a(f'v_lshlrev_b32 v{T+1}, 6, v{T+1}')
    a(f'v_and_b32 v{T+2}, 3, v{VL}')
    a(f'v_lshl_add_u32 v{T+1}, v{T+2}, 4, v{T+1}')
    a(f'v_lshl_add_u32 v{T+3}, v{T}, 12, v{T+1}')
    a(f'v_lshl_add_u32 v{T+4}, v{T}, 10, v{T+1}')
    for j in range(4):
        a(f'v_add_u32 v{V_W2+j}, {j*(4*4096-1024)}, v{T+3}')
        a(f'v_add_u32 v{V_WO+j}, {j*(4*1024-1024)}, v{T+4}')
    a(f'v_lshrrev_b32 v{T}, 5, v{VL}')
    a(f'v_bfe_u32 v{T+1}, v{VL}, 2, 2')
    a(f'v_lshl_add_u32 v{T+2}, v{T}, 2, v{T+1}')
    a(f'v_lshlrev_b32 v{T+2}, 8, v{T+2}')
    a(f'v_bfe_u32 v{T+3}, v{VL}, 4, 1')
    a(f'v_lshl_add_u32 v{T+2}, v{T+3}, 5, v{T+2}')
    a(f'v_and_b32 v{T+3}, 3, v{VL}')
    a(f'v_lshl_add_u32 v{T+2}, v{T+3}, 3, v{T+2}')
    for tl in range(4):
        a(f'v_xor_b32 v{T+3}, {tl}, v{T+1}')
        a(f'v_lshl_add_u32 v{V_TB+tl}, v{T+3}, 6, v{T+2}')
    a(f'v_xor_b32 v{T+3}, s{s_w}, v{T+1}')
    a(f'v_lshl_add_u32 v{V_TB+4}, v{T+3}, 6, v{T+2}')
    a(f'v_and_b32 v{T+4}, 31, v{VL}')
    a(f'v_lshlrev_b32 v{T+5}, 2, v{T+4}')
    a(f'v_lshlrev_b32 v{T+6}, 1, v{T+4}')
    a(f'v_lshlrev_b32 v{V_OA}, 10, v{T+4}')
    a(f'v_lshl_add_u32 v{V_OA}, v{T}, 4, v{V_OA}')
    a('s_waitcnt lgkmcnt(0)')
    make_srd(a, S_WO, 64, 0, 4*MB); make_srd(a, S_W2, 68, 0, 1792*4096); make_srd(a, S_B2, 70, 0, 4096)
    make_srd(a, S_OUT, 72, 0, 2*MB)
    make_srd(a, S_CTX, 76, WS_CTX, 16*MB); make_srd(a, S_U, 76, WS_U, 16*112*1024); make_srd(a, S_G, 76, WS_G, 8192)
    make_srd(a, S_P, 76, WS_PART, 16*MB)
    vq = VmQueue()
    a(f's_lshl_b32 s{s_t}, s{s_sb}, 2'); a(f's_add_u32 s{s_t}, s{s_t}, s{s_w}')
    a(f's_lshl_b32 s{s_t1}, s{s_t}, 7'); a(f's_lshl_b32 s{s_t2}, s{s_t}, 6')
    a(f'buffer_load_dword v{V_G}, v{T+5}, s[{S_G}:{S_G+3}], s{s_t1} offen'); vq.push('g')
    a(f'buffer_load_ushort v{V_B2}, v{T+6}, s[{S_B2}:{S_B2+3}], s{s_t2} offen'); vq.push('g')

    if opt.get('tlb', True):
        a(f'v_mov_b32 v3, 0')
        a(f's_lshl_b32 s{s_t}, s{s_tile}, 17'); a(f's_mul_i32 s{s_t1}, s{s_p}, {32768+8192}'); a(f's_add_u32 s{s_t}, s{s_t}, s{s_t1}')
        a(f'buffer_load_dword v6, v3, s[{S_P}:{S_P+3}], s{s_t} offen sc1'); vq.push('g')
        a(f's_lshl_b32 s{s_t}, s{s_sb}, 17')
        a(f'buffer_load_dword v6, v3, s[{S_OUT}:{S_OUT+3}], s{s_t} offen sc1'); vq.push('g')

    def part(t): return ('Y', t) if t < NY else ('O', t-NY)
    def switch(t):
        if t == 0:
            return [f's_mul_i32 s{s_sl}, s{s_p}, {448*4096}', f's_lshl_b32 s{s_t}, s{s_w}, 16', f's_add_u32 s{s_sl}, s{s_sl}, s{s_t}',
                    f's_lshl_b32 s{s_t}, s{s_sb}, 8', f's_add_u32 s{s_sl}, s{s_sl}, s{s_t}',
                    f's_lshl_b32 s{s_t}, s{s_mb}, 2', f's_add_u32 s{s_t}, s{s_t}, s{s_w}', f's_mul_i32 s{s_fr}, s{s_t}, {112*1024}',
                    f's_mul_i32 s{s_t}, s{s_p}, {28*1024}', f's_add_u32 s{s_fr}, s{s_fr}, s{s_t}']
        if t == NY:
            return [f's_lshl_b32 s{s_sl}, s{s_p}, 20', f's_lshl_b32 s{s_t}, s{s_w}, 14', f's_add_u32 s{s_sl}, s{s_sl}, s{s_t}',
                    f's_lshl_b32 s{s_t}, s{s_mb}, 8', f's_add_u32 s{s_sl}, s{s_sl}, s{s_t}',
                    f's_lshl_b32 s{s_t}, s{s_sb}, 2', f's_add_u32 s{s_t}, s{s_t}, s{s_w}', f's_lshl_b32 s{s_fr}, s{s_t}, 18',
                    f's_lshl_b32 s{s_t}, s{s_p}, 16', f's_add_u32 s{s_fr}, s{s_fr}, s{s_t}']
        return []
    def adv(s): return [f's_add_u32 s{s}, s{s}, {SLOT}', f's_cmp_ge_u32 s{s}, {NSL*SLOT}', f's_cselect_b32 s{s}, 0, s{s}']
    def loads(t):
        p, _ = part(t)
        srdS, vo, step = (S_W2, V_W2, 64*4096) if p == 'Y' else (S_WO, V_WO, 64*1024)
        srdF = S_U if p == 'Y' else S_CTX
        g = []
        for j in range(4):
            l = []
            if j == 0: l += switch(t) + [f's_add_u32 s{s_t2}, s{s_fill}, s{s_w4k}', f's_mov_b32 m0, s{s_t2}', 's_nop 0']
            l.append(f'buffer_load_dwordx4 v{vo+j}, s[{srdS}:{srdS+3}], s{s_sl} offen' + (f' offset:{j*1024}' if j else '') + ' lds')
            if j == 3: l.append(f's_add_u32 s{s_sl}, s{s_sl}, {step}')
            g.append((l, t))
        for j in range(4):
            l = []
            if j == 0: l += [f's_add_u32 m0, s{s_t2}, 16384', 's_nop 0']
            l.append(f'buffer_load_dwordx4 v{V_L16}, s[{srdF}:{srdF+3}], s{s_fr} offen' + (f' offset:{j*1024}' if j else '') + ' lds')
            if j == 3: l += [f's_add_u32 s{s_fr}, s{s_fr}, 4096'] + adv(s_fill)
            g.append((l, t))
        return g
    def emit_g(g):
        for l in g[0]: a(l)
        vq.push(g[1])
    def addr_update():
        l = [f'v_add_u32 v{V_TA+k}, s{s_rd}, v{V_TB+k}' for k in range(5)]
        l.append(f'v_add_u32 v{V_LA}, s{s_rd}, v{V_L16}')
        return l + adv(s_rd)
    def reads(t, ks, buf):
        p, _ = part(t); F = FB[buf]; l = []
        if p == 'O':
            l.append(f's_nop 0' if False else f'ds_read_b128 {v(F+16,4)}, v{V_LA+1} offset:{ks*1024}')
            for mt in range(4):
                l.append(f'ds_read_b64_tr_b16 {v(F+4*mt,2)}, v{V_TA+mt} offset:{ks*4096}')
                l.append(f'ds_read_b64_tr_b16 {v(F+4*mt+2,2)}, v{V_TA+mt} offset:{ks*4096+2048}')
        else:
            l.append(f'ds_read_b64_tr_b16 {v(F+16,2)}, v{V_TA+4} offset:{ks*4096}')
            l.append(f'ds_read_b64_tr_b16 {v(F+18,2)}, v{V_TA+4} offset:{ks*4096+2048}')
            for mt in range(4):
                l.append(f'ds_read_b128 {v(F+4*mt,4)}, v{V_LA} offset:{16384+mt*4096+ks*1024}')
        return l
    def addr_update2():
        return [f's_add_u32 s{s_t1}, s{s_w4k}, 16384', f's_add_u32 s{s_t1}, s{s_t1}, s{s_rd}', f'v_add_u32 v{V_LA+1}, s{s_t1}, v{V_L16}']
    def mfmas(t, ks, buf):
        p, tt = part(t); F = FB[buf]; first = tt == 0 and ks == 0
        A0 = ACCY if p == 'Y' else ACCO
        return [f'{MF} {v(A0+16*mt,16)}, {v(F+4*mt,4)}, {v(F+16,4)}, ' + ('0' if first else v(A0+16*mt,16)) for mt in range(4)]

    for t in range(NSL-1):
        for g in loads(t): emit_g(g)
    pend = loads(NSL-1) if False else []
    vq.wait_for(a, 0)
    a('s_barrier')
    for l in addr_update2() + addr_update() + reads(0, 0, 0): a(l)
    if not opt.get('rt'): st_('go')
    for t in range(NS):
        tn = t + NSL - 1
        gs = loads(tn) if tn < NS else []
        if not opt.get('rt'): st_(f's{t}')
        for ks in range(4):
            buf = ks & 1
            a('s_waitcnt lgkmcnt(0)')
            pre = []
            if ks == 3 and t+1 < NS:
                vq.wait_for(a, t+1)
                a('s_barrier')
                pre = addr_update2() + addr_update()
            mf = mfmas(t, ks, buf)
            if ks < 3: rd = reads(t, ks+1, buf ^ 1)
            elif t+1 < NS: rd = reads(t+1, 0, buf ^ 1)
            else: rd = []
            n = len(rd); per = -(-n // 3)
            for k, m in enumerate(mf):
                a(m)
                if k == 0:
                    for l in pre: a(l)
                for l in rd[per*k:per*(k+1)]: a(l)
                if ks < 3 and gs and ((ks*4+k) % 3 != 2):
                    emit_g(gs.pop(0))
        assert not gs
    st_('loopend')
    a(f'v_sub_f32 v{V_1G}, 1.0, v{V_G}')
    a(f's_lshl_b32 s{s_t}, s{s_tile}, 17')
    a(f's_lshl_b32 s{s_t1}, s{s_p}, 13'); a(f's_lshl_b32 s{s_t2}, s{s_w}, 11'); a(f's_add_u32 s{s_t1}, s{s_t1}, s{s_t2}'); a(f's_add_u32 s{s_t1}, s{s_t1}, s{s_t}')
    a('s_nop 4')
    OWN = 192
    for mt in range(4):
        o = ACCO+16*mt; y = ACCY+16*mt
        for e in range(16): a(f'v_mul_f32 v{o+e}, v{o+e}, v{V_G}')
        for e in range(16): a(f'v_fmac_f32 v{o+e}, v{y+e}, v{V_1G}')
        a(f's_cmp_eq_u32 s{s_p}, {mt}')
        a(f's_cbranch_scc1 {N}_own{mt}')
        a(f's_add_u32 s{s_t2}, s{s_t1}, {mt*32768}')
        for k in range(8): a(f'v_cvt_pk_bf16_f32 v{o+k}, v{o+2*k}, v{o+2*k+1}')
        for q in range(2):
            a(f'buffer_store_dwordx4 {v(o+4*q,4)}, v{V_L16}, s[{S_P}:{S_P+3}], s{s_t2} offen offset:{q*1024} sc1')
        a(f's_branch {N}_next{mt}')
        a.label(f'{N}_own{mt}')
        for e in range(16): a(f'v_mov_b32 v{OWN+e}, v{o+e}')
        a.label(f'{N}_next{mt}')
    if not opt.get('rt'): st_('published')
    a(f's_lshl_b32 s{s_t}, s{s_tile}, 17'); a(f's_lshl_b32 s{s_t1}, s{s_p}, 15'); a(f's_add_u32 s{s_t}, s{s_t}, s{s_t1}')
    a(f's_lshl_b32 s{s_t1}, s{s_w}, 11'); a(f's_add_u32 s{s_t}, s{s_t}, s{s_t1}')
    for k in range(1, 4):
        a(f's_add_u32 s{s_t1}, s{s_p}, {k}'); a(f's_and_b32 s{s_t1}, s{s_t1}, 3'); a(f's_lshl_b32 s{s_t1}, s{s_t1}, 13'); a(f's_add_u32 s{50+k}, s{s_t1}, s{s_t}')
    a('s_mov_b32 s54, 0')
    a.label(f'{N}_poll')
    for k in range(1, 4):
        for q in range(2):
            a(f'buffer_load_dwordx4 {v(ACCY+8*k+4*q,4)}, v{V_L16}, s[{S_P}:{S_P+3}], s{50+k} offen offset:{q*1024} sc1')
    a('s_add_u32 s54, s54, 1')
    a('s_waitcnt vmcnt(0)')
    R0 = ACCY+8
    a(f'v_max3_u32 v{T}, v{R0}, v{R0+1}, v{R0+2}')
    for k in range(3, 23, 2): a(f'v_max3_u32 v{T}, v{T}, v{R0+k}, v{R0+k+1}')
    a(f'v_max_u32 v{T}, v{T}, v{R0+23}')
    a(f'v_cmp_eq_u32 vcc, -1, v{T}')
    a('s_cmp_ge_u32 s54, 0x20000')
    a(f's_cbranch_scc1 {N}_poll_end')
    a(f's_cbranch_vccnz {N}_poll')
    a.label(f'{N}_poll_end')
    st_('gathered')
    a(f'v_lshlrev_b32 v{V_B2}, 16, v{V_B2}')
    a(f'v_mul_f32 v{V_B2}, v{V_B2}, v{V_1G}')
    D = OWN
    for e in range(16): a(f'v_add_f32 v{D+e}, v{D+e}, v{V_B2}')
    for k in range(1, 4):
        for q in range(8):
            r = ACCY+8*k+q
            a(f'v_lshlrev_b32 v{T}, 16, v{r}'); a(f'v_and_b32 v{T+1}, 0xffff0000, v{r}')
            a(f'v_add_f32 v{D+2*q}, v{D+2*q}, v{T}'); a(f'v_add_f32 v{D+2*q+1}, v{D+2*q+1}, v{T+1}')
    X = ACCO
    for jj in range(4):
        a(f'v_cvt_pk_bf16_f32 v{X+2*jj}, v{D+4*jj}, v{D+4*jj+1}')
        a(f'v_cvt_pk_bf16_f32 v{X+2*jj+1}, v{D+4*jj+2}, v{D+4*jj+3}')
    a(f's_lshl_b32 s{s_t}, s{s_sb}, 17'); a(f's_lshl_b32 s{s_t1}, s{s_w}, 15'); a(f's_add_u32 s{s_t}, s{s_t}, s{s_t1}')
    a(f's_lshl_b32 s{s_t1}, s{s_mb}, 8'); a(f's_add_u32 s{s_t}, s{s_t}, s{s_t1}')
    a(f's_lshl_b32 s{s_t1}, s{s_p}, 6'); a(f's_add_u32 s{s_t}, s{s_t}, s{s_t1}')
    for pr in range(2):
        b = X+4*pr
        a(f'v_permlane32_swap_b32 v{b}, v{b+2}')
        a(f'v_permlane32_swap_b32 v{b+1}, v{b+3}')
        a('s_nop 1')
        a(f'buffer_store_dwordx4 {v(b,4)}, v{V_OA}, s[{S_OUT}:{S_OUT+3}], s{s_t} offen offset:{32*pr}')
    a('s_waitcnt vmcnt(0)')
    st_('end')
    if opt.get('rt'):
        a('s_cmp_eq_u32 s2, 0'); a(f's_cbranch_scc0 {N}_nodbg'); a(f's_cmp_eq_u32 s{s_w}, 0'); a(f's_cbranch_scc0 {N}_nodbg')
        make_srd(a, 56, 76, 100*MB, 1 << 20); make_srd(a, 60, 74, 0, 256)
        a(f'v_lshrrev_b32 v3, 2, v{V_L16}')
        a(f's_mov_b32 s49, {opt.get("rt_wg", 0)*1024}')
        a('buffer_load_dword v4, v3, s[56:59], s49 offen')
        a('s_waitcnt vmcnt(0)')
        a('v_cmp_gt_u32 vcc, 48, v3')
        a('s_and_saveexec_b64 s[50:51], vcc')
        a('buffer_store_dword v4, v3, s[60:63], 0 offen')
        a('s_mov_b64 exec, s[50:51]')
        a('v_cmp_gt_u32 vcc, 16, v3')
        a('s_and_saveexec_b64 s[50:51], vcc')
        a('buffer_store_dword v255, v3, s[60:63], 0 offen offset:48')
        a('s_mov_b64 exec, s[50:51]')
        a('s_waitcnt vmcnt(0)')
        a.label(f'{N}_nodbg')
    else:
        st_.dump(100*MB, s_w, 240)
    a.label(f'{N}_end')
    a('s_endpgm')
```

```python
from asmlib import *
from layout import *
import gen_attn2 as A
from gen_attn2 import *
from gen_proj2 import Proj, VmQueue, frag_store_groups
from gen_proj import make_srd
import gen_proj
from gen_kv import ProjKV

class Main(Attn):
    def emit_head(self):
        a = self.a; N = self.name; opt = self.opt
        S_CK, S_WK, S_X, S_O, S_WV, S_WQ = 4, 8, 12, 16, 92, 60
        S_H, S_G, S_GW = 76, 48, 52
        a(f's_cmp_ge_u32 s2, 256')
        a(f's_cbranch_scc1 {N}_end')
        self.stamp()
        a(f's_load_dwordx2 s[34:35], s[0:1], {KA_WS}')
        a(f's_load_dwordx2 s[64:65], s[0:1], {KA_AX}')
        a(f's_load_dwordx2 s[90:91], s[0:1], {KA_CKV}')
        a(f's_load_dwordx4 s[96:99], s[0:1], {KA_WUK}')
        a(f's_load_dwordx2 s[38:39], s[0:1], {KA_GW}')
        a(f's_load_dwordx2 s[66:67], s[0:1], {KA_WQ}')
        a(f's_load_dwordx2 s[68:69], s[0:1], {KA_W1}')
        a(f's_load_dwordx2 s[86:87], s[0:1], {KA_B1}')
        a(f's_load_dwordx2 s[70:71], s[0:1], {KA_WO}')
        a(f's_load_dwordx2 s[72:73], s[0:1], {KA_W2}')
        a(f's_load_dwordx2 s[100:101], s[0:1], {KA_DBG}')
        a(f'v_lshrrev_b32 v1, 6, v0')
        a(f'v_and_b32 v2, 63, v0')
        a(f'v_lshlrev_b32 v{V_L16}, 4, v2')
        a(f'v_readfirstlane_b32 s{s_w}, v1')
        a(f's_and_b32 s{s_t0}, s2, 7')
        a(f's_lshr_b32 s{s_t1}, s2, 3')
        a(f's_lshl_b32 s{s_h}, s{s_t0}, 2')
        a(f's_and_b32 s{s_t0}, s{s_t1}, 3')
        a(f's_add_u32 s{s_h}, s{s_h}, s{s_t0}')
        a(f's_lshr_b32 s{s_i}, s{s_t1}, 2')
        a(f's_add_u32 s{s_g1}, s{s_i}, 1')
        a(f's_lshl_b32 s{s_g1}, s{s_g1}, 2')
        a(f's_lshl_b32 s36, s{s_i}, 2'); a(f's_add_u32 s36, s36, s{s_w}')
        a(f's_lshl_b32 s37, s{s_i}, 2'); a(f's_sub_u32 s37, 60, s37'); a(f's_add_u32 s37, s37, s{s_w}')
        vq = VmQueue()
        P = Proj(a, vq, s_w, 16384, 16384, ACC=64, FB=(192, 216), fbk='a', VA=8, V_L16=V_L16, VT=33, SG=40,
                 wflags=(' nt' if opt.get('nt', True) else ''), stamps=self.st, opt=opt)
        P.setup_addrs(set_l16=False)
        a('s_waitcnt lgkmcnt(0)')
        make_srd(a, S_X, 64, 0, 2*MB); make_srd(a, S_GW, 38, 0, 1024)
        a(f's_lshl_b32 s82, s2, 3'); a(f's_lshl_b32 s83, s{s_w}, 1'); a('s_add_u32 s82, s82, s83')
        a('s_lshl_b32 s83, s82, 2'); a('s_lshl_b32 s82, s82, 10')
        LB_ = 40
        a(f'buffer_load_dwordx4 v[{LB_}:{LB_+3}], v{V_L16}, s[{S_X}:{S_X+3}], s82 offen'); vq.push('ln')
        a(f'buffer_load_dwordx4 v[{LB_+4}:{LB_+7}], v{V_L16}, s[{S_X}:{S_X+3}], s82 offen offset:1024'); vq.push('ln')
        a(f'buffer_load_dwordx4 v[{LB_+16}:{LB_+19}], v{V_L16}, s[{S_GW}:{S_GW+3}], 0 offen'); vq.push('ln')
        make_srd(a, S_CK, 90, 0, 2*MB); make_srd(a, S_WK, 96, 0, 4*MB); make_srd(a, S_WV, 98, 0, 4*MB)
        initKV = [f's_lshl_b32 s{P.s_a0}, s{s_i}, 18', f's_lshl_b32 s49, s{s_w}, 16', f's_add_u32 s{P.s_a0}, s{P.s_a0}, s49',
                  f's_add_u32 s{P.s_a1}, s{P.s_a0}, 32768',
                  f's_lshl_b32 s{P.s_wo}, s{s_w}, 17', f's_lshl_b32 s49, s{s_h}, 8', f's_add_u32 s{P.s_wo}, s{P.s_wo}, s49']
        initQ = [f's_lshl_b32 s{P.s_a0}, s36, 15', f's_lshl_b32 s{P.s_a1}, s37, 15',
                 f's_lshl_b32 s{P.s_wo}, s{s_w}, 17', f's_lshl_b32 s49, s{s_h}, 8', f's_add_u32 s{P.s_wo}, s{P.s_wo}, s49']
        ps = [dict(swap=False, srdA=S_CK, srdW=S_WK, init=initKV, epi=lambda: None, acck='v'),
              dict(swap=True, srdA=S_CK, srdW=S_WV, init=initKV, epi=lambda: None, acck='a'),
              dict(swap=False, srdA=S_X, srdW=S_WQ, init=initQ, epi=lambda: None, acck='v')]
        P.prologue(ps[0])
        make_srd(a, S_WQ, 66, 0, 4*MB)
        make_srd(a, S_O, 34, WS_K, 32*MB)
        make_srd(a, S_H, 34, WS_H, 2*MB); make_srd(a, S_G, 34, WS_G, 8192)
        real_a = self.a; tmp_a = Asm(); self.a = tmp_a
        M = self.setup_attn_regs()
        self.a = real_a; M.a = real_a
        c = 0x3e0293ee
        setup = tmp_a.lines + [f'v_mov_b32 v2, {hex(c)}', f'v_mov_b32 v3, {hex(c)}'] + [f'v_accvgpr_write_b32 a{e}, 0' for e in range(64)]
        setupG = [(setup[k:k+4], None) for k in range(0, len(setup), 4)]
        perS = -(-len(setupG)//5)
        vq.wait_for(a, 'ln')
        gen_proj.R.V_L16 = V_L16
        st_save = STF.st; STF.st = ' sc1'
        gen_proj.emit_ln_compute(a, LB_, S_H, S_G, 82, 83, 64)
        for _ in range(3): vq.push('lnst')
        a('s_getreg_b32 s33, hwreg(HW_REG_XCC_ID, 0, 4)')
        a('s_or_b32 s33, s33, 0x10')
        make_srd(a, 76, 100, 0, 256)
        a(f's_cmp_eq_u32 s{s_w}, 0')
        a(f's_cbranch_scc0 {N}_noann')
        a('v_mov_b32 v41, 0'); a('v_mov_b32 v42, s33')
        a('s_mov_b64 exec, 1')
        a('buffer_store_byte v42, v41, s[76:79], s2 offen sc1')
        a('s_mov_b64 exec, -1')
        a.label(f'{N}_noann')
        a(f's_lshl_b32 s{s_t0}, s{s_h}, 6'); a(f's_lshl_b32 s{s_t1}, s{s_i}, 3'); a(f's_add_u32 s{s_t0}, s{s_t0}, s{s_t1}')
        a(f's_lshl_b32 s{s_t1}, s{s_w}, 1'); a(f's_add_u32 s{s_t0}, s{s_t0}, s{s_t1}'); a(f's_lshl_b32 s{s_t0}, s{s_t0}, 13')
        for k in range(4):
            a(f's_add_u32 s{50+k}, s{s_t0}, {k*4096}')
            a(f's_add_u32 s{96+k}, s{s_t0}, {16*MB + k*4096}')
        STF.st = opt.get('kvst', '')
        KG = frag_store_groups(P, 'K', 'v', S_O, 50, None, v_scale=2, tag='kst')
        VGs = frag_store_groups(P, 'V', 'a', S_O, 96, 40, tag='vst')
        STF.st = st_save
        nv = opt.get('vstages', 3); sigt = opt.get('sigt', nv+1)
        perK = len(KG)//8; perV = len(VGs)//nv
        KV0 = self.kv_groups('K', 6); VV0 = self.kv_groups('V', 4)
        zero = [([f'v_accvgpr_write_b32 a{64+4*k+e}, 0' for e in range(4)], None) for k in range(16)]
        srds = self.kv_srd_lines()
        dbg = Asm(); make_srd(dbg, 76, 100, 0, 256)
        idld = dbg.lines + [f's_cmp_eq_u32 s{s_w}, 0', f's_cbranch_scc0 {N}_noid',
               f'v_lshlrev_b32 v57, 1, v{V_L16}', f's_lshr_b32 s{s_t1}, s{s_h}, 2', f's_and_b32 s32, s{s_h}, 3', 's_lshl_b32 s32, s32, 3', f's_add_u32 s32, s32, s{s_t1}',
               'buffer_load_ubyte v56, v57, s[76:79], s32 offen sc1', f'{N}_noid:']
        lnsig = dbg.lines + [f's_cmp_eq_u32 s{s_w}, 0', f's_cbranch_scc0 {N}_nolnsig', 's_or_b32 s32, s33, 0x40', 'v_mov_b32 v41, 0', 'v_mov_b32 v42, s32', 's_mov_b64 exec, 1',
               f'buffer_store_byte v42, v41, s[76:79], s2 offen sc1', 's_mov_b64 exec, -1', f'{N}_nolnsig:']
        sig = [f's_cmp_eq_u32 s{s_w}, 0', f's_cbranch_scc0 {N}_nosig',
               's_waitcnt vmcnt(0)' if False else 's_nop 0',
               'v_and_b32 v56, 0x1f, v56', 'v_cmp_ne_u32 vcc, s33, v56', 's_nop 3', 's_and_b32 s32, vcc_lo, 0xff', 's_cmp_eq_u32 s32, 0',
               f's_cbranch_scc1 {N}_samexcd'] + (['s_nop 0'] if opt.get('nowb') else ['buffer_wbl2 sc1', 's_waitcnt vmcnt(0)']) + [f'{N}_samexcd:',
               's_or_b32 s32, s33, 0xc0', 'v_mov_b32 v41, 0', 'v_mov_b32 v42, s32', 's_mov_b64 exec, 1',
               f'buffer_store_byte v42, v41, s[76:79], s2 offen sc1', 's_mov_b64 exec, -1', f'{N}_nosig:']
        pollpre = [f's_cmp_eq_u32 s{s_w}, 0', f's_cbranch_scc0 {N}_nopoll0',
                   f's_lshr_b32 s{s_t1}, s{s_h}, 4', f's_and_b32 s32, s{s_h}, 3', 's_lshl_b32 s32, s32, 1', f's_add_u32 s{s_t1}, s{s_t1}, s32',
                   f's_lshr_b32 s32, s{s_h}, 2', 's_and_b32 s32, s32, 3', 's_lshl_b32 s32, s32, 3', 's_lshl_b32 s32, 0x80, s32', 's_or_b32 s32, s32, 0x40404040',
                   f'v_lshrrev_b32 v42, 2, v{V_L16}', f'v_bfe_u32 v44, v{V_L16}, 4, 3', f'v_cmp_eq_u32 vcc, s{s_t1}, v44', 'v_mov_b32 v43, 0x40404040', 'v_mov_b32 v45, s32',
                   'v_cndmask_b32 v43, v43, v45, vcc',
                   f'buffer_load_dword v41, v42, s[76:79], 0 offen sc1', f'{N}_nopoll0:']
        def pfw(srd_): return ([f'v_lshrrev_b32 v58, 5, v{V_L16}', 'v_lshlrev_b32 v58, 13, v58', f'v_bfe_u32 v59, v{V_L16}, 4, 1', 'v_lshl_add_u32 v58, v59, 7, v58',
               f's_lshl_b32 s32, s{s_w}, 4', f's_lshl_b32 s49, s{s_i}, 6', 's_add_u32 s32, s32, s49', 's_lshl_b32 s32, s32, 13',
               f's_lshl_b32 s49, s{s_h}, 8', 's_add_u32 s32, s32, s49', 's_mov_b32 exec_hi, 0',
               f'buffer_load_dword v253, v58, s[{srd_}:{srd_+3}], s32 offen', 's_mov_b64 exec, -1'], 'pf')
        def pfx(qt): return ([f'v_lshrrev_b32 v58, 7, v{V_L16}', 'v_lshlrev_b32 v58, 10, v58', f'v_bfe_u32 v59, v{V_L16}, 4, 3', 'v_lshl_add_u32 v58, v59, 7, v58',
               f's_lshl_b32 s32, s{qt}, 5', f's_and_b32 s49, s{s_h}, 3', 's_lshl_b32 s49, s49, 3', 's_add_u32 s32, s32, s49', 's_lshl_b32 s32, s32, 10',
               f'buffer_load_dword v253, v58, s[{S_X}:{S_X+3}], s32 offen'], 'pf')
        def pfc(k): return ([f'v_lshrrev_b32 v58, 7, v{V_L16}', 'v_lshlrev_b32 v58, 10, v58', f'v_bfe_u32 v59, v{V_L16}, 4, 3', 'v_lshl_add_u32 v58, v59, 7, v58',
               f's_lshl_b32 s32, s{s_i}, 8', f's_and_b32 s49, s{s_h}, 3', 's_lshl_b32 s49, s49, 6', 's_add_u32 s32, s32, s49', f's_lshl_b32 s49, s{s_w}, 4', 's_add_u32 s32, s32, s49',
               f's_add_u32 s32, s32, {8*k}', 's_lshl_b32 s32, s32, 10', f'buffer_load_dword v253, v58, s[{S_CK}:{S_CK+3}], s32 offen'], 'pf')
        def pf1():
            l = Asm(); make_srd(l, 76, 68, 0, 2048*3584)
            l(f'v_lshlrev_b32 v58, 3, v{V_L16}'); l('s_lshl_b32 s32, s2, 2'); l(f's_add_u32 s32, s32, s{s_w}'); l('s_mul_i32 s32, s32, 7168')
            l('buffer_load_dword v253, v58, s[76:79], s32 offen')
            return (l.lines, 'pf')
        pf = opt.get('pfa', 'vq')
        def xe(p, t):
            if p == 0:
                g = list(setupG[(t-1)*perS:t*perS]) if 1 <= t <= 5 else []
                if t == 0:
                    if 'k' in pf: g.append(pfw(S_WK))
                    if 'c' in pf: g += [pfc(0), pfc(1)]
                if '1' in pf and t == 6: g.append(pf1())
                if 'v' in pf and t == opt.get('pfv_t', 1): g.append(pfw(S_WV))
                return g
            if p == 1:
                g = list(KG[t*perK:(t+1)*perK])
                if 'q' in pf and t == 1: g.append(pfw(S_WQ))
                if 'x' in pf and t == 2: g.append(pfx(36))
                if 'x' in pf and t == 3: g.append(pfx(37))
                if '2' in pf and t == 5: g.append(pf1())
                return g
            if p == 2:
                g = []
                if t < nv: g += VGs[t*perV:(t+1)*perV] + ([(idld, None)] if t == 0 else [])
                if t == nv: g += zero
                if t == 6: g += [(srds, None)]
                if t == 7: g += [(pollpre, None)]
                return g
            return []
        def xl(p, t):
            if p == 0 and t == 2: return [(lnsig, None)]
            if p == 2 and t == sigt: return [(sig, None)]
            return []
        assert sigt >= nv + 1 and sigt <= 6 and 48 % nv == 0
        P.start_compute()
        self.stamp()
        P.run(ps, extra_early=xe, extra_late=xl)
        self.stamp()
        chk = ['s_waitcnt vmcnt(0)', 'v_and_b32 v41, v43, v41', 'v_cmp_ne_u32 vcc, v43, v41', 's_nop 3', 's_cmp_eq_u64 vcc, 0']
        for l in [f's_cmp_eq_u32 s{s_w}, 0', f's_cbranch_scc0 {N}_polled', f's_mov_b32 s{s_cnt}, 0', f'{N}_poll:'] + chk + \
                 [f's_cbranch_scc1 {N}_polled', f's_add_u32 s{s_cnt}, s{s_cnt}, 1', f's_cmp_ge_u32 s{s_cnt}, 0x20000', f's_cbranch_scc1 {N}_polled',
                  f's_sleep {opt.get("sleep", 8)}', f'buffer_load_dword v41, v42, s[76:79], 0 offen sc1', f's_branch {N}_poll', f'{N}_polled:']: a(l)
        a('s_barrier')
        for g in KV0 + VV0:
            for l in g[0]: a(l)
        self.stamp()
        self.q_to_frags()
        return M


class Main2(Main):
    def emit_head(self):
        a = self.a; N = self.name; opt = self.opt
        S_CK, S_WK, S_X, S_O, S_WV, S_WQ = 4, 8, 12, 16, 92, 60
        S_H, S_G, S_GW = 76, 48, 52
        a(f's_cmp_ge_u32 s2, 256')
        a(f's_cbranch_scc1 {N}_end')
        self.stamp()
        a(f's_load_dwordx2 s[90:91], s[0:1], {KA_CKV}')
        a(f's_load_dwordx4 s[96:99], s[0:1], {KA_WUK}')
        a(f's_load_dwordx2 s[34:35], s[0:1], {KA_WS}')
        a(f's_load_dwordx2 s[64:65], s[0:1], {KA_AX}')
        a(f's_load_dwordx2 s[38:39], s[0:1], {KA_GW}')
        a(f's_load_dwordx2 s[66:67], s[0:1], {KA_WQ}')
        a(f's_load_dwordx2 s[68:69], s[0:1], {KA_W1}')
        a(f's_load_dwordx2 s[86:87], s[0:1], {KA_B1}')
        a(f's_load_dwordx2 s[70:71], s[0:1], {KA_WO}')
        a(f's_load_dwordx2 s[72:73], s[0:1], {KA_W2}')
        a(f's_load_dwordx2 s[100:101], s[0:1], {KA_DBG}')
        a(f'v_lshrrev_b32 v1, 6, v0')
        a(f'v_and_b32 v2, 63, v0')
        a(f'v_lshlrev_b32 v{V_L16}, 4, v2')
        a(f'v_readfirstlane_b32 s{s_w}, v1')
        a(f's_and_b32 s{s_t0}, s2, 7')
        a(f's_lshr_b32 s{s_t1}, s2, 3')
        a(f's_lshl_b32 s{s_h}, s{s_t0}, 2')
        a(f's_and_b32 s{s_t0}, s{s_t1}, 3')
        a(f's_add_u32 s{s_h}, s{s_h}, s{s_t0}')
        a(f's_lshr_b32 s{s_i}, s{s_t1}, 2')
        a(f's_add_u32 s{s_g1}, s{s_i}, 1')
        a(f's_lshl_b32 s{s_g1}, s{s_g1}, 2')
        a(f's_lshl_b32 s36, s{s_i}, 2'); a(f's_add_u32 s36, s36, s{s_w}')
        a(f's_lshl_b32 s37, s{s_i}, 2'); a(f's_sub_u32 s37, 60, s37'); a(f's_add_u32 s37, s37, s{s_w}')
        vq = VmQueue()
        a('s_waitcnt lgkmcnt(0)')
        make_srd(a, S_CK, 90, 0, 2*MB); make_srd(a, S_WK, 96, 0, 4*MB); make_srd(a, S_WV, 98, 0, 4*MB)
        make_srd(a, S_X, 64, 0, 2*MB); make_srd(a, S_GW, 38, 0, 1024); make_srd(a, S_WQ, 66, 0, 4*MB)
        KV = ProjKV(a, vq, s_w, S_CK, S_WK, S_WV, ACCK=64, ACCV=64, VR=40, VT=33, SG=(38, 39, 64, 65, 66, 67, 90), stamps=self.st, opt=opt)
        KV.setup(s_i, s_h)
        LB_ = 232
        a(f's_lshl_b32 s82, s2, 3'); a(f's_lshl_b32 s83, s{s_w}, 1'); a('s_add_u32 s82, s82, s83')
        a('s_lshl_b32 s83, s82, 2'); a('s_lshl_b32 s82, s82, 10')
        a(f'buffer_load_dwordx4 v[{LB_}:{LB_+3}], v{V_L16}, s[{S_X}:{S_X+3}], s82 offen'); vq.push('ln')
        a(f'buffer_load_dwordx4 v[{LB_+4}:{LB_+7}], v{V_L16}, s[{S_X}:{S_X+3}], s82 offen offset:1024'); vq.push('ln')
        a(f'buffer_load_dwordx4 v[{LB_+16}:{LB_+19}], v{V_L16}, s[{S_GW}:{S_GW+3}], 0 offen'); vq.push('ln')
        rest0 = KV.prologue(opt.get('kvpro', 2))
        P = Proj(a, vq, s_w, 16384, 65536, ACC=64, FB=(192, 216), fbk='a', VA=8, V_L16=V_L16, VT=33, SG=40,
                 wflags=(' nt' if opt.get('nt', False) else ''), stamps=self.st, opt=opt)
        P.setup_addrs(set_l16=False)
        make_srd(a, S_O, 34, WS_K, 32*MB)
        make_srd(a, S_H, 34, WS_H, 2*MB); make_srd(a, S_G, 34, WS_G, 8192)
        real_a = self.a; tmp_a = Asm(); self.a = tmp_a; self.mtmp = 232
        M = self.setup_attn_regs()
        self.a = real_a; M.a = real_a
        c = 0x3e0293ee
        setup = tmp_a.lines + [f'v_mov_b32 v2, {hex(c)}', f'v_mov_b32 v3, {hex(c)}']
        setupG = [(setup[k:k+4], None) for k in range(0, len(setup), 4)]
        perS = -(-len(setupG)//6)
        vq.wait_for(a, 'ln')
        gen_proj.R.V_L16 = V_L16
        st_save = STF.st; STF.st = ' sc1'
        gen_proj.emit_ln_compute(a, LB_, S_H, S_G, 82, 83, 64)
        for _ in range(3): vq.push('lnst')
        a('s_getreg_b32 s33, hwreg(HW_REG_XCC_ID, 0, 4)')
        a('s_or_b32 s33, s33, 0x10')
        make_srd(a, 76, 100, 0, 256)
        a('v_mov_b32 v33, 0'); a('v_mov_b32 v34, s33')
        a(f's_cmp_eq_u32 s{s_w}, 0'); a('s_cselect_b64 exec, 1, 0')
        a('buffer_store_byte v34, v33, s[76:79], s2 offen sc1'); vq.push('flag')
        a('s_mov_b64 exec, -1')
        npre = 8*opt.get('kvpre2', 1)
        for g in rest0[:npre]: KV.emit_group(g)
        KV.initial = rest0[npre:]
        a(f's_lshl_b32 s{s_t0}, s{s_h}, 6'); a(f's_lshl_b32 s{s_t1}, s{s_i}, 3'); a(f's_add_u32 s{s_t0}, s{s_t0}, s{s_t1}')
        a(f's_lshl_b32 s{s_t1}, s{s_w}, 1'); a(f's_add_u32 s{s_t0}, s{s_t0}, s{s_t1}'); a(f's_lshl_b32 s{s_t0}, s{s_t0}, 13')
        for k in range(4):
            a(f's_add_u32 s{50+k}, s{s_t0}, {k*4096}')
            a(f's_add_u32 s{96+k}, s{s_t0}, {16*MB + k*4096}')
        STF.st = opt.get('kvst', '')
        KG = frag_store_groups(P, 'K', 'v', S_O, 50, None, v_scale=2, tag='kst')
        VGs = frag_store_groups(P, 'V', 'a', S_O, 96, 40, tag='vst')
        STF.st = st_save
        nv = opt.get('vstages', 3); sigt = opt.get('sigt', nv+1)
        perV = len(VGs)//nv
        KV0 = self.kv_groups('K', 6); VV0 = self.kv_groups('V', 4)
        zero = [([f'v_accvgpr_write_b32 a{4*k+e}, 0' for e in range(4)], None) for k in range(32)]
        srds = self.kv_srd_lines()
        dbg = Asm(); make_srd(dbg, 76, 100, 0, 256)
        one = lambda val, lab: [f's_cmp_eq_u32 s{s_w}, 0', f's_cbranch_scc0 {N}_{lab}']
        idld = dbg.lines + [f's_cmp_eq_u32 s{s_w}, 0', f's_cbranch_scc0 {N}_noid',
               f'v_lshlrev_b32 v57, 1, v{V_L16}', f's_lshr_b32 s{s_t1}, s{s_h}, 2', f's_and_b32 s32, s{s_h}, 3', 's_lshl_b32 s32, s32, 3', f's_add_u32 s32, s32, s{s_t1}',
               'buffer_load_ubyte v56, v57, s[76:79], s32 offen sc1', f'{N}_noid:']
        lnsig = dbg.lines + ['s_or_b32 s32, s33, 0x40', 'v_mov_b32 v58, 0', 'v_mov_b32 v59, s32', f's_cmp_eq_u32 s{s_w}, 0', 's_cselect_b64 exec, 1, 0',
               f'buffer_store_byte v59, v58, s[76:79], s2 offen sc1', 's_mov_b64 exec, -1']
        sig = [f's_cmp_eq_u32 s{s_w}, 0', f's_cbranch_scc0 {N}_nosig',
               'v_and_b32 v56, 0x1f, v56', 'v_cmp_ne_u32 vcc, s33, v56', 's_nop 3', 's_and_b32 s32, vcc_lo, 0xff', 's_cmp_eq_u32 s32, 0',
               f's_cbranch_scc1 {N}_samexcd', 'buffer_wbl2 sc1', 's_waitcnt vmcnt(0)', f'{N}_samexcd:',
               's_or_b32 s32, s33, 0xc0', 'v_mov_b32 v41, 0', 'v_mov_b32 v42, s32', 's_mov_b64 exec, 1',
               f'buffer_store_byte v42, v41, s[76:79], s2 offen sc1', 's_mov_b64 exec, -1', f'{N}_nosig:']
        pollpre = [f's_cmp_eq_u32 s{s_w}, 0', f's_cbranch_scc0 {N}_nopoll0',
                   f's_lshr_b32 s{s_t1}, s{s_h}, 4', f's_and_b32 s32, s{s_h}, 3', 's_lshl_b32 s32, s32, 1', f's_add_u32 s{s_t1}, s{s_t1}, s32',
                   f's_lshr_b32 s32, s{s_h}, 2', 's_and_b32 s32, s32, 3', 's_lshl_b32 s32, s32, 3', 's_lshl_b32 s32, 0x80, s32', 's_or_b32 s32, s32, 0x40404040',
                   f'v_lshrrev_b32 v42, 2, v{V_L16}', f'v_bfe_u32 v44, v{V_L16}, 4, 3', f'v_cmp_eq_u32 vcc, s{s_t1}, v44', 'v_mov_b32 v43, 0x40404040', 'v_mov_b32 v45, s32',
                   'v_cndmask_b32 v43, v43, v45, vcc',
                   f'buffer_load_dword v41, v42, s[76:79], 0 offen sc1', f'{N}_nopoll0:']
        initQ = [f's_lshl_b32 s{P.s_a0}, s36, 15', f's_lshl_b32 s{P.s_a1}, s37, 15',
                 f's_lshl_b32 s{P.s_wo}, s{s_w}, 17', f's_lshl_b32 s49, s{s_h}, 8', f's_add_u32 s{P.s_wo}, s{P.s_wo}, s49']
        qpass = [dict(swap=False, srdA=S_X, srdW=S_WQ, init=initQ, epi=lambda: None, acck='v')]
        Q0 = P.dma_stage(S_X, S_WQ, (0, 0), pre=initQ); Q1 = P.dma_stage(S_X, S_WQ, (0, 1)); Q2 = P.dma_stage(S_X, S_WQ, (0, 2))
        def touch(lines): return (lines, 'pf')
        pfw = [f'v_lshrrev_b32 v58, 5, v{V_L16}', 'v_lshlrev_b32 v58, 13, v58', f'v_bfe_u32 v59, v{V_L16}, 4, 1', 'v_lshl_add_u32 v58, v59, 7, v58',
               f's_and_b32 s32, s{s_w}, 1', 's_lshl_b32 s32, s32, 5', f's_lshl_b32 s49, s{s_i}, 6', 's_add_u32 s32, s32, s49', 's_lshl_b32 s32, s32, 13',
               f's_lshl_b32 s49, s{s_h}, 8', 's_add_u32 s32, s32, s49', f'buffer_load_dword v253, v58, s[{S_WQ}:{S_WQ+3}], s32 offen']
        def pfx(qt): return [f'v_lshrrev_b32 v58, 7, v{V_L16}', 'v_lshlrev_b32 v58, 10, v58', f'v_bfe_u32 v59, v{V_L16}, 4, 3', 'v_lshl_add_u32 v58, v59, 7, v58',
               f's_lshl_b32 s32, s{qt}, 5', f's_and_b32 s49, s{s_h}, 3', 's_lshl_b32 s49, s49, 3', 's_add_u32 s32, s32, s49', 's_lshl_b32 s32, s32, 10',
               f'buffer_load_dword v253, v58, s[{S_X}:{S_X+3}], s32 offen']
        def kvx(t):
            early, late = [], []
            if opt.get('pfq', True):
                if t == 7: early += [touch(pfw)]
                if t == 8: early += [touch(pfx(36))]
                if t == 9: early += [touch(pfx(37))]
            if 1 <= t <= 6: early += setupG[(t-1)*perS:t*perS]
            if t == opt.get('lnsig_t', 4): late += [(lnsig, 'flag')]
            if t == 13: late += Q0[:4]
            if t == 14: early += Q0[4:]; late += Q1[:4]
            if t == 15: early += Q1[4:]; late += Q2[:3]
            return early, late
        def handover():
            return (0, 0), P.read_addr_update(), P.kstep_reads(0, 0)
        KV.start()
        self.stamp()
        KV.run(kvx, handover)
        P.lq = list(KV.lq); P.g_pending = Q2[3:]
        self.stamp()
        a('s_nop 7')
        for g in KG: P.emit_group(g)
        self.stamp()
        def xe(p, t):
            g = []
            if t < nv: g += VGs[t*perV:(t+1)*perV] + ([(idld, None)] if t == 0 else [])
            if t == nv: g += zero[:16]
            if t == nv+1: g += zero[16:]
            if t == 6: g += [(srds, None)]
            if t == 7: g += [(pollpre, None)]
            return g
        def xl(p, t):
            return [(sig, None)] if t == sigt else []
        assert sigt >= nv + 1 and sigt <= 6 and 48 % nv == 0
        P.run(qpass, extra_early=xe, extra_late=xl)
        self.stamp()
        chk = ['s_waitcnt vmcnt(0)', 'v_and_b32 v41, v43, v41', 'v_cmp_ne_u32 vcc, v43, v41', 's_nop 3', 's_cmp_eq_u64 vcc, 0']
        for l in [f's_cmp_eq_u32 s{s_w}, 0', f's_cbranch_scc0 {N}_polled', f's_mov_b32 s{s_cnt}, 0', f'{N}_poll:'] + chk + \
                 [f's_cbranch_scc1 {N}_polled', f's_add_u32 s{s_cnt}, s{s_cnt}, 1', f's_cmp_ge_u32 s{s_cnt}, 0x20000', f's_cbranch_scc1 {N}_polled',
                  f's_sleep {opt.get("sleep", 8)}', f'buffer_load_dword v41, v42, s[76:79], 0 offen sc1', f's_branch {N}_poll', f'{N}_polled:']: a(l)
        a('s_barrier')
        for g in KV0 + VV0:
            for l in g[0]: a(l)
        self.stamp()
        self.q_to_frags()
        return M
```

```python
from asmlib import *
from layout import *
from gen_proj2 import Proj, VmQueue
from gen_proj import make_srd
import gen_t2
from gen_mlp import Mlp1

OA, OB = 0, 64
QA, QB = 0, 32
PFB = (128, 152)
FR = 192
NFR = 16
S = [[64, 80], [96, 112]]
P = [[128, 136], [144, 152]]
CA, CB = 160, 176
PT = 192
PS = [200, 201]
LA, LB = 202, 203
V_L16 = 204; V_KA = 205; V_VA = 206
V_RELA = 207; V_RELB = 208; V_NEG = 209
V_T = 210
V_DA, V_DB = 226, 227
V_AA, V_AB = 228, 229
V_MASK = 230; V_VBASE = 231; V_REL = [232, 233]
V_ST = 236
V_MA, V_MB, V_MR = 214, 216, 218
MACC = 128
S_MW, S_MH = 12, 60
s_ma, s_mb, s_ml = 85, 88, 89
S_K, S_V, S_Q, S_C = 4, 8, 12, 16
s_w, s_h, s_i, s_g1, s_cnt, s_ks, s_vs, s_t0, s_thr = 20, 21, 22, 23, 24, 25, 26, 27, 28
s_t1, s_step = 29, 32
S_RET = 30
S_M = 40
D = 8
THR = 0x4e800000

def v(b, n=1): return f'v{b}' if n == 1 else f'v[{b}:{b+n-1}]'
def ar(b, n=1): return f'a{b}' if n == 1 else f'a[{b}:{b+n-1}]'
MF = 'v_mfma_f32_32x32x16_bf16'

class Iter:
    def __init__(self, qk, sm, pv, next_qk, par, czero=False):
        self.qk, self.sm, self.pv, self.next_qk, self.par, self.czero = qk, sm, pv, next_qk, par, czero

def nfr(mode): return {None: 0, 1: 8, 2: 16}[mode]

class Attn:
    def __init__(self, a, name, diag=False, **opt):
        self.a = a; self.name = name; self.diag = diag; self.opt = opt; self.st = (RTStamps if opt.get('rt') else Stamps)(a, diag, vreg=254, sreg=30); self.mlp = opt.get('mlp', True)
        self.phase = 0
        self.slow = []
        self.uid = 0
        self.vm = {}

    def simulate(self):
        res = {}
        self.vmm = {}
        for i in range(8):
            G1 = 4*(i+1)
            def mode(g): return None if (g < 0 or g > 33) else (1 if g < G1 else 2)
            def first(g):
                return g if g <= G1 else G1 + 2*(g-G1)
            def r(g): return 1 if g < G1 else 2
            issued = []
            def issue(kind, b0, nb):
                for b in range(b0, b0+nb):
                    issued.extend([(kind, b)]*2)
            kd = 0; vd = 0
            issue('K', 0, 6); issue('V', 0, 4)
            kd, vd = 6, 4
            kfree = 0; vfree = 0
            def need(n):
                req = []
                if mode(n+3): req += [('K', b) for b in range(first(n+3), first(n+3)+r(n+3))]
                if mode(n+1): req += [('V', b) for b in range(first(n+1), first(n+1)+r(n+1))]
                last = -1
                for k, x in enumerate(issued):
                    if x in req: last = k
                for x in req: assert x in issued, (i, n, x)
                return len(issued) - 1 - last if last >= 0 else None
            def pos(n):
                if n <= -1: return ('pro', n)
                if n <= G1-5:
                    if n >= G1-6 : return ('p1peel', n & 1)
                    return ('p1loop', n & 1)
                if n <= G1-1: return ('trans', n-G1)
                if n <= 31:
                    if n >= 30: return ('p2peel', n & 1)
                    return ('p2loop', n & 1)
                return ('epi', n)
            for n in range(-3, 34):
                if n == -1 and self.mlp: issued.extend([('M', 0)]*4 + [('M', 1)]*4)
                if n >= -2:
                    if mode(n) and n <= 31:
                        b0 = vd; nb = r(n)
                        assert b0 + nb - 8 <= (first(n-1) if n-1 >= 0 else 0), (i, n, b0, nb)
                        issue('V', b0, nb); vd += nb
                p = pos(n)
                if self.mlp and 0 <= n <= 31:
                    idx = [k for k, x in enumerate(issued) if x == ('M', n)]
                    if idx:
                        Nm = len(issued) - 1 - idx[-1]
                        self.vmm[p] = min(self.vmm.get(p, 99), Nm)
                    else: assert n >= 32 or i == 7 or True
                    if p[0] != 'p2peel': issued.extend([('M', n+2)]*4)
                N = need(n)
                if N is not None:
                    res[p] = min(res.get(p, 99), N)
                if mode(n+3) or (n <= 31 and n >= -3):
                    nb = r(n+3)
                    if n <= 30 or True:
                        assert kd + nb - 8 <= first(n+3), (i, n, kd, nb)
                        issue('K', kd, nb); kd += nb
                if n == G1-1: issued.extend([('S', 0)]*8)
        self.vm = res
        return res

    def dma_group(self, kind, nb, split=False):
        srd_, so = (S_K, s_ks) if kind == 'K' else (S_V, s_vs)
        g = []
        if kind == 'K':
            pre = [f's_and_b32 m0, s{so}, 0xffff']
        else:
            pre = [f's_and_b32 s{s_t0}, s{so}, 0xffff', f's_or_b32 m0, s{s_t0}, 0x10000']
        n = 2*nb
        if split: g.append(pre)
        for k in range(n):
            l = []
            if k == 0 and not split: l += pre + ['s_nop 0']
            off = f' offset:{k*1024}' if k else ''
            l.append(f'buffer_load_dwordx4 v{V_L16}, s[{srd_}:{srd_+3}], s{so} offen{off} lds')
            if k == n-1: l.append(f's_add_u32 s{so}, s{so}, {nb*8192}')
            g.append(l)
        return g

    def mlp_dma_groups(self, par):
        g = []
        for vo, srd_, so, step, off in ((V_MA, S_MW, s_ma, 16*3584, 0), (V_MB, S_MH, s_mb, 16*1024, 2048)):
            g.append([f's_add_u32 m0, s{s_ml}, {par*4096+off}'])
            g.append([f'buffer_load_dwordx4 v{vo}, s[{srd_}:{srd_+3}], s{so} offen lds'])
            g.append([f'buffer_load_dwordx4 v{vo+1}, s[{srd_}:{srd_+3}], s{so} offen offset:1024 lds', f's_add_u32 s{so}, s{so}, {step}'])
        return g

    def sm_ops(self, it):
        sm = it.sm; pr = it.par ^ 1
        ops = []
        masked = sm.endswith('m')
        init = sm == 'init'
        mode = '1' if init else sm[0]
        for b in range(2):
            Sb = S[pr][b]; Pb = P[pr][b]
            domask = masked and (mode == '2' or b == 0)
            blk = []
            if domask:
                def cmp(e): return (4, f'v_cmp_ge_i32 s[{S_M+2*(e%8)}:{S_M+2*(e%8)+1}], v{V_REL[b]}, {8*(e>>2)+(e&3)}')
                def cnd(e): return (4, f'v_cndmask_b32 v{Sb+e}, v{V_NEG}, v{Sb+e}, s[{S_M+2*(e%8)}:{S_M+2*(e%8)+1}]')
                blk += [cmp(0), cmp(1), cmp(2), cmp(3), cnd(0)]
            for e in range(16):
                if domask:
                    if e+4 < 16: blk.append(cmp(e+4))
                    if e+1 < 16: blk.append(cnd(e+1))
                if init:
                    if e == 0: blk.append((4, f'v_sub_f32 v{Sb}, v{Sb}, v{V_DA if b == 0 else V_DB}'))
                    if e+1 < 16: blk.append((4, f'v_sub_f32 v{Sb+e+1}, v{Sb+e+1}, v{V_DA if b == 0 else V_DB}'))
                blk.append((8, f'v_exp_f32 v{PT+(e%8)}, v{Sb+e}'))
                if e >= 2 or True:
                    k = e-1
                    if k == 1: blk.append((4, f'v_add_f32 v{PS[b]}, v{PT+0}, v{PT+1}'))
                    elif k > 1: blk.append((4, f'v_add_f32 v{PS[b]}, v{PS[b]}, v{PT+(k%8)}'))
                    if k >= 1 and k % 2 == 1:
                        blk.append((4, f'v_cvt_pk_bf16_f32 v{Pb+(k>>1)}, v{PT+((k-1)%8)}, v{PT+(k%8)}'))
            blk.append((4, f'v_add_f32 v{PS[b]}, v{PS[b]}, v{PT+(15%8)}'))
            blk.append((4, f'v_cvt_pk_bf16_f32 v{Pb+7}, v{PT+(14%8)}, v{PT+(15%8)}'))
            ops += blk
        if not init and not self.opt.get('nocheck'):
            ops.append((4, f'v_max_f32 v{V_T}, v{PS[0]}, v{PS[1]}'))
            ops.append((4, f'v_cmp_lt_f32 vcc, s{s_thr}, v{V_T}'))
        return ops

    def rel_setup(self, it):
        return []

    def emit_iter(self, it, pos, extra_pre=None, name='', extra_post=None):
        a = self.a
        par = it.par
        ph = self.phase
        mf = []
        reads = []
        fidx = 0
        def fr(k): return FR + 4*((ph + k) % NFR)
        Sw = S[par]; Pr = P[par]
        if it.qk == 1:
            for j in range(8):
                A = ar(fr(fidx+j), 4)
                for b, Q, C in ((0, QA, CA), (1, QB, CB)):
                    c = ('0' if it.czero else v(C, 16)) if j == 0 else v(Sw[b], 16)
                    mf.append((f'{MF} {v(Sw[b],16)}, {A}, {v(Q+4*j,4)}, {c}', fidx+j))
                reads.append((2*j, f'ds_read_b128 {A}, v{V_KA} offset:{j*1024}', fidx+j))
            fidx += 8
        elif it.qk == 2:
            for f in range(16):
                b, j = f >> 3, f & 7
                A = ar(fr(fidx+f), 4)
                c = ('0' if it.czero else v(CB, 16)) if j == 0 else v(Sw[b], 16)
                mf.append((f'{MF} {v(Sw[b],16)}, {A}, {v(QB+4*j,4)}, {c}', fidx+f))
                reads.append((f, f'ds_read_b128 {A}, v{V_KA} offset:{f*1024}', fidx+f))
            fidx += 16
        mlp = self.mlp and getattr(it, 'mlp', False)
        m0 = len(mf)
        if mlp:
            for ft in range(2):
                for dt in range(2):
                    acc = ar(MACC+16*(2*ft+dt), 16)
                    mf.append((f'{MF} {acc}, {v(V_ST+4*ft,4)}, {v(V_ST+8+4*dt,4)}, {acc}', 'm7' if (ft, dt) == (0, 0) else None))
        s0 = len(mf)
        if it.pv == 1:
            for f in range(8):
                t, db = f >> 2, f & 3
                A = ar(fr(fidx+f), 4)
                for b, O in ((0, OA), (1, OB)):
                    mf.append((f'{MF} {ar(O+16*db,16)}, {A}, {v(Pr[b]+4*t,4)}, {ar(O+16*db,16)}', fidx+f))
                reads.append((s0+2*f, f'ds_read_b128 {A}, v{V_VA} offset:{f*1024}', fidx+f))
            fidx += 8
        elif it.pv == 2:
            for f in range(16):
                b, t, db = f >> 3, (f >> 2) & 1, f & 3
                A = ar(fr(fidx+f), 4)
                mf.append((f'{MF} {ar(OB+16*db,16)}, {A}, {v(Pr[b]+4*t,4)}, {ar(OB+16*db,16)}', fidx+f))
                reads.append((s0+f, f'ds_read_b128 {A}, v{V_VA} offset:{f*1024}', fidx+f))
            fidx += 16
        ns = len(mf)
        nown = fidx
        lead_in = [r for r in reads if it.qk and r[0] < D and r[2] < nfr(it.qk)]
        own = [r for r in reads if r not in lead_in]
        lead_out = []
        if it.next_qk:
            n = nfr(it.next_qk)
            for j in range(n):
                fu = 2*j if it.next_qk == 1 else j
                if fu < D:
                    A = ar(FR + 4*((ph + nown + j) % NFR), 4)
                    lead_out.append((ns + fu, f'ds_read_b128 {A}, v{V_KA} offset:{j*1024}', nown+j))
        bslot = max(ns - D, 0)
        slots = [[] for _ in range(ns+1)]
        pre = []
        order = [r[2] for r in lead_in]
        def place_read(slot, r):
            (pre if slot < 0 else slots[slot]).append(('ds', r[1], r[2]))
        for r in own:
            place_read(r[0]-D if r[0]-D >= 0 else -1, r)
        if mlp:
            base = par*4096
            rd = []
            for op in range(2):
                for tl in range(2):
                    r = V_ST + 8*op + 4*tl
                    rd.append(f'ds_read_b64_tr_b16 {v(r,2)}, v{V_MR+tl} offset:{base+op*2048}')
                    rd.append(f'ds_read_b64_tr_b16 {v(r+2,2)}, v{V_MR+tl} offset:{base+op*2048+512}')
            slots[m0-8].append(('x', f's_waitcnt vmcnt({self.vmm[pos]})'))
            for k, t_ in enumerate(rd): slots[m0-8+k//2].append(('ds', t_, f'm{k}'))
        win = []
        has_bar = pos is not None and pos in self.vm
        if has_bar:
            if not self.opt.get('novm'): win.append(('x', f's_waitcnt vmcnt({0 if pos == ("epi", 32) else self.vm[pos]})'))
            if not self.opt.get('nobar'): win.append(('x', 's_barrier'))
        if it.qk:
            win.append(('x', f'v_add_u32 v{V_KA}, {8192*(1 if it.qk==1 else 2)}, v{V_KA}'))
            win.append(('x', f'v_and_b32 v{V_KA}, 0xffff, v{V_KA}'))
        if it.pv:
            win.append(('x', f'v_add_u32 v{V_VA}, {8192*(1 if it.pv==1 else 2)}, v{V_VA}'))
            win.append(('x', f'v_and_or_b32 v{V_VA}, v{V_VA}, v{V_MASK}, v{V_VBASE}'))
        for r in own:
            assert r[0]-D < bslot or ns <= D, (r, bslot)
        vg = self.dma_group('V', 1 if it.pv == 1 else 2, split=True) if (it.pv and not getattr(it, 'nov', False)) else []
        kg = self.dma_group('K', 1 if it.next_qk == 1 else 2, split=True) if (it.next_qk or getattr(it, 'forcek', False)) else []
        if self.opt.get('nodma') and pos and pos[0] != 'pro': vg = []; kg = []
        mg = []
        if mlp and getattr(it, 'mlp_dma', True): mg = [(m0+1+k, g) for k, g in enumerate(self.mlp_dma_groups(par))]
        if getattr(it, 'mlp_first', False):
            gs = self.mlp_dma_groups(0) + self.mlp_dma_groups(1)
            gs = [g + ['s_nop 0'] if 'm0' in g[0] else g for g in gs]
            mg = [(k*7//len(gs), g) for k, g in enumerate(gs)]
        sm = self.sm_ops(it) if it.sm else []
        if self.opt.get('nosm'): sm = []
        if self.opt.get('noexp'): sm = [(c, t) for c, t in sm if 'exp' not in t]
        if self.opt.get('noadd'): sm = [(c, t) for c, t in sm if 'v_add_f32' not in t]
        tot = sum(c for c, _ in sm)
        fixed = [0.0]*ns
        for k in range(ns):
            fixed[k] += 4*len(slots[k])
        for k, grp in enumerate(vg):
            sl = min(ns-1, k*(1 if len(vg) > 3 else 2))
            slots[sl].append(('dma', grp)); fixed[sl] += 4*len(grp)
        for sl, grp in mg:
            slots[sl].append(('dma', grp)); fixed[sl] += 4*len(grp)
        slots[bslot] = win + slots[bslot]; fixed[bslot] += 4*len(win)
        for r in lead_out:
            sl = min(ns-1, r[0]-D); slots[sl].append(('ds', r[1], r[2])); fixed[sl] += 4
        for k, grp in enumerate(kg):
            sl = min(ns-1, bslot + k*(1 if len(kg) > 3 else 2) + (1 if k else 0))
            slots[sl].append(('dma', grp)); fixed[sl] += 4*len(grp)
        xf = list(getattr(it, 'fill', [])); xg = list(getattr(it, 'fill_groups', []))
        if xf or xg:
            nsl = ns
            half = max(1, int(nsl*0.55))
            for k, x in enumerate(xf): slots[min(half-1, k*half//len(xf))].append(x)
            for k, g in enumerate(xg): slots[min(nsl-1, half + k*(nsl-half)//len(xg))].append(('dmag', g))
        total = tot + sum(fixed)
        smslots = [[] for _ in range(ns)]
        if sm:
            k = 0; cum = 0.0; target_end = ns - self.opt.get('tail', 1.6)
            acc = 0.0
            for sl in range(ns):
                acc += fixed[sl]
                lim = total * (sl+1) / target_end
                while k < len(sm) and (acc + sm[k][0]*0.5 <= lim or sl == ns-1):
                    smslots[sl].append(sm[k]); acc += sm[k][0]; k += 1
        if extra_pre:
            for l in extra_pre: a(l)
        q = list(order)
        def emit_fill(x):
            if x[0] == 'ds':
                a(x[1]); q.append(x[2])
            elif x[0] == 'dma':
                for l in x[1]: a(l)
            elif x[0] == 'dmag':
                for l in x[1][0]: a(l)
                it.vq.push(x[1][1])
            else:
                a(x[1])
        for x in pre: emit_fill(x)
        waited = -1
        for k, (txt, f) in enumerate(mf):
            if f is not None and f in q:
                idx = q.index(f)
                if idx+1 < len(q) and (k % 2 == 0): idx2 = idx+1
                else: idx2 = idx
                nleft = len(q) - 1 - idx2
                a(f's_waitcnt lgkmcnt({nleft})')
                q = q[idx2+1:]
            a(txt)
            fl = slots[k]
            for x in fl:
                if x[0] in ('x', 'ds'): emit_fill(x)
            for c, t in smslots[k]: a(t)
            for x in fl:
                if x[0] in ('dma', 'dmag'): emit_fill(x)
        self.phase = (ph + nown) % NFR
        for l in (extra_post or []): a(l)
        if it.sm and it.sm != 'init' and not self.opt.get('nocheck'):
            self.uid += 1
            u = self.uid
            a(f's_cbranch_vccnz {self.name}_slow{u}')
            a.label(f'{self.name}_join{u}')
            self.l_update(it.sm)
            self.slow.append((u, it))
        elif it.sm == 'init':
            a(f'v_mov_b32 v{LA}, v{PS[0]}')
            a(f'v_mov_b32 v{LB}, v{PS[1]}')

    def l_update(self, sm):
        a = self.a
        if sm[0] == '1' or sm == 'init':
            a(f'v_add_f32 v{LA}, v{LA}, v{PS[0]}')
            a(f'v_add_f32 v{LB}, v{LB}, v{PS[1]}')
        else:
            a(f'v_add_f32 v{LB}, v{LB}, v{PS[0]}')
            a(f'v_add_f32 v{LB}, v{LB}, v{PS[1]}')

    def rowmax(self, dst, blocks):
        a = self.a
        regs = [b+e for b in blocks for e in range(16)]
        a(f'v_max3_f32 v{dst}, v{regs[0]}, v{regs[1]}, v{regs[2]}')
        k = 3
        while k+1 < len(regs):
            a(f'v_max3_f32 v{dst}, v{dst}, v{regs[k]}, v{regs[k+1]}'); k += 2
        if k < len(regs): a(f'v_max_f32 v{dst}, v{dst}, v{regs[k]}')
        a(f'v_mov_b32 v{V_T+1}, v{dst}')
        a('s_nop 1')
        a(f'v_permlane32_swap_b32 v{V_T+1}, v{dst}')
        a('s_nop 1')
        a(f'v_max_f32 v{dst}, v{dst}, v{V_T+1}')

    def plain_sm(self, pr):
        a = self.a
        for b in range(2):
            for e in range(0, 16, 2):
                a(f'v_exp_f32 v{PT}, v{S[pr][b]+e}')
                a(f'v_exp_f32 v{PT+1}, v{S[pr][b]+e+1}')
                a('s_nop 0')
                a(f'v_cvt_pk_bf16_f32 v{P[pr][b]+(e>>1)}, v{PT}, v{PT+1}')
                if e == 0:
                    a(f'v_add_f32 v{PS[b]}, v{PT}, v{PT+1}')
                else:
                    a(f'v_add_f32 v{PS[b]}, v{PS[b]}, v{PT}')
                    a(f'v_add_f32 v{PS[b]}, v{PS[b]}, v{PT+1}')

    def sub_delta(self, pr, mode):
        a = self.a
        for b in range(2):
            dl = V_DA if (mode == 1 and b == 0) else V_DB
            for e in range(16):
                a(f'v_sub_f32 v{S[pr][b]+e}, v{S[pr][b]+e}, v{dl}')

    def emit_slow(self, u, it):
        a = self.a
        pr = it.par ^ 1
        mode = 1 if it.sm[0] == '1' else 2
        a.label(f'{self.name}_slow{u}')
        a('s_nop 15')
        a('s_nop 7')
        if mode == 1:
            self.rowmax(V_DA, [S[pr][0]])
            self.rowmax(V_DB, [S[pr][1]])
            a(f'v_max_f32 v{V_DA}, 0, v{V_DA}')
        else:
            self.rowmax(V_DB, [S[pr][0], S[pr][1]])
            a(f'v_mov_b32 v{V_DA}, 0')
        a(f'v_max_f32 v{V_DB}, 0, v{V_DB}')
        a(f's_call_b64 s[{S_RET}:{S_RET+1}], {self.name}_rescale')
        self.sub_delta(pr, mode)
        if it.qk: self.sub_delta(it.par, it.qk)
        self.plain_sm(pr)
        a(f's_branch {self.name}_join{u}')

    def emit_rescale(self):
        a = self.a
        a.label(f'{self.name}_rescale')
        a(f'v_exp_f32 v{V_AA}, -v{V_DA}')
        a(f'v_exp_f32 v{V_AB}, -v{V_DB}')
        a('s_nop 0')
        for O, al in ((OA, V_AA), (OB, V_AB)):
            for e in range(0, 64, 4):
                for k in range(4): a(f'v_accvgpr_read_b32 v{V_T+k}, a{O+e+k}')
                for k in range(4): a(f'v_mul_f32 v{V_T+k}, v{V_T+k}, v{al}')
                for k in range(4): a(f'v_accvgpr_write_b32 a{O+e+k}, v{V_T+k}')
        a(f'v_mul_f32 v{LA}, v{LA}, v{V_AA}')
        a(f'v_mul_f32 v{LB}, v{LB}, v{V_AB}')
        for e in range(16):
            a(f'v_sub_f32 v{CA+e}, v{CA+e}, v{V_DA}')
            a(f'v_sub_f32 v{CB+e}, v{CB+e}, v{V_DB}')
        a('s_nop 1')
        a(f's_setpc_b64 s[{S_RET}:{S_RET+1}]')

    def mask_inplace(self, pr, b):
        a = self.a
        for e0 in range(0, 16, 8):
            for e in range(e0, e0+8):
                a(f'v_cmp_ge_i32 s[{S_M+2*(e%8)}:{S_M+2*(e%8)+1}], v{V_REL[b]}, {8*(e>>2)+(e&3)}')
            a('s_nop 1')
            for e in range(e0, e0+8):
                a(f'v_cndmask_b32 v{S[pr][b]+e}, v{V_NEG}, v{S[pr][b]+e}, s[{S_M+2*(e%8)}:{S_M+2*(e%8)+1}]')

    def emit_init(self):
        a = self.a
        a(f'v_mov_b32 v{V_REL[0]}, v{V_RELA}')
        a('s_nop 12')
        self.mask_inplace(0, 0)
        self.rowmax(V_DA, [S[0][0]])
        self.rowmax(V_DB, [S[0][1]])
        for e in range(16):
            a(f'v_sub_f32 v{CA+e}, 0, v{V_DA}')
            a(f'v_sub_f32 v{CB+e}, 0, v{V_DB}')
        a('s_nop 1')

    def epilogue_tile(self, O, L, qt_sgpr, vq=None):
        a = self.a
        a(f'v_mov_b32 v{V_T+1}, v{L}')
        a('s_nop 1')
        a(f'v_permlane32_swap_b32 v{V_T+1}, v{L}')
        a('s_nop 1')
        a(f'v_add_f32 v{L}, v{L}, v{V_T+1}')
        a(f'v_rcp_f32 v{V_T+2}, v{L}')
        a('s_nop 0')
        a(f'v_mov_b32 v{V_T+3}, v{V_T+2}')
        inv = V_T+2
        k = 0
        for db in range(4):
            for t in range(2):
                tmp = V_ST + 8*(k % 2)
                for e in range(8): a(f'v_accvgpr_read_b32 v{tmp+e}, a{O+16*db+8*t+e}')
                for e in range(0, 8, 2): a(f'v_pk_mul_f32 v[{tmp+e}:{tmp+e+1}], v[{tmp+e}:{tmp+e+1}], v[{inv}:{inv+1}]')
                for e in range(0, 8, 2): a(f'v_cvt_pk_bf16_f32 v{tmp+(e>>1)}, v{tmp+e}, v{tmp+e+1}')
                j = 2*db+t
                off = j*1024
                so = qt_sgpr if off < 4096 else qt_sgpr+1
                a(f'buffer_store_dwordx4 v[{tmp}:{tmp+3}], v{V_L16}, s[{S_C}:{S_C+3}], s{so} offen offset:{off % 4096}{STF.st}')
                if vq: vq.push('ctx')
                k += 1

    def stamp(self, same=False):
        self.st()
    def dump_stamps(self):
        self.st.dump(100*MB, s_w, 253)

    def emit(self):
        self.simulate()
        M = self.emit_head()
        self.emit_body(M)

    def kv_srd_lines(self):
        a = Asm()
        a(f's_lshl_b32 s{s_t0}, s{s_h}, 19')
        a(f's_lshl_b32 s{s_t1}, s{s_i}, 15')
        a(f's_sub_u32 s{s_t1}, 0x80000, s{s_t1}')
        for S_, base in ((S_K, WS_K), (S_V, WS_V)):
            a(f's_add_u32 s{S_}, s34, {base}')
            a(f's_addc_u32 s{S_+1}, s35, 0')
            a(f's_add_u32 s{S_}, s{S_}, s{s_t0}')
            a(f's_addc_u32 s{S_+1}, s{S_+1}, 0')
            a(f's_and_b32 s{S_+1}, s{S_+1}, 0xffff')
            a(f's_mov_b32 s{S_+2}, s{s_t1}')
            a(f's_mov_b32 s{S_+3}, 0x20000')
        make_srd(a, S_C, 34, WS_CTX, 16*MB)
        for qt, d in ((36, 56), (37, 58)):
            a(f's_lshl_b32 s{s_t0}, s{qt}, 5')
            a(f's_add_u32 s{s_t0}, s{s_t0}, s{s_h}')
            a(f's_lshl_b32 s{d}, s{s_t0}, 13')
            a(f's_add_u32 s{d+1}, s{d}, 4096')
        return a.lines

    def kv_groups(self, kind, nb):
        G = []
        for b in range(nb):
            for grp in self.dma_group(kind, 1): G.append((grp, 'kv'))
        return G

    def q_to_frags(self):
        a = self.a
        a('s_nop 7')
        for st, Q in ((0, QA), (1, QB)):
            for dt in range(4):
                A = 64 + 16*(4*st+dt)
                for t in range(2):
                    for k in range(4):
                        a(f'v_cvt_pk_bf16_f32 v{Q+4*(2*dt+t)+k}, v{A+8*t+2*k}, v{A+8*t+2*k+1}')
        if self.mlp:
            make_srd(a, S_MW, 68, 0, 2048*3584); make_srd(a, S_MH, 34, WS_H, 2*MB)
            a(f's_cmp_eq_u32 s{s_i}, 7')
            a(f's_cselect_b32 s{S_MW+2}, 0, s{S_MW+2}')
            a(f's_cselect_b32 s{S_MH+2}, 0, s{S_MH+2}')

    def setup_attn_regs(self):
        a = self.a; opt = self.opt
        a(f's_lshl_b32 s{s_ks}, s{s_w}, 11')
        a(f's_mov_b32 s{s_vs}, s{s_ks}')
        a(f's_mov_b32 s{s_thr}, {THR}')
        a(f'v_mov_b32 v{V_NEG}, 0xf149f2ca')
        a(f'v_mov_b32 v{V_MASK}, 0xffff')
        a(f'v_mov_b32 v{V_VBASE}, 0x10000')
        a(f'v_mov_b32 v{V_KA}, v{V_L16}')
        a(f'v_add_u32 v{V_VA}, 0x10000, v{V_L16}')
        a(f'v_and_b32 v3, 31, v2')
        a(f'v_lshrrev_b32 v4, 5, v2')
        a(f'v_lshlrev_b32 v4, 2, v4')
        a(f'v_sub_u32 v3, v3, v4')
        a(f's_lshl_b32 s{s_t0}, s36, 5')
        a(f'v_add_u32 v{V_RELA}, s{s_t0}, v3')
        a(f's_lshl_b32 s{s_t0}, s37, 5')
        a(f'v_add_u32 v{V_RELB}, s{s_t0}, v3')
        M = Mlp1(a); M.ids()
        if self.mlp:
            T = 33
            a(f's_lshl_b32 s{s_ml}, s{s_w}, 13'); a(f's_add_u32 s{s_ml}, s{s_ml}, 131072')
            gen_t2.lane_setup(a, 5, T)
            for t in range(2):
                X = T+5; dst = V_MR+t
                a(f'v_mul_u32_u24 v{X}, 8, v{T}'); a(f'v_add_u32 v{X}, v{X}, v{T+1}'); a(f'v_lshlrev_b32 v{X}, 7, v{X}')
                a(f'v_xor_b32 v{dst}, {t}, v{T+4}'); a(f'v_lshl_add_u32 v{X}, v{dst}, 6, v{X}')
                a(f'v_lshl_add_u32 v{X}, v{T+2}, 5, v{X}'); a(f'v_lshl_add_u32 v{X}, v{T+3}, 3, v{X}')
                a(f'v_add_u32 v{dst}, s{s_ml}, v{X}')
            for dst, stride in ((V_MA, 3584), (V_MB, 1024)):
                mt = getattr(self, 'mtmp', 48)
                gen_t2.dma_voffs(a, mt, 5, T, stride, s_t1)
                a(f'v_mov_b32 v{dst}, v{mt}'); a(f'v_mov_b32 v{dst+1}, v{mt+1}')
            a(f's_mul_i32 s{s_ma}, s{s_w}, {512*3584}'); a(f's_lshl_b32 s{s_t1}, s{M.s_fb}, 7'); a(f's_add_u32 s{s_ma}, s{s_ma}, s{s_t1}')
            a(f's_lshl_b32 s{s_mb}, s{s_w}, 19'); a(f's_lshl_b32 s{s_t1}, s{M.s_db}, 7'); a(f's_add_u32 s{s_mb}, s{s_mb}, s{s_t1}')
        a(f'v_lshlrev_b32 v252, 3, v{V_L16}')
        a(f's_sub_u32 s{s_t0}, s2, 32'); a(f's_lshl_b32 s{s_t0}, s{s_t0}, 2'); a(f's_add_u32 s{s_t0}, s{s_t0}, s{s_w}')
        a(f's_lshl_b32 s74, s{s_t0}, 13')
        a(f's_mul_i32 s75, s{s_t0}, 4736')
        return M

    def emit_head(self):
        a = self.a; N = self.name; opt = self.opt
        vm = self.vm
        S_X, S_WQ = 12, 60
        a(f's_cmp_ge_u32 s2, 256')
        a(f's_cbranch_scc1 {N}_end')
        self.stamp()
        a(f's_load_dwordx2 s[34:35], s[0:1], {KA_WS}')
        a(f's_load_dwordx2 s[64:65], s[0:1], {KA_AX}')
        a(f's_load_dwordx2 s[66:67], s[0:1], {KA_WQ}')
        a(f's_load_dwordx2 s[68:69], s[0:1], {KA_W1}')
        a(f's_load_dwordx2 s[86:87], s[0:1], {KA_B1}')
        a(f's_load_dwordx2 s[70:71], s[0:1], {KA_WO}')
        a(f's_load_dwordx2 s[72:73], s[0:1], {KA_W2}')
        a(f'v_lshrrev_b32 v1, 6, v0')
        a(f'v_and_b32 v2, 63, v0')
        a(f'v_lshlrev_b32 v{V_L16}, 4, v2')
        a(f'v_readfirstlane_b32 s{s_w}, v1')
        a(f's_and_b32 s{s_t0}, s2, 7')
        a(f's_lshr_b32 s{s_t1}, s2, 3')
        a(f's_lshl_b32 s{s_h}, s{s_t0}, 2')
        a(f's_and_b32 s{s_t0}, s{s_t1}, 3')
        a(f's_add_u32 s{s_h}, s{s_h}, s{s_t0}')
        a(f's_lshr_b32 s{s_i}, s{s_t1}, 2')
        a(f's_add_u32 s{s_g1}, s{s_i}, 1')
        a(f's_lshl_b32 s{s_g1}, s{s_g1}, 2')
        a(f's_lshl_b32 s36, s{s_i}, 2')
        a(f's_add_u32 s36, s36, s{s_w}')
        a(f's_lshl_b32 s37, s{s_i}, 2')
        a(f's_sub_u32 s37, 60, s37')
        a(f's_add_u32 s37, s37, s{s_w}')
        vq = VmQueue()
        P = Proj(a, vq, s_w, 16384, 65536, ACC=64, FB=PFB, fbk='a', VA=8, V_L16=V_L16, VT=33, SG=40, wflags=(' nt' if opt.get('nt', True) else ''))
        P.setup_addrs(set_l16=False)
        a('s_waitcnt lgkmcnt(0)')
        make_srd(a, S_X, 64, 0, 2*MB); make_srd(a, S_WQ, 66, 0, 4*MB)
        init = [f's_lshl_b32 s{P.s_a0}, s36, 15', f's_lshl_b32 s{P.s_a1}, s37, 15',
                f's_lshl_b32 s{P.s_wo}, s{s_w}, 17', f's_lshl_b32 s{s_t0}, s{s_h}, 8', f's_add_u32 s{P.s_wo}, s{P.s_wo}, s{s_t0}']
        qpass = [dict(swap=False, srdA=S_X, srdW=S_WQ, init=init, epi=lambda: None, acck='v')]
        P.prologue(qpass[0])
        for l in self.kv_srd_lines(): a(l)
        M = self.setup_attn_regs()
        for e in range(128): a(f'v_accvgpr_write_b32 a{e}, 0')
        P.start_compute()
        self.stamp()
        KG = self.kv_groups('K', 6); VG = self.kv_groups('V', 4)
        def xl(p, t): return KG[:6] if t == 5 else (VG[:2] if t == 6 else [])
        def xe(p, t): return KG[6:] if t == 6 else (VG[2:] if t == 7 else [])
        P.run(qpass, extra_early=xe, extra_late=xl)
        self.stamp()
        self.q_to_frags()
        return M

    def emit_body(self, M):
        a = self.a; N = self.name; opt = self.opt
        vm = self.vm
        a(f's_waitcnt vmcnt({vm[("pro",-3)]})')
        a('s_barrier')
        for grp in self.dma_group('K', 1):
            for l in grp: a(l)
        for j in range(D//2):
            a(f'ds_read_b128 {ar(FR+4*j,4)}, v{V_KA} offset:{j*1024}')
        it = Iter(1, None, None, 1, 0, czero=True)
        if self.mlp: it.fill = [('x', f'v_accvgpr_write_b32 a{MACC+e}, 0') for e in range(64)]
        self.emit_iter(it, ('pro', -2))
        self.emit_init()
        self.stamp()
        it = Iter(1, 'init', None, 1, 1); it.mlp_first = self.mlp
        self.emit_iter(it, ('pro', -1))
        self.stamp()
        def MI(*args, dma=True):
            it = Iter(*args); it.mlp = True; it.mlp_dma = dma
            return it
        a(f's_cmp_eq_u32 s{s_i}, 0')
        a(f's_cbranch_scc1 {N}_trans')
        a(f's_sub_u32 s{s_cnt}, s{s_g1}, 6')
        a(f's_lshr_b32 s{s_cnt}, s{s_cnt}, 1')
        a('.p2align 6')
        a.label(f'{N}_p1loop')
        self.emit_iter(MI(1, '1', 1, 1, 0), ('p1loop', 0))
        self.emit_iter(MI(1, '1', 1, 1, 1), ('p1loop', 1))
        a(f's_sub_u32 s{s_cnt}, s{s_cnt}, 1')
        a(f's_cmp_lg_u32 s{s_cnt}, 0')
        a(f's_cbranch_scc1 {N}_p1loop')
        def pf(ptr, nb, so):
            if not opt.get('pf', True): return []
            l = Asm(); make_srd(l, 76, ptr, 0, nb); l(f'buffer_load_dword v253, v252, s[76:79], s{so} offen')
            return l.lines
        self.emit_iter(MI(1, '1', 1, 1, 0), ('p1peel', 0))
        def relA(k):
            return [f's_sub_u32 s{s_t1}, s{s_g1}, {k}', f's_lshl_b32 s{s_t1}, s{s_t1}, 5', f'v_subrev_u32 v{V_REL[0]}, s{s_t1}, v{V_RELA}']
        self.emit_iter(MI(1, '1m', 1, 1, 1), ('p1peel', 1), extra_pre=relA(4), extra_post=pf(72, 1792*4096, 74))
        for l in pf(70, 4*MB, 75): a(l)
        a.label(f'{N}_trans')
        self.stamp()
        self.emit_iter(MI(1, '1m', 1, 1, 0), ('trans', -4), extra_pre=relA(3))
        sw = [f's_lshl_b32 s{s_t0}, s{s_w}, 11']
        self.emit_iter(MI(1, '1m', 1, 2, 1), ('trans', -3), extra_pre=relA(2) + sw + [f's_add_u32 s{s_ks}, s{s_ks}, s{s_t0}'])
        self.emit_iter(MI(2, '1m', 1, 2, 0), ('trans', -2), extra_pre=relA(1))
        def relB(expr_lines):
            return expr_lines + [f'v_subrev_u32 v{V_REL[0]}, s{s_t1}, v{V_RELB}', f'v_subrev_u32 v{V_REL[1]}, 32, v{V_REL[0]}']
        self.emit_iter(MI(2, '2m', 1, 2, 1), ('trans', -1), extra_pre=relB([f's_lshl_b32 s{s_t1}, s{s_g1}, 5']))
        self.stamp()
        a('s_nop 12')
        self.epilogue_tile(OA, LA, 56)
        a(f's_lshl_b32 s{s_t0}, s{s_w}, 11')
        a(f's_add_u32 s{s_vs}, s{s_vs}, s{s_t0}')
        a(f's_cmp_eq_u32 s{s_i}, 7')
        a(f's_cbranch_scc1 {N}_epi')
        a(f's_sub_u32 s{s_cnt}, 30, s{s_g1}')
        a(f's_lshr_b32 s{s_cnt}, s{s_cnt}, 1')
        a('.p2align 6')
        a.label(f'{N}_p2loop')
        self.emit_iter(MI(2, '2', 2, 2, 0), ('p2loop', 0))
        self.emit_iter(MI(2, '2', 2, 2, 1), ('p2loop', 1))
        a(f's_sub_u32 s{s_cnt}, s{s_cnt}, 1')
        a(f's_cmp_lg_u32 s{s_cnt}, 0')
        a(f's_cbranch_scc1 {N}_p2loop')
        self.emit_iter(MI(2, '2', 2, 2, 0, dma=False), ('p2peel', 0), extra_post=(M.l2_prefetch(234) if opt.get('pf2', False) else None))
        relB32 = [f's_sub_u32 s{s_t1}, 64, s{s_g1}', f's_lshl_b32 s{s_t1}, s{s_t1}, 5']
        self.emit_iter(MI(2, '2m', 2, 2, 1, dma=False), ('p2peel', 1), extra_pre=relB(relB32))
        a.label(f'{N}_epi')
        self.stamp()
        relB33 = [f's_sub_u32 s{s_t1}, 66, s{s_g1}', f's_lshl_b32 s{s_t1}, s{s_t1}, 5']
        it = Iter(None, '2m', 2, None, 0); it.nov = True
        a('s_waitcnt lgkmcnt(0)')
        self.emit_iter(it, ('epi', 32), extra_pre=relB(relB33))
        it = Iter(None, None, 2, None, 1); it.nov = True
        a('s_nop 1')
        self.emit_iter(it, None)
        self.stamp()
        a(f's_cmp_eq_u32 s{s_i}, 7')
        a(f's_cbranch_scc1 {N}_nomlp')
        vq2 = VmQueue()
        M.finish(vq2, lambda: self.epilogue_tile(OB, LB, 58, vq2), self.stamp)
        self.stamp()
        if opt.get('fusefin'):
            a(f's_branch {N}_phasec')
        else:
            self.dump_stamps()
            a('s_endpgm')
        a.label(f'{N}_nomlp')
        if opt.get('wbl2', True):
            a(f's_cmp_eq_u32 s{s_w}, 0'); a(f's_cbranch_scc0 {N}_nowb'); a('buffer_wbl2 sc1'); a.label(f'{N}_nowb')
        a('s_nop 15')
        self.epilogue_tile(OB, LB, 58)
        make_srd(a, 76, 34, WS_PART, 8*MB)
        a(f's_sub_u32 s{s_t0}, s2, 224'); a(f's_lshl_b32 s{s_t0}, s{s_t0}, 2'); a(f's_add_u32 s{s_t0}, s{s_t0}, s{s_w}'); a(f's_lshl_b32 s{s_t0}, s{s_t0}, 16')
        for e in range(4): a(f'v_mov_b32 v{V_T+4+e}, -1')
        a(f's_mov_b32 s{s_cnt}, 16')
        a.label(f'{N}_fill')
        for q in range(4):
            a(f'buffer_store_dwordx4 v[{V_T+4}:{V_T+7}], v{V_L16}, s[76:79], s{s_t0} offen offset:{q*1024}' + (' sc1' if (opt.get('fusefin') or opt.get('fillsc1', True)) else ''))
        a('s_waitcnt vmcnt(40)')
        a(f's_add_u32 s{s_t0}, s{s_t0}, 4096')
        a(f's_sub_u32 s{s_cnt}, s{s_cnt}, 1')
        a(f's_cmp_lg_u32 s{s_cnt}, 0')
        a(f's_cbranch_scc1 {N}_fill')
        a('s_waitcnt vmcnt(0)')
        self.stamp()
        if opt.get('fusefin'):
            a.label(f'{N}_phasec')
            self.emit_phasec()
        else:
            self.dump_stamps()
        a.label(f'{N}_end')
        a('s_endpgm')
        for u, it in self.slow: self.emit_slow(u, it)
        self.emit_rescale()
```

```python
from asmlib import *
from layout import *
from gen_proj2 import VmQueue, v, ar
from gen_proj import make_srd

MF = 'v_mfma_f32_32x32x16_bf16'
NY, NO = 7, 16
NS = NY + NO
SLOT = 32768

def emit_final(a, N='fin', NSL=4, inline=False, sync=None, stamps=None, **opt):
    S_WO, S_W2, S_CTX, S_U, S_G, S_B2, S_OUT, S_P, S_D = 4, 8, 12, 16, 24, 28, 32, 36, 56
    s_w, s_sb, s_mb, s_p = 20, 21, 22, 23
    s_sl, s_fr = 40, 41
    s_fill, s_rd, s_w4k, s_t, s_t1, s_t2, s_tile = 42, 43, 44, 45, 46, 47, 48
    ACCY, ACCO = 64, 128; FB = [192, 212]
    VL = 1; V_L16 = 2; T = 32
    V_TB = 8
    V_TA = 16
    V_LA = 21
    V_WO = 24; V_W2 = 28
    V_G = 40; V_B2 = 41; V_OA = 42; V_1G = 43
    st_ = stamps if inline else (RTStamps if opt.get('rt') else Stamps)(a, opt.get('diag'))
    if not inline:
        a('s_cmp_ge_u32 s2, 256')
        a(f's_cbranch_scc1 {N}_end')
    a(f's_load_dwordx2 s[64:65], s[0:1], {KA_WO}')
    a(f's_load_dwordx4 s[68:71], s[0:1], {KA_W2}')
    a(f's_load_dwordx4 s[72:75], s[0:1], {KA_OUT}')
    a(f's_load_dwordx2 s[76:77], s[0:1], {KA_WS}')
    if inline:
        a(f'v_mbcnt_lo_u32_b32 v{VL}, -1, 0'); a(f'v_mbcnt_hi_u32_b32 v{VL}, -1, v{VL}')
        a(f's_and_b32 s{s_t}, s2, 7')
    else:
        a('v_lshrrev_b32 v3, 6, v0')
        a(f'v_and_b32 v{VL}, 63, v0')
        a(f's_and_b32 s{s_t}, s2, 7')
        a(f'v_readfirstlane_b32 s{s_w}, v3')
    a(f's_lshr_b32 s{s_t1}, s2, 3')
    a(f's_lshr_b32 s{s_p}, s{s_t}, 1')
    a(f's_and_b32 s{s_t}, s{s_t}, 1'); a(f's_lshl_b32 s{s_t}, s{s_t}, 3'); a(f's_lshr_b32 s{s_t2}, s{s_t1}, 2'); a(f's_add_u32 s{s_sb}, s{s_t}, s{s_t2}')
    a(f's_and_b32 s{s_mb}, s{s_t1}, 3')
    a(f's_lshl_b32 s{s_tile}, s{s_sb}, 2'); a(f's_add_u32 s{s_tile}, s{s_tile}, s{s_mb}')
    st_('start')
    a(f'v_lshlrev_b32 v{V_L16}, 4, v{VL}')
    a(f's_lshl_b32 s{s_w4k}, s{s_w}, 12')
    a(f's_mov_b32 s{s_fill}, 0'); a(f's_mov_b32 s{s_rd}, 0')
    a(f'v_lshrrev_b32 v{T}, 4, v{VL}')
    a(f'v_bfe_u32 v{T+1}, v{VL}, 2, 2')
    a(f'v_xor_b32 v{T+1}, v{T+1}, v{T}')
    a(f'v_lshlrev_b32 v{T+1}, 6, v{T+1}')
    a(f'v_and_b32 v{T+2}, 3, v{VL}')
    a(f'v_lshl_add_u32 v{T+1}, v{T+2}, 4, v{T+1}')
    a(f'v_lshl_add_u32 v{T+3}, v{T}, 12, v{T+1}')
    a(f'v_lshl_add_u32 v{T+4}, v{T}, 10, v{T+1}')
    for j in range(4):
        a(f'v_add_u32 v{V_W2+j}, {j*(4*4096-1024)}, v{T+3}')
        a(f'v_add_u32 v{V_WO+j}, {j*(4*1024-1024)}, v{T+4}')
    a(f'v_lshrrev_b32 v{T}, 5, v{VL}')
    a(f'v_bfe_u32 v{T+1}, v{VL}, 2, 2')
    a(f'v_lshl_add_u32 v{T+2}, v{T}, 2, v{T+1}')
    a(f'v_lshlrev_b32 v{T+2}, 8, v{T+2}')
    a(f'v_bfe_u32 v{T+3}, v{VL}, 4, 1')
    a(f'v_lshl_add_u32 v{T+2}, v{T+3}, 5, v{T+2}')
    a(f'v_and_b32 v{T+3}, 3, v{VL}')
    a(f'v_lshl_add_u32 v{T+2}, v{T+3}, 3, v{T+2}')
    for tl in range(4):
        a(f'v_xor_b32 v{T+3}, {tl}, v{T+1}')
        a(f'v_lshl_add_u32 v{V_TB+tl}, v{T+3}, 6, v{T+2}')
    a(f'v_xor_b32 v{T+3}, s{s_w}, v{T+1}')
    a(f'v_lshl_add_u32 v{V_TB+4}, v{T+3}, 6, v{T+2}')
    a(f'v_and_b32 v{T+4}, 31, v{VL}')
    a(f'v_lshlrev_b32 v{T+5}, 2, v{T+4}')
    a(f'v_lshlrev_b32 v{T+6}, 1, v{T+4}')
    a(f'v_lshlrev_b32 v{V_OA}, 10, v{T+4}')
    a(f'v_lshl_add_u32 v{V_OA}, v{T}, 4, v{V_OA}')
    a('s_waitcnt lgkmcnt(0)')
    make_srd(a, S_WO, 64, 0, 4*MB); make_srd(a, S_W2, 68, 0, 1792*4096); make_srd(a, S_B2, 70, 0, 4096)
    make_srd(a, S_OUT, 72, 0, 2*MB)
    make_srd(a, S_CTX, 76, WS_CTX, 16*MB); make_srd(a, S_U, 76, WS_U, 16*112*1024); make_srd(a, S_G, 76, WS_G, 8192)
    make_srd(a, S_P, 76, WS_PART, 16*MB)
    if sync: sync()
    vq = VmQueue()
    a(f's_lshl_b32 s{s_t}, s{s_sb}, 2'); a(f's_add_u32 s{s_t}, s{s_t}, s{s_w}')
    a(f's_lshl_b32 s{s_t1}, s{s_t}, 7'); a(f's_lshl_b32 s{s_t2}, s{s_t}, 6')
    a(f'buffer_load_dword v{V_G}, v{T+5}, s[{S_G}:{S_G+3}], s{s_t1} offen'); vq.push('g')
    a(f'buffer_load_ushort v{V_B2}, v{T+6}, s[{S_B2}:{S_B2+3}], s{s_t2} offen'); vq.push('g')

    if opt.get('tlb', True):
        a(f'v_mov_b32 v3, 0')
        a(f's_lshl_b32 s{s_t}, s{s_tile}, 17'); a(f's_mul_i32 s{s_t1}, s{s_p}, {32768+8192}'); a(f's_add_u32 s{s_t}, s{s_t}, s{s_t1}')
        a(f'buffer_load_dword v6, v3, s[{S_P}:{S_P+3}], s{s_t} offen sc1'); vq.push('g')
        a(f's_lshl_b32 s{s_t}, s{s_sb}, 17')
        a(f'buffer_load_dword v6, v3, s[{S_OUT}:{S_OUT+3}], s{s_t} offen sc1'); vq.push('g')

    def part(t): return ('Y', t) if t < NY else ('O', t-NY)
    def switch(t):
        if t == 0:
            return [f's_mul_i32 s{s_sl}, s{s_p}, {448*4096}', f's_lshl_b32 s{s_t}, s{s_w}, 16', f's_add_u32 s{s_sl}, s{s_sl}, s{s_t}',
                    f's_lshl_b32 s{s_t}, s{s_sb}, 8', f's_add_u32 s{s_sl}, s{s_sl}, s{s_t}',
                    f's_lshl_b32 s{s_t}, s{s_mb}, 2', f's_add_u32 s{s_t}, s{s_t}, s{s_w}', f's_mul_i32 s{s_fr}, s{s_t}, {112*1024}',
                    f's_mul_i32 s{s_t}, s{s_p}, {28*1024}', f's_add_u32 s{s_fr}, s{s_fr}, s{s_t}']
        if t == NY:
            return [f's_lshl_b32 s{s_sl}, s{s_p}, 20', f's_lshl_b32 s{s_t}, s{s_w}, 14', f's_add_u32 s{s_sl}, s{s_sl}, s{s_t}',
                    f's_lshl_b32 s{s_t}, s{s_mb}, 8', f's_add_u32 s{s_sl}, s{s_sl}, s{s_t}',
                    f's_lshl_b32 s{s_t}, s{s_sb}, 2', f's_add_u32 s{s_t}, s{s_t}, s{s_w}', f's_lshl_b32 s{s_fr}, s{s_t}, 18',
                    f's_lshl_b32 s{s_t}, s{s_p}, 16', f's_add_u32 s{s_fr}, s{s_fr}, s{s_t}']
        return []
    def adv(s): return [f's_add_u32 s{s}, s{s}, {SLOT}', f's_cmp_ge_u32 s{s}, {NSL*SLOT}', f's_cselect_b32 s{s}, 0, s{s}']
    def loads(t):
        p, _ = part(t)
        srdS, vo, step = (S_W2, V_W2, 64*4096) if p == 'Y' else (S_WO, V_WO, 64*1024)
        srdF = S_U if p == 'Y' else S_CTX
        g = []
        for j in range(4):
            l = []
            if j == 0: l += switch(t) + [f's_add_u32 s{s_t2}, s{s_fill}, s{s_w4k}', f's_mov_b32 m0, s{s_t2}', 's_nop 0']
            l.append(f'buffer_load_dwordx4 v{vo+j}, s[{srdS}:{srdS+3}], s{s_sl} offen' + (f' offset:{j*1024}' if j else '') + ' lds')
            if j == 3: l.append(f's_add_u32 s{s_sl}, s{s_sl}, {step}')
            g.append((l, t))
        for j in range(4):
            l = []
            if j == 0: l += [f's_add_u32 m0, s{s_t2}, 16384', 's_nop 0']
            l.append(f'buffer_load_dwordx4 v{V_L16}, s[{srdF}:{srdF+3}], s{s_fr} offen' + (f' offset:{j*1024}' if j else '') + ' lds')
            if j == 3: l += [f's_add_u32 s{s_fr}, s{s_fr}, 4096'] + adv(s_fill)
            g.append((l, t))
        return g
    def emit_g(g):
        for l in g[0]: a(l)
        vq.push(g[1])
    def addr_update():
        l = [f'v_add_u32 v{V_TA+k}, s{s_rd}, v{V_TB+k}' for k in range(5)]
        l.append(f'v_add_u32 v{V_LA}, s{s_rd}, v{V_L16}')
        return l + adv(s_rd)
    def reads(t, ks, buf):
        p, _ = part(t); F = FB[buf]; l = []
        if p == 'O':
            l.append(f's_nop 0' if False else f'ds_read_b128 {v(F+16,4)}, v{V_LA+1} offset:{ks*1024}')
            for mt in range(4):
                l.append(f'ds_read_b64_tr_b16 {v(F+4*mt,2)}, v{V_TA+mt} offset:{ks*4096}')
                l.append(f'ds_read_b64_tr_b16 {v(F+4*mt+2,2)}, v{V_TA+mt} offset:{ks*4096+2048}')
        else:
            l.append(f'ds_read_b64_tr_b16 {v(F+16,2)}, v{V_TA+4} offset:{ks*4096}')
            l.append(f'ds_read_b64_tr_b16 {v(F+18,2)}, v{V_TA+4} offset:{ks*4096+2048}')
            for mt in range(4):
                l.append(f'ds_read_b128 {v(F+4*mt,4)}, v{V_LA} offset:{16384+mt*4096+ks*1024}')
        return l
    def addr_update2():
        return [f's_add_u32 s{s_t1}, s{s_w4k}, 16384', f's_add_u32 s{s_t1}, s{s_t1}, s{s_rd}', f'v_add_u32 v{V_LA+1}, s{s_t1}, v{V_L16}']
    def mfmas(t, ks, buf):
        p, tt = part(t); F = FB[buf]; first = tt == 0 and ks == 0
        A0 = ACCY if p == 'Y' else ACCO
        return [f'{MF} {v(A0+16*mt,16)}, {v(F+4*mt,4)}, {v(F+16,4)}, ' + ('0' if first else v(A0+16*mt,16)) for mt in range(4)]

    for t in range(NSL-1):
        for g in loads(t): emit_g(g)
    pend = loads(NSL-1) if False else []
    vq.wait_for(a, 0)
    a('s_barrier')
    for l in addr_update2() + addr_update() + reads(0, 0, 0): a(l)
    if not opt.get('rt'): st_('go')
    for t in range(NS):
        tn = t + NSL - 1
        gs = loads(tn) if tn < NS else []
        if not opt.get('rt'): st_(f's{t}')
        for ks in range(4):
            buf = ks & 1
            a('s_waitcnt lgkmcnt(0)')
            pre = []
            if ks == 3 and t+1 < NS:
                vq.wait_for(a, t+1)
                a('s_barrier')
                pre = addr_update2() + addr_update()
            mf = mfmas(t, ks, buf)
            if ks < 3: rd = reads(t, ks+1, buf ^ 1)
            elif t+1 < NS: rd = reads(t+1, 0, buf ^ 1)
            else: rd = []
            n = len(rd); per = -(-n // 3)
            for k, m in enumerate(mf):
                a(m)
                if k == 0:
                    for l in pre: a(l)
                for l in rd[per*k:per*(k+1)]: a(l)
                if ks < 3 and gs and ((ks*4+k) % 3 != 2):
                    emit_g(gs.pop(0))
        assert not gs
    st_('loopend')
    a(f'v_sub_f32 v{V_1G}, 1.0, v{V_G}')
    a(f's_lshl_b32 s{s_t}, s{s_tile}, 17')
    a(f's_lshl_b32 s{s_t1}, s{s_p}, 13'); a(f's_lshl_b32 s{s_t2}, s{s_w}, 11'); a(f's_add_u32 s{s_t1}, s{s_t1}, s{s_t2}'); a(f's_add_u32 s{s_t1}, s{s_t1}, s{s_t}')
    a('s_nop 4')
    OWN = 192
    for mt in range(4):
        o = ACCO+16*mt; y = ACCY+16*mt
        for e in range(16): a(f'v_mul_f32 v{o+e}, v{o+e}, v{V_G}')
        for e in range(16): a(f'v_fmac_f32 v{o+e}, v{y+e}, v{V_1G}')
        a(f's_cmp_eq_u32 s{s_p}, {mt}')
        a(f's_cbranch_scc1 {N}_own{mt}')
        a(f's_add_u32 s{s_t2}, s{s_t1}, {mt*32768}')
        for k in range(8): a(f'v_cvt_pk_bf16_f32 v{o+k}, v{o+2*k}, v{o+2*k+1}')
        for q in range(2):
            a(f'buffer_store_dwordx4 {v(o+4*q,4)}, v{V_L16}, s[{S_P}:{S_P+3}], s{s_t2} offen offset:{q*1024} sc1')
        a(f's_branch {N}_next{mt}')
        a.label(f'{N}_own{mt}')
        for e in range(16): a(f'v_mov_b32 v{OWN+e}, v{o+e}')
        a.label(f'{N}_next{mt}')
    if not opt.get('rt'): st_('published')
    a(f's_lshl_b32 s{s_t}, s{s_tile}, 17'); a(f's_lshl_b32 s{s_t1}, s{s_p}, 15'); a(f's_add_u32 s{s_t}, s{s_t}, s{s_t1}')
    a(f's_lshl_b32 s{s_t1}, s{s_w}, 11'); a(f's_add_u32 s{s_t}, s{s_t}, s{s_t1}')
    for k in range(1, 4):
        a(f's_add_u32 s{s_t1}, s{s_p}, {k}'); a(f's_and_b32 s{s_t1}, s{s_t1}, 3'); a(f's_lshl_b32 s{s_t1}, s{s_t1}, 13'); a(f's_add_u32 s{50+k}, s{s_t1}, s{s_t}')
    a('s_mov_b32 s54, 0')
    a.label(f'{N}_poll')
    for k in range(1, 4):
        for q in range(2):
            a(f'buffer_load_dwordx4 {v(ACCY+8*k+4*q,4)}, v{V_L16}, s[{S_P}:{S_P+3}], s{50+k} offen offset:{q*1024} sc1')
    a('s_add_u32 s54, s54, 1')
    a('s_waitcnt vmcnt(0)')
    R0 = ACCY+8
    a(f'v_max3_u32 v{T}, v{R0}, v{R0+1}, v{R0+2}')
    for k in range(3, 23, 2): a(f'v_max3_u32 v{T}, v{T}, v{R0+k}, v{R0+k+1}')
    a(f'v_max_u32 v{T}, v{T}, v{R0+23}')
    a(f'v_cmp_eq_u32 vcc, -1, v{T}')
    a('s_cmp_ge_u32 s54, 0x20000')
    a(f's_cbranch_scc1 {N}_poll_end')
    a(f's_cbranch_vccnz {N}_poll')
    a.label(f'{N}_poll_end')
    st_('gathered')
    a(f'v_lshlrev_b32 v{V_B2}, 16, v{V_B2}')
    a(f'v_mul_f32 v{V_B2}, v{V_B2}, v{V_1G}')
    D = OWN
    for e in range(16): a(f'v_add_f32 v{D+e}, v{D+e}, v{V_B2}')
    for k in range(1, 4):
        for q in range(8):
            r = ACCY+8*k+q
            a(f'v_lshlrev_b32 v{T}, 16, v{r}'); a(f'v_and_b32 v{T+1}, 0xffff0000, v{r}')
            a(f'v_add_f32 v{D+2*q}, v{D+2*q}, v{T}'); a(f'v_add_f32 v{D+2*q+1}, v{D+2*q+1}, v{T+1}')
    X = ACCO
    for jj in range(4):
        a(f'v_cvt_pk_bf16_f32 v{X+2*jj}, v{D+4*jj}, v{D+4*jj+1}')
        a(f'v_cvt_pk_bf16_f32 v{X+2*jj+1}, v{D+4*jj+2}, v{D+4*jj+3}')
    a(f's_lshl_b32 s{s_t}, s{s_sb}, 17'); a(f's_lshl_b32 s{s_t1}, s{s_w}, 15'); a(f's_add_u32 s{s_t}, s{s_t}, s{s_t1}')
    a(f's_lshl_b32 s{s_t1}, s{s_mb}, 8'); a(f's_add_u32 s{s_t}, s{s_t}, s{s_t1}')
    a(f's_lshl_b32 s{s_t1}, s{s_p}, 6'); a(f's_add_u32 s{s_t}, s{s_t}, s{s_t1}')
    for pr in range(2):
        b = X+4*pr
        a(f'v_permlane32_swap_b32 v{b}, v{b+2}')
        a(f'v_permlane32_swap_b32 v{b+1}, v{b+3}')
        a('s_nop 1')
        a(f'buffer_store_dwordx4 {v(b,4)}, v{V_OA}, s[{S_OUT}:{S_OUT+3}], s{s_t} offen offset:{32*pr}')
    a('s_waitcnt vmcnt(0)')
    st_('end')
    if opt.get('rt'):
        a('s_cmp_eq_u32 s2, 0'); a(f's_cbranch_scc0 {N}_nodbg'); a(f's_cmp_eq_u32 s{s_w}, 0'); a(f's_cbranch_scc0 {N}_nodbg')
        make_srd(a, 56, 76, 100*MB, 1 << 20); make_srd(a, 60, 74, 0, 256)
        a(f'v_lshrrev_b32 v3, 2, v{V_L16}')
        a(f's_mov_b32 s49, {opt.get("rt_wg", 0)*1024}')
        a('buffer_load_dword v4, v3, s[56:59], s49 offen')
        a('s_waitcnt vmcnt(0)')
        a('v_cmp_gt_u32 vcc, 48, v3')
        a('s_and_saveexec_b64 s[50:51], vcc')
        a('buffer_store_dword v4, v3, s[60:63], 0 offen')
        a('s_mov_b64 exec, s[50:51]')
        a('v_cmp_gt_u32 vcc, 16, v3')
        a('s_and_saveexec_b64 s[50:51], vcc')
        a('buffer_store_dword v255, v3, s[60:63], 0 offen offset:48')
        a('s_mov_b64 exec, s[50:51]')
        a('s_waitcnt vmcnt(0)')
        a.label(f'{N}_nodbg')
    elif inline:
        st_.dump(100*MB, s_w, 253)
    else:
        st_.dump(100*MB, s_w, 240)
    if not inline:
        a.label(f'{N}_end')
        a('s_endpgm')
```

```python
from asmlib import *
from layout import *
import gen_attn2 as A
from gen_attn2 import *
from gen_proj2 import Proj, VmQueue, frag_store_groups
from gen_proj import make_srd
import gen_proj, gen_final
from gen_kv import ProjKV

class Main(Attn):
    def emit_phasec(self):
        a = self.a; N = self.name; opt = self.opt
        a('s_barrier')
        make_srd(a, 76, 100, 0, 256)
        a('s_or_b32 s32, s33, 0xe0')
        a('v_mov_b32 v41, 0'); a('v_mov_b32 v42, s32')
        a(f's_cmp_eq_u32 s{s_w}, 0'); a('s_cselect_b64 exec, 1, 0')
        a('buffer_store_byte v42, v41, s[76:79], s2 offen sc1')
        a('s_mov_b64 exec, -1')
        def poll():
            make_srd(a, 56, 100, 0, 256)
            a(f's_cmp_eq_u32 s{s_w}, 0'); a(f's_cbranch_scc0 {N}_cpolled')
            a(f'v_lshrrev_b32 v45, 2, v2'); a('v_mov_b32 v46, 0x20202020'); a('s_mov_b32 s49, 0')
            a.label(f'{N}_cpoll')
            a('buffer_load_dword v44, v45, s[56:59], 0 offen sc1')
            a('s_waitcnt vmcnt(0)')
            a('v_and_b32 v44, v46, v44'); a('v_cmp_ne_u32 vcc, v46, v44'); a('s_nop 3'); a('s_cmp_eq_u64 vcc, 0')
            a(f's_cbranch_scc1 {N}_cpolled')
            a('s_add_u32 s49, s49, 1'); a('s_cmp_ge_u32 s49, 0x20000'); a(f's_cbranch_scc1 {N}_cpolled')
            a(f's_sleep {opt.get("sleep", 8)}'); a(f's_branch {N}_cpoll')
            a.label(f'{N}_cpolled')
            a('s_barrier')
        gen_final.emit_final(a, N + '_fin', inline=True, sync=poll, stamps=self.st, **opt.get('l3', {}))

    def emit_head(self):
        a = self.a; N = self.name; opt = self.opt
        S_CK, S_WK, S_X, S_O, S_WV, S_WQ = 4, 8, 12, 16, 92, 60
        S_H, S_G, S_GW = 76, 48, 52
        a(f's_cmp_ge_u32 s2, 256')
        a(f's_cbranch_scc1 {N}_end')
        self.stamp()
        a(f's_load_dwordx2 s[34:35], s[0:1], {KA_WS}')
        a(f's_load_dwordx2 s[64:65], s[0:1], {KA_AX}')
        a(f's_load_dwordx2 s[90:91], s[0:1], {KA_CKV}')
        a(f's_load_dwordx4 s[96:99], s[0:1], {KA_WUK}')
        a(f's_load_dwordx2 s[38:39], s[0:1], {KA_GW}')
        a(f's_load_dwordx2 s[66:67], s[0:1], {KA_WQ}')
        a(f's_load_dwordx2 s[68:69], s[0:1], {KA_W1}')
        a(f's_load_dwordx2 s[86:87], s[0:1], {KA_B1}')
        a(f's_load_dwordx2 s[70:71], s[0:1], {KA_WO}')
        a(f's_load_dwordx2 s[72:73], s[0:1], {KA_W2}')
        a(f's_load_dwordx2 s[100:101], s[0:1], {KA_DBG}')
        a(f'v_lshrrev_b32 v1, 6, v0')
        a(f'v_and_b32 v2, 63, v0')
        a(f'v_lshlrev_b32 v{V_L16}, 4, v2')
        a(f'v_readfirstlane_b32 s{s_w}, v1')
        a(f's_and_b32 s{s_t0}, s2, 7')
        a(f's_lshr_b32 s{s_t1}, s2, 3')
        a(f's_lshl_b32 s{s_h}, s{s_t0}, 2')
        a(f's_and_b32 s{s_t0}, s{s_t1}, 3')
        a(f's_add_u32 s{s_h}, s{s_h}, s{s_t0}')
        a(f's_lshr_b32 s{s_i}, s{s_t1}, 2')
        a(f's_add_u32 s{s_g1}, s{s_i}, 1')
        a(f's_lshl_b32 s{s_g1}, s{s_g1}, 2')
        a(f's_lshl_b32 s36, s{s_i}, 2'); a(f's_add_u32 s36, s36, s{s_w}')
        a(f's_lshl_b32 s37, s{s_i}, 2'); a(f's_sub_u32 s37, 60, s37'); a(f's_add_u32 s37, s37, s{s_w}')
        vq = VmQueue()
        P = Proj(a, vq, s_w, 16384, 16384, ACC=64, FB=(192, 216), fbk='a', VA=8, V_L16=V_L16, VT=33, SG=40,
                 wflags=(' nt' if opt.get('nt', True) else ''), stamps=self.st, opt=opt)
        P.setup_addrs(set_l16=False)
        a('s_waitcnt lgkmcnt(0)')
        make_srd(a, S_X, 64, 0, 2*MB); make_srd(a, S_GW, 38, 0, 1024)
        a(f's_lshl_b32 s82, s2, 3'); a(f's_lshl_b32 s83, s{s_w}, 1'); a('s_add_u32 s82, s82, s83')
        a('s_lshl_b32 s83, s82, 2'); a('s_lshl_b32 s82, s82, 10')
        LB_ = 40
        a(f'buffer_load_dwordx4 v[{LB_}:{LB_+3}], v{V_L16}, s[{S_X}:{S_X+3}], s82 offen'); vq.push('ln')
        a(f'buffer_load_dwordx4 v[{LB_+4}:{LB_+7}], v{V_L16}, s[{S_X}:{S_X+3}], s82 offen offset:1024'); vq.push('ln')
        a(f'buffer_load_dwordx4 v[{LB_+16}:{LB_+19}], v{V_L16}, s[{S_GW}:{S_GW+3}], 0 offen'); vq.push('ln')
        make_srd(a, S_CK, 90, 0, 2*MB); make_srd(a, S_WK, 96, 0, 4*MB); make_srd(a, S_WV, 98, 0, 4*MB)
        initKV = [f's_lshl_b32 s{P.s_a0}, s{s_i}, 18', f's_lshl_b32 s49, s{s_w}, 16', f's_add_u32 s{P.s_a0}, s{P.s_a0}, s49',
                  f's_add_u32 s{P.s_a1}, s{P.s_a0}, 32768',
                  f's_lshl_b32 s{P.s_wo}, s{s_w}, 17', f's_lshl_b32 s49, s{s_h}, 8', f's_add_u32 s{P.s_wo}, s{P.s_wo}, s49']
        initQ = [f's_lshl_b32 s{P.s_a0}, s36, 15', f's_lshl_b32 s{P.s_a1}, s37, 15',
                 f's_lshl_b32 s{P.s_wo}, s{s_w}, 17', f's_lshl_b32 s49, s{s_h}, 8', f's_add_u32 s{P.s_wo}, s{P.s_wo}, s49']
        ps = [dict(swap=False, srdA=S_CK, srdW=S_WK, init=initKV, epi=lambda: None, acck='v'),
              dict(swap=True, srdA=S_CK, srdW=S_WV, init=initKV, epi=lambda: None, acck='a'),
              dict(swap=False, srdA=S_X, srdW=S_WQ, init=initQ, epi=lambda: None, acck='v')]
        P.prologue(ps[0])
        make_srd(a, S_WQ, 66, 0, 4*MB)
        make_srd(a, S_O, 34, WS_K, 32*MB)
        make_srd(a, S_H, 34, WS_H, 2*MB); make_srd(a, S_G, 34, WS_G, 8192)
        real_a = self.a; tmp_a = Asm(); self.a = tmp_a
        M = self.setup_attn_regs()
        self.a = real_a; M.a = real_a
        c = 0x3e0293ee
        setup = tmp_a.lines + [f'v_mov_b32 v2, {hex(c)}', f'v_mov_b32 v3, {hex(c)}'] + [f'v_accvgpr_write_b32 a{e}, 0' for e in range(64)]
        setupG = [(setup[k:k+4], None) for k in range(0, len(setup), 4)]
        perS = -(-len(setupG)//5)
        vq.wait_for(a, 'ln')
        gen_proj.R.V_L16 = V_L16
        st_save = STF.st; STF.st = ' sc1'
        gen_proj.emit_ln_compute(a, LB_, S_H, S_G, 82, 83, 64)
        for _ in range(3): vq.push('lnst')
        a('s_getreg_b32 s33, hwreg(HW_REG_XCC_ID, 0, 4)')
        a('s_or_b32 s33, s33, 0x10')
        make_srd(a, 76, 100, 0, 256)
        a(f's_cmp_eq_u32 s{s_w}, 0')
        a(f's_cbranch_scc0 {N}_noann')
        a('v_mov_b32 v41, 0'); a('v_mov_b32 v42, s33')
        a('s_mov_b64 exec, 1')
        a('buffer_store_byte v42, v41, s[76:79], s2 offen sc1')
        a('s_mov_b64 exec, -1')
        a.label(f'{N}_noann')
        a(f's_lshl_b32 s{s_t0}, s{s_h}, 6'); a(f's_lshl_b32 s{s_t1}, s{s_i}, 3'); a(f's_add_u32 s{s_t0}, s{s_t0}, s{s_t1}')
        a(f's_lshl_b32 s{s_t1}, s{s_w}, 1'); a(f's_add_u32 s{s_t0}, s{s_t0}, s{s_t1}'); a(f's_lshl_b32 s{s_t0}, s{s_t0}, 13')
        for k in range(4):
            a(f's_add_u32 s{50+k}, s{s_t0}, {k*4096}')
            a(f's_add_u32 s{96+k}, s{s_t0}, {16*MB + k*4096}')
        STF.st = opt.get('kvst', '')
        KG = frag_store_groups(P, 'K', 'v', S_O, 50, None, v_scale=2, tag='kst')
        VGs = frag_store_groups(P, 'V', 'a', S_O, 96, 40, tag='vst')
        STF.st = st_save
        nv = opt.get('vstages', 3); sigt = opt.get('sigt', nv+1)
        perK = len(KG)//8; perV = len(VGs)//nv
        KV0 = self.kv_groups('K', 6); VV0 = self.kv_groups('V', 4)
        zero = [([f'v_accvgpr_write_b32 a{64+4*k+e}, 0' for e in range(4)], None) for k in range(16)]
        srds = self.kv_srd_lines()
        dbg = Asm(); make_srd(dbg, 76, 100, 0, 256)
        idld = dbg.lines + [f's_cmp_eq_u32 s{s_w}, 0', f's_cbranch_scc0 {N}_noid',
               f'v_lshlrev_b32 v57, 1, v{V_L16}', f's_lshr_b32 s{s_t1}, s{s_h}, 2', f's_and_b32 s32, s{s_h}, 3', 's_lshl_b32 s32, s32, 3', f's_add_u32 s32, s32, s{s_t1}',
               'buffer_load_ubyte v56, v57, s[76:79], s32 offen sc1', f'{N}_noid:']
        lnsig = dbg.lines + [f's_cmp_eq_u32 s{s_w}, 0', f's_cbranch_scc0 {N}_nolnsig', 's_or_b32 s32, s33, 0x40', 'v_mov_b32 v41, 0', 'v_mov_b32 v42, s32', 's_mov_b64 exec, 1',
               f'buffer_store_byte v42, v41, s[76:79], s2 offen sc1', 's_mov_b64 exec, -1', f'{N}_nolnsig:']
        sig = [f's_cmp_eq_u32 s{s_w}, 0', f's_cbranch_scc0 {N}_nosig',
               's_waitcnt vmcnt(0)' if False else 's_nop 0',
               'v_and_b32 v56, 0x1f, v56', 'v_cmp_ne_u32 vcc, s33, v56', 's_nop 3', 's_and_b32 s32, vcc_lo, 0xff', 's_cmp_eq_u32 s32, 0',
               f's_cbranch_scc1 {N}_samexcd'] + (['s_nop 0'] if opt.get('nowb') else ['buffer_wbl2 sc1', 's_waitcnt vmcnt(0)']) + [f'{N}_samexcd:',
               's_or_b32 s32, s33, 0xc0', 'v_mov_b32 v41, 0', 'v_mov_b32 v42, s32', 's_mov_b64 exec, 1',
               f'buffer_store_byte v42, v41, s[76:79], s2 offen sc1', 's_mov_b64 exec, -1', f'{N}_nosig:']
        pollpre = [f's_cmp_eq_u32 s{s_w}, 0', f's_cbranch_scc0 {N}_nopoll0',
                   f's_lshr_b32 s{s_t1}, s{s_h}, 4', f's_and_b32 s32, s{s_h}, 3', 's_lshl_b32 s32, s32, 1', f's_add_u32 s{s_t1}, s{s_t1}, s32',
                   f's_lshr_b32 s32, s{s_h}, 2', 's_and_b32 s32, s32, 3', 's_lshl_b32 s32, s32, 3', 's_lshl_b32 s32, 0x80, s32', 's_or_b32 s32, s32, 0x40404040',
                   f'v_lshrrev_b32 v42, 2, v{V_L16}', f'v_bfe_u32 v44, v{V_L16}, 4, 3', f'v_cmp_eq_u32 vcc, s{s_t1}, v44', 'v_mov_b32 v43, 0x40404040', 'v_mov_b32 v45, s32',
                   'v_cndmask_b32 v43, v43, v45, vcc',
                   f'buffer_load_dword v41, v42, s[76:79], 0 offen sc1', f'{N}_nopoll0:']
        def pfw(srd_): return ([f'v_lshrrev_b32 v58, 5, v{V_L16}', 'v_lshlrev_b32 v58, 13, v58', f'v_bfe_u32 v59, v{V_L16}, 4, 1', 'v_lshl_add_u32 v58, v59, 7, v58',
               f's_lshl_b32 s32, s{s_w}, 4', f's_lshl_b32 s49, s{s_i}, 6', 's_add_u32 s32, s32, s49', 's_lshl_b32 s32, s32, 13',
               f's_lshl_b32 s49, s{s_h}, 8', 's_add_u32 s32, s32, s49', 's_mov_b32 exec_hi, 0',
               f'buffer_load_dword v253, v58, s[{srd_}:{srd_+3}], s32 offen', 's_mov_b64 exec, -1'], 'pf')
        def pfx(qt): return ([f'v_lshrrev_b32 v58, 7, v{V_L16}', 'v_lshlrev_b32 v58, 10, v58', f'v_bfe_u32 v59, v{V_L16}, 4, 3', 'v_lshl_add_u32 v58, v59, 7, v58',
               f's_lshl_b32 s32, s{qt}, 5', f's_and_b32 s49, s{s_h}, 3', 's_lshl_b32 s49, s49, 3', 's_add_u32 s32, s32, s49', 's_lshl_b32 s32, s32, 10',
               f'buffer_load_dword v253, v58, s[{S_X}:{S_X+3}], s32 offen'], 'pf')
        def pfc(k): return ([f'v_lshrrev_b32 v58, 7, v{V_L16}', 'v_lshlrev_b32 v58, 10, v58', f'v_bfe_u32 v59, v{V_L16}, 4, 3', 'v_lshl_add_u32 v58, v59, 7, v58',
               f's_lshl_b32 s32, s{s_i}, 8', f's_and_b32 s49, s{s_h}, 3', 's_lshl_b32 s49, s49, 6', 's_add_u32 s32, s32, s49', f's_lshl_b32 s49, s{s_w}, 4', 's_add_u32 s32, s32, s49',
               f's_add_u32 s32, s32, {8*k}', 's_lshl_b32 s32, s32, 10', f'buffer_load_dword v253, v58, s[{S_CK}:{S_CK+3}], s32 offen'], 'pf')
        def pf1():
            l = Asm(); make_srd(l, 76, 68, 0, 2048*3584)
            l(f'v_lshlrev_b32 v58, 3, v{V_L16}'); l('s_lshl_b32 s32, s2, 2'); l(f's_add_u32 s32, s32, s{s_w}'); l('s_mul_i32 s32, s32, 7168')
            l('buffer_load_dword v253, v58, s[76:79], s32 offen')
            return (l.lines, 'pf')
        pf = opt.get('pfa', 'vq')
        def xe(p, t):
            if p == 0:
                g = list(setupG[(t-1)*perS:t*perS]) if 1 <= t <= 5 else []
                if t == 0:
                    if 'k' in pf: g.append(pfw(S_WK))
                    if 'c' in pf: g += [pfc(0), pfc(1)]
                if '1' in pf and t == 6: g.append(pf1())
                if 'v' in pf and t == opt.get('pfv_t', 1): g.append(pfw(S_WV))
                return g
            if p == 1:
                g = list(KG[t*perK:(t+1)*perK])
                if 'q' in pf and t == 1: g.append(pfw(S_WQ))
                if 'x' in pf and t == 2: g.append(pfx(36))
                if 'x' in pf and t == 3: g.append(pfx(37))
                if '2' in pf and t == 5: g.append(pf1())
                return g
            if p == 2:
                g = []
                if t < nv: g += VGs[t*perV:(t+1)*perV] + ([(idld, None)] if t == 0 else [])
                if t == nv: g += zero
                if t == 6: g += [(srds, None)]
                if t == 7: g += [(pollpre, None)]
                return g
            return []
        def xl(p, t):
            if p == 0 and t == 2: return [(lnsig, None)]
            if p == 2 and t == sigt: return [(sig, None)]
            return []
        assert sigt >= nv + 1 and sigt <= 6 and 48 % nv == 0
        P.start_compute()
        self.stamp()
        P.run(ps, extra_early=xe, extra_late=xl)
        self.stamp()
        chk = ['s_waitcnt vmcnt(0)', 'v_and_b32 v41, v43, v41', 'v_cmp_ne_u32 vcc, v43, v41', 's_nop 3', 's_cmp_eq_u64 vcc, 0']
        for l in [f's_cmp_eq_u32 s{s_w}, 0', f's_cbranch_scc0 {N}_polled', f's_mov_b32 s{s_cnt}, 0', f'{N}_poll:'] + chk + \
                 [f's_cbranch_scc1 {N}_polled', f's_add_u32 s{s_cnt}, s{s_cnt}, 1', f's_cmp_ge_u32 s{s_cnt}, 0x20000', f's_cbranch_scc1 {N}_polled',
                  f's_sleep {opt.get("sleep", 8)}', f'buffer_load_dword v41, v42, s[76:79], 0 offen sc1', f's_branch {N}_poll', f'{N}_polled:']: a(l)
        a('s_barrier')
        for g in KV0 + VV0:
            for l in g[0]: a(l)
        self.stamp()
        self.q_to_frags()
        return M


class Main2(Main):
    def emit_head(self):
        a = self.a; N = self.name; opt = self.opt
        S_CK, S_WK, S_X, S_O, S_WV, S_WQ = 4, 8, 12, 16, 92, 60
        S_H, S_G, S_GW = 76, 48, 52
        a(f's_cmp_ge_u32 s2, 256')
        a(f's_cbranch_scc1 {N}_end')
        self.stamp()
        a(f's_load_dwordx2 s[90:91], s[0:1], {KA_CKV}')
        a(f's_load_dwordx4 s[96:99], s[0:1], {KA_WUK}')
        a(f's_load_dwordx2 s[34:35], s[0:1], {KA_WS}')
        a(f's_load_dwordx2 s[64:65], s[0:1], {KA_AX}')
        a(f's_load_dwordx2 s[38:39], s[0:1], {KA_GW}')
        a(f's_load_dwordx2 s[66:67], s[0:1], {KA_WQ}')
        a(f's_load_dwordx2 s[68:69], s[0:1], {KA_W1}')
        a(f's_load_dwordx2 s[86:87], s[0:1], {KA_B1}')
        a(f's_load_dwordx2 s[70:71], s[0:1], {KA_WO}')
        a(f's_load_dwordx2 s[72:73], s[0:1], {KA_W2}')
        a(f's_load_dwordx2 s[100:101], s[0:1], {KA_DBG}')
        a(f'v_lshrrev_b32 v1, 6, v0')
        a(f'v_and_b32 v2, 63, v0')
        a(f'v_lshlrev_b32 v{V_L16}, 4, v2')
        a(f'v_readfirstlane_b32 s{s_w}, v1')
        a(f's_and_b32 s{s_t0}, s2, 7')
        a(f's_lshr_b32 s{s_t1}, s2, 3')
        a(f's_lshl_b32 s{s_h}, s{s_t0}, 2')
        a(f's_and_b32 s{s_t0}, s{s_t1}, 3')
        a(f's_add_u32 s{s_h}, s{s_h}, s{s_t0}')
        a(f's_lshr_b32 s{s_i}, s{s_t1}, 2')
        a(f's_add_u32 s{s_g1}, s{s_i}, 1')
        a(f's_lshl_b32 s{s_g1}, s{s_g1}, 2')
        a(f's_lshl_b32 s36, s{s_i}, 2'); a(f's_add_u32 s36, s36, s{s_w}')
        a(f's_lshl_b32 s37, s{s_i}, 2'); a(f's_sub_u32 s37, 60, s37'); a(f's_add_u32 s37, s37, s{s_w}')
        vq = VmQueue()
        a('s_waitcnt lgkmcnt(0)')
        make_srd(a, S_CK, 90, 0, 2*MB); make_srd(a, S_WK, 96, 0, 4*MB); make_srd(a, S_WV, 98, 0, 4*MB)
        make_srd(a, S_X, 64, 0, 2*MB); make_srd(a, S_GW, 38, 0, 1024); make_srd(a, S_WQ, 66, 0, 4*MB)
        KV = ProjKV(a, vq, s_w, S_CK, S_WK, S_WV, ACCK=64, ACCV=64, VR=40, VT=33, SG=(38, 39, 64, 65, 66, 67, 90), stamps=self.st, opt=opt)
        KV.setup(s_i, s_h)
        LB_ = 232
        a(f's_lshl_b32 s82, s2, 3'); a(f's_lshl_b32 s83, s{s_w}, 1'); a('s_add_u32 s82, s82, s83')
        a('s_lshl_b32 s83, s82, 2'); a('s_lshl_b32 s82, s82, 10')
        a(f'buffer_load_dwordx4 v[{LB_}:{LB_+3}], v{V_L16}, s[{S_X}:{S_X+3}], s82 offen'); vq.push('ln')
        a(f'buffer_load_dwordx4 v[{LB_+4}:{LB_+7}], v{V_L16}, s[{S_X}:{S_X+3}], s82 offen offset:1024'); vq.push('ln')
        a(f'buffer_load_dwordx4 v[{LB_+16}:{LB_+19}], v{V_L16}, s[{S_GW}:{S_GW+3}], 0 offen'); vq.push('ln')
        rest0 = KV.prologue(opt.get('kvpro', 2))
        P = Proj(a, vq, s_w, 16384, 65536, ACC=64, FB=(192, 216), fbk='a', VA=8, V_L16=V_L16, VT=33, SG=40,
                 wflags=(' nt' if opt.get('nt', False) else ''), stamps=self.st, opt=opt)
        P.setup_addrs(set_l16=False)
        make_srd(a, S_O, 34, WS_K, 32*MB)
        make_srd(a, S_H, 34, WS_H, 2*MB); make_srd(a, S_G, 34, WS_G, 8192)
        real_a = self.a; tmp_a = Asm(); self.a = tmp_a; self.mtmp = 232
        M = self.setup_attn_regs()
        self.a = real_a; M.a = real_a
        c = 0x3e0293ee
        setup = tmp_a.lines + [f'v_mov_b32 v2, {hex(c)}', f'v_mov_b32 v3, {hex(c)}']
        setupG = [(setup[k:k+4], None) for k in range(0, len(setup), 4)]
        perS = -(-len(setupG)//6)
        vq.wait_for(a, 'ln')
        gen_proj.R.V_L16 = V_L16
        st_save = STF.st; STF.st = ' sc1'
        gen_proj.emit_ln_compute(a, LB_, S_H, S_G, 82, 83, 64)
        for _ in range(3): vq.push('lnst')
        a('s_getreg_b32 s33, hwreg(HW_REG_XCC_ID, 0, 4)')
        a('s_or_b32 s33, s33, 0x10')
        make_srd(a, 76, 100, 0, 256)
        a('v_mov_b32 v33, 0'); a('v_mov_b32 v34, s33')
        a(f's_cmp_eq_u32 s{s_w}, 0'); a('s_cselect_b64 exec, 1, 0')
        a('buffer_store_byte v34, v33, s[76:79], s2 offen sc1'); vq.push('flag')
        a('s_mov_b64 exec, -1')
        npre = 8*opt.get('kvpre2', 1)
        for g in rest0[:npre]: KV.emit_group(g)
        KV.initial = rest0[npre:]
        a(f's_lshl_b32 s{s_t0}, s{s_h}, 6'); a(f's_lshl_b32 s{s_t1}, s{s_i}, 3'); a(f's_add_u32 s{s_t0}, s{s_t0}, s{s_t1}')
        a(f's_lshl_b32 s{s_t1}, s{s_w}, 1'); a(f's_add_u32 s{s_t0}, s{s_t0}, s{s_t1}'); a(f's_lshl_b32 s{s_t0}, s{s_t0}, 13')
        for k in range(4):
            a(f's_add_u32 s{50+k}, s{s_t0}, {k*4096}')
            a(f's_add_u32 s{96+k}, s{s_t0}, {16*MB + k*4096}')
        STF.st = opt.get('kvst', '')
        KG = frag_store_groups(P, 'K', 'v', S_O, 50, None, v_scale=2, tag='kst')
        VGs = frag_store_groups(P, 'V', 'a', S_O, 96, 40, tag='vst')
        STF.st = st_save
        nv = opt.get('vstages', 3); sigt = opt.get('sigt', nv+1)
        perV = len(VGs)//nv
        KV0 = self.kv_groups('K', 6); VV0 = self.kv_groups('V', 4)
        zero = [([f'v_accvgpr_write_b32 a{4*k+e}, 0' for e in range(4)], None) for k in range(32)]
        srds = self.kv_srd_lines()
        dbg = Asm(); make_srd(dbg, 76, 100, 0, 256)
        one = lambda val, lab: [f's_cmp_eq_u32 s{s_w}, 0', f's_cbranch_scc0 {N}_{lab}']
        idld = dbg.lines + [f's_cmp_eq_u32 s{s_w}, 0', f's_cbranch_scc0 {N}_noid',
               f'v_lshlrev_b32 v57, 1, v{V_L16}', f's_lshr_b32 s{s_t1}, s{s_h}, 2', f's_and_b32 s32, s{s_h}, 3', 's_lshl_b32 s32, s32, 3', f's_add_u32 s32, s32, s{s_t1}',
               'buffer_load_ubyte v56, v57, s[76:79], s32 offen sc1', f'{N}_noid:']
        lnsig = dbg.lines + ['s_or_b32 s32, s33, 0x40', 'v_mov_b32 v58, 0', 'v_mov_b32 v59, s32', f's_cmp_eq_u32 s{s_w}, 0', 's_cselect_b64 exec, 1, 0',
               f'buffer_store_byte v59, v58, s[76:79], s2 offen sc1', 's_mov_b64 exec, -1']
        sig = [f's_cmp_eq_u32 s{s_w}, 0', f's_cbranch_scc0 {N}_nosig',
               'v_and_b32 v56, 0x1f, v56', 'v_cmp_ne_u32 vcc, s33, v56', 's_nop 3', 's_and_b32 s32, vcc_lo, 0xff', 's_cmp_eq_u32 s32, 0',
               f's_cbranch_scc1 {N}_samexcd', 'buffer_wbl2 sc1', 's_waitcnt vmcnt(0)', f'{N}_samexcd:',
               's_or_b32 s32, s33, 0xc0', 'v_mov_b32 v41, 0', 'v_mov_b32 v42, s32', 's_mov_b64 exec, 1',
               f'buffer_store_byte v42, v41, s[76:79], s2 offen sc1', 's_mov_b64 exec, -1', f'{N}_nosig:']
        pollpre = [f's_cmp_eq_u32 s{s_w}, 0', f's_cbranch_scc0 {N}_nopoll0',
                   f's_lshr_b32 s{s_t1}, s{s_h}, 4', f's_and_b32 s32, s{s_h}, 3', 's_lshl_b32 s32, s32, 1', f's_add_u32 s{s_t1}, s{s_t1}, s32',
                   f's_lshr_b32 s32, s{s_h}, 2', 's_and_b32 s32, s32, 3', 's_lshl_b32 s32, s32, 3', 's_lshl_b32 s32, 0x80, s32', 's_or_b32 s32, s32, 0x40404040',
                   f'v_lshrrev_b32 v42, 2, v{V_L16}', f'v_bfe_u32 v44, v{V_L16}, 4, 3', f'v_cmp_eq_u32 vcc, s{s_t1}, v44', 'v_mov_b32 v43, 0x40404040', 'v_mov_b32 v45, s32',
                   'v_cndmask_b32 v43, v43, v45, vcc',
                   f'buffer_load_dword v41, v42, s[76:79], 0 offen sc1', f'{N}_nopoll0:']
        initQ = [f's_lshl_b32 s{P.s_a0}, s36, 15', f's_lshl_b32 s{P.s_a1}, s37, 15',
                 f's_lshl_b32 s{P.s_wo}, s{s_w}, 17', f's_lshl_b32 s49, s{s_h}, 8', f's_add_u32 s{P.s_wo}, s{P.s_wo}, s49']
        qpass = [dict(swap=False, srdA=S_X, srdW=S_WQ, init=initQ, epi=lambda: None, acck='v')]
        Q0 = P.dma_stage(S_X, S_WQ, (0, 0), pre=initQ); Q1 = P.dma_stage(S_X, S_WQ, (0, 1)); Q2 = P.dma_stage(S_X, S_WQ, (0, 2))
        def touch(lines): return (lines, 'pf')
        pfw = [f'v_lshrrev_b32 v58, 5, v{V_L16}', 'v_lshlrev_b32 v58, 13, v58', f'v_bfe_u32 v59, v{V_L16}, 4, 1', 'v_lshl_add_u32 v58, v59, 7, v58',
               f's_and_b32 s32, s{s_w}, 1', 's_lshl_b32 s32, s32, 5', f's_lshl_b32 s49, s{s_i}, 6', 's_add_u32 s32, s32, s49', 's_lshl_b32 s32, s32, 13',
               f's_lshl_b32 s49, s{s_h}, 8', 's_add_u32 s32, s32, s49', f'buffer_load_dword v253, v58, s[{S_WQ}:{S_WQ+3}], s32 offen']
        def pfx(qt): return [f'v_lshrrev_b32 v58, 7, v{V_L16}', 'v_lshlrev_b32 v58, 10, v58', f'v_bfe_u32 v59, v{V_L16}, 4, 3', 'v_lshl_add_u32 v58, v59, 7, v58',
               f's_lshl_b32 s32, s{qt}, 5', f's_and_b32 s49, s{s_h}, 3', 's_lshl_b32 s49, s49, 3', 's_add_u32 s32, s32, s49', 's_lshl_b32 s32, s32, 10',
               f'buffer_load_dword v253, v58, s[{S_X}:{S_X+3}], s32 offen']
        def kvx(t):
            early, late = [], []
            if opt.get('pfq', True):
                if t == 7: early += [touch(pfw)]
                if t == 8: early += [touch(pfx(36))]
                if t == 9: early += [touch(pfx(37))]
            if 1 <= t <= 6: early += setupG[(t-1)*perS:t*perS]
            if t == opt.get('lnsig_t', 4): late += [(lnsig, 'flag')]
            if t == 13: late += Q0[:4]
            if t == 14: early += Q0[4:]; late += Q1[:4]
            if t == 15: early += Q1[4:]; late += Q2[:3]
            return early, late
        def handover():
            return (0, 0), P.read_addr_update(), P.kstep_reads(0, 0)
        KV.start()
        self.stamp()
        KV.run(kvx, handover)
        P.lq = list(KV.lq); P.g_pending = Q2[3:]
        self.stamp()
        a('s_nop 7')
        for g in KG: P.emit_group(g)
        self.stamp()
        def xe(p, t):
            g = []
            if t < nv: g += VGs[t*perV:(t+1)*perV] + ([(idld, None)] if t == 0 else [])
            if t == nv: g += zero[:16]
            if t == nv+1: g += zero[16:]
            if t == 6: g += [(srds, None)]
            if t == 7: g += [(pollpre, None)]
            return g
        def xl(p, t):
            return [(sig, None)] if t == sigt else []
        assert sigt >= nv + 1 and sigt <= 6 and 48 % nv == 0
        P.run(qpass, extra_early=xe, extra_late=xl)
        self.stamp()
        chk = ['s_waitcnt vmcnt(0)', 'v_and_b32 v41, v43, v41', 'v_cmp_ne_u32 vcc, v43, v41', 's_nop 3', 's_cmp_eq_u64 vcc, 0']
        for l in [f's_cmp_eq_u32 s{s_w}, 0', f's_cbranch_scc0 {N}_polled', f's_mov_b32 s{s_cnt}, 0', f'{N}_poll:'] + chk + \
                 [f's_cbranch_scc1 {N}_polled', f's_add_u32 s{s_cnt}, s{s_cnt}, 1', f's_cmp_ge_u32 s{s_cnt}, 0x20000', f's_cbranch_scc1 {N}_polled',
                  f's_sleep {opt.get("sleep", 8)}', f'buffer_load_dword v41, v42, s[76:79], 0 offen sc1', f's_branch {N}_poll', f'{N}_polled:']: a(l)
        a('s_barrier')
        for g in KV0 + VV0:
            for l in g[0]: a(l)
        self.stamp()
        self.q_to_frags()
        return M
```

```python
import sys, os
from asmlib import *
from layout import *
import gen_proj, gen_proj2, gen_attn, gen_attn2, gen_t2, gen_final, gen_main

NAME = 'gated_mix__compressed_kv_cla__mixer_token_mlp__prompt'
def build(path, **opt):
    if opt.get('v', 4) == 4: return build4(path, **opt)
    if opt.get('v', 4) == 3: return build3(path, **opt)
    if opt.get('v', 4) == 2: return build2(path, **opt)
    ref = open(f'cdna_kernels/{NAME}.s.ref').read().split('\n')
    a = Asm()
    for l in ref:
        if l.startswith('; Override launch') : break
        a(l)
    a('; @launch kernel=proj_kernel grid=(256,1,1) block=(256,1,1) lds=147456')
    a('; @launch kernel=attn_kernel grid=(256,1,1) block=(256,1,1) lds=131072')
    a('; @launch kernel=mlp1_kernel grid=(256,1,1) block=(256,1,1) lds=131072')
    a('; @launch kernel=final_kernel grid=(256,1,1) block=(256,1,1) lds=131072')
    a('.amdgcn_target "amdgcn-amd-amdhsa--gfx950"')
    kernel_header(a, 'proj_kernel'); gen_proj.emit_l1(a, 'l1', **opt.get('l1', {}))
    kernel_header(a, 'attn_kernel'); g = gen_attn.Attn(a, 'attn'); g.emit()
    kernel_header(a, 'mlp1_kernel'); gen_t2.emit_mlp1(a, 'mlp1')
    kernel_header(a, 'final_kernel'); gen_t2.emit_l3(a, 'l3', PD=opt.get('l3pd', 7), **opt.get('l3', {}))
    kernel_desc(a, 'proj_kernel', vgpr=256, accum=256)
    kernel_desc(a, 'attn_kernel', vgpr=512, accum=256)
    kernel_desc(a, 'mlp1_kernel', vgpr=256, accum=256)
    kernel_desc(a, 'final_kernel', vgpr=(384 if opt.get('l3', {}).get('agpr', True) else 256), accum=256)
    open(path, 'w').write(a.text())
def build2(path, **opt):
    STF.st = opt.get('stf', '')
    ref = open(f'cdna_kernels/{NAME}.s.ref').read().split('\n')
    a = Asm()
    for l in ref:
        if l.startswith('; Override launch') : break
        a(l)
    a('; @launch kernel=proj_kernel grid=(256,1,1) block=(256,1,1) lds=147456')
    a('; @launch kernel=attn_kernel grid=(256,1,1) block=(256,1,1) lds=163840')
    a('; @launch kernel=final_kernel grid=(256,1,1) block=(256,1,1) lds=131072')
    a('.amdgcn_target "amdgcn-amd-amdhsa--gfx950"')
    kernel_header(a, 'proj_kernel'); gen_proj2.emit_l1(a, 'l1', **opt.get('l1', {}))
    kernel_header(a, 'attn_kernel'); g = gen_attn2.Attn(a, 'attn', **opt.get('attn', {})); g.emit()
    kernel_header(a, 'final_kernel')
    if opt.get('fin', 2) == 2: gen_final.emit_final(a, 'fin', **opt.get('l3', {}))
    else: gen_t2.emit_l3(a, 'l3', PD=opt.get('l3pd', 4), **opt.get('l3', {'agpr': False}))
    kernel_desc(a, 'proj_kernel', vgpr=448, accum=256)
    kernel_desc(a, 'attn_kernel', vgpr=512, accum=256)
    kernel_desc(a, 'final_kernel', vgpr=256, accum=256)
    open(path, 'w').write(a.text())
def build3(path, **opt):
    STF.st = opt.get('stf', ' sc1')
    ref = open(f'cdna_kernels/{NAME}.s.ref').read().split('\n')
    a = Asm()
    for l in ref:
        if l.startswith('; Override launch') : break
        a(l)
    a('; @launch kernel=main_kernel grid=(256,1,1) block=(256,1,1) lds=163840')
    a('; @launch kernel=final_kernel grid=(256,1,1) block=(256,1,1) lds=131072')
    a('.amdgcn_target "amdgcn-amd-amdhsa--gfx950"')
    ao = dict(opt.get('attn', {})); ao.setdefault('stagestamps', False); ao.setdefault('nt', False); ao.setdefault('vstages', 2); ao.setdefault('pfa', 'vq1')
    kernel_header(a, 'main_kernel'); g = (gen_main.Main2 if opt.get('kv1', False) else gen_main.Main)(a, 'attn', **ao); g.emit()
    kernel_header(a, 'final_kernel'); gen_final.emit_final(a, 'fin', **opt.get('l3', {}))
    kernel_desc(a, 'main_kernel', vgpr=512, accum=256)
    kernel_desc(a, 'final_kernel', vgpr=256, accum=256)
    open(path, 'w').write(a.text())
def build4(path, **opt):
    STF.st = opt.get('stf', ' sc1')
    ref = open(f'cdna_kernels/{NAME}.s.ref').read().split('\n')
    a = Asm()
    for l in ref:
        if l.startswith('; Override launch') : break
        a(l)
    a('; @launch grid=(256,1,1) block=(256,1,1) lds=163840')
    a('.amdgcn_target "amdgcn-amd-amdhsa--gfx950"')
    ao = dict(opt.get('attn', {})); ao.setdefault('stagestamps', False); ao.setdefault('nt', False); ao.setdefault('vstages', 2); ao.setdefault('pfa', 'vq1')
    ao['fusefin'] = True; ao['l3'] = opt.get('l3', {})
    K = NAME + '_kernel'
    kernel_header(a, K); g = (gen_main.Main2 if opt.get('kv1', False) else gen_main.Main)(a, 'attn', **ao); g.emit()
    kernel_desc(a, K, vgpr=512, accum=256)
    open(path, 'w').write(a.text())
if __name__ == '__main__':
    opt = eval(sys.argv[2]) if len(sys.argv) > 2 else {}
    build(sys.argv[1] if len(sys.argv) > 1 else f'cdna_kernels/{NAME}.s', **opt)
```

```python
from asmlib import *
from layout import *
from gen_proj2 import VmQueue, v, ar
from gen_proj import make_srd

MF = 'v_mfma_f32_32x32x16_bf16'
NY, NO = 7, 16
NS = NY + NO
SLOT = 32768

def emit_final(a, N='fin', NSL=4, inline=False, sync=None, stamps=None, **opt):
    S_WO, S_W2, S_CTX, S_U, S_G, S_B2, S_OUT, S_P, S_D = 4, 8, 12, 16, 24, 28, 32, 36, 56
    s_w, s_sb, s_mb, s_p = 20, 21, 22, 23
    s_sl, s_fr = 40, 41
    s_fill, s_rd, s_w4k, s_t, s_t1, s_t2, s_tile = 42, 43, 44, 45, 46, 47, 48
    ACCY, ACCO = 64, 128; FB = [192, 212]
    VL = 1; V_L16 = 2; T = 32
    V_TB = 8
    V_TA = 16
    V_LA = 21
    V_WO = 24; V_W2 = 28
    V_G = 40; V_B2 = 41; V_OA = 42; V_1G = 43
    st_ = stamps if inline else (RTStamps if opt.get('rt') else Stamps)(a, opt.get('diag'))
    if not inline:
        a('s_cmp_ge_u32 s2, 256')
        a(f's_cbranch_scc1 {N}_end')
    a(f's_load_dwordx2 s[64:65], s[0:1], {KA_WO}')
    a(f's_load_dwordx4 s[68:71], s[0:1], {KA_W2}')
    a(f's_load_dwordx4 s[72:75], s[0:1], {KA_OUT}')
    a(f's_load_dwordx2 s[76:77], s[0:1], {KA_WS}')
    if inline:
        a(f'v_mbcnt_lo_u32_b32 v{VL}, -1, 0'); a(f'v_mbcnt_hi_u32_b32 v{VL}, -1, v{VL}')
        a(f's_and_b32 s{s_t}, s2, 7')
    else:
        a('v_lshrrev_b32 v3, 6, v0')
        a(f'v_and_b32 v{VL}, 63, v0')
        a(f's_and_b32 s{s_t}, s2, 7')
        a(f'v_readfirstlane_b32 s{s_w}, v3')
    a(f's_lshr_b32 s{s_t1}, s2, 3')
    a(f's_lshr_b32 s{s_p}, s{s_t}, 1')
    a(f's_and_b32 s{s_t}, s{s_t}, 1'); a(f's_lshl_b32 s{s_t}, s{s_t}, 3'); a(f's_lshr_b32 s{s_t2}, s{s_t1}, 2'); a(f's_add_u32 s{s_sb}, s{s_t}, s{s_t2}')
    a(f's_and_b32 s{s_mb}, s{s_t1}, 3')
    a(f's_lshl_b32 s{s_tile}, s{s_sb}, 2'); a(f's_add_u32 s{s_tile}, s{s_tile}, s{s_mb}')
    st_('start')
    a(f'v_lshlrev_b32 v{V_L16}, 4, v{VL}')
    a(f's_lshl_b32 s{s_w4k}, s{s_w}, 12')
    a(f's_mov_b32 s{s_fill}, 0'); a(f's_mov_b32 s{s_rd}, 0')
    a(f'v_lshrrev_b32 v{T}, 4, v{VL}')
    a(f'v_bfe_u32 v{T+1}, v{VL}, 2, 2')
    a(f'v_xor_b32 v{T+1}, v{T+1}, v{T}')
    a(f'v_lshlrev_b32 v{T+1}, 6, v{T+1}')
    a(f'v_and_b32 v{T+2}, 3, v{VL}')
    a(f'v_lshl_add_u32 v{T+1}, v{T+2}, 4, v{T+1}')
    a(f'v_lshl_add_u32 v{T+3}, v{T}, 12, v{T+1}')
    a(f'v_lshl_add_u32 v{T+4}, v{T}, 10, v{T+1}')
    for j in range(4):
        a(f'v_add_u32 v{V_W2+j}, {j*(4*4096-1024)}, v{T+3}')
        a(f'v_add_u32 v{V_WO+j}, {j*(4*1024-1024)}, v{T+4}')
    a(f'v_lshrrev_b32 v{T}, 5, v{VL}')
    a(f'v_bfe_u32 v{T+1}, v{VL}, 2, 2')
    a(f'v_lshl_add_u32 v{T+2}, v{T}, 2, v{T+1}')
    a(f'v_lshlrev_b32 v{T+2}, 8, v{T+2}')
    a(f'v_bfe_u32 v{T+3}, v{VL}, 4, 1')
    a(f'v_lshl_add_u32 v{T+2}, v{T+3}, 5, v{T+2}')
    a(f'v_and_b32 v{T+3}, 3, v{VL}')
    a(f'v_lshl_add_u32 v{T+2}, v{T+3}, 3, v{T+2}')
    for tl in range(4):
        a(f'v_xor_b32 v{T+3}, {tl}, v{T+1}')
        a(f'v_lshl_add_u32 v{V_TB+tl}, v{T+3}, 6, v{T+2}')
    a(f'v_xor_b32 v{T+3}, s{s_w}, v{T+1}')
    a(f'v_lshl_add_u32 v{V_TB+4}, v{T+3}, 6, v{T+2}')
    a(f'v_and_b32 v{T+4}, 31, v{VL}')
    a(f'v_lshlrev_b32 v{T+5}, 2, v{T+4}')
    a(f'v_lshlrev_b32 v{T+6}, 1, v{T+4}')
    a(f'v_lshlrev_b32 v{V_OA}, 10, v{T+4}')
    a(f'v_lshl_add_u32 v{V_OA}, v{T}, 4, v{V_OA}')
    a('s_waitcnt lgkmcnt(0)')
    make_srd(a, S_WO, 64, 0, 4*MB); make_srd(a, S_W2, 68, 0, 1792*4096); make_srd(a, S_B2, 70, 0, 4096)
    make_srd(a, S_OUT, 72, 0, 2*MB)
    make_srd(a, S_CTX, 76, WS_CTX, 16*MB); make_srd(a, S_U, 76, WS_U, 16*112*1024); make_srd(a, S_G, 76, WS_G, 8192)
    make_srd(a, S_P, 76, WS_PART, 16*MB)
    if sync: sync(s_sb, s_mb, s_p, s_tile)
    vq = VmQueue()
    a(f's_lshl_b32 s{s_t}, s{s_sb}, 2'); a(f's_add_u32 s{s_t}, s{s_t}, s{s_w}')
    a(f's_lshl_b32 s{s_t1}, s{s_t}, 7'); a(f's_lshl_b32 s{s_t2}, s{s_t}, 6')
    a(f'buffer_load_dword v{V_G}, v{T+5}, s[{S_G}:{S_G+3}], s{s_t1} offen'); vq.push('g')
    a(f'buffer_load_ushort v{V_B2}, v{T+6}, s[{S_B2}:{S_B2+3}], s{s_t2} offen'); vq.push('g')

    if opt.get('tlb', True):
        a(f'v_mov_b32 v3, 0')
        a(f's_lshl_b32 s{s_t}, s{s_tile}, 17'); a(f's_mul_i32 s{s_t1}, s{s_p}, {32768+8192}'); a(f's_add_u32 s{s_t}, s{s_t}, s{s_t1}')
        a(f'buffer_load_dword v6, v3, s[{S_P}:{S_P+3}], s{s_t} offen sc1'); vq.push('g')
        a(f's_lshl_b32 s{s_t}, s{s_sb}, 17')
        a(f'buffer_load_dword v6, v3, s[{S_OUT}:{S_OUT+3}], s{s_t} offen sc1'); vq.push('g')

    def part(t): return ('Y', t) if t < NY else ('O', t-NY)
    def switch(t):
        if t == 0:
            return [f's_mul_i32 s{s_sl}, s{s_p}, {448*4096}', f's_lshl_b32 s{s_t}, s{s_w}, 16', f's_add_u32 s{s_sl}, s{s_sl}, s{s_t}',
                    f's_lshl_b32 s{s_t}, s{s_sb}, 8', f's_add_u32 s{s_sl}, s{s_sl}, s{s_t}',
                    f's_lshl_b32 s{s_t}, s{s_mb}, 2', f's_add_u32 s{s_t}, s{s_t}, s{s_w}', f's_mul_i32 s{s_fr}, s{s_t}, {112*1024}',
                    f's_mul_i32 s{s_t}, s{s_p}, {28*1024}', f's_add_u32 s{s_fr}, s{s_fr}, s{s_t}']
        if t == NY:
            return [f's_lshl_b32 s{s_sl}, s{s_p}, 20', f's_lshl_b32 s{s_t}, s{s_w}, 14', f's_add_u32 s{s_sl}, s{s_sl}, s{s_t}',
                    f's_lshl_b32 s{s_t}, s{s_mb}, 8', f's_add_u32 s{s_sl}, s{s_sl}, s{s_t}',
                    f's_lshl_b32 s{s_t}, s{s_sb}, 2', f's_add_u32 s{s_t}, s{s_t}, s{s_w}', f's_lshl_b32 s{s_fr}, s{s_t}, 18',
                    f's_lshl_b32 s{s_t}, s{s_p}, 16', f's_add_u32 s{s_fr}, s{s_fr}, s{s_t}']
        return []
    def adv(s): return [f's_add_u32 s{s}, s{s}, {SLOT}', f's_cmp_ge_u32 s{s}, {NSL*SLOT}', f's_cselect_b32 s{s}, 0, s{s}']
    def loads(t):
        p, _ = part(t)
        srdS, vo, step = (S_W2, V_W2, 64*4096) if p == 'Y' else (S_WO, V_WO, 64*1024)
        srdF = S_U if p == 'Y' else S_CTX
        g = []
        for j in range(4):
            l = []
            if j == 0: l += switch(t) + [f's_add_u32 s{s_t2}, s{s_fill}, s{s_w4k}', f's_mov_b32 m0, s{s_t2}', 's_nop 0']
            l.append(f'buffer_load_dwordx4 v{vo+j}, s[{srdS}:{srdS+3}], s{s_sl} offen' + (f' offset:{j*1024}' if j else '') + ' lds')
            if j == 3: l.append(f's_add_u32 s{s_sl}, s{s_sl}, {step}')
            g.append((l, t))
        for j in range(4):
            l = []
            if j == 0: l += [f's_add_u32 m0, s{s_t2}, 16384', 's_nop 0']
            l.append(f'buffer_load_dwordx4 v{V_L16}, s[{srdF}:{srdF+3}], s{s_fr} offen' + (f' offset:{j*1024}' if j else '') + ' lds')
            if j == 3: l += [f's_add_u32 s{s_fr}, s{s_fr}, 4096'] + adv(s_fill)
            g.append((l, t))
        return g
    def emit_g(g):
        for l in g[0]: a(l)
        vq.push(g[1])
    def addr_update():
        l = [f'v_add_u32 v{V_TA+k}, s{s_rd}, v{V_TB+k}' for k in range(5)]
        l.append(f'v_add_u32 v{V_LA}, s{s_rd}, v{V_L16}')
        return l + adv(s_rd)
    def reads(t, ks, buf):
        p, _ = part(t); F = FB[buf]; l = []
        if p == 'O':
            l.append(f's_nop 0' if False else f'ds_read_b128 {v(F+16,4)}, v{V_LA+1} offset:{ks*1024}')
            for mt in range(4):
                l.append(f'ds_read_b64_tr_b16 {v(F+4*mt,2)}, v{V_TA+mt} offset:{ks*4096}')
                l.append(f'ds_read_b64_tr_b16 {v(F+4*mt+2,2)}, v{V_TA+mt} offset:{ks*4096+2048}')
        else:
            l.append(f'ds_read_b64_tr_b16 {v(F+16,2)}, v{V_TA+4} offset:{ks*4096}')
            l.append(f'ds_read_b64_tr_b16 {v(F+18,2)}, v{V_TA+4} offset:{ks*4096+2048}')
            for mt in range(4):
                l.append(f'ds_read_b128 {v(F+4*mt,4)}, v{V_LA} offset:{16384+mt*4096+ks*1024}')
        return l
    def addr_update2():
        return [f's_add_u32 s{s_t1}, s{s_w4k}, 16384', f's_add_u32 s{s_t1}, s{s_t1}, s{s_rd}', f'v_add_u32 v{V_LA+1}, s{s_t1}, v{V_L16}']
    def mfmas(t, ks, buf):
        p, tt = part(t); F = FB[buf]; first = tt == 0 and ks == 0
        A0 = ACCY if p == 'Y' else ACCO
        return [f'{MF} {v(A0+16*mt,16)}, {v(F+4*mt,4)}, {v(F+16,4)}, ' + ('0' if first else v(A0+16*mt,16)) for mt in range(4)]

    for t in range(NSL-1):
        for g in loads(t): emit_g(g)
    pend = loads(NSL-1) if False else []
    vq.wait_for(a, 0)
    a('s_barrier')
    for l in addr_update2() + addr_update() + reads(0, 0, 0): a(l)
    if not opt.get('rt'): st_('go')
    for t in range(NS):
        tn = t + NSL - 1
        gs = loads(tn) if tn < NS else []
        if not opt.get('rt'): st_(f's{t}')
        for ks in range(4):
            buf = ks & 1
            a('s_waitcnt lgkmcnt(0)')
            pre = []
            if ks == 3 and t+1 < NS:
                vq.wait_for(a, t+1)
                a('s_barrier')
                pre = addr_update2() + addr_update()
            mf = mfmas(t, ks, buf)
            if ks < 3: rd = reads(t, ks+1, buf ^ 1)
            elif t+1 < NS: rd = reads(t+1, 0, buf ^ 1)
            else: rd = []
            n = len(rd); per = -(-n // 3)
            for k, m in enumerate(mf):
                a(m)
                if k == 0:
                    for l in pre: a(l)
                for l in rd[per*k:per*(k+1)]: a(l)
                if ks < 3 and gs and ((ks*4+k) % 3 != 2):
                    emit_g(gs.pop(0))
        assert not gs
    st_('loopend')
    a(f'v_sub_f32 v{V_1G}, 1.0, v{V_G}')
    a(f's_lshl_b32 s{s_t}, s{s_tile}, 17')
    a(f's_lshl_b32 s{s_t1}, s{s_p}, 13'); a(f's_lshl_b32 s{s_t2}, s{s_w}, 11'); a(f's_add_u32 s{s_t1}, s{s_t1}, s{s_t2}'); a(f's_add_u32 s{s_t1}, s{s_t1}, s{s_t}')
    a('s_nop 4')
    OWN = 192
    for mt in range(4):
        o = ACCO+16*mt; y = ACCY+16*mt
        for e in range(16): a(f'v_mul_f32 v{o+e}, v{o+e}, v{V_G}')
        for e in range(16): a(f'v_fmac_f32 v{o+e}, v{y+e}, v{V_1G}')
        a(f's_cmp_eq_u32 s{s_p}, {mt}')
        a(f's_cbranch_scc1 {N}_own{mt}')
        a(f's_add_u32 s{s_t2}, s{s_t1}, {mt*32768}')
        for k in range(8): a(f'v_cvt_pk_bf16_f32 v{o+k}, v{o+2*k}, v{o+2*k+1}')
        for q in range(2):
            a(f'buffer_store_dwordx4 {v(o+4*q,4)}, v{V_L16}, s[{S_P}:{S_P+3}], s{s_t2} offen offset:{q*1024} sc1')
        a(f's_branch {N}_next{mt}')
        a.label(f'{N}_own{mt}')
        for e in range(16): a(f'v_mov_b32 v{OWN+e}, v{o+e}')
        a.label(f'{N}_next{mt}')
    if not opt.get('rt'): st_('published')
    a(f's_lshl_b32 s{s_t}, s{s_tile}, 17'); a(f's_lshl_b32 s{s_t1}, s{s_p}, 15'); a(f's_add_u32 s{s_t}, s{s_t}, s{s_t1}')
    a(f's_lshl_b32 s{s_t1}, s{s_w}, 11'); a(f's_add_u32 s{s_t}, s{s_t}, s{s_t1}')
    for k in range(1, 4):
        a(f's_add_u32 s{s_t1}, s{s_p}, {k}'); a(f's_and_b32 s{s_t1}, s{s_t1}, 3'); a(f's_lshl_b32 s{s_t1}, s{s_t1}, 13'); a(f's_add_u32 s{50+k}, s{s_t1}, s{s_t}')
    a('s_mov_b32 s54, 0')
    a.label(f'{N}_poll')
    for k in range(1, 4):
        for q in range(2):
            a(f'buffer_load_dwordx4 {v(ACCY+8*k+4*q,4)}, v{V_L16}, s[{S_P}:{S_P+3}], s{50+k} offen offset:{q*1024} sc1')
    a('s_add_u32 s54, s54, 1')
    a('s_waitcnt vmcnt(0)')
    R0 = ACCY+8
    a(f'v_max3_u32 v{T}, v{R0}, v{R0+1}, v{R0+2}')
    for k in range(3, 23, 2): a(f'v_max3_u32 v{T}, v{T}, v{R0+k}, v{R0+k+1}')
    a(f'v_max_u32 v{T}, v{T}, v{R0+23}')
    a(f'v_cmp_eq_u32 vcc, -1, v{T}')
    a('s_cmp_ge_u32 s54, 0x20000')
    a(f's_cbranch_scc1 {N}_poll_end')
    a(f's_cbranch_vccnz {N}_poll')
    a.label(f'{N}_poll_end')
    st_('gathered')
    a(f'v_lshlrev_b32 v{V_B2}, 16, v{V_B2}')
    a(f'v_mul_f32 v{V_B2}, v{V_B2}, v{V_1G}')
    D = OWN
    for e in range(16): a(f'v_add_f32 v{D+e}, v{D+e}, v{V_B2}')
    for k in range(1, 4):
        for q in range(8):
            r = ACCY+8*k+q
            a(f'v_lshlrev_b32 v{T}, 16, v{r}'); a(f'v_and_b32 v{T+1}, 0xffff0000, v{r}')
            a(f'v_add_f32 v{D+2*q}, v{D+2*q}, v{T}'); a(f'v_add_f32 v{D+2*q+1}, v{D+2*q+1}, v{T+1}')
    X = ACCO
    for jj in range(4):
        a(f'v_cvt_pk_bf16_f32 v{X+2*jj}, v{D+4*jj}, v{D+4*jj+1}')
        a(f'v_cvt_pk_bf16_f32 v{X+2*jj+1}, v{D+4*jj+2}, v{D+4*jj+3}')
    a(f's_lshl_b32 s{s_t}, s{s_sb}, 17'); a(f's_lshl_b32 s{s_t1}, s{s_w}, 15'); a(f's_add_u32 s{s_t}, s{s_t}, s{s_t1}')
    a(f's_lshl_b32 s{s_t1}, s{s_mb}, 8'); a(f's_add_u32 s{s_t}, s{s_t}, s{s_t1}')
    a(f's_lshl_b32 s{s_t1}, s{s_p}, 6'); a(f's_add_u32 s{s_t}, s{s_t}, s{s_t1}')
    for pr in range(2):
        b = X+4*pr
        a(f'v_permlane32_swap_b32 v{b}, v{b+2}')
        a(f'v_permlane32_swap_b32 v{b+1}, v{b+3}')
        a('s_nop 1')
        a(f'buffer_store_dwordx4 {v(b,4)}, v{V_OA}, s[{S_OUT}:{S_OUT+3}], s{s_t} offen offset:{32*pr}')
    a('s_waitcnt vmcnt(0)')
    st_('end')
    if opt.get('rt'):
        a('s_cmp_eq_u32 s2, 0'); a(f's_cbranch_scc0 {N}_nodbg'); a(f's_cmp_eq_u32 s{s_w}, 0'); a(f's_cbranch_scc0 {N}_nodbg')
        make_srd(a, 56, 76, 100*MB, 1 << 20); make_srd(a, 60, 74, 0, 256)
        a(f'v_lshrrev_b32 v3, 2, v{V_L16}')
        a(f's_mov_b32 s49, {opt.get("rt_wg", 0)*1024}')
        a('buffer_load_dword v4, v3, s[56:59], s49 offen')
        a(f'v_lshlrev_b32 v6, 4, v{V_L16}')
        for k in range(16):
            a(f's_mov_b32 s49, {k*16384}')
            a(f'buffer_load_dword v{64+k}, v6, s[56:59], s49 offen offset:252')
            a(f'buffer_load_dword v{80+k}, v6, s[56:59], s49 offen offset:248')
        a('s_waitcnt vmcnt(0)')
        for k in range(1, 16):
            a(f'v_max_u32 v64, v64, v{64+k}'); a(f'v_min_u32 v80, v80, v{80+k}')
        a('s_nop 1')
        a('v_readlane_b32 s50, v64, 0'); a('v_readlane_b32 s51, v80, 0')
        for ln in range(1, 64):
            a(f'v_readlane_b32 s52, v64, {ln}'); a(f'v_readlane_b32 s53, v80, {ln}'); a('s_max_u32 s50, s50, s52'); a('s_min_u32 s51, s51, s53')
        a('v_writelane_b32 v4, s50, 11'); a('v_writelane_b32 v4, s51, 10')
        a('v_cmp_gt_u32 vcc, 48, v3')
        a('s_and_saveexec_b64 s[50:51], vcc')
        a('buffer_store_dword v4, v3, s[60:63], 0 offen')
        a('s_mov_b64 exec, s[50:51]')
        a('v_cmp_gt_u32 vcc, 16, v3')
        a('s_and_saveexec_b64 s[50:51], vcc')
        a('buffer_store_dword v255, v3, s[60:63], 0 offen offset:48')
        a('s_mov_b64 exec, s[50:51]')
        a('s_waitcnt vmcnt(0)')
        a.label(f'{N}_nodbg')
    elif inline:
        st_.dump(100*MB, s_w, 253)
    else:
        st_.dump(100*MB, s_w, 240)
    if not inline:
        a.label(f'{N}_end')
        a('s_endpgm')
```

```python
from asmlib import *
from layout import *
from gen_proj2 import Proj, VmQueue
from gen_proj import make_srd
import gen_t2
from gen_mlp import Mlp1

OA, OB = 0, 64
QA, QB = 0, 32
PFB = (128, 152)
FR = 192
NFR = 16
S = [[64, 80], [96, 112]]
P = [[128, 136], [144, 152]]
CA, CB = 160, 176
PT = 192
PS = [200, 201]
LA, LB = 202, 203
V_L16 = 204; V_KA = 205; V_VA = 206
V_RELA = 207; V_RELB = 208; V_NEG = 209
V_T = 210
V_DA, V_DB = 226, 227
V_AA, V_AB = 228, 229
V_MASK = 230; V_VBASE = 231; V_REL = [232, 233]
V_ST = 236
V_MA, V_MB, V_MR = 214, 216, 218
MACC = 128
S_MW, S_MH = 12, 60
s_ma, s_mb, s_ml = 85, 88, 89
S_K, S_V, S_Q, S_C = 4, 8, 12, 16
s_w, s_h, s_i, s_g1, s_cnt, s_ks, s_vs, s_t0, s_thr = 20, 21, 22, 23, 24, 25, 26, 27, 28
s_t1, s_step = 29, 32
S_RET = 30
S_M = 40
D = 8
THR = 0x4e800000

def v(b, n=1): return f'v{b}' if n == 1 else f'v[{b}:{b+n-1}]'
def ar(b, n=1): return f'a{b}' if n == 1 else f'a[{b}:{b+n-1}]'
MF = 'v_mfma_f32_32x32x16_bf16'

class Iter:
    def __init__(self, qk, sm, pv, next_qk, par, czero=False):
        self.qk, self.sm, self.pv, self.next_qk, self.par, self.czero = qk, sm, pv, next_qk, par, czero

def nfr(mode): return {None: 0, 1: 8, 2: 16}[mode]

class Attn:
    def __init__(self, a, name, diag=False, **opt):
        self.a = a; self.name = name; self.diag = diag; self.opt = opt; self.st = (RTStamps if opt.get('rt') else Stamps)(a, diag, vreg=254, sreg=30)
        global D
        D = opt.get('D', 8); self.mlp = opt.get('mlp', True)
        self.phase = 0
        self.slow = []
        self.uid = 0
        self.vm = {}

    def simulate(self):
        res = {}
        self.vmm = {}
        for i in range(8):
            G1 = 4*(i+1)
            def mode(g): return None if (g < 0 or g > 33) else (1 if g < G1 else 2)
            def first(g):
                return g if g <= G1 else G1 + 2*(g-G1)
            def r(g): return 1 if g < G1 else 2
            issued = []
            def issue(kind, b0, nb):
                for b in range(b0, b0+nb):
                    issued.extend([(kind, b)]*2)
            kd = 0; vd = 0
            issue('K', 0, 6); issue('V', 0, 4)
            kd, vd = 6, 4
            kfree = 0; vfree = 0
            def need(n):
                req = []
                if mode(n+3): req += [('K', b) for b in range(first(n+3), first(n+3)+r(n+3))]
                if mode(n+1): req += [('V', b) for b in range(first(n+1), first(n+1)+r(n+1))]
                last = -1
                for k, x in enumerate(issued):
                    if x in req: last = k
                for x in req: assert x in issued, (i, n, x)
                return len(issued) - 1 - last if last >= 0 else None
            def pos(n):
                if n <= -1: return ('pro', n)
                if n <= G1-5:
                    if n >= G1-6 : return ('p1peel', n & 1)
                    return ('p1loop', n & 1)
                if n <= G1-1: return ('trans', n-G1)
                if n <= 31:
                    if n >= 30: return ('p2peel', n & 1)
                    return ('p2loop', n & 1)
                return ('epi', n)
            for n in range(-3, 34):
                if n == -1 and self.mlp: issued.extend([('M', 0)]*4 + [('M', 1)]*4)
                if n >= -2:
                    if mode(n) and n <= 31:
                        b0 = vd; nb = r(n)
                        assert b0 + nb - 8 <= (first(n-1) if n-1 >= 0 else 0), (i, n, b0, nb)
                        issue('V', b0, nb); vd += nb
                p = pos(n)
                if self.mlp and 0 <= n <= 31:
                    idx = [k for k, x in enumerate(issued) if x == ('M', n)]
                    if idx:
                        Nm = len(issued) - 1 - idx[-1]
                        self.vmm[p] = min(self.vmm.get(p, 99), Nm)
                    else: assert n >= 32 or i == 7 or True
                    if p[0] != 'p2peel': issued.extend([('M', n+2)]*4)
                N = need(n)
                if N is not None:
                    res[p] = min(res.get(p, 99), N)
                if mode(n+3) or (n <= 31 and n >= -3):
                    nb = r(n+3)
                    if n <= 30 or True:
                        assert kd + nb - 8 <= first(n+3), (i, n, kd, nb)
                        issue('K', kd, nb); kd += nb
                if n == G1-1: issued.extend([('S', 0)]*8)
        self.vm = res
        return res

    def dma_group(self, kind, nb, split=False):
        srd_, so = (S_K, s_ks) if kind == 'K' else (S_V, s_vs)
        g = []
        if kind == 'K':
            pre = [f's_and_b32 m0, s{so}, 0xffff']
        else:
            pre = [f's_and_b32 s{s_t0}, s{so}, 0xffff', f's_or_b32 m0, s{s_t0}, 0x10000']
        n = 2*nb
        if split: g.append(pre)
        for k in range(n):
            l = []
            if k == 0 and not split: l += pre + ['s_nop 0']
            off = f' offset:{k*1024}' if k else ''
            l.append(f'buffer_load_dwordx4 v{V_L16}, s[{srd_}:{srd_+3}], s{so} offen{off} lds')
            if k == n-1: l.append(f's_add_u32 s{so}, s{so}, {nb*8192}')
            g.append(l)
        return g

    def mlp_dma_groups(self, par):
        g = []
        for vo, srd_, so, step, off in ((V_MA, S_MW, s_ma, 16*3584, 0), (V_MB, S_MH, s_mb, 16*1024, 2048)):
            g.append([f's_add_u32 m0, s{s_ml}, {par*4096+off}'])
            g.append([f'buffer_load_dwordx4 v{vo}, s[{srd_}:{srd_+3}], s{so} offen lds'])
            g.append([f'buffer_load_dwordx4 v{vo+1}, s[{srd_}:{srd_+3}], s{so} offen offset:1024 lds', f's_add_u32 s{so}, s{so}, {step}'])
        return g

    def sm_ops(self, it):
        sm = it.sm; pr = it.par ^ 1
        ops = []
        masked = sm.endswith('m')
        init = sm == 'init'
        mode = '1' if init else sm[0]
        for b in range(2):
            Sb = S[pr][b]; Pb = P[pr][b]
            domask = masked and (mode == '2' or b == 0)
            blk = []
            if domask:
                def cmp(e): return (4, f'v_cmp_ge_i32 s[{S_M+2*(e%8)}:{S_M+2*(e%8)+1}], v{V_REL[b]}, {8*(e>>2)+(e&3)}')
                def cnd(e): return (4, f'v_cndmask_b32 v{Sb+e}, v{V_NEG}, v{Sb+e}, s[{S_M+2*(e%8)}:{S_M+2*(e%8)+1}]')
                blk += [cmp(0), cmp(1), cmp(2), cmp(3), cnd(0)]
            for e in range(16):
                if domask:
                    if e+4 < 16: blk.append(cmp(e+4))
                    if e+1 < 16: blk.append(cnd(e+1))
                if init:
                    if e == 0: blk.append((4, f'v_sub_f32 v{Sb}, v{Sb}, v{V_DA if b == 0 else V_DB}'))
                    if e+1 < 16: blk.append((4, f'v_sub_f32 v{Sb+e+1}, v{Sb+e+1}, v{V_DA if b == 0 else V_DB}'))
                blk.append((8, f'v_exp_f32 v{PT+(e%8)}, v{Sb+e}'))
                if e >= 2 or True:
                    k = e-1
                    if k == 1: blk.append((4, f'v_add_f32 v{PS[b]}, v{PT+0}, v{PT+1}'))
                    elif k > 1: blk.append((4, f'v_add_f32 v{PS[b]}, v{PS[b]}, v{PT+(k%8)}'))
                    if k >= 1 and k % 2 == 1:
                        blk.append((4, f'v_cvt_pk_bf16_f32 v{Pb+(k>>1)}, v{PT+((k-1)%8)}, v{PT+(k%8)}'))
            blk.append((4, f'v_add_f32 v{PS[b]}, v{PS[b]}, v{PT+(15%8)}'))
            blk.append((4, f'v_cvt_pk_bf16_f32 v{Pb+7}, v{PT+(14%8)}, v{PT+(15%8)}'))
            ops += blk
        if not init and not self.opt.get('nocheck'):
            ops.append((4, f'v_max_f32 v{V_T}, v{PS[0]}, v{PS[1]}'))
            ops.append((4, f'v_cmp_lt_f32 vcc, s{s_thr}, v{V_T}'))
        return ops

    def rel_setup(self, it):
        return []

    def emit_iter(self, it, pos, extra_pre=None, name='', extra_post=None):
        a = self.a
        par = it.par
        ph = self.phase
        mf = []
        reads = []
        fidx = 0
        def fr(k): return FR + 4*((ph + k) % NFR)
        Sw = S[par]; Pr = P[par]
        if it.qk == 1:
            for j in range(8):
                A = ar(fr(fidx+j), 4)
                for b, Q, C in ((0, QA, CA), (1, QB, CB)):
                    c = ('0' if it.czero else v(C, 16)) if j == 0 else v(Sw[b], 16)
                    mf.append((f'{MF} {v(Sw[b],16)}, {A}, {v(Q+4*j,4)}, {c}', fidx+j))
                reads.append((2*j, f'ds_read_b128 {A}, v{V_KA} offset:{j*1024}', fidx+j))
            fidx += 8
        elif it.qk == 2:
            for f in range(16):
                b, j = f >> 3, f & 7
                A = ar(fr(fidx+f), 4)
                c = ('0' if it.czero else v(CB, 16)) if j == 0 else v(Sw[b], 16)
                mf.append((f'{MF} {v(Sw[b],16)}, {A}, {v(QB+4*j,4)}, {c}', fidx+f))
                reads.append((f, f'ds_read_b128 {A}, v{V_KA} offset:{f*1024}', fidx+f))
            fidx += 16
        mlp = self.mlp and getattr(it, 'mlp', False)
        m0 = len(mf)
        if mlp:
            for ft in range(2):
                for dt in range(2):
                    acc = ar(MACC+16*(2*ft+dt), 16)
                    mf.append((f'{MF} {acc}, {v(V_ST+4*ft,4)}, {v(V_ST+8+4*dt,4)}, {acc}', 'm7' if (ft, dt) == (0, 0) else None))
        s0 = len(mf)
        if it.pv == 1:
            for f in range(8):
                t, db = f >> 2, f & 3
                A = ar(fr(fidx+f), 4)
                for b, O in ((0, OA), (1, OB)):
                    mf.append((f'{MF} {ar(O+16*db,16)}, {A}, {v(Pr[b]+4*t,4)}, {ar(O+16*db,16)}', fidx+f))
                reads.append((s0+2*f, f'ds_read_b128 {A}, v{V_VA} offset:{f*1024}', fidx+f))
            fidx += 8
        elif it.pv == 2:
            for f in range(16):
                b, t, db = f >> 3, (f >> 2) & 1, f & 3
                A = ar(fr(fidx+f), 4)
                mf.append((f'{MF} {ar(OB+16*db,16)}, {A}, {v(Pr[b]+4*t,4)}, {ar(OB+16*db,16)}', fidx+f))
                reads.append((s0+f, f'ds_read_b128 {A}, v{V_VA} offset:{f*1024}', fidx+f))
            fidx += 16
        ns = len(mf)
        nown = fidx
        lead_in = [r for r in reads if it.qk and r[0] < D and r[2] < nfr(it.qk)]
        own = [r for r in reads if r not in lead_in]
        lead_out = []
        if it.next_qk:
            n = nfr(it.next_qk)
            for j in range(n):
                fu = 2*j if it.next_qk == 1 else j
                if fu < D:
                    A = ar(FR + 4*((ph + nown + j) % NFR), 4)
                    lead_out.append((ns + fu, f'ds_read_b128 {A}, v{V_KA} offset:{j*1024}', nown+j))
        bslot = max(ns - D, 0)
        slots = [[] for _ in range(ns+1)]
        pre = []
        order = [r[2] for r in lead_in]
        def place_read(slot, r):
            (pre if slot < 0 else slots[slot]).append(('ds', r[1], r[2]))
        for r in own:
            place_read(r[0]-D if r[0]-D >= 0 else -1, r)
        if mlp:
            base = par*4096
            rd = []
            for op in range(2):
                for tl in range(2):
                    r = V_ST + 8*op + 4*tl
                    rd.append(f'ds_read_b64_tr_b16 {v(r,2)}, v{V_MR+tl} offset:{base+op*2048}')
                    rd.append(f'ds_read_b64_tr_b16 {v(r+2,2)}, v{V_MR+tl} offset:{base+op*2048+512}')
            slots[m0-8].append(('x', f's_waitcnt vmcnt({self.vmm[pos]})'))
            for k, t_ in enumerate(rd): slots[m0-8+k//2].append(('ds', t_, f'm{k}'))
        win = []
        has_bar = pos is not None and pos in self.vm
        if has_bar:
            if not self.opt.get('novm'): win.append(('x', f's_waitcnt vmcnt({0 if pos == ("epi", 32) else self.vm[pos]})'))
            if not self.opt.get('nobar'): win.append(('x', 's_barrier'))
        if it.qk:
            win.append(('x', f'v_add_u32 v{V_KA}, {8192*(1 if it.qk==1 else 2)}, v{V_KA}'))
            win.append(('x', f'v_and_b32 v{V_KA}, 0xffff, v{V_KA}'))
        if it.pv:
            win.append(('x', f'v_add_u32 v{V_VA}, {8192*(1 if it.pv==1 else 2)}, v{V_VA}'))
            win.append(('x', f'v_and_or_b32 v{V_VA}, v{V_VA}, v{V_MASK}, v{V_VBASE}'))
        for r in own:
            assert r[0]-D < bslot or ns <= D, (r, bslot)
        vg = self.dma_group('V', 1 if it.pv == 1 else 2, split=True) if (it.pv and not getattr(it, 'nov', False)) else []
        kg = self.dma_group('K', 1 if it.next_qk == 1 else 2, split=True) if (it.next_qk or getattr(it, 'forcek', False)) else []
        if self.opt.get('nodma') and pos and pos[0] != 'pro': vg = []; kg = []
        mg = []
        if mlp and getattr(it, 'mlp_dma', True): mg = [(m0+1+k, g) for k, g in enumerate(self.mlp_dma_groups(par))]
        if getattr(it, 'mlp_first', False):
            gs = self.mlp_dma_groups(0) + self.mlp_dma_groups(1)
            gs = [g + ['s_nop 0'] if 'm0' in g[0] else g for g in gs]
            mg = [(k*7//len(gs), g) for k, g in enumerate(gs)]
        sm = self.sm_ops(it) if it.sm else []
        if self.opt.get('nosm'): sm = []
        if self.opt.get('noexp'): sm = [(c, t) for c, t in sm if 'exp' not in t]
        if self.opt.get('noadd'): sm = [(c, t) for c, t in sm if 'v_add_f32' not in t]
        tot = sum(c for c, _ in sm)
        fixed = [0.0]*ns
        for k in range(ns):
            fixed[k] += 4*len(slots[k])
        for k, grp in enumerate(vg):
            sl = min(ns-1, k*(1 if len(vg) > 3 else 2))
            slots[sl].append(('dma', grp)); fixed[sl] += 4*len(grp)
        for sl, grp in mg:
            slots[sl].append(('dma', grp)); fixed[sl] += 4*len(grp)
        slots[bslot] = win + slots[bslot]; fixed[bslot] += 4*len(win)
        for r in lead_out:
            sl = min(ns-1, r[0]-D); slots[sl].append(('ds', r[1], r[2])); fixed[sl] += 4
        for k, grp in enumerate(kg):
            sl = min(ns-1, bslot + k*(1 if len(kg) > 3 else 2) + (1 if k else 0))
            slots[sl].append(('dma', grp)); fixed[sl] += 4*len(grp)
        xf = list(getattr(it, 'fill', [])); xg = list(getattr(it, 'fill_groups', []))
        if xf or xg:
            nsl = ns
            half = max(1, int(nsl*0.55))
            for k, x in enumerate(xf): slots[min(half-1, k*half//len(xf))].append(x)
            for k, g in enumerate(xg): slots[min(nsl-1, half + k*(nsl-half)//len(xg))].append(('dmag', g))
        total = tot + sum(fixed)
        smslots = [[] for _ in range(ns)]
        if sm:
            k = 0; cum = 0.0; target_end = ns - self.opt.get('tail', 1.6)
            acc = 0.0
            for sl in range(ns):
                acc += fixed[sl]
                lim = total * (sl+1) / target_end
                while k < len(sm) and (acc + sm[k][0]*0.5 <= lim or sl == ns-1):
                    smslots[sl].append(sm[k]); acc += sm[k][0]; k += 1
        if extra_pre:
            for l in extra_pre: a(l)
        q = list(order)
        def emit_fill(x):
            if x[0] == 'ds':
                a(x[1]); q.append(x[2])
            elif x[0] == 'dma':
                for l in x[1]: a(l)
            elif x[0] == 'dmag':
                for l in x[1][0]: a(l)
                it.vq.push(x[1][1])
            else:
                a(x[1])
        for x in pre: emit_fill(x)
        waited = -1
        for k, (txt, f) in enumerate(mf):
            if f is not None and f in q:
                idx = q.index(f)
                ahead = self.opt.get('wahead', 1)
                idx2 = min(idx + ahead, len(q)-1) if (k % 2 == 0 or ahead > 1) else idx
                idx2 = max(idx, min(idx2, len(q)-1-self.opt.get('wmin', 0)))
                nleft = len(q) - 1 - idx2
                a(f's_waitcnt lgkmcnt({nleft})')
                q = q[idx2+1:]
            a(txt)
            fl = slots[k]
            for x in fl:
                if x[0] in ('x', 'ds'): emit_fill(x)
            for c, t in smslots[k]: a(t)
            for x in fl:
                if x[0] in ('dma', 'dmag'): emit_fill(x)
        self.phase = (ph + nown) % NFR
        for l in (extra_post or []): a(l)
        if it.sm and it.sm != 'init' and not self.opt.get('nocheck'):
            self.uid += 1
            u = self.uid
            a(f's_cbranch_vccnz {self.name}_slow{u}')
            a.label(f'{self.name}_join{u}')
            self.l_update(it.sm)
            self.slow.append((u, it))
        elif it.sm == 'init':
            a(f'v_mov_b32 v{LA}, v{PS[0]}')
            a(f'v_mov_b32 v{LB}, v{PS[1]}')

    def l_update(self, sm):
        a = self.a
        if sm[0] == '1' or sm == 'init':
            a(f'v_add_f32 v{LA}, v{LA}, v{PS[0]}')
            a(f'v_add_f32 v{LB}, v{LB}, v{PS[1]}')
        else:
            a(f'v_add_f32 v{LB}, v{LB}, v{PS[0]}')
            a(f'v_add_f32 v{LB}, v{LB}, v{PS[1]}')

    def rowmax(self, dst, blocks):
        a = self.a
        regs = [b+e for b in blocks for e in range(16)]
        a(f'v_max3_f32 v{dst}, v{regs[0]}, v{regs[1]}, v{regs[2]}')
        k = 3
        while k+1 < len(regs):
            a(f'v_max3_f32 v{dst}, v{dst}, v{regs[k]}, v{regs[k+1]}'); k += 2
        if k < len(regs): a(f'v_max_f32 v{dst}, v{dst}, v{regs[k]}')
        a(f'v_mov_b32 v{V_T+1}, v{dst}')
        a('s_nop 1')
        a(f'v_permlane32_swap_b32 v{V_T+1}, v{dst}')
        a('s_nop 1')
        a(f'v_max_f32 v{dst}, v{dst}, v{V_T+1}')

    def plain_sm(self, pr):
        a = self.a
        for b in range(2):
            for e in range(0, 16, 2):
                a(f'v_exp_f32 v{PT}, v{S[pr][b]+e}')
                a(f'v_exp_f32 v{PT+1}, v{S[pr][b]+e+1}')
                a('s_nop 0')
                a(f'v_cvt_pk_bf16_f32 v{P[pr][b]+(e>>1)}, v{PT}, v{PT+1}')
                if e == 0:
                    a(f'v_add_f32 v{PS[b]}, v{PT}, v{PT+1}')
                else:
                    a(f'v_add_f32 v{PS[b]}, v{PS[b]}, v{PT}')
                    a(f'v_add_f32 v{PS[b]}, v{PS[b]}, v{PT+1}')

    def sub_delta(self, pr, mode):
        a = self.a
        for b in range(2):
            dl = V_DA if (mode == 1 and b == 0) else V_DB
            for e in range(16):
                a(f'v_sub_f32 v{S[pr][b]+e}, v{S[pr][b]+e}, v{dl}')

    def emit_slow(self, u, it):
        a = self.a
        pr = it.par ^ 1
        mode = 1 if it.sm[0] == '1' else 2
        a.label(f'{self.name}_slow{u}')
        a('s_nop 15')
        a('s_nop 7')
        if mode == 1:
            self.rowmax(V_DA, [S[pr][0]])
            self.rowmax(V_DB, [S[pr][1]])
            a(f'v_max_f32 v{V_DA}, 0, v{V_DA}')
        else:
            self.rowmax(V_DB, [S[pr][0], S[pr][1]])
            a(f'v_mov_b32 v{V_DA}, 0')
        a(f'v_max_f32 v{V_DB}, 0, v{V_DB}')
        a(f's_call_b64 s[{S_RET}:{S_RET+1}], {self.name}_rescale')
        self.sub_delta(pr, mode)
        if it.qk: self.sub_delta(it.par, it.qk)
        self.plain_sm(pr)
        a(f's_branch {self.name}_join{u}')

    def emit_rescale(self):
        a = self.a
        a.label(f'{self.name}_rescale')
        a(f'v_exp_f32 v{V_AA}, -v{V_DA}')
        a(f'v_exp_f32 v{V_AB}, -v{V_DB}')
        a('s_nop 0')
        for O, al in ((OA, V_AA), (OB, V_AB)):
            for e in range(0, 64, 4):
                for k in range(4): a(f'v_accvgpr_read_b32 v{V_T+k}, a{O+e+k}')
                for k in range(4): a(f'v_mul_f32 v{V_T+k}, v{V_T+k}, v{al}')
                for k in range(4): a(f'v_accvgpr_write_b32 a{O+e+k}, v{V_T+k}')
        a(f'v_mul_f32 v{LA}, v{LA}, v{V_AA}')
        a(f'v_mul_f32 v{LB}, v{LB}, v{V_AB}')
        for e in range(16):
            a(f'v_sub_f32 v{CA+e}, v{CA+e}, v{V_DA}')
            a(f'v_sub_f32 v{CB+e}, v{CB+e}, v{V_DB}')
        a('s_nop 1')
        a(f's_setpc_b64 s[{S_RET}:{S_RET+1}]')

    def mask_inplace(self, pr, b):
        a = self.a
        for e0 in range(0, 16, 8):
            for e in range(e0, e0+8):
                a(f'v_cmp_ge_i32 s[{S_M+2*(e%8)}:{S_M+2*(e%8)+1}], v{V_REL[b]}, {8*(e>>2)+(e&3)}')
            a('s_nop 1')
            for e in range(e0, e0+8):
                a(f'v_cndmask_b32 v{S[pr][b]+e}, v{V_NEG}, v{S[pr][b]+e}, s[{S_M+2*(e%8)}:{S_M+2*(e%8)+1}]')

    def emit_init(self):
        a = self.a
        a(f'v_mov_b32 v{V_REL[0]}, v{V_RELA}')
        a('s_nop 12')
        self.mask_inplace(0, 0)
        self.rowmax(V_DA, [S[0][0]])
        self.rowmax(V_DB, [S[0][1]])
        for e in range(16):
            a(f'v_sub_f32 v{CA+e}, 0, v{V_DA}')
            a(f'v_sub_f32 v{CB+e}, 0, v{V_DB}')
        a('s_nop 1')

    def epilogue_tile(self, O, L, qt_sgpr, vq=None):
        a = self.a
        a(f'v_mov_b32 v{V_T+1}, v{L}')
        a('s_nop 1')
        a(f'v_permlane32_swap_b32 v{V_T+1}, v{L}')
        a('s_nop 1')
        a(f'v_add_f32 v{L}, v{L}, v{V_T+1}')
        a(f'v_rcp_f32 v{V_T+2}, v{L}')
        a('s_nop 0')
        a(f'v_mov_b32 v{V_T+3}, v{V_T+2}')
        inv = V_T+2
        k = 0
        for db in range(4):
            for t in range(2):
                tmp = V_ST + 8*(k % 2)
                for e in range(8): a(f'v_accvgpr_read_b32 v{tmp+e}, a{O+16*db+8*t+e}')
                for e in range(0, 8, 2): a(f'v_pk_mul_f32 v[{tmp+e}:{tmp+e+1}], v[{tmp+e}:{tmp+e+1}], v[{inv}:{inv+1}]')
                for e in range(0, 8, 2): a(f'v_cvt_pk_bf16_f32 v{tmp+(e>>1)}, v{tmp+e}, v{tmp+e+1}')
                j = 2*db+t
                off = j*1024
                so = qt_sgpr if off < 4096 else qt_sgpr+1
                a(f'buffer_store_dwordx4 v[{tmp}:{tmp+3}], v{V_L16}, s[{S_C}:{S_C+3}], s{so} offen offset:{off % 4096}{STF.st}')
                if vq: vq.push('ctx')
                k += 1

    def stamp(self, same=False):
        self.st()
    def dump_stamps(self):
        self.st.dump(100*MB, s_w, 253)

    def emit(self):
        self.simulate()
        M = self.emit_head()
        self.emit_body(M)

    def kv_srd_lines(self):
        a = Asm()
        a(f's_lshl_b32 s{s_t0}, s{s_h}, 19')
        a(f's_lshl_b32 s{s_t1}, s{s_i}, 15')
        a(f's_sub_u32 s{s_t1}, 0x80000, s{s_t1}')
        for S_, base in ((S_K, WS_K), (S_V, WS_V)):
            a(f's_add_u32 s{S_}, s34, {base}')
            a(f's_addc_u32 s{S_+1}, s35, 0')
            a(f's_add_u32 s{S_}, s{S_}, s{s_t0}')
            a(f's_addc_u32 s{S_+1}, s{S_+1}, 0')
            a(f's_and_b32 s{S_+1}, s{S_+1}, 0xffff')
            a(f's_mov_b32 s{S_+2}, s{s_t1}')
            a(f's_mov_b32 s{S_+3}, 0x20000')
        make_srd(a, S_C, 34, WS_CTX, 16*MB)
        for qt, d in ((36, 56), (37, 58)):
            a(f's_lshl_b32 s{s_t0}, s{qt}, 5')
            a(f's_add_u32 s{s_t0}, s{s_t0}, s{s_h}')
            a(f's_lshl_b32 s{d}, s{s_t0}, 13')
            a(f's_add_u32 s{d+1}, s{d}, 4096')
        return a.lines

    def kv_groups(self, kind, nb):
        G = []
        for b in range(nb):
            for grp in self.dma_group(kind, 1): G.append((grp, 'kv'))
        return G

    def q_to_frags(self):
        self.q_to_frags_cvt(); self.q_to_frags_srd()

    def q_to_frags_cvt(self):
        a = self.a
        a('s_nop 7')
        for st, Q in ((0, QA), (1, QB)):
            for dt in range(4):
                A = 64 + 16*(4*st+dt)
                for t in range(2):
                    for k in range(4):
                        a(f'v_cvt_pk_bf16_f32 v{Q+4*(2*dt+t)+k}, v{A+8*t+2*k}, v{A+8*t+2*k+1}')

    def q_to_frags_srd(self):
        a = self.a
        if self.mlp:
            make_srd(a, S_MW, 68, 0, 2048*3584); make_srd(a, S_MH, 34, WS_H, 2*MB)
            a(f's_cmp_eq_u32 s{s_i}, 7')
            a(f's_cselect_b32 s{S_MW+2}, 0, s{S_MW+2}')
            a(f's_cselect_b32 s{S_MH+2}, 0, s{S_MH+2}')

    def setup_attn_regs(self):
        a = self.a; opt = self.opt
        a(f's_lshl_b32 s{s_ks}, s{s_w}, 11')
        a(f's_mov_b32 s{s_vs}, s{s_ks}')
        a(f's_mov_b32 s{s_thr}, {THR}')
        a(f'v_mov_b32 v{V_NEG}, 0xf149f2ca')
        a(f'v_mov_b32 v{V_MASK}, 0xffff')
        a(f'v_mov_b32 v{V_VBASE}, 0x10000')
        a(f'v_mov_b32 v{V_KA}, v{V_L16}')
        a(f'v_add_u32 v{V_VA}, 0x10000, v{V_L16}')
        a(f'v_and_b32 v3, 31, v2')
        a(f'v_lshrrev_b32 v4, 5, v2')
        a(f'v_lshlrev_b32 v4, 2, v4')
        a(f'v_sub_u32 v3, v3, v4')
        a(f's_lshl_b32 s{s_t0}, s36, 5')
        a(f'v_add_u32 v{V_RELA}, s{s_t0}, v3')
        a(f's_lshl_b32 s{s_t0}, s37, 5')
        a(f'v_add_u32 v{V_RELB}, s{s_t0}, v3')
        M = Mlp1(a); M.ids()
        if self.mlp:
            T = 33
            a(f's_lshl_b32 s{s_ml}, s{s_w}, 13'); a(f's_add_u32 s{s_ml}, s{s_ml}, 131072')
            gen_t2.lane_setup(a, 5, T)
            for t in range(2):
                X = T+5; dst = V_MR+t
                a(f'v_mul_u32_u24 v{X}, 8, v{T}'); a(f'v_add_u32 v{X}, v{X}, v{T+1}'); a(f'v_lshlrev_b32 v{X}, 7, v{X}')
                a(f'v_xor_b32 v{dst}, {t}, v{T+4}'); a(f'v_lshl_add_u32 v{X}, v{dst}, 6, v{X}')
                a(f'v_lshl_add_u32 v{X}, v{T+2}, 5, v{X}'); a(f'v_lshl_add_u32 v{X}, v{T+3}, 3, v{X}')
                a(f'v_add_u32 v{dst}, s{s_ml}, v{X}')
            for dst, stride in ((V_MA, 3584), (V_MB, 1024)):
                mt = getattr(self, 'mtmp', 48)
                gen_t2.dma_voffs(a, mt, 5, T, stride, s_t1)
                a(f'v_mov_b32 v{dst}, v{mt}'); a(f'v_mov_b32 v{dst+1}, v{mt+1}')
            a(f's_mul_i32 s{s_ma}, s{s_w}, {512*3584}'); a(f's_lshl_b32 s{s_t1}, s{M.s_fb}, 7'); a(f's_add_u32 s{s_ma}, s{s_ma}, s{s_t1}')
            a(f's_lshl_b32 s{s_mb}, s{s_w}, 19'); a(f's_lshl_b32 s{s_t1}, s{M.s_db}, 7'); a(f's_add_u32 s{s_mb}, s{s_mb}, s{s_t1}')
        a(f'v_lshlrev_b32 v252, 3, v{V_L16}')
        a(f's_sub_u32 s{s_t0}, s2, 32'); a(f's_lshl_b32 s{s_t0}, s{s_t0}, 2'); a(f's_add_u32 s{s_t0}, s{s_t0}, s{s_w}')
        a(f's_lshl_b32 s74, s{s_t0}, 13')
        a(f's_mul_i32 s75, s{s_t0}, 4736')
        return M

    def emit_head(self):
        a = self.a; N = self.name; opt = self.opt
        vm = self.vm
        S_X, S_WQ = 12, 60
        a(f's_cmp_ge_u32 s2, 256')
        a(f's_cbranch_scc1 {N}_end')
        self.stamp()
        a(f's_load_dwordx2 s[34:35], s[0:1], {KA_WS}')
        a(f's_load_dwordx2 s[64:65], s[0:1], {KA_AX}')
        a(f's_load_dwordx2 s[66:67], s[0:1], {KA_WQ}')
        a(f's_load_dwordx2 s[68:69], s[0:1], {KA_W1}')
        a(f's_load_dwordx2 s[86:87], s[0:1], {KA_B1}')
        a(f's_load_dwordx2 s[70:71], s[0:1], {KA_WO}')
        a(f's_load_dwordx2 s[72:73], s[0:1], {KA_W2}')
        a(f'v_lshrrev_b32 v1, 6, v0')
        a(f'v_and_b32 v2, 63, v0')
        a(f'v_lshlrev_b32 v{V_L16}, 4, v2')
        a(f'v_readfirstlane_b32 s{s_w}, v1')
        a(f's_and_b32 s{s_t0}, s2, 7')
        a(f's_lshr_b32 s{s_t1}, s2, 3')
        a(f's_lshl_b32 s{s_h}, s{s_t0}, 2')
        a(f's_and_b32 s{s_t0}, s{s_t1}, 3')
        a(f's_add_u32 s{s_h}, s{s_h}, s{s_t0}')
        a(f's_lshr_b32 s{s_i}, s{s_t1}, 2')
        a(f's_add_u32 s{s_g1}, s{s_i}, 1')
        a(f's_lshl_b32 s{s_g1}, s{s_g1}, 2')
        a(f's_lshl_b32 s36, s{s_i}, 2')
        a(f's_add_u32 s36, s36, s{s_w}')
        a(f's_lshl_b32 s37, s{s_i}, 2')
        a(f's_sub_u32 s37, 60, s37')
        a(f's_add_u32 s37, s37, s{s_w}')
        vq = VmQueue()
        P = Proj(a, vq, s_w, 16384, 65536, ACC=64, FB=PFB, fbk='a', VA=8, V_L16=V_L16, VT=33, SG=40, wflags=(' nt' if opt.get('nt', True) else ''))
        P.setup_addrs(set_l16=False)
        a('s_waitcnt lgkmcnt(0)')
        make_srd(a, S_X, 64, 0, 2*MB); make_srd(a, S_WQ, 66, 0, 4*MB)
        init = [f's_lshl_b32 s{P.s_a0}, s36, 15', f's_lshl_b32 s{P.s_a1}, s37, 15',
                f's_lshl_b32 s{P.s_wo}, s{s_w}, 17', f's_lshl_b32 s{s_t0}, s{s_h}, 8', f's_add_u32 s{P.s_wo}, s{P.s_wo}, s{s_t0}']
        qpass = [dict(swap=False, srdA=S_X, srdW=S_WQ, init=init, epi=lambda: None, acck='v')]
        P.prologue(qpass[0])
        for l in self.kv_srd_lines(): a(l)
        M = self.setup_attn_regs()
        for e in range(128): a(f'v_accvgpr_write_b32 a{e}, 0')
        P.start_compute()
        self.stamp()
        KG = self.kv_groups('K', 6); VG = self.kv_groups('V', 4)
        def xl(p, t): return KG[:6] if t == 5 else (VG[:2] if t == 6 else [])
        def xe(p, t): return KG[6:] if t == 6 else (VG[2:] if t == 7 else [])
        P.run(qpass, extra_early=xe, extra_late=xl)
        self.stamp()
        self.q_to_frags()
        return M

    def emit_body(self, M):
        a = self.a; N = self.name; opt = self.opt
        vm = self.vm
        a(f's_waitcnt vmcnt({vm[("pro",-3)]})')
        a('s_barrier')
        for grp in self.dma_group('K', 1):
            for l in grp: a(l)
        for j in range(D//2):
            a(f'ds_read_b128 {ar(FR+4*j,4)}, v{V_KA} offset:{j*1024}')
        it = Iter(1, None, None, 1, 0, czero=True)
        if self.mlp: it.fill = [('x', f'v_accvgpr_write_b32 a{MACC+e}, 0') for e in range(64)]
        self.emit_iter(it, ('pro', -2))
        self.emit_init()
        self.stamp()
        it = Iter(1, 'init', None, 1, 1); it.mlp_first = self.mlp
        self.emit_iter(it, ('pro', -1))
        self.stamp()
        def MI(*args, dma=True):
            it = Iter(*args); it.mlp = True; it.mlp_dma = dma
            return it
        a(f's_cmp_eq_u32 s{s_i}, 0')
        a(f's_cbranch_scc1 {N}_trans')
        a(f's_sub_u32 s{s_cnt}, s{s_g1}, 6')
        a(f's_lshr_b32 s{s_cnt}, s{s_cnt}, 1')
        a('.p2align 6')
        a.label(f'{N}_p1loop')
        self.emit_iter(MI(1, '1', 1, 1, 0), ('p1loop', 0))
        self.emit_iter(MI(1, '1', 1, 1, 1), ('p1loop', 1))
        a(f's_sub_u32 s{s_cnt}, s{s_cnt}, 1')
        a(f's_cmp_lg_u32 s{s_cnt}, 0')
        a(f's_cbranch_scc1 {N}_p1loop')
        def pf(ptr, nb, so):
            if not opt.get('pf', True): return []
            l = Asm(); make_srd(l, 76, ptr, 0, nb); l(f'buffer_load_dword v253, v252, s[76:79], s{so} offen')
            return l.lines
        self.emit_iter(MI(1, '1', 1, 1, 0), ('p1peel', 0))
        def relA(k):
            return [f's_sub_u32 s{s_t1}, s{s_g1}, {k}', f's_lshl_b32 s{s_t1}, s{s_t1}, 5', f'v_subrev_u32 v{V_REL[0]}, s{s_t1}, v{V_RELA}']
        self.emit_iter(MI(1, '1m', 1, 1, 1), ('p1peel', 1), extra_pre=relA(4), extra_post=pf(72, 1792*4096, 74))
        for l in pf(70, 4*MB, 75): a(l)
        a.label(f'{N}_trans')
        self.stamp()
        self.emit_iter(MI(1, '1m', 1, 1, 0), ('trans', -4), extra_pre=relA(3))
        sw = [f's_lshl_b32 s{s_t0}, s{s_w}, 11']
        self.emit_iter(MI(1, '1m', 1, 2, 1), ('trans', -3), extra_pre=relA(2) + sw + [f's_add_u32 s{s_ks}, s{s_ks}, s{s_t0}'])
        self.emit_iter(MI(2, '1m', 1, 2, 0), ('trans', -2), extra_pre=relA(1))
        def relB(expr_lines):
            return expr_lines + [f'v_subrev_u32 v{V_REL[0]}, s{s_t1}, v{V_RELB}', f'v_subrev_u32 v{V_REL[1]}, 32, v{V_REL[0]}']
        self.emit_iter(MI(2, '2m', 1, 2, 1), ('trans', -1), extra_pre=relB([f's_lshl_b32 s{s_t1}, s{s_g1}, 5']))
        self.stamp()
        a('s_nop 12')
        self.epilogue_tile(OA, LA, 56)
        a(f's_lshl_b32 s{s_t0}, s{s_w}, 11')
        a(f's_add_u32 s{s_vs}, s{s_vs}, s{s_t0}')
        a(f's_cmp_eq_u32 s{s_i}, 7')
        a(f's_cbranch_scc1 {N}_epi')
        a(f's_sub_u32 s{s_cnt}, 30, s{s_g1}')
        a(f's_lshr_b32 s{s_cnt}, s{s_cnt}, 1')
        a('.p2align 6')
        a.label(f'{N}_p2loop')
        self.emit_iter(MI(2, '2', 2, 2, 0), ('p2loop', 0))
        self.emit_iter(MI(2, '2', 2, 2, 1), ('p2loop', 1))
        a(f's_sub_u32 s{s_cnt}, s{s_cnt}, 1')
        a(f's_cmp_lg_u32 s{s_cnt}, 0')
        a(f's_cbranch_scc1 {N}_p2loop')
        self.emit_iter(MI(2, '2', 2, 2, 0, dma=False), ('p2peel', 0), extra_post=(M.l2_prefetch(234) if opt.get('pf2', False) else None))
        relB32 = [f's_sub_u32 s{s_t1}, 64, s{s_g1}', f's_lshl_b32 s{s_t1}, s{s_t1}, 5']
        self.emit_iter(MI(2, '2m', 2, 2, 1, dma=False), ('p2peel', 1), extra_pre=relB(relB32))
        a.label(f'{N}_epi')
        self.stamp()
        relB33 = [f's_sub_u32 s{s_t1}, 66, s{s_g1}', f's_lshl_b32 s{s_t1}, s{s_t1}, 5']
        it = Iter(None, '2m', 2, None, 0); it.nov = True
        a('s_waitcnt lgkmcnt(0)')
        self.emit_iter(it, ('epi', 32), extra_pre=relB(relB33))
        it = Iter(None, None, 2, None, 1); it.nov = True
        a('s_nop 1')
        self.emit_iter(it, None)
        self.stamp()
        a(f's_cmp_eq_u32 s{s_i}, 7')
        a(f's_cbranch_scc1 {N}_nomlp')
        vq2 = VmQueue()
        M.finish(vq2, lambda: self.epilogue_tile(OB, LB, 58, vq2), self.stamp)
        self.stamp()
        if opt.get('fusefin'):
            a(f's_branch {N}_phasec')
        else:
            self.dump_stamps()
            a('s_endpgm')
        a.label(f'{N}_nomlp')
        if opt.get('wbl2', True):
            a(f's_cmp_eq_u32 s{s_w}, 0'); a(f's_cbranch_scc0 {N}_nowb'); a('buffer_wbl2 sc1'); a.label(f'{N}_nowb')
        a('s_nop 15')
        self.epilogue_tile(OB, LB, 58)
        make_srd(a, 76, 34, WS_PART, 8*MB)
        a(f's_sub_u32 s{s_t0}, s2, 224'); a(f's_lshl_b32 s{s_t0}, s{s_t0}, 2'); a(f's_add_u32 s{s_t0}, s{s_t0}, s{s_w}'); a(f's_lshl_b32 s{s_t0}, s{s_t0}, 16')
        for e in range(4): a(f'v_mov_b32 v{V_T+4+e}, -1')
        a(f's_mov_b32 s{s_cnt}, 16')
        a.label(f'{N}_fill')
        for q in range(4):
            a(f'buffer_store_dwordx4 v[{V_T+4}:{V_T+7}], v{V_L16}, s[76:79], s{s_t0} offen offset:{q*1024}' + (' sc1' if (opt.get('fusefin') or opt.get('fillsc1', True)) else ''))
        a('s_waitcnt vmcnt(40)')
        a(f's_add_u32 s{s_t0}, s{s_t0}, 4096')
        a(f's_sub_u32 s{s_cnt}, s{s_cnt}, 1')
        a(f's_cmp_lg_u32 s{s_cnt}, 0')
        a(f's_cbranch_scc1 {N}_fill')
        a('s_waitcnt vmcnt(0)')
        self.stamp()
        if opt.get('fusefin'):
            a.label(f'{N}_phasec')
            self.emit_phasec()
        else:
            self.dump_stamps()
        a.label(f'{N}_end')
        a('s_endpgm')
        for u, it in self.slow: self.emit_slow(u, it)
        self.emit_rescale()
```

```python
from asmlib import *
from layout import *
import gen_attn2 as A
from gen_attn2 import *
from gen_proj2 import Proj, VmQueue, frag_store_groups
from gen_proj import make_srd
import gen_proj, gen_final
from gen_kv import ProjKV

class Main(Attn):
    def emit_phasec(self):
        a = self.a; N = self.name; opt = self.opt
        a('s_barrier')
        make_srd(a, 76, 100, 0, 256)
        a('s_or_b32 s32, s33, 0xe0')
        a('v_mov_b32 v41, 0'); a('v_mov_b32 v42, s32')
        a(f's_cmp_eq_u32 s{s_w}, 0'); a('s_cselect_b64 exec, 1, 0')
        a('buffer_store_byte v42, v41, s[76:79], s2 offen sc1')
        a('s_mov_b64 exec, -1')
        def poll():
            make_srd(a, 56, 100, 0, 256)
            a(f's_cmp_eq_u32 s{s_w}, 0'); a(f's_cbranch_scc0 {N}_cpolled')
            a(f'v_lshrrev_b32 v45, 2, v2'); a('v_mov_b32 v46, 0x20202020'); a('s_mov_b32 s49, 0')
            a.label(f'{N}_cpoll')
            a('buffer_load_dword v44, v45, s[56:59], 0 offen sc1')
            a('s_waitcnt vmcnt(0)')
            a('v_and_b32 v44, v46, v44'); a('v_cmp_ne_u32 vcc, v46, v44'); a('s_nop 3'); a('s_cmp_eq_u64 vcc, 0')
            a(f's_cbranch_scc1 {N}_cpolled')
            a('s_add_u32 s49, s49, 1'); a('s_cmp_ge_u32 s49, 0x20000'); a(f's_cbranch_scc1 {N}_cpolled')
            a(f's_sleep {opt.get("sleep", 8)}'); a(f's_branch {N}_cpoll')
            a.label(f'{N}_cpolled')
            a('s_barrier')
        gen_final.emit_final(a, N + '_fin', inline=True, sync=poll, stamps=self.st, **opt.get('l3', {}))

    def emit_head(self):
        a = self.a; N = self.name; opt = self.opt
        S_CK, S_WK, S_X, S_O, S_WV, S_WQ = 4, 8, 12, 16, 92, 60
        S_H, S_G, S_GW = 76, 48, 52
        a(f's_cmp_ge_u32 s2, 256')
        a(f's_cbranch_scc1 {N}_end')
        self.stamp()
        a(f's_load_dwordx2 s[34:35], s[0:1], {KA_WS}')
        a(f's_load_dwordx2 s[64:65], s[0:1], {KA_AX}')
        a(f's_load_dwordx2 s[90:91], s[0:1], {KA_CKV}')
        a(f's_load_dwordx4 s[96:99], s[0:1], {KA_WUK}')
        a(f's_load_dwordx2 s[38:39], s[0:1], {KA_GW}')
        a(f's_load_dwordx2 s[66:67], s[0:1], {KA_WQ}')
        a(f's_load_dwordx2 s[68:69], s[0:1], {KA_W1}')
        a(f's_load_dwordx2 s[86:87], s[0:1], {KA_B1}')
        a(f's_load_dwordx2 s[70:71], s[0:1], {KA_WO}')
        a(f's_load_dwordx2 s[72:73], s[0:1], {KA_W2}')
        a(f's_load_dwordx2 s[100:101], s[0:1], {KA_DBG}')
        a(f'v_lshrrev_b32 v1, 6, v0')
        a(f'v_and_b32 v2, 63, v0')
        a(f'v_lshlrev_b32 v{V_L16}, 4, v2')
        a(f'v_readfirstlane_b32 s{s_w}, v1')
        a(f's_and_b32 s{s_t0}, s2, 7')
        a(f's_lshr_b32 s{s_t1}, s2, 3')
        a(f's_lshl_b32 s{s_h}, s{s_t0}, 2')
        a(f's_and_b32 s{s_t0}, s{s_t1}, 3')
        a(f's_add_u32 s{s_h}, s{s_h}, s{s_t0}')
        a(f's_lshr_b32 s{s_i}, s{s_t1}, 2')
        a(f's_add_u32 s{s_g1}, s{s_i}, 1')
        a(f's_lshl_b32 s{s_g1}, s{s_g1}, 2')
        a(f's_lshl_b32 s36, s{s_i}, 2'); a(f's_add_u32 s36, s36, s{s_w}')
        a(f's_lshl_b32 s37, s{s_i}, 2'); a(f's_sub_u32 s37, 60, s37'); a(f's_add_u32 s37, s37, s{s_w}')
        vq = VmQueue()
        P = Proj(a, vq, s_w, 16384, 16384, ACC=64, FB=(192, 216), fbk='a', VA=8, V_L16=V_L16, VT=33, SG=40,
                 wflags=(' nt' if opt.get('nt', True) else ''), stamps=self.st, opt=opt)
        P.setup_addrs(set_l16=False)
        a('s_waitcnt lgkmcnt(0)')
        make_srd(a, S_X, 64, 0, 2*MB); make_srd(a, S_GW, 38, 0, 1024)
        a(f's_lshl_b32 s82, s2, 3'); a(f's_lshl_b32 s83, s{s_w}, 1'); a('s_add_u32 s82, s82, s83')
        a('s_lshl_b32 s83, s82, 2'); a('s_lshl_b32 s82, s82, 10')
        LB_ = 40
        a(f'buffer_load_dwordx4 v[{LB_}:{LB_+3}], v{V_L16}, s[{S_X}:{S_X+3}], s82 offen'); vq.push('ln')
        a(f'buffer_load_dwordx4 v[{LB_+4}:{LB_+7}], v{V_L16}, s[{S_X}:{S_X+3}], s82 offen offset:1024'); vq.push('ln')
        a(f'buffer_load_dwordx4 v[{LB_+16}:{LB_+19}], v{V_L16}, s[{S_GW}:{S_GW+3}], 0 offen'); vq.push('ln')
        make_srd(a, S_CK, 90, 0, 2*MB); make_srd(a, S_WK, 96, 0, 4*MB); make_srd(a, S_WV, 98, 0, 4*MB)
        initKV = [f's_lshl_b32 s{P.s_a0}, s{s_i}, 18', f's_lshl_b32 s49, s{s_w}, 16', f's_add_u32 s{P.s_a0}, s{P.s_a0}, s49',
                  f's_add_u32 s{P.s_a1}, s{P.s_a0}, 32768',
                  f's_lshl_b32 s{P.s_wo}, s{s_w}, 17', f's_lshl_b32 s49, s{s_h}, 8', f's_add_u32 s{P.s_wo}, s{P.s_wo}, s49']
        initQ = [f's_lshl_b32 s{P.s_a0}, s36, 15', f's_lshl_b32 s{P.s_a1}, s37, 15',
                 f's_lshl_b32 s{P.s_wo}, s{s_w}, 17', f's_lshl_b32 s49, s{s_h}, 8', f's_add_u32 s{P.s_wo}, s{P.s_wo}, s49']
        ps = [dict(swap=False, srdA=S_CK, srdW=S_WK, init=initKV, epi=lambda: None, acck='v'),
              dict(swap=True, srdA=S_CK, srdW=S_WV, init=initKV, epi=lambda: None, acck='a'),
              dict(swap=False, srdA=S_X, srdW=S_WQ, init=initQ, epi=lambda: None, acck='v')]
        P.prologue(ps[0])
        make_srd(a, S_WQ, 66, 0, 4*MB)
        make_srd(a, S_O, 34, WS_K, 32*MB)
        make_srd(a, S_H, 34, WS_H, 2*MB); make_srd(a, S_G, 34, WS_G, 8192)
        real_a = self.a; tmp_a = Asm(); self.a = tmp_a
        M = self.setup_attn_regs()
        self.a = real_a; M.a = real_a
        c = 0x3e0293ee
        setup = tmp_a.lines + [f'v_mov_b32 v2, {hex(c)}', f'v_mov_b32 v3, {hex(c)}'] + [f'v_accvgpr_write_b32 a{e}, 0' for e in range(64)]
        setupG = [(setup[k:k+4], None) for k in range(0, len(setup), 4)]
        perS = -(-len(setupG)//5)
        vq.wait_for(a, 'ln')
        gen_proj.R.V_L16 = V_L16
        st_save = STF.st; STF.st = ' sc1'
        gen_proj.emit_ln_compute(a, LB_, S_H, S_G, 82, 83, 64)
        for _ in range(3): vq.push('lnst')
        a('s_getreg_b32 s33, hwreg(HW_REG_XCC_ID, 0, 4)')
        a('s_or_b32 s33, s33, 0x50')
        make_srd(a, 76, 34, WS_HF, 4096)
        a(f's_lshl_b32 s32, s{s_h}, 7')
        a('v_mov_b32 v41, 0'); a(f'v_lshrrev_b32 v42, 2, v{V_L16}')
        a(f's_or_b32 s{s_t0}, s{s_w}, s{s_i}'); a(f's_cmp_eq_u32 s{s_t0}, 0'); a('s_cselect_b32 exec_lo, -1, 0'); a('s_mov_b32 exec_hi, 0')
        a('buffer_store_dword v41, v42, s[76:79], s32 offen sc1'); vq.push('lnst')
        a('s_mov_b64 exec, -1')
        a(f's_and_b32 s91, s{s_h}, 3'); a(f's_cmp_eq_u32 s{s_w}, 0'); a('s_cselect_b32 s91, s91, 0xff')
        a(f's_lshl_b32 s{s_t0}, s{s_h}, 6'); a(f's_lshl_b32 s{s_t1}, s{s_i}, 3'); a(f's_add_u32 s{s_t0}, s{s_t0}, s{s_t1}')
        a(f's_lshl_b32 s{s_t1}, s{s_w}, 1'); a(f's_add_u32 s{s_t0}, s{s_t0}, s{s_t1}'); a(f's_lshl_b32 s{s_t0}, s{s_t0}, 13')
        for k in range(4):
            a(f's_add_u32 s{50+k}, s{s_t0}, {k*4096}')
            a(f's_add_u32 s{96+k}, s{s_t0}, {16*MB + k*4096}')
        STF.st = opt.get('kst', opt.get('kvst', ''))
        KG = frag_store_groups(P, 'K', 'v', S_O, 50, None, v_scale=2, tag='kst')
        STF.st = opt.get('vst', opt.get('kvst', ''))
        VGs = frag_store_groups(P, 'V', 'a', S_O, 96, 40, tag='vst')
        STF.st = st_save
        nv = opt.get('vstages', 3); sigt = opt.get('sigt', nv+1)
        perK = len(KG)//8; perV = len(VGs)//nv
        KV0 = self.kv_groups('K', 6); VV0 = self.kv_groups('V', 4)
        zero = [([f'v_accvgpr_write_b32 a{64+4*k+e}, 0' for e in range(4)], None) for k in range(16)]
        srds = self.kv_srd_lines()
        dbg = Asm(); make_srd(dbg, 76, 100, 0, 256)
        hfl = Asm(); make_srd(hfl, 92, 34, WS_HF, 4096)
        def lnsig(k): return (dbg.lines + ['v_mov_b32 v58, 0', 'v_mov_b32 v59, s33', f's_cmp_eq_u32 s91, {k}', 's_cselect_b64 exec, 1, 0',
               f'buffer_store_byte v59, v58, s[76:79], s2 offen sc1', 's_mov_b64 exec, -1'], 'flag')
        idaddr = [f'v_lshlrev_b32 v57, 1, v{V_L16}', f's_lshr_b32 s{s_t1}, s{s_h}, 2', f's_and_b32 s32, s{s_h}, 3', 's_lshl_b32 s32, s32, 3', f's_add_u32 s48, s32, s{s_t1}']
        idld = (dbg.lines + idaddr + ['buffer_load_ubyte v56, v57, s[76:79], s48 offen sc1'], 'id')
        sig = dbg.lines + hfl.lines + [f's_cmp_eq_u32 s{s_w}, 0', f's_cbranch_scc0 {N}_nosig', f's_mov_b32 s{s_cnt}, 0',
               f'{N}_idchk:',
               'v_readfirstlane_b32 s32, v56', 's_and_b32 s32, s32, 0x40', 's_cmp_lg_u32 s32, 0', f's_cbranch_scc1 {N}_idok',
               f's_add_u32 s{s_cnt}, s{s_cnt}, 1', f's_cmp_ge_u32 s{s_cnt}, 0x20000', f's_cbranch_scc1 {N}_idok',
               'buffer_load_ubyte v56, v57, s[76:79], s48 offen sc1', 's_waitcnt vmcnt(0)', 's_nop 0', f's_branch {N}_idchk',
               f'{N}_idok:',
               'v_cmp_ne_u32 vcc, s33, v56', 's_nop 3', 's_and_b32 s32, vcc_lo, 0xff', 's_cmp_eq_u32 s32, 0',
               f's_cbranch_scc1 {N}_samexcd', 'buffer_wbl2 sc1', 's_waitcnt vmcnt(0)', f'{N}_samexcd:',
               f's_lshl_b32 s32, s{s_h}, 7', f's_lshl_b32 s{s_t1}, s{s_i}, 2', f's_add_u32 s32, s32, s{s_t1}',
               'v_mov_b32 v41, 0', 'v_mov_b32 v42, 1', 's_mov_b64 exec, 1',
               'buffer_store_dword v42, v41, s[92:95], s32 offen sc1', 's_mov_b64 exec, -1', f'{N}_nosig:']
        pollld = ['buffer_load_dword v232, v233, s[76:79], 0 offen sc1', 'buffer_load_dword v235, v233, s[92:95], s91 offen sc1']
        pollpre = dbg.lines + hfl.lines + [f's_lshl_b32 s91, s{s_h}, 7', f'v_lshrrev_b32 v233, 2, v{V_L16}', 'v_mov_b32 v234, 0x40404040',
                   f's_cmp_eq_u32 s{s_w}, 0', f's_cbranch_scc0 {N}_nopoll0'] + pollld + [f'{N}_nopoll0:']
        def pfw(srd_): return ([f'v_lshrrev_b32 v58, 5, v{V_L16}', 'v_lshlrev_b32 v58, 13, v58', f'v_bfe_u32 v59, v{V_L16}, 4, 1', 'v_lshl_add_u32 v58, v59, 7, v58',
               f's_lshl_b32 s32, s{s_w}, 4', f's_lshl_b32 s49, s{s_i}, 6', 's_add_u32 s32, s32, s49', 's_lshl_b32 s32, s32, 13',
               f's_lshl_b32 s49, s{s_h}, 8', 's_add_u32 s32, s32, s49', 's_mov_b32 exec_hi, 0',
               f'buffer_load_dword v253, v58, s[{srd_}:{srd_+3}], s32 offen', 's_mov_b64 exec, -1'], 'pf')
        def pfx(qt): return ([f'v_lshrrev_b32 v58, 7, v{V_L16}', 'v_lshlrev_b32 v58, 10, v58', f'v_bfe_u32 v59, v{V_L16}, 4, 3', 'v_lshl_add_u32 v58, v59, 7, v58',
               f's_lshl_b32 s32, s{qt}, 5', f's_and_b32 s49, s{s_h}, 3', 's_lshl_b32 s49, s49, 3', 's_add_u32 s32, s32, s49', 's_lshl_b32 s32, s32, 10',
               f'buffer_load_dword v253, v58, s[{S_X}:{S_X+3}], s32 offen'], 'pf')
        def pfc(k): return ([f'v_lshrrev_b32 v58, 7, v{V_L16}', 'v_lshlrev_b32 v58, 10, v58', f'v_bfe_u32 v59, v{V_L16}, 4, 3', 'v_lshl_add_u32 v58, v59, 7, v58',
               f's_lshl_b32 s32, s{s_i}, 8', f's_and_b32 s49, s{s_h}, 3', 's_lshl_b32 s49, s49, 6', 's_add_u32 s32, s32, s49', f's_lshl_b32 s49, s{s_w}, 4', 's_add_u32 s32, s32, s49',
               f's_add_u32 s32, s32, {8*k}', 's_lshl_b32 s32, s32, 10', f'buffer_load_dword v253, v58, s[{S_CK}:{S_CK+3}], s32 offen'], 'pf')
        def pf1():
            l = Asm(); make_srd(l, 76, 68, 0, 2048*3584)
            l(f'v_lshlrev_b32 v58, 3, v{V_L16}'); l('s_lshl_b32 s32, s2, 2'); l(f's_add_u32 s32, s32, s{s_w}'); l('s_mul_i32 s32, s32, 7168')
            l('buffer_load_dword v253, v58, s[76:79], s32 offen')
            return (l.lines, 'pf')
        pf = opt.get('pfa', 'vq')
        def xe(p, t):
            if p == 0:
                g = list(setupG[(t-1)*perS:t*perS]) if 1 <= t <= 5 else []
                if t == 0:
                    if 'k' in pf: g.append(pfw(S_WK))
                    if 'c' in pf: g += [pfc(0), pfc(1)]
                if '1' in pf and t == 6: g.append(pf1())
                if 'v' in pf and t == opt.get('pfv_t', 1): g.append(pfw(S_WV))
                return g
            if p == 1:
                g = list(KG[t*perK:(t+1)*perK])
                if 'q' in pf and t == 1: g.append(pfw(S_WQ))
                if 'x' in pf and t == 2: g.append(pfx(36))
                if 'x' in pf and t == 3: g.append(pfx(37))
                if '2' in pf and t == 5: g.append(pf1())
                return g
            if p == 2:
                g = []
                if t < nv: g += VGs[t*perV:(t+1)*perV] + ([idld] if t == 0 else [])
                if t == nv: g += zero
                if t == 6: g += [(srds, None)]
                if t == 7: g += [(pollpre, None)]
                return g
            return []
        late_pf = opt.get('pflate', {})
        def xl(p, t):
            g = []
            if p == 0 and 2 <= t <= 5: g.append(lnsig(t-2))
            if p == 2 and t == sigt: g.append((sig, None))
            k = late_pf.get((p, t))
            if k == 'v': g.append(pfw(S_WV))
            if k == 'q': g.append(pfw(S_WQ))
            if k == '1': g.append(pf1())
            if k == 'a': g.append(pfx(36))
            if k == 'b': g.append(pfx(37))
            return g
        assert sigt >= nv + 1 and sigt <= 6 and 48 % nv == 0
        P.start_compute()
        self.stamp()
        P.run(ps, extra_early=xe, extra_late=xl)
        self.stamp()
        self.q_to_frags_cvt()
        chk = ['s_waitcnt vmcnt(0)', 'v_and_b32 v232, v234, v232', 'v_cmp_ne_u32 vcc, v234, v232', 'v_cmp_ne_u32 s[54:55], 1, v235', 's_nop 3',
               's_and_b32 s32, s54, 0xff', 's_or_b32 s32, s32, vcc_lo', 's_or_b32 s32, s32, vcc_hi', 's_cmp_eq_u32 s32, 0']
        for l in [f's_cmp_eq_u32 s{s_w}, 0', f's_cbranch_scc0 {N}_polled', f's_mov_b32 s{s_cnt}, 0', f'{N}_poll:'] + chk + \
                 [f's_cbranch_scc1 {N}_polled', f's_add_u32 s{s_cnt}, s{s_cnt}, 1', f's_cmp_ge_u32 s{s_cnt}, 0x20000', f's_cbranch_scc1 {N}_polled',
                  f's_sleep {opt.get("sleep", 8)}'] + pollld + [f's_branch {N}_poll', f'{N}_polled:']: a(l)
        a('s_barrier')
        for g in KV0 + VV0:
            for l in g[0]: a(l)
        self.stamp()
        self.q_to_frags_srd()
        return M


class Main2(Main):
    def emit_head(self):
        a = self.a; N = self.name; opt = self.opt
        S_CK, S_WK, S_X, S_O, S_WV, S_WQ = 4, 8, 12, 16, 92, 60
        S_H, S_G, S_GW = 76, 48, 52
        a(f's_cmp_ge_u32 s2, 256')
        a(f's_cbranch_scc1 {N}_end')
        self.stamp()
        a(f's_load_dwordx2 s[90:91], s[0:1], {KA_CKV}')
        a(f's_load_dwordx4 s[96:99], s[0:1], {KA_WUK}')
        a(f's_load_dwordx2 s[34:35], s[0:1], {KA_WS}')
        a(f's_load_dwordx2 s[64:65], s[0:1], {KA_AX}')
        a(f's_load_dwordx2 s[38:39], s[0:1], {KA_GW}')
        a(f's_load_dwordx2 s[66:67], s[0:1], {KA_WQ}')
        a(f's_load_dwordx2 s[68:69], s[0:1], {KA_W1}')
        a(f's_load_dwordx2 s[86:87], s[0:1], {KA_B1}')
        a(f's_load_dwordx2 s[70:71], s[0:1], {KA_WO}')
        a(f's_load_dwordx2 s[72:73], s[0:1], {KA_W2}')
        a(f's_load_dwordx2 s[100:101], s[0:1], {KA_DBG}')
        a(f'v_lshrrev_b32 v1, 6, v0')
        a(f'v_and_b32 v2, 63, v0')
        a(f'v_lshlrev_b32 v{V_L16}, 4, v2')
        a(f'v_readfirstlane_b32 s{s_w}, v1')
        a(f's_and_b32 s{s_t0}, s2, 7')
        a(f's_lshr_b32 s{s_t1}, s2, 3')
        a(f's_lshl_b32 s{s_h}, s{s_t0}, 2')
        a(f's_and_b32 s{s_t0}, s{s_t1}, 3')
        a(f's_add_u32 s{s_h}, s{s_h}, s{s_t0}')
        a(f's_lshr_b32 s{s_i}, s{s_t1}, 2')
        a(f's_add_u32 s{s_g1}, s{s_i}, 1')
        a(f's_lshl_b32 s{s_g1}, s{s_g1}, 2')
        a(f's_lshl_b32 s36, s{s_i}, 2'); a(f's_add_u32 s36, s36, s{s_w}')
        a(f's_lshl_b32 s37, s{s_i}, 2'); a(f's_sub_u32 s37, 60, s37'); a(f's_add_u32 s37, s37, s{s_w}')
        vq = VmQueue()
        a('s_waitcnt lgkmcnt(0)')
        make_srd(a, S_CK, 90, 0, 2*MB); make_srd(a, S_WK, 96, 0, 4*MB); make_srd(a, S_WV, 98, 0, 4*MB)
        make_srd(a, S_X, 64, 0, 2*MB); make_srd(a, S_GW, 38, 0, 1024); make_srd(a, S_WQ, 66, 0, 4*MB)
        KV = ProjKV(a, vq, s_w, S_CK, S_WK, S_WV, ACCK=64, ACCV=64, VR=40, VT=33, SG=(38, 39, 64, 65, 66, 67, 90), stamps=self.st, opt=opt)
        KV.setup(s_i, s_h)
        LB_ = 232
        a(f's_lshl_b32 s82, s2, 3'); a(f's_lshl_b32 s83, s{s_w}, 1'); a('s_add_u32 s82, s82, s83')
        a('s_lshl_b32 s83, s82, 2'); a('s_lshl_b32 s82, s82, 10')
        a(f'buffer_load_dwordx4 v[{LB_}:{LB_+3}], v{V_L16}, s[{S_X}:{S_X+3}], s82 offen'); vq.push('ln')
        a(f'buffer_load_dwordx4 v[{LB_+4}:{LB_+7}], v{V_L16}, s[{S_X}:{S_X+3}], s82 offen offset:1024'); vq.push('ln')
        a(f'buffer_load_dwordx4 v[{LB_+16}:{LB_+19}], v{V_L16}, s[{S_GW}:{S_GW+3}], 0 offen'); vq.push('ln')
        rest0 = KV.prologue(opt.get('kvpro', 2))
        P = Proj(a, vq, s_w, 16384, 65536, ACC=64, FB=(192, 216), fbk='a', VA=8, V_L16=V_L16, VT=33, SG=40,
                 wflags=(' nt' if opt.get('nt', False) else ''), stamps=self.st, opt=opt)
        P.setup_addrs(set_l16=False)
        make_srd(a, S_O, 34, WS_K, 32*MB)
        make_srd(a, S_H, 34, WS_H, 2*MB); make_srd(a, S_G, 34, WS_G, 8192)
        real_a = self.a; tmp_a = Asm(); self.a = tmp_a; self.mtmp = 232
        M = self.setup_attn_regs()
        self.a = real_a; M.a = real_a
        c = 0x3e0293ee
        setup = tmp_a.lines + [f'v_mov_b32 v2, {hex(c)}', f'v_mov_b32 v3, {hex(c)}']
        setupG = [(setup[k:k+4], None) for k in range(0, len(setup), 4)]
        perS = -(-len(setupG)//6)
        vq.wait_for(a, 'ln')
        gen_proj.R.V_L16 = V_L16
        st_save = STF.st; STF.st = ' sc1'
        gen_proj.emit_ln_compute(a, LB_, S_H, S_G, 82, 83, 64)
        for _ in range(3): vq.push('lnst')
        a('s_getreg_b32 s33, hwreg(HW_REG_XCC_ID, 0, 4)')
        a('s_or_b32 s33, s33, 0x10')
        make_srd(a, 76, 100, 0, 256)
        a('v_mov_b32 v33, 0'); a('v_mov_b32 v34, s33')
        a(f's_cmp_eq_u32 s{s_w}, 0'); a('s_cselect_b64 exec, 1, 0')
        a('buffer_store_byte v34, v33, s[76:79], s2 offen sc1'); vq.push('flag')
        a('s_mov_b64 exec, -1')
        npre = 8*opt.get('kvpre2', 1)
        for g in rest0[:npre]: KV.emit_group(g)
        KV.initial = rest0[npre:]
        a(f's_lshl_b32 s{s_t0}, s{s_h}, 6'); a(f's_lshl_b32 s{s_t1}, s{s_i}, 3'); a(f's_add_u32 s{s_t0}, s{s_t0}, s{s_t1}')
        a(f's_lshl_b32 s{s_t1}, s{s_w}, 1'); a(f's_add_u32 s{s_t0}, s{s_t0}, s{s_t1}'); a(f's_lshl_b32 s{s_t0}, s{s_t0}, 13')
        for k in range(4):
            a(f's_add_u32 s{50+k}, s{s_t0}, {k*4096}')
            a(f's_add_u32 s{96+k}, s{s_t0}, {16*MB + k*4096}')
        STF.st = opt.get('kvst', '')
        KG = frag_store_groups(P, 'K', 'v', S_O, 50, None, v_scale=2, tag='kst')
        VGs = frag_store_groups(P, 'V', 'a', S_O, 96, 40, tag='vst')
        STF.st = st_save
        nv = opt.get('vstages', 3); sigt = opt.get('sigt', nv+1)
        perV = len(VGs)//nv
        KV0 = self.kv_groups('K', 6); VV0 = self.kv_groups('V', 4)
        zero = [([f'v_accvgpr_write_b32 a{4*k+e}, 0' for e in range(4)], None) for k in range(32)]
        srds = self.kv_srd_lines()
        dbg = Asm(); make_srd(dbg, 76, 100, 0, 256)
        one = lambda val, lab: [f's_cmp_eq_u32 s{s_w}, 0', f's_cbranch_scc0 {N}_{lab}']
        idld = dbg.lines + [f's_cmp_eq_u32 s{s_w}, 0', f's_cbranch_scc0 {N}_noid',
               f'v_lshlrev_b32 v57, 1, v{V_L16}', f's_lshr_b32 s{s_t1}, s{s_h}, 2', f's_and_b32 s32, s{s_h}, 3', 's_lshl_b32 s32, s32, 3', f's_add_u32 s32, s32, s{s_t1}',
               'buffer_load_ubyte v56, v57, s[76:79], s32 offen sc1', f'{N}_noid:']
        lnsig = dbg.lines + ['s_or_b32 s32, s33, 0x40', 'v_mov_b32 v58, 0', 'v_mov_b32 v59, s32', f's_cmp_eq_u32 s{s_w}, 0', 's_cselect_b64 exec, 1, 0',
               f'buffer_store_byte v59, v58, s[76:79], s2 offen sc1', 's_mov_b64 exec, -1']
        sig = [f's_cmp_eq_u32 s{s_w}, 0', f's_cbranch_scc0 {N}_nosig',
               'v_and_b32 v56, 0x1f, v56', 'v_cmp_ne_u32 vcc, s33, v56', 's_nop 3', 's_and_b32 s32, vcc_lo, 0xff', 's_cmp_eq_u32 s32, 0',
               f's_cbranch_scc1 {N}_samexcd', 'buffer_wbl2 sc1', 's_waitcnt vmcnt(0)', f'{N}_samexcd:',
               's_or_b32 s32, s33, 0xc0', 'v_mov_b32 v41, 0', 'v_mov_b32 v42, s32', 's_mov_b64 exec, 1',
               f'buffer_store_byte v42, v41, s[76:79], s2 offen sc1', 's_mov_b64 exec, -1', f'{N}_nosig:']
        pollpre = [f's_cmp_eq_u32 s{s_w}, 0', f's_cbranch_scc0 {N}_nopoll0',
                   f's_lshr_b32 s{s_t1}, s{s_h}, 4', f's_and_b32 s32, s{s_h}, 3', 's_lshl_b32 s32, s32, 1', f's_add_u32 s{s_t1}, s{s_t1}, s32',
                   f's_lshr_b32 s32, s{s_h}, 2', 's_and_b32 s32, s32, 3', 's_lshl_b32 s32, s32, 3', 's_lshl_b32 s32, 0x80, s32', 's_or_b32 s32, s32, 0x40404040',
                   f'v_lshrrev_b32 v42, 2, v{V_L16}', f'v_bfe_u32 v44, v{V_L16}, 4, 3', f'v_cmp_eq_u32 vcc, s{s_t1}, v44', 'v_mov_b32 v43, 0x40404040', 'v_mov_b32 v45, s32',
                   'v_cndmask_b32 v43, v43, v45, vcc',
                   f'buffer_load_dword v41, v42, s[76:79], 0 offen sc1', f'{N}_nopoll0:']
        initQ = [f's_lshl_b32 s{P.s_a0}, s36, 15', f's_lshl_b32 s{P.s_a1}, s37, 15',
                 f's_lshl_b32 s{P.s_wo}, s{s_w}, 17', f's_lshl_b32 s49, s{s_h}, 8', f's_add_u32 s{P.s_wo}, s{P.s_wo}, s49']
        qpass = [dict(swap=False, srdA=S_X, srdW=S_WQ, init=initQ, epi=lambda: None, acck='v')]
        Q0 = P.dma_stage(S_X, S_WQ, (0, 0), pre=initQ); Q1 = P.dma_stage(S_X, S_WQ, (0, 1)); Q2 = P.dma_stage(S_X, S_WQ, (0, 2))
        def touch(lines): return (lines, 'pf')
        pfw = [f'v_lshrrev_b32 v58, 5, v{V_L16}', 'v_lshlrev_b32 v58, 13, v58', f'v_bfe_u32 v59, v{V_L16}, 4, 1', 'v_lshl_add_u32 v58, v59, 7, v58',
               f's_and_b32 s32, s{s_w}, 1', 's_lshl_b32 s32, s32, 5', f's_lshl_b32 s49, s{s_i}, 6', 's_add_u32 s32, s32, s49', 's_lshl_b32 s32, s32, 13',
               f's_lshl_b32 s49, s{s_h}, 8', 's_add_u32 s32, s32, s49', f'buffer_load_dword v253, v58, s[{S_WQ}:{S_WQ+3}], s32 offen']
        def pfx(qt): return [f'v_lshrrev_b32 v58, 7, v{V_L16}', 'v_lshlrev_b32 v58, 10, v58', f'v_bfe_u32 v59, v{V_L16}, 4, 3', 'v_lshl_add_u32 v58, v59, 7, v58',
               f's_lshl_b32 s32, s{qt}, 5', f's_and_b32 s49, s{s_h}, 3', 's_lshl_b32 s49, s49, 3', 's_add_u32 s32, s32, s49', 's_lshl_b32 s32, s32, 10',
               f'buffer_load_dword v253, v58, s[{S_X}:{S_X+3}], s32 offen']
        def kvx(t):
            early, late = [], []
            if opt.get('pfq', True):
                if t == 7: early += [touch(pfw)]
                if t == 8: early += [touch(pfx(36))]
                if t == 9: early += [touch(pfx(37))]
            if 1 <= t <= 6: early += setupG[(t-1)*perS:t*perS]
            if t == opt.get('lnsig_t', 4): late += [(lnsig, 'flag')]
            if t == 13: late += Q0[:4]
            if t == 14: early += Q0[4:]; late += Q1[:4]
            if t == 15: early += Q1[4:]; late += Q2[:3]
            return early, late
        def handover():
            return (0, 0), P.read_addr_update(), P.kstep_reads(0, 0)
        KV.start()
        self.stamp()
        KV.run(kvx, handover)
        P.lq = list(KV.lq); P.g_pending = Q2[3:]
        self.stamp()
        a('s_nop 7')
        for g in KG: P.emit_group(g)
        self.stamp()
        def xe(p, t):
            g = []
            if t < nv: g += VGs[t*perV:(t+1)*perV] + ([(idld, None)] if t == 0 else [])
            if t == nv: g += zero[:16]
            if t == nv+1: g += zero[16:]
            if t == 6: g += [(srds, None)]
            if t == 7: g += [(pollpre, None)]
            return g
        def xl(p, t):
            return [(sig, None)] if t == sigt else []
        assert sigt >= nv + 1 and sigt <= 6 and 48 % nv == 0
        P.run(qpass, extra_early=xe, extra_late=xl)
        self.stamp()
        chk = ['s_waitcnt vmcnt(0)', 'v_and_b32 v41, v43, v41', 'v_cmp_ne_u32 vcc, v43, v41', 's_nop 3', 's_cmp_eq_u64 vcc, 0']
        for l in [f's_cmp_eq_u32 s{s_w}, 0', f's_cbranch_scc0 {N}_polled', f's_mov_b32 s{s_cnt}, 0', f'{N}_poll:'] + chk + \
                 [f's_cbranch_scc1 {N}_polled', f's_add_u32 s{s_cnt}, s{s_cnt}, 1', f's_cmp_ge_u32 s{s_cnt}, 0x20000', f's_cbranch_scc1 {N}_polled',
                  f's_sleep {opt.get("sleep", 8)}', f'buffer_load_dword v41, v42, s[76:79], 0 offen sc1', f's_branch {N}_poll', f'{N}_polled:']: a(l)
        a('s_barrier')
        for g in KV0 + VV0:
            for l in g[0]: a(l)
        self.stamp()
        self.q_to_frags()
        return M
```

```python
import sys, os
from asmlib import *
from layout import *
import gen_proj, gen_proj2, gen_attn, gen_attn2, gen_t2, gen_final, gen_main

NAME = 'gated_mix__compressed_kv_cla__mixer_token_mlp__prompt'
def build(path, **opt):
    if opt.get('v', 4) == 4: return build4(path, **opt)
    if opt.get('v', 4) == 3: return build3(path, **opt)
    if opt.get('v', 4) == 2: return build2(path, **opt)
    ref = open(f'cdna_kernels/{NAME}.s.ref').read().split('\n')
    a = Asm()
    for l in ref:
        if l.startswith('; Override launch') : break
        a(l)
    a('; @launch kernel=proj_kernel grid=(256,1,1) block=(256,1,1) lds=147456')
    a('; @launch kernel=attn_kernel grid=(256,1,1) block=(256,1,1) lds=131072')
    a('; @launch kernel=mlp1_kernel grid=(256,1,1) block=(256,1,1) lds=131072')
    a('; @launch kernel=final_kernel grid=(256,1,1) block=(256,1,1) lds=131072')
    a('.amdgcn_target "amdgcn-amd-amdhsa--gfx950"')
    kernel_header(a, 'proj_kernel'); gen_proj.emit_l1(a, 'l1', **opt.get('l1', {}))
    kernel_header(a, 'attn_kernel'); g = gen_attn.Attn(a, 'attn'); g.emit()
    kernel_header(a, 'mlp1_kernel'); gen_t2.emit_mlp1(a, 'mlp1')
    kernel_header(a, 'final_kernel'); gen_t2.emit_l3(a, 'l3', PD=opt.get('l3pd', 7), **opt.get('l3', {}))
    kernel_desc(a, 'proj_kernel', vgpr=256, accum=256)
    kernel_desc(a, 'attn_kernel', vgpr=512, accum=256)
    kernel_desc(a, 'mlp1_kernel', vgpr=256, accum=256)
    kernel_desc(a, 'final_kernel', vgpr=(384 if opt.get('l3', {}).get('agpr', True) else 256), accum=256)
    open(path, 'w').write(a.text())
def build2(path, **opt):
    STF.st = opt.get('stf', '')
    ref = open(f'cdna_kernels/{NAME}.s.ref').read().split('\n')
    a = Asm()
    for l in ref:
        if l.startswith('; Override launch') : break
        a(l)
    a('; @launch kernel=proj_kernel grid=(256,1,1) block=(256,1,1) lds=147456')
    a('; @launch kernel=attn_kernel grid=(256,1,1) block=(256,1,1) lds=163840')
    a('; @launch kernel=final_kernel grid=(256,1,1) block=(256,1,1) lds=131072')
    a('.amdgcn_target "amdgcn-amd-amdhsa--gfx950"')
    kernel_header(a, 'proj_kernel'); gen_proj2.emit_l1(a, 'l1', **opt.get('l1', {}))
    kernel_header(a, 'attn_kernel'); g = gen_attn2.Attn(a, 'attn', **opt.get('attn', {})); g.emit()
    kernel_header(a, 'final_kernel')
    if opt.get('fin', 2) == 2: gen_final.emit_final(a, 'fin', **opt.get('l3', {}))
    else: gen_t2.emit_l3(a, 'l3', PD=opt.get('l3pd', 4), **opt.get('l3', {'agpr': False}))
    kernel_desc(a, 'proj_kernel', vgpr=448, accum=256)
    kernel_desc(a, 'attn_kernel', vgpr=512, accum=256)
    kernel_desc(a, 'final_kernel', vgpr=256, accum=256)
    open(path, 'w').write(a.text())
def build3(path, **opt):
    STF.st = opt.get('stf', ' sc1')
    ref = open(f'cdna_kernels/{NAME}.s.ref').read().split('\n')
    a = Asm()
    for l in ref:
        if l.startswith('; Override launch') : break
        a(l)
    a('; @launch kernel=main_kernel grid=(256,1,1) block=(256,1,1) lds=163840')
    a('; @launch kernel=final_kernel grid=(256,1,1) block=(256,1,1) lds=131072')
    a('.amdgcn_target "amdgcn-amd-amdhsa--gfx950"')
    ao = dict(opt.get('attn', {})); ao.setdefault('stagestamps', False); ao.setdefault('nt', False); ao.setdefault('vstages', 2); ao.setdefault('pfa', ''); ao.setdefault('pflate', {(0,1):'v',(1,1):'q',(0,6):'1'})
    kernel_header(a, 'main_kernel'); g = (gen_main.Main2 if opt.get('kv1', False) else gen_main.Main)(a, 'attn', **ao); g.emit()
    kernel_header(a, 'final_kernel'); gen_final.emit_final(a, 'fin', **opt.get('l3', {}))
    kernel_desc(a, 'main_kernel', vgpr=512, accum=256)
    kernel_desc(a, 'final_kernel', vgpr=256, accum=256)
    open(path, 'w').write(a.text())
def build4(path, **opt):
    STF.st = opt.get('stf', ' sc1')
    ref = open(f'cdna_kernels/{NAME}.s.ref').read().split('\n')
    a = Asm()
    for l in ref:
        if l.startswith('; Override launch') : break
        a(l)
    a('; @launch grid=(256,1,1) block=(256,1,1) lds=163840')
    a('.amdgcn_target "amdgcn-amd-amdhsa--gfx950"')
    ao = dict(opt.get('attn', {})); ao.setdefault('stagestamps', False); ao.setdefault('nt', False); ao.setdefault('vstages', 2); ao.setdefault('pfa', ''); ao.setdefault('pflate', {(0,1):'v',(1,1):'q',(0,6):'1'}); ao.setdefault('dmac', 12); ao.setdefault('place', True); ao.setdefault('spread', True); ao.setdefault('dfirst', True)
    ao['fusefin'] = True; ao['l3'] = opt.get('l3', {})
    K = NAME + '_kernel'
    kernel_header(a, K); g = (gen_main.Main2 if opt.get('kv1', False) else gen_main.Main)(a, 'attn', **ao); g.emit()
    kernel_desc(a, K, vgpr=512, accum=256)
    open(path, 'w').write(a.text())
if __name__ == '__main__':
    opt = eval(sys.argv[2]) if len(sys.argv) > 2 else {}
    build(sys.argv[1] if len(sys.argv) > 1 else f'cdna_kernels/{NAME}.s', **opt)
```

```python
from asmlib import *
from layout import *
import gen_attn2 as A
from gen_attn2 import *
from gen_proj2 import Proj, VmQueue, frag_store_groups
from gen_proj import make_srd
import gen_proj, gen_final
from gen_kv import ProjKV

class Main(Attn):
    def emit_phasec(self):
        a = self.a; N = self.name; opt = self.opt
        a('s_barrier')
        make_srd(a, 76, 34, WS_FL, 112*128)
        a(f's_lshr_b32 s27, s{s_h}, 3'); a('s_lshl_b32 s27, s27, 3'); a(f's_add_u32 s27, s27, s{s_i}'); a('s_lshl_b32 s27, s27, 7')
        a(f's_and_b32 s29, s{s_h}, 7'); a('s_lshl_b32 s29, s29, 2'); a('s_add_u32 s27, s27, s29')
        a('v_mov_b32 v41, s27')
        a(f's_cmp_eq_u32 s{s_i}, 7'); a(f's_cbranch_scc1 {N}_cfill')
        a('s_mul_i32 s27, s80, 37'); a('s_lshr_b32 s27, s27, 8'); a('s_mul_i32 s29, s27, 7'); a('s_sub_u32 s29, s80, s29')
        a('s_lshl_b32 s29, s29, 1'); a('s_and_b32 s30, s81, 1'); a('s_add_u32 s29, s29, s30'); a('s_lshl_b32 s29, s29, 2')
        a('s_lshl_b32 s27, s27, 2'); a('s_lshr_b32 s30, s81, 1'); a('s_add_u32 s27, s27, s30'); a('s_add_u32 s27, s27, 32'); a('s_lshl_b32 s27, s27, 7'); a('s_add_u32 s27, s27, s29')
        a('v_writelane_b32 v41, s27, 1'); a('s_mov_b32 s30, 3')
        a(f's_branch {N}_cflag')
        a.label(f'{N}_cfill')
        a('s_sub_u32 s27, s2, 224'); a('s_lshl_b32 s27, s27, 1'); a('s_add_u32 s27, s27, 48'); a('s_lshl_b32 s27, s27, 7')
        a('v_writelane_b32 v41, s27, 1'); a('s_add_u32 s27, s27, 128'); a('v_writelane_b32 v41, s27, 2'); a('s_mov_b32 s30, 7')
        a.label(f'{N}_cflag')
        a('v_mov_b32 v42, 1')
        a(f's_cmp_eq_u32 s{s_w}, 0'); a('s_cselect_b32 exec_lo, s30, 0'); a('s_mov_b32 exec_hi, 0')
        a('buffer_store_dword v42, v41, s[76:79], 0 offen sc1')
        a('s_mov_b64 exec, -1')
        def poll(s_sb, s_mb, s_p, s_tile):
            make_srd(a, 56, 76, WS_FL, 112*128)
            a(f's_sub_u32 s49, 15, s{s_sb}'); a(f's_min_u32 s49, s49, s{s_sb}'); a(f's_lshl_b32 s50, s{s_p}, 3'); a('s_add_u32 s49, s49, s50'); a('s_lshl_b32 s49, s49, 7')
            a(f's_lshl_b32 s50, s{s_p}, 2'); a(f's_add_u32 s50, s50, s{s_mb}'); a('s_add_u32 s50, s50, 32'); a('s_lshl_b32 s50, s50, 7'); a('s_sub_u32 s50, s50, 32')
            a(f's_add_u32 s51, s{s_tile}, 48'); a('s_lshl_b32 s51, s51, 7')
            a('v_lshrrev_b32 v45, 2, v2')
            a('v_mov_b32 v46, s50'); a('v_mov_b32 v47, s49'); a('v_cmp_gt_u32 vcc, 32, v45'); a('s_nop 1'); a('v_cndmask_b32 v46, v46, v47, vcc')
            a('v_add_u32 v45, v45, v46'); a('v_writelane_b32 v45, s51, 22')
            a(f's_cmp_eq_u32 s{s_w}, 0'); a(f's_cbranch_scc0 {N}_cpolled')
            a('s_mov_b32 s49, 0')
            a.label(f'{N}_cpoll')
            a('buffer_load_dword v44, v45, s[56:59], 0 offen sc1')
            a('s_waitcnt vmcnt(0)')
            a('v_cmp_ne_u32 vcc, 1, v44'); a('s_nop 3'); a('s_and_b32 s50, vcc_lo, 0x7fffff'); a('s_cmp_eq_u32 s50, 0')
            a(f's_cbranch_scc1 {N}_cpolled')
            a('s_add_u32 s49, s49, 1'); a('s_cmp_ge_u32 s49, 0x20000'); a(f's_cbranch_scc1 {N}_cpolled')
            a(f's_sleep {opt.get("csleep", 4)}'); a(f's_branch {N}_cpoll')
            a.label(f'{N}_cpolled')
            a('s_barrier')
        gen_final.emit_final(a, N + '_fin', inline=True, sync=poll, stamps=self.st, **opt.get('l3', {}))

    def emit_head(self):
        a = self.a; N = self.name; opt = self.opt
        S_CK, S_WK, S_X, S_O, S_WV, S_WQ = 4, 8, 12, 16, 92, 60
        S_H, S_G, S_GW = 76, 48, 52
        a(f's_cmp_ge_u32 s2, 256')
        a(f's_cbranch_scc1 {N}_end')
        self.stamp()
        a(f's_load_dwordx2 s[34:35], s[0:1], {KA_WS}')
        a(f's_load_dwordx2 s[64:65], s[0:1], {KA_AX}')
        a(f's_load_dwordx2 s[90:91], s[0:1], {KA_CKV}')
        a(f's_load_dwordx4 s[96:99], s[0:1], {KA_WUK}')
        a(f's_load_dwordx2 s[38:39], s[0:1], {KA_GW}')
        a(f's_load_dwordx2 s[66:67], s[0:1], {KA_WQ}')
        a(f's_load_dwordx2 s[68:69], s[0:1], {KA_W1}')
        a(f's_load_dwordx2 s[86:87], s[0:1], {KA_B1}')
        a(f's_load_dwordx2 s[70:71], s[0:1], {KA_WO}')
        a(f's_load_dwordx2 s[72:73], s[0:1], {KA_W2}')
        a(f's_load_dwordx2 s[100:101], s[0:1], {KA_DBG}')
        a(f'v_lshrrev_b32 v1, 6, v0')
        a(f'v_and_b32 v2, 63, v0')
        a(f'v_lshlrev_b32 v{V_L16}, 4, v2')
        a(f'v_readfirstlane_b32 s{s_w}, v1')
        a(f's_and_b32 s{s_t0}, s2, 7')
        a(f's_lshr_b32 s{s_t1}, s2, 3')
        a(f's_lshl_b32 s{s_h}, s{s_t0}, 2')
        a(f's_and_b32 s{s_t0}, s{s_t1}, 3')
        a(f's_add_u32 s{s_h}, s{s_h}, s{s_t0}')
        a(f's_lshr_b32 s{s_i}, s{s_t1}, 2')
        a(f's_add_u32 s{s_g1}, s{s_i}, 1')
        a(f's_lshl_b32 s{s_g1}, s{s_g1}, 2')
        a(f's_lshl_b32 s36, s{s_i}, 2'); a(f's_add_u32 s36, s36, s{s_w}')
        a(f's_lshl_b32 s37, s{s_i}, 2'); a(f's_sub_u32 s37, 60, s37'); a(f's_add_u32 s37, s37, s{s_w}')
        vq = VmQueue()
        P = Proj(a, vq, s_w, 16384, 16384, ACC=64, FB=(192, 216), fbk='a', VA=8, V_L16=V_L16, VT=33, SG=40,
                 wflags=(' nt' if opt.get('nt', True) else ''), stamps=self.st, opt=opt)
        P.setup_addrs(set_l16=False)
        a('s_waitcnt lgkmcnt(0)')
        make_srd(a, S_X, 64, 0, 2*MB); make_srd(a, S_GW, 38, 0, 1024)
        a(f's_lshl_b32 s82, s2, 3'); a(f's_lshl_b32 s83, s{s_w}, 1'); a('s_add_u32 s82, s82, s83')
        a('s_lshl_b32 s83, s82, 2'); a('s_lshl_b32 s82, s82, 10')
        LB_ = 40
        a(f'buffer_load_dwordx4 v[{LB_}:{LB_+3}], v{V_L16}, s[{S_X}:{S_X+3}], s82 offen'); vq.push('ln')
        a(f'buffer_load_dwordx4 v[{LB_+4}:{LB_+7}], v{V_L16}, s[{S_X}:{S_X+3}], s82 offen offset:1024'); vq.push('ln')
        a(f'buffer_load_dwordx4 v[{LB_+16}:{LB_+19}], v{V_L16}, s[{S_GW}:{S_GW+3}], 0 offen'); vq.push('ln')
        make_srd(a, S_CK, 90, 0, 2*MB); make_srd(a, S_WK, 96, 0, 4*MB); make_srd(a, S_WV, 98, 0, 4*MB)
        initKV = [f's_lshl_b32 s{P.s_a0}, s{s_i}, 18', f's_lshl_b32 s49, s{s_w}, 16', f's_add_u32 s{P.s_a0}, s{P.s_a0}, s49',
                  f's_add_u32 s{P.s_a1}, s{P.s_a0}, 32768',
                  f's_lshl_b32 s{P.s_wo}, s{s_w}, 17', f's_lshl_b32 s49, s{s_h}, 8', f's_add_u32 s{P.s_wo}, s{P.s_wo}, s49']
        initQ = [f's_lshl_b32 s{P.s_a0}, s36, 15', f's_lshl_b32 s{P.s_a1}, s37, 15',
                 f's_lshl_b32 s{P.s_wo}, s{s_w}, 17', f's_lshl_b32 s49, s{s_h}, 8', f's_add_u32 s{P.s_wo}, s{P.s_wo}, s49']
        ps = [dict(swap=False, srdA=S_CK, srdW=S_WK, init=initKV, epi=lambda: None, acck='v'),
              dict(swap=True, srdA=S_CK, srdW=S_WV, init=initKV, epi=lambda: None, acck='a'),
              dict(swap=False, srdA=S_X, srdW=S_WQ, init=initQ, epi=lambda: None, acck='v')]
        P.prologue(ps[0])
        make_srd(a, S_WQ, 66, 0, 4*MB)
        make_srd(a, S_O, 34, WS_K, 32*MB)
        make_srd(a, S_H, 34, WS_H, 2*MB); make_srd(a, S_G, 34, WS_G, 8192)
        real_a = self.a; tmp_a = Asm(); self.a = tmp_a
        M = self.setup_attn_regs()
        self.a = real_a; M.a = real_a
        c = 0x3e0293ee
        setup = tmp_a.lines + [f'v_mov_b32 v2, {hex(c)}', f'v_mov_b32 v3, {hex(c)}'] + [f'v_accvgpr_write_b32 a{e}, 0' for e in range(64)]
        setupG = [(setup[k:k+4], None) for k in range(0, len(setup), 4)]
        perS = -(-len(setupG)//5)
        vq.wait_for(a, 'ln')
        gen_proj.R.V_L16 = V_L16
        st_save = STF.st; STF.st = ' sc1'
        gen_proj.emit_ln_compute(a, LB_, S_H, S_G, 82, 83, 64)
        for _ in range(3): vq.push('lnst')
        a('s_getreg_b32 s33, hwreg(HW_REG_XCC_ID, 0, 4)')
        a('s_or_b32 s33, s33, 0x50')
        make_srd(a, 76, 34, WS_HF, 4096)
        a(f's_lshl_b32 s32, s{s_h}, 7')
        a('v_mov_b32 v41, 0'); a(f'v_lshrrev_b32 v42, 2, v{V_L16}')
        a(f's_or_b32 s{s_t0}, s{s_w}, s{s_i}'); a(f's_cmp_eq_u32 s{s_t0}, 0'); a('s_cselect_b32 exec_lo, -1, 0'); a('s_mov_b32 exec_hi, 0')
        a('buffer_store_dword v41, v42, s[76:79], s32 offen sc1'); vq.push('lnst')
        a('s_mov_b64 exec, -1')
        if opt.get('fusefin'):
            make_srd(a, 76, 34, WS_FL, 112*128)
            a('s_lshl_b32 s32, s2, 7')
            a(f's_cmp_eq_u32 s{s_w}, 0'); a('s_cselect_b32 exec_lo, -1, 0'); a('s_mov_b32 exec_hi, 0')
            a('buffer_store_dword v41, v42, s[76:79], s32 offen sc1'); vq.push('lnst')
            a('s_mov_b64 exec, -1')
        a(f's_and_b32 s91, s{s_h}, 3'); a(f's_cmp_eq_u32 s{s_w}, 0'); a('s_cselect_b32 s91, s91, 0xff')
        a(f's_lshl_b32 s{s_t0}, s{s_h}, 6'); a(f's_lshl_b32 s{s_t1}, s{s_i}, 3'); a(f's_add_u32 s{s_t0}, s{s_t0}, s{s_t1}')
        a(f's_lshl_b32 s{s_t1}, s{s_w}, 1'); a(f's_add_u32 s{s_t0}, s{s_t0}, s{s_t1}'); a(f's_lshl_b32 s{s_t0}, s{s_t0}, 13')
        for k in range(4):
            a(f's_add_u32 s{50+k}, s{s_t0}, {k*4096}')
            a(f's_add_u32 s{96+k}, s{s_t0}, {16*MB + k*4096}')
        STF.st = opt.get('kst', opt.get('kvst', ''))
        KG = frag_store_groups(P, 'K', 'v', S_O, 50, None, v_scale=2, tag='kst')
        STF.st = opt.get('vst', opt.get('kvst', ''))
        VGs = frag_store_groups(P, 'V', 'a', S_O, 96, 40, tag='vst')
        STF.st = st_save
        nv = opt.get('vstages', 3); sigt = opt.get('sigt', nv+1)
        perK = len(KG)//8; perV = len(VGs)//nv
        KV0 = self.kv_groups('K', 6); VV0 = self.kv_groups('V', 4)
        zero = [([f'v_accvgpr_write_b32 a{64+4*k+e}, 0' for e in range(4)], None) for k in range(16)]
        srds = self.kv_srd_lines()
        dbg = Asm(); make_srd(dbg, 76, 100, 0, 256)
        hfl = Asm(); make_srd(hfl, 92, 34, WS_HF, 4096)
        def lnsig(k): return (dbg.lines + ['v_mov_b32 v58, 0', 'v_mov_b32 v59, s33', f's_cmp_eq_u32 s91, {k}', 's_cselect_b64 exec, 1, 0',
               f'buffer_store_byte v59, v58, s[76:79], s2 offen sc1', 's_mov_b64 exec, -1'], 'flag')
        idaddr = [f'v_lshlrev_b32 v57, 1, v{V_L16}', f's_lshr_b32 s{s_t1}, s{s_h}, 2', f's_and_b32 s32, s{s_h}, 3', 's_lshl_b32 s32, s32, 3', f's_add_u32 s48, s32, s{s_t1}']
        idld = (dbg.lines + idaddr + ['buffer_load_ubyte v56, v57, s[76:79], s48 offen sc1'], 'id')
        sig = dbg.lines + hfl.lines + [f's_cmp_eq_u32 s{s_w}, 0', f's_cbranch_scc0 {N}_nosig', f's_mov_b32 s{s_cnt}, 0',
               f'{N}_idchk:',
               'v_readfirstlane_b32 s32, v56', 's_and_b32 s32, s32, 0x40', 's_cmp_lg_u32 s32, 0', f's_cbranch_scc1 {N}_idok',
               f's_add_u32 s{s_cnt}, s{s_cnt}, 1', f's_cmp_ge_u32 s{s_cnt}, 0x20000', f's_cbranch_scc1 {N}_idok',
               'buffer_load_ubyte v56, v57, s[76:79], s48 offen sc1', 's_waitcnt vmcnt(0)', 's_nop 0', f's_branch {N}_idchk',
               f'{N}_idok:',
               'v_cmp_ne_u32 vcc, s33, v56', 's_nop 3', 's_and_b32 s32, vcc_lo, 0xff', 's_cmp_eq_u32 s32, 0',
               f's_cbranch_scc1 {N}_samexcd', 'buffer_wbl2 sc1', 's_waitcnt vmcnt(0)', f'{N}_samexcd:',
               f's_lshl_b32 s32, s{s_h}, 7', f's_lshl_b32 s{s_t1}, s{s_i}, 2', f's_add_u32 s32, s32, s{s_t1}',
               'v_mov_b32 v41, 0', 'v_mov_b32 v42, 1', 's_mov_b64 exec, 1',
               'buffer_store_dword v42, v41, s[92:95], s32 offen sc1', 's_mov_b64 exec, -1', f'{N}_nosig:']
        pollld = ['buffer_load_dword v232, v233, s[76:79], 0 offen sc1', 'buffer_load_dword v235, v233, s[92:95], s91 offen sc1']
        pollpre = dbg.lines + hfl.lines + [f's_lshl_b32 s91, s{s_h}, 7', f'v_lshrrev_b32 v233, 2, v{V_L16}', 'v_mov_b32 v234, 0x40404040',
                   f's_cmp_eq_u32 s{s_w}, 0', f's_cbranch_scc0 {N}_nopoll0'] + pollld + [f'{N}_nopoll0:']
        def pfw(srd_): return ([f'v_lshrrev_b32 v58, 5, v{V_L16}', 'v_lshlrev_b32 v58, 13, v58', f'v_bfe_u32 v59, v{V_L16}, 4, 1', 'v_lshl_add_u32 v58, v59, 7, v58',
               f's_lshl_b32 s32, s{s_w}, 4', f's_lshl_b32 s49, s{s_i}, 6', 's_add_u32 s32, s32, s49', 's_lshl_b32 s32, s32, 13',
               f's_lshl_b32 s49, s{s_h}, 8', 's_add_u32 s32, s32, s49', 's_mov_b32 exec_hi, 0',
               f'buffer_load_dword v253, v58, s[{srd_}:{srd_+3}], s32 offen', 's_mov_b64 exec, -1'], 'pf')
        def pfx(qt): return ([f'v_lshrrev_b32 v58, 7, v{V_L16}', 'v_lshlrev_b32 v58, 10, v58', f'v_bfe_u32 v59, v{V_L16}, 4, 3', 'v_lshl_add_u32 v58, v59, 7, v58',
               f's_lshl_b32 s32, s{qt}, 5', f's_and_b32 s49, s{s_h}, 3', 's_lshl_b32 s49, s49, 3', 's_add_u32 s32, s32, s49', 's_lshl_b32 s32, s32, 10',
               f'buffer_load_dword v253, v58, s[{S_X}:{S_X+3}], s32 offen'], 'pf')
        def pfc(k): return ([f'v_lshrrev_b32 v58, 7, v{V_L16}', 'v_lshlrev_b32 v58, 10, v58', f'v_bfe_u32 v59, v{V_L16}, 4, 3', 'v_lshl_add_u32 v58, v59, 7, v58',
               f's_lshl_b32 s32, s{s_i}, 8', f's_and_b32 s49, s{s_h}, 3', 's_lshl_b32 s49, s49, 6', 's_add_u32 s32, s32, s49', f's_lshl_b32 s49, s{s_w}, 4', 's_add_u32 s32, s32, s49',
               f's_add_u32 s32, s32, {8*k}', 's_lshl_b32 s32, s32, 10', f'buffer_load_dword v253, v58, s[{S_CK}:{S_CK+3}], s32 offen'], 'pf')
        def pf1():
            l = Asm(); make_srd(l, 76, 68, 0, 2048*3584)
            l(f'v_lshlrev_b32 v58, 3, v{V_L16}'); l('s_lshl_b32 s32, s2, 2'); l(f's_add_u32 s32, s32, s{s_w}'); l('s_mul_i32 s32, s32, 7168')
            l('buffer_load_dword v253, v58, s[76:79], s32 offen')
            return (l.lines, 'pf')
        pf = opt.get('pfa', 'vq')
        def xe(p, t):
            if p == 0:
                g = list(setupG[(t-1)*perS:t*perS]) if 1 <= t <= 5 else []
                if t == 0:
                    if 'k' in pf: g.append(pfw(S_WK))
                    if 'c' in pf: g += [pfc(0), pfc(1)]
                if '1' in pf and t == 6: g.append(pf1())
                if 'v' in pf and t == opt.get('pfv_t', 1): g.append(pfw(S_WV))
                return g
            if p == 1:
                g = list(KG[t*perK:(t+1)*perK])
                if 'q' in pf and t == 1: g.append(pfw(S_WQ))
                if 'x' in pf and t == 2: g.append(pfx(36))
                if 'x' in pf and t == 3: g.append(pfx(37))
                if '2' in pf and t == 5: g.append(pf1())
                return g
            if p == 2:
                g = []
                if t < nv: g += VGs[t*perV:(t+1)*perV] + ([idld] if t == 0 else [])
                if t == nv: g += zero
                if t == 6: g += [(srds, None)]
                if t == 7: g += [(pollpre, None)]
                return g
            return []
        late_pf = opt.get('pflate', {})
        def xl(p, t):
            g = []
            if p == 0 and 2 <= t <= 5: g.append(lnsig(t-2))
            if p == 2 and t == sigt: g.append((sig, None))
            k = late_pf.get((p, t))
            if k == 'v': g.append(pfw(S_WV))
            if k == 'q': g.append(pfw(S_WQ))
            if k == '1': g.append(pf1())
            if k == 'a': g.append(pfx(36))
            if k == 'b': g.append(pfx(37))
            return g
        assert sigt >= nv + 1 and sigt <= 6 and 48 % nv == 0
        P.start_compute()
        self.stamp()
        P.run(ps, extra_early=xe, extra_late=xl)
        self.stamp()
        self.q_to_frags_cvt()
        chk = ['s_waitcnt vmcnt(0)', 'v_and_b32 v232, v234, v232', 'v_cmp_ne_u32 vcc, v234, v232', 'v_cmp_ne_u32 s[54:55], 1, v235', 's_nop 3',
               's_and_b32 s32, s54, 0xff', 's_or_b32 s32, s32, vcc_lo', 's_or_b32 s32, s32, vcc_hi', 's_cmp_eq_u32 s32, 0']
        for l in [f's_cmp_eq_u32 s{s_w}, 0', f's_cbranch_scc0 {N}_polled', f's_mov_b32 s{s_cnt}, 0', f'{N}_poll:'] + chk + \
                 [f's_cbranch_scc1 {N}_polled', f's_add_u32 s{s_cnt}, s{s_cnt}, 1', f's_cmp_ge_u32 s{s_cnt}, 0x20000', f's_cbranch_scc1 {N}_polled',
                  f's_sleep {opt.get("sleep", 8)}'] + pollld + [f's_branch {N}_poll', f'{N}_polled:']: a(l)
        a('s_barrier')
        for g in KV0 + VV0:
            for l in g[0]: a(l)
        self.stamp()
        self.q_to_frags_srd()
        return M


class Main2(Main):
    def emit_head(self):
        a = self.a; N = self.name; opt = self.opt
        S_CK, S_WK, S_X, S_O, S_WV, S_WQ = 4, 8, 12, 16, 92, 60
        S_H, S_G, S_GW = 76, 48, 52
        a(f's_cmp_ge_u32 s2, 256')
        a(f's_cbranch_scc1 {N}_end')
        self.stamp()
        a(f's_load_dwordx2 s[90:91], s[0:1], {KA_CKV}')
        a(f's_load_dwordx4 s[96:99], s[0:1], {KA_WUK}')
        a(f's_load_dwordx2 s[34:35], s[0:1], {KA_WS}')
        a(f's_load_dwordx2 s[64:65], s[0:1], {KA_AX}')
        a(f's_load_dwordx2 s[38:39], s[0:1], {KA_GW}')
        a(f's_load_dwordx2 s[66:67], s[0:1], {KA_WQ}')
        a(f's_load_dwordx2 s[68:69], s[0:1], {KA_W1}')
        a(f's_load_dwordx2 s[86:87], s[0:1], {KA_B1}')
        a(f's_load_dwordx2 s[70:71], s[0:1], {KA_WO}')
        a(f's_load_dwordx2 s[72:73], s[0:1], {KA_W2}')
        a(f's_load_dwordx2 s[100:101], s[0:1], {KA_DBG}')
        a(f'v_lshrrev_b32 v1, 6, v0')
        a(f'v_and_b32 v2, 63, v0')
        a(f'v_lshlrev_b32 v{V_L16}, 4, v2')
        a(f'v_readfirstlane_b32 s{s_w}, v1')
        a(f's_and_b32 s{s_t0}, s2, 7')
        a(f's_lshr_b32 s{s_t1}, s2, 3')
        a(f's_lshl_b32 s{s_h}, s{s_t0}, 2')
        a(f's_and_b32 s{s_t0}, s{s_t1}, 3')
        a(f's_add_u32 s{s_h}, s{s_h}, s{s_t0}')
        a(f's_lshr_b32 s{s_i}, s{s_t1}, 2')
        a(f's_add_u32 s{s_g1}, s{s_i}, 1')
        a(f's_lshl_b32 s{s_g1}, s{s_g1}, 2')
        a(f's_lshl_b32 s36, s{s_i}, 2'); a(f's_add_u32 s36, s36, s{s_w}')
        a(f's_lshl_b32 s37, s{s_i}, 2'); a(f's_sub_u32 s37, 60, s37'); a(f's_add_u32 s37, s37, s{s_w}')
        vq = VmQueue()
        a('s_waitcnt lgkmcnt(0)')
        make_srd(a, S_CK, 90, 0, 2*MB); make_srd(a, S_WK, 96, 0, 4*MB); make_srd(a, S_WV, 98, 0, 4*MB)
        make_srd(a, S_X, 64, 0, 2*MB); make_srd(a, S_GW, 38, 0, 1024); make_srd(a, S_WQ, 66, 0, 4*MB)
        KV = ProjKV(a, vq, s_w, S_CK, S_WK, S_WV, ACCK=64, ACCV=64, VR=40, VT=33, SG=(38, 39, 64, 65, 66, 67, 90), stamps=self.st, opt=opt)
        KV.setup(s_i, s_h)
        LB_ = 232
        a(f's_lshl_b32 s82, s2, 3'); a(f's_lshl_b32 s83, s{s_w}, 1'); a('s_add_u32 s82, s82, s83')
        a('s_lshl_b32 s83, s82, 2'); a('s_lshl_b32 s82, s82, 10')
        a(f'buffer_load_dwordx4 v[{LB_}:{LB_+3}], v{V_L16}, s[{S_X}:{S_X+3}], s82 offen'); vq.push('ln')
        a(f'buffer_load_dwordx4 v[{LB_+4}:{LB_+7}], v{V_L16}, s[{S_X}:{S_X+3}], s82 offen offset:1024'); vq.push('ln')
        a(f'buffer_load_dwordx4 v[{LB_+16}:{LB_+19}], v{V_L16}, s[{S_GW}:{S_GW+3}], 0 offen'); vq.push('ln')
        rest0 = KV.prologue(opt.get('kvpro', 2))
        P = Proj(a, vq, s_w, 16384, 65536, ACC=64, FB=(192, 216), fbk='a', VA=8, V_L16=V_L16, VT=33, SG=40,
                 wflags=(' nt' if opt.get('nt', False) else ''), stamps=self.st, opt=opt)
        P.setup_addrs(set_l16=False)
        make_srd(a, S_O, 34, WS_K, 32*MB)
        make_srd(a, S_H, 34, WS_H, 2*MB); make_srd(a, S_G, 34, WS_G, 8192)
        real_a = self.a; tmp_a = Asm(); self.a = tmp_a; self.mtmp = 232
        M = self.setup_attn_regs()
        self.a = real_a; M.a = real_a
        c = 0x3e0293ee
        setup = tmp_a.lines + [f'v_mov_b32 v2, {hex(c)}', f'v_mov_b32 v3, {hex(c)}']
        setupG = [(setup[k:k+4], None) for k in range(0, len(setup), 4)]
        perS = -(-len(setupG)//6)
        vq.wait_for(a, 'ln')
        gen_proj.R.V_L16 = V_L16
        st_save = STF.st; STF.st = ' sc1'
        gen_proj.emit_ln_compute(a, LB_, S_H, S_G, 82, 83, 64)
        for _ in range(3): vq.push('lnst')
        a('s_getreg_b32 s33, hwreg(HW_REG_XCC_ID, 0, 4)')
        a('s_or_b32 s33, s33, 0x10')
        make_srd(a, 76, 100, 0, 256)
        a('v_mov_b32 v33, 0'); a('v_mov_b32 v34, s33')
        a(f's_cmp_eq_u32 s{s_w}, 0'); a('s_cselect_b64 exec, 1, 0')
        a('buffer_store_byte v34, v33, s[76:79], s2 offen sc1'); vq.push('flag')
        a('s_mov_b64 exec, -1')
        npre = 8*opt.get('kvpre2', 1)
        for g in rest0[:npre]: KV.emit_group(g)
        KV.initial = rest0[npre:]
        a(f's_lshl_b32 s{s_t0}, s{s_h}, 6'); a(f's_lshl_b32 s{s_t1}, s{s_i}, 3'); a(f's_add_u32 s{s_t0}, s{s_t0}, s{s_t1}')
        a(f's_lshl_b32 s{s_t1}, s{s_w}, 1'); a(f's_add_u32 s{s_t0}, s{s_t0}, s{s_t1}'); a(f's_lshl_b32 s{s_t0}, s{s_t0}, 13')
        for k in range(4):
            a(f's_add_u32 s{50+k}, s{s_t0}, {k*4096}')
            a(f's_add_u32 s{96+k}, s{s_t0}, {16*MB + k*4096}')
        STF.st = opt.get('kvst', '')
        KG = frag_store_groups(P, 'K', 'v', S_O, 50, None, v_scale=2, tag='kst')
        VGs = frag_store_groups(P, 'V', 'a', S_O, 96, 40, tag='vst')
        STF.st = st_save
        nv = opt.get('vstages', 3); sigt = opt.get('sigt', nv+1)
        perV = len(VGs)//nv
        KV0 = self.kv_groups('K', 6); VV0 = self.kv_groups('V', 4)
        zero = [([f'v_accvgpr_write_b32 a{4*k+e}, 0' for e in range(4)], None) for k in range(32)]
        srds = self.kv_srd_lines()
        dbg = Asm(); make_srd(dbg, 76, 100, 0, 256)
        one = lambda val, lab: [f's_cmp_eq_u32 s{s_w}, 0', f's_cbranch_scc0 {N}_{lab}']
        idld = dbg.lines + [f's_cmp_eq_u32 s{s_w}, 0', f's_cbranch_scc0 {N}_noid',
               f'v_lshlrev_b32 v57, 1, v{V_L16}', f's_lshr_b32 s{s_t1}, s{s_h}, 2', f's_and_b32 s32, s{s_h}, 3', 's_lshl_b32 s32, s32, 3', f's_add_u32 s32, s32, s{s_t1}',
               'buffer_load_ubyte v56, v57, s[76:79], s32 offen sc1', f'{N}_noid:']
        lnsig = dbg.lines + ['s_or_b32 s32, s33, 0x40', 'v_mov_b32 v58, 0', 'v_mov_b32 v59, s32', f's_cmp_eq_u32 s{s_w}, 0', 's_cselect_b64 exec, 1, 0',
               f'buffer_store_byte v59, v58, s[76:79], s2 offen sc1', 's_mov_b64 exec, -1']
        sig = [f's_cmp_eq_u32 s{s_w}, 0', f's_cbranch_scc0 {N}_nosig',
               'v_and_b32 v56, 0x1f, v56', 'v_cmp_ne_u32 vcc, s33, v56', 's_nop 3', 's_and_b32 s32, vcc_lo, 0xff', 's_cmp_eq_u32 s32, 0',
               f's_cbranch_scc1 {N}_samexcd', 'buffer_wbl2 sc1', 's_waitcnt vmcnt(0)', f'{N}_samexcd:',
               's_or_b32 s32, s33, 0xc0', 'v_mov_b32 v41, 0', 'v_mov_b32 v42, s32', 's_mov_b64 exec, 1',
               f'buffer_store_byte v42, v41, s[76:79], s2 offen sc1', 's_mov_b64 exec, -1', f'{N}_nosig:']
        pollpre = [f's_cmp_eq_u32 s{s_w}, 0', f's_cbranch_scc0 {N}_nopoll0',
                   f's_lshr_b32 s{s_t1}, s{s_h}, 4', f's_and_b32 s32, s{s_h}, 3', 's_lshl_b32 s32, s32, 1', f's_add_u32 s{s_t1}, s{s_t1}, s32',
                   f's_lshr_b32 s32, s{s_h}, 2', 's_and_b32 s32, s32, 3', 's_lshl_b32 s32, s32, 3', 's_lshl_b32 s32, 0x80, s32', 's_or_b32 s32, s32, 0x40404040',
                   f'v_lshrrev_b32 v42, 2, v{V_L16}', f'v_bfe_u32 v44, v{V_L16}, 4, 3', f'v_cmp_eq_u32 vcc, s{s_t1}, v44', 'v_mov_b32 v43, 0x40404040', 'v_mov_b32 v45, s32',
                   'v_cndmask_b32 v43, v43, v45, vcc',
                   f'buffer_load_dword v41, v42, s[76:79], 0 offen sc1', f'{N}_nopoll0:']
        initQ = [f's_lshl_b32 s{P.s_a0}, s36, 15', f's_lshl_b32 s{P.s_a1}, s37, 15',
                 f's_lshl_b32 s{P.s_wo}, s{s_w}, 17', f's_lshl_b32 s49, s{s_h}, 8', f's_add_u32 s{P.s_wo}, s{P.s_wo}, s49']
        qpass = [dict(swap=False, srdA=S_X, srdW=S_WQ, init=initQ, epi=lambda: None, acck='v')]
        Q0 = P.dma_stage(S_X, S_WQ, (0, 0), pre=initQ); Q1 = P.dma_stage(S_X, S_WQ, (0, 1)); Q2 = P.dma_stage(S_X, S_WQ, (0, 2))
        def touch(lines): return (lines, 'pf')
        pfw = [f'v_lshrrev_b32 v58, 5, v{V_L16}', 'v_lshlrev_b32 v58, 13, v58', f'v_bfe_u32 v59, v{V_L16}, 4, 1', 'v_lshl_add_u32 v58, v59, 7, v58',
               f's_and_b32 s32, s{s_w}, 1', 's_lshl_b32 s32, s32, 5', f's_lshl_b32 s49, s{s_i}, 6', 's_add_u32 s32, s32, s49', 's_lshl_b32 s32, s32, 13',
               f's_lshl_b32 s49, s{s_h}, 8', 's_add_u32 s32, s32, s49', f'buffer_load_dword v253, v58, s[{S_WQ}:{S_WQ+3}], s32 offen']
        def pfx(qt): return [f'v_lshrrev_b32 v58, 7, v{V_L16}', 'v_lshlrev_b32 v58, 10, v58', f'v_bfe_u32 v59, v{V_L16}, 4, 3', 'v_lshl_add_u32 v58, v59, 7, v58',
               f's_lshl_b32 s32, s{qt}, 5', f's_and_b32 s49, s{s_h}, 3', 's_lshl_b32 s49, s49, 3', 's_add_u32 s32, s32, s49', 's_lshl_b32 s32, s32, 10',
               f'buffer_load_dword v253, v58, s[{S_X}:{S_X+3}], s32 offen']
        def kvx(t):
            early, late = [], []
            if opt.get('pfq', True):
                if t == 7: early += [touch(pfw)]
                if t == 8: early += [touch(pfx(36))]
                if t == 9: early += [touch(pfx(37))]
            if 1 <= t <= 6: early += setupG[(t-1)*perS:t*perS]
            if t == opt.get('lnsig_t', 4): late += [(lnsig, 'flag')]
            if t == 13: late += Q0[:4]
            if t == 14: early += Q0[4:]; late += Q1[:4]
            if t == 15: early += Q1[4:]; late += Q2[:3]
            return early, late
        def handover():
            return (0, 0), P.read_addr_update(), P.kstep_reads(0, 0)
        KV.start()
        self.stamp()
        KV.run(kvx, handover)
        P.lq = list(KV.lq); P.g_pending = Q2[3:]
        self.stamp()
        a('s_nop 7')
        for g in KG: P.emit_group(g)
        self.stamp()
        def xe(p, t):
            g = []
            if t < nv: g += VGs[t*perV:(t+1)*perV] + ([(idld, None)] if t == 0 else [])
            if t == nv: g += zero[:16]
            if t == nv+1: g += zero[16:]
            if t == 6: g += [(srds, None)]
            if t == 7: g += [(pollpre, None)]
            return g
        def xl(p, t):
            return [(sig, None)] if t == sigt else []
        assert sigt >= nv + 1 and sigt <= 6 and 48 % nv == 0
        P.run(qpass, extra_early=xe, extra_late=xl)
        self.stamp()
        chk = ['s_waitcnt vmcnt(0)', 'v_and_b32 v41, v43, v41', 'v_cmp_ne_u32 vcc, v43, v41', 's_nop 3', 's_cmp_eq_u64 vcc, 0']
        for l in [f's_cmp_eq_u32 s{s_w}, 0', f's_cbranch_scc0 {N}_polled', f's_mov_b32 s{s_cnt}, 0', f'{N}_poll:'] + chk + \
                 [f's_cbranch_scc1 {N}_polled', f's_add_u32 s{s_cnt}, s{s_cnt}, 1', f's_cmp_ge_u32 s{s_cnt}, 0x20000', f's_cbranch_scc1 {N}_polled',
                  f's_sleep {opt.get("sleep", 8)}', f'buffer_load_dword v41, v42, s[76:79], 0 offen sc1', f's_branch {N}_poll', f'{N}_polled:']: a(l)
        a('s_barrier')
        for g in KV0 + VV0:
            for l in g[0]: a(l)
        self.stamp()
        self.q_to_frags()
        return M
```

```python
from asmlib import *
from layout import *
from gen_proj2 import Proj, VmQueue
from gen_proj import make_srd
import gen_t2
from gen_mlp import Mlp1

OA, OB = 0, 64
QA, QB = 0, 32
PFB = (128, 152)
FR = 192
NFR = 16
S = [[64, 80], [96, 112]]
P = [[128, 136], [144, 152]]
CA, CB = 160, 176
PT = 192
PS = [200, 201]
LA, LB = 202, 203
V_L16 = 204; V_KA = 205; V_VA = 206
V_RELA = 207; V_RELB = 208; V_NEG = 209
V_T = 210
V_DA, V_DB = 226, 227
V_AA, V_AB = 228, 229
V_MASK = 230; V_VBASE = 231; V_REL = [232, 233]
V_ST = 236
V_MA, V_MB, V_MR = 214, 216, 218
MACC = 128
S_MW, S_MH = 12, 60
s_ma, s_mb, s_ml = 85, 88, 89
S_K, S_V, S_Q, S_C = 4, 8, 12, 16
s_w, s_h, s_i, s_g1, s_cnt, s_ks, s_vs, s_t0, s_thr = 20, 21, 22, 23, 24, 25, 26, 27, 28
s_t1, s_step = 29, 32
S_RET = 30
S_M = 40
D = 8
THR = 0x4e800000

def v(b, n=1): return f'v{b}' if n == 1 else f'v[{b}:{b+n-1}]'
def ar(b, n=1): return f'a{b}' if n == 1 else f'a[{b}:{b+n-1}]'
MF = 'v_mfma_f32_32x32x16_bf16'

class Iter:
    def __init__(self, qk, sm, pv, next_qk, par, czero=False):
        self.qk, self.sm, self.pv, self.next_qk, self.par, self.czero = qk, sm, pv, next_qk, par, czero

def nfr(mode): return {None: 0, 1: 8, 2: 16}[mode]

class Attn:
    def __init__(self, a, name, diag=False, **opt):
        self.a = a; self.name = name; self.diag = diag; self.opt = opt; self.st = (RTStamps if opt.get('rt') else Stamps)(a, diag, vreg=254, sreg=30)
        global D
        D = opt.get('D', 8); self.mlp = opt.get('mlp', True); self.nomlp_i = opt.get('nomlp_i', 7)
        self.phase = 0
        self.slow = []
        self.uid = 0
        self.vm = {}

    def simulate(self):
        res = {}
        self.vmm = {}
        for i in range(8):
            G1 = 4*(i+1)
            def mode(g): return None if (g < 0 or g > 33) else (1 if g < G1 else 2)
            def first(g):
                return g if g <= G1 else G1 + 2*(g-G1)
            def r(g): return 1 if g < G1 else 2
            issued = []
            def issue(kind, b0, nb):
                for b in range(b0, b0+nb):
                    issued.extend([(kind, b)]*2)
            kd = 0; vd = 0
            issue('K', 0, 6); issue('V', 0, 4)
            kd, vd = 6, 4
            kfree = 0; vfree = 0
            def need(n):
                req = []
                if mode(n+3): req += [('K', b) for b in range(first(n+3), first(n+3)+r(n+3))]
                if mode(n+1): req += [('V', b) for b in range(first(n+1), first(n+1)+r(n+1))]
                last = -1
                for k, x in enumerate(issued):
                    if x in req: last = k
                for x in req: assert x in issued, (i, n, x)
                return len(issued) - 1 - last if last >= 0 else None
            def pos(n):
                if n <= -1: return ('pro', n)
                if n <= G1-5:
                    if n >= G1-6 : return ('p1peel', n & 1)
                    return ('p1loop', n & 1)
                if n <= G1-1: return ('trans', n-G1)
                if n <= 31:
                    if n >= 30: return ('p2peel', n & 1)
                    return ('p2loop', n & 1)
                return ('epi', n)
            for n in range(-3, 34):
                if n == -1 and self.mlp: issued.extend([('M', 0)]*4 + [('M', 1)]*4)
                if n >= -2:
                    if mode(n) and n <= 31:
                        b0 = vd; nb = r(n)
                        assert b0 + nb - 8 <= (first(n-1) if n-1 >= 0 else 0), (i, n, b0, nb)
                        issue('V', b0, nb); vd += nb
                p = pos(n)
                if self.mlp and 0 <= n <= 31:
                    idx = [k for k, x in enumerate(issued) if x == ('M', n)]
                    if idx:
                        Nm = len(issued) - 1 - idx[-1]
                        self.vmm[p] = min(self.vmm.get(p, 99), Nm)
                    else: assert n >= 32 or i == 7 or True
                    if p[0] != 'p2peel': issued.extend([('M', n+2)]*4)
                N = need(n)
                if N is not None:
                    res[p] = min(res.get(p, 99), N)
                if mode(n+3) or (n <= 31 and n >= -3):
                    nb = r(n+3)
                    if n <= 30 or True:
                        assert kd + nb - 8 <= first(n+3), (i, n, kd, nb)
                        issue('K', kd, nb); kd += nb
                if n == G1-1: issued.extend([('S', 0)]*8)
        self.vm = res
        return res

    def dma_group(self, kind, nb, split=False):
        srd_, so = (S_K, s_ks) if kind == 'K' else (S_V, s_vs)
        g = []
        if kind == 'K':
            pre = [f's_and_b32 m0, s{so}, 0xffff']
        else:
            pre = [f's_and_b32 s{s_t0}, s{so}, 0xffff', f's_or_b32 m0, s{s_t0}, 0x10000']
        n = 2*nb
        if split: g.append(pre)
        for k in range(n):
            l = []
            if k == 0 and not split: l += pre + ['s_nop 0']
            off = f' offset:{k*1024}' if k else ''
            l.append(f'buffer_load_dwordx4 v{V_L16}, s[{srd_}:{srd_+3}], s{so} offen{off} lds')
            if k == n-1: l.append(f's_add_u32 s{so}, s{so}, {nb*8192}')
            g.append(l)
        return g

    def mlp_dma_groups(self, par):
        g = []
        for vo, srd_, so, step, off in ((V_MA, S_MW, s_ma, 16*3584, 0), (V_MB, S_MH, s_mb, 16*1024, 2048)):
            g.append([f's_add_u32 m0, s{s_ml}, {par*4096+off}'])
            g.append([f'buffer_load_dwordx4 v{vo}, s[{srd_}:{srd_+3}], s{so} offen lds'])
            g.append([f'buffer_load_dwordx4 v{vo+1}, s[{srd_}:{srd_+3}], s{so} offen offset:1024 lds', f's_add_u32 s{so}, s{so}, {step}'])
        return g

    def sm_ops(self, it):
        sm = it.sm; pr = it.par ^ 1
        ops = []
        masked = sm.endswith('m')
        init = sm == 'init'
        mode = '1' if init else sm[0]
        for b in range(2):
            Sb = S[pr][b]; Pb = P[pr][b]
            domask = masked and (mode == '2' or b == 0)
            blk = []
            if domask:
                def cmp(e): return (4, f'v_cmp_ge_i32 s[{S_M+2*(e%8)}:{S_M+2*(e%8)+1}], v{V_REL[b]}, {8*(e>>2)+(e&3)}')
                def cnd(e): return (4, f'v_cndmask_b32 v{Sb+e}, v{V_NEG}, v{Sb+e}, s[{S_M+2*(e%8)}:{S_M+2*(e%8)+1}]')
                blk += [cmp(0), cmp(1), cmp(2), cmp(3), cnd(0)]
            for e in range(16):
                if domask:
                    if e+4 < 16: blk.append(cmp(e+4))
                    if e+1 < 16: blk.append(cnd(e+1))
                if init:
                    if e == 0: blk.append((4, f'v_sub_f32 v{Sb}, v{Sb}, v{V_DA if b == 0 else V_DB}'))
                    if e+1 < 16: blk.append((4, f'v_sub_f32 v{Sb+e+1}, v{Sb+e+1}, v{V_DA if b == 0 else V_DB}'))
                blk.append((8, f'v_exp_f32 v{PT+(e%8)}, v{Sb+e}'))
                if e >= 2 or True:
                    k = e-1
                    if k == 1: blk.append((4, f'v_add_f32 v{PS[b]}, v{PT+0}, v{PT+1}'))
                    elif k > 1: blk.append((4, f'v_add_f32 v{PS[b]}, v{PS[b]}, v{PT+(k%8)}'))
                    if k >= 1 and k % 2 == 1:
                        blk.append((4, f'v_cvt_pk_bf16_f32 v{Pb+(k>>1)}, v{PT+((k-1)%8)}, v{PT+(k%8)}'))
            blk.append((4, f'v_add_f32 v{PS[b]}, v{PS[b]}, v{PT+(15%8)}'))
            blk.append((4, f'v_cvt_pk_bf16_f32 v{Pb+7}, v{PT+(14%8)}, v{PT+(15%8)}'))
            ops += blk
        if not init and not self.opt.get('nocheck'):
            ops.append((4, f'v_max_f32 v{V_T}, v{PS[0]}, v{PS[1]}'))
            ops.append((4, f'v_cmp_lt_f32 vcc, s{s_thr}, v{V_T}'))
        return ops

    def rel_setup(self, it):
        return []

    def emit_iter(self, it, pos, extra_pre=None, name='', extra_post=None):
        a = self.a
        par = it.par
        ph = self.phase
        mf = []
        reads = []
        fidx = 0
        def fr(k): return FR + 4*((ph + k) % NFR)
        Sw = S[par]; Pr = P[par]
        if it.qk == 1:
            for j in range(8):
                A = ar(fr(fidx+j), 4)
                for b, Q, C in ((0, QA, CA), (1, QB, CB)):
                    c = ('0' if it.czero else v(C, 16)) if j == 0 else v(Sw[b], 16)
                    mf.append((f'{MF} {v(Sw[b],16)}, {A}, {v(Q+4*j,4)}, {c}', fidx+j))
                reads.append((2*j, f'ds_read_b128 {A}, v{V_KA} offset:{j*1024}', fidx+j))
            fidx += 8
        elif it.qk == 2:
            for f in range(16):
                b, j = f >> 3, f & 7
                A = ar(fr(fidx+f), 4)
                c = ('0' if it.czero else v(CB, 16)) if j == 0 else v(Sw[b], 16)
                mf.append((f'{MF} {v(Sw[b],16)}, {A}, {v(QB+4*j,4)}, {c}', fidx+f))
                reads.append((f, f'ds_read_b128 {A}, v{V_KA} offset:{f*1024}', fidx+f))
            fidx += 16
        mlp = self.mlp and getattr(it, 'mlp', False)
        m0 = len(mf)
        if mlp:
            for ft in range(2):
                for dt in range(2):
                    acc = ar(MACC+16*(2*ft+dt), 16)
                    mf.append((f'{MF} {acc}, {v(V_ST+4*ft,4)}, {v(V_ST+8+4*dt,4)}, {acc}', 'm7' if (ft, dt) == (0, 0) else None))
        s0 = len(mf)
        if it.pv == 1:
            for f in range(8):
                t, db = f >> 2, f & 3
                A = ar(fr(fidx+f), 4)
                for b, O in ((0, OA), (1, OB)):
                    mf.append((f'{MF} {ar(O+16*db,16)}, {A}, {v(Pr[b]+4*t,4)}, {ar(O+16*db,16)}', fidx+f))
                reads.append((s0+2*f, f'ds_read_b128 {A}, v{V_VA} offset:{f*1024}', fidx+f))
            fidx += 8
        elif it.pv == 2:
            for f in range(16):
                b, t, db = f >> 3, (f >> 2) & 1, f & 3
                A = ar(fr(fidx+f), 4)
                mf.append((f'{MF} {ar(OB+16*db,16)}, {A}, {v(Pr[b]+4*t,4)}, {ar(OB+16*db,16)}', fidx+f))
                reads.append((s0+f, f'ds_read_b128 {A}, v{V_VA} offset:{f*1024}', fidx+f))
            fidx += 16
        ns = len(mf)
        nown = fidx
        lead_in = [r for r in reads if it.qk and r[0] < D and r[2] < nfr(it.qk)]
        own = [r for r in reads if r not in lead_in]
        lead_out = []
        if it.next_qk:
            n = nfr(it.next_qk)
            for j in range(n):
                fu = 2*j if it.next_qk == 1 else j
                if fu < D:
                    A = ar(FR + 4*((ph + nown + j) % NFR), 4)
                    lead_out.append((ns + fu, f'ds_read_b128 {A}, v{V_KA} offset:{j*1024}', nown+j))
        bslot = max(ns - D, 0)
        slots = [[] for _ in range(ns+1)]
        pre = []
        order = [r[2] for r in lead_in]
        def place_read(slot, r):
            (pre if slot < 0 else slots[slot]).append(('ds', r[1], r[2]))
        for r in own:
            place_read(r[0]-D if r[0]-D >= 0 else -1, r)
        if mlp:
            base = par*4096
            rd = []
            for op in range(2):
                for tl in range(2):
                    r = V_ST + 8*op + 4*tl
                    rd.append(f'ds_read_b64_tr_b16 {v(r,2)}, v{V_MR+tl} offset:{base+op*2048}')
                    rd.append(f'ds_read_b64_tr_b16 {v(r+2,2)}, v{V_MR+tl} offset:{base+op*2048+512}')
            slots[m0-8].append(('x', f's_waitcnt vmcnt({self.vmm[pos]})'))
            for k, t_ in enumerate(rd): slots[m0-8+k//2].append(('ds', t_, f'm{k}'))
        win = []
        has_bar = pos is not None and pos in self.vm
        if has_bar:
            if not self.opt.get('novm'): win.append(('x', f's_waitcnt vmcnt({0 if pos == ("epi", 32) else self.vm[pos]})'))
            if not self.opt.get('nobar'): win.append(('x', 's_barrier'))
        if it.qk:
            win.append(('x', f'v_add_u32 v{V_KA}, {8192*(1 if it.qk==1 else 2)}, v{V_KA}'))
            win.append(('x', f'v_and_b32 v{V_KA}, 0xffff, v{V_KA}'))
        if it.pv:
            win.append(('x', f'v_add_u32 v{V_VA}, {8192*(1 if it.pv==1 else 2)}, v{V_VA}'))
            win.append(('x', f'v_and_or_b32 v{V_VA}, v{V_VA}, v{V_MASK}, v{V_VBASE}'))
        for r in own:
            assert r[0]-D < bslot or ns <= D, (r, bslot)
        vg = self.dma_group('V', 1 if it.pv == 1 else 2, split=True) if (it.pv and not getattr(it, 'nov', False)) else []
        kg = self.dma_group('K', 1 if it.next_qk == 1 else 2, split=True) if (it.next_qk or getattr(it, 'forcek', False)) else []
        if self.opt.get('nodma') and pos and pos[0] != 'pro': vg = []; kg = []
        mg = []
        if mlp and getattr(it, 'mlp_dma', True): mg = [(m0+1+k, g) for k, g in enumerate(self.mlp_dma_groups(par))]
        if getattr(it, 'mlp_first', False):
            gs = self.mlp_dma_groups(0) + self.mlp_dma_groups(1)
            gs = [g + ['s_nop 0'] if 'm0' in g[0] else g for g in gs]
            mg = [(k*7//len(gs), g) for k, g in enumerate(gs)]
        sm = self.sm_ops(it) if it.sm else []
        if self.opt.get('nosm'): sm = []
        if self.opt.get('noexp'): sm = [(c, t) for c, t in sm if 'exp' not in t]
        if self.opt.get('noadd'): sm = [(c, t) for c, t in sm if 'v_add_f32' not in t]
        tot = sum(c for c, _ in sm)
        fixed = [0.0]*ns
        for k in range(ns):
            fixed[k] += 4*len(slots[k])
        for k, grp in enumerate(vg):
            sl = min(ns-1, k*(1 if len(vg) > 3 else 2))
            slots[sl].append(('dma', grp)); fixed[sl] += 4*len(grp)
        for sl, grp in mg:
            slots[sl].append(('dma', grp)); fixed[sl] += 4*len(grp)
        slots[bslot] = win + slots[bslot]; fixed[bslot] += 4*len(win)
        for r in lead_out:
            sl = min(ns-1, r[0]-D); slots[sl].append(('ds', r[1], r[2])); fixed[sl] += 4
        for k, grp in enumerate(kg):
            sl = min(ns-1, bslot + k*(1 if len(kg) > 3 else 2) + (1 if k else 0))
            slots[sl].append(('dma', grp)); fixed[sl] += 4*len(grp)
        xf = list(getattr(it, 'fill', [])); xg = list(getattr(it, 'fill_groups', []))
        if xf or xg:
            nsl = ns
            half = max(1, int(nsl*0.55))
            for k, x in enumerate(xf): slots[min(half-1, k*half//len(xf))].append(x)
            for k, g in enumerate(xg): slots[min(nsl-1, half + k*(nsl-half)//len(xg))].append(('dmag', g))
        total = tot + sum(fixed)
        smslots = [[] for _ in range(ns)]
        if sm:
            k = 0; cum = 0.0; target_end = ns - self.opt.get('tail', 1.6)
            acc = 0.0
            for sl in range(ns):
                acc += fixed[sl]
                lim = total * (sl+1) / target_end
                while k < len(sm) and (acc + sm[k][0]*0.5 <= lim or sl == ns-1):
                    smslots[sl].append(sm[k]); acc += sm[k][0]; k += 1
        if extra_pre:
            for l in extra_pre: a(l)
        q = list(order)
        def emit_fill(x):
            if x[0] == 'ds':
                a(x[1]); q.append(x[2])
            elif x[0] == 'dma':
                for l in x[1]: a(l)
            elif x[0] == 'dmag':
                for l in x[1][0]: a(l)
                it.vq.push(x[1][1])
            else:
                a(x[1])
        for x in pre: emit_fill(x)
        waited = -1
        for k, (txt, f) in enumerate(mf):
            if f is not None and f in q:
                idx = q.index(f)
                ahead = self.opt.get('wahead', 1)
                idx2 = min(idx + ahead, len(q)-1) if (k % 2 == 0 or ahead > 1) else idx
                idx2 = max(idx, min(idx2, len(q)-1-self.opt.get('wmin', 0)))
                nleft = len(q) - 1 - idx2
                a(f's_waitcnt lgkmcnt({nleft})')
                q = q[idx2+1:]
            a(txt)
            fl = slots[k]
            for x in fl:
                if x[0] in ('x', 'ds'): emit_fill(x)
            for c, t in smslots[k]: a(t)
            for x in fl:
                if x[0] in ('dma', 'dmag'): emit_fill(x)
        self.phase = (ph + nown) % NFR
        for l in (extra_post or []): a(l)
        if it.sm and it.sm != 'init' and not self.opt.get('nocheck'):
            self.uid += 1
            u = self.uid
            a(f's_cbranch_vccnz {self.name}_slow{u}')
            a.label(f'{self.name}_join{u}')
            self.l_update(it.sm)
            self.slow.append((u, it))
        elif it.sm == 'init':
            a(f'v_mov_b32 v{LA}, v{PS[0]}')
            a(f'v_mov_b32 v{LB}, v{PS[1]}')

    def l_update(self, sm):
        a = self.a
        if sm[0] == '1' or sm == 'init':
            a(f'v_add_f32 v{LA}, v{LA}, v{PS[0]}')
            a(f'v_add_f32 v{LB}, v{LB}, v{PS[1]}')
        else:
            a(f'v_add_f32 v{LB}, v{LB}, v{PS[0]}')
            a(f'v_add_f32 v{LB}, v{LB}, v{PS[1]}')

    def rowmax(self, dst, blocks):
        a = self.a
        regs = [b+e for b in blocks for e in range(16)]
        a(f'v_max3_f32 v{dst}, v{regs[0]}, v{regs[1]}, v{regs[2]}')
        k = 3
        while k+1 < len(regs):
            a(f'v_max3_f32 v{dst}, v{dst}, v{regs[k]}, v{regs[k+1]}'); k += 2
        if k < len(regs): a(f'v_max_f32 v{dst}, v{dst}, v{regs[k]}')
        a(f'v_mov_b32 v{V_T+1}, v{dst}')
        a('s_nop 1')
        a(f'v_permlane32_swap_b32 v{V_T+1}, v{dst}')
        a('s_nop 1')
        a(f'v_max_f32 v{dst}, v{dst}, v{V_T+1}')

    def plain_sm(self, pr):
        a = self.a
        for b in range(2):
            for e in range(0, 16, 2):
                a(f'v_exp_f32 v{PT}, v{S[pr][b]+e}')
                a(f'v_exp_f32 v{PT+1}, v{S[pr][b]+e+1}')
                a('s_nop 0')
                a(f'v_cvt_pk_bf16_f32 v{P[pr][b]+(e>>1)}, v{PT}, v{PT+1}')
                if e == 0:
                    a(f'v_add_f32 v{PS[b]}, v{PT}, v{PT+1}')
                else:
                    a(f'v_add_f32 v{PS[b]}, v{PS[b]}, v{PT}')
                    a(f'v_add_f32 v{PS[b]}, v{PS[b]}, v{PT+1}')

    def sub_delta(self, pr, mode):
        a = self.a
        for b in range(2):
            dl = V_DA if (mode == 1 and b == 0) else V_DB
            for e in range(16):
                a(f'v_sub_f32 v{S[pr][b]+e}, v{S[pr][b]+e}, v{dl}')

    def emit_slow(self, u, it):
        a = self.a
        pr = it.par ^ 1
        mode = 1 if it.sm[0] == '1' else 2
        a.label(f'{self.name}_slow{u}')
        a('s_nop 15')
        a('s_nop 7')
        if mode == 1:
            self.rowmax(V_DA, [S[pr][0]])
            self.rowmax(V_DB, [S[pr][1]])
            a(f'v_max_f32 v{V_DA}, 0, v{V_DA}')
        else:
            self.rowmax(V_DB, [S[pr][0], S[pr][1]])
            a(f'v_mov_b32 v{V_DA}, 0')
        a(f'v_max_f32 v{V_DB}, 0, v{V_DB}')
        a(f's_call_b64 s[{S_RET}:{S_RET+1}], {self.name}_rescale')
        self.sub_delta(pr, mode)
        if it.qk: self.sub_delta(it.par, it.qk)
        self.plain_sm(pr)
        a(f's_branch {self.name}_join{u}')

    def emit_rescale(self):
        a = self.a
        a.label(f'{self.name}_rescale')
        a(f'v_exp_f32 v{V_AA}, -v{V_DA}')
        a(f'v_exp_f32 v{V_AB}, -v{V_DB}')
        a('s_nop 0')
        for O, al in ((OA, V_AA), (OB, V_AB)):
            for e in range(0, 64, 4):
                for k in range(4): a(f'v_accvgpr_read_b32 v{V_T+k}, a{O+e+k}')
                for k in range(4): a(f'v_mul_f32 v{V_T+k}, v{V_T+k}, v{al}')
                for k in range(4): a(f'v_accvgpr_write_b32 a{O+e+k}, v{V_T+k}')
        a(f'v_mul_f32 v{LA}, v{LA}, v{V_AA}')
        a(f'v_mul_f32 v{LB}, v{LB}, v{V_AB}')
        for e in range(16):
            a(f'v_sub_f32 v{CA+e}, v{CA+e}, v{V_DA}')
            a(f'v_sub_f32 v{CB+e}, v{CB+e}, v{V_DB}')
        a('s_nop 1')
        a(f's_setpc_b64 s[{S_RET}:{S_RET+1}]')

    def mask_inplace(self, pr, b):
        a = self.a
        for e0 in range(0, 16, 8):
            for e in range(e0, e0+8):
                a(f'v_cmp_ge_i32 s[{S_M+2*(e%8)}:{S_M+2*(e%8)+1}], v{V_REL[b]}, {8*(e>>2)+(e&3)}')
            a('s_nop 1')
            for e in range(e0, e0+8):
                a(f'v_cndmask_b32 v{S[pr][b]+e}, v{V_NEG}, v{S[pr][b]+e}, s[{S_M+2*(e%8)}:{S_M+2*(e%8)+1}]')

    def emit_init(self):
        a = self.a
        a(f'v_mov_b32 v{V_REL[0]}, v{V_RELA}')
        a('s_nop 12')
        a(f's_cmp_lg_u32 s{s_i}, 0'); a(f's_cbranch_scc1 {self.name}_nomask0')
        self.mask_inplace(0, 0)
        a.label(f'{self.name}_nomask0')
        self.rowmax(V_DA, [S[0][0]])
        self.rowmax(V_DB, [S[0][1]])
        for e in range(16):
            a(f'v_sub_f32 v{CA+e}, 0, v{V_DA}')
            a(f'v_sub_f32 v{CB+e}, 0, v{V_DB}')
        a('s_nop 1')

    def epilogue_tile(self, O, L, qt_sgpr, vq=None):
        a = self.a
        a(f'v_mov_b32 v{V_T+1}, v{L}')
        a('s_nop 1')
        a(f'v_permlane32_swap_b32 v{V_T+1}, v{L}')
        a('s_nop 1')
        a(f'v_add_f32 v{L}, v{L}, v{V_T+1}')
        a(f'v_rcp_f32 v{V_T+2}, v{L}')
        a('s_nop 0')
        a(f'v_mov_b32 v{V_T+3}, v{V_T+2}')
        inv = V_T+2
        k = 0
        for db in range(4):
            for t in range(2):
                tmp = V_ST + 8*(k % 2)
                for e in range(8): a(f'v_accvgpr_read_b32 v{tmp+e}, a{O+16*db+8*t+e}')
                for e in range(0, 8, 2): a(f'v_pk_mul_f32 v[{tmp+e}:{tmp+e+1}], v[{tmp+e}:{tmp+e+1}], v[{inv}:{inv+1}]')
                for e in range(0, 8, 2): a(f'v_cvt_pk_bf16_f32 v{tmp+(e>>1)}, v{tmp+e}, v{tmp+e+1}')
                j = 2*db+t
                off = j*1024
                so = qt_sgpr if off < 4096 else qt_sgpr+1
                a(f'buffer_store_dwordx4 v[{tmp}:{tmp+3}], v{V_L16}, s[{S_C}:{S_C+3}], s{so} offen offset:{off % 4096}{STF.st}')
                if vq: vq.push('ctx')
                k += 1

    def stamp(self, same=False):
        self.st()
    def dump_stamps(self):
        self.st.dump(100*MB, s_w, 253)

    def emit(self):
        self.simulate()
        M = self.emit_head()
        self.emit_body(M)

    def kv_srd_lines(self):
        a = Asm()
        a(f's_lshl_b32 s{s_t0}, s{s_h}, 19')
        a(f's_lshl_b32 s{s_t1}, s{s_i}, 15')
        a(f's_sub_u32 s{s_t1}, 0x80000, s{s_t1}')
        for S_, base in ((S_K, WS_K), (S_V, WS_V)):
            a(f's_add_u32 s{S_}, s34, {base}')
            a(f's_addc_u32 s{S_+1}, s35, 0')
            a(f's_add_u32 s{S_}, s{S_}, s{s_t0}')
            a(f's_addc_u32 s{S_+1}, s{S_+1}, 0')
            a(f's_and_b32 s{S_+1}, s{S_+1}, 0xffff')
            a(f's_mov_b32 s{S_+2}, s{s_t1}')
            a(f's_mov_b32 s{S_+3}, 0x20000')
        make_srd(a, S_C, 34, WS_CTX, 16*MB)
        for qt, d in ((36, 56), (37, 58)):
            a(f's_lshl_b32 s{s_t0}, s{qt}, 5')
            a(f's_add_u32 s{s_t0}, s{s_t0}, s{s_h}')
            a(f's_lshl_b32 s{d}, s{s_t0}, 13')
            a(f's_add_u32 s{d+1}, s{d}, 4096')
        return a.lines

    def kv_groups(self, kind, nb):
        G = []
        for b in range(nb):
            for grp in self.dma_group(kind, 1): G.append((grp, 'kv'))
        return G

    def q_to_frags(self):
        self.q_to_frags_cvt(); self.q_to_frags_srd()

    def q_to_frags_cvt(self):
        a = self.a
        a('s_nop 7')
        for st, Q in ((0, QA), (1, QB)):
            for dt in range(4):
                A = 64 + 16*(4*st+dt)
                for t in range(2):
                    for k in range(4):
                        a(f'v_cvt_pk_bf16_f32 v{Q+4*(2*dt+t)+k}, v{A+8*t+2*k}, v{A+8*t+2*k+1}')

    def q_to_frags_srd(self):
        a = self.a
        if self.mlp:
            make_srd(a, S_MW, 68, 0, 2048*3584); make_srd(a, S_MH, 34, WS_H, 2*MB)
            a(f's_cmp_eq_u32 s{s_i}, {self.nomlp_i}')
            a(f's_cselect_b32 s{S_MW+2}, 0, s{S_MW+2}')
            a(f's_cselect_b32 s{S_MH+2}, 0, s{S_MH+2}')

    def setup_attn_regs(self):
        a = self.a; opt = self.opt
        a(f's_lshl_b32 s{s_ks}, s{s_w}, 11')
        a(f's_mov_b32 s{s_vs}, s{s_ks}')
        a(f's_mov_b32 s{s_thr}, {THR}')
        a(f'v_mov_b32 v{V_NEG}, 0xf149f2ca')
        a(f'v_mov_b32 v{V_MASK}, 0xffff')
        a(f'v_mov_b32 v{V_VBASE}, 0x10000')
        a(f'v_mov_b32 v{V_KA}, v{V_L16}')
        a(f'v_add_u32 v{V_VA}, 0x10000, v{V_L16}')
        a(f'v_and_b32 v3, 31, v2')
        a(f'v_lshrrev_b32 v4, 5, v2')
        a(f'v_lshlrev_b32 v4, 2, v4')
        a(f'v_sub_u32 v3, v3, v4')
        a(f's_lshl_b32 s{s_t0}, s36, 5')
        a(f'v_add_u32 v{V_RELA}, s{s_t0}, v3')
        a(f's_lshl_b32 s{s_t0}, s37, 5')
        a(f'v_add_u32 v{V_RELB}, s{s_t0}, v3')
        M = Mlp1(a, tshift=(4 if self.nomlp_i == 0 else 0)); M.ids()
        if self.mlp:
            T = 33
            a(f's_lshl_b32 s{s_ml}, s{s_w}, 13'); a(f's_add_u32 s{s_ml}, s{s_ml}, 131072')
            gen_t2.lane_setup(a, 5, T)
            for t in range(2):
                X = T+5; dst = V_MR+t
                a(f'v_mul_u32_u24 v{X}, 8, v{T}'); a(f'v_add_u32 v{X}, v{X}, v{T+1}'); a(f'v_lshlrev_b32 v{X}, 7, v{X}')
                a(f'v_xor_b32 v{dst}, {t}, v{T+4}'); a(f'v_lshl_add_u32 v{X}, v{dst}, 6, v{X}')
                a(f'v_lshl_add_u32 v{X}, v{T+2}, 5, v{X}'); a(f'v_lshl_add_u32 v{X}, v{T+3}, 3, v{X}')
                a(f'v_add_u32 v{dst}, s{s_ml}, v{X}')
            for dst, stride in ((V_MA, 3584), (V_MB, 1024)):
                mt = getattr(self, 'mtmp', 48)
                gen_t2.dma_voffs(a, mt, 5, T, stride, s_t1)
                a(f'v_mov_b32 v{dst}, v{mt}'); a(f'v_mov_b32 v{dst+1}, v{mt+1}')
            a(f's_mul_i32 s{s_ma}, s{s_w}, {512*3584}'); a(f's_lshl_b32 s{s_t1}, s{M.s_fb}, 7'); a(f's_add_u32 s{s_ma}, s{s_ma}, s{s_t1}')
            a(f's_lshl_b32 s{s_mb}, s{s_w}, 19'); a(f's_lshl_b32 s{s_t1}, s{M.s_db}, 7'); a(f's_add_u32 s{s_mb}, s{s_mb}, s{s_t1}')
        a(f'v_lshlrev_b32 v252, 3, v{V_L16}')
        a(f's_sub_u32 s{s_t0}, s2, 32'); a(f's_lshl_b32 s{s_t0}, s{s_t0}, 2'); a(f's_add_u32 s{s_t0}, s{s_t0}, s{s_w}')
        a(f's_lshl_b32 s74, s{s_t0}, 13')
        a(f's_mul_i32 s75, s{s_t0}, 4736')
        return M

    def emit_head(self):
        a = self.a; N = self.name; opt = self.opt
        vm = self.vm
        S_X, S_WQ = 12, 60
        a(f's_cmp_ge_u32 s2, 256')
        a(f's_cbranch_scc1 {N}_end')
        self.stamp()
        a(f's_load_dwordx2 s[34:35], s[0:1], {KA_WS}')
        a(f's_load_dwordx2 s[64:65], s[0:1], {KA_AX}')
        a(f's_load_dwordx2 s[66:67], s[0:1], {KA_WQ}')
        a(f's_load_dwordx2 s[68:69], s[0:1], {KA_W1}')
        a(f's_load_dwordx2 s[86:87], s[0:1], {KA_B1}')
        a(f's_load_dwordx2 s[70:71], s[0:1], {KA_WO}')
        a(f's_load_dwordx2 s[72:73], s[0:1], {KA_W2}')
        a(f'v_lshrrev_b32 v1, 6, v0')
        a(f'v_and_b32 v2, 63, v0')
        a(f'v_lshlrev_b32 v{V_L16}, 4, v2')
        a(f'v_readfirstlane_b32 s{s_w}, v1')
        a(f's_and_b32 s{s_t0}, s2, 7')
        a(f's_lshr_b32 s{s_t1}, s2, 3')
        a(f's_lshl_b32 s{s_h}, s{s_t0}, 2')
        a(f's_and_b32 s{s_t0}, s{s_t1}, 3')
        a(f's_add_u32 s{s_h}, s{s_h}, s{s_t0}')
        a(f's_lshr_b32 s{s_i}, s{s_t1}, 2')
        a(f's_add_u32 s{s_g1}, s{s_i}, 1')
        a(f's_lshl_b32 s{s_g1}, s{s_g1}, 2')
        a(f's_lshl_b32 s36, s{s_i}, 2')
        a(f's_add_u32 s36, s36, s{s_w}')
        a(f's_lshl_b32 s37, s{s_i}, 2')
        a(f's_sub_u32 s37, 60, s37')
        a(f's_add_u32 s37, s37, s{s_w}')
        vq = VmQueue()
        P = Proj(a, vq, s_w, 16384, 65536, ACC=64, FB=PFB, fbk='a', VA=8, V_L16=V_L16, VT=33, SG=40, wflags=(' nt' if opt.get('nt', True) else ''))
        P.setup_addrs(set_l16=False)
        a('s_waitcnt lgkmcnt(0)')
        make_srd(a, S_X, 64, 0, 2*MB); make_srd(a, S_WQ, 66, 0, 4*MB)
        init = [f's_lshl_b32 s{P.s_a0}, s36, 15', f's_lshl_b32 s{P.s_a1}, s37, 15',
                f's_lshl_b32 s{P.s_wo}, s{s_w}, 17', f's_lshl_b32 s{s_t0}, s{s_h}, 8', f's_add_u32 s{P.s_wo}, s{P.s_wo}, s{s_t0}']
        qpass = [dict(swap=False, srdA=S_X, srdW=S_WQ, init=init, epi=lambda: None, acck='v')]
        P.prologue(qpass[0])
        for l in self.kv_srd_lines(): a(l)
        M = self.setup_attn_regs()
        for e in range(128): a(f'v_accvgpr_write_b32 a{e}, 0')
        P.start_compute()
        self.stamp()
        KG = self.kv_groups('K', 6); VG = self.kv_groups('V', 4)
        def xl(p, t): return KG[:6] if t == 5 else (VG[:2] if t == 6 else [])
        def xe(p, t): return KG[6:] if t == 6 else (VG[2:] if t == 7 else [])
        P.run(qpass, extra_early=xe, extra_late=xl)
        self.stamp()
        self.q_to_frags()
        return M

    def emit_body(self, M):
        a = self.a; N = self.name; opt = self.opt
        vm = self.vm
        a(f's_waitcnt vmcnt({vm[("pro",-3)]})')
        a('s_barrier')
        for grp in self.dma_group('K', 1):
            for l in grp: a(l)
        for j in range(D//2):
            a(f'ds_read_b128 {ar(FR+4*j,4)}, v{V_KA} offset:{j*1024}')
        it = Iter(1, None, None, 1, 0, czero=True)
        if self.mlp: it.fill = [('x', f'v_accvgpr_write_b32 a{MACC+e}, 0') for e in range(64)]
        self.emit_iter(it, ('pro', -2))
        self.emit_init()
        self.stamp()
        it = Iter(1, 'init', None, 1, 1); it.mlp_first = self.mlp
        self.emit_iter(it, ('pro', -1))
        self.stamp()
        def MI(*args, dma=True):
            it = Iter(*args); it.mlp = True; it.mlp_dma = dma
            return it
        a(f's_cmp_eq_u32 s{s_i}, 0')
        a(f's_cbranch_scc1 {N}_trans')
        a(f's_sub_u32 s{s_cnt}, s{s_g1}, 6')
        a(f's_lshr_b32 s{s_cnt}, s{s_cnt}, 1')
        a('.p2align 6')
        a.label(f'{N}_p1loop')
        self.emit_iter(MI(1, '1', 1, 1, 0), ('p1loop', 0))
        self.emit_iter(MI(1, '1', 1, 1, 1), ('p1loop', 1))
        a(f's_sub_u32 s{s_cnt}, s{s_cnt}, 1')
        a(f's_cmp_lg_u32 s{s_cnt}, 0')
        a(f's_cbranch_scc1 {N}_p1loop')
        def pf(ptr, nb, so):
            if not opt.get('pf', True): return []
            l = Asm(); make_srd(l, 76, ptr, 0, nb); l(f'buffer_load_dword v253, v252, s[76:79], s{so} offen')
            return l.lines
        self.emit_iter(MI(1, '1', 1, 1, 0), ('p1peel', 0))
        def relA(k):
            return [f's_sub_u32 s{s_t1}, s{s_g1}, {k}', f's_lshl_b32 s{s_t1}, s{s_t1}, 5', f'v_subrev_u32 v{V_REL[0]}, s{s_t1}, v{V_RELA}']
        self.emit_iter(MI(1, '1m', 1, 1, 1), ('p1peel', 1), extra_pre=relA(4), extra_post=pf(72, 1792*4096, 74))
        for l in pf(70, 4*MB, 75): a(l)
        a.label(f'{N}_trans')
        self.stamp()
        self.emit_iter(MI(1, '1m', 1, 1, 0), ('trans', -4), extra_pre=relA(3))
        sw = [f's_lshl_b32 s{s_t0}, s{s_w}, 11']
        self.emit_iter(MI(1, '1m', 1, 2, 1), ('trans', -3), extra_pre=relA(2) + sw + [f's_add_u32 s{s_ks}, s{s_ks}, s{s_t0}'])
        self.emit_iter(MI(2, '1m', 1, 2, 0), ('trans', -2), extra_pre=relA(1))
        def relB(expr_lines):
            return expr_lines + [f'v_subrev_u32 v{V_REL[0]}, s{s_t1}, v{V_RELB}', f'v_subrev_u32 v{V_REL[1]}, 32, v{V_REL[0]}']
        self.emit_iter(MI(2, '2m', 1, 2, 1), ('trans', -1), extra_pre=relB([f's_lshl_b32 s{s_t1}, s{s_g1}, 5']))
        self.stamp()
        a('s_nop 12')
        self.epilogue_tile(OA, LA, 56)
        a(f's_lshl_b32 s{s_t0}, s{s_w}, 11')
        a(f's_add_u32 s{s_vs}, s{s_vs}, s{s_t0}')
        a(f's_cmp_eq_u32 s{s_i}, 7')
        a(f's_cbranch_scc1 {N}_epi')
        a(f's_sub_u32 s{s_cnt}, 30, s{s_g1}')
        a(f's_lshr_b32 s{s_cnt}, s{s_cnt}, 1')
        a('.p2align 6')
        a.label(f'{N}_p2loop')
        self.emit_iter(MI(2, '2', 2, 2, 0), ('p2loop', 0))
        self.emit_iter(MI(2, '2', 2, 2, 1), ('p2loop', 1))
        a(f's_sub_u32 s{s_cnt}, s{s_cnt}, 1')
        a(f's_cmp_lg_u32 s{s_cnt}, 0')
        a(f's_cbranch_scc1 {N}_p2loop')
        self.emit_iter(MI(2, '2', 2, 2, 0, dma=False), ('p2peel', 0), extra_post=(M.l2_prefetch(234) if opt.get('pf2', False) else None))
        relB32 = [f's_sub_u32 s{s_t1}, 64, s{s_g1}', f's_lshl_b32 s{s_t1}, s{s_t1}, 5']
        self.emit_iter(MI(2, '2m', 2, 2, 1, dma=False), ('p2peel', 1), extra_pre=relB(relB32))
        a.label(f'{N}_epi')
        self.stamp()
        relB33 = [f's_sub_u32 s{s_t1}, 66, s{s_g1}', f's_lshl_b32 s{s_t1}, s{s_t1}, 5']
        it = Iter(None, '2m', 2, None, 0); it.nov = True
        a('s_waitcnt lgkmcnt(0)')
        self.emit_iter(it, ('epi', 32), extra_pre=relB(relB33))
        it = Iter(None, None, 2, None, 1); it.nov = True
        a('s_nop 1')
        self.emit_iter(it, None)
        self.stamp()
        def fill():
            make_srd(a, 76, 34, WS_PART, 8*MB)
            a(f's_sub_u32 s{s_t0}, s2, 224'); a(f's_lshl_b32 s{s_t0}, s{s_t0}, 2'); a(f's_add_u32 s{s_t0}, s{s_t0}, s{s_w}'); a(f's_lshl_b32 s{s_t0}, s{s_t0}, 16')
            for e in range(4): a(f'v_mov_b32 v{V_T+4+e}, -1')
            a(f's_mov_b32 s{s_cnt}, 16')
            a.label(f'{N}_fill')
            for q in range(4):
                a(f'buffer_store_dwordx4 v[{V_T+4}:{V_T+7}], v{V_L16}, s[76:79], s{s_t0} offen offset:{q*1024}' + (' sc1' if (opt.get('fusefin') or opt.get('fillsc1', True)) else ''))
            a('s_waitcnt vmcnt(40)')
            a(f's_add_u32 s{s_t0}, s{s_t0}, 4096')
            a(f's_sub_u32 s{s_cnt}, s{s_cnt}, 1')
            a(f's_cmp_lg_u32 s{s_cnt}, 0')
            a(f's_cbranch_scc1 {N}_fill')
        def wbl2(lab):
            if opt.get('wbl2', True):
                a(f's_cmp_eq_u32 s{s_w}, 0'); a(f's_cbranch_scc0 {N}_{lab}'); a('buffer_wbl2 sc1'); a.label(f'{N}_{lab}')
        a(f's_cmp_eq_u32 s{s_i}, {self.nomlp_i}')
        a(f's_cbranch_scc1 {N}_nomlp')
        vq2 = VmQueue()
        M.finish(vq2, lambda: self.epilogue_tile(OB, LB, 58, vq2), self.stamp)
        if self.nomlp_i != 7:
            a(f's_cmp_eq_u32 s{s_i}, 7'); a(f's_cbranch_scc0 {N}_nofill')
            wbl2('nowb'); fill(); a('s_waitcnt vmcnt(0)')
            a.label(f'{N}_nofill')
        self.stamp()
        if opt.get('fusefin'):
            a(f's_branch {N}_phasec')
        else:
            self.dump_stamps()
            a('s_endpgm')
        a.label(f'{N}_nomlp')
        if self.nomlp_i == 7: wbl2('nowb')
        a('s_nop 15')
        self.epilogue_tile(OB, LB, 58)
        if self.nomlp_i == 7: fill()
        a('s_waitcnt vmcnt(0)')
        self.stamp()
        if opt.get('fusefin'):
            a.label(f'{N}_phasec')
            self.emit_phasec()
        else:
            self.dump_stamps()
        a.label(f'{N}_end')
        a('s_endpgm')
        for u, it in self.slow: self.emit_slow(u, it)
        self.emit_rescale()
```

```python
from asmlib import *
from layout import *
from gen_proj2 import VmQueue, v, ar
from gen_proj import make_srd

MF = 'v_mfma_f32_32x32x16_bf16'
NY, NO = 7, 16
NS = NY + NO
SLOT = 32768

def emit_final(a, N='fin', NSL=4, inline=False, sync=None, stamps=None, **opt):
    S_WO, S_W2, S_CTX, S_U, S_G, S_B2, S_OUT, S_P, S_D = 4, 8, 12, 16, 24, 28, 32, 36, 56
    s_w, s_sb, s_mb, s_p = 20, 21, 22, 23
    s_sl, s_fr = 40, 41
    s_fill, s_rd, s_w4k, s_t, s_t1, s_t2, s_tile = 42, 43, 44, 45, 46, 47, 48
    ACCY, ACCO = 64, 128; FB = [192, 212]
    VL = 1; V_L16 = 2; T = 32
    V_TB = 8
    V_TA = 16
    V_LA = 21
    V_WO = 24; V_W2 = 28
    V_G = 40; V_B2 = 41; V_OA = 42; V_1G = 43
    st_ = stamps if inline else (RTStamps if opt.get('rt') else Stamps)(a, opt.get('diag'))
    if not inline:
        a('s_cmp_ge_u32 s2, 256')
        a(f's_cbranch_scc1 {N}_end')
    a(f's_load_dwordx2 s[64:65], s[0:1], {KA_WO}')
    a(f's_load_dwordx4 s[68:71], s[0:1], {KA_W2}')
    a(f's_load_dwordx4 s[72:75], s[0:1], {KA_OUT}')
    a(f's_load_dwordx2 s[76:77], s[0:1], {KA_WS}')
    if inline:
        a(f'v_mbcnt_lo_u32_b32 v{VL}, -1, 0'); a(f'v_mbcnt_hi_u32_b32 v{VL}, -1, v{VL}')
        a(f's_and_b32 s{s_t}, s2, 7')
    else:
        a('v_lshrrev_b32 v3, 6, v0')
        a(f'v_and_b32 v{VL}, 63, v0')
        a(f's_and_b32 s{s_t}, s2, 7')
        a(f'v_readfirstlane_b32 s{s_w}, v3')
    a(f's_lshr_b32 s{s_t1}, s2, 3')
    a(f's_lshr_b32 s{s_p}, s{s_t}, 1')
    a(f's_and_b32 s{s_t}, s{s_t}, 1'); a(f's_lshl_b32 s{s_t}, s{s_t}, 3'); a(f's_lshr_b32 s{s_t2}, s{s_t1}, 2'); a(f's_add_u32 s{s_sb}, s{s_t}, s{s_t2}')
    a(f's_and_b32 s{s_mb}, s{s_t1}, 3')
    a(f's_lshl_b32 s{s_tile}, s{s_sb}, 2'); a(f's_add_u32 s{s_tile}, s{s_tile}, s{s_mb}')
    st_('start')
    a(f'v_lshlrev_b32 v{V_L16}, 4, v{VL}')
    a(f's_lshl_b32 s{s_w4k}, s{s_w}, 12')
    a(f's_mov_b32 s{s_fill}, 0'); a(f's_mov_b32 s{s_rd}, 0')
    a(f'v_lshrrev_b32 v{T}, 4, v{VL}')
    a(f'v_bfe_u32 v{T+1}, v{VL}, 2, 2')
    a(f'v_xor_b32 v{T+1}, v{T+1}, v{T}')
    a(f'v_lshlrev_b32 v{T+1}, 6, v{T+1}')
    a(f'v_and_b32 v{T+2}, 3, v{VL}')
    a(f'v_lshl_add_u32 v{T+1}, v{T+2}, 4, v{T+1}')
    a(f'v_lshl_add_u32 v{T+3}, v{T}, 12, v{T+1}')
    a(f'v_lshl_add_u32 v{T+4}, v{T}, 10, v{T+1}')
    for j in range(4):
        a(f'v_add_u32 v{V_W2+j}, {j*(4*4096-1024)}, v{T+3}')
        a(f'v_add_u32 v{V_WO+j}, {j*(4*1024-1024)}, v{T+4}')
    a(f'v_lshrrev_b32 v{T}, 5, v{VL}')
    a(f'v_bfe_u32 v{T+1}, v{VL}, 2, 2')
    a(f'v_lshl_add_u32 v{T+2}, v{T}, 2, v{T+1}')
    a(f'v_lshlrev_b32 v{T+2}, 8, v{T+2}')
    a(f'v_bfe_u32 v{T+3}, v{VL}, 4, 1')
    a(f'v_lshl_add_u32 v{T+2}, v{T+3}, 5, v{T+2}')
    a(f'v_and_b32 v{T+3}, 3, v{VL}')
    a(f'v_lshl_add_u32 v{T+2}, v{T+3}, 3, v{T+2}')
    for tl in range(4):
        a(f'v_xor_b32 v{T+3}, {tl}, v{T+1}')
        a(f'v_lshl_add_u32 v{V_TB+tl}, v{T+3}, 6, v{T+2}')
    a(f'v_xor_b32 v{T+3}, s{s_w}, v{T+1}')
    a(f'v_lshl_add_u32 v{V_TB+4}, v{T+3}, 6, v{T+2}')
    a(f'v_and_b32 v{T+4}, 31, v{VL}')
    a(f'v_lshlrev_b32 v{T+5}, 2, v{T+4}')
    a(f'v_lshlrev_b32 v{T+6}, 1, v{T+4}')
    a(f'v_lshlrev_b32 v{V_OA}, 10, v{T+4}')
    a(f'v_lshl_add_u32 v{V_OA}, v{T}, 4, v{V_OA}')
    a('s_waitcnt lgkmcnt(0)')
    make_srd(a, S_WO, 64, 0, 4*MB); make_srd(a, S_W2, 68, 0, 1792*4096); make_srd(a, S_B2, 70, 0, 4096)
    make_srd(a, S_OUT, 72, 0, 2*MB)
    make_srd(a, S_CTX, 76, WS_CTX, 16*MB); make_srd(a, S_U, 76, WS_U, 16*112*1024); make_srd(a, S_G, 76, WS_G, 8192)
    make_srd(a, S_P, 76, WS_PART, 16*MB)
    vq = VmQueue()
    a(f's_lshl_b32 s{s_t}, s{s_sb}, 2'); a(f's_add_u32 s{s_t}, s{s_t}, s{s_w}')
    a(f's_lshl_b32 s{s_t1}, s{s_t}, 7'); a(f's_lshl_b32 s{s_t2}, s{s_t}, 6')
    a(f'buffer_load_dword v{V_G}, v{T+5}, s[{S_G}:{S_G+3}], s{s_t1} offen'); vq.push('g')
    a(f'buffer_load_ushort v{V_B2}, v{T+6}, s[{S_B2}:{S_B2+3}], s{s_t2} offen'); vq.push('g')

    if opt.get('tlb', True):
        a(f'v_mov_b32 v3, 0')
        a(f's_lshl_b32 s{s_t}, s{s_tile}, 17'); a(f's_mul_i32 s{s_t1}, s{s_p}, {32768+8192}'); a(f's_add_u32 s{s_t}, s{s_t}, s{s_t1}')
        a(f'buffer_load_dword v6, v3, s[{S_P}:{S_P+3}], s{s_t} offen sc1'); vq.push('g')
        a(f's_lshl_b32 s{s_t}, s{s_sb}, 17')
        a(f'buffer_load_dword v6, v3, s[{S_OUT}:{S_OUT+3}], s{s_t} offen sc1'); vq.push('g')

    def part(t): return ('Y', t) if t < NY else ('O', t-NY)
    def switch(t):
        if t == 0:
            return [f's_mul_i32 s{s_sl}, s{s_p}, {448*4096}', f's_lshl_b32 s{s_t}, s{s_w}, 16', f's_add_u32 s{s_sl}, s{s_sl}, s{s_t}',
                    f's_lshl_b32 s{s_t}, s{s_sb}, 8', f's_add_u32 s{s_sl}, s{s_sl}, s{s_t}',
                    f's_lshl_b32 s{s_t}, s{s_mb}, 2', f's_add_u32 s{s_t}, s{s_t}, s{s_w}', f's_mul_i32 s{s_fr}, s{s_t}, {112*1024}',
                    f's_mul_i32 s{s_t}, s{s_p}, {28*1024}', f's_add_u32 s{s_fr}, s{s_fr}, s{s_t}']
        if t == NY:
            return [f's_lshl_b32 s{s_sl}, s{s_p}, 20', f's_lshl_b32 s{s_t}, s{s_w}, 14', f's_add_u32 s{s_sl}, s{s_sl}, s{s_t}',
                    f's_lshl_b32 s{s_t}, s{s_mb}, 8', f's_add_u32 s{s_sl}, s{s_sl}, s{s_t}',
                    f's_lshl_b32 s{s_t}, s{s_sb}, 2', f's_add_u32 s{s_t}, s{s_t}, s{s_w}', f's_lshl_b32 s{s_fr}, s{s_t}, 18',
                    f's_lshl_b32 s{s_t}, s{s_p}, 16', f's_add_u32 s{s_fr}, s{s_fr}, s{s_t}']
        return []
    def adv(s): return [f's_add_u32 s{s}, s{s}, {SLOT}', f's_cmp_ge_u32 s{s}, {NSL*SLOT}', f's_cselect_b32 s{s}, 0, s{s}']
    def loads(t):
        p, _ = part(t)
        srdS, vo, step = (S_W2, V_W2, 64*4096) if p == 'Y' else (S_WO, V_WO, 64*1024)
        srdF = S_U if p == 'Y' else S_CTX
        g = []
        for j in range(4):
            l = []
            if j == 0: l += switch(t) + [f's_add_u32 s{s_t2}, s{s_fill}, s{s_w4k}', f's_mov_b32 m0, s{s_t2}', 's_nop 0']
            l.append(f'buffer_load_dwordx4 v{vo+j}, s[{srdS}:{srdS+3}], s{s_sl} offen' + (f' offset:{j*1024}' if j else '') + ' lds')
            if j == 3: l.append(f's_add_u32 s{s_sl}, s{s_sl}, {step}')
            g.append((l, t))
        for j in range(4):
            l = []
            if j == 0: l += [f's_add_u32 m0, s{s_t2}, 16384', 's_nop 0']
            l.append(f'buffer_load_dwordx4 v{V_L16}, s[{srdF}:{srdF+3}], s{s_fr} offen' + (f' offset:{j*1024}' if j else '') + ' lds')
            if j == 3: l += [f's_add_u32 s{s_fr}, s{s_fr}, 4096'] + adv(s_fill)
            g.append((l, t))
        return g
    def emit_g(g):
        for l in g[0]: a(l)
        vq.push(g[1])
    def addr_update():
        l = [f'v_add_u32 v{V_TA+k}, s{s_rd}, v{V_TB+k}' for k in range(5)]
        l.append(f'v_add_u32 v{V_LA}, s{s_rd}, v{V_L16}')
        return l + adv(s_rd)
    def reads(t, ks, buf):
        p, _ = part(t); F = FB[buf]; l = []
        if p == 'O':
            l.append(f's_nop 0' if False else f'ds_read_b128 {v(F+16,4)}, v{V_LA+1} offset:{ks*1024}')
            for mt in range(4):
                l.append(f'ds_read_b64_tr_b16 {v(F+4*mt,2)}, v{V_TA+mt} offset:{ks*4096}')
                l.append(f'ds_read_b64_tr_b16 {v(F+4*mt+2,2)}, v{V_TA+mt} offset:{ks*4096+2048}')
        else:
            l.append(f'ds_read_b64_tr_b16 {v(F+16,2)}, v{V_TA+4} offset:{ks*4096}')
            l.append(f'ds_read_b64_tr_b16 {v(F+18,2)}, v{V_TA+4} offset:{ks*4096+2048}')
            for mt in range(4):
                l.append(f'ds_read_b128 {v(F+4*mt,4)}, v{V_LA} offset:{16384+mt*4096+ks*1024}')
        return l
    def addr_update2():
        return [f's_add_u32 s{s_t1}, s{s_w4k}, 16384', f's_add_u32 s{s_t1}, s{s_t1}, s{s_rd}', f'v_add_u32 v{V_LA+1}, s{s_t1}, v{V_L16}']
    def mfmas(t, ks, buf):
        p, tt = part(t); F = FB[buf]; first = tt == 0 and ks == 0
        A0 = ACCY if p == 'Y' else ACCO
        return [f'{MF} {v(A0+16*mt,16)}, {v(F+4*mt,4)}, {v(F+16,4)}, ' + ('0' if first else v(A0+16*mt,16)) for mt in range(4)]

    if sync:
        for l in switch(0): a(l)
        for t in range(NSL-1):
            a(f's_add_u32 m0, s{s_w4k}, {t*SLOT}'); a('s_nop 0')
            for j in range(4):
                a(f'buffer_load_dwordx4 v{V_W2+j}, s[{S_W2}:{S_W2+3}], s{s_sl} offen' + (f' offset:{j*1024}' if j else '') + ' lds'); vq.push(t)
            a(f's_add_u32 s{s_sl}, s{s_sl}, {64*4096}')
        sync(s_sb, s_mb, s_p, s_tile)
        for t in range(NSL-1):
            a(f's_add_u32 m0, s{s_w4k}, {t*SLOT+16384}'); a('s_nop 0')
            for j in range(4):
                a(f'buffer_load_dwordx4 v{V_L16}, s[{S_U}:{S_U+3}], s{s_fr} offen' + (f' offset:{j*1024}' if j else '') + ' lds'); vq.push(t)
            a(f's_add_u32 s{s_fr}, s{s_fr}, 4096')
        a(f's_mov_b32 s{s_fill}, {(NSL-1)*SLOT}')
    else:
        for t in range(NSL-1):
            for g in loads(t): emit_g(g)
    vq.wait_for(a, 0)
    a('s_barrier')
    for l in addr_update2() + addr_update() + reads(0, 0, 0): a(l)
    if not opt.get('rt'): st_('go')
    for t in range(NS):
        tn = t + NSL - 1
        gs = loads(tn) if tn < NS else []
        if not opt.get('rt'): st_(f's{t}')
        for ks in range(4):
            buf = ks & 1
            a('s_waitcnt lgkmcnt(0)')
            pre = []
            if ks == 3 and t+1 < NS:
                vq.wait_for(a, t+1)
                a('s_barrier')
                pre = addr_update2() + addr_update()
            mf = mfmas(t, ks, buf)
            if ks < 3: rd = reads(t, ks+1, buf ^ 1)
            elif t+1 < NS: rd = reads(t+1, 0, buf ^ 1)
            else: rd = []
            n = len(rd); per = -(-n // 3)
            for k, m in enumerate(mf):
                a(m)
                if k == 0:
                    for l in pre: a(l)
                for l in rd[per*k:per*(k+1)]: a(l)
                if ks < 3 and gs and ((ks*4+k) % 3 != 2):
                    emit_g(gs.pop(0))
        assert not gs
    st_('loopend')
    a(f'v_sub_f32 v{V_1G}, 1.0, v{V_G}')
    a(f's_lshl_b32 s{s_t}, s{s_tile}, 17')
    a(f's_lshl_b32 s{s_t1}, s{s_p}, 13'); a(f's_lshl_b32 s{s_t2}, s{s_w}, 11'); a(f's_add_u32 s{s_t1}, s{s_t1}, s{s_t2}'); a(f's_add_u32 s{s_t1}, s{s_t1}, s{s_t}')
    a('s_nop 4')
    OWN = 192
    for mt in range(4):
        o = ACCO+16*mt; y = ACCY+16*mt
        for e in range(16): a(f'v_mul_f32 v{o+e}, v{o+e}, v{V_G}')
        for e in range(16): a(f'v_fmac_f32 v{o+e}, v{y+e}, v{V_1G}')
        a(f's_cmp_eq_u32 s{s_p}, {mt}')
        a(f's_cbranch_scc1 {N}_own{mt}')
        a(f's_add_u32 s{s_t2}, s{s_t1}, {mt*32768}')
        for k in range(8): a(f'v_cvt_pk_bf16_f32 v{o+k}, v{o+2*k}, v{o+2*k+1}')
        for q in range(2):
            a(f'buffer_store_dwordx4 {v(o+4*q,4)}, v{V_L16}, s[{S_P}:{S_P+3}], s{s_t2} offen offset:{q*1024} sc1')
        a(f's_branch {N}_next{mt}')
        a.label(f'{N}_own{mt}')
        for e in range(16): a(f'v_mov_b32 v{OWN+e}, v{o+e}')
        a.label(f'{N}_next{mt}')
    if not opt.get('rt'): st_('published')
    a(f's_lshl_b32 s{s_t}, s{s_tile}, 17'); a(f's_lshl_b32 s{s_t1}, s{s_p}, 15'); a(f's_add_u32 s{s_t}, s{s_t}, s{s_t1}')
    a(f's_lshl_b32 s{s_t1}, s{s_w}, 11'); a(f's_add_u32 s{s_t}, s{s_t}, s{s_t1}')
    for k in range(1, 4):
        a(f's_add_u32 s{s_t1}, s{s_p}, {k}'); a(f's_and_b32 s{s_t1}, s{s_t1}, 3'); a(f's_lshl_b32 s{s_t1}, s{s_t1}, 13'); a(f's_add_u32 s{50+k}, s{s_t1}, s{s_t}')
    a('s_mov_b32 s54, 0')
    a.label(f'{N}_poll')
    for k in range(1, 4):
        for q in range(2):
            a(f'buffer_load_dwordx4 {v(ACCY+8*k+4*q,4)}, v{V_L16}, s[{S_P}:{S_P+3}], s{50+k} offen offset:{q*1024} sc1')
    a('s_add_u32 s54, s54, 1')
    a('s_waitcnt vmcnt(0)')
    R0 = ACCY+8
    a(f'v_max3_u32 v{T}, v{R0}, v{R0+1}, v{R0+2}')
    for k in range(3, 23, 2): a(f'v_max3_u32 v{T}, v{T}, v{R0+k}, v{R0+k+1}')
    a(f'v_max_u32 v{T}, v{T}, v{R0+23}')
    a(f'v_cmp_eq_u32 vcc, -1, v{T}')
    a('s_cmp_ge_u32 s54, 0x20000')
    a(f's_cbranch_scc1 {N}_poll_end')
    a(f's_cbranch_vccnz {N}_poll')
    a.label(f'{N}_poll_end')
    st_('gathered')
    a(f'v_lshlrev_b32 v{V_B2}, 16, v{V_B2}')
    a(f'v_mul_f32 v{V_B2}, v{V_B2}, v{V_1G}')
    D = OWN
    for e in range(16): a(f'v_add_f32 v{D+e}, v{D+e}, v{V_B2}')
    for k in range(1, 4):
        for q in range(8):
            r = ACCY+8*k+q
            a(f'v_lshlrev_b32 v{T}, 16, v{r}'); a(f'v_and_b32 v{T+1}, 0xffff0000, v{r}')
            a(f'v_add_f32 v{D+2*q}, v{D+2*q}, v{T}'); a(f'v_add_f32 v{D+2*q+1}, v{D+2*q+1}, v{T+1}')
    X = ACCO
    for jj in range(4):
        a(f'v_cvt_pk_bf16_f32 v{X+2*jj}, v{D+4*jj}, v{D+4*jj+1}')
        a(f'v_cvt_pk_bf16_f32 v{X+2*jj+1}, v{D+4*jj+2}, v{D+4*jj+3}')
    a(f's_lshl_b32 s{s_t}, s{s_sb}, 17'); a(f's_lshl_b32 s{s_t1}, s{s_w}, 15'); a(f's_add_u32 s{s_t}, s{s_t}, s{s_t1}')
    a(f's_lshl_b32 s{s_t1}, s{s_mb}, 8'); a(f's_add_u32 s{s_t}, s{s_t}, s{s_t1}')
    a(f's_lshl_b32 s{s_t1}, s{s_p}, 6'); a(f's_add_u32 s{s_t}, s{s_t}, s{s_t1}')
    for pr in range(2):
        b = X+4*pr
        a(f'v_permlane32_swap_b32 v{b}, v{b+2}')
        a(f'v_permlane32_swap_b32 v{b+1}, v{b+3}')
        a('s_nop 1')
        a(f'buffer_store_dwordx4 {v(b,4)}, v{V_OA}, s[{S_OUT}:{S_OUT+3}], s{s_t} offen offset:{32*pr}')
    a('s_waitcnt vmcnt(0)')
    st_('end')
    if opt.get('rt'):
        a('s_cmp_eq_u32 s2, 0'); a(f's_cbranch_scc0 {N}_nodbg'); a(f's_cmp_eq_u32 s{s_w}, 0'); a(f's_cbranch_scc0 {N}_nodbg')
        make_srd(a, 56, 76, 100*MB, 1 << 20); make_srd(a, 60, 74, 0, 256)
        a(f'v_lshrrev_b32 v3, 2, v{V_L16}')
        a(f's_mov_b32 s49, {opt.get("rt_wg", 0)*1024}')
        a('buffer_load_dword v4, v3, s[56:59], s49 offen')
        a(f'v_lshlrev_b32 v6, 4, v{V_L16}')
        for k in range(16):
            a(f's_mov_b32 s49, {k*16384}')
            a(f'buffer_load_dword v{64+k}, v6, s[56:59], s49 offen offset:252')
            a(f'buffer_load_dword v{80+k}, v6, s[56:59], s49 offen offset:248')
        a('s_waitcnt vmcnt(0)')
        for k in range(1, 16):
            a(f'v_max_u32 v64, v64, v{64+k}'); a(f'v_min_u32 v80, v80, v{80+k}')
        a('s_nop 1')
        a('v_readlane_b32 s50, v64, 0'); a('v_readlane_b32 s51, v80, 0')
        for ln in range(1, 64):
            a(f'v_readlane_b32 s52, v64, {ln}'); a(f'v_readlane_b32 s53, v80, {ln}'); a('s_max_u32 s50, s50, s52'); a('s_min_u32 s51, s51, s53')
        a('v_writelane_b32 v4, s50, 11'); a('v_writelane_b32 v4, s51, 10')
        a('v_cmp_gt_u32 vcc, 48, v3')
        a('s_and_saveexec_b64 s[50:51], vcc')
        a('buffer_store_dword v4, v3, s[60:63], 0 offen')
        a('s_mov_b64 exec, s[50:51]')
        a('v_cmp_gt_u32 vcc, 16, v3')
        a('s_and_saveexec_b64 s[50:51], vcc')
        a('buffer_store_dword v255, v3, s[60:63], 0 offen offset:48')
        a('s_mov_b64 exec, s[50:51]')
        a('s_waitcnt vmcnt(0)')
        a.label(f'{N}_nodbg')
    elif inline:
        st_.dump(100*MB, s_w, 253)
    else:
        st_.dump(100*MB, s_w, 240)
    if not inline:
        a.label(f'{N}_end')
        a('s_endpgm')
```

```python
from asmlib import *
from layout import *
import gen_attn2 as A
from gen_attn2 import *
from gen_proj2 import Proj, VmQueue, frag_store_groups
from gen_proj import make_srd
import gen_proj, gen_final
from gen_kv import ProjKV

class Main(Attn):
    def emit_phasec(self):
        a = self.a; N = self.name; opt = self.opt
        a('s_barrier')
        make_srd(a, 76, 34, WS_FL, 112*128)
        a(f's_lshr_b32 s27, s{s_h}, 3'); a('s_lshl_b32 s27, s27, 3'); a(f's_add_u32 s27, s27, s{s_i}'); a('s_lshl_b32 s27, s27, 7')
        a(f's_and_b32 s29, s{s_h}, 7'); a('s_lshl_b32 s29, s29, 2'); a('s_add_u32 s27, s27, s29')
        a('v_mov_b32 v41, s27')
        a('s_mov_b32 s30, 1')
        a(f's_cmp_eq_u32 s{s_i}, {self.nomlp_i}'); a(f's_cbranch_scc1 {N}_cnou')
        a('s_mul_i32 s27, s80, 37'); a('s_lshr_b32 s27, s27, 8'); a('s_mul_i32 s29, s27, 7'); a('s_sub_u32 s29, s80, s29')
        a('s_lshl_b32 s29, s29, 1'); a('s_and_b32 s31, s81, 1'); a('s_add_u32 s29, s29, s31'); a('s_lshl_b32 s29, s29, 2')
        a('s_lshl_b32 s27, s27, 2'); a('s_lshr_b32 s31, s81, 1'); a('s_add_u32 s27, s27, s31'); a('s_add_u32 s27, s27, 32'); a('s_lshl_b32 s27, s27, 7'); a('s_add_u32 s27, s27, s29')
        a('v_writelane_b32 v41, s27, 1'); a('s_or_b32 s30, s30, 2')
        a.label(f'{N}_cnou')
        a(f's_cmp_eq_u32 s{s_i}, 7'); a(f's_cbranch_scc0 {N}_cflag')
        a('s_sub_u32 s27, s2, 224'); a('s_lshl_b32 s27, s27, 1'); a('s_add_u32 s27, s27, 48'); a('s_lshl_b32 s27, s27, 7')
        a('v_writelane_b32 v41, s27, 2'); a('s_add_u32 s27, s27, 128'); a('v_writelane_b32 v41, s27, 3'); a('s_or_b32 s30, s30, 12')
        a.label(f'{N}_cflag')
        a('v_mov_b32 v42, 1')
        a(f's_cmp_eq_u32 s{s_w}, 0'); a('s_cselect_b32 exec_lo, s30, 0'); a('s_mov_b32 exec_hi, 0')
        a('buffer_store_dword v42, v41, s[76:79], 0 offen sc1')
        a('s_mov_b64 exec, -1')
        def poll(s_sb, s_mb, s_p, s_tile):
            make_srd(a, 56, 76, WS_FL, 112*128)
            a(f's_sub_u32 s49, 15, s{s_sb}'); a(f's_min_u32 s49, s49, s{s_sb}'); a(f's_lshl_b32 s50, s{s_p}, 3'); a('s_add_u32 s49, s49, s50'); a('s_lshl_b32 s49, s49, 7')
            a(f's_lshl_b32 s50, s{s_p}, 2'); a(f's_add_u32 s50, s50, s{s_mb}'); a('s_add_u32 s50, s50, 32'); a('s_lshl_b32 s50, s50, 7'); a('s_sub_u32 s50, s50, 32')
            a(f's_add_u32 s51, s{s_tile}, 48'); a('s_lshl_b32 s51, s51, 7')
            a('v_lshrrev_b32 v45, 2, v2')
            a('v_mov_b32 v46, s50'); a('v_mov_b32 v47, s49'); a('v_cmp_gt_u32 vcc, 32, v45'); a('s_nop 1'); a('v_cndmask_b32 v46, v46, v47, vcc')
            a('v_add_u32 v45, v45, v46'); a('v_writelane_b32 v45, s51, 22')
            a(f's_cmp_eq_u32 s{s_w}, 0'); a(f's_cbranch_scc0 {N}_cpolled')
            a('s_mov_b32 s49, 0')
            a.label(f'{N}_cpoll')
            a('buffer_load_dword v44, v45, s[56:59], 0 offen sc1')
            a('s_waitcnt vmcnt(0)')
            a('v_cmp_ne_u32 vcc, 1, v44'); a('s_nop 3'); a('s_and_b32 s50, vcc_lo, 0x7fffff'); a('s_cmp_eq_u32 s50, 0')
            a(f's_cbranch_scc1 {N}_cpolled')
            a('s_add_u32 s49, s49, 1'); a('s_cmp_ge_u32 s49, 0x20000'); a(f's_cbranch_scc1 {N}_cpolled')
            a(f's_sleep {opt.get("csleep", 4)}'); a(f's_branch {N}_cpoll')
            a.label(f'{N}_cpolled')
            a('s_barrier')
        gen_final.emit_final(a, N + '_fin', inline=True, sync=poll, stamps=self.st, **opt.get('l3', {}))

    def emit_head(self):
        a = self.a; N = self.name; opt = self.opt
        S_CK, S_WK, S_X, S_O, S_WV, S_WQ = 4, 8, 12, 16, 92, 60
        S_H, S_G, S_GW = 76, 48, 52
        a(f's_cmp_ge_u32 s2, 256')
        a(f's_cbranch_scc1 {N}_end')
        self.stamp()
        a(f's_load_dwordx2 s[34:35], s[0:1], {KA_WS}')
        a(f's_load_dwordx2 s[64:65], s[0:1], {KA_AX}')
        a(f's_load_dwordx2 s[90:91], s[0:1], {KA_CKV}')
        a(f's_load_dwordx4 s[96:99], s[0:1], {KA_WUK}')
        a(f's_load_dwordx2 s[38:39], s[0:1], {KA_GW}')
        a(f's_load_dwordx2 s[66:67], s[0:1], {KA_WQ}')
        a(f's_load_dwordx2 s[68:69], s[0:1], {KA_W1}')
        a(f's_load_dwordx2 s[86:87], s[0:1], {KA_B1}')
        a(f's_load_dwordx2 s[70:71], s[0:1], {KA_WO}')
        a(f's_load_dwordx2 s[72:73], s[0:1], {KA_W2}')
        a(f's_load_dwordx2 s[100:101], s[0:1], {KA_DBG}')
        a(f'v_lshrrev_b32 v1, 6, v0')
        a(f'v_and_b32 v2, 63, v0')
        a(f'v_lshlrev_b32 v{V_L16}, 4, v2')
        a(f'v_readfirstlane_b32 s{s_w}, v1')
        a(f's_and_b32 s{s_t0}, s2, 7')
        a(f's_lshr_b32 s{s_t1}, s2, 3')
        a(f's_lshl_b32 s{s_h}, s{s_t0}, 2')
        a(f's_and_b32 s{s_t0}, s{s_t1}, 3')
        a(f's_add_u32 s{s_h}, s{s_h}, s{s_t0}')
        a(f's_lshr_b32 s{s_i}, s{s_t1}, 2')
        a(f's_add_u32 s{s_g1}, s{s_i}, 1')
        a(f's_lshl_b32 s{s_g1}, s{s_g1}, 2')
        a(f's_lshl_b32 s36, s{s_i}, 2'); a(f's_add_u32 s36, s36, s{s_w}')
        a(f's_lshl_b32 s37, s{s_i}, 2'); a(f's_sub_u32 s37, 60, s37'); a(f's_add_u32 s37, s37, s{s_w}')
        vq = VmQueue()
        P = Proj(a, vq, s_w, 16384, 16384, ACC=64, FB=(192, 216), fbk='a', VA=8, V_L16=V_L16, VT=33, SG=40,
                 wflags=(' nt' if opt.get('nt', True) else ''), stamps=self.st, opt=opt)
        P.setup_addrs(set_l16=False)
        a('s_waitcnt lgkmcnt(0)')
        make_srd(a, S_X, 64, 0, 2*MB); make_srd(a, S_GW, 38, 0, 1024)
        a(f's_lshl_b32 s82, s2, 3'); a(f's_lshl_b32 s83, s{s_w}, 1'); a('s_add_u32 s82, s82, s83')
        a('s_lshl_b32 s83, s82, 2'); a('s_lshl_b32 s82, s82, 10')
        LB_ = 40
        a(f'buffer_load_dwordx4 v[{LB_}:{LB_+3}], v{V_L16}, s[{S_X}:{S_X+3}], s82 offen'); vq.push('ln')
        a(f'buffer_load_dwordx4 v[{LB_+4}:{LB_+7}], v{V_L16}, s[{S_X}:{S_X+3}], s82 offen offset:1024'); vq.push('ln')
        a(f'buffer_load_dwordx4 v[{LB_+16}:{LB_+19}], v{V_L16}, s[{S_GW}:{S_GW+3}], 0 offen'); vq.push('ln')
        make_srd(a, S_CK, 90, 0, 2*MB); make_srd(a, S_WK, 96, 0, 4*MB); make_srd(a, S_WV, 98, 0, 4*MB)
        initKV = [f's_lshl_b32 s{P.s_a0}, s{s_i}, 18', f's_lshl_b32 s49, s{s_w}, 16', f's_add_u32 s{P.s_a0}, s{P.s_a0}, s49',
                  f's_add_u32 s{P.s_a1}, s{P.s_a0}, 32768',
                  f's_lshl_b32 s{P.s_wo}, s{s_w}, 17', f's_lshl_b32 s49, s{s_h}, 8', f's_add_u32 s{P.s_wo}, s{P.s_wo}, s49']
        initQ = [f's_lshl_b32 s{P.s_a0}, s36, 15', f's_lshl_b32 s{P.s_a1}, s37, 15',
                 f's_lshl_b32 s{P.s_wo}, s{s_w}, 17', f's_lshl_b32 s49, s{s_h}, 8', f's_add_u32 s{P.s_wo}, s{P.s_wo}, s49']
        ps = [dict(swap=False, srdA=S_CK, srdW=S_WK, init=initKV, epi=lambda: None, acck='v'),
              dict(swap=True, srdA=S_CK, srdW=S_WV, init=initKV, epi=lambda: None, acck='a'),
              dict(swap=False, srdA=S_X, srdW=S_WQ, init=initQ, epi=lambda: None, acck='v')]
        P.prologue(ps[0])
        make_srd(a, S_WQ, 66, 0, 4*MB)
        make_srd(a, S_O, 34, WS_K, 32*MB)
        make_srd(a, S_H, 34, WS_H, 2*MB); make_srd(a, S_G, 34, WS_G, 8192)
        real_a = self.a; tmp_a = Asm(); self.a = tmp_a
        M = self.setup_attn_regs()
        self.a = real_a; M.a = real_a
        c = 0x3e0293ee
        setup = tmp_a.lines + [f'v_mov_b32 v2, {hex(c)}', f'v_mov_b32 v3, {hex(c)}'] + [f'v_accvgpr_write_b32 a{e}, 0' for e in range(64)]
        setupG = [(setup[k:k+4], None) for k in range(0, len(setup), 4)]
        perS = -(-len(setupG)//5)
        vq.wait_for(a, 'ln')
        gen_proj.R.V_L16 = V_L16
        st_save = STF.st; STF.st = ' sc1'
        gen_proj.emit_ln_compute(a, LB_, S_H, S_G, 82, 83, 64)
        for _ in range(3): vq.push('lnst')
        a('s_getreg_b32 s33, hwreg(HW_REG_XCC_ID, 0, 4)')
        a('s_or_b32 s33, s33, 0x50')
        make_srd(a, 76, 34, WS_HF, 4096)
        a(f's_lshl_b32 s32, s{s_h}, 7')
        a('v_mov_b32 v41, 0'); a(f'v_lshrrev_b32 v42, 2, v{V_L16}')
        a(f's_or_b32 s{s_t0}, s{s_w}, s{s_i}'); a(f's_cmp_eq_u32 s{s_t0}, 0'); a('s_cselect_b32 exec_lo, -1, 0'); a('s_mov_b32 exec_hi, 0')
        a('buffer_store_dword v41, v42, s[76:79], s32 offen sc1'); vq.push('lnst')
        a('s_mov_b64 exec, -1')
        if opt.get('fusefin'):
            make_srd(a, 76, 34, WS_FL, 112*128)
            a('s_lshl_b32 s32, s2, 7')
            a(f's_cmp_eq_u32 s{s_w}, 0'); a('s_cselect_b32 exec_lo, -1, 0'); a('s_mov_b32 exec_hi, 0')
            a('buffer_store_dword v41, v42, s[76:79], s32 offen sc1'); vq.push('lnst')
            a('s_mov_b64 exec, -1')
        a(f's_and_b32 s91, s{s_h}, 3'); a(f's_cmp_eq_u32 s{s_w}, 0'); a('s_cselect_b32 s91, s91, 0xff')
        a(f's_lshl_b32 s{s_t0}, s{s_h}, 6'); a(f's_lshl_b32 s{s_t1}, s{s_i}, 3'); a(f's_add_u32 s{s_t0}, s{s_t0}, s{s_t1}')
        a(f's_lshl_b32 s{s_t1}, s{s_w}, 1'); a(f's_add_u32 s{s_t0}, s{s_t0}, s{s_t1}'); a(f's_lshl_b32 s{s_t0}, s{s_t0}, 13')
        for k in range(4):
            a(f's_add_u32 s{50+k}, s{s_t0}, {k*4096}')
            a(f's_add_u32 s{96+k}, s{s_t0}, {16*MB + k*4096}')
        STF.st = opt.get('kst', opt.get('kvst', ''))
        KG = frag_store_groups(P, 'K', 'v', S_O, 50, None, v_scale=2, tag='kst')
        STF.st = opt.get('vst', opt.get('kvst', ''))
        VGs = frag_store_groups(P, 'V', 'a', S_O, 96, 40, tag='vst')
        STF.st = st_save
        nv = opt.get('vstages', 3); sigt = opt.get('sigt', nv+1)
        perK = len(KG)//8; perV = len(VGs)//nv
        KV0 = self.kv_groups('K', 6); VV0 = self.kv_groups('V', 4)
        zero = [([f'v_accvgpr_write_b32 a{64+4*k+e}, 0' for e in range(4)], None) for k in range(16)]
        srds = self.kv_srd_lines()
        dbg = Asm(); make_srd(dbg, 76, 100, 0, 256)
        hfl = Asm(); make_srd(hfl, 92, 34, WS_HF, 4096)
        def lnsig(k): return (dbg.lines + ['v_mov_b32 v58, 0', 'v_mov_b32 v59, s33', f's_cmp_eq_u32 s91, {k}', 's_cselect_b64 exec, 1, 0',
               f'buffer_store_byte v59, v58, s[76:79], s2 offen sc1', 's_mov_b64 exec, -1'], 'flag')
        idaddr = [f'v_lshlrev_b32 v57, 1, v{V_L16}', f's_lshr_b32 s{s_t1}, s{s_h}, 2', f's_and_b32 s32, s{s_h}, 3', 's_lshl_b32 s32, s32, 3', f's_add_u32 s48, s32, s{s_t1}']
        idld = (dbg.lines + idaddr + ['buffer_load_ubyte v56, v57, s[76:79], s48 offen sc1'], 'id')
        sig = dbg.lines + hfl.lines + [f's_cmp_eq_u32 s{s_w}, 0', f's_cbranch_scc0 {N}_nosig', f's_mov_b32 s{s_cnt}, 0',
               f'{N}_idchk:',
               'v_readfirstlane_b32 s32, v56', 's_and_b32 s32, s32, 0x40', 's_cmp_lg_u32 s32, 0', f's_cbranch_scc1 {N}_idok',
               f's_add_u32 s{s_cnt}, s{s_cnt}, 1', f's_cmp_ge_u32 s{s_cnt}, 0x20000', f's_cbranch_scc1 {N}_idok',
               'buffer_load_ubyte v56, v57, s[76:79], s48 offen sc1', 's_waitcnt vmcnt(0)', 's_nop 0', f's_branch {N}_idchk',
               f'{N}_idok:',
               'v_cmp_ne_u32 vcc, s33, v56', 's_nop 3', 's_and_b32 s32, vcc_lo, 0xff', 's_cmp_eq_u32 s32, 0',
               f's_cbranch_scc1 {N}_samexcd', 'buffer_wbl2 sc1', 's_waitcnt vmcnt(0)', f'{N}_samexcd:',
               f's_lshl_b32 s32, s{s_h}, 7', f's_lshl_b32 s{s_t1}, s{s_i}, 2', f's_add_u32 s32, s32, s{s_t1}',
               'v_mov_b32 v41, 0', 'v_mov_b32 v42, 1', 's_mov_b64 exec, 1',
               'buffer_store_dword v42, v41, s[92:95], s32 offen sc1', 's_mov_b64 exec, -1', f'{N}_nosig:']
        pollld = ['buffer_load_dword v232, v233, s[76:79], 0 offen sc1', 'buffer_load_dword v235, v233, s[92:95], s91 offen sc1']
        pollpre = dbg.lines + hfl.lines + [f's_lshl_b32 s91, s{s_h}, 7', f'v_lshrrev_b32 v233, 2, v{V_L16}', 'v_mov_b32 v234, 0x40404040',
                   f's_cmp_eq_u32 s{s_w}, 0', f's_cbranch_scc0 {N}_nopoll0'] + pollld + [f'{N}_nopoll0:']
        def pfw(srd_): return ([f'v_lshrrev_b32 v58, 5, v{V_L16}', 'v_lshlrev_b32 v58, 13, v58', f'v_bfe_u32 v59, v{V_L16}, 4, 1', 'v_lshl_add_u32 v58, v59, 7, v58',
               f's_lshl_b32 s32, s{s_w}, 4', f's_lshl_b32 s49, s{s_i}, 6', 's_add_u32 s32, s32, s49', 's_lshl_b32 s32, s32, 13',
               f's_lshl_b32 s49, s{s_h}, 8', 's_add_u32 s32, s32, s49', 's_mov_b32 exec_hi, 0',
               f'buffer_load_dword v253, v58, s[{srd_}:{srd_+3}], s32 offen', 's_mov_b64 exec, -1'], 'pf')
        def pfx(qt): return ([f'v_lshrrev_b32 v58, 7, v{V_L16}', 'v_lshlrev_b32 v58, 10, v58', f'v_bfe_u32 v59, v{V_L16}, 4, 3', 'v_lshl_add_u32 v58, v59, 7, v58',
               f's_lshl_b32 s32, s{qt}, 5', f's_and_b32 s49, s{s_h}, 3', 's_lshl_b32 s49, s49, 3', 's_add_u32 s32, s32, s49', 's_lshl_b32 s32, s32, 10',
               f'buffer_load_dword v253, v58, s[{S_X}:{S_X+3}], s32 offen'], 'pf')
        def pfc(k): return ([f'v_lshrrev_b32 v58, 7, v{V_L16}', 'v_lshlrev_b32 v58, 10, v58', f'v_bfe_u32 v59, v{V_L16}, 4, 3', 'v_lshl_add_u32 v58, v59, 7, v58',
               f's_lshl_b32 s32, s{s_i}, 8', f's_and_b32 s49, s{s_h}, 3', 's_lshl_b32 s49, s49, 6', 's_add_u32 s32, s32, s49', f's_lshl_b32 s49, s{s_w}, 4', 's_add_u32 s32, s32, s49',
               f's_add_u32 s32, s32, {8*k}', 's_lshl_b32 s32, s32, 10', f'buffer_load_dword v253, v58, s[{S_CK}:{S_CK+3}], s32 offen'], 'pf')
        def pf1():
            l = Asm(); make_srd(l, 76, 68, 0, 2048*3584)
            l(f'v_lshlrev_b32 v58, 3, v{V_L16}'); l('s_lshl_b32 s32, s2, 2'); l(f's_add_u32 s32, s32, s{s_w}'); l('s_mul_i32 s32, s32, 7168')
            l('buffer_load_dword v253, v58, s[76:79], s32 offen')
            return (l.lines, 'pf')
        pf = opt.get('pfa', 'vq')
        def xe(p, t):
            if p == 0:
                g = list(setupG[(t-1)*perS:t*perS]) if 1 <= t <= 5 else []
                if t == 0:
                    if 'k' in pf: g.append(pfw(S_WK))
                    if 'c' in pf: g += [pfc(0), pfc(1)]
                if '1' in pf and t == 6: g.append(pf1())
                if 'v' in pf and t == opt.get('pfv_t', 1): g.append(pfw(S_WV))
                return g
            if p == 1:
                g = list(KG[t*perK:(t+1)*perK])
                if 'q' in pf and t == 1: g.append(pfw(S_WQ))
                if 'x' in pf and t == 2: g.append(pfx(36))
                if 'x' in pf and t == 3: g.append(pfx(37))
                if '2' in pf and t == 5: g.append(pf1())
                return g
            if p == 2:
                g = []
                if t < nv: g += VGs[t*perV:(t+1)*perV] + ([idld] if t == 0 else [])
                if t == nv: g += zero
                if t == 6: g += [(srds, None)]
                if t == 7: g += [(pollpre, None)]
                return g
            return []
        late_pf = opt.get('pflate', {})
        def xl(p, t):
            g = []
            if p == 0 and 2 <= t <= 5: g.append(lnsig(t-2))
            if p == 2 and t == sigt: g.append((sig, None))
            k = late_pf.get((p, t))
            if k == 'v': g.append(pfw(S_WV))
            if k == 'q': g.append(pfw(S_WQ))
            if k == '1': g.append(pf1())
            if k == 'a': g.append(pfx(36))
            if k == 'b': g.append(pfx(37))
            return g
        assert sigt >= nv + 1 and sigt <= 6 and 48 % nv == 0
        P.start_compute()
        self.stamp()
        P.run(ps, extra_early=xe, extra_late=xl)
        self.stamp()
        self.q_to_frags_cvt()
        chk = ['s_waitcnt vmcnt(0)', 'v_and_b32 v232, v234, v232', 'v_cmp_ne_u32 vcc, v234, v232', 'v_cmp_ne_u32 s[54:55], 1, v235', 's_nop 3',
               's_and_b32 s32, s54, 0xff', 's_or_b32 s32, s32, vcc_lo', 's_or_b32 s32, s32, vcc_hi', 's_cmp_eq_u32 s32, 0']
        for l in [f's_cmp_eq_u32 s{s_w}, 0', f's_cbranch_scc0 {N}_polled', f's_mov_b32 s{s_cnt}, 0', f'{N}_poll:'] + chk + \
                 [f's_cbranch_scc1 {N}_polled', f's_add_u32 s{s_cnt}, s{s_cnt}, 1', f's_cmp_ge_u32 s{s_cnt}, 0x20000', f's_cbranch_scc1 {N}_polled',
                  f's_sleep {opt.get("sleep", 8)}'] + pollld + [f's_branch {N}_poll', f'{N}_polled:']: a(l)
        a('s_barrier')
        for g in KV0 + VV0:
            for l in g[0]: a(l)
        self.stamp()
        self.q_to_frags_srd()
        return M


class Main2(Main):
    def emit_head(self):
        a = self.a; N = self.name; opt = self.opt
        S_CK, S_WK, S_X, S_O, S_WV, S_WQ = 4, 8, 12, 16, 92, 60
        S_H, S_G, S_GW = 76, 48, 52
        a(f's_cmp_ge_u32 s2, 256')
        a(f's_cbranch_scc1 {N}_end')
        self.stamp()
        a(f's_load_dwordx2 s[90:91], s[0:1], {KA_CKV}')
        a(f's_load_dwordx4 s[96:99], s[0:1], {KA_WUK}')
        a(f's_load_dwordx2 s[34:35], s[0:1], {KA_WS}')
        a(f's_load_dwordx2 s[64:65], s[0:1], {KA_AX}')
        a(f's_load_dwordx2 s[38:39], s[0:1], {KA_GW}')
        a(f's_load_dwordx2 s[66:67], s[0:1], {KA_WQ}')
        a(f's_load_dwordx2 s[68:69], s[0:1], {KA_W1}')
        a(f's_load_dwordx2 s[86:87], s[0:1], {KA_B1}')
        a(f's_load_dwordx2 s[70:71], s[0:1], {KA_WO}')
        a(f's_load_dwordx2 s[72:73], s[0:1], {KA_W2}')
        a(f's_load_dwordx2 s[100:101], s[0:1], {KA_DBG}')
        a(f'v_lshrrev_b32 v1, 6, v0')
        a(f'v_and_b32 v2, 63, v0')
        a(f'v_lshlrev_b32 v{V_L16}, 4, v2')
        a(f'v_readfirstlane_b32 s{s_w}, v1')
        a(f's_and_b32 s{s_t0}, s2, 7')
        a(f's_lshr_b32 s{s_t1}, s2, 3')
        a(f's_lshl_b32 s{s_h}, s{s_t0}, 2')
        a(f's_and_b32 s{s_t0}, s{s_t1}, 3')
        a(f's_add_u32 s{s_h}, s{s_h}, s{s_t0}')
        a(f's_lshr_b32 s{s_i}, s{s_t1}, 2')
        a(f's_add_u32 s{s_g1}, s{s_i}, 1')
        a(f's_lshl_b32 s{s_g1}, s{s_g1}, 2')
        a(f's_lshl_b32 s36, s{s_i}, 2'); a(f's_add_u32 s36, s36, s{s_w}')
        a(f's_lshl_b32 s37, s{s_i}, 2'); a(f's_sub_u32 s37, 60, s37'); a(f's_add_u32 s37, s37, s{s_w}')
        vq = VmQueue()
        a('s_waitcnt lgkmcnt(0)')
        make_srd(a, S_CK, 90, 0, 2*MB); make_srd(a, S_WK, 96, 0, 4*MB); make_srd(a, S_WV, 98, 0, 4*MB)
        make_srd(a, S_X, 64, 0, 2*MB); make_srd(a, S_GW, 38, 0, 1024); make_srd(a, S_WQ, 66, 0, 4*MB)
        KV = ProjKV(a, vq, s_w, S_CK, S_WK, S_WV, ACCK=64, ACCV=64, VR=40, VT=33, SG=(38, 39, 64, 65, 66, 67, 90), stamps=self.st, opt=opt)
        KV.setup(s_i, s_h)
        LB_ = 232
        a(f's_lshl_b32 s82, s2, 3'); a(f's_lshl_b32 s83, s{s_w}, 1'); a('s_add_u32 s82, s82, s83')
        a('s_lshl_b32 s83, s82, 2'); a('s_lshl_b32 s82, s82, 10')
        a(f'buffer_load_dwordx4 v[{LB_}:{LB_+3}], v{V_L16}, s[{S_X}:{S_X+3}], s82 offen'); vq.push('ln')
        a(f'buffer_load_dwordx4 v[{LB_+4}:{LB_+7}], v{V_L16}, s[{S_X}:{S_X+3}], s82 offen offset:1024'); vq.push('ln')
        a(f'buffer_load_dwordx4 v[{LB_+16}:{LB_+19}], v{V_L16}, s[{S_GW}:{S_GW+3}], 0 offen'); vq.push('ln')
        rest0 = KV.prologue(opt.get('kvpro', 2))
        P = Proj(a, vq, s_w, 16384, 65536, ACC=64, FB=(192, 216), fbk='a', VA=8, V_L16=V_L16, VT=33, SG=40,
                 wflags=(' nt' if opt.get('nt', False) else ''), stamps=self.st, opt=opt)
        P.setup_addrs(set_l16=False)
        make_srd(a, S_O, 34, WS_K, 32*MB)
        make_srd(a, S_H, 34, WS_H, 2*MB); make_srd(a, S_G, 34, WS_G, 8192)
        real_a = self.a; tmp_a = Asm(); self.a = tmp_a; self.mtmp = 232
        M = self.setup_attn_regs()
        self.a = real_a; M.a = real_a
        c = 0x3e0293ee
        setup = tmp_a.lines + [f'v_mov_b32 v2, {hex(c)}', f'v_mov_b32 v3, {hex(c)}']
        setupG = [(setup[k:k+4], None) for k in range(0, len(setup), 4)]
        perS = -(-len(setupG)//6)
        vq.wait_for(a, 'ln')
        gen_proj.R.V_L16 = V_L16
        st_save = STF.st; STF.st = ' sc1'
        gen_proj.emit_ln_compute(a, LB_, S_H, S_G, 82, 83, 64)
        for _ in range(3): vq.push('lnst')
        a('s_getreg_b32 s33, hwreg(HW_REG_XCC_ID, 0, 4)')
        a('s_or_b32 s33, s33, 0x10')
        make_srd(a, 76, 100, 0, 256)
        a('v_mov_b32 v33, 0'); a('v_mov_b32 v34, s33')
        a(f's_cmp_eq_u32 s{s_w}, 0'); a('s_cselect_b64 exec, 1, 0')
        a('buffer_store_byte v34, v33, s[76:79], s2 offen sc1'); vq.push('flag')
        a('s_mov_b64 exec, -1')
        npre = 8*opt.get('kvpre2', 1)
        for g in rest0[:npre]: KV.emit_group(g)
        KV.initial = rest0[npre:]
        a(f's_lshl_b32 s{s_t0}, s{s_h}, 6'); a(f's_lshl_b32 s{s_t1}, s{s_i}, 3'); a(f's_add_u32 s{s_t0}, s{s_t0}, s{s_t1}')
        a(f's_lshl_b32 s{s_t1}, s{s_w}, 1'); a(f's_add_u32 s{s_t0}, s{s_t0}, s{s_t1}'); a(f's_lshl_b32 s{s_t0}, s{s_t0}, 13')
        for k in range(4):
            a(f's_add_u32 s{50+k}, s{s_t0}, {k*4096}')
            a(f's_add_u32 s{96+k}, s{s_t0}, {16*MB + k*4096}')
        STF.st = opt.get('kvst', '')
        KG = frag_store_groups(P, 'K', 'v', S_O, 50, None, v_scale=2, tag='kst')
        VGs = frag_store_groups(P, 'V', 'a', S_O, 96, 40, tag='vst')
        STF.st = st_save
        nv = opt.get('vstages', 3); sigt = opt.get('sigt', nv+1)
        perV = len(VGs)//nv
        KV0 = self.kv_groups('K', 6); VV0 = self.kv_groups('V', 4)
        zero = [([f'v_accvgpr_write_b32 a{4*k+e}, 0' for e in range(4)], None) for k in range(32)]
        srds = self.kv_srd_lines()
        dbg = Asm(); make_srd(dbg, 76, 100, 0, 256)
        one = lambda val, lab: [f's_cmp_eq_u32 s{s_w}, 0', f's_cbranch_scc0 {N}_{lab}']
        idld = dbg.lines + [f's_cmp_eq_u32 s{s_w}, 0', f's_cbranch_scc0 {N}_noid',
               f'v_lshlrev_b32 v57, 1, v{V_L16}', f's_lshr_b32 s{s_t1}, s{s_h}, 2', f's_and_b32 s32, s{s_h}, 3', 's_lshl_b32 s32, s32, 3', f's_add_u32 s32, s32, s{s_t1}',
               'buffer_load_ubyte v56, v57, s[76:79], s32 offen sc1', f'{N}_noid:']
        lnsig = dbg.lines + ['s_or_b32 s32, s33, 0x40', 'v_mov_b32 v58, 0', 'v_mov_b32 v59, s32', f's_cmp_eq_u32 s{s_w}, 0', 's_cselect_b64 exec, 1, 0',
               f'buffer_store_byte v59, v58, s[76:79], s2 offen sc1', 's_mov_b64 exec, -1']
        sig = [f's_cmp_eq_u32 s{s_w}, 0', f's_cbranch_scc0 {N}_nosig',
               'v_and_b32 v56, 0x1f, v56', 'v_cmp_ne_u32 vcc, s33, v56', 's_nop 3', 's_and_b32 s32, vcc_lo, 0xff', 's_cmp_eq_u32 s32, 0',
               f's_cbranch_scc1 {N}_samexcd', 'buffer_wbl2 sc1', 's_waitcnt vmcnt(0)', f'{N}_samexcd:',
               's_or_b32 s32, s33, 0xc0', 'v_mov_b32 v41, 0', 'v_mov_b32 v42, s32', 's_mov_b64 exec, 1',
               f'buffer_store_byte v42, v41, s[76:79], s2 offen sc1', 's_mov_b64 exec, -1', f'{N}_nosig:']
        pollpre = [f's_cmp_eq_u32 s{s_w}, 0', f's_cbranch_scc0 {N}_nopoll0',
                   f's_lshr_b32 s{s_t1}, s{s_h}, 4', f's_and_b32 s32, s{s_h}, 3', 's_lshl_b32 s32, s32, 1', f's_add_u32 s{s_t1}, s{s_t1}, s32',
                   f's_lshr_b32 s32, s{s_h}, 2', 's_and_b32 s32, s32, 3', 's_lshl_b32 s32, s32, 3', 's_lshl_b32 s32, 0x80, s32', 's_or_b32 s32, s32, 0x40404040',
                   f'v_lshrrev_b32 v42, 2, v{V_L16}', f'v_bfe_u32 v44, v{V_L16}, 4, 3', f'v_cmp_eq_u32 vcc, s{s_t1}, v44', 'v_mov_b32 v43, 0x40404040', 'v_mov_b32 v45, s32',
                   'v_cndmask_b32 v43, v43, v45, vcc',
                   f'buffer_load_dword v41, v42, s[76:79], 0 offen sc1', f'{N}_nopoll0:']
        initQ = [f's_lshl_b32 s{P.s_a0}, s36, 15', f's_lshl_b32 s{P.s_a1}, s37, 15',
                 f's_lshl_b32 s{P.s_wo}, s{s_w}, 17', f's_lshl_b32 s49, s{s_h}, 8', f's_add_u32 s{P.s_wo}, s{P.s_wo}, s49']
        qpass = [dict(swap=False, srdA=S_X, srdW=S_WQ, init=initQ, epi=lambda: None, acck='v')]
        Q0 = P.dma_stage(S_X, S_WQ, (0, 0), pre=initQ); Q1 = P.dma_stage(S_X, S_WQ, (0, 1)); Q2 = P.dma_stage(S_X, S_WQ, (0, 2))
        def touch(lines): return (lines, 'pf')
        pfw = [f'v_lshrrev_b32 v58, 5, v{V_L16}', 'v_lshlrev_b32 v58, 13, v58', f'v_bfe_u32 v59, v{V_L16}, 4, 1', 'v_lshl_add_u32 v58, v59, 7, v58',
               f's_and_b32 s32, s{s_w}, 1', 's_lshl_b32 s32, s32, 5', f's_lshl_b32 s49, s{s_i}, 6', 's_add_u32 s32, s32, s49', 's_lshl_b32 s32, s32, 13',
               f's_lshl_b32 s49, s{s_h}, 8', 's_add_u32 s32, s32, s49', f'buffer_load_dword v253, v58, s[{S_WQ}:{S_WQ+3}], s32 offen']
        def pfx(qt): return [f'v_lshrrev_b32 v58, 7, v{V_L16}', 'v_lshlrev_b32 v58, 10, v58', f'v_bfe_u32 v59, v{V_L16}, 4, 3', 'v_lshl_add_u32 v58, v59, 7, v58',
               f's_lshl_b32 s32, s{qt}, 5', f's_and_b32 s49, s{s_h}, 3', 's_lshl_b32 s49, s49, 3', 's_add_u32 s32, s32, s49', 's_lshl_b32 s32, s32, 10',
               f'buffer_load_dword v253, v58, s[{S_X}:{S_X+3}], s32 offen']
        def kvx(t):
            early, late = [], []
            if opt.get('pfq', True):
                if t == 7: early += [touch(pfw)]
                if t == 8: early += [touch(pfx(36))]
                if t == 9: early += [touch(pfx(37))]
            if 1 <= t <= 6: early += setupG[(t-1)*perS:t*perS]
            if t == opt.get('lnsig_t', 4): late += [(lnsig, 'flag')]
            if t == 13: late += Q0[:4]
            if t == 14: early += Q0[4:]; late += Q1[:4]
            if t == 15: early += Q1[4:]; late += Q2[:3]
            return early, late
        def handover():
            return (0, 0), P.read_addr_update(), P.kstep_reads(0, 0)
        KV.start()
        self.stamp()
        KV.run(kvx, handover)
        P.lq = list(KV.lq); P.g_pending = Q2[3:]
        self.stamp()
        a('s_nop 7')
        for g in KG: P.emit_group(g)
        self.stamp()
        def xe(p, t):
            g = []
            if t < nv: g += VGs[t*perV:(t+1)*perV] + ([(idld, None)] if t == 0 else [])
            if t == nv: g += zero[:16]
            if t == nv+1: g += zero[16:]
            if t == 6: g += [(srds, None)]
            if t == 7: g += [(pollpre, None)]
            return g
        def xl(p, t):
            return [(sig, None)] if t == sigt else []
        assert sigt >= nv + 1 and sigt <= 6 and 48 % nv == 0
        P.run(qpass, extra_early=xe, extra_late=xl)
        self.stamp()
        chk = ['s_waitcnt vmcnt(0)', 'v_and_b32 v41, v43, v41', 'v_cmp_ne_u32 vcc, v43, v41', 's_nop 3', 's_cmp_eq_u64 vcc, 0']
        for l in [f's_cmp_eq_u32 s{s_w}, 0', f's_cbranch_scc0 {N}_polled', f's_mov_b32 s{s_cnt}, 0', f'{N}_poll:'] + chk + \
                 [f's_cbranch_scc1 {N}_polled', f's_add_u32 s{s_cnt}, s{s_cnt}, 1', f's_cmp_ge_u32 s{s_cnt}, 0x20000', f's_cbranch_scc1 {N}_polled',
                  f's_sleep {opt.get("sleep", 8)}', f'buffer_load_dword v41, v42, s[76:79], 0 offen sc1', f's_branch {N}_poll', f'{N}_polled:']: a(l)
        a('s_barrier')
        for g in KV0 + VV0:
            for l in g[0]: a(l)
        self.stamp()
        self.q_to_frags()
        return M
```

```python
from asmlib import *
from layout import *
from gen_proj2 import Proj, VmQueue
from gen_proj import make_srd
import gen_t2
from gen_mlp import Mlp1

OA, OB = 0, 64
QA, QB = 0, 32
PFB = (128, 152)
FR = 192
NFR = 16
S = [[64, 80], [96, 112]]
P = [[128, 136], [144, 152]]
CA, CB = 160, 176
PT = 192
PS = [200, 201]
LA, LB = 202, 203
V_L16 = 204; V_KA = 205; V_VA = 206
V_RELA = 207; V_RELB = 208; V_NEG = 209
V_T = 210
V_DA, V_DB = 226, 227
V_AA, V_AB = 228, 229
V_MASK = 230; V_VBASE = 231; V_REL = [232, 233]
V_ST = 236
V_MA, V_MB, V_MR = 214, 216, 218
MACC = 128
S_MW, S_MH = 12, 60
s_ma, s_mb, s_ml = 85, 88, 89
S_K, S_V, S_Q, S_C = 4, 8, 12, 16
s_w, s_h, s_i, s_g1, s_cnt, s_ks, s_vs, s_t0, s_thr = 20, 21, 22, 23, 24, 25, 26, 27, 28
s_t1, s_step = 29, 32
S_RET = 30
S_M = 40
D = 8
THR = 0x4e800000

def v(b, n=1): return f'v{b}' if n == 1 else f'v[{b}:{b+n-1}]'
def ar(b, n=1): return f'a{b}' if n == 1 else f'a[{b}:{b+n-1}]'
MF = 'v_mfma_f32_32x32x16_bf16'

class Iter:
    def __init__(self, qk, sm, pv, next_qk, par, czero=False):
        self.qk, self.sm, self.pv, self.next_qk, self.par, self.czero = qk, sm, pv, next_qk, par, czero

def nfr(mode): return {None: 0, 1: 8, 2: 16}[mode]

class Attn:
    def __init__(self, a, name, diag=False, **opt):
        self.a = a; self.name = name; self.diag = diag; self.opt = opt; self.st = (RTStamps if opt.get('rt') else Stamps)(a, diag, vreg=254, sreg=30)
        global D
        D = opt.get('D', 8); self.mlp = opt.get('mlp', True); self.nomlp_i = opt.get('nomlp_i', 7)
        self.phase = 0
        self.slow = []
        self.uid = 0
        self.vm = {}

    def simulate(self):
        res = {}
        self.vmm = {}
        for i in range(8):
            G1 = 4*(i+1)
            def mode(g): return None if (g < 0 or g > 33) else (1 if g < G1 else 2)
            def first(g):
                return g if g <= G1 else G1 + 2*(g-G1)
            def r(g): return 1 if g < G1 else 2
            issued = []
            def issue(kind, b0, nb):
                for b in range(b0, b0+nb):
                    issued.extend([(kind, b)]*2)
            kd = 0; vd = 0
            issue('K', 0, 6); issue('V', 0, 4)
            kd, vd = 6, 4
            kfree = 0; vfree = 0
            def need(n):
                req = []
                if mode(n+3): req += [('K', b) for b in range(first(n+3), first(n+3)+r(n+3))]
                if mode(n+1): req += [('V', b) for b in range(first(n+1), first(n+1)+r(n+1))]
                last = -1
                for k, x in enumerate(issued):
                    if x in req: last = k
                for x in req: assert x in issued, (i, n, x)
                return len(issued) - 1 - last if last >= 0 else None
            def pos(n):
                if n <= -1: return ('pro', n)
                if n <= G1-5:
                    if n >= G1-6 : return ('p1peel', n & 1)
                    return ('p1loop', n & 1)
                if n <= G1-1: return ('trans', n-G1)
                if n <= 31:
                    if n >= 30: return ('p2peel', n & 1)
                    return ('p2loop', n & 1)
                return ('epi', n)
            for n in range(-3, 34):
                if n == -1 and self.mlp: issued.extend([('M', 0)]*4 + [('M', 1)]*4)
                if n >= -2:
                    if mode(n) and n <= 31:
                        b0 = vd; nb = r(n)
                        assert b0 + nb - 8 <= (first(n-1) if n-1 >= 0 else 0), (i, n, b0, nb)
                        issue('V', b0, nb); vd += nb
                p = pos(n)
                if self.mlp and 0 <= n <= 31:
                    idx = [k for k, x in enumerate(issued) if x == ('M', n)]
                    if idx:
                        Nm = len(issued) - 1 - idx[-1]
                        self.vmm[p] = min(self.vmm.get(p, 99), Nm)
                    else: assert n >= 32 or i == 7 or True
                    if p[0] != 'p2peel': issued.extend([('M', n+2)]*4)
                N = need(n)
                if N is not None:
                    res[p] = min(res.get(p, 99), N)
                if mode(n+3) or (n <= 31 and n >= -3):
                    nb = r(n+3)
                    if n <= 30 or True:
                        assert kd + nb - 8 <= first(n+3), (i, n, kd, nb)
                        issue('K', kd, nb); kd += nb
                if n == G1-1: issued.extend([('S', 0)]*8)
        self.vm = res
        return res

    def dma_group(self, kind, nb, split=False):
        srd_, so = (S_K, s_ks) if kind == 'K' else (S_V, s_vs)
        g = []
        if kind == 'K':
            pre = [f's_and_b32 m0, s{so}, 0xffff']
        else:
            pre = [f's_and_b32 s{s_t0}, s{so}, 0xffff', f's_or_b32 m0, s{s_t0}, 0x10000']
        n = 2*nb
        if split: g.append(pre)
        for k in range(n):
            l = []
            if k == 0 and not split: l += pre + ['s_nop 0']
            off = f' offset:{k*1024}' if k else ''
            l.append(f'buffer_load_dwordx4 v{V_L16}, s[{srd_}:{srd_+3}], s{so} offen{off} lds')
            if k == n-1: l.append(f's_add_u32 s{so}, s{so}, {nb*8192}')
            g.append(l)
        return g

    def mlp_dma_groups(self, par):
        g = []
        for vo, srd_, so, step, off in ((V_MA, S_MW, s_ma, 16*3584, 0), (V_MB, S_MH, s_mb, 16*1024, 2048)):
            g.append([f's_add_u32 m0, s{s_ml}, {par*4096+off}'])
            g.append([f'buffer_load_dwordx4 v{vo}, s[{srd_}:{srd_+3}], s{so} offen lds'])
            g.append([f'buffer_load_dwordx4 v{vo+1}, s[{srd_}:{srd_+3}], s{so} offen offset:1024 lds', f's_add_u32 s{so}, s{so}, {step}'])
        return g

    def sm_ops(self, it):
        sm = it.sm; pr = it.par ^ 1
        ops = []
        masked = sm.endswith('m')
        init = sm == 'init'
        mode = '1' if init else sm[0]
        for b in range(2):
            Sb = S[pr][b]; Pb = P[pr][b]
            domask = masked and (mode == '2' or b == 0)
            blk = []
            if domask:
                def cmp(e): return (4, f'v_cmp_ge_i32 s[{S_M+2*(e%8)}:{S_M+2*(e%8)+1}], v{V_REL[b]}, {8*(e>>2)+(e&3)}')
                def cnd(e): return (4, f'v_cndmask_b32 v{Sb+e}, v{V_NEG}, v{Sb+e}, s[{S_M+2*(e%8)}:{S_M+2*(e%8)+1}]')
                blk += [cmp(0), cmp(1), cmp(2), cmp(3), cnd(0)]
            for e in range(16):
                if domask:
                    if e+4 < 16: blk.append(cmp(e+4))
                    if e+1 < 16: blk.append(cnd(e+1))
                if init:
                    if e == 0: blk.append((4, f'v_sub_f32 v{Sb}, v{Sb}, v{V_DA if b == 0 else V_DB}'))
                    if e+1 < 16: blk.append((4, f'v_sub_f32 v{Sb+e+1}, v{Sb+e+1}, v{V_DA if b == 0 else V_DB}'))
                blk.append((8, f'v_exp_f32 v{PT+(e%8)}, v{Sb+e}'))
                if e >= 2 or True:
                    k = e-1
                    if k == 1: blk.append((4, f'v_add_f32 v{PS[b]}, v{PT+0}, v{PT+1}'))
                    elif k > 1: blk.append((4, f'v_add_f32 v{PS[b]}, v{PS[b]}, v{PT+(k%8)}'))
                    if k >= 1 and k % 2 == 1:
                        blk.append((4, f'v_cvt_pk_bf16_f32 v{Pb+(k>>1)}, v{PT+((k-1)%8)}, v{PT+(k%8)}'))
            blk.append((4, f'v_add_f32 v{PS[b]}, v{PS[b]}, v{PT+(15%8)}'))
            blk.append((4, f'v_cvt_pk_bf16_f32 v{Pb+7}, v{PT+(14%8)}, v{PT+(15%8)}'))
            ops += blk
        if not init and not self.opt.get('nocheck'):
            ops.append((4, f'v_max_f32 v{V_T}, v{PS[0]}, v{PS[1]}'))
            ops.append((4, f'v_cmp_lt_f32 vcc, s{s_thr}, v{V_T}'))
        return ops

    def rel_setup(self, it):
        return []

    def emit_iter(self, it, pos, extra_pre=None, name='', extra_post=None):
        a = self.a
        par = it.par
        ph = self.phase
        mf = []
        reads = []
        fidx = 0
        def fr(k): return FR + 4*((ph + k) % NFR)
        Sw = S[par]; Pr = P[par]
        if it.qk == 1:
            for j in range(8):
                A = ar(fr(fidx+j), 4)
                for b, Q, C in ((0, QA, CA), (1, QB, CB)):
                    c = ('0' if it.czero else v(C, 16)) if j == 0 else v(Sw[b], 16)
                    mf.append((f'{MF} {v(Sw[b],16)}, {A}, {v(Q+4*j,4)}, {c}', fidx+j))
                reads.append((2*j, f'ds_read_b128 {A}, v{V_KA} offset:{j*1024}', fidx+j))
            fidx += 8
        elif it.qk == 2:
            for f in range(16):
                b, j = f >> 3, f & 7
                A = ar(fr(fidx+f), 4)
                c = ('0' if it.czero else v(CB, 16)) if j == 0 else v(Sw[b], 16)
                mf.append((f'{MF} {v(Sw[b],16)}, {A}, {v(QB+4*j,4)}, {c}', fidx+f))
                reads.append((f, f'ds_read_b128 {A}, v{V_KA} offset:{f*1024}', fidx+f))
            fidx += 16
        mlp = self.mlp and getattr(it, 'mlp', False)
        m0 = len(mf)
        if mlp:
            for ft in range(2):
                for dt in range(2):
                    acc = ar(MACC+16*(2*ft+dt), 16)
                    mf.append((f'{MF} {acc}, {v(V_ST+4*ft,4)}, {v(V_ST+8+4*dt,4)}, {acc}', 'm7' if (ft, dt) == (0, 0) else None))
        s0 = len(mf)
        if it.pv == 1:
            for f in range(8):
                t, db = f >> 2, f & 3
                A = ar(fr(fidx+f), 4)
                for b, O in ((0, OA), (1, OB)):
                    mf.append((f'{MF} {ar(O+16*db,16)}, {A}, {v(Pr[b]+4*t,4)}, {ar(O+16*db,16)}', fidx+f))
                reads.append((s0+2*f, f'ds_read_b128 {A}, v{V_VA} offset:{f*1024}', fidx+f))
            fidx += 8
        elif it.pv == 2:
            for f in range(16):
                b, t, db = f >> 3, (f >> 2) & 1, f & 3
                A = ar(fr(fidx+f), 4)
                mf.append((f'{MF} {ar(OB+16*db,16)}, {A}, {v(Pr[b]+4*t,4)}, {ar(OB+16*db,16)}', fidx+f))
                reads.append((s0+f, f'ds_read_b128 {A}, v{V_VA} offset:{f*1024}', fidx+f))
            fidx += 16
        ns = len(mf)
        nown = fidx
        lead_in = [r for r in reads if it.qk and r[0] < D and r[2] < nfr(it.qk)]
        own = [r for r in reads if r not in lead_in]
        lead_out = []
        if it.next_qk:
            n = nfr(it.next_qk)
            for j in range(n):
                fu = 2*j if it.next_qk == 1 else j
                if fu < D:
                    A = ar(FR + 4*((ph + nown + j) % NFR), 4)
                    lead_out.append((ns + fu, f'ds_read_b128 {A}, v{V_KA} offset:{j*1024}', nown+j))
        bslot = max(ns - D, 0)
        slots = [[] for _ in range(ns+1)]
        pre = []
        order = [r[2] for r in lead_in]
        def place_read(slot, r):
            (pre if slot < 0 else slots[slot]).append(('ds', r[1], r[2]))
        for r in own:
            place_read(r[0]-D if r[0]-D >= 0 else -1, r)
        if mlp:
            base = par*4096
            rd = []
            for op in range(2):
                for tl in range(2):
                    r = V_ST + 8*op + 4*tl
                    rd.append(f'ds_read_b64_tr_b16 {v(r,2)}, v{V_MR+tl} offset:{base+op*2048}')
                    rd.append(f'ds_read_b64_tr_b16 {v(r+2,2)}, v{V_MR+tl} offset:{base+op*2048+512}')
            slots[m0-8].append(('x', f's_waitcnt vmcnt({self.vmm[pos]})'))
            for k, t_ in enumerate(rd): slots[m0-8+k//2].append(('ds', t_, f'm{k}'))
        win = []
        has_bar = pos is not None and pos in self.vm
        if has_bar:
            if not self.opt.get('novm'): win.append(('x', f's_waitcnt vmcnt({0 if pos == ("epi", 32) else self.vm[pos]})'))
            if not self.opt.get('nobar'): win.append(('x', 's_barrier'))
        if it.qk:
            win.append(('x', f'v_add_u32 v{V_KA}, {8192*(1 if it.qk==1 else 2)}, v{V_KA}'))
            win.append(('x', f'v_and_b32 v{V_KA}, 0xffff, v{V_KA}'))
        if it.pv:
            win.append(('x', f'v_add_u32 v{V_VA}, {8192*(1 if it.pv==1 else 2)}, v{V_VA}'))
            win.append(('x', f'v_and_or_b32 v{V_VA}, v{V_VA}, v{V_MASK}, v{V_VBASE}'))
        for r in own:
            assert r[0]-D < bslot or ns <= D, (r, bslot)
        vg = self.dma_group('V', 1 if it.pv == 1 else 2, split=True) if (it.pv and not getattr(it, 'nov', False)) else []
        kg = self.dma_group('K', 1 if it.next_qk == 1 else 2, split=True) if (it.next_qk or getattr(it, 'forcek', False)) else []
        if self.opt.get('nodma') and pos and pos[0] != 'pro': vg = []; kg = []
        mg = []
        if mlp and getattr(it, 'mlp_dma', True): mg = [(m0+1+k, g) for k, g in enumerate(self.mlp_dma_groups(par))]
        if getattr(it, 'mlp_first', False):
            gs = self.mlp_dma_groups(0) + self.mlp_dma_groups(1)
            gs = [g + ['s_nop 0'] if 'm0' in g[0] else g for g in gs]
            mg = [(k*7//len(gs), g) for k, g in enumerate(gs)]
        sm = self.sm_ops(it) if it.sm else []
        if self.opt.get('nosm'): sm = []
        if self.opt.get('noexp'): sm = [(c, t) for c, t in sm if 'exp' not in t]
        if self.opt.get('noadd'): sm = [(c, t) for c, t in sm if 'v_add_f32' not in t]
        tot = sum(c for c, _ in sm)
        fixed = [0.0]*ns
        for k in range(ns):
            fixed[k] += 4*len(slots[k])
        for k, grp in enumerate(vg):
            sl = min(ns-1, k*(1 if len(vg) > 3 else 2))
            slots[sl].append(('dma', grp)); fixed[sl] += 4*len(grp)
        for sl, grp in mg:
            slots[sl].append(('dma', grp)); fixed[sl] += 4*len(grp)
        slots[bslot] = win + slots[bslot]; fixed[bslot] += 4*len(win)
        for r in lead_out:
            sl = min(ns-1, r[0]-D); slots[sl].append(('ds', r[1], r[2])); fixed[sl] += 4
        for k, grp in enumerate(kg):
            sl = min(ns-1, bslot + k*(1 if len(kg) > 3 else 2) + (1 if k else 0))
            slots[sl].append(('dma', grp)); fixed[sl] += 4*len(grp)
        xf = list(getattr(it, 'fill', [])); xg = list(getattr(it, 'fill_groups', []))
        if xf or xg:
            nsl = ns
            half = max(1, int(nsl*0.55))
            for k, x in enumerate(xf): slots[min(half-1, k*half//len(xf))].append(x)
            for k, g in enumerate(xg): slots[min(nsl-1, half + k*(nsl-half)//len(xg))].append(('dmag', g))
        total = tot + sum(fixed)
        smslots = [[] for _ in range(ns)]
        if sm:
            k = 0; cum = 0.0; target_end = ns - self.opt.get('tail', 1.6)
            acc = 0.0
            for sl in range(ns):
                acc += fixed[sl]
                lim = total * (sl+1) / target_end
                while k < len(sm) and (acc + sm[k][0]*0.5 <= lim or sl == ns-1):
                    smslots[sl].append(sm[k]); acc += sm[k][0]; k += 1
        if extra_pre:
            for l in extra_pre: a(l)
        q = list(order)
        def emit_fill(x):
            if x[0] == 'ds':
                a(x[1]); q.append(x[2])
            elif x[0] == 'dma':
                for l in x[1]: a(l)
            elif x[0] == 'dmag':
                for l in x[1][0]: a(l)
                it.vq.push(x[1][1])
            else:
                a(x[1])
        for x in pre: emit_fill(x)
        waited = -1
        for k, (txt, f) in enumerate(mf):
            if f is not None and f in q:
                idx = q.index(f)
                ahead = self.opt.get('wahead', 1)
                idx2 = min(idx + ahead, len(q)-1) if (k % 2 == 0 or ahead > 1) else idx
                idx2 = max(idx, min(idx2, len(q)-1-self.opt.get('wmin', 0)))
                nleft = len(q) - 1 - idx2
                a(f's_waitcnt lgkmcnt({nleft})')
                q = q[idx2+1:]
            a(txt)
            fl = slots[k]
            for x in fl:
                if x[0] in ('x', 'ds'): emit_fill(x)
            for c, t in smslots[k]: a(t)
            for x in fl:
                if x[0] in ('dma', 'dmag'): emit_fill(x)
        self.phase = (ph + nown) % NFR
        for l in (extra_post or []): a(l)
        if it.sm and it.sm != 'init' and not self.opt.get('nocheck'):
            self.uid += 1
            u = self.uid
            a(f's_cbranch_vccnz {self.name}_slow{u}')
            a.label(f'{self.name}_join{u}')
            self.l_update(it.sm)
            self.slow.append((u, it))
        elif it.sm == 'init':
            a(f'v_mov_b32 v{LA}, v{PS[0]}')
            a(f'v_mov_b32 v{LB}, v{PS[1]}')

    def l_update(self, sm):
        a = self.a
        if sm[0] == '1' or sm == 'init':
            a(f'v_add_f32 v{LA}, v{LA}, v{PS[0]}')
            a(f'v_add_f32 v{LB}, v{LB}, v{PS[1]}')
        else:
            a(f'v_add_f32 v{LB}, v{LB}, v{PS[0]}')
            a(f'v_add_f32 v{LB}, v{LB}, v{PS[1]}')

    def rowmax(self, dst, blocks):
        a = self.a
        regs = [b+e for b in blocks for e in range(16)]
        a(f'v_max3_f32 v{dst}, v{regs[0]}, v{regs[1]}, v{regs[2]}')
        k = 3
        while k+1 < len(regs):
            a(f'v_max3_f32 v{dst}, v{dst}, v{regs[k]}, v{regs[k+1]}'); k += 2
        if k < len(regs): a(f'v_max_f32 v{dst}, v{dst}, v{regs[k]}')
        a(f'v_mov_b32 v{V_T+1}, v{dst}')
        a('s_nop 1')
        a(f'v_permlane32_swap_b32 v{V_T+1}, v{dst}')
        a('s_nop 1')
        a(f'v_max_f32 v{dst}, v{dst}, v{V_T+1}')

    def plain_sm(self, pr):
        a = self.a
        for b in range(2):
            for e in range(0, 16, 2):
                a(f'v_exp_f32 v{PT}, v{S[pr][b]+e}')
                a(f'v_exp_f32 v{PT+1}, v{S[pr][b]+e+1}')
                a('s_nop 0')
                a(f'v_cvt_pk_bf16_f32 v{P[pr][b]+(e>>1)}, v{PT}, v{PT+1}')
                if e == 0:
                    a(f'v_add_f32 v{PS[b]}, v{PT}, v{PT+1}')
                else:
                    a(f'v_add_f32 v{PS[b]}, v{PS[b]}, v{PT}')
                    a(f'v_add_f32 v{PS[b]}, v{PS[b]}, v{PT+1}')

    def sub_delta(self, pr, mode):
        a = self.a
        for b in range(2):
            dl = V_DA if (mode == 1 and b == 0) else V_DB
            for e in range(16):
                a(f'v_sub_f32 v{S[pr][b]+e}, v{S[pr][b]+e}, v{dl}')

    def emit_slow(self, u, it):
        a = self.a
        pr = it.par ^ 1
        mode = 1 if it.sm[0] == '1' else 2
        a.label(f'{self.name}_slow{u}')
        a('s_nop 15')
        a('s_nop 7')
        if mode == 1:
            self.rowmax(V_DA, [S[pr][0]])
            self.rowmax(V_DB, [S[pr][1]])
            a(f'v_max_f32 v{V_DA}, 0, v{V_DA}')
        else:
            self.rowmax(V_DB, [S[pr][0], S[pr][1]])
            a(f'v_mov_b32 v{V_DA}, 0')
        a(f'v_max_f32 v{V_DB}, 0, v{V_DB}')
        a(f's_call_b64 s[{S_RET}:{S_RET+1}], {self.name}_rescale')
        self.sub_delta(pr, mode)
        if it.qk: self.sub_delta(it.par, it.qk)
        self.plain_sm(pr)
        a(f's_branch {self.name}_join{u}')

    def emit_rescale(self):
        a = self.a
        a.label(f'{self.name}_rescale')
        a(f'v_exp_f32 v{V_AA}, -v{V_DA}')
        a(f'v_exp_f32 v{V_AB}, -v{V_DB}')
        a('s_nop 0')
        for O, al in ((OA, V_AA), (OB, V_AB)):
            for e in range(0, 64, 4):
                for k in range(4): a(f'v_accvgpr_read_b32 v{V_T+k}, a{O+e+k}')
                for k in range(4): a(f'v_mul_f32 v{V_T+k}, v{V_T+k}, v{al}')
                for k in range(4): a(f'v_accvgpr_write_b32 a{O+e+k}, v{V_T+k}')
        a(f'v_mul_f32 v{LA}, v{LA}, v{V_AA}')
        a(f'v_mul_f32 v{LB}, v{LB}, v{V_AB}')
        for e in range(16):
            a(f'v_sub_f32 v{CA+e}, v{CA+e}, v{V_DA}')
            a(f'v_sub_f32 v{CB+e}, v{CB+e}, v{V_DB}')
        a('s_nop 1')
        a(f's_setpc_b64 s[{S_RET}:{S_RET+1}]')

    def mask_inplace(self, pr, b):
        a = self.a
        for e0 in range(0, 16, 8):
            for e in range(e0, e0+8):
                a(f'v_cmp_ge_i32 s[{S_M+2*(e%8)}:{S_M+2*(e%8)+1}], v{V_REL[b]}, {8*(e>>2)+(e&3)}')
            a('s_nop 1')
            for e in range(e0, e0+8):
                a(f'v_cndmask_b32 v{S[pr][b]+e}, v{V_NEG}, v{S[pr][b]+e}, s[{S_M+2*(e%8)}:{S_M+2*(e%8)+1}]')

    def emit_init(self):
        a = self.a
        a(f'v_mov_b32 v{V_REL[0]}, v{V_RELA}')
        a('s_nop 12')
        a(f's_cmp_lg_u32 s{s_i}, 0'); a(f's_cbranch_scc1 {self.name}_nomask0')
        self.mask_inplace(0, 0)
        a.label(f'{self.name}_nomask0')
        self.rowmax(V_DA, [S[0][0]])
        self.rowmax(V_DB, [S[0][1]])
        for e in range(16):
            a(f'v_sub_f32 v{CA+e}, 0, v{V_DA}')
            a(f'v_sub_f32 v{CB+e}, 0, v{V_DB}')
        a('s_nop 1')

    def epilogue_tile(self, O, L, qt_sgpr, vq=None):
        a = self.a
        a(f'v_mov_b32 v{V_T+1}, v{L}')
        a('s_nop 1')
        a(f'v_permlane32_swap_b32 v{V_T+1}, v{L}')
        a('s_nop 1')
        a(f'v_add_f32 v{L}, v{L}, v{V_T+1}')
        a(f'v_rcp_f32 v{V_T+2}, v{L}')
        a('s_nop 0')
        a(f'v_mov_b32 v{V_T+3}, v{V_T+2}')
        inv = V_T+2
        k = 0
        for db in range(4):
            for t in range(2):
                tmp = V_ST + 8*(k % 2)
                for e in range(8): a(f'v_accvgpr_read_b32 v{tmp+e}, a{O+16*db+8*t+e}')
                for e in range(0, 8, 2): a(f'v_pk_mul_f32 v[{tmp+e}:{tmp+e+1}], v[{tmp+e}:{tmp+e+1}], v[{inv}:{inv+1}]')
                for e in range(0, 8, 2): a(f'v_cvt_pk_bf16_f32 v{tmp+(e>>1)}, v{tmp+e}, v{tmp+e+1}')
                j = 2*db+t
                off = j*1024
                so = qt_sgpr if off < 4096 else qt_sgpr+1
                a(f'buffer_store_dwordx4 v[{tmp}:{tmp+3}], v{V_L16}, s[{S_C}:{S_C+3}], s{so} offen offset:{off % 4096}{STF.st}')
                if vq: vq.push('ctx')
                k += 1

    def stamp(self, same=False):
        self.st()
    def dump_stamps(self):
        self.st.dump(100*MB, s_w, 253)

    def emit(self):
        self.simulate()
        M = self.emit_head()
        self.emit_body(M)

    def kv_srd_lines(self):
        a = Asm()
        a(f's_lshl_b32 s{s_t0}, s{s_h}, 19')
        a(f's_lshl_b32 s{s_t1}, s{s_i}, 15')
        a(f's_sub_u32 s{s_t1}, 0x80000, s{s_t1}')
        for S_, base in ((S_K, WS_K), (S_V, WS_V)):
            a(f's_add_u32 s{S_}, s34, {base}')
            a(f's_addc_u32 s{S_+1}, s35, 0')
            a(f's_add_u32 s{S_}, s{S_}, s{s_t0}')
            a(f's_addc_u32 s{S_+1}, s{S_+1}, 0')
            a(f's_and_b32 s{S_+1}, s{S_+1}, 0xffff')
            a(f's_mov_b32 s{S_+2}, s{s_t1}')
            a(f's_mov_b32 s{S_+3}, 0x20000')
        make_srd(a, S_C, 34, WS_CTX, 16*MB)
        for qt, d in ((36, 56), (37, 58)):
            a(f's_lshl_b32 s{s_t0}, s{qt}, 5')
            a(f's_add_u32 s{s_t0}, s{s_t0}, s{s_h}')
            a(f's_lshl_b32 s{d}, s{s_t0}, 13')
            a(f's_add_u32 s{d+1}, s{d}, 4096')
        return a.lines

    def kv_groups(self, kind, nb):
        G = []
        for b in range(nb):
            for grp in self.dma_group(kind, 1): G.append((grp, 'kv'))
        return G

    def q_to_frags(self):
        self.q_to_frags_cvt(); self.q_to_frags_srd()

    def q_to_frags_cvt(self):
        a = self.a
        a('s_nop 7')
        for st, Q in ((0, QA), (1, QB)):
            for dt in range(4):
                A = 64 + 16*(4*st+dt)
                for t in range(2):
                    for k in range(4):
                        a(f'v_cvt_pk_bf16_f32 v{Q+4*(2*dt+t)+k}, v{A+8*t+2*k}, v{A+8*t+2*k+1}')

    def q_to_frags_srd(self):
        a = self.a
        if self.mlp:
            make_srd(a, S_MW, 68, 0, 2048*3584); make_srd(a, S_MH, 34, WS_H, 2*MB)
            a(f's_cmp_eq_u32 s{s_i}, {self.nomlp_i}')
            a(f's_cselect_b32 s{S_MW+2}, 0, s{S_MW+2}')
            a(f's_cselect_b32 s{S_MH+2}, 0, s{S_MH+2}')

    def setup_attn_regs(self):
        a = self.a; opt = self.opt
        a(f's_lshl_b32 s{s_ks}, s{s_w}, 11')
        a(f's_mov_b32 s{s_vs}, s{s_ks}')
        a(f's_mov_b32 s{s_thr}, {THR}')
        a(f'v_mov_b32 v{V_NEG}, 0xf149f2ca')
        a(f'v_mov_b32 v{V_MASK}, 0xffff')
        a(f'v_mov_b32 v{V_VBASE}, 0x10000')
        a(f'v_mov_b32 v{V_KA}, v{V_L16}')
        a(f'v_add_u32 v{V_VA}, 0x10000, v{V_L16}')
        a(f'v_and_b32 v3, 31, v2')
        a(f'v_lshrrev_b32 v4, 5, v2')
        a(f'v_lshlrev_b32 v4, 2, v4')
        a(f'v_sub_u32 v3, v3, v4')
        a(f's_lshl_b32 s{s_t0}, s36, 5')
        a(f'v_add_u32 v{V_RELA}, s{s_t0}, v3')
        a(f's_lshl_b32 s{s_t0}, s37, 5')
        a(f'v_add_u32 v{V_RELB}, s{s_t0}, v3')
        M = Mlp1(a, tshift=(4 if self.nomlp_i == 0 else 0)); M.ids()
        if self.mlp:
            T = 33
            a(f's_lshl_b32 s{s_ml}, s{s_w}, 13'); a(f's_add_u32 s{s_ml}, s{s_ml}, 131072')
            gen_t2.lane_setup(a, 5, T)
            for t in range(2):
                X = T+5; dst = V_MR+t
                a(f'v_mul_u32_u24 v{X}, 8, v{T}'); a(f'v_add_u32 v{X}, v{X}, v{T+1}'); a(f'v_lshlrev_b32 v{X}, 7, v{X}')
                a(f'v_xor_b32 v{dst}, {t}, v{T+4}'); a(f'v_lshl_add_u32 v{X}, v{dst}, 6, v{X}')
                a(f'v_lshl_add_u32 v{X}, v{T+2}, 5, v{X}'); a(f'v_lshl_add_u32 v{X}, v{T+3}, 3, v{X}')
                a(f'v_add_u32 v{dst}, s{s_ml}, v{X}')
            for dst, stride in ((V_MA, 3584), (V_MB, 1024)):
                mt = getattr(self, 'mtmp', 48)
                gen_t2.dma_voffs(a, mt, 5, T, stride, s_t1)
                a(f'v_mov_b32 v{dst}, v{mt}'); a(f'v_mov_b32 v{dst+1}, v{mt+1}')
            a(f's_mul_i32 s{s_ma}, s{s_w}, {512*3584}'); a(f's_lshl_b32 s{s_t1}, s{M.s_fb}, 7'); a(f's_add_u32 s{s_ma}, s{s_ma}, s{s_t1}')
            a(f's_lshl_b32 s{s_mb}, s{s_w}, 19'); a(f's_lshl_b32 s{s_t1}, s{M.s_db}, 7'); a(f's_add_u32 s{s_mb}, s{s_mb}, s{s_t1}')
        a(f'v_lshlrev_b32 v252, 3, v{V_L16}')
        a(f's_sub_u32 s{s_t0}, s2, 32'); a(f's_lshl_b32 s{s_t0}, s{s_t0}, 2'); a(f's_add_u32 s{s_t0}, s{s_t0}, s{s_w}')
        a(f's_lshl_b32 s74, s{s_t0}, 13')
        a(f's_mul_i32 s75, s{s_t0}, 4736')
        return M

    def emit_head(self):
        a = self.a; N = self.name; opt = self.opt
        vm = self.vm
        S_X, S_WQ = 12, 60
        a(f's_cmp_ge_u32 s2, 256')
        a(f's_cbranch_scc1 {N}_end')
        self.stamp()
        a(f's_load_dwordx2 s[34:35], s[0:1], {KA_WS}')
        a(f's_load_dwordx2 s[64:65], s[0:1], {KA_AX}')
        a(f's_load_dwordx2 s[66:67], s[0:1], {KA_WQ}')
        a(f's_load_dwordx2 s[68:69], s[0:1], {KA_W1}')
        a(f's_load_dwordx2 s[86:87], s[0:1], {KA_B1}')
        a(f's_load_dwordx2 s[70:71], s[0:1], {KA_WO}')
        a(f's_load_dwordx2 s[72:73], s[0:1], {KA_W2}')
        a(f'v_lshrrev_b32 v1, 6, v0')
        a(f'v_and_b32 v2, 63, v0')
        a(f'v_lshlrev_b32 v{V_L16}, 4, v2')
        a(f'v_readfirstlane_b32 s{s_w}, v1')
        a(f's_and_b32 s{s_t0}, s2, 7')
        a(f's_lshr_b32 s{s_t1}, s2, 3')
        a(f's_lshl_b32 s{s_h}, s{s_t0}, 2')
        a(f's_and_b32 s{s_t0}, s{s_t1}, 3')
        a(f's_add_u32 s{s_h}, s{s_h}, s{s_t0}')
        a(f's_lshr_b32 s{s_i}, s{s_t1}, 2')
        a(f's_add_u32 s{s_g1}, s{s_i}, 1')
        a(f's_lshl_b32 s{s_g1}, s{s_g1}, 2')
        a(f's_lshl_b32 s36, s{s_i}, 2')
        a(f's_add_u32 s36, s36, s{s_w}')
        a(f's_lshl_b32 s37, s{s_i}, 2')
        a(f's_sub_u32 s37, 60, s37')
        a(f's_add_u32 s37, s37, s{s_w}')
        vq = VmQueue()
        P = Proj(a, vq, s_w, 16384, 65536, ACC=64, FB=PFB, fbk='a', VA=8, V_L16=V_L16, VT=33, SG=40, wflags=(' nt' if opt.get('nt', True) else ''))
        P.setup_addrs(set_l16=False)
        a('s_waitcnt lgkmcnt(0)')
        make_srd(a, S_X, 64, 0, 2*MB); make_srd(a, S_WQ, 66, 0, 4*MB)
        init = [f's_lshl_b32 s{P.s_a0}, s36, 15', f's_lshl_b32 s{P.s_a1}, s37, 15',
                f's_lshl_b32 s{P.s_wo}, s{s_w}, 17', f's_lshl_b32 s{s_t0}, s{s_h}, 8', f's_add_u32 s{P.s_wo}, s{P.s_wo}, s{s_t0}']
        qpass = [dict(swap=False, srdA=S_X, srdW=S_WQ, init=init, epi=lambda: None, acck='v')]
        P.prologue(qpass[0])
        for l in self.kv_srd_lines(): a(l)
        M = self.setup_attn_regs()
        for e in range(128): a(f'v_accvgpr_write_b32 a{e}, 0')
        P.start_compute()
        self.stamp()
        KG = self.kv_groups('K', 6); VG = self.kv_groups('V', 4)
        def xl(p, t): return KG[:6] if t == 5 else (VG[:2] if t == 6 else [])
        def xe(p, t): return KG[6:] if t == 6 else (VG[2:] if t == 7 else [])
        P.run(qpass, extra_early=xe, extra_late=xl)
        self.stamp()
        self.q_to_frags()
        return M

    def emit_body(self, M):
        a = self.a; N = self.name; opt = self.opt
        vm = self.vm
        a(f's_waitcnt vmcnt({vm[("pro",-3)]})')
        a('s_barrier')
        for grp in self.dma_group('K', 1):
            for l in grp: a(l)
        for j in range(D//2):
            a(f'ds_read_b128 {ar(FR+4*j,4)}, v{V_KA} offset:{j*1024}')
        it = Iter(1, None, None, 1, 0, czero=True)
        if self.mlp: it.fill = [('x', f'v_accvgpr_write_b32 a{MACC+e}, 0') for e in range(64)]
        self.emit_iter(it, ('pro', -2))
        self.emit_init()
        self.stamp()
        it = Iter(1, 'init', None, 1, 1); it.mlp_first = self.mlp
        self.emit_iter(it, ('pro', -1))
        self.stamp()
        def MI(*args, dma=True):
            it = Iter(*args); it.mlp = True; it.mlp_dma = dma
            return it
        a(f's_cmp_eq_u32 s{s_i}, 0')
        a(f's_cbranch_scc1 {N}_trans')
        a(f's_sub_u32 s{s_cnt}, s{s_g1}, 6')
        a(f's_lshr_b32 s{s_cnt}, s{s_cnt}, 1')
        a('.p2align 6')
        a.label(f'{N}_p1loop')
        self.emit_iter(MI(1, '1', 1, 1, 0), ('p1loop', 0))
        self.emit_iter(MI(1, '1', 1, 1, 1), ('p1loop', 1))
        a(f's_sub_u32 s{s_cnt}, s{s_cnt}, 1')
        a(f's_cmp_lg_u32 s{s_cnt}, 0')
        a(f's_cbranch_scc1 {N}_p1loop')
        def pf(ptr, nb, so):
            if not opt.get('pf', True): return []
            l = Asm(); make_srd(l, 76, ptr, 0, nb); l(f'buffer_load_dword v253, v252, s[76:79], s{so} offen')
            return l.lines
        self.emit_iter(MI(1, '1', 1, 1, 0), ('p1peel', 0))
        def relA(k):
            return [f's_sub_u32 s{s_t1}, s{s_g1}, {k}', f's_lshl_b32 s{s_t1}, s{s_t1}, 5', f'v_subrev_u32 v{V_REL[0]}, s{s_t1}, v{V_RELA}']
        self.emit_iter(MI(1, '1m', 1, 1, 1), ('p1peel', 1), extra_pre=relA(4), extra_post=pf(72, 1792*4096, 74))
        for l in pf(70, 4*MB, 75): a(l)
        a.label(f'{N}_trans')
        self.stamp()
        self.emit_iter(MI(1, '1m', 1, 1, 0), ('trans', -4), extra_pre=relA(3))
        sw = [f's_lshl_b32 s{s_t0}, s{s_w}, 11']
        self.emit_iter(MI(1, '1m', 1, 2, 1), ('trans', -3), extra_pre=relA(2) + sw + [f's_add_u32 s{s_ks}, s{s_ks}, s{s_t0}'])
        self.emit_iter(MI(2, '1m', 1, 2, 0), ('trans', -2), extra_pre=relA(1))
        def relB(expr_lines):
            return expr_lines + [f'v_subrev_u32 v{V_REL[0]}, s{s_t1}, v{V_RELB}', f'v_subrev_u32 v{V_REL[1]}, 32, v{V_REL[0]}']
        self.emit_iter(MI(2, '2m', 1, 2, 1), ('trans', -1), extra_pre=relB([f's_lshl_b32 s{s_t1}, s{s_g1}, 5']))
        self.stamp()
        a('s_nop 12')
        self.epilogue_tile(OA, LA, 56)
        a(f's_lshl_b32 s{s_t0}, s{s_w}, 11')
        a(f's_add_u32 s{s_vs}, s{s_vs}, s{s_t0}')
        a(f's_cmp_eq_u32 s{s_i}, 7')
        a(f's_cbranch_scc1 {N}_epi')
        a(f's_sub_u32 s{s_cnt}, 30, s{s_g1}')
        a(f's_lshr_b32 s{s_cnt}, s{s_cnt}, 1')
        a('.p2align 6')
        a.label(f'{N}_p2loop')
        self.emit_iter(MI(2, '2', 2, 2, 0), ('p2loop', 0))
        self.emit_iter(MI(2, '2', 2, 2, 1), ('p2loop', 1))
        a(f's_sub_u32 s{s_cnt}, s{s_cnt}, 1')
        a(f's_cmp_lg_u32 s{s_cnt}, 0')
        a(f's_cbranch_scc1 {N}_p2loop')
        self.emit_iter(MI(2, '2', 2, 2, 0, dma=False), ('p2peel', 0), extra_post=(M.l2_prefetch(234) if opt.get('pf2', False) else None))
        relB32 = [f's_sub_u32 s{s_t1}, 64, s{s_g1}', f's_lshl_b32 s{s_t1}, s{s_t1}, 5']
        self.emit_iter(MI(2, '2m', 2, 2, 1, dma=False), ('p2peel', 1), extra_pre=relB(relB32))
        a.label(f'{N}_epi')
        self.stamp()
        relB33 = [f's_sub_u32 s{s_t1}, 66, s{s_g1}', f's_lshl_b32 s{s_t1}, s{s_t1}, 5']
        it = Iter(None, '2m', 2, None, 0); it.nov = True
        a('s_waitcnt lgkmcnt(0)')
        self.emit_iter(it, ('epi', 32), extra_pre=relB(relB33))
        it = Iter(None, None, 2, None, 1); it.nov = True
        vq2 = VmQueue()
        if self.mlp and opt.get('e2fill', True):
            it.fill, it.fill_groups = M.finish_pre()
            it.vq = vq2
        a('s_nop 1')
        self.emit_iter(it, None)
        if opt.get('fusefin'):
            import gen_final
            gen_final.final_pointer_loads(a)
        self.stamp()
        def fill():
            make_srd(a, 76, 34, WS_PART, 8*MB)
            a(f's_sub_u32 s{s_t0}, s2, 224'); a(f's_lshl_b32 s{s_t0}, s{s_t0}, 2'); a(f's_add_u32 s{s_t0}, s{s_t0}, s{s_w}'); a(f's_lshl_b32 s{s_t0}, s{s_t0}, 16')
            for e in range(4): a(f'v_mov_b32 v{V_T+4+e}, -1')
            a(f's_mov_b32 s{s_cnt}, 16')
            a.label(f'{N}_fill')
            for q in range(4):
                a(f'buffer_store_dwordx4 v[{V_T+4}:{V_T+7}], v{V_L16}, s[76:79], s{s_t0} offen offset:{q*1024}' + (' sc1' if (opt.get('fusefin') or opt.get('fillsc1', True)) else ''))
            a('s_waitcnt vmcnt(40)')
            a(f's_add_u32 s{s_t0}, s{s_t0}, 4096')
            a(f's_sub_u32 s{s_cnt}, s{s_cnt}, 1')
            a(f's_cmp_lg_u32 s{s_cnt}, 0')
            a(f's_cbranch_scc1 {N}_fill')
        def wbl2(lab):
            if opt.get('wbl2', True):
                a(f's_cmp_eq_u32 s{s_w}, 0'); a(f's_cbranch_scc0 {N}_{lab}'); a('buffer_wbl2 sc1'); a.label(f'{N}_{lab}')
        a(f's_cmp_eq_u32 s{s_i}, {self.nomlp_i}')
        a(f's_cbranch_scc1 {N}_nomlp')
        M.finish(vq2, lambda: self.epilogue_tile(OB, LB, 58, vq2), self.stamp, pre_done=opt.get('e2fill', True))
        if self.nomlp_i != 7:
            a(f's_cmp_eq_u32 s{s_i}, 7'); a(f's_cbranch_scc0 {N}_nofill')
            wbl2('nowb'); fill(); a('s_waitcnt vmcnt(0)')
            a.label(f'{N}_nofill')
        self.stamp()
        if opt.get('fusefin'):
            a(f's_branch {N}_phasec')
        else:
            self.dump_stamps()
            a('s_endpgm')
        a.label(f'{N}_nomlp')
        if self.nomlp_i == 7: wbl2('nowb')
        a('s_nop 15')
        self.epilogue_tile(OB, LB, 58)
        if self.nomlp_i == 7: fill()
        a('s_waitcnt vmcnt(0)')
        self.stamp()
        if opt.get('fusefin'):
            a.label(f'{N}_phasec')
            self.emit_phasec()
        else:
            self.dump_stamps()
        a.label(f'{N}_end')
        a('s_endpgm')
        for u, it in self.slow: self.emit_slow(u, it)
        self.emit_rescale()
```

```python
from asmlib import *
from layout import *
from gen_proj2 import VmQueue, v, ar
from gen_proj import make_srd

MF = 'v_mfma_f32_32x32x16_bf16'
NY, NO = 7, 16
NS = NY + NO
SLOT = 32768

def final_pointer_loads(a):
    a(f's_load_dwordx2 s[64:65], s[0:1], {KA_WO}')
    a(f's_load_dwordx4 s[68:71], s[0:1], {KA_W2}')
    a(f's_load_dwordx4 s[72:75], s[0:1], {KA_OUT}')

def emit_final(a, N='fin', NSL=4, inline=False, sync=None, stamps=None, **opt):
    S_WO, S_W2, S_CTX, S_U, S_G, S_B2, S_OUT, S_P, S_D = 4, 8, 12, 16, 24, 28, 32, 36, 56
    s_w, s_sb, s_mb, s_p = 20, 21, 22, 23
    s_sl, s_fr = 40, 41
    s_fill, s_rd, s_w4k, s_t, s_t1, s_t2, s_tile = 42, 43, 44, 45, 46, 47, 48
    ACCY, ACCO = 64, 128; FB = [192, 212]
    VL = 1; V_L16 = 2; T = 32
    V_TB = 8
    V_TA = 16
    V_LA = 21
    V_WO = 24; V_W2 = 28
    V_G = 40; V_B2 = 41; V_OA = 42; V_1G = 43
    st_ = stamps if inline else (RTStamps if opt.get('rt') else Stamps)(a, opt.get('diag'))
    if not inline:
        a('s_cmp_ge_u32 s2, 256')
        a(f's_cbranch_scc1 {N}_end')
    if inline:
        a('s_mov_b64 s[76:77], s[34:35]')
    else:
        final_pointer_loads(a)
        a(f's_load_dwordx2 s[76:77], s[0:1], {KA_WS}')
    if inline:
        a(f'v_mbcnt_lo_u32_b32 v{VL}, -1, 0'); a(f'v_mbcnt_hi_u32_b32 v{VL}, -1, v{VL}')
        a(f's_and_b32 s{s_t}, s2, 7')
    else:
        a('v_lshrrev_b32 v3, 6, v0')
        a(f'v_and_b32 v{VL}, 63, v0')
        a(f's_and_b32 s{s_t}, s2, 7')
        a(f'v_readfirstlane_b32 s{s_w}, v3')
    a(f's_lshr_b32 s{s_t1}, s2, 3')
    a(f's_lshr_b32 s{s_p}, s{s_t}, 1')
    a(f's_and_b32 s{s_t}, s{s_t}, 1'); a(f's_lshl_b32 s{s_t}, s{s_t}, 3'); a(f's_lshr_b32 s{s_t2}, s{s_t1}, 2'); a(f's_add_u32 s{s_sb}, s{s_t}, s{s_t2}')
    a(f's_and_b32 s{s_mb}, s{s_t1}, 3')
    a(f's_lshl_b32 s{s_tile}, s{s_sb}, 2'); a(f's_add_u32 s{s_tile}, s{s_tile}, s{s_mb}')
    st_('start')
    a(f'v_lshlrev_b32 v{V_L16}, 4, v{VL}')
    a(f's_lshl_b32 s{s_w4k}, s{s_w}, 12')
    a(f's_mov_b32 s{s_fill}, 0'); a(f's_mov_b32 s{s_rd}, 0')
    a(f'v_lshrrev_b32 v{T}, 4, v{VL}')
    a(f'v_bfe_u32 v{T+1}, v{VL}, 2, 2')
    a(f'v_xor_b32 v{T+1}, v{T+1}, v{T}')
    a(f'v_lshlrev_b32 v{T+1}, 6, v{T+1}')
    a(f'v_and_b32 v{T+2}, 3, v{VL}')
    a(f'v_lshl_add_u32 v{T+1}, v{T+2}, 4, v{T+1}')
    a(f'v_lshl_add_u32 v{T+3}, v{T}, 12, v{T+1}')
    a(f'v_lshl_add_u32 v{T+4}, v{T}, 10, v{T+1}')
    for j in range(4):
        a(f'v_add_u32 v{V_W2+j}, {j*(4*4096-1024)}, v{T+3}')
        a(f'v_add_u32 v{V_WO+j}, {j*(4*1024-1024)}, v{T+4}')
    a(f'v_lshrrev_b32 v{T}, 5, v{VL}')
    a(f'v_bfe_u32 v{T+1}, v{VL}, 2, 2')
    a(f'v_lshl_add_u32 v{T+2}, v{T}, 2, v{T+1}')
    a(f'v_lshlrev_b32 v{T+2}, 8, v{T+2}')
    a(f'v_bfe_u32 v{T+3}, v{VL}, 4, 1')
    a(f'v_lshl_add_u32 v{T+2}, v{T+3}, 5, v{T+2}')
    a(f'v_and_b32 v{T+3}, 3, v{VL}')
    a(f'v_lshl_add_u32 v{T+2}, v{T+3}, 3, v{T+2}')
    for tl in range(4):
        a(f'v_xor_b32 v{T+3}, {tl}, v{T+1}')
        a(f'v_lshl_add_u32 v{V_TB+tl}, v{T+3}, 6, v{T+2}')
    a(f'v_xor_b32 v{T+3}, s{s_w}, v{T+1}')
    a(f'v_lshl_add_u32 v{V_TB+4}, v{T+3}, 6, v{T+2}')
    a(f'v_and_b32 v{T+4}, 31, v{VL}')
    a(f'v_lshlrev_b32 v{T+5}, 2, v{T+4}')
    a(f'v_lshlrev_b32 v{T+6}, 1, v{T+4}')
    a(f'v_lshlrev_b32 v{V_OA}, 10, v{T+4}')
    a(f'v_lshl_add_u32 v{V_OA}, v{T}, 4, v{V_OA}')
    a('s_waitcnt lgkmcnt(0)')
    make_srd(a, S_WO, 64, 0, 4*MB); make_srd(a, S_W2, 68, 0, 1792*4096); make_srd(a, S_B2, 70, 0, 4096)
    make_srd(a, S_OUT, 72, 0, 2*MB)
    make_srd(a, S_CTX, 76, WS_CTX, 16*MB); make_srd(a, S_U, 76, WS_U, 16*112*1024); make_srd(a, S_G, 76, WS_G, 8192)
    make_srd(a, S_P, 76, WS_PART, 16*MB)
    vq = VmQueue()
    a(f's_lshl_b32 s{s_t}, s{s_sb}, 2'); a(f's_add_u32 s{s_t}, s{s_t}, s{s_w}')
    a(f's_lshl_b32 s{s_t1}, s{s_t}, 7'); a(f's_lshl_b32 s{s_t2}, s{s_t}, 6')
    a(f'buffer_load_dword v{V_G}, v{T+5}, s[{S_G}:{S_G+3}], s{s_t1} offen'); vq.push('g')
    a(f'buffer_load_ushort v{V_B2}, v{T+6}, s[{S_B2}:{S_B2+3}], s{s_t2} offen'); vq.push('g')

    if opt.get('tlb', True):
        a(f'v_mov_b32 v3, 0')
        a(f's_lshl_b32 s{s_t}, s{s_tile}, 17'); a(f's_mul_i32 s{s_t1}, s{s_p}, {32768+8192}'); a(f's_add_u32 s{s_t}, s{s_t}, s{s_t1}')
        a(f'buffer_load_dword v6, v3, s[{S_P}:{S_P+3}], s{s_t} offen sc1'); vq.push('g')
        a(f's_lshl_b32 s{s_t}, s{s_sb}, 17')
        a(f'buffer_load_dword v6, v3, s[{S_OUT}:{S_OUT+3}], s{s_t} offen sc1'); vq.push('g')

    def part(t): return ('Y', t) if t < NY else ('O', t-NY)
    def switch(t):
        if t == 0:
            return [f's_mul_i32 s{s_sl}, s{s_p}, {448*4096}', f's_lshl_b32 s{s_t}, s{s_w}, 16', f's_add_u32 s{s_sl}, s{s_sl}, s{s_t}',
                    f's_lshl_b32 s{s_t}, s{s_sb}, 8', f's_add_u32 s{s_sl}, s{s_sl}, s{s_t}',
                    f's_lshl_b32 s{s_t}, s{s_mb}, 2', f's_add_u32 s{s_t}, s{s_t}, s{s_w}', f's_mul_i32 s{s_fr}, s{s_t}, {112*1024}',
                    f's_mul_i32 s{s_t}, s{s_p}, {28*1024}', f's_add_u32 s{s_fr}, s{s_fr}, s{s_t}']
        if t == NY:
            return [f's_lshl_b32 s{s_sl}, s{s_p}, 20', f's_lshl_b32 s{s_t}, s{s_w}, 14', f's_add_u32 s{s_sl}, s{s_sl}, s{s_t}',
                    f's_lshl_b32 s{s_t}, s{s_mb}, 8', f's_add_u32 s{s_sl}, s{s_sl}, s{s_t}',
                    f's_lshl_b32 s{s_t}, s{s_sb}, 2', f's_add_u32 s{s_t}, s{s_t}, s{s_w}', f's_lshl_b32 s{s_fr}, s{s_t}, 18',
                    f's_lshl_b32 s{s_t}, s{s_p}, 16', f's_add_u32 s{s_fr}, s{s_fr}, s{s_t}']
        return []
    def adv(s): return [f's_add_u32 s{s}, s{s}, {SLOT}', f's_cmp_ge_u32 s{s}, {NSL*SLOT}', f's_cselect_b32 s{s}, 0, s{s}']
    def loads(t):
        p, _ = part(t)
        srdS, vo, step = (S_W2, V_W2, 64*4096) if p == 'Y' else (S_WO, V_WO, 64*1024)
        srdF = S_U if p == 'Y' else S_CTX
        g = []
        for j in range(4):
            l = []
            if j == 0: l += switch(t) + [f's_add_u32 s{s_t2}, s{s_fill}, s{s_w4k}', f's_mov_b32 m0, s{s_t2}', 's_nop 0']
            l.append(f'buffer_load_dwordx4 v{vo+j}, s[{srdS}:{srdS+3}], s{s_sl} offen' + (f' offset:{j*1024}' if j else '') + ' lds')
            if j == 3: l.append(f's_add_u32 s{s_sl}, s{s_sl}, {step}')
            g.append((l, t))
        for j in range(4):
            l = []
            if j == 0: l += [f's_add_u32 m0, s{s_t2}, 16384', 's_nop 0']
            l.append(f'buffer_load_dwordx4 v{V_L16}, s[{srdF}:{srdF+3}], s{s_fr} offen' + (f' offset:{j*1024}' if j else '') + ' lds')
            if j == 3: l += [f's_add_u32 s{s_fr}, s{s_fr}, 4096'] + adv(s_fill)
            g.append((l, t))
        return g
    def emit_g(g):
        for l in g[0]: a(l)
        vq.push(g[1])
    def addr_update():
        l = [f'v_add_u32 v{V_TA+k}, s{s_rd}, v{V_TB+k}' for k in range(5)]
        l.append(f'v_add_u32 v{V_LA}, s{s_rd}, v{V_L16}')
        return l + adv(s_rd)
    def reads(t, ks, buf):
        p, _ = part(t); F = FB[buf]; l = []
        if p == 'O':
            l.append(f's_nop 0' if False else f'ds_read_b128 {v(F+16,4)}, v{V_LA+1} offset:{ks*1024}')
            for mt in range(4):
                l.append(f'ds_read_b64_tr_b16 {v(F+4*mt,2)}, v{V_TA+mt} offset:{ks*4096}')
                l.append(f'ds_read_b64_tr_b16 {v(F+4*mt+2,2)}, v{V_TA+mt} offset:{ks*4096+2048}')
        else:
            l.append(f'ds_read_b64_tr_b16 {v(F+16,2)}, v{V_TA+4} offset:{ks*4096}')
            l.append(f'ds_read_b64_tr_b16 {v(F+18,2)}, v{V_TA+4} offset:{ks*4096+2048}')
            for mt in range(4):
                l.append(f'ds_read_b128 {v(F+4*mt,4)}, v{V_LA} offset:{16384+mt*4096+ks*1024}')
        return l
    def addr_update2():
        return [f's_add_u32 s{s_t1}, s{s_w4k}, 16384', f's_add_u32 s{s_t1}, s{s_t1}, s{s_rd}', f'v_add_u32 v{V_LA+1}, s{s_t1}, v{V_L16}']
    def mfmas(t, ks, buf):
        p, tt = part(t); F = FB[buf]; first = tt == 0 and ks == 0
        A0 = ACCY if p == 'Y' else ACCO
        return [f'{MF} {v(A0+16*mt,16)}, {v(F+4*mt,4)}, {v(F+16,4)}, ' + ('0' if first else v(A0+16*mt,16)) for mt in range(4)]

    if sync:
        for l in switch(0): a(l)
        for t in range(NSL-1):
            a(f's_add_u32 m0, s{s_w4k}, {t*SLOT}'); a('s_nop 0')
            for j in range(4):
                a(f'buffer_load_dwordx4 v{V_W2+j}, s[{S_W2}:{S_W2+3}], s{s_sl} offen' + (f' offset:{j*1024}' if j else '') + ' lds'); vq.push(t)
            a(f's_add_u32 s{s_sl}, s{s_sl}, {64*4096}')
        sync(s_sb, s_mb, s_p, s_tile)
        for t in range(NSL-1):
            a(f's_add_u32 m0, s{s_w4k}, {t*SLOT+16384}'); a('s_nop 0')
            for j in range(4):
                a(f'buffer_load_dwordx4 v{V_L16}, s[{S_U}:{S_U+3}], s{s_fr} offen' + (f' offset:{j*1024}' if j else '') + ' lds'); vq.push(t)
            a(f's_add_u32 s{s_fr}, s{s_fr}, 4096')
        a(f's_mov_b32 s{s_fill}, {(NSL-1)*SLOT}')
    else:
        for t in range(NSL-1):
            for g in loads(t): emit_g(g)
    vq.wait_for(a, 0)
    a('s_barrier')
    for l in addr_update2() + addr_update() + reads(0, 0, 0): a(l)
    if not opt.get('rt'): st_('go')
    for t in range(NS):
        tn = t + NSL - 1
        gs = loads(tn) if tn < NS else []
        if not opt.get('rt') and not opt.get('nostage'): st_(f's{t}')
        for ks in range(4):
            buf = ks & 1
            a('s_waitcnt lgkmcnt(0)')
            pre = []
            if ks == 3 and t+1 < NS:
                vq.wait_for(a, t+1)
                a('s_barrier')
                pre = addr_update2() + addr_update()
            mf = mfmas(t, ks, buf)
            if ks < 3: rd = reads(t, ks+1, buf ^ 1)
            elif t+1 < NS: rd = reads(t+1, 0, buf ^ 1)
            else: rd = []
            n = len(rd); per = -(-n // 3)
            for k, m in enumerate(mf):
                a(m)
                if k == 0:
                    for l in pre: a(l)
                for l in rd[per*k:per*(k+1)]: a(l)
                if ks < 3 and gs and ((ks*4+k) % 3 != 2):
                    emit_g(gs.pop(0))
        assert not gs
    st_('loopend')
    a(f'v_sub_f32 v{V_1G}, 1.0, v{V_G}')
    a(f's_lshl_b32 s{s_t}, s{s_tile}, 17')
    a(f's_lshl_b32 s{s_t1}, s{s_p}, 13'); a(f's_lshl_b32 s{s_t2}, s{s_w}, 11'); a(f's_add_u32 s{s_t1}, s{s_t1}, s{s_t2}'); a(f's_add_u32 s{s_t1}, s{s_t1}, s{s_t}')
    a('s_nop 4')
    OWN = 192
    for mt in range(4):
        o = ACCO+16*mt; y = ACCY+16*mt
        for e in range(16): a(f'v_mul_f32 v{o+e}, v{o+e}, v{V_G}')
        for e in range(16): a(f'v_fmac_f32 v{o+e}, v{y+e}, v{V_1G}')
        a(f's_cmp_eq_u32 s{s_p}, {mt}')
        a(f's_cbranch_scc1 {N}_own{mt}')
        a(f's_add_u32 s{s_t2}, s{s_t1}, {mt*32768}')
        for k in range(8): a(f'v_cvt_pk_bf16_f32 v{o+k}, v{o+2*k}, v{o+2*k+1}')
        for q in range(2):
            a(f'buffer_store_dwordx4 {v(o+4*q,4)}, v{V_L16}, s[{S_P}:{S_P+3}], s{s_t2} offen offset:{q*1024} sc1')
        a(f's_branch {N}_next{mt}')
        a.label(f'{N}_own{mt}')
        for e in range(16): a(f'v_mov_b32 v{OWN+e}, v{o+e}')
        a.label(f'{N}_next{mt}')
    if not opt.get('rt'): st_('published')
    a(f's_lshl_b32 s{s_t}, s{s_tile}, 17'); a(f's_lshl_b32 s{s_t1}, s{s_p}, 15'); a(f's_add_u32 s{s_t}, s{s_t}, s{s_t1}')
    a(f's_lshl_b32 s{s_t1}, s{s_w}, 11'); a(f's_add_u32 s{s_t}, s{s_t}, s{s_t1}')
    for k in range(1, 4):
        a(f's_add_u32 s{s_t1}, s{s_p}, {k}'); a(f's_and_b32 s{s_t1}, s{s_t1}, 3'); a(f's_lshl_b32 s{s_t1}, s{s_t1}, 13'); a(f's_add_u32 s{50+k}, s{s_t1}, s{s_t}')
    a('s_mov_b32 s54, 0')
    a.label(f'{N}_poll')
    for k in range(1, 4):
        for q in range(2):
            a(f'buffer_load_dwordx4 {v(ACCY+8*k+4*q,4)}, v{V_L16}, s[{S_P}:{S_P+3}], s{50+k} offen offset:{q*1024} sc1')
    a('s_add_u32 s54, s54, 1')
    a('s_waitcnt vmcnt(0)')
    R0 = ACCY+8
    a(f'v_max3_u32 v{T}, v{R0}, v{R0+1}, v{R0+2}')
    for k in range(3, 23, 2): a(f'v_max3_u32 v{T}, v{T}, v{R0+k}, v{R0+k+1}')
    a(f'v_max_u32 v{T}, v{T}, v{R0+23}')
    a(f'v_cmp_eq_u32 vcc, -1, v{T}')
    a('s_cmp_ge_u32 s54, 0x20000')
    a(f's_cbranch_scc1 {N}_poll_end')
    a(f's_cbranch_vccnz {N}_poll')
    a.label(f'{N}_poll_end')
    st_('gathered')
    a(f'v_lshlrev_b32 v{V_B2}, 16, v{V_B2}')
    a(f'v_mul_f32 v{V_B2}, v{V_B2}, v{V_1G}')
    D = OWN
    for e in range(16): a(f'v_add_f32 v{D+e}, v{D+e}, v{V_B2}')
    for k in range(1, 4):
        for q in range(8):
            r = ACCY+8*k+q
            a(f'v_lshlrev_b32 v{T}, 16, v{r}'); a(f'v_and_b32 v{T+1}, 0xffff0000, v{r}')
            a(f'v_add_f32 v{D+2*q}, v{D+2*q}, v{T}'); a(f'v_add_f32 v{D+2*q+1}, v{D+2*q+1}, v{T+1}')
    X = ACCO
    for jj in range(4):
        a(f'v_cvt_pk_bf16_f32 v{X+2*jj}, v{D+4*jj}, v{D+4*jj+1}')
        a(f'v_cvt_pk_bf16_f32 v{X+2*jj+1}, v{D+4*jj+2}, v{D+4*jj+3}')
    a(f's_lshl_b32 s{s_t}, s{s_sb}, 17'); a(f's_lshl_b32 s{s_t1}, s{s_w}, 15'); a(f's_add_u32 s{s_t}, s{s_t}, s{s_t1}')
    a(f's_lshl_b32 s{s_t1}, s{s_mb}, 8'); a(f's_add_u32 s{s_t}, s{s_t}, s{s_t1}')
    a(f's_lshl_b32 s{s_t1}, s{s_p}, 6'); a(f's_add_u32 s{s_t}, s{s_t}, s{s_t1}')
    for pr in range(2):
        b = X+4*pr
        a(f'v_permlane32_swap_b32 v{b}, v{b+2}')
        a(f'v_permlane32_swap_b32 v{b+1}, v{b+3}')
        a('s_nop 1')
        a(f'buffer_store_dwordx4 {v(b,4)}, v{V_OA}, s[{S_OUT}:{S_OUT+3}], s{s_t} offen offset:{32*pr}')
    a('s_waitcnt vmcnt(0)')
    st_('end')
    if opt.get('rt'):
        a('s_cmp_eq_u32 s2, 0'); a(f's_cbranch_scc0 {N}_nodbg'); a(f's_cmp_eq_u32 s{s_w}, 0'); a(f's_cbranch_scc0 {N}_nodbg')
        make_srd(a, 56, 76, 100*MB, 1 << 20); make_srd(a, 60, 74, 0, 256)
        a(f'v_lshrrev_b32 v3, 2, v{V_L16}')
        a(f's_mov_b32 s49, {opt.get("rt_wg", 0)*1024}')
        a('buffer_load_dword v4, v3, s[56:59], s49 offen')
        a(f'v_lshlrev_b32 v6, 4, v{V_L16}')
        for k in range(16):
            a(f's_mov_b32 s49, {k*16384}')
            a(f'buffer_load_dword v{64+k}, v6, s[56:59], s49 offen offset:252')
            a(f'buffer_load_dword v{80+k}, v6, s[56:59], s49 offen offset:248')
        a('s_waitcnt vmcnt(0)')
        for k in range(1, 16):
            a(f'v_max_u32 v64, v64, v{64+k}'); a(f'v_min_u32 v80, v80, v{80+k}')
        a('s_nop 1')
        a('v_readlane_b32 s50, v64, 0'); a('v_readlane_b32 s51, v80, 0')
        for ln in range(1, 64):
            a(f'v_readlane_b32 s52, v64, {ln}'); a(f'v_readlane_b32 s53, v80, {ln}'); a('s_max_u32 s50, s50, s52'); a('s_min_u32 s51, s51, s53')
        a('v_writelane_b32 v4, s50, 11'); a('v_writelane_b32 v4, s51, 10')
        a('v_cmp_gt_u32 vcc, 48, v3')
        a('s_and_saveexec_b64 s[50:51], vcc')
        a('buffer_store_dword v4, v3, s[60:63], 0 offen')
        a('s_mov_b64 exec, s[50:51]')
        a('v_cmp_gt_u32 vcc, 16, v3')
        a('s_and_saveexec_b64 s[50:51], vcc')
        a('buffer_store_dword v255, v3, s[60:63], 0 offen offset:48')
        a('s_mov_b64 exec, s[50:51]')
        a('s_waitcnt vmcnt(0)')
        a.label(f'{N}_nodbg')
    elif inline:
        st_.dump(100*MB, s_w, 253)
    else:
        st_.dump(100*MB, s_w, 240)
    if not inline:
        a.label(f'{N}_end')
        a('s_endpgm')
```

```python
from asmlib import *
from layout import *
from gen_proj2 import VmQueue, v
from gen_proj import make_srd
from gen_t2 import lane_setup, dma_voffs, MF

class Mlp1:
    S_W1, S_H, S_U, S_B1 = 4, 8, 8, 4
    s_w, s_fb, s_db, s_a, s_b, s_w8k = 20, 80, 81, 82, 83, 84
    P_W1, P_B1, P_WS = 68, 86, 34
    ACC = 64; FB = [128, 144]; V_RB = [8, 9]; V_RA = [10, 11]; V_AO = 12; V_BO = 16; VL = 4; V_L16 = 5; T = 20; V_BI = 40; V_W = 6; V_R = 7
    SLOTS = [131072, 0, 32768, 65536, 98304]
    NS, PD = 16, 5
    def __init__(self, a, tshift=0): self.a = a; self.tshift = tshift; self.final_wait = 0; self.defer = False

    def ids(self):
        a = self.a
        a('s_lshr_b32 s27, s2, 3'); a('s_and_b32 s29, s2, 7')
        if self.tshift: a(f's_sub_u32 s27, s27, {self.tshift}'); a('s_max_i32 s27, s27, 0')
        a('s_lshr_b32 s30, s29, 1'); a('s_mul_i32 s30, s30, 7'); a('s_lshr_b32 s31, s27, 2'); a(f's_add_u32 s{self.s_fb}, s30, s31')
        a('s_and_b32 s30, s29, 1'); a('s_lshl_b32 s30, s30, 2'); a('s_and_b32 s31, s27, 3'); a(f's_add_u32 s{self.s_db}, s30, s31')
        a(f's_lshl_b32 s{self.s_w8k}, s{self.s_w}, 13')

    def l2_prefetch(self, vtmp):
        l = Asm()
        make_srd(l, 76, self.P_W1, 0, 2048*3584)
        l(f'v_mul_u32_u24 v{vtmp}, 224, v204')
        l(f's_and_b32 s27, s{self.s_db}, 3'); l('s_lshl_b32 s27, s27, 2'); l(f's_add_u32 s27, s27, s{self.s_w}'); l(f's_mul_i32 s27, s27, {128*3584}')
        l(f's_lshl_b32 s29, s{self.s_fb}, 7'); l('s_add_u32 s27, s27, s29'); l(f's_add_u32 s29, s27, {64*3584}')
        l(f'buffer_load_dword v253, v{vtmp}, s[76:79], s27 offen')
        l(f'buffer_load_dword v253, v{vtmp}, s[76:79], s29 offen')
        make_srd(l, 76, self.P_WS, WS_H, 2*MB)
        l(f'v_lshlrev_b32 v{vtmp+1}, 6, v204')
        l(f's_lshr_b32 s27, s2, 5'); l('s_mul_i32 s27, s27, 292'); l(f's_mul_i32 s29, s{self.s_w}, 73'); l('s_add_u32 s27, s27, s29'); l('s_lshl_b32 s27, s27, 10')
        l(f's_lshl_b32 s29, s{self.s_db}, 7'); l('s_add_u32 s27, s27, s29')
        l(f'buffer_load_dword v253, v{vtmp+1}, s[76:79], s27 offen')
        return l.lines

    def setup_lines(self):
        a = Asm(); T = self.T; VL = self.VL; w = self.s_w
        a('v_mbcnt_lo_u32_b32 v0, -1, 0'); a('v_mbcnt_hi_u32_b32 v0, -1, v0')
        lane_setup(a, VL, T)
        a(f'v_lshlrev_b32 v{self.V_L16}, 4, v{VL}')
        for t in range(2):
            X = T+5; dst = self.V_RB[t]
            a(f'v_mul_u32_u24 v{X}, 8, v{T}'); a(f'v_add_u32 v{X}, v{X}, v{T+1}'); a(f'v_lshlrev_b32 v{X}, 7, v{X}')
            a(f'v_xor_b32 v{dst}, {t}, v{T+4}'); a(f'v_lshl_add_u32 v{X}, v{dst}, 6, v{X}')
            a(f'v_lshl_add_u32 v{X}, v{T+2}, 5, v{X}'); a(f'v_lshl_add_u32 v{X}, v{T+3}, 3, v{X}')
            a(f'v_add_u32 v{dst}, s{self.s_w8k}, v{X}')
        a(f's_lshr_b32 s29, s{w}, 1'); a('s_lshl_b32 s29, s29, 5'); a(f's_lshl_b32 s30, s{self.s_fb}, 6'); a('s_add_u32 s29, s29, s30'); a('s_lshl_b32 s31, s29, 1')
        a(f'v_lshlrev_b32 v{self.V_BI+8}, 3, v{T}')
        dma_voffs(a, self.V_AO, VL, T, 3584, 29)
        dma_voffs(a, self.V_BO, VL, T, 1024, 29)
        a(f's_lshl_b32 s29, s{w}, 14'); a(f'v_add_u32 v{self.V_W}, s29, v{self.V_L16}')
        a(f's_lshl_b32 s29, s{w}, 12'); a(f'v_add_u32 v{self.V_R}, s29, v{self.V_L16}')
        make_srd(a, self.S_W1, self.P_W1, 0, 2048*3584); make_srd(a, self.S_B1, self.P_B1, 0, 3584)
        make_srd(a, self.S_H, self.P_WS, WS_H, 2*MB); make_srd(a, self.S_U, self.P_WS, WS_U, 16*112*1024)
        a(f's_mul_i32 s{self.s_a}, s{w}, {512*3584}'); a(f's_lshl_b32 s29, s{self.s_fb}, 7'); a(f's_add_u32 s{self.s_a}, s{self.s_a}, s29')
        a(f's_lshl_b32 s{self.s_b}, s{w}, 19'); a(f's_lshl_b32 s29, s{self.s_db}, 7'); a(f's_add_u32 s{self.s_b}, s{self.s_b}, s29')
        return a.lines

    def bias_loads(self):
        return [([f'buffer_load_dwordx2 {v(self.V_BI+2*jj,2)}, v{self.V_BI+8}, s[{self.S_B1}:{self.S_B1+3}], s31 offen offset:{16*jj}'], 'bias') for jj in range(4)]

    def dma(self, t):
        slot = self.SLOTS[t % self.PD]; g = []
        for (vo, srd_, so, step, off) in ((self.V_AO, self.S_W1, self.s_a, 32*3584, 0), (self.V_BO, self.S_H, self.s_b, 32*1024, 4096)):
            for j in range(4):
                l = []
                if j == 0: l += [f's_add_u32 m0, s{self.s_w8k}, {slot+off}', 's_nop 0']
                l.append(f'buffer_load_dwordx4 v{vo+j}, s[{srd_}:{srd_+3}], s{so} offen' + (f' offset:{j*1024}' if j else '') + ' lds')
                if j == 3: l.append(f's_add_u32 s{so}, s{so}, {step}')
                g.append((l, t))
        return g

    def addr(self, t):
        return [f'v_add_u32 v{self.V_RA[k]}, {self.SLOTS[t % self.PD]}, v{self.V_RB[k]}' for k in range(2)]
    def reads(self, ks, buf):
        F = self.FB[buf]; l = []
        for op, base in ((0, 0), (1, 4096)):
            for tl in range(2):
                r = F + 8*op + 4*tl
                l.append(f'ds_read_b64_tr_b16 {v(r,2)}, v{self.V_RA[tl]} offset:{ks*2048+base}')
                l.append(f'ds_read_b64_tr_b16 {v(r+2,2)}, v{self.V_RA[tl]} offset:{ks*2048+base+512}')
        return l
    def mfmas(self, buf, first):
        F = self.FB[buf]; l = []
        for ft in range(2):
            for dt in range(2):
                acc = v(self.ACC+16*(2*ft+dt), 16)
                l.append(f'{MF} {acc}, {v(F+4*ft,4)}, {v(F+8+4*dt,4)}, ' + ('0' if first else acc))
        return l

    def finish_pre(self):
        a = Asm(); T = self.T; w = self.s_w; L16 = 204
        V_W, V_R = self.V_W, self.V_R
        make_srd(a, self.S_B1, self.P_B1, 0, 3584); make_srd(a, self.S_U, self.P_WS, WS_U, 16*112*1024)
        a(f's_lshr_b32 s29, s{w}, 1'); a('s_lshl_b32 s29, s29, 5'); a(f's_lshl_b32 s30, s{self.s_fb}, 6'); a('s_add_u32 s29, s29, s30'); a('s_lshl_b32 s31, s29, 1')
        a(f'v_lshrrev_b32 v{T}, 9, v{L16}'); a(f'v_lshlrev_b32 v{self.V_BI+8}, 3, v{T}')
        a(f's_lshl_b32 s29, s{w}, 14'); a(f'v_add_u32 v{V_W}, s29, v{L16}')
        a(f's_lshl_b32 s29, s{w}, 12'); a(f'v_add_u32 v{V_R}, s29, v{L16}')
        a(f'v_mov_b32 v{self.V_BI+9}, 0xc0135761')
        lines = [('x', l) for l in a.lines]
        wr = []
        for t in range(4):
            for q in range(4):
                r = 128+16*t+4*q
                wr.append(f'ds_write_b128 v{V_W}, a[{r}:{r+3}] offset:{t*4096+q*1024}')
        self.pre_writes = wr
        return lines, self.bias_loads()

    def finish(self, vq, epiB, stamp, pre_done=False):
        a = self.a; T = self.T; w = self.s_w; L16 = 204
        V_W, V_R, DST = self.V_W, self.V_R, 64
        if not pre_done:
            lines, groups = self.finish_pre()
            for x in lines: a(x[1])
            for g in groups:
                for l in g[0]: a(l)
                vq.push(g[1])
        for l in self.pre_writes: a(l)
        epiB()
        stamp()
        a('s_waitcnt lgkmcnt(0)')
        a('s_barrier')
        for ww in range(4):
            for q in range(4):
                a(f'ds_read_b128 {v(DST+16*ww+4*q,4)}, v{V_R} offset:{ww*16384+q*1024}')
        vq.wait_for(a, 'bias')
        a('s_waitcnt lgkmcnt(0)')
        self.post(DST, L16)

    def post(self, DST, L16):
        a = self.a; T = self.T
        for e in range(16):
            a(f'v_add_f32 v{DST+e}, v{DST+e}, v{DST+16+e}')
            a(f'v_add_f32 v{DST+32+e}, v{DST+32+e}, v{DST+48+e}')
        for e in range(16): a(f'v_add_f32 v{DST+e}, v{DST+e}, v{DST+32+e}')
        for jj in range(4):
            b = self.V_BI+2*jj
            a(f'v_lshlrev_b32 v{T}, 16, v{b}'); a(f'v_and_b32 v{T+1}, 0xffff0000, v{b}')
            a(f'v_lshlrev_b32 v{T+2}, 16, v{b+1}'); a(f'v_and_b32 v{T+3}, 0xffff0000, v{b+1}')
            for r in range(4): a(f'v_add_f32 v{DST+4*jj+r}, v{DST+4*jj+r}, v{T+r}')
        K1, K2 = 0xc0135761, 0xbdd2d3e8
        a(f's_mov_b32 s29, {hex(K2)}')
        X = DST+16
        for e in range(16): a(f'v_mul_f32 v{X+e}, v{DST+e}, v{DST+e}')
        for e in range(16): a(f'v_fma_f32 v{X+16+e}, s29, v{X+e}, v{self.V_BI+9}')
        for e in range(16): a(f'v_mul_f32 v{X+e}, v{X+16+e}, v{DST+e}')
        for e in range(16): a(f'v_exp_f32 v{X+e}, v{X+e}')
        for e in range(16): a(f'v_add_f32 v{X+e}, 1.0, v{X+e}')
        for e in range(16): a(f'v_rcp_f32 v{X+e}, v{X+e}')
        w = self.s_w
        a(f's_and_b32 s29, s{w}, 1'); a(f's_lshl_b32 s30, s{self.s_db}, 1'); a('s_add_u32 s29, s29, s30'); a('s_mul_i32 s29, s29, 112')
        a(f's_lshr_b32 s30, s{w}, 1'); a('s_lshl_b32 s30, s30, 1'); a('s_add_u32 s29, s29, s30')
        a(f's_lshl_b32 s30, s{self.s_fb}, 2'); a('s_add_u32 s29, s29, s30'); a('s_lshl_b32 s29, s29, 10')
        for t in range(2):
            b = DST+8*t
            for e in range(8*t, 8*t+8): a(f'v_mul_f32 v{DST+e}, v{DST+e}, v{X+e}')
            for k in range(4): a(f'v_cvt_pk_bf16_f32 v{b+k}, v{b+2*k}, v{b+2*k+1}')
            if not self.defer: a(f'buffer_store_dwordx4 {v(b,4)}, v{L16}, s[{self.S_U}:{self.S_U+3}], s29 offen offset:{t*1024}{STF.st}')
        if self.defer: a('s_mov_b32 s61, s29')
        a(f's_waitcnt vmcnt({self.final_wait})')

    def main(self, vq):
        a = self.a; NS, PD, T = self.NS, self.PD, self.T
        def emit_g(g):
            for l in g[0]: a(l)
            vq.push(g[1])
        vq.wait_for(a, 0)
        for l in self.addr(0) + self.reads(0, 0): a(l)
        for t in range(NS):
            a('s_waitcnt lgkmcnt(0)')
            rd = self.reads(1, 1)
            for k, m in enumerate(self.mfmas(0, t == 0)):
                a(m)
                for l in rd[2*k:2*k+2]: a(l)
            a('s_waitcnt lgkmcnt(0)')
            rd = []
            if t+1 < NS:
                vq.wait_for(a, t+1)
                rd = self.addr(t+1) + self.reads(0, 0)
            gs = self.dma(t+PD) if t+PD < NS else []
            ml = self.mfmas(1, False)
            for k, m in enumerate(ml):
                a(m)
                for l in (rd[0:4] if k == 0 else rd[2+2*k:4+2*k]): a(l)
                for g in gs[2*k:2*k+2]: emit_g(g)
        a('s_barrier')
        a('s_nop 12')
        ACC, V_W, V_R, DST = self.ACC, self.V_W, self.V_R, 160
        for t in range(4):
            for q in range(4):
                a(f'ds_write_b128 v{V_W}, {v(ACC+16*t+4*q,4)} offset:{t*4096+q*1024}')
        a('s_waitcnt lgkmcnt(0)')
        a('s_barrier')
        for ww in range(4):
            for q in range(4):
                a(f'ds_read_b128 {v(DST+16*ww+4*q,4)}, v{V_R} offset:{ww*16384+q*1024}')
        a('s_waitcnt lgkmcnt(0)')
        for e in range(16):
            a(f'v_add_f32 v{DST+e}, v{DST+e}, v{DST+16+e}')
            a(f'v_add_f32 v{DST+32+e}, v{DST+32+e}, v{DST+48+e}')
        for e in range(16): a(f'v_add_f32 v{DST+e}, v{DST+e}, v{DST+32+e}')
        for jj in range(4):
            b = self.V_BI+2*jj
            a(f'v_lshlrev_b32 v{T}, 16, v{b}'); a(f'v_and_b32 v{T+1}, 0xffff0000, v{b}')
            a(f'v_lshlrev_b32 v{T+2}, 16, v{b+1}'); a(f'v_and_b32 v{T+3}, 0xffff0000, v{b+1}')
            for r in range(4): a(f'v_add_f32 v{DST+4*jj+r}, v{DST+4*jj+r}, v{T+r}')
        K1, K2 = 0xc0135761, 0xbdd2d3e8
        a(f's_mov_b32 s29, {hex(K2)}')
        X = DST+16
        for e in range(16): a(f'v_mul_f32 v{X+e}, v{DST+e}, v{DST+e}')
        for e in range(16): a(f'v_mov_b32 v{X+16+e}, {hex(K1)}')
        for e in range(16): a(f'v_fmac_f32 v{X+16+e}, s29, v{X+e}')
        for e in range(16): a(f'v_mul_f32 v{X+e}, v{X+16+e}, v{DST+e}')
        for e in range(16): a(f'v_exp_f32 v{X+e}, v{X+e}')
        for e in range(16): a(f'v_add_f32 v{X+e}, 1.0, v{X+e}')
        for e in range(16): a(f'v_rcp_f32 v{X+e}, v{X+e}')
        for e in range(16): a(f'v_mul_f32 v{DST+e}, v{DST+e}, v{X+e}')
        w = self.s_w
        a(f's_and_b32 s29, s{w}, 1'); a(f's_lshl_b32 s30, s{self.s_db}, 1'); a('s_add_u32 s29, s29, s30'); a('s_mul_i32 s29, s29, 112')
        a(f's_lshr_b32 s30, s{w}, 1'); a('s_lshl_b32 s30, s30, 1'); a('s_add_u32 s29, s29, s30')
        a(f's_lshl_b32 s30, s{self.s_fb}, 2'); a('s_add_u32 s29, s29, s30'); a('s_lshl_b32 s29, s29, 10')
        for t in range(2):
            b = DST+8*t
            for k in range(4): a(f'v_cvt_pk_bf16_f32 v{b+k}, v{b+2*k}, v{b+2*k+1}')
            a(f'buffer_store_dwordx4 {v(b,4)}, v{self.V_L16}, s[{self.S_U}:{self.S_U+3}], s29 offen offset:{t*1024}{STF.st}')
        a('s_waitcnt vmcnt(0)')
```

```python
from asmlib import *
from layout import *
import gen_attn2 as A
from gen_attn2 import *
from gen_proj2 import Proj, VmQueue, frag_store_groups
from gen_proj import make_srd
import gen_proj, gen_final
from gen_kv import ProjKV

class Main(Attn):
    def emit_phasec(self):
        a = self.a; N = self.name; opt = self.opt
        a('s_barrier')
        make_srd(a, 76, 34, WS_FL, 112*128)
        a(f's_lshr_b32 s27, s{s_h}, 3'); a('s_lshl_b32 s27, s27, 3'); a(f's_add_u32 s27, s27, s{s_i}'); a('s_lshl_b32 s27, s27, 7')
        a(f's_and_b32 s29, s{s_h}, 7'); a('s_lshl_b32 s29, s29, 2'); a('s_add_u32 s27, s27, s29')
        a('v_mov_b32 v41, s27')
        a('s_mov_b32 s30, 1')
        a(f's_cmp_eq_u32 s{s_i}, {self.nomlp_i}'); a(f's_cbranch_scc1 {N}_cnou')
        a('s_mul_i32 s27, s80, 37'); a('s_lshr_b32 s27, s27, 8'); a('s_mul_i32 s29, s27, 7'); a('s_sub_u32 s29, s80, s29')
        a('s_lshl_b32 s29, s29, 1'); a('s_and_b32 s31, s81, 1'); a('s_add_u32 s29, s29, s31'); a('s_lshl_b32 s29, s29, 2')
        a('s_lshl_b32 s27, s27, 2'); a('s_lshr_b32 s31, s81, 1'); a('s_add_u32 s27, s27, s31'); a('s_add_u32 s27, s27, 32'); a('s_lshl_b32 s27, s27, 7'); a('s_add_u32 s27, s27, s29')
        a('v_writelane_b32 v41, s27, 1'); a('s_or_b32 s30, s30, 2')
        a.label(f'{N}_cnou')
        a(f's_cmp_eq_u32 s{s_i}, 7'); a(f's_cbranch_scc0 {N}_cflag')
        a('s_sub_u32 s27, s2, 224'); a('s_lshl_b32 s27, s27, 1'); a('s_add_u32 s27, s27, 48'); a('s_lshl_b32 s27, s27, 7')
        a('v_writelane_b32 v41, s27, 2'); a('s_add_u32 s27, s27, 128'); a('v_writelane_b32 v41, s27, 3'); a('s_or_b32 s30, s30, 12')
        a.label(f'{N}_cflag')
        a('v_mov_b32 v42, 1')
        a(f's_cmp_eq_u32 s{s_w}, 0'); a('s_cselect_b32 exec_lo, s30, 0'); a('s_mov_b32 exec_hi, 0')
        a('buffer_store_dword v42, v41, s[76:79], 0 offen sc1')
        a('s_mov_b64 exec, -1')
        def poll(s_sb, s_mb, s_p, s_tile):
            make_srd(a, 56, 76, WS_FL, 112*128)
            a(f's_sub_u32 s49, 15, s{s_sb}'); a(f's_min_u32 s49, s49, s{s_sb}'); a(f's_lshl_b32 s50, s{s_p}, 3'); a('s_add_u32 s49, s49, s50'); a('s_lshl_b32 s49, s49, 7')
            a(f's_lshl_b32 s50, s{s_p}, 2'); a(f's_add_u32 s50, s50, s{s_mb}'); a('s_add_u32 s50, s50, 32'); a('s_lshl_b32 s50, s50, 7'); a('s_sub_u32 s50, s50, 32')
            a(f's_add_u32 s51, s{s_tile}, 48'); a('s_lshl_b32 s51, s51, 7')
            a('v_lshrrev_b32 v45, 2, v2')
            a('v_mov_b32 v46, s50'); a('v_mov_b32 v47, s49'); a('v_cmp_gt_u32 vcc, 32, v45'); a('s_nop 1'); a('v_cndmask_b32 v46, v46, v47, vcc')
            a('v_add_u32 v45, v45, v46'); a('v_writelane_b32 v45, s51, 22')
            a(f's_cmp_eq_u32 s{s_w}, 0'); a(f's_cbranch_scc0 {N}_cpolled')
            a('s_mov_b32 s49, 0')
            a.label(f'{N}_cpoll')
            a('buffer_load_dword v44, v45, s[56:59], 0 offen sc1')
            a('s_waitcnt vmcnt(0)')
            a('v_cmp_ne_u32 vcc, 1, v44'); a('s_nop 3'); a('s_and_b32 s50, vcc_lo, 0x7fffff'); a('s_cmp_eq_u32 s50, 0')
            a(f's_cbranch_scc1 {N}_cpolled')
            a('s_add_u32 s49, s49, 1'); a('s_cmp_ge_u32 s49, 0x20000'); a(f's_cbranch_scc1 {N}_cpolled')
            a(f's_sleep {opt.get("csleep", 4)}'); a(f's_branch {N}_cpoll')
            a.label(f'{N}_cpolled')
            a('s_barrier')
        gen_final.emit_final(a, N + '_fin', inline=True, sync=poll, stamps=self.st, **opt.get('l3', {}))

    def emit_head(self):
        a = self.a; N = self.name; opt = self.opt
        S_CK, S_WK, S_X, S_O, S_WV, S_WQ = 4, 8, 12, 16, 92, 60
        S_H, S_G, S_GW = 76, (56 if opt.get('lnfill', False) else 48), 52
        a(f's_cmp_ge_u32 s2, 256')
        a(f's_cbranch_scc1 {N}_end')
        self.stamp()
        a(f's_load_dwordx2 s[34:35], s[0:1], {KA_WS}')
        a(f's_load_dwordx2 s[64:65], s[0:1], {KA_AX}')
        a(f's_load_dwordx2 s[90:91], s[0:1], {KA_CKV}')
        a(f's_load_dwordx4 s[96:99], s[0:1], {KA_WUK}')
        a(f's_load_dwordx2 s[38:39], s[0:1], {KA_GW}')
        a(f's_load_dwordx2 s[66:67], s[0:1], {KA_WQ}')
        a(f's_load_dwordx2 s[68:69], s[0:1], {KA_W1}')
        a(f's_load_dwordx2 s[86:87], s[0:1], {KA_B1}')
        a(f's_load_dwordx2 s[70:71], s[0:1], {KA_WO}')
        a(f's_load_dwordx2 s[72:73], s[0:1], {KA_W2}')
        a(f's_load_dwordx2 s[100:101], s[0:1], {KA_DBG}')
        a(f'v_lshrrev_b32 v1, 6, v0')
        a(f'v_and_b32 v2, 63, v0')
        a(f'v_lshlrev_b32 v{V_L16}, 4, v2')
        a(f'v_readfirstlane_b32 s{s_w}, v1')
        a(f's_and_b32 s{s_t0}, s2, 7')
        a(f's_lshr_b32 s{s_t1}, s2, 3')
        a(f's_lshl_b32 s{s_h}, s{s_t0}, 2')
        a(f's_and_b32 s{s_t0}, s{s_t1}, 3')
        a(f's_add_u32 s{s_h}, s{s_h}, s{s_t0}')
        a(f's_lshr_b32 s{s_i}, s{s_t1}, 2')
        a(f's_add_u32 s{s_g1}, s{s_i}, 1')
        a(f's_lshl_b32 s{s_g1}, s{s_g1}, 2')
        a(f's_lshl_b32 s36, s{s_i}, 2'); a(f's_add_u32 s36, s36, s{s_w}')
        a(f's_lshl_b32 s37, s{s_i}, 2'); a(f's_sub_u32 s37, 60, s37'); a(f's_add_u32 s37, s37, s{s_w}')
        vq = VmQueue()
        P = Proj(a, vq, s_w, 16384, 16384, ACC=64, FB=(192, 216), fbk='a', VA=8, V_L16=V_L16, VT=33, SG=40,
                 wflags=(' nt' if opt.get('nt', True) else ''), stamps=self.st, opt=opt)
        P.setup_addrs(set_l16=False)
        lnfill = opt.get('lnfill', False)
        LB_ = 40
        a(f's_lshl_b32 s82, s2, 3'); a(f's_lshl_b32 s83, s{s_w}, 1'); a('s_add_u32 s82, s82, s83')
        a('s_lshl_b32 s83, s82, 2'); a('s_lshl_b32 s82, s82, 10')
        a('s_waitcnt lgkmcnt(0)')
        make_srd(a, S_CK, 90, 0, 2*MB); make_srd(a, S_WK, 96, 0, 4*MB)
        def lnloads():
            make_srd(a, S_X, 64, 0, 2*MB); make_srd(a, S_GW, 38, 0, 1024)
            a(f'buffer_load_dwordx4 v[{LB_}:{LB_+3}], v{V_L16}, s[{S_X}:{S_X+3}], s82 offen'); vq.push('ln')
            a(f'buffer_load_dwordx4 v[{LB_+4}:{LB_+7}], v{V_L16}, s[{S_X}:{S_X+3}], s82 offen offset:1024'); vq.push('ln')
            a(f'buffer_load_dwordx4 v[{LB_+16}:{LB_+19}], v{V_L16}, s[{S_GW}:{S_GW+3}], 0 offen'); vq.push('ln')
        if not lnfill: lnloads()
        initKV = [f's_lshl_b32 s{P.s_a0}, s{s_i}, 18', f's_lshl_b32 s49, s{s_w}, 16', f's_add_u32 s{P.s_a0}, s{P.s_a0}, s49',
                  f's_add_u32 s{P.s_a1}, s{P.s_a0}, 32768',
                  f's_lshl_b32 s{P.s_wo}, s{s_w}, 17', f's_lshl_b32 s49, s{s_h}, 8', f's_add_u32 s{P.s_wo}, s{P.s_wo}, s49']
        initQ = [f's_lshl_b32 s{P.s_a0}, s36, 15', f's_lshl_b32 s{P.s_a1}, s37, 15',
                 f's_lshl_b32 s{P.s_wo}, s{s_w}, 17', f's_lshl_b32 s49, s{s_h}, 8', f's_add_u32 s{P.s_wo}, s{P.s_wo}, s49']
        ps = [dict(swap=False, srdA=S_CK, srdW=S_WK, init=initKV, epi=lambda: None, acck='v'),
              dict(swap=True, srdA=S_CK, srdW=S_WV, init=initKV, epi=lambda: None, acck='a'),
              dict(swap=False, srdA=S_X, srdW=S_WQ, init=initQ, epi=lambda: None, acck='v')]
        P.prologue(ps[0], after0=(lnloads if lnfill else None))
        make_srd(a, S_WV, 98, 0, 4*MB)
        make_srd(a, S_WQ, 66, 0, 4*MB)
        make_srd(a, S_O, 34, WS_K, 32*MB)
        make_srd(a, S_H, 34, WS_H, 2*MB); make_srd(a, S_G, 34, WS_G, 8192)
        real_a = self.a; tmp_a = Asm(); self.a = tmp_a
        M = self.setup_attn_regs()
        self.a = real_a; M.a = real_a
        c = 0x3e0293ee
        setup = tmp_a.lines + [f'v_mov_b32 v2, {hex(c)}', f'v_mov_b32 v3, {hex(c)}'] + [f'v_accvgpr_write_b32 a{e}, 0' for e in range(64)]
        setupG = [(setup[k:k+4], None) for k in range(0, len(setup), 4)]
        perS = -(-len(setupG)//5)
        s_first = 3 if lnfill else 1
        gen_proj.R.V_L16 = V_L16
        st_save = STF.st; STF.st = ' sc1'
        main_a = a
        if lnfill: a = Asm()
        else: vq.wait_for(a, 'ln')
        if lnfill: gen_proj.emit_ln_compute(a, LB_, S_H, S_G, 82, 83, 208, gw=232, sm=240, tmp=244)
        else: gen_proj.emit_ln_compute(a, LB_, S_H, S_G, 82, 83, 64)
        a('s_getreg_b32 s33, hwreg(HW_REG_XCC_ID, 0, 4)')
        a('s_or_b32 s33, s33, 0x50')
        make_srd(a, 76, 34, WS_HF, 4096)
        a(f's_lshl_b32 s32, s{s_h}, 7')
        a('v_mov_b32 v41, 0'); a(f'v_lshrrev_b32 v42, 2, v{V_L16}')
        a(f's_or_b32 s{s_t0}, s{s_w}, s{s_i}'); a(f's_cmp_eq_u32 s{s_t0}, 0'); a('s_cselect_b32 exec_lo, -1, 0'); a('s_mov_b32 exec_hi, 0')
        a('buffer_store_dword v41, v42, s[76:79], s32 offen sc1')
        a('s_mov_b64 exec, -1')
        if opt.get('fusefin'):
            make_srd(a, 76, 34, WS_FL, 112*128)
            a('s_lshl_b32 s32, s2, 7')
            a(f's_cmp_eq_u32 s{s_w}, 0'); a('s_cselect_b32 exec_lo, -1, 0'); a('s_mov_b32 exec_hi, 0')
            a('buffer_store_dword v41, v42, s[76:79], s32 offen sc1')
            a('s_mov_b64 exec, -1')
        if lnfill:
            lnG = [(['@wait'], 'ln')]
            cur = []; masked = False
            for k_, l in enumerate(a.lines):
                nxt_addc = k_+1 < len(a.lines) and a.lines[k_+1].startswith('s_addc')
                starts_mask = ('exec' in l and not l.startswith('s_mov_b64 exec, -1') and not l.startswith('s_mov_b64 exec, s['))
                if (l.startswith('s_cmp') or starts_mask) and not masked:
                    if cur: lnG.append((cur, None)); cur = []
                    masked = True
                cur.append(l)
                if l.startswith('buffer_'):
                    if not masked: lnG.append((cur, 'lnst')); cur = []
                if masked and (l.startswith('s_mov_b64 exec, -1') or l.startswith('s_mov_b64 exec, s[')):
                    lnG.append((cur, 'lnst')); cur = []; masked = False
                elif not masked and len(cur) >= 4 and not nxt_addc:
                    lnG.append((cur, None)); cur = []
            if cur: lnG.append((cur, None))
            assert not masked
            a = main_a
        else:
            for _ in range(5 if opt.get('fusefin') else 4): vq.push('lnst')
            lnG = []
        perL = -(-len(lnG)//3)
        a(f's_and_b32 s91, s{s_h}, 3'); a(f's_cmp_eq_u32 s{s_w}, 0'); a('s_cselect_b32 s91, s91, 0xff')
        a(f's_lshl_b32 s{s_t0}, s{s_h}, 6'); a(f's_lshl_b32 s{s_t1}, s{s_i}, 3'); a(f's_add_u32 s{s_t0}, s{s_t0}, s{s_t1}')
        a(f's_lshl_b32 s{s_t1}, s{s_w}, 1'); a(f's_add_u32 s{s_t0}, s{s_t0}, s{s_t1}'); a(f's_lshl_b32 s{s_t0}, s{s_t0}, 13')
        for k in range(4):
            a(f's_add_u32 s{50+k}, s{s_t0}, {k*4096}')
            a(f's_add_u32 s{96+k}, s{s_t0}, {16*MB + k*4096}')
        STF.st = opt.get('kst', opt.get('kvst', ''))
        KG = frag_store_groups(P, 'K', 'v', S_O, 50, None, v_scale=2, tag='kst')
        STF.st = opt.get('vst', opt.get('kvst', ''))
        VGs = frag_store_groups(P, 'V', 'a', S_O, 96, 40, tag='vst')
        STF.st = st_save
        nv = opt.get('vstages', 3); sigt = opt.get('sigt', nv+1)
        perK = len(KG)//8; perV = len(VGs)//nv
        KV0 = self.kv_groups('K', 6); VV0 = self.kv_groups('V', 4)
        zero = [([f'v_accvgpr_write_b32 a{64+4*k+e}, 0' for e in range(4)], None) for k in range(16)]
        srds = self.kv_srd_lines()
        dbg = Asm(); make_srd(dbg, 76, 100, 0, 256)
        hfl = Asm(); make_srd(hfl, 92, 34, WS_HF, 4096)
        def lnsig(k): return (dbg.lines + ['v_mov_b32 v58, 0', 'v_mov_b32 v59, s33', f's_cmp_eq_u32 s91, {k}', 's_cselect_b64 exec, 1, 0',
               f'buffer_store_byte v59, v58, s[76:79], s2 offen sc1', 's_mov_b64 exec, -1'], 'flag')
        idaddr = [f'v_lshlrev_b32 v57, 1, v{V_L16}', f's_lshr_b32 s{s_t1}, s{s_h}, 2', f's_and_b32 s32, s{s_h}, 3', 's_lshl_b32 s32, s32, 3', f's_add_u32 s48, s32, s{s_t1}']
        idld = (dbg.lines + idaddr + ['buffer_load_ubyte v56, v57, s[76:79], s48 offen sc1'], 'id')
        sig = dbg.lines + hfl.lines + [f's_cmp_eq_u32 s{s_w}, 0', f's_cbranch_scc0 {N}_nosig', f's_mov_b32 s{s_cnt}, 0',
               f'{N}_idchk:',
               'v_readfirstlane_b32 s32, v56', 's_and_b32 s32, s32, 0x40', 's_cmp_lg_u32 s32, 0', f's_cbranch_scc1 {N}_idok',
               f's_add_u32 s{s_cnt}, s{s_cnt}, 1', f's_cmp_ge_u32 s{s_cnt}, 0x20000', f's_cbranch_scc1 {N}_idok',
               'buffer_load_ubyte v56, v57, s[76:79], s48 offen sc1', 's_waitcnt vmcnt(0)', 's_nop 0', f's_branch {N}_idchk',
               f'{N}_idok:',
               'v_cmp_ne_u32 vcc, s33, v56', 's_nop 3', 's_and_b32 s32, vcc_lo, 0xff', 's_cmp_eq_u32 s32, 0',
               f's_cbranch_scc1 {N}_samexcd', 'buffer_wbl2 sc1', 's_waitcnt vmcnt(0)', f'{N}_samexcd:',
               f's_lshl_b32 s32, s{s_h}, 7', f's_lshl_b32 s{s_t1}, s{s_i}, 2', f's_add_u32 s32, s32, s{s_t1}',
               'v_mov_b32 v41, 0', 'v_mov_b32 v42, 1', 's_mov_b64 exec, 1',
               'buffer_store_dword v42, v41, s[92:95], s32 offen sc1', 's_mov_b64 exec, -1', f'{N}_nosig:']
        pollld = ['buffer_load_dword v232, v233, s[76:79], 0 offen sc1', 'buffer_load_dword v235, v233, s[92:95], s91 offen sc1']
        pollpre = dbg.lines + hfl.lines + [f's_lshl_b32 s91, s{s_h}, 7', f'v_lshrrev_b32 v233, 2, v{V_L16}', 'v_mov_b32 v234, 0x40404040',
                   f's_cmp_eq_u32 s{s_w}, 0', f's_cbranch_scc0 {N}_nopoll0'] + pollld + [f'{N}_nopoll0:']
        def pfw(srd_): return ([f'v_lshrrev_b32 v58, 5, v{V_L16}', 'v_lshlrev_b32 v58, 13, v58', f'v_bfe_u32 v59, v{V_L16}, 4, 1', 'v_lshl_add_u32 v58, v59, 7, v58',
               f's_lshl_b32 s32, s{s_w}, 4', f's_lshl_b32 s49, s{s_i}, 6', 's_add_u32 s32, s32, s49', 's_lshl_b32 s32, s32, 13',
               f's_lshl_b32 s49, s{s_h}, 8', 's_add_u32 s32, s32, s49', 's_mov_b32 exec_hi, 0',
               f'buffer_load_dword v253, v58, s[{srd_}:{srd_+3}], s32 offen', 's_mov_b64 exec, -1'], 'pf')
        def pfx(qt): return ([f'v_lshrrev_b32 v58, 7, v{V_L16}', 'v_lshlrev_b32 v58, 10, v58', f'v_bfe_u32 v59, v{V_L16}, 4, 3', 'v_lshl_add_u32 v58, v59, 7, v58',
               f's_lshl_b32 s32, s{qt}, 5', f's_and_b32 s49, s{s_h}, 3', 's_lshl_b32 s49, s49, 3', 's_add_u32 s32, s32, s49', 's_lshl_b32 s32, s32, 10',
               f'buffer_load_dword v253, v58, s[{S_X}:{S_X+3}], s32 offen'], 'pf')
        def pfc(k): return ([f'v_lshrrev_b32 v58, 7, v{V_L16}', 'v_lshlrev_b32 v58, 10, v58', f'v_bfe_u32 v59, v{V_L16}, 4, 3', 'v_lshl_add_u32 v58, v59, 7, v58',
               f's_lshl_b32 s32, s{s_i}, 8', f's_and_b32 s49, s{s_h}, 3', 's_lshl_b32 s49, s49, 6', 's_add_u32 s32, s32, s49', f's_lshl_b32 s49, s{s_w}, 4', 's_add_u32 s32, s32, s49',
               f's_add_u32 s32, s32, {8*k}', 's_lshl_b32 s32, s32, 10', f'buffer_load_dword v253, v58, s[{S_CK}:{S_CK+3}], s32 offen'], 'pf')
        def pf1():
            l = Asm(); make_srd(l, 76, 68, 0, 2048*3584)
            l(f'v_lshlrev_b32 v58, 3, v{V_L16}'); l('s_lshl_b32 s32, s2, 2'); l(f's_add_u32 s32, s32, s{s_w}'); l('s_mul_i32 s32, s32, 7168')
            l('buffer_load_dword v253, v58, s[76:79], s32 offen')
            return (l.lines, 'pf')
        pf = opt.get('pfa', 'vq')
        def xe(p, t):
            if p == 0:
                g = list(setupG[(t-s_first)*perS:(t-s_first+1)*perS]) if s_first <= t < s_first+5 else []
                if t < 3: g = list(lnG[t*perL:(t+1)*perL]) + g
                if t == 0:
                    if 'k' in pf: g.append(pfw(S_WK))
                    if 'c' in pf: g += [pfc(0), pfc(1)]
                if '1' in pf and t == 6: g.append(pf1())
                if 'v' in pf and t == opt.get('pfv_t', 1): g.append(pfw(S_WV))
                return g
            if p == 1:
                g = list(KG[t*perK:(t+1)*perK])
                if 'q' in pf and t == 1: g.append(pfw(S_WQ))
                if 'x' in pf and t == 2: g.append(pfx(36))
                if 'x' in pf and t == 3: g.append(pfx(37))
                if '2' in pf and t == 5: g.append(pf1())
                return g
            if p == 2:
                g = []
                if t < nv: g += VGs[t*perV:(t+1)*perV] + ([idld] if t == 0 else [])
                if t == nv: g += zero
                if t == 6: g += [(srds, None)]
                if t == 7: g += [(pollpre, None)]
                return g
            return []
        late_pf = opt.get('pflate', {})
        def xl(p, t):
            g = []
            t0 = 4 if lnfill else 2
            if p == 0 and t0 <= t < t0+4: g.append(lnsig(t-t0))
            if p == 2 and t == sigt: g.append((sig, None))
            k = late_pf.get((p, t))
            if k == 'v': g.append(pfw(S_WV))
            if k == 'q': g.append(pfw(S_WQ))
            if k == '1': g.append(pf1())
            if k == 'a': g.append(pfx(36))
            if k == 'b': g.append(pfx(37))
            return g
        assert sigt >= nv + 1 and sigt <= 6 and 48 % nv == 0
        P.start_compute()
        self.stamp()
        P.run(ps, extra_early=xe, extra_late=xl)
        self.stamp()
        self.q_to_frags_cvt()
        chk = ['s_waitcnt vmcnt(0)', 'v_and_b32 v232, v234, v232', 'v_cmp_ne_u32 vcc, v234, v232', 'v_cmp_ne_u32 s[54:55], 1, v235', 's_nop 3',
               's_and_b32 s32, s54, 0xff', 's_or_b32 s32, s32, vcc_lo', 's_or_b32 s32, s32, vcc_hi', 's_cmp_eq_u32 s32, 0']
        for l in [f's_cmp_eq_u32 s{s_w}, 0', f's_cbranch_scc0 {N}_polled', f's_mov_b32 s{s_cnt}, 0', f'{N}_poll:'] + chk + \
                 [f's_cbranch_scc1 {N}_polled', f's_add_u32 s{s_cnt}, s{s_cnt}, 1', f's_cmp_ge_u32 s{s_cnt}, 0x20000', f's_cbranch_scc1 {N}_polled',
                  f's_sleep {opt.get("sleep", 8)}'] + pollld + [f's_branch {N}_poll', f'{N}_polled:']: a(l)
        a('s_barrier')
        for g in KV0 + VV0:
            for l in g[0]: a(l)
        self.stamp()
        self.q_to_frags_srd()
        return M


class Main2(Main):
    def emit_head(self):
        a = self.a; N = self.name; opt = self.opt
        S_CK, S_WK, S_X, S_O, S_WV, S_WQ = 4, 8, 12, 16, 92, 60
        S_H, S_G, S_GW = 76, 48, 52
        a(f's_cmp_ge_u32 s2, 256')
        a(f's_cbranch_scc1 {N}_end')
        self.stamp()
        a(f's_load_dwordx2 s[90:91], s[0:1], {KA_CKV}')
        a(f's_load_dwordx4 s[96:99], s[0:1], {KA_WUK}')
        a(f's_load_dwordx2 s[34:35], s[0:1], {KA_WS}')
        a(f's_load_dwordx2 s[64:65], s[0:1], {KA_AX}')
        a(f's_load_dwordx2 s[38:39], s[0:1], {KA_GW}')
        a(f's_load_dwordx2 s[66:67], s[0:1], {KA_WQ}')
        a(f's_load_dwordx2 s[68:69], s[0:1], {KA_W1}')
        a(f's_load_dwordx2 s[86:87], s[0:1], {KA_B1}')
        a(f's_load_dwordx2 s[70:71], s[0:1], {KA_WO}')
        a(f's_load_dwordx2 s[72:73], s[0:1], {KA_W2}')
        a(f's_load_dwordx2 s[100:101], s[0:1], {KA_DBG}')
        a(f'v_lshrrev_b32 v1, 6, v0')
        a(f'v_and_b32 v2, 63, v0')
        a(f'v_lshlrev_b32 v{V_L16}, 4, v2')
        a(f'v_readfirstlane_b32 s{s_w}, v1')
        a(f's_and_b32 s{s_t0}, s2, 7')
        a(f's_lshr_b32 s{s_t1}, s2, 3')
        a(f's_lshl_b32 s{s_h}, s{s_t0}, 2')
        a(f's_and_b32 s{s_t0}, s{s_t1}, 3')
        a(f's_add_u32 s{s_h}, s{s_h}, s{s_t0}')
        a(f's_lshr_b32 s{s_i}, s{s_t1}, 2')
        a(f's_add_u32 s{s_g1}, s{s_i}, 1')
        a(f's_lshl_b32 s{s_g1}, s{s_g1}, 2')
        a(f's_lshl_b32 s36, s{s_i}, 2'); a(f's_add_u32 s36, s36, s{s_w}')
        a(f's_lshl_b32 s37, s{s_i}, 2'); a(f's_sub_u32 s37, 60, s37'); a(f's_add_u32 s37, s37, s{s_w}')
        vq = VmQueue()
        a('s_waitcnt lgkmcnt(0)')
        make_srd(a, S_CK, 90, 0, 2*MB); make_srd(a, S_WK, 96, 0, 4*MB); make_srd(a, S_WV, 98, 0, 4*MB)
        make_srd(a, S_X, 64, 0, 2*MB); make_srd(a, S_GW, 38, 0, 1024); make_srd(a, S_WQ, 66, 0, 4*MB)
        KV = ProjKV(a, vq, s_w, S_CK, S_WK, S_WV, ACCK=64, ACCV=64, VR=40, VT=33, SG=(38, 39, 64, 65, 66, 67, 90), stamps=self.st, opt=opt)
        KV.setup(s_i, s_h)
        LB_ = 232
        a(f's_lshl_b32 s82, s2, 3'); a(f's_lshl_b32 s83, s{s_w}, 1'); a('s_add_u32 s82, s82, s83')
        a('s_lshl_b32 s83, s82, 2'); a('s_lshl_b32 s82, s82, 10')
        a(f'buffer_load_dwordx4 v[{LB_}:{LB_+3}], v{V_L16}, s[{S_X}:{S_X+3}], s82 offen'); vq.push('ln')
        a(f'buffer_load_dwordx4 v[{LB_+4}:{LB_+7}], v{V_L16}, s[{S_X}:{S_X+3}], s82 offen offset:1024'); vq.push('ln')
        a(f'buffer_load_dwordx4 v[{LB_+16}:{LB_+19}], v{V_L16}, s[{S_GW}:{S_GW+3}], 0 offen'); vq.push('ln')
        rest0 = KV.prologue(opt.get('kvpro', 2))
        P = Proj(a, vq, s_w, 16384, 65536, ACC=64, FB=(192, 216), fbk='a', VA=8, V_L16=V_L16, VT=33, SG=40,
                 wflags=(' nt' if opt.get('nt', False) else ''), stamps=self.st, opt=opt)
        P.setup_addrs(set_l16=False)
        make_srd(a, S_O, 34, WS_K, 32*MB)
        make_srd(a, S_H, 34, WS_H, 2*MB); make_srd(a, S_G, 34, WS_G, 8192)
        real_a = self.a; tmp_a = Asm(); self.a = tmp_a; self.mtmp = 232
        M = self.setup_attn_regs()
        self.a = real_a; M.a = real_a
        c = 0x3e0293ee
        setup = tmp_a.lines + [f'v_mov_b32 v2, {hex(c)}', f'v_mov_b32 v3, {hex(c)}']
        setupG = [(setup[k:k+4], None) for k in range(0, len(setup), 4)]
        perS = -(-len(setupG)//6)
        vq.wait_for(a, 'ln')
        gen_proj.R.V_L16 = V_L16
        st_save = STF.st; STF.st = ' sc1'
        gen_proj.emit_ln_compute(a, LB_, S_H, S_G, 82, 83, 64)
        for _ in range(3): vq.push('lnst')
        a('s_getreg_b32 s33, hwreg(HW_REG_XCC_ID, 0, 4)')
        a('s_or_b32 s33, s33, 0x10')
        make_srd(a, 76, 100, 0, 256)
        a('v_mov_b32 v33, 0'); a('v_mov_b32 v34, s33')
        a(f's_cmp_eq_u32 s{s_w}, 0'); a('s_cselect_b64 exec, 1, 0')
        a('buffer_store_byte v34, v33, s[76:79], s2 offen sc1'); vq.push('flag')
        a('s_mov_b64 exec, -1')
        npre = 8*opt.get('kvpre2', 1)
        for g in rest0[:npre]: KV.emit_group(g)
        KV.initial = rest0[npre:]
        a(f's_lshl_b32 s{s_t0}, s{s_h}, 6'); a(f's_lshl_b32 s{s_t1}, s{s_i}, 3'); a(f's_add_u32 s{s_t0}, s{s_t0}, s{s_t1}')
        a(f's_lshl_b32 s{s_t1}, s{s_w}, 1'); a(f's_add_u32 s{s_t0}, s{s_t0}, s{s_t1}'); a(f's_lshl_b32 s{s_t0}, s{s_t0}, 13')
        for k in range(4):
            a(f's_add_u32 s{50+k}, s{s_t0}, {k*4096}')
            a(f's_add_u32 s{96+k}, s{s_t0}, {16*MB + k*4096}')
        STF.st = opt.get('kvst', '')
        KG = frag_store_groups(P, 'K', 'v', S_O, 50, None, v_scale=2, tag='kst')
        VGs = frag_store_groups(P, 'V', 'a', S_O, 96, 40, tag='vst')
        STF.st = st_save
        nv = opt.get('vstages', 3); sigt = opt.get('sigt', nv+1)
        perV = len(VGs)//nv
        KV0 = self.kv_groups('K', 6); VV0 = self.kv_groups('V', 4)
        zero = [([f'v_accvgpr_write_b32 a{4*k+e}, 0' for e in range(4)], None) for k in range(32)]
        srds = self.kv_srd_lines()
        dbg = Asm(); make_srd(dbg, 76, 100, 0, 256)
        one = lambda val, lab: [f's_cmp_eq_u32 s{s_w}, 0', f's_cbranch_scc0 {N}_{lab}']
        idld = dbg.lines + [f's_cmp_eq_u32 s{s_w}, 0', f's_cbranch_scc0 {N}_noid',
               f'v_lshlrev_b32 v57, 1, v{V_L16}', f's_lshr_b32 s{s_t1}, s{s_h}, 2', f's_and_b32 s32, s{s_h}, 3', 's_lshl_b32 s32, s32, 3', f's_add_u32 s32, s32, s{s_t1}',
               'buffer_load_ubyte v56, v57, s[76:79], s32 offen sc1', f'{N}_noid:']
        lnsig = dbg.lines + ['s_or_b32 s32, s33, 0x40', 'v_mov_b32 v58, 0', 'v_mov_b32 v59, s32', f's_cmp_eq_u32 s{s_w}, 0', 's_cselect_b64 exec, 1, 0',
               f'buffer_store_byte v59, v58, s[76:79], s2 offen sc1', 's_mov_b64 exec, -1']
        sig = [f's_cmp_eq_u32 s{s_w}, 0', f's_cbranch_scc0 {N}_nosig',
               'v_and_b32 v56, 0x1f, v56', 'v_cmp_ne_u32 vcc, s33, v56', 's_nop 3', 's_and_b32 s32, vcc_lo, 0xff', 's_cmp_eq_u32 s32, 0',
               f's_cbranch_scc1 {N}_samexcd', 'buffer_wbl2 sc1', 's_waitcnt vmcnt(0)', f'{N}_samexcd:',
               's_or_b32 s32, s33, 0xc0', 'v_mov_b32 v41, 0', 'v_mov_b32 v42, s32', 's_mov_b64 exec, 1',
               f'buffer_store_byte v42, v41, s[76:79], s2 offen sc1', 's_mov_b64 exec, -1', f'{N}_nosig:']
        pollpre = [f's_cmp_eq_u32 s{s_w}, 0', f's_cbranch_scc0 {N}_nopoll0',
                   f's_lshr_b32 s{s_t1}, s{s_h}, 4', f's_and_b32 s32, s{s_h}, 3', 's_lshl_b32 s32, s32, 1', f's_add_u32 s{s_t1}, s{s_t1}, s32',
                   f's_lshr_b32 s32, s{s_h}, 2', 's_and_b32 s32, s32, 3', 's_lshl_b32 s32, s32, 3', 's_lshl_b32 s32, 0x80, s32', 's_or_b32 s32, s32, 0x40404040',
                   f'v_lshrrev_b32 v42, 2, v{V_L16}', f'v_bfe_u32 v44, v{V_L16}, 4, 3', f'v_cmp_eq_u32 vcc, s{s_t1}, v44', 'v_mov_b32 v43, 0x40404040', 'v_mov_b32 v45, s32',
                   'v_cndmask_b32 v43, v43, v45, vcc',
                   f'buffer_load_dword v41, v42, s[76:79], 0 offen sc1', f'{N}_nopoll0:']
        initQ = [f's_lshl_b32 s{P.s_a0}, s36, 15', f's_lshl_b32 s{P.s_a1}, s37, 15',
                 f's_lshl_b32 s{P.s_wo}, s{s_w}, 17', f's_lshl_b32 s49, s{s_h}, 8', f's_add_u32 s{P.s_wo}, s{P.s_wo}, s49']
        qpass = [dict(swap=False, srdA=S_X, srdW=S_WQ, init=initQ, epi=lambda: None, acck='v')]
        Q0 = P.dma_stage(S_X, S_WQ, (0, 0), pre=initQ); Q1 = P.dma_stage(S_X, S_WQ, (0, 1)); Q2 = P.dma_stage(S_X, S_WQ, (0, 2))
        def touch(lines): return (lines, 'pf')
        pfw = [f'v_lshrrev_b32 v58, 5, v{V_L16}', 'v_lshlrev_b32 v58, 13, v58', f'v_bfe_u32 v59, v{V_L16}, 4, 1', 'v_lshl_add_u32 v58, v59, 7, v58',
               f's_and_b32 s32, s{s_w}, 1', 's_lshl_b32 s32, s32, 5', f's_lshl_b32 s49, s{s_i}, 6', 's_add_u32 s32, s32, s49', 's_lshl_b32 s32, s32, 13',
               f's_lshl_b32 s49, s{s_h}, 8', 's_add_u32 s32, s32, s49', f'buffer_load_dword v253, v58, s[{S_WQ}:{S_WQ+3}], s32 offen']
        def pfx(qt): return [f'v_lshrrev_b32 v58, 7, v{V_L16}', 'v_lshlrev_b32 v58, 10, v58', f'v_bfe_u32 v59, v{V_L16}, 4, 3', 'v_lshl_add_u32 v58, v59, 7, v58',
               f's_lshl_b32 s32, s{qt}, 5', f's_and_b32 s49, s{s_h}, 3', 's_lshl_b32 s49, s49, 3', 's_add_u32 s32, s32, s49', 's_lshl_b32 s32, s32, 10',
               f'buffer_load_dword v253, v58, s[{S_X}:{S_X+3}], s32 offen']
        def kvx(t):
            early, late = [], []
            if opt.get('pfq', True):
                if t == 7: early += [touch(pfw)]
                if t == 8: early += [touch(pfx(36))]
                if t == 9: early += [touch(pfx(37))]
            if 1 <= t <= 6: early += setupG[(t-1)*perS:t*perS]
            if t == opt.get('lnsig_t', 4): late += [(lnsig, 'flag')]
            if t == 13: late += Q0[:4]
            if t == 14: early += Q0[4:]; late += Q1[:4]
            if t == 15: early += Q1[4:]; late += Q2[:3]
            return early, late
        def handover():
            return (0, 0), P.read_addr_update(), P.kstep_reads(0, 0)
        KV.start()
        self.stamp()
        KV.run(kvx, handover)
        P.lq = list(KV.lq); P.g_pending = Q2[3:]
        self.stamp()
        a('s_nop 7')
        for g in KG: P.emit_group(g)
        self.stamp()
        def xe(p, t):
            g = []
            if t < nv: g += VGs[t*perV:(t+1)*perV] + ([(idld, None)] if t == 0 else [])
            if t == nv: g += zero[:16]
            if t == nv+1: g += zero[16:]
            if t == 6: g += [(srds, None)]
            if t == 7: g += [(pollpre, None)]
            return g
        def xl(p, t):
            return [(sig, None)] if t == sigt else []
        assert sigt >= nv + 1 and sigt <= 6 and 48 % nv == 0
        P.run(qpass, extra_early=xe, extra_late=xl)
        self.stamp()
        chk = ['s_waitcnt vmcnt(0)', 'v_and_b32 v41, v43, v41', 'v_cmp_ne_u32 vcc, v43, v41', 's_nop 3', 's_cmp_eq_u64 vcc, 0']
        for l in [f's_cmp_eq_u32 s{s_w}, 0', f's_cbranch_scc0 {N}_polled', f's_mov_b32 s{s_cnt}, 0', f'{N}_poll:'] + chk + \
                 [f's_cbranch_scc1 {N}_polled', f's_add_u32 s{s_cnt}, s{s_cnt}, 1', f's_cmp_ge_u32 s{s_cnt}, 0x20000', f's_cbranch_scc1 {N}_polled',
                  f's_sleep {opt.get("sleep", 8)}', f'buffer_load_dword v41, v42, s[76:79], 0 offen sc1', f's_branch {N}_poll', f'{N}_polled:']: a(l)
        a('s_barrier')
        for g in KV0 + VV0:
            for l in g[0]: a(l)
        self.stamp()
        self.q_to_frags()
        return M
```

```python
from asmlib import *
from layout import *

MF = 'v_mfma_f32_32x32x16_bf16'
def v(b, n=1): return f'v{b}' if n == 1 else f'v[{b}:{b+n-1}]'

class ProjRegs:
    ACC = 64
    FB = [192, 216]
    V_AR = 8
    V_WR = 12
    V_AB = 16
    V_WB = 20
    V_AD = 24
    V_WD = 28
    V_L16 = 32
    V_T = 33
R = ProjRegs

W_LDS = lambda s: s*16384
A_LDS = lambda s: 49152 + s*32768

class Proj:
    def __init__(self, a, name, s_w=20, stamps=None):
        self.a = a; self.name = name; self.st = stamps or (lambda n='': None)
        self.s_w = s_w
        self.s_a0, self.s_a1, self.s_wo = 40, 41, 42
        self.s_dam, self.s_dwm = 43, 44
        self.s_ra, self.s_rw = 45, 46
        self.s_cnt = 47; self.s_t = 48; self.s_t1 = 49
        self.uid = 0

    def setup_addrs(self):
        a = self.a
        T = R.V_T
        a(f'v_and_b32 v{T}, 63, v0')
        a(f'v_lshlrev_b32 v{R.V_L16}, 4, v{T}')
        a(f'v_and_b32 v{T+1}, 31, v{T}')
        a(f'v_lshrrev_b32 v{T+2}, 5, v{T}')
        a(f'v_bfe_u32 v{T+3}, v{T+1}, 1, 3')
        a(f'v_xor_b32 v{T+3}, v{T+3}, v{T+2}')
        a(f'v_lshlrev_b32 v{T+3}, 4, v{T+3}')
        a(f'v_lshl_add_u32 v{R.V_AB}, v{T+1}, 7, v{T+3}')
        for ks in range(1, 4):
            a(f'v_xor_b32 v{R.V_AB+ks}, {ks << 5}, v{R.V_AB}')
        a(f'v_bfe_u32 v{T+3}, v{T}, 2, 2')
        a(f'v_lshl_add_u32 v{T+4}, v{T+2}, 3, v{T+3}')
        a(f'v_lshlrev_b32 v{T+4}, 8, v{T+4}')
        a(f'v_bfe_u32 v{T+5}, v{T}, 4, 1')
        a(f'v_lshl_add_u32 v{T+4}, v{T+5}, 5, v{T+4}')
        a(f'v_and_b32 v{T+5}, 3, v{T}')
        a(f'v_lshl_add_u32 v{T+4}, v{T+5}, 3, v{T+4}')
        for dt in range(4):
            a(f'v_xor_b32 v{T+5}, {dt}, v{T+3}')
            a(f'v_lshl_add_u32 v{R.V_WB+dt}, v{T+5}, 6, v{T+4}')
        a(f'v_lshrrev_b32 v{T+3}, 3, v{T}')
        a(f'v_and_b32 v{T+4}, 7, v{T}')
        a(f'v_lshrrev_b32 v{T+5}, 1, v{T+3}')
        for j in range(4):
            a(f'v_xor_b32 v{T+6}, v{T+4}, v{T+5}')
            if j & 1: a(f'v_xor_b32 v{T+6}, 4, v{T+6}')
            a(f'v_lshlrev_b32 v{T+6}, 4, v{T+6}')
            a(f'v_lshl_add_u32 v{T+6}, v{T+3}, 10, v{T+6}')
            a(f'v_add_u32 v{R.V_AD+j}, {j*(8192-1024)}, v{T+6}')
        a(f'v_lshrrev_b32 v{T+3}, 4, v{T}')
        a(f'v_bfe_u32 v{T+4}, v{T}, 2, 2')
        a(f'v_xor_b32 v{T+4}, v{T+4}, v{T+3}')
        a(f'v_lshlrev_b32 v{T+4}, 6, v{T+4}')
        a(f'v_and_b32 v{T+5}, 3, v{T}')
        a(f'v_lshl_add_u32 v{T+4}, v{T+5}, 4, v{T+4}')
        a(f'v_lshl_add_u32 v{T+4}, v{T+3}, 13, v{T+4}')
        for j in range(4):
            a(f'v_add_u32 v{R.V_WD+j}, {j*(32768-1024)}, v{T+4}')

    def dma_stage(self, srdA, srdW):
        g = []
        def ld(vo, srd_, so, off): return f'buffer_load_dwordx4 v{vo}, s[{srd_}:{srd_+3}], s{so} offen' + (f' offset:{off}' if off else '') + ' lds'
        for j in range(4):
            l = []
            if j == 0: l += [f's_mov_b32 m0, s{self.s_dwm}', 's_nop 0']
            l.append(ld(R.V_WD+j, srdW, self.s_wo, j*1024))
            if j == 3: l.append(f's_add_u32 s{self.s_wo}, s{self.s_wo}, {64*8192}')
            g.append(l)
        for t, so in ((0, self.s_a0), (1, self.s_a1)):
            for j in range(4):
                l = []
                if j == 0:
                    l += [f's_add_u32 m0, s{self.s_dam}, {t*4096}', 's_nop 0'] if t else [f's_mov_b32 m0, s{self.s_dam}', 's_nop 0']
                l.append(ld(R.V_AD+j, srdA, so, j*1024))
                if j == 3: l.append(f's_add_u32 s{so}, s{so}, 128')
                g.append(l)
        g[-1] += self.adv_slot(self.s_dam, self.s_dwm)
        return g

    def adv_slot(self, sa, sw):
        t = self.s_t
        return [f's_add_u32 s{sw}, s{sw}, 16384', f's_cmp_ge_u32 s{sw}, 49152', f's_cselect_b32 s{t}, 49152, 0', f's_sub_u32 s{sw}, s{sw}, s{t}',
                f's_add_u32 s{sa}, s{sa}, 32768', f's_lshl_b32 s{t}, s{t}, 1', f's_sub_u32 s{sa}, s{sa}, s{t}']

    def init_stream(self):
        a = self.a; w = self.s_w
        a(f's_lshl_b32 s{self.s_dwm}, s{w}, 12')
        a(f's_lshl_b32 s{self.s_dam}, s{w}, 13')
        a(f's_add_u32 s{self.s_dam}, s{self.s_dam}, 49152')
        a(f's_mov_b32 s{self.s_rw}, 0')
        a(f's_mov_b32 s{self.s_ra}, s{self.s_dam}')

    def read_addr_update(self):
        l = []
        for k in range(4):
            l.append(f'v_add_u32 v{R.V_AR+k}, s{self.s_ra}, v{R.V_AB+k}')
            l.append(f'v_add_u32 v{R.V_WR+k}, s{self.s_rw}, v{R.V_WB+k}')
        t = self.s_t1
        l += [f's_add_u32 s{self.s_rw}, s{self.s_rw}, 16384', f's_cmp_ge_u32 s{self.s_rw}, 49152', f's_cselect_b32 s{t}, 49152, 0', f's_sub_u32 s{self.s_rw}, s{self.s_rw}, s{t}',
              f's_add_u32 s{self.s_ra}, s{self.s_ra}, 32768', f's_lshl_b32 s{t}, s{t}, 1', f's_sub_u32 s{self.s_ra}, s{self.s_ra}, s{t}']
        return l

    def kstep_reads(self, ks, buf):
        F = R.FB[buf]
        l = []
        def act(t): return [f'ds_read_b128 {v(F+16+4*t,4)}, v{R.V_AR+ks} offset:{t*4096}']
        def wf(dt): return [f'ds_read_b64_tr_b16 {v(F+4*dt,2)}, v{R.V_WR+dt} offset:{ks*4096}',
                            f'ds_read_b64_tr_b16 {v(F+4*dt+2,2)}, v{R.V_WR+dt} offset:{ks*4096+1024}']
        return act(0) + wf(0) + wf(1) + act(1) + wf(2) + wf(3)

    def kstep_mfmas(self, buf, swap, first):
        F = R.FB[buf]
        l = []
        for dt in range(4):
            for st in range(2):
                acc = v(R.ACC + 16*(4*st+dt), 16)
                W = v(F+4*dt, 4); A = v(F+16+4*st, 4)
                c = '0' if first else acc
                l.append(f'{MF} {acc}, {A}, {W}, {c}' if swap else f'{MF} {acc}, {W}, {A}, {c}')
        return l

    def stage(self, swap, first, carry, fresh, last=False, vm=12, pre_fresh=None):
        a = self.a
        self.st('stage')
        carry = list(carry or []); fresh = list(fresh or [])
        cslot = {}
        for k in range(len(carry)):
            cslot.setdefault(int(2 + k*(22.0/max(1, len(carry)))), []).append(carry[k])
        for ks in range(4):
            buf = ks & 1
            a('s_waitcnt lgkmcnt(0)')
            pre = []
            if ks == 3 and not last:
                a(f's_waitcnt vmcnt({vm})')
                a('s_barrier')
                pre = self.read_addr_update()
            mf = self.kstep_mfmas(buf, swap, first and ks == 0)
            if ks < 3: rd = self.kstep_reads(ks+1, buf ^ 1)
            elif not last: rd = self.kstep_reads(0, buf ^ 1)
            else: rd = []
            for k, m in enumerate(mf):
                a(m)
                if k == 0:
                    for l in pre[:8]: a(l)
                    for l in rd[0:2]: a(l)
                elif k < 5:
                    for l in rd[2*k:2*k+2]: a(l)
                    if k == 1:
                        for l in pre[8:]: a(l)
                if ks < 3:
                    for grp in cslot.get(8*ks+k, []):
                        for l in grp: a(l)
                elif k >= 5 and fresh:
                    if k == 5 and pre_fresh:
                        for l in pre_fresh: a(l)
                    for l in fresh.pop(0): a(l)
        assert not fresh

    def lead(self):
        a = self.a
        for l in self.read_addr_update(): a(l)
        for l in self.kstep_reads(0, 0): a(l)

    def epilogue_store(self, kind, srd, s_off, v_scale=None):
        a = self.a
        a('s_nop 7')
        for k in range(4):
            a(f's_add_u32 s{50+k}, s{s_off}, {k*4096}')
        a('s_nop 3')
        for st in range(2):
            for dt in range(4):
                A = R.ACC + 16*(4*st+dt)
                for t in range(2):
                    b = A + 8*t
                    if v_scale is not None:
                        for e in range(0, 8, 2):
                            a(f'v_pk_mul_f32 v[{b+e}:{b+e+1}], v[{b+e}:{b+e+1}], v[{v_scale}:{v_scale+1}]')
                    for k in range(4):
                        a(f'v_cvt_pk_bf16_f32 v{b+k}, v{b+2*k}, v{b+2*k+1}')
                    f = (4*t+dt) if kind == 'V' else (2*dt+t)
                    so = 50 + 2*st + (f >> 2)
                    a(f'buffer_store_dwordx4 v[{b}:{b+3}], v{R.V_L16}, s[{srd}:{srd+3}], s{so} offen offset:{(f & 3)*1024}')

    def run_passes(self, passes, init_stream_fns, extra_after_prologue=None, n_extra_vm=0):
        a = self.a
        np_ = len(passes)
        def groups(p): return self.dma_stage(passes[p]['srdA'], passes[p]['srdW'])
        self.init_stream()
        for l in init_stream_fns[0]: a(l)
        if passes[0].get('pre'): passes[0]['pre']()
        for t in range(2):
            for g in groups(0):
                for l in g: a(l)
        g2 = groups(0)
        for g in g2[:3]:
            for l in g: a(l)
        if extra_after_prologue: extra_after_prologue()
        a(f's_waitcnt vmcnt({15 + n_extra_vm})')
        a('s_barrier')
        self.lead()
        for p, ps in enumerate(passes):
            nxt = p+1 if p+1 < np_ else None
            G = groups(p)
            own_c, own_f = G[3:], G[:3]
            if nxt is not None:
                GN = groups(nxt); nc, nf = GN[3:], GN[:3]
            sw = ps['swap']
            self.stage(sw, True, own_c, own_f, vm=(12 if p == 0 else 28))
            if getattr(self.st, 'on', False):
                for _ in range(4): self.stage(sw, False, own_c, own_f)
            else:
                a(f's_mov_b32 s{self.s_cnt}, 4')
                self.uid += 1
                lab = f'{self.name}_loop{self.uid}'
                a('.p2align 6')
                a.label(lab)
                self.stage(sw, False, own_c, own_f)
                a(f's_sub_u32 s{self.s_cnt}, s{self.s_cnt}, 1')
                a(f's_cmp_lg_u32 s{self.s_cnt}, 0')
                a(f's_cbranch_scc1 {lab}')
            if nxt is not None:
                self.stage(sw, False, own_c, nf, pre_fresh=init_stream_fns[nxt])
                self.stage(sw, False, nc, nf)
                self.stage(sw, False, nc, nf)
            else:
                self.stage(sw, False, own_c, None)
                self.stage(sw, False, None, None, vm=0)
                self.stage(sw, False, None, None, last=True)
            self.st('epi')
            ps['epi']()

def allreduce(a, regs, tmp):
    for ctl in ('quad_perm:[1,0,3,2]', 'quad_perm:[2,3,0,1]', 'row_half_mirror', 'row_mirror'):
        a('s_nop 1')
        for r in regs:
            a(f'v_add_f32_dpp v{r}, v{r}, v{r} {ctl} row_mask:0xf bank_mask:0xf')
    for op in ('v_permlane16_swap_b32', 'v_permlane32_swap_b32'):
        for k, r in enumerate(regs): a(f'v_mov_b32 v{tmp+k}, v{r}')
        a('s_nop 1')
        for k, r in enumerate(regs): a(f'{op} v{tmp+k}, v{r}')
        a('s_nop 1')
        for k, r in enumerate(regs): a(f'v_add_f32 v{r}, v{r}, v{tmp+k}')

def emit_ln_loads(a, S_BX, S_AX, S_GW, s_row, base):
    a(f'buffer_load_dwordx4 {v(base,4)}, v{R.V_L16}, s[{S_AX}:{S_AX+3}], s{s_row} offen')
    a(f'buffer_load_dwordx4 {v(base+4,4)}, v{R.V_L16}, s[{S_AX}:{S_AX+3}], s{s_row} offen offset:1024')
    a(f'buffer_load_dwordx4 {v(base+16,4)}, v{R.V_L16}, s[{S_GW}:{S_GW+3}], 0 offen')

def unpack8(a, src, dst):
    for k in range(4):
        a(f'v_lshlrev_b32 v{dst+2*k}, 16, v{src+k}')
        a(f'v_and_b32 v{dst+2*k+1}, 0xffff0000, v{src+k}')

def emit_ln_compute(a, base, S_H, S_G, s_row, s_rowg, X, gw=None, sm=None, tmp=None):
    xb = [X, X+8]
    gw = X+32 if gw is None else gw; sm = X+40 if sm is None else sm; tmp = X+44 if tmp is None else tmp
    unpack8(a, base, xb[0]); unpack8(a, base+4, xb[1]); unpack8(a, base+16, gw)
    xa = xb
    for r in range(2):
        a(f'v_add_f32 v{sm+r}, v{xb[r]}, v{xb[r]+1}')
        for e in range(2, 8): a(f'v_add_f32 v{sm+r}, v{sm+r}, v{xb[r]+e}')
        a(f'v_mul_f32 v{sm+2+r}, v{xa[r]}, v{gw}')
        for e in range(1, 8): a(f'v_fmac_f32 v{sm+2+r}, v{xa[r]+e}, v{gw+e}')
    allreduce(a, [sm, sm+1, sm+2, sm+3], tmp)
    for r in range(2):
        a(f'v_mul_f32 v{sm+r}, {hex(0x3b000000)}, v{sm+r}')
        for e in range(8): a(f'v_sub_f32 v{xb[r]+e}, v{xb[r]+e}, v{sm+r}')
    for r in range(2):
        a(f'v_mul_f32 v{sm+2+r}, 0xbfb8aa3b, v{sm+2+r}')
    for r in range(2): a(f'v_exp_f32 v{sm+2+r}, v{sm+2+r}')
    a('s_nop 0')
    for r in range(2): a(f'v_add_f32 v{sm+2+r}, 1.0, v{sm+2+r}')
    for r in range(2): a(f'v_rcp_f32 v{sm+2+r}, v{sm+2+r}')
    for r in range(2):
        a(f'v_mul_f32 v{sm+r}, v{xb[r]}, v{xb[r]}')
        for e in range(1, 8): a(f'v_fmac_f32 v{sm+r}, v{xb[r]+e}, v{xb[r]+e}')
    allreduce(a, [sm, sm+1], tmp)
    for r in range(2):
        a(f'v_mov_b32 v{tmp+2}, 0x3727c5ac')
        a(f'v_fmac_f32 v{tmp+2}, {hex(0x3b000000)}, v{sm+r}')
        a(f'v_rsq_f32 v{sm+r}, v{tmp+2}')
        a('s_nop 0')
        for e in range(8): a(f'v_mul_f32 v{xb[r]+e}, v{xb[r]+e}, v{sm+r}')
        for k in range(4): a(f'v_cvt_pk_bf16_f32 v{xb[r]+k}, v{xb[r]+2*k}, v{xb[r]+2*k+1}')
        a(f'buffer_store_dwordx4 {v(xb[r],4)}, v{R.V_L16}, s[{S_H}:{S_H+3}], s{s_row} offen' + (' offset:1024' if r else '') + STF.st)
    a(f'v_and_b32 v{tmp+2}, 63, v0')
    a(f'v_cmp_eq_u32 vcc, 1, v{tmp+2}')
    a(f'v_lshlrev_b32 v{tmp+3}, 2, v{tmp+2}')
    a('s_nop 0')
    a(f'v_cndmask_b32 v{sm+2}, v{sm+2}, v{sm+3}, vcc')
    a(f'v_cmp_gt_u32 vcc, 2, v{tmp+2}')
    a('s_and_saveexec_b64 s[54:55], vcc')
    a(f'buffer_store_dword v{sm+2}, v{tmp+3}, s[{S_G}:{S_G+3}], s{s_rowg} offen' + STF.st)
    a('s_mov_b64 exec, s[54:55]')

def make_srd(a, s, ptr, off, nbytes):
    if off:
        a(f's_add_u32 s{s}, s{ptr}, {off}')
        a(f's_addc_u32 s{s+1}, s{ptr+1}, 0')
        a(f's_and_b32 s{s+1}, s{s+1}, 0xffff')
    else:
        a(f's_mov_b32 s{s}, s{ptr}')
        a(f's_and_b32 s{s+1}, s{ptr+1}, 0xffff')
    a(f's_mov_b32 s{s+2}, {nbytes}')
    a(f's_mov_b32 s{s+3}, 0x20000')

def emit_l1(a, N='l1', passes=('Q', 'K', 'V'), **opt):
    S_X, S_C, S_WQ, S_WK, S_WV, S_O, S_H, S_G, S_BX, S_GW = 4, 8, 12, 16, 24, 28, 32, 36, 56, 60
    s_w, s_h, s_r = 20, 21, 22
    a('s_cmp_ge_u32 s2, 256')
    a(f's_cbranch_scc1 {N}_end')
    a(f's_load_dwordx4 s[64:67], s[0:1], {KA_AX}')
    a(f's_load_dwordx4 s[68:71], s[0:1], {KA_WQ}')
    a(f's_load_dwordx2 s[72:73], s[0:1], {KA_WUV}')
    a(f's_load_dwordx2 s[76:77], s[0:1], {KA_GW}')
    a(f's_load_dwordx2 s[78:79], s[0:1], {KA_WS}')
    a('v_lshrrev_b32 v1, 6, v0')
    a('s_and_b32 s23, s2, 7')
    a(f'v_readfirstlane_b32 s{s_w}, v1')
    a('s_lshr_b32 s48, s2, 3')
    a(f's_lshl_b32 s{s_h}, s23, 2')
    a('s_and_b32 s23, s48, 3')
    a(f's_add_u32 s{s_h}, s{s_h}, s23')
    a(f's_lshr_b32 s{s_r}, s48, 2')
    st_ = Stamps(a, opt.get('diag'))
    st_('start')
    P = Proj(a, N, s_w, st_)
    P.setup_addrs()
    a('s_waitcnt lgkmcnt(0)')
    make_srd(a, S_X, 64, 0, 2*MB); make_srd(a, S_C, 66, 0, 2*MB)
    make_srd(a, S_WQ, 68, 0, 4*MB); make_srd(a, S_WK, 70, 0, 4*MB); make_srd(a, S_WV, 72, 0, 4*MB)
    make_srd(a, S_O, 78, 0, 48*MB)
    make_srd(a, S_H, 78, WS_H, 2*MB); make_srd(a, S_G, 78, WS_G, 8192)
    make_srd(a, S_GW, 76, 0, 1024)
    a(f's_lshl_b32 s80, s2, 3'); a(f's_lshl_b32 s81, s{s_w}, 1'); a('s_add_u32 s80, s80, s81')
    a('s_lshl_b32 s81, s80, 2')
    a('s_lshl_b32 s80, s80, 10')
    emit_ln_loads(a, S_BX, S_X, S_GW, 80, 192)
    c = 0x3e0293ee
    a(f'v_mov_b32 v2, {hex(c)}'); a(f'v_mov_b32 v3, {hex(c)}')
    def init(p):
        return [f's_lshl_b32 s{P.s_a0}, s{s_r}, 18', f's_lshl_b32 s{P.s_t}, s{s_w}, 16', f's_add_u32 s{P.s_a0}, s{P.s_a0}, s{P.s_t}',
                f's_add_u32 s{P.s_a1}, s{P.s_a0}, 32768',
                f's_lshl_b32 s{P.s_wo}, s{s_w}, 17', f's_lshl_b32 s{P.s_t}, s{s_h}, 8', f's_add_u32 s{P.s_wo}, s{P.s_wo}, s{P.s_t}']
    a(f's_lshl_b32 s82, s{s_h}, 6'); a(f's_lshl_b32 s83, s{s_r}, 3'); a('s_add_u32 s82, s82, s83')
    a(f's_lshl_b32 s83, s{s_w}, 1'); a('s_add_u32 s82, s82, s83'); a('s_lshl_b32 s82, s82, 13')
    a(f's_add_u32 s83, s82, {WS_K}'); a(f's_add_u32 s84, s82, {WS_V}')
    cfg = {'Q': dict(swap=False, srdA=S_X, srdW=S_WQ, epi=lambda: P.epilogue_store('Q', S_O, 82)),
           'K': dict(swap=False, srdA=S_C, srdW=S_WK, epi=lambda: P.epilogue_store('K', S_O, 83, v_scale=2)),
           'V': dict(swap=True, srdA=S_C, srdW=S_WV, epi=lambda: P.epilogue_store('V', S_O, 84))}
    ps = [cfg[p] for p in passes]
    def ln():
        a('s_waitcnt vmcnt(27)')
        emit_ln_compute(a, 192, S_H, S_G, 80, 81, 64)
    P.run_passes(ps, [init(p) for p in range(len(ps))], extra_after_prologue=ln, n_extra_vm=3)
    st_('stores')
    a('s_waitcnt vmcnt(0)')
    st_('end')
    st_.dump(100*MB, s_w, 250)
    a.label(f'{N}_end')
    a('s_endpgm')
```

```python
from asmlib import *
from layout import *

MF = 'v_mfma_f32_32x32x16_bf16'
def v(b, n=1): return f'v{b}' if n == 1 else f'v[{b}:{b+n-1}]'
def ar(b, n=1): return f'a{b}' if n == 1 else f'a[{b}:{b+n-1}]'
SLOT = 49152

class VmQueue:
    def __init__(self): self.q = []
    def push(self, tag): self.q.append(tag)
    def count_for(self, tag):
        idx = [i for i, t in enumerate(self.q) if t == tag]
        if not idx: return None
        return len(self.q) - 1 - idx[-1]
    def wait_for(self, a, tag):
        n = self.count_for(tag)
        if n is None: return
        assert n <= 63
        a(f's_waitcnt vmcnt({n})')
        self.q = self.q[len(self.q)-n:] if n else []

class Proj:
    def __init__(self, a, vq, s_w, ring_lo, ring_start, ACC=64, FB=(0, 24), fbk='a', VA=8, V_L16=32, VT=33, SG=40, stamps=None, wflags='', opt=None):
        self.a, self.vq, self.s_w = a, vq, s_w
        self.lo, self.start, self.hi = ring_lo, ring_start, ring_lo + 3*SLOT
        self.ACC, self.FB = ACC, FB
        self.fr = ar if fbk == 'a' else v
        self.V_AR, self.V_WR, self.V_AB, self.V_WB, self.V_AD, self.V_WD = VA, VA+4, VA+8, VA+12, VA+16, VA+20
        self.V_L16, self.VT = V_L16, VT
        (self.s_a0, self.s_a1, self.s_wo, self.s_fill, self.s_rd, self.s_wW, self.s_wA, self.s_t) = range(SG, SG+8)
        self.st = stamps or (lambda n='': None)
        self.wflags = wflags
        self.opt = opt or {}
        self.lq = []

    def setup_addrs(self, set_l16=True):
        a = self.a; T = self.VT; w = self.s_w
        a(f'v_and_b32 v{T}, 63, v0')
        if set_l16: a(f'v_lshlrev_b32 v{self.V_L16}, 4, v{T}')
        a(f's_lshl_b32 s{self.s_wW}, s{w}, 12')
        a(f's_lshl_b32 s{self.s_wA}, s{w}, 13')
        a(f's_add_u32 s{self.s_wA}, s{self.s_wA}, 16384')
        a(f's_mov_b32 s{self.s_fill}, {self.start}')
        a(f's_mov_b32 s{self.s_rd}, {self.start}')
        a(f'v_and_b32 v{T+1}, 31, v{T}')
        a(f'v_lshrrev_b32 v{T+2}, 5, v{T}')
        a(f'v_bfe_u32 v{T+3}, v{T+1}, 1, 3')
        a(f'v_xor_b32 v{T+3}, v{T+3}, v{T+2}')
        a(f'v_lshlrev_b32 v{T+3}, 4, v{T+3}')
        a(f'v_lshl_add_u32 v{T+3}, v{T+1}, 7, v{T+3}')
        a(f'v_add_u32 v{self.V_AB}, s{self.s_wA}, v{T+3}')
        for ks in range(1, 4):
            a(f'v_xor_b32 v{self.V_AB+ks}, {ks << 5}, v{self.V_AB}')
        a(f'v_bfe_u32 v{T+3}, v{T}, 2, 2')
        a(f'v_lshl_add_u32 v{T+4}, v{T+2}, 3, v{T+3}')
        a(f'v_lshlrev_b32 v{T+4}, 8, v{T+4}')
        a(f'v_bfe_u32 v{T+5}, v{T}, 4, 1')
        a(f'v_lshl_add_u32 v{T+4}, v{T+5}, 5, v{T+4}')
        a(f'v_and_b32 v{T+5}, 3, v{T}')
        a(f'v_lshl_add_u32 v{T+4}, v{T+5}, 3, v{T+4}')
        for dt in range(4):
            a(f'v_xor_b32 v{T+5}, {dt}, v{T+3}')
            a(f'v_lshl_add_u32 v{self.V_WB+dt}, v{T+5}, 6, v{T+4}')
        a(f'v_lshrrev_b32 v{T+3}, 3, v{T}')
        a(f'v_and_b32 v{T+4}, 7, v{T}')
        a(f'v_lshrrev_b32 v{T+5}, 1, v{T+3}')
        for j in range(4):
            a(f'v_xor_b32 v{T+6}, v{T+4}, v{T+5}')
            if j & 1: a(f'v_xor_b32 v{T+6}, 4, v{T+6}')
            a(f'v_lshlrev_b32 v{T+6}, 4, v{T+6}')
            a(f'v_lshl_add_u32 v{T+6}, v{T+3}, 10, v{T+6}')
            a(f'v_add_u32 v{self.V_AD+j}, {j*(8192-1024)}, v{T+6}')
        a(f'v_lshrrev_b32 v{T+3}, 4, v{T}')
        a(f'v_bfe_u32 v{T+4}, v{T}, 2, 2')
        a(f'v_xor_b32 v{T+4}, v{T+4}, v{T+3}')
        a(f'v_lshlrev_b32 v{T+4}, 6, v{T+4}')
        a(f'v_and_b32 v{T+5}, 3, v{T}')
        a(f'v_lshl_add_u32 v{T+4}, v{T+5}, 4, v{T+4}')
        a(f'v_lshl_add_u32 v{T+4}, v{T+3}, 13, v{T+4}')
        for j in range(4):
            a(f'v_add_u32 v{self.V_WD+j}, {j*(32768-1024)}, v{T+4}')

    def adv(self, s):
        return [f's_add_u32 s{s}, s{s}, {SLOT}', f's_cmp_ge_u32 s{s}, {self.hi}', f's_cselect_b32 s{s}, {self.lo}, s{s}']

    def dma_stage(self, srdA, srdW, tag, pre=None):
        g = []
        def ld(vo, srd_, so, off, fl=''): return f'buffer_load_dwordx4 v{vo}, s[{srd_}:{srd_+3}], s{so} offen' + (f' offset:{off}' if off else '') + fl + ' lds'
        for j in range(4):
            l = []
            if j == 0: l += list(pre or []) + [f's_add_u32 m0, s{self.s_fill}, s{self.s_wW}', 's_nop 0']
            l.append(ld(self.V_WD+j, srdW, self.s_wo, j*1024, self.wflags))
            if j == 3: l.append(f's_add_u32 s{self.s_wo}, s{self.s_wo}, {64*8192}')
            g.append((l, tag))
        for t, so in ((0, self.s_a0), (1, self.s_a1)):
            for j in range(4):
                l = []
                if j == 0:
                    if t == 0: l += [f's_add_u32 s{self.s_t}, s{self.s_fill}, s{self.s_wA}', f's_mov_b32 m0, s{self.s_t}', 's_nop 0']
                    else: l += [f's_add_u32 m0, s{self.s_t}, 4096', 's_nop 0']
                l.append(ld(self.V_AD+j, srdA, so, j*1024))
                if j == 3: l.append(f's_add_u32 s{so}, s{so}, 128')
                g.append((l, tag))
        g[-1][0].extend(self.adv(self.s_fill))
        return g

    def emit_group(self, g):
        lines, tag = g
        if lines and lines[0] == '@wait':
            self.vq.wait_for(self.a, tag); return
        for l in lines: self.a(l)
        if tag is not None and any(l.startswith('buffer_') for l in lines): self.vq.push(tag)

    def read_addr_update(self):
        l = []
        for k in range(4):
            l.append(f'v_add_u32 v{self.V_AR+k}, s{self.s_rd}, v{self.V_AB+k}')
            l.append(f'v_add_u32 v{self.V_WR+k}, s{self.s_rd}, v{self.V_WB+k}')
        return l + self.adv(self.s_rd)

    def kstep_reads(self, ks, buf):
        F = self.FB[buf]; fr = self.fr
        def act(t): return [f'ds_read_b128 {fr(F+16+4*t,4)}, v{self.V_AR+ks} offset:{t*4096}']
        def wf(dt): return [f'ds_read_b64_tr_b16 {fr(F+4*dt,2)}, v{self.V_WR+dt} offset:{ks*4096}',
                            f'ds_read_b64_tr_b16 {fr(F+4*dt+2,2)}, v{self.V_WR+dt} offset:{ks*4096+1024}']
        if self.opt.get('cnt', True):
            return [(l, ('a', buf, 0)) for l in act(0)] + [(l, ('w', buf, 0)) for l in wf(0)] + [(l, ('a', buf, 1)) for l in act(1)] + \
                   [(l, ('w', buf, dt)) for dt in (1, 2, 3) for l in wf(dt)]
        return [(l, None) for l in act(0) + wf(0) + wf(1) + act(1) + wf(2) + wf(3)]

    def kstep_mfmas(self, buf, swap, first, acck='v'):
        F = self.FB[buf]; fr = self.fr
        l = []
        for dt in range(4):
            for st in range(2):
                acc = (v if acck == 'v' else ar)(self.ACC + 16*(4*st+dt), 16)
                W = fr(F+4*dt, 4); A = fr(F+16+4*st, 4)
                c = '0' if first else acc
                l.append(f'{MF} {acc}, {A}, {W}, {c}' if swap else f'{MF} {acc}, {W}, {A}, {c}')
        return l

    def stage(self, swap, first, need_tag, early, late, last=False, acck='v'):
        a = self.a
        if self.opt.get('stagestamps', True): self.st('stage')
        early = list(early or []); late = list(late or [])
        eslot = {}
        for k in range(len(early)):
            eslot.setdefault(int(1 + k*(23.0/len(early))), []).append(early[k])
        lslot = {}
        for k in range(len(late)):
            lslot.setdefault(min(7, 2 + int(k*(6.0/len(late)))), []).append(late[k])
        cnt = self.opt.get('cnt', True)
        def emit_rd(x):
            a(x[0]); self.lq.append(x[1])
        def need(tags):
            idx = max([k for k, t in enumerate(self.lq) if t in tags], default=-1)
            if idx < 0: return
            n = len(self.lq) - 1 - idx
            a(f's_waitcnt lgkmcnt({n})')
            self.lq = self.lq[idx+1:]
        per = self.opt.get('rdper', 2)
        for ks in range(4):
            buf = ks & 1
            pre = []
            if not cnt or (ks == 3 and not last):
                a('s_waitcnt lgkmcnt(0)'); self.lq = []
            if ks == 3 and not last:
                if not self.opt.get('novm'): self.vq.wait_for(a, need_tag)
                for l in (self.prebar(*self.cur) if getattr(self, 'prebar', None) else []): a(l)
                if not self.opt.get('nobar'): a('s_barrier')
                pre = self.read_addr_update()
            mf = self.kstep_mfmas(buf, swap, first and ks == 0, acck)
            if ks < 3: rd = self.kstep_reads(ks+1, buf ^ 1)
            elif not last: rd = self.kstep_reads(0, buf ^ 1)
            else: rd = []
            for k, m in enumerate(mf):
                if cnt: need([('w', buf, k >> 1), ('a', buf, k & 1)])
                a(m)
                if k == 0:
                    for l in pre[:8]: a(l)
                for x in rd[per*k:per*(k+1)]: emit_rd(x)
                if k == 1:
                    for l in pre[8:]: a(l)
                for g in (eslot.get(8*ks+k, []) if ks < 3 else lslot.get(k, [])): self.emit_group(g)

    def prologue(self, p0, after0=None):
        for t in range(2):
            for g in self.dma_stage(p0['srdA'], p0['srdW'], (0, t), pre=(p0['init'] if t == 0 else None)): self.emit_group(g)
            if t == 0 and after0: after0()
        self.g_pending = self.dma_stage(p0['srdA'], p0['srdW'], (0, 2))
        for g in self.g_pending[:3]: self.emit_group(g)
        self.g_pending = self.g_pending[3:]

    def start_compute(self):
        a = self.a
        self.vq.wait_for(a, (0, 0))
        a('s_barrier')
        for l in self.read_addr_update(): a(l)
        self.lq = []
        for x in self.kstep_reads(0, 0):
            a(x[0]); self.lq.append(x[1])

    def run(self, passes, extra_early=None, extra_late=None):
        n = len(passes); total = 8*n
        xe = extra_early or (lambda p, t: []); xl = extra_late or (lambda p, t: [])
        for T in range(total):
            p, t = divmod(T, 8); ps = passes[p]
            early = self.g_pending; self.g_pending = []
            late = []
            T3 = T+3
            if T3 < total:
                p3, t3 = divmod(T3, 8)
                G = self.dma_stage(passes[p3]['srdA'], passes[p3]['srdW'], (p3, t3), pre=(passes[p3]['init'] if t3 == 0 else None))
                late = G[:3]; self.g_pending = G[3:]
            ex = list(xe(p, t)); merged = []
            e0 = list(early)
            tot = len(e0) + len(ex)
            ie = ix = 0
            for k in range(tot):
                if ix < len(ex) and (ie >= len(e0) or ix*len(e0) <= ie*len(ex) - 0.5*len(ex) or not e0): merged.append(ex[ix]); ix += 1
                else: merged.append(e0[ie]); ie += 1
            nxt = divmod(T+1, 8) if T+1 < total else None
            self.cur = (p, t)
            xlate = list(xl(p, t))
            for g in ex + xlate:
                if any('m0' in l for l in g[0]): assert T3 >= total and not (g in ex and e0), 'm0 clobber'
            self.stage(ps['swap'], t == 0, nxt, merged, late + xlate, last=(nxt is None), acck=ps.get('acck', 'v'))
            if t == 7:
                if self.opt.get('stagestamps', True) or p+1 < n: self.st('epi')
                ps['epi']()


from gen_proj import allreduce, unpack8, make_srd
import gen_proj

def emit_ln(a, base, X, V_L16, S_AX, S_GW, S_H, S_G, s_row, s_rowg, vq, part):
    if part == 'load':
        a(f'buffer_load_dwordx4 {v(base,4)}, v{V_L16}, s[{S_AX}:{S_AX+3}], s{s_row} offen'); vq.push('ln')
        a(f'buffer_load_dwordx4 {v(base+4,4)}, v{V_L16}, s[{S_AX}:{S_AX+3}], s{s_row} offen offset:1024'); vq.push('ln')
        a(f'buffer_load_dwordx4 {v(base+16,4)}, v{V_L16}, s[{S_GW}:{S_GW+3}], 0 offen'); vq.push('ln')
    else:
        vq.wait_for(a, 'ln')
        gen_proj.R.V_L16 = V_L16
        gen_proj.emit_ln_compute(a, base, S_H, S_G, s_row, s_rowg, X)
        for _ in range(3): vq.push('lnst')

def frag_store_groups(P, kind, acck, srd, s_offs, tmp, v_scale=None, tag='st'):
    G = []
    k = 0
    for dt in range(4):
        for st in range(2):
            A = P.ACC + 16*(4*st+dt)
            for t in range(2):
                b = A + 8*t
                f = (4*t+dt) if kind == 'V' else (2*dt+t)
                so = s_offs + 2*st + (f >> 2)
                if acck == 'a':
                    T = tmp + 8*(k & 1)
                    G.append(([f'v_accvgpr_read_b32 v{T+e}, a{b+e}' for e in range(4)], None))
                    G.append(([f'v_accvgpr_read_b32 v{T+e}, a{b+e}' for e in range(4, 8)], None))
                else:
                    T = b
                if v_scale is not None:
                    G.append(([f'v_pk_mul_f32 v[{T+e}:{T+e+1}], v[{T+e}:{T+e+1}], v[{v_scale}:{v_scale+1}]' for e in range(0, 8, 2)], None))
                l = [f'v_cvt_pk_bf16_f32 v{T+q}, v{T+2*q}, v{T+2*q+1}' for q in range(4)]
                l.append(f'buffer_store_dwordx4 v[{T}:{T+3}], v{P.V_L16}, s[{srd}:{srd+3}], s{so} offen offset:{(f & 3)*1024}{STF.st}')
                G.append((l, tag))
                k += 1
    return G

def emit_l1(a, N='l1', **opt):
    S_X, S_C, S_WK, S_WV, S_O, S_H, S_G, S_GW = 4, 8, 16, 24, 28, 32, 36, 60
    s_w, s_h, s_r = 20, 21, 22
    st_ = Stamps(a, opt.get('diag'))
    a('s_cmp_ge_u32 s2, 256')
    a(f's_cbranch_scc1 {N}_end')
    a(f's_load_dwordx4 s[64:67], s[0:1], {KA_AX}')
    a(f's_load_dwordx4 s[68:71], s[0:1], {KA_WUK}')
    a(f's_load_dwordx2 s[76:77], s[0:1], {KA_GW}')
    a(f's_load_dwordx2 s[78:79], s[0:1], {KA_WS}')
    a(f's_load_dwordx2 s[88:89], s[0:1], {KA_WQ}')
    a('v_lshrrev_b32 v1, 6, v0')
    a('s_and_b32 s23, s2, 7')
    a(f'v_readfirstlane_b32 s{s_w}, v1')
    a('s_lshr_b32 s48, s2, 3')
    a(f's_lshl_b32 s{s_h}, s23, 2')
    a('s_and_b32 s23, s48, 3')
    a(f's_add_u32 s{s_h}, s{s_h}, s23')
    a(f's_lshr_b32 s{s_r}, s48, 2')
    st_('start')
    vq = VmQueue()
    P = Proj(a, vq, s_w, 0, 0, stamps=st_, wflags=(' nt' if opt.get('nt', True) else ''), opt=opt)
    P.setup_addrs()
    a('s_waitcnt lgkmcnt(0)')
    make_srd(a, S_X, 64, 0, 2*MB); make_srd(a, S_C, 66, 0, 2*MB)
    make_srd(a, S_WK, 68, 0, 4*MB); make_srd(a, S_WV, 70, 0, 4*MB)
    make_srd(a, S_O, 78, WS_K, 32*MB)
    make_srd(a, S_H, 78, WS_H, 2*MB); make_srd(a, S_G, 78, WS_G, 8192)
    make_srd(a, S_GW, 76, 0, 1024)
    a(f's_lshl_b32 s80, s2, 3'); a(f's_lshl_b32 s81, s{s_w}, 1'); a('s_add_u32 s80, s80, s81')
    a('s_lshl_b32 s81, s80, 2')
    a('s_lshl_b32 s80, s80, 10')
    lnend = opt.get('lnend', False)
    if not lnend: emit_ln(a, 192, 64, P.V_L16, S_X, S_GW, S_H, S_G, 80, 81, vq, 'load')
    c = 0x3e0293ee
    a(f'v_mov_b32 v2, {hex(c)}'); a(f'v_mov_b32 v3, {hex(c)}')
    init = [f's_lshl_b32 s{P.s_a0}, s{s_r}, 18', f's_lshl_b32 s49, s{s_w}, 16', f's_add_u32 s{P.s_a0}, s{P.s_a0}, s49',
            f's_add_u32 s{P.s_a1}, s{P.s_a0}, 32768',
            f's_lshl_b32 s{P.s_wo}, s{s_w}, 17', f's_lshl_b32 s49, s{s_h}, 8', f's_add_u32 s{P.s_wo}, s{P.s_wo}, s49']
    a(f's_lshl_b32 s82, s{s_h}, 6'); a(f's_lshl_b32 s83, s{s_r}, 3'); a('s_add_u32 s82, s82, s83')
    a(f's_lshl_b32 s83, s{s_w}, 1'); a('s_add_u32 s82, s82, s83'); a('s_lshl_b32 s82, s82, 13')
    for k in range(4):
        a(f's_add_u32 s{50+k}, s82, {k*4096}')
        a(f's_add_u32 s{84+k}, s82, {16*MB + k*4096}')
    KG = frag_store_groups(P, 'K', 'a', S_O, 50, 192, v_scale=2)
    per = len(KG)//8
    def vepi():
        a('s_nop 7'); a('s_nop 7')
        for g in frag_store_groups(P, 'V', 'v', S_O, 84, None): P.emit_group(g)
    ps = [dict(swap=False, srdA=S_C, srdW=S_WK, init=init, epi=lambda: None, acck='a'),
          dict(swap=True, srdA=S_C, srdW=S_WV, init=init, epi=vepi, acck='v')]
    P.prologue(ps[0])
    if not lnend: emit_ln(a, 192, 64, P.V_L16, S_X, S_GW, S_H, S_G, 80, 81, vq, 'compute')
    P.start_compute()
    def lnload():
        l = Asm(); q = VmQueue(); emit_ln(l, 216, 64, P.V_L16, S_X, S_GW, S_H, S_G, 80, 81, q, 'load')
        return [([x], 'ln') for x in l.lines]
    def xe(p, t):
        g = list(KG[t*per:(t+1)*per]) if p == 1 else []
        if opt.get('pfq', True) and (p, t) == tuple(opt.get('pfq_at', (1, 2))):
            l = Asm(); make_srd(l, 56, 88, 0, 4*MB)
            l(f'v_lshlrev_b32 v4, 3, v{P.V_L16}')
            l(f's_lshl_b32 s49, s2, 2'); l(f's_add_u32 s49, s49, s{s_w}'); l('s_lshl_b32 s49, s49, 12')
            l('buffer_load_dword v5, v4, s[56:59], s49 offen')
            g.append((l.lines, 'pf'))
        return g
    def xl(p, t):
        return lnload() if (lnend and p == 1 and t == 5) else []
    P.run(ps, extra_early=xe, extra_late=xl)
    if lnend: emit_ln(a, 216, 64, P.V_L16, S_X, S_GW, S_H, S_G, 80, 81, vq, 'compute')
    st_('stores')
    a('s_waitcnt vmcnt(0)')
    st_('end')
    st_.dump(100*MB, s_w, 250)
    a.label(f'{N}_end')
    a('s_endpgm')
```

```python
from asmlib import *
from layout import *
from gen_proj2 import Proj, VmQueue
from gen_proj import make_srd
import gen_t2
from gen_mlp import Mlp1

OA, OB = 0, 64
QA, QB = 0, 32
PFB = (128, 152)
FR = 192
NFR = 16
S = [[64, 80], [96, 112]]
P = [[128, 136], [144, 152]]
CA, CB = 160, 176
PT = 192
PS = [200, 201]
LA, LB = 202, 203
V_L16 = 204; V_KA = 205; V_VA = 206
V_RELA = 207; V_RELB = 208; V_NEG = 209
V_T = 210
V_DA, V_DB = 226, 227
V_AA, V_AB = 228, 229
V_MASK = 230; V_VBASE = 231; V_REL = [232, 233]
V_ST = 236
V_MA, V_MB, V_MR = 214, 216, 218
MACC = 128
S_MW, S_MH = 12, 60
s_ma, s_mb, s_ml = 85, 88, 89
S_K, S_V, S_Q, S_C = 4, 8, 12, 16
s_w, s_h, s_i, s_g1, s_cnt, s_ks, s_vs, s_t0, s_thr = 20, 21, 22, 23, 24, 25, 26, 27, 28
s_t1, s_step = 29, 32
S_RET = 30
S_M = 40
D = 8
THR = 0x4e800000

def v(b, n=1): return f'v{b}' if n == 1 else f'v[{b}:{b+n-1}]'
def ar(b, n=1): return f'a{b}' if n == 1 else f'a[{b}:{b+n-1}]'
MF = 'v_mfma_f32_32x32x16_bf16'

class Iter:
    def __init__(self, qk, sm, pv, next_qk, par, czero=False):
        self.qk, self.sm, self.pv, self.next_qk, self.par, self.czero = qk, sm, pv, next_qk, par, czero

def nfr(mode): return {None: 0, 1: 8, 2: 16}[mode]
PMAP = list(range(8))

class Attn:
    def __init__(self, a, name, diag=False, **opt):
        self.a = a; self.name = name; self.diag = diag; self.opt = opt; self.st = (RTStamps if opt.get('rt') else Stamps)(a, diag, vreg=254, sreg=30)
        global D
        D = opt.get('D', 8)
        PMAP[:] = [0, 1, 4, 5, 2, 3, 6, 7] if opt.get('p16') else list(range(8)); self.mlp = opt.get('mlp', True); self.nomlp_i = opt.get('nomlp_i', 7)
        self.phase = 0
        self.slow = []
        self.uid = 0
        self.vm = {}

    def simulate(self):
        res = {}
        self.vmm = {}
        for i in range(8):
            G1 = 4*(i+1)
            def mode(g): return None if (g < 0 or g > 33) else (1 if g < G1 else 2)
            def first(g):
                return g if g <= G1 else G1 + 2*(g-G1)
            def r(g): return 1 if g < G1 else 2
            issued = []
            def issue(kind, b0, nb):
                for b in range(b0, b0+nb):
                    issued.extend([(kind, b)]*2)
            kd = 0; vd = 0
            issue('K', 0, 6); issue('V', 0, 4)
            kd, vd = 6, 4
            kfree = 0; vfree = 0
            def need(n):
                req = []
                if mode(n+3): req += [('K', b) for b in range(first(n+3), first(n+3)+r(n+3))]
                if mode(n+1): req += [('V', b) for b in range(first(n+1), first(n+1)+r(n+1))]
                last = -1
                for k, x in enumerate(issued):
                    if x in req: last = k
                for x in req: assert x in issued, (i, n, x)
                return len(issued) - 1 - last if last >= 0 else None
            def pos(n):
                if n <= -1: return ('pro', n)
                if n <= G1-5:
                    if n >= G1-6 : return ('p1peel', n & 1)
                    return ('p1loop', n & 1)
                if n <= G1-1: return ('trans', n-G1)
                if n <= 31:
                    if n >= 30: return ('p2peel', n & 1)
                    return ('p2loop', n & 1)
                return ('epi', n)
            for n in range(-3, 34):
                if n == -1 and self.mlp: issued.extend([('M', 0)]*4 + [('M', 1)]*4)
                if n >= -2:
                    if mode(n) and n <= 31:
                        b0 = vd; nb = r(n)
                        assert b0 + nb - 8 <= (first(n-1) if n-1 >= 0 else 0), (i, n, b0, nb)
                        issue('V', b0, nb); vd += nb
                p = pos(n)
                if self.mlp and 0 <= n <= 31:
                    idx = [k for k, x in enumerate(issued) if x == ('M', n)]
                    if idx:
                        Nm = len(issued) - 1 - idx[-1]
                        self.vmm[p] = min(self.vmm.get(p, 99), Nm)
                    else: assert n >= 32 or i == 7 or True
                    if p[0] != 'p2peel': issued.extend([('M', n+2)]*4)
                N = need(n)
                if N is not None:
                    res[p] = min(res.get(p, 99), N)
                if mode(n+3) or (n <= 31 and n >= -3):
                    nb = r(n+3)
                    if n <= 30 or True:
                        assert kd + nb - 8 <= first(n+3), (i, n, kd, nb)
                        issue('K', kd, nb); kd += nb
                if n == G1-1: issued.extend([('S', 0)]*8)
        self.vm = res
        return res

    def dma_group(self, kind, nb, split=False):
        srd_, so = (S_K, s_ks) if kind == 'K' else (S_V, s_vs)
        g = []
        if kind == 'K':
            pre = [f's_and_b32 m0, s{so}, 0xffff']
        else:
            pre = [f's_and_b32 s{s_t0}, s{so}, 0xffff', f's_or_b32 m0, s{s_t0}, 0x10000']
        n = 2*nb
        if split: g.append(pre)
        for k in range(n):
            l = []
            if k == 0 and not split: l += pre + ['s_nop 0']
            off = f' offset:{k*1024}' if k else ''
            l.append(f'buffer_load_dwordx4 v{V_L16}, s[{srd_}:{srd_+3}], s{so} offen{off} lds')
            if k == n-1: l.append(f's_add_u32 s{so}, s{so}, {nb*8192}')
            g.append(l)
        return g

    def mlp_dma_groups(self, par):
        g = []
        for vo, srd_, so, step, off in ((V_MA, S_MW, s_ma, 16*3584, 0), (V_MB, S_MH, s_mb, 16*1024, 2048)):
            g.append([f's_add_u32 m0, s{s_ml}, {par*4096+off}'])
            g.append([f'buffer_load_dwordx4 v{vo}, s[{srd_}:{srd_+3}], s{so} offen lds'])
            g.append([f'buffer_load_dwordx4 v{vo+1}, s[{srd_}:{srd_+3}], s{so} offen offset:1024 lds', f's_add_u32 s{so}, s{so}, {step}'])
        return g

    def sm_ops(self, it):
        sm = it.sm; pr = it.par ^ 1
        ops = []
        masked = sm.endswith('m')
        init = sm == 'init'
        mode = '1' if init else sm[0]
        for b in range(2):
            Sb = S[pr][b]; Pb = P[pr][b]
            domask = masked and (mode == '2' or b == 0)
            blk = []
            if domask:
                def cmp(e): return (4, f'v_cmp_ge_i32 s[{S_M+2*(e%8)}:{S_M+2*(e%8)+1}], v{V_REL[b]}, {8*(e>>2)+(e&3)}')
                def cnd(e): return (4, f'v_cndmask_b32 v{Sb+e}, v{V_NEG}, v{Sb+e}, s[{S_M+2*(e%8)}:{S_M+2*(e%8)+1}]')
                blk += [cmp(0), cmp(1), cmp(2), cmp(3), cnd(0)]
            for e in range(16):
                if domask:
                    if e+4 < 16: blk.append(cmp(e+4))
                    if e+1 < 16: blk.append(cnd(e+1))
                if init:
                    if e == 0: blk.append((4, f'v_sub_f32 v{Sb}, v{Sb}, v{V_DA if b == 0 else V_DB}'))
                    if e+1 < 16: blk.append((4, f'v_sub_f32 v{Sb+e+1}, v{Sb+e+1}, v{V_DA if b == 0 else V_DB}'))
                blk.append((8, f'v_exp_f32 v{PT+(e%8)}, v{Sb+e}'))
                if e >= 2 or True:
                    k = e-1
                    if k == 1: blk.append((4, f'v_add_f32 v{PS[b]}, v{PT+0}, v{PT+1}'))
                    elif k > 1: blk.append((4, f'v_add_f32 v{PS[b]}, v{PS[b]}, v{PT+(k%8)}'))
                    if k >= 1 and k % 2 == 1:
                        blk.append((4, f'v_cvt_pk_bf16_f32 v{Pb+PMAP[k>>1]}, v{PT+((k-1)%8)}, v{PT+(k%8)}'))
            blk.append((4, f'v_add_f32 v{PS[b]}, v{PS[b]}, v{PT+(15%8)}'))
            blk.append((4, f'v_cvt_pk_bf16_f32 v{Pb+PMAP[7]}, v{PT+(14%8)}, v{PT+(15%8)}'))
            ops += blk
        if not init and not self.opt.get('nocheck'):
            ops.append((4, f'v_max_f32 v{V_T}, v{PS[0]}, v{PS[1]}'))
            ops.append((4, f'v_cmp_lt_f32 vcc, s{s_thr}, v{V_T}'))
        return ops

    def rel_setup(self, it):
        return []

    def emit_iter(self, it, pos, extra_pre=None, name='', extra_post=None):
        a = self.a
        par = it.par
        ph = self.phase
        mf = []
        reads = []
        fidx = 0
        def fr(k): return FR + 4*((ph + k) % NFR)
        Sw = S[par]; Pr = P[par]
        if it.qk == 1:
            for j in range(8):
                A = ar(fr(fidx+j), 4)
                for b, Q, C in ((0, QA, CA), (1, QB, CB)):
                    c = ('0' if it.czero else v(C, 16)) if j == 0 else v(Sw[b], 16)
                    mf.append((f'{MF} {v(Sw[b],16)}, {A}, {v(Q+4*j,4)}, {c}', fidx+j))
                reads.append((2*j, f'ds_read_b128 {A}, v{V_KA} offset:{j*1024}', fidx+j))
            fidx += 8
        elif it.qk == 2:
            for f in range(16):
                b, j = f >> 3, f & 7
                A = ar(fr(fidx+f), 4)
                c = ('0' if it.czero else v(CB, 16)) if j == 0 else v(Sw[b], 16)
                mf.append((f'{MF} {v(Sw[b],16)}, {A}, {v(QB+4*j,4)}, {c}', fidx+f))
                reads.append((f, f'ds_read_b128 {A}, v{V_KA} offset:{f*1024}', fidx+f))
            fidx += 16
        mlp = self.mlp and getattr(it, 'mlp', False)
        m0 = len(mf)
        if mlp:
            for ft in range(2):
                for dt in range(2):
                    acc = ar(MACC+16*(2*ft+dt), 16)
                    mf.append((f'{MF} {acc}, {v(V_ST+4*ft,4)}, {v(V_ST+8+4*dt,4)}, {acc}', 'm7' if (ft, dt) == (0, 0) else None))
        s0 = len(mf)
        if it.pv == 1:
            for f in range(8):
                t, db = f >> 2, f & 3
                A = ar(fr(fidx+f), 4)
                for b, O in ((0, OA), (1, OB)):
                    mf.append((f'{MF} {ar(O+16*db,16)}, {A}, {v(Pr[b]+4*t,4)}, {ar(O+16*db,16)}', fidx+f))
                reads.append((s0+2*f, f'ds_read_b128 {A}, v{V_VA} offset:{f*1024}', fidx+f))
            fidx += 8
        elif it.pv == 2:
            for f in range(16):
                b, t, db = f >> 3, (f >> 2) & 1, f & 3
                A = ar(fr(fidx+f), 4)
                mf.append((f'{MF} {ar(OB+16*db,16)}, {A}, {v(Pr[b]+4*t,4)}, {ar(OB+16*db,16)}', fidx+f))
                reads.append((s0+f, f'ds_read_b128 {A}, v{V_VA} offset:{f*1024}', fidx+f))
            fidx += 16
        ns = len(mf)
        nown = fidx
        lead_in = [r for r in reads if it.qk and r[0] < D and r[2] < nfr(it.qk)]
        own = [r for r in reads if r not in lead_in]
        lead_out = []
        if it.next_qk:
            n = nfr(it.next_qk)
            for j in range(n):
                fu = 2*j if it.next_qk == 1 else j
                if fu < D:
                    A = ar(FR + 4*((ph + nown + j) % NFR), 4)
                    lead_out.append((ns + fu, f'ds_read_b128 {A}, v{V_KA} offset:{j*1024}', nown+j))
        bslot = max(ns - D, 0)
        slots = [[] for _ in range(ns+1)]
        pre = []
        order = [r[2] for r in lead_in]
        def place_read(slot, r):
            (pre if slot < 0 else slots[slot]).append(('ds', r[1], r[2]))
        for r in own:
            place_read(r[0]-D if r[0]-D >= 0 else -1, r)
        if mlp:
            base = par*4096
            rd = []
            for op in range(2):
                for tl in range(2):
                    r = V_ST + 8*op + 4*tl
                    rd.append(f'ds_read_b64_tr_b16 {v(r,2)}, v{V_MR+tl} offset:{base+op*2048}')
                    rd.append(f'ds_read_b64_tr_b16 {v(r+2,2)}, v{V_MR+tl} offset:{base+op*2048+512}')
            slots[m0-8].append(('x', f's_waitcnt vmcnt({self.vmm[pos]})'))
            for k, t_ in enumerate(rd): slots[m0-8+k//2].append(('ds', t_, f'm{k}'))
        win = []
        has_bar = pos is not None and pos in self.vm
        if has_bar:
            if not self.opt.get('novm'): win.append(('x', f's_waitcnt vmcnt({0 if pos == ("epi", 32) else self.vm[pos]})'))
            if not self.opt.get('nobar'): win.append(('x', 's_barrier'))
        if it.qk:
            win.append(('x', f'v_add_u32 v{V_KA}, {8192*(1 if it.qk==1 else 2)}, v{V_KA}'))
            win.append(('x', f'v_and_b32 v{V_KA}, 0xffff, v{V_KA}'))
        if it.pv:
            win.append(('x', f'v_add_u32 v{V_VA}, {8192*(1 if it.pv==1 else 2)}, v{V_VA}'))
            win.append(('x', f'v_and_or_b32 v{V_VA}, v{V_VA}, v{V_MASK}, v{V_VBASE}'))
        for r in own:
            assert r[0]-D < bslot or ns <= D, (r, bslot)
        vg = self.dma_group('V', 1 if it.pv == 1 else 2, split=True) if (it.pv and not getattr(it, 'nov', False)) else []
        kg = self.dma_group('K', 1 if it.next_qk == 1 else 2, split=True) if (it.next_qk or getattr(it, 'forcek', False)) else []
        if self.opt.get('nodma') and pos and pos[0] != 'pro': vg = []; kg = []
        mg = []
        if mlp and getattr(it, 'mlp_dma', True): mg = [(m0+1+k, g) for k, g in enumerate(self.mlp_dma_groups(par))]
        if getattr(it, 'mlp_first', False):
            gs = self.mlp_dma_groups(0) + self.mlp_dma_groups(1)
            gs = [g + ['s_nop 0'] if 'm0' in g[0] else g for g in gs]
            mg = [(k*7//len(gs), g) for k, g in enumerate(gs)]
        sm = self.sm_ops(it) if it.sm else []
        if self.opt.get('nosm'): sm = []
        if self.opt.get('noexp'): sm = [(c, t) for c, t in sm if 'exp' not in t]
        if self.opt.get('noadd'): sm = [(c, t) for c, t in sm if 'v_add_f32' not in t]
        tot = sum(c for c, _ in sm)
        fixed = [0.0]*ns
        for k in range(ns):
            fixed[k] += 4*len(slots[k])
        for k, grp in enumerate(vg):
            sl = min(ns-1, k*(1 if len(vg) > 3 else 2))
            slots[sl].append(('dma', grp)); fixed[sl] += 4*len(grp)
        for sl, grp in mg:
            slots[sl].append(('dma', grp)); fixed[sl] += 4*len(grp)
        slots[bslot] = win + slots[bslot]; fixed[bslot] += 4*len(win)
        for r in lead_out:
            sl = min(ns-1, r[0]-D); slots[sl].append(('ds', r[1], r[2])); fixed[sl] += 4
        for k, grp in enumerate(kg):
            sl = min(ns-1, bslot + k*(1 if len(kg) > 3 else 2) + (1 if k else 0))
            slots[sl].append(('dma', grp)); fixed[sl] += 4*len(grp)
        xf = list(getattr(it, 'fill', [])); xg = list(getattr(it, 'fill_groups', []))
        if xf or xg:
            nsl = ns
            half = max(1, int(nsl*0.55))
            for k, x in enumerate(xf): slots[min(half-1, k*half//len(xf))].append(x)
            for k, g in enumerate(xg): slots[min(nsl-1, half + k*(nsl-half)//len(xg))].append(('dmag', g))
        total = tot + sum(fixed)
        smslots = [[] for _ in range(ns)]
        if sm:
            k = 0; cum = 0.0; target_end = ns - self.opt.get('tail', 1.6)
            acc = 0.0
            for sl in range(ns):
                acc += fixed[sl]
                lim = total * (sl+1) / target_end
                while k < len(sm) and (acc + sm[k][0]*0.5 <= lim or sl == ns-1):
                    smslots[sl].append(sm[k]); acc += sm[k][0]; k += 1
        if extra_pre:
            for l in extra_pre: a(l)
        q = list(order)
        def emit_fill(x):
            if x[0] == 'ds':
                a(x[1]); q.append(x[2])
            elif x[0] == 'dma':
                for l in x[1]: a(l)
            elif x[0] == 'dmag':
                for l in x[1][0]: a(l)
                it.vq.push(x[1][1])
            else:
                a(x[1])
        for x in pre: emit_fill(x)
        waited = -1
        for k, (txt, f) in enumerate(mf):
            if f is not None and f in q:
                idx = q.index(f)
                ahead = self.opt.get('wahead', 1)
                idx2 = min(idx + ahead, len(q)-1) if (k % 2 == 0 or ahead > 1) else idx
                idx2 = max(idx, min(idx2, len(q)-1-self.opt.get('wmin', 0)))
                nleft = len(q) - 1 - idx2
                a(f's_waitcnt lgkmcnt({nleft})')
                q = q[idx2+1:]
            a(txt)
            fl = slots[k]
            for x in fl:
                if x[0] in ('x', 'ds'): emit_fill(x)
            for c, t in smslots[k]: a(t)
            for x in fl:
                if x[0] in ('dma', 'dmag'): emit_fill(x)
        self.phase = (ph + nown) % NFR
        for l in (extra_post or []): a(l)
        if it.sm and it.sm != 'init' and not self.opt.get('nocheck'):
            self.uid += 1
            u = self.uid
            a(f's_cbranch_vccnz {self.name}_slow{u}')
            a.label(f'{self.name}_join{u}')
            self.l_update(it.sm)
            self.slow.append((u, it))
        elif it.sm == 'init':
            a(f'v_mov_b32 v{LA}, v{PS[0]}')
            a(f'v_mov_b32 v{LB}, v{PS[1]}')

    def l_update(self, sm):
        a = self.a
        if sm[0] == '1' or sm == 'init':
            a(f'v_add_f32 v{LA}, v{LA}, v{PS[0]}')
            a(f'v_add_f32 v{LB}, v{LB}, v{PS[1]}')
        else:
            a(f'v_add_f32 v{LB}, v{LB}, v{PS[0]}')
            a(f'v_add_f32 v{LB}, v{LB}, v{PS[1]}')

    def rowmax(self, dst, blocks):
        a = self.a
        regs = [b+e for b in blocks for e in range(16)]
        a(f'v_max3_f32 v{dst}, v{regs[0]}, v{regs[1]}, v{regs[2]}')
        k = 3
        while k+1 < len(regs):
            a(f'v_max3_f32 v{dst}, v{dst}, v{regs[k]}, v{regs[k+1]}'); k += 2
        if k < len(regs): a(f'v_max_f32 v{dst}, v{dst}, v{regs[k]}')
        a(f'v_mov_b32 v{V_T+1}, v{dst}')
        a('s_nop 1')
        a(f'v_permlane32_swap_b32 v{V_T+1}, v{dst}')
        a('s_nop 1')
        a(f'v_max_f32 v{dst}, v{dst}, v{V_T+1}')

    def plain_sm(self, pr):
        a = self.a
        for b in range(2):
            for e in range(0, 16, 2):
                a(f'v_exp_f32 v{PT}, v{S[pr][b]+e}')
                a(f'v_exp_f32 v{PT+1}, v{S[pr][b]+e+1}')
                a('s_nop 0')
                a(f'v_cvt_pk_bf16_f32 v{P[pr][b]+PMAP[e>>1]}, v{PT}, v{PT+1}')
                if e == 0:
                    a(f'v_add_f32 v{PS[b]}, v{PT}, v{PT+1}')
                else:
                    a(f'v_add_f32 v{PS[b]}, v{PS[b]}, v{PT}')
                    a(f'v_add_f32 v{PS[b]}, v{PS[b]}, v{PT+1}')

    def sub_delta(self, pr, mode):
        a = self.a
        for b in range(2):
            dl = V_DA if (mode == 1 and b == 0) else V_DB
            for e in range(16):
                a(f'v_sub_f32 v{S[pr][b]+e}, v{S[pr][b]+e}, v{dl}')

    def emit_slow(self, u, it):
        a = self.a
        pr = it.par ^ 1
        mode = 1 if it.sm[0] == '1' else 2
        a.label(f'{self.name}_slow{u}')
        a('s_nop 15')
        a('s_nop 7')
        if mode == 1:
            self.rowmax(V_DA, [S[pr][0]])
            self.rowmax(V_DB, [S[pr][1]])
            a(f'v_max_f32 v{V_DA}, 0, v{V_DA}')
        else:
            self.rowmax(V_DB, [S[pr][0], S[pr][1]])
            a(f'v_mov_b32 v{V_DA}, 0')
        a(f'v_max_f32 v{V_DB}, 0, v{V_DB}')
        a(f's_call_b64 s[{S_RET}:{S_RET+1}], {self.name}_rescale')
        self.sub_delta(pr, mode)
        if it.qk: self.sub_delta(it.par, it.qk)
        self.plain_sm(pr)
        a(f's_branch {self.name}_join{u}')

    def emit_rescale(self):
        a = self.a
        a.label(f'{self.name}_rescale')
        a(f'v_exp_f32 v{V_AA}, -v{V_DA}')
        a(f'v_exp_f32 v{V_AB}, -v{V_DB}')
        a('s_nop 0')
        for O, al in ((OA, V_AA), (OB, V_AB)):
            for e in range(0, 64, 4):
                for k in range(4): a(f'v_accvgpr_read_b32 v{V_T+k}, a{O+e+k}')
                for k in range(4): a(f'v_mul_f32 v{V_T+k}, v{V_T+k}, v{al}')
                for k in range(4): a(f'v_accvgpr_write_b32 a{O+e+k}, v{V_T+k}')
        a(f'v_mul_f32 v{LA}, v{LA}, v{V_AA}')
        a(f'v_mul_f32 v{LB}, v{LB}, v{V_AB}')
        for e in range(16):
            a(f'v_sub_f32 v{CA+e}, v{CA+e}, v{V_DA}')
            a(f'v_sub_f32 v{CB+e}, v{CB+e}, v{V_DB}')
        a('s_nop 1')
        a(f's_setpc_b64 s[{S_RET}:{S_RET+1}]')

    def mask_inplace(self, pr, b):
        a = self.a
        for e0 in range(0, 16, 8):
            for e in range(e0, e0+8):
                a(f'v_cmp_ge_i32 s[{S_M+2*(e%8)}:{S_M+2*(e%8)+1}], v{V_REL[b]}, {8*(e>>2)+(e&3)}')
            a('s_nop 1')
            for e in range(e0, e0+8):
                a(f'v_cndmask_b32 v{S[pr][b]+e}, v{V_NEG}, v{S[pr][b]+e}, s[{S_M+2*(e%8)}:{S_M+2*(e%8)+1}]')

    def emit_init(self):
        a = self.a
        a(f'v_mov_b32 v{V_REL[0]}, v{V_RELA}')
        a('s_nop 12')
        a(f's_cmp_lg_u32 s{s_i}, 0'); a(f's_cbranch_scc1 {self.name}_nomask0')
        self.mask_inplace(0, 0)
        a.label(f'{self.name}_nomask0')
        self.rowmax(V_DA, [S[0][0]])
        self.rowmax(V_DB, [S[0][1]])
        for e in range(16):
            a(f'v_sub_f32 v{CA+e}, 0, v{V_DA}')
            a(f'v_sub_f32 v{CB+e}, 0, v{V_DB}')
        a('s_nop 1')

    def epilogue_tile(self, O, L, qt_sgpr, vq=None):
        a = self.a
        a(f'v_mov_b32 v{V_T+1}, v{L}')
        a('s_nop 1')
        a(f'v_permlane32_swap_b32 v{V_T+1}, v{L}')
        a('s_nop 1')
        a(f'v_add_f32 v{L}, v{L}, v{V_T+1}')
        a(f'v_rcp_f32 v{V_T+2}, v{L}')
        a('s_nop 0')
        a(f'v_mov_b32 v{V_T+3}, v{V_T+2}')
        inv = V_T+2
        k = 0
        for db in range(4):
            for t in range(2):
                tmp = V_ST + 8*(k % 2)
                for e in range(8): a(f'v_accvgpr_read_b32 v{tmp+e}, a{O+16*db+8*t+e}')
                for e in range(0, 8, 2): a(f'v_pk_mul_f32 v[{tmp+e}:{tmp+e+1}], v[{tmp+e}:{tmp+e+1}], v[{inv}:{inv+1}]')
                for e in range(0, 8, 2): a(f'v_cvt_pk_bf16_f32 v{tmp+(e>>1)}, v{tmp+e}, v{tmp+e+1}')
                j = 2*db+t
                off = j*1024
                so = qt_sgpr if off < 4096 else qt_sgpr+1
                a(f'buffer_store_dwordx4 v[{tmp}:{tmp+3}], v{V_L16}, s[{S_C}:{S_C+3}], s{so} offen offset:{off % 4096}{STF.st}')
                if vq: vq.push('ctx')
                k += 1

    def stamp(self, same=False):
        self.st()
    def dump_stamps(self):
        self.st.dump(100*MB, s_w, 253)

    def emit(self):
        self.simulate()
        M = self.emit_head()
        self.emit_body(M)

    def kv_srd_lines(self):
        a = Asm()
        a(f's_lshl_b32 s{s_t0}, s{s_h}, 19')
        a(f's_lshl_b32 s{s_t1}, s{s_i}, 15')
        a(f's_sub_u32 s{s_t1}, 0x80000, s{s_t1}')
        for S_, base in ((S_K, WS_K), (S_V, WS_V)):
            a(f's_add_u32 s{S_}, s34, {base}')
            a(f's_addc_u32 s{S_+1}, s35, 0')
            a(f's_add_u32 s{S_}, s{S_}, s{s_t0}')
            a(f's_addc_u32 s{S_+1}, s{S_+1}, 0')
            a(f's_and_b32 s{S_+1}, s{S_+1}, 0xffff')
            a(f's_mov_b32 s{S_+2}, s{s_t1}')
            a(f's_mov_b32 s{S_+3}, 0x20000')
        make_srd(a, S_C, 34, WS_CTX, 16*MB)
        for qt, d in ((36, 56), (37, 58)):
            a(f's_lshl_b32 s{s_t0}, s{qt}, 5')
            a(f's_add_u32 s{s_t0}, s{s_t0}, s{s_h}')
            a(f's_lshl_b32 s{d}, s{s_t0}, 13')
            a(f's_add_u32 s{d+1}, s{d}, 4096')
        return a.lines

    def kv_groups(self, kind, nb):
        G = []
        for b in range(nb):
            for grp in self.dma_group(kind, 1): G.append((grp, 'kv'))
        return G

    def q_to_frags(self):
        self.q_to_frags_cvt(); self.q_to_frags_srd()

    def q_to_frags_cvt(self):
        a = self.a
        a('s_nop 7')
        for st, Q in ((0, QA), (1, QB)):
            for dt in range(4):
                A = 64 + 16*(4*st+dt)
                for t in range(2):
                    for k in range(4):
                        a(f'v_cvt_pk_bf16_f32 v{Q+4*(2*dt+t)+k}, v{A+8*t+2*k}, v{A+8*t+2*k+1}')

    def q_to_frags_srd(self):
        a = self.a
        if self.mlp:
            make_srd(a, S_MW, 68, 0, 2048*3584); make_srd(a, S_MH, 34, WS_H, 2*MB)
            a(f's_cmp_eq_u32 s{s_i}, {self.nomlp_i}')
            a(f's_cselect_b32 s{S_MW+2}, 0, s{S_MW+2}')
            a(f's_cselect_b32 s{S_MH+2}, 0, s{S_MH+2}')

    def setup_attn_regs(self):
        a = self.a; opt = self.opt
        a(f's_lshl_b32 s{s_ks}, s{s_w}, 11')
        a(f's_mov_b32 s{s_vs}, s{s_ks}')
        a(f's_mov_b32 s{s_thr}, {THR}')
        a(f'v_mov_b32 v{V_NEG}, 0xf149f2ca')
        a(f'v_mov_b32 v{V_MASK}, 0xffff')
        a(f'v_mov_b32 v{V_VBASE}, 0x10000')
        a(f'v_mov_b32 v{V_KA}, v{V_L16}')
        a(f'v_add_u32 v{V_VA}, 0x10000, v{V_L16}')
        a(f'v_and_b32 v3, 31, v2')
        a(f'v_lshrrev_b32 v4, 5, v2')
        a(f'v_lshlrev_b32 v4, 2, v4')
        a(f'v_sub_u32 v3, v3, v4')
        a(f's_lshl_b32 s{s_t0}, s36, 5')
        a(f'v_add_u32 v{V_RELA}, s{s_t0}, v3')
        a(f's_lshl_b32 s{s_t0}, s37, 5')
        a(f'v_add_u32 v{V_RELB}, s{s_t0}, v3')
        M = Mlp1(a, tshift=(4 if self.nomlp_i == 0 else 0)); M.ids()
        if self.mlp:
            T = 33
            a(f's_lshl_b32 s{s_ml}, s{s_w}, 13'); a(f's_add_u32 s{s_ml}, s{s_ml}, 131072')
            gen_t2.lane_setup(a, 5, T)
            for t in range(2):
                X = T+5; dst = V_MR+t
                a(f'v_mul_u32_u24 v{X}, 8, v{T}'); a(f'v_add_u32 v{X}, v{X}, v{T+1}'); a(f'v_lshlrev_b32 v{X}, 7, v{X}')
                a(f'v_xor_b32 v{dst}, {t}, v{T+4}'); a(f'v_lshl_add_u32 v{X}, v{dst}, 6, v{X}')
                a(f'v_lshl_add_u32 v{X}, v{T+2}, 5, v{X}'); a(f'v_lshl_add_u32 v{X}, v{T+3}, 3, v{X}')
                a(f'v_add_u32 v{dst}, s{s_ml}, v{X}')
            for dst, stride in ((V_MA, 3584), (V_MB, 1024)):
                mt = getattr(self, 'mtmp', 48)
                gen_t2.dma_voffs(a, mt, 5, T, stride, s_t1)
                a(f'v_mov_b32 v{dst}, v{mt}'); a(f'v_mov_b32 v{dst+1}, v{mt+1}')
            a(f's_mul_i32 s{s_ma}, s{s_w}, {512*3584}'); a(f's_lshl_b32 s{s_t1}, s{M.s_fb}, 7'); a(f's_add_u32 s{s_ma}, s{s_ma}, s{s_t1}')
            a(f's_lshl_b32 s{s_mb}, s{s_w}, 19'); a(f's_lshl_b32 s{s_t1}, s{M.s_db}, 7'); a(f's_add_u32 s{s_mb}, s{s_mb}, s{s_t1}')
        a(f'v_lshlrev_b32 v252, 3, v{V_L16}')
        a(f's_sub_u32 s{s_t0}, s2, 32'); a(f's_lshl_b32 s{s_t0}, s{s_t0}, 2'); a(f's_add_u32 s{s_t0}, s{s_t0}, s{s_w}')
        a(f's_lshl_b32 s74, s{s_t0}, 13')
        a(f's_mul_i32 s75, s{s_t0}, 4736')
        return M

    def emit_head(self):
        a = self.a; N = self.name; opt = self.opt
        vm = self.vm
        S_X, S_WQ = 12, 60
        a(f's_cmp_ge_u32 s2, 256')
        a(f's_cbranch_scc1 {N}_end')
        self.stamp()
        a(f's_load_dwordx2 s[34:35], s[0:1], {KA_WS}')
        a(f's_load_dwordx2 s[64:65], s[0:1], {KA_AX}')
        a(f's_load_dwordx2 s[66:67], s[0:1], {KA_WQ}')
        a(f's_load_dwordx2 s[68:69], s[0:1], {KA_W1}')
        a(f's_load_dwordx2 s[86:87], s[0:1], {KA_B1}')
        a(f's_load_dwordx2 s[70:71], s[0:1], {KA_WO}')
        a(f's_load_dwordx2 s[72:73], s[0:1], {KA_W2}')
        a(f'v_lshrrev_b32 v1, 6, v0')
        a(f'v_and_b32 v2, 63, v0')
        a(f'v_lshlrev_b32 v{V_L16}, 4, v2')
        a(f'v_readfirstlane_b32 s{s_w}, v1')
        a(f's_and_b32 s{s_t0}, s2, 7')
        a(f's_lshr_b32 s{s_t1}, s2, 3')
        a(f's_lshl_b32 s{s_h}, s{s_t0}, 2')
        a(f's_and_b32 s{s_t0}, s{s_t1}, 3')
        a(f's_add_u32 s{s_h}, s{s_h}, s{s_t0}')
        a(f's_lshr_b32 s{s_i}, s{s_t1}, 2')
        a(f's_add_u32 s{s_g1}, s{s_i}, 1')
        a(f's_lshl_b32 s{s_g1}, s{s_g1}, 2')
        a(f's_lshl_b32 s36, s{s_i}, 2')
        a(f's_add_u32 s36, s36, s{s_w}')
        a(f's_lshl_b32 s37, s{s_i}, 2')
        a(f's_sub_u32 s37, 60, s37')
        a(f's_add_u32 s37, s37, s{s_w}')
        vq = VmQueue()
        P = Proj(a, vq, s_w, 16384, 65536, ACC=64, FB=PFB, fbk='a', VA=8, V_L16=V_L16, VT=33, SG=40, wflags=(' nt' if opt.get('nt', True) else ''))
        P.setup_addrs(set_l16=False)
        a('s_waitcnt lgkmcnt(0)')
        make_srd(a, S_X, 64, 0, 2*MB); make_srd(a, S_WQ, 66, 0, 4*MB)
        init = [f's_lshl_b32 s{P.s_a0}, s36, 15', f's_lshl_b32 s{P.s_a1}, s37, 15',
                f's_lshl_b32 s{P.s_wo}, s{s_w}, 17', f's_lshl_b32 s{s_t0}, s{s_h}, 8', f's_add_u32 s{P.s_wo}, s{P.s_wo}, s{s_t0}']
        qpass = [dict(swap=False, srdA=S_X, srdW=S_WQ, init=init, epi=lambda: None, acck='v')]
        P.prologue(qpass[0])
        for l in self.kv_srd_lines(): a(l)
        M = self.setup_attn_regs()
        for e in range(128): a(f'v_accvgpr_write_b32 a{e}, 0')
        P.start_compute()
        self.stamp()
        KG = self.kv_groups('K', 6); VG = self.kv_groups('V', 4)
        def xl(p, t): return KG[:6] if t == 5 else (VG[:2] if t == 6 else [])
        def xe(p, t): return KG[6:] if t == 6 else (VG[2:] if t == 7 else [])
        P.run(qpass, extra_early=xe, extra_late=xl)
        self.stamp()
        self.q_to_frags()
        return M

    def emit_body(self, M):
        a = self.a; N = self.name; opt = self.opt
        vm = self.vm
        a(f's_waitcnt vmcnt({vm[("pro",-3)]})')
        a('s_barrier')
        for grp in self.dma_group('K', 1):
            for l in grp: a(l)
        for j in range(D//2):
            a(f'ds_read_b128 {ar(FR+4*j,4)}, v{V_KA} offset:{j*1024}')
        it = Iter(1, None, None, 1, 0, czero=True)
        if self.mlp: it.fill = [('x', f'v_accvgpr_write_b32 a{MACC+e}, 0') for e in range(64)]
        self.emit_iter(it, ('pro', -2))
        self.emit_init()
        self.stamp()
        it = Iter(1, 'init', None, 1, 1); it.mlp_first = self.mlp
        self.emit_iter(it, ('pro', -1))
        self.stamp()
        def MI(*args, dma=True):
            it = Iter(*args); it.mlp = True; it.mlp_dma = dma
            return it
        a(f's_cmp_eq_u32 s{s_i}, 0')
        a(f's_cbranch_scc1 {N}_trans')
        a(f's_sub_u32 s{s_cnt}, s{s_g1}, 6')
        a(f's_lshr_b32 s{s_cnt}, s{s_cnt}, 1')
        a('.p2align 6')
        a.label(f'{N}_p1loop')
        self.emit_iter(MI(1, '1', 1, 1, 0), ('p1loop', 0))
        self.emit_iter(MI(1, '1', 1, 1, 1), ('p1loop', 1))
        a(f's_sub_u32 s{s_cnt}, s{s_cnt}, 1')
        a(f's_cmp_lg_u32 s{s_cnt}, 0')
        a(f's_cbranch_scc1 {N}_p1loop')
        def pf(ptr, nb, so):
            if not opt.get('pf', True): return []
            l = Asm(); make_srd(l, 76, ptr, 0, nb); l(f'buffer_load_dword v253, v252, s[76:79], s{so} offen')
            return l.lines
        self.emit_iter(MI(1, '1', 1, 1, 0), ('p1peel', 0))
        def relA(k):
            return [f's_sub_u32 s{s_t1}, s{s_g1}, {k}', f's_lshl_b32 s{s_t1}, s{s_t1}, 5', f'v_subrev_u32 v{V_REL[0]}, s{s_t1}, v{V_RELA}']
        self.emit_iter(MI(1, '1m', 1, 1, 1), ('p1peel', 1), extra_pre=relA(4), extra_post=pf(72, 1792*4096, 74))
        for l in pf(70, 4*MB, 75): a(l)
        a.label(f'{N}_trans')
        self.stamp()
        self.emit_iter(MI(1, '1m', 1, 1, 0), ('trans', -4), extra_pre=relA(3))
        sw = [f's_lshl_b32 s{s_t0}, s{s_w}, 11']
        self.emit_iter(MI(1, '1m', 1, 2, 1), ('trans', -3), extra_pre=relA(2) + sw + [f's_add_u32 s{s_ks}, s{s_ks}, s{s_t0}'])
        self.emit_iter(MI(2, '1m', 1, 2, 0), ('trans', -2), extra_pre=relA(1))
        def relB(expr_lines):
            return expr_lines + [f'v_subrev_u32 v{V_REL[0]}, s{s_t1}, v{V_RELB}', f'v_subrev_u32 v{V_REL[1]}, 32, v{V_REL[0]}']
        self.emit_iter(MI(2, '2m', 1, 2, 1), ('trans', -1), extra_pre=relB([f's_lshl_b32 s{s_t1}, s{s_g1}, 5']))
        self.stamp()
        a('s_nop 12')
        self.epilogue_tile(OA, LA, 56)
        a(f's_lshl_b32 s{s_t0}, s{s_w}, 11')
        a(f's_add_u32 s{s_vs}, s{s_vs}, s{s_t0}')
        a(f's_cmp_eq_u32 s{s_i}, 7')
        a(f's_cbranch_scc1 {N}_epi')
        a(f's_sub_u32 s{s_cnt}, 30, s{s_g1}')
        a(f's_lshr_b32 s{s_cnt}, s{s_cnt}, 1')
        a('.p2align 6')
        a.label(f'{N}_p2loop')
        self.emit_iter(MI(2, '2', 2, 2, 0), ('p2loop', 0))
        self.emit_iter(MI(2, '2', 2, 2, 1), ('p2loop', 1))
        a(f's_sub_u32 s{s_cnt}, s{s_cnt}, 1')
        a(f's_cmp_lg_u32 s{s_cnt}, 0')
        a(f's_cbranch_scc1 {N}_p2loop')
        self.emit_iter(MI(2, '2', 2, 2, 0, dma=False), ('p2peel', 0), extra_post=(M.l2_prefetch(234) if opt.get('pf2', False) else None))
        relB32 = [f's_sub_u32 s{s_t1}, 64, s{s_g1}', f's_lshl_b32 s{s_t1}, s{s_t1}, 5']
        self.emit_iter(MI(2, '2m', 2, 2, 1, dma=False), ('p2peel', 1), extra_pre=relB(relB32))
        a.label(f'{N}_epi')
        self.stamp()
        relB33 = [f's_sub_u32 s{s_t1}, 66, s{s_g1}', f's_lshl_b32 s{s_t1}, s{s_t1}, 5']
        it = Iter(None, '2m', 2, None, 0); it.nov = True
        a('s_waitcnt lgkmcnt(0)')
        self.emit_iter(it, ('epi', 32), extra_pre=relB(relB33))
        it = Iter(None, None, 2, None, 1); it.nov = True
        vq2 = VmQueue()
        if self.mlp and opt.get('e2fill', True):
            it.fill, it.fill_groups = M.finish_pre()
            it.vq = vq2
        a('s_nop 1')
        self.emit_iter(it, None)
        if opt.get('fusefin'):
            import gen_final
            gen_final.final_pointer_loads(a)
        self.stamp()
        def fill():
            make_srd(a, 76, 34, WS_PART, 8*MB)
            a(f's_sub_u32 s{s_t0}, s2, 224'); a(f's_lshl_b32 s{s_t0}, s{s_t0}, 2'); a(f's_add_u32 s{s_t0}, s{s_t0}, s{s_w}'); a(f's_lshl_b32 s{s_t0}, s{s_t0}, 16')
            for e in range(4): a(f'v_mov_b32 v{V_T+4+e}, -1')
            a(f's_mov_b32 s{s_cnt}, 16')
            a.label(f'{N}_fill')
            for q in range(4):
                a(f'buffer_store_dwordx4 v[{V_T+4}:{V_T+7}], v{V_L16}, s[76:79], s{s_t0} offen offset:{q*1024}' + (' sc1' if (opt.get('fusefin') or opt.get('fillsc1', True)) else ''))
            a('s_waitcnt vmcnt(40)')
            a(f's_add_u32 s{s_t0}, s{s_t0}, 4096')
            a(f's_sub_u32 s{s_cnt}, s{s_cnt}, 1')
            a(f's_cmp_lg_u32 s{s_cnt}, 0')
            a(f's_cbranch_scc1 {N}_fill')
        def wbl2(lab):
            if opt.get('wbl2', True):
                a(f's_cmp_eq_u32 s{s_w}, 0'); a(f's_cbranch_scc0 {N}_{lab}'); a('buffer_wbl2 sc1'); a.label(f'{N}_{lab}')
        a(f's_cmp_eq_u32 s{s_i}, {self.nomlp_i}')
        a(f's_cbranch_scc1 {N}_nomlp')
        if opt.get('fusefin') and opt.get('l3', {}).get('ofirst', True) and self.nomlp_i == 7: M.final_wait = 2
        M.finish(vq2, lambda: self.epilogue_tile(OB, LB, 58, vq2), self.stamp, pre_done=opt.get('e2fill', True))
        if self.nomlp_i != 7:
            a(f's_cmp_eq_u32 s{s_i}, 7'); a(f's_cbranch_scc0 {N}_nofill')
            wbl2('nowb'); fill(); a('s_waitcnt vmcnt(0)')
            a.label(f'{N}_nofill')
        self.stamp()
        if opt.get('fusefin'):
            a(f's_branch {N}_phasec')
        else:
            self.dump_stamps()
            a('s_endpgm')
        a.label(f'{N}_nomlp')
        if self.nomlp_i == 7: wbl2('nowb')
        a('s_nop 15')
        self.epilogue_tile(OB, LB, 58)
        if self.nomlp_i == 7: fill()
        a('s_waitcnt vmcnt(0)')
        self.stamp()
        if opt.get('fusefin'):
            a.label(f'{N}_phasec')
            self.emit_phasec()
        else:
            self.dump_stamps()
        a.label(f'{N}_end')
        a('s_endpgm')
        for u, it in self.slow: self.emit_slow(u, it)
        self.emit_rescale()
```

```python
from asmlib import *
from layout import *
import gen_attn2 as A
from gen_attn2 import *
from gen_proj2 import Proj, VmQueue, frag_store_groups
from gen_proj import make_srd
import gen_proj, gen_final
from gen_kv import ProjKV
from gen_proj16 import Proj16, frag_store_groups16, q_to_frags16

class Main(Attn):
    def emit_phasec(self):
        a = self.a; N = self.name; opt = self.opt
        a('s_barrier')
        make_srd(a, 76, 34, WS_FL, 112*128)
        a(f's_lshr_b32 s27, s{s_h}, 3'); a('s_lshl_b32 s27, s27, 3'); a(f's_add_u32 s27, s27, s{s_i}'); a('s_lshl_b32 s27, s27, 7')
        a(f's_and_b32 s29, s{s_h}, 7'); a('s_lshl_b32 s29, s29, 2'); a('s_add_u32 s27, s27, s29')
        a('v_mov_b32 v41, s27')
        a('s_mov_b32 s30, 1')
        a(f's_cmp_eq_u32 s{s_i}, {self.nomlp_i}'); a(f's_cbranch_scc1 {N}_cnou')
        a('s_mul_i32 s27, s80, 37'); a('s_lshr_b32 s27, s27, 8'); a('s_mul_i32 s29, s27, 7'); a('s_sub_u32 s29, s80, s29')
        a('s_lshl_b32 s29, s29, 1'); a('s_and_b32 s31, s81, 1'); a('s_add_u32 s29, s29, s31'); a('s_lshl_b32 s29, s29, 2')
        a('s_lshl_b32 s27, s27, 2'); a('s_lshr_b32 s31, s81, 1'); a('s_add_u32 s27, s27, s31'); a('s_add_u32 s27, s27, 32'); a('s_lshl_b32 s27, s27, 7'); a('s_add_u32 s27, s27, s29')
        a('v_writelane_b32 v41, s27, 1'); a('s_or_b32 s30, s30, 2')
        a.label(f'{N}_cnou')
        a(f's_cmp_eq_u32 s{s_i}, 7'); a(f's_cbranch_scc0 {N}_cflag')
        a('s_sub_u32 s27, s2, 224'); a('s_lshl_b32 s27, s27, 1'); a('s_add_u32 s27, s27, 48'); a('s_lshl_b32 s27, s27, 7')
        a('v_writelane_b32 v41, s27, 2'); a('s_add_u32 s27, s27, 128'); a('v_writelane_b32 v41, s27, 3'); a('s_or_b32 s30, s30, 12')
        a.label(f'{N}_cflag')
        a('v_mov_b32 v42, 1')
        a(f's_cmp_eq_u32 s{s_w}, 0'); a('s_cselect_b32 exec_lo, s30, 0'); a('s_mov_b32 exec_hi, 0')
        a('buffer_store_dword v42, v41, s[76:79], 0 offen sc1')
        a('s_mov_b64 exec, -1')
        def poll(s_sb, s_mb, s_p, s_tile):
            make_srd(a, 56, 76, WS_FL, 112*128)
            a(f's_sub_u32 s49, 15, s{s_sb}'); a(f's_min_u32 s49, s49, s{s_sb}'); a(f's_lshl_b32 s50, s{s_p}, 3'); a('s_add_u32 s49, s49, s50'); a('s_lshl_b32 s49, s49, 7')
            a(f's_lshl_b32 s50, s{s_p}, 2'); a(f's_add_u32 s50, s50, s{s_mb}'); a('s_add_u32 s50, s50, 32'); a('s_lshl_b32 s50, s50, 7'); a('s_sub_u32 s50, s50, 32')
            a(f's_add_u32 s51, s{s_tile}, 48'); a('s_lshl_b32 s51, s51, 7')
            a('v_lshrrev_b32 v45, 2, v2')
            a('v_mov_b32 v46, s50'); a('v_mov_b32 v47, s49'); a('v_cmp_gt_u32 vcc, 32, v45'); a('s_nop 1'); a('v_cndmask_b32 v46, v46, v47, vcc')
            a('v_add_u32 v45, v45, v46'); a('v_writelane_b32 v45, s51, 22')
            a(f's_cmp_eq_u32 s{s_w}, 0'); a(f's_cbranch_scc0 {N}_cpolled')
            a('s_mov_b32 s49, 0')
            a.label(f'{N}_cpoll')
            a('buffer_load_dword v44, v45, s[56:59], 0 offen sc1')
            a('s_waitcnt vmcnt(0)')
            a('v_cmp_ne_u32 vcc, 1, v44'); a('s_nop 3'); a('s_and_b32 s50, vcc_lo, 0x7fffff'); a('s_cmp_eq_u32 s50, 0')
            a(f's_cbranch_scc1 {N}_cpolled')
            a('s_add_u32 s49, s49, 1'); a('s_cmp_ge_u32 s49, 0x20000'); a(f's_cbranch_scc1 {N}_cpolled')

            if opt.get("csleep", 0): a(f's_sleep {opt.get("csleep")}')
            a(f's_branch {N}_cpoll')
            a.label(f'{N}_cpolled')
            a('s_barrier')
        gen_final.emit_final(a, N + '_fin', inline=True, sync=poll, stamps=self.st, **opt.get('l3', {}))

    def emit_head(self):
        a = self.a; N = self.name; opt = self.opt
        S_CK, S_WK, S_X, S_O, S_WV, S_WQ = 4, 8, 12, 16, 92, 60
        S_H, S_G, S_GW = 76, (56 if opt.get('lnfill', False) else 48), 52
        a(f's_cmp_ge_u32 s2, 256')
        a(f's_cbranch_scc1 {N}_end')
        self.stamp()
        a(f's_load_dwordx2 s[34:35], s[0:1], {KA_WS}')
        a(f's_load_dwordx2 s[64:65], s[0:1], {KA_AX}')
        a(f's_load_dwordx2 s[90:91], s[0:1], {KA_CKV}')
        a(f's_load_dwordx4 s[96:99], s[0:1], {KA_WUK}')
        a(f's_load_dwordx2 s[38:39], s[0:1], {KA_GW}')
        a(f's_load_dwordx2 s[66:67], s[0:1], {KA_WQ}')
        a(f's_load_dwordx2 s[68:69], s[0:1], {KA_W1}')
        a(f's_load_dwordx2 s[86:87], s[0:1], {KA_B1}')
        a(f's_load_dwordx2 s[70:71], s[0:1], {KA_WO}')
        a(f's_load_dwordx2 s[72:73], s[0:1], {KA_W2}')
        a(f's_load_dwordx2 s[100:101], s[0:1], {KA_DBG}')
        a(f'v_lshrrev_b32 v1, 6, v0')
        a(f'v_and_b32 v2, 63, v0')
        a(f'v_lshlrev_b32 v{V_L16}, 4, v2')
        a(f'v_readfirstlane_b32 s{s_w}, v1')
        a(f's_and_b32 s{s_t0}, s2, 7')
        a(f's_lshr_b32 s{s_t1}, s2, 3')
        a(f's_lshl_b32 s{s_h}, s{s_t0}, 2')
        a(f's_and_b32 s{s_t0}, s{s_t1}, 3')
        a(f's_add_u32 s{s_h}, s{s_h}, s{s_t0}')
        a(f's_lshr_b32 s{s_i}, s{s_t1}, 2')
        a(f's_add_u32 s{s_g1}, s{s_i}, 1')
        a(f's_lshl_b32 s{s_g1}, s{s_g1}, 2')
        a(f's_lshl_b32 s36, s{s_i}, 2'); a(f's_add_u32 s36, s36, s{s_w}')
        a(f's_lshl_b32 s37, s{s_i}, 2'); a(f's_sub_u32 s37, 60, s37'); a(f's_add_u32 s37, s37, s{s_w}')
        vq = VmQueue()
        p16 = opt.get('p16')
        if p16:
            P = Proj16(a, vq, s_w, 16384, 16384, FBL=[[192+4*k for k in range(12)], [4*k for k in range(12)]], V_WD=60, ACC=64, fbk='a', VA=8, V_L16=V_L16, VT=33, SG=40,
                       wflags=(' nt' if opt.get('nt', True) else ''), stamps=self.st, opt=opt)
        else:
            P = Proj(a, vq, s_w, 16384, 16384, ACC=64, FB=(192, 216), fbk='a', VA=8, V_L16=V_L16, VT=33, SG=40,
                     wflags=(' nt' if opt.get('nt', True) else ''), stamps=self.st, opt=opt)
        P.setup_addrs(set_l16=False)
        lnfill = opt.get('lnfill', False)
        LB_ = 40
        a(f's_lshl_b32 s82, s2, 3'); a(f's_lshl_b32 s83, s{s_w}, 1'); a('s_add_u32 s82, s82, s83')
        a('s_lshl_b32 s83, s82, 2'); a('s_lshl_b32 s82, s82, 10')
        a('s_waitcnt lgkmcnt(0)')
        make_srd(a, S_CK, 90, 0, 2*MB); make_srd(a, S_WK, 96, 0, 4*MB)
        def lnloads():
            make_srd(a, S_X, 64, 0, 2*MB); make_srd(a, S_GW, 38, 0, 1024)
            a(f'buffer_load_dwordx4 v[{LB_}:{LB_+3}], v{V_L16}, s[{S_X}:{S_X+3}], s82 offen'); vq.push('ln')
            a(f'buffer_load_dwordx4 v[{LB_+4}:{LB_+7}], v{V_L16}, s[{S_X}:{S_X+3}], s82 offen offset:1024'); vq.push('ln')
            a(f'buffer_load_dwordx4 v[{LB_+16}:{LB_+19}], v{V_L16}, s[{S_GW}:{S_GW+3}], 0 offen'); vq.push('ln')
        if not lnfill: lnloads()
        initKV = [f's_lshl_b32 s{P.s_a0}, s{s_i}, 18', f's_lshl_b32 s49, s{s_w}, 16', f's_add_u32 s{P.s_a0}, s{P.s_a0}, s49',
                  f's_add_u32 s{P.s_a1}, s{P.s_a0}, 32768',
                  f's_lshl_b32 s{P.s_wo}, s{s_w}, 17', f's_lshl_b32 s49, s{s_h}, 8', f's_add_u32 s{P.s_wo}, s{P.s_wo}, s49']
        initQ = [f's_lshl_b32 s{P.s_a0}, s36, 15', f's_lshl_b32 s{P.s_a1}, s37, 15',
                 f's_lshl_b32 s{P.s_wo}, s{s_w}, 17', f's_lshl_b32 s49, s{s_h}, 8', f's_add_u32 s{P.s_wo}, s{P.s_wo}, s49']
        ps = [dict(swap=False, srdA=S_CK, srdW=S_WK, init=initKV, epi=lambda: None, acck='v'),
              dict(swap=True, srdA=S_CK, srdW=S_WV, init=initKV, epi=lambda: None, acck='a'),
              dict(swap=False, srdA=S_X, srdW=S_WQ, init=initQ, epi=lambda: None, acck='v')]
        P.prologue(ps[0], after0=(lnloads if lnfill else None))
        make_srd(a, S_WV, 98, 0, 4*MB)
        make_srd(a, S_WQ, 66, 0, 4*MB)
        make_srd(a, S_O, 34, WS_K, 32*MB)
        make_srd(a, S_H, 34, WS_H, 2*MB); make_srd(a, S_G, 34, WS_G, 8192)
        real_a = self.a; tmp_a = Asm(); self.a = tmp_a
        M = self.setup_attn_regs()
        self.a = real_a; M.a = real_a
        c = 0x3e0293ee
        setup = tmp_a.lines + [f'v_mov_b32 v2, {hex(c)}', f'v_mov_b32 v3, {hex(c)}'] + [f'v_accvgpr_write_b32 a{e}, 0' for e in range(48 if p16 else 0, 64)]
        setupG = [(setup[k:k+4], None) for k in range(0, len(setup), 4)]
        perS = -(-len(setupG)//5)
        s_first = 3 if lnfill else 1
        gen_proj.R.V_L16 = V_L16
        st_save = STF.st; STF.st = ' sc1'
        main_a = a
        if lnfill: a = Asm()
        else: vq.wait_for(a, 'ln')
        if lnfill: gen_proj.emit_ln_compute(a, LB_, S_H, S_G, 82, 83, 208, gw=232, sm=240, tmp=244)
        else: gen_proj.emit_ln_compute(a, LB_, S_H, S_G, 82, 83, 64)
        a('s_getreg_b32 s33, hwreg(HW_REG_XCC_ID, 0, 4)')
        a('s_or_b32 s33, s33, 0x50')
        make_srd(a, 76, 34, WS_HF, 4096)
        a(f's_lshl_b32 s32, s{s_h}, 7')
        a('v_mov_b32 v41, 0'); a(f'v_lshrrev_b32 v42, 2, v{V_L16}')
        a(f's_or_b32 s{s_t0}, s{s_w}, s{s_i}'); a(f's_cmp_eq_u32 s{s_t0}, 0'); a('s_cselect_b32 exec_lo, -1, 0'); a('s_mov_b32 exec_hi, 0')
        a('buffer_store_dword v41, v42, s[76:79], s32 offen sc1')
        a('s_mov_b64 exec, -1')
        if opt.get('fusefin'):
            make_srd(a, 76, 34, WS_FL, 112*128)
            a('s_lshl_b32 s32, s2, 7')
            a(f's_cmp_eq_u32 s{s_w}, 0'); a('s_cselect_b32 exec_lo, -1, 0'); a('s_mov_b32 exec_hi, 0')
            a('buffer_store_dword v41, v42, s[76:79], s32 offen sc1')
            a('s_mov_b64 exec, -1')
        if lnfill:
            lnG = [(['@wait'], 'ln')]
            cur = []; masked = False
            for k_, l in enumerate(a.lines):
                nxt_addc = k_+1 < len(a.lines) and a.lines[k_+1].startswith('s_addc')
                starts_mask = ('exec' in l and not l.startswith('s_mov_b64 exec, -1') and not l.startswith('s_mov_b64 exec, s['))
                if (l.startswith('s_cmp') or starts_mask) and not masked:
                    if cur: lnG.append((cur, None)); cur = []
                    masked = True
                cur.append(l)
                if l.startswith('buffer_'):
                    if not masked: lnG.append((cur, 'lnst')); cur = []
                if masked and (l.startswith('s_mov_b64 exec, -1') or l.startswith('s_mov_b64 exec, s[')):
                    lnG.append((cur, 'lnst')); cur = []; masked = False
                elif not masked and len(cur) >= 4 and not nxt_addc:
                    lnG.append((cur, None)); cur = []
            if cur: lnG.append((cur, None))
            assert not masked
            a = main_a
        else:
            for _ in range(5 if opt.get('fusefin') else 4): vq.push('lnst')
            lnG = []
        perL = -(-len(lnG)//3)
        a(f's_and_b32 s91, s{s_h}, 3'); a(f's_cmp_eq_u32 s{s_w}, 0'); a('s_cselect_b32 s91, s91, 0xff')
        a(f's_lshl_b32 s{s_t0}, s{s_h}, 6'); a(f's_lshl_b32 s{s_t1}, s{s_i}, 3'); a(f's_add_u32 s{s_t0}, s{s_t0}, s{s_t1}')
        a(f's_lshl_b32 s{s_t1}, s{s_w}, 1'); a(f's_add_u32 s{s_t0}, s{s_t0}, s{s_t1}'); a(f's_lshl_b32 s{s_t0}, s{s_t0}, 13')
        for k in range(4):
            a(f's_add_u32 s{50+k}, s{s_t0}, {k*4096}')
            a(f's_add_u32 s{96+k}, s{s_t0}, {16*MB + k*4096}')
        STF.st = opt.get('kst', opt.get('kvst', ''))
        VK, VV = 220, 222
        if p16: P.store_addrs(VK, VV)
        KG = frag_store_groups16(P, 'K', 'v', S_O, 50, None, VK, v_scale=2, tag='kst') if p16 else frag_store_groups(P, 'K', 'v', S_O, 50, None, v_scale=2, tag='kst')
        STF.st = opt.get('vst', opt.get('kvst', ''))
        VGs = frag_store_groups16(P, 'V', 'a', S_O, 96, 40, VV, tag='vst') if p16 else frag_store_groups(P, 'V', 'a', S_O, 96, 40, tag='vst')
        STF.st = st_save
        nv = opt.get('vstages', 3); sigt = opt.get('sigt', nv+1)
        perK = len(KG)//8; perV = len(VGs)//nv
        KV0 = self.kv_groups('K', 6); VV0 = self.kv_groups('V', 4)
        zero = [([f'v_accvgpr_write_b32 a{64+4*k+e}, 0' for e in range(4)], None) for k in range(16)]
        srds = self.kv_srd_lines()
        dbg = Asm(); make_srd(dbg, 76, 100, 0, 256)
        hfl = Asm(); make_srd(hfl, 92, 34, WS_HF, 4096)
        def lnsig(k): return (dbg.lines + ['v_mov_b32 v58, 0', 'v_mov_b32 v59, s33', f's_cmp_eq_u32 s91, {k}', 's_cselect_b64 exec, 1, 0',
               f'buffer_store_byte v59, v58, s[76:79], s2 offen sc1', 's_mov_b64 exec, -1'], 'flag')
        idaddr = [f'v_lshlrev_b32 v57, 1, v{V_L16}', f's_lshr_b32 s{s_t1}, s{s_h}, 2', f's_and_b32 s32, s{s_h}, 3', 's_lshl_b32 s32, s32, 3', f's_add_u32 s48, s32, s{s_t1}']
        idld = (dbg.lines + idaddr + ['buffer_load_ubyte v56, v57, s[76:79], s48 offen sc1'], 'id')
        sig = dbg.lines + hfl.lines + [f's_cmp_eq_u32 s{s_w}, 0', f's_cbranch_scc0 {N}_nosig', f's_mov_b32 s{s_cnt}, 0',
               f'{N}_idchk:',
               'v_readfirstlane_b32 s32, v56', 's_and_b32 s32, s32, 0x40', 's_cmp_lg_u32 s32, 0', f's_cbranch_scc1 {N}_idok',
               f's_add_u32 s{s_cnt}, s{s_cnt}, 1', f's_cmp_ge_u32 s{s_cnt}, 0x20000', f's_cbranch_scc1 {N}_idok',
               'buffer_load_ubyte v56, v57, s[76:79], s48 offen sc1', 's_waitcnt vmcnt(0)', 's_nop 0', f's_branch {N}_idchk',
               f'{N}_idok:',
               'v_cmp_ne_u32 vcc, s33, v56', 's_nop 3', 's_and_b32 s32, vcc_lo, 0xff', 's_cmp_eq_u32 s32, 0',
               f's_cbranch_scc1 {N}_samexcd', 'buffer_wbl2 sc1', 's_waitcnt vmcnt(0)', f'{N}_samexcd:',
               f's_lshl_b32 s32, s{s_h}, 7', f's_lshl_b32 s{s_t1}, s{s_i}, 2', f's_add_u32 s32, s32, s{s_t1}',
               'v_mov_b32 v41, 0', 'v_mov_b32 v42, 1', 's_mov_b64 exec, 1',
               'buffer_store_dword v42, v41, s[92:95], s32 offen sc1', 's_mov_b64 exec, -1', f'{N}_nosig:']
        pollld = ['buffer_load_dword v232, v233, s[76:79], 0 offen sc1', 'buffer_load_dword v235, v233, s[92:95], s91 offen sc1']
        pollpre = dbg.lines + hfl.lines + [f's_lshl_b32 s91, s{s_h}, 7', f'v_lshrrev_b32 v233, 2, v{V_L16}', 'v_mov_b32 v234, 0x40404040',
                   f's_cmp_eq_u32 s{s_w}, 0', f's_cbranch_scc0 {N}_nopoll0'] + pollld + [f'{N}_nopoll0:']
        def pfw(srd_): return ([f'v_lshrrev_b32 v58, 5, v{V_L16}', 'v_lshlrev_b32 v58, 13, v58', f'v_bfe_u32 v59, v{V_L16}, 4, 1', 'v_lshl_add_u32 v58, v59, 7, v58',
               f's_lshl_b32 s32, s{s_w}, 4', f's_lshl_b32 s49, s{s_i}, 6', 's_add_u32 s32, s32, s49', 's_lshl_b32 s32, s32, 13',
               f's_lshl_b32 s49, s{s_h}, 8', 's_add_u32 s32, s32, s49', 's_mov_b32 exec_hi, 0',
               f'buffer_load_dword v253, v58, s[{srd_}:{srd_+3}], s32 offen', 's_mov_b64 exec, -1'], 'pf')
        def pfx(qt): return ([f'v_lshrrev_b32 v58, 7, v{V_L16}', 'v_lshlrev_b32 v58, 10, v58', f'v_bfe_u32 v59, v{V_L16}, 4, 3', 'v_lshl_add_u32 v58, v59, 7, v58',
               f's_lshl_b32 s32, s{qt}, 5', f's_and_b32 s49, s{s_h}, 3', 's_lshl_b32 s49, s49, 3', 's_add_u32 s32, s32, s49', 's_lshl_b32 s32, s32, 10',
               f'buffer_load_dword v253, v58, s[{S_X}:{S_X+3}], s32 offen'], 'pf')
        def pfc(k): return ([f'v_lshrrev_b32 v58, 7, v{V_L16}', 'v_lshlrev_b32 v58, 10, v58', f'v_bfe_u32 v59, v{V_L16}, 4, 3', 'v_lshl_add_u32 v58, v59, 7, v58',
               f's_lshl_b32 s32, s{s_i}, 8', f's_and_b32 s49, s{s_h}, 3', 's_lshl_b32 s49, s49, 6', 's_add_u32 s32, s32, s49', f's_lshl_b32 s49, s{s_w}, 4', 's_add_u32 s32, s32, s49',
               f's_add_u32 s32, s32, {8*k}', 's_lshl_b32 s32, s32, 10', f'buffer_load_dword v253, v58, s[{S_CK}:{S_CK+3}], s32 offen'], 'pf')
        def pf1():
            l = Asm(); make_srd(l, 76, 68, 0, 2048*3584)
            l(f'v_lshlrev_b32 v58, 3, v{V_L16}'); l('s_lshl_b32 s32, s2, 2'); l(f's_add_u32 s32, s32, s{s_w}'); l('s_mul_i32 s32, s32, 7168')
            l('buffer_load_dword v253, v58, s[76:79], s32 offen')
            return (l.lines, 'pf')
        pf = opt.get('pfa', 'vq')
        def xe(p, t):
            if p == 0:
                g = list(setupG[(t-s_first)*perS:(t-s_first+1)*perS]) if s_first <= t < s_first+5 else []
                if t < 3: g = list(lnG[t*perL:(t+1)*perL]) + g
                if t == 0:
                    if 'k' in pf: g.append(pfw(S_WK))
                    if 'c' in pf: g += [pfc(0), pfc(1)]
                if '1' in pf and t == 6: g.append(pf1())
                if 'v' in pf and t == opt.get('pfv_t', 1): g.append(pfw(S_WV))
                return g
            if p == 1:
                g = list(KG[t*perK:(t+1)*perK])
                if 'q' in pf and t == 1: g.append(pfw(S_WQ))
                if 'x' in pf and t == 2: g.append(pfx(36))
                if 'x' in pf and t == 3: g.append(pfx(37))
                if '2' in pf and t == 5: g.append(pf1())
                return g
            if p == 2:
                g = []
                if t < nv: g += VGs[t*perV:(t+1)*perV] + ([idld] if t == 0 else [])
                if t == nv: g += zero
                if t == 6: g += [(srds, None)]
                if t == 7: g += [(pollpre, None)]
                return g
            return []
        late_pf = opt.get('pflate', {})
        def xl(p, t):
            g = []
            t0 = 4 if lnfill else 2
            if p == 0 and t0 <= t < t0+4: g.append(lnsig(t-t0))
            if p == 2 and t == sigt: g.append((sig, None))
            k = late_pf.get((p, t))
            if k == 'v': g.append(pfw(S_WV))
            if k == 'q': g.append(pfw(S_WQ))
            if k == '1': g.append(pf1())
            if k == 'a': g.append(pfx(36))
            if k == 'b': g.append(pfx(37))
            return g
        assert sigt >= nv + 1 and sigt <= 6 and 48 % nv == 0
        P.start_compute()
        self.stamp()
        P.run(ps, extra_early=xe, extra_late=xl)
        self.stamp()
        if p16:
            q_to_frags16(a, 64, QA, QB)
            for e in range(48): a(f'v_accvgpr_write_b32 a{e}, 0')
        else: self.q_to_frags_cvt()
        chk = ['s_waitcnt vmcnt(0)', 'v_and_b32 v232, v234, v232', 'v_cmp_ne_u32 vcc, v234, v232', 'v_cmp_ne_u32 s[54:55], 1, v235', 's_nop 3',
               's_and_b32 s32, s54, 0xff', 's_or_b32 s32, s32, vcc_lo', 's_or_b32 s32, s32, vcc_hi', 's_cmp_eq_u32 s32, 0']
        for l in [f's_cmp_eq_u32 s{s_w}, 0', f's_cbranch_scc0 {N}_polled', f's_mov_b32 s{s_cnt}, 0', f'{N}_poll:'] + chk + \
                 [f's_cbranch_scc1 {N}_polled', f's_add_u32 s{s_cnt}, s{s_cnt}, 1', f's_cmp_ge_u32 s{s_cnt}, 0x20000', f's_cbranch_scc1 {N}_polled',
                  ] + ([f's_sleep {opt.get("sleep", 0)}'] if opt.get("sleep", 0) else []) + pollld + [f's_branch {N}_poll', f'{N}_polled:']: a(l)
        a('s_barrier')
        for g in KV0 + VV0:
            for l in g[0]: a(l)
        self.stamp()
        self.q_to_frags_srd()
        return M


class Main2(Main):
    def emit_head(self):
        a = self.a; N = self.name; opt = self.opt
        S_CK, S_WK, S_X, S_O, S_WV, S_WQ = 4, 8, 12, 16, 92, 60
        S_H, S_G, S_GW = 76, 48, 52
        a(f's_cmp_ge_u32 s2, 256')
        a(f's_cbranch_scc1 {N}_end')
        self.stamp()
        a(f's_load_dwordx2 s[90:91], s[0:1], {KA_CKV}')
        a(f's_load_dwordx4 s[96:99], s[0:1], {KA_WUK}')
        a(f's_load_dwordx2 s[34:35], s[0:1], {KA_WS}')
        a(f's_load_dwordx2 s[64:65], s[0:1], {KA_AX}')
        a(f's_load_dwordx2 s[38:39], s[0:1], {KA_GW}')
        a(f's_load_dwordx2 s[66:67], s[0:1], {KA_WQ}')
        a(f's_load_dwordx2 s[68:69], s[0:1], {KA_W1}')
        a(f's_load_dwordx2 s[86:87], s[0:1], {KA_B1}')
        a(f's_load_dwordx2 s[70:71], s[0:1], {KA_WO}')
        a(f's_load_dwordx2 s[72:73], s[0:1], {KA_W2}')
        a(f's_load_dwordx2 s[100:101], s[0:1], {KA_DBG}')
        a(f'v_lshrrev_b32 v1, 6, v0')
        a(f'v_and_b32 v2, 63, v0')
        a(f'v_lshlrev_b32 v{V_L16}, 4, v2')
        a(f'v_readfirstlane_b32 s{s_w}, v1')
        a(f's_and_b32 s{s_t0}, s2, 7')
        a(f's_lshr_b32 s{s_t1}, s2, 3')
        a(f's_lshl_b32 s{s_h}, s{s_t0}, 2')
        a(f's_and_b32 s{s_t0}, s{s_t1}, 3')
        a(f's_add_u32 s{s_h}, s{s_h}, s{s_t0}')
        a(f's_lshr_b32 s{s_i}, s{s_t1}, 2')
        a(f's_add_u32 s{s_g1}, s{s_i}, 1')
        a(f's_lshl_b32 s{s_g1}, s{s_g1}, 2')
        a(f's_lshl_b32 s36, s{s_i}, 2'); a(f's_add_u32 s36, s36, s{s_w}')
        a(f's_lshl_b32 s37, s{s_i}, 2'); a(f's_sub_u32 s37, 60, s37'); a(f's_add_u32 s37, s37, s{s_w}')
        vq = VmQueue()
        a('s_waitcnt lgkmcnt(0)')
        make_srd(a, S_CK, 90, 0, 2*MB); make_srd(a, S_WK, 96, 0, 4*MB); make_srd(a, S_WV, 98, 0, 4*MB)
        make_srd(a, S_X, 64, 0, 2*MB); make_srd(a, S_GW, 38, 0, 1024); make_srd(a, S_WQ, 66, 0, 4*MB)
        KV = ProjKV(a, vq, s_w, S_CK, S_WK, S_WV, ACCK=64, ACCV=64, VR=40, VT=33, SG=(38, 39, 64, 65, 66, 67, 90), stamps=self.st, opt=opt)
        KV.setup(s_i, s_h)
        LB_ = 232
        a(f's_lshl_b32 s82, s2, 3'); a(f's_lshl_b32 s83, s{s_w}, 1'); a('s_add_u32 s82, s82, s83')
        a('s_lshl_b32 s83, s82, 2'); a('s_lshl_b32 s82, s82, 10')
        a(f'buffer_load_dwordx4 v[{LB_}:{LB_+3}], v{V_L16}, s[{S_X}:{S_X+3}], s82 offen'); vq.push('ln')
        a(f'buffer_load_dwordx4 v[{LB_+4}:{LB_+7}], v{V_L16}, s[{S_X}:{S_X+3}], s82 offen offset:1024'); vq.push('ln')
        a(f'buffer_load_dwordx4 v[{LB_+16}:{LB_+19}], v{V_L16}, s[{S_GW}:{S_GW+3}], 0 offen'); vq.push('ln')
        rest0 = KV.prologue(opt.get('kvpro', 2))
        P = Proj(a, vq, s_w, 16384, 65536, ACC=64, FB=(192, 216), fbk='a', VA=8, V_L16=V_L16, VT=33, SG=40,
                 wflags=(' nt' if opt.get('nt', False) else ''), stamps=self.st, opt=opt)
        P.setup_addrs(set_l16=False)
        make_srd(a, S_O, 34, WS_K, 32*MB)
        make_srd(a, S_H, 34, WS_H, 2*MB); make_srd(a, S_G, 34, WS_G, 8192)
        real_a = self.a; tmp_a = Asm(); self.a = tmp_a; self.mtmp = 232
        M = self.setup_attn_regs()
        self.a = real_a; M.a = real_a
        c = 0x3e0293ee
        setup = tmp_a.lines + [f'v_mov_b32 v2, {hex(c)}', f'v_mov_b32 v3, {hex(c)}']
        setupG = [(setup[k:k+4], None) for k in range(0, len(setup), 4)]
        perS = -(-len(setupG)//6)
        vq.wait_for(a, 'ln')
        gen_proj.R.V_L16 = V_L16
        st_save = STF.st; STF.st = ' sc1'
        gen_proj.emit_ln_compute(a, LB_, S_H, S_G, 82, 83, 64)
        for _ in range(3): vq.push('lnst')
        a('s_getreg_b32 s33, hwreg(HW_REG_XCC_ID, 0, 4)')
        a('s_or_b32 s33, s33, 0x50')
        make_srd(a, 76, 34, WS_HF, 4096)
        a(f's_lshl_b32 s32, s{s_h}, 7')
        a('v_mov_b32 v58, 0'); a(f'v_lshrrev_b32 v59, 2, v{V_L16}')
        a(f's_or_b32 s{s_t0}, s{s_w}, s{s_i}'); a(f's_cmp_eq_u32 s{s_t0}, 0'); a('s_cselect_b32 exec_lo, -1, 0'); a('s_mov_b32 exec_hi, 0')
        a('buffer_store_dword v58, v59, s[76:79], s32 offen sc1'); vq.push('lnst')
        a('s_mov_b64 exec, -1')
        if opt.get('fusefin'):
            make_srd(a, 76, 34, WS_FL, 112*128)
            a('s_lshl_b32 s32, s2, 7')
            a(f's_cmp_eq_u32 s{s_w}, 0'); a('s_cselect_b32 exec_lo, -1, 0'); a('s_mov_b32 exec_hi, 0')
            a('buffer_store_dword v58, v59, s[76:79], s32 offen sc1'); vq.push('lnst')
            a('s_mov_b64 exec, -1')
        a(f's_and_b32 s91, s{s_h}, 3'); a(f's_cmp_eq_u32 s{s_w}, 0'); a('s_cselect_b32 s91, s91, 0xff')
        npre = 8*opt.get('kvpre2', 3)
        for g in rest0[:npre]: KV.emit_group(g)
        KV.initial = rest0[npre:]
        a(f's_lshl_b32 s{s_t0}, s{s_h}, 6'); a(f's_lshl_b32 s{s_t1}, s{s_i}, 3'); a(f's_add_u32 s{s_t0}, s{s_t0}, s{s_t1}')
        a(f's_lshl_b32 s{s_t1}, s{s_w}, 1'); a(f's_add_u32 s{s_t0}, s{s_t0}, s{s_t1}'); a(f's_lshl_b32 s{s_t0}, s{s_t0}, 13')
        for k in range(4):
            a(f's_add_u32 s{50+k}, s{s_t0}, {k*4096}')
            a(f's_add_u32 s{96+k}, s{s_t0}, {16*MB + k*4096}')
        STF.st = opt.get('kvst', '')
        KG = frag_store_groups(P, 'K', 'v', S_O, 50, None, v_scale=2, tag='kst')
        VGs = frag_store_groups(P, 'V', 'a', S_O, 96, 40, tag='vst')
        STF.st = st_save
        nv = opt.get('vstages', 3); sigt = opt.get('sigt', nv+1)
        perV = len(VGs)//nv
        KV0 = self.kv_groups('K', 6); VV0 = self.kv_groups('V', 4)
        zero = [([f'v_accvgpr_write_b32 a{4*k+e}, 0' for e in range(4)], None) for k in range(32)]
        srds = self.kv_srd_lines()
        dbg = Asm(); make_srd(dbg, 76, 100, 0, 256)
        hfl = Asm(); make_srd(hfl, 92, 34, WS_HF, 4096)
        def lnsig(k): return (dbg.lines + ['v_mov_b32 v58, 0', 'v_mov_b32 v59, s33', f's_cmp_eq_u32 s91, {k}', 's_cselect_b64 exec, 1, 0',
               f'buffer_store_byte v59, v58, s[76:79], s2 offen sc1', 's_mov_b64 exec, -1'], 'flag')
        idaddr = [f'v_lshlrev_b32 v57, 1, v{V_L16}', f's_lshr_b32 s{s_t1}, s{s_h}, 2', f's_and_b32 s32, s{s_h}, 3', 's_lshl_b32 s32, s32, 3', f's_add_u32 s48, s32, s{s_t1}']
        idld = (dbg.lines + idaddr + ['buffer_load_ubyte v56, v57, s[76:79], s48 offen sc1'], 'id')
        sig = dbg.lines + hfl.lines + [f's_cmp_eq_u32 s{s_w}, 0', f's_cbranch_scc0 {N}_nosig', f's_mov_b32 s{s_cnt}, 0',
               f'{N}_idchk:',
               'v_readfirstlane_b32 s32, v56', 's_and_b32 s32, s32, 0x40', 's_cmp_lg_u32 s32, 0', f's_cbranch_scc1 {N}_idok',
               f's_add_u32 s{s_cnt}, s{s_cnt}, 1', f's_cmp_ge_u32 s{s_cnt}, 0x20000', f's_cbranch_scc1 {N}_idok',
               'buffer_load_ubyte v56, v57, s[76:79], s48 offen sc1', 's_waitcnt vmcnt(0)', 's_nop 0', f's_branch {N}_idchk',
               f'{N}_idok:',
               'v_cmp_ne_u32 vcc, s33, v56', 's_nop 3', 's_and_b32 s32, vcc_lo, 0xff', 's_cmp_eq_u32 s32, 0',
               f's_cbranch_scc1 {N}_samexcd', 'buffer_wbl2 sc1', 's_waitcnt vmcnt(0)', f'{N}_samexcd:',
               f's_lshl_b32 s32, s{s_h}, 7', f's_lshl_b32 s{s_t1}, s{s_i}, 2', f's_add_u32 s32, s32, s{s_t1}',
               'v_mov_b32 v41, 0', 'v_mov_b32 v42, 1', 's_mov_b64 exec, 1',
               'buffer_store_dword v42, v41, s[92:95], s32 offen sc1', 's_mov_b64 exec, -1', f'{N}_nosig:']
        pollld = ['buffer_load_dword v232, v233, s[76:79], 0 offen sc1', 'buffer_load_dword v235, v233, s[92:95], s91 offen sc1']
        pollpre = dbg.lines + hfl.lines + [f's_lshl_b32 s91, s{s_h}, 7', f'v_lshrrev_b32 v233, 2, v{V_L16}', 'v_mov_b32 v234, 0x40404040',
                   f's_cmp_eq_u32 s{s_w}, 0', f's_cbranch_scc0 {N}_nopoll0'] + pollld + [f'{N}_nopoll0:']
        initQ = [f's_lshl_b32 s{P.s_a0}, s36, 15', f's_lshl_b32 s{P.s_a1}, s37, 15',
                 f's_lshl_b32 s{P.s_wo}, s{s_w}, 17', f's_lshl_b32 s49, s{s_h}, 8', f's_add_u32 s{P.s_wo}, s{P.s_wo}, s49']
        qpass = [dict(swap=False, srdA=S_X, srdW=S_WQ, init=initQ, epi=lambda: None, acck='v')]
        Q0 = P.dma_stage(S_X, S_WQ, (0, 0), pre=initQ); Q1 = P.dma_stage(S_X, S_WQ, (0, 1)); Q2 = P.dma_stage(S_X, S_WQ, (0, 2))
        def pfw(srd_): return ([f'v_lshrrev_b32 v58, 5, v{V_L16}', 'v_lshlrev_b32 v58, 13, v58', f'v_bfe_u32 v59, v{V_L16}, 4, 1', 'v_lshl_add_u32 v58, v59, 7, v58',
               f's_lshl_b32 s32, s{s_w}, 4', f's_lshl_b32 s49, s{s_i}, 6', 's_add_u32 s32, s32, s49', 's_lshl_b32 s32, s32, 13',
               f's_lshl_b32 s49, s{s_h}, 8', 's_add_u32 s32, s32, s49', 's_mov_b32 exec_hi, 0',
               f'buffer_load_dword v253, v58, s[{srd_}:{srd_+3}], s32 offen', 's_mov_b64 exec, -1'], 'pf')
        def pf1():
            l = Asm(); make_srd(l, 76, 68, 0, 2048*3584)
            l(f'v_lshlrev_b32 v58, 3, v{V_L16}'); l('s_lshl_b32 s32, s2, 2'); l(f's_add_u32 s32, s32, s{s_w}'); l('s_mul_i32 s32, s32, 7168')
            l('buffer_load_dword v253, v58, s[76:79], s32 offen')
            return (l.lines, 'pf')
        kvpf = opt.get('kvpf', {7: 'q', 9: '1'})
        def kvx(t):
            early, late = [], []
            if 1 <= t <= 6: early += setupG[(t-1)*perS:t*perS]
            if 2 <= t <= 5: late += [lnsig(t-2)]
            if kvpf.get(t) == 'q': late += [pfw(S_WQ)]
            if kvpf.get(t) == '1': late += [pf1()]
            if t == 13: late += Q0[:4]
            if t == 14: early += Q0[4:]; late += Q1[:4]
            if t == 15: early += Q1[4:]; late += Q2[:3]
            return early, late
        def handover():
            return (0, 0), P.read_addr_update(), P.kstep_reads(0, 0)
        KV.start()
        self.stamp()
        KV.run(kvx, handover)
        P.lq = list(KV.lq); P.g_pending = Q2[3:]
        self.stamp()
        a('s_nop 7')
        for g in KG: P.emit_group(g)
        self.stamp()
        def xe(p, t):
            g = []
            if t < nv: g += VGs[t*perV:(t+1)*perV] + ([idld] if t == 0 else [])
            if t == nv: g += zero[:16]
            if t == nv+1: g += zero[16:]
            if t == 6: g += [(srds, None)]
            if t == 7: g += [(pollpre, None)]
            return g
        def xl(p, t):
            return [(sig, None)] if t == sigt else []
        assert sigt >= nv + 1 and sigt <= 6 and 48 % nv == 0
        P.run(qpass, extra_early=xe, extra_late=xl)
        self.stamp()
        self.q_to_frags_cvt()
        chk = ['s_waitcnt vmcnt(0)', 'v_and_b32 v232, v234, v232', 'v_cmp_ne_u32 vcc, v234, v232', 'v_cmp_ne_u32 s[54:55], 1, v235', 's_nop 3',
               's_and_b32 s32, s54, 0xff', 's_or_b32 s32, s32, vcc_lo', 's_or_b32 s32, s32, vcc_hi', 's_cmp_eq_u32 s32, 0']
        for l in [f's_cmp_eq_u32 s{s_w}, 0', f's_cbranch_scc0 {N}_polled', f's_mov_b32 s{s_cnt}, 0', f'{N}_poll:'] + chk + \
                 [f's_cbranch_scc1 {N}_polled', f's_add_u32 s{s_cnt}, s{s_cnt}, 1', f's_cmp_ge_u32 s{s_cnt}, 0x20000', f's_cbranch_scc1 {N}_polled',
                  ] + ([f's_sleep {opt.get("sleep", 0)}'] if opt.get("sleep", 0) else []) + pollld + [f's_branch {N}_poll', f'{N}_polled:']: a(l)
        a('s_barrier')
        for g in KV0 + VV0:
            for l in g[0]: a(l)
        self.stamp()
        self.q_to_frags_srd()
        return M
```

```python
from asmlib import *
from layout import *
from gen_proj2 import Proj, SLOT, v, ar
MF16 = 'v_mfma_f32_16x16x32_bf16'

class Proj16(Proj):
    def __init__(self, a, vq, s_w, ring_lo, ring_start, FBL, V_WD=60, **kw):
        super().__init__(a, vq, s_w, ring_lo, ring_start, **kw)
        VA = self.V_AR
        self.V_AR, self.V_AB, self.V_WR, self.V_WB, self.V_AD, self.V_WD = VA, VA+2, VA+4, VA+12, VA+20, V_WD
        self.FBL = FBL
        self.nfresh = 6

    def setup_addrs(self, set_l16=True):
        a = self.a; T = self.VT; w = self.s_w
        a(f'v_and_b32 v{T}, 63, v0')
        if set_l16: a(f'v_lshlrev_b32 v{self.V_L16}, 4, v{T}')
        a(f's_lshl_b32 s{self.s_wW}, s{w}, 12')
        a(f's_lshl_b32 s{self.s_wA}, s{w}, 13')
        a(f's_add_u32 s{self.s_wA}, s{self.s_wA}, 16384')
        a(f's_mov_b32 s{self.s_fill}, {self.start}')
        a(f's_mov_b32 s{self.s_rd}, {self.start}')
        a(f'v_and_b32 v{T+1}, 15, v{T}'); a(f'v_lshrrev_b32 v{T+2}, 4, v{T}')
        a(f'v_bfe_u32 v{T+3}, v{T+1}, 1, 3'); a(f'v_xor_b32 v{T+3}, v{T+3}, v{T+2}'); a(f'v_lshlrev_b32 v{T+3}, 4, v{T+3}')
        a(f'v_lshl_add_u32 v{T+3}, v{T+1}, 7, v{T+3}')
        a(f'v_add_u32 v{self.V_AB}, s{self.s_wA}, v{T+3}')
        a(f'v_xor_b32 v{self.V_AB+1}, 64, v{self.V_AB}')
        a(f'v_bfe_u32 v{T+3}, v{T}, 2, 2')
        a(f'v_lshl_add_u32 v{T+4}, v{T+2}, 3, v{T+3}'); a(f'v_lshlrev_b32 v{T+4}, 8, v{T+4}')
        a(f'v_and_b32 v{T+5}, 1, v{T+2}'); a(f'v_lshl_add_u32 v{T+5}, v{T+3}, 1, v{T+5}')
        a(f'v_lshl_add_u32 v{T+4}, v{T+5}, 5, v{T+4}')
        a(f'v_and_b32 v{T+5}, 3, v{T}'); a(f'v_lshl_add_u32 v{self.V_WB}, v{T+5}, 3, v{T+4}')
        for ds in range(1, 8): a(f'v_xor_b32 v{self.V_WB+ds}, {ds << 5}, v{self.V_WB}')
        a(f'v_lshrrev_b32 v{T+3}, 3, v{T}'); a(f'v_and_b32 v{T+4}, 7, v{T}'); a(f'v_lshrrev_b32 v{T+5}, 1, v{T+3}')
        for j in range(4):
            a(f'v_xor_b32 v{T+6}, v{T+4}, v{T+5}')
            if j & 1: a(f'v_xor_b32 v{T+6}, 4, v{T+6}')
            a(f'v_lshlrev_b32 v{T+6}, 4, v{T+6}')
            a(f'v_lshl_add_u32 v{T+6}, v{T+3}, 10, v{T+6}')
            a(f'v_add_u32 v{self.V_AD+j}, {j*(8192-1024)}, v{T+6}')
        a(f'v_lshrrev_b32 v{T+3}, 4, v{T}'); a(f'v_bfe_u32 v{T+4}, v{T}, 1, 3')
        a(f'v_lshlrev_b32 v{T+5}, 1, v{T+3}'); a(f'v_xor_b32 v{T+4}, v{T+4}, v{T+5}')
        a(f'v_and_b32 v{T+5}, 1, v{T}'); a(f'v_lshlrev_b32 v{T+5}, 4, v{T+5}'); a(f'v_lshl_add_u32 v{T+5}, v{T+3}, 13, v{T+5}')
        for j in range(4):
            a(f'v_xor_b32 v{T+6}, {j >> 1}, v{T+4}'); a(f'v_lshl_add_u32 v{T+6}, v{T+6}, 5, v{T+5}')
            a(f'v_add_u32 v{self.V_WD+j}, {j*(32768-1024)}, v{T+6}')

    def store_addrs(self, VK, VV):
        a = self.a; T = self.VT
        a(f'v_and_b32 v{T}, 63, v0'); a(f'v_and_b32 v{T+1}, 15, v{T}'); a(f'v_bfe_u32 v{T+2}, v{T}, 4, 1'); a(f'v_lshrrev_b32 v{T+3}, 5, v{T}')
        a(f'v_lshl_add_u32 v{T+1}, v{T+2}, 5, v{T+1}'); a(f'v_lshlrev_b32 v{T+1}, 4, v{T+1}')
        a(f'v_lshl_add_u32 v{VK}, v{T+3}, 10, v{T+1}'); a(f'v_add_u32 v{VK+1}, 256, v{VK}')
        a(f'v_lshl_add_u32 v{VV}, v{T+3}, 12, v{T+1}'); a(f'v_add_u32 v{VV+1}, 256, v{VV}')

    def read_addr_update(self):
        l = [f'v_add_u32 v{self.V_AR+k}, s{self.s_rd}, v{self.V_AB+k}' for k in range(2)]
        l += [f'v_add_u32 v{self.V_WR+k}, s{self.s_rd}, v{self.V_WB+k}' for k in range(8)]
        return l + self.adv(self.s_rd)

    def kstep_reads(self, ks, buf):
        F = self.FBL[buf]; fr = self.fr; r = []
        def act(ss): r.append((f'ds_read_b128 {fr(F[ss],4)}, v{self.V_AR+ks} offset:{ss*2048}', ('a', buf, ss)))
        def wf(ds):
            r.append((f'ds_read_b64_tr_b16 {fr(F[4+ds],2)}, v{self.V_WR+ds} offset:{ks*8192}', ('w', buf, ds)))
            r.append((f'ds_read_b64_tr_b16 {fr(F[4+ds]+2,2)}, v{self.V_WR+ds} offset:{ks*8192+1024}', ('w', buf, ds)))
        act(0); wf(0); act(1); act(2); act(3)
        for ds in range(1, 8): wf(ds)
        return r

    def acc(self, kind, ds, ss):
        if kind == 'V': return self.ACC + 8*(8*(ss >> 1) + ds) + 4*(ss & 1)
        return self.ACC + 8*(4*(ds >> 1) + ss) + 4*(ds & 1)

    def kstep_mfmas(self, buf, swap, first, acck='v'):
        F = self.FBL[buf]; fr = self.fr; l = []
        for ds in range(8):
            for ss in range(4):
                acc = (v if acck == 'v' else ar)(self.acc('V' if swap else 'K', ds, ss), 4)
                W = fr(F[4+ds], 4); A = fr(F[ss], 4); c = '0' if first else acc
                l.append((f'{MF16} {acc}, {A}, {W}, {c}' if swap else f'{MF16} {acc}, {W}, {A}, {c}', [('w', buf, ds), ('a', buf, ss)]))
        return l

    def stage(self, swap, first, need_tag, early, late, last=False, acck='v'):
        a = self.a
        if self.opt.get('stagestamps', True): self.st('stage')
        def split(groups):
            out = []
            for lines, tag in groups:
                ok = all((l.startswith('v_') and 'vcc' not in l and 'lane' not in l) or (l.startswith('buffer_store') and l is lines[-1]) for l in lines)
                if ok and len(lines) > 1:
                    for l in lines: out.append(([l], tag if l.startswith('buffer_') else None))
                else: out.append((lines, tag))
            return out
        early = split(list(early or [])); late = split(list(late or []))
        eslot = {}
        for k in range(len(early)): eslot.setdefault(int(1 + k*(30.0/len(early))), []).append(early[k])
        lslot = {}
        for k in range(len(late)): lslot.setdefault(min(31, 4 + int(k*(27.0/len(late)))), []).append(late[k])
        def emit_rd(x):
            a(x[0]); self.lq.append(x[1])
        def need(tags):
            idx = max([k for k, t in enumerate(self.lq) if t in tags], default=-1)
            if idx < 0: return
            n = min(15, len(self.lq) - 1 - idx)
            a(f's_waitcnt lgkmcnt({n})')
            self.lq = self.lq[len(self.lq)-n:] if n else []
        for ks in range(2):
            buf = ks
            pre = []
            if ks == 1 and not last:
                a('s_waitcnt lgkmcnt(0)'); self.lq = []
                if not self.opt.get('novm'): self.vq.wait_for(a, need_tag)
                for l in (self.prebar(*self.cur) if getattr(self, 'prebar', None) else []): a(l)
                a('s_barrier')
                pre = self.read_addr_update()
            if self.opt.get('onewait', True) and self.lq:
                a('s_waitcnt lgkmcnt(0)'); self.lq = []
            mf = self.kstep_mfmas(buf, swap, first and ks == 0, acck)
            if ks == 0: rd = self.kstep_reads(1, 1)
            elif not last: rd = self.kstep_reads(0, 0)
            else: rd = []
            for k, (m, tags) in enumerate(mf):
                if not self.opt.get('onewait', True): need(tags)
                a(m)
                if k == 0:
                    for l in pre[:10]: a(l)
                if k < len(rd): emit_rd(rd[k])
                if k == 1:
                    for l in pre[10:]: a(l)
                for g in (eslot.get(k, []) if ks == 0 else lslot.get(k, [])): self.emit_group(g)

def frag_store_groups16(P, kind, acck, srd, s_offs, tmp, VS, v_scale=None, tag='st'):
    G = []; k = 0
    if kind == 'V': items = [(u, ds) for ds in range(8) for u in range(2)]
    else: items = [(rho, ss) for rho in range(4) for ss in range(4)]
    for x, y in items:
        if kind == 'V':
            u, ds = x, y; b = P.ACC + 8*(8*u + ds); vo = VS + (ds & 1); so = s_offs + 2*u; imm = (ds >> 1)*1024
        else:
            rho, ss = x, y; b = P.ACC + 8*(4*rho + ss); vo = VS + (ss & 1); off = rho*2048; so = s_offs + 2*(ss >> 1) + (off >> 12); imm = off & 4095
        if acck == 'a':
            T = tmp + 8*(k & 1)
            G.append(([f'v_accvgpr_read_b32 v{T+e}, a{b+e}' for e in range(4)], None))
            G.append(([f'v_accvgpr_read_b32 v{T+e}, a{b+e}' for e in range(4, 8)], None))
        else: T = b
        if v_scale is not None:
            G.append(([f'v_pk_mul_f32 v[{T+e}:{T+e+1}], v[{T+e}:{T+e+1}], v[{v_scale}:{v_scale+1}]' for e in range(0, 8, 2)], None))
        l = [f'v_cvt_pk_bf16_f32 v{T+q}, v{T+2*q}, v{T+2*q+1}' for q in range(4)]
        l.append(f'buffer_store_dwordx4 v[{T}:{T+3}], v{vo}, s[{srd}:{srd+3}], s{so} offen offset:{imm}{STF.st}')
        G.append((l, tag)); k += 1
    return G

def q_to_frags16(a, ACC, QA, QB):
    a('s_nop 7')
    for st, Q in ((0, QA), (1, QB)):
        for rho in range(4):
            for b in range(2):
                base = ACC + 8*(4*rho + 2*st + b)
                for k in range(4): a(f'v_cvt_pk_bf16_f32 v{Q+4*(2*rho+b)+k}, v{base+2*k}, v{base+2*k+1}')
    a('s_nop 1')
    for Q in (QA, QB):
        for rho in range(4):
            X = Q + 8*rho; Y = X + 4
            for k in range(4): a(f'v_permlane16_swap_b32 v{X+k}, v{Y+k}')
            a('s_nop 1')
            for k in range(4): a(f'v_permlane32_swap_b32 v{X+k}, v{Y+k}')
            a('s_nop 1') if False else None
```

```python
from asmlib import *
from layout import *

MF = 'v_mfma_f32_32x32x16_bf16'
def v(b, n=1): return f'v{b}' if n == 1 else f'v[{b}:{b+n-1}]'
def ar(b, n=1): return f'a{b}' if n == 1 else f'a[{b}:{b+n-1}]'
SLOT = 49152

class VmQueue:
    def __init__(self): self.q = []
    def push(self, tag): self.q.append(tag)
    def count_for(self, tag):
        idx = [i for i, t in enumerate(self.q) if t == tag]
        if not idx: return None
        return len(self.q) - 1 - idx[-1]
    def wait_for(self, a, tag):
        n = self.count_for(tag)
        if n is None: return
        assert n <= 63
        a(f's_waitcnt vmcnt({n})')
        self.q = self.q[len(self.q)-n:] if n else []

class Proj:
    def __init__(self, a, vq, s_w, ring_lo, ring_start, ACC=64, FB=(0, 24), fbk='a', VA=8, V_L16=32, VT=33, SG=40, stamps=None, wflags='', opt=None):
        self.a, self.vq, self.s_w = a, vq, s_w
        self.lo, self.start, self.hi = ring_lo, ring_start, ring_lo + 3*SLOT
        self.ACC, self.FB = ACC, FB
        self.fr = ar if fbk == 'a' else v
        self.V_AR, self.V_WR, self.V_AB, self.V_WB, self.V_AD, self.V_WD = VA, VA+4, VA+8, VA+12, VA+16, VA+20
        self.V_L16, self.VT = V_L16, VT
        (self.s_a0, self.s_a1, self.s_wo, self.s_fill, self.s_rd, self.s_wW, self.s_wA, self.s_t) = range(SG, SG+8)
        self.st = stamps or (lambda n='': None)
        self.wflags = wflags
        self.opt = opt or {}
        self.lq = []

    def setup_addrs(self, set_l16=True):
        a = self.a; T = self.VT; w = self.s_w
        a(f'v_and_b32 v{T}, 63, v0')
        if set_l16: a(f'v_lshlrev_b32 v{self.V_L16}, 4, v{T}')
        a(f's_lshl_b32 s{self.s_wW}, s{w}, 12')
        a(f's_lshl_b32 s{self.s_wA}, s{w}, 13')
        a(f's_add_u32 s{self.s_wA}, s{self.s_wA}, 16384')
        a(f's_mov_b32 s{self.s_fill}, {self.start}')
        a(f's_mov_b32 s{self.s_rd}, {self.start}')
        a(f'v_and_b32 v{T+1}, 31, v{T}')
        a(f'v_lshrrev_b32 v{T+2}, 5, v{T}')
        a(f'v_bfe_u32 v{T+3}, v{T+1}, 1, 3')
        a(f'v_xor_b32 v{T+3}, v{T+3}, v{T+2}')
        a(f'v_lshlrev_b32 v{T+3}, 4, v{T+3}')
        a(f'v_lshl_add_u32 v{T+3}, v{T+1}, 7, v{T+3}')
        a(f'v_add_u32 v{self.V_AB}, s{self.s_wA}, v{T+3}')
        for ks in range(1, 4):
            a(f'v_xor_b32 v{self.V_AB+ks}, {ks << 5}, v{self.V_AB}')
        a(f'v_bfe_u32 v{T+3}, v{T}, 2, 2')
        a(f'v_lshl_add_u32 v{T+4}, v{T+2}, 3, v{T+3}')
        a(f'v_lshlrev_b32 v{T+4}, 8, v{T+4}')
        a(f'v_bfe_u32 v{T+5}, v{T}, 4, 1')
        a(f'v_lshl_add_u32 v{T+4}, v{T+5}, 5, v{T+4}')
        a(f'v_and_b32 v{T+5}, 3, v{T}')
        a(f'v_lshl_add_u32 v{T+4}, v{T+5}, 3, v{T+4}')
        for dt in range(4):
            a(f'v_xor_b32 v{T+5}, {dt}, v{T+3}')
            a(f'v_lshl_add_u32 v{self.V_WB+dt}, v{T+5}, 6, v{T+4}')
        a(f'v_lshrrev_b32 v{T+3}, 3, v{T}')
        a(f'v_and_b32 v{T+4}, 7, v{T}')
        a(f'v_lshrrev_b32 v{T+5}, 1, v{T+3}')
        for j in range(4):
            a(f'v_xor_b32 v{T+6}, v{T+4}, v{T+5}')
            if j & 1: a(f'v_xor_b32 v{T+6}, 4, v{T+6}')
            a(f'v_lshlrev_b32 v{T+6}, 4, v{T+6}')
            a(f'v_lshl_add_u32 v{T+6}, v{T+3}, 10, v{T+6}')
            a(f'v_add_u32 v{self.V_AD+j}, {j*(8192-1024)}, v{T+6}')
        a(f'v_lshrrev_b32 v{T+3}, 4, v{T}')
        a(f'v_bfe_u32 v{T+4}, v{T}, 2, 2')
        a(f'v_xor_b32 v{T+4}, v{T+4}, v{T+3}')
        a(f'v_lshlrev_b32 v{T+4}, 6, v{T+4}')
        a(f'v_and_b32 v{T+5}, 3, v{T}')
        a(f'v_lshl_add_u32 v{T+4}, v{T+5}, 4, v{T+4}')
        a(f'v_lshl_add_u32 v{T+4}, v{T+3}, 13, v{T+4}')
        for j in range(4):
            a(f'v_add_u32 v{self.V_WD+j}, {j*(32768-1024)}, v{T+4}')

    def adv(self, s):
        return [f's_add_u32 s{s}, s{s}, {SLOT}', f's_cmp_ge_u32 s{s}, {self.hi}', f's_cselect_b32 s{s}, {self.lo}, s{s}']

    def dma_stage(self, srdA, srdW, tag, pre=None):
        g = []
        def ld(vo, srd_, so, off, fl=''): return f'buffer_load_dwordx4 v{vo}, s[{srd_}:{srd_+3}], s{so} offen' + (f' offset:{off}' if off else '') + fl + ' lds'
        for j in range(4):
            l = []
            if j == 0: l += list(pre or []) + [f's_add_u32 m0, s{self.s_fill}, s{self.s_wW}', 's_nop 0']
            l.append(ld(self.V_WD+j, srdW, self.s_wo, j*1024, self.wflags))
            if j == 3: l.append(f's_add_u32 s{self.s_wo}, s{self.s_wo}, {64*8192}')
            g.append((l, tag))
        for t, so in ((0, self.s_a0), (1, self.s_a1)):
            for j in range(4):
                l = []
                if j == 0:
                    if t == 0: l += [f's_add_u32 s{self.s_t}, s{self.s_fill}, s{self.s_wA}', f's_mov_b32 m0, s{self.s_t}', 's_nop 0']
                    else: l += [f's_add_u32 m0, s{self.s_t}, 4096', 's_nop 0']
                l.append(ld(self.V_AD+j, srdA, so, j*1024))
                if j == 3: l.append(f's_add_u32 s{so}, s{so}, 128')
                g.append((l, tag))
        g[-1][0].extend(self.adv(self.s_fill))
        return g

    def emit_group(self, g):
        lines, tag = g
        if lines and lines[0] == '@wait':
            self.vq.wait_for(self.a, tag); return
        for l in lines: self.a(l)
        if tag is not None and any(l.startswith('buffer_') for l in lines): self.vq.push(tag)

    def read_addr_update(self):
        l = []
        for k in range(4):
            l.append(f'v_add_u32 v{self.V_AR+k}, s{self.s_rd}, v{self.V_AB+k}')
            l.append(f'v_add_u32 v{self.V_WR+k}, s{self.s_rd}, v{self.V_WB+k}')
        return l + self.adv(self.s_rd)

    def kstep_reads(self, ks, buf):
        F = self.FB[buf]; fr = self.fr
        def act(t): return [f'ds_read_b128 {fr(F+16+4*t,4)}, v{self.V_AR+ks} offset:{t*4096}']
        def wf(dt): return [f'ds_read_b64_tr_b16 {fr(F+4*dt,2)}, v{self.V_WR+dt} offset:{ks*4096}',
                            f'ds_read_b64_tr_b16 {fr(F+4*dt+2,2)}, v{self.V_WR+dt} offset:{ks*4096+1024}']
        if self.opt.get('cnt', True):
            return [(l, ('a', buf, 0)) for l in act(0)] + [(l, ('w', buf, 0)) for l in wf(0)] + [(l, ('a', buf, 1)) for l in act(1)] + \
                   [(l, ('w', buf, dt)) for dt in (1, 2, 3) for l in wf(dt)]
        return [(l, None) for l in act(0) + wf(0) + wf(1) + act(1) + wf(2) + wf(3)]

    def kstep_mfmas(self, buf, swap, first, acck='v'):
        F = self.FB[buf]; fr = self.fr
        l = []
        for dt in range(4):
            for st in range(2):
                acc = (v if acck == 'v' else ar)(self.ACC + 16*(4*st+dt), 16)
                W = fr(F+4*dt, 4); A = fr(F+16+4*st, 4)
                c = '0' if first else acc
                l.append(f'{MF} {acc}, {A}, {W}, {c}' if swap else f'{MF} {acc}, {W}, {A}, {c}')
        return l

    def stage(self, swap, first, need_tag, early, late, last=False, acck='v'):
        a = self.a
        if self.opt.get('stagestamps', True): self.st('stage')
        early = list(early or []); late = list(late or [])
        eslot = {}
        for k in range(len(early)):
            eslot.setdefault(int(1 + k*(23.0/len(early))), []).append(early[k])
        lslot = {}
        for k in range(len(late)):
            lslot.setdefault(min(7, 2 + int(k*(6.0/len(late)))), []).append(late[k])
        cnt = self.opt.get('cnt', True)
        def emit_rd(x):
            a(x[0]); self.lq.append(x[1])
        def need(tags):
            idx = max([k for k, t in enumerate(self.lq) if t in tags], default=-1)
            if idx < 0: return
            n = len(self.lq) - 1 - idx
            a(f's_waitcnt lgkmcnt({n})')
            self.lq = self.lq[idx+1:]
        per = self.opt.get('rdper', 2)
        for ks in range(4):
            buf = ks & 1
            pre = []
            if not cnt or (ks == 3 and not last):
                a('s_waitcnt lgkmcnt(0)'); self.lq = []
            if ks == 3 and not last:
                if not self.opt.get('novm'): self.vq.wait_for(a, need_tag)
                for l in (self.prebar(*self.cur) if getattr(self, 'prebar', None) else []): a(l)
                if not self.opt.get('nobar'): a('s_barrier')
                pre = self.read_addr_update()
            mf = self.kstep_mfmas(buf, swap, first and ks == 0, acck)
            if ks < 3: rd = self.kstep_reads(ks+1, buf ^ 1)
            elif not last: rd = self.kstep_reads(0, buf ^ 1)
            else: rd = []
            for k, m in enumerate(mf):
                if cnt: need([('w', buf, k >> 1), ('a', buf, k & 1)])
                a(m)
                if k == 0:
                    for l in pre[:8]: a(l)
                for x in rd[per*k:per*(k+1)]: emit_rd(x)
                if k == 1:
                    for l in pre[8:]: a(l)
                for g in (eslot.get(8*ks+k, []) if ks < 3 else lslot.get(k, [])): self.emit_group(g)

    def prologue(self, p0, after0=None):
        for t in range(2):
            for g in self.dma_stage(p0['srdA'], p0['srdW'], (0, t), pre=(p0['init'] if t == 0 else None)): self.emit_group(g)
            if t == 0 and after0: after0()
        self.g_pending = self.dma_stage(p0['srdA'], p0['srdW'], (0, 2))
        nf = getattr(self, 'nfresh', 3)
        for g in self.g_pending[:nf]: self.emit_group(g)
        self.g_pending = self.g_pending[nf:]

    def start_compute(self):
        a = self.a
        self.vq.wait_for(a, (0, 0))
        a('s_barrier')
        for l in self.read_addr_update(): a(l)
        self.lq = []
        for x in self.kstep_reads(0, 0):
            a(x[0]); self.lq.append(x[1])

    def run(self, passes, extra_early=None, extra_late=None):
        n = len(passes); total = 8*n
        xe = extra_early or (lambda p, t: []); xl = extra_late or (lambda p, t: [])
        for T in range(total):
            p, t = divmod(T, 8); ps = passes[p]
            early = self.g_pending; self.g_pending = []
            late = []
            T3 = T+3
            if T3 < total:
                p3, t3 = divmod(T3, 8)
                G = self.dma_stage(passes[p3]['srdA'], passes[p3]['srdW'], (p3, t3), pre=(passes[p3]['init'] if t3 == 0 else None))
                nf = getattr(self, 'nfresh', 3)
                late = G[:nf]; self.g_pending = G[nf:]
            ex = list(xe(p, t)); merged = []
            e0 = list(early)
            tot = len(e0) + len(ex)
            ie = ix = 0
            for k in range(tot):
                if ix < len(ex) and (ie >= len(e0) or ix*len(e0) <= ie*len(ex) - 0.5*len(ex) or not e0): merged.append(ex[ix]); ix += 1
                else: merged.append(e0[ie]); ie += 1
            nxt = divmod(T+1, 8) if T+1 < total else None
            self.cur = (p, t)
            xlate = list(xl(p, t))
            for g in ex + xlate:
                if any('m0' in l for l in g[0]): assert T3 >= total and not (g in ex and e0), 'm0 clobber'
            self.stage(ps['swap'], t == 0, nxt, merged, late + xlate, last=(nxt is None), acck=ps.get('acck', 'v'))
            if t == 7:
                if self.opt.get('stagestamps', True) or p+1 < n: self.st('epi')
                ps['epi']()


from gen_proj import allreduce, unpack8, make_srd
import gen_proj

def emit_ln(a, base, X, V_L16, S_AX, S_GW, S_H, S_G, s_row, s_rowg, vq, part):
    if part == 'load':
        a(f'buffer_load_dwordx4 {v(base,4)}, v{V_L16}, s[{S_AX}:{S_AX+3}], s{s_row} offen'); vq.push('ln')
        a(f'buffer_load_dwordx4 {v(base+4,4)}, v{V_L16}, s[{S_AX}:{S_AX+3}], s{s_row} offen offset:1024'); vq.push('ln')
        a(f'buffer_load_dwordx4 {v(base+16,4)}, v{V_L16}, s[{S_GW}:{S_GW+3}], 0 offen'); vq.push('ln')
    else:
        vq.wait_for(a, 'ln')
        gen_proj.R.V_L16 = V_L16
        gen_proj.emit_ln_compute(a, base, S_H, S_G, s_row, s_rowg, X)
        for _ in range(3): vq.push('lnst')

def frag_store_groups(P, kind, acck, srd, s_offs, tmp, v_scale=None, tag='st'):
    G = []
    k = 0
    for dt in range(4):
        for st in range(2):
            A = P.ACC + 16*(4*st+dt)
            for t in range(2):
                b = A + 8*t
                f = (4*t+dt) if kind == 'V' else (2*dt+t)
                so = s_offs + 2*st + (f >> 2)
                if acck == 'a':
                    T = tmp + 8*(k & 1)
                    G.append(([f'v_accvgpr_read_b32 v{T+e}, a{b+e}' for e in range(4)], None))
                    G.append(([f'v_accvgpr_read_b32 v{T+e}, a{b+e}' for e in range(4, 8)], None))
                else:
                    T = b
                if v_scale is not None:
                    G.append(([f'v_pk_mul_f32 v[{T+e}:{T+e+1}], v[{T+e}:{T+e+1}], v[{v_scale}:{v_scale+1}]' for e in range(0, 8, 2)], None))
                l = [f'v_cvt_pk_bf16_f32 v{T+q}, v{T+2*q}, v{T+2*q+1}' for q in range(4)]
                l.append(f'buffer_store_dwordx4 v[{T}:{T+3}], v{P.V_L16}, s[{srd}:{srd+3}], s{so} offen offset:{(f & 3)*1024}{STF.st}')
                G.append((l, tag))
                k += 1
    return G

def emit_l1(a, N='l1', **opt):
    S_X, S_C, S_WK, S_WV, S_O, S_H, S_G, S_GW = 4, 8, 16, 24, 28, 32, 36, 60
    s_w, s_h, s_r = 20, 21, 22
    st_ = Stamps(a, opt.get('diag'))
    a('s_cmp_ge_u32 s2, 256')
    a(f's_cbranch_scc1 {N}_end')
    a(f's_load_dwordx4 s[64:67], s[0:1], {KA_AX}')
    a(f's_load_dwordx4 s[68:71], s[0:1], {KA_WUK}')
    a(f's_load_dwordx2 s[76:77], s[0:1], {KA_GW}')
    a(f's_load_dwordx2 s[78:79], s[0:1], {KA_WS}')
    a(f's_load_dwordx2 s[88:89], s[0:1], {KA_WQ}')
    a('v_lshrrev_b32 v1, 6, v0')
    a('s_and_b32 s23, s2, 7')
    a(f'v_readfirstlane_b32 s{s_w}, v1')
    a('s_lshr_b32 s48, s2, 3')
    a(f's_lshl_b32 s{s_h}, s23, 2')
    a('s_and_b32 s23, s48, 3')
    a(f's_add_u32 s{s_h}, s{s_h}, s23')
    a(f's_lshr_b32 s{s_r}, s48, 2')
    st_('start')
    vq = VmQueue()
    P = Proj(a, vq, s_w, 0, 0, stamps=st_, wflags=(' nt' if opt.get('nt', True) else ''), opt=opt)
    P.setup_addrs()
    a('s_waitcnt lgkmcnt(0)')
    make_srd(a, S_X, 64, 0, 2*MB); make_srd(a, S_C, 66, 0, 2*MB)
    make_srd(a, S_WK, 68, 0, 4*MB); make_srd(a, S_WV, 70, 0, 4*MB)
    make_srd(a, S_O, 78, WS_K, 32*MB)
    make_srd(a, S_H, 78, WS_H, 2*MB); make_srd(a, S_G, 78, WS_G, 8192)
    make_srd(a, S_GW, 76, 0, 1024)
    a(f's_lshl_b32 s80, s2, 3'); a(f's_lshl_b32 s81, s{s_w}, 1'); a('s_add_u32 s80, s80, s81')
    a('s_lshl_b32 s81, s80, 2')
    a('s_lshl_b32 s80, s80, 10')
    lnend = opt.get('lnend', False)
    if not lnend: emit_ln(a, 192, 64, P.V_L16, S_X, S_GW, S_H, S_G, 80, 81, vq, 'load')
    c = 0x3e0293ee
    a(f'v_mov_b32 v2, {hex(c)}'); a(f'v_mov_b32 v3, {hex(c)}')
    init = [f's_lshl_b32 s{P.s_a0}, s{s_r}, 18', f's_lshl_b32 s49, s{s_w}, 16', f's_add_u32 s{P.s_a0}, s{P.s_a0}, s49',
            f's_add_u32 s{P.s_a1}, s{P.s_a0}, 32768',
            f's_lshl_b32 s{P.s_wo}, s{s_w}, 17', f's_lshl_b32 s49, s{s_h}, 8', f's_add_u32 s{P.s_wo}, s{P.s_wo}, s49']
    a(f's_lshl_b32 s82, s{s_h}, 6'); a(f's_lshl_b32 s83, s{s_r}, 3'); a('s_add_u32 s82, s82, s83')
    a(f's_lshl_b32 s83, s{s_w}, 1'); a('s_add_u32 s82, s82, s83'); a('s_lshl_b32 s82, s82, 13')
    for k in range(4):
        a(f's_add_u32 s{50+k}, s82, {k*4096}')
        a(f's_add_u32 s{84+k}, s82, {16*MB + k*4096}')
    KG = frag_store_groups(P, 'K', 'a', S_O, 50, 192, v_scale=2)
    per = len(KG)//8
    def vepi():
        a('s_nop 7'); a('s_nop 7')
        for g in frag_store_groups(P, 'V', 'v', S_O, 84, None): P.emit_group(g)
    ps = [dict(swap=False, srdA=S_C, srdW=S_WK, init=init, epi=lambda: None, acck='a'),
          dict(swap=True, srdA=S_C, srdW=S_WV, init=init, epi=vepi, acck='v')]
    P.prologue(ps[0])
    if not lnend: emit_ln(a, 192, 64, P.V_L16, S_X, S_GW, S_H, S_G, 80, 81, vq, 'compute')
    P.start_compute()
    def lnload():
        l = Asm(); q = VmQueue(); emit_ln(l, 216, 64, P.V_L16, S_X, S_GW, S_H, S_G, 80, 81, q, 'load')
        return [([x], 'ln') for x in l.lines]
    def xe(p, t):
        g = list(KG[t*per:(t+1)*per]) if p == 1 else []
        if opt.get('pfq', True) and (p, t) == tuple(opt.get('pfq_at', (1, 2))):
            l = Asm(); make_srd(l, 56, 88, 0, 4*MB)
            l(f'v_lshlrev_b32 v4, 3, v{P.V_L16}')
            l(f's_lshl_b32 s49, s2, 2'); l(f's_add_u32 s49, s49, s{s_w}'); l('s_lshl_b32 s49, s49, 12')
            l('buffer_load_dword v5, v4, s[56:59], s49 offen')
            g.append((l.lines, 'pf'))
        return g
    def xl(p, t):
        return lnload() if (lnend and p == 1 and t == 5) else []
    P.run(ps, extra_early=xe, extra_late=xl)
    if lnend: emit_ln(a, 216, 64, P.V_L16, S_X, S_GW, S_H, S_G, 80, 81, vq, 'compute')
    st_('stores')
    a('s_waitcnt vmcnt(0)')
    st_('end')
    st_.dump(100*MB, s_w, 250)
    a.label(f'{N}_end')
    a('s_endpgm')
```

```python
from asmlib import *
from layout import *
from gen_proj2 import VmQueue, v, ar
from gen_proj import make_srd

MF = 'v_mfma_f32_32x32x16_bf16'
NY, NO = 7, 16
NS = NY + NO
SLOT = 32768

def final_pointer_loads(a):
    a(f's_load_dwordx2 s[64:65], s[0:1], {KA_WO}')
    a(f's_load_dwordx4 s[68:71], s[0:1], {KA_W2}')
    a(f's_load_dwordx4 s[72:75], s[0:1], {KA_OUT}')

def emit_final(a, N='fin', NSL=4, inline=False, sync=None, stamps=None, **opt):
    S_WO, S_W2, S_CTX, S_U, S_G, S_B2, S_OUT, S_P, S_D = 4, 8, 12, 16, 24, 28, 32, 36, 56
    s_w, s_sb, s_mb, s_p = 20, 21, 22, 23
    s_sl, s_fr = 40, 41
    s_fill, s_rd, s_w4k, s_t, s_t1, s_t2, s_tile = 42, 43, 44, 45, 46, 47, 48
    ACCY, ACCO = 64, 128; FB = [192, 212]
    VL = 1; V_L16 = 2; T = 32
    V_TB = 8
    V_TA = 16
    V_LA = 21
    V_WO = 24; V_W2 = 28
    V_G = 40; V_B2 = 41; V_OA = 42; V_1G = 43
    st_ = stamps if inline else (RTStamps if opt.get('rt') else Stamps)(a, opt.get('diag'))
    if not inline:
        a('s_cmp_ge_u32 s2, 256')
        a(f's_cbranch_scc1 {N}_end')
    if inline:
        a('s_mov_b64 s[76:77], s[34:35]')
    else:
        final_pointer_loads(a)
        a(f's_load_dwordx2 s[76:77], s[0:1], {KA_WS}')
    if inline:
        a(f'v_mbcnt_lo_u32_b32 v{VL}, -1, 0'); a(f'v_mbcnt_hi_u32_b32 v{VL}, -1, v{VL}')
        a(f's_and_b32 s{s_t}, s2, 7')
    else:
        a('v_lshrrev_b32 v3, 6, v0')
        a(f'v_and_b32 v{VL}, 63, v0')
        a(f's_and_b32 s{s_t}, s2, 7')
        a(f'v_readfirstlane_b32 s{s_w}, v3')
    a(f's_lshr_b32 s{s_t1}, s2, 3')
    a(f's_lshr_b32 s{s_p}, s{s_t}, 1')
    a(f's_and_b32 s{s_t}, s{s_t}, 1'); a(f's_lshl_b32 s{s_t}, s{s_t}, 3'); a(f's_lshr_b32 s{s_t2}, s{s_t1}, 2'); a(f's_add_u32 s{s_sb}, s{s_t}, s{s_t2}')
    a(f's_and_b32 s{s_mb}, s{s_t1}, 3')
    a(f's_lshl_b32 s{s_tile}, s{s_sb}, 2'); a(f's_add_u32 s{s_tile}, s{s_tile}, s{s_mb}')
    st_('start')
    a(f'v_lshlrev_b32 v{V_L16}, 4, v{VL}')
    a(f's_lshl_b32 s{s_w4k}, s{s_w}, 12')
    a(f's_mov_b32 s{s_fill}, 0'); a(f's_mov_b32 s{s_rd}, 0')
    a(f'v_lshrrev_b32 v{T}, 4, v{VL}')
    a(f'v_bfe_u32 v{T+1}, v{VL}, 2, 2')
    a(f'v_xor_b32 v{T+1}, v{T+1}, v{T}')
    a(f'v_lshlrev_b32 v{T+1}, 6, v{T+1}')
    a(f'v_and_b32 v{T+2}, 3, v{VL}')
    a(f'v_lshl_add_u32 v{T+1}, v{T+2}, 4, v{T+1}')
    a(f'v_lshl_add_u32 v{T+3}, v{T}, 12, v{T+1}')
    a(f'v_lshl_add_u32 v{T+4}, v{T}, 10, v{T+1}')
    for j in range(4):
        a(f'v_add_u32 v{V_W2+j}, {j*(4*4096-1024)}, v{T+3}')
        a(f'v_add_u32 v{V_WO+j}, {j*(4*1024-1024)}, v{T+4}')
    a(f'v_lshrrev_b32 v{T}, 5, v{VL}')
    a(f'v_bfe_u32 v{T+1}, v{VL}, 2, 2')
    a(f'v_lshl_add_u32 v{T+2}, v{T}, 2, v{T+1}')
    a(f'v_lshlrev_b32 v{T+2}, 8, v{T+2}')
    a(f'v_bfe_u32 v{T+3}, v{VL}, 4, 1')
    a(f'v_lshl_add_u32 v{T+2}, v{T+3}, 5, v{T+2}')
    a(f'v_and_b32 v{T+3}, 3, v{VL}')
    a(f'v_lshl_add_u32 v{T+2}, v{T+3}, 3, v{T+2}')
    for tl in range(4):
        a(f'v_xor_b32 v{T+3}, {tl}, v{T+1}')
        a(f'v_lshl_add_u32 v{V_TB+tl}, v{T+3}, 6, v{T+2}')
    a(f'v_xor_b32 v{T+3}, s{s_w}, v{T+1}')
    a(f'v_lshl_add_u32 v{V_TB+4}, v{T+3}, 6, v{T+2}')
    a(f'v_and_b32 v{T+4}, 31, v{VL}')
    a(f'v_lshlrev_b32 v{T+5}, 2, v{T+4}')
    a(f'v_lshlrev_b32 v{T+6}, 1, v{T+4}')
    a(f'v_lshlrev_b32 v{V_OA}, 10, v{T+4}')
    a(f'v_lshl_add_u32 v{V_OA}, v{T}, 4, v{V_OA}')
    a('s_waitcnt lgkmcnt(0)')
    make_srd(a, S_WO, 64, 0, 4*MB); make_srd(a, S_W2, 68, 0, 1792*4096); make_srd(a, S_B2, 70, 0, 4096)
    make_srd(a, S_OUT, 72, 0, 2*MB)
    make_srd(a, S_CTX, 76, WS_CTX, 16*MB); make_srd(a, S_U, 76, WS_U, 16*112*1024); make_srd(a, S_G, 76, WS_G, 8192)
    make_srd(a, S_P, 76, WS_PART, 16*MB)
    vq = VmQueue()
    a(f's_lshl_b32 s{s_t}, s{s_sb}, 2'); a(f's_add_u32 s{s_t}, s{s_t}, s{s_w}')
    a(f's_lshl_b32 s{s_t1}, s{s_t}, 7'); a(f's_lshl_b32 s{s_t2}, s{s_t}, 6')
    a(f'buffer_load_dword v{V_G}, v{T+5}, s[{S_G}:{S_G+3}], s{s_t1} offen'); vq.push('g')
    a(f'buffer_load_ushort v{V_B2}, v{T+6}, s[{S_B2}:{S_B2+3}], s{s_t2} offen'); vq.push('g')

    if opt.get('tlb', False):
        a(f'v_mov_b32 v3, 0')
        a(f's_lshl_b32 s{s_t}, s{s_tile}, 17'); a(f's_mul_i32 s{s_t1}, s{s_p}, {32768+8192}'); a(f's_add_u32 s{s_t}, s{s_t}, s{s_t1}')
        a(f'buffer_load_dword v6, v3, s[{S_P}:{S_P+3}], s{s_t} offen sc1'); vq.push('g')
        a(f's_lshl_b32 s{s_t}, s{s_sb}, 17')
        a(f'buffer_load_dword v6, v3, s[{S_OUT}:{S_OUT+3}], s{s_t} offen sc1'); vq.push('g')

    ofirst = inline and opt.get('ofirst', True)
    tY, tO = (NO, 0) if ofirst else (0, NY)
    def part(t):
        if ofirst: return ('O', t) if t < NO else ('Y', t-NO)
        return ('Y', t) if t < NY else ('O', t-NY)
    def switch(t):
        if t == tY:
            return [f's_mul_i32 s{s_sl}, s{s_p}, {448*4096}', f's_lshl_b32 s{s_t}, s{s_w}, 16', f's_add_u32 s{s_sl}, s{s_sl}, s{s_t}',
                    f's_lshl_b32 s{s_t}, s{s_sb}, 8', f's_add_u32 s{s_sl}, s{s_sl}, s{s_t}',
                    f's_lshl_b32 s{s_t}, s{s_mb}, 2', f's_add_u32 s{s_t}, s{s_t}, s{s_w}', f's_mul_i32 s{s_fr}, s{s_t}, {112*1024}',
                    f's_mul_i32 s{s_t}, s{s_p}, {28*1024}', f's_add_u32 s{s_fr}, s{s_fr}, s{s_t}']
        if t == tO:
            return [f's_lshl_b32 s{s_sl}, s{s_p}, 20', f's_lshl_b32 s{s_t}, s{s_w}, 14', f's_add_u32 s{s_sl}, s{s_sl}, s{s_t}',
                    f's_lshl_b32 s{s_t}, s{s_mb}, 8', f's_add_u32 s{s_sl}, s{s_sl}, s{s_t}',
                    f's_lshl_b32 s{s_t}, s{s_sb}, 2', f's_add_u32 s{s_t}, s{s_t}, s{s_w}', f's_lshl_b32 s{s_fr}, s{s_t}, 18',
                    f's_lshl_b32 s{s_t}, s{s_p}, 16', f's_add_u32 s{s_fr}, s{s_fr}, s{s_t}']
        return []
    def adv(s): return [f's_add_u32 s{s}, s{s}, {SLOT}', f's_cmp_ge_u32 s{s}, {NSL*SLOT}', f's_cselect_b32 s{s}, 0, s{s}']
    def loads(t):
        p, _ = part(t)
        srdS, vo, step = (S_W2, V_W2, 64*4096) if p == 'Y' else (S_WO, V_WO, 64*1024)
        srdF = S_U if p == 'Y' else S_CTX
        g = []
        for j in range(4):
            l = []
            if j == 0: l += switch(t) + [f's_add_u32 s{s_t2}, s{s_fill}, s{s_w4k}', f's_mov_b32 m0, s{s_t2}', 's_nop 0']
            l.append(f'buffer_load_dwordx4 v{vo+j}, s[{srdS}:{srdS+3}], s{s_sl} offen' + (f' offset:{j*1024}' if j else '') + ' lds')
            if j == 3: l.append(f's_add_u32 s{s_sl}, s{s_sl}, {step}')
            g.append((l, t))
        for j in range(4):
            l = []
            if j == 0: l += [f's_add_u32 m0, s{s_t2}, 16384', 's_nop 0']
            l.append(f'buffer_load_dwordx4 v{V_L16}, s[{srdF}:{srdF+3}], s{s_fr} offen' + (f' offset:{j*1024}' if j else '') + ' lds')
            if j == 3: l += [f's_add_u32 s{s_fr}, s{s_fr}, 4096'] + adv(s_fill)
            g.append((l, t))
        return g
    def emit_g(g):
        for l in g[0]: a(l)
        vq.push(g[1])
    def addr_update():
        l = [f'v_add_u32 v{V_TA+k}, s{s_rd}, v{V_TB+k}' for k in range(5)]
        l.append(f'v_add_u32 v{V_LA}, s{s_rd}, v{V_L16}')
        return l + adv(s_rd)
    def reads(t, ks, buf):
        p, _ = part(t); F = FB[buf]; l = []
        if p == 'O':
            l.append(f's_nop 0' if False else f'ds_read_b128 {v(F+16,4)}, v{V_LA+1} offset:{ks*1024}')
            for mt in range(4):
                l.append(f'ds_read_b64_tr_b16 {v(F+4*mt,2)}, v{V_TA+mt} offset:{ks*4096}')
                l.append(f'ds_read_b64_tr_b16 {v(F+4*mt+2,2)}, v{V_TA+mt} offset:{ks*4096+2048}')
        else:
            l.append(f'ds_read_b64_tr_b16 {v(F+16,2)}, v{V_TA+4} offset:{ks*4096}')
            l.append(f'ds_read_b64_tr_b16 {v(F+18,2)}, v{V_TA+4} offset:{ks*4096+2048}')
            for mt in range(4):
                l.append(f'ds_read_b128 {v(F+4*mt,4)}, v{V_LA} offset:{16384+mt*4096+ks*1024}')
        return l
    def addr_update2():
        return [f's_add_u32 s{s_t1}, s{s_w4k}, 16384', f's_add_u32 s{s_t1}, s{s_t1}, s{s_rd}', f'v_add_u32 v{V_LA+1}, s{s_t1}, v{V_L16}']
    def mfmas(t, ks, buf):
        p, tt = part(t); F = FB[buf]; first = tt == 0 and ks == 0
        A0 = ACCY if p == 'Y' else ACCO
        return [f'{MF} {v(A0+16*mt,16)}, {v(F+4*mt,4)}, {v(F+16,4)}, ' + ('0' if first else v(A0+16*mt,16)) for mt in range(4)]

    if sync:
        for l in switch(0): a(l)
        sS, vS, stepS, sF = (S_WO, V_WO, 64*1024, S_CTX) if ofirst else (S_W2, V_W2, 64*4096, S_U)
        for t in range(NSL-1):
            a(f's_add_u32 m0, s{s_w4k}, {t*SLOT}'); a('s_nop 0')
            for j in range(4):
                a(f'buffer_load_dwordx4 v{vS+j}, s[{sS}:{sS+3}], s{s_sl} offen' + (f' offset:{j*1024}' if j else '') + ' lds'); vq.push(t)
            a(f's_add_u32 s{s_sl}, s{s_sl}, {stepS}')
        sync(s_sb, s_mb, s_p, s_tile, ofirst)
        for t in range(NSL-1):
            a(f's_add_u32 m0, s{s_w4k}, {t*SLOT+16384}'); a('s_nop 0')
            for j in range(4):
                a(f'buffer_load_dwordx4 v{V_L16}, s[{sF}:{sF+3}], s{s_fr} offen' + (f' offset:{j*1024}' if j else '') + ' lds'); vq.push(t)
            a(f's_add_u32 s{s_fr}, s{s_fr}, 4096')
        a(f's_mov_b32 s{s_fill}, {(NSL-1)*SLOT}')
    else:
        for t in range(NSL-1):
            for g in loads(t): emit_g(g)
    vq.wait_for(a, 0)
    a('s_barrier')
    if ofirst:
        a('v_mov_b32 v46, 0'); a('v_mov_b32 v47, 1')
        a(f's_cmp_eq_u32 s{s_w}, 0'); a('s_cselect_b64 exec, 1, 0')
        a('buffer_store_dword v47, v46, s[56:59], s60 offen sc1'); vq.push('uflag')
        a('s_mov_b64 exec, -1')
    for l in addr_update2() + addr_update() + reads(0, 0, 0): a(l)
    if not opt.get('rt'): st_('go')
    for t in range(NS):
        tn = t + NSL - 1
        if ofirst and t == NO - NSL - 2:
            a('buffer_load_dword v44, v45, s[56:59], 0 offen sc1'); vq.push('uf')
        if ofirst and tn == NO:
            vq.wait_for(a, 'uf')
            a('s_mov_b32 s49, 0')
            a.label(f'{N}_upoll')
            a('v_cmp_ne_u32 vcc, 1, v44'); a('s_nop 3'); a('s_and_b32 s50, vcc_lo, 0x7fff00'); a('s_cmp_eq_u32 s50, 0')
            a(f's_cbranch_scc1 {N}_upolled')
            a('s_add_u32 s49, s49, 1'); a('s_cmp_ge_u32 s49, 0x20000'); a(f's_cbranch_scc1 {N}_upolled')
            a('buffer_load_dword v44, v45, s[56:59], 0 offen sc1'); a('s_waitcnt vmcnt(0)'); a(f's_branch {N}_upoll')
            a.label(f'{N}_upolled')
        gs = loads(tn) if tn < NS else []
        if not opt.get('rt') and not opt.get('nostage'): st_(f's{t}')
        for ks in range(4):
            buf = ks & 1
            a('s_waitcnt lgkmcnt(0)')
            pre = []
            if ks == 3 and t+1 < NS:
                vq.wait_for(a, t+1)
                a('s_barrier')
                pre = addr_update2() + addr_update()
            mf = mfmas(t, ks, buf)
            if ks < 3: rd = reads(t, ks+1, buf ^ 1)
            elif t+1 < NS: rd = reads(t+1, 0, buf ^ 1)
            else: rd = []
            n = len(rd); per = -(-n // 3)
            for k, m in enumerate(mf):
                a(m)
                if k == 0:
                    for l in pre: a(l)
                for l in rd[per*k:per*(k+1)]: a(l)
                if ks < 3 and gs and ((ks*4+k) % 3 != 2):
                    emit_g(gs.pop(0))
        assert not gs
    st_('loopend')
    a(f'v_sub_f32 v{V_1G}, 1.0, v{V_G}')
    a(f's_lshl_b32 s{s_t}, s{s_tile}, 17')
    a(f's_lshl_b32 s{s_t1}, s{s_p}, 13'); a(f's_lshl_b32 s{s_t2}, s{s_w}, 11'); a(f's_add_u32 s{s_t1}, s{s_t1}, s{s_t2}'); a(f's_add_u32 s{s_t1}, s{s_t1}, s{s_t}')
    a('s_nop 4')
    OWN = 192
    for mt in range(4):
        o = ACCO+16*mt; y = ACCY+16*mt
        for e in range(16): a(f'v_mul_f32 v{o+e}, v{o+e}, v{V_G}')
        for e in range(16): a(f'v_fmac_f32 v{o+e}, v{y+e}, v{V_1G}')
        a(f's_cmp_eq_u32 s{s_p}, {mt}')
        a(f's_cbranch_scc1 {N}_own{mt}')
        a(f's_add_u32 s{s_t2}, s{s_t1}, {mt*32768}')
        for k in range(8): a(f'v_cvt_pk_bf16_f32 v{o+k}, v{o+2*k}, v{o+2*k+1}')
        for q in range(2):
            a(f'buffer_store_dwordx4 {v(o+4*q,4)}, v{V_L16}, s[{S_P}:{S_P+3}], s{s_t2} offen offset:{q*1024} sc1')
        a(f's_branch {N}_next{mt}')
        a.label(f'{N}_own{mt}')
        for e in range(16): a(f'v_mov_b32 v{OWN+e}, v{o+e}')
        a.label(f'{N}_next{mt}')
    if not opt.get('rt'): st_('published')
    a(f's_lshl_b32 s{s_t}, s{s_tile}, 17'); a(f's_lshl_b32 s{s_t1}, s{s_p}, 15'); a(f's_add_u32 s{s_t}, s{s_t}, s{s_t1}')
    a(f's_lshl_b32 s{s_t1}, s{s_w}, 11'); a(f's_add_u32 s{s_t}, s{s_t}, s{s_t1}')
    for k in range(1, 4):
        a(f's_add_u32 s{s_t1}, s{s_p}, {k}'); a(f's_and_b32 s{s_t1}, s{s_t1}, 3'); a(f's_lshl_b32 s{s_t1}, s{s_t1}, 13'); a(f's_add_u32 s{50+k}, s{s_t1}, s{s_t}')
    a('s_mov_b32 s54, 0')
    a.label(f'{N}_poll')
    for k in range(1, 4):
        for q in range(2):
            a(f'buffer_load_dwordx4 {v(ACCY+8*k+4*q,4)}, v{V_L16}, s[{S_P}:{S_P+3}], s{50+k} offen offset:{q*1024} sc1')
    a('s_add_u32 s54, s54, 1')
    a('s_waitcnt vmcnt(0)')
    R0 = ACCY+8
    a(f'v_max3_u32 v{T}, v{R0}, v{R0+1}, v{R0+2}')
    for k in range(3, 23, 2): a(f'v_max3_u32 v{T}, v{T}, v{R0+k}, v{R0+k+1}')
    a(f'v_max_u32 v{T}, v{T}, v{R0+23}')
    a(f'v_cmp_eq_u32 vcc, -1, v{T}')
    a('s_cmp_ge_u32 s54, 0x20000')
    a(f's_cbranch_scc1 {N}_poll_end')
    a(f's_cbranch_vccnz {N}_poll')
    a.label(f'{N}_poll_end')
    st_('gathered')
    a(f'v_lshlrev_b32 v{V_B2}, 16, v{V_B2}')
    a(f'v_mul_f32 v{V_B2}, v{V_B2}, v{V_1G}')
    D = OWN
    for e in range(16): a(f'v_add_f32 v{D+e}, v{D+e}, v{V_B2}')
    for k in range(1, 4):
        for q in range(8):
            r = ACCY+8*k+q
            a(f'v_lshlrev_b32 v{T}, 16, v{r}'); a(f'v_and_b32 v{T+1}, 0xffff0000, v{r}')
            a(f'v_add_f32 v{D+2*q}, v{D+2*q}, v{T}'); a(f'v_add_f32 v{D+2*q+1}, v{D+2*q+1}, v{T+1}')
    X = ACCO
    for jj in range(4):
        a(f'v_cvt_pk_bf16_f32 v{X+2*jj}, v{D+4*jj}, v{D+4*jj+1}')
        a(f'v_cvt_pk_bf16_f32 v{X+2*jj+1}, v{D+4*jj+2}, v{D+4*jj+3}')
    a(f's_lshl_b32 s{s_t}, s{s_sb}, 17'); a(f's_lshl_b32 s{s_t1}, s{s_w}, 15'); a(f's_add_u32 s{s_t}, s{s_t}, s{s_t1}')
    a(f's_lshl_b32 s{s_t1}, s{s_mb}, 8'); a(f's_add_u32 s{s_t}, s{s_t}, s{s_t1}')
    a(f's_lshl_b32 s{s_t1}, s{s_p}, 6'); a(f's_add_u32 s{s_t}, s{s_t}, s{s_t1}')
    for pr in range(2):
        b = X+4*pr
        a(f'v_permlane32_swap_b32 v{b}, v{b+2}')
        a(f'v_permlane32_swap_b32 v{b+1}, v{b+3}')
        a('s_nop 1')
        a(f'buffer_store_dwordx4 {v(b,4)}, v{V_OA}, s[{S_OUT}:{S_OUT+3}], s{s_t} offen offset:{32*pr}')
    a('s_waitcnt vmcnt(0)')
    st_('end')
    if opt.get('rt'):
        a('s_cmp_eq_u32 s2, 0'); a(f's_cbranch_scc0 {N}_nodbg'); a(f's_cmp_eq_u32 s{s_w}, 0'); a(f's_cbranch_scc0 {N}_nodbg')
        make_srd(a, 56, 76, 100*MB, 1 << 20); make_srd(a, 60, 74, 0, 256)
        a(f'v_lshrrev_b32 v3, 2, v{V_L16}')
        a(f's_mov_b32 s49, {opt.get("rt_wg", 0)*1024}')
        a('buffer_load_dword v4, v3, s[56:59], s49 offen')
        a(f'v_lshlrev_b32 v6, 4, v{V_L16}')
        for k in range(16):
            a(f's_mov_b32 s49, {k*16384}')
            a(f'buffer_load_dword v{64+k}, v6, s[56:59], s49 offen offset:252')
            a(f'buffer_load_dword v{80+k}, v6, s[56:59], s49 offen offset:248')
        a('s_waitcnt vmcnt(0)')
        for k in range(1, 16):
            a(f'v_max_u32 v64, v64, v{64+k}'); a(f'v_min_u32 v80, v80, v{80+k}')
        a('s_nop 1')
        a('v_readlane_b32 s50, v64, 0'); a('v_readlane_b32 s51, v80, 0')
        for ln in range(1, 64):
            a(f'v_readlane_b32 s52, v64, {ln}'); a(f'v_readlane_b32 s53, v80, {ln}'); a('s_max_u32 s50, s50, s52'); a('s_min_u32 s51, s51, s53')
        a('v_writelane_b32 v4, s50, 11'); a('v_writelane_b32 v4, s51, 10')
        a('v_cmp_gt_u32 vcc, 48, v3')
        a('s_and_saveexec_b64 s[50:51], vcc')
        a('buffer_store_dword v4, v3, s[60:63], 0 offen')
        a('s_mov_b64 exec, s[50:51]')
        a('v_cmp_gt_u32 vcc, 16, v3')
        a('s_and_saveexec_b64 s[50:51], vcc')
        a('buffer_store_dword v255, v3, s[60:63], 0 offen offset:48')
        a('s_mov_b64 exec, s[50:51]')
        a('s_waitcnt vmcnt(0)')
        a.label(f'{N}_nodbg')
    elif inline:
        st_.dump(100*MB, s_w, 253)
    else:
        st_.dump(100*MB, s_w, 240)
    if not inline:
        a.label(f'{N}_end')
        a('s_endpgm')
```

```python
from asmlib import *
from layout import *
import gen_attn2 as A
from gen_attn2 import *
from gen_proj2 import Proj, VmQueue, frag_store_groups
from gen_proj import make_srd
import gen_proj, gen_final
from gen_kv import ProjKV
from gen_proj16 import Proj16, frag_store_groups16, q_to_frags16

class Main(Attn):
    def emit_phasec(self):
        a = self.a; N = self.name; opt = self.opt
        a('s_barrier')
        make_srd(a, 76, 34, WS_FL, 112*128)
        a(f's_lshr_b32 s27, s{s_h}, 3'); a('s_lshl_b32 s27, s27, 3'); a(f's_add_u32 s27, s27, s{s_i}'); a('s_lshl_b32 s27, s27, 7')
        a(f's_and_b32 s29, s{s_h}, 7'); a('s_lshl_b32 s29, s29, 2'); a('s_add_u32 s27, s27, s29')
        a('v_mov_b32 v41, s27')
        ofirst = opt.get('l3', {}).get('ofirst', True)
        a('s_mov_b32 s60, 0x7fffff00')
        a('s_mov_b32 s30, 1')
        a(f's_cmp_eq_u32 s{s_i}, {self.nomlp_i}'); a(f's_cbranch_scc1 {N}_cnou')
        a('s_mul_i32 s27, s80, 37'); a('s_lshr_b32 s27, s27, 8'); a('s_mul_i32 s29, s27, 7'); a('s_sub_u32 s29, s80, s29')
        a('s_lshl_b32 s29, s29, 1'); a('s_and_b32 s31, s81, 1'); a('s_add_u32 s29, s29, s31'); a('s_lshl_b32 s29, s29, 2')
        a('s_lshl_b32 s27, s27, 2'); a('s_lshr_b32 s31, s81, 1'); a('s_add_u32 s27, s27, s31'); a('s_add_u32 s27, s27, 32'); a('s_lshl_b32 s27, s27, 7'); a('s_add_u32 s27, s27, s29')
        if ofirst: a('s_mov_b32 s60, s27')
        else: a('v_writelane_b32 v41, s27, 1'); a('s_or_b32 s30, s30, 2')
        a.label(f'{N}_cnou')
        a(f's_cmp_eq_u32 s{s_i}, 7'); a(f's_cbranch_scc0 {N}_cflag')
        a('s_sub_u32 s27, s2, 224'); a('s_lshl_b32 s27, s27, 1'); a('s_add_u32 s27, s27, 48'); a('s_lshl_b32 s27, s27, 7')
        a('v_writelane_b32 v41, s27, 2'); a('s_add_u32 s27, s27, 128'); a('v_writelane_b32 v41, s27, 3'); a('s_or_b32 s30, s30, 12')
        a.label(f'{N}_cflag')
        a('v_mov_b32 v42, 1')
        a(f's_cmp_eq_u32 s{s_w}, 0'); a('s_cselect_b32 exec_lo, s30, 0'); a('s_mov_b32 exec_hi, 0')
        a('buffer_store_dword v42, v41, s[76:79], 0 offen sc1')
        a('s_mov_b64 exec, -1')
        def poll(s_sb, s_mb, s_p, s_tile, ofirst=False):
            make_srd(a, 56, 76, WS_FL, 112*128)
            a(f's_sub_u32 s49, 15, s{s_sb}'); a(f's_min_u32 s49, s49, s{s_sb}'); a(f's_lshl_b32 s50, s{s_p}, 3'); a('s_add_u32 s49, s49, s50'); a('s_lshl_b32 s49, s49, 7')
            a(f's_lshl_b32 s50, s{s_p}, 2'); a(f's_add_u32 s50, s50, s{s_mb}'); a('s_add_u32 s50, s50, 32'); a('s_lshl_b32 s50, s50, 7'); a('s_sub_u32 s50, s50, 32')
            a(f's_add_u32 s51, s{s_tile}, 48'); a('s_lshl_b32 s51, s51, 7')
            a('v_lshrrev_b32 v45, 2, v2')
            a('v_mov_b32 v46, s50'); a('v_mov_b32 v47, s49'); a('v_cmp_gt_u32 vcc, 32, v45'); a('s_nop 1'); a('v_cndmask_b32 v46, v46, v47, vcc')
            a('v_add_u32 v45, v45, v46'); a('v_writelane_b32 v45, s51, 22')
            a(f's_cmp_eq_u32 s{s_w}, {1 if opt.get("pollw1", True) else 0}'); a(f's_cbranch_scc0 {N}_cpolled')
            a('s_mov_b32 s49, 0')
            a.label(f'{N}_cpoll')
            a('buffer_load_dword v44, v45, s[56:59], 0 offen sc1')
            a('s_waitcnt vmcnt(0)')
            a('v_cmp_ne_u32 vcc, 1, v44'); a('s_nop 3'); a(f's_and_b32 s50, vcc_lo, {0xff if ofirst else 0x7fffff}'); a('s_cmp_eq_u32 s50, 0')
            a(f's_cbranch_scc1 {N}_cpolled')
            a('s_add_u32 s49, s49, 1'); a('s_cmp_ge_u32 s49, 0x20000'); a(f's_cbranch_scc1 {N}_cpolled')

            if opt.get("csleep", 0): a(f's_sleep {opt.get("csleep")}')
            a(f's_branch {N}_cpoll')
            a.label(f'{N}_cpolled')
            a('s_barrier')
        gen_final.emit_final(a, N + '_fin', inline=True, sync=poll, stamps=self.st, **opt.get('l3', {}))

    def emit_head(self):
        a = self.a; N = self.name; opt = self.opt
        S_CK, S_WK, S_X, S_O, S_WV, S_WQ = 4, 8, 12, 16, 92, 60
        S_H, S_G, S_GW = 76, (56 if opt.get('lnfill', False) else 48), 52
        a(f's_cmp_ge_u32 s2, 256')
        a(f's_cbranch_scc1 {N}_end')
        self.stamp()
        a(f's_load_dwordx2 s[34:35], s[0:1], {KA_WS}')
        a(f's_load_dwordx2 s[64:65], s[0:1], {KA_AX}')
        a(f's_load_dwordx2 s[90:91], s[0:1], {KA_CKV}')
        a(f's_load_dwordx4 s[96:99], s[0:1], {KA_WUK}')
        a(f's_load_dwordx2 s[38:39], s[0:1], {KA_GW}')
        a(f's_load_dwordx2 s[66:67], s[0:1], {KA_WQ}')
        a(f's_load_dwordx2 s[68:69], s[0:1], {KA_W1}')
        a(f's_load_dwordx2 s[86:87], s[0:1], {KA_B1}')
        a(f's_load_dwordx2 s[70:71], s[0:1], {KA_WO}')
        a(f's_load_dwordx2 s[72:73], s[0:1], {KA_W2}')
        a(f's_load_dwordx2 s[100:101], s[0:1], {KA_DBG}')
        a(f'v_lshrrev_b32 v1, 6, v0')
        a(f'v_and_b32 v2, 63, v0')
        a(f'v_lshlrev_b32 v{V_L16}, 4, v2')
        a(f'v_readfirstlane_b32 s{s_w}, v1')
        a(f's_and_b32 s{s_t0}, s2, 7')
        a(f's_lshr_b32 s{s_t1}, s2, 3')
        a(f's_lshl_b32 s{s_h}, s{s_t0}, 2')
        a(f's_and_b32 s{s_t0}, s{s_t1}, 3')
        a(f's_add_u32 s{s_h}, s{s_h}, s{s_t0}')
        a(f's_lshr_b32 s{s_i}, s{s_t1}, 2')
        a(f's_add_u32 s{s_g1}, s{s_i}, 1')
        a(f's_lshl_b32 s{s_g1}, s{s_g1}, 2')
        a(f's_lshl_b32 s36, s{s_i}, 2'); a(f's_add_u32 s36, s36, s{s_w}')
        a(f's_lshl_b32 s37, s{s_i}, 2'); a(f's_sub_u32 s37, 60, s37'); a(f's_add_u32 s37, s37, s{s_w}')
        vq = VmQueue()
        p16 = opt.get('p16')
        if p16:
            P = Proj16(a, vq, s_w, 16384, 16384, FBL=[[192+4*k for k in range(12)], [4*k for k in range(12)]], V_WD=60, ACC=64, fbk='a', VA=8, V_L16=V_L16, VT=33, SG=40,
                       wflags=(' nt' if opt.get('nt', True) else ''), stamps=self.st, opt=opt)
        else:
            P = Proj(a, vq, s_w, 16384, 16384, ACC=64, FB=(192, 216), fbk='a', VA=8, V_L16=V_L16, VT=33, SG=40,
                     wflags=(' nt' if opt.get('nt', True) else ''), stamps=self.st, opt=opt)
        P.setup_addrs(set_l16=False)
        lnfill = opt.get('lnfill', False)
        LB_ = 40
        a(f's_lshl_b32 s82, s2, 3'); a(f's_lshl_b32 s83, s{s_w}, 1'); a('s_add_u32 s82, s82, s83')
        a('s_lshl_b32 s83, s82, 2'); a('s_lshl_b32 s82, s82, 10')
        a('s_waitcnt lgkmcnt(0)')
        make_srd(a, S_CK, 90, 0, 2*MB); make_srd(a, S_WK, 96, 0, 4*MB)
        def lnloads():
            make_srd(a, S_X, 64, 0, 2*MB); make_srd(a, S_GW, 38, 0, 1024)
            a(f'buffer_load_dwordx4 v[{LB_}:{LB_+3}], v{V_L16}, s[{S_X}:{S_X+3}], s82 offen'); vq.push('ln')
            a(f'buffer_load_dwordx4 v[{LB_+4}:{LB_+7}], v{V_L16}, s[{S_X}:{S_X+3}], s82 offen offset:1024'); vq.push('ln')
            a(f'buffer_load_dwordx4 v[{LB_+16}:{LB_+19}], v{V_L16}, s[{S_GW}:{S_GW+3}], 0 offen'); vq.push('ln')
        if not lnfill: lnloads()
        initKV = [f's_lshl_b32 s{P.s_a0}, s{s_i}, 18', f's_lshl_b32 s49, s{s_w}, 16', f's_add_u32 s{P.s_a0}, s{P.s_a0}, s49',
                  f's_add_u32 s{P.s_a1}, s{P.s_a0}, 32768',
                  f's_lshl_b32 s{P.s_wo}, s{s_w}, 17', f's_lshl_b32 s49, s{s_h}, 8', f's_add_u32 s{P.s_wo}, s{P.s_wo}, s49']
        initQ = [f's_lshl_b32 s{P.s_a0}, s36, 15', f's_lshl_b32 s{P.s_a1}, s37, 15',
                 f's_lshl_b32 s{P.s_wo}, s{s_w}, 17', f's_lshl_b32 s49, s{s_h}, 8', f's_add_u32 s{P.s_wo}, s{P.s_wo}, s49']
        ps = [dict(swap=False, srdA=S_CK, srdW=S_WK, init=initKV, epi=lambda: None, acck='v'),
              dict(swap=True, srdA=S_CK, srdW=S_WV, init=initKV, epi=lambda: None, acck='a'),
              dict(swap=False, srdA=S_X, srdW=S_WQ, init=initQ, epi=lambda: None, acck='v')]
        P.prologue(ps[0], after0=(lnloads if lnfill else None))
        make_srd(a, S_WV, 98, 0, 4*MB)
        make_srd(a, S_WQ, 66, 0, 4*MB)
        make_srd(a, S_O, 34, WS_K, 32*MB)
        make_srd(a, S_H, 34, WS_H, 2*MB); make_srd(a, S_G, 34, WS_G, 8192)
        real_a = self.a; tmp_a = Asm(); self.a = tmp_a
        M = self.setup_attn_regs()
        self.a = real_a; M.a = real_a
        c = 0x3e0293ee
        setup = tmp_a.lines + [f'v_mov_b32 v2, {hex(c)}', f'v_mov_b32 v3, {hex(c)}'] + [f'v_accvgpr_write_b32 a{e}, 0' for e in range(48 if p16 else 0, 64)]
        setupG = [(setup[k:k+4], None) for k in range(0, len(setup), 4)]
        perS = -(-len(setupG)//5)
        s_first = 3 if lnfill else 1
        gen_proj.R.V_L16 = V_L16
        st_save = STF.st; STF.st = ' sc1'
        main_a = a
        if lnfill: a = Asm()
        else: vq.wait_for(a, 'ln')
        if lnfill: gen_proj.emit_ln_compute(a, LB_, S_H, S_G, 82, 83, 208, gw=232, sm=240, tmp=244)
        else: gen_proj.emit_ln_compute(a, LB_, S_H, S_G, 82, 83, 64)
        a('s_getreg_b32 s33, hwreg(HW_REG_XCC_ID, 0, 4)')
        a('s_or_b32 s33, s33, 0x50')
        make_srd(a, 76, 34, WS_HF, 4096)
        a(f's_lshl_b32 s32, s{s_h}, 7')
        a('v_mov_b32 v41, 0'); a(f'v_lshrrev_b32 v42, 2, v{V_L16}')
        a(f's_or_b32 s{s_t0}, s{s_w}, s{s_i}'); a(f's_cmp_eq_u32 s{s_t0}, 0'); a('s_cselect_b32 exec_lo, -1, 0'); a('s_mov_b32 exec_hi, 0')
        a('buffer_store_dword v41, v42, s[76:79], s32 offen sc1')
        a('s_mov_b64 exec, -1')
        if opt.get('fusefin'):
            make_srd(a, 76, 34, WS_FL, 112*128)
            a('s_lshl_b32 s32, s2, 7')
            a(f's_cmp_eq_u32 s{s_w}, 0'); a('s_cselect_b32 exec_lo, -1, 0'); a('s_mov_b32 exec_hi, 0')
            a('buffer_store_dword v41, v42, s[76:79], s32 offen sc1')
            a('s_mov_b64 exec, -1')
        if lnfill:
            lnG = [(['@wait'], 'ln')]
            cur = []; masked = False
            for k_, l in enumerate(a.lines):
                nxt_addc = k_+1 < len(a.lines) and a.lines[k_+1].startswith('s_addc')
                starts_mask = ('exec' in l and not l.startswith('s_mov_b64 exec, -1') and not l.startswith('s_mov_b64 exec, s['))
                if (l.startswith('s_cmp') or starts_mask) and not masked:
                    if cur: lnG.append((cur, None)); cur = []
                    masked = True
                cur.append(l)
                if l.startswith('buffer_'):
                    if not masked: lnG.append((cur, 'lnst')); cur = []
                if masked and (l.startswith('s_mov_b64 exec, -1') or l.startswith('s_mov_b64 exec, s[')):
                    lnG.append((cur, 'lnst')); cur = []; masked = False
                elif not masked and len(cur) >= 4 and not nxt_addc:
                    lnG.append((cur, None)); cur = []
            if cur: lnG.append((cur, None))
            assert not masked
            a = main_a
        else:
            for _ in range(5 if opt.get('fusefin') else 4): vq.push('lnst')
            lnG = []
        perL = -(-len(lnG)//3)
        a(f's_and_b32 s91, s{s_h}, 3'); a(f's_cmp_eq_u32 s{s_w}, 0'); a('s_cselect_b32 s91, s91, 0xff')
        a(f's_lshl_b32 s{s_t0}, s{s_h}, 6'); a(f's_lshl_b32 s{s_t1}, s{s_i}, 3'); a(f's_add_u32 s{s_t0}, s{s_t0}, s{s_t1}')
        a(f's_lshl_b32 s{s_t1}, s{s_w}, 1'); a(f's_add_u32 s{s_t0}, s{s_t0}, s{s_t1}'); a(f's_lshl_b32 s{s_t0}, s{s_t0}, 13')
        for k in range(4):
            a(f's_add_u32 s{50+k}, s{s_t0}, {k*4096}')
            a(f's_add_u32 s{96+k}, s{s_t0}, {16*MB + k*4096}')
        STF.st = opt.get('kst', opt.get('kvst', ''))
        VK, VV = 220, 222
        if p16: P.store_addrs(VK, VV)
        KG = frag_store_groups16(P, 'K', 'v', S_O, 50, None, VK, v_scale=2, tag='kst') if p16 else frag_store_groups(P, 'K', 'v', S_O, 50, None, v_scale=2, tag='kst')
        STF.st = opt.get('vst', opt.get('kvst', ''))
        VGs = frag_store_groups16(P, 'V', 'a', S_O, 96, 40, VV, tag='vst') if p16 else frag_store_groups(P, 'V', 'a', S_O, 96, 40, tag='vst')
        STF.st = st_save
        nv = opt.get('vstages', 3); sigt = opt.get('sigt', nv+1)
        perK = len(KG)//8; perV = len(VGs)//nv
        KV0 = self.kv_groups('K', 6); VV0 = self.kv_groups('V', 4)
        zero = [([f'v_accvgpr_write_b32 a{64+4*k+e}, 0' for e in range(4)], None) for k in range(16)]
        srds = self.kv_srd_lines()
        dbg = Asm(); make_srd(dbg, 76, 100, 0, 256)
        hfl = Asm(); make_srd(hfl, 92, 34, WS_HF, 4096)
        def lnsig(k): return (dbg.lines + ['v_mov_b32 v58, 0', 'v_mov_b32 v59, s33', f's_cmp_eq_u32 s91, {k}', 's_cselect_b64 exec, 1, 0',
               f'buffer_store_byte v59, v58, s[76:79], s2 offen sc1', 's_mov_b64 exec, -1'], 'flag')
        idaddr = [f'v_lshlrev_b32 v57, 1, v{V_L16}', f's_lshr_b32 s{s_t1}, s{s_h}, 2', f's_and_b32 s32, s{s_h}, 3', 's_lshl_b32 s32, s32, 3', f's_add_u32 s48, s32, s{s_t1}']
        idld = (dbg.lines + idaddr + ['buffer_load_ubyte v56, v57, s[76:79], s48 offen sc1'], 'id')
        sig = dbg.lines + hfl.lines + [f's_cmp_eq_u32 s{s_w}, 0', f's_cbranch_scc0 {N}_nosig', f's_mov_b32 s{s_cnt}, 0',
               f'{N}_idchk:',
               'v_readfirstlane_b32 s32, v56', 's_and_b32 s32, s32, 0x40', 's_cmp_lg_u32 s32, 0', f's_cbranch_scc1 {N}_idok',
               f's_add_u32 s{s_cnt}, s{s_cnt}, 1', f's_cmp_ge_u32 s{s_cnt}, 0x20000', f's_cbranch_scc1 {N}_idok',
               'buffer_load_ubyte v56, v57, s[76:79], s48 offen sc1', 's_waitcnt vmcnt(0)', 's_nop 0', f's_branch {N}_idchk',
               f'{N}_idok:',
               'v_cmp_ne_u32 vcc, s33, v56', 's_nop 3', 's_and_b32 s32, vcc_lo, 0xff', 's_cmp_eq_u32 s32, 0',
               f's_cbranch_scc1 {N}_samexcd', 'buffer_wbl2 sc1', 's_waitcnt vmcnt(0)', f'{N}_samexcd:',
               f's_lshl_b32 s32, s{s_h}, 7', f's_lshl_b32 s{s_t1}, s{s_i}, 2', f's_add_u32 s32, s32, s{s_t1}',
               'v_mov_b32 v41, 0', 'v_mov_b32 v42, 1', 's_mov_b64 exec, 1',
               'buffer_store_dword v42, v41, s[92:95], s32 offen sc1', 's_mov_b64 exec, -1', f'{N}_nosig:']
        pollld = ['buffer_load_dword v232, v233, s[76:79], 0 offen sc1', 'buffer_load_dword v235, v233, s[92:95], s91 offen sc1']
        pollpre = dbg.lines + hfl.lines + [f's_lshl_b32 s91, s{s_h}, 7', f'v_lshrrev_b32 v233, 2, v{V_L16}', 'v_mov_b32 v234, 0x40404040',
                   f's_cmp_eq_u32 s{s_w}, 0', f's_cbranch_scc0 {N}_nopoll0'] + pollld + [f'{N}_nopoll0:']
        def pfw(srd_): return ([f'v_lshrrev_b32 v58, 5, v{V_L16}', 'v_lshlrev_b32 v58, 13, v58', f'v_bfe_u32 v59, v{V_L16}, 4, 1', 'v_lshl_add_u32 v58, v59, 7, v58',
               f's_lshl_b32 s32, s{s_w}, 4', f's_lshl_b32 s49, s{s_i}, 6', 's_add_u32 s32, s32, s49', 's_lshl_b32 s32, s32, 13',
               f's_lshl_b32 s49, s{s_h}, 8', 's_add_u32 s32, s32, s49', 's_mov_b32 exec_hi, 0',
               f'buffer_load_dword v253, v58, s[{srd_}:{srd_+3}], s32 offen', 's_mov_b64 exec, -1'], 'pf')
        def pfx(qt): return ([f'v_lshrrev_b32 v58, 7, v{V_L16}', 'v_lshlrev_b32 v58, 10, v58', f'v_bfe_u32 v59, v{V_L16}, 4, 3', 'v_lshl_add_u32 v58, v59, 7, v58',
               f's_lshl_b32 s32, s{qt}, 5', f's_and_b32 s49, s{s_h}, 3', 's_lshl_b32 s49, s49, 3', 's_add_u32 s32, s32, s49', 's_lshl_b32 s32, s32, 10',
               f'buffer_load_dword v253, v58, s[{S_X}:{S_X+3}], s32 offen'], 'pf')
        def pfc(k): return ([f'v_lshrrev_b32 v58, 7, v{V_L16}', 'v_lshlrev_b32 v58, 10, v58', f'v_bfe_u32 v59, v{V_L16}, 4, 3', 'v_lshl_add_u32 v58, v59, 7, v58',
               f's_lshl_b32 s32, s{s_i}, 8', f's_and_b32 s49, s{s_h}, 3', 's_lshl_b32 s49, s49, 6', 's_add_u32 s32, s32, s49', f's_lshl_b32 s49, s{s_w}, 4', 's_add_u32 s32, s32, s49',
               f's_add_u32 s32, s32, {8*k}', 's_lshl_b32 s32, s32, 10', f'buffer_load_dword v253, v58, s[{S_CK}:{S_CK+3}], s32 offen'], 'pf')
        def pf1():
            l = Asm(); make_srd(l, 76, 68, 0, 2048*3584)
            l(f'v_lshlrev_b32 v58, 3, v{V_L16}'); l('s_lshl_b32 s32, s2, 2'); l(f's_add_u32 s32, s32, s{s_w}'); l('s_mul_i32 s32, s32, 7168')
            l('buffer_load_dword v253, v58, s[76:79], s32 offen')
            return (l.lines, 'pf')
        pf = opt.get('pfa', 'vq')
        def xe(p, t):
            if p == 0:
                g = list(setupG[(t-s_first)*perS:(t-s_first+1)*perS]) if s_first <= t < s_first+5 else []
                if t < 3: g = list(lnG[t*perL:(t+1)*perL]) + g
                if t == 0:
                    if 'k' in pf: g.append(pfw(S_WK))
                    if 'c' in pf: g += [pfc(0), pfc(1)]
                if '1' in pf and t == 6: g.append(pf1())
                if 'v' in pf and t == opt.get('pfv_t', 1): g.append(pfw(S_WV))
                return g
            if p == 1:
                g = list(KG[t*perK:(t+1)*perK])
                if 'q' in pf and t == 1: g.append(pfw(S_WQ))
                if 'x' in pf and t == 2: g.append(pfx(36))
                if 'x' in pf and t == 3: g.append(pfx(37))
                if '2' in pf and t == 5: g.append(pf1())
                return g
            if p == 2:
                g = []
                if t < nv: g += VGs[t*perV:(t+1)*perV] + ([idld] if t == 0 else [])
                if t == nv: g += zero
                if t == 6: g += [(srds, None)]
                if t == 7: g += [(pollpre, None)]
                return g
            return []
        late_pf = opt.get('pflate', {})
        def xl(p, t):
            g = []
            t0 = 4 if lnfill else 2
            if p == 0 and t0 <= t < t0+4: g.append(lnsig(t-t0))
            if p == 2 and t == sigt: g.append((sig, None))
            k = late_pf.get((p, t))
            if k == 'v': g.append(pfw(S_WV))
            if k == 'q': g.append(pfw(S_WQ))
            if k == '1': g.append(pf1())
            if k == 'a': g.append(pfx(36))
            if k == 'b': g.append(pfx(37))
            return g
        assert sigt >= nv + 1 and sigt <= 6 and 48 % nv == 0
        P.start_compute()
        self.stamp()
        P.run(ps, extra_early=xe, extra_late=xl)
        self.stamp()
        if p16:
            q_to_frags16(a, 64, QA, QB)
            for e in range(48): a(f'v_accvgpr_write_b32 a{e}, 0')
        else: self.q_to_frags_cvt()
        chk = ['s_waitcnt vmcnt(0)', 'v_and_b32 v232, v234, v232', 'v_cmp_ne_u32 vcc, v234, v232', 'v_cmp_ne_u32 s[54:55], 1, v235', 's_nop 3',
               's_and_b32 s32, s54, 0xff', 's_or_b32 s32, s32, vcc_lo', 's_or_b32 s32, s32, vcc_hi', 's_cmp_eq_u32 s32, 0']
        for l in [f's_cmp_eq_u32 s{s_w}, 0', f's_cbranch_scc0 {N}_polled', f's_mov_b32 s{s_cnt}, 0', f'{N}_poll:'] + chk + \
                 [f's_cbranch_scc1 {N}_polled', f's_add_u32 s{s_cnt}, s{s_cnt}, 1', f's_cmp_ge_u32 s{s_cnt}, 0x20000', f's_cbranch_scc1 {N}_polled',
                  ] + ([f's_sleep {opt.get("sleep", 0)}'] if opt.get("sleep", 0) else []) + pollld + [f's_branch {N}_poll', f'{N}_polled:']: a(l)
        a('s_barrier')
        for g in KV0 + VV0:
            for l in g[0]: a(l)
        self.stamp()
        self.q_to_frags_srd()
        return M


class Main2(Main):
    def emit_head(self):
        a = self.a; N = self.name; opt = self.opt
        S_CK, S_WK, S_X, S_O, S_WV, S_WQ = 4, 8, 12, 16, 92, 60
        S_H, S_G, S_GW = 76, 48, 52
        a(f's_cmp_ge_u32 s2, 256')
        a(f's_cbranch_scc1 {N}_end')
        self.stamp()
        a(f's_load_dwordx2 s[90:91], s[0:1], {KA_CKV}')
        a(f's_load_dwordx4 s[96:99], s[0:1], {KA_WUK}')
        a(f's_load_dwordx2 s[34:35], s[0:1], {KA_WS}')
        a(f's_load_dwordx2 s[64:65], s[0:1], {KA_AX}')
        a(f's_load_dwordx2 s[38:39], s[0:1], {KA_GW}')
        a(f's_load_dwordx2 s[66:67], s[0:1], {KA_WQ}')
        a(f's_load_dwordx2 s[68:69], s[0:1], {KA_W1}')
        a(f's_load_dwordx2 s[86:87], s[0:1], {KA_B1}')
        a(f's_load_dwordx2 s[70:71], s[0:1], {KA_WO}')
        a(f's_load_dwordx2 s[72:73], s[0:1], {KA_W2}')
        a(f's_load_dwordx2 s[100:101], s[0:1], {KA_DBG}')
        a(f'v_lshrrev_b32 v1, 6, v0')
        a(f'v_and_b32 v2, 63, v0')
        a(f'v_lshlrev_b32 v{V_L16}, 4, v2')
        a(f'v_readfirstlane_b32 s{s_w}, v1')
        a(f's_and_b32 s{s_t0}, s2, 7')
        a(f's_lshr_b32 s{s_t1}, s2, 3')
        a(f's_lshl_b32 s{s_h}, s{s_t0}, 2')
        a(f's_and_b32 s{s_t0}, s{s_t1}, 3')
        a(f's_add_u32 s{s_h}, s{s_h}, s{s_t0}')
        a(f's_lshr_b32 s{s_i}, s{s_t1}, 2')
        a(f's_add_u32 s{s_g1}, s{s_i}, 1')
        a(f's_lshl_b32 s{s_g1}, s{s_g1}, 2')
        a(f's_lshl_b32 s36, s{s_i}, 2'); a(f's_add_u32 s36, s36, s{s_w}')
        a(f's_lshl_b32 s37, s{s_i}, 2'); a(f's_sub_u32 s37, 60, s37'); a(f's_add_u32 s37, s37, s{s_w}')
        vq = VmQueue()
        a('s_waitcnt lgkmcnt(0)')
        make_srd(a, S_CK, 90, 0, 2*MB); make_srd(a, S_WK, 96, 0, 4*MB); make_srd(a, S_WV, 98, 0, 4*MB)
        make_srd(a, S_X, 64, 0, 2*MB); make_srd(a, S_GW, 38, 0, 1024); make_srd(a, S_WQ, 66, 0, 4*MB)
        KV = ProjKV(a, vq, s_w, S_CK, S_WK, S_WV, ACCK=64, ACCV=64, VR=40, VT=33, SG=(38, 39, 64, 65, 66, 67, 90), stamps=self.st, opt=opt)
        KV.setup(s_i, s_h)
        LB_ = 232
        a(f's_lshl_b32 s82, s2, 3'); a(f's_lshl_b32 s83, s{s_w}, 1'); a('s_add_u32 s82, s82, s83')
        a('s_lshl_b32 s83, s82, 2'); a('s_lshl_b32 s82, s82, 10')
        a(f'buffer_load_dwordx4 v[{LB_}:{LB_+3}], v{V_L16}, s[{S_X}:{S_X+3}], s82 offen'); vq.push('ln')
        a(f'buffer_load_dwordx4 v[{LB_+4}:{LB_+7}], v{V_L16}, s[{S_X}:{S_X+3}], s82 offen offset:1024'); vq.push('ln')
        a(f'buffer_load_dwordx4 v[{LB_+16}:{LB_+19}], v{V_L16}, s[{S_GW}:{S_GW+3}], 0 offen'); vq.push('ln')
        rest0 = KV.prologue(opt.get('kvpro', 2))
        P = Proj(a, vq, s_w, 16384, 65536, ACC=64, FB=(192, 216), fbk='a', VA=8, V_L16=V_L16, VT=33, SG=40,
                 wflags=(' nt' if opt.get('nt', False) else ''), stamps=self.st, opt=opt)
        P.setup_addrs(set_l16=False)
        make_srd(a, S_O, 34, WS_K, 32*MB)
        make_srd(a, S_H, 34, WS_H, 2*MB); make_srd(a, S_G, 34, WS_G, 8192)
        real_a = self.a; tmp_a = Asm(); self.a = tmp_a; self.mtmp = 232
        M = self.setup_attn_regs()
        self.a = real_a; M.a = real_a
        c = 0x3e0293ee
        setup = tmp_a.lines + [f'v_mov_b32 v2, {hex(c)}', f'v_mov_b32 v3, {hex(c)}']
        setupG = [(setup[k:k+4], None) for k in range(0, len(setup), 4)]
        perS = -(-len(setupG)//6)
        vq.wait_for(a, 'ln')
        gen_proj.R.V_L16 = V_L16
        st_save = STF.st; STF.st = ' sc1'
        gen_proj.emit_ln_compute(a, LB_, S_H, S_G, 82, 83, 64)
        for _ in range(3): vq.push('lnst')
        a('s_getreg_b32 s33, hwreg(HW_REG_XCC_ID, 0, 4)')
        a('s_or_b32 s33, s33, 0x50')
        make_srd(a, 76, 34, WS_HF, 4096)
        a(f's_lshl_b32 s32, s{s_h}, 7')
        a('v_mov_b32 v58, 0'); a(f'v_lshrrev_b32 v59, 2, v{V_L16}')
        a(f's_or_b32 s{s_t0}, s{s_w}, s{s_i}'); a(f's_cmp_eq_u32 s{s_t0}, 0'); a('s_cselect_b32 exec_lo, -1, 0'); a('s_mov_b32 exec_hi, 0')
        a('buffer_store_dword v58, v59, s[76:79], s32 offen sc1'); vq.push('lnst')
        a('s_mov_b64 exec, -1')
        if opt.get('fusefin'):
            make_srd(a, 76, 34, WS_FL, 112*128)
            a('s_lshl_b32 s32, s2, 7')
            a(f's_cmp_eq_u32 s{s_w}, 0'); a('s_cselect_b32 exec_lo, -1, 0'); a('s_mov_b32 exec_hi, 0')
            a('buffer_store_dword v58, v59, s[76:79], s32 offen sc1'); vq.push('lnst')
            a('s_mov_b64 exec, -1')
        a(f's_and_b32 s91, s{s_h}, 3'); a(f's_cmp_eq_u32 s{s_w}, 0'); a('s_cselect_b32 s91, s91, 0xff')
        npre = 8*opt.get('kvpre2', 3)
        for g in rest0[:npre]: KV.emit_group(g)
        KV.initial = rest0[npre:]
        a(f's_lshl_b32 s{s_t0}, s{s_h}, 6'); a(f's_lshl_b32 s{s_t1}, s{s_i}, 3'); a(f's_add_u32 s{s_t0}, s{s_t0}, s{s_t1}')
        a(f's_lshl_b32 s{s_t1}, s{s_w}, 1'); a(f's_add_u32 s{s_t0}, s{s_t0}, s{s_t1}'); a(f's_lshl_b32 s{s_t0}, s{s_t0}, 13')
        for k in range(4):
            a(f's_add_u32 s{50+k}, s{s_t0}, {k*4096}')
            a(f's_add_u32 s{96+k}, s{s_t0}, {16*MB + k*4096}')
        STF.st = opt.get('kvst', '')
        KG = frag_store_groups(P, 'K', 'v', S_O, 50, None, v_scale=2, tag='kst')
        VGs = frag_store_groups(P, 'V', 'a', S_O, 96, 40, tag='vst')
        STF.st = st_save
        nv = opt.get('vstages', 3); sigt = opt.get('sigt', nv+1)
        perV = len(VGs)//nv
        KV0 = self.kv_groups('K', 6); VV0 = self.kv_groups('V', 4)
        zero = [([f'v_accvgpr_write_b32 a{4*k+e}, 0' for e in range(4)], None) for k in range(32)]
        srds = self.kv_srd_lines()
        dbg = Asm(); make_srd(dbg, 76, 100, 0, 256)
        hfl = Asm(); make_srd(hfl, 92, 34, WS_HF, 4096)
        def lnsig(k): return (dbg.lines + ['v_mov_b32 v58, 0', 'v_mov_b32 v59, s33', f's_cmp_eq_u32 s91, {k}', 's_cselect_b64 exec, 1, 0',
               f'buffer_store_byte v59, v58, s[76:79], s2 offen sc1', 's_mov_b64 exec, -1'], 'flag')
        idaddr = [f'v_lshlrev_b32 v57, 1, v{V_L16}', f's_lshr_b32 s{s_t1}, s{s_h}, 2', f's_and_b32 s32, s{s_h}, 3', 's_lshl_b32 s32, s32, 3', f's_add_u32 s48, s32, s{s_t1}']
        idld = (dbg.lines + idaddr + ['buffer_load_ubyte v56, v57, s[76:79], s48 offen sc1'], 'id')
        sig = dbg.lines + hfl.lines + [f's_cmp_eq_u32 s{s_w}, 0', f's_cbranch_scc0 {N}_nosig', f's_mov_b32 s{s_cnt}, 0',
               f'{N}_idchk:',
               'v_readfirstlane_b32 s32, v56', 's_and_b32 s32, s32, 0x40', 's_cmp_lg_u32 s32, 0', f's_cbranch_scc1 {N}_idok',
               f's_add_u32 s{s_cnt}, s{s_cnt}, 1', f's_cmp_ge_u32 s{s_cnt}, 0x20000', f's_cbranch_scc1 {N}_idok',
               'buffer_load_ubyte v56, v57, s[76:79], s48 offen sc1', 's_waitcnt vmcnt(0)', 's_nop 0', f's_branch {N}_idchk',
               f'{N}_idok:',
               'v_cmp_ne_u32 vcc, s33, v56', 's_nop 3', 's_and_b32 s32, vcc_lo, 0xff', 's_cmp_eq_u32 s32, 0',
               f's_cbranch_scc1 {N}_samexcd', 'buffer_wbl2 sc1', 's_waitcnt vmcnt(0)', f'{N}_samexcd:',
               f's_lshl_b32 s32, s{s_h}, 7', f's_lshl_b32 s{s_t1}, s{s_i}, 2', f's_add_u32 s32, s32, s{s_t1}',
               'v_mov_b32 v41, 0', 'v_mov_b32 v42, 1', 's_mov_b64 exec, 1',
               'buffer_store_dword v42, v41, s[92:95], s32 offen sc1', 's_mov_b64 exec, -1', f'{N}_nosig:']
        pollld = ['buffer_load_dword v232, v233, s[76:79], 0 offen sc1', 'buffer_load_dword v235, v233, s[92:95], s91 offen sc1']
        pollpre = dbg.lines + hfl.lines + [f's_lshl_b32 s91, s{s_h}, 7', f'v_lshrrev_b32 v233, 2, v{V_L16}', 'v_mov_b32 v234, 0x40404040',
                   f's_cmp_eq_u32 s{s_w}, 0', f's_cbranch_scc0 {N}_nopoll0'] + pollld + [f'{N}_nopoll0:']
        initQ = [f's_lshl_b32 s{P.s_a0}, s36, 15', f's_lshl_b32 s{P.s_a1}, s37, 15',
                 f's_lshl_b32 s{P.s_wo}, s{s_w}, 17', f's_lshl_b32 s49, s{s_h}, 8', f's_add_u32 s{P.s_wo}, s{P.s_wo}, s49']
        qpass = [dict(swap=False, srdA=S_X, srdW=S_WQ, init=initQ, epi=lambda: None, acck='v')]
        Q0 = P.dma_stage(S_X, S_WQ, (0, 0), pre=initQ); Q1 = P.dma_stage(S_X, S_WQ, (0, 1)); Q2 = P.dma_stage(S_X, S_WQ, (0, 2))
        def pfw(srd_): return ([f'v_lshrrev_b32 v58, 5, v{V_L16}', 'v_lshlrev_b32 v58, 13, v58', f'v_bfe_u32 v59, v{V_L16}, 4, 1', 'v_lshl_add_u32 v58, v59, 7, v58',
               f's_lshl_b32 s32, s{s_w}, 4', f's_lshl_b32 s49, s{s_i}, 6', 's_add_u32 s32, s32, s49', 's_lshl_b32 s32, s32, 13',
               f's_lshl_b32 s49, s{s_h}, 8', 's_add_u32 s32, s32, s49', 's_mov_b32 exec_hi, 0',
               f'buffer_load_dword v253, v58, s[{srd_}:{srd_+3}], s32 offen', 's_mov_b64 exec, -1'], 'pf')
        def pf1():
            l = Asm(); make_srd(l, 76, 68, 0, 2048*3584)
            l(f'v_lshlrev_b32 v58, 3, v{V_L16}'); l('s_lshl_b32 s32, s2, 2'); l(f's_add_u32 s32, s32, s{s_w}'); l('s_mul_i32 s32, s32, 7168')
            l('buffer_load_dword v253, v58, s[76:79], s32 offen')
            return (l.lines, 'pf')
        kvpf = opt.get('kvpf', {7: 'q', 9: '1'})
        def kvx(t):
            early, late = [], []
            if 1 <= t <= 6: early += setupG[(t-1)*perS:t*perS]
            if 2 <= t <= 5: late += [lnsig(t-2)]
            if kvpf.get(t) == 'q': late += [pfw(S_WQ)]
            if kvpf.get(t) == '1': late += [pf1()]
            if t == 13: late += Q0[:4]
            if t == 14: early += Q0[4:]; late += Q1[:4]
            if t == 15: early += Q1[4:]; late += Q2[:3]
            return early, late
        def handover():
            return (0, 0), P.read_addr_update(), P.kstep_reads(0, 0)
        KV.start()
        self.stamp()
        KV.run(kvx, handover)
        P.lq = list(KV.lq); P.g_pending = Q2[3:]
        self.stamp()
        a('s_nop 7')
        for g in KG: P.emit_group(g)
        self.stamp()
        def xe(p, t):
            g = []
            if t < nv: g += VGs[t*perV:(t+1)*perV] + ([idld] if t == 0 else [])
            if t == nv: g += zero[:16]
            if t == nv+1: g += zero[16:]
            if t == 6: g += [(srds, None)]
            if t == 7: g += [(pollpre, None)]
            return g
        def xl(p, t):
            return [(sig, None)] if t == sigt else []
        assert sigt >= nv + 1 and sigt <= 6 and 48 % nv == 0
        P.run(qpass, extra_early=xe, extra_late=xl)
        self.stamp()
        self.q_to_frags_cvt()
        chk = ['s_waitcnt vmcnt(0)', 'v_and_b32 v232, v234, v232', 'v_cmp_ne_u32 vcc, v234, v232', 'v_cmp_ne_u32 s[54:55], 1, v235', 's_nop 3',
               's_and_b32 s32, s54, 0xff', 's_or_b32 s32, s32, vcc_lo', 's_or_b32 s32, s32, vcc_hi', 's_cmp_eq_u32 s32, 0']
        for l in [f's_cmp_eq_u32 s{s_w}, 0', f's_cbranch_scc0 {N}_polled', f's_mov_b32 s{s_cnt}, 0', f'{N}_poll:'] + chk + \
                 [f's_cbranch_scc1 {N}_polled', f's_add_u32 s{s_cnt}, s{s_cnt}, 1', f's_cmp_ge_u32 s{s_cnt}, 0x20000', f's_cbranch_scc1 {N}_polled',
                  ] + ([f's_sleep {opt.get("sleep", 0)}'] if opt.get("sleep", 0) else []) + pollld + [f's_branch {N}_poll', f'{N}_polled:']: a(l)
        a('s_barrier')
        for g in KV0 + VV0:
            for l in g[0]: a(l)
        self.stamp()
        self.q_to_frags_srd()
        return M
```

```python
from asmlib import *
from layout import *
from gen_proj2 import Proj, VmQueue
from gen_proj import make_srd
import gen_t2
from gen_mlp import Mlp1

OA, OB = 0, 64
QA, QB = 0, 32
PFB = (128, 152)
FR = 192
NFR = 16
S = [[64, 80], [96, 112]]
P = [[128, 136], [144, 152]]
CA, CB = 160, 176
PT = 192
PS = [200, 201]
LA, LB = 202, 203
V_L16 = 204; V_KA = 205; V_VA = 206
V_RELA = 207; V_RELB = 208; V_NEG = 209
V_T = 210
V_DA, V_DB = 226, 227
V_AA, V_AB = 228, 229
V_MASK = 230; V_VBASE = 231; V_REL = [232, 233]
V_ST = 236
V_MA, V_MB, V_MR = 214, 216, 218
MACC = 128
S_MW, S_MH = 12, 60
s_ma, s_mb, s_ml = 85, 88, 89
S_K, S_V, S_Q, S_C = 4, 8, 12, 16
s_w, s_h, s_i, s_g1, s_cnt, s_ks, s_vs, s_t0, s_thr = 20, 21, 22, 23, 24, 25, 26, 27, 28
s_t1, s_step = 29, 32
S_RET = 30
S_M = 40
D = 8
THR = 0x4e800000

def v(b, n=1): return f'v{b}' if n == 1 else f'v[{b}:{b+n-1}]'
def ar(b, n=1): return f'a{b}' if n == 1 else f'a[{b}:{b+n-1}]'
MF = 'v_mfma_f32_32x32x16_bf16'

class Iter:
    def __init__(self, qk, sm, pv, next_qk, par, czero=False):
        self.qk, self.sm, self.pv, self.next_qk, self.par, self.czero = qk, sm, pv, next_qk, par, czero

def nfr(mode): return {None: 0, 1: 8, 2: 16}[mode]
PMAP = list(range(8))

class Attn:
    def __init__(self, a, name, diag=False, **opt):
        self.a = a; self.name = name; self.diag = diag; self.opt = opt; self.st = (RTStamps if opt.get('rt') else Stamps)(a, diag, vreg=254, sreg=30)
        global D
        D = opt.get('D', 8)
        PMAP[:] = [0, 1, 4, 5, 2, 3, 6, 7] if opt.get('p16') else list(range(8)); self.mlp = opt.get('mlp', True); self.nomlp_i = opt.get('nomlp_i', 7)
        self.phase = 0
        self.slow = []
        self.uid = 0
        self.vm = {}

    def simulate(self):
        res = {}
        self.vmm = {}
        for i in range(8):
            G1 = 4*(i+1)
            def mode(g): return None if (g < 0 or g > 33) else (1 if g < G1 else 2)
            def first(g):
                return g if g <= G1 else G1 + 2*(g-G1)
            def r(g): return 1 if g < G1 else 2
            issued = []
            def issue(kind, b0, nb):
                for b in range(b0, b0+nb):
                    issued.extend([(kind, b)]*2)
            kd = 0; vd = 0
            issue('K', 0, 6); issue('V', 0, 4)
            kd, vd = 6, 4
            kfree = 0; vfree = 0
            def need(n):
                req = []
                if mode(n+3): req += [('K', b) for b in range(first(n+3), first(n+3)+r(n+3))]
                if mode(n+1): req += [('V', b) for b in range(first(n+1), first(n+1)+r(n+1))]
                last = -1
                for k, x in enumerate(issued):
                    if x in req: last = k
                for x in req: assert x in issued, (i, n, x)
                return len(issued) - 1 - last if last >= 0 else None
            def pos(n):
                if n <= -1: return ('pro', n)
                if n <= G1-5:
                    if n >= G1-6 : return ('p1peel', n & 1)
                    return ('p1loop', n & 1)
                if n <= G1-1: return ('trans', n-G1)
                if n <= 31:
                    if n >= 30: return ('p2peel', n & 1)
                    return ('p2loop', n & 1)
                return ('epi', n)
            for n in range(-3, 34):
                if n == -1 and self.mlp: issued.extend([('M', 0)]*4 + [('M', 1)]*4)
                if n >= -2:
                    if mode(n) and n <= 31:
                        b0 = vd; nb = r(n)
                        assert b0 + nb - 8 <= (first(n-1) if n-1 >= 0 else 0), (i, n, b0, nb)
                        issue('V', b0, nb); vd += nb
                p = pos(n)
                if self.mlp and 0 <= n <= 31:
                    idx = [k for k, x in enumerate(issued) if x == ('M', n)]
                    if idx:
                        Nm = len(issued) - 1 - idx[-1]
                        self.vmm[p] = min(self.vmm.get(p, 99), Nm)
                    else: assert n >= 32 or i == 7 or True
                    if p[0] != 'p2peel': issued.extend([('M', n+2)]*4)
                N = need(n)
                if N is not None:
                    res[p] = min(res.get(p, 99), N)
                if mode(n+3) or (n <= 31 and n >= -3):
                    nb = r(n+3)
                    if n <= 30 or True:
                        assert kd + nb - 8 <= first(n+3), (i, n, kd, nb)
                        issue('K', kd, nb); kd += nb
                if n == G1-1: issued.extend([('S', 0)]*8)
        self.vm = res
        return res

    def dma_group(self, kind, nb, split=False):
        srd_, so = (S_K, s_ks) if kind == 'K' else (S_V, s_vs)
        g = []
        if kind == 'K':
            pre = [f's_and_b32 m0, s{so}, 0xffff']
        else:
            pre = [f's_and_b32 s{s_t0}, s{so}, 0xffff', f's_or_b32 m0, s{s_t0}, 0x10000']
        n = 2*nb
        if split: g.append(pre)
        for k in range(n):
            l = []
            if k == 0 and not split: l += pre + ['s_nop 0']
            off = f' offset:{k*1024}' if k else ''
            l.append(f'buffer_load_dwordx4 v{V_L16}, s[{srd_}:{srd_+3}], s{so} offen{off} lds')
            if k == n-1: l.append(f's_add_u32 s{so}, s{so}, {nb*8192}')
            g.append(l)
        return g

    def mlp_dma_groups(self, par):
        g = []
        for vo, srd_, so, step, off in ((V_MA, S_MW, s_ma, 16*3584, 0), (V_MB, S_MH, s_mb, 16*1024, 2048)):
            g.append([f's_add_u32 m0, s{s_ml}, {par*4096+off}'])
            g.append([f'buffer_load_dwordx4 v{vo}, s[{srd_}:{srd_+3}], s{so} offen lds'])
            g.append([f'buffer_load_dwordx4 v{vo+1}, s[{srd_}:{srd_+3}], s{so} offen offset:1024 lds', f's_add_u32 s{so}, s{so}, {step}'])
        return g

    def sm_ops(self, it):
        sm = it.sm; pr = it.par ^ 1
        ops = []
        masked = sm.endswith('m')
        init = sm == 'init'
        mode = '1' if init else sm[0]
        for b in range(2):
            Sb = S[pr][b]; Pb = P[pr][b]
            domask = masked and (mode == '2' or b == 0)
            blk = []
            if domask:
                def cmp(e): return (4, f'v_cmp_ge_i32 s[{S_M+2*(e%8)}:{S_M+2*(e%8)+1}], v{V_REL[b]}, {8*(e>>2)+(e&3)}')
                def cnd(e): return (4, f'v_cndmask_b32 v{Sb+e}, v{V_NEG}, v{Sb+e}, s[{S_M+2*(e%8)}:{S_M+2*(e%8)+1}]')
                blk += [cmp(0), cmp(1), cmp(2), cmp(3), cnd(0)]
            for e in range(16):
                if domask:
                    if e+4 < 16: blk.append(cmp(e+4))
                    if e+1 < 16: blk.append(cnd(e+1))
                if init:
                    if e == 0: blk.append((4, f'v_sub_f32 v{Sb}, v{Sb}, v{V_DA if b == 0 else V_DB}'))
                    if e+1 < 16: blk.append((4, f'v_sub_f32 v{Sb+e+1}, v{Sb+e+1}, v{V_DA if b == 0 else V_DB}'))
                blk.append((8, f'v_exp_f32 v{PT+(e%8)}, v{Sb+e}'))
                if e >= 2 or True:
                    k = e-1
                    if k == 1: blk.append((4, f'v_add_f32 v{PS[b]}, v{PT+0}, v{PT+1}'))
                    elif k > 1: blk.append((4, f'v_add_f32 v{PS[b]}, v{PS[b]}, v{PT+(k%8)}'))
                    if k >= 1 and k % 2 == 1:
                        blk.append((4, f'v_cvt_pk_bf16_f32 v{Pb+PMAP[k>>1]}, v{PT+((k-1)%8)}, v{PT+(k%8)}'))
            blk.append((4, f'v_add_f32 v{PS[b]}, v{PS[b]}, v{PT+(15%8)}'))
            blk.append((4, f'v_cvt_pk_bf16_f32 v{Pb+PMAP[7]}, v{PT+(14%8)}, v{PT+(15%8)}'))
            ops += blk
        if not init and not self.opt.get('nocheck'):
            ops.append((4, f'v_max_f32 v{V_T}, v{PS[0]}, v{PS[1]}'))
            ops.append((4, f'v_cmp_lt_f32 vcc, s{s_thr}, v{V_T}'))
        return ops

    def rel_setup(self, it):
        return []

    def emit_iter(self, it, pos, extra_pre=None, name='', extra_post=None):
        a = self.a
        par = it.par
        ph = self.phase
        mf = []
        reads = []
        fidx = 0
        def fr(k): return FR + 4*((ph + k) % NFR)
        Sw = S[par]; Pr = P[par]
        if it.qk == 1:
            for j in range(8):
                A = ar(fr(fidx+j), 4)
                for b, Q, C in ((0, QA, CA), (1, QB, CB)):
                    c = ('0' if it.czero else v(C, 16)) if j == 0 else v(Sw[b], 16)
                    mf.append((f'{MF} {v(Sw[b],16)}, {A}, {v(Q+4*j,4)}, {c}', fidx+j))
                reads.append((2*j, f'ds_read_b128 {A}, v{V_KA} offset:{j*1024}', fidx+j))
            fidx += 8
        elif it.qk == 2:
            for f in range(16):
                b, j = f >> 3, f & 7
                A = ar(fr(fidx+f), 4)
                c = ('0' if it.czero else v(CB, 16)) if j == 0 else v(Sw[b], 16)
                mf.append((f'{MF} {v(Sw[b],16)}, {A}, {v(QB+4*j,4)}, {c}', fidx+f))
                reads.append((f, f'ds_read_b128 {A}, v{V_KA} offset:{f*1024}', fidx+f))
            fidx += 16
        mlp = self.mlp and getattr(it, 'mlp', False)
        m0 = len(mf)
        if mlp:
            for ft in range(2):
                for dt in range(2):
                    acc = ar(MACC+16*(2*ft+dt), 16)
                    mf.append((f'{MF} {acc}, {v(V_ST+4*ft,4)}, {v(V_ST+8+4*dt,4)}, {acc}', 'm7' if (ft, dt) == (0, 0) else None))
        s0 = len(mf)
        if it.pv == 1:
            for f in range(8):
                t, db = f >> 2, f & 3
                A = ar(fr(fidx+f), 4)
                for b, O in ((0, OA), (1, OB)):
                    mf.append((f'{MF} {ar(O+16*db,16)}, {A}, {v(Pr[b]+4*t,4)}, {ar(O+16*db,16)}', fidx+f))
                reads.append((s0+2*f, f'ds_read_b128 {A}, v{V_VA} offset:{f*1024}', fidx+f))
            fidx += 8
        elif it.pv == 2:
            for f in range(16):
                b, t, db = f >> 3, (f >> 2) & 1, f & 3
                A = ar(fr(fidx+f), 4)
                mf.append((f'{MF} {ar(OB+16*db,16)}, {A}, {v(Pr[b]+4*t,4)}, {ar(OB+16*db,16)}', fidx+f))
                reads.append((s0+f, f'ds_read_b128 {A}, v{V_VA} offset:{f*1024}', fidx+f))
            fidx += 16
        ns = len(mf)
        nown = fidx
        lead_in = [r for r in reads if it.qk and r[0] < D and r[2] < nfr(it.qk)]
        own = [r for r in reads if r not in lead_in]
        lead_out = []
        if it.next_qk:
            n = nfr(it.next_qk)
            for j in range(n):
                fu = 2*j if it.next_qk == 1 else j
                if fu < D:
                    A = ar(FR + 4*((ph + nown + j) % NFR), 4)
                    lead_out.append((ns + fu, f'ds_read_b128 {A}, v{V_KA} offset:{j*1024}', nown+j))
        bslot = max(ns - D, 0)
        slots = [[] for _ in range(ns+1)]
        pre = []
        order = [r[2] for r in lead_in]
        def place_read(slot, r):
            (pre if slot < 0 else slots[slot]).append(('ds', r[1], r[2]))
        for r in own:
            place_read(r[0]-D if r[0]-D >= 0 else -1, r)
        if mlp:
            base = par*4096
            rd = []
            for op in range(2):
                for tl in range(2):
                    r = V_ST + 8*op + 4*tl
                    rd.append(f'ds_read_b64_tr_b16 {v(r,2)}, v{V_MR+tl} offset:{base+op*2048}')
                    rd.append(f'ds_read_b64_tr_b16 {v(r+2,2)}, v{V_MR+tl} offset:{base+op*2048+512}')
            slots[m0-8].append(('x', f's_waitcnt vmcnt({self.vmm[pos]})'))
            for k, t_ in enumerate(rd): slots[m0-8+k//2].append(('ds', t_, f'm{k}'))
        win = []
        has_bar = pos is not None and pos in self.vm
        if has_bar:
            if not self.opt.get('novm'): win.append(('x', f's_waitcnt vmcnt({0 if pos == ("epi", 32) else self.vm[pos]})'))
            if not self.opt.get('nobar'): win.append(('x', 's_barrier'))
        if it.qk:
            win.append(('x', f'v_add_u32 v{V_KA}, {8192*(1 if it.qk==1 else 2)}, v{V_KA}'))
            win.append(('x', f'v_and_b32 v{V_KA}, 0xffff, v{V_KA}'))
        if it.pv:
            win.append(('x', f'v_add_u32 v{V_VA}, {8192*(1 if it.pv==1 else 2)}, v{V_VA}'))
            win.append(('x', f'v_and_or_b32 v{V_VA}, v{V_VA}, v{V_MASK}, v{V_VBASE}'))
        for r in own:
            assert r[0]-D < bslot or ns <= D, (r, bslot)
        vg = self.dma_group('V', 1 if it.pv == 1 else 2, split=True) if (it.pv and not getattr(it, 'nov', False)) else []
        kg = self.dma_group('K', 1 if it.next_qk == 1 else 2, split=True) if (it.next_qk or getattr(it, 'forcek', False)) else []
        if self.opt.get('nodma') and pos and pos[0] != 'pro': vg = []; kg = []
        mg = []
        if mlp and getattr(it, 'mlp_dma', True): mg = [(m0+1+k, g) for k, g in enumerate(self.mlp_dma_groups(par))]
        if getattr(it, 'mlp_first', False):
            gs = self.mlp_dma_groups(0) + self.mlp_dma_groups(1)
            gs = [g + ['s_nop 0'] if 'm0' in g[0] else g for g in gs]
            mg = [(k*7//len(gs), g) for k, g in enumerate(gs)]
        sm = self.sm_ops(it) if it.sm else []
        if self.opt.get('nosm'): sm = []
        if self.opt.get('noexp'): sm = [(c, t) for c, t in sm if 'exp' not in t]
        if self.opt.get('noadd'): sm = [(c, t) for c, t in sm if 'v_add_f32' not in t]
        tot = sum(c for c, _ in sm)
        fixed = [0.0]*ns
        dsc = self.opt.get('dsc', 4)
        for k in range(ns):
            fixed[k] += sum(dsc if x[0] == 'ds' else 4 for x in slots[k])
        dmac = self.opt.get('dmac', 4)
        def gcost(grp): return sum(dmac if l.startswith('buffer_') else 4 for l in grp)
        vstep = 1
        for k, grp in enumerate(vg):
            sl = min(ns-1, k*(vstep if len(vg) > 3 else 2))
            slots[sl].append(('dma', grp)); fixed[sl] += gcost(grp)
        for sl, grp in mg:
            slots[sl].append(('dma', grp)); fixed[sl] += gcost(grp)
        slots[bslot] = win + slots[bslot]; fixed[bslot] += 4*len(win)
        for r in lead_out:
            sl = min(ns-1, r[0]-D); slots[sl].append(('ds', r[1], r[2])); fixed[sl] += dsc
        for k, grp in enumerate(kg):
            sl = min(ns-1, bslot + k*(1 if len(kg) > 3 else 2) + (1 if k else 0))
            slots[sl].append(('dma', grp)); fixed[sl] += gcost(grp)
        xf = list(getattr(it, 'fill', [])); xg = list(getattr(it, 'fill_groups', []))
        if xf or xg:
            nsl = ns
            half = max(1, int(nsl*0.55))
            for k, x in enumerate(xf): slots[min(half-1, k*half//len(xf))].append(x)
            for k, g in enumerate(xg): slots[min(nsl-1, half + k*(nsl-half)//len(xg))].append(('dmag', g))
        total = tot + sum(fixed)
        smslots = [[] for _ in range(ns)]
        if sm:
            k = 0; cum = 0.0; target_end = ns - self.opt.get('tail', 1.6)
            acc = 0.0
            for sl in range(ns):
                acc += fixed[sl]
                lim = total * (sl+1) / target_end
                while k < len(sm) and (acc + sm[k][0]*0.5 <= lim or sl == ns-1):
                    smslots[sl].append(sm[k]); acc += sm[k][0]; k += 1
        if extra_pre:
            for l in extra_pre: a(l)
        q = list(order)
        def emit_fill(x):
            if x[0] == 'ds':
                a(x[1]); q.append(x[2])
            elif x[0] == 'dma':
                for l in x[1]: a(l)
            elif x[0] == 'dmag':
                for l in x[1][0]: a(l)
                it.vq.push(x[1][1])
            else:
                a(x[1])
        for x in pre: emit_fill(x)
        waited = -1
        for k, (txt, f) in enumerate(mf):
            if f is not None and f in q:
                idx = q.index(f)
                ahead = self.opt.get('wahead', 1)
                idx2 = min(idx + ahead, len(q)-1) if (k % 2 == 0 or ahead > 1) else idx
                idx2 = max(idx, min(idx2, len(q)-1-self.opt.get('wmin', 0)))
                nleft = len(q) - 1 - idx2
                a(f's_waitcnt lgkmcnt({nleft})')
                q = q[idx2+1:]
            a(txt)
            fl = slots[k]
            for x in fl:
                if x[0] in ('x', 'ds'): emit_fill(x)
            for c, t in smslots[k]: a(t)
            for x in fl:
                if x[0] in ('dma', 'dmag'): emit_fill(x)
        self.phase = (ph + nown) % NFR
        for l in (extra_post or []): a(l)
        if it.sm and it.sm != 'init' and not self.opt.get('nocheck'):
            self.uid += 1
            u = self.uid
            a(f's_cbranch_vccnz {self.name}_slow{u}')
            a.label(f'{self.name}_join{u}')
            self.l_update(it.sm)
            self.slow.append((u, it))
        elif it.sm == 'init':
            a(f'v_mov_b32 v{LA}, v{PS[0]}')
            a(f'v_mov_b32 v{LB}, v{PS[1]}')

    def l_update(self, sm):
        a = self.a
        if sm[0] == '1' or sm == 'init':
            a(f'v_add_f32 v{LA}, v{LA}, v{PS[0]}')
            a(f'v_add_f32 v{LB}, v{LB}, v{PS[1]}')
        else:
            a(f'v_add_f32 v{LB}, v{LB}, v{PS[0]}')
            a(f'v_add_f32 v{LB}, v{LB}, v{PS[1]}')

    def rowmax(self, dst, blocks):
        a = self.a
        regs = [b+e for b in blocks for e in range(16)]
        a(f'v_max3_f32 v{dst}, v{regs[0]}, v{regs[1]}, v{regs[2]}')
        k = 3
        while k+1 < len(regs):
            a(f'v_max3_f32 v{dst}, v{dst}, v{regs[k]}, v{regs[k+1]}'); k += 2
        if k < len(regs): a(f'v_max_f32 v{dst}, v{dst}, v{regs[k]}')
        a(f'v_mov_b32 v{V_T+1}, v{dst}')
        a('s_nop 1')
        a(f'v_permlane32_swap_b32 v{V_T+1}, v{dst}')
        a('s_nop 1')
        a(f'v_max_f32 v{dst}, v{dst}, v{V_T+1}')

    def plain_sm(self, pr):
        a = self.a
        for b in range(2):
            for e in range(0, 16, 2):
                a(f'v_exp_f32 v{PT}, v{S[pr][b]+e}')
                a(f'v_exp_f32 v{PT+1}, v{S[pr][b]+e+1}')
                a('s_nop 0')
                a(f'v_cvt_pk_bf16_f32 v{P[pr][b]+PMAP[e>>1]}, v{PT}, v{PT+1}')
                if e == 0:
                    a(f'v_add_f32 v{PS[b]}, v{PT}, v{PT+1}')
                else:
                    a(f'v_add_f32 v{PS[b]}, v{PS[b]}, v{PT}')
                    a(f'v_add_f32 v{PS[b]}, v{PS[b]}, v{PT+1}')

    def sub_delta(self, pr, mode):
        a = self.a
        for b in range(2):
            dl = V_DA if (mode == 1 and b == 0) else V_DB
            for e in range(16):
                a(f'v_sub_f32 v{S[pr][b]+e}, v{S[pr][b]+e}, v{dl}')

    def emit_slow(self, u, it):
        a = self.a
        pr = it.par ^ 1
        mode = 1 if it.sm[0] == '1' else 2
        a.label(f'{self.name}_slow{u}')
        a('s_nop 15')
        a('s_nop 7')
        if mode == 1:
            self.rowmax(V_DA, [S[pr][0]])
            self.rowmax(V_DB, [S[pr][1]])
            a(f'v_max_f32 v{V_DA}, 0, v{V_DA}')
        else:
            self.rowmax(V_DB, [S[pr][0], S[pr][1]])
            a(f'v_mov_b32 v{V_DA}, 0')
        a(f'v_max_f32 v{V_DB}, 0, v{V_DB}')
        a(f's_call_b64 s[{S_RET}:{S_RET+1}], {self.name}_rescale')
        self.sub_delta(pr, mode)
        if it.qk: self.sub_delta(it.par, it.qk)
        self.plain_sm(pr)
        a(f's_branch {self.name}_join{u}')

    def emit_rescale(self):
        a = self.a
        a.label(f'{self.name}_rescale')
        a(f'v_exp_f32 v{V_AA}, -v{V_DA}')
        a(f'v_exp_f32 v{V_AB}, -v{V_DB}')
        a('s_nop 0')
        for O, al in ((OA, V_AA), (OB, V_AB)):
            for e in range(0, 64, 4):
                for k in range(4): a(f'v_accvgpr_read_b32 v{V_T+k}, a{O+e+k}')
                for k in range(4): a(f'v_mul_f32 v{V_T+k}, v{V_T+k}, v{al}')
                for k in range(4): a(f'v_accvgpr_write_b32 a{O+e+k}, v{V_T+k}')
        a(f'v_mul_f32 v{LA}, v{LA}, v{V_AA}')
        a(f'v_mul_f32 v{LB}, v{LB}, v{V_AB}')
        for e in range(16):
            a(f'v_sub_f32 v{CA+e}, v{CA+e}, v{V_DA}')
            a(f'v_sub_f32 v{CB+e}, v{CB+e}, v{V_DB}')
        a('s_nop 1')
        a(f's_setpc_b64 s[{S_RET}:{S_RET+1}]')

    def mask_inplace(self, pr, b):
        a = self.a
        for e0 in range(0, 16, 8):
            for e in range(e0, e0+8):
                a(f'v_cmp_ge_i32 s[{S_M+2*(e%8)}:{S_M+2*(e%8)+1}], v{V_REL[b]}, {8*(e>>2)+(e&3)}')
            a('s_nop 1')
            for e in range(e0, e0+8):
                a(f'v_cndmask_b32 v{S[pr][b]+e}, v{V_NEG}, v{S[pr][b]+e}, s[{S_M+2*(e%8)}:{S_M+2*(e%8)+1}]')

    def emit_init(self):
        a = self.a
        a(f'v_mov_b32 v{V_REL[0]}, v{V_RELA}')
        a('s_nop 12')
        a(f's_cmp_lg_u32 s{s_i}, 0'); a(f's_cbranch_scc1 {self.name}_nomask0')
        self.mask_inplace(0, 0)
        a.label(f'{self.name}_nomask0')
        self.rowmax(V_DA, [S[0][0]])
        self.rowmax(V_DB, [S[0][1]])
        for e in range(16):
            a(f'v_sub_f32 v{CA+e}, 0, v{V_DA}')
            a(f'v_sub_f32 v{CB+e}, 0, v{V_DB}')
        a('s_nop 1')

    def epilogue_tile(self, O, L, qt_sgpr, vq=None):
        a = self.a
        a(f'v_mov_b32 v{V_T+1}, v{L}')
        a('s_nop 1')
        a(f'v_permlane32_swap_b32 v{V_T+1}, v{L}')
        a('s_nop 1')
        a(f'v_add_f32 v{L}, v{L}, v{V_T+1}')
        a(f'v_rcp_f32 v{V_T+2}, v{L}')
        a('s_nop 0')
        a(f'v_mov_b32 v{V_T+3}, v{V_T+2}')
        inv = V_T+2
        k = 0
        for db in range(4):
            for t in range(2):
                tmp = V_ST + 8*(k % 2)
                for e in range(8): a(f'v_accvgpr_read_b32 v{tmp+e}, a{O+16*db+8*t+e}')
                for e in range(0, 8, 2): a(f'v_pk_mul_f32 v[{tmp+e}:{tmp+e+1}], v[{tmp+e}:{tmp+e+1}], v[{inv}:{inv+1}]')
                for e in range(0, 8, 2): a(f'v_cvt_pk_bf16_f32 v{tmp+(e>>1)}, v{tmp+e}, v{tmp+e+1}')
                j = 2*db+t
                off = j*1024
                so = qt_sgpr if off < 4096 else qt_sgpr+1
                a(f'buffer_store_dwordx4 v[{tmp}:{tmp+3}], v{V_L16}, s[{S_C}:{S_C+3}], s{so} offen offset:{off % 4096}{STF.st}')
                if vq: vq.push('ctx')
                k += 1

    def stamp(self, same=False):
        self.st()
    def dump_stamps(self):
        self.st.dump(100*MB, s_w, 253)

    def emit(self):
        self.simulate()
        M = self.emit_head()
        self.emit_body(M)

    def kv_srd_lines(self):
        a = Asm()
        a(f's_lshl_b32 s{s_t0}, s{s_h}, 19')
        a(f's_lshl_b32 s{s_t1}, s{s_i}, 15')
        a(f's_sub_u32 s{s_t1}, 0x80000, s{s_t1}')
        for S_, base in ((S_K, WS_K), (S_V, WS_V)):
            a(f's_add_u32 s{S_}, s34, {base}')
            a(f's_addc_u32 s{S_+1}, s35, 0')
            a(f's_add_u32 s{S_}, s{S_}, s{s_t0}')
            a(f's_addc_u32 s{S_+1}, s{S_+1}, 0')
            a(f's_and_b32 s{S_+1}, s{S_+1}, 0xffff')
            a(f's_mov_b32 s{S_+2}, s{s_t1}')
            a(f's_mov_b32 s{S_+3}, 0x20000')
        make_srd(a, S_C, 34, WS_CTX, 16*MB)
        for qt, d in ((36, 56), (37, 58)):
            a(f's_lshl_b32 s{s_t0}, s{qt}, 5')
            a(f's_add_u32 s{s_t0}, s{s_t0}, s{s_h}')
            a(f's_lshl_b32 s{d}, s{s_t0}, 13')
            a(f's_add_u32 s{d+1}, s{d}, 4096')
        return a.lines

    def kv_groups(self, kind, nb):
        G = []
        for b in range(nb):
            for grp in self.dma_group(kind, 1): G.append((grp, 'kv'))
        return G

    def q_to_frags(self):
        self.q_to_frags_cvt(); self.q_to_frags_srd()

    def q_to_frags_cvt(self):
        a = self.a
        a('s_nop 7')
        for st, Q in ((0, QA), (1, QB)):
            for dt in range(4):
                A = 64 + 16*(4*st+dt)
                for t in range(2):
                    for k in range(4):
                        a(f'v_cvt_pk_bf16_f32 v{Q+4*(2*dt+t)+k}, v{A+8*t+2*k}, v{A+8*t+2*k+1}')

    def q_to_frags_srd(self):
        a = self.a
        if self.mlp:
            make_srd(a, S_MW, 68, 0, 2048*3584); make_srd(a, S_MH, 34, WS_H, 2*MB)
            a(f's_cmp_eq_u32 s{s_i}, {self.nomlp_i}')
            a(f's_cselect_b32 s{S_MW+2}, 0, s{S_MW+2}')
            a(f's_cselect_b32 s{S_MH+2}, 0, s{S_MH+2}')

    def setup_attn_regs(self):
        a = self.a; opt = self.opt
        a(f's_lshl_b32 s{s_ks}, s{s_w}, 11')
        a(f's_mov_b32 s{s_vs}, s{s_ks}')
        a(f's_mov_b32 s{s_thr}, {THR}')
        a(f'v_mov_b32 v{V_NEG}, 0xf149f2ca')
        a(f'v_mov_b32 v{V_MASK}, 0xffff')
        a(f'v_mov_b32 v{V_VBASE}, 0x10000')
        a(f'v_mov_b32 v{V_KA}, v{V_L16}')
        a(f'v_add_u32 v{V_VA}, 0x10000, v{V_L16}')
        a(f'v_and_b32 v3, 31, v2')
        a(f'v_lshrrev_b32 v4, 5, v2')
        a(f'v_lshlrev_b32 v4, 2, v4')
        a(f'v_sub_u32 v3, v3, v4')
        a(f's_lshl_b32 s{s_t0}, s36, 5')
        a(f'v_add_u32 v{V_RELA}, s{s_t0}, v3')
        a(f's_lshl_b32 s{s_t0}, s37, 5')
        a(f'v_add_u32 v{V_RELB}, s{s_t0}, v3')
        M = Mlp1(a, tshift=(4 if self.nomlp_i == 0 else 0)); M.ids()
        if self.mlp:
            T = 33
            a(f's_lshl_b32 s{s_ml}, s{s_w}, 13'); a(f's_add_u32 s{s_ml}, s{s_ml}, 131072')
            gen_t2.lane_setup(a, 5, T)
            for t in range(2):
                X = T+5; dst = V_MR+t
                a(f'v_mul_u32_u24 v{X}, 8, v{T}'); a(f'v_add_u32 v{X}, v{X}, v{T+1}'); a(f'v_lshlrev_b32 v{X}, 7, v{X}')
                a(f'v_xor_b32 v{dst}, {t}, v{T+4}'); a(f'v_lshl_add_u32 v{X}, v{dst}, 6, v{X}')
                a(f'v_lshl_add_u32 v{X}, v{T+2}, 5, v{X}'); a(f'v_lshl_add_u32 v{X}, v{T+3}, 3, v{X}')
                a(f'v_add_u32 v{dst}, s{s_ml}, v{X}')
            for dst, stride in ((V_MA, 3584), (V_MB, 1024)):
                mt = getattr(self, 'mtmp', 48)
                gen_t2.dma_voffs(a, mt, 5, T, stride, s_t1)
                a(f'v_mov_b32 v{dst}, v{mt}'); a(f'v_mov_b32 v{dst+1}, v{mt+1}')
            a(f's_mul_i32 s{s_ma}, s{s_w}, {512*3584}'); a(f's_lshl_b32 s{s_t1}, s{M.s_fb}, 7'); a(f's_add_u32 s{s_ma}, s{s_ma}, s{s_t1}')
            a(f's_lshl_b32 s{s_mb}, s{s_w}, 19'); a(f's_lshl_b32 s{s_t1}, s{M.s_db}, 7'); a(f's_add_u32 s{s_mb}, s{s_mb}, s{s_t1}')
        a(f'v_lshlrev_b32 v252, 3, v{V_L16}')
        a(f's_sub_u32 s{s_t0}, s2, 32'); a(f's_lshl_b32 s{s_t0}, s{s_t0}, 2'); a(f's_add_u32 s{s_t0}, s{s_t0}, s{s_w}')
        a(f's_lshl_b32 s74, s{s_t0}, 13')
        a(f's_mul_i32 s75, s{s_t0}, 4736')
        return M

    def emit_head(self):
        a = self.a; N = self.name; opt = self.opt
        vm = self.vm
        S_X, S_WQ = 12, 60
        a(f's_cmp_ge_u32 s2, 256')
        a(f's_cbranch_scc1 {N}_end')
        self.stamp()
        a(f's_load_dwordx2 s[34:35], s[0:1], {KA_WS}')
        a(f's_load_dwordx2 s[64:65], s[0:1], {KA_AX}')
        a(f's_load_dwordx2 s[66:67], s[0:1], {KA_WQ}')
        a(f's_load_dwordx2 s[68:69], s[0:1], {KA_W1}')
        a(f's_load_dwordx2 s[86:87], s[0:1], {KA_B1}')
        a(f's_load_dwordx2 s[70:71], s[0:1], {KA_WO}')
        a(f's_load_dwordx2 s[72:73], s[0:1], {KA_W2}')
        a(f'v_lshrrev_b32 v1, 6, v0')
        a(f'v_and_b32 v2, 63, v0')
        a(f'v_lshlrev_b32 v{V_L16}, 4, v2')
        a(f'v_readfirstlane_b32 s{s_w}, v1')
        a(f's_and_b32 s{s_t0}, s2, 7')
        a(f's_lshr_b32 s{s_t1}, s2, 3')
        a(f's_lshl_b32 s{s_h}, s{s_t0}, 2')
        a(f's_and_b32 s{s_t0}, s{s_t1}, 3')
        a(f's_add_u32 s{s_h}, s{s_h}, s{s_t0}')
        a(f's_lshr_b32 s{s_i}, s{s_t1}, 2')
        a(f's_add_u32 s{s_g1}, s{s_i}, 1')
        a(f's_lshl_b32 s{s_g1}, s{s_g1}, 2')
        a(f's_lshl_b32 s36, s{s_i}, 2')
        a(f's_add_u32 s36, s36, s{s_w}')
        a(f's_lshl_b32 s37, s{s_i}, 2')
        a(f's_sub_u32 s37, 60, s37')
        a(f's_add_u32 s37, s37, s{s_w}')
        vq = VmQueue()
        P = Proj(a, vq, s_w, 16384, 65536, ACC=64, FB=PFB, fbk='a', VA=8, V_L16=V_L16, VT=33, SG=40, wflags=(' nt' if opt.get('nt', True) else ''))
        P.setup_addrs(set_l16=False)
        a('s_waitcnt lgkmcnt(0)')
        make_srd(a, S_X, 64, 0, 2*MB); make_srd(a, S_WQ, 66, 0, 4*MB)
        init = [f's_lshl_b32 s{P.s_a0}, s36, 15', f's_lshl_b32 s{P.s_a1}, s37, 15',
                f's_lshl_b32 s{P.s_wo}, s{s_w}, 17', f's_lshl_b32 s{s_t0}, s{s_h}, 8', f's_add_u32 s{P.s_wo}, s{P.s_wo}, s{s_t0}']
        qpass = [dict(swap=False, srdA=S_X, srdW=S_WQ, init=init, epi=lambda: None, acck='v')]
        P.prologue(qpass[0])
        for l in self.kv_srd_lines(): a(l)
        M = self.setup_attn_regs()
        for e in range(128): a(f'v_accvgpr_write_b32 a{e}, 0')
        P.start_compute()
        self.stamp()
        KG = self.kv_groups('K', 6); VG = self.kv_groups('V', 4)
        def xl(p, t): return KG[:6] if t == 5 else (VG[:2] if t == 6 else [])
        def xe(p, t): return KG[6:] if t == 6 else (VG[2:] if t == 7 else [])
        P.run(qpass, extra_early=xe, extra_late=xl)
        self.stamp()
        self.q_to_frags()
        return M

    def emit_body(self, M):
        a = self.a; N = self.name; opt = self.opt
        vm = self.vm
        a(f's_waitcnt vmcnt({vm[("pro",-3)]})')
        a('s_barrier')
        for grp in self.dma_group('K', 1):
            for l in grp: a(l)
        for j in range(D//2):
            a(f'ds_read_b128 {ar(FR+4*j,4)}, v{V_KA} offset:{j*1024}')
        it = Iter(1, None, None, 1, 0, czero=True)
        if self.mlp: it.fill = [('x', f'v_accvgpr_write_b32 a{MACC+e}, 0') for e in range(64)]
        self.emit_iter(it, ('pro', -2))
        self.emit_init()
        self.stamp()
        it = Iter(1, 'init', None, 1, 1); it.mlp_first = self.mlp
        self.emit_iter(it, ('pro', -1))
        self.stamp()
        def MI(*args, dma=True):
            it = Iter(*args); it.mlp = True; it.mlp_dma = dma
            return it
        a(f's_cmp_eq_u32 s{s_i}, 0')
        a(f's_cbranch_scc1 {N}_trans')
        a(f's_sub_u32 s{s_cnt}, s{s_g1}, 6')
        a(f's_lshr_b32 s{s_cnt}, s{s_cnt}, 1')
        a('.p2align 6')
        a.label(f'{N}_p1loop')
        self.emit_iter(MI(1, '1', 1, 1, 0), ('p1loop', 0))
        self.emit_iter(MI(1, '1', 1, 1, 1), ('p1loop', 1))
        a(f's_sub_u32 s{s_cnt}, s{s_cnt}, 1')
        a(f's_cmp_lg_u32 s{s_cnt}, 0')
        a(f's_cbranch_scc1 {N}_p1loop')
        def pf(ptr, nb, so):
            if not opt.get('pf', True): return []
            l = Asm(); make_srd(l, 76, ptr, 0, nb); l(f'buffer_load_dword v253, v252, s[76:79], s{so} offen')
            return l.lines
        self.emit_iter(MI(1, '1', 1, 1, 0), ('p1peel', 0))
        def relA(k):
            return [f's_sub_u32 s{s_t1}, s{s_g1}, {k}', f's_lshl_b32 s{s_t1}, s{s_t1}, 5', f'v_subrev_u32 v{V_REL[0]}, s{s_t1}, v{V_RELA}']
        self.emit_iter(MI(1, '1m', 1, 1, 1), ('p1peel', 1), extra_pre=relA(4), extra_post=pf(72, 1792*4096, 74))
        for l in pf(70, 4*MB, 75): a(l)
        a.label(f'{N}_trans')
        self.stamp()
        self.emit_iter(MI(1, '1m', 1, 1, 0), ('trans', -4), extra_pre=relA(3))
        sw = [f's_lshl_b32 s{s_t0}, s{s_w}, 11']
        self.emit_iter(MI(1, '1m', 1, 2, 1), ('trans', -3), extra_pre=relA(2) + sw + [f's_add_u32 s{s_ks}, s{s_ks}, s{s_t0}'])
        self.emit_iter(MI(2, '1m', 1, 2, 0), ('trans', -2), extra_pre=relA(1))
        def relB(expr_lines):
            return expr_lines + [f'v_subrev_u32 v{V_REL[0]}, s{s_t1}, v{V_RELB}', f'v_subrev_u32 v{V_REL[1]}, 32, v{V_REL[0]}']
        self.emit_iter(MI(2, '2m', 1, 2, 1), ('trans', -1), extra_pre=relB([f's_lshl_b32 s{s_t1}, s{s_g1}, 5']))
        self.stamp()
        a('s_nop 12')
        self.epilogue_tile(OA, LA, 56)
        a(f's_lshl_b32 s{s_t0}, s{s_w}, 11')
        a(f's_add_u32 s{s_vs}, s{s_vs}, s{s_t0}')
        a(f's_cmp_eq_u32 s{s_i}, 7')
        a(f's_cbranch_scc1 {N}_epi')
        a(f's_sub_u32 s{s_cnt}, 30, s{s_g1}')
        a(f's_lshr_b32 s{s_cnt}, s{s_cnt}, 1')
        a('.p2align 6')
        a.label(f'{N}_p2loop')
        self.emit_iter(MI(2, '2', 2, 2, 0), ('p2loop', 0))
        self.emit_iter(MI(2, '2', 2, 2, 1), ('p2loop', 1))
        a(f's_sub_u32 s{s_cnt}, s{s_cnt}, 1')
        a(f's_cmp_lg_u32 s{s_cnt}, 0')
        a(f's_cbranch_scc1 {N}_p2loop')
        self.emit_iter(MI(2, '2', 2, 2, 0, dma=False), ('p2peel', 0), extra_post=(M.l2_prefetch(234) if opt.get('pf2', False) else None))
        relB32 = [f's_sub_u32 s{s_t1}, 64, s{s_g1}', f's_lshl_b32 s{s_t1}, s{s_t1}, 5']
        self.emit_iter(MI(2, '2m', 2, 2, 1, dma=False), ('p2peel', 1), extra_pre=relB(relB32))
        a.label(f'{N}_epi')
        self.stamp()
        relB33 = [f's_sub_u32 s{s_t1}, 66, s{s_g1}', f's_lshl_b32 s{s_t1}, s{s_t1}, 5']
        it = Iter(None, '2m', 2, None, 0); it.nov = True
        a('s_waitcnt lgkmcnt(0)')
        self.emit_iter(it, ('epi', 32), extra_pre=relB(relB33))
        it = Iter(None, None, 2, None, 1); it.nov = True
        vq2 = VmQueue()
        if self.mlp and opt.get('e2fill', True):
            it.fill, it.fill_groups = M.finish_pre()
            it.vq = vq2
        a('s_nop 1')
        self.emit_iter(it, None)
        if opt.get('fusefin'):
            import gen_final
            gen_final.final_pointer_loads(a)
        self.stamp()
        def fill():
            make_srd(a, 76, 34, WS_PART, 8*MB)
            a(f's_sub_u32 s{s_t0}, s2, 224'); a(f's_lshl_b32 s{s_t0}, s{s_t0}, 2'); a(f's_add_u32 s{s_t0}, s{s_t0}, s{s_w}'); a(f's_lshl_b32 s{s_t0}, s{s_t0}, 16')
            for e in range(4): a(f'v_mov_b32 v{V_T+4+e}, -1')
            a(f's_mov_b32 s{s_cnt}, 16')
            a.label(f'{N}_fill')
            for q in range(4):
                a(f'buffer_store_dwordx4 v[{V_T+4}:{V_T+7}], v{V_L16}, s[76:79], s{s_t0} offen offset:{q*1024}' + (' sc1' if (opt.get('fusefin') or opt.get('fillsc1', True)) else ''))
            a('s_waitcnt vmcnt(40)')
            a(f's_add_u32 s{s_t0}, s{s_t0}, 4096')
            a(f's_sub_u32 s{s_cnt}, s{s_cnt}, 1')
            a(f's_cmp_lg_u32 s{s_cnt}, 0')
            a(f's_cbranch_scc1 {N}_fill')
        def wbl2(lab):
            if opt.get('wbl2', True):
                a(f's_cmp_eq_u32 s{s_w}, 0'); a(f's_cbranch_scc0 {N}_{lab}'); a('buffer_wbl2 sc1'); a.label(f'{N}_{lab}')
        a(f's_cmp_eq_u32 s{s_i}, {self.nomlp_i}')
        a(f's_cbranch_scc1 {N}_nomlp')
        if opt.get('fusefin') and opt.get('l3', {}).get('ofirst', True) and self.nomlp_i == 7: M.final_wait = 2
        M.finish(vq2, lambda: self.epilogue_tile(OB, LB, 58, vq2), self.stamp, pre_done=opt.get('e2fill', True))
        if self.nomlp_i != 7:
            a(f's_cmp_eq_u32 s{s_i}, 7'); a(f's_cbranch_scc0 {N}_nofill')
            wbl2('nowb'); fill(); a('s_waitcnt vmcnt(0)')
            a.label(f'{N}_nofill')
        self.stamp()
        if opt.get('fusefin'):
            a(f's_branch {N}_phasec')
        else:
            self.dump_stamps()
            a('s_endpgm')
        a.label(f'{N}_nomlp')
        if self.nomlp_i == 7: wbl2('nowb')
        a('s_nop 15')
        self.epilogue_tile(OB, LB, 58)
        if self.nomlp_i == 7: fill()
        a('s_waitcnt vmcnt(0)')
        self.stamp()
        if opt.get('fusefin'):
            a.label(f'{N}_phasec')
            self.emit_phasec()
        else:
            self.dump_stamps()
        a.label(f'{N}_end')
        a('s_endpgm')
        for u, it in self.slow: self.emit_slow(u, it)
        self.emit_rescale()
```

```python
from asmlib import *
from layout import *

MF = 'v_mfma_f32_32x32x16_bf16'
def v(b, n=1): return f'v{b}' if n == 1 else f'v[{b}:{b+n-1}]'
def ar(b, n=1): return f'a{b}' if n == 1 else f'a[{b}:{b+n-1}]'
SLOT = 49152

class VmQueue:
    def __init__(self): self.q = []
    def push(self, tag): self.q.append(tag)
    def count_for(self, tag):
        idx = [i for i, t in enumerate(self.q) if t == tag]
        if not idx: return None
        return len(self.q) - 1 - idx[-1]
    def wait_for(self, a, tag):
        n = self.count_for(tag)
        if n is None: return
        assert n <= 63
        a(f's_waitcnt vmcnt({n})')
        self.q = self.q[len(self.q)-n:] if n else []

class Proj:
    def __init__(self, a, vq, s_w, ring_lo, ring_start, ACC=64, FB=(0, 24), fbk='a', VA=8, V_L16=32, VT=33, SG=40, stamps=None, wflags='', opt=None):
        self.a, self.vq, self.s_w = a, vq, s_w
        self.lo, self.start, self.hi = ring_lo, ring_start, ring_lo + 3*SLOT
        self.ACC, self.FB = ACC, FB
        self.fr = ar if fbk == 'a' else v
        self.V_AR, self.V_WR, self.V_AB, self.V_WB, self.V_AD, self.V_WD = VA, VA+4, VA+8, VA+12, VA+16, VA+20
        self.V_L16, self.VT = V_L16, VT
        (self.s_a0, self.s_a1, self.s_wo, self.s_fill, self.s_rd, self.s_wW, self.s_wA, self.s_t) = range(SG, SG+8)
        self.st = stamps or (lambda n='': None)
        self.wflags = wflags
        self.opt = opt or {}
        self.lq = []

    def setup_addrs(self, set_l16=True):
        a = self.a; T = self.VT; w = self.s_w
        a(f'v_and_b32 v{T}, 63, v0')
        if set_l16: a(f'v_lshlrev_b32 v{self.V_L16}, 4, v{T}')
        a(f's_lshl_b32 s{self.s_wW}, s{w}, 12')
        a(f's_lshl_b32 s{self.s_wA}, s{w}, 13')
        a(f's_add_u32 s{self.s_wA}, s{self.s_wA}, 16384')
        a(f's_mov_b32 s{self.s_fill}, {self.start}')
        a(f's_mov_b32 s{self.s_rd}, {self.start}')
        a(f'v_and_b32 v{T+1}, 31, v{T}')
        a(f'v_lshrrev_b32 v{T+2}, 5, v{T}')
        a(f'v_bfe_u32 v{T+3}, v{T+1}, 1, 3')
        a(f'v_xor_b32 v{T+3}, v{T+3}, v{T+2}')
        a(f'v_lshlrev_b32 v{T+3}, 4, v{T+3}')
        a(f'v_lshl_add_u32 v{T+3}, v{T+1}, 7, v{T+3}')
        a(f'v_add_u32 v{self.V_AB}, s{self.s_wA}, v{T+3}')
        for ks in range(1, 4):
            a(f'v_xor_b32 v{self.V_AB+ks}, {ks << 5}, v{self.V_AB}')
        a(f'v_bfe_u32 v{T+3}, v{T}, 2, 2')
        a(f'v_lshl_add_u32 v{T+4}, v{T+2}, 3, v{T+3}')
        a(f'v_lshlrev_b32 v{T+4}, 8, v{T+4}')
        a(f'v_bfe_u32 v{T+5}, v{T}, 4, 1')
        a(f'v_lshl_add_u32 v{T+4}, v{T+5}, 5, v{T+4}')
        a(f'v_and_b32 v{T+5}, 3, v{T}')
        a(f'v_lshl_add_u32 v{T+4}, v{T+5}, 3, v{T+4}')
        for dt in range(4):
            a(f'v_xor_b32 v{T+5}, {dt}, v{T+3}')
            a(f'v_lshl_add_u32 v{self.V_WB+dt}, v{T+5}, 6, v{T+4}')
        a(f'v_lshrrev_b32 v{T+3}, 3, v{T}')
        a(f'v_and_b32 v{T+4}, 7, v{T}')
        a(f'v_lshrrev_b32 v{T+5}, 1, v{T+3}')
        for j in range(4):
            a(f'v_xor_b32 v{T+6}, v{T+4}, v{T+5}')
            if j & 1: a(f'v_xor_b32 v{T+6}, 4, v{T+6}')
            a(f'v_lshlrev_b32 v{T+6}, 4, v{T+6}')
            a(f'v_lshl_add_u32 v{T+6}, v{T+3}, 10, v{T+6}')
            a(f'v_add_u32 v{self.V_AD+j}, {j*(8192-1024)}, v{T+6}')
        a(f'v_lshrrev_b32 v{T+3}, 4, v{T}')
        a(f'v_bfe_u32 v{T+4}, v{T}, 2, 2')
        a(f'v_xor_b32 v{T+4}, v{T+4}, v{T+3}')
        a(f'v_lshlrev_b32 v{T+4}, 6, v{T+4}')
        a(f'v_and_b32 v{T+5}, 3, v{T}')
        a(f'v_lshl_add_u32 v{T+4}, v{T+5}, 4, v{T+4}')
        a(f'v_lshl_add_u32 v{T+4}, v{T+3}, 13, v{T+4}')
        for j in range(4):
            a(f'v_add_u32 v{self.V_WD+j}, {j*(32768-1024)}, v{T+4}')

    def adv(self, s):
        return [f's_add_u32 s{s}, s{s}, {SLOT}', f's_cmp_ge_u32 s{s}, {self.hi}', f's_cselect_b32 s{s}, {self.lo}, s{s}']

    def dma_stage(self, srdA, srdW, tag, pre=None):
        g = []
        def ld(vo, srd_, so, off, fl=''): return f'buffer_load_dwordx4 v{vo}, s[{srd_}:{srd_+3}], s{so} offen' + (f' offset:{off}' if off else '') + fl + ' lds'
        for j in range(4):
            l = []
            if j == 0: l += list(pre or []) + [f's_add_u32 m0, s{self.s_fill}, s{self.s_wW}', 's_nop 0']
            l.append(ld(self.V_WD+j, srdW, self.s_wo, j*1024, self.wflags))
            if j == 3: l.append(f's_add_u32 s{self.s_wo}, s{self.s_wo}, {64*8192}')
            g.append((l, tag))
        for t, so in ((0, self.s_a0), (1, self.s_a1)):
            for j in range(4):
                l = []
                if j == 0:
                    if t == 0: l += [f's_add_u32 s{self.s_t}, s{self.s_fill}, s{self.s_wA}', f's_mov_b32 m0, s{self.s_t}', 's_nop 0']
                    else: l += [f's_add_u32 m0, s{self.s_t}, 4096', 's_nop 0']
                l.append(ld(self.V_AD+j, srdA, so, j*1024))
                if j == 3: l.append(f's_add_u32 s{so}, s{so}, 128')
                g.append((l, tag))
        g[-1][0].extend(self.adv(self.s_fill))
        return g

    def emit_group(self, g):
        lines, tag = g
        if lines and lines[0] == '@wait':
            self.vq.wait_for(self.a, tag); return
        for l in lines: self.a(l)
        if tag is not None and any(l.startswith('buffer_') or l.startswith('global_') for l in lines): self.vq.push(tag)

    def read_addr_update(self):
        l = []
        for k in range(4):
            l.append(f'v_add_u32 v{self.V_AR+k}, s{self.s_rd}, v{self.V_AB+k}')
            l.append(f'v_add_u32 v{self.V_WR+k}, s{self.s_rd}, v{self.V_WB+k}')
        return l + self.adv(self.s_rd)

    def kstep_reads(self, ks, buf):
        F = self.FB[buf]; fr = self.fr
        def act(t): return [f'ds_read_b128 {fr(F+16+4*t,4)}, v{self.V_AR+ks} offset:{t*4096}']
        def wf(dt): return [f'ds_read_b64_tr_b16 {fr(F+4*dt,2)}, v{self.V_WR+dt} offset:{ks*4096}',
                            f'ds_read_b64_tr_b16 {fr(F+4*dt+2,2)}, v{self.V_WR+dt} offset:{ks*4096+1024}']
        if self.opt.get('cnt', True):
            return [(l, ('a', buf, 0)) for l in act(0)] + [(l, ('w', buf, 0)) for l in wf(0)] + [(l, ('a', buf, 1)) for l in act(1)] + \
                   [(l, ('w', buf, dt)) for dt in (1, 2, 3) for l in wf(dt)]
        return [(l, None) for l in act(0) + wf(0) + wf(1) + act(1) + wf(2) + wf(3)]

    def kstep_mfmas(self, buf, swap, first, acck='v'):
        F = self.FB[buf]; fr = self.fr
        l = []
        for dt in range(4):
            for st in range(2):
                acc = (v if acck == 'v' else ar)(self.ACC + 16*(4*st+dt), 16)
                W = fr(F+4*dt, 4); A = fr(F+16+4*st, 4)
                c = '0' if first else acc
                l.append(f'{MF} {acc}, {A}, {W}, {c}' if swap else f'{MF} {acc}, {W}, {A}, {c}')
        return l

    def stage(self, swap, first, need_tag, early, late, last=False, acck='v'):
        a = self.a
        if self.opt.get('stagestamps', True): self.st('stage')
        early = list(early or []); late = list(late or [])
        eslot = {}; lslot = {}
        if self.opt.get('place', False):
            isdma = lambda g: any(' lds' in l for l in g[0])
            def spread(groups, free, allslots, out):
                dm = [g for g in groups if isdma(g)]; ex = [g for g in groups if not isdma(g)]
                load = {s: (8.0 if (s % 8) < 5 else 0.0) for s in allslots}
                if dm:
                    sl = free if len(dm) <= len(free) else allslots
                    for k, g in enumerate(dm):
                        s_ = sl[k*len(sl)//len(dm)] if len(dm) < len(sl) else sl[min(k*len(sl)//len(dm), len(sl)-1)]
                        out.setdefault(s_, []).append(g); load[s_] += sum(20 if l.startswith('buffer_') else 4 for l in g[0])
                if ex:
                    cost = [sum(20 if l.startswith('buffer_') else 4 for l in g[0]) for g in ex]
                    total = sum(cost) + sum(load.values()); per_ = total/len(allslots)
                    k = 0; acc_ = 0.0
                    for n_, s_ in enumerate(allslots):
                        acc_ += load[s_]
                        while k < len(ex) and (acc_ + cost[k]*0.5 <= per_*(n_+1) or n_ == len(allslots)-1):
                            out.setdefault(s_, []).append(ex[k]); acc_ += cost[k]; k += 1
            spread(early, [5, 6, 7, 13, 14, 15, 21, 22, 23], list(range(1, 24)), eslot)
            spread(late, [5, 6, 7], list(range(2, 8)), lslot)
        else:
            for k in range(len(early)):
                eslot.setdefault(int(1 + k*(23.0/len(early))), []).append(early[k])
            for k in range(len(late)):
                lslot.setdefault(min(7, 2 + int(k*(6.0/len(late)))), []).append(late[k])
        cnt = self.opt.get('cnt', True)
        def emit_rd(x):
            a(x[0]); self.lq.append(x[1])
        def need(tags):
            idx = max([k for k, t in enumerate(self.lq) if t in tags], default=-1)
            if idx < 0: return
            n = len(self.lq) - 1 - idx
            a(f's_waitcnt lgkmcnt({n})')
            self.lq = self.lq[idx+1:]
        per = self.opt.get('rdper', 2)
        for ks in range(4):
            buf = ks & 1
            pre = []
            if not cnt or (ks == 3 and not last):
                a('s_waitcnt lgkmcnt(0)'); self.lq = []
            if ks == 3 and not last:
                if not self.opt.get('novm'): self.vq.wait_for(a, need_tag)
                for l in (self.prebar(*self.cur) if getattr(self, 'prebar', None) else []): a(l)
                if not self.opt.get('nobar'): a('s_barrier')
                pre = self.read_addr_update()
            mf = self.kstep_mfmas(buf, swap, first and ks == 0, acck)
            if ks < 3: rd = self.kstep_reads(ks+1, buf ^ 1)
            elif not last: rd = self.kstep_reads(0, buf ^ 1)
            else: rd = []
            for k, m in enumerate(mf):
                if cnt: need([('w', buf, k >> 1), ('a', buf, k & 1)])
                a(m)
                if k == 0:
                    for l in pre[:8]: a(l)
                for x in rd[per*k:per*(k+1)]: emit_rd(x)
                if k == 1:
                    for l in pre[8:]: a(l)
                for g in (eslot.get(8*ks+k, []) if ks < 3 else lslot.get(k, [])): self.emit_group(g)

    def prologue(self, p0, after0=None):
        for t in range(2):
            for g in self.dma_stage(p0['srdA'], p0['srdW'], (0, t), pre=(p0['init'] if t == 0 else None)): self.emit_group(g)
            if t == 0 and after0: after0()
        self.g_pending = self.dma_stage(p0['srdA'], p0['srdW'], (0, 2))
        nf = getattr(self, 'nfresh', 3)
        for g in self.g_pending[:nf]: self.emit_group(g)
        self.g_pending = self.g_pending[nf:]

    def start_compute(self):
        a = self.a
        self.vq.wait_for(a, (0, 0))
        a('s_barrier')
        for l in self.read_addr_update(): a(l)
        self.lq = []
        for x in self.kstep_reads(0, 0):
            a(x[0]); self.lq.append(x[1])

    def run(self, passes, extra_early=None, extra_late=None):
        n = len(passes); total = 8*n
        xe = extra_early or (lambda p, t: []); xl = extra_late or (lambda p, t: [])
        for T in range(total):
            p, t = divmod(T, 8); ps = passes[p]
            early = self.g_pending; self.g_pending = []
            late = []
            T3 = T+3
            if T3 < total:
                p3, t3 = divmod(T3, 8)
                G = self.dma_stage(passes[p3]['srdA'], passes[p3]['srdW'], (p3, t3), pre=(passes[p3]['init'] if t3 == 0 else None))
                nf = getattr(self, 'nfresh', 3)
                late = G[:nf]; self.g_pending = G[nf:]
            ex = list(xe(p, t)); merged = []
            e0 = list(early)
            tot = len(e0) + len(ex)
            ie = ix = 0
            for k in range(tot):
                if ix < len(ex) and (ie >= len(e0) or ix*len(e0) <= ie*len(ex) - 0.5*len(ex) or not e0): merged.append(ex[ix]); ix += 1
                else: merged.append(e0[ie]); ie += 1
            nxt = divmod(T+1, 8) if T+1 < total else None
            self.cur = (p, t)
            xlate = list(xl(p, t))
            for g in ex + xlate:
                if any('m0' in l for l in g[0]): assert T3 >= total and not (g in ex and e0), 'm0 clobber'
            self.stage(ps['swap'], t == 0, nxt, merged, late + xlate, last=(nxt is None), acck=ps.get('acck', 'v'))
            if t == 7:
                if self.opt.get('stagestamps', True) or p+1 < n: self.st('epi')
                ps['epi']()


from gen_proj import allreduce, unpack8, make_srd
import gen_proj

def emit_ln(a, base, X, V_L16, S_AX, S_GW, S_H, S_G, s_row, s_rowg, vq, part):
    if part == 'load':
        a(f'buffer_load_dwordx4 {v(base,4)}, v{V_L16}, s[{S_AX}:{S_AX+3}], s{s_row} offen'); vq.push('ln')
        a(f'buffer_load_dwordx4 {v(base+4,4)}, v{V_L16}, s[{S_AX}:{S_AX+3}], s{s_row} offen offset:1024'); vq.push('ln')
        a(f'buffer_load_dwordx4 {v(base+16,4)}, v{V_L16}, s[{S_GW}:{S_GW+3}], 0 offen'); vq.push('ln')
    else:
        vq.wait_for(a, 'ln')
        gen_proj.R.V_L16 = V_L16
        gen_proj.emit_ln_compute(a, base, S_H, S_G, s_row, s_rowg, X)
        for _ in range(3): vq.push('lnst')

def frag_store_groups(P, kind, acck, srd, s_offs, tmp, v_scale=None, tag='st'):
    G = []
    k = 0
    for dt in range(4):
        for st in range(2):
            A = P.ACC + 16*(4*st+dt)
            for t in range(2):
                b = A + 8*t
                f = (4*t+dt) if kind == 'V' else (2*dt+t)
                so = s_offs + 2*st + (f >> 2)
                if acck == 'a':
                    T = tmp + 8*(k & 1)
                    G.append(([f'v_accvgpr_read_b32 v{T+e}, a{b+e}' for e in range(4)], None))
                    G.append(([f'v_accvgpr_read_b32 v{T+e}, a{b+e}' for e in range(4, 8)], None))
                else:
                    T = b
                if v_scale is not None:
                    G.append(([f'v_pk_mul_f32 v[{T+e}:{T+e+1}], v[{T+e}:{T+e+1}], v[{v_scale}:{v_scale+1}]' for e in range(0, 8, 2)], None))
                l = [f'v_cvt_pk_bf16_f32 v{T+q}, v{T+2*q}, v{T+2*q+1}' for q in range(4)]
                l.append(f'buffer_store_dwordx4 v[{T}:{T+3}], v{P.V_L16}, s[{srd}:{srd+3}], s{so} offen offset:{(f & 3)*1024}{STF.st}')
                G.append((l, tag))
                k += 1
    return G

def emit_l1(a, N='l1', **opt):
    S_X, S_C, S_WK, S_WV, S_O, S_H, S_G, S_GW = 4, 8, 16, 24, 28, 32, 36, 60
    s_w, s_h, s_r = 20, 21, 22
    st_ = Stamps(a, opt.get('diag'))
    a('s_cmp_ge_u32 s2, 256')
    a(f's_cbranch_scc1 {N}_end')
    a(f's_load_dwordx4 s[64:67], s[0:1], {KA_AX}')
    a(f's_load_dwordx4 s[68:71], s[0:1], {KA_WUK}')
    a(f's_load_dwordx2 s[76:77], s[0:1], {KA_GW}')
    a(f's_load_dwordx2 s[78:79], s[0:1], {KA_WS}')
    a(f's_load_dwordx2 s[88:89], s[0:1], {KA_WQ}')
    a('v_lshrrev_b32 v1, 6, v0')
    a('s_and_b32 s23, s2, 7')
    a(f'v_readfirstlane_b32 s{s_w}, v1')
    a('s_lshr_b32 s48, s2, 3')
    a(f's_lshl_b32 s{s_h}, s23, 2')
    a('s_and_b32 s23, s48, 3')
    a(f's_add_u32 s{s_h}, s{s_h}, s23')
    a(f's_lshr_b32 s{s_r}, s48, 2')
    st_('start')
    vq = VmQueue()
    P = Proj(a, vq, s_w, 0, 0, stamps=st_, wflags=(' nt' if opt.get('nt', True) else ''), opt=opt)
    P.setup_addrs()
    a('s_waitcnt lgkmcnt(0)')
    make_srd(a, S_X, 64, 0, 2*MB); make_srd(a, S_C, 66, 0, 2*MB)
    make_srd(a, S_WK, 68, 0, 4*MB); make_srd(a, S_WV, 70, 0, 4*MB)
    make_srd(a, S_O, 78, WS_K, 32*MB)
    make_srd(a, S_H, 78, WS_H, 2*MB); make_srd(a, S_G, 78, WS_G, 8192)
    make_srd(a, S_GW, 76, 0, 1024)
    a(f's_lshl_b32 s80, s2, 3'); a(f's_lshl_b32 s81, s{s_w}, 1'); a('s_add_u32 s80, s80, s81')
    a('s_lshl_b32 s81, s80, 2')
    a('s_lshl_b32 s80, s80, 10')
    lnend = opt.get('lnend', False)
    if not lnend: emit_ln(a, 192, 64, P.V_L16, S_X, S_GW, S_H, S_G, 80, 81, vq, 'load')
    c = 0x3e0293ee
    a(f'v_mov_b32 v2, {hex(c)}'); a(f'v_mov_b32 v3, {hex(c)}')
    init = [f's_lshl_b32 s{P.s_a0}, s{s_r}, 18', f's_lshl_b32 s49, s{s_w}, 16', f's_add_u32 s{P.s_a0}, s{P.s_a0}, s49',
            f's_add_u32 s{P.s_a1}, s{P.s_a0}, 32768',
            f's_lshl_b32 s{P.s_wo}, s{s_w}, 17', f's_lshl_b32 s49, s{s_h}, 8', f's_add_u32 s{P.s_wo}, s{P.s_wo}, s49']
    a(f's_lshl_b32 s82, s{s_h}, 6'); a(f's_lshl_b32 s83, s{s_r}, 3'); a('s_add_u32 s82, s82, s83')
    a(f's_lshl_b32 s83, s{s_w}, 1'); a('s_add_u32 s82, s82, s83'); a('s_lshl_b32 s82, s82, 13')
    for k in range(4):
        a(f's_add_u32 s{50+k}, s82, {k*4096}')
        a(f's_add_u32 s{84+k}, s82, {16*MB + k*4096}')
    KG = frag_store_groups(P, 'K', 'a', S_O, 50, 192, v_scale=2)
    per = len(KG)//8
    def vepi():
        a('s_nop 7'); a('s_nop 7')
        for g in frag_store_groups(P, 'V', 'v', S_O, 84, None): P.emit_group(g)
    ps = [dict(swap=False, srdA=S_C, srdW=S_WK, init=init, epi=lambda: None, acck='a'),
          dict(swap=True, srdA=S_C, srdW=S_WV, init=init, epi=vepi, acck='v')]
    P.prologue(ps[0])
    if not lnend: emit_ln(a, 192, 64, P.V_L16, S_X, S_GW, S_H, S_G, 80, 81, vq, 'compute')
    P.start_compute()
    def lnload():
        l = Asm(); q = VmQueue(); emit_ln(l, 216, 64, P.V_L16, S_X, S_GW, S_H, S_G, 80, 81, q, 'load')
        return [([x], 'ln') for x in l.lines]
    def xe(p, t):
        g = list(KG[t*per:(t+1)*per]) if p == 1 else []
        if opt.get('pfq', True) and (p, t) == tuple(opt.get('pfq_at', (1, 2))):
            l = Asm(); make_srd(l, 56, 88, 0, 4*MB)
            l(f'v_lshlrev_b32 v4, 3, v{P.V_L16}')
            l(f's_lshl_b32 s49, s2, 2'); l(f's_add_u32 s49, s49, s{s_w}'); l('s_lshl_b32 s49, s49, 12')
            l('buffer_load_dword v5, v4, s[56:59], s49 offen')
            g.append((l.lines, 'pf'))
        return g
    def xl(p, t):
        return lnload() if (lnend and p == 1 and t == 5) else []
    P.run(ps, extra_early=xe, extra_late=xl)
    if lnend: emit_ln(a, 216, 64, P.V_L16, S_X, S_GW, S_H, S_G, 80, 81, vq, 'compute')
    st_('stores')
    a('s_waitcnt vmcnt(0)')
    st_('end')
    st_.dump(100*MB, s_w, 250)
    a.label(f'{N}_end')
    a('s_endpgm')
```

```python
from asmlib import *
from layout import *
from gen_proj2 import Proj, VmQueue
from gen_proj import make_srd
import gen_t2
from gen_mlp import Mlp1

OA, OB = 0, 64
QA, QB = 0, 32
PFB = (128, 152)
FR = 192
NFR = 16
S = [[64, 80], [96, 112]]
P = [[128, 136], [144, 152]]
CA, CB = 160, 176
PT = 192
PS = [200, 201]
LA, LB = 202, 203
V_L16 = 204; V_KA = 205; V_VA = 206
V_RELA = 207; V_RELB = 208; V_NEG = 209
V_T = 210
V_DA, V_DB = 226, 227
V_AA, V_AB = 228, 229
V_MASK = 230; V_VBASE = 231; V_REL = [232, 233]
V_ST = 236
V_MA, V_MB, V_MR = 214, 216, 218
MACC = 128
S_MW, S_MH = 12, 60
s_ma, s_mb, s_ml = 85, 88, 89
S_K, S_V, S_Q, S_C = 4, 8, 12, 16
s_w, s_h, s_i, s_g1, s_cnt, s_ks, s_vs, s_t0, s_thr = 20, 21, 22, 23, 24, 25, 26, 27, 28
s_t1, s_step = 29, 32
S_RET = 30
S_M = 40
D = 8
THR = 0x4e800000

def v(b, n=1): return f'v{b}' if n == 1 else f'v[{b}:{b+n-1}]'
def ar(b, n=1): return f'a{b}' if n == 1 else f'a[{b}:{b+n-1}]'
MF = 'v_mfma_f32_32x32x16_bf16'

class Iter:
    def __init__(self, qk, sm, pv, next_qk, par, czero=False):
        self.qk, self.sm, self.pv, self.next_qk, self.par, self.czero = qk, sm, pv, next_qk, par, czero

def nfr(mode): return {None: 0, 1: 8, 2: 16}[mode]
PMAP = list(range(8))

class Attn:
    def __init__(self, a, name, diag=False, **opt):
        self.a = a; self.name = name; self.diag = diag; self.opt = opt; self.st = (RTStamps if opt.get('rt') else Stamps)(a, diag, vreg=254, sreg=30)
        global D
        D = opt.get('D', 8)
        PMAP[:] = [0, 1, 4, 5, 2, 3, 6, 7] if opt.get('p16') else list(range(8)); self.mlp = opt.get('mlp', True); self.nomlp_i = opt.get('nomlp_i', 7)
        self.phase = 0
        self.slow = []
        self.uid = 0
        self.vm = {}

    def simulate(self):
        res = {}
        self.vmm = {}
        for i in range(8):
            G1 = 4*(i+1)
            def mode(g): return None if (g < 0 or g > 33) else (1 if g < G1 else 2)
            def first(g):
                return g if g <= G1 else G1 + 2*(g-G1)
            def r(g): return 1 if g < G1 else 2
            issued = []
            def issue(kind, b0, nb):
                for b in range(b0, b0+nb):
                    issued.extend([(kind, b)]*2)
            kd = 0; vd = 0
            issue('K', 0, 6); issue('V', 0, 4)
            kd, vd = 6, 4
            kfree = 0; vfree = 0
            def need(n):
                req = []
                if mode(n+3): req += [('K', b) for b in range(first(n+3), first(n+3)+r(n+3))]
                if mode(n+1): req += [('V', b) for b in range(first(n+1), first(n+1)+r(n+1))]
                last = -1
                for k, x in enumerate(issued):
                    if x in req: last = k
                for x in req: assert x in issued, (i, n, x)
                return len(issued) - 1 - last if last >= 0 else None
            def pos(n):
                if n <= -1: return ('pro', n)
                if n <= G1-5:
                    if n >= G1-6 : return ('p1peel', n & 1)
                    return ('p1loop', n & 1)
                if n <= G1-1: return ('trans', n-G1)
                if n <= 31:
                    if n >= 30: return ('p2peel', n & 1)
                    return ('p2loop', n & 1)
                return ('epi', n)
            for n in range(-3, 34):
                if n == -1 and self.mlp: issued.extend([('M', 0)]*4 + [('M', 1)]*4)
                if n >= -2:
                    if mode(n) and n <= 31:
                        b0 = vd; nb = r(n)
                        assert b0 + nb - 8 <= (first(n-1) if n-1 >= 0 else 0), (i, n, b0, nb)
                        issue('V', b0, nb); vd += nb
                p = pos(n)
                if self.mlp and 0 <= n <= 31:
                    idx = [k for k, x in enumerate(issued) if x == ('M', n)]
                    if idx:
                        Nm = len(issued) - 1 - idx[-1]
                        self.vmm[p] = min(self.vmm.get(p, 99), Nm)
                    else: assert n >= 32 or i == 7 or True
                    if p[0] != 'p2peel': issued.extend([('M', n+2)]*4)
                N = need(n)
                if N is not None:
                    res[p] = min(res.get(p, 99), N)
                if mode(n+3) or (n <= 31 and n >= -3):
                    nb = r(n+3)
                    if n <= 30 or True:
                        assert kd + nb - 8 <= first(n+3), (i, n, kd, nb)
                        issue('K', kd, nb); kd += nb
                if n == G1-1: issued.extend([('S', 0)]*8)
        self.vm = res
        return res

    def dma_group(self, kind, nb, split=False):
        srd_, so = (S_K, s_ks) if kind == 'K' else (S_V, s_vs)
        g = []
        if kind == 'K':
            pre = [f's_and_b32 m0, s{so}, 0xffff']
        else:
            pre = [f's_and_b32 s{s_t0}, s{so}, 0xffff', f's_or_b32 m0, s{s_t0}, 0x10000']
        n = 2*nb
        if split: g.append(pre)
        for k in range(n):
            l = []
            if k == 0 and not split: l += pre + ['s_nop 0']
            off = f' offset:{k*1024}' if k else ''
            l.append(f'buffer_load_dwordx4 v{V_L16}, s[{srd_}:{srd_+3}], s{so} offen{off} lds')
            if k == n-1: l.append(f's_add_u32 s{so}, s{so}, {nb*8192}')
            g.append(l)
        return g

    def mlp_dma_groups(self, par):
        g = []
        for vo, srd_, so, step, off in ((V_MA, S_MW, s_ma, 16*3584, 0), (V_MB, S_MH, s_mb, 16*1024, 2048)):
            g.append([f's_add_u32 m0, s{s_ml}, {par*4096+off}'])
            g.append([f'buffer_load_dwordx4 v{vo}, s[{srd_}:{srd_+3}], s{so} offen lds'])
            g.append([f'buffer_load_dwordx4 v{vo+1}, s[{srd_}:{srd_+3}], s{so} offen offset:1024 lds', f's_add_u32 s{so}, s{so}, {step}'])
        return g

    def sm_ops(self, it):
        sm = it.sm; pr = it.par ^ 1
        ops = []
        masked = sm.endswith('m')
        init = sm == 'init'
        mode = '1' if init else sm[0]
        for b in range(2):
            Sb = S[pr][b]; Pb = P[pr][b]
            domask = masked and (mode == '2' or b == 0)
            blk = []
            if domask:
                def cmp(e): return (4, f'v_cmp_ge_i32 s[{S_M+2*(e%8)}:{S_M+2*(e%8)+1}], v{V_REL[b]}, {8*(e>>2)+(e&3)}')
                def cnd(e): return (4, f'v_cndmask_b32 v{Sb+e}, v{V_NEG}, v{Sb+e}, s[{S_M+2*(e%8)}:{S_M+2*(e%8)+1}]')
                blk += [cmp(0), cmp(1), cmp(2), cmp(3), cnd(0)]
            for e in range(16):
                if domask:
                    if e+4 < 16: blk.append(cmp(e+4))
                    if e+1 < 16: blk.append(cnd(e+1))
                if init:
                    if e == 0: blk.append((4, f'v_sub_f32 v{Sb}, v{Sb}, v{V_DA if b == 0 else V_DB}'))
                    if e+1 < 16: blk.append((4, f'v_sub_f32 v{Sb+e+1}, v{Sb+e+1}, v{V_DA if b == 0 else V_DB}'))
                blk.append((8, f'v_exp_f32 v{PT+(e%8)}, v{Sb+e}'))
                if e >= 2 or True:
                    k = e-1
                    if k == 1: blk.append((4, f'v_add_f32 v{PS[b]}, v{PT+0}, v{PT+1}'))
                    elif k > 1: blk.append((4, f'v_add_f32 v{PS[b]}, v{PS[b]}, v{PT+(k%8)}'))
                    if k >= 1 and k % 2 == 1:
                        blk.append((4, f'v_cvt_pk_bf16_f32 v{Pb+PMAP[k>>1]}, v{PT+((k-1)%8)}, v{PT+(k%8)}'))
            blk.append((4, f'v_add_f32 v{PS[b]}, v{PS[b]}, v{PT+(15%8)}'))
            blk.append((4, f'v_cvt_pk_bf16_f32 v{Pb+PMAP[7]}, v{PT+(14%8)}, v{PT+(15%8)}'))
            ops += blk
        if not init and not self.opt.get('nocheck'):
            ops.append((4, f'v_max_f32 v{V_T}, v{PS[0]}, v{PS[1]}'))
            ops.append((4, f'v_cmp_lt_f32 vcc, s{s_thr}, v{V_T}'))
        return ops

    def rel_setup(self, it):
        return []

    def emit_iter(self, it, pos, extra_pre=None, name='', extra_post=None):
        a = self.a
        par = it.par
        ph = self.phase
        mf = []
        reads = []
        fidx = 0
        def fr(k): return FR + 4*((ph + k) % NFR)
        Sw = S[par]; Pr = P[par]
        if it.qk == 1:
            for j in range(8):
                A = ar(fr(fidx+j), 4)
                for b, Q, C in ((0, QA, CA), (1, QB, CB)):
                    c = ('0' if it.czero else v(C, 16)) if j == 0 else v(Sw[b], 16)
                    mf.append((f'{MF} {v(Sw[b],16)}, {A}, {v(Q+4*j,4)}, {c}', fidx+j))
                reads.append((2*j, f'ds_read_b128 {A}, v{V_KA} offset:{j*1024}', fidx+j))
            fidx += 8
        elif it.qk == 2:
            for f in range(16):
                b, j = f >> 3, f & 7
                A = ar(fr(fidx+f), 4)
                c = ('0' if it.czero else v(CB, 16)) if j == 0 else v(Sw[b], 16)
                mf.append((f'{MF} {v(Sw[b],16)}, {A}, {v(QB+4*j,4)}, {c}', fidx+f))
                reads.append((f, f'ds_read_b128 {A}, v{V_KA} offset:{f*1024}', fidx+f))
            fidx += 16
        mlp = self.mlp and getattr(it, 'mlp', False)
        m0 = len(mf)
        if mlp:
            for ft in range(2):
                for dt in range(2):
                    acc = ar(MACC+16*(2*ft+dt), 16)
                    mf.append((f'{MF} {acc}, {v(V_ST+4*ft,4)}, {v(V_ST+8+4*dt,4)}, {acc}', 'm7' if (ft, dt) == (0, 0) else None))
        s0 = len(mf)
        if it.pv == 1:
            for f in range(8):
                t, db = f >> 2, f & 3
                A = ar(fr(fidx+f), 4)
                for b, O in ((0, OA), (1, OB)):
                    mf.append((f'{MF} {ar(O+16*db,16)}, {A}, {v(Pr[b]+4*t,4)}, {ar(O+16*db,16)}', fidx+f))
                reads.append((s0+2*f, f'ds_read_b128 {A}, v{V_VA} offset:{f*1024}', fidx+f))
            fidx += 8
        elif it.pv == 2:
            for f in range(16):
                b, t, db = f >> 3, (f >> 2) & 1, f & 3
                A = ar(fr(fidx+f), 4)
                mf.append((f'{MF} {ar(OB+16*db,16)}, {A}, {v(Pr[b]+4*t,4)}, {ar(OB+16*db,16)}', fidx+f))
                reads.append((s0+f, f'ds_read_b128 {A}, v{V_VA} offset:{f*1024}', fidx+f))
            fidx += 16
        ns = len(mf)
        nown = fidx
        lead_in = [r for r in reads if it.qk and r[0] < D and r[2] < nfr(it.qk)]
        own = [r for r in reads if r not in lead_in]
        lead_out = []
        if it.next_qk:
            n = nfr(it.next_qk)
            for j in range(n):
                fu = 2*j if it.next_qk == 1 else j
                if fu < D:
                    A = ar(FR + 4*((ph + nown + j) % NFR), 4)
                    lead_out.append((ns + fu, f'ds_read_b128 {A}, v{V_KA} offset:{j*1024}', nown+j))
        bslot = max(ns - D, 0)
        slots = [[] for _ in range(ns+1)]
        pre = []
        order = [r[2] for r in lead_in]
        def place_read(slot, r):
            (pre if slot < 0 else slots[slot]).append(('ds', r[1], r[2]))
        for r in own:
            place_read(r[0]-D if r[0]-D >= 0 else -1, r)
        if mlp:
            base = par*4096
            rd = []
            for op in range(2):
                for tl in range(2):
                    r = V_ST + 8*op + 4*tl
                    rd.append(f'ds_read_b64_tr_b16 {v(r,2)}, v{V_MR+tl} offset:{base+op*2048}')
                    rd.append(f'ds_read_b64_tr_b16 {v(r+2,2)}, v{V_MR+tl} offset:{base+op*2048+512}')
            slots[m0-8].append(('x', f's_waitcnt vmcnt({self.vmm[pos]})'))
            for k, t_ in enumerate(rd): slots[m0-8+k//2].append(('ds', t_, f'm{k}'))
        win = []
        has_bar = pos is not None and pos in self.vm
        if has_bar:
            if not self.opt.get('novm'): win.append(('x', f's_waitcnt vmcnt({0 if pos == ("epi", 32) else self.vm[pos]})'))
            if not self.opt.get('nobar'): win.append(('x', 's_barrier'))
        if it.qk:
            win.append(('x', f'v_add_u32 v{V_KA}, {8192*(1 if it.qk==1 else 2)}, v{V_KA}'))
            win.append(('x', f'v_and_b32 v{V_KA}, 0xffff, v{V_KA}'))
        if it.pv:
            win.append(('x', f'v_add_u32 v{V_VA}, {8192*(1 if it.pv==1 else 2)}, v{V_VA}'))
            win.append(('x', f'v_and_or_b32 v{V_VA}, v{V_VA}, v{V_MASK}, v{V_VBASE}'))
        for r in own:
            assert r[0]-D < bslot or ns <= D, (r, bslot)
        vg = self.dma_group('V', 1 if it.pv == 1 else 2, split=True) if (it.pv and not getattr(it, 'nov', False)) else []
        kg = self.dma_group('K', 1 if it.next_qk == 1 else 2, split=True) if (it.next_qk or getattr(it, 'forcek', False)) else []
        if self.opt.get('nodma') and pos and pos[0] != 'pro': vg = []; kg = []
        mg = []
        if mlp and getattr(it, 'mlp_dma', True):
            pos_m = [1, 2, 4, 6, 7, 9] if self.opt.get('spread') else [1, 2, 3, 4, 5, 6]
            mg = [(m0+pos_m[k], g) for k, g in enumerate(self.mlp_dma_groups(par))]
        if getattr(it, 'mlp_first', False):
            gs = self.mlp_dma_groups(0) + self.mlp_dma_groups(1)
            gs = [g + ['s_nop 0'] if 'm0' in g[0] else g for g in gs]
            mg = [(k*7//len(gs), g) for k, g in enumerate(gs)]
        sm = self.sm_ops(it) if it.sm else []
        if self.opt.get('nosm'): sm = []
        if self.opt.get('noexp'): sm = [(c, t) for c, t in sm if 'exp' not in t]
        if self.opt.get('noadd'): sm = [(c, t) for c, t in sm if 'v_add_f32' not in t]
        tot = sum(c for c, _ in sm)
        fixed = [0.0]*ns
        dsc = self.opt.get('dsc', 4)
        for k in range(ns):
            fixed[k] += sum(dsc if x[0] == 'ds' else 4 for x in slots[k])
        dmac = self.opt.get('dmac', 4)
        def gcost(grp): return sum(dmac if l.startswith('buffer_') else 4 for l in grp)
        vstep = 1
        for k, grp in enumerate(vg):
            sl = min(ns-1, k*(vstep if len(vg) > 3 else 2))
            if self.opt.get('spread') and len(vg) == 5 and mlp: sl = [0, 1, 3, 5, 7][k]
            slots[sl].append(('dma', grp)); fixed[sl] += gcost(grp)
        for sl, grp in mg:
            slots[sl].append(('dma', grp)); fixed[sl] += gcost(grp)
        slots[bslot] = win + slots[bslot]; fixed[bslot] += 4*len(win)
        for r in lead_out:
            sl = min(ns-1, r[0]-D); slots[sl].append(('ds', r[1], r[2])); fixed[sl] += dsc
        for k, grp in enumerate(kg):
            sl = min(ns-1, bslot + k*(1 if len(kg) > 3 else 2) + (1 if k else 0))
            if self.opt.get('spread') and len(kg) == 5 and ns - bslot >= 8: sl = bslot + [0, 1, 3, 5, 7][k]
            slots[sl].append(('dma', grp)); fixed[sl] += gcost(grp)
        xf = list(getattr(it, 'fill', [])); xg = list(getattr(it, 'fill_groups', []))
        if xf or xg:
            nsl = ns
            half = max(1, int(nsl*0.55))
            for k, x in enumerate(xf): slots[min(half-1, k*half//len(xf))].append(x)
            for k, g in enumerate(xg): slots[min(nsl-1, half + k*(nsl-half)//len(xg))].append(('dmag', g))
        total = tot + sum(fixed)
        smslots = [[] for _ in range(ns)]
        if sm:
            k = 0; cum = 0.0; target_end = ns - self.opt.get('tail', 1.6)
            acc = 0.0
            for sl in range(ns):
                acc += fixed[sl]
                lim = total * (sl+1) / target_end
                while k < len(sm) and (acc + sm[k][0]*0.5 <= lim or sl == ns-1):
                    smslots[sl].append(sm[k]); acc += sm[k][0]; k += 1
        if extra_pre:
            for l in extra_pre: a(l)
        q = list(order)
        def emit_fill(x):
            if x[0] == 'ds':
                a(x[1]); q.append(x[2])
            elif x[0] == 'dma':
                for l in x[1]: a(l)
            elif x[0] == 'dmag':
                for l in x[1][0]: a(l)
                it.vq.push(x[1][1])
            else:
                a(x[1])
        for x in pre: emit_fill(x)
        waited = -1
        for k, (txt, f) in enumerate(mf):
            if f is not None and f in q:
                idx = q.index(f)
                ahead = self.opt.get('wahead', 1)
                idx2 = min(idx + ahead, len(q)-1) if (k % 2 == 0 or ahead > 1) else idx
                idx2 = max(idx, min(idx2, len(q)-1-self.opt.get('wmin', 0)))
                nleft = len(q) - 1 - idx2
                a(f's_waitcnt lgkmcnt({nleft})')
                q = q[idx2+1:]
            a(txt)
            fl = slots[k]
            dfirst = self.opt.get('dfirst') and not any(x[0] == 'x' for x in fl)
            if dfirst:
                for x in fl:
                    if x[0] in ('dma', 'dmag'): emit_fill(x)
            for x in fl:
                if x[0] in ('x', 'ds'): emit_fill(x)
            for c, t in smslots[k]: a(t)
            if not dfirst:
                for x in fl:
                    if x[0] in ('dma', 'dmag'): emit_fill(x)
        self.phase = (ph + nown) % NFR
        for l in (extra_post or []): a(l)
        if it.sm and it.sm != 'init' and not self.opt.get('nocheck'):
            self.uid += 1
            u = self.uid
            a(f's_cbranch_vccnz {self.name}_slow{u}')
            a.label(f'{self.name}_join{u}')
            self.l_update(it.sm)
            self.slow.append((u, it))
        elif it.sm == 'init':
            a(f'v_mov_b32 v{LA}, v{PS[0]}')
            a(f'v_mov_b32 v{LB}, v{PS[1]}')

    def l_update(self, sm):
        a = self.a
        if sm[0] == '1' or sm == 'init':
            a(f'v_add_f32 v{LA}, v{LA}, v{PS[0]}')
            a(f'v_add_f32 v{LB}, v{LB}, v{PS[1]}')
        else:
            a(f'v_add_f32 v{LB}, v{LB}, v{PS[0]}')
            a(f'v_add_f32 v{LB}, v{LB}, v{PS[1]}')

    def rowmax(self, dst, blocks):
        a = self.a
        regs = [b+e for b in blocks for e in range(16)]
        a(f'v_max3_f32 v{dst}, v{regs[0]}, v{regs[1]}, v{regs[2]}')
        k = 3
        while k+1 < len(regs):
            a(f'v_max3_f32 v{dst}, v{dst}, v{regs[k]}, v{regs[k+1]}'); k += 2
        if k < len(regs): a(f'v_max_f32 v{dst}, v{dst}, v{regs[k]}')
        a(f'v_mov_b32 v{V_T+1}, v{dst}')
        a('s_nop 1')
        a(f'v_permlane32_swap_b32 v{V_T+1}, v{dst}')
        a('s_nop 1')
        a(f'v_max_f32 v{dst}, v{dst}, v{V_T+1}')

    def plain_sm(self, pr):
        a = self.a
        for b in range(2):
            for e in range(0, 16, 2):
                a(f'v_exp_f32 v{PT}, v{S[pr][b]+e}')
                a(f'v_exp_f32 v{PT+1}, v{S[pr][b]+e+1}')
                a('s_nop 0')
                a(f'v_cvt_pk_bf16_f32 v{P[pr][b]+PMAP[e>>1]}, v{PT}, v{PT+1}')
                if e == 0:
                    a(f'v_add_f32 v{PS[b]}, v{PT}, v{PT+1}')
                else:
                    a(f'v_add_f32 v{PS[b]}, v{PS[b]}, v{PT}')
                    a(f'v_add_f32 v{PS[b]}, v{PS[b]}, v{PT+1}')

    def sub_delta(self, pr, mode):
        a = self.a
        for b in range(2):
            dl = V_DA if (mode == 1 and b == 0) else V_DB
            for e in range(16):
                a(f'v_sub_f32 v{S[pr][b]+e}, v{S[pr][b]+e}, v{dl}')

    def emit_slow(self, u, it):
        a = self.a
        pr = it.par ^ 1
        mode = 1 if it.sm[0] == '1' else 2
        a.label(f'{self.name}_slow{u}')
        a('s_nop 15')
        a('s_nop 7')
        if mode == 1:
            self.rowmax(V_DA, [S[pr][0]])
            self.rowmax(V_DB, [S[pr][1]])
            a(f'v_max_f32 v{V_DA}, 0, v{V_DA}')
        else:
            self.rowmax(V_DB, [S[pr][0], S[pr][1]])
            a(f'v_mov_b32 v{V_DA}, 0')
        a(f'v_max_f32 v{V_DB}, 0, v{V_DB}')
        a(f's_call_b64 s[{S_RET}:{S_RET+1}], {self.name}_rescale')
        self.sub_delta(pr, mode)
        if it.qk: self.sub_delta(it.par, it.qk)
        self.plain_sm(pr)
        a(f's_branch {self.name}_join{u}')

    def emit_rescale(self):
        a = self.a
        a.label(f'{self.name}_rescale')
        a(f'v_exp_f32 v{V_AA}, -v{V_DA}')
        a(f'v_exp_f32 v{V_AB}, -v{V_DB}')
        a('s_nop 0')
        for O, al in ((OA, V_AA), (OB, V_AB)):
            for e in range(0, 64, 4):
                for k in range(4): a(f'v_accvgpr_read_b32 v{V_T+k}, a{O+e+k}')
                for k in range(4): a(f'v_mul_f32 v{V_T+k}, v{V_T+k}, v{al}')
                for k in range(4): a(f'v_accvgpr_write_b32 a{O+e+k}, v{V_T+k}')
        a(f'v_mul_f32 v{LA}, v{LA}, v{V_AA}')
        a(f'v_mul_f32 v{LB}, v{LB}, v{V_AB}')
        for e in range(16):
            a(f'v_sub_f32 v{CA+e}, v{CA+e}, v{V_DA}')
            a(f'v_sub_f32 v{CB+e}, v{CB+e}, v{V_DB}')
        a('s_nop 1')
        a(f's_setpc_b64 s[{S_RET}:{S_RET+1}]')

    def mask_inplace(self, pr, b):
        a = self.a
        for e0 in range(0, 16, 8):
            for e in range(e0, e0+8):
                a(f'v_cmp_ge_i32 s[{S_M+2*(e%8)}:{S_M+2*(e%8)+1}], v{V_REL[b]}, {8*(e>>2)+(e&3)}')
            a('s_nop 1')
            for e in range(e0, e0+8):
                a(f'v_cndmask_b32 v{S[pr][b]+e}, v{V_NEG}, v{S[pr][b]+e}, s[{S_M+2*(e%8)}:{S_M+2*(e%8)+1}]')

    def emit_init(self):
        a = self.a
        a(f'v_mov_b32 v{V_REL[0]}, v{V_RELA}')
        a('s_nop 12')
        a(f's_cmp_lg_u32 s{s_i}, 0'); a(f's_cbranch_scc1 {self.name}_nomask0')
        self.mask_inplace(0, 0)
        a.label(f'{self.name}_nomask0')
        self.rowmax(V_DA, [S[0][0]])
        self.rowmax(V_DB, [S[0][1]])
        for e in range(16):
            a(f'v_sub_f32 v{CA+e}, 0, v{V_DA}')
            a(f'v_sub_f32 v{CB+e}, 0, v{V_DB}')
        a('s_nop 1')

    def epilogue_tile(self, O, L, qt_sgpr, vq=None):
        a = self.a
        a(f'v_mov_b32 v{V_T+1}, v{L}')
        a('s_nop 1')
        a(f'v_permlane32_swap_b32 v{V_T+1}, v{L}')
        a('s_nop 1')
        a(f'v_add_f32 v{L}, v{L}, v{V_T+1}')
        a(f'v_rcp_f32 v{V_T+2}, v{L}')
        a('s_nop 0')
        a(f'v_mov_b32 v{V_T+3}, v{V_T+2}')
        inv = V_T+2
        k = 0
        for db in range(4):
            for t in range(2):
                tmp = V_ST + 8*(k % 2)
                for e in range(8): a(f'v_accvgpr_read_b32 v{tmp+e}, a{O+16*db+8*t+e}')
                for e in range(0, 8, 2): a(f'v_pk_mul_f32 v[{tmp+e}:{tmp+e+1}], v[{tmp+e}:{tmp+e+1}], v[{inv}:{inv+1}]')
                for e in range(0, 8, 2): a(f'v_cvt_pk_bf16_f32 v{tmp+(e>>1)}, v{tmp+e}, v{tmp+e+1}')
                j = 2*db+t
                off = j*1024
                so = qt_sgpr if off < 4096 else qt_sgpr+1
                a(f'buffer_store_dwordx4 v[{tmp}:{tmp+3}], v{V_L16}, s[{S_C}:{S_C+3}], s{so} offen offset:{off % 4096}{STF.st}')
                if vq: vq.push('ctx')
                k += 1

    def stamp(self, same=False):
        self.st()
    def dump_stamps(self):
        self.st.dump(100*MB, s_w, 253)

    def emit(self):
        self.simulate()
        M = self.emit_head()
        self.emit_body(M)

    def kv_srd_lines(self):
        a = Asm()
        a(f's_lshl_b32 s{s_t0}, s{s_h}, 19')
        a(f's_lshl_b32 s{s_t1}, s{s_i}, 15')
        a(f's_sub_u32 s{s_t1}, 0x80000, s{s_t1}')
        for S_, base in ((S_K, WS_K), (S_V, WS_V)):
            a(f's_add_u32 s{S_}, s34, {base}')
            a(f's_addc_u32 s{S_+1}, s35, 0')
            a(f's_add_u32 s{S_}, s{S_}, s{s_t0}')
            a(f's_addc_u32 s{S_+1}, s{S_+1}, 0')
            a(f's_and_b32 s{S_+1}, s{S_+1}, 0xffff')
            a(f's_mov_b32 s{S_+2}, s{s_t1}')
            a(f's_mov_b32 s{S_+3}, 0x20000')
        make_srd(a, S_C, 34, WS_CTX, 16*MB)
        for qt, d in ((36, 56), (37, 58)):
            a(f's_lshl_b32 s{s_t0}, s{qt}, 5')
            a(f's_add_u32 s{s_t0}, s{s_t0}, s{s_h}')
            a(f's_lshl_b32 s{d}, s{s_t0}, 13')
            a(f's_add_u32 s{d+1}, s{d}, 4096')
        return a.lines

    def kv_groups(self, kind, nb):
        G = []
        for b in range(nb):
            for grp in self.dma_group(kind, 1): G.append((grp, 'kv'))
        return G

    def q_to_frags(self):
        self.q_to_frags_cvt(); self.q_to_frags_srd()

    def q_to_frags_cvt(self):
        a = self.a
        a('s_nop 7')
        for st, Q in ((0, QA), (1, QB)):
            for dt in range(4):
                A = 64 + 16*(4*st+dt)
                for t in range(2):
                    for k in range(4):
                        a(f'v_cvt_pk_bf16_f32 v{Q+4*(2*dt+t)+k}, v{A+8*t+2*k}, v{A+8*t+2*k+1}')

    def q_to_frags_srd(self):
        a = self.a
        if self.mlp:
            make_srd(a, S_MW, 68, 0, 2048*3584); make_srd(a, S_MH, 34, WS_H, 2*MB)
            a(f's_cmp_eq_u32 s{s_i}, {self.nomlp_i}')
            a(f's_cselect_b32 s{S_MW+2}, 0, s{S_MW+2}')
            a(f's_cselect_b32 s{S_MH+2}, 0, s{S_MH+2}')

    def setup_attn_regs(self):
        a = self.a; opt = self.opt
        a(f's_lshl_b32 s{s_ks}, s{s_w}, 11')
        a(f's_mov_b32 s{s_vs}, s{s_ks}')
        a(f's_mov_b32 s{s_thr}, {THR}')
        a(f'v_mov_b32 v{V_NEG}, 0xf149f2ca')
        a(f'v_mov_b32 v{V_MASK}, 0xffff')
        a(f'v_mov_b32 v{V_VBASE}, 0x10000')
        a(f'v_mov_b32 v{V_KA}, v{V_L16}')
        a(f'v_add_u32 v{V_VA}, 0x10000, v{V_L16}')
        a(f'v_and_b32 v3, 31, v2')
        a(f'v_lshrrev_b32 v4, 5, v2')
        a(f'v_lshlrev_b32 v4, 2, v4')
        a(f'v_sub_u32 v3, v3, v4')
        a(f's_lshl_b32 s{s_t0}, s36, 5')
        a(f'v_add_u32 v{V_RELA}, s{s_t0}, v3')
        a(f's_lshl_b32 s{s_t0}, s37, 5')
        a(f'v_add_u32 v{V_RELB}, s{s_t0}, v3')
        M = Mlp1(a, tshift=(4 if self.nomlp_i == 0 else 0)); M.ids()
        if self.mlp:
            T = 33
            a(f's_lshl_b32 s{s_ml}, s{s_w}, 13'); a(f's_add_u32 s{s_ml}, s{s_ml}, 131072')
            gen_t2.lane_setup(a, 5, T)
            for t in range(2):
                X = T+5; dst = V_MR+t
                a(f'v_mul_u32_u24 v{X}, 8, v{T}'); a(f'v_add_u32 v{X}, v{X}, v{T+1}'); a(f'v_lshlrev_b32 v{X}, 7, v{X}')
                a(f'v_xor_b32 v{dst}, {t}, v{T+4}'); a(f'v_lshl_add_u32 v{X}, v{dst}, 6, v{X}')
                a(f'v_lshl_add_u32 v{X}, v{T+2}, 5, v{X}'); a(f'v_lshl_add_u32 v{X}, v{T+3}, 3, v{X}')
                a(f'v_add_u32 v{dst}, s{s_ml}, v{X}')
            for dst, stride in ((V_MA, 3584), (V_MB, 1024)):
                mt = getattr(self, 'mtmp', 48)
                gen_t2.dma_voffs(a, mt, 5, T, stride, s_t1)
                a(f'v_mov_b32 v{dst}, v{mt}'); a(f'v_mov_b32 v{dst+1}, v{mt+1}')
            a(f's_mul_i32 s{s_ma}, s{s_w}, {512*3584}'); a(f's_lshl_b32 s{s_t1}, s{M.s_fb}, 7'); a(f's_add_u32 s{s_ma}, s{s_ma}, s{s_t1}')
            a(f's_lshl_b32 s{s_mb}, s{s_w}, 19'); a(f's_lshl_b32 s{s_t1}, s{M.s_db}, 7'); a(f's_add_u32 s{s_mb}, s{s_mb}, s{s_t1}')
        a(f'v_lshlrev_b32 v252, 3, v{V_L16}')
        a(f's_sub_u32 s{s_t0}, s2, 32'); a(f's_lshl_b32 s{s_t0}, s{s_t0}, 2'); a(f's_add_u32 s{s_t0}, s{s_t0}, s{s_w}')
        a(f's_lshl_b32 s74, s{s_t0}, 13')
        a(f's_mul_i32 s75, s{s_t0}, 4736')
        return M

    def emit_head(self):
        a = self.a; N = self.name; opt = self.opt
        vm = self.vm
        S_X, S_WQ = 12, 60
        a(f's_cmp_ge_u32 s2, 256')
        a(f's_cbranch_scc1 {N}_end')
        self.stamp()
        a(f's_load_dwordx2 s[34:35], s[0:1], {KA_WS}')
        a(f's_load_dwordx2 s[64:65], s[0:1], {KA_AX}')
        a(f's_load_dwordx2 s[66:67], s[0:1], {KA_WQ}')
        a(f's_load_dwordx2 s[68:69], s[0:1], {KA_W1}')
        a(f's_load_dwordx2 s[86:87], s[0:1], {KA_B1}')
        a(f's_load_dwordx2 s[70:71], s[0:1], {KA_WO}')
        a(f's_load_dwordx2 s[72:73], s[0:1], {KA_W2}')
        a(f'v_lshrrev_b32 v1, 6, v0')
        a(f'v_and_b32 v2, 63, v0')
        a(f'v_lshlrev_b32 v{V_L16}, 4, v2')
        a(f'v_readfirstlane_b32 s{s_w}, v1')
        a(f's_and_b32 s{s_t0}, s2, 7')
        a(f's_lshr_b32 s{s_t1}, s2, 3')
        a(f's_lshl_b32 s{s_h}, s{s_t0}, 2')
        a(f's_and_b32 s{s_t0}, s{s_t1}, 3')
        a(f's_add_u32 s{s_h}, s{s_h}, s{s_t0}')
        a(f's_lshr_b32 s{s_i}, s{s_t1}, 2')
        a(f's_add_u32 s{s_g1}, s{s_i}, 1')
        a(f's_lshl_b32 s{s_g1}, s{s_g1}, 2')
        a(f's_lshl_b32 s36, s{s_i}, 2')
        a(f's_add_u32 s36, s36, s{s_w}')
        a(f's_lshl_b32 s37, s{s_i}, 2')
        a(f's_sub_u32 s37, 60, s37')
        a(f's_add_u32 s37, s37, s{s_w}')
        vq = VmQueue()
        P = Proj(a, vq, s_w, 16384, 65536, ACC=64, FB=PFB, fbk='a', VA=8, V_L16=V_L16, VT=33, SG=40, wflags=(' nt' if opt.get('nt', True) else ''))
        P.setup_addrs(set_l16=False)
        a('s_waitcnt lgkmcnt(0)')
        make_srd(a, S_X, 64, 0, 2*MB); make_srd(a, S_WQ, 66, 0, 4*MB)
        init = [f's_lshl_b32 s{P.s_a0}, s36, 15', f's_lshl_b32 s{P.s_a1}, s37, 15',
                f's_lshl_b32 s{P.s_wo}, s{s_w}, 17', f's_lshl_b32 s{s_t0}, s{s_h}, 8', f's_add_u32 s{P.s_wo}, s{P.s_wo}, s{s_t0}']
        qpass = [dict(swap=False, srdA=S_X, srdW=S_WQ, init=init, epi=lambda: None, acck='v')]
        P.prologue(qpass[0])
        for l in self.kv_srd_lines(): a(l)
        M = self.setup_attn_regs()
        for e in range(128): a(f'v_accvgpr_write_b32 a{e}, 0')
        P.start_compute()
        self.stamp()
        KG = self.kv_groups('K', 6); VG = self.kv_groups('V', 4)
        def xl(p, t): return KG[:6] if t == 5 else (VG[:2] if t == 6 else [])
        def xe(p, t): return KG[6:] if t == 6 else (VG[2:] if t == 7 else [])
        P.run(qpass, extra_early=xe, extra_late=xl)
        self.stamp()
        self.q_to_frags()
        return M

    def emit_body(self, M):
        a = self.a; N = self.name; opt = self.opt
        vm = self.vm
        a(f's_waitcnt vmcnt({vm[("pro",-3)]})')
        a('s_barrier')
        for grp in self.dma_group('K', 1):
            for l in grp: a(l)
        for j in range(D//2):
            a(f'ds_read_b128 {ar(FR+4*j,4)}, v{V_KA} offset:{j*1024}')
        it = Iter(1, None, None, 1, 0, czero=True)
        if self.mlp: it.fill = [('x', f'v_accvgpr_write_b32 a{MACC+e}, 0') for e in range(64)]
        self.emit_iter(it, ('pro', -2))
        self.emit_init()
        self.stamp()
        it = Iter(1, 'init', None, 1, 1); it.mlp_first = self.mlp
        self.emit_iter(it, ('pro', -1))
        self.stamp()
        def MI(*args, dma=True):
            it = Iter(*args); it.mlp = True; it.mlp_dma = dma
            return it
        a(f's_cmp_eq_u32 s{s_i}, 0')
        a(f's_cbranch_scc1 {N}_trans')
        a(f's_sub_u32 s{s_cnt}, s{s_g1}, 6')
        a(f's_lshr_b32 s{s_cnt}, s{s_cnt}, 1')
        a('.p2align 6')
        a.label(f'{N}_p1loop')
        self.emit_iter(MI(1, '1', 1, 1, 0), ('p1loop', 0))
        self.emit_iter(MI(1, '1', 1, 1, 1), ('p1loop', 1))
        a(f's_sub_u32 s{s_cnt}, s{s_cnt}, 1')
        a(f's_cmp_lg_u32 s{s_cnt}, 0')
        a(f's_cbranch_scc1 {N}_p1loop')
        def pf(ptr, nb, so):
            if not opt.get('pf', True): return []
            l = Asm(); make_srd(l, 76, ptr, 0, nb); l(f'buffer_load_dword v253, v252, s[76:79], s{so} offen')
            return l.lines
        self.emit_iter(MI(1, '1', 1, 1, 0), ('p1peel', 0))
        def relA(k):
            return [f's_sub_u32 s{s_t1}, s{s_g1}, {k}', f's_lshl_b32 s{s_t1}, s{s_t1}, 5', f'v_subrev_u32 v{V_REL[0]}, s{s_t1}, v{V_RELA}']
        self.emit_iter(MI(1, '1m', 1, 1, 1), ('p1peel', 1), extra_pre=relA(4), extra_post=pf(72, 1792*4096, 74))
        for l in pf(70, 4*MB, 75): a(l)
        a.label(f'{N}_trans')
        self.stamp()
        self.emit_iter(MI(1, '1m', 1, 1, 0), ('trans', -4), extra_pre=relA(3))
        sw = [f's_lshl_b32 s{s_t0}, s{s_w}, 11']
        self.emit_iter(MI(1, '1m', 1, 2, 1), ('trans', -3), extra_pre=relA(2) + sw + [f's_add_u32 s{s_ks}, s{s_ks}, s{s_t0}'])
        self.emit_iter(MI(2, '1m', 1, 2, 0), ('trans', -2), extra_pre=relA(1))
        def relB(expr_lines):
            return expr_lines + [f'v_subrev_u32 v{V_REL[0]}, s{s_t1}, v{V_RELB}', f'v_subrev_u32 v{V_REL[1]}, 32, v{V_REL[0]}']
        self.emit_iter(MI(2, '2m', 1, 2, 1), ('trans', -1), extra_pre=relB([f's_lshl_b32 s{s_t1}, s{s_g1}, 5']))
        self.stamp()
        a('s_nop 12')
        self.epilogue_tile(OA, LA, 56)
        a(f's_lshl_b32 s{s_t0}, s{s_w}, 11')
        a(f's_add_u32 s{s_vs}, s{s_vs}, s{s_t0}')
        a(f's_cmp_eq_u32 s{s_i}, 7')
        a(f's_cbranch_scc1 {N}_epi')
        a(f's_sub_u32 s{s_cnt}, 30, s{s_g1}')
        a(f's_lshr_b32 s{s_cnt}, s{s_cnt}, 1')
        a('.p2align 6')
        a.label(f'{N}_p2loop')
        self.emit_iter(MI(2, '2', 2, 2, 0), ('p2loop', 0))
        self.emit_iter(MI(2, '2', 2, 2, 1), ('p2loop', 1))
        a(f's_sub_u32 s{s_cnt}, s{s_cnt}, 1')
        a(f's_cmp_lg_u32 s{s_cnt}, 0')
        a(f's_cbranch_scc1 {N}_p2loop')
        self.emit_iter(MI(2, '2', 2, 2, 0, dma=False), ('p2peel', 0), extra_post=(M.l2_prefetch(234) if opt.get('pf2', False) else None))
        relB32 = [f's_sub_u32 s{s_t1}, 64, s{s_g1}', f's_lshl_b32 s{s_t1}, s{s_t1}, 5']
        self.emit_iter(MI(2, '2m', 2, 2, 1, dma=False), ('p2peel', 1), extra_pre=relB(relB32))
        a.label(f'{N}_epi')
        self.stamp()
        relB33 = [f's_sub_u32 s{s_t1}, 66, s{s_g1}', f's_lshl_b32 s{s_t1}, s{s_t1}, 5']
        it = Iter(None, '2m', 2, None, 0); it.nov = True
        a('s_waitcnt lgkmcnt(0)')
        self.emit_iter(it, ('epi', 32), extra_pre=relB(relB33))
        it = Iter(None, None, 2, None, 1); it.nov = True
        vq2 = VmQueue()
        if self.mlp and opt.get('e2fill', True):
            it.fill, it.fill_groups = M.finish_pre()
            it.vq = vq2
        a('s_nop 1')
        self.emit_iter(it, None)
        if opt.get('fusefin'):
            import gen_final
            gen_final.final_pointer_loads(a)
        self.stamp()
        def fill():
            make_srd(a, 76, 34, WS_PART, 8*MB)
            a(f's_sub_u32 s{s_t0}, s2, 224'); a(f's_lshl_b32 s{s_t0}, s{s_t0}, 2'); a(f's_add_u32 s{s_t0}, s{s_t0}, s{s_w}'); a(f's_lshl_b32 s{s_t0}, s{s_t0}, 16')
            for e in range(4): a(f'v_mov_b32 v{V_T+4+e}, -1')
            a(f's_mov_b32 s{s_cnt}, 16')
            a.label(f'{N}_fill')
            for q in range(4):
                a(f'buffer_store_dwordx4 v[{V_T+4}:{V_T+7}], v{V_L16}, s[76:79], s{s_t0} offen offset:{q*1024}' + (' sc1' if (opt.get('fusefin') or opt.get('fillsc1', True)) else ''))
            a('s_waitcnt vmcnt(40)')
            a(f's_add_u32 s{s_t0}, s{s_t0}, 4096')
            a(f's_sub_u32 s{s_cnt}, s{s_cnt}, 1')
            a(f's_cmp_lg_u32 s{s_cnt}, 0')
            a(f's_cbranch_scc1 {N}_fill')
        def wbl2(lab):
            if opt.get('wbl2', True):
                a(f's_cmp_eq_u32 s{s_w}, 0'); a(f's_cbranch_scc0 {N}_{lab}'); a('buffer_wbl2 sc1'); a.label(f'{N}_{lab}')
        a(f's_cmp_eq_u32 s{s_i}, {self.nomlp_i}')
        a(f's_cbranch_scc1 {N}_nomlp')
        if opt.get('fusefin') and opt.get('l3', {}).get('ofirst', True) and self.nomlp_i == 7: M.final_wait = 2
        if opt.get('fusefin') and opt.get('l3', {}).get('ofirst', True) and opt.get('l3', {}).get('udefer', True) and self.nomlp_i == 7: M.final_wait = 0; M.defer = True
        M.epi_first = opt.get('epifirst', False)
        M.finish(vq2, lambda: self.epilogue_tile(OB, LB, 58, vq2), self.stamp, pre_done=opt.get('e2fill', True))
        if self.nomlp_i != 7:
            a(f's_cmp_eq_u32 s{s_i}, 7'); a(f's_cbranch_scc0 {N}_nofill')
            wbl2('nowb'); fill(); a('s_waitcnt vmcnt(0)')
            a.label(f'{N}_nofill')
        self.stamp()
        if opt.get('fusefin'):
            a(f's_branch {N}_phasec')
        else:
            self.dump_stamps()
            a('s_endpgm')
        a.label(f'{N}_nomlp')
        a('s_mov_b32 s61, 0x7ffff000')
        if self.nomlp_i == 7: wbl2('nowb')
        a('s_nop 15')
        self.epilogue_tile(OB, LB, 58)
        if self.nomlp_i == 7: fill()
        a('s_waitcnt vmcnt(0)')
        self.stamp()
        if opt.get('fusefin'):
            a.label(f'{N}_phasec')
            self.emit_phasec()
        else:
            self.dump_stamps()
        a.label(f'{N}_end')
        a('s_endpgm')
        for u, it in self.slow: self.emit_slow(u, it)
        self.emit_rescale()
```

```python
from asmlib import *
from layout import *
from gen_proj2 import VmQueue, v, ar
from gen_proj import make_srd

MF = 'v_mfma_f32_32x32x16_bf16'
NY, NO = 7, 16
NS = NY + NO
SLOT = 32768

def final_pointer_loads(a):
    a(f's_load_dwordx2 s[64:65], s[0:1], {KA_WO}')
    a(f's_load_dwordx4 s[68:71], s[0:1], {KA_W2}')
    a(f's_load_dwordx4 s[72:75], s[0:1], {KA_OUT}')

def emit_final(a, N='fin', NSL=4, inline=False, sync=None, stamps=None, **opt):
    S_WO, S_W2, S_CTX, S_U, S_G, S_B2, S_OUT, S_P, S_D = 4, 8, 12, 16, 24, 28, 32, 36, 56
    s_w, s_sb, s_mb, s_p = 20, 21, 22, 23
    s_sl, s_fr = 40, 41
    s_fill, s_rd, s_w4k, s_t, s_t1, s_t2, s_tile = 42, 43, 44, 45, 46, 47, 48
    ACCY, ACCO = 64, 128; FB = [192, 212]
    VL = 1; V_L16 = 2; T = 32
    V_TB = 8
    V_TA = 16
    V_LA = 21
    V_WO = 24; V_W2 = 28
    V_G = 40; V_B2 = 41; V_OA = 42; V_1G = 43
    st_ = stamps if inline else (RTStamps if opt.get('rt') else Stamps)(a, opt.get('diag'))
    if not inline:
        a('s_cmp_ge_u32 s2, 256')
        a(f's_cbranch_scc1 {N}_end')
    if inline:
        a('s_mov_b64 s[76:77], s[34:35]')
    else:
        final_pointer_loads(a)
        a(f's_load_dwordx2 s[76:77], s[0:1], {KA_WS}')
    if inline:
        a(f'v_mbcnt_lo_u32_b32 v{VL}, -1, 0'); a(f'v_mbcnt_hi_u32_b32 v{VL}, -1, v{VL}')
        a(f's_and_b32 s{s_t}, s2, 7')
    else:
        a('v_lshrrev_b32 v3, 6, v0')
        a(f'v_and_b32 v{VL}, 63, v0')
        a(f's_and_b32 s{s_t}, s2, 7')
        a(f'v_readfirstlane_b32 s{s_w}, v3')
    a(f's_lshr_b32 s{s_t1}, s2, 3')
    a(f's_lshr_b32 s{s_p}, s{s_t}, 1')
    a(f's_and_b32 s{s_t}, s{s_t}, 1'); a(f's_lshl_b32 s{s_t}, s{s_t}, 3'); a(f's_lshr_b32 s{s_t2}, s{s_t1}, 2'); a(f's_add_u32 s{s_sb}, s{s_t}, s{s_t2}')
    a(f's_and_b32 s{s_mb}, s{s_t1}, 3')
    a(f's_lshl_b32 s{s_tile}, s{s_sb}, 2'); a(f's_add_u32 s{s_tile}, s{s_tile}, s{s_mb}')
    st_('start')
    a(f'v_lshlrev_b32 v{V_L16}, 4, v{VL}')
    a(f's_lshl_b32 s{s_w4k}, s{s_w}, 12')
    a(f's_mov_b32 s{s_fill}, 0'); a(f's_mov_b32 s{s_rd}, 0')
    a(f'v_lshrrev_b32 v{T}, 4, v{VL}')
    a(f'v_bfe_u32 v{T+1}, v{VL}, 2, 2')
    a(f'v_xor_b32 v{T+1}, v{T+1}, v{T}')
    a(f'v_lshlrev_b32 v{T+1}, 6, v{T+1}')
    a(f'v_and_b32 v{T+2}, 3, v{VL}')
    a(f'v_lshl_add_u32 v{T+1}, v{T+2}, 4, v{T+1}')
    a(f'v_lshl_add_u32 v{T+3}, v{T}, 12, v{T+1}')
    a(f'v_lshl_add_u32 v{T+4}, v{T}, 10, v{T+1}')
    for j in range(4):
        a(f'v_add_u32 v{V_W2+j}, {j*(4*4096-1024)}, v{T+3}')
        a(f'v_add_u32 v{V_WO+j}, {j*(4*1024-1024)}, v{T+4}')
    a(f'v_lshrrev_b32 v{T}, 5, v{VL}')
    a(f'v_bfe_u32 v{T+1}, v{VL}, 2, 2')
    a(f'v_lshl_add_u32 v{T+2}, v{T}, 2, v{T+1}')
    a(f'v_lshlrev_b32 v{T+2}, 8, v{T+2}')
    a(f'v_bfe_u32 v{T+3}, v{VL}, 4, 1')
    a(f'v_lshl_add_u32 v{T+2}, v{T+3}, 5, v{T+2}')
    a(f'v_and_b32 v{T+3}, 3, v{VL}')
    a(f'v_lshl_add_u32 v{T+2}, v{T+3}, 3, v{T+2}')
    for tl in range(4):
        a(f'v_xor_b32 v{T+3}, {tl}, v{T+1}')
        a(f'v_lshl_add_u32 v{V_TB+tl}, v{T+3}, 6, v{T+2}')
    a(f'v_xor_b32 v{T+3}, s{s_w}, v{T+1}')
    a(f'v_lshl_add_u32 v{V_TB+4}, v{T+3}, 6, v{T+2}')
    a(f'v_and_b32 v{T+4}, 31, v{VL}')
    a(f'v_lshlrev_b32 v{T+5}, 2, v{T+4}')
    a(f'v_lshlrev_b32 v{T+6}, 1, v{T+4}')
    a(f'v_lshlrev_b32 v{V_OA}, 10, v{T+4}')
    a(f'v_lshl_add_u32 v{V_OA}, v{T}, 4, v{V_OA}')
    a('s_waitcnt lgkmcnt(0)')
    make_srd(a, S_WO, 64, 0, 4*MB); make_srd(a, S_W2, 68, 0, 1792*4096); make_srd(a, S_B2, 70, 0, 4096)
    make_srd(a, S_OUT, 72, 0, 2*MB)
    make_srd(a, S_CTX, 76, WS_CTX, 16*MB); make_srd(a, S_U, 76, WS_U, 16*112*1024); make_srd(a, S_G, 76, WS_G, 8192)
    make_srd(a, S_P, 76, WS_PART, 16*MB)
    vq = VmQueue()
    a(f's_lshl_b32 s{s_t}, s{s_sb}, 2'); a(f's_add_u32 s{s_t}, s{s_t}, s{s_w}')
    a(f's_lshl_b32 s{s_t1}, s{s_t}, 7'); a(f's_lshl_b32 s{s_t2}, s{s_t}, 6')
    a(f'buffer_load_dword v{V_G}, v{T+5}, s[{S_G}:{S_G+3}], s{s_t1} offen'); vq.push('g')
    a(f'buffer_load_ushort v{V_B2}, v{T+6}, s[{S_B2}:{S_B2+3}], s{s_t2} offen'); vq.push('g')

    if opt.get('tlb', False):
        a(f'v_mov_b32 v3, 0')
        a(f's_lshl_b32 s{s_t}, s{s_tile}, 17'); a(f's_mul_i32 s{s_t1}, s{s_p}, {32768+8192}'); a(f's_add_u32 s{s_t}, s{s_t}, s{s_t1}')
        a(f'buffer_load_dword v6, v3, s[{S_P}:{S_P+3}], s{s_t} offen sc1'); vq.push('g')
        a(f's_lshl_b32 s{s_t}, s{s_sb}, 17')
        a(f'buffer_load_dword v6, v3, s[{S_OUT}:{S_OUT+3}], s{s_t} offen sc1'); vq.push('g')

    ofirst = inline and opt.get('ofirst', True)
    tY, tO = (NO, 0) if ofirst else (0, NY)
    def part(t):
        if ofirst: return ('O', t) if t < NO else ('Y', t-NO)
        return ('Y', t) if t < NY else ('O', t-NY)
    def switch(t):
        if t == tY:
            return [f's_mul_i32 s{s_sl}, s{s_p}, {448*4096}', f's_lshl_b32 s{s_t}, s{s_w}, 16', f's_add_u32 s{s_sl}, s{s_sl}, s{s_t}',
                    f's_lshl_b32 s{s_t}, s{s_sb}, 8', f's_add_u32 s{s_sl}, s{s_sl}, s{s_t}',
                    f's_lshl_b32 s{s_t}, s{s_mb}, 2', f's_add_u32 s{s_t}, s{s_t}, s{s_w}', f's_mul_i32 s{s_fr}, s{s_t}, {112*1024}',
                    f's_mul_i32 s{s_t}, s{s_p}, {28*1024}', f's_add_u32 s{s_fr}, s{s_fr}, s{s_t}']
        if t == tO:
            return [f's_lshl_b32 s{s_sl}, s{s_p}, 20', f's_lshl_b32 s{s_t}, s{s_w}, 14', f's_add_u32 s{s_sl}, s{s_sl}, s{s_t}',
                    f's_lshl_b32 s{s_t}, s{s_mb}, 8', f's_add_u32 s{s_sl}, s{s_sl}, s{s_t}',
                    f's_lshl_b32 s{s_t}, s{s_sb}, 2', f's_add_u32 s{s_t}, s{s_t}, s{s_w}', f's_lshl_b32 s{s_fr}, s{s_t}, 18',
                    f's_lshl_b32 s{s_t}, s{s_p}, 16', f's_add_u32 s{s_fr}, s{s_fr}, s{s_t}']
        return []
    def adv(s): return [f's_add_u32 s{s}, s{s}, {SLOT}', f's_cmp_ge_u32 s{s}, {NSL*SLOT}', f's_cselect_b32 s{s}, 0, s{s}']
    def loads(t):
        p, _ = part(t)
        srdS, vo, step = (S_W2, V_W2, 64*4096) if p == 'Y' else (S_WO, V_WO, 64*1024)
        srdF = S_U if p == 'Y' else S_CTX
        g = []
        for j in range(4):
            l = []
            if j == 0: l += switch(t) + [f's_add_u32 s{s_t2}, s{s_fill}, s{s_w4k}', f's_mov_b32 m0, s{s_t2}', 's_nop 0']
            l.append(f'buffer_load_dwordx4 v{vo+j}, s[{srdS}:{srdS+3}], s{s_sl} offen' + (f' offset:{j*1024}' if j else '') + ' lds')
            if j == 3: l.append(f's_add_u32 s{s_sl}, s{s_sl}, {step}')
            g.append((l, t))
        for j in range(4):
            l = []
            if j == 0: l += [f's_add_u32 m0, s{s_t2}, 16384', 's_nop 0']
            l.append(f'buffer_load_dwordx4 v{V_L16}, s[{srdF}:{srdF+3}], s{s_fr} offen' + (f' offset:{j*1024}' if j else '') + ' lds')
            if j == 3: l += [f's_add_u32 s{s_fr}, s{s_fr}, 4096'] + adv(s_fill)
            g.append((l, t))
        return g
    def emit_g(g):
        for l in g[0]: a(l)
        vq.push(g[1])
    def addr_update():
        l = [f'v_add_u32 v{V_TA+k}, s{s_rd}, v{V_TB+k}' for k in range(5)]
        l.append(f'v_add_u32 v{V_LA}, s{s_rd}, v{V_L16}')
        return l + adv(s_rd)
    def reads(t, ks, buf):
        p, _ = part(t); F = FB[buf]; l = []
        if p == 'O':
            l.append(f's_nop 0' if False else f'ds_read_b128 {v(F+16,4)}, v{V_LA+1} offset:{ks*1024}')
            for mt in range(4):
                l.append(f'ds_read_b64_tr_b16 {v(F+4*mt,2)}, v{V_TA+mt} offset:{ks*4096}')
                l.append(f'ds_read_b64_tr_b16 {v(F+4*mt+2,2)}, v{V_TA+mt} offset:{ks*4096+2048}')
        else:
            l.append(f'ds_read_b64_tr_b16 {v(F+16,2)}, v{V_TA+4} offset:{ks*4096}')
            l.append(f'ds_read_b64_tr_b16 {v(F+18,2)}, v{V_TA+4} offset:{ks*4096+2048}')
            for mt in range(4):
                l.append(f'ds_read_b128 {v(F+4*mt,4)}, v{V_LA} offset:{16384+mt*4096+ks*1024}')
        return l
    def addr_update2():
        return [f's_add_u32 s{s_t1}, s{s_w4k}, 16384', f's_add_u32 s{s_t1}, s{s_t1}, s{s_rd}', f'v_add_u32 v{V_LA+1}, s{s_t1}, v{V_L16}']
    def mfmas(t, ks, buf):
        p, tt = part(t); F = FB[buf]; first = tt == 0 and ks == 0
        A0 = ACCY if p == 'Y' else ACCO
        return [f'{MF} {v(A0+16*mt,16)}, {v(F+4*mt,4)}, {v(F+16,4)}, ' + ('0' if first else v(A0+16*mt,16)) for mt in range(4)]

    if sync:
        for l in switch(0): a(l)
        sS, vS, stepS, sF = (S_WO, V_WO, 64*1024, S_CTX) if ofirst else (S_W2, V_W2, 64*4096, S_U)
        for t in range(NSL-1):
            a(f's_add_u32 m0, s{s_w4k}, {t*SLOT}'); a('s_nop 0')
            for j in range(4):
                a(f'buffer_load_dwordx4 v{vS+j}, s[{sS}:{sS+3}], s{s_sl} offen' + (f' offset:{j*1024}' if j else '') + ' lds'); vq.push(t)
            a(f's_add_u32 s{s_sl}, s{s_sl}, {stepS}')
        sync(s_sb, s_mb, s_p, s_tile, ofirst)
        for t in range(NSL-1):
            a(f's_add_u32 m0, s{s_w4k}, {t*SLOT+16384}'); a('s_nop 0')
            for j in range(4):
                a(f'buffer_load_dwordx4 v{V_L16}, s[{sF}:{sF+3}], s{s_fr} offen' + (f' offset:{j*1024}' if j else '') + ' lds'); vq.push(t)
            a(f's_add_u32 s{s_fr}, s{s_fr}, 4096')
        a(f's_mov_b32 s{s_fill}, {(NSL-1)*SLOT}')
    else:
        for t in range(NSL-1):
            for g in loads(t): emit_g(g)
    vq.wait_for(a, 0)
    a('s_barrier')
    udefer = ofirst and opt.get('udefer', True)
    def uflag():
        a('v_mov_b32 v46, 0'); a('v_mov_b32 v47, 1')
        a(f's_cmp_eq_u32 s{s_w}, 0'); a('s_cselect_b64 exec, 1, 0')
        a('buffer_store_dword v47, v46, s[56:59], s60 offen sc1'); vq.push('uflag')
        a('s_mov_b64 exec, -1')
    if ofirst and not udefer:
        a('v_mov_b32 v46, 0'); a('v_mov_b32 v47, 1')
        a(f's_cmp_eq_u32 s{s_w}, 0'); a('s_cselect_b64 exec, 1, 0')
        a('buffer_store_dword v47, v46, s[56:59], s60 offen sc1'); vq.push('uflag')
        a('s_mov_b64 exec, -1')
    for l in addr_update2() + addr_update() + reads(0, 0, 0): a(l)
    if not opt.get('rt'): st_('go')
    for t in range(NS):
        tn = t + NSL - 1
        if udefer and t == 1:
            for q in range(2):
                a(f'buffer_store_dwordx4 v[{64+8*q}:{67+8*q}], v{V_L16}, s[{S_U}:{S_U+3}], s61 offen offset:{q*1024} sc1'); vq.push('ust')
        if udefer and t == 5: uflag()
        if ofirst and t == NO - NSL - 2:
            a('buffer_load_dword v44, v45, s[56:59], 0 offen sc1'); vq.push('uf')
        if ofirst and tn == NO:
            vq.wait_for(a, 'uf')
            a('s_mov_b32 s49, 0')
            a.label(f'{N}_upoll')
            a('v_cmp_ne_u32 vcc, 1, v44'); a('s_nop 3'); a('s_and_b32 s50, vcc_lo, 0x7fff00'); a('s_cmp_eq_u32 s50, 0')
            a(f's_cbranch_scc1 {N}_upolled')
            a('s_add_u32 s49, s49, 1'); a('s_cmp_ge_u32 s49, 0x20000'); a(f's_cbranch_scc1 {N}_upolled')
            a('buffer_load_dword v44, v45, s[56:59], 0 offen sc1'); a('s_waitcnt vmcnt(0)'); a(f's_branch {N}_upoll')
            a.label(f'{N}_upolled')
        gs = loads(tn) if tn < NS else []
        if not opt.get('rt') and not opt.get('nostage'): st_(f's{t}')
        for ks in range(4):
            buf = ks & 1
            a('s_waitcnt lgkmcnt(0)')
            pre = []
            if ks == 3 and t+1 < NS:
                vq.wait_for(a, t+1)
                a('s_barrier')
                pre = addr_update2() + addr_update()
            mf = mfmas(t, ks, buf)
            if ks < 3: rd = reads(t, ks+1, buf ^ 1)
            elif t+1 < NS: rd = reads(t+1, 0, buf ^ 1)
            else: rd = []
            n = len(rd); per = -(-n // 3)
            for k, m in enumerate(mf):
                a(m)
                if k == 0:
                    for l in pre: a(l)
                for l in rd[per*k:per*(k+1)]: a(l)
                if ks < 3 and gs and ((ks*4+k) % 3 != 2):
                    emit_g(gs.pop(0))
        assert not gs
    st_('loopend')
    a(f'v_sub_f32 v{V_1G}, 1.0, v{V_G}')
    a(f's_lshl_b32 s{s_t}, s{s_tile}, 17')
    a(f's_lshl_b32 s{s_t1}, s{s_p}, 13'); a(f's_lshl_b32 s{s_t2}, s{s_w}, 11'); a(f's_add_u32 s{s_t1}, s{s_t1}, s{s_t2}'); a(f's_add_u32 s{s_t1}, s{s_t1}, s{s_t}')
    a('s_nop 4')
    OWN = 192
    for mt in range(4):
        o = ACCO+16*mt; y = ACCY+16*mt
        for e in range(16): a(f'v_mul_f32 v{o+e}, v{o+e}, v{V_G}')
        for e in range(16): a(f'v_fmac_f32 v{o+e}, v{y+e}, v{V_1G}')
        a(f's_cmp_eq_u32 s{s_p}, {mt}')
        a(f's_cbranch_scc1 {N}_own{mt}')
        a(f's_add_u32 s{s_t2}, s{s_t1}, {mt*32768}')
        for k in range(8): a(f'v_cvt_pk_bf16_f32 v{o+k}, v{o+2*k}, v{o+2*k+1}')
        for q in range(2):
            a(f'buffer_store_dwordx4 {v(o+4*q,4)}, v{V_L16}, s[{S_P}:{S_P+3}], s{s_t2} offen offset:{q*1024} sc1')
        a(f's_branch {N}_next{mt}')
        a.label(f'{N}_own{mt}')
        for e in range(16): a(f'v_mov_b32 v{OWN+e}, v{o+e}')
        a.label(f'{N}_next{mt}')
    if not opt.get('rt'): st_('published')
    a(f's_lshl_b32 s{s_t}, s{s_tile}, 17'); a(f's_lshl_b32 s{s_t1}, s{s_p}, 15'); a(f's_add_u32 s{s_t}, s{s_t}, s{s_t1}')
    a(f's_lshl_b32 s{s_t1}, s{s_w}, 11'); a(f's_add_u32 s{s_t}, s{s_t}, s{s_t1}')
    for k in range(1, 4):
        a(f's_add_u32 s{s_t1}, s{s_p}, {k}'); a(f's_and_b32 s{s_t1}, s{s_t1}, 3'); a(f's_lshl_b32 s{s_t1}, s{s_t1}, 13'); a(f's_add_u32 s{50+k}, s{s_t1}, s{s_t}')
    a('s_mov_b32 s54, 0')
    a.label(f'{N}_poll')
    for k in range(1, 4):
        for q in range(2):
            a(f'buffer_load_dwordx4 {v(ACCY+8*k+4*q,4)}, v{V_L16}, s[{S_P}:{S_P+3}], s{50+k} offen offset:{q*1024} sc1')
    a('s_add_u32 s54, s54, 1')
    a('s_waitcnt vmcnt(0)')
    R0 = ACCY+8
    a(f'v_max3_u32 v{T}, v{R0}, v{R0+1}, v{R0+2}')
    for k in range(3, 23, 2): a(f'v_max3_u32 v{T}, v{T}, v{R0+k}, v{R0+k+1}')
    a(f'v_max_u32 v{T}, v{T}, v{R0+23}')
    a(f'v_cmp_eq_u32 vcc, -1, v{T}')
    a('s_cmp_ge_u32 s54, 0x20000')
    a(f's_cbranch_scc1 {N}_poll_end')
    a(f's_cbranch_vccnz {N}_poll')
    a.label(f'{N}_poll_end')
    st_('gathered')
    a(f'v_lshlrev_b32 v{V_B2}, 16, v{V_B2}')
    a(f'v_mul_f32 v{V_B2}, v{V_B2}, v{V_1G}')
    D = OWN
    for e in range(16): a(f'v_add_f32 v{D+e}, v{D+e}, v{V_B2}')
    for k in range(1, 4):
        for q in range(8):
            r = ACCY+8*k+q
            a(f'v_lshlrev_b32 v{T}, 16, v{r}'); a(f'v_and_b32 v{T+1}, 0xffff0000, v{r}')
            a(f'v_add_f32 v{D+2*q}, v{D+2*q}, v{T}'); a(f'v_add_f32 v{D+2*q+1}, v{D+2*q+1}, v{T+1}')
    X = ACCO
    for jj in range(4):
        a(f'v_cvt_pk_bf16_f32 v{X+2*jj}, v{D+4*jj}, v{D+4*jj+1}')
        a(f'v_cvt_pk_bf16_f32 v{X+2*jj+1}, v{D+4*jj+2}, v{D+4*jj+3}')
    a(f's_lshl_b32 s{s_t}, s{s_sb}, 17'); a(f's_lshl_b32 s{s_t1}, s{s_w}, 15'); a(f's_add_u32 s{s_t}, s{s_t}, s{s_t1}')
    a(f's_lshl_b32 s{s_t1}, s{s_mb}, 8'); a(f's_add_u32 s{s_t}, s{s_t}, s{s_t1}')
    a(f's_lshl_b32 s{s_t1}, s{s_p}, 6'); a(f's_add_u32 s{s_t}, s{s_t}, s{s_t1}')
    for pr in range(2):
        b = X+4*pr
        a(f'v_permlane32_swap_b32 v{b}, v{b+2}')
        a(f'v_permlane32_swap_b32 v{b+1}, v{b+3}')
        a('s_nop 1')
        a(f'buffer_store_dwordx4 {v(b,4)}, v{V_OA}, s[{S_OUT}:{S_OUT+3}], s{s_t} offen offset:{32*pr}')
    a('s_waitcnt vmcnt(0)')
    st_('end')
    if opt.get('rt'):
        a('s_cmp_eq_u32 s2, 0'); a(f's_cbranch_scc0 {N}_nodbg'); a(f's_cmp_eq_u32 s{s_w}, 0'); a(f's_cbranch_scc0 {N}_nodbg')
        make_srd(a, 56, 76, 100*MB, 1 << 20); make_srd(a, 60, 74, 0, 256)
        a(f'v_lshrrev_b32 v3, 2, v{V_L16}')
        a(f's_mov_b32 s49, {opt.get("rt_wg", 0)*1024}')
        a('buffer_load_dword v4, v3, s[56:59], s49 offen')
        a(f'v_lshlrev_b32 v6, 4, v{V_L16}')
        for k in range(16):
            a(f's_mov_b32 s49, {k*16384}')
            a(f'buffer_load_dword v{64+k}, v6, s[56:59], s49 offen offset:252')
            a(f'buffer_load_dword v{80+k}, v6, s[56:59], s49 offen offset:248')
        a('s_waitcnt vmcnt(0)')
        for k in range(1, 16):
            a(f'v_max_u32 v64, v64, v{64+k}'); a(f'v_min_u32 v80, v80, v{80+k}')
        a('s_nop 1')
        a('v_readlane_b32 s50, v64, 0'); a('v_readlane_b32 s51, v80, 0')
        for ln in range(1, 64):
            a(f'v_readlane_b32 s52, v64, {ln}'); a(f'v_readlane_b32 s53, v80, {ln}'); a('s_max_u32 s50, s50, s52'); a('s_min_u32 s51, s51, s53')
        a('v_writelane_b32 v4, s50, 11'); a('v_writelane_b32 v4, s51, 10')
        a('v_cmp_gt_u32 vcc, 48, v3')
        a('s_and_saveexec_b64 s[50:51], vcc')
        a('buffer_store_dword v4, v3, s[60:63], 0 offen')
        a('s_mov_b64 exec, s[50:51]')
        a('v_cmp_gt_u32 vcc, 16, v3')
        a('s_and_saveexec_b64 s[50:51], vcc')
        a('buffer_store_dword v255, v3, s[60:63], 0 offen offset:48')
        a('s_mov_b64 exec, s[50:51]')
        a('s_waitcnt vmcnt(0)')
        a.label(f'{N}_nodbg')
    elif inline:
        st_.dump(100*MB, s_w, 253)
    else:
        st_.dump(100*MB, s_w, 240)
    if not inline:
        a.label(f'{N}_end')
        a('s_endpgm')
```

```python
from asmlib import *
from layout import *
import gen_attn2 as A
from gen_attn2 import *
from gen_proj2 import Proj, VmQueue, frag_store_groups
from gen_proj import make_srd
import gen_proj, gen_final
from gen_kv import ProjKV
from gen_proj16 import Proj16, frag_store_groups16, q_to_frags16

class Main(Attn):
    def emit_phasec(self):
        a = self.a; N = self.name; opt = self.opt
        a('s_barrier')
        make_srd(a, 76, 34, WS_FL, 112*128)
        a(f's_lshr_b32 s27, s{s_h}, 3'); a('s_lshl_b32 s27, s27, 3'); a(f's_add_u32 s27, s27, s{s_i}'); a('s_lshl_b32 s27, s27, 7')
        a(f's_and_b32 s29, s{s_h}, 7'); a('s_lshl_b32 s29, s29, 2'); a('s_add_u32 s27, s27, s29')
        a('v_mov_b32 v41, s27')
        ofirst = opt.get('l3', {}).get('ofirst', True)
        a('s_mov_b32 s60, 0x7fffff00')
        a('s_mov_b32 s30, 1')
        a(f's_cmp_eq_u32 s{s_i}, {self.nomlp_i}'); a(f's_cbranch_scc1 {N}_cnou')
        a('s_mul_i32 s27, s80, 37'); a('s_lshr_b32 s27, s27, 8'); a('s_mul_i32 s29, s27, 7'); a('s_sub_u32 s29, s80, s29')
        a('s_lshl_b32 s29, s29, 1'); a('s_and_b32 s31, s81, 1'); a('s_add_u32 s29, s29, s31'); a('s_lshl_b32 s29, s29, 2')
        a('s_lshl_b32 s27, s27, 2'); a('s_lshr_b32 s31, s81, 1'); a('s_add_u32 s27, s27, s31'); a('s_add_u32 s27, s27, 32'); a('s_lshl_b32 s27, s27, 7'); a('s_add_u32 s27, s27, s29')
        if ofirst: a('s_mov_b32 s60, s27')
        else: a('v_writelane_b32 v41, s27, 1'); a('s_or_b32 s30, s30, 2')
        a.label(f'{N}_cnou')
        a(f's_cmp_eq_u32 s{s_i}, 7'); a(f's_cbranch_scc0 {N}_cflag')
        a('s_sub_u32 s27, s2, 224'); a('s_lshl_b32 s27, s27, 1'); a('s_add_u32 s27, s27, 48'); a('s_lshl_b32 s27, s27, 7')
        a('v_writelane_b32 v41, s27, 2'); a('s_add_u32 s27, s27, 128'); a('v_writelane_b32 v41, s27, 3'); a('s_or_b32 s30, s30, 12')
        a.label(f'{N}_cflag')
        a('v_mov_b32 v42, 1')
        a(f's_cmp_eq_u32 s{s_w}, 0'); a('s_cselect_b32 exec_lo, s30, 0'); a('s_mov_b32 exec_hi, 0')
        a('buffer_store_dword v42, v41, s[76:79], 0 offen sc1')
        a('s_mov_b64 exec, -1')
        def poll(s_sb, s_mb, s_p, s_tile, ofirst=False):
            make_srd(a, 56, 76, WS_FL, 112*128)
            a(f's_sub_u32 s49, 15, s{s_sb}'); a(f's_min_u32 s49, s49, s{s_sb}'); a(f's_lshl_b32 s50, s{s_p}, 3'); a('s_add_u32 s49, s49, s50'); a('s_lshl_b32 s49, s49, 7')
            a(f's_lshl_b32 s50, s{s_p}, 2'); a(f's_add_u32 s50, s50, s{s_mb}'); a('s_add_u32 s50, s50, 32'); a('s_lshl_b32 s50, s50, 7'); a('s_sub_u32 s50, s50, 32')
            a(f's_add_u32 s51, s{s_tile}, 48'); a('s_lshl_b32 s51, s51, 7')
            a('v_lshrrev_b32 v45, 2, v2')
            a('v_mov_b32 v46, s50'); a('v_mov_b32 v47, s49'); a('v_cmp_gt_u32 vcc, 32, v45'); a('s_nop 1'); a('v_cndmask_b32 v46, v46, v47, vcc')
            a('v_add_u32 v45, v45, v46'); a('v_writelane_b32 v45, s51, 22')
            a(f's_cmp_eq_u32 s{s_w}, {1 if opt.get("pollw1", True) else 0}'); a(f's_cbranch_scc0 {N}_cpolled')
            a('s_mov_b32 s49, 0')
            a.label(f'{N}_cpoll')
            a('buffer_load_dword v44, v45, s[56:59], 0 offen sc1')
            a('s_waitcnt vmcnt(0)')
            a('v_cmp_ne_u32 vcc, 1, v44'); a('s_nop 3'); a(f's_and_b32 s50, vcc_lo, {0xff if ofirst else 0x7fffff}'); a('s_cmp_eq_u32 s50, 0')
            a(f's_cbranch_scc1 {N}_cpolled')
            a('s_add_u32 s49, s49, 1'); a('s_cmp_ge_u32 s49, 0x20000'); a(f's_cbranch_scc1 {N}_cpolled')

            if opt.get("csleep", 0): a(f's_sleep {opt.get("csleep")}')
            a(f's_branch {N}_cpoll')
            a.label(f'{N}_cpolled')
            a('s_barrier')
        gen_final.emit_final(a, N + '_fin', inline=True, sync=poll, stamps=self.st, **opt.get('l3', {}))

    def emit_head(self):
        a = self.a; N = self.name; opt = self.opt
        S_CK, S_WK, S_X, S_O, S_WV, S_WQ = 4, 8, 12, 16, 92, 60
        S_H, S_G, S_GW = 76, (56 if opt.get('lnfill', False) else 48), 52
        a(f's_cmp_ge_u32 s2, 256')
        a(f's_cbranch_scc1 {N}_end')
        self.stamp()
        a(f's_load_dwordx2 s[34:35], s[0:1], {KA_WS}')
        a(f's_load_dwordx2 s[64:65], s[0:1], {KA_AX}')
        a(f's_load_dwordx2 s[90:91], s[0:1], {KA_CKV}')
        a(f's_load_dwordx4 s[96:99], s[0:1], {KA_WUK}')
        a(f's_load_dwordx2 s[38:39], s[0:1], {KA_GW}')
        a(f's_load_dwordx2 s[66:67], s[0:1], {KA_WQ}')
        a(f's_load_dwordx2 s[68:69], s[0:1], {KA_W1}')
        a(f's_load_dwordx2 s[86:87], s[0:1], {KA_B1}')
        a(f's_load_dwordx2 s[70:71], s[0:1], {KA_WO}')
        a(f's_load_dwordx2 s[72:73], s[0:1], {KA_W2}')
        a(f's_load_dwordx2 s[100:101], s[0:1], {KA_DBG}')
        a(f'v_lshrrev_b32 v1, 6, v0')
        a(f'v_and_b32 v2, 63, v0')
        a(f'v_lshlrev_b32 v{V_L16}, 4, v2')
        a(f'v_readfirstlane_b32 s{s_w}, v1')
        a(f's_and_b32 s{s_t0}, s2, 7')
        a(f's_lshr_b32 s{s_t1}, s2, 3')
        a(f's_lshl_b32 s{s_h}, s{s_t0}, 2')
        a(f's_and_b32 s{s_t0}, s{s_t1}, 3')
        a(f's_add_u32 s{s_h}, s{s_h}, s{s_t0}')
        a(f's_lshr_b32 s{s_i}, s{s_t1}, 2')
        a(f's_add_u32 s{s_g1}, s{s_i}, 1')
        a(f's_lshl_b32 s{s_g1}, s{s_g1}, 2')
        a(f's_lshl_b32 s36, s{s_i}, 2'); a(f's_add_u32 s36, s36, s{s_w}')
        a(f's_lshl_b32 s37, s{s_i}, 2'); a(f's_sub_u32 s37, 60, s37'); a(f's_add_u32 s37, s37, s{s_w}')
        vq = VmQueue()
        p16 = opt.get('p16')
        if p16:
            P = Proj16(a, vq, s_w, 16384, 16384, FBL=[[192+4*k for k in range(12)], [4*k for k in range(12)]], V_WD=60, ACC=64, fbk='a', VA=8, V_L16=V_L16, VT=33, SG=40,
                       wflags=(' nt' if opt.get('nt', True) else ''), stamps=self.st, opt=opt)
        else:
            P = Proj(a, vq, s_w, 16384, 16384, ACC=64, FB=(192, 216), fbk='a', VA=8, V_L16=V_L16, VT=33, SG=40,
                     wflags=(' nt' if opt.get('nt', True) else ''), stamps=self.st, opt=opt)
        P.setup_addrs(set_l16=False)
        lnfill = opt.get('lnfill', False)
        LB_ = 40
        a(f's_lshl_b32 s82, s2, 3'); a(f's_lshl_b32 s83, s{s_w}, 1'); a('s_add_u32 s82, s82, s83')
        a('s_lshl_b32 s83, s82, 2'); a('s_lshl_b32 s82, s82, 10')
        a('s_waitcnt lgkmcnt(0)')
        make_srd(a, S_CK, 90, 0, 2*MB); make_srd(a, S_WK, 96, 0, 4*MB)
        def lnloads():
            make_srd(a, S_X, 64, 0, 2*MB); make_srd(a, S_GW, 38, 0, 1024)
            a(f'buffer_load_dwordx4 v[{LB_}:{LB_+3}], v{V_L16}, s[{S_X}:{S_X+3}], s82 offen'); vq.push('ln')
            a(f'buffer_load_dwordx4 v[{LB_+4}:{LB_+7}], v{V_L16}, s[{S_X}:{S_X+3}], s82 offen offset:1024'); vq.push('ln')
            a(f'buffer_load_dwordx4 v[{LB_+16}:{LB_+19}], v{V_L16}, s[{S_GW}:{S_GW+3}], 0 offen'); vq.push('ln')
        if not lnfill: lnloads()
        initKV = [f's_lshl_b32 s{P.s_a0}, s{s_i}, 18', f's_lshl_b32 s49, s{s_w}, 16', f's_add_u32 s{P.s_a0}, s{P.s_a0}, s49',
                  f's_add_u32 s{P.s_a1}, s{P.s_a0}, 32768',
                  f's_lshl_b32 s{P.s_wo}, s{s_w}, 17', f's_lshl_b32 s49, s{s_h}, 8', f's_add_u32 s{P.s_wo}, s{P.s_wo}, s49']
        initQ = [f's_lshl_b32 s{P.s_a0}, s36, 15', f's_lshl_b32 s{P.s_a1}, s37, 15',
                 f's_lshl_b32 s{P.s_wo}, s{s_w}, 17', f's_lshl_b32 s49, s{s_h}, 8', f's_add_u32 s{P.s_wo}, s{P.s_wo}, s49']
        ps = [dict(swap=False, srdA=S_CK, srdW=S_WK, init=initKV, epi=lambda: None, acck='v'),
              dict(swap=True, srdA=S_CK, srdW=S_WV, init=initKV, epi=lambda: None, acck='a'),
              dict(swap=False, srdA=S_X, srdW=S_WQ, init=initQ, epi=lambda: None, acck='v')]
        P.prologue(ps[0], after0=(lnloads if lnfill else None))
        make_srd(a, S_WV, 98, 0, 4*MB)
        make_srd(a, S_WQ, 66, 0, 4*MB)
        make_srd(a, S_O, 34, WS_K, 32*MB)
        make_srd(a, S_H, 34, WS_H, 2*MB); make_srd(a, S_G, 34, WS_G, 8192)
        real_a = self.a; tmp_a = Asm(); self.a = tmp_a
        M = self.setup_attn_regs()
        self.a = real_a; M.a = real_a
        c = 0x3e0293ee
        setup = tmp_a.lines + [f'v_mov_b32 v2, {hex(c)}', f'v_mov_b32 v3, {hex(c)}'] + [f'v_accvgpr_write_b32 a{e}, 0' for e in range(48 if p16 else 0, 64)]
        setupG = [(setup[k:k+4], None) for k in range(0, len(setup), 4)]
        perS = -(-len(setupG)//5)
        s_first = 3 if lnfill else 1
        gen_proj.R.V_L16 = V_L16
        st_save = STF.st; STF.st = ' sc1'
        main_a = a
        if lnfill: a = Asm()
        else: vq.wait_for(a, 'ln')
        if lnfill: gen_proj.emit_ln_compute(a, LB_, S_H, S_G, 82, 83, 208, gw=232, sm=240, tmp=244)
        else: gen_proj.emit_ln_compute(a, LB_, S_H, S_G, 82, 83, 64)
        a('s_getreg_b32 s33, hwreg(HW_REG_XCC_ID, 0, 4)')
        a('s_or_b32 s33, s33, 0x50')
        make_srd(a, 76, 34, WS_HF, 4096)
        a(f's_lshl_b32 s32, s{s_h}, 7')
        a('v_mov_b32 v41, 0'); a(f'v_lshrrev_b32 v42, 2, v{V_L16}')
        a(f's_or_b32 s{s_t0}, s{s_w}, s{s_i}'); a(f's_cmp_eq_u32 s{s_t0}, 0'); a('s_cselect_b32 exec_lo, -1, 0'); a('s_mov_b32 exec_hi, 0')
        a('buffer_store_dword v41, v42, s[76:79], s32 offen sc1')
        a('s_mov_b64 exec, -1')
        if opt.get('fusefin'):
            make_srd(a, 76, 34, WS_FL, 112*128)
            a('s_lshl_b32 s32, s2, 7')
            a(f's_cmp_eq_u32 s{s_w}, 0'); a('s_cselect_b32 exec_lo, -1, 0'); a('s_mov_b32 exec_hi, 0')
            a('buffer_store_dword v41, v42, s[76:79], s32 offen sc1')
            a('s_mov_b64 exec, -1')
        if lnfill:
            lnG = [(['@wait'], 'ln')]
            cur = []; masked = False
            for k_, l in enumerate(a.lines):
                nxt_addc = k_+1 < len(a.lines) and a.lines[k_+1].startswith('s_addc')
                starts_mask = ('exec' in l and not l.startswith('s_mov_b64 exec, -1') and not l.startswith('s_mov_b64 exec, s['))
                if (l.startswith('s_cmp') or starts_mask) and not masked:
                    if cur: lnG.append((cur, None)); cur = []
                    masked = True
                cur.append(l)
                if l.startswith('buffer_'):
                    if not masked: lnG.append((cur, 'lnst')); cur = []
                if masked and (l.startswith('s_mov_b64 exec, -1') or l.startswith('s_mov_b64 exec, s[')):
                    lnG.append((cur, 'lnst')); cur = []; masked = False
                elif not masked and len(cur) >= 4 and not nxt_addc:
                    lnG.append((cur, None)); cur = []
            if cur: lnG.append((cur, None))
            assert not masked
            a = main_a
        else:
            for _ in range(5 if opt.get('fusefin') else 4): vq.push('lnst')
            lnG = []
        perL = -(-len(lnG)//3)
        a(f's_and_b32 s91, s{s_h}, 3'); a(f's_cmp_eq_u32 s{s_w}, 0'); a('s_cselect_b32 s91, s91, 0xff')
        a(f's_lshl_b32 s{s_t0}, s{s_h}, 6'); a(f's_lshl_b32 s{s_t1}, s{s_i}, 3'); a(f's_add_u32 s{s_t0}, s{s_t0}, s{s_t1}')
        a(f's_lshl_b32 s{s_t1}, s{s_w}, 1'); a(f's_add_u32 s{s_t0}, s{s_t0}, s{s_t1}'); a(f's_lshl_b32 s{s_t0}, s{s_t0}, 13')
        for k in range(4):
            a(f's_add_u32 s{50+k}, s{s_t0}, {k*4096}')
            a(f's_add_u32 s{96+k}, s{s_t0}, {16*MB + k*4096}')
        STF.st = opt.get('kst', opt.get('kvst', ''))
        VK, VV = 220, 222
        if p16: P.store_addrs(VK, VV)
        KG = frag_store_groups16(P, 'K', 'v', S_O, 50, None, VK, v_scale=2, tag='kst') if p16 else frag_store_groups(P, 'K', 'v', S_O, 50, None, v_scale=2, tag='kst')
        STF.st = opt.get('vst', opt.get('kvst', ''))
        VGs = frag_store_groups16(P, 'V', 'a', S_O, 96, 40, VV, tag='vst') if p16 else frag_store_groups(P, 'V', 'a', S_O, 96, 40, tag='vst')
        STF.st = st_save
        nv = opt.get('vstages', 3); sigt = opt.get('sigt', nv+1)
        perK = len(KG)//8; perV = len(VGs)//nv
        KV0 = self.kv_groups('K', 6); VV0 = self.kv_groups('V', 4)
        zero = [([f'v_accvgpr_write_b32 a{64+4*k+e}, 0' for e in range(4)], None) for k in range(16)]
        srds = self.kv_srd_lines()
        dbg = Asm(); make_srd(dbg, 76, 100, 0, 256)
        hfl = Asm(); make_srd(hfl, 92, 34, WS_HF, 4096)
        def lnsig(k): return (dbg.lines + ['v_mov_b32 v58, 0', 'v_mov_b32 v59, s33', f's_cmp_eq_u32 s91, {k}', 's_cselect_b64 exec, 1, 0',
               f'buffer_store_byte v59, v58, s[76:79], s2 offen sc1', 's_mov_b64 exec, -1'], 'flag')
        idaddr = [f'v_lshlrev_b32 v57, 1, v{V_L16}', f's_lshr_b32 s{s_t1}, s{s_h}, 2', f's_and_b32 s32, s{s_h}, 3', 's_lshl_b32 s32, s32, 3', f's_add_u32 s48, s32, s{s_t1}']
        idld = (dbg.lines + idaddr + ['buffer_load_ubyte v56, v57, s[76:79], s48 offen sc1'], 'id')
        sig = dbg.lines + hfl.lines + [f's_cmp_eq_u32 s{s_w}, 0', f's_cbranch_scc0 {N}_nosig', f's_mov_b32 s{s_cnt}, 0',
               f'{N}_idchk:',
               'v_readfirstlane_b32 s32, v56', 's_and_b32 s32, s32, 0x40', 's_cmp_lg_u32 s32, 0', f's_cbranch_scc1 {N}_idok',
               f's_add_u32 s{s_cnt}, s{s_cnt}, 1', f's_cmp_ge_u32 s{s_cnt}, 0x20000', f's_cbranch_scc1 {N}_idok',
               'buffer_load_ubyte v56, v57, s[76:79], s48 offen sc1', 's_waitcnt vmcnt(0)', 's_nop 0', f's_branch {N}_idchk',
               f'{N}_idok:',
               'v_cmp_ne_u32 vcc, s33, v56', 's_nop 3', 's_and_b32 s32, vcc_lo, 0xff', 's_cmp_eq_u32 s32, 0',
               f's_cbranch_scc1 {N}_samexcd', 'buffer_wbl2 sc1', 's_waitcnt vmcnt(0)', f'{N}_samexcd:',
               f's_lshl_b32 s32, s{s_h}, 7', f's_lshl_b32 s{s_t1}, s{s_i}, 2', f's_add_u32 s32, s32, s{s_t1}',
               'v_mov_b32 v41, 0', 'v_mov_b32 v42, 1', 's_mov_b64 exec, 1',
               'buffer_store_dword v42, v41, s[92:95], s32 offen sc1', 's_mov_b64 exec, -1', f'{N}_nosig:']
        pollld = ['buffer_load_dword v232, v233, s[76:79], 0 offen sc1', 'buffer_load_dword v235, v233, s[92:95], s91 offen sc1']
        pollpre = dbg.lines + hfl.lines + [f's_lshl_b32 s91, s{s_h}, 7', f'v_lshrrev_b32 v233, 2, v{V_L16}', 'v_mov_b32 v234, 0x40404040',
                   f's_cmp_eq_u32 s{s_w}, 0', f's_cbranch_scc0 {N}_nopoll0'] + pollld + [f'{N}_nopoll0:']
        def pfw(srd_): return ([f'v_lshrrev_b32 v58, 5, v{V_L16}', 'v_lshlrev_b32 v58, 13, v58', f'v_bfe_u32 v59, v{V_L16}, 4, 1', 'v_lshl_add_u32 v58, v59, 7, v58',
               f's_lshl_b32 s32, s{s_w}, 4', f's_lshl_b32 s49, s{s_i}, 6', 's_add_u32 s32, s32, s49', 's_lshl_b32 s32, s32, 13',
               f's_lshl_b32 s49, s{s_h}, 8', 's_add_u32 s32, s32, s49', 's_mov_b32 exec_hi, 0',
               f'buffer_load_dword v253, v58, s[{srd_}:{srd_+3}], s32 offen', 's_mov_b64 exec, -1'], 'pf')
        def pfx(qt): return ([f'v_lshrrev_b32 v58, 7, v{V_L16}', 'v_lshlrev_b32 v58, 10, v58', f'v_bfe_u32 v59, v{V_L16}, 4, 3', 'v_lshl_add_u32 v58, v59, 7, v58',
               f's_lshl_b32 s32, s{qt}, 5', f's_and_b32 s49, s{s_h}, 3', 's_lshl_b32 s49, s49, 3', 's_add_u32 s32, s32, s49', 's_lshl_b32 s32, s32, 10',
               f'buffer_load_dword v253, v58, s[{S_X}:{S_X+3}], s32 offen'], 'pf')
        def pfc(k): return ([f'v_lshrrev_b32 v58, 7, v{V_L16}', 'v_lshlrev_b32 v58, 10, v58', f'v_bfe_u32 v59, v{V_L16}, 4, 3', 'v_lshl_add_u32 v58, v59, 7, v58',
               f's_lshl_b32 s32, s{s_i}, 8', f's_and_b32 s49, s{s_h}, 3', 's_lshl_b32 s49, s49, 6', 's_add_u32 s32, s32, s49', f's_lshl_b32 s49, s{s_w}, 4', 's_add_u32 s32, s32, s49',
               f's_add_u32 s32, s32, {8*k}', 's_lshl_b32 s32, s32, 10', f'buffer_load_dword v253, v58, s[{S_CK}:{S_CK+3}], s32 offen'], 'pf')
        def pf1():
            l = Asm(); make_srd(l, 76, 68, 0, 2048*3584)
            l(f'v_lshlrev_b32 v58, 3, v{V_L16}'); l('s_lshl_b32 s32, s2, 2'); l(f's_add_u32 s32, s32, s{s_w}'); l('s_mul_i32 s32, s32, 7168')
            l('buffer_load_dword v253, v58, s[76:79], s32 offen')
            return (l.lines, 'pf')
        pf = opt.get('pfa', 'vq')
        earlypoll = opt.get('earlypoll', True)
        def xe(p, t):
            if p == 0:
                g = list(setupG[(t-s_first)*perS:(t-s_first+1)*perS]) if s_first <= t < s_first+5 else []
                if t < 3: g = list(lnG[t*perL:(t+1)*perL]) + g
                if t == 0:
                    if 'k' in pf: g.append(pfw(S_WK))
                    if 'c' in pf: g += [pfc(0), pfc(1)]
                if '1' in pf and t == 6: g.append(pf1())
                if 'v' in pf and t == opt.get('pfv_t', 1): g.append(pfw(S_WV))
                return g
            if p == 1:
                g = list(KG[t*perK:(t+1)*perK])
                if 'q' in pf and t == 1: g.append(pfw(S_WQ))
                if 'x' in pf and t == 2: g.append(pfx(36))
                if 'x' in pf and t == 3: g.append(pfx(37))
                if '2' in pf and t == 5: g.append(pf1())
                return g
            if p == 2:
                g = []
                if t < nv: g += VGs[t*perV:(t+1)*perV] + ([idld] if t == 0 else [])
                if t == nv: g += zero
                if t == (5 if earlypoll else 6): g += [(srds, None)]
                if t == (6 if earlypoll else 7): g += [(pollpre, None)]
                if earlypoll and t == 7: g += KV0[6:] + VV0
                return g
            return []
        late_pf = opt.get('pflate', {})
        def xl(p, t):
            g = []
            t0 = 4 if lnfill else 2
            if p == 0 and t0 <= t < t0+4: g.append(lnsig(t-t0))
            if p == 2 and t == sigt: g.append((sig, None))
            if earlypoll and p == 2 and t == 6: g += KV0[:6]
            k = late_pf.get((p, t))
            if k == 'v': g.append(pfw(S_WV))
            if k == 'q': g.append(pfw(S_WQ))
            if k == '1': g.append(pf1())
            if k == 'a': g.append(pfx(36))
            if k == 'b': g.append(pfx(37))
            return g
        assert sigt >= nv + 1 and sigt <= (5 if earlypoll else 6) and 48 % nv == 0
        if earlypoll:
            chk = ['s_waitcnt vmcnt(0)', 'v_and_b32 v232, v234, v232', 'v_cmp_ne_u32 vcc, v234, v232', 'v_cmp_ne_u32 s[54:55], 1, v235', 's_nop 3',
                   's_and_b32 s32, s54, 0xff', 's_or_b32 s32, s32, vcc_lo', 's_or_b32 s32, s32, vcc_hi', 's_cmp_eq_u32 s32, 0']
            pl = [f's_cmp_eq_u32 s{s_w}, 0', f's_cbranch_scc0 {N}_polled', f's_mov_b32 s{s_cnt}, 0', f'{N}_poll:'] + chk + \
                 [f's_cbranch_scc1 {N}_polled', f's_add_u32 s{s_cnt}, s{s_cnt}, 1', f's_cmp_ge_u32 s{s_cnt}, 0x20000', f's_cbranch_scc1 {N}_polled'] + pollld + \
                 [f's_branch {N}_poll', f'{N}_polled:']
            P.prebar = lambda p, t: (pl if (p, t) == (2, 6) else [])
        P.start_compute()
        self.stamp()
        P.run(ps, extra_early=xe, extra_late=xl)
        self.stamp()
        if not earlypoll:
            if p16:
                q_to_frags16(a, 64, QA, QB)
                for e in range(48): a(f'v_accvgpr_write_b32 a{e}, 0')
            else: self.q_to_frags_cvt()
            chk = ['s_waitcnt vmcnt(0)', 'v_and_b32 v232, v234, v232', 'v_cmp_ne_u32 vcc, v234, v232', 'v_cmp_ne_u32 s[54:55], 1, v235', 's_nop 3',
                   's_and_b32 s32, s54, 0xff', 's_or_b32 s32, s32, vcc_lo', 's_or_b32 s32, s32, vcc_hi', 's_cmp_eq_u32 s32, 0']
            for l in [f's_cmp_eq_u32 s{s_w}, 0', f's_cbranch_scc0 {N}_polled', f's_mov_b32 s{s_cnt}, 0', f'{N}_poll:'] + chk + \
                     [f's_cbranch_scc1 {N}_polled', f's_add_u32 s{s_cnt}, s{s_cnt}, 1', f's_cmp_ge_u32 s{s_cnt}, 0x20000', f's_cbranch_scc1 {N}_polled',
                      ] + ([f's_sleep {opt.get("sleep", 0)}'] if opt.get("sleep", 0) else []) + pollld + [f's_branch {N}_poll', f'{N}_polled:']: a(l)
            a('s_barrier')
            for g in KV0 + VV0:
                for l in g[0]: a(l)
        else:
            assert not p16
            self.q_to_frags_cvt()
        self.stamp()
        self.q_to_frags_srd()
        return M


class Main2(Main):
    def emit_head(self):
        a = self.a; N = self.name; opt = self.opt
        S_CK, S_WK, S_X, S_O, S_WV, S_WQ = 4, 8, 12, 16, 92, 60
        S_H, S_G, S_GW = 76, 48, 52
        a(f's_cmp_ge_u32 s2, 256')
        a(f's_cbranch_scc1 {N}_end')
        self.stamp()
        a(f's_load_dwordx2 s[90:91], s[0:1], {KA_CKV}')
        a(f's_load_dwordx4 s[96:99], s[0:1], {KA_WUK}')
        a(f's_load_dwordx2 s[34:35], s[0:1], {KA_WS}')
        a(f's_load_dwordx2 s[64:65], s[0:1], {KA_AX}')
        a(f's_load_dwordx2 s[38:39], s[0:1], {KA_GW}')
        a(f's_load_dwordx2 s[66:67], s[0:1], {KA_WQ}')
        a(f's_load_dwordx2 s[68:69], s[0:1], {KA_W1}')
        a(f's_load_dwordx2 s[86:87], s[0:1], {KA_B1}')
        a(f's_load_dwordx2 s[70:71], s[0:1], {KA_WO}')
        a(f's_load_dwordx2 s[72:73], s[0:1], {KA_W2}')
        a(f's_load_dwordx2 s[100:101], s[0:1], {KA_DBG}')
        a(f'v_lshrrev_b32 v1, 6, v0')
        a(f'v_and_b32 v2, 63, v0')
        a(f'v_lshlrev_b32 v{V_L16}, 4, v2')
        a(f'v_readfirstlane_b32 s{s_w}, v1')
        a(f's_and_b32 s{s_t0}, s2, 7')
        a(f's_lshr_b32 s{s_t1}, s2, 3')
        a(f's_lshl_b32 s{s_h}, s{s_t0}, 2')
        a(f's_and_b32 s{s_t0}, s{s_t1}, 3')
        a(f's_add_u32 s{s_h}, s{s_h}, s{s_t0}')
        a(f's_lshr_b32 s{s_i}, s{s_t1}, 2')
        a(f's_add_u32 s{s_g1}, s{s_i}, 1')
        a(f's_lshl_b32 s{s_g1}, s{s_g1}, 2')
        a(f's_lshl_b32 s36, s{s_i}, 2'); a(f's_add_u32 s36, s36, s{s_w}')
        a(f's_lshl_b32 s37, s{s_i}, 2'); a(f's_sub_u32 s37, 60, s37'); a(f's_add_u32 s37, s37, s{s_w}')
        vq = VmQueue()
        a('s_waitcnt lgkmcnt(0)')
        make_srd(a, S_CK, 90, 0, 2*MB); make_srd(a, S_WK, 96, 0, 4*MB); make_srd(a, S_WV, 98, 0, 4*MB)
        make_srd(a, S_X, 64, 0, 2*MB); make_srd(a, S_GW, 38, 0, 1024); make_srd(a, S_WQ, 66, 0, 4*MB)
        KV = ProjKV(a, vq, s_w, S_CK, S_WK, S_WV, ACCK=64, ACCV=64, VR=40, VT=33, SG=(38, 39, 64, 65, 66, 67, 90), stamps=self.st, opt=opt)
        KV.setup(s_i, s_h)
        LB_ = 232
        a(f's_lshl_b32 s82, s2, 3'); a(f's_lshl_b32 s83, s{s_w}, 1'); a('s_add_u32 s82, s82, s83')
        a('s_lshl_b32 s83, s82, 2'); a('s_lshl_b32 s82, s82, 10')
        a(f'buffer_load_dwordx4 v[{LB_}:{LB_+3}], v{V_L16}, s[{S_X}:{S_X+3}], s82 offen'); vq.push('ln')
        a(f'buffer_load_dwordx4 v[{LB_+4}:{LB_+7}], v{V_L16}, s[{S_X}:{S_X+3}], s82 offen offset:1024'); vq.push('ln')
        a(f'buffer_load_dwordx4 v[{LB_+16}:{LB_+19}], v{V_L16}, s[{S_GW}:{S_GW+3}], 0 offen'); vq.push('ln')
        rest0 = KV.prologue(opt.get('kvpro', 2))
        P = Proj(a, vq, s_w, 16384, 65536, ACC=64, FB=(192, 216), fbk='a', VA=8, V_L16=V_L16, VT=33, SG=40,
                 wflags=(' nt' if opt.get('nt', False) else ''), stamps=self.st, opt=opt)
        P.setup_addrs(set_l16=False)
        make_srd(a, S_O, 34, WS_K, 32*MB)
        make_srd(a, S_H, 34, WS_H, 2*MB); make_srd(a, S_G, 34, WS_G, 8192)
        real_a = self.a; tmp_a = Asm(); self.a = tmp_a; self.mtmp = 232
        M = self.setup_attn_regs()
        self.a = real_a; M.a = real_a
        c = 0x3e0293ee
        setup = tmp_a.lines + [f'v_mov_b32 v2, {hex(c)}', f'v_mov_b32 v3, {hex(c)}']
        setupG = [(setup[k:k+4], None) for k in range(0, len(setup), 4)]
        perS = -(-len(setupG)//6)
        vq.wait_for(a, 'ln')
        gen_proj.R.V_L16 = V_L16
        st_save = STF.st; STF.st = ' sc1'
        gen_proj.emit_ln_compute(a, LB_, S_H, S_G, 82, 83, 64)
        for _ in range(3): vq.push('lnst')
        a('s_getreg_b32 s33, hwreg(HW_REG_XCC_ID, 0, 4)')
        a('s_or_b32 s33, s33, 0x50')
        make_srd(a, 76, 34, WS_HF, 4096)
        a(f's_lshl_b32 s32, s{s_h}, 7')
        a('v_mov_b32 v58, 0'); a(f'v_lshrrev_b32 v59, 2, v{V_L16}')
        a(f's_or_b32 s{s_t0}, s{s_w}, s{s_i}'); a(f's_cmp_eq_u32 s{s_t0}, 0'); a('s_cselect_b32 exec_lo, -1, 0'); a('s_mov_b32 exec_hi, 0')
        a('buffer_store_dword v58, v59, s[76:79], s32 offen sc1'); vq.push('lnst')
        a('s_mov_b64 exec, -1')
        if opt.get('fusefin'):
            make_srd(a, 76, 34, WS_FL, 112*128)
            a('s_lshl_b32 s32, s2, 7')
            a(f's_cmp_eq_u32 s{s_w}, 0'); a('s_cselect_b32 exec_lo, -1, 0'); a('s_mov_b32 exec_hi, 0')
            a('buffer_store_dword v58, v59, s[76:79], s32 offen sc1'); vq.push('lnst')
            a('s_mov_b64 exec, -1')
        a(f's_and_b32 s91, s{s_h}, 3'); a(f's_cmp_eq_u32 s{s_w}, 0'); a('s_cselect_b32 s91, s91, 0xff')
        npre = 8*opt.get('kvpre2', 3)
        for g in rest0[:npre]: KV.emit_group(g)
        KV.initial = rest0[npre:]
        a(f's_lshl_b32 s{s_t0}, s{s_h}, 6'); a(f's_lshl_b32 s{s_t1}, s{s_i}, 3'); a(f's_add_u32 s{s_t0}, s{s_t0}, s{s_t1}')
        a(f's_lshl_b32 s{s_t1}, s{s_w}, 1'); a(f's_add_u32 s{s_t0}, s{s_t0}, s{s_t1}'); a(f's_lshl_b32 s{s_t0}, s{s_t0}, 13')
        for k in range(4):
            a(f's_add_u32 s{50+k}, s{s_t0}, {k*4096}')
            a(f's_add_u32 s{96+k}, s{s_t0}, {16*MB + k*4096}')
        STF.st = opt.get('kvst', '')
        KG = frag_store_groups(P, 'K', 'v', S_O, 50, None, v_scale=2, tag='kst')
        VGs = frag_store_groups(P, 'V', 'a', S_O, 96, 40, tag='vst')
        STF.st = st_save
        nv = opt.get('vstages', 3); sigt = opt.get('sigt', nv+1)
        perV = len(VGs)//nv
        KV0 = self.kv_groups('K', 6); VV0 = self.kv_groups('V', 4)
        zero = [([f'v_accvgpr_write_b32 a{4*k+e}, 0' for e in range(4)], None) for k in range(32)]
        srds = self.kv_srd_lines()
        dbg = Asm(); make_srd(dbg, 76, 100, 0, 256)
        hfl = Asm(); make_srd(hfl, 92, 34, WS_HF, 4096)
        def lnsig(k): return (dbg.lines + ['v_mov_b32 v58, 0', 'v_mov_b32 v59, s33', f's_cmp_eq_u32 s91, {k}', 's_cselect_b64 exec, 1, 0',
               f'buffer_store_byte v59, v58, s[76:79], s2 offen sc1', 's_mov_b64 exec, -1'], 'flag')
        idaddr = [f'v_lshlrev_b32 v57, 1, v{V_L16}', f's_lshr_b32 s{s_t1}, s{s_h}, 2', f's_and_b32 s32, s{s_h}, 3', 's_lshl_b32 s32, s32, 3', f's_add_u32 s48, s32, s{s_t1}']
        idld = (dbg.lines + idaddr + ['buffer_load_ubyte v56, v57, s[76:79], s48 offen sc1'], 'id')
        sig = dbg.lines + hfl.lines + [f's_cmp_eq_u32 s{s_w}, 0', f's_cbranch_scc0 {N}_nosig', f's_mov_b32 s{s_cnt}, 0',
               f'{N}_idchk:',
               'v_readfirstlane_b32 s32, v56', 's_and_b32 s32, s32, 0x40', 's_cmp_lg_u32 s32, 0', f's_cbranch_scc1 {N}_idok',
               f's_add_u32 s{s_cnt}, s{s_cnt}, 1', f's_cmp_ge_u32 s{s_cnt}, 0x20000', f's_cbranch_scc1 {N}_idok',
               'buffer_load_ubyte v56, v57, s[76:79], s48 offen sc1', 's_waitcnt vmcnt(0)', 's_nop 0', f's_branch {N}_idchk',
               f'{N}_idok:',
               'v_cmp_ne_u32 vcc, s33, v56', 's_nop 3', 's_and_b32 s32, vcc_lo, 0xff', 's_cmp_eq_u32 s32, 0',
               f's_cbranch_scc1 {N}_samexcd', 'buffer_wbl2 sc1', 's_waitcnt vmcnt(0)', f'{N}_samexcd:',
               f's_lshl_b32 s32, s{s_h}, 7', f's_lshl_b32 s{s_t1}, s{s_i}, 2', f's_add_u32 s32, s32, s{s_t1}',
               'v_mov_b32 v41, 0', 'v_mov_b32 v42, 1', 's_mov_b64 exec, 1',
               'buffer_store_dword v42, v41, s[92:95], s32 offen sc1', 's_mov_b64 exec, -1', f'{N}_nosig:']
        pollld = ['buffer_load_dword v232, v233, s[76:79], 0 offen sc1', 'buffer_load_dword v235, v233, s[92:95], s91 offen sc1']
        pollpre = dbg.lines + hfl.lines + [f's_lshl_b32 s91, s{s_h}, 7', f'v_lshrrev_b32 v233, 2, v{V_L16}', 'v_mov_b32 v234, 0x40404040',
                   f's_cmp_eq_u32 s{s_w}, 0', f's_cbranch_scc0 {N}_nopoll0'] + pollld + [f'{N}_nopoll0:']
        initQ = [f's_lshl_b32 s{P.s_a0}, s36, 15', f's_lshl_b32 s{P.s_a1}, s37, 15',
                 f's_lshl_b32 s{P.s_wo}, s{s_w}, 17', f's_lshl_b32 s49, s{s_h}, 8', f's_add_u32 s{P.s_wo}, s{P.s_wo}, s49']
        qpass = [dict(swap=False, srdA=S_X, srdW=S_WQ, init=initQ, epi=lambda: None, acck='v')]
        Q0 = P.dma_stage(S_X, S_WQ, (0, 0), pre=initQ); Q1 = P.dma_stage(S_X, S_WQ, (0, 1)); Q2 = P.dma_stage(S_X, S_WQ, (0, 2))
        def pfw(srd_): return ([f'v_lshrrev_b32 v58, 5, v{V_L16}', 'v_lshlrev_b32 v58, 13, v58', f'v_bfe_u32 v59, v{V_L16}, 4, 1', 'v_lshl_add_u32 v58, v59, 7, v58',
               f's_lshl_b32 s32, s{s_w}, 4', f's_lshl_b32 s49, s{s_i}, 6', 's_add_u32 s32, s32, s49', 's_lshl_b32 s32, s32, 13',
               f's_lshl_b32 s49, s{s_h}, 8', 's_add_u32 s32, s32, s49', 's_mov_b32 exec_hi, 0',
               f'buffer_load_dword v253, v58, s[{srd_}:{srd_+3}], s32 offen', 's_mov_b64 exec, -1'], 'pf')
        def pf1():
            l = Asm(); make_srd(l, 76, 68, 0, 2048*3584)
            l(f'v_lshlrev_b32 v58, 3, v{V_L16}'); l('s_lshl_b32 s32, s2, 2'); l(f's_add_u32 s32, s32, s{s_w}'); l('s_mul_i32 s32, s32, 7168')
            l('buffer_load_dword v253, v58, s[76:79], s32 offen')
            return (l.lines, 'pf')
        kvpf = opt.get('kvpf', {7: 'q', 9: '1'})
        def kvx(t):
            early, late = [], []
            if 1 <= t <= 6: early += setupG[(t-1)*perS:t*perS]
            if 2 <= t <= 5: late += [lnsig(t-2)]
            if kvpf.get(t) == 'q': late += [pfw(S_WQ)]
            if kvpf.get(t) == '1': late += [pf1()]
            if t == 13: late += Q0[:4]
            if t == 14: early += Q0[4:]; late += Q1[:4]
            if t == 15: early += Q1[4:]; late += Q2[:3]
            return early, late
        def handover():
            return (0, 0), P.read_addr_update(), P.kstep_reads(0, 0)
        KV.start()
        self.stamp()
        KV.run(kvx, handover)
        P.lq = list(KV.lq); P.g_pending = Q2[3:]
        self.stamp()
        a('s_nop 7')
        for g in KG: P.emit_group(g)
        self.stamp()
        def xe(p, t):
            g = []
            if t < nv: g += VGs[t*perV:(t+1)*perV] + ([idld] if t == 0 else [])
            if t == nv: g += zero[:16]
            if t == nv+1: g += zero[16:]
            if t == 6: g += [(srds, None)]
            if t == 7: g += [(pollpre, None)]
            return g
        def xl(p, t):
            return [(sig, None)] if t == sigt else []
        assert sigt >= nv + 1 and sigt <= 6 and 48 % nv == 0
        P.run(qpass, extra_early=xe, extra_late=xl)
        self.stamp()
        self.q_to_frags_cvt()
        chk = ['s_waitcnt vmcnt(0)', 'v_and_b32 v232, v234, v232', 'v_cmp_ne_u32 vcc, v234, v232', 'v_cmp_ne_u32 s[54:55], 1, v235', 's_nop 3',
               's_and_b32 s32, s54, 0xff', 's_or_b32 s32, s32, vcc_lo', 's_or_b32 s32, s32, vcc_hi', 's_cmp_eq_u32 s32, 0']
        for l in [f's_cmp_eq_u32 s{s_w}, 0', f's_cbranch_scc0 {N}_polled', f's_mov_b32 s{s_cnt}, 0', f'{N}_poll:'] + chk + \
                 [f's_cbranch_scc1 {N}_polled', f's_add_u32 s{s_cnt}, s{s_cnt}, 1', f's_cmp_ge_u32 s{s_cnt}, 0x20000', f's_cbranch_scc1 {N}_polled',
                  ] + ([f's_sleep {opt.get("sleep", 0)}'] if opt.get("sleep", 0) else []) + pollld + [f's_branch {N}_poll', f'{N}_polled:']: a(l)
        a('s_barrier')
        for g in KV0 + VV0:
            for l in g[0]: a(l)
        self.stamp()
        self.q_to_frags_srd()
        return M
```

```python
from asmlib import *
from layout import *
from gen_proj2 import VmQueue, v
from gen_proj import make_srd
from gen_t2 import lane_setup, dma_voffs, MF

class Mlp1:
    S_W1, S_H, S_U, S_B1 = 4, 8, 8, 4
    s_w, s_fb, s_db, s_a, s_b, s_w8k = 20, 80, 81, 82, 83, 84
    P_W1, P_B1, P_WS = 68, 86, 34
    ACC = 64; FB = [128, 144]; V_RB = [8, 9]; V_RA = [10, 11]; V_AO = 12; V_BO = 16; VL = 4; V_L16 = 5; T = 20; V_BI = 40; V_W = 6; V_R = 7
    SLOTS = [131072, 0, 32768, 65536, 98304]
    NS, PD = 16, 5
    def __init__(self, a, tshift=0): self.a = a; self.tshift = tshift; self.final_wait = 0; self.defer = False; self.epi_first = False

    def ids(self):
        a = self.a
        a('s_lshr_b32 s27, s2, 3'); a('s_and_b32 s29, s2, 7')
        if self.tshift: a(f's_sub_u32 s27, s27, {self.tshift}'); a('s_max_i32 s27, s27, 0')
        a('s_lshr_b32 s30, s29, 1'); a('s_mul_i32 s30, s30, 7'); a('s_lshr_b32 s31, s27, 2'); a(f's_add_u32 s{self.s_fb}, s30, s31')
        a('s_and_b32 s30, s29, 1'); a('s_lshl_b32 s30, s30, 2'); a('s_and_b32 s31, s27, 3'); a(f's_add_u32 s{self.s_db}, s30, s31')
        a(f's_lshl_b32 s{self.s_w8k}, s{self.s_w}, 13')

    def l2_prefetch(self, vtmp):
        l = Asm()
        make_srd(l, 76, self.P_W1, 0, 2048*3584)
        l(f'v_mul_u32_u24 v{vtmp}, 224, v204')
        l(f's_and_b32 s27, s{self.s_db}, 3'); l('s_lshl_b32 s27, s27, 2'); l(f's_add_u32 s27, s27, s{self.s_w}'); l(f's_mul_i32 s27, s27, {128*3584}')
        l(f's_lshl_b32 s29, s{self.s_fb}, 7'); l('s_add_u32 s27, s27, s29'); l(f's_add_u32 s29, s27, {64*3584}')
        l(f'buffer_load_dword v253, v{vtmp}, s[76:79], s27 offen')
        l(f'buffer_load_dword v253, v{vtmp}, s[76:79], s29 offen')
        make_srd(l, 76, self.P_WS, WS_H, 2*MB)
        l(f'v_lshlrev_b32 v{vtmp+1}, 6, v204')
        l(f's_lshr_b32 s27, s2, 5'); l('s_mul_i32 s27, s27, 292'); l(f's_mul_i32 s29, s{self.s_w}, 73'); l('s_add_u32 s27, s27, s29'); l('s_lshl_b32 s27, s27, 10')
        l(f's_lshl_b32 s29, s{self.s_db}, 7'); l('s_add_u32 s27, s27, s29')
        l(f'buffer_load_dword v253, v{vtmp+1}, s[76:79], s27 offen')
        return l.lines

    def setup_lines(self):
        a = Asm(); T = self.T; VL = self.VL; w = self.s_w
        a('v_mbcnt_lo_u32_b32 v0, -1, 0'); a('v_mbcnt_hi_u32_b32 v0, -1, v0')
        lane_setup(a, VL, T)
        a(f'v_lshlrev_b32 v{self.V_L16}, 4, v{VL}')
        for t in range(2):
            X = T+5; dst = self.V_RB[t]
            a(f'v_mul_u32_u24 v{X}, 8, v{T}'); a(f'v_add_u32 v{X}, v{X}, v{T+1}'); a(f'v_lshlrev_b32 v{X}, 7, v{X}')
            a(f'v_xor_b32 v{dst}, {t}, v{T+4}'); a(f'v_lshl_add_u32 v{X}, v{dst}, 6, v{X}')
            a(f'v_lshl_add_u32 v{X}, v{T+2}, 5, v{X}'); a(f'v_lshl_add_u32 v{X}, v{T+3}, 3, v{X}')
            a(f'v_add_u32 v{dst}, s{self.s_w8k}, v{X}')
        a(f's_lshr_b32 s29, s{w}, 1'); a('s_lshl_b32 s29, s29, 5'); a(f's_lshl_b32 s30, s{self.s_fb}, 6'); a('s_add_u32 s29, s29, s30'); a('s_lshl_b32 s31, s29, 1')
        a(f'v_lshlrev_b32 v{self.V_BI+8}, 3, v{T}')
        dma_voffs(a, self.V_AO, VL, T, 3584, 29)
        dma_voffs(a, self.V_BO, VL, T, 1024, 29)
        a(f's_lshl_b32 s29, s{w}, 14'); a(f'v_add_u32 v{self.V_W}, s29, v{self.V_L16}')
        a(f's_lshl_b32 s29, s{w}, 12'); a(f'v_add_u32 v{self.V_R}, s29, v{self.V_L16}')
        make_srd(a, self.S_W1, self.P_W1, 0, 2048*3584); make_srd(a, self.S_B1, self.P_B1, 0, 3584)
        make_srd(a, self.S_H, self.P_WS, WS_H, 2*MB); make_srd(a, self.S_U, self.P_WS, WS_U, 16*112*1024)
        a(f's_mul_i32 s{self.s_a}, s{w}, {512*3584}'); a(f's_lshl_b32 s29, s{self.s_fb}, 7'); a(f's_add_u32 s{self.s_a}, s{self.s_a}, s29')
        a(f's_lshl_b32 s{self.s_b}, s{w}, 19'); a(f's_lshl_b32 s29, s{self.s_db}, 7'); a(f's_add_u32 s{self.s_b}, s{self.s_b}, s29')
        return a.lines

    def bias_loads(self):
        return [([f'buffer_load_dwordx2 {v(self.V_BI+2*jj,2)}, v{self.V_BI+8}, s[{self.S_B1}:{self.S_B1+3}], s31 offen offset:{16*jj}'], 'bias') for jj in range(4)]

    def dma(self, t):
        slot = self.SLOTS[t % self.PD]; g = []
        for (vo, srd_, so, step, off) in ((self.V_AO, self.S_W1, self.s_a, 32*3584, 0), (self.V_BO, self.S_H, self.s_b, 32*1024, 4096)):
            for j in range(4):
                l = []
                if j == 0: l += [f's_add_u32 m0, s{self.s_w8k}, {slot+off}', 's_nop 0']
                l.append(f'buffer_load_dwordx4 v{vo+j}, s[{srd_}:{srd_+3}], s{so} offen' + (f' offset:{j*1024}' if j else '') + ' lds')
                if j == 3: l.append(f's_add_u32 s{so}, s{so}, {step}')
                g.append((l, t))
        return g

    def addr(self, t):
        return [f'v_add_u32 v{self.V_RA[k]}, {self.SLOTS[t % self.PD]}, v{self.V_RB[k]}' for k in range(2)]
    def reads(self, ks, buf):
        F = self.FB[buf]; l = []
        for op, base in ((0, 0), (1, 4096)):
            for tl in range(2):
                r = F + 8*op + 4*tl
                l.append(f'ds_read_b64_tr_b16 {v(r,2)}, v{self.V_RA[tl]} offset:{ks*2048+base}')
                l.append(f'ds_read_b64_tr_b16 {v(r+2,2)}, v{self.V_RA[tl]} offset:{ks*2048+base+512}')
        return l
    def mfmas(self, buf, first):
        F = self.FB[buf]; l = []
        for ft in range(2):
            for dt in range(2):
                acc = v(self.ACC+16*(2*ft+dt), 16)
                l.append(f'{MF} {acc}, {v(F+4*ft,4)}, {v(F+8+4*dt,4)}, ' + ('0' if first else acc))
        return l

    def finish_pre(self):
        a = Asm(); T = self.T; w = self.s_w; L16 = 204
        V_W, V_R = self.V_W, self.V_R
        make_srd(a, self.S_B1, self.P_B1, 0, 3584); make_srd(a, self.S_U, self.P_WS, WS_U, 16*112*1024)
        a(f's_lshr_b32 s29, s{w}, 1'); a('s_lshl_b32 s29, s29, 5'); a(f's_lshl_b32 s30, s{self.s_fb}, 6'); a('s_add_u32 s29, s29, s30'); a('s_lshl_b32 s31, s29, 1')
        a(f'v_lshrrev_b32 v{T}, 9, v{L16}'); a(f'v_lshlrev_b32 v{self.V_BI+8}, 3, v{T}')
        a(f's_lshl_b32 s29, s{w}, 14'); a(f'v_add_u32 v{V_W}, s29, v{L16}')
        a(f's_lshl_b32 s29, s{w}, 12'); a(f'v_add_u32 v{V_R}, s29, v{L16}')
        a(f'v_mov_b32 v{self.V_BI+9}, 0xc0135761')
        lines = [('x', l) for l in a.lines]
        wr = []
        for t in range(4):
            for q in range(4):
                r = 128+16*t+4*q
                wr.append(f'ds_write_b128 v{V_W}, a[{r}:{r+3}] offset:{t*4096+q*1024}')
        self.pre_writes = wr
        return lines, self.bias_loads()

    def finish(self, vq, epiB, stamp, pre_done=False):
        a = self.a; T = self.T; w = self.s_w; L16 = 204
        V_W, V_R, DST = self.V_W, self.V_R, 64
        if not pre_done:
            lines, groups = self.finish_pre()
            for x in lines: a(x[1])
            for g in groups:
                for l in g[0]: a(l)
                vq.push(g[1])
        if self.epi_first:
            a('s_nop 7')
            epiB()
            for l in self.pre_writes: a(l)
        else:
            for l in self.pre_writes: a(l)
            epiB()
        stamp()
        a('s_waitcnt lgkmcnt(0)')
        a('s_barrier')
        for ww in range(4):
            for q in range(4):
                a(f'ds_read_b128 {v(DST+16*ww+4*q,4)}, v{V_R} offset:{ww*16384+q*1024}')
        vq.wait_for(a, 'bias')
        a('s_waitcnt lgkmcnt(0)')
        self.post(DST, L16)

    def post(self, DST, L16):
        a = self.a; T = self.T
        for e in range(16):
            a(f'v_add_f32 v{DST+e}, v{DST+e}, v{DST+16+e}')
            a(f'v_add_f32 v{DST+32+e}, v{DST+32+e}, v{DST+48+e}')
        for e in range(16): a(f'v_add_f32 v{DST+e}, v{DST+e}, v{DST+32+e}')
        for jj in range(4):
            b = self.V_BI+2*jj
            a(f'v_lshlrev_b32 v{T}, 16, v{b}'); a(f'v_and_b32 v{T+1}, 0xffff0000, v{b}')
            a(f'v_lshlrev_b32 v{T+2}, 16, v{b+1}'); a(f'v_and_b32 v{T+3}, 0xffff0000, v{b+1}')
            for r in range(4): a(f'v_add_f32 v{DST+4*jj+r}, v{DST+4*jj+r}, v{T+r}')
        K1, K2 = 0xc0135761, 0xbdd2d3e8
        a(f's_mov_b32 s29, {hex(K2)}')
        X = DST+16
        for e in range(16): a(f'v_mul_f32 v{X+e}, v{DST+e}, v{DST+e}')
        for e in range(16): a(f'v_fma_f32 v{X+16+e}, s29, v{X+e}, v{self.V_BI+9}')
        for e in range(16): a(f'v_mul_f32 v{X+e}, v{X+16+e}, v{DST+e}')
        for e in range(16): a(f'v_exp_f32 v{X+e}, v{X+e}')
        for e in range(16): a(f'v_add_f32 v{X+e}, 1.0, v{X+e}')
        for e in range(16): a(f'v_rcp_f32 v{X+e}, v{X+e}')
        w = self.s_w
        a(f's_and_b32 s29, s{w}, 1'); a(f's_lshl_b32 s30, s{self.s_db}, 1'); a('s_add_u32 s29, s29, s30'); a('s_mul_i32 s29, s29, 112')
        a(f's_lshr_b32 s30, s{w}, 1'); a('s_lshl_b32 s30, s30, 1'); a('s_add_u32 s29, s29, s30')
        a(f's_lshl_b32 s30, s{self.s_fb}, 2'); a('s_add_u32 s29, s29, s30'); a('s_lshl_b32 s29, s29, 10')
        for t in range(2):
            b = DST+8*t
            for e in range(8*t, 8*t+8): a(f'v_mul_f32 v{DST+e}, v{DST+e}, v{X+e}')
            for k in range(4): a(f'v_cvt_pk_bf16_f32 v{b+k}, v{b+2*k}, v{b+2*k+1}')
            if not self.defer: a(f'buffer_store_dwordx4 {v(b,4)}, v{L16}, s[{self.S_U}:{self.S_U+3}], s29 offen offset:{t*1024}{STF.st}')
        if self.defer: a('s_mov_b32 s61, s29')
        a(f's_waitcnt vmcnt({self.final_wait})')

    def main(self, vq):
        a = self.a; NS, PD, T = self.NS, self.PD, self.T
        def emit_g(g):
            for l in g[0]: a(l)
            vq.push(g[1])
        vq.wait_for(a, 0)
        for l in self.addr(0) + self.reads(0, 0): a(l)
        for t in range(NS):
            a('s_waitcnt lgkmcnt(0)')
            rd = self.reads(1, 1)
            for k, m in enumerate(self.mfmas(0, t == 0)):
                a(m)
                for l in rd[2*k:2*k+2]: a(l)
            a('s_waitcnt lgkmcnt(0)')
            rd = []
            if t+1 < NS:
                vq.wait_for(a, t+1)
                rd = self.addr(t+1) + self.reads(0, 0)
            gs = self.dma(t+PD) if t+PD < NS else []
            ml = self.mfmas(1, False)
            for k, m in enumerate(ml):
                a(m)
                for l in (rd[0:4] if k == 0 else rd[2+2*k:4+2*k]): a(l)
                for g in gs[2*k:2*k+2]: emit_g(g)
        a('s_barrier')
        a('s_nop 12')
        ACC, V_W, V_R, DST = self.ACC, self.V_W, self.V_R, 160
        for t in range(4):
            for q in range(4):
                a(f'ds_write_b128 v{V_W}, {v(ACC+16*t+4*q,4)} offset:{t*4096+q*1024}')
        a('s_waitcnt lgkmcnt(0)')
        a('s_barrier')
        for ww in range(4):
            for q in range(4):
                a(f'ds_read_b128 {v(DST+16*ww+4*q,4)}, v{V_R} offset:{ww*16384+q*1024}')
        a('s_waitcnt lgkmcnt(0)')
        for e in range(16):
            a(f'v_add_f32 v{DST+e}, v{DST+e}, v{DST+16+e}')
            a(f'v_add_f32 v{DST+32+e}, v{DST+32+e}, v{DST+48+e}')
        for e in range(16): a(f'v_add_f32 v{DST+e}, v{DST+e}, v{DST+32+e}')
        for jj in range(4):
            b = self.V_BI+2*jj
            a(f'v_lshlrev_b32 v{T}, 16, v{b}'); a(f'v_and_b32 v{T+1}, 0xffff0000, v{b}')
            a(f'v_lshlrev_b32 v{T+2}, 16, v{b+1}'); a(f'v_and_b32 v{T+3}, 0xffff0000, v{b+1}')
            for r in range(4): a(f'v_add_f32 v{DST+4*jj+r}, v{DST+4*jj+r}, v{T+r}')
        K1, K2 = 0xc0135761, 0xbdd2d3e8
        a(f's_mov_b32 s29, {hex(K2)}')
        X = DST+16
        for e in range(16): a(f'v_mul_f32 v{X+e}, v{DST+e}, v{DST+e}')
        for e in range(16): a(f'v_mov_b32 v{X+16+e}, {hex(K1)}')
        for e in range(16): a(f'v_fmac_f32 v{X+16+e}, s29, v{X+e}')
        for e in range(16): a(f'v_mul_f32 v{X+e}, v{X+16+e}, v{DST+e}')
        for e in range(16): a(f'v_exp_f32 v{X+e}, v{X+e}')
        for e in range(16): a(f'v_add_f32 v{X+e}, 1.0, v{X+e}')
        for e in range(16): a(f'v_rcp_f32 v{X+e}, v{X+e}')
        for e in range(16): a(f'v_mul_f32 v{DST+e}, v{DST+e}, v{X+e}')
        w = self.s_w
        a(f's_and_b32 s29, s{w}, 1'); a(f's_lshl_b32 s30, s{self.s_db}, 1'); a('s_add_u32 s29, s29, s30'); a('s_mul_i32 s29, s29, 112')
        a(f's_lshr_b32 s30, s{w}, 1'); a('s_lshl_b32 s30, s30, 1'); a('s_add_u32 s29, s29, s30')
        a(f's_lshl_b32 s30, s{self.s_fb}, 2'); a('s_add_u32 s29, s29, s30'); a('s_lshl_b32 s29, s29, 10')
        for t in range(2):
            b = DST+8*t
            for k in range(4): a(f'v_cvt_pk_bf16_f32 v{b+k}, v{b+2*k}, v{b+2*k+1}')
            a(f'buffer_store_dwordx4 {v(b,4)}, v{self.V_L16}, s[{self.S_U}:{self.S_U+3}], s29 offen offset:{t*1024}{STF.st}')
        a('s_waitcnt vmcnt(0)')
```

```python
import sys, os
from asmlib import *
from layout import *
import gen_proj, gen_proj2, gen_attn, gen_attn2, gen_t2, gen_final, gen_main

NAME = 'gated_mix__compressed_kv_cla__mixer_token_mlp__prompt'
def build(path, **opt):
    if opt.get('v', 4) == 4: return build4(path, **opt)
    if opt.get('v', 4) == 3: return build3(path, **opt)
    if opt.get('v', 4) == 2: return build2(path, **opt)
    ref = open(f'cdna_kernels/{NAME}.s.ref').read().split('\n')
    a = Asm()
    for l in ref:
        if l.startswith('; Override launch') : break
        a(l)
    a('; @launch kernel=proj_kernel grid=(256,1,1) block=(256,1,1) lds=147456')
    a('; @launch kernel=attn_kernel grid=(256,1,1) block=(256,1,1) lds=131072')
    a('; @launch kernel=mlp1_kernel grid=(256,1,1) block=(256,1,1) lds=131072')
    a('; @launch kernel=final_kernel grid=(256,1,1) block=(256,1,1) lds=131072')
    a('.amdgcn_target "amdgcn-amd-amdhsa--gfx950"')
    kernel_header(a, 'proj_kernel'); gen_proj.emit_l1(a, 'l1', **opt.get('l1', {}))
    kernel_header(a, 'attn_kernel'); g = gen_attn.Attn(a, 'attn'); g.emit()
    kernel_header(a, 'mlp1_kernel'); gen_t2.emit_mlp1(a, 'mlp1')
    kernel_header(a, 'final_kernel'); gen_t2.emit_l3(a, 'l3', PD=opt.get('l3pd', 7), **opt.get('l3', {}))
    kernel_desc(a, 'proj_kernel', vgpr=256, accum=256)
    kernel_desc(a, 'attn_kernel', vgpr=512, accum=256)
    kernel_desc(a, 'mlp1_kernel', vgpr=256, accum=256)
    kernel_desc(a, 'final_kernel', vgpr=(384 if opt.get('l3', {}).get('agpr', True) else 256), accum=256)
    open(path, 'w').write(a.text())
def build2(path, **opt):
    STF.st = opt.get('stf', '')
    ref = open(f'cdna_kernels/{NAME}.s.ref').read().split('\n')
    a = Asm()
    for l in ref:
        if l.startswith('; Override launch') : break
        a(l)
    a('; @launch kernel=proj_kernel grid=(256,1,1) block=(256,1,1) lds=147456')
    a('; @launch kernel=attn_kernel grid=(256,1,1) block=(256,1,1) lds=163840')
    a('; @launch kernel=final_kernel grid=(256,1,1) block=(256,1,1) lds=131072')
    a('.amdgcn_target "amdgcn-amd-amdhsa--gfx950"')
    kernel_header(a, 'proj_kernel'); gen_proj2.emit_l1(a, 'l1', **opt.get('l1', {}))
    kernel_header(a, 'attn_kernel'); g = gen_attn2.Attn(a, 'attn', **opt.get('attn', {})); g.emit()
    kernel_header(a, 'final_kernel')
    if opt.get('fin', 2) == 2: gen_final.emit_final(a, 'fin', **opt.get('l3', {}))
    else: gen_t2.emit_l3(a, 'l3', PD=opt.get('l3pd', 4), **opt.get('l3', {'agpr': False}))
    kernel_desc(a, 'proj_kernel', vgpr=448, accum=256)
    kernel_desc(a, 'attn_kernel', vgpr=512, accum=256)
    kernel_desc(a, 'final_kernel', vgpr=256, accum=256)
    open(path, 'w').write(a.text())
def build3(path, **opt):
    STF.st = opt.get('stf', ' sc1')
    ref = open(f'cdna_kernels/{NAME}.s.ref').read().split('\n')
    a = Asm()
    for l in ref:
        if l.startswith('; Override launch') : break
        a(l)
    a('; @launch kernel=main_kernel grid=(256,1,1) block=(256,1,1) lds=163840')
    a('; @launch kernel=final_kernel grid=(256,1,1) block=(256,1,1) lds=131072')
    a('.amdgcn_target "amdgcn-amd-amdhsa--gfx950"')
    ao = dict(opt.get('attn', {})); ao.setdefault('stagestamps', False); ao.setdefault('nt', False); ao.setdefault('vstages', 2); ao.setdefault('pfa', ''); ao.setdefault('pflate', {(0,1):'v',(1,1):'q',(0,6):'1'})
    kernel_header(a, 'main_kernel'); g = (gen_main.Main2 if opt.get('kv1', False) else gen_main.Main)(a, 'attn', **ao); g.emit()
    kernel_header(a, 'final_kernel'); gen_final.emit_final(a, 'fin', **opt.get('l3', {}))
    kernel_desc(a, 'main_kernel', vgpr=512, accum=256)
    kernel_desc(a, 'final_kernel', vgpr=256, accum=256)
    open(path, 'w').write(a.text())
HEADER = """
One launch, 256 co-resident workgroups (one per CU, 4 waves, 512 registers per wave, 160 KB LDS). Generated by my own scripts.
Workgroup wg: x = wg & 7, t = wg >> 3, head h = 4x + (t & 3), i = t >> 2.
Phase A  LayerNorm + gate for rows 8wg..8wg+7; K (pre-scaled by log2(e)/sqrt(128)) and V projections of row block i for head h,
         stored in MFMA-fragment order in d_ws; Q projection of the q-blocks i and 15-i (128 rows each) kept in registers.
Phase B  causal attention, S^T = K Q^T and O^T = V^T P^T with 32x32x16 bf16 MFMAs, K/V streamed through LDS rings by LDS-DMA.
         Softmax subtracts a per-row reference maximum (never above the true running maximum): the true maximum of the first kv
         block; every block sum is checked at run time and, once it exceeds 2^30, the block's true maximum is computed, becomes the
         new reference, O and l are rescaled and the block's probabilities are recomputed.  One k-step of the token-MLP first GEMM
         (64x64 tile, gelu at the end) rides in every attention step.
Phase C  128x128 output tiles, K split over 4 workgroups: out-projection + token-MLP second GEMM, gated mix, bf16 partial tiles
         exchanged through d_ws.
Hand-offs between workgroups: flag bytes in d_debug (zero at launch) and flag lines in d_ws that are zeroed inside the launch;
write-through stores + drained counters before every flag; K/V stay in the XCD's L2 when all readers of a head share the XCD
(checked at run time from the XCC ids), otherwise the L2 is written back first.  Every spin is bounded.
Most of the code runs once per launch, so each wave first touches a few 128-byte lines of the kernel's own code (loads only, values
unused) to have the instructions in the XCD's L2; weights of later phases are touched ahead of their use in the same way.
"""

def build4(path, **opt):
    STF.st = opt.get('stf', ' sc1')
    ref = open(f'cdna_kernels/{NAME}.s.ref').read().split('\n')
    a = Asm()
    for l in ref:
        if l.startswith('; Override launch') : break
        a(l)
    for l in HEADER.strip().split('\n'): a('; ' + l)
    a('; @launch grid=(256,1,1) block=(256,1,1) lds=163840')
    a('.amdgcn_target "amdgcn-amd-amdhsa--gfx950"')
    ao = dict(opt.get('attn', {})); ao.setdefault('stagestamps', False); ao.setdefault('nt', False); ao.setdefault('vstages', 2); ao.setdefault('pfa', ''); ao.setdefault('pflate', {}); ao.setdefault('stagv', ('s',0,1)); ao.setdefault('stagq', ('s',1,0)); ao.setdefault('dmac', 12); ao.setdefault('place', True); ao.setdefault('spread', True); ao.setdefault('dfirst', True)
    ao['fusefin'] = True; ao['l3'] = opt.get('l3', {})
    K = NAME + '_kernel'
    kernel_header(a, K); g = (gen_main.Main2 if opt.get('kv1', False) else gen_main.Main)(a, 'attn', **ao); g.emit()
    kernel_desc(a, K, vgpr=512, accum=256)
    open(path, 'w').write(a.text())
if __name__ == '__main__':
    opt = eval(sys.argv[2]) if len(sys.argv) > 2 else {}
    build(sys.argv[1] if len(sys.argv) > 1 else f'cdna_kernels/{NAME}.s', **opt)
```

```python
from asmlib import *
from layout import *
from gen_proj2 import VmQueue, v, ar
from gen_proj import make_srd

MF = 'v_mfma_f32_32x32x16_bf16'
NY, NO = 7, 16
NS = NY + NO
SLOT = 32768

def final_pointer_loads(a):
    a(f's_load_dwordx2 s[64:65], s[0:1], {KA_WO}')
    a(f's_load_dwordx4 s[68:71], s[0:1], {KA_W2}')
    a(f's_load_dwordx4 s[72:75], s[0:1], {KA_OUT}')

def emit_final(a, N='fin', NSL=4, inline=False, sync=None, stamps=None, **opt):
    S_WO, S_W2, S_CTX, S_U, S_G, S_B2, S_OUT, S_P, S_D = 4, 8, 12, 16, 24, 28, 32, 36, 56
    s_w, s_sb, s_mb, s_p = 20, 21, 22, 23
    s_sl, s_fr = 40, 41
    s_fill, s_rd, s_w4k, s_t, s_t1, s_t2, s_tile = 42, 43, 44, 45, 46, 47, 48
    ACCY, ACCO = 64, 128; FB = [192, 212]
    VL = 1; V_L16 = 2; T = 32
    V_TB = 8
    V_TA = 16
    V_LA = 21
    V_WO = 24; V_W2 = 28
    V_G = 40; V_B2 = 41; V_OA = 42; V_1G = 43
    st_ = stamps if inline else (RTStamps if opt.get('rt') else Stamps)(a, opt.get('diag'))
    if not inline:
        a('s_cmp_ge_u32 s2, 256')
        a(f's_cbranch_scc1 {N}_end')
    if inline:
        a('s_mov_b64 s[76:77], s[34:35]')
    else:
        final_pointer_loads(a)
        a(f's_load_dwordx2 s[76:77], s[0:1], {KA_WS}')
    if inline:
        a(f'v_mbcnt_lo_u32_b32 v{VL}, -1, 0'); a(f'v_mbcnt_hi_u32_b32 v{VL}, -1, v{VL}')
        a(f's_and_b32 s{s_t}, s2, 7')
    else:
        a('v_lshrrev_b32 v3, 6, v0')
        a(f'v_and_b32 v{VL}, 63, v0')
        a(f's_and_b32 s{s_t}, s2, 7')
        a(f'v_readfirstlane_b32 s{s_w}, v3')
    a(f's_lshr_b32 s{s_t1}, s2, 3')
    a(f's_lshr_b32 s{s_p}, s{s_t}, 1')
    a(f's_and_b32 s{s_t}, s{s_t}, 1'); a(f's_lshl_b32 s{s_t}, s{s_t}, 3'); a(f's_lshr_b32 s{s_t2}, s{s_t1}, 2'); a(f's_add_u32 s{s_sb}, s{s_t}, s{s_t2}')
    a(f's_and_b32 s{s_mb}, s{s_t1}, 3')
    a(f's_lshl_b32 s{s_tile}, s{s_sb}, 2'); a(f's_add_u32 s{s_tile}, s{s_tile}, s{s_mb}')
    st_('start')
    a(f'v_lshlrev_b32 v{V_L16}, 4, v{VL}')
    a(f's_lshl_b32 s{s_w4k}, s{s_w}, 12')
    a(f's_mov_b32 s{s_fill}, 0'); a(f's_mov_b32 s{s_rd}, 0')
    a(f'v_lshrrev_b32 v{T}, 4, v{VL}')
    a(f'v_bfe_u32 v{T+1}, v{VL}, 2, 2')
    a(f'v_xor_b32 v{T+1}, v{T+1}, v{T}')
    a(f'v_lshlrev_b32 v{T+1}, 6, v{T+1}')
    a(f'v_and_b32 v{T+2}, 3, v{VL}')
    a(f'v_lshl_add_u32 v{T+1}, v{T+2}, 4, v{T+1}')
    a(f'v_lshl_add_u32 v{T+3}, v{T}, 12, v{T+1}')
    a(f'v_lshl_add_u32 v{T+4}, v{T}, 10, v{T+1}')
    for j in range(4):
        a(f'v_add_u32 v{V_W2+j}, {j*(4*4096-1024)}, v{T+3}')
        a(f'v_add_u32 v{V_WO+j}, {j*(4*1024-1024)}, v{T+4}')
    a(f'v_lshrrev_b32 v{T}, 5, v{VL}')
    a(f'v_bfe_u32 v{T+1}, v{VL}, 2, 2')
    a(f'v_lshl_add_u32 v{T+2}, v{T}, 2, v{T+1}')
    a(f'v_lshlrev_b32 v{T+2}, 8, v{T+2}')
    a(f'v_bfe_u32 v{T+3}, v{VL}, 4, 1')
    a(f'v_lshl_add_u32 v{T+2}, v{T+3}, 5, v{T+2}')
    a(f'v_and_b32 v{T+3}, 3, v{VL}')
    a(f'v_lshl_add_u32 v{T+2}, v{T+3}, 3, v{T+2}')
    for tl in range(4):
        a(f'v_xor_b32 v{T+3}, {tl}, v{T+1}')
        a(f'v_lshl_add_u32 v{V_TB+tl}, v{T+3}, 6, v{T+2}')
    a(f'v_xor_b32 v{T+3}, s{s_w}, v{T+1}')
    a(f'v_lshl_add_u32 v{V_TB+4}, v{T+3}, 6, v{T+2}')
    a(f'v_and_b32 v{T+4}, 31, v{VL}')
    a(f'v_lshlrev_b32 v{T+5}, 2, v{T+4}')
    a(f'v_lshlrev_b32 v{T+6}, 1, v{T+4}')
    a(f'v_lshlrev_b32 v{V_OA}, 10, v{T+4}')
    a(f'v_lshl_add_u32 v{V_OA}, v{T}, 4, v{V_OA}')
    a('s_waitcnt lgkmcnt(0)')
    make_srd(a, S_WO, 64, 0, 4*MB); make_srd(a, S_W2, 68, 0, 1792*4096); make_srd(a, S_B2, 70, 0, 4096)
    make_srd(a, S_OUT, 72, 0, 2*MB)
    make_srd(a, S_CTX, 76, WS_CTX, 16*MB); make_srd(a, S_U, 76, WS_U, 16*112*1024); make_srd(a, S_G, 76, WS_G, 8192)
    make_srd(a, S_P, 76, WS_PART, 16*MB)
    vq = VmQueue()
    a(f's_lshl_b32 s{s_t}, s{s_sb}, 2'); a(f's_add_u32 s{s_t}, s{s_t}, s{s_w}')
    a(f's_lshl_b32 s{s_t1}, s{s_t}, 7'); a(f's_lshl_b32 s{s_t2}, s{s_t}, 6')
    a(f'buffer_load_dword v{V_G}, v{T+5}, s[{S_G}:{S_G+3}], s{s_t1} offen'); vq.push('g')
    a(f'buffer_load_ushort v{V_B2}, v{T+6}, s[{S_B2}:{S_B2+3}], s{s_t2} offen'); vq.push('g')

    if opt.get('tlb', False):
        a(f'v_mov_b32 v3, 0')
        a(f's_lshl_b32 s{s_t}, s{s_tile}, 17'); a(f's_mul_i32 s{s_t1}, s{s_p}, {32768+8192}'); a(f's_add_u32 s{s_t}, s{s_t}, s{s_t1}')
        a(f'buffer_load_dword v6, v3, s[{S_P}:{S_P+3}], s{s_t} offen sc1'); vq.push('g')
        a(f's_lshl_b32 s{s_t}, s{s_sb}, 17')
        a(f'buffer_load_dword v6, v3, s[{S_OUT}:{S_OUT+3}], s{s_t} offen sc1'); vq.push('g')

    ofirst = inline and opt.get('ofirst', True)
    tY, tO = (NO, 0) if ofirst else (0, NY)
    def part(t):
        if ofirst: return ('O', t) if t < NO else ('Y', t-NO)
        return ('Y', t) if t < NY else ('O', t-NY)
    def switch(t):
        if t == tY:
            return [f's_mul_i32 s{s_sl}, s{s_p}, {448*4096}', f's_lshl_b32 s{s_t}, s{s_w}, 16', f's_add_u32 s{s_sl}, s{s_sl}, s{s_t}',
                    f's_lshl_b32 s{s_t}, s{s_sb}, 8', f's_add_u32 s{s_sl}, s{s_sl}, s{s_t}',
                    f's_lshl_b32 s{s_t}, s{s_mb}, 2', f's_add_u32 s{s_t}, s{s_t}, s{s_w}', f's_mul_i32 s{s_fr}, s{s_t}, {112*1024}',
                    f's_mul_i32 s{s_t}, s{s_p}, {28*1024}', f's_add_u32 s{s_fr}, s{s_fr}, s{s_t}']
        if t == tO:
            return [f's_lshl_b32 s{s_sl}, s{s_p}, 20', f's_lshl_b32 s{s_t}, s{s_w}, 14', f's_add_u32 s{s_sl}, s{s_sl}, s{s_t}',
                    f's_lshl_b32 s{s_t}, s{s_mb}, 8', f's_add_u32 s{s_sl}, s{s_sl}, s{s_t}',
                    f's_lshl_b32 s{s_t}, s{s_sb}, 2', f's_add_u32 s{s_t}, s{s_t}, s{s_w}', f's_lshl_b32 s{s_fr}, s{s_t}, 18',
                    f's_lshl_b32 s{s_t}, s{s_p}, 16', f's_add_u32 s{s_fr}, s{s_fr}, s{s_t}']
        return []
    def adv(s): return [f's_add_u32 s{s}, s{s}, {SLOT}', f's_cmp_ge_u32 s{s}, {NSL*SLOT}', f's_cselect_b32 s{s}, 0, s{s}']
    def loads(t):
        p, _ = part(t)
        srdS, vo, step = (S_W2, V_W2, 64*4096) if p == 'Y' else (S_WO, V_WO, 64*1024)
        srdF = S_U if p == 'Y' else S_CTX
        g = []
        for j in range(4):
            l = []
            if j == 0: l += switch(t) + [f's_add_u32 s{s_t2}, s{s_fill}, s{s_w4k}', f's_mov_b32 m0, s{s_t2}', 's_nop 0']
            l.append(f'buffer_load_dwordx4 v{vo+j}, s[{srdS}:{srdS+3}], s{s_sl} offen' + (f' offset:{j*1024}' if j else '') + ' lds')
            if j == 3: l.append(f's_add_u32 s{s_sl}, s{s_sl}, {step}')
            g.append((l, t))
        for j in range(4):
            l = []
            if j == 0: l += [f's_add_u32 m0, s{s_t2}, 16384', 's_nop 0']
            l.append(f'buffer_load_dwordx4 v{V_L16}, s[{srdF}:{srdF+3}], s{s_fr} offen' + (f' offset:{j*1024}' if j else '') + ' lds')
            if j == 3: l += [f's_add_u32 s{s_fr}, s{s_fr}, 4096'] + adv(s_fill)
            g.append((l, t))
        return g
    def emit_g(g):
        for l in g[0]: a(l)
        vq.push(g[1])
    def addr_update():
        l = [f'v_add_u32 v{V_TA+k}, s{s_rd}, v{V_TB+k}' for k in range(5)]
        l.append(f'v_add_u32 v{V_LA}, s{s_rd}, v{V_L16}')
        return l + adv(s_rd)
    def reads(t, ks, buf):
        p, _ = part(t); F = FB[buf]; l = []
        if p == 'O':
            l.append(f's_nop 0' if False else f'ds_read_b128 {v(F+16,4)}, v{V_LA+1} offset:{ks*1024}')
            for mt in range(4):
                l.append(f'ds_read_b64_tr_b16 {v(F+4*mt,2)}, v{V_TA+mt} offset:{ks*4096}')
                l.append(f'ds_read_b64_tr_b16 {v(F+4*mt+2,2)}, v{V_TA+mt} offset:{ks*4096+2048}')
        else:
            l.append(f'ds_read_b64_tr_b16 {v(F+16,2)}, v{V_TA+4} offset:{ks*4096}')
            l.append(f'ds_read_b64_tr_b16 {v(F+18,2)}, v{V_TA+4} offset:{ks*4096+2048}')
            for mt in range(4):
                l.append(f'ds_read_b128 {v(F+4*mt,4)}, v{V_LA} offset:{16384+mt*4096+ks*1024}')
        return l
    def addr_update2():
        return [f's_add_u32 s{s_t1}, s{s_w4k}, 16384', f's_add_u32 s{s_t1}, s{s_t1}, s{s_rd}', f'v_add_u32 v{V_LA+1}, s{s_t1}, v{V_L16}']
    def mfmas(t, ks, buf):
        p, tt = part(t); F = FB[buf]; first = tt == 0 and ks == 0
        A0 = ACCY if p == 'Y' else ACCO
        return [f'{MF} {v(A0+16*mt,16)}, {v(F+4*mt,4)}, {v(F+16,4)}, ' + ('0' if first else v(A0+16*mt,16)) for mt in range(4)]

    if sync:
        for l in switch(0): a(l)
        sS, vS, stepS, sF = (S_WO, V_WO, 64*1024, S_CTX) if ofirst else (S_W2, V_W2, 64*4096, S_U)
        for t in range(NSL-1):
            a(f's_add_u32 m0, s{s_w4k}, {t*SLOT}'); a('s_nop 0')
            for j in range(4):
                a(f'buffer_load_dwordx4 v{vS+j}, s[{sS}:{sS+3}], s{s_sl} offen' + (f' offset:{j*1024}' if j else '') + ' lds'); vq.push(t)
            a(f's_add_u32 s{s_sl}, s{s_sl}, {stepS}')
        sync(s_sb, s_mb, s_p, s_tile, ofirst)
        for t in range(NSL-1):
            a(f's_add_u32 m0, s{s_w4k}, {t*SLOT+16384}'); a('s_nop 0')
            for j in range(4):
                a(f'buffer_load_dwordx4 v{V_L16}, s[{sF}:{sF+3}], s{s_fr} offen' + (f' offset:{j*1024}' if j else '') + ' lds'); vq.push(t)
            a(f's_add_u32 s{s_fr}, s{s_fr}, 4096')
        a(f's_mov_b32 s{s_fill}, {(NSL-1)*SLOT}')
    else:
        for t in range(NSL-1):
            for g in loads(t): emit_g(g)
    vq.wait_for(a, 0)
    a('s_barrier')
    udefer = ofirst and opt.get('udefer', True)
    def uflag():
        a('v_mov_b32 v46, 0'); a('v_mov_b32 v47, 1')
        a(f's_cmp_eq_u32 s{s_w}, 0'); a('s_cselect_b64 exec, 1, 0')
        a('buffer_store_dword v47, v46, s[56:59], s60 offen sc1'); vq.push('uflag')
        a('s_mov_b64 exec, -1')
    if ofirst and not udefer:
        a('v_mov_b32 v46, 0'); a('v_mov_b32 v47, 1')
        a(f's_cmp_eq_u32 s{s_w}, 0'); a('s_cselect_b64 exec, 1, 0')
        a('buffer_store_dword v47, v46, s[56:59], s60 offen sc1'); vq.push('uflag')
        a('s_mov_b64 exec, -1')
    for l in addr_update2() + addr_update() + reads(0, 0, 0): a(l)
    if not opt.get('rt'): st_('go')
    for t in range(NS):
        tn = t + NSL - 1
        if udefer and t == 1:
            for q in range(2):
                a(f'buffer_store_dwordx4 v[{64+8*q}:{67+8*q}], v{V_L16}, s[{S_U}:{S_U+3}], s61 offen offset:{q*1024} sc1'); vq.push('ust')
        if udefer and t == 5: uflag()
        if ofirst and t == NO - NSL - 2:
            a('buffer_load_dword v44, v45, s[56:59], 0 offen sc1'); vq.push('uf')
        if ofirst and tn == NO:
            vq.wait_for(a, 'uf')
            a('s_mov_b32 s49, 0')
            a.label(f'{N}_upoll')
            a('v_cmp_ne_u32 vcc, 1, v44'); a('s_nop 3'); a('s_and_b32 s50, vcc_lo, 0x7fff00'); a('s_cmp_eq_u32 s50, 0')
            a(f's_cbranch_scc1 {N}_upolled')
            a('s_add_u32 s49, s49, 1'); a('s_cmp_ge_u32 s49, 0x20000'); a(f's_cbranch_scc1 {N}_upolled')
            a('buffer_load_dword v44, v45, s[56:59], 0 offen sc1'); a('s_waitcnt vmcnt(0)'); a(f's_branch {N}_upoll')
            a.label(f'{N}_upolled')
        gs = loads(tn) if tn < NS else []
        if not opt.get('rt') and not opt.get('nostage'): st_(f's{t}')
        for ks in range(4):
            buf = ks & 1
            a('s_waitcnt lgkmcnt(0)')
            pre = []
            if ks == 3 and t+1 < NS:
                vq.wait_for(a, t+1)
                a('s_barrier')
                pre = addr_update2() + addr_update()
            mf = mfmas(t, ks, buf)
            if ks < 3: rd = reads(t, ks+1, buf ^ 1)
            elif t+1 < NS: rd = reads(t+1, 0, buf ^ 1)
            else: rd = []
            n = len(rd); per = -(-n // 3)
            for k, m in enumerate(mf):
                a(m)
                if k == 0:
                    for l in pre: a(l)
                for l in rd[per*k:per*(k+1)]: a(l)
                if ofirst and opt.get('gearly', False) and t == NO+1:
                    for e in range(4): a(f'v_mul_f32 v{ACCO+4*(4*ks+k)+e}, v{ACCO+4*(4*ks+k)+e}, v{V_G}')
                if ks < 3 and gs and ((ks*4+k) % 3 != 2):
                    emit_g(gs.pop(0))
        assert not gs
    st_('loopend')
    a(f'v_sub_f32 v{V_1G}, 1.0, v{V_G}')
    a(f's_lshl_b32 s{s_t}, s{s_tile}, 17')
    a(f's_lshl_b32 s{s_t1}, s{s_p}, 13'); a(f's_lshl_b32 s{s_t2}, s{s_w}, 11'); a(f's_add_u32 s{s_t1}, s{s_t1}, s{s_t2}'); a(f's_add_u32 s{s_t1}, s{s_t1}, s{s_t}')
    a('s_nop 4')
    OWN = 192
    for mt in range(4):
        o = ACCO+16*mt; y = ACCY+16*mt
        if not (ofirst and opt.get('gearly', False)):
            for e in range(16): a(f'v_mul_f32 v{o+e}, v{o+e}, v{V_G}')
        for e in range(16): a(f'v_fmac_f32 v{o+e}, v{y+e}, v{V_1G}')
        a(f's_cmp_eq_u32 s{s_p}, {mt}')
        a(f's_cbranch_scc1 {N}_own{mt}')
        a(f's_add_u32 s{s_t2}, s{s_t1}, {mt*32768}')
        for k in range(8): a(f'v_cvt_pk_bf16_f32 v{o+k}, v{o+2*k}, v{o+2*k+1}')
        for q in range(2):
            a(f'buffer_store_dwordx4 {v(o+4*q,4)}, v{V_L16}, s[{S_P}:{S_P+3}], s{s_t2} offen offset:{q*1024} sc1')
        a(f's_branch {N}_next{mt}')
        a.label(f'{N}_own{mt}')
        for e in range(16): a(f'v_mov_b32 v{OWN+e}, v{o+e}')
        a.label(f'{N}_next{mt}')
    if not opt.get('rt'): st_('published')
    a(f's_lshl_b32 s{s_t}, s{s_tile}, 17'); a(f's_lshl_b32 s{s_t1}, s{s_p}, 15'); a(f's_add_u32 s{s_t}, s{s_t}, s{s_t1}')
    a(f's_lshl_b32 s{s_t1}, s{s_w}, 11'); a(f's_add_u32 s{s_t}, s{s_t}, s{s_t1}')
    for k in range(1, 4):
        a(f's_add_u32 s{s_t1}, s{s_p}, {k}'); a(f's_and_b32 s{s_t1}, s{s_t1}, 3'); a(f's_lshl_b32 s{s_t1}, s{s_t1}, 13'); a(f's_add_u32 s{50+k}, s{s_t1}, s{s_t}')
    a('s_mov_b32 s54, 0')
    a.label(f'{N}_poll')
    for k in range(1, 4):
        for q in range(2):
            a(f'buffer_load_dwordx4 {v(ACCY+8*k+4*q,4)}, v{V_L16}, s[{S_P}:{S_P+3}], s{50+k} offen offset:{q*1024} sc1')
    a('s_add_u32 s54, s54, 1')
    a('s_waitcnt vmcnt(0)')
    R0 = ACCY+8
    a(f'v_max3_u32 v{T}, v{R0}, v{R0+1}, v{R0+2}')
    for k in range(3, 23, 2): a(f'v_max3_u32 v{T}, v{T}, v{R0+k}, v{R0+k+1}')
    a(f'v_max_u32 v{T}, v{T}, v{R0+23}')
    a(f'v_cmp_eq_u32 vcc, -1, v{T}')
    a('s_cmp_ge_u32 s54, 0x20000')
    a(f's_cbranch_scc1 {N}_poll_end')
    a(f's_cbranch_vccnz {N}_poll')
    a.label(f'{N}_poll_end')
    st_('gathered')
    a(f'v_lshlrev_b32 v{V_B2}, 16, v{V_B2}')
    a(f'v_mul_f32 v{V_B2}, v{V_B2}, v{V_1G}')
    D = OWN
    for e in range(16): a(f'v_add_f32 v{D+e}, v{D+e}, v{V_B2}')
    for k in range(1, 4):
        for q in range(8):
            r = ACCY+8*k+q
            a(f'v_lshlrev_b32 v{T}, 16, v{r}'); a(f'v_and_b32 v{T+1}, 0xffff0000, v{r}')
            a(f'v_add_f32 v{D+2*q}, v{D+2*q}, v{T}'); a(f'v_add_f32 v{D+2*q+1}, v{D+2*q+1}, v{T+1}')
    X = ACCO
    for jj in range(4):
        a(f'v_cvt_pk_bf16_f32 v{X+2*jj}, v{D+4*jj}, v{D+4*jj+1}')
        a(f'v_cvt_pk_bf16_f32 v{X+2*jj+1}, v{D+4*jj+2}, v{D+4*jj+3}')
    a(f's_lshl_b32 s{s_t}, s{s_sb}, 17'); a(f's_lshl_b32 s{s_t1}, s{s_w}, 15'); a(f's_add_u32 s{s_t}, s{s_t}, s{s_t1}')
    a(f's_lshl_b32 s{s_t1}, s{s_mb}, 8'); a(f's_add_u32 s{s_t}, s{s_t}, s{s_t1}')
    a(f's_lshl_b32 s{s_t1}, s{s_p}, 6'); a(f's_add_u32 s{s_t}, s{s_t}, s{s_t1}')
    for pr in range(2):
        b = X+4*pr
        a(f'v_permlane32_swap_b32 v{b}, v{b+2}')
        a(f'v_permlane32_swap_b32 v{b+1}, v{b+3}')
        a('s_nop 1')
        a(f'buffer_store_dwordx4 {v(b,4)}, v{V_OA}, s[{S_OUT}:{S_OUT+3}], s{s_t} offen offset:{32*pr}')
    a('s_waitcnt vmcnt(0)')
    st_('end')
    if opt.get('rt'):
        a('s_cmp_eq_u32 s2, 0'); a(f's_cbranch_scc0 {N}_nodbg'); a(f's_cmp_eq_u32 s{s_w}, 0'); a(f's_cbranch_scc0 {N}_nodbg')
        make_srd(a, 56, 76, 100*MB, 1 << 20); make_srd(a, 60, 74, 0, 256)
        a(f'v_lshrrev_b32 v3, 2, v{V_L16}')
        a(f's_mov_b32 s49, {opt.get("rt_wg", 0)*1024}')
        a('buffer_load_dword v4, v3, s[56:59], s49 offen')
        a(f'v_lshlrev_b32 v6, 4, v{V_L16}')
        for k in range(16):
            a(f's_mov_b32 s49, {k*16384}')
            a(f'buffer_load_dword v{64+k}, v6, s[56:59], s49 offen offset:252')
            a(f'buffer_load_dword v{80+k}, v6, s[56:59], s49 offen offset:248')
        a('s_waitcnt vmcnt(0)')
        for k in range(1, 16):
            a(f'v_max_u32 v64, v64, v{64+k}'); a(f'v_min_u32 v80, v80, v{80+k}')
        a('s_nop 1')
        a('v_readlane_b32 s50, v64, 0'); a('v_readlane_b32 s51, v80, 0')
        for ln in range(1, 64):
            a(f'v_readlane_b32 s52, v64, {ln}'); a(f'v_readlane_b32 s53, v80, {ln}'); a('s_max_u32 s50, s50, s52'); a('s_min_u32 s51, s51, s53')
        a('v_writelane_b32 v4, s50, 11'); a('v_writelane_b32 v4, s51, 10')
        a('v_cmp_gt_u32 vcc, 48, v3')
        a('s_and_saveexec_b64 s[50:51], vcc')
        a('buffer_store_dword v4, v3, s[60:63], 0 offen')
        a('s_mov_b64 exec, s[50:51]')
        a('v_cmp_gt_u32 vcc, 16, v3')
        a('s_and_saveexec_b64 s[50:51], vcc')
        a('buffer_store_dword v255, v3, s[60:63], 0 offen offset:48')
        a('s_mov_b64 exec, s[50:51]')
        a('s_waitcnt vmcnt(0)')
        a.label(f'{N}_nodbg')
    elif inline:
        st_.dump(100*MB, s_w, 253)
    else:
        st_.dump(100*MB, s_w, 240)
    if not inline:
        a.label(f'{N}_end')
        a('s_endpgm')
```

```python
from asmlib import *
from layout import *
import gen_attn2 as A
from gen_attn2 import *
from gen_proj2 import Proj, VmQueue, frag_store_groups
from gen_proj import make_srd
import gen_proj, gen_final
from gen_kv import ProjKV
from gen_proj16 import Proj16, frag_store_groups16, q_to_frags16

class Main(Attn):
    def emit_phasec(self):
        a = self.a; N = self.name; opt = self.opt
        a('s_barrier')
        make_srd(a, 76, 34, WS_FL, 112*128)
        a(f's_lshr_b32 s27, s{s_h}, 3'); a('s_lshl_b32 s27, s27, 3'); a(f's_add_u32 s27, s27, s{s_i}'); a('s_lshl_b32 s27, s27, 7')
        a(f's_and_b32 s29, s{s_h}, 7'); a('s_lshl_b32 s29, s29, 2'); a('s_add_u32 s27, s27, s29')
        a('v_mov_b32 v41, s27')
        ofirst = opt.get('l3', {}).get('ofirst', True)
        a('s_mov_b32 s60, 0x7fffff00')
        a('s_mov_b32 s30, 1')
        a(f's_cmp_eq_u32 s{s_i}, {self.nomlp_i}'); a(f's_cbranch_scc1 {N}_cnou')
        a('s_mul_i32 s27, s80, 37'); a('s_lshr_b32 s27, s27, 8'); a('s_mul_i32 s29, s27, 7'); a('s_sub_u32 s29, s80, s29')
        a('s_lshl_b32 s29, s29, 1'); a('s_and_b32 s31, s81, 1'); a('s_add_u32 s29, s29, s31'); a('s_lshl_b32 s29, s29, 2')
        a('s_lshl_b32 s27, s27, 2'); a('s_lshr_b32 s31, s81, 1'); a('s_add_u32 s27, s27, s31'); a('s_add_u32 s27, s27, 32'); a('s_lshl_b32 s27, s27, 7'); a('s_add_u32 s27, s27, s29')
        if ofirst: a('s_mov_b32 s60, s27')
        else: a('v_writelane_b32 v41, s27, 1'); a('s_or_b32 s30, s30, 2')
        a.label(f'{N}_cnou')
        a(f's_cmp_eq_u32 s{s_i}, 7'); a(f's_cbranch_scc0 {N}_cflag')
        a('s_sub_u32 s27, s2, 224'); a('s_lshl_b32 s27, s27, 1'); a('s_add_u32 s27, s27, 48'); a('s_lshl_b32 s27, s27, 7')
        a('v_writelane_b32 v41, s27, 2'); a('s_add_u32 s27, s27, 128'); a('v_writelane_b32 v41, s27, 3'); a('s_or_b32 s30, s30, 12')
        a.label(f'{N}_cflag')
        a('v_mov_b32 v42, 1')
        a(f's_cmp_eq_u32 s{s_w}, 0'); a('s_cselect_b32 exec_lo, s30, 0'); a('s_mov_b32 exec_hi, 0')
        a('buffer_store_dword v42, v41, s[76:79], 0 offen sc1')
        a('s_mov_b64 exec, -1')
        def poll(s_sb, s_mb, s_p, s_tile, ofirst=False):
            make_srd(a, 56, 76, WS_FL, 112*128)
            a(f's_sub_u32 s49, 15, s{s_sb}'); a(f's_min_u32 s49, s49, s{s_sb}'); a(f's_lshl_b32 s50, s{s_p}, 3'); a('s_add_u32 s49, s49, s50'); a('s_lshl_b32 s49, s49, 7')
            a(f's_lshl_b32 s50, s{s_p}, 2'); a(f's_add_u32 s50, s50, s{s_mb}'); a('s_add_u32 s50, s50, 32'); a('s_lshl_b32 s50, s50, 7'); a('s_sub_u32 s50, s50, 32')
            a(f's_add_u32 s51, s{s_tile}, 48'); a('s_lshl_b32 s51, s51, 7')
            a('v_lshrrev_b32 v45, 2, v2')
            a('v_mov_b32 v46, s50'); a('v_mov_b32 v47, s49'); a('v_cmp_gt_u32 vcc, 32, v45'); a('s_nop 1'); a('v_cndmask_b32 v46, v46, v47, vcc')
            a('v_add_u32 v45, v45, v46'); a('v_writelane_b32 v45, s51, 22')
            a(f's_cmp_eq_u32 s{s_w}, {1 if opt.get("pollw1", True) else 0}'); a(f's_cbranch_scc0 {N}_cpolled')
            a('s_mov_b32 s49, 0')
            a.label(f'{N}_cpoll')
            a('buffer_load_dword v44, v45, s[56:59], 0 offen sc1')
            a('s_waitcnt vmcnt(0)')
            a('v_cmp_ne_u32 vcc, 1, v44'); a('s_nop 3'); a(f's_and_b32 s50, vcc_lo, {0xff if ofirst else 0x7fffff}'); a('s_cmp_eq_u32 s50, 0')
            a(f's_cbranch_scc1 {N}_cpolled')
            a('s_add_u32 s49, s49, 1'); a('s_cmp_ge_u32 s49, 0x20000'); a(f's_cbranch_scc1 {N}_cpolled')

            if opt.get("csleep", 0): a(f's_sleep {opt.get("csleep")}')
            a(f's_branch {N}_cpoll')
            a.label(f'{N}_cpolled')
            a('s_barrier')
        gen_final.emit_final(a, N + '_fin', inline=True, sync=poll, stamps=self.st, **opt.get('l3', {}))

    def emit_head(self):
        a = self.a; N = self.name; opt = self.opt
        S_CK, S_WK, S_X, S_O, S_WV, S_WQ = 4, 8, 12, 16, 92, 60
        S_H, S_G, S_GW = 76, (56 if opt.get('lnfill', False) else 48), 52
        a(f's_cmp_ge_u32 s2, 256')
        a(f's_cbranch_scc1 {N}_end')
        self.stamp()
        a(f's_load_dwordx2 s[34:35], s[0:1], {KA_WS}')
        a(f's_load_dwordx2 s[64:65], s[0:1], {KA_AX}')
        a(f's_load_dwordx2 s[90:91], s[0:1], {KA_CKV}')
        a(f's_load_dwordx4 s[96:99], s[0:1], {KA_WUK}')
        a(f's_load_dwordx2 s[38:39], s[0:1], {KA_GW}')
        a(f's_load_dwordx2 s[66:67], s[0:1], {KA_WQ}')
        a(f's_load_dwordx2 s[68:69], s[0:1], {KA_W1}')
        a(f's_load_dwordx2 s[86:87], s[0:1], {KA_B1}')
        a(f's_load_dwordx2 s[70:71], s[0:1], {KA_WO}')
        a(f's_load_dwordx2 s[72:73], s[0:1], {KA_W2}')
        a(f's_load_dwordx2 s[100:101], s[0:1], {KA_DBG}')
        a(f'v_lshrrev_b32 v1, 6, v0')
        a(f'v_and_b32 v2, 63, v0')
        a(f'v_lshlrev_b32 v{V_L16}, 4, v2')
        a(f'v_readfirstlane_b32 s{s_w}, v1')
        a(f's_and_b32 s{s_t0}, s2, 7')
        a(f's_lshr_b32 s{s_t1}, s2, 3')
        a(f's_lshl_b32 s{s_h}, s{s_t0}, 2')
        a(f's_and_b32 s{s_t0}, s{s_t1}, 3')
        a(f's_add_u32 s{s_h}, s{s_h}, s{s_t0}')
        a(f's_lshr_b32 s{s_i}, s{s_t1}, 2')
        a(f's_add_u32 s{s_g1}, s{s_i}, 1')
        a(f's_lshl_b32 s{s_g1}, s{s_g1}, 2')
        a(f's_lshl_b32 s36, s{s_i}, 2'); a(f's_add_u32 s36, s36, s{s_w}')
        a(f's_lshl_b32 s37, s{s_i}, 2'); a(f's_sub_u32 s37, 60, s37'); a(f's_add_u32 s37, s37, s{s_w}')
        vq = VmQueue()
        if opt.get('pfcode', True):
            per = opt.get('code_per', 5)
            a('s_getpc_b64 s[92:93]')
            a.label(f'{N}_pc0')
            a('s_lshr_b32 s32, s2, 3'); a('s_lshl_b32 s32, s32, 2'); a(f's_add_u32 s32, s32, s{s_w}'); a(f's_mul_i32 s32, s32, {per*128}')
            a(f'v_min_u32 v6, {per-1}, v2'); a('v_lshlrev_b32 v6, 7, v6'); a('v_add_u32 v6, s32, v6')
            a(f'v_min_u32 v6, {N}_end-{N}_pc0, v6')
            a('v_mov_b32 v7, s93'); a('v_add_co_u32 v6, vcc, s92, v6'); a('s_nop 1'); a('v_addc_co_u32 v7, vcc, 0, v7, vcc')
            a('global_load_dword v253, v[6:7], off'); vq.push('code')
        p16 = opt.get('p16')
        if p16:
            P = Proj16(a, vq, s_w, 16384, 16384, FBL=[[192+4*k for k in range(12)], [4*k for k in range(12)]], V_WD=60, ACC=64, fbk='a', VA=8, V_L16=V_L16, VT=33, SG=40,
                       wflags=(' nt' if opt.get('nt', True) else ''), stamps=self.st, opt=opt)
        else:
            P = Proj(a, vq, s_w, 16384, 16384, ACC=64, FB=(192, 216), fbk='a', VA=8, V_L16=V_L16, VT=33, SG=40,
                     wflags=(' nt' if opt.get('nt', True) else ''), stamps=self.st, opt=opt)
        P.setup_addrs(set_l16=False)
        lnfill = opt.get('lnfill', False)
        LB_ = 40
        a(f's_lshl_b32 s82, s2, 3'); a(f's_lshl_b32 s83, s{s_w}, 1'); a('s_add_u32 s82, s82, s83')
        a('s_lshl_b32 s83, s82, 2'); a('s_lshl_b32 s82, s82, 10')
        a('s_waitcnt lgkmcnt(0)')
        make_srd(a, S_CK, 90, 0, 2*MB); make_srd(a, S_WK, 96, 0, 4*MB)
        def lnloads():
            make_srd(a, S_X, 64, 0, 2*MB); make_srd(a, S_GW, 38, 0, 1024)
            a(f'buffer_load_dwordx4 v[{LB_}:{LB_+3}], v{V_L16}, s[{S_X}:{S_X+3}], s82 offen'); vq.push('ln')
            a(f'buffer_load_dwordx4 v[{LB_+4}:{LB_+7}], v{V_L16}, s[{S_X}:{S_X+3}], s82 offen offset:1024'); vq.push('ln')
            a(f'buffer_load_dwordx4 v[{LB_+16}:{LB_+19}], v{V_L16}, s[{S_GW}:{S_GW+3}], 0 offen'); vq.push('ln')
        if not lnfill: lnloads()
        initKV = [f's_lshl_b32 s{P.s_a0}, s{s_i}, 18', f's_lshl_b32 s49, s{s_w}, 16', f's_add_u32 s{P.s_a0}, s{P.s_a0}, s49',
                  f's_add_u32 s{P.s_a1}, s{P.s_a0}, 32768',
                  f's_lshl_b32 s{P.s_wo}, s{s_w}, 17', f's_lshl_b32 s49, s{s_h}, 8', f's_add_u32 s{P.s_wo}, s{P.s_wo}, s49']
        initQ = [f's_lshl_b32 s{P.s_a0}, s36, 15', f's_lshl_b32 s{P.s_a1}, s37, 15',
                 f's_lshl_b32 s{P.s_wo}, s{s_w}, 17', f's_lshl_b32 s49, s{s_h}, 8', f's_add_u32 s{P.s_wo}, s{P.s_wo}, s49']
        ps = [dict(swap=False, srdA=S_CK, srdW=S_WK, init=initKV, epi=lambda: None, acck='v'),
              dict(swap=True, srdA=S_CK, srdW=S_WV, init=initKV, epi=lambda: None, acck='a'),
              dict(swap=False, srdA=S_X, srdW=S_WQ, init=initQ, epi=lambda: None, acck='v')]
        P.prologue(ps[0], after0=(lnloads if lnfill else None))
        make_srd(a, S_WV, 98, 0, 4*MB)
        make_srd(a, S_WQ, 66, 0, 4*MB)
        make_srd(a, S_O, 34, WS_K, 32*MB)
        make_srd(a, S_H, 34, WS_H, 2*MB); make_srd(a, S_G, 34, WS_G, 8192)
        real_a = self.a; tmp_a = Asm(); self.a = tmp_a
        M = self.setup_attn_regs()
        self.a = real_a; M.a = real_a
        c = 0x3e0293ee
        setup = tmp_a.lines + [f'v_mov_b32 v2, {hex(c)}', f'v_mov_b32 v3, {hex(c)}'] + [f'v_accvgpr_write_b32 a{e}, 0' for e in range(48 if p16 else 0, 64)]
        setupG = [(setup[k:k+4], None) for k in range(0, len(setup), 4)]
        perS = -(-len(setupG)//5)
        s_first = 3 if lnfill else 1
        gen_proj.R.V_L16 = V_L16
        st_save = STF.st; STF.st = ' sc1'
        main_a = a
        if lnfill: a = Asm()
        else: vq.wait_for(a, 'ln')
        if lnfill: gen_proj.emit_ln_compute(a, LB_, S_H, S_G, 82, 83, 208, gw=232, sm=240, tmp=244)
        else: gen_proj.emit_ln_compute(a, LB_, S_H, S_G, 82, 83, 64)
        a('s_getreg_b32 s33, hwreg(HW_REG_XCC_ID, 0, 4)')
        a('s_or_b32 s33, s33, 0x50')
        make_srd(a, 76, 34, WS_HF, 4096)
        a(f's_lshl_b32 s32, s{s_h}, 7')
        a('v_mov_b32 v41, 0'); a(f'v_lshrrev_b32 v42, 2, v{V_L16}')
        a(f's_or_b32 s{s_t0}, s{s_w}, s{s_i}'); a(f's_cmp_eq_u32 s{s_t0}, 0'); a('s_cselect_b32 exec_lo, -1, 0'); a('s_mov_b32 exec_hi, 0')
        a('buffer_store_dword v41, v42, s[76:79], s32 offen sc1')
        a('s_mov_b64 exec, -1')
        if opt.get('fusefin'):
            make_srd(a, 76, 34, WS_FL, 112*128)
            a('s_lshl_b32 s32, s2, 7')
            a(f's_cmp_eq_u32 s{s_w}, 0'); a('s_cselect_b32 exec_lo, -1, 0'); a('s_mov_b32 exec_hi, 0')
            a('buffer_store_dword v41, v42, s[76:79], s32 offen sc1')
            a('s_mov_b64 exec, -1')
        if lnfill:
            lnG = [(['@wait'], 'ln')]
            cur = []; masked = False
            for k_, l in enumerate(a.lines):
                nxt_addc = k_+1 < len(a.lines) and a.lines[k_+1].startswith('s_addc')
                starts_mask = ('exec' in l and not l.startswith('s_mov_b64 exec, -1') and not l.startswith('s_mov_b64 exec, s['))
                if (l.startswith('s_cmp') or starts_mask) and not masked:
                    if cur: lnG.append((cur, None)); cur = []
                    masked = True
                cur.append(l)
                if l.startswith('buffer_'):
                    if not masked: lnG.append((cur, 'lnst')); cur = []
                if masked and (l.startswith('s_mov_b64 exec, -1') or l.startswith('s_mov_b64 exec, s[')):
                    lnG.append((cur, 'lnst')); cur = []; masked = False
                elif not masked and len(cur) >= 4 and not nxt_addc:
                    lnG.append((cur, None)); cur = []
            if cur: lnG.append((cur, None))
            assert not masked
            a = main_a
        else:
            for _ in range(5 if opt.get('fusefin') else 4): vq.push('lnst')
            lnG = []
        perL = -(-len(lnG)//3)
        a(f's_and_b32 s91, s{s_h}, 3'); a(f's_cmp_eq_u32 s{s_w}, 0'); a('s_cselect_b32 s91, s91, 0xff')
        a(f's_lshl_b32 s{s_t0}, s{s_h}, 6'); a(f's_lshl_b32 s{s_t1}, s{s_i}, 3'); a(f's_add_u32 s{s_t0}, s{s_t0}, s{s_t1}')
        a(f's_lshl_b32 s{s_t1}, s{s_w}, 1'); a(f's_add_u32 s{s_t0}, s{s_t0}, s{s_t1}'); a(f's_lshl_b32 s{s_t0}, s{s_t0}, 13')
        for k in range(4):
            a(f's_add_u32 s{50+k}, s{s_t0}, {k*4096}')
            a(f's_add_u32 s{96+k}, s{s_t0}, {16*MB + k*4096}')
        STF.st = opt.get('kst', opt.get('kvst', ''))
        VK, VV = 220, 222
        if p16: P.store_addrs(VK, VV)
        KG = frag_store_groups16(P, 'K', 'v', S_O, 50, None, VK, v_scale=2, tag='kst') if p16 else frag_store_groups(P, 'K', 'v', S_O, 50, None, v_scale=2, tag='kst')
        STF.st = opt.get('vst', opt.get('kvst', ''))
        VGs = frag_store_groups16(P, 'V', 'a', S_O, 96, 40, VV, tag='vst') if p16 else frag_store_groups(P, 'V', 'a', S_O, 96, 40, tag='vst')
        STF.st = st_save
        nv = opt.get('vstages', 3); sigt = opt.get('sigt', nv+1)
        perK = len(KG)//8; perV = len(VGs)//nv
        KV0 = self.kv_groups('K', 6); VV0 = self.kv_groups('V', 4)
        zero = [([f'v_accvgpr_write_b32 a{64+4*k+e}, 0' for e in range(4)], None) for k in range(16)]
        srds = self.kv_srd_lines()
        dbg = Asm(); make_srd(dbg, 76, 100, 0, 256)
        hfl = Asm(); make_srd(hfl, 92, 34, WS_HF, 4096)
        def lnsig(k): return (dbg.lines + ['v_mov_b32 v58, 0', 'v_mov_b32 v59, s33', f's_cmp_eq_u32 s91, {k}', 's_cselect_b64 exec, 1, 0',
               f'buffer_store_byte v59, v58, s[76:79], s2 offen sc1', 's_mov_b64 exec, -1'], 'flag')
        idaddr = [f'v_lshlrev_b32 v57, 1, v{V_L16}', f's_lshr_b32 s{s_t1}, s{s_h}, 2', f's_and_b32 s32, s{s_h}, 3', 's_lshl_b32 s32, s32, 3', f's_add_u32 s48, s32, s{s_t1}']
        idld = (dbg.lines + idaddr + ['buffer_load_ubyte v56, v57, s[76:79], s48 offen sc1'], 'id')
        sig = dbg.lines + hfl.lines + [f's_cmp_eq_u32 s{s_w}, 0', f's_cbranch_scc0 {N}_nosig', f's_mov_b32 s{s_cnt}, 0',
               f'{N}_idchk:',
               'v_readfirstlane_b32 s32, v56', 's_and_b32 s32, s32, 0x40', 's_cmp_lg_u32 s32, 0', f's_cbranch_scc1 {N}_idok',
               f's_add_u32 s{s_cnt}, s{s_cnt}, 1', f's_cmp_ge_u32 s{s_cnt}, 0x20000', f's_cbranch_scc1 {N}_idok',
               'buffer_load_ubyte v56, v57, s[76:79], s48 offen sc1', 's_waitcnt vmcnt(0)', 's_nop 0', f's_branch {N}_idchk',
               f'{N}_idok:',
               'v_cmp_ne_u32 vcc, s33, v56', 's_nop 3', 's_and_b32 s32, vcc_lo, 0xff', 's_cmp_eq_u32 s32, 0',
               f's_cbranch_scc1 {N}_samexcd', 'buffer_wbl2 sc1', 's_waitcnt vmcnt(0)', f'{N}_samexcd:',
               f's_lshl_b32 s32, s{s_h}, 7', f's_lshl_b32 s{s_t1}, s{s_i}, 2', f's_add_u32 s32, s32, s{s_t1}',
               'v_mov_b32 v41, 0', 'v_mov_b32 v42, 1', 's_mov_b64 exec, 1',
               'buffer_store_dword v42, v41, s[92:95], s32 offen sc1', 's_mov_b64 exec, -1', f'{N}_nosig:']
        pollld = ['buffer_load_dword v232, v233, s[76:79], 0 offen sc1', 'buffer_load_dword v235, v233, s[92:95], s91 offen sc1']
        pollpre = dbg.lines + hfl.lines + [f's_lshl_b32 s91, s{s_h}, 7', f'v_lshrrev_b32 v233, 2, v{V_L16}', 'v_mov_b32 v234, 0x40404040',
                   f's_cmp_eq_u32 s{s_w}, 0', f's_cbranch_scc0 {N}_nopoll0'] + pollld + [f'{N}_nopoll0:']
        def pfw(srd_): return ([f'v_lshrrev_b32 v58, 5, v{V_L16}', 'v_lshlrev_b32 v58, 13, v58', f'v_bfe_u32 v59, v{V_L16}, 4, 1', 'v_lshl_add_u32 v58, v59, 7, v58',
               f's_lshl_b32 s32, s{s_w}, 4', f's_lshl_b32 s49, s{s_i}, 6', 's_add_u32 s32, s32, s49', 's_lshl_b32 s32, s32, 13',
               f's_lshl_b32 s49, s{s_h}, 8', 's_add_u32 s32, s32, s49', 's_mov_b32 exec_hi, 0',
               f'buffer_load_dword v253, v58, s[{srd_}:{srd_+3}], s32 offen', 's_mov_b64 exec, -1'], 'pf')
        def pfx(qt): return ([f'v_lshrrev_b32 v58, 7, v{V_L16}', 'v_lshlrev_b32 v58, 10, v58', f'v_bfe_u32 v59, v{V_L16}, 4, 3', 'v_lshl_add_u32 v58, v59, 7, v58',
               f's_lshl_b32 s32, s{qt}, 5', f's_and_b32 s49, s{s_h}, 3', 's_lshl_b32 s49, s49, 3', 's_add_u32 s32, s32, s49', 's_lshl_b32 s32, s32, 10',
               f'buffer_load_dword v253, v58, s[{S_X}:{S_X+3}], s32 offen'], 'pf')
        def pfc(k): return ([f'v_lshrrev_b32 v58, 7, v{V_L16}', 'v_lshlrev_b32 v58, 10, v58', f'v_bfe_u32 v59, v{V_L16}, 4, 3', 'v_lshl_add_u32 v58, v59, 7, v58',
               f's_lshl_b32 s32, s{s_i}, 8', f's_and_b32 s49, s{s_h}, 3', 's_lshl_b32 s49, s49, 6', 's_add_u32 s32, s32, s49', f's_lshl_b32 s49, s{s_w}, 4', 's_add_u32 s32, s32, s49',
               f's_add_u32 s32, s32, {8*k}', 's_lshl_b32 s32, s32, 10', f'buffer_load_dword v253, v58, s[{S_CK}:{S_CK+3}], s32 offen'], 'pf')
        def pf1():
            l = Asm(); make_srd(l, 76, 68, 0, 2048*3584)
            l(f'v_lshlrev_b32 v58, 3, v{V_L16}'); l('s_lshl_b32 s32, s2, 2'); l(f's_add_u32 s32, s32, s{s_w}'); l('s_mul_i32 s32, s32, 7168')
            l('buffer_load_dword v253, v58, s[76:79], s32 offen')
            return (l.lines, 'pf')
        pf = opt.get('pfa', 'vq')
        earlypoll = opt.get('earlypoll', True)
        def xe(p, t):
            if p == 0:
                g = list(setupG[(t-s_first)*perS:(t-s_first+1)*perS]) if s_first <= t < s_first+5 else []
                if t < 3: g = list(lnG[t*perL:(t+1)*perL]) + g
                if t == 0:
                    if 'k' in pf: g.append(pfw(S_WK))
                    if 'c' in pf: g += [pfc(0), pfc(1)]
                if '1' in pf and t == 6: g.append(pf1())
                if 'v' in pf and t == opt.get('pfv_t', 1): g.append(pfw(S_WV))
                return g
            if p == 1:
                g = list(KG[t*perK:(t+1)*perK])
                if 'q' in pf and t == 1: g.append(pfw(S_WQ))
                if 'x' in pf and t == 2: g.append(pfx(36))
                if 'x' in pf and t == 3: g.append(pfx(37))
                if '2' in pf and t == 5: g.append(pf1())
                return g
            if p == 2:
                g = []
                if t < nv: g += VGs[t*perV:(t+1)*perV] + ([idld] if t == 0 else [])
                if t == nv: g += zero
                if t == (5 if earlypoll else 6): g += [(srds, None)]
                if t == (6 if earlypoll else 7): g += [(pollpre, None)]
                if earlypoll and t == 7: g += KV0[6:] + VV0
                return g
            return []
        late_pf = opt.get('pflate', {})
        def xl(p, t):
            g = []
            t0 = 4 if lnfill else 2
            if p == 0 and t0 <= t < t0+4: g.append(lnsig(t-t0))
            if p == 2 and t == sigt: g.append((sig, None))
            if earlypoll and p == 2 and t == 6: g += KV0[:6]
            if opt.get('pfcode2', True) and p == 2 and t == opt.get('pfcode2_t', 4): g.append((self.code_touch('b', f'{N}_body', f'{N}_phasec', 2, 58), 'code'))
            k = late_pf.get((p, t))
            if k == 'v': g.append(pfw(S_WV))
            if k == 'q': g.append(pfw(S_WQ))
            if k == '1': g.append(pf1())
            if k == 'a': g.append(pfx(36))
            if k == 'b': g.append(pfx(37))
            return g
        assert sigt >= nv + 1 and sigt <= (5 if earlypoll else 6) and 48 % nv == 0
        if earlypoll:
            chk = ['s_waitcnt vmcnt(0)', 'v_and_b32 v232, v234, v232', 'v_cmp_ne_u32 vcc, v234, v232', 'v_cmp_ne_u32 s[54:55], 1, v235', 's_nop 3',
                   's_and_b32 s32, s54, 0xff', 's_or_b32 s32, s32, vcc_lo', 's_or_b32 s32, s32, vcc_hi', 's_cmp_eq_u32 s32, 0']
            pl = [f's_cmp_eq_u32 s{s_w}, 0', f's_cbranch_scc0 {N}_polled', f's_mov_b32 s{s_cnt}, 0', f'{N}_poll:'] + chk + \
                 [f's_cbranch_scc1 {N}_polled', f's_add_u32 s{s_cnt}, s{s_cnt}, 1', f's_cmp_ge_u32 s{s_cnt}, 0x20000', f's_cbranch_scc1 {N}_polled'] + pollld + \
                 [f's_branch {N}_poll', f'{N}_polled:']
            P.prebar = lambda p, t: (pl if (p, t) == (2, 6) else [])
        P.start_compute()
        self.stamp()
        P.run(ps, extra_early=xe, extra_late=xl)
        self.stamp()
        if not earlypoll:
            if p16:
                q_to_frags16(a, 64, QA, QB)
                for e in range(48): a(f'v_accvgpr_write_b32 a{e}, 0')
            else: self.q_to_frags_cvt()
            chk = ['s_waitcnt vmcnt(0)', 'v_and_b32 v232, v234, v232', 'v_cmp_ne_u32 vcc, v234, v232', 'v_cmp_ne_u32 s[54:55], 1, v235', 's_nop 3',
                   's_and_b32 s32, s54, 0xff', 's_or_b32 s32, s32, vcc_lo', 's_or_b32 s32, s32, vcc_hi', 's_cmp_eq_u32 s32, 0']
            for l in [f's_cmp_eq_u32 s{s_w}, 0', f's_cbranch_scc0 {N}_polled', f's_mov_b32 s{s_cnt}, 0', f'{N}_poll:'] + chk + \
                     [f's_cbranch_scc1 {N}_polled', f's_add_u32 s{s_cnt}, s{s_cnt}, 1', f's_cmp_ge_u32 s{s_cnt}, 0x20000', f's_cbranch_scc1 {N}_polled',
                      ] + ([f's_sleep {opt.get("sleep", 0)}'] if opt.get("sleep", 0) else []) + pollld + [f's_branch {N}_poll', f'{N}_polled:']: a(l)
            a('s_barrier')
            for g in KV0 + VV0:
                for l in g[0]: a(l)
        else:
            assert not p16
            self.q_to_frags_cvt()
        self.stamp()
        self.q_to_frags_srd()
        return M


class Main2(Main):
    def emit_head(self):
        a = self.a; N = self.name; opt = self.opt
        S_CK, S_WK, S_X, S_O, S_WV, S_WQ = 4, 8, 12, 16, 92, 60
        S_H, S_G, S_GW = 76, 48, 52
        a(f's_cmp_ge_u32 s2, 256')
        a(f's_cbranch_scc1 {N}_end')
        self.stamp()
        a(f's_load_dwordx2 s[90:91], s[0:1], {KA_CKV}')
        a(f's_load_dwordx4 s[96:99], s[0:1], {KA_WUK}')
        a(f's_load_dwordx2 s[34:35], s[0:1], {KA_WS}')
        a(f's_load_dwordx2 s[64:65], s[0:1], {KA_AX}')
        a(f's_load_dwordx2 s[38:39], s[0:1], {KA_GW}')
        a(f's_load_dwordx2 s[66:67], s[0:1], {KA_WQ}')
        a(f's_load_dwordx2 s[68:69], s[0:1], {KA_W1}')
        a(f's_load_dwordx2 s[86:87], s[0:1], {KA_B1}')
        a(f's_load_dwordx2 s[70:71], s[0:1], {KA_WO}')
        a(f's_load_dwordx2 s[72:73], s[0:1], {KA_W2}')
        a(f's_load_dwordx2 s[100:101], s[0:1], {KA_DBG}')
        a(f'v_lshrrev_b32 v1, 6, v0')
        a(f'v_and_b32 v2, 63, v0')
        a(f'v_lshlrev_b32 v{V_L16}, 4, v2')
        a(f'v_readfirstlane_b32 s{s_w}, v1')
        a(f's_and_b32 s{s_t0}, s2, 7')
        a(f's_lshr_b32 s{s_t1}, s2, 3')
        a(f's_lshl_b32 s{s_h}, s{s_t0}, 2')
        a(f's_and_b32 s{s_t0}, s{s_t1}, 3')
        a(f's_add_u32 s{s_h}, s{s_h}, s{s_t0}')
        a(f's_lshr_b32 s{s_i}, s{s_t1}, 2')
        a(f's_add_u32 s{s_g1}, s{s_i}, 1')
        a(f's_lshl_b32 s{s_g1}, s{s_g1}, 2')
        a(f's_lshl_b32 s36, s{s_i}, 2'); a(f's_add_u32 s36, s36, s{s_w}')
        a(f's_lshl_b32 s37, s{s_i}, 2'); a(f's_sub_u32 s37, 60, s37'); a(f's_add_u32 s37, s37, s{s_w}')
        vq = VmQueue()
        a('s_waitcnt lgkmcnt(0)')
        make_srd(a, S_CK, 90, 0, 2*MB); make_srd(a, S_WK, 96, 0, 4*MB); make_srd(a, S_WV, 98, 0, 4*MB)
        make_srd(a, S_X, 64, 0, 2*MB); make_srd(a, S_GW, 38, 0, 1024); make_srd(a, S_WQ, 66, 0, 4*MB)
        KV = ProjKV(a, vq, s_w, S_CK, S_WK, S_WV, ACCK=64, ACCV=64, VR=40, VT=33, SG=(38, 39, 64, 65, 66, 67, 90), stamps=self.st, opt=opt)
        KV.setup(s_i, s_h)
        LB_ = 232
        a(f's_lshl_b32 s82, s2, 3'); a(f's_lshl_b32 s83, s{s_w}, 1'); a('s_add_u32 s82, s82, s83')
        a('s_lshl_b32 s83, s82, 2'); a('s_lshl_b32 s82, s82, 10')
        a(f'buffer_load_dwordx4 v[{LB_}:{LB_+3}], v{V_L16}, s[{S_X}:{S_X+3}], s82 offen'); vq.push('ln')
        a(f'buffer_load_dwordx4 v[{LB_+4}:{LB_+7}], v{V_L16}, s[{S_X}:{S_X+3}], s82 offen offset:1024'); vq.push('ln')
        a(f'buffer_load_dwordx4 v[{LB_+16}:{LB_+19}], v{V_L16}, s[{S_GW}:{S_GW+3}], 0 offen'); vq.push('ln')
        rest0 = KV.prologue(opt.get('kvpro', 2))
        P = Proj(a, vq, s_w, 16384, 65536, ACC=64, FB=(192, 216), fbk='a', VA=8, V_L16=V_L16, VT=33, SG=40,
                 wflags=(' nt' if opt.get('nt', False) else ''), stamps=self.st, opt=opt)
        P.setup_addrs(set_l16=False)
        make_srd(a, S_O, 34, WS_K, 32*MB)
        make_srd(a, S_H, 34, WS_H, 2*MB); make_srd(a, S_G, 34, WS_G, 8192)
        real_a = self.a; tmp_a = Asm(); self.a = tmp_a; self.mtmp = 232
        M = self.setup_attn_regs()
        self.a = real_a; M.a = real_a
        c = 0x3e0293ee
        setup = tmp_a.lines + [f'v_mov_b32 v2, {hex(c)}', f'v_mov_b32 v3, {hex(c)}']
        setupG = [(setup[k:k+4], None) for k in range(0, len(setup), 4)]
        perS = -(-len(setupG)//6)
        vq.wait_for(a, 'ln')
        gen_proj.R.V_L16 = V_L16
        st_save = STF.st; STF.st = ' sc1'
        gen_proj.emit_ln_compute(a, LB_, S_H, S_G, 82, 83, 64)
        for _ in range(3): vq.push('lnst')
        a('s_getreg_b32 s33, hwreg(HW_REG_XCC_ID, 0, 4)')
        a('s_or_b32 s33, s33, 0x50')
        make_srd(a, 76, 34, WS_HF, 4096)
        a(f's_lshl_b32 s32, s{s_h}, 7')
        a('v_mov_b32 v58, 0'); a(f'v_lshrrev_b32 v59, 2, v{V_L16}')
        a(f's_or_b32 s{s_t0}, s{s_w}, s{s_i}'); a(f's_cmp_eq_u32 s{s_t0}, 0'); a('s_cselect_b32 exec_lo, -1, 0'); a('s_mov_b32 exec_hi, 0')
        a('buffer_store_dword v58, v59, s[76:79], s32 offen sc1'); vq.push('lnst')
        a('s_mov_b64 exec, -1')
        if opt.get('fusefin'):
            make_srd(a, 76, 34, WS_FL, 112*128)
            a('s_lshl_b32 s32, s2, 7')
            a(f's_cmp_eq_u32 s{s_w}, 0'); a('s_cselect_b32 exec_lo, -1, 0'); a('s_mov_b32 exec_hi, 0')
            a('buffer_store_dword v58, v59, s[76:79], s32 offen sc1'); vq.push('lnst')
            a('s_mov_b64 exec, -1')
        a(f's_and_b32 s91, s{s_h}, 3'); a(f's_cmp_eq_u32 s{s_w}, 0'); a('s_cselect_b32 s91, s91, 0xff')
        npre = 8*opt.get('kvpre2', 3)
        for g in rest0[:npre]: KV.emit_group(g)
        KV.initial = rest0[npre:]
        a(f's_lshl_b32 s{s_t0}, s{s_h}, 6'); a(f's_lshl_b32 s{s_t1}, s{s_i}, 3'); a(f's_add_u32 s{s_t0}, s{s_t0}, s{s_t1}')
        a(f's_lshl_b32 s{s_t1}, s{s_w}, 1'); a(f's_add_u32 s{s_t0}, s{s_t0}, s{s_t1}'); a(f's_lshl_b32 s{s_t0}, s{s_t0}, 13')
        for k in range(4):
            a(f's_add_u32 s{50+k}, s{s_t0}, {k*4096}')
            a(f's_add_u32 s{96+k}, s{s_t0}, {16*MB + k*4096}')
        STF.st = opt.get('kvst', '')
        KG = frag_store_groups(P, 'K', 'v', S_O, 50, None, v_scale=2, tag='kst')
        VGs = frag_store_groups(P, 'V', 'a', S_O, 96, 40, tag='vst')
        STF.st = st_save
        nv = opt.get('vstages', 3); sigt = opt.get('sigt', nv+1)
        perV = len(VGs)//nv
        KV0 = self.kv_groups('K', 6); VV0 = self.kv_groups('V', 4)
        zero = [([f'v_accvgpr_write_b32 a{4*k+e}, 0' for e in range(4)], None) for k in range(32)]
        srds = self.kv_srd_lines()
        dbg = Asm(); make_srd(dbg, 76, 100, 0, 256)
        hfl = Asm(); make_srd(hfl, 92, 34, WS_HF, 4096)
        def lnsig(k): return (dbg.lines + ['v_mov_b32 v58, 0', 'v_mov_b32 v59, s33', f's_cmp_eq_u32 s91, {k}', 's_cselect_b64 exec, 1, 0',
               f'buffer_store_byte v59, v58, s[76:79], s2 offen sc1', 's_mov_b64 exec, -1'], 'flag')
        idaddr = [f'v_lshlrev_b32 v57, 1, v{V_L16}', f's_lshr_b32 s{s_t1}, s{s_h}, 2', f's_and_b32 s32, s{s_h}, 3', 's_lshl_b32 s32, s32, 3', f's_add_u32 s48, s32, s{s_t1}']
        idld = (dbg.lines + idaddr + ['buffer_load_ubyte v56, v57, s[76:79], s48 offen sc1'], 'id')
        sig = dbg.lines + hfl.lines + [f's_cmp_eq_u32 s{s_w}, 0', f's_cbranch_scc0 {N}_nosig', f's_mov_b32 s{s_cnt}, 0',
               f'{N}_idchk:',
               'v_readfirstlane_b32 s32, v56', 's_and_b32 s32, s32, 0x40', 's_cmp_lg_u32 s32, 0', f's_cbranch_scc1 {N}_idok',
               f's_add_u32 s{s_cnt}, s{s_cnt}, 1', f's_cmp_ge_u32 s{s_cnt}, 0x20000', f's_cbranch_scc1 {N}_idok',
               'buffer_load_ubyte v56, v57, s[76:79], s48 offen sc1', 's_waitcnt vmcnt(0)', 's_nop 0', f's_branch {N}_idchk',
               f'{N}_idok:',
               'v_cmp_ne_u32 vcc, s33, v56', 's_nop 3', 's_and_b32 s32, vcc_lo, 0xff', 's_cmp_eq_u32 s32, 0',
               f's_cbranch_scc1 {N}_samexcd', 'buffer_wbl2 sc1', 's_waitcnt vmcnt(0)', f'{N}_samexcd:',
               f's_lshl_b32 s32, s{s_h}, 7', f's_lshl_b32 s{s_t1}, s{s_i}, 2', f's_add_u32 s32, s32, s{s_t1}',
               'v_mov_b32 v41, 0', 'v_mov_b32 v42, 1', 's_mov_b64 exec, 1',
               'buffer_store_dword v42, v41, s[92:95], s32 offen sc1', 's_mov_b64 exec, -1', f'{N}_nosig:']
        pollld = ['buffer_load_dword v232, v233, s[76:79], 0 offen sc1', 'buffer_load_dword v235, v233, s[92:95], s91 offen sc1']
        pollpre = dbg.lines + hfl.lines + [f's_lshl_b32 s91, s{s_h}, 7', f'v_lshrrev_b32 v233, 2, v{V_L16}', 'v_mov_b32 v234, 0x40404040',
                   f's_cmp_eq_u32 s{s_w}, 0', f's_cbranch_scc0 {N}_nopoll0'] + pollld + [f'{N}_nopoll0:']
        initQ = [f's_lshl_b32 s{P.s_a0}, s36, 15', f's_lshl_b32 s{P.s_a1}, s37, 15',
                 f's_lshl_b32 s{P.s_wo}, s{s_w}, 17', f's_lshl_b32 s49, s{s_h}, 8', f's_add_u32 s{P.s_wo}, s{P.s_wo}, s49']
        qpass = [dict(swap=False, srdA=S_X, srdW=S_WQ, init=initQ, epi=lambda: None, acck='v')]
        Q0 = P.dma_stage(S_X, S_WQ, (0, 0), pre=initQ); Q1 = P.dma_stage(S_X, S_WQ, (0, 1)); Q2 = P.dma_stage(S_X, S_WQ, (0, 2))
        def pfw(srd_): return ([f'v_lshrrev_b32 v58, 5, v{V_L16}', 'v_lshlrev_b32 v58, 13, v58', f'v_bfe_u32 v59, v{V_L16}, 4, 1', 'v_lshl_add_u32 v58, v59, 7, v58',
               f's_lshl_b32 s32, s{s_w}, 4', f's_lshl_b32 s49, s{s_i}, 6', 's_add_u32 s32, s32, s49', 's_lshl_b32 s32, s32, 13',
               f's_lshl_b32 s49, s{s_h}, 8', 's_add_u32 s32, s32, s49', 's_mov_b32 exec_hi, 0',
               f'buffer_load_dword v253, v58, s[{srd_}:{srd_+3}], s32 offen', 's_mov_b64 exec, -1'], 'pf')
        def pf1():
            l = Asm(); make_srd(l, 76, 68, 0, 2048*3584)
            l(f'v_lshlrev_b32 v58, 3, v{V_L16}'); l('s_lshl_b32 s32, s2, 2'); l(f's_add_u32 s32, s32, s{s_w}'); l('s_mul_i32 s32, s32, 7168')
            l('buffer_load_dword v253, v58, s[76:79], s32 offen')
            return (l.lines, 'pf')
        kvpf = opt.get('kvpf', {7: 'q', 9: '1'})
        def kvx(t):
            early, late = [], []
            if 1 <= t <= 6: early += setupG[(t-1)*perS:t*perS]
            if 2 <= t <= 5: late += [lnsig(t-2)]
            if kvpf.get(t) == 'q': late += [pfw(S_WQ)]
            if kvpf.get(t) == '1': late += [pf1()]
            if t == 13: late += Q0[:4]
            if t == 14: early += Q0[4:]; late += Q1[:4]
            if t == 15: early += Q1[4:]; late += Q2[:3]
            return early, late
        def handover():
            return (0, 0), P.read_addr_update(), P.kstep_reads(0, 0)
        KV.start()
        self.stamp()
        KV.run(kvx, handover)
        P.lq = list(KV.lq); P.g_pending = Q2[3:]
        self.stamp()
        a('s_nop 7')
        for g in KG: P.emit_group(g)
        self.stamp()
        def xe(p, t):
            g = []
            if t < nv: g += VGs[t*perV:(t+1)*perV] + ([idld] if t == 0 else [])
            if t == nv: g += zero[:16]
            if t == nv+1: g += zero[16:]
            if t == 6: g += [(srds, None)]
            if t == 7: g += [(pollpre, None)]
            return g
        def xl(p, t):
            return [(sig, None)] if t == sigt else []
        assert sigt >= nv + 1 and sigt <= 6 and 48 % nv == 0
        P.run(qpass, extra_early=xe, extra_late=xl)
        self.stamp()
        self.q_to_frags_cvt()
        chk = ['s_waitcnt vmcnt(0)', 'v_and_b32 v232, v234, v232', 'v_cmp_ne_u32 vcc, v234, v232', 'v_cmp_ne_u32 s[54:55], 1, v235', 's_nop 3',
               's_and_b32 s32, s54, 0xff', 's_or_b32 s32, s32, vcc_lo', 's_or_b32 s32, s32, vcc_hi', 's_cmp_eq_u32 s32, 0']
        for l in [f's_cmp_eq_u32 s{s_w}, 0', f's_cbranch_scc0 {N}_polled', f's_mov_b32 s{s_cnt}, 0', f'{N}_poll:'] + chk + \
                 [f's_cbranch_scc1 {N}_polled', f's_add_u32 s{s_cnt}, s{s_cnt}, 1', f's_cmp_ge_u32 s{s_cnt}, 0x20000', f's_cbranch_scc1 {N}_polled',
                  ] + ([f's_sleep {opt.get("sleep", 0)}'] if opt.get("sleep", 0) else []) + pollld + [f's_branch {N}_poll', f'{N}_polled:']: a(l)
        a('s_barrier')
        for g in KV0 + VV0:
            for l in g[0]: a(l)
        self.stamp()
        self.q_to_frags_srd()
        return M
```

```python
from asmlib import *
from layout import *
from gen_proj2 import Proj, VmQueue
from gen_proj import make_srd
import gen_t2
from gen_mlp import Mlp1

OA, OB = 0, 64
QA, QB = 0, 32
PFB = (128, 152)
FR = 192
NFR = 16
S = [[64, 80], [96, 112]]
P = [[128, 136], [144, 152]]
CA, CB = 160, 176
PT = 192
PS = [200, 201]
LA, LB = 202, 203
V_L16 = 204; V_KA = 205; V_VA = 206
V_RELA = 207; V_RELB = 208; V_NEG = 209
V_T = 210
V_DA, V_DB = 226, 227
V_AA, V_AB = 228, 229
V_MASK = 230; V_VBASE = 231; V_REL = [232, 233]
V_ST = 236
V_MA, V_MB, V_MR = 214, 216, 218
MACC = 128
S_MW, S_MH = 12, 60
s_ma, s_mb, s_ml = 85, 88, 89
S_K, S_V, S_Q, S_C = 4, 8, 12, 16
s_w, s_h, s_i, s_g1, s_cnt, s_ks, s_vs, s_t0, s_thr = 20, 21, 22, 23, 24, 25, 26, 27, 28
s_t1, s_step = 29, 32
S_RET = 30
S_M = 40
D = 8
THR = 0x4e800000

def v(b, n=1): return f'v{b}' if n == 1 else f'v[{b}:{b+n-1}]'
def ar(b, n=1): return f'a{b}' if n == 1 else f'a[{b}:{b+n-1}]'
MF = 'v_mfma_f32_32x32x16_bf16'

class Iter:
    def __init__(self, qk, sm, pv, next_qk, par, czero=False):
        self.qk, self.sm, self.pv, self.next_qk, self.par, self.czero = qk, sm, pv, next_qk, par, czero

def nfr(mode): return {None: 0, 1: 8, 2: 16}[mode]
PMAP = list(range(8))

class Attn:
    def __init__(self, a, name, diag=False, **opt):
        self.a = a; self.name = name; self.diag = diag; self.opt = opt; self.st = (RTStamps if opt.get('rt') else Stamps)(a, diag, vreg=254, sreg=30)
        global D
        D = opt.get('D', 8)
        PMAP[:] = [0, 1, 4, 5, 2, 3, 6, 7] if opt.get('p16') else list(range(8)); self.mlp = opt.get('mlp', True); self.nomlp_i = opt.get('nomlp_i', 7)
        self.phase = 0
        self.slow = []
        self.uid = 0
        self.vm = {}

    def simulate(self):
        res = {}
        self.vmm = {}
        for i in range(8):
            G1 = 4*(i+1)
            def mode(g): return None if (g < 0 or g > 33) else (1 if g < G1 else 2)
            def first(g):
                return g if g <= G1 else G1 + 2*(g-G1)
            def r(g): return 1 if g < G1 else 2
            issued = []
            def issue(kind, b0, nb):
                for b in range(b0, b0+nb):
                    issued.extend([(kind, b)]*2)
            kd = 0; vd = 0
            issue('K', 0, 6); issue('V', 0, 4)
            kd, vd = 6, 4
            kfree = 0; vfree = 0
            def need(n):
                req = []
                if mode(n+3): req += [('K', b) for b in range(first(n+3), first(n+3)+r(n+3))]
                if mode(n+1): req += [('V', b) for b in range(first(n+1), first(n+1)+r(n+1))]
                last = -1
                for k, x in enumerate(issued):
                    if x in req: last = k
                for x in req: assert x in issued, (i, n, x)
                return len(issued) - 1 - last if last >= 0 else None
            def pos(n):
                if n <= -1: return ('pro', n)
                if n <= G1-5:
                    if n >= G1-6 : return ('p1peel', n & 1)
                    return ('p1loop', n & 1)
                if n <= G1-1: return ('trans', n-G1)
                if n <= 31:
                    if n >= 30: return ('p2peel', n & 1)
                    return ('p2loop', n & 1)
                return ('epi', n)
            for n in range(-3, 34):
                if n == -1 and self.mlp: issued.extend([('M', 0)]*4 + [('M', 1)]*4)
                if n >= -2:
                    if mode(n) and n <= 31:
                        b0 = vd; nb = r(n)
                        assert b0 + nb - 8 <= (first(n-1) if n-1 >= 0 else 0), (i, n, b0, nb)
                        issue('V', b0, nb); vd += nb
                p = pos(n)
                if self.mlp and 0 <= n <= 31:
                    idx = [k for k, x in enumerate(issued) if x == ('M', n)]
                    if idx:
                        Nm = len(issued) - 1 - idx[-1]
                        self.vmm[p] = min(self.vmm.get(p, 99), Nm)
                    else: assert n >= 32 or i == 7 or True
                    if p[0] != 'p2peel': issued.extend([('M', n+2)]*4)
                N = need(n)
                if N is not None:
                    res[p] = min(res.get(p, 99), N)
                if mode(n+3) or (n <= 31 and n >= -3):
                    nb = r(n+3)
                    if n <= 30 or True:
                        assert kd + nb - 8 <= first(n+3), (i, n, kd, nb)
                        issue('K', kd, nb); kd += nb
                if n == G1-1: issued.extend([('S', 0)]*8)
        self.vm = res
        return res

    def dma_group(self, kind, nb, split=False):
        srd_, so = (S_K, s_ks) if kind == 'K' else (S_V, s_vs)
        g = []
        if kind == 'K':
            pre = [f's_and_b32 m0, s{so}, 0xffff']
        else:
            pre = [f's_and_b32 s{s_t0}, s{so}, 0xffff', f's_or_b32 m0, s{s_t0}, 0x10000']
        n = 2*nb
        if split: g.append(pre)
        for k in range(n):
            l = []
            if k == 0 and not split: l += pre + ['s_nop 0']
            off = f' offset:{k*1024}' if k else ''
            l.append(f'buffer_load_dwordx4 v{V_L16}, s[{srd_}:{srd_+3}], s{so} offen{off} lds')
            if k == n-1: l.append(f's_add_u32 s{so}, s{so}, {nb*8192}')
            g.append(l)
        return g

    def mlp_dma_groups(self, par):
        g = []
        for vo, srd_, so, step, off in ((V_MA, S_MW, s_ma, 16*3584, 0), (V_MB, S_MH, s_mb, 16*1024, 2048)):
            g.append([f's_add_u32 m0, s{s_ml}, {par*4096+off}'])
            g.append([f'buffer_load_dwordx4 v{vo}, s[{srd_}:{srd_+3}], s{so} offen lds'])
            g.append([f'buffer_load_dwordx4 v{vo+1}, s[{srd_}:{srd_+3}], s{so} offen offset:1024 lds', f's_add_u32 s{so}, s{so}, {step}'])
        return g

    def sm_ops(self, it):
        sm = it.sm; pr = it.par ^ 1
        ops = []
        masked = sm.endswith('m')
        init = sm == 'init'
        mode = '1' if init else sm[0]
        for b in range(2):
            Sb = S[pr][b]; Pb = P[pr][b]
            domask = masked and (mode == '2' or b == 0)
            blk = []
            if domask:
                def cmp(e): return (4, f'v_cmp_ge_i32 s[{S_M+2*(e%8)}:{S_M+2*(e%8)+1}], v{V_REL[b]}, {8*(e>>2)+(e&3)}')
                def cnd(e): return (4, f'v_cndmask_b32 v{Sb+e}, v{V_NEG}, v{Sb+e}, s[{S_M+2*(e%8)}:{S_M+2*(e%8)+1}]')
                blk += [cmp(0), cmp(1), cmp(2), cmp(3), cnd(0)]
            for e in range(16):
                if domask:
                    if e+4 < 16: blk.append(cmp(e+4))
                    if e+1 < 16: blk.append(cnd(e+1))
                if init:
                    if e == 0: blk.append((4, f'v_sub_f32 v{Sb}, v{Sb}, v{V_DA if b == 0 else V_DB}'))
                    if e+1 < 16: blk.append((4, f'v_sub_f32 v{Sb+e+1}, v{Sb+e+1}, v{V_DA if b == 0 else V_DB}'))
                blk.append((8, f'v_exp_f32 v{PT+(e%8)}, v{Sb+e}'))
                if e >= 2 or True:
                    k = e-1
                    if k == 1: blk.append((4, f'v_add_f32 v{PS[b]}, v{PT+0}, v{PT+1}'))
                    elif k > 1: blk.append((4, f'v_add_f32 v{PS[b]}, v{PS[b]}, v{PT+(k%8)}'))
                    if k >= 1 and k % 2 == 1:
                        blk.append((4, f'v_cvt_pk_bf16_f32 v{Pb+PMAP[k>>1]}, v{PT+((k-1)%8)}, v{PT+(k%8)}'))
            blk.append((4, f'v_add_f32 v{PS[b]}, v{PS[b]}, v{PT+(15%8)}'))
            blk.append((4, f'v_cvt_pk_bf16_f32 v{Pb+PMAP[7]}, v{PT+(14%8)}, v{PT+(15%8)}'))
            ops += blk
        if not init and not self.opt.get('nocheck'):
            ops.append((4, f'v_max_f32 v{V_T}, v{PS[0]}, v{PS[1]}'))
            ops.append((4, f'v_cmp_lt_f32 vcc, s{s_thr}, v{V_T}'))
        return ops

    def rel_setup(self, it):
        return []

    def emit_iter(self, it, pos, extra_pre=None, name='', extra_post=None):
        a = self.a
        par = it.par
        ph = self.phase
        mf = []
        reads = []
        fidx = 0
        def fr(k): return FR + 4*((ph + k) % NFR)
        Sw = S[par]; Pr = P[par]
        if it.qk == 1:
            for j in range(8):
                A = ar(fr(fidx+j), 4)
                for b, Q, C in ((0, QA, CA), (1, QB, CB)):
                    c = ('0' if it.czero else v(C, 16)) if j == 0 else v(Sw[b], 16)
                    mf.append((f'{MF} {v(Sw[b],16)}, {A}, {v(Q+4*j,4)}, {c}', fidx+j))
                reads.append((2*j, f'ds_read_b128 {A}, v{V_KA} offset:{j*1024}', fidx+j))
            fidx += 8
        elif it.qk == 2:
            for f in range(16):
                b, j = f >> 3, f & 7
                A = ar(fr(fidx+f), 4)
                c = ('0' if it.czero else v(CB, 16)) if j == 0 else v(Sw[b], 16)
                mf.append((f'{MF} {v(Sw[b],16)}, {A}, {v(QB+4*j,4)}, {c}', fidx+f))
                reads.append((f, f'ds_read_b128 {A}, v{V_KA} offset:{f*1024}', fidx+f))
            fidx += 16
        mlp = self.mlp and getattr(it, 'mlp', False)
        m0 = len(mf)
        if mlp:
            for ft in range(2):
                for dt in range(2):
                    acc = ar(MACC+16*(2*ft+dt), 16)
                    mf.append((f'{MF} {acc}, {v(V_ST+4*ft,4)}, {v(V_ST+8+4*dt,4)}, {acc}', 'm7' if (ft, dt) == (0, 0) else None))
        s0 = len(mf)
        if it.pv == 1:
            for f in range(8):
                t, db = f >> 2, f & 3
                A = ar(fr(fidx+f), 4)
                for b, O in ((0, OA), (1, OB)):
                    mf.append((f'{MF} {ar(O+16*db,16)}, {A}, {v(Pr[b]+4*t,4)}, {ar(O+16*db,16)}', fidx+f))
                reads.append((s0+2*f, f'ds_read_b128 {A}, v{V_VA} offset:{f*1024}', fidx+f))
            fidx += 8
        elif it.pv == 2:
            for f in range(16):
                b, t, db = f >> 3, (f >> 2) & 1, f & 3
                A = ar(fr(fidx+f), 4)
                mf.append((f'{MF} {ar(OB+16*db,16)}, {A}, {v(Pr[b]+4*t,4)}, {ar(OB+16*db,16)}', fidx+f))
                reads.append((s0+f, f'ds_read_b128 {A}, v{V_VA} offset:{f*1024}', fidx+f))
            fidx += 16
        ns = len(mf)
        nown = fidx
        lead_in = [r for r in reads if it.qk and r[0] < D and r[2] < nfr(it.qk)]
        own = [r for r in reads if r not in lead_in]
        lead_out = []
        if it.next_qk:
            n = nfr(it.next_qk)
            for j in range(n):
                fu = 2*j if it.next_qk == 1 else j
                if fu < D:
                    A = ar(FR + 4*((ph + nown + j) % NFR), 4)
                    lead_out.append((ns + fu, f'ds_read_b128 {A}, v{V_KA} offset:{j*1024}', nown+j))
        bslot = max(ns - D, 0)
        slots = [[] for _ in range(ns+1)]
        pre = []
        order = [r[2] for r in lead_in]
        def place_read(slot, r):
            (pre if slot < 0 else slots[slot]).append(('ds', r[1], r[2]))
        for r in own:
            place_read(r[0]-D if r[0]-D >= 0 else -1, r)
        if mlp:
            base = par*4096
            rd = []
            for op in range(2):
                for tl in range(2):
                    r = V_ST + 8*op + 4*tl
                    rd.append(f'ds_read_b64_tr_b16 {v(r,2)}, v{V_MR+tl} offset:{base+op*2048}')
                    rd.append(f'ds_read_b64_tr_b16 {v(r+2,2)}, v{V_MR+tl} offset:{base+op*2048+512}')
            slots[m0-8].append(('x', f's_waitcnt vmcnt({self.vmm[pos]})'))
            for k, t_ in enumerate(rd): slots[m0-8+k//2].append(('ds', t_, f'm{k}'))
        win = []
        has_bar = pos is not None and pos in self.vm
        if has_bar:
            if not self.opt.get('novm'): win.append(('x', f's_waitcnt vmcnt({0 if pos == ("epi", 32) else self.vm[pos]})'))
            if not self.opt.get('nobar'): win.append(('x', 's_barrier'))
        if it.qk:
            win.append(('x', f'v_add_u32 v{V_KA}, {8192*(1 if it.qk==1 else 2)}, v{V_KA}'))
            win.append(('x', f'v_and_b32 v{V_KA}, 0xffff, v{V_KA}'))
        if it.pv:
            win.append(('x', f'v_add_u32 v{V_VA}, {8192*(1 if it.pv==1 else 2)}, v{V_VA}'))
            win.append(('x', f'v_and_or_b32 v{V_VA}, v{V_VA}, v{V_MASK}, v{V_VBASE}'))
        for r in own:
            assert r[0]-D < bslot or ns <= D, (r, bslot)
        vg = self.dma_group('V', 1 if it.pv == 1 else 2, split=True) if (it.pv and not getattr(it, 'nov', False)) else []
        kg = self.dma_group('K', 1 if it.next_qk == 1 else 2, split=True) if (it.next_qk or getattr(it, 'forcek', False)) else []
        if self.opt.get('nodma') and pos and pos[0] != 'pro': vg = []; kg = []
        mg = []
        if mlp and getattr(it, 'mlp_dma', True):
            pos_m = [1, 2, 4, 6, 7, 9] if self.opt.get('spread') else [1, 2, 3, 4, 5, 6]
            mg = [(m0+pos_m[k], g) for k, g in enumerate(self.mlp_dma_groups(par))]
        if getattr(it, 'mlp_first', False):
            gs = self.mlp_dma_groups(0) + self.mlp_dma_groups(1)
            gs = [g + ['s_nop 0'] if 'm0' in g[0] else g for g in gs]
            mg = [(k*7//len(gs), g) for k, g in enumerate(gs)]
        sm = self.sm_ops(it) if it.sm else []
        if self.opt.get('nosm'): sm = []
        if self.opt.get('noexp'): sm = [(c, t) for c, t in sm if 'exp' not in t]
        if self.opt.get('noadd'): sm = [(c, t) for c, t in sm if 'v_add_f32' not in t]
        tot = sum(c for c, _ in sm)
        fixed = [0.0]*ns
        dsc = self.opt.get('dsc', 4)
        for k in range(ns):
            fixed[k] += sum(dsc if x[0] == 'ds' else 4 for x in slots[k])
        dmac = self.opt.get('dmac', 4)
        def gcost(grp): return sum(dmac if l.startswith('buffer_') else 4 for l in grp)
        vstep = 1
        for k, grp in enumerate(vg):
            sl = min(ns-1, k*(vstep if len(vg) > 3 else 2))
            if self.opt.get('spread') and len(vg) == 5 and mlp: sl = [0, 1, 3, 5, 7][k]
            slots[sl].append(('dma', grp)); fixed[sl] += gcost(grp)
        for sl, grp in mg:
            slots[sl].append(('dma', grp)); fixed[sl] += gcost(grp)
        slots[bslot] = win + slots[bslot]; fixed[bslot] += 4*len(win)
        for r in lead_out:
            sl = min(ns-1, r[0]-D); slots[sl].append(('ds', r[1], r[2])); fixed[sl] += dsc
        for k, grp in enumerate(kg):
            sl = min(ns-1, bslot + k*(1 if len(kg) > 3 else 2) + (1 if k else 0))
            if self.opt.get('spread') and len(kg) == 5 and ns - bslot >= 8: sl = bslot + [0, 1, 3, 5, 7][k]
            slots[sl].append(('dma', grp)); fixed[sl] += gcost(grp)
        xf = list(getattr(it, 'fill', [])); xg = list(getattr(it, 'fill_groups', []))
        if xf or xg:
            nsl = ns
            half = max(1, int(nsl*0.55))
            for k, x in enumerate(xf): slots[min(half-1, k*half//len(xf))].append(x)
            for k, g in enumerate(xg): slots[min(nsl-1, half + k*(nsl-half)//len(xg))].append(('dmag', g))
        total = tot + sum(fixed)
        smslots = [[] for _ in range(ns)]
        if sm:
            k = 0; cum = 0.0; target_end = ns - self.opt.get('tail', 1.6)
            acc = 0.0
            for sl in range(ns):
                acc += fixed[sl]
                lim = total * (sl+1) / target_end
                while k < len(sm) and (acc + sm[k][0]*0.5 <= lim or sl == ns-1):
                    smslots[sl].append(sm[k]); acc += sm[k][0]; k += 1
        if extra_pre:
            for l in extra_pre: a(l)
        q = list(order)
        def emit_fill(x):
            if x[0] == 'ds':
                a(x[1]); q.append(x[2])
            elif x[0] == 'dma':
                for l in x[1]: a(l)
            elif x[0] == 'dmag':
                for l in x[1][0]: a(l)
                it.vq.push(x[1][1])
            else:
                a(x[1])
        for x in pre: emit_fill(x)
        waited = -1
        for k, (txt, f) in enumerate(mf):
            if f is not None and f in q:
                idx = q.index(f)
                ahead = self.opt.get('wahead', 1)
                idx2 = min(idx + ahead, len(q)-1) if (k % 2 == 0 or ahead > 1) else idx
                idx2 = max(idx, min(idx2, len(q)-1-self.opt.get('wmin', 0)))
                nleft = len(q) - 1 - idx2
                a(f's_waitcnt lgkmcnt({nleft})')
                q = q[idx2+1:]
            a(txt)
            fl = slots[k]
            dfirst = self.opt.get('dfirst') and not any(x[0] == 'x' for x in fl)
            if dfirst:
                for x in fl:
                    if x[0] in ('dma', 'dmag'): emit_fill(x)
            for x in fl:
                if x[0] in ('x', 'ds'): emit_fill(x)
            for c, t in smslots[k]: a(t)
            if not dfirst:
                for x in fl:
                    if x[0] in ('dma', 'dmag'): emit_fill(x)
        self.phase = (ph + nown) % NFR
        for l in (extra_post or []): a(l)
        if it.sm and it.sm != 'init' and not self.opt.get('nocheck'):
            self.uid += 1
            u = self.uid
            a(f's_cbranch_vccnz {self.name}_slow{u}')
            a.label(f'{self.name}_join{u}')
            self.l_update(it.sm)
            self.slow.append((u, it))
        elif it.sm == 'init':
            a(f'v_mov_b32 v{LA}, v{PS[0]}')
            a(f'v_mov_b32 v{LB}, v{PS[1]}')

    def l_update(self, sm):
        a = self.a
        if sm[0] == '1' or sm == 'init':
            a(f'v_add_f32 v{LA}, v{LA}, v{PS[0]}')
            a(f'v_add_f32 v{LB}, v{LB}, v{PS[1]}')
        else:
            a(f'v_add_f32 v{LB}, v{LB}, v{PS[0]}')
            a(f'v_add_f32 v{LB}, v{LB}, v{PS[1]}')

    def rowmax(self, dst, blocks):
        a = self.a
        regs = [b+e for b in blocks for e in range(16)]
        a(f'v_max3_f32 v{dst}, v{regs[0]}, v{regs[1]}, v{regs[2]}')
        k = 3
        while k+1 < len(regs):
            a(f'v_max3_f32 v{dst}, v{dst}, v{regs[k]}, v{regs[k+1]}'); k += 2
        if k < len(regs): a(f'v_max_f32 v{dst}, v{dst}, v{regs[k]}')
        a(f'v_mov_b32 v{V_T+1}, v{dst}')
        a('s_nop 1')
        a(f'v_permlane32_swap_b32 v{V_T+1}, v{dst}')
        a('s_nop 1')
        a(f'v_max_f32 v{dst}, v{dst}, v{V_T+1}')

    def plain_sm(self, pr):
        a = self.a
        for b in range(2):
            for e in range(0, 16, 2):
                a(f'v_exp_f32 v{PT}, v{S[pr][b]+e}')
                a(f'v_exp_f32 v{PT+1}, v{S[pr][b]+e+1}')
                a('s_nop 0')
                a(f'v_cvt_pk_bf16_f32 v{P[pr][b]+PMAP[e>>1]}, v{PT}, v{PT+1}')
                if e == 0:
                    a(f'v_add_f32 v{PS[b]}, v{PT}, v{PT+1}')
                else:
                    a(f'v_add_f32 v{PS[b]}, v{PS[b]}, v{PT}')
                    a(f'v_add_f32 v{PS[b]}, v{PS[b]}, v{PT+1}')

    def sub_delta(self, pr, mode):
        a = self.a
        for b in range(2):
            dl = V_DA if (mode == 1 and b == 0) else V_DB
            for e in range(16):
                a(f'v_sub_f32 v{S[pr][b]+e}, v{S[pr][b]+e}, v{dl}')

    def emit_slow(self, u, it):
        a = self.a
        pr = it.par ^ 1
        mode = 1 if it.sm[0] == '1' else 2
        a.label(f'{self.name}_slow{u}')
        a('s_nop 15')
        a('s_nop 7')
        if mode == 1:
            self.rowmax(V_DA, [S[pr][0]])
            self.rowmax(V_DB, [S[pr][1]])
            a(f'v_max_f32 v{V_DA}, 0, v{V_DA}')
        else:
            self.rowmax(V_DB, [S[pr][0], S[pr][1]])
            a(f'v_mov_b32 v{V_DA}, 0')
        a(f'v_max_f32 v{V_DB}, 0, v{V_DB}')
        a(f's_call_b64 s[{S_RET}:{S_RET+1}], {self.name}_rescale')
        self.sub_delta(pr, mode)
        if it.qk: self.sub_delta(it.par, it.qk)
        self.plain_sm(pr)
        a(f's_branch {self.name}_join{u}')

    def emit_rescale(self):
        a = self.a
        a.label(f'{self.name}_rescale')
        a(f'v_exp_f32 v{V_AA}, -v{V_DA}')
        a(f'v_exp_f32 v{V_AB}, -v{V_DB}')
        a('s_nop 0')
        for O, al in ((OA, V_AA), (OB, V_AB)):
            for e in range(0, 64, 4):
                for k in range(4): a(f'v_accvgpr_read_b32 v{V_T+k}, a{O+e+k}')
                for k in range(4): a(f'v_mul_f32 v{V_T+k}, v{V_T+k}, v{al}')
                for k in range(4): a(f'v_accvgpr_write_b32 a{O+e+k}, v{V_T+k}')
        a(f'v_mul_f32 v{LA}, v{LA}, v{V_AA}')
        a(f'v_mul_f32 v{LB}, v{LB}, v{V_AB}')
        for e in range(16):
            a(f'v_sub_f32 v{CA+e}, v{CA+e}, v{V_DA}')
            a(f'v_sub_f32 v{CB+e}, v{CB+e}, v{V_DB}')
        a('s_nop 1')
        a(f's_setpc_b64 s[{S_RET}:{S_RET+1}]')

    def mask_inplace(self, pr, b):
        a = self.a
        for e0 in range(0, 16, 8):
            for e in range(e0, e0+8):
                a(f'v_cmp_ge_i32 s[{S_M+2*(e%8)}:{S_M+2*(e%8)+1}], v{V_REL[b]}, {8*(e>>2)+(e&3)}')
            a('s_nop 1')
            for e in range(e0, e0+8):
                a(f'v_cndmask_b32 v{S[pr][b]+e}, v{V_NEG}, v{S[pr][b]+e}, s[{S_M+2*(e%8)}:{S_M+2*(e%8)+1}]')

    def emit_init(self):
        a = self.a
        a(f'v_mov_b32 v{V_REL[0]}, v{V_RELA}')
        a('s_nop 12')
        a(f's_cmp_lg_u32 s{s_i}, 0'); a(f's_cbranch_scc1 {self.name}_nomask0')
        self.mask_inplace(0, 0)
        a.label(f'{self.name}_nomask0')
        self.rowmax(V_DA, [S[0][0]])
        self.rowmax(V_DB, [S[0][1]])
        for e in range(16):
            a(f'v_sub_f32 v{CA+e}, 0, v{V_DA}')
            a(f'v_sub_f32 v{CB+e}, 0, v{V_DB}')
        a('s_nop 1')

    def epilogue_tile(self, O, L, qt_sgpr, vq=None):
        a = self.a
        a(f'v_mov_b32 v{V_T+1}, v{L}')
        a('s_nop 1')
        a(f'v_permlane32_swap_b32 v{V_T+1}, v{L}')
        a('s_nop 1')
        a(f'v_add_f32 v{L}, v{L}, v{V_T+1}')
        a(f'v_rcp_f32 v{V_T+2}, v{L}')
        a('s_nop 0')
        a(f'v_mov_b32 v{V_T+3}, v{V_T+2}')
        inv = V_T+2
        k = 0
        for db in range(4):
            for t in range(2):
                tmp = V_ST + 8*(k % 2)
                for e in range(8): a(f'v_accvgpr_read_b32 v{tmp+e}, a{O+16*db+8*t+e}')
                for e in range(0, 8, 2): a(f'v_pk_mul_f32 v[{tmp+e}:{tmp+e+1}], v[{tmp+e}:{tmp+e+1}], v[{inv}:{inv+1}]')
                for e in range(0, 8, 2): a(f'v_cvt_pk_bf16_f32 v{tmp+(e>>1)}, v{tmp+e}, v{tmp+e+1}')
                j = 2*db+t
                off = j*1024
                so = qt_sgpr if off < 4096 else qt_sgpr+1
                a(f'buffer_store_dwordx4 v[{tmp}:{tmp+3}], v{V_L16}, s[{S_C}:{S_C+3}], s{so} offen offset:{off % 4096}{STF.st}')
                if vq: vq.push('ctx')
                k += 1

    def stamp(self, same=False):
        self.st()
    def dump_stamps(self):
        self.st.dump(100*MB, s_w, 253)

    def emit(self):
        self.simulate()
        M = self.emit_head()
        self.emit_body(M)

    def kv_srd_lines(self):
        a = Asm()
        a(f's_lshl_b32 s{s_t0}, s{s_h}, 19')
        a(f's_lshl_b32 s{s_t1}, s{s_i}, 15')
        a(f's_sub_u32 s{s_t1}, 0x80000, s{s_t1}')
        for S_, base in ((S_K, WS_K), (S_V, WS_V)):
            a(f's_add_u32 s{S_}, s34, {base}')
            a(f's_addc_u32 s{S_+1}, s35, 0')
            a(f's_add_u32 s{S_}, s{S_}, s{s_t0}')
            a(f's_addc_u32 s{S_+1}, s{S_+1}, 0')
            a(f's_and_b32 s{S_+1}, s{S_+1}, 0xffff')
            a(f's_mov_b32 s{S_+2}, s{s_t1}')
            a(f's_mov_b32 s{S_+3}, 0x20000')
        make_srd(a, S_C, 34, WS_CTX, 16*MB)
        for qt, d in ((36, 56), (37, 58)):
            a(f's_lshl_b32 s{s_t0}, s{qt}, 5')
            a(f's_add_u32 s{s_t0}, s{s_t0}, s{s_h}')
            a(f's_lshl_b32 s{d}, s{s_t0}, 13')
            a(f's_add_u32 s{d+1}, s{d}, 4096')
        return a.lines

    def code_touch(self, tag, lab0, lab1, per, vt):
        N = self.name
        return [f's_getpc_b64 s[54:55]', f'{N}_pc{tag}:',
                's_lshr_b32 s32, s2, 3', 's_lshl_b32 s32, s32, 2', f's_add_u32 s32, s32, s{s_w}', f's_mul_i32 s32, s32, {per*128}',
                f'v_lshrrev_b32 v{vt}, 4, v{V_L16}', f'v_min_u32 v{vt}, {per-1}, v{vt}', f'v_lshlrev_b32 v{vt}, 7, v{vt}', f'v_add_u32 v{vt}, s32, v{vt}',
                f'v_add_u32 v{vt}, {lab0}-{N}_pc{tag}, v{vt}', f'v_min_u32 v{vt}, {lab1}-{N}_pc{tag}, v{vt}',
                f'v_mov_b32 v{vt+1}, s55', f'v_add_co_u32 v{vt}, vcc, s54, v{vt}', 's_nop 1', f'v_addc_co_u32 v{vt+1}, vcc, 0, v{vt+1}, vcc',
                f'global_load_dword v253, v[{vt}:{vt+1}], off']

    def kv_groups(self, kind, nb):
        G = []
        for b in range(nb):
            for grp in self.dma_group(kind, 1): G.append((grp, 'kv'))
        return G

    def q_to_frags(self):
        self.q_to_frags_cvt(); self.q_to_frags_srd()

    def q_to_frags_cvt(self):
        a = self.a
        a('s_nop 7')
        for st, Q in ((0, QA), (1, QB)):
            for dt in range(4):
                A = 64 + 16*(4*st+dt)
                for t in range(2):
                    for k in range(4):
                        a(f'v_cvt_pk_bf16_f32 v{Q+4*(2*dt+t)+k}, v{A+8*t+2*k}, v{A+8*t+2*k+1}')

    def q_to_frags_srd(self):
        a = self.a
        if self.mlp:
            make_srd(a, S_MW, 68, 0, 2048*3584); make_srd(a, S_MH, 34, WS_H, 2*MB)
            a(f's_cmp_eq_u32 s{s_i}, {self.nomlp_i}')
            a(f's_cselect_b32 s{S_MW+2}, 0, s{S_MW+2}')
            a(f's_cselect_b32 s{S_MH+2}, 0, s{S_MH+2}')

    def setup_attn_regs(self):
        a = self.a; opt = self.opt
        a(f's_lshl_b32 s{s_ks}, s{s_w}, 11')
        a(f's_mov_b32 s{s_vs}, s{s_ks}')
        a(f's_mov_b32 s{s_thr}, {THR}')
        a(f'v_mov_b32 v{V_NEG}, 0xf149f2ca')
        a(f'v_mov_b32 v{V_MASK}, 0xffff')
        a(f'v_mov_b32 v{V_VBASE}, 0x10000')
        a(f'v_mov_b32 v{V_KA}, v{V_L16}')
        a(f'v_add_u32 v{V_VA}, 0x10000, v{V_L16}')
        a(f'v_and_b32 v3, 31, v2')
        a(f'v_lshrrev_b32 v4, 5, v2')
        a(f'v_lshlrev_b32 v4, 2, v4')
        a(f'v_sub_u32 v3, v3, v4')
        a(f's_lshl_b32 s{s_t0}, s36, 5')
        a(f'v_add_u32 v{V_RELA}, s{s_t0}, v3')
        a(f's_lshl_b32 s{s_t0}, s37, 5')
        a(f'v_add_u32 v{V_RELB}, s{s_t0}, v3')
        M = Mlp1(a, tshift=(4 if self.nomlp_i == 0 else 0)); M.ids()
        if self.mlp:
            T = 33
            a(f's_lshl_b32 s{s_ml}, s{s_w}, 13'); a(f's_add_u32 s{s_ml}, s{s_ml}, 131072')
            gen_t2.lane_setup(a, 5, T)
            for t in range(2):
                X = T+5; dst = V_MR+t
                a(f'v_mul_u32_u24 v{X}, 8, v{T}'); a(f'v_add_u32 v{X}, v{X}, v{T+1}'); a(f'v_lshlrev_b32 v{X}, 7, v{X}')
                a(f'v_xor_b32 v{dst}, {t}, v{T+4}'); a(f'v_lshl_add_u32 v{X}, v{dst}, 6, v{X}')
                a(f'v_lshl_add_u32 v{X}, v{T+2}, 5, v{X}'); a(f'v_lshl_add_u32 v{X}, v{T+3}, 3, v{X}')
                a(f'v_add_u32 v{dst}, s{s_ml}, v{X}')
            for dst, stride in ((V_MA, 3584), (V_MB, 1024)):
                mt = getattr(self, 'mtmp', 48)
                gen_t2.dma_voffs(a, mt, 5, T, stride, s_t1)
                a(f'v_mov_b32 v{dst}, v{mt}'); a(f'v_mov_b32 v{dst+1}, v{mt+1}')
            a(f's_mul_i32 s{s_ma}, s{s_w}, {512*3584}'); a(f's_lshl_b32 s{s_t1}, s{M.s_fb}, 7'); a(f's_add_u32 s{s_ma}, s{s_ma}, s{s_t1}')
            a(f's_lshl_b32 s{s_mb}, s{s_w}, 19'); a(f's_lshl_b32 s{s_t1}, s{M.s_db}, 7'); a(f's_add_u32 s{s_mb}, s{s_mb}, s{s_t1}')
        a(f'v_lshlrev_b32 v252, 3, v{V_L16}')
        a(f's_sub_u32 s{s_t0}, s2, 32'); a(f's_lshl_b32 s{s_t0}, s{s_t0}, 2'); a(f's_add_u32 s{s_t0}, s{s_t0}, s{s_w}')
        a(f's_lshl_b32 s74, s{s_t0}, 13')
        a(f's_mul_i32 s75, s{s_t0}, 4736')
        return M

    def emit_head(self):
        a = self.a; N = self.name; opt = self.opt
        vm = self.vm
        S_X, S_WQ = 12, 60
        a(f's_cmp_ge_u32 s2, 256')
        a(f's_cbranch_scc1 {N}_end')
        self.stamp()
        a(f's_load_dwordx2 s[34:35], s[0:1], {KA_WS}')
        a(f's_load_dwordx2 s[64:65], s[0:1], {KA_AX}')
        a(f's_load_dwordx2 s[66:67], s[0:1], {KA_WQ}')
        a(f's_load_dwordx2 s[68:69], s[0:1], {KA_W1}')
        a(f's_load_dwordx2 s[86:87], s[0:1], {KA_B1}')
        a(f's_load_dwordx2 s[70:71], s[0:1], {KA_WO}')
        a(f's_load_dwordx2 s[72:73], s[0:1], {KA_W2}')
        a(f'v_lshrrev_b32 v1, 6, v0')
        a(f'v_and_b32 v2, 63, v0')
        a(f'v_lshlrev_b32 v{V_L16}, 4, v2')
        a(f'v_readfirstlane_b32 s{s_w}, v1')
        a(f's_and_b32 s{s_t0}, s2, 7')
        a(f's_lshr_b32 s{s_t1}, s2, 3')
        a(f's_lshl_b32 s{s_h}, s{s_t0}, 2')
        a(f's_and_b32 s{s_t0}, s{s_t1}, 3')
        a(f's_add_u32 s{s_h}, s{s_h}, s{s_t0}')
        a(f's_lshr_b32 s{s_i}, s{s_t1}, 2')
        a(f's_add_u32 s{s_g1}, s{s_i}, 1')
        a(f's_lshl_b32 s{s_g1}, s{s_g1}, 2')
        a(f's_lshl_b32 s36, s{s_i}, 2')
        a(f's_add_u32 s36, s36, s{s_w}')
        a(f's_lshl_b32 s37, s{s_i}, 2')
        a(f's_sub_u32 s37, 60, s37')
        a(f's_add_u32 s37, s37, s{s_w}')
        vq = VmQueue()
        P = Proj(a, vq, s_w, 16384, 65536, ACC=64, FB=PFB, fbk='a', VA=8, V_L16=V_L16, VT=33, SG=40, wflags=(' nt' if opt.get('nt', True) else ''))
        P.setup_addrs(set_l16=False)
        a('s_waitcnt lgkmcnt(0)')
        make_srd(a, S_X, 64, 0, 2*MB); make_srd(a, S_WQ, 66, 0, 4*MB)
        init = [f's_lshl_b32 s{P.s_a0}, s36, 15', f's_lshl_b32 s{P.s_a1}, s37, 15',
                f's_lshl_b32 s{P.s_wo}, s{s_w}, 17', f's_lshl_b32 s{s_t0}, s{s_h}, 8', f's_add_u32 s{P.s_wo}, s{P.s_wo}, s{s_t0}']
        qpass = [dict(swap=False, srdA=S_X, srdW=S_WQ, init=init, epi=lambda: None, acck='v')]
        P.prologue(qpass[0])
        for l in self.kv_srd_lines(): a(l)
        M = self.setup_attn_regs()
        for e in range(128): a(f'v_accvgpr_write_b32 a{e}, 0')
        P.start_compute()
        self.stamp()
        KG = self.kv_groups('K', 6); VG = self.kv_groups('V', 4)
        def xl(p, t): return KG[:6] if t == 5 else (VG[:2] if t == 6 else [])
        def xe(p, t): return KG[6:] if t == 6 else (VG[2:] if t == 7 else [])
        P.run(qpass, extra_early=xe, extra_late=xl)
        self.stamp()
        self.q_to_frags()
        return M

    def emit_body(self, M):
        a = self.a; N = self.name; opt = self.opt
        vm = self.vm
        a.label(f'{N}_body')
        a(f's_waitcnt vmcnt({vm[("pro",-3)]})')
        a('s_barrier')
        for grp in self.dma_group('K', 1):
            for l in grp: a(l)
        for j in range(D//2):
            a(f'ds_read_b128 {ar(FR+4*j,4)}, v{V_KA} offset:{j*1024}')
        it = Iter(1, None, None, 1, 0, czero=True)
        if self.mlp: it.fill = [('x', f'v_accvgpr_write_b32 a{MACC+e}, 0') for e in range(64)]
        self.emit_iter(it, ('pro', -2))
        self.emit_init()
        self.stamp()
        it = Iter(1, 'init', None, 1, 1); it.mlp_first = self.mlp
        self.emit_iter(it, ('pro', -1))
        self.stamp()
        def MI(*args, dma=True):
            it = Iter(*args); it.mlp = True; it.mlp_dma = dma
            return it
        a(f's_cmp_eq_u32 s{s_i}, 0')
        a(f's_cbranch_scc1 {N}_trans')
        a(f's_sub_u32 s{s_cnt}, s{s_g1}, 6')
        a(f's_lshr_b32 s{s_cnt}, s{s_cnt}, 1')
        a('.p2align 6')
        a.label(f'{N}_p1loop')
        self.emit_iter(MI(1, '1', 1, 1, 0), ('p1loop', 0))
        self.emit_iter(MI(1, '1', 1, 1, 1), ('p1loop', 1))
        a(f's_sub_u32 s{s_cnt}, s{s_cnt}, 1')
        a(f's_cmp_lg_u32 s{s_cnt}, 0')
        a(f's_cbranch_scc1 {N}_p1loop')
        def pf(ptr, nb, so):
            if not opt.get('pf', True): return []
            l = Asm(); make_srd(l, 76, ptr, 0, nb); l(f'buffer_load_dword v253, v252, s[76:79], s{so} offen')
            return l.lines
        self.emit_iter(MI(1, '1', 1, 1, 0), ('p1peel', 0))
        def relA(k):
            return [f's_sub_u32 s{s_t1}, s{s_g1}, {k}', f's_lshl_b32 s{s_t1}, s{s_t1}, 5', f'v_subrev_u32 v{V_REL[0]}, s{s_t1}, v{V_RELA}']
        self.emit_iter(MI(1, '1m', 1, 1, 1), ('p1peel', 1), extra_pre=relA(4), extra_post=pf(72, 1792*4096, 74))
        for l in pf(70, 4*MB, 75): a(l)
        a.label(f'{N}_trans')
        self.stamp()
        self.emit_iter(MI(1, '1m', 1, 1, 0), ('trans', -4), extra_pre=relA(3))
        sw = [f's_lshl_b32 s{s_t0}, s{s_w}, 11']
        self.emit_iter(MI(1, '1m', 1, 2, 1), ('trans', -3), extra_pre=relA(2) + sw + [f's_add_u32 s{s_ks}, s{s_ks}, s{s_t0}'])
        self.emit_iter(MI(2, '1m', 1, 2, 0), ('trans', -2), extra_pre=relA(1))
        def relB(expr_lines):
            return expr_lines + [f'v_subrev_u32 v{V_REL[0]}, s{s_t1}, v{V_RELB}', f'v_subrev_u32 v{V_REL[1]}, 32, v{V_REL[0]}']
        self.emit_iter(MI(2, '2m', 1, 2, 1), ('trans', -1), extra_pre=relB([f's_lshl_b32 s{s_t1}, s{s_g1}, 5']))
        self.stamp()
        a('s_nop 12')
        self.epilogue_tile(OA, LA, 56)
        a(f's_lshl_b32 s{s_t0}, s{s_w}, 11')
        a(f's_add_u32 s{s_vs}, s{s_vs}, s{s_t0}')
        a(f's_cmp_eq_u32 s{s_i}, 7')
        a(f's_cbranch_scc1 {N}_epi')
        a(f's_sub_u32 s{s_cnt}, 30, s{s_g1}')
        a(f's_lshr_b32 s{s_cnt}, s{s_cnt}, 1')
        a('.p2align 6')
        a.label(f'{N}_p2loop')
        self.emit_iter(MI(2, '2', 2, 2, 0), ('p2loop', 0))
        self.emit_iter(MI(2, '2', 2, 2, 1), ('p2loop', 1))
        a(f's_sub_u32 s{s_cnt}, s{s_cnt}, 1')
        a(f's_cmp_lg_u32 s{s_cnt}, 0')
        a(f's_cbranch_scc1 {N}_p2loop')
        self.emit_iter(MI(2, '2', 2, 2, 0, dma=False), ('p2peel', 0), extra_post=(M.l2_prefetch(234) if opt.get('pf2', False) else None))
        relB32 = [f's_sub_u32 s{s_t1}, 64, s{s_g1}', f's_lshl_b32 s{s_t1}, s{s_t1}, 5']
        self.emit_iter(MI(2, '2m', 2, 2, 1, dma=False), ('p2peel', 1), extra_pre=relB(relB32))
        a.label(f'{N}_epi')
        self.stamp()
        relB33 = [f's_sub_u32 s{s_t1}, 66, s{s_g1}', f's_lshl_b32 s{s_t1}, s{s_t1}, 5']
        it = Iter(None, '2m', 2, None, 0); it.nov = True
        a('s_waitcnt lgkmcnt(0)')
        self.emit_iter(it, ('epi', 32), extra_pre=relB(relB33))
        it = Iter(None, None, 2, None, 1); it.nov = True
        vq2 = VmQueue()
        if self.mlp and opt.get('e2fill', True):
            it.fill, it.fill_groups = M.finish_pre()
            if opt.get('fusefin') and opt.get('pfcode3', True):
                it.fill_groups = list(it.fill_groups) + [(self.code_touch('c', f'{N}_phasec', f'{N}_end', 1, 60), 'code')]
            it.vq = vq2
        a('s_nop 1')
        self.emit_iter(it, None)
        if opt.get('fusefin'):
            import gen_final
            gen_final.final_pointer_loads(a)
        self.stamp()
        def fill():
            make_srd(a, 76, 34, WS_PART, 8*MB)
            a(f's_sub_u32 s{s_t0}, s2, 224'); a(f's_lshl_b32 s{s_t0}, s{s_t0}, 2'); a(f's_add_u32 s{s_t0}, s{s_t0}, s{s_w}'); a(f's_lshl_b32 s{s_t0}, s{s_t0}, 16')
            for e in range(4): a(f'v_mov_b32 v{V_T+4+e}, -1')
            a(f's_mov_b32 s{s_cnt}, 16')
            a.label(f'{N}_fill')
            for q in range(4):
                a(f'buffer_store_dwordx4 v[{V_T+4}:{V_T+7}], v{V_L16}, s[76:79], s{s_t0} offen offset:{q*1024}' + (' sc1' if (opt.get('fusefin') or opt.get('fillsc1', True)) else ''))
            a('s_waitcnt vmcnt(40)')
            a(f's_add_u32 s{s_t0}, s{s_t0}, 4096')
            a(f's_sub_u32 s{s_cnt}, s{s_cnt}, 1')
            a(f's_cmp_lg_u32 s{s_cnt}, 0')
            a(f's_cbranch_scc1 {N}_fill')
        def wbl2(lab):
            if opt.get('wbl2', True):
                a(f's_cmp_eq_u32 s{s_w}, 0'); a(f's_cbranch_scc0 {N}_{lab}'); a('buffer_wbl2 sc1'); a.label(f'{N}_{lab}')
        a(f's_cmp_eq_u32 s{s_i}, {self.nomlp_i}')
        a(f's_cbranch_scc1 {N}_nomlp')
        if opt.get('fusefin') and opt.get('l3', {}).get('ofirst', True) and self.nomlp_i == 7: M.final_wait = 2
        if opt.get('fusefin') and opt.get('l3', {}).get('ofirst', True) and opt.get('l3', {}).get('udefer', True) and self.nomlp_i == 7: M.final_wait = 0; M.defer = True
        M.epi_first = opt.get('epifirst', False)
        M.finish(vq2, lambda: self.epilogue_tile(OB, LB, 58, vq2), self.stamp, pre_done=opt.get('e2fill', True))
        if self.nomlp_i != 7:
            a(f's_cmp_eq_u32 s{s_i}, 7'); a(f's_cbranch_scc0 {N}_nofill')
            wbl2('nowb'); fill(); a('s_waitcnt vmcnt(0)')
            a.label(f'{N}_nofill')
        self.stamp()
        if opt.get('fusefin'):
            a(f's_branch {N}_phasec')
        else:
            self.dump_stamps()
            a('s_endpgm')
        a.label(f'{N}_nomlp')
        a('s_mov_b32 s61, 0x7ffff000')
        if self.nomlp_i == 7: wbl2('nowb')
        a('s_nop 15')
        self.epilogue_tile(OB, LB, 58)
        if self.nomlp_i == 7: fill()
        a('s_waitcnt vmcnt(0)')
        self.stamp()
        if opt.get('fusefin'):
            a.label(f'{N}_phasec')
            self.emit_phasec()
        else:
            self.dump_stamps()
        a.label(f'{N}_end')
        a('s_endpgm')
        for u, it in self.slow: self.emit_slow(u, it)
        self.emit_rescale()
```

```python
from asmlib import *
from layout import *
import gen_attn2 as A
from gen_attn2 import *
from gen_proj2 import Proj, VmQueue, frag_store_groups
from gen_proj import make_srd
import gen_proj, gen_final
from gen_kv import ProjKV
from gen_proj16 import Proj16, frag_store_groups16, q_to_frags16

class Main(Attn):
    def emit_phasec(self):
        a = self.a; N = self.name; opt = self.opt
        a('s_barrier')
        make_srd(a, 76, 34, WS_FL, 112*128)
        a(f's_lshr_b32 s27, s{s_h}, 3'); a('s_lshl_b32 s27, s27, 3'); a(f's_add_u32 s27, s27, s{s_i}'); a('s_lshl_b32 s27, s27, 7')
        a(f's_and_b32 s29, s{s_h}, 7'); a('s_lshl_b32 s29, s29, 2'); a('s_add_u32 s27, s27, s29')
        a('v_mov_b32 v41, s27')
        ofirst = opt.get('l3', {}).get('ofirst', True)
        a('s_mov_b32 s60, 0x7fffff00')
        a('s_mov_b32 s30, 1')
        a(f's_cmp_eq_u32 s{s_i}, {self.nomlp_i}'); a(f's_cbranch_scc1 {N}_cnou')
        a('s_mul_i32 s27, s80, 37'); a('s_lshr_b32 s27, s27, 8'); a('s_mul_i32 s29, s27, 7'); a('s_sub_u32 s29, s80, s29')
        a('s_lshl_b32 s29, s29, 1'); a('s_and_b32 s31, s81, 1'); a('s_add_u32 s29, s29, s31'); a('s_lshl_b32 s29, s29, 2')
        a('s_lshl_b32 s27, s27, 2'); a('s_lshr_b32 s31, s81, 1'); a('s_add_u32 s27, s27, s31'); a('s_add_u32 s27, s27, 32'); a('s_lshl_b32 s27, s27, 7'); a('s_add_u32 s27, s27, s29')
        if ofirst: a('s_mov_b32 s60, s27')
        else: a('v_writelane_b32 v41, s27, 1'); a('s_or_b32 s30, s30, 2')
        a.label(f'{N}_cnou')
        a(f's_cmp_eq_u32 s{s_i}, 7'); a(f's_cbranch_scc0 {N}_cflag')
        a('s_sub_u32 s27, s2, 224'); a('s_lshl_b32 s27, s27, 1'); a('s_add_u32 s27, s27, 48'); a('s_lshl_b32 s27, s27, 7')
        a('v_writelane_b32 v41, s27, 2'); a('s_add_u32 s27, s27, 128'); a('v_writelane_b32 v41, s27, 3'); a('s_or_b32 s30, s30, 12')
        a.label(f'{N}_cflag')
        a('v_mov_b32 v42, 1')
        a(f's_cmp_eq_u32 s{s_w}, 0'); a('s_cselect_b32 exec_lo, s30, 0'); a('s_mov_b32 exec_hi, 0')
        a('buffer_store_dword v42, v41, s[76:79], 0 offen sc1')
        a('s_mov_b64 exec, -1')
        def poll(s_sb, s_mb, s_p, s_tile, ofirst=False):
            make_srd(a, 56, 76, WS_FL, 112*128)
            a(f's_sub_u32 s49, 15, s{s_sb}'); a(f's_min_u32 s49, s49, s{s_sb}'); a(f's_lshl_b32 s50, s{s_p}, 3'); a('s_add_u32 s49, s49, s50'); a('s_lshl_b32 s49, s49, 7')
            a(f's_lshl_b32 s50, s{s_p}, 2'); a(f's_add_u32 s50, s50, s{s_mb}'); a('s_add_u32 s50, s50, 32'); a('s_lshl_b32 s50, s50, 7'); a('s_sub_u32 s50, s50, 32')
            a(f's_add_u32 s51, s{s_tile}, 48'); a('s_lshl_b32 s51, s51, 7')
            a('v_lshrrev_b32 v45, 2, v2')
            a('v_mov_b32 v46, s50'); a('v_mov_b32 v47, s49'); a('v_cmp_gt_u32 vcc, 32, v45'); a('s_nop 1'); a('v_cndmask_b32 v46, v46, v47, vcc')
            a('v_add_u32 v45, v45, v46'); a('v_writelane_b32 v45, s51, 22')
            a(f's_cmp_eq_u32 s{s_w}, {1 if opt.get("pollw1", True) else 0}'); a(f's_cbranch_scc0 {N}_cpolled')
            a('s_mov_b32 s49, 0')
            a.label(f'{N}_cpoll')
            a('buffer_load_dword v44, v45, s[56:59], 0 offen sc1')
            a('s_waitcnt vmcnt(0)')
            a('v_cmp_ne_u32 vcc, 1, v44'); a('s_nop 3'); a(f's_and_b32 s50, vcc_lo, {0xff if ofirst else 0x7fffff}'); a('s_cmp_eq_u32 s50, 0')
            a(f's_cbranch_scc1 {N}_cpolled')
            a('s_add_u32 s49, s49, 1'); a('s_cmp_ge_u32 s49, 0x20000'); a(f's_cbranch_scc1 {N}_cpolled')

            if opt.get("csleep", 0): a(f's_sleep {opt.get("csleep")}')
            a(f's_branch {N}_cpoll')
            a.label(f'{N}_cpolled')
            a('s_barrier')
        gen_final.emit_final(a, N + '_fin', inline=True, sync=poll, stamps=self.st, **opt.get('l3', {}))

    def emit_head(self):
        a = self.a; N = self.name; opt = self.opt
        S_CK, S_WK, S_X, S_O, S_WV, S_WQ = 4, 8, 12, 16, 92, 60
        S_H, S_G, S_GW = 76, (56 if opt.get('lnfill', False) else 48), 52
        a(f's_cmp_ge_u32 s2, 256')
        a(f's_cbranch_scc1 {N}_end')
        if opt.get('pfcode', True):
            per = opt.get('code_per', 5)
            a('s_getpc_b64 s[92:93]')
            a.label(f'{N}_pc0')
            a('s_lshr_b32 s32, s2, 3'); a('s_lshl_b32 s32, s32, 2')
            a('v_lshrrev_b32 v6, 6, v0'); a('v_add_u32 v6, s32, v6'); a(f'v_mul_u32_u24 v6, {per}, v6')
            a('v_and_b32 v7, 63, v0'); a(f'v_min_u32 v7, {per-1}, v7'); a('v_add_u32 v6, v6, v7'); a('v_lshlrev_b32 v6, 7, v6')
            a(f'v_min_u32 v6, {N}_end-{N}_pc0, v6')
            a('v_mov_b32 v7, s93'); a('v_add_co_u32 v6, vcc, s92, v6'); a('s_nop 1'); a('v_addc_co_u32 v7, vcc, 0, v7, vcc')
            a('global_load_dword v253, v[6:7], off')
        self.stamp()
        a(f's_load_dwordx2 s[34:35], s[0:1], {KA_WS}')
        a(f's_load_dwordx2 s[64:65], s[0:1], {KA_AX}')
        a(f's_load_dwordx2 s[90:91], s[0:1], {KA_CKV}')
        a(f's_load_dwordx4 s[96:99], s[0:1], {KA_WUK}')
        a(f's_load_dwordx2 s[38:39], s[0:1], {KA_GW}')
        a(f's_load_dwordx2 s[66:67], s[0:1], {KA_WQ}')
        a(f's_load_dwordx2 s[68:69], s[0:1], {KA_W1}')
        a(f's_load_dwordx2 s[86:87], s[0:1], {KA_B1}')
        a(f's_load_dwordx2 s[70:71], s[0:1], {KA_WO}')
        a(f's_load_dwordx2 s[72:73], s[0:1], {KA_W2}')
        a(f's_load_dwordx2 s[100:101], s[0:1], {KA_DBG}')
        a(f'v_lshrrev_b32 v1, 6, v0')
        a(f'v_and_b32 v2, 63, v0')
        a(f'v_lshlrev_b32 v{V_L16}, 4, v2')
        a(f'v_readfirstlane_b32 s{s_w}, v1')
        a(f's_and_b32 s{s_t0}, s2, 7')
        a(f's_lshr_b32 s{s_t1}, s2, 3')
        a(f's_lshl_b32 s{s_h}, s{s_t0}, 2')
        a(f's_and_b32 s{s_t0}, s{s_t1}, 3')
        a(f's_add_u32 s{s_h}, s{s_h}, s{s_t0}')
        a(f's_lshr_b32 s{s_i}, s{s_t1}, 2')
        a(f's_add_u32 s{s_g1}, s{s_i}, 1')
        a(f's_lshl_b32 s{s_g1}, s{s_g1}, 2')
        a(f's_lshl_b32 s36, s{s_i}, 2'); a(f's_add_u32 s36, s36, s{s_w}')
        a(f's_lshl_b32 s37, s{s_i}, 2'); a(f's_sub_u32 s37, 60, s37'); a(f's_add_u32 s37, s37, s{s_w}')
        vq = VmQueue()
        if opt.get('pfcode', True): vq.push('code')
        p16 = opt.get('p16')
        if p16:
            P = Proj16(a, vq, s_w, 16384, 16384, FBL=[[192+4*k for k in range(12)], [4*k for k in range(12)]], V_WD=60, ACC=64, fbk='a', VA=8, V_L16=V_L16, VT=33, SG=40,
                       wflags=(' nt' if opt.get('nt', True) else ''), stamps=self.st, opt=opt)
        else:
            P = Proj(a, vq, s_w, 16384, 16384, ACC=64, FB=(192, 216), fbk='a', VA=8, V_L16=V_L16, VT=33, SG=40,
                     wflags=(' nt' if opt.get('nt', True) else ''), stamps=self.st, opt=opt)
        P.setup_addrs(set_l16=False)
        lnfill = opt.get('lnfill', False)
        LB_ = 40
        a(f's_lshl_b32 s82, s2, 3'); a(f's_lshl_b32 s83, s{s_w}, 1'); a('s_add_u32 s82, s82, s83')
        a('s_lshl_b32 s83, s82, 2'); a('s_lshl_b32 s82, s82, 10')
        a('s_waitcnt lgkmcnt(0)')
        make_srd(a, S_CK, 90, 0, 2*MB); make_srd(a, S_WK, 96, 0, 4*MB)
        def lnloads():
            make_srd(a, S_X, 64, 0, 2*MB); make_srd(a, S_GW, 38, 0, 1024)
            a(f'buffer_load_dwordx4 v[{LB_}:{LB_+3}], v{V_L16}, s[{S_X}:{S_X+3}], s82 offen'); vq.push('ln')
            a(f'buffer_load_dwordx4 v[{LB_+4}:{LB_+7}], v{V_L16}, s[{S_X}:{S_X+3}], s82 offen offset:1024'); vq.push('ln')
            a(f'buffer_load_dwordx4 v[{LB_+16}:{LB_+19}], v{V_L16}, s[{S_GW}:{S_GW+3}], 0 offen'); vq.push('ln')
        if not lnfill: lnloads()
        initKV = [f's_lshl_b32 s{P.s_a0}, s{s_i}, 18', f's_lshl_b32 s49, s{s_w}, 16', f's_add_u32 s{P.s_a0}, s{P.s_a0}, s49',
                  f's_add_u32 s{P.s_a1}, s{P.s_a0}, 32768',
                  f's_lshl_b32 s{P.s_wo}, s{s_w}, 17', f's_lshl_b32 s49, s{s_h}, 8', f's_add_u32 s{P.s_wo}, s{P.s_wo}, s49']
        initQ = [f's_lshl_b32 s{P.s_a0}, s36, 15', f's_lshl_b32 s{P.s_a1}, s37, 15',
                 f's_lshl_b32 s{P.s_wo}, s{s_w}, 17', f's_lshl_b32 s49, s{s_h}, 8', f's_add_u32 s{P.s_wo}, s{P.s_wo}, s49']
        ps = [dict(swap=False, srdA=S_CK, srdW=S_WK, init=initKV, epi=lambda: None, acck='v'),
              dict(swap=True, srdA=S_CK, srdW=S_WV, init=initKV, epi=lambda: None, acck='a'),
              dict(swap=False, srdA=S_X, srdW=S_WQ, init=initQ, epi=lambda: None, acck='v')]
        P.prologue(ps[0], after0=(lnloads if lnfill else None))
        make_srd(a, S_WV, 98, 0, 4*MB)
        make_srd(a, S_WQ, 66, 0, 4*MB)
        make_srd(a, S_O, 34, WS_K, 32*MB)
        make_srd(a, S_H, 34, WS_H, 2*MB); make_srd(a, S_G, 34, WS_G, 8192)
        real_a = self.a; tmp_a = Asm(); self.a = tmp_a
        M = self.setup_attn_regs()
        self.a = real_a; M.a = real_a
        c = 0x3e0293ee
        setup = tmp_a.lines + [f'v_mov_b32 v2, {hex(c)}', f'v_mov_b32 v3, {hex(c)}'] + [f'v_accvgpr_write_b32 a{e}, 0' for e in range(48 if p16 else 0, 64)]
        setupG = [(setup[k:k+4], None) for k in range(0, len(setup), 4)]
        perS = -(-len(setupG)//5)
        s_first = 3 if lnfill else 1
        gen_proj.R.V_L16 = V_L16
        st_save = STF.st; STF.st = ' sc1'
        main_a = a
        if lnfill: a = Asm()
        else: vq.wait_for(a, 'ln')
        if lnfill: gen_proj.emit_ln_compute(a, LB_, S_H, S_G, 82, 83, 208, gw=232, sm=240, tmp=244)
        else: gen_proj.emit_ln_compute(a, LB_, S_H, S_G, 82, 83, 64)
        a('s_getreg_b32 s33, hwreg(HW_REG_XCC_ID, 0, 4)')
        a('s_or_b32 s33, s33, 0x50')
        make_srd(a, 76, 34, WS_HF, 4096)
        a(f's_lshl_b32 s32, s{s_h}, 7')
        a('v_mov_b32 v41, 0'); a(f'v_lshrrev_b32 v42, 2, v{V_L16}')
        a(f's_or_b32 s{s_t0}, s{s_w}, s{s_i}'); a(f's_cmp_eq_u32 s{s_t0}, 0'); a('s_cselect_b32 exec_lo, -1, 0'); a('s_mov_b32 exec_hi, 0')
        a('buffer_store_dword v41, v42, s[76:79], s32 offen sc1')
        a('s_mov_b64 exec, -1')
        if opt.get('fusefin'):
            make_srd(a, 76, 34, WS_FL, 112*128)
            a('s_lshl_b32 s32, s2, 7')
            a(f's_cmp_eq_u32 s{s_w}, 0'); a('s_cselect_b32 exec_lo, -1, 0'); a('s_mov_b32 exec_hi, 0')
            a('buffer_store_dword v41, v42, s[76:79], s32 offen sc1')
            a('s_mov_b64 exec, -1')
        if lnfill:
            lnG = [(['@wait'], 'ln')]
            cur = []; masked = False
            for k_, l in enumerate(a.lines):
                nxt_addc = k_+1 < len(a.lines) and a.lines[k_+1].startswith('s_addc')
                starts_mask = ('exec' in l and not l.startswith('s_mov_b64 exec, -1') and not l.startswith('s_mov_b64 exec, s['))
                if (l.startswith('s_cmp') or starts_mask) and not masked:
                    if cur: lnG.append((cur, None)); cur = []
                    masked = True
                cur.append(l)
                if l.startswith('buffer_'):
                    if not masked: lnG.append((cur, 'lnst')); cur = []
                if masked and (l.startswith('s_mov_b64 exec, -1') or l.startswith('s_mov_b64 exec, s[')):
                    lnG.append((cur, 'lnst')); cur = []; masked = False
                elif not masked and len(cur) >= 4 and not nxt_addc:
                    lnG.append((cur, None)); cur = []
            if cur: lnG.append((cur, None))
            assert not masked
            a = main_a
        else:
            for _ in range(5 if opt.get('fusefin') else 4): vq.push('lnst')
            lnG = []
        perL = -(-len(lnG)//3)
        a(f's_and_b32 s91, s{s_h}, 3'); a(f's_cmp_eq_u32 s{s_w}, 0'); a('s_cselect_b32 s91, s91, 0xff')
        a(f's_lshl_b32 s{s_t0}, s{s_h}, 6'); a(f's_lshl_b32 s{s_t1}, s{s_i}, 3'); a(f's_add_u32 s{s_t0}, s{s_t0}, s{s_t1}')
        a(f's_lshl_b32 s{s_t1}, s{s_w}, 1'); a(f's_add_u32 s{s_t0}, s{s_t0}, s{s_t1}'); a(f's_lshl_b32 s{s_t0}, s{s_t0}, 13')
        for k in range(4):
            a(f's_add_u32 s{50+k}, s{s_t0}, {k*4096}')
            a(f's_add_u32 s{96+k}, s{s_t0}, {16*MB + k*4096}')
        STF.st = opt.get('kst', opt.get('kvst', ''))
        VK, VV = 220, 222
        if p16: P.store_addrs(VK, VV)
        KG = frag_store_groups16(P, 'K', 'v', S_O, 50, None, VK, v_scale=2, tag='kst') if p16 else frag_store_groups(P, 'K', 'v', S_O, 50, None, v_scale=2, tag='kst')
        STF.st = opt.get('vst', opt.get('kvst', ''))
        VGs = frag_store_groups16(P, 'V', 'a', S_O, 96, 40, VV, tag='vst') if p16 else frag_store_groups(P, 'V', 'a', S_O, 96, 40, tag='vst')
        STF.st = st_save
        nv = opt.get('vstages', 3); sigt = opt.get('sigt', nv+1)
        perK = len(KG)//8; perV = len(VGs)//nv
        KV0 = self.kv_groups('K', 6); VV0 = self.kv_groups('V', 4)
        zero = [([f'v_accvgpr_write_b32 a{64+4*k+e}, 0' for e in range(4)], None) for k in range(16)]
        srds = self.kv_srd_lines()
        dbg = Asm(); make_srd(dbg, 76, 100, 0, 256)
        hfl = Asm(); make_srd(hfl, 92, 34, WS_HF, 4096)
        def lnsig(k): return (dbg.lines + ['v_mov_b32 v58, 0', 'v_mov_b32 v59, s33', f's_cmp_eq_u32 s91, {k}', 's_cselect_b64 exec, 1, 0',
               f'buffer_store_byte v59, v58, s[76:79], s2 offen sc1', 's_mov_b64 exec, -1'], 'flag')
        idaddr = [f'v_lshlrev_b32 v57, 1, v{V_L16}', f's_lshr_b32 s{s_t1}, s{s_h}, 2', f's_and_b32 s32, s{s_h}, 3', 's_lshl_b32 s32, s32, 3', f's_add_u32 s48, s32, s{s_t1}']
        idld = (dbg.lines + idaddr + ['buffer_load_ubyte v56, v57, s[76:79], s48 offen sc1'], 'id')
        sig = dbg.lines + hfl.lines + [f's_cmp_eq_u32 s{s_w}, 0', f's_cbranch_scc0 {N}_nosig', f's_mov_b32 s{s_cnt}, 0',
               f'{N}_idchk:',
               'v_readfirstlane_b32 s32, v56', 's_and_b32 s32, s32, 0x40', 's_cmp_lg_u32 s32, 0', f's_cbranch_scc1 {N}_idok',
               f's_add_u32 s{s_cnt}, s{s_cnt}, 1', f's_cmp_ge_u32 s{s_cnt}, 0x20000', f's_cbranch_scc1 {N}_idok',
               'buffer_load_ubyte v56, v57, s[76:79], s48 offen sc1', 's_waitcnt vmcnt(0)', 's_nop 0', f's_branch {N}_idchk',
               f'{N}_idok:',
               'v_cmp_ne_u32 vcc, s33, v56', 's_nop 3', 's_and_b32 s32, vcc_lo, 0xff', 's_cmp_eq_u32 s32, 0',
               f's_cbranch_scc1 {N}_samexcd', 'buffer_wbl2 sc1', 's_waitcnt vmcnt(0)', f'{N}_samexcd:',
               f's_lshl_b32 s32, s{s_h}, 7', f's_lshl_b32 s{s_t1}, s{s_i}, 2', f's_add_u32 s32, s32, s{s_t1}',
               'v_mov_b32 v41, 0', 'v_mov_b32 v42, 1', 's_mov_b64 exec, 1',
               'buffer_store_dword v42, v41, s[92:95], s32 offen sc1', 's_mov_b64 exec, -1', f'{N}_nosig:']
        pollld = ['buffer_load_dword v232, v233, s[76:79], 0 offen sc1', 'buffer_load_dword v235, v233, s[92:95], s91 offen sc1']
        pollpre = dbg.lines + hfl.lines + [f's_lshl_b32 s91, s{s_h}, 7', f'v_lshrrev_b32 v233, 2, v{V_L16}', 'v_mov_b32 v234, 0x40404040',
                   f's_cmp_eq_u32 s{s_w}, 0', f's_cbranch_scc0 {N}_nopoll0'] + pollld + [f'{N}_nopoll0:']
        def pfw(srd_): return ([f'v_lshrrev_b32 v58, 5, v{V_L16}', 'v_lshlrev_b32 v58, 13, v58', f'v_bfe_u32 v59, v{V_L16}, 4, 1', 'v_lshl_add_u32 v58, v59, 7, v58',
               f's_lshl_b32 s32, s{s_w}, 4', f's_lshl_b32 s49, s{s_i}, 6', 's_add_u32 s32, s32, s49', 's_lshl_b32 s32, s32, 13',
               f's_lshl_b32 s49, s{s_h}, 8', 's_add_u32 s32, s32, s49', 's_mov_b32 exec_hi, 0',
               f'buffer_load_dword v253, v58, s[{srd_}:{srd_+3}], s32 offen', 's_mov_b64 exec, -1'], 'pf')
        def pfx(qt): return ([f'v_lshrrev_b32 v58, 7, v{V_L16}', 'v_lshlrev_b32 v58, 10, v58', f'v_bfe_u32 v59, v{V_L16}, 4, 3', 'v_lshl_add_u32 v58, v59, 7, v58',
               f's_lshl_b32 s32, s{qt}, 5', f's_and_b32 s49, s{s_h}, 3', 's_lshl_b32 s49, s49, 3', 's_add_u32 s32, s32, s49', 's_lshl_b32 s32, s32, 10',
               f'buffer_load_dword v253, v58, s[{S_X}:{S_X+3}], s32 offen'], 'pf')
        def pfc(k): return ([f'v_lshrrev_b32 v58, 7, v{V_L16}', 'v_lshlrev_b32 v58, 10, v58', f'v_bfe_u32 v59, v{V_L16}, 4, 3', 'v_lshl_add_u32 v58, v59, 7, v58',
               f's_lshl_b32 s32, s{s_i}, 8', f's_and_b32 s49, s{s_h}, 3', 's_lshl_b32 s49, s49, 6', 's_add_u32 s32, s32, s49', f's_lshl_b32 s49, s{s_w}, 4', 's_add_u32 s32, s32, s49',
               f's_add_u32 s32, s32, {8*k}', 's_lshl_b32 s32, s32, 10', f'buffer_load_dword v253, v58, s[{S_CK}:{S_CK+3}], s32 offen'], 'pf')
        def pf1():
            l = Asm(); make_srd(l, 76, 68, 0, 2048*3584)
            l(f'v_lshlrev_b32 v58, 3, v{V_L16}'); l('s_lshl_b32 s32, s2, 2'); l(f's_add_u32 s32, s32, s{s_w}'); l('s_mul_i32 s32, s32, 7168')
            l('buffer_load_dword v253, v58, s[76:79], s32 offen')
            return (l.lines, 'pf')
        pf = opt.get('pfa', 'vq')
        earlypoll = opt.get('earlypoll', True)
        def xe(p, t):
            if p == 0:
                g = list(setupG[(t-s_first)*perS:(t-s_first+1)*perS]) if s_first <= t < s_first+5 else []
                if t < 3: g = list(lnG[t*perL:(t+1)*perL]) + g
                if t == 0:
                    if 'k' in pf: g.append(pfw(S_WK))
                    if 'c' in pf: g += [pfc(0), pfc(1)]
                if '1' in pf and t == 6: g.append(pf1())
                if 'v' in pf and t == opt.get('pfv_t', 1): g.append(pfw(S_WV))
                return g
            if p == 1:
                g = list(KG[t*perK:(t+1)*perK])
                if 'q' in pf and t == 1: g.append(pfw(S_WQ))
                if 'x' in pf and t == 2: g.append(pfx(36))
                if 'x' in pf and t == 3: g.append(pfx(37))
                if '2' in pf and t == 5: g.append(pf1())
                return g
            if p == 2:
                g = []
                if t < nv: g += VGs[t*perV:(t+1)*perV] + ([idld] if t == 0 else [])
                if t == nv: g += zero
                if t == (5 if earlypoll else 6): g += [(srds, None)]
                if t == (6 if earlypoll else 7): g += [(pollpre, None)]
                if earlypoll and t == 7: g += KV0[6:] + VV0
                return g
            return []
        late_pf = opt.get('pflate', {})
        def xl(p, t):
            g = []
            t0 = 4 if lnfill else 2
            if p == 0 and t0 <= t < t0+4: g.append(lnsig(t-t0))
            if p == 2 and t == sigt: g.append((sig, None))
            if earlypoll and p == 2 and t == 6: g += KV0[:6]
            if opt.get('pfcode2', True) and p == 2 and t == opt.get('pfcode2_t', 4): g.append((self.code_touch('b', f'{N}_body', f'{N}_phasec', 2, 58), 'code'))
            k = late_pf.get((p, t))
            if k == 'v': g.append(pfw(S_WV))
            if k == 'q': g.append(pfw(S_WQ))
            if k == '1': g.append(pf1())
            if k == 'a': g.append(pfx(36))
            if k == 'b': g.append(pfx(37))
            return g
        assert sigt >= nv + 1 and sigt <= (5 if earlypoll else 6) and 48 % nv == 0
        if earlypoll:
            chk = ['s_waitcnt vmcnt(0)', 'v_and_b32 v232, v234, v232', 'v_cmp_ne_u32 vcc, v234, v232', 'v_cmp_ne_u32 s[54:55], 1, v235', 's_nop 3',
                   's_and_b32 s32, s54, 0xff', 's_or_b32 s32, s32, vcc_lo', 's_or_b32 s32, s32, vcc_hi', 's_cmp_eq_u32 s32, 0']
            pl = [f's_cmp_eq_u32 s{s_w}, 0', f's_cbranch_scc0 {N}_polled', f's_mov_b32 s{s_cnt}, 0', f'{N}_poll:'] + chk + \
                 [f's_cbranch_scc1 {N}_polled', f's_add_u32 s{s_cnt}, s{s_cnt}, 1', f's_cmp_ge_u32 s{s_cnt}, 0x20000', f's_cbranch_scc1 {N}_polled'] + pollld + \
                 [f's_branch {N}_poll', f'{N}_polled:']
            P.prebar = lambda p, t: (pl if (p, t) == (2, 6) else [])
        P.start_compute()
        self.stamp()
        P.run(ps, extra_early=xe, extra_late=xl)
        self.stamp()
        if not earlypoll:
            if p16:
                q_to_frags16(a, 64, QA, QB)
                for e in range(48): a(f'v_accvgpr_write_b32 a{e}, 0')
            else: self.q_to_frags_cvt()
            chk = ['s_waitcnt vmcnt(0)', 'v_and_b32 v232, v234, v232', 'v_cmp_ne_u32 vcc, v234, v232', 'v_cmp_ne_u32 s[54:55], 1, v235', 's_nop 3',
                   's_and_b32 s32, s54, 0xff', 's_or_b32 s32, s32, vcc_lo', 's_or_b32 s32, s32, vcc_hi', 's_cmp_eq_u32 s32, 0']
            for l in [f's_cmp_eq_u32 s{s_w}, 0', f's_cbranch_scc0 {N}_polled', f's_mov_b32 s{s_cnt}, 0', f'{N}_poll:'] + chk + \
                     [f's_cbranch_scc1 {N}_polled', f's_add_u32 s{s_cnt}, s{s_cnt}, 1', f's_cmp_ge_u32 s{s_cnt}, 0x20000', f's_cbranch_scc1 {N}_polled',
                      ] + ([f's_sleep {opt.get("sleep", 0)}'] if opt.get("sleep", 0) else []) + pollld + [f's_branch {N}_poll', f'{N}_polled:']: a(l)
            a('s_barrier')
            for g in KV0 + VV0:
                for l in g[0]: a(l)
        else:
            assert not p16
            self.q_to_frags_cvt()
        self.stamp()
        self.q_to_frags_srd()
        return M


class Main2(Main):
    def emit_head(self):
        a = self.a; N = self.name; opt = self.opt
        S_CK, S_WK, S_X, S_O, S_WV, S_WQ = 4, 8, 12, 16, 92, 60
        S_H, S_G, S_GW = 76, 48, 52
        a(f's_cmp_ge_u32 s2, 256')
        a(f's_cbranch_scc1 {N}_end')
        if opt.get('pfcode', True):
            per = opt.get('code_per', 5)
            a('s_getpc_b64 s[92:93]')
            a.label(f'{N}_pc0')
            a('s_lshr_b32 s32, s2, 3'); a('s_lshl_b32 s32, s32, 2')
            a('v_lshrrev_b32 v6, 6, v0'); a('v_add_u32 v6, s32, v6'); a(f'v_mul_u32_u24 v6, {per}, v6')
            a('v_and_b32 v7, 63, v0'); a(f'v_min_u32 v7, {per-1}, v7'); a('v_add_u32 v6, v6, v7'); a('v_lshlrev_b32 v6, 7, v6')
            a(f'v_min_u32 v6, {N}_end-{N}_pc0, v6')
            a('v_mov_b32 v7, s93'); a('v_add_co_u32 v6, vcc, s92, v6'); a('s_nop 1'); a('v_addc_co_u32 v7, vcc, 0, v7, vcc')
            a('global_load_dword v253, v[6:7], off')
        self.stamp()
        a(f's_load_dwordx2 s[90:91], s[0:1], {KA_CKV}')
        a(f's_load_dwordx4 s[96:99], s[0:1], {KA_WUK}')
        a(f's_load_dwordx2 s[34:35], s[0:1], {KA_WS}')
        a(f's_load_dwordx2 s[64:65], s[0:1], {KA_AX}')
        a(f's_load_dwordx2 s[38:39], s[0:1], {KA_GW}')
        a(f's_load_dwordx2 s[66:67], s[0:1], {KA_WQ}')
        a(f's_load_dwordx2 s[68:69], s[0:1], {KA_W1}')
        a(f's_load_dwordx2 s[86:87], s[0:1], {KA_B1}')
        a(f's_load_dwordx2 s[70:71], s[0:1], {KA_WO}')
        a(f's_load_dwordx2 s[72:73], s[0:1], {KA_W2}')
        a(f's_load_dwordx2 s[100:101], s[0:1], {KA_DBG}')
        a(f'v_lshrrev_b32 v1, 6, v0')
        a(f'v_and_b32 v2, 63, v0')
        a(f'v_lshlrev_b32 v{V_L16}, 4, v2')
        a(f'v_readfirstlane_b32 s{s_w}, v1')
        a(f's_and_b32 s{s_t0}, s2, 7')
        a(f's_lshr_b32 s{s_t1}, s2, 3')
        a(f's_lshl_b32 s{s_h}, s{s_t0}, 2')
        a(f's_and_b32 s{s_t0}, s{s_t1}, 3')
        a(f's_add_u32 s{s_h}, s{s_h}, s{s_t0}')
        a(f's_lshr_b32 s{s_i}, s{s_t1}, 2')
        a(f's_add_u32 s{s_g1}, s{s_i}, 1')
        a(f's_lshl_b32 s{s_g1}, s{s_g1}, 2')
        a(f's_lshl_b32 s36, s{s_i}, 2'); a(f's_add_u32 s36, s36, s{s_w}')
        a(f's_lshl_b32 s37, s{s_i}, 2'); a(f's_sub_u32 s37, 60, s37'); a(f's_add_u32 s37, s37, s{s_w}')
        vq = VmQueue()
        if opt.get('pfcode', True): vq.push('code')
        a('s_waitcnt lgkmcnt(0)')
        make_srd(a, S_CK, 90, 0, 2*MB); make_srd(a, S_WK, 96, 0, 4*MB); make_srd(a, S_WV, 98, 0, 4*MB)
        make_srd(a, S_X, 64, 0, 2*MB); make_srd(a, S_GW, 38, 0, 1024); make_srd(a, S_WQ, 66, 0, 4*MB)
        KV = ProjKV(a, vq, s_w, S_CK, S_WK, S_WV, ACCK=64, ACCV=64, VR=40, VT=33, SG=(38, 39, 64, 65, 66, 67, 90), stamps=self.st, opt=opt)
        KV.setup(s_i, s_h)
        LB_ = 232
        a(f's_lshl_b32 s82, s2, 3'); a(f's_lshl_b32 s83, s{s_w}, 1'); a('s_add_u32 s82, s82, s83')
        a('s_lshl_b32 s83, s82, 2'); a('s_lshl_b32 s82, s82, 10')
        a(f'buffer_load_dwordx4 v[{LB_}:{LB_+3}], v{V_L16}, s[{S_X}:{S_X+3}], s82 offen'); vq.push('ln')
        a(f'buffer_load_dwordx4 v[{LB_+4}:{LB_+7}], v{V_L16}, s[{S_X}:{S_X+3}], s82 offen offset:1024'); vq.push('ln')
        a(f'buffer_load_dwordx4 v[{LB_+16}:{LB_+19}], v{V_L16}, s[{S_GW}:{S_GW+3}], 0 offen'); vq.push('ln')
        rest0 = KV.prologue(opt.get('kvpro', 2))
        P = Proj(a, vq, s_w, 16384, 65536, ACC=64, FB=(192, 216), fbk='a', VA=8, V_L16=V_L16, VT=33, SG=40,
                 wflags=(' nt' if opt.get('nt', False) else ''), stamps=self.st, opt=opt)
        P.setup_addrs(set_l16=False)
        make_srd(a, S_O, 34, WS_K, 32*MB)
        make_srd(a, S_H, 34, WS_H, 2*MB); make_srd(a, S_G, 34, WS_G, 8192)
        real_a = self.a; tmp_a = Asm(); self.a = tmp_a; self.mtmp = 232
        M = self.setup_attn_regs()
        self.a = real_a; M.a = real_a
        c = 0x3e0293ee
        setup = tmp_a.lines + [f'v_mov_b32 v2, {hex(c)}', f'v_mov_b32 v3, {hex(c)}']
        setupG = [(setup[k:k+4], None) for k in range(0, len(setup), 4)]
        perS = -(-len(setupG)//6)
        vq.wait_for(a, 'ln')
        gen_proj.R.V_L16 = V_L16
        st_save = STF.st; STF.st = ' sc1'
        gen_proj.emit_ln_compute(a, LB_, S_H, S_G, 82, 83, 64)
        for _ in range(3): vq.push('lnst')
        a('s_getreg_b32 s33, hwreg(HW_REG_XCC_ID, 0, 4)')
        a('s_or_b32 s33, s33, 0x50')
        make_srd(a, 76, 34, WS_HF, 4096)
        a(f's_lshl_b32 s32, s{s_h}, 7')
        a('v_mov_b32 v58, 0'); a(f'v_lshrrev_b32 v59, 2, v{V_L16}')
        a(f's_or_b32 s{s_t0}, s{s_w}, s{s_i}'); a(f's_cmp_eq_u32 s{s_t0}, 0'); a('s_cselect_b32 exec_lo, -1, 0'); a('s_mov_b32 exec_hi, 0')
        a('buffer_store_dword v58, v59, s[76:79], s32 offen sc1'); vq.push('lnst')
        a('s_mov_b64 exec, -1')
        if opt.get('fusefin'):
            make_srd(a, 76, 34, WS_FL, 112*128)
            a('s_lshl_b32 s32, s2, 7')
            a(f's_cmp_eq_u32 s{s_w}, 0'); a('s_cselect_b32 exec_lo, -1, 0'); a('s_mov_b32 exec_hi, 0')
            a('buffer_store_dword v58, v59, s[76:79], s32 offen sc1'); vq.push('lnst')
            a('s_mov_b64 exec, -1')
        a(f's_and_b32 s91, s{s_h}, 3'); a(f's_cmp_eq_u32 s{s_w}, 0'); a('s_cselect_b32 s91, s91, 0xff')
        npre = 8*opt.get('kvpre2', 3)
        for g in rest0[:npre]: KV.emit_group(g)
        KV.initial = rest0[npre:]
        a(f's_lshl_b32 s{s_t0}, s{s_h}, 6'); a(f's_lshl_b32 s{s_t1}, s{s_i}, 3'); a(f's_add_u32 s{s_t0}, s{s_t0}, s{s_t1}')
        a(f's_lshl_b32 s{s_t1}, s{s_w}, 1'); a(f's_add_u32 s{s_t0}, s{s_t0}, s{s_t1}'); a(f's_lshl_b32 s{s_t0}, s{s_t0}, 13')
        for k in range(4):
            a(f's_add_u32 s{50+k}, s{s_t0}, {k*4096}')
            a(f's_add_u32 s{96+k}, s{s_t0}, {16*MB + k*4096}')
        STF.st = opt.get('kvst', '')
        KG = frag_store_groups(P, 'K', 'v', S_O, 50, None, v_scale=2, tag='kst')
        VGs = frag_store_groups(P, 'V', 'a', S_O, 96, 40, tag='vst')
        STF.st = st_save
        nv = opt.get('vstages', 3); sigt = opt.get('sigt', nv+1)
        perV = len(VGs)//nv
        KV0 = self.kv_groups('K', 6); VV0 = self.kv_groups('V', 4)
        zero = [([f'v_accvgpr_write_b32 a{4*k+e}, 0' for e in range(4)], None) for k in range(32)]
        srds = self.kv_srd_lines()
        dbg = Asm(); make_srd(dbg, 76, 100, 0, 256)
        hfl = Asm(); make_srd(hfl, 92, 34, WS_HF, 4096)
        def lnsig(k): return (dbg.lines + ['v_mov_b32 v58, 0', 'v_mov_b32 v59, s33', f's_cmp_eq_u32 s91, {k}', 's_cselect_b64 exec, 1, 0',
               f'buffer_store_byte v59, v58, s[76:79], s2 offen sc1', 's_mov_b64 exec, -1'], 'flag')
        idaddr = [f'v_lshlrev_b32 v57, 1, v{V_L16}', f's_lshr_b32 s{s_t1}, s{s_h}, 2', f's_and_b32 s32, s{s_h}, 3', 's_lshl_b32 s32, s32, 3', f's_add_u32 s48, s32, s{s_t1}']
        idld = (dbg.lines + idaddr + ['buffer_load_ubyte v56, v57, s[76:79], s48 offen sc1'], 'id')
        sig = dbg.lines + hfl.lines + [f's_cmp_eq_u32 s{s_w}, 0', f's_cbranch_scc0 {N}_nosig', f's_mov_b32 s{s_cnt}, 0',
               f'{N}_idchk:',
               'v_readfirstlane_b32 s32, v56', 's_and_b32 s32, s32, 0x40', 's_cmp_lg_u32 s32, 0', f's_cbranch_scc1 {N}_idok',
               f's_add_u32 s{s_cnt}, s{s_cnt}, 1', f's_cmp_ge_u32 s{s_cnt}, 0x20000', f's_cbranch_scc1 {N}_idok',
               'buffer_load_ubyte v56, v57, s[76:79], s48 offen sc1', 's_waitcnt vmcnt(0)', 's_nop 0', f's_branch {N}_idchk',
               f'{N}_idok:',
               'v_cmp_ne_u32 vcc, s33, v56', 's_nop 3', 's_and_b32 s32, vcc_lo, 0xff', 's_cmp_eq_u32 s32, 0',
               f's_cbranch_scc1 {N}_samexcd', 'buffer_wbl2 sc1', 's_waitcnt vmcnt(0)', f'{N}_samexcd:',
               f's_lshl_b32 s32, s{s_h}, 7', f's_lshl_b32 s{s_t1}, s{s_i}, 2', f's_add_u32 s32, s32, s{s_t1}',
               'v_mov_b32 v41, 0', 'v_mov_b32 v42, 1', 's_mov_b64 exec, 1',
               'buffer_store_dword v42, v41, s[92:95], s32 offen sc1', 's_mov_b64 exec, -1', f'{N}_nosig:']
        pollld = ['buffer_load_dword v232, v233, s[76:79], 0 offen sc1', 'buffer_load_dword v235, v233, s[92:95], s91 offen sc1']
        pollpre = dbg.lines + hfl.lines + [f's_lshl_b32 s91, s{s_h}, 7', f'v_lshrrev_b32 v233, 2, v{V_L16}', 'v_mov_b32 v234, 0x40404040',
                   f's_cmp_eq_u32 s{s_w}, 0', f's_cbranch_scc0 {N}_nopoll0'] + pollld + [f'{N}_nopoll0:']
        initQ = [f's_lshl_b32 s{P.s_a0}, s36, 15', f's_lshl_b32 s{P.s_a1}, s37, 15',
                 f's_lshl_b32 s{P.s_wo}, s{s_w}, 17', f's_lshl_b32 s49, s{s_h}, 8', f's_add_u32 s{P.s_wo}, s{P.s_wo}, s49']
        qpass = [dict(swap=False, srdA=S_X, srdW=S_WQ, init=initQ, epi=lambda: None, acck='v')]
        Q0 = P.dma_stage(S_X, S_WQ, (0, 0), pre=initQ); Q1 = P.dma_stage(S_X, S_WQ, (0, 1)); Q2 = P.dma_stage(S_X, S_WQ, (0, 2))
        def pfw(srd_): return ([f'v_lshrrev_b32 v58, 5, v{V_L16}', 'v_lshlrev_b32 v58, 13, v58', f'v_bfe_u32 v59, v{V_L16}, 4, 1', 'v_lshl_add_u32 v58, v59, 7, v58',
               f's_lshl_b32 s32, s{s_w}, 4', f's_lshl_b32 s49, s{s_i}, 6', 's_add_u32 s32, s32, s49', 's_lshl_b32 s32, s32, 13',
               f's_lshl_b32 s49, s{s_h}, 8', 's_add_u32 s32, s32, s49', 's_mov_b32 exec_hi, 0',
               f'buffer_load_dword v253, v58, s[{srd_}:{srd_+3}], s32 offen', 's_mov_b64 exec, -1'], 'pf')
        def pf1():
            l = Asm(); make_srd(l, 76, 68, 0, 2048*3584)
            l(f'v_lshlrev_b32 v58, 3, v{V_L16}'); l('s_lshl_b32 s32, s2, 2'); l(f's_add_u32 s32, s32, s{s_w}'); l('s_mul_i32 s32, s32, 7168')
            l('buffer_load_dword v253, v58, s[76:79], s32 offen')
            return (l.lines, 'pf')
        kvpf = opt.get('kvpf', {7: 'q', 9: '1'})
        def kvx(t):
            early, late = [], []
            if 1 <= t <= 6: early += setupG[(t-1)*perS:t*perS]
            if 2 <= t <= 5: late += [lnsig(t-2)]
            if kvpf.get(t) == 'q': late += [pfw(S_WQ)]
            if kvpf.get(t) == '1': late += [pf1()]
            if t == 13: late += Q0[:4]
            if t == 14: early += Q0[4:]; late += Q1[:4]
            if t == 15: early += Q1[4:]; late += Q2[:3]
            return early, late
        def handover():
            return (0, 0), P.read_addr_update(), P.kstep_reads(0, 0)
        KV.start()
        self.stamp()
        KV.run(kvx, handover)
        P.lq = list(KV.lq); P.g_pending = Q2[3:]
        self.stamp()
        a('s_nop 7')
        for g in KG: P.emit_group(g)
        self.stamp()
        def xe(p, t):
            g = []
            if t < nv: g += VGs[t*perV:(t+1)*perV] + ([idld] if t == 0 else [])
            if t == nv: g += zero[:16]
            if t == nv+1: g += zero[16:]
            if t == 6: g += [(srds, None)]
            if t == 7: g += [(pollpre, None)]
            return g
        def xl(p, t):
            return [(sig, None)] if t == sigt else []
        assert sigt >= nv + 1 and sigt <= 6 and 48 % nv == 0
        P.run(qpass, extra_early=xe, extra_late=xl)
        self.stamp()
        self.q_to_frags_cvt()
        chk = ['s_waitcnt vmcnt(0)', 'v_and_b32 v232, v234, v232', 'v_cmp_ne_u32 vcc, v234, v232', 'v_cmp_ne_u32 s[54:55], 1, v235', 's_nop 3',
               's_and_b32 s32, s54, 0xff', 's_or_b32 s32, s32, vcc_lo', 's_or_b32 s32, s32, vcc_hi', 's_cmp_eq_u32 s32, 0']
        for l in [f's_cmp_eq_u32 s{s_w}, 0', f's_cbranch_scc0 {N}_polled', f's_mov_b32 s{s_cnt}, 0', f'{N}_poll:'] + chk + \
                 [f's_cbranch_scc1 {N}_polled', f's_add_u32 s{s_cnt}, s{s_cnt}, 1', f's_cmp_ge_u32 s{s_cnt}, 0x20000', f's_cbranch_scc1 {N}_polled',
                  ] + ([f's_sleep {opt.get("sleep", 0)}'] if opt.get("sleep", 0) else []) + pollld + [f's_branch {N}_poll', f'{N}_polled:']: a(l)
        a('s_barrier')
        for g in KV0 + VV0:
            for l in g[0]: a(l)
        self.stamp()
        self.q_to_frags_srd()
        return M
```

```python
from asmlib import *
from layout import *
import gen_attn2 as A
from gen_attn2 import *
from gen_proj2 import Proj, VmQueue, frag_store_groups
from gen_proj import make_srd
import gen_proj, gen_final
from gen_kv import ProjKV
from gen_proj16 import Proj16, frag_store_groups16, q_to_frags16

class Main(Attn):
    def emit_phasec(self):
        a = self.a; N = self.name; opt = self.opt
        a('s_barrier')
        make_srd(a, 76, 34, WS_FL, 112*128)
        a(f's_lshr_b32 s27, s{s_h}, 3'); a('s_lshl_b32 s27, s27, 3'); a(f's_add_u32 s27, s27, s{s_i}'); a('s_lshl_b32 s27, s27, 7')
        a(f's_and_b32 s29, s{s_h}, 7'); a('s_lshl_b32 s29, s29, 2'); a('s_add_u32 s27, s27, s29')
        a('v_mov_b32 v41, s27')
        ofirst = opt.get('l3', {}).get('ofirst', True)
        a('s_mov_b32 s60, 0x7fffff00')
        a('s_mov_b32 s30, 1')
        a(f's_cmp_eq_u32 s{s_i}, {self.nomlp_i}'); a(f's_cbranch_scc1 {N}_cnou')
        a('s_mul_i32 s27, s80, 37'); a('s_lshr_b32 s27, s27, 8'); a('s_mul_i32 s29, s27, 7'); a('s_sub_u32 s29, s80, s29')
        a('s_lshl_b32 s29, s29, 1'); a('s_and_b32 s31, s81, 1'); a('s_add_u32 s29, s29, s31'); a('s_lshl_b32 s29, s29, 2')
        a('s_lshl_b32 s27, s27, 2'); a('s_lshr_b32 s31, s81, 1'); a('s_add_u32 s27, s27, s31'); a('s_add_u32 s27, s27, 32'); a('s_lshl_b32 s27, s27, 7'); a('s_add_u32 s27, s27, s29')
        if ofirst: a('s_mov_b32 s60, s27')
        else: a('v_writelane_b32 v41, s27, 1'); a('s_or_b32 s30, s30, 2')
        a.label(f'{N}_cnou')
        a(f's_cmp_eq_u32 s{s_i}, 7'); a(f's_cbranch_scc0 {N}_cflag')
        a('s_sub_u32 s27, s2, 224'); a('s_lshl_b32 s27, s27, 1'); a('s_add_u32 s27, s27, 48'); a('s_lshl_b32 s27, s27, 7')
        a('v_writelane_b32 v41, s27, 2'); a('s_add_u32 s27, s27, 128'); a('v_writelane_b32 v41, s27, 3'); a('s_or_b32 s30, s30, 12')
        a.label(f'{N}_cflag')
        a('v_mov_b32 v42, 1')
        a(f's_cmp_eq_u32 s{s_w}, 0'); a('s_cselect_b32 exec_lo, s30, 0'); a('s_mov_b32 exec_hi, 0')
        a('buffer_store_dword v42, v41, s[76:79], 0 offen sc1')
        a('s_mov_b64 exec, -1')
        def poll(s_sb, s_mb, s_p, s_tile, ofirst=False):
            make_srd(a, 56, 76, WS_FL, 112*128)
            a(f's_sub_u32 s49, 15, s{s_sb}'); a(f's_min_u32 s49, s49, s{s_sb}'); a(f's_lshl_b32 s50, s{s_p}, 3'); a('s_add_u32 s49, s49, s50'); a('s_lshl_b32 s49, s49, 7')
            a(f's_lshl_b32 s50, s{s_p}, 2'); a(f's_add_u32 s50, s50, s{s_mb}'); a('s_add_u32 s50, s50, 32'); a('s_lshl_b32 s50, s50, 7'); a('s_sub_u32 s50, s50, 32')
            a(f's_add_u32 s51, s{s_tile}, 48'); a('s_lshl_b32 s51, s51, 7')
            a('v_lshrrev_b32 v45, 2, v2')
            a('v_mov_b32 v46, s50'); a('v_mov_b32 v47, s49'); a('v_cmp_gt_u32 vcc, 32, v45'); a('s_nop 1'); a('v_cndmask_b32 v46, v46, v47, vcc')
            a('v_add_u32 v45, v45, v46'); a('v_writelane_b32 v45, s51, 22')
            a(f's_cmp_eq_u32 s{s_w}, {1 if opt.get("pollw1", True) else 0}'); a(f's_cbranch_scc0 {N}_cpolled')
            a('s_mov_b32 s49, 0')
            a.label(f'{N}_cpoll')
            a('buffer_load_dword v44, v45, s[56:59], 0 offen sc1')
            a('s_waitcnt vmcnt(0)')
            a('v_cmp_ne_u32 vcc, 1, v44'); a('s_nop 3'); a(f's_and_b32 s50, vcc_lo, {0xff if ofirst else 0x7fffff}'); a('s_cmp_eq_u32 s50, 0')
            a(f's_cbranch_scc1 {N}_cpolled')
            a('s_add_u32 s49, s49, 1'); a('s_cmp_ge_u32 s49, 0x20000'); a(f's_cbranch_scc1 {N}_cpolled')

            if opt.get("csleep", 0): a(f's_sleep {opt.get("csleep")}')
            a(f's_branch {N}_cpoll')
            a.label(f'{N}_cpolled')
            a('s_barrier')
        gen_final.emit_final(a, N + '_fin', inline=True, sync=poll, stamps=self.st, **opt.get('l3', {}))

    def emit_head(self):
        a = self.a; N = self.name; opt = self.opt
        S_CK, S_WK, S_X, S_O, S_WV, S_WQ = 4, 8, 12, 16, 92, 60
        S_H, S_G, S_GW = 76, (56 if opt.get('lnfill', False) else 48), 52
        a(f's_cmp_ge_u32 s2, 256')
        a(f's_cbranch_scc1 {N}_end')
        if opt.get('pfcode', True):
            per = opt.get('code_per', 5)
            a('s_getpc_b64 s[92:93]')
            a.label(f'{N}_pc0')
            a('s_lshr_b32 s32, s2, 3'); a('s_lshl_b32 s32, s32, 2')
            a('v_lshrrev_b32 v6, 6, v0'); a('v_add_u32 v6, s32, v6'); a(f'v_mul_u32_u24 v6, {per}, v6')
            a('v_and_b32 v7, 63, v0'); a(f'v_min_u32 v7, {per-1}, v7'); a('v_add_u32 v6, v6, v7'); a('v_lshlrev_b32 v6, 7, v6')
            a(f'v_min_u32 v6, {N}_end-{N}_pc0, v6')
            a('v_mov_b32 v7, s93'); a('v_add_co_u32 v6, vcc, s92, v6'); a('s_nop 1'); a('v_addc_co_u32 v7, vcc, 0, v7, vcc')
            a('global_load_dword v253, v[6:7], off')
        self.stamp()
        a(f's_load_dwordx2 s[34:35], s[0:1], {KA_WS}')
        a(f's_load_dwordx2 s[64:65], s[0:1], {KA_AX}')
        a(f's_load_dwordx2 s[90:91], s[0:1], {KA_CKV}')
        a(f's_load_dwordx4 s[96:99], s[0:1], {KA_WUK}')
        a(f's_load_dwordx2 s[38:39], s[0:1], {KA_GW}')
        a(f's_load_dwordx2 s[66:67], s[0:1], {KA_WQ}')
        a(f's_load_dwordx2 s[68:69], s[0:1], {KA_W1}')
        a(f's_load_dwordx2 s[86:87], s[0:1], {KA_B1}')
        a(f's_load_dwordx2 s[70:71], s[0:1], {KA_WO}')
        a(f's_load_dwordx2 s[72:73], s[0:1], {KA_W2}')
        a(f's_load_dwordx2 s[100:101], s[0:1], {KA_DBG}')
        a(f'v_lshrrev_b32 v1, 6, v0')
        a(f'v_and_b32 v2, 63, v0')
        a(f'v_lshlrev_b32 v{V_L16}, 4, v2')
        a(f'v_readfirstlane_b32 s{s_w}, v1')
        a(f's_and_b32 s{s_t0}, s2, 7')
        a(f's_lshr_b32 s{s_t1}, s2, 3')
        a(f's_lshl_b32 s{s_h}, s{s_t0}, 2')
        a(f's_and_b32 s{s_t0}, s{s_t1}, 3')
        a(f's_add_u32 s{s_h}, s{s_h}, s{s_t0}')
        a(f's_lshr_b32 s{s_i}, s{s_t1}, 2')
        a(f's_add_u32 s{s_g1}, s{s_i}, 1')
        a(f's_lshl_b32 s{s_g1}, s{s_g1}, 2')
        a(f's_lshl_b32 s36, s{s_i}, 2'); a(f's_add_u32 s36, s36, s{s_w}')
        a(f's_lshl_b32 s37, s{s_i}, 2'); a(f's_sub_u32 s37, 60, s37'); a(f's_add_u32 s37, s37, s{s_w}')
        vq = VmQueue()
        if opt.get('pfcode', True): vq.push('code')
        p16 = opt.get('p16')
        if p16:
            P = Proj16(a, vq, s_w, 16384, 16384, FBL=[[192+4*k for k in range(12)], [4*k for k in range(12)]], V_WD=60, ACC=64, fbk='a', VA=8, V_L16=V_L16, VT=33, SG=40,
                       wflags=(' nt' if opt.get('nt', True) else ''), stamps=self.st, opt=opt)
        else:
            P = Proj(a, vq, s_w, 16384, 16384, ACC=64, FB=(192, 216), fbk='a', VA=8, V_L16=V_L16, VT=33, SG=40,
                     wflags=(' nt' if opt.get('nt', True) else ''), stamps=self.st, opt=opt)
        P.setup_addrs(set_l16=False)
        lnfill = opt.get('lnfill', False)
        LB_ = 40
        a(f's_lshl_b32 s82, s2, 3'); a(f's_lshl_b32 s83, s{s_w}, 1'); a('s_add_u32 s82, s82, s83')
        a('s_lshl_b32 s83, s82, 2'); a('s_lshl_b32 s82, s82, 10')
        a('s_waitcnt lgkmcnt(0)')
        make_srd(a, S_CK, 90, 0, 2*MB); make_srd(a, S_WK, 96, 0, 4*MB)
        def lnloads():
            make_srd(a, S_X, 64, 0, 2*MB); make_srd(a, S_GW, 38, 0, 1024)
            a(f'buffer_load_dwordx4 v[{LB_}:{LB_+3}], v{V_L16}, s[{S_X}:{S_X+3}], s82 offen'); vq.push('ln')
            a(f'buffer_load_dwordx4 v[{LB_+4}:{LB_+7}], v{V_L16}, s[{S_X}:{S_X+3}], s82 offen offset:1024'); vq.push('ln')
            a(f'buffer_load_dwordx4 v[{LB_+16}:{LB_+19}], v{V_L16}, s[{S_GW}:{S_GW+3}], 0 offen'); vq.push('ln')
        if not lnfill: lnloads()
        initKV = [f's_lshl_b32 s{P.s_a0}, s{s_i}, 18', f's_lshl_b32 s49, s{s_w}, 16', f's_add_u32 s{P.s_a0}, s{P.s_a0}, s49',
                  f's_add_u32 s{P.s_a1}, s{P.s_a0}, 32768',
                  f's_lshl_b32 s{P.s_wo}, s{s_w}, 17', f's_lshl_b32 s49, s{s_h}, 8', f's_add_u32 s{P.s_wo}, s{P.s_wo}, s49']
        initQ = [f's_lshl_b32 s{P.s_a0}, s36, 15', f's_lshl_b32 s{P.s_a1}, s37, 15',
                 f's_lshl_b32 s{P.s_wo}, s{s_w}, 17', f's_lshl_b32 s49, s{s_h}, 8', f's_add_u32 s{P.s_wo}, s{P.s_wo}, s49']
        ps = [dict(swap=False, srdA=S_CK, srdW=S_WK, init=initKV, epi=lambda: None, acck='v'),
              dict(swap=True, srdA=S_CK, srdW=S_WV, init=initKV, epi=lambda: None, acck='a'),
              dict(swap=False, srdA=S_X, srdW=S_WQ, init=initQ, epi=lambda: None, acck='v')]
        P.prologue(ps[0], after0=(lnloads if lnfill else None))
        make_srd(a, S_WV, 98, 0, 4*MB)
        make_srd(a, S_WQ, 66, 0, 4*MB)
        make_srd(a, S_O, 34, WS_K, 32*MB)
        make_srd(a, S_H, 34, WS_H, 2*MB); make_srd(a, S_G, 34, WS_G, 8192)
        real_a = self.a; tmp_a = Asm(); self.a = tmp_a
        M = self.setup_attn_regs()
        self.a = real_a; M.a = real_a
        c = 0x3e0293ee
        setup = tmp_a.lines + [f'v_mov_b32 v2, {hex(c)}', f'v_mov_b32 v3, {hex(c)}'] + [f'v_accvgpr_write_b32 a{e}, 0' for e in range(48 if p16 else 0, 64)]
        setupG = [(setup[k:k+4], None) for k in range(0, len(setup), 4)]
        perS = -(-len(setupG)//5)
        s_first = 3 if lnfill else 1
        gen_proj.R.V_L16 = V_L16
        st_save = STF.st; STF.st = ' sc1'
        main_a = a
        if lnfill: a = Asm()
        else: vq.wait_for(a, 'ln')
        if lnfill: gen_proj.emit_ln_compute(a, LB_, S_H, S_G, 82, 83, 208, gw=232, sm=240, tmp=244)
        else: gen_proj.emit_ln_compute(a, LB_, S_H, S_G, 82, 83, 64)
        a('s_getreg_b32 s33, hwreg(HW_REG_XCC_ID, 0, 4)')
        a('s_or_b32 s33, s33, 0x50')
        make_srd(a, 76, 34, WS_HF, 4096)
        a(f's_lshl_b32 s32, s{s_h}, 7')
        a('v_mov_b32 v41, 0'); a(f'v_lshrrev_b32 v42, 2, v{V_L16}')
        a(f's_or_b32 s{s_t0}, s{s_w}, s{s_i}'); a(f's_cmp_eq_u32 s{s_t0}, 0'); a('s_cselect_b32 exec_lo, -1, 0'); a('s_mov_b32 exec_hi, 0')
        a('buffer_store_dword v41, v42, s[76:79], s32 offen sc1')
        a('s_mov_b64 exec, -1')
        if opt.get('fusefin'):
            make_srd(a, 76, 34, WS_FL, 112*128)
            a('s_lshl_b32 s32, s2, 7')
            a(f's_cmp_eq_u32 s{s_w}, 0'); a('s_cselect_b32 exec_lo, -1, 0'); a('s_mov_b32 exec_hi, 0')
            a('buffer_store_dword v41, v42, s[76:79], s32 offen sc1')
            a('s_mov_b64 exec, -1')
        if lnfill:
            lnG = [(['@wait'], 'ln')]
            cur = []; masked = False
            for k_, l in enumerate(a.lines):
                nxt_addc = k_+1 < len(a.lines) and a.lines[k_+1].startswith('s_addc')
                starts_mask = ('exec' in l and not l.startswith('s_mov_b64 exec, -1') and not l.startswith('s_mov_b64 exec, s['))
                if (l.startswith('s_cmp') or starts_mask) and not masked:
                    if cur: lnG.append((cur, None)); cur = []
                    masked = True
                cur.append(l)
                if l.startswith('buffer_'):
                    if not masked: lnG.append((cur, 'lnst')); cur = []
                if masked and (l.startswith('s_mov_b64 exec, -1') or l.startswith('s_mov_b64 exec, s[')):
                    lnG.append((cur, 'lnst')); cur = []; masked = False
                elif not masked and len(cur) >= 4 and not nxt_addc:
                    lnG.append((cur, None)); cur = []
            if cur: lnG.append((cur, None))
            assert not masked
            a = main_a
        else:
            for _ in range(5 if opt.get('fusefin') else 4): vq.push('lnst')
            lnG = []
        perL = -(-len(lnG)//3)
        a(f's_and_b32 s91, s{s_h}, 3'); a(f's_cmp_eq_u32 s{s_w}, 0'); a('s_cselect_b32 s91, s91, 0xff')
        a(f's_lshl_b32 s{s_t0}, s{s_h}, 6'); a(f's_lshl_b32 s{s_t1}, s{s_i}, 3'); a(f's_add_u32 s{s_t0}, s{s_t0}, s{s_t1}')
        a(f's_lshl_b32 s{s_t1}, s{s_w}, 1'); a(f's_add_u32 s{s_t0}, s{s_t0}, s{s_t1}'); a(f's_lshl_b32 s{s_t0}, s{s_t0}, 13')
        for k in range(4):
            a(f's_add_u32 s{50+k}, s{s_t0}, {k*4096}')
            a(f's_add_u32 s{96+k}, s{s_t0}, {16*MB + k*4096}')
        STF.st = opt.get('kst', opt.get('kvst', ''))
        VK, VV = 220, 222
        if p16: P.store_addrs(VK, VV)
        KG = frag_store_groups16(P, 'K', 'v', S_O, 50, None, VK, v_scale=2, tag='kst') if p16 else frag_store_groups(P, 'K', 'v', S_O, 50, None, v_scale=2, tag='kst')
        STF.st = opt.get('vst', opt.get('kvst', ''))
        VGs = frag_store_groups16(P, 'V', 'a', S_O, 96, 40, VV, tag='vst') if p16 else frag_store_groups(P, 'V', 'a', S_O, 96, 40, tag='vst')
        STF.st = st_save
        nv = opt.get('vstages', 3); sigt = opt.get('sigt', nv+1)
        perK = len(KG)//8; perV = len(VGs)//nv
        KV0 = self.kv_groups('K', 6); VV0 = self.kv_groups('V', 4)
        zero = [([f'v_accvgpr_write_b32 a{64+4*k+e}, 0' for e in range(4)], None) for k in range(16)]
        srds = self.kv_srd_lines()
        dbg = Asm(); make_srd(dbg, 76, 100, 0, 256)
        hfl = Asm(); make_srd(hfl, 92, 34, WS_HF, 4096)
        def lnsig(k): return (dbg.lines + ['v_mov_b32 v58, 0', 'v_mov_b32 v59, s33', f's_cmp_eq_u32 s91, {k}', 's_cselect_b64 exec, 1, 0',
               f'buffer_store_byte v59, v58, s[76:79], s2 offen sc1', 's_mov_b64 exec, -1'], 'flag')
        idaddr = [f'v_lshlrev_b32 v57, 1, v{V_L16}', f's_lshr_b32 s{s_t1}, s{s_h}, 2', f's_and_b32 s32, s{s_h}, 3', 's_lshl_b32 s32, s32, 3', f's_add_u32 s48, s32, s{s_t1}']
        idld = (dbg.lines + idaddr + ['buffer_load_ubyte v56, v57, s[76:79], s48 offen sc1'], 'id')
        sig = dbg.lines + hfl.lines + [f's_cmp_eq_u32 s{s_w}, 0', f's_cbranch_scc0 {N}_nosig', f's_mov_b32 s{s_cnt}, 0',
               f'{N}_idchk:',
               'v_readfirstlane_b32 s32, v56', 's_and_b32 s32, s32, 0x40', 's_cmp_lg_u32 s32, 0', f's_cbranch_scc1 {N}_idok',
               f's_add_u32 s{s_cnt}, s{s_cnt}, 1', f's_cmp_ge_u32 s{s_cnt}, 0x20000', f's_cbranch_scc1 {N}_idok',
               'buffer_load_ubyte v56, v57, s[76:79], s48 offen sc1', 's_waitcnt vmcnt(0)', 's_nop 0', f's_branch {N}_idchk',
               f'{N}_idok:',
               'v_cmp_ne_u32 vcc, s33, v56', 's_nop 3', 's_and_b32 s32, vcc_lo, 0xff', 's_cmp_eq_u32 s32, 0',
               f's_cbranch_scc1 {N}_samexcd', 'buffer_wbl2 sc1', 's_waitcnt vmcnt(0)', f'{N}_samexcd:',
               f's_lshl_b32 s32, s{s_h}, 7', f's_lshl_b32 s{s_t1}, s{s_i}, 2', f's_add_u32 s32, s32, s{s_t1}',
               'v_mov_b32 v41, 0', 'v_mov_b32 v42, 1', 's_mov_b64 exec, 1',
               'buffer_store_dword v42, v41, s[92:95], s32 offen sc1', 's_mov_b64 exec, -1', f'{N}_nosig:']
        pollld = ['buffer_load_dword v232, v233, s[76:79], 0 offen sc1', 'buffer_load_dword v235, v233, s[92:95], s91 offen sc1']
        pollpre = dbg.lines + hfl.lines + [f's_lshl_b32 s91, s{s_h}, 7', f'v_lshrrev_b32 v233, 2, v{V_L16}', 'v_mov_b32 v234, 0x40404040',
                   f's_cmp_eq_u32 s{s_w}, 0', f's_cbranch_scc0 {N}_nopoll0'] + pollld + [f'{N}_nopoll0:']
        def pfw(srd_): return ([f'v_lshrrev_b32 v58, 5, v{V_L16}', 'v_lshlrev_b32 v58, 13, v58', f'v_bfe_u32 v59, v{V_L16}, 4, 1', 'v_lshl_add_u32 v58, v59, 7, v58',
               f's_lshl_b32 s32, s{s_w}, 4', f's_lshl_b32 s49, s{s_i}, 6', 's_add_u32 s32, s32, s49', 's_lshl_b32 s32, s32, 13',
               f's_lshl_b32 s49, s{s_h}, 8', 's_add_u32 s32, s32, s49', 's_mov_b32 exec_hi, 0',
               f'buffer_load_dword v253, v58, s[{srd_}:{srd_+3}], s32 offen', 's_mov_b64 exec, -1'], 'pf')
        def pfx(qt): return ([f'v_lshrrev_b32 v58, 7, v{V_L16}', 'v_lshlrev_b32 v58, 10, v58', f'v_bfe_u32 v59, v{V_L16}, 4, 3', 'v_lshl_add_u32 v58, v59, 7, v58',
               f's_lshl_b32 s32, s{qt}, 5', f's_and_b32 s49, s{s_h}, 3', 's_lshl_b32 s49, s49, 3', 's_add_u32 s32, s32, s49', 's_lshl_b32 s32, s32, 10',
               f'buffer_load_dword v253, v58, s[{S_X}:{S_X+3}], s32 offen'], 'pf')
        def pfc(k): return ([f'v_lshrrev_b32 v58, 7, v{V_L16}', 'v_lshlrev_b32 v58, 10, v58', f'v_bfe_u32 v59, v{V_L16}, 4, 3', 'v_lshl_add_u32 v58, v59, 7, v58',
               f's_lshl_b32 s32, s{s_i}, 8', f's_and_b32 s49, s{s_h}, 3', 's_lshl_b32 s49, s49, 6', 's_add_u32 s32, s32, s49', f's_lshl_b32 s49, s{s_w}, 4', 's_add_u32 s32, s32, s49',
               f's_add_u32 s32, s32, {8*k}', 's_lshl_b32 s32, s32, 10', f'buffer_load_dword v253, v58, s[{S_CK}:{S_CK+3}], s32 offen'], 'pf')
        def pf1():
            l = Asm(); make_srd(l, 76, 68, 0, 2048*3584)
            l(f'v_lshlrev_b32 v58, 3, v{V_L16}'); l('s_lshl_b32 s32, s2, 2'); l(f's_add_u32 s32, s32, s{s_w}'); l('s_mul_i32 s32, s32, 7168')
            l('buffer_load_dword v253, v58, s[76:79], s32 offen')
            return (l.lines, 'pf')
        pf = opt.get('pfa', 'vq')
        earlypoll = opt.get('earlypoll', True)
        def xe(p, t):
            if p == 0:
                g = list(setupG[(t-s_first)*perS:(t-s_first+1)*perS]) if s_first <= t < s_first+5 else []
                if t < 3: g = list(lnG[t*perL:(t+1)*perL]) + g
                if t == 0:
                    if 'k' in pf: g.append(pfw(S_WK))
                    if 'c' in pf: g += [pfc(0), pfc(1)]
                if '1' in pf and t == 6: g.append(pf1())
                if 'v' in pf and t == opt.get('pfv_t', 1): g.append(pfw(S_WV))
                return g
            if p == 1:
                g = list(KG[t*perK:(t+1)*perK])
                if 'q' in pf and t == 1: g.append(pfw(S_WQ))
                if 'x' in pf and t == 2: g.append(pfx(36))
                if 'x' in pf and t == 3: g.append(pfx(37))
                if '2' in pf and t == 5: g.append(pf1())
                return g
            if p == 2:
                g = []
                if t < nv: g += VGs[t*perV:(t+1)*perV] + ([idld] if t == 0 else [])
                if t == nv: g += zero
                if t == (5 if earlypoll else 6): g += [(srds, None)]
                if t == (6 if earlypoll else 7): g += [(pollpre, None)]
                if earlypoll and t == 7: g += KV0[6:] + VV0
                return g
            return []
        late_pf = opt.get('pflate', {})
        def xl(p, t):
            g = []
            t0 = 4 if lnfill else 2
            if p == 0 and t0 <= t < t0+4: g.append(lnsig(t-t0))
            if p == 2 and t == sigt: g.append((sig, None))
            if earlypoll and p == 2 and t == 6: g += KV0[:6]
            if opt.get('pfcode2', True) and p == 2 and t == opt.get('pfcode2_t', 4): g.append((self.code_touch('b', f'{N}_body', f'{N}_phasec', 2, 58), 'code'))
            k = late_pf.get((p, t))
            if k == 'v': g.append(pfw(S_WV))
            if k == 'q': g.append(pfw(S_WQ))
            if k == '1': g.append(pf1())
            if k == 'a': g.append(pfx(36))
            if k == 'b': g.append(pfx(37))
            return g
        assert sigt >= nv + 1 and sigt <= (5 if earlypoll else 6) and 48 % nv == 0
        if earlypoll:
            chk = ['s_waitcnt vmcnt(0)', 'v_and_b32 v232, v234, v232', 'v_cmp_ne_u32 vcc, v234, v232', 'v_cmp_ne_u32 s[54:55], 1, v235', 's_nop 3',
                   's_and_b32 s32, s54, 0xff', 's_or_b32 s32, s32, vcc_lo', 's_or_b32 s32, s32, vcc_hi', 's_cmp_eq_u32 s32, 0']
            pl = [f's_cmp_eq_u32 s{s_w}, 0', f's_cbranch_scc0 {N}_polled', f's_mov_b32 s{s_cnt}, 0', f'{N}_poll:'] + chk + \
                 [f's_cbranch_scc1 {N}_polled', f's_add_u32 s{s_cnt}, s{s_cnt}, 1', f's_cmp_ge_u32 s{s_cnt}, 0x20000', f's_cbranch_scc1 {N}_polled'] + pollld + \
                 [f's_branch {N}_poll', f'{N}_polled:']
            P.prebar = lambda p, t: (pl if (p, t) == (2, 6) else [])
        P.start_compute()
        self.stamp()
        P.run(ps, extra_early=xe, extra_late=xl)
        self.stamp()
        if not earlypoll:
            if p16:
                q_to_frags16(a, 64, QA, QB)
                for e in range(48): a(f'v_accvgpr_write_b32 a{e}, 0')
            else: self.q_to_frags_cvt()
            chk = ['s_waitcnt vmcnt(0)', 'v_and_b32 v232, v234, v232', 'v_cmp_ne_u32 vcc, v234, v232', 'v_cmp_ne_u32 s[54:55], 1, v235', 's_nop 3',
                   's_and_b32 s32, s54, 0xff', 's_or_b32 s32, s32, vcc_lo', 's_or_b32 s32, s32, vcc_hi', 's_cmp_eq_u32 s32, 0']
            for l in [f's_cmp_eq_u32 s{s_w}, 0', f's_cbranch_scc0 {N}_polled', f's_mov_b32 s{s_cnt}, 0', f'{N}_poll:'] + chk + \
                     [f's_cbranch_scc1 {N}_polled', f's_add_u32 s{s_cnt}, s{s_cnt}, 1', f's_cmp_ge_u32 s{s_cnt}, 0x20000', f's_cbranch_scc1 {N}_polled',
                      ] + ([f's_sleep {opt.get("sleep", 0)}'] if opt.get("sleep", 0) else []) + pollld + [f's_branch {N}_poll', f'{N}_polled:']: a(l)
            a('s_barrier')
            for g in KV0 + VV0:
                for l in g[0]: a(l)
        else:
            assert not p16
            self.q_to_frags_cvt()
        self.stamp()
        self.q_to_frags_srd()
        return M


class Main2(Main):
    def emit_head(self):
        a = self.a; N = self.name; opt = self.opt
        S_CK, S_WK, S_X, S_O, S_WV, S_WQ = 4, 8, 12, 16, 92, 60
        S_H, S_G, S_GW = 76, 48, 52
        a(f's_cmp_ge_u32 s2, 256')
        a(f's_cbranch_scc1 {N}_end')
        self.stamp()
        a(f's_load_dwordx2 s[90:91], s[0:1], {KA_CKV}')
        a(f's_load_dwordx4 s[96:99], s[0:1], {KA_WUK}')
        a(f's_load_dwordx2 s[34:35], s[0:1], {KA_WS}')
        a(f's_load_dwordx2 s[64:65], s[0:1], {KA_AX}')
        a(f's_load_dwordx2 s[38:39], s[0:1], {KA_GW}')
        a(f's_load_dwordx2 s[66:67], s[0:1], {KA_WQ}')
        a(f's_load_dwordx2 s[68:69], s[0:1], {KA_W1}')
        a(f's_load_dwordx2 s[86:87], s[0:1], {KA_B1}')
        a(f's_load_dwordx2 s[70:71], s[0:1], {KA_WO}')
        a(f's_load_dwordx2 s[72:73], s[0:1], {KA_W2}')
        a(f's_load_dwordx2 s[100:101], s[0:1], {KA_DBG}')
        a(f'v_lshrrev_b32 v1, 6, v0')
        a(f'v_and_b32 v2, 63, v0')
        a(f'v_lshlrev_b32 v{V_L16}, 4, v2')
        a(f'v_readfirstlane_b32 s{s_w}, v1')
        a(f's_and_b32 s{s_t0}, s2, 7')
        a(f's_lshr_b32 s{s_t1}, s2, 3')
        a(f's_lshl_b32 s{s_h}, s{s_t0}, 2')
        a(f's_and_b32 s{s_t0}, s{s_t1}, 3')
        a(f's_add_u32 s{s_h}, s{s_h}, s{s_t0}')
        a(f's_lshr_b32 s{s_i}, s{s_t1}, 2')
        a(f's_add_u32 s{s_g1}, s{s_i}, 1')
        a(f's_lshl_b32 s{s_g1}, s{s_g1}, 2')
        a(f's_lshl_b32 s36, s{s_i}, 2'); a(f's_add_u32 s36, s36, s{s_w}')
        a(f's_lshl_b32 s37, s{s_i}, 2'); a(f's_sub_u32 s37, 60, s37'); a(f's_add_u32 s37, s37, s{s_w}')
        vq = VmQueue()
        a('s_waitcnt lgkmcnt(0)')
        make_srd(a, S_CK, 90, 0, 2*MB); make_srd(a, S_WK, 96, 0, 4*MB); make_srd(a, S_WV, 98, 0, 4*MB)
        make_srd(a, S_X, 64, 0, 2*MB); make_srd(a, S_GW, 38, 0, 1024); make_srd(a, S_WQ, 66, 0, 4*MB)
        KV = ProjKV(a, vq, s_w, S_CK, S_WK, S_WV, ACCK=64, ACCV=64, VR=40, VT=33, SG=(38, 39, 64, 65, 66, 67, 90), stamps=self.st, opt=opt)
        KV.setup(s_i, s_h)
        LB_ = 232
        a(f's_lshl_b32 s82, s2, 3'); a(f's_lshl_b32 s83, s{s_w}, 1'); a('s_add_u32 s82, s82, s83')
        a('s_lshl_b32 s83, s82, 2'); a('s_lshl_b32 s82, s82, 10')
        a(f'buffer_load_dwordx4 v[{LB_}:{LB_+3}], v{V_L16}, s[{S_X}:{S_X+3}], s82 offen'); vq.push('ln')
        a(f'buffer_load_dwordx4 v[{LB_+4}:{LB_+7}], v{V_L16}, s[{S_X}:{S_X+3}], s82 offen offset:1024'); vq.push('ln')
        a(f'buffer_load_dwordx4 v[{LB_+16}:{LB_+19}], v{V_L16}, s[{S_GW}:{S_GW+3}], 0 offen'); vq.push('ln')
        rest0 = KV.prologue(opt.get('kvpro', 2))
        P = Proj(a, vq, s_w, 16384, 65536, ACC=64, FB=(192, 216), fbk='a', VA=8, V_L16=V_L16, VT=33, SG=40,
                 wflags=(' nt' if opt.get('nt', False) else ''), stamps=self.st, opt=opt)
        P.setup_addrs(set_l16=False)
        make_srd(a, S_O, 34, WS_K, 32*MB)
        make_srd(a, S_H, 34, WS_H, 2*MB); make_srd(a, S_G, 34, WS_G, 8192)
        real_a = self.a; tmp_a = Asm(); self.a = tmp_a; self.mtmp = 232
        M = self.setup_attn_regs()
        self.a = real_a; M.a = real_a
        c = 0x3e0293ee
        setup = tmp_a.lines + [f'v_mov_b32 v2, {hex(c)}', f'v_mov_b32 v3, {hex(c)}']
        setupG = [(setup[k:k+4], None) for k in range(0, len(setup), 4)]
        perS = -(-len(setupG)//6)
        vq.wait_for(a, 'ln')
        gen_proj.R.V_L16 = V_L16
        st_save = STF.st; STF.st = ' sc1'
        gen_proj.emit_ln_compute(a, LB_, S_H, S_G, 82, 83, 64)
        for _ in range(3): vq.push('lnst')
        a('s_getreg_b32 s33, hwreg(HW_REG_XCC_ID, 0, 4)')
        a('s_or_b32 s33, s33, 0x50')
        make_srd(a, 76, 34, WS_HF, 4096)
        a(f's_lshl_b32 s32, s{s_h}, 7')
        a('v_mov_b32 v58, 0'); a(f'v_lshrrev_b32 v59, 2, v{V_L16}')
        a(f's_or_b32 s{s_t0}, s{s_w}, s{s_i}'); a(f's_cmp_eq_u32 s{s_t0}, 0'); a('s_cselect_b32 exec_lo, -1, 0'); a('s_mov_b32 exec_hi, 0')
        a('buffer_store_dword v58, v59, s[76:79], s32 offen sc1'); vq.push('lnst')
        a('s_mov_b64 exec, -1')
        if opt.get('fusefin'):
            make_srd(a, 76, 34, WS_FL, 112*128)
            a('s_lshl_b32 s32, s2, 7')
            a(f's_cmp_eq_u32 s{s_w}, 0'); a('s_cselect_b32 exec_lo, -1, 0'); a('s_mov_b32 exec_hi, 0')
            a('buffer_store_dword v58, v59, s[76:79], s32 offen sc1'); vq.push('lnst')
            a('s_mov_b64 exec, -1')
        a(f's_and_b32 s91, s{s_h}, 3'); a(f's_cmp_eq_u32 s{s_w}, 0'); a('s_cselect_b32 s91, s91, 0xff')
        npre = 8*opt.get('kvpre2', 3)
        for g in rest0[:npre]: KV.emit_group(g)
        KV.initial = rest0[npre:]
        a(f's_lshl_b32 s{s_t0}, s{s_h}, 6'); a(f's_lshl_b32 s{s_t1}, s{s_i}, 3'); a(f's_add_u32 s{s_t0}, s{s_t0}, s{s_t1}')
        a(f's_lshl_b32 s{s_t1}, s{s_w}, 1'); a(f's_add_u32 s{s_t0}, s{s_t0}, s{s_t1}'); a(f's_lshl_b32 s{s_t0}, s{s_t0}, 13')
        for k in range(4):
            a(f's_add_u32 s{50+k}, s{s_t0}, {k*4096}')
            a(f's_add_u32 s{96+k}, s{s_t0}, {16*MB + k*4096}')
        STF.st = opt.get('kvst', '')
        KG = frag_store_groups(P, 'K', 'v', S_O, 50, None, v_scale=2, tag='kst')
        VGs = frag_store_groups(P, 'V', 'a', S_O, 96, 40, tag='vst')
        STF.st = st_save
        nv = opt.get('vstages', 3); sigt = opt.get('sigt', nv+1)
        perV = len(VGs)//nv
        KV0 = self.kv_groups('K', 6); VV0 = self.kv_groups('V', 4)
        zero = [([f'v_accvgpr_write_b32 a{4*k+e}, 0' for e in range(4)], None) for k in range(32)]
        srds = self.kv_srd_lines()
        dbg = Asm(); make_srd(dbg, 76, 100, 0, 256)
        hfl = Asm(); make_srd(hfl, 92, 34, WS_HF, 4096)
        def lnsig(k): return (dbg.lines + ['v_mov_b32 v58, 0', 'v_mov_b32 v59, s33', f's_cmp_eq_u32 s91, {k}', 's_cselect_b64 exec, 1, 0',
               f'buffer_store_byte v59, v58, s[76:79], s2 offen sc1', 's_mov_b64 exec, -1'], 'flag')
        idaddr = [f'v_lshlrev_b32 v57, 1, v{V_L16}', f's_lshr_b32 s{s_t1}, s{s_h}, 2', f's_and_b32 s32, s{s_h}, 3', 's_lshl_b32 s32, s32, 3', f's_add_u32 s48, s32, s{s_t1}']
        idld = (dbg.lines + idaddr + ['buffer_load_ubyte v56, v57, s[76:79], s48 offen sc1'], 'id')
        sig = dbg.lines + hfl.lines + [f's_cmp_eq_u32 s{s_w}, 0', f's_cbranch_scc0 {N}_nosig', f's_mov_b32 s{s_cnt}, 0',
               f'{N}_idchk:',
               'v_readfirstlane_b32 s32, v56', 's_and_b32 s32, s32, 0x40', 's_cmp_lg_u32 s32, 0', f's_cbranch_scc1 {N}_idok',
               f's_add_u32 s{s_cnt}, s{s_cnt}, 1', f's_cmp_ge_u32 s{s_cnt}, 0x20000', f's_cbranch_scc1 {N}_idok',
               'buffer_load_ubyte v56, v57, s[76:79], s48 offen sc1', 's_waitcnt vmcnt(0)', 's_nop 0', f's_branch {N}_idchk',
               f'{N}_idok:',
               'v_cmp_ne_u32 vcc, s33, v56', 's_nop 3', 's_and_b32 s32, vcc_lo, 0xff', 's_cmp_eq_u32 s32, 0',
               f's_cbranch_scc1 {N}_samexcd', 'buffer_wbl2 sc1', 's_waitcnt vmcnt(0)', f'{N}_samexcd:',
               f's_lshl_b32 s32, s{s_h}, 7', f's_lshl_b32 s{s_t1}, s{s_i}, 2', f's_add_u32 s32, s32, s{s_t1}',
               'v_mov_b32 v41, 0', 'v_mov_b32 v42, 1', 's_mov_b64 exec, 1',
               'buffer_store_dword v42, v41, s[92:95], s32 offen sc1', 's_mov_b64 exec, -1', f'{N}_nosig:']
        pollld = ['buffer_load_dword v232, v233, s[76:79], 0 offen sc1', 'buffer_load_dword v235, v233, s[92:95], s91 offen sc1']
        pollpre = dbg.lines + hfl.lines + [f's_lshl_b32 s91, s{s_h}, 7', f'v_lshrrev_b32 v233, 2, v{V_L16}', 'v_mov_b32 v234, 0x40404040',
                   f's_cmp_eq_u32 s{s_w}, 0', f's_cbranch_scc0 {N}_nopoll0'] + pollld + [f'{N}_nopoll0:']
        initQ = [f's_lshl_b32 s{P.s_a0}, s36, 15', f's_lshl_b32 s{P.s_a1}, s37, 15',
                 f's_lshl_b32 s{P.s_wo}, s{s_w}, 17', f's_lshl_b32 s49, s{s_h}, 8', f's_add_u32 s{P.s_wo}, s{P.s_wo}, s49']
        qpass = [dict(swap=False, srdA=S_X, srdW=S_WQ, init=initQ, epi=lambda: None, acck='v')]
        Q0 = P.dma_stage(S_X, S_WQ, (0, 0), pre=initQ); Q1 = P.dma_stage(S_X, S_WQ, (0, 1)); Q2 = P.dma_stage(S_X, S_WQ, (0, 2))
        def pfw(srd_): return ([f'v_lshrrev_b32 v58, 5, v{V_L16}', 'v_lshlrev_b32 v58, 13, v58', f'v_bfe_u32 v59, v{V_L16}, 4, 1', 'v_lshl_add_u32 v58, v59, 7, v58',
               f's_lshl_b32 s32, s{s_w}, 4', f's_lshl_b32 s49, s{s_i}, 6', 's_add_u32 s32, s32, s49', 's_lshl_b32 s32, s32, 13',
               f's_lshl_b32 s49, s{s_h}, 8', 's_add_u32 s32, s32, s49', 's_mov_b32 exec_hi, 0',
               f'buffer_load_dword v253, v58, s[{srd_}:{srd_+3}], s32 offen', 's_mov_b64 exec, -1'], 'pf')
        def pf1():
            l = Asm(); make_srd(l, 76, 68, 0, 2048*3584)
            l(f'v_lshlrev_b32 v58, 3, v{V_L16}'); l('s_lshl_b32 s32, s2, 2'); l(f's_add_u32 s32, s32, s{s_w}'); l('s_mul_i32 s32, s32, 7168')
            l('buffer_load_dword v253, v58, s[76:79], s32 offen')
            return (l.lines, 'pf')
        kvpf = opt.get('kvpf', {7: 'q', 9: '1'})
        def kvx(t):
            early, late = [], []
            if 1 <= t <= 6: early += setupG[(t-1)*perS:t*perS]
            if 2 <= t <= 5: late += [lnsig(t-2)]
            if kvpf.get(t) == 'q': late += [pfw(S_WQ)]
            if kvpf.get(t) == '1': late += [pf1()]
            if t == 13: late += Q0[:4]
            if t == 14: early += Q0[4:]; late += Q1[:4]
            if t == 15: early += Q1[4:]; late += Q2[:3]
            return early, late
        def handover():
            return (0, 0), P.read_addr_update(), P.kstep_reads(0, 0)
        KV.start()
        self.stamp()
        KV.run(kvx, handover)
        P.lq = list(KV.lq); P.g_pending = Q2[3:]
        self.stamp()
        a('s_nop 7')
        for g in KG: P.emit_group(g)
        self.stamp()
        def xe(p, t):
            g = []
            if t < nv: g += VGs[t*perV:(t+1)*perV] + ([idld] if t == 0 else [])
            if t == nv: g += zero[:16]
            if t == nv+1: g += zero[16:]
            if t == 6: g += [(srds, None)]
            if t == 7: g += [(pollpre, None)]
            return g
        def xl(p, t):
            return [(sig, None)] if t == sigt else []
        assert sigt >= nv + 1 and sigt <= 6 and 48 % nv == 0
        P.run(qpass, extra_early=xe, extra_late=xl)
        self.stamp()
        self.q_to_frags_cvt()
        chk = ['s_waitcnt vmcnt(0)', 'v_and_b32 v232, v234, v232', 'v_cmp_ne_u32 vcc, v234, v232', 'v_cmp_ne_u32 s[54:55], 1, v235', 's_nop 3',
               's_and_b32 s32, s54, 0xff', 's_or_b32 s32, s32, vcc_lo', 's_or_b32 s32, s32, vcc_hi', 's_cmp_eq_u32 s32, 0']
        for l in [f's_cmp_eq_u32 s{s_w}, 0', f's_cbranch_scc0 {N}_polled', f's_mov_b32 s{s_cnt}, 0', f'{N}_poll:'] + chk + \
                 [f's_cbranch_scc1 {N}_polled', f's_add_u32 s{s_cnt}, s{s_cnt}, 1', f's_cmp_ge_u32 s{s_cnt}, 0x20000', f's_cbranch_scc1 {N}_polled',
                  ] + ([f's_sleep {opt.get("sleep", 0)}'] if opt.get("sleep", 0) else []) + pollld + [f's_branch {N}_poll', f'{N}_polled:']: a(l)
        a('s_barrier')
        for g in KV0 + VV0:
            for l in g[0]: a(l)
        self.stamp()
        self.q_to_frags_srd()
        return M
```

```python
from asmlib import *
from layout import *
from gen_proj2 import Proj, VmQueue
from gen_proj import make_srd
import gen_t2
from gen_mlp import Mlp1

OA, OB = 0, 64
QA, QB = 0, 32
PFB = (128, 152)
FR = 192
NFR = 16
S = [[64, 80], [96, 112]]
P = [[128, 136], [144, 152]]
CA, CB = 160, 176
PT = 192
PS = [200, 201]
LA, LB = 202, 203
V_L16 = 204; V_KA = 205; V_VA = 206
V_RELA = 207; V_RELB = 208; V_NEG = 209
V_T = 210
V_DA, V_DB = 226, 227
V_AA, V_AB = 228, 229
V_MASK = 230; V_VBASE = 231; V_REL = [232, 233]
V_ST = 236
V_MA, V_MB, V_MR = 214, 216, 218
MACC = 128
S_MW, S_MH = 12, 60
s_ma, s_mb, s_ml = 85, 88, 89
S_K, S_V, S_Q, S_C = 4, 8, 12, 16
s_w, s_h, s_i, s_g1, s_cnt, s_ks, s_vs, s_t0, s_thr = 20, 21, 22, 23, 24, 25, 26, 27, 28
s_t1, s_step = 29, 32
S_RET = 30
S_M = 40
D = 8
THR = 0x4e800000

def v(b, n=1): return f'v{b}' if n == 1 else f'v[{b}:{b+n-1}]'
def ar(b, n=1): return f'a{b}' if n == 1 else f'a[{b}:{b+n-1}]'
MF = 'v_mfma_f32_32x32x16_bf16'

class Iter:
    def __init__(self, qk, sm, pv, next_qk, par, czero=False):
        self.qk, self.sm, self.pv, self.next_qk, self.par, self.czero = qk, sm, pv, next_qk, par, czero

def nfr(mode): return {None: 0, 1: 8, 2: 16}[mode]
PMAP = list(range(8))

class Attn:
    def __init__(self, a, name, diag=False, **opt):
        self.a = a; self.name = name; self.diag = diag; self.opt = opt; self.st = (RTStamps if opt.get('rt') else Stamps)(a, diag, vreg=254, sreg=30)
        global D
        D = opt.get('D', 8)
        PMAP[:] = [0, 1, 4, 5, 2, 3, 6, 7] if opt.get('p16') else list(range(8)); self.mlp = opt.get('mlp', True); self.nomlp_i = opt.get('nomlp_i', 7)
        self.phase = 0
        self.slow = []
        self.uid = 0
        self.vm = {}

    def simulate(self):
        res = {}
        self.vmm = {}
        for i in range(8):
            G1 = 4*(i+1)
            def mode(g): return None if (g < 0 or g > 33) else (1 if g < G1 else 2)
            def first(g):
                return g if g <= G1 else G1 + 2*(g-G1)
            def r(g): return 1 if g < G1 else 2
            issued = []
            def issue(kind, b0, nb):
                for b in range(b0, b0+nb):
                    issued.extend([(kind, b)]*2)
            kd = 0; vd = 0
            issue('K', 0, 6); issue('V', 0, 4)
            kd, vd = 6, 4
            kfree = 0; vfree = 0
            def need(n):
                req = []
                if mode(n+3): req += [('K', b) for b in range(first(n+3), first(n+3)+r(n+3))]
                if mode(n+1): req += [('V', b) for b in range(first(n+1), first(n+1)+r(n+1))]
                last = -1
                for k, x in enumerate(issued):
                    if x in req: last = k
                for x in req: assert x in issued, (i, n, x)
                return len(issued) - 1 - last if last >= 0 else None
            def pos(n):
                if n <= -1: return ('pro', n)
                if n <= G1-5:
                    if n >= G1-6 : return ('p1peel', n & 1)
                    return ('p1loop', n & 1)
                if n <= G1-1: return ('trans', n-G1)
                if n <= 31:
                    if n >= 30: return ('p2peel', n & 1)
                    return ('p2loop', n & 1)
                return ('epi', n)
            for n in range(-3, 34):
                if n == -1 and self.mlp: issued.extend([('M', 0)]*4 + [('M', 1)]*4)
                if n >= -2:
                    if mode(n) and n <= 31:
                        b0 = vd; nb = r(n)
                        assert b0 + nb - 8 <= (first(n-1) if n-1 >= 0 else 0), (i, n, b0, nb)
                        issue('V', b0, nb); vd += nb
                p = pos(n)
                if self.mlp and 0 <= n <= 31:
                    idx = [k for k, x in enumerate(issued) if x == ('M', n)]
                    if idx:
                        Nm = len(issued) - 1 - idx[-1]
                        self.vmm[p] = min(self.vmm.get(p, 99), Nm)
                    else: assert n >= 32 or i == 7 or True
                    if p[0] != 'p2peel': issued.extend([('M', n+2)]*4)
                N = need(n)
                if N is not None:
                    res[p] = min(res.get(p, 99), N)
                if mode(n+3) or (n <= 31 and n >= -3):
                    nb = r(n+3)
                    if n <= 30 or True:
                        assert kd + nb - 8 <= first(n+3), (i, n, kd, nb)
                        issue('K', kd, nb); kd += nb
                if n == G1-1: issued.extend([('S', 0)]*8)
        self.vm = res
        return res

    def dma_group(self, kind, nb, split=False):
        srd_, so = (S_K, s_ks) if kind == 'K' else (S_V, s_vs)
        g = []
        if kind == 'K':
            pre = [f's_and_b32 m0, s{so}, 0xffff']
        else:
            pre = [f's_and_b32 s{s_t0}, s{so}, 0xffff', f's_or_b32 m0, s{s_t0}, 0x10000']
        n = 2*nb
        if split: g.append(pre)
        for k in range(n):
            l = []
            if k == 0 and not split: l += pre + ['s_nop 0']
            off = f' offset:{k*1024}' if k else ''
            l.append(f'buffer_load_dwordx4 v{V_L16}, s[{srd_}:{srd_+3}], s{so} offen{off} lds')
            if k == n-1: l.append(f's_add_u32 s{so}, s{so}, {nb*8192}')
            g.append(l)
        return g

    def mlp_dma_groups(self, par):
        g = []
        for vo, srd_, so, step, off in ((V_MA, S_MW, s_ma, 16*3584, 0), (V_MB, S_MH, s_mb, 16*1024, 2048)):
            g.append([f's_add_u32 m0, s{s_ml}, {par*4096+off}'])
            g.append([f'buffer_load_dwordx4 v{vo}, s[{srd_}:{srd_+3}], s{so} offen lds'])
            g.append([f'buffer_load_dwordx4 v{vo+1}, s[{srd_}:{srd_+3}], s{so} offen offset:1024 lds', f's_add_u32 s{so}, s{so}, {step}'])
        return g

    def sm_ops(self, it):
        sm = it.sm; pr = it.par ^ 1
        ops = []
        masked = sm.endswith('m')
        init = sm == 'init'
        mode = '1' if init else sm[0]
        for b in range(2):
            Sb = S[pr][b]; Pb = P[pr][b]
            domask = masked and (mode == '2' or b == 0)
            blk = []
            if domask:
                def cmp(e): return (4, f'v_cmp_ge_i32 s[{S_M+2*(e%8)}:{S_M+2*(e%8)+1}], v{V_REL[b]}, {8*(e>>2)+(e&3)}')
                def cnd(e): return (4, f'v_cndmask_b32 v{Sb+e}, v{V_NEG}, v{Sb+e}, s[{S_M+2*(e%8)}:{S_M+2*(e%8)+1}]')
                blk += [cmp(0), cmp(1), cmp(2), cmp(3), cnd(0)]
            for e in range(16):
                if domask:
                    if e+4 < 16: blk.append(cmp(e+4))
                    if e+1 < 16: blk.append(cnd(e+1))
                if init:
                    if e == 0: blk.append((4, f'v_sub_f32 v{Sb}, v{Sb}, v{V_DA if b == 0 else V_DB}'))
                    if e+1 < 16: blk.append((4, f'v_sub_f32 v{Sb+e+1}, v{Sb+e+1}, v{V_DA if b == 0 else V_DB}'))
                blk.append((8, f'v_exp_f32 v{PT+(e%8)}, v{Sb+e}'))
                if e >= 2 or True:
                    k = e-1
                    if k == 1: blk.append((4, f'v_add_f32 v{PS[b]}, v{PT+0}, v{PT+1}'))
                    elif k > 1: blk.append((4, f'v_add_f32 v{PS[b]}, v{PS[b]}, v{PT+(k%8)}'))
                    if k >= 1 and k % 2 == 1:
                        blk.append((4, f'v_cvt_pk_bf16_f32 v{Pb+PMAP[k>>1]}, v{PT+((k-1)%8)}, v{PT+(k%8)}'))
            blk.append((4, f'v_add_f32 v{PS[b]}, v{PS[b]}, v{PT+(15%8)}'))
            blk.append((4, f'v_cvt_pk_bf16_f32 v{Pb+PMAP[7]}, v{PT+(14%8)}, v{PT+(15%8)}'))
            ops += blk
        if not init and not self.opt.get('nocheck'):
            ops.append((4, f'v_max_f32 v{V_T}, v{PS[0]}, v{PS[1]}'))
            ops.append((4, f'v_cmp_lt_f32 vcc, s{s_thr}, v{V_T}'))
        return ops

    def rel_setup(self, it):
        return []

    def emit_iter(self, it, pos, extra_pre=None, name='', extra_post=None):
        a = self.a
        par = it.par
        ph = self.phase
        mf = []
        reads = []
        fidx = 0
        def fr(k): return FR + 4*((ph + k) % NFR)
        Sw = S[par]; Pr = P[par]
        if it.qk == 1:
            for j in range(8):
                A = ar(fr(fidx+j), 4)
                for b, Q, C in ((0, QA, CA), (1, QB, CB)):
                    c = ('0' if it.czero else v(C, 16)) if j == 0 else v(Sw[b], 16)
                    mf.append((f'{MF} {v(Sw[b],16)}, {A}, {v(Q+4*j,4)}, {c}', fidx+j))
                reads.append((2*j, f'ds_read_b128 {A}, v{V_KA} offset:{j*1024}', fidx+j))
            fidx += 8
        elif it.qk == 2:
            for f in range(16):
                b, j = f >> 3, f & 7
                A = ar(fr(fidx+f), 4)
                c = ('0' if it.czero else v(CB, 16)) if j == 0 else v(Sw[b], 16)
                mf.append((f'{MF} {v(Sw[b],16)}, {A}, {v(QB+4*j,4)}, {c}', fidx+f))
                reads.append((f, f'ds_read_b128 {A}, v{V_KA} offset:{f*1024}', fidx+f))
            fidx += 16
        mlp = self.mlp and getattr(it, 'mlp', False)
        m0 = len(mf)
        if mlp:
            for ft in range(2):
                for dt in range(2):
                    acc = ar(MACC+16*(2*ft+dt), 16)
                    mf.append((f'{MF} {acc}, {v(V_ST+4*ft,4)}, {v(V_ST+8+4*dt,4)}, {acc}', 'm7' if (ft, dt) == (0, 0) else None))
        s0 = len(mf)
        if it.pv == 1:
            for f in range(8):
                t, db = f >> 2, f & 3
                A = ar(fr(fidx+f), 4)
                for b, O in ((0, OA), (1, OB)):
                    mf.append((f'{MF} {ar(O+16*db,16)}, {A}, {v(Pr[b]+4*t,4)}, {ar(O+16*db,16)}', fidx+f))
                reads.append((s0+2*f, f'ds_read_b128 {A}, v{V_VA} offset:{f*1024}', fidx+f))
            fidx += 8
        elif it.pv == 2:
            for f in range(16):
                b, t, db = f >> 3, (f >> 2) & 1, f & 3
                A = ar(fr(fidx+f), 4)
                mf.append((f'{MF} {ar(OB+16*db,16)}, {A}, {v(Pr[b]+4*t,4)}, {ar(OB+16*db,16)}', fidx+f))
                reads.append((s0+f, f'ds_read_b128 {A}, v{V_VA} offset:{f*1024}', fidx+f))
            fidx += 16
        ns = len(mf)
        nown = fidx
        lead_in = [r for r in reads if it.qk and r[0] < D and r[2] < nfr(it.qk)]
        own = [r for r in reads if r not in lead_in]
        lead_out = []
        if it.next_qk:
            n = nfr(it.next_qk)
            for j in range(n):
                fu = 2*j if it.next_qk == 1 else j
                if fu < D:
                    A = ar(FR + 4*((ph + nown + j) % NFR), 4)
                    lead_out.append((ns + fu, f'ds_read_b128 {A}, v{V_KA} offset:{j*1024}', nown+j))
        bslot = max(ns - D, 0)
        slots = [[] for _ in range(ns+1)]
        pre = []
        order = [r[2] for r in lead_in]
        def place_read(slot, r):
            (pre if slot < 0 else slots[slot]).append(('ds', r[1], r[2]))
        for r in own:
            place_read(r[0]-D if r[0]-D >= 0 else -1, r)
        if mlp:
            base = par*4096
            rd = []
            for op in range(2):
                for tl in range(2):
                    r = V_ST + 8*op + 4*tl
                    rd.append(f'ds_read_b64_tr_b16 {v(r,2)}, v{V_MR+tl} offset:{base+op*2048}')
                    rd.append(f'ds_read_b64_tr_b16 {v(r+2,2)}, v{V_MR+tl} offset:{base+op*2048+512}')
            slots[m0-8].append(('x', f's_waitcnt vmcnt({self.vmm[pos]})'))
            for k, t_ in enumerate(rd): slots[m0-8+k//2].append(('ds', t_, f'm{k}'))
        win = []
        has_bar = pos is not None and pos in self.vm
        if has_bar:
            if not self.opt.get('novm'): win.append(('x', f's_waitcnt vmcnt({0 if pos == ("epi", 32) else self.vm[pos]})'))
            if not self.opt.get('nobar'): win.append(('x', 's_barrier'))
        if it.qk:
            win.append(('x', f'v_add_u32 v{V_KA}, {8192*(1 if it.qk==1 else 2)}, v{V_KA}'))
            win.append(('x', f'v_and_b32 v{V_KA}, 0xffff, v{V_KA}'))
        if it.pv:
            win.append(('x', f'v_add_u32 v{V_VA}, {8192*(1 if it.pv==1 else 2)}, v{V_VA}'))
            win.append(('x', f'v_and_or_b32 v{V_VA}, v{V_VA}, v{V_MASK}, v{V_VBASE}'))
        for r in own:
            assert r[0]-D < bslot or ns <= D, (r, bslot)
        vg = self.dma_group('V', 1 if it.pv == 1 else 2, split=True) if (it.pv and not getattr(it, 'nov', False)) else []
        kg = self.dma_group('K', 1 if it.next_qk == 1 else 2, split=True) if (it.next_qk or getattr(it, 'forcek', False)) else []
        if self.opt.get('nodma') and pos and pos[0] != 'pro': vg = []; kg = []
        mg = []
        if mlp and getattr(it, 'mlp_dma', True):
            pos_m = [1, 2, 4, 6, 7, 9] if self.opt.get('spread') else [1, 2, 3, 4, 5, 6]
            mg = [(m0+pos_m[k], g) for k, g in enumerate(self.mlp_dma_groups(par))]
        if getattr(it, 'mlp_first', False):
            gs = self.mlp_dma_groups(0) + self.mlp_dma_groups(1)
            gs = [g + ['s_nop 0'] if 'm0' in g[0] else g for g in gs]
            mg = [(k*7//len(gs), g) for k, g in enumerate(gs)]
        sm = self.sm_ops(it) if it.sm else []
        if self.opt.get('nosm'): sm = []
        if self.opt.get('noexp'): sm = [(c, t) for c, t in sm if 'exp' not in t]
        if self.opt.get('noadd'): sm = [(c, t) for c, t in sm if 'v_add_f32' not in t]
        tot = sum(c for c, _ in sm)
        fixed = [0.0]*ns
        dsc = self.opt.get('dsc', 4)
        for k in range(ns):
            fixed[k] += sum(dsc if x[0] == 'ds' else 4 for x in slots[k])
        dmac = self.opt.get('dmac', 4)
        def gcost(grp): return sum(dmac if l.startswith('buffer_') else 4 for l in grp)
        vstep = 1
        for k, grp in enumerate(vg):
            sl = min(ns-1, k*(vstep if len(vg) > 3 else 2))
            if self.opt.get('spread') and len(vg) == 5 and mlp: sl = [0, 1, 3, 5, 7][k]
            slots[sl].append(('dma', grp)); fixed[sl] += gcost(grp)
        for sl, grp in mg:
            slots[sl].append(('dma', grp)); fixed[sl] += gcost(grp)
        slots[bslot] = win + slots[bslot]; fixed[bslot] += 4*len(win)
        for r in lead_out:
            sl = min(ns-1, r[0]-D); slots[sl].append(('ds', r[1], r[2])); fixed[sl] += dsc
        for k, grp in enumerate(kg):
            sl = min(ns-1, bslot + k*(1 if len(kg) > 3 else 2) + (1 if k else 0))
            if self.opt.get('spread') and len(kg) == 5 and ns - bslot >= 8: sl = bslot + [0, 1, 3, 5, 7][k]
            slots[sl].append(('dma', grp)); fixed[sl] += gcost(grp)
        xf = list(getattr(it, 'fill', [])); xg = list(getattr(it, 'fill_groups', []))
        if xf or xg:
            nsl = ns
            half = max(1, int(nsl*0.55))
            for k, x in enumerate(xf): slots[min(half-1, k*half//len(xf))].append(x)
            for k, g in enumerate(xg): slots[min(nsl-1, half + k*(nsl-half)//len(xg))].append(('dmag', g))
        total = tot + sum(fixed)
        smslots = [[] for _ in range(ns)]
        if sm:
            k = 0; cum = 0.0; target_end = ns - self.opt.get('tail', 1.6)
            acc = 0.0
            for sl in range(ns):
                acc += fixed[sl]
                lim = total * (sl+1) / target_end
                while k < len(sm) and (acc + sm[k][0]*0.5 <= lim or sl == ns-1):
                    smslots[sl].append(sm[k]); acc += sm[k][0]; k += 1
        if extra_pre:
            for l in extra_pre: a(l)
        q = list(order)
        def emit_fill(x):
            if x[0] == 'ds':
                a(x[1]); q.append(x[2])
            elif x[0] == 'dma':
                for l in x[1]: a(l)
            elif x[0] == 'dmag':
                for l in x[1][0]: a(l)
                it.vq.push(x[1][1])
            else:
                a(x[1])
        for x in pre: emit_fill(x)
        waited = -1
        for k, (txt, f) in enumerate(mf):
            if f is not None and f in q:
                idx = q.index(f)
                ahead = self.opt.get('wahead', 1)
                idx2 = min(idx + ahead, len(q)-1) if (k % 2 == 0 or ahead > 1) else idx
                idx2 = max(idx, min(idx2, len(q)-1-self.opt.get('wmin', 0)))
                nleft = len(q) - 1 - idx2
                a(f's_waitcnt lgkmcnt({nleft})')
                q = q[idx2+1:]
            a(txt)
            fl = slots[k]
            dfirst = self.opt.get('dfirst') and not any(x[0] == 'x' for x in fl)
            if dfirst:
                for x in fl:
                    if x[0] in ('dma', 'dmag'): emit_fill(x)
            for x in fl:
                if x[0] in ('x', 'ds'): emit_fill(x)
            for c, t in smslots[k]: a(t)
            if not dfirst:
                for x in fl:
                    if x[0] in ('dma', 'dmag'): emit_fill(x)
        self.phase = (ph + nown) % NFR
        for l in (extra_post or []): a(l)
        if it.sm and it.sm != 'init' and not self.opt.get('nocheck'):
            self.uid += 1
            u = self.uid
            a(f's_cbranch_vccnz {self.name}_slow{u}')
            a.label(f'{self.name}_join{u}')
            self.l_update(it.sm)
            self.slow.append((u, it))
        elif it.sm == 'init':
            a(f'v_mov_b32 v{LA}, v{PS[0]}')
            a(f'v_mov_b32 v{LB}, v{PS[1]}')

    def l_update(self, sm):
        a = self.a
        if sm[0] == '1' or sm == 'init':
            a(f'v_add_f32 v{LA}, v{LA}, v{PS[0]}')
            a(f'v_add_f32 v{LB}, v{LB}, v{PS[1]}')
        else:
            a(f'v_add_f32 v{LB}, v{LB}, v{PS[0]}')
            a(f'v_add_f32 v{LB}, v{LB}, v{PS[1]}')

    def rowmax(self, dst, blocks):
        a = self.a
        regs = [b+e for b in blocks for e in range(16)]
        a(f'v_max3_f32 v{dst}, v{regs[0]}, v{regs[1]}, v{regs[2]}')
        k = 3
        while k+1 < len(regs):
            a(f'v_max3_f32 v{dst}, v{dst}, v{regs[k]}, v{regs[k+1]}'); k += 2
        if k < len(regs): a(f'v_max_f32 v{dst}, v{dst}, v{regs[k]}')
        a(f'v_mov_b32 v{V_T+1}, v{dst}')
        a('s_nop 1')
        a(f'v_permlane32_swap_b32 v{V_T+1}, v{dst}')
        a('s_nop 1')
        a(f'v_max_f32 v{dst}, v{dst}, v{V_T+1}')

    def plain_sm(self, pr):
        a = self.a
        for b in range(2):
            for e in range(0, 16, 2):
                a(f'v_exp_f32 v{PT}, v{S[pr][b]+e}')
                a(f'v_exp_f32 v{PT+1}, v{S[pr][b]+e+1}')
                a('s_nop 0')
                a(f'v_cvt_pk_bf16_f32 v{P[pr][b]+PMAP[e>>1]}, v{PT}, v{PT+1}')
                if e == 0:
                    a(f'v_add_f32 v{PS[b]}, v{PT}, v{PT+1}')
                else:
                    a(f'v_add_f32 v{PS[b]}, v{PS[b]}, v{PT}')
                    a(f'v_add_f32 v{PS[b]}, v{PS[b]}, v{PT+1}')

    def sub_delta(self, pr, mode):
        a = self.a
        for b in range(2):
            dl = V_DA if (mode == 1 and b == 0) else V_DB
            for e in range(16):
                a(f'v_sub_f32 v{S[pr][b]+e}, v{S[pr][b]+e}, v{dl}')

    def emit_slow(self, u, it):
        a = self.a
        pr = it.par ^ 1
        mode = 1 if it.sm[0] == '1' else 2
        a.label(f'{self.name}_slow{u}')
        a('s_nop 15')
        a('s_nop 7')
        if mode == 1:
            self.rowmax(V_DA, [S[pr][0]])
            self.rowmax(V_DB, [S[pr][1]])
            a(f'v_max_f32 v{V_DA}, 0, v{V_DA}')
        else:
            self.rowmax(V_DB, [S[pr][0], S[pr][1]])
            a(f'v_mov_b32 v{V_DA}, 0')
        a(f'v_max_f32 v{V_DB}, 0, v{V_DB}')
        a(f's_call_b64 s[{S_RET}:{S_RET+1}], {self.name}_rescale')
        self.sub_delta(pr, mode)
        if it.qk: self.sub_delta(it.par, it.qk)
        self.plain_sm(pr)
        a(f's_branch {self.name}_join{u}')

    def emit_rescale(self):
        a = self.a
        a.label(f'{self.name}_rescale')
        a(f'v_exp_f32 v{V_AA}, -v{V_DA}')
        a(f'v_exp_f32 v{V_AB}, -v{V_DB}')
        a('s_nop 0')
        for O, al in ((OA, V_AA), (OB, V_AB)):
            for e in range(0, 64, 4):
                for k in range(4): a(f'v_accvgpr_read_b32 v{V_T+k}, a{O+e+k}')
                for k in range(4): a(f'v_mul_f32 v{V_T+k}, v{V_T+k}, v{al}')
                for k in range(4): a(f'v_accvgpr_write_b32 a{O+e+k}, v{V_T+k}')
        a(f'v_mul_f32 v{LA}, v{LA}, v{V_AA}')
        a(f'v_mul_f32 v{LB}, v{LB}, v{V_AB}')
        for e in range(16):
            a(f'v_sub_f32 v{CA+e}, v{CA+e}, v{V_DA}')
            a(f'v_sub_f32 v{CB+e}, v{CB+e}, v{V_DB}')
        a('s_nop 1')
        a(f's_setpc_b64 s[{S_RET}:{S_RET+1}]')

    def mask_inplace(self, pr, b):
        a = self.a
        for e0 in range(0, 16, 8):
            for e in range(e0, e0+8):
                a(f'v_cmp_ge_i32 s[{S_M+2*(e%8)}:{S_M+2*(e%8)+1}], v{V_REL[b]}, {8*(e>>2)+(e&3)}')
            a('s_nop 1')
            for e in range(e0, e0+8):
                a(f'v_cndmask_b32 v{S[pr][b]+e}, v{V_NEG}, v{S[pr][b]+e}, s[{S_M+2*(e%8)}:{S_M+2*(e%8)+1}]')

    def emit_init(self):
        a = self.a
        a(f'v_mov_b32 v{V_REL[0]}, v{V_RELA}')
        a('s_nop 12')
        a(f's_cmp_lg_u32 s{s_i}, 0'); a(f's_cbranch_scc1 {self.name}_nomask0')
        self.mask_inplace(0, 0)
        a.label(f'{self.name}_nomask0')
        self.rowmax(V_DA, [S[0][0]])
        self.rowmax(V_DB, [S[0][1]])
        for e in range(16):
            a(f'v_sub_f32 v{CA+e}, 0, v{V_DA}')
            a(f'v_sub_f32 v{CB+e}, 0, v{V_DB}')
        a('s_nop 1')

    def epilogue_tile(self, O, L, qt_sgpr, vq=None):
        a = self.a
        a(f'v_mov_b32 v{V_T+1}, v{L}')
        a('s_nop 1')
        a(f'v_permlane32_swap_b32 v{V_T+1}, v{L}')
        a('s_nop 1')
        a(f'v_add_f32 v{L}, v{L}, v{V_T+1}')
        a(f'v_rcp_f32 v{V_T+2}, v{L}')
        a('s_nop 0')
        a(f'v_mov_b32 v{V_T+3}, v{V_T+2}')
        inv = V_T+2
        k = 0
        for db in range(4):
            for t in range(2):
                tmp = V_ST + 8*(k % 2)
                for e in range(8): a(f'v_accvgpr_read_b32 v{tmp+e}, a{O+16*db+8*t+e}')
                for e in range(0, 8, 2): a(f'v_pk_mul_f32 v[{tmp+e}:{tmp+e+1}], v[{tmp+e}:{tmp+e+1}], v[{inv}:{inv+1}]')
                for e in range(0, 8, 2): a(f'v_cvt_pk_bf16_f32 v{tmp+(e>>1)}, v{tmp+e}, v{tmp+e+1}')
                j = 2*db+t
                off = j*1024
                so = qt_sgpr if off < 4096 else qt_sgpr+1
                a(f'buffer_store_dwordx4 v[{tmp}:{tmp+3}], v{V_L16}, s[{S_C}:{S_C+3}], s{so} offen offset:{off % 4096}{STF.st}')
                if vq: vq.push('ctx')
                k += 1

    def stamp(self, same=False):
        self.st()
    def dump_stamps(self):
        self.st.dump(100*MB, s_w, 253)

    def emit(self):
        self.simulate()
        M = self.emit_head()
        self.emit_body(M)

    def kv_srd_lines(self):
        a = Asm()
        a(f's_lshl_b32 s{s_t0}, s{s_h}, 19')
        a(f's_lshl_b32 s{s_t1}, s{s_i}, 15')
        a(f's_sub_u32 s{s_t1}, 0x80000, s{s_t1}')
        for S_, base in ((S_K, WS_K), (S_V, WS_V)):
            a(f's_add_u32 s{S_}, s34, {base}')
            a(f's_addc_u32 s{S_+1}, s35, 0')
            a(f's_add_u32 s{S_}, s{S_}, s{s_t0}')
            a(f's_addc_u32 s{S_+1}, s{S_+1}, 0')
            a(f's_and_b32 s{S_+1}, s{S_+1}, 0xffff')
            a(f's_mov_b32 s{S_+2}, s{s_t1}')
            a(f's_mov_b32 s{S_+3}, 0x20000')
        make_srd(a, S_C, 34, WS_CTX, 16*MB)
        for qt, d in ((36, 56), (37, 58)):
            a(f's_lshl_b32 s{s_t0}, s{qt}, 5')
            a(f's_add_u32 s{s_t0}, s{s_t0}, s{s_h}')
            a(f's_lshl_b32 s{d}, s{s_t0}, 13')
            a(f's_add_u32 s{d+1}, s{d}, 4096')
        return a.lines

    def code_touch(self, tag, lab0, lab1, per, vt):
        N = self.name
        return [f's_getpc_b64 s[54:55]', f'{N}_pc{tag}:',
                's_lshr_b32 s32, s2, 3', 's_lshl_b32 s32, s32, 2', f's_add_u32 s32, s32, s{s_w}', f's_mul_i32 s32, s32, {per*128}',
                f'v_lshrrev_b32 v{vt}, 4, v{V_L16}', f'v_min_u32 v{vt}, {per-1}, v{vt}', f'v_lshlrev_b32 v{vt}, 7, v{vt}', f'v_add_u32 v{vt}, s32, v{vt}',
                f'v_add_u32 v{vt}, {lab0}-{N}_pc{tag}, v{vt}', f'v_min_u32 v{vt}, {lab1}-{N}_pc{tag}, v{vt}',
                f'v_mov_b32 v{vt+1}, s55', f'v_add_co_u32 v{vt}, s[52:53], s54, v{vt}', 's_nop 1', f'v_addc_co_u32 v{vt+1}, s[52:53], 0, v{vt+1}, s[52:53]',
                f'global_load_dword v253, v[{vt}:{vt+1}], off']

    def kv_groups(self, kind, nb):
        G = []
        for b in range(nb):
            for grp in self.dma_group(kind, 1): G.append((grp, 'kv'))
        return G

    def q_to_frags(self):
        self.q_to_frags_cvt(); self.q_to_frags_srd()

    def q_to_frags_cvt(self):
        a = self.a
        a('s_nop 7')
        for st, Q in ((0, QA), (1, QB)):
            for dt in range(4):
                A = 64 + 16*(4*st+dt)
                for t in range(2):
                    for k in range(4):
                        a(f'v_cvt_pk_bf16_f32 v{Q+4*(2*dt+t)+k}, v{A+8*t+2*k}, v{A+8*t+2*k+1}')

    def q_to_frags_srd(self):
        a = self.a
        if self.mlp:
            make_srd(a, S_MW, 68, 0, 2048*3584); make_srd(a, S_MH, 34, WS_H, 2*MB)
            a(f's_cmp_eq_u32 s{s_i}, {self.nomlp_i}')
            a(f's_cselect_b32 s{S_MW+2}, 0, s{S_MW+2}')
            a(f's_cselect_b32 s{S_MH+2}, 0, s{S_MH+2}')

    def setup_attn_regs(self):
        a = self.a; opt = self.opt
        a(f's_lshl_b32 s{s_ks}, s{s_w}, 11')
        a(f's_mov_b32 s{s_vs}, s{s_ks}')
        a(f's_mov_b32 s{s_thr}, {THR}')
        a(f'v_mov_b32 v{V_NEG}, 0xf149f2ca')
        a(f'v_mov_b32 v{V_MASK}, 0xffff')
        a(f'v_mov_b32 v{V_VBASE}, 0x10000')
        a(f'v_mov_b32 v{V_KA}, v{V_L16}')
        a(f'v_add_u32 v{V_VA}, 0x10000, v{V_L16}')
        a(f'v_and_b32 v3, 31, v2')
        a(f'v_lshrrev_b32 v4, 5, v2')
        a(f'v_lshlrev_b32 v4, 2, v4')
        a(f'v_sub_u32 v3, v3, v4')
        a(f's_lshl_b32 s{s_t0}, s36, 5')
        a(f'v_add_u32 v{V_RELA}, s{s_t0}, v3')
        a(f's_lshl_b32 s{s_t0}, s37, 5')
        a(f'v_add_u32 v{V_RELB}, s{s_t0}, v3')
        M = Mlp1(a, tshift=(4 if self.nomlp_i == 0 else 0)); M.ids()
        if self.mlp:
            T = 33
            a(f's_lshl_b32 s{s_ml}, s{s_w}, 13'); a(f's_add_u32 s{s_ml}, s{s_ml}, 131072')
            gen_t2.lane_setup(a, 5, T)
            for t in range(2):
                X = T+5; dst = V_MR+t
                a(f'v_mul_u32_u24 v{X}, 8, v{T}'); a(f'v_add_u32 v{X}, v{X}, v{T+1}'); a(f'v_lshlrev_b32 v{X}, 7, v{X}')
                a(f'v_xor_b32 v{dst}, {t}, v{T+4}'); a(f'v_lshl_add_u32 v{X}, v{dst}, 6, v{X}')
                a(f'v_lshl_add_u32 v{X}, v{T+2}, 5, v{X}'); a(f'v_lshl_add_u32 v{X}, v{T+3}, 3, v{X}')
                a(f'v_add_u32 v{dst}, s{s_ml}, v{X}')
            for dst, stride in ((V_MA, 3584), (V_MB, 1024)):
                mt = getattr(self, 'mtmp', 48)
                gen_t2.dma_voffs(a, mt, 5, T, stride, s_t1)
                a(f'v_mov_b32 v{dst}, v{mt}'); a(f'v_mov_b32 v{dst+1}, v{mt+1}')
            a(f's_mul_i32 s{s_ma}, s{s_w}, {512*3584}'); a(f's_lshl_b32 s{s_t1}, s{M.s_fb}, 7'); a(f's_add_u32 s{s_ma}, s{s_ma}, s{s_t1}')
            a(f's_lshl_b32 s{s_mb}, s{s_w}, 19'); a(f's_lshl_b32 s{s_t1}, s{M.s_db}, 7'); a(f's_add_u32 s{s_mb}, s{s_mb}, s{s_t1}')
        a(f'v_lshlrev_b32 v252, 3, v{V_L16}')
        a(f's_sub_u32 s{s_t0}, s2, 32'); a(f's_lshl_b32 s{s_t0}, s{s_t0}, 2'); a(f's_add_u32 s{s_t0}, s{s_t0}, s{s_w}')
        a(f's_lshl_b32 s74, s{s_t0}, 13')
        a(f's_mul_i32 s75, s{s_t0}, 4736')
        return M

    def emit_head(self):
        a = self.a; N = self.name; opt = self.opt
        vm = self.vm
        S_X, S_WQ = 12, 60
        a(f's_cmp_ge_u32 s2, 256')
        a(f's_cbranch_scc1 {N}_end')
        self.stamp()
        a(f's_load_dwordx2 s[34:35], s[0:1], {KA_WS}')
        a(f's_load_dwordx2 s[64:65], s[0:1], {KA_AX}')
        a(f's_load_dwordx2 s[66:67], s[0:1], {KA_WQ}')
        a(f's_load_dwordx2 s[68:69], s[0:1], {KA_W1}')
        a(f's_load_dwordx2 s[86:87], s[0:1], {KA_B1}')
        a(f's_load_dwordx2 s[70:71], s[0:1], {KA_WO}')
        a(f's_load_dwordx2 s[72:73], s[0:1], {KA_W2}')
        a(f'v_lshrrev_b32 v1, 6, v0')
        a(f'v_and_b32 v2, 63, v0')
        a(f'v_lshlrev_b32 v{V_L16}, 4, v2')
        a(f'v_readfirstlane_b32 s{s_w}, v1')
        a(f's_and_b32 s{s_t0}, s2, 7')
        a(f's_lshr_b32 s{s_t1}, s2, 3')
        a(f's_lshl_b32 s{s_h}, s{s_t0}, 2')
        a(f's_and_b32 s{s_t0}, s{s_t1}, 3')
        a(f's_add_u32 s{s_h}, s{s_h}, s{s_t0}')
        a(f's_lshr_b32 s{s_i}, s{s_t1}, 2')
        a(f's_add_u32 s{s_g1}, s{s_i}, 1')
        a(f's_lshl_b32 s{s_g1}, s{s_g1}, 2')
        a(f's_lshl_b32 s36, s{s_i}, 2')
        a(f's_add_u32 s36, s36, s{s_w}')
        a(f's_lshl_b32 s37, s{s_i}, 2')
        a(f's_sub_u32 s37, 60, s37')
        a(f's_add_u32 s37, s37, s{s_w}')
        vq = VmQueue()
        P = Proj(a, vq, s_w, 16384, 65536, ACC=64, FB=PFB, fbk='a', VA=8, V_L16=V_L16, VT=33, SG=40, wflags=(' nt' if opt.get('nt', True) else ''))
        P.setup_addrs(set_l16=False)
        a('s_waitcnt lgkmcnt(0)')
        make_srd(a, S_X, 64, 0, 2*MB); make_srd(a, S_WQ, 66, 0, 4*MB)
        init = [f's_lshl_b32 s{P.s_a0}, s36, 15', f's_lshl_b32 s{P.s_a1}, s37, 15',
                f's_lshl_b32 s{P.s_wo}, s{s_w}, 17', f's_lshl_b32 s{s_t0}, s{s_h}, 8', f's_add_u32 s{P.s_wo}, s{P.s_wo}, s{s_t0}']
        qpass = [dict(swap=False, srdA=S_X, srdW=S_WQ, init=init, epi=lambda: None, acck='v')]
        P.prologue(qpass[0])
        for l in self.kv_srd_lines(): a(l)
        M = self.setup_attn_regs()
        for e in range(128): a(f'v_accvgpr_write_b32 a{e}, 0')
        P.start_compute()
        self.stamp()
        KG = self.kv_groups('K', 6); VG = self.kv_groups('V', 4)
        def xl(p, t): return KG[:6] if t == 5 else (VG[:2] if t == 6 else [])
        def xe(p, t): return KG[6:] if t == 6 else (VG[2:] if t == 7 else [])
        P.run(qpass, extra_early=xe, extra_late=xl)
        self.stamp()
        self.q_to_frags()
        return M

    def emit_body(self, M):
        a = self.a; N = self.name; opt = self.opt
        vm = self.vm
        a.label(f'{N}_body')
        a(f's_waitcnt vmcnt({vm[("pro",-3)]})')
        a('s_barrier')
        for grp in self.dma_group('K', 1):
            for l in grp: a(l)
        for j in range(D//2):
            a(f'ds_read_b128 {ar(FR+4*j,4)}, v{V_KA} offset:{j*1024}')
        it = Iter(1, None, None, 1, 0, czero=True)
        if self.mlp: it.fill = [('x', f'v_accvgpr_write_b32 a{MACC+e}, 0') for e in range(64)]
        self.emit_iter(it, ('pro', -2))
        self.emit_init()
        self.stamp()
        it = Iter(1, 'init', None, 1, 1); it.mlp_first = self.mlp
        self.emit_iter(it, ('pro', -1))
        self.stamp()
        def MI(*args, dma=True):
            it = Iter(*args); it.mlp = True; it.mlp_dma = dma
            return it
        a(f's_cmp_eq_u32 s{s_i}, 0')
        a(f's_cbranch_scc1 {N}_trans')
        a(f's_sub_u32 s{s_cnt}, s{s_g1}, 6')
        a(f's_lshr_b32 s{s_cnt}, s{s_cnt}, 1')
        a('.p2align 6')
        a.label(f'{N}_p1loop')
        self.emit_iter(MI(1, '1', 1, 1, 0), ('p1loop', 0))
        self.emit_iter(MI(1, '1', 1, 1, 1), ('p1loop', 1))
        a(f's_sub_u32 s{s_cnt}, s{s_cnt}, 1')
        a(f's_cmp_lg_u32 s{s_cnt}, 0')
        a(f's_cbranch_scc1 {N}_p1loop')
        def pf(ptr, nb, so):
            if not opt.get('pf', True): return []
            l = Asm(); make_srd(l, 76, ptr, 0, nb); l(f'buffer_load_dword v253, v252, s[76:79], s{so} offen')
            return l.lines
        ct = opt.get('pfcode4', False) and opt.get('fusefin')
        self.emit_iter(MI(1, '1', 1, 1, 0), ('p1peel', 0), extra_post=(self.code_touch('d', f'{N}_trans', f'{N}_p2loop', 1, 234) if ct else None))
        def relA(k):
            return [f's_sub_u32 s{s_t1}, s{s_g1}, {k}', f's_lshl_b32 s{s_t1}, s{s_t1}, 5', f'v_subrev_u32 v{V_REL[0]}, s{s_t1}, v{V_RELA}']
        self.emit_iter(MI(1, '1m', 1, 1, 1), ('p1peel', 1), extra_pre=relA(4), extra_post=pf(72, 1792*4096, 74))
        for l in pf(70, 4*MB, 75): a(l)
        a.label(f'{N}_trans')
        self.stamp()
        self.emit_iter(MI(1, '1m', 1, 1, 0), ('trans', -4), extra_pre=relA(3))
        sw = [f's_lshl_b32 s{s_t0}, s{s_w}, 11']
        self.emit_iter(MI(1, '1m', 1, 2, 1), ('trans', -3), extra_pre=relA(2) + sw + [f's_add_u32 s{s_ks}, s{s_ks}, s{s_t0}'])
        self.emit_iter(MI(2, '1m', 1, 2, 0), ('trans', -2), extra_pre=relA(1), extra_post=(self.code_touch('e', f'{N}_epi', f'{N}_phasec', 1, 234) if ct else None))
        def relB(expr_lines):
            return expr_lines + [f'v_subrev_u32 v{V_REL[0]}, s{s_t1}, v{V_RELB}', f'v_subrev_u32 v{V_REL[1]}, 32, v{V_REL[0]}']
        self.emit_iter(MI(2, '2m', 1, 2, 1), ('trans', -1), extra_pre=relB([f's_lshl_b32 s{s_t1}, s{s_g1}, 5']))
        self.stamp()
        a('s_nop 12')
        self.epilogue_tile(OA, LA, 56)
        a(f's_lshl_b32 s{s_t0}, s{s_w}, 11')
        a(f's_add_u32 s{s_vs}, s{s_vs}, s{s_t0}')
        a(f's_cmp_eq_u32 s{s_i}, 7')
        a(f's_cbranch_scc1 {N}_epi')
        a(f's_sub_u32 s{s_cnt}, 30, s{s_g1}')
        a(f's_lshr_b32 s{s_cnt}, s{s_cnt}, 1')
        a('.p2align 6')
        a.label(f'{N}_p2loop')
        self.emit_iter(MI(2, '2', 2, 2, 0), ('p2loop', 0))
        self.emit_iter(MI(2, '2', 2, 2, 1), ('p2loop', 1))
        a(f's_sub_u32 s{s_cnt}, s{s_cnt}, 1')
        a(f's_cmp_lg_u32 s{s_cnt}, 0')
        a(f's_cbranch_scc1 {N}_p2loop')
        a.label(f'{N}_p2peel')
        self.emit_iter(MI(2, '2', 2, 2, 0, dma=False), ('p2peel', 0), extra_pre=(self.code_touch('f', f'{N}_p2peel', f'{N}_phasec', 1, 234) if ct else None))
        relB32 = [f's_sub_u32 s{s_t1}, 64, s{s_g1}', f's_lshl_b32 s{s_t1}, s{s_t1}, 5']
        self.emit_iter(MI(2, '2m', 2, 2, 1, dma=False), ('p2peel', 1), extra_pre=relB(relB32))
        a.label(f'{N}_epi')
        self.stamp()
        relB33 = [f's_sub_u32 s{s_t1}, 66, s{s_g1}', f's_lshl_b32 s{s_t1}, s{s_t1}, 5']
        it = Iter(None, '2m', 2, None, 0); it.nov = True
        a('s_waitcnt lgkmcnt(0)')
        self.emit_iter(it, ('epi', 32), extra_pre=relB(relB33))
        it = Iter(None, None, 2, None, 1); it.nov = True
        vq2 = VmQueue()
        if self.mlp and opt.get('e2fill', True):
            it.fill, it.fill_groups = M.finish_pre()
            if opt.get('fusefin') and opt.get('pfcode3', True):
                it.fill_groups = list(it.fill_groups) + [(self.code_touch('c', f'{N}_phasec', f'{N}_end', 1, 60), 'code')]
            it.vq = vq2
        a('s_nop 1')
        self.emit_iter(it, None)
        if opt.get('fusefin'):
            import gen_final
            gen_final.final_pointer_loads(a)
        self.stamp()
        def fill():
            make_srd(a, 76, 34, WS_PART, 8*MB)
            a(f's_sub_u32 s{s_t0}, s2, 224'); a(f's_lshl_b32 s{s_t0}, s{s_t0}, 2'); a(f's_add_u32 s{s_t0}, s{s_t0}, s{s_w}'); a(f's_lshl_b32 s{s_t0}, s{s_t0}, 16')
            for e in range(4): a(f'v_mov_b32 v{V_T+4+e}, -1')
            a(f's_mov_b32 s{s_cnt}, 16')
            a.label(f'{N}_fill')
            for q in range(4):
                a(f'buffer_store_dwordx4 v[{V_T+4}:{V_T+7}], v{V_L16}, s[76:79], s{s_t0} offen offset:{q*1024}' + (' sc1' if (opt.get('fusefin') or opt.get('fillsc1', True)) else ''))
            a('s_waitcnt vmcnt(40)')
            a(f's_add_u32 s{s_t0}, s{s_t0}, 4096')
            a(f's_sub_u32 s{s_cnt}, s{s_cnt}, 1')
            a(f's_cmp_lg_u32 s{s_cnt}, 0')
            a(f's_cbranch_scc1 {N}_fill')
        def wbl2(lab):
            if opt.get('wbl2', True):
                a(f's_cmp_eq_u32 s{s_w}, 0'); a(f's_cbranch_scc0 {N}_{lab}'); a('buffer_wbl2 sc1'); a.label(f'{N}_{lab}')
        a(f's_cmp_eq_u32 s{s_i}, {self.nomlp_i}')
        a(f's_cbranch_scc1 {N}_nomlp')
        if opt.get('fusefin') and opt.get('l3', {}).get('ofirst', True) and self.nomlp_i == 7: M.final_wait = 2
        if opt.get('fusefin') and opt.get('l3', {}).get('ofirst', True) and opt.get('l3', {}).get('udefer', True) and self.nomlp_i == 7: M.final_wait = 0; M.defer = True
        M.epi_first = opt.get('epifirst', False)
        M.finish(vq2, lambda: self.epilogue_tile(OB, LB, 58, vq2), self.stamp, pre_done=opt.get('e2fill', True))
        if self.nomlp_i != 7:
            a(f's_cmp_eq_u32 s{s_i}, 7'); a(f's_cbranch_scc0 {N}_nofill')
            wbl2('nowb'); fill(); a('s_waitcnt vmcnt(0)')
            a.label(f'{N}_nofill')
        self.stamp()
        if opt.get('fusefin'):
            a(f's_branch {N}_phasec')
        else:
            self.dump_stamps()
            a('s_endpgm')
        a.label(f'{N}_nomlp')
        a('s_mov_b32 s61, 0x7ffff000')
        if self.nomlp_i == 7: wbl2('nowb')
        a('s_nop 15')
        self.epilogue_tile(OB, LB, 58)
        if self.nomlp_i == 7: fill()
        a('s_waitcnt vmcnt(0)')
        self.stamp()
        if opt.get('fusefin'):
            a.label(f'{N}_phasec')
            self.emit_phasec()
        else:
            self.dump_stamps()
        a.label(f'{N}_end')
        a('s_endpgm')
        for u, it in self.slow: self.emit_slow(u, it)
        self.emit_rescale()
```

```python
from asmlib import *
from layout import *
import gen_attn2 as A
from gen_attn2 import *
from gen_proj2 import Proj, VmQueue, frag_store_groups
from gen_proj import make_srd
import gen_proj, gen_final
from gen_kv import ProjKV
from gen_proj16 import Proj16, frag_store_groups16, q_to_frags16

class Main(Attn):
    def emit_phasec(self):
        a = self.a; N = self.name; opt = self.opt
        a('s_barrier')
        make_srd(a, 76, 34, WS_FL, 112*128)
        a(f's_lshr_b32 s27, s{s_h}, 3'); a('s_lshl_b32 s27, s27, 3'); a(f's_add_u32 s27, s27, s{s_i}'); a('s_lshl_b32 s27, s27, 7')
        a(f's_and_b32 s29, s{s_h}, 7'); a('s_lshl_b32 s29, s29, 2'); a('s_add_u32 s27, s27, s29')
        a('v_mov_b32 v41, s27')
        ofirst = opt.get('l3', {}).get('ofirst', True)
        a('s_mov_b32 s60, 0x7fffff00')
        a('s_mov_b32 s30, 1')
        a(f's_cmp_eq_u32 s{s_i}, {self.nomlp_i}'); a(f's_cbranch_scc1 {N}_cnou')
        a('s_mul_i32 s27, s80, 37'); a('s_lshr_b32 s27, s27, 8'); a('s_mul_i32 s29, s27, 7'); a('s_sub_u32 s29, s80, s29')
        a('s_lshl_b32 s29, s29, 1'); a('s_and_b32 s31, s81, 1'); a('s_add_u32 s29, s29, s31'); a('s_lshl_b32 s29, s29, 2')
        a('s_lshl_b32 s27, s27, 2'); a('s_lshr_b32 s31, s81, 1'); a('s_add_u32 s27, s27, s31'); a('s_add_u32 s27, s27, 32'); a('s_lshl_b32 s27, s27, 7'); a('s_add_u32 s27, s27, s29')
        if ofirst: a('s_mov_b32 s60, s27')
        else: a('v_writelane_b32 v41, s27, 1'); a('s_or_b32 s30, s30, 2')
        a.label(f'{N}_cnou')
        a(f's_cmp_eq_u32 s{s_i}, 7'); a(f's_cbranch_scc0 {N}_cflag')
        a('s_sub_u32 s27, s2, 224'); a('s_lshl_b32 s27, s27, 1'); a('s_add_u32 s27, s27, 48'); a('s_lshl_b32 s27, s27, 7')
        a('v_writelane_b32 v41, s27, 2'); a('s_add_u32 s27, s27, 128'); a('v_writelane_b32 v41, s27, 3'); a('s_or_b32 s30, s30, 12')
        a.label(f'{N}_cflag')
        a('v_mov_b32 v42, 1')
        a(f's_cmp_eq_u32 s{s_w}, 0'); a('s_cselect_b32 exec_lo, s30, 0'); a('s_mov_b32 exec_hi, 0')
        a('buffer_store_dword v42, v41, s[76:79], 0 offen sc1')
        a('s_mov_b64 exec, -1')
        def poll(s_sb, s_mb, s_p, s_tile, ofirst=False):
            make_srd(a, 56, 76, WS_FL, 112*128)
            a(f's_sub_u32 s49, 15, s{s_sb}'); a(f's_min_u32 s49, s49, s{s_sb}'); a(f's_lshl_b32 s50, s{s_p}, 3'); a('s_add_u32 s49, s49, s50'); a('s_lshl_b32 s49, s49, 7')
            a(f's_lshl_b32 s50, s{s_p}, 2'); a(f's_add_u32 s50, s50, s{s_mb}'); a('s_add_u32 s50, s50, 32'); a('s_lshl_b32 s50, s50, 7'); a('s_sub_u32 s50, s50, 32')
            a(f's_add_u32 s51, s{s_tile}, 48'); a('s_lshl_b32 s51, s51, 7')
            a('v_lshrrev_b32 v45, 2, v2')
            a('v_mov_b32 v46, s50'); a('v_mov_b32 v47, s49'); a('v_cmp_gt_u32 vcc, 32, v45'); a('s_nop 1'); a('v_cndmask_b32 v46, v46, v47, vcc')
            a('v_add_u32 v45, v45, v46'); a('v_writelane_b32 v45, s51, 22')
            a(f's_cmp_eq_u32 s{s_w}, {1 if opt.get("pollw1", True) else 0}'); a(f's_cbranch_scc0 {N}_cpolled')
            a('s_mov_b32 s49, 0')
            a.label(f'{N}_cpoll')
            a('buffer_load_dword v44, v45, s[56:59], 0 offen sc1')
            a('s_waitcnt vmcnt(0)')
            a('v_cmp_ne_u32 vcc, 1, v44'); a('s_nop 3'); a(f's_and_b32 s50, vcc_lo, {0xff if ofirst else 0x7fffff}'); a('s_cmp_eq_u32 s50, 0')
            a(f's_cbranch_scc1 {N}_cpolled')
            a('s_add_u32 s49, s49, 1'); a('s_cmp_ge_u32 s49, 0x20000'); a(f's_cbranch_scc1 {N}_cpolled')

            if opt.get("csleep", 0): a(f's_sleep {opt.get("csleep")}')
            a(f's_branch {N}_cpoll')
            a.label(f'{N}_cpolled')
            a('s_barrier')
        gen_final.emit_final(a, N + '_fin', inline=True, sync=poll, stamps=self.st, **opt.get('l3', {}))

    def emit_head(self):
        a = self.a; N = self.name; opt = self.opt
        S_CK, S_WK, S_X, S_O, S_WV, S_WQ = 4, 8, 12, 16, 92, 60
        S_H, S_G, S_GW = 76, (56 if opt.get('lnfill', False) else 48), 52
        a(f's_cmp_ge_u32 s2, 256')
        a(f's_cbranch_scc1 {N}_end')
        if opt.get('pfcode', True):
            per = opt.get('code_per', 5)
            a('s_getpc_b64 s[92:93]')
            a.label(f'{N}_pc0')
            a('s_lshr_b32 s32, s2, 3'); a('s_lshl_b32 s32, s32, 2')
            a('v_lshrrev_b32 v6, 6, v0'); a('v_add_u32 v6, s32, v6'); a(f'v_mul_u32_u24 v6, {per}, v6')
            a('v_and_b32 v7, 63, v0'); a(f'v_min_u32 v7, {per-1}, v7'); a('v_add_u32 v6, v6, v7'); a('v_lshlrev_b32 v6, 7, v6')
            a(f'v_min_u32 v6, {N}_end-{N}_pc0, v6')
            a('v_mov_b32 v7, s93'); a('v_add_co_u32 v6, vcc, s92, v6'); a('s_nop 1'); a('v_addc_co_u32 v7, vcc, 0, v7, vcc')
            a('global_load_dword v253, v[6:7], off')
        self.stamp()
        a(f's_load_dwordx2 s[34:35], s[0:1], {KA_WS}')
        a(f's_load_dwordx2 s[64:65], s[0:1], {KA_AX}')
        a(f's_load_dwordx2 s[90:91], s[0:1], {KA_CKV}')
        a(f's_load_dwordx4 s[96:99], s[0:1], {KA_WUK}')
        a(f's_load_dwordx2 s[38:39], s[0:1], {KA_GW}')
        a(f's_load_dwordx2 s[66:67], s[0:1], {KA_WQ}')
        a(f's_load_dwordx2 s[68:69], s[0:1], {KA_W1}')
        a(f's_load_dwordx2 s[86:87], s[0:1], {KA_B1}')
        a(f's_load_dwordx2 s[70:71], s[0:1], {KA_WO}')
        a(f's_load_dwordx2 s[72:73], s[0:1], {KA_W2}')
        a(f's_load_dwordx2 s[100:101], s[0:1], {KA_DBG}')
        a(f'v_lshrrev_b32 v1, 6, v0')
        a(f'v_and_b32 v2, 63, v0')
        a(f'v_lshlrev_b32 v{V_L16}, 4, v2')
        a(f'v_readfirstlane_b32 s{s_w}, v1')
        a(f's_and_b32 s{s_t0}, s2, 7')
        a(f's_lshr_b32 s{s_t1}, s2, 3')
        a(f's_lshl_b32 s{s_h}, s{s_t0}, 2')
        a(f's_and_b32 s{s_t0}, s{s_t1}, 3')
        a(f's_add_u32 s{s_h}, s{s_h}, s{s_t0}')
        a(f's_lshr_b32 s{s_i}, s{s_t1}, 2')
        a(f's_add_u32 s{s_g1}, s{s_i}, 1')
        a(f's_lshl_b32 s{s_g1}, s{s_g1}, 2')
        a(f's_lshl_b32 s36, s{s_i}, 2'); a(f's_add_u32 s36, s36, s{s_w}')
        a(f's_lshl_b32 s37, s{s_i}, 2'); a(f's_sub_u32 s37, 60, s37'); a(f's_add_u32 s37, s37, s{s_w}')
        vq = VmQueue()
        if opt.get('pfcode', True): vq.push('code')
        p16 = opt.get('p16')
        if p16:
            P = Proj16(a, vq, s_w, 16384, 16384, FBL=[[192+4*k for k in range(12)], [4*k for k in range(12)]], V_WD=60, ACC=64, fbk='a', VA=8, V_L16=V_L16, VT=33, SG=40,
                       wflags=(' nt' if opt.get('nt', True) else ''), stamps=self.st, opt=opt)
        else:
            P = Proj(a, vq, s_w, 16384, 16384, ACC=64, FB=(192, 216), fbk='a', VA=8, V_L16=V_L16, VT=33, SG=40,
                     wflags=(' nt' if opt.get('nt', True) else ''), stamps=self.st, opt=opt)
        P.setup_addrs(set_l16=False)
        lnfill = opt.get('lnfill', False)
        LB_ = 40
        a(f's_lshl_b32 s82, s2, 3'); a(f's_lshl_b32 s83, s{s_w}, 1'); a('s_add_u32 s82, s82, s83')
        a('s_lshl_b32 s83, s82, 2'); a('s_lshl_b32 s82, s82, 10')
        a('s_waitcnt lgkmcnt(0)')
        make_srd(a, S_CK, 90, 0, 2*MB); make_srd(a, S_WK, 96, 0, 4*MB)
        def lnloads():
            make_srd(a, S_X, 64, 0, 2*MB); make_srd(a, S_GW, 38, 0, 1024)
            a(f'buffer_load_dwordx4 v[{LB_}:{LB_+3}], v{V_L16}, s[{S_X}:{S_X+3}], s82 offen'); vq.push('ln')
            a(f'buffer_load_dwordx4 v[{LB_+4}:{LB_+7}], v{V_L16}, s[{S_X}:{S_X+3}], s82 offen offset:1024'); vq.push('ln')
            a(f'buffer_load_dwordx4 v[{LB_+16}:{LB_+19}], v{V_L16}, s[{S_GW}:{S_GW+3}], 0 offen'); vq.push('ln')
        if not lnfill: lnloads()
        initKV = [f's_lshl_b32 s{P.s_a0}, s{s_i}, 18', f's_lshl_b32 s49, s{s_w}, 16', f's_add_u32 s{P.s_a0}, s{P.s_a0}, s49',
                  f's_add_u32 s{P.s_a1}, s{P.s_a0}, 32768',
                  f's_lshl_b32 s{P.s_wo}, s{s_w}, 17', f's_lshl_b32 s49, s{s_h}, 8', f's_add_u32 s{P.s_wo}, s{P.s_wo}, s49']
        initQ = [f's_lshl_b32 s{P.s_a0}, s36, 15', f's_lshl_b32 s{P.s_a1}, s37, 15',
                 f's_lshl_b32 s{P.s_wo}, s{s_w}, 17', f's_lshl_b32 s49, s{s_h}, 8', f's_add_u32 s{P.s_wo}, s{P.s_wo}, s49']
        ps = [dict(swap=False, srdA=S_CK, srdW=S_WK, init=initKV, epi=lambda: None, acck='v'),
              dict(swap=True, srdA=S_CK, srdW=S_WV, init=initKV, epi=lambda: None, acck='a'),
              dict(swap=False, srdA=S_X, srdW=S_WQ, init=initQ, epi=lambda: None, acck='v')]
        P.prologue(ps[0], after0=(lnloads if lnfill else None))
        make_srd(a, S_WV, 98, 0, 4*MB)
        make_srd(a, S_WQ, 66, 0, 4*MB)
        make_srd(a, S_O, 34, WS_K, 32*MB)
        make_srd(a, S_H, 34, WS_H, 2*MB); make_srd(a, S_G, 34, WS_G, 8192)
        real_a = self.a; tmp_a = Asm(); self.a = tmp_a
        M = self.setup_attn_regs()
        self.a = real_a; M.a = real_a
        c = 0x3e0293ee
        setup = tmp_a.lines + [f'v_mov_b32 v2, {hex(c)}', f'v_mov_b32 v3, {hex(c)}'] + [f'v_accvgpr_write_b32 a{e}, 0' for e in range(48 if p16 else 0, 64)]
        setupG = [(setup[k:k+4], None) for k in range(0, len(setup), 4)]
        perS = -(-len(setupG)//5)
        s_first = 3 if lnfill else 1
        gen_proj.R.V_L16 = V_L16
        st_save = STF.st; STF.st = ' sc1'
        main_a = a
        if lnfill: a = Asm()
        else: vq.wait_for(a, 'ln')
        if lnfill: gen_proj.emit_ln_compute(a, LB_, S_H, S_G, 82, 83, 208, gw=232, sm=240, tmp=244)
        else: gen_proj.emit_ln_compute(a, LB_, S_H, S_G, 82, 83, 64)
        a('s_getreg_b32 s33, hwreg(HW_REG_XCC_ID, 0, 4)')
        a('s_or_b32 s33, s33, 0x50')
        make_srd(a, 76, 34, WS_HF, 4096)
        a(f's_lshl_b32 s32, s{s_h}, 7')
        a('v_mov_b32 v41, 0'); a(f'v_lshrrev_b32 v42, 2, v{V_L16}')
        a(f's_or_b32 s{s_t0}, s{s_w}, s{s_i}'); a(f's_cmp_eq_u32 s{s_t0}, 0'); a('s_cselect_b32 exec_lo, -1, 0'); a('s_mov_b32 exec_hi, 0')
        a('buffer_store_dword v41, v42, s[76:79], s32 offen sc1')
        a('s_mov_b64 exec, -1')
        if opt.get('fusefin'):
            make_srd(a, 76, 34, WS_FL, 112*128)
            a('s_lshl_b32 s32, s2, 7')
            a(f's_cmp_eq_u32 s{s_w}, 0'); a('s_cselect_b32 exec_lo, -1, 0'); a('s_mov_b32 exec_hi, 0')
            a('buffer_store_dword v41, v42, s[76:79], s32 offen sc1')
            a('s_mov_b64 exec, -1')
        if lnfill:
            lnG = [(['@wait'], 'ln')]
            cur = []; masked = False
            for k_, l in enumerate(a.lines):
                nxt_addc = k_+1 < len(a.lines) and a.lines[k_+1].startswith('s_addc')
                starts_mask = ('exec' in l and not l.startswith('s_mov_b64 exec, -1') and not l.startswith('s_mov_b64 exec, s['))
                if (l.startswith('s_cmp') or starts_mask) and not masked:
                    if cur: lnG.append((cur, None)); cur = []
                    masked = True
                cur.append(l)
                if l.startswith('buffer_'):
                    if not masked: lnG.append((cur, 'lnst')); cur = []
                if masked and (l.startswith('s_mov_b64 exec, -1') or l.startswith('s_mov_b64 exec, s[')):
                    lnG.append((cur, 'lnst')); cur = []; masked = False
                elif not masked and len(cur) >= 4 and not nxt_addc:
                    lnG.append((cur, None)); cur = []
            if cur: lnG.append((cur, None))
            assert not masked
            a = main_a
        else:
            for _ in range(5 if opt.get('fusefin') else 4): vq.push('lnst')
            lnG = []
        perL = -(-len(lnG)//3)
        a(f's_and_b32 s91, s{s_h}, 3'); a(f's_cmp_eq_u32 s{s_w}, 0'); a('s_cselect_b32 s91, s91, 0xff')
        a(f's_lshl_b32 s{s_t0}, s{s_h}, 6'); a(f's_lshl_b32 s{s_t1}, s{s_i}, 3'); a(f's_add_u32 s{s_t0}, s{s_t0}, s{s_t1}')
        a(f's_lshl_b32 s{s_t1}, s{s_w}, 1'); a(f's_add_u32 s{s_t0}, s{s_t0}, s{s_t1}'); a(f's_lshl_b32 s{s_t0}, s{s_t0}, 13')
        for k in range(4):
            a(f's_add_u32 s{50+k}, s{s_t0}, {k*4096}')
            a(f's_add_u32 s{96+k}, s{s_t0}, {16*MB + k*4096}')
        STF.st = opt.get('kst', opt.get('kvst', ''))
        VK, VV = 220, 222
        if p16: P.store_addrs(VK, VV)
        KG = frag_store_groups16(P, 'K', 'v', S_O, 50, None, VK, v_scale=2, tag='kst') if p16 else frag_store_groups(P, 'K', 'v', S_O, 50, None, v_scale=2, tag='kst')
        STF.st = opt.get('vst', opt.get('kvst', ''))
        VGs = frag_store_groups16(P, 'V', 'a', S_O, 96, 40, VV, tag='vst') if p16 else frag_store_groups(P, 'V', 'a', S_O, 96, 40, tag='vst')
        STF.st = st_save
        nv = opt.get('vstages', 3); sigt = opt.get('sigt', nv+1)
        perK = len(KG)//8; perV = len(VGs)//nv
        KV0 = self.kv_groups('K', 6); VV0 = self.kv_groups('V', 4)
        zero = [([f'v_accvgpr_write_b32 a{64+4*k+e}, 0' for e in range(4)], None) for k in range(16)]
        srds = self.kv_srd_lines()
        dbg = Asm(); make_srd(dbg, 76, 100, 0, 256)
        hfl = Asm(); make_srd(hfl, 92, 34, WS_HF, 4096)
        def lnsig(k): return (dbg.lines + ['v_mov_b32 v58, 0', 'v_mov_b32 v59, s33', f's_cmp_eq_u32 s91, {k}', 's_cselect_b64 exec, 1, 0',
               f'buffer_store_byte v59, v58, s[76:79], s2 offen sc1', 's_mov_b64 exec, -1'], 'flag')
        idaddr = [f'v_lshlrev_b32 v57, 1, v{V_L16}', f's_lshr_b32 s{s_t1}, s{s_h}, 2', f's_and_b32 s32, s{s_h}, 3', 's_lshl_b32 s32, s32, 3', f's_add_u32 s48, s32, s{s_t1}']
        idld = (dbg.lines + idaddr + ['buffer_load_ubyte v56, v57, s[76:79], s48 offen sc1'], 'id')
        sig = dbg.lines + hfl.lines + [f's_cmp_eq_u32 s{s_w}, 0', f's_cbranch_scc0 {N}_nosig', f's_mov_b32 s{s_cnt}, 0',
               f'{N}_idchk:',
               'v_readfirstlane_b32 s32, v56', 's_and_b32 s32, s32, 0x40', 's_cmp_lg_u32 s32, 0', f's_cbranch_scc1 {N}_idok',
               f's_add_u32 s{s_cnt}, s{s_cnt}, 1', f's_cmp_ge_u32 s{s_cnt}, 0x20000', f's_cbranch_scc1 {N}_idok',
               'buffer_load_ubyte v56, v57, s[76:79], s48 offen sc1', 's_waitcnt vmcnt(0)', 's_nop 0', f's_branch {N}_idchk',
               f'{N}_idok:',
               'v_cmp_ne_u32 vcc, s33, v56', 's_nop 3', 's_and_b32 s32, vcc_lo, 0xff', 's_cmp_eq_u32 s32, 0',
               f's_cbranch_scc1 {N}_samexcd', 'buffer_wbl2 sc1', 's_waitcnt vmcnt(0)', f'{N}_samexcd:',
               f's_lshl_b32 s32, s{s_h}, 7', f's_lshl_b32 s{s_t1}, s{s_i}, 2', f's_add_u32 s32, s32, s{s_t1}',
               'v_mov_b32 v41, 0', 'v_mov_b32 v42, 1', 's_mov_b64 exec, 1',
               'buffer_store_dword v42, v41, s[92:95], s32 offen sc1', 's_mov_b64 exec, -1', f'{N}_nosig:']
        pollld = ['buffer_load_dword v232, v233, s[76:79], 0 offen sc1', 'buffer_load_dword v235, v233, s[92:95], s91 offen sc1']
        pollpre = dbg.lines + hfl.lines + [f's_lshl_b32 s91, s{s_h}, 7', f'v_lshrrev_b32 v233, 2, v{V_L16}', 'v_mov_b32 v234, 0x40404040',
                   f's_cmp_eq_u32 s{s_w}, 0', f's_cbranch_scc0 {N}_nopoll0'] + pollld + [f'{N}_nopoll0:']
        def pfw(srd_): return ([f'v_lshrrev_b32 v58, 5, v{V_L16}', 'v_lshlrev_b32 v58, 13, v58', f'v_bfe_u32 v59, v{V_L16}, 4, 1', 'v_lshl_add_u32 v58, v59, 7, v58',
               f's_lshl_b32 s32, s{s_w}, 4', f's_lshl_b32 s49, s{s_i}, 6', 's_add_u32 s32, s32, s49', 's_lshl_b32 s32, s32, 13',
               f's_lshl_b32 s49, s{s_h}, 8', 's_add_u32 s32, s32, s49', 's_mov_b32 exec_hi, 0',
               f'buffer_load_dword v253, v58, s[{srd_}:{srd_+3}], s32 offen', 's_mov_b64 exec, -1'], 'pf')
        def pfx(qt): return ([f'v_lshrrev_b32 v58, 7, v{V_L16}', 'v_lshlrev_b32 v58, 10, v58', f'v_bfe_u32 v59, v{V_L16}, 4, 3', 'v_lshl_add_u32 v58, v59, 7, v58',
               f's_lshl_b32 s32, s{qt}, 5', f's_and_b32 s49, s{s_h}, 3', 's_lshl_b32 s49, s49, 3', 's_add_u32 s32, s32, s49', 's_lshl_b32 s32, s32, 10',
               f'buffer_load_dword v253, v58, s[{S_X}:{S_X+3}], s32 offen'], 'pf')
        def pfc(k): return ([f'v_lshrrev_b32 v58, 7, v{V_L16}', 'v_lshlrev_b32 v58, 10, v58', f'v_bfe_u32 v59, v{V_L16}, 4, 3', 'v_lshl_add_u32 v58, v59, 7, v58',
               f's_lshl_b32 s32, s{s_i}, 8', f's_and_b32 s49, s{s_h}, 3', 's_lshl_b32 s49, s49, 6', 's_add_u32 s32, s32, s49', f's_lshl_b32 s49, s{s_w}, 4', 's_add_u32 s32, s32, s49',
               f's_add_u32 s32, s32, {8*k}', 's_lshl_b32 s32, s32, 10', f'buffer_load_dword v253, v58, s[{S_CK}:{S_CK+3}], s32 offen'], 'pf')
        def pf1():
            l = Asm(); make_srd(l, 76, 68, 0, 2048*3584)
            l(f'v_lshlrev_b32 v58, 3, v{V_L16}'); l('s_lshl_b32 s32, s2, 2'); l(f's_add_u32 s32, s32, s{s_w}'); l('s_mul_i32 s32, s32, 7168')
            l('buffer_load_dword v253, v58, s[76:79], s32 offen')
            return (l.lines, 'pf')
        def pfw_k(srd_, k):
            l, tag = pfw(srd_)
            l = list(l); idx = l.index('s_mov_b32 exec_hi, 0')
            return (l[:idx] + [f's_and_b32 s49, s{s_h}, 3', f's_cmp_eq_u32 s49, {k}', 's_cselect_b32 exec_lo, -1, 0'] + l[idx:], tag)
        pf = opt.get('pfa', 'vq')
        earlypoll = opt.get('earlypoll', True)
        def xe(p, t):
            if p == 0:
                g = list(setupG[(t-s_first)*perS:(t-s_first+1)*perS]) if s_first <= t < s_first+5 else []
                if t < 3: g = list(lnG[t*perL:(t+1)*perL]) + g
                if t == 0:
                    if 'k' in pf: g.append(pfw(S_WK))
                    if 'c' in pf: g += [pfc(0), pfc(1)]
                if '1' in pf and t == 6: g.append(pf1())
                if 'v' in pf and t == opt.get('pfv_t', 1): g.append(pfw(S_WV))
                return g
            if p == 1:
                g = list(KG[t*perK:(t+1)*perK])
                if 'q' in pf and t == 1: g.append(pfw(S_WQ))
                if 'x' in pf and t == 2: g.append(pfx(36))
                if 'x' in pf and t == 3: g.append(pfx(37))
                if '2' in pf and t == 5: g.append(pf1())
                return g
            if p == 2:
                g = []
                if t < nv: g += VGs[t*perV:(t+1)*perV] + ([idld] if t == 0 else [])
                if t == nv: g += zero
                if t == (5 if earlypoll else 6): g += [(srds, None)]
                if t == (6 if earlypoll else 7): g += [(pollpre, None)]
                if earlypoll and t == 7: g += KV0[6:] + VV0
                return g
            return []
        late_pf = opt.get('pflate', {})
        def xl(p, t):
            g = []
            t0 = 4 if lnfill else 2
            if p == 0 and t0 <= t < t0+4: g.append(lnsig(t-t0))
            if p == 2 and t == sigt: g.append((sig, None))
            if earlypoll and p == 2 and t == 6: g += KV0[:6]
            if opt.get('pfcode2', True) and p == 2 and t == opt.get('pfcode2_t', 4): g.append((self.code_touch('b', f'{N}_body', f'{N}_phasec', 2, 58), 'code'))
            for (kind, p0, t0_), srd_ in ((opt.get('stagv', ('', 0, 0)), S_WV), (opt.get('stagq', ('', 0, 0)), S_WQ)):
                if kind and p == p0 and t0_ <= t < t0_+4: g.append(pfw_k(srd_, t-t0_))
            k = late_pf.get((p, t))
            if k == 'v': g.append(pfw(S_WV))
            if k == 'q': g.append(pfw(S_WQ))
            if k == '1': g.append(pf1())
            if k == 'a': g.append(pfx(36))
            if k == 'b': g.append(pfx(37))
            return g
        assert sigt >= nv + 1 and sigt <= (5 if earlypoll else 6) and 48 % nv == 0
        if earlypoll:
            chk = ['s_waitcnt vmcnt(0)', 'v_and_b32 v232, v234, v232', 'v_cmp_ne_u32 vcc, v234, v232', 'v_cmp_ne_u32 s[54:55], 1, v235', 's_nop 3',
                   's_and_b32 s32, s54, 0xff', 's_or_b32 s32, s32, vcc_lo', 's_or_b32 s32, s32, vcc_hi', 's_cmp_eq_u32 s32, 0']
            pl = [f's_cmp_eq_u32 s{s_w}, 0', f's_cbranch_scc0 {N}_polled', f's_mov_b32 s{s_cnt}, 0', f'{N}_poll:'] + chk + \
                 [f's_cbranch_scc1 {N}_polled', f's_add_u32 s{s_cnt}, s{s_cnt}, 1', f's_cmp_ge_u32 s{s_cnt}, 0x20000', f's_cbranch_scc1 {N}_polled'] + pollld + \
                 [f's_branch {N}_poll', f'{N}_polled:']
            P.prebar = lambda p, t: (pl if (p, t) == (2, 6) else [])
        P.start_compute()
        self.stamp()
        P.run(ps, extra_early=xe, extra_late=xl)
        self.stamp()
        if not earlypoll:
            if p16:
                q_to_frags16(a, 64, QA, QB)
                for e in range(48): a(f'v_accvgpr_write_b32 a{e}, 0')
            else: self.q_to_frags_cvt()
            chk = ['s_waitcnt vmcnt(0)', 'v_and_b32 v232, v234, v232', 'v_cmp_ne_u32 vcc, v234, v232', 'v_cmp_ne_u32 s[54:55], 1, v235', 's_nop 3',
                   's_and_b32 s32, s54, 0xff', 's_or_b32 s32, s32, vcc_lo', 's_or_b32 s32, s32, vcc_hi', 's_cmp_eq_u32 s32, 0']
            for l in [f's_cmp_eq_u32 s{s_w}, 0', f's_cbranch_scc0 {N}_polled', f's_mov_b32 s{s_cnt}, 0', f'{N}_poll:'] + chk + \
                     [f's_cbranch_scc1 {N}_polled', f's_add_u32 s{s_cnt}, s{s_cnt}, 1', f's_cmp_ge_u32 s{s_cnt}, 0x20000', f's_cbranch_scc1 {N}_polled',
                      ] + ([f's_sleep {opt.get("sleep", 0)}'] if opt.get("sleep", 0) else []) + pollld + [f's_branch {N}_poll', f'{N}_polled:']: a(l)
            a('s_barrier')
            for g in KV0 + VV0:
                for l in g[0]: a(l)
        else:
            assert not p16
            self.q_to_frags_cvt()
        self.stamp()
        self.q_to_frags_srd()
        return M


class Main2(Main):
    def emit_head(self):
        a = self.a; N = self.name; opt = self.opt
        S_CK, S_WK, S_X, S_O, S_WV, S_WQ = 4, 8, 12, 16, 92, 60
        S_H, S_G, S_GW = 76, 48, 52
        a(f's_cmp_ge_u32 s2, 256')
        a(f's_cbranch_scc1 {N}_end')
        if opt.get('pfcode', True):
            per = opt.get('code_per', 5)
            a('s_getpc_b64 s[92:93]')
            a.label(f'{N}_pc0')
            a('s_lshr_b32 s32, s2, 3'); a('s_lshl_b32 s32, s32, 2')
            a('v_lshrrev_b32 v6, 6, v0'); a('v_add_u32 v6, s32, v6'); a(f'v_mul_u32_u24 v6, {per}, v6')
            a('v_and_b32 v7, 63, v0'); a(f'v_min_u32 v7, {per-1}, v7'); a('v_add_u32 v6, v6, v7'); a('v_lshlrev_b32 v6, 7, v6')
            a(f'v_min_u32 v6, {N}_end-{N}_pc0, v6')
            a('v_mov_b32 v7, s93'); a('v_add_co_u32 v6, vcc, s92, v6'); a('s_nop 1'); a('v_addc_co_u32 v7, vcc, 0, v7, vcc')
            a('global_load_dword v253, v[6:7], off')
        self.stamp()
        a(f's_load_dwordx2 s[90:91], s[0:1], {KA_CKV}')
        a(f's_load_dwordx4 s[96:99], s[0:1], {KA_WUK}')
        a(f's_load_dwordx2 s[34:35], s[0:1], {KA_WS}')
        a(f's_load_dwordx2 s[64:65], s[0:1], {KA_AX}')
        a(f's_load_dwordx2 s[38:39], s[0:1], {KA_GW}')
        a(f's_load_dwordx2 s[66:67], s[0:1], {KA_WQ}')
        a(f's_load_dwordx2 s[68:69], s[0:1], {KA_W1}')
        a(f's_load_dwordx2 s[86:87], s[0:1], {KA_B1}')
        a(f's_load_dwordx2 s[70:71], s[0:1], {KA_WO}')
        a(f's_load_dwordx2 s[72:73], s[0:1], {KA_W2}')
        a(f's_load_dwordx2 s[100:101], s[0:1], {KA_DBG}')
        a(f'v_lshrrev_b32 v1, 6, v0')
        a(f'v_and_b32 v2, 63, v0')
        a(f'v_lshlrev_b32 v{V_L16}, 4, v2')
        a(f'v_readfirstlane_b32 s{s_w}, v1')
        a(f's_and_b32 s{s_t0}, s2, 7')
        a(f's_lshr_b32 s{s_t1}, s2, 3')
        a(f's_lshl_b32 s{s_h}, s{s_t0}, 2')
        a(f's_and_b32 s{s_t0}, s{s_t1}, 3')
        a(f's_add_u32 s{s_h}, s{s_h}, s{s_t0}')
        a(f's_lshr_b32 s{s_i}, s{s_t1}, 2')
        a(f's_add_u32 s{s_g1}, s{s_i}, 1')
        a(f's_lshl_b32 s{s_g1}, s{s_g1}, 2')
        a(f's_lshl_b32 s36, s{s_i}, 2'); a(f's_add_u32 s36, s36, s{s_w}')
        a(f's_lshl_b32 s37, s{s_i}, 2'); a(f's_sub_u32 s37, 60, s37'); a(f's_add_u32 s37, s37, s{s_w}')
        vq = VmQueue()
        if opt.get('pfcode', True): vq.push('code')
        a('s_waitcnt lgkmcnt(0)')
        make_srd(a, S_CK, 90, 0, 2*MB); make_srd(a, S_WK, 96, 0, 4*MB); make_srd(a, S_WV, 98, 0, 4*MB)
        make_srd(a, S_X, 64, 0, 2*MB); make_srd(a, S_GW, 38, 0, 1024); make_srd(a, S_WQ, 66, 0, 4*MB)
        KV = ProjKV(a, vq, s_w, S_CK, S_WK, S_WV, ACCK=64, ACCV=64, VR=40, VT=33, SG=(38, 39, 64, 65, 66, 67, 90), stamps=self.st, opt=opt)
        KV.setup(s_i, s_h)
        LB_ = 232
        a(f's_lshl_b32 s82, s2, 3'); a(f's_lshl_b32 s83, s{s_w}, 1'); a('s_add_u32 s82, s82, s83')
        a('s_lshl_b32 s83, s82, 2'); a('s_lshl_b32 s82, s82, 10')
        a(f'buffer_load_dwordx4 v[{LB_}:{LB_+3}], v{V_L16}, s[{S_X}:{S_X+3}], s82 offen'); vq.push('ln')
        a(f'buffer_load_dwordx4 v[{LB_+4}:{LB_+7}], v{V_L16}, s[{S_X}:{S_X+3}], s82 offen offset:1024'); vq.push('ln')
        a(f'buffer_load_dwordx4 v[{LB_+16}:{LB_+19}], v{V_L16}, s[{S_GW}:{S_GW+3}], 0 offen'); vq.push('ln')
        rest0 = KV.prologue(opt.get('kvpro', 2))
        P = Proj(a, vq, s_w, 16384, 65536, ACC=64, FB=(192, 216), fbk='a', VA=8, V_L16=V_L16, VT=33, SG=40,
                 wflags=(' nt' if opt.get('nt', False) else ''), stamps=self.st, opt=opt)
        P.setup_addrs(set_l16=False)
        make_srd(a, S_O, 34, WS_K, 32*MB)
        make_srd(a, S_H, 34, WS_H, 2*MB); make_srd(a, S_G, 34, WS_G, 8192)
        real_a = self.a; tmp_a = Asm(); self.a = tmp_a; self.mtmp = 232
        M = self.setup_attn_regs()
        self.a = real_a; M.a = real_a
        c = 0x3e0293ee
        setup = tmp_a.lines + [f'v_mov_b32 v2, {hex(c)}', f'v_mov_b32 v3, {hex(c)}']
        setupG = [(setup[k:k+4], None) for k in range(0, len(setup), 4)]
        perS = -(-len(setupG)//6)
        vq.wait_for(a, 'ln')
        gen_proj.R.V_L16 = V_L16
        st_save = STF.st; STF.st = ' sc1'
        gen_proj.emit_ln_compute(a, LB_, S_H, S_G, 82, 83, 64)
        for _ in range(3): vq.push('lnst')
        a('s_getreg_b32 s33, hwreg(HW_REG_XCC_ID, 0, 4)')
        a('s_or_b32 s33, s33, 0x50')
        make_srd(a, 76, 34, WS_HF, 4096)
        a(f's_lshl_b32 s32, s{s_h}, 7')
        a('v_mov_b32 v58, 0'); a(f'v_lshrrev_b32 v59, 2, v{V_L16}')
        a(f's_or_b32 s{s_t0}, s{s_w}, s{s_i}'); a(f's_cmp_eq_u32 s{s_t0}, 0'); a('s_cselect_b32 exec_lo, -1, 0'); a('s_mov_b32 exec_hi, 0')
        a('buffer_store_dword v58, v59, s[76:79], s32 offen sc1'); vq.push('lnst')
        a('s_mov_b64 exec, -1')
        if opt.get('fusefin'):
            make_srd(a, 76, 34, WS_FL, 112*128)
            a('s_lshl_b32 s32, s2, 7')
            a(f's_cmp_eq_u32 s{s_w}, 0'); a('s_cselect_b32 exec_lo, -1, 0'); a('s_mov_b32 exec_hi, 0')
            a('buffer_store_dword v58, v59, s[76:79], s32 offen sc1'); vq.push('lnst')
            a('s_mov_b64 exec, -1')
        a(f's_and_b32 s91, s{s_h}, 3'); a(f's_cmp_eq_u32 s{s_w}, 0'); a('s_cselect_b32 s91, s91, 0xff')
        npre = 8*opt.get('kvpre2', 3)
        for g in rest0[:npre]: KV.emit_group(g)
        KV.initial = rest0[npre:]
        a(f's_lshl_b32 s{s_t0}, s{s_h}, 6'); a(f's_lshl_b32 s{s_t1}, s{s_i}, 3'); a(f's_add_u32 s{s_t0}, s{s_t0}, s{s_t1}')
        a(f's_lshl_b32 s{s_t1}, s{s_w}, 1'); a(f's_add_u32 s{s_t0}, s{s_t0}, s{s_t1}'); a(f's_lshl_b32 s{s_t0}, s{s_t0}, 13')
        for k in range(4):
            a(f's_add_u32 s{50+k}, s{s_t0}, {k*4096}')
            a(f's_add_u32 s{96+k}, s{s_t0}, {16*MB + k*4096}')
        STF.st = opt.get('kvst', '')
        KG = frag_store_groups(P, 'K', 'v', S_O, 50, None, v_scale=2, tag='kst')
        VGs = frag_store_groups(P, 'V', 'a', S_O, 96, 40, tag='vst')
        STF.st = st_save
        nv = opt.get('vstages', 3); sigt = opt.get('sigt', nv+1)
        perV = len(VGs)//nv
        KV0 = self.kv_groups('K', 6); VV0 = self.kv_groups('V', 4)
        zero = [([f'v_accvgpr_write_b32 a{4*k+e}, 0' for e in range(4)], None) for k in range(32)]
        srds = self.kv_srd_lines()
        dbg = Asm(); make_srd(dbg, 76, 100, 0, 256)
        hfl = Asm(); make_srd(hfl, 92, 34, WS_HF, 4096)
        def lnsig(k): return (dbg.lines + ['v_mov_b32 v58, 0', 'v_mov_b32 v59, s33', f's_cmp_eq_u32 s91, {k}', 's_cselect_b64 exec, 1, 0',
               f'buffer_store_byte v59, v58, s[76:79], s2 offen sc1', 's_mov_b64 exec, -1'], 'flag')
        idaddr = [f'v_lshlrev_b32 v57, 1, v{V_L16}', f's_lshr_b32 s{s_t1}, s{s_h}, 2', f's_and_b32 s32, s{s_h}, 3', 's_lshl_b32 s32, s32, 3', f's_add_u32 s48, s32, s{s_t1}']
        idld = (dbg.lines + idaddr + ['buffer_load_ubyte v56, v57, s[76:79], s48 offen sc1'], 'id')
        sig = dbg.lines + hfl.lines + [f's_cmp_eq_u32 s{s_w}, 0', f's_cbranch_scc0 {N}_nosig', f's_mov_b32 s{s_cnt}, 0',
               f'{N}_idchk:',
               'v_readfirstlane_b32 s32, v56', 's_and_b32 s32, s32, 0x40', 's_cmp_lg_u32 s32, 0', f's_cbranch_scc1 {N}_idok',
               f's_add_u32 s{s_cnt}, s{s_cnt}, 1', f's_cmp_ge_u32 s{s_cnt}, 0x20000', f's_cbranch_scc1 {N}_idok',
               'buffer_load_ubyte v56, v57, s[76:79], s48 offen sc1', 's_waitcnt vmcnt(0)', 's_nop 0', f's_branch {N}_idchk',
               f'{N}_idok:',
               'v_cmp_ne_u32 vcc, s33, v56', 's_nop 3', 's_and_b32 s32, vcc_lo, 0xff', 's_cmp_eq_u32 s32, 0',
               f's_cbranch_scc1 {N}_samexcd', 'buffer_wbl2 sc1', 's_waitcnt vmcnt(0)', f'{N}_samexcd:',
               f's_lshl_b32 s32, s{s_h}, 7', f's_lshl_b32 s{s_t1}, s{s_i}, 2', f's_add_u32 s32, s32, s{s_t1}',
               'v_mov_b32 v41, 0', 'v_mov_b32 v42, 1', 's_mov_b64 exec, 1',
               'buffer_store_dword v42, v41, s[92:95], s32 offen sc1', 's_mov_b64 exec, -1', f'{N}_nosig:']
        pollld = ['buffer_load_dword v232, v233, s[76:79], 0 offen sc1', 'buffer_load_dword v235, v233, s[92:95], s91 offen sc1']
        pollpre = dbg.lines + hfl.lines + [f's_lshl_b32 s91, s{s_h}, 7', f'v_lshrrev_b32 v233, 2, v{V_L16}', 'v_mov_b32 v234, 0x40404040',
                   f's_cmp_eq_u32 s{s_w}, 0', f's_cbranch_scc0 {N}_nopoll0'] + pollld + [f'{N}_nopoll0:']
        initQ = [f's_lshl_b32 s{P.s_a0}, s36, 15', f's_lshl_b32 s{P.s_a1}, s37, 15',
                 f's_lshl_b32 s{P.s_wo}, s{s_w}, 17', f's_lshl_b32 s49, s{s_h}, 8', f's_add_u32 s{P.s_wo}, s{P.s_wo}, s49']
        qpass = [dict(swap=False, srdA=S_X, srdW=S_WQ, init=initQ, epi=lambda: None, acck='v')]
        Q0 = P.dma_stage(S_X, S_WQ, (0, 0), pre=initQ); Q1 = P.dma_stage(S_X, S_WQ, (0, 1)); Q2 = P.dma_stage(S_X, S_WQ, (0, 2))
        def pfw(srd_): return ([f'v_lshrrev_b32 v58, 5, v{V_L16}', 'v_lshlrev_b32 v58, 13, v58', f'v_bfe_u32 v59, v{V_L16}, 4, 1', 'v_lshl_add_u32 v58, v59, 7, v58',
               f's_lshl_b32 s32, s{s_w}, 4', f's_lshl_b32 s49, s{s_i}, 6', 's_add_u32 s32, s32, s49', 's_lshl_b32 s32, s32, 13',
               f's_lshl_b32 s49, s{s_h}, 8', 's_add_u32 s32, s32, s49', 's_mov_b32 exec_hi, 0',
               f'buffer_load_dword v253, v58, s[{srd_}:{srd_+3}], s32 offen', 's_mov_b64 exec, -1'], 'pf')
        def pf1():
            l = Asm(); make_srd(l, 76, 68, 0, 2048*3584)
            l(f'v_lshlrev_b32 v58, 3, v{V_L16}'); l('s_lshl_b32 s32, s2, 2'); l(f's_add_u32 s32, s32, s{s_w}'); l('s_mul_i32 s32, s32, 7168')
            l('buffer_load_dword v253, v58, s[76:79], s32 offen')
            return (l.lines, 'pf')
        kvpf = opt.get('kvpf', {7: 'q', 9: '1'})
        def kvx(t):
            early, late = [], []
            if 1 <= t <= 6: early += setupG[(t-1)*perS:t*perS]
            if 2 <= t <= 5: late += [lnsig(t-2)]
            if kvpf.get(t) == 'q': late += [pfw(S_WQ)]
            if kvpf.get(t) == '1': late += [pf1()]
            if t == 13: late += Q0[:4]
            if t == 14: early += Q0[4:]; late += Q1[:4]
            if t == 15: early += Q1[4:]; late += Q2[:3]
            return early, late
        def handover():
            return (0, 0), P.read_addr_update(), P.kstep_reads(0, 0)
        KV.start()
        self.stamp()
        KV.run(kvx, handover)
        P.lq = list(KV.lq); P.g_pending = Q2[3:]
        self.stamp()
        a('s_nop 7')
        for g in KG: P.emit_group(g)
        self.stamp()
        def xe(p, t):
            g = []
            if t < nv: g += VGs[t*perV:(t+1)*perV] + ([idld] if t == 0 else [])
            if t == nv: g += zero[:16]
            if t == nv+1: g += zero[16:]
            if t == 6: g += [(srds, None)]
            if t == 7: g += [(pollpre, None)]
            return g
        def xl(p, t):
            return [(sig, None)] if t == sigt else []
        assert sigt >= nv + 1 and sigt <= 6 and 48 % nv == 0
        P.run(qpass, extra_early=xe, extra_late=xl)
        self.stamp()
        self.q_to_frags_cvt()
        chk = ['s_waitcnt vmcnt(0)', 'v_and_b32 v232, v234, v232', 'v_cmp_ne_u32 vcc, v234, v232', 'v_cmp_ne_u32 s[54:55], 1, v235', 's_nop 3',
               's_and_b32 s32, s54, 0xff', 's_or_b32 s32, s32, vcc_lo', 's_or_b32 s32, s32, vcc_hi', 's_cmp_eq_u32 s32, 0']
        for l in [f's_cmp_eq_u32 s{s_w}, 0', f's_cbranch_scc0 {N}_polled', f's_mov_b32 s{s_cnt}, 0', f'{N}_poll:'] + chk + \
                 [f's_cbranch_scc1 {N}_polled', f's_add_u32 s{s_cnt}, s{s_cnt}, 1', f's_cmp_ge_u32 s{s_cnt}, 0x20000', f's_cbranch_scc1 {N}_polled',
                  ] + ([f's_sleep {opt.get("sleep", 0)}'] if opt.get("sleep", 0) else []) + pollld + [f's_branch {N}_poll', f'{N}_polled:']: a(l)
        a('s_barrier')
        for g in KV0 + VV0:
            for l in g[0]: a(l)
        self.stamp()
        self.q_to_frags_srd()
        return M
```
